```python
import torch

def _softmax(x, axis=-1):
    return torch.softmax(x, dim=axis)
def _gelu(x):
    return torch.nn.functional.gelu(x, approximate="tanh")
def _silu(x):
    return torch.nn.functional.silu(x)
def _sigmoid(x):
    return torch.sigmoid(x)
def _layernorm(x, axis=-1, eps=1e-5):
    m = x.mean(dim=axis, keepdim=True)
    v = x.var(dim=axis, keepdim=True, unbiased=False)
    return (x - m) / torch.sqrt(v + eps)
def _scatter_add(tgt, idx, src, axis=0):
    return tgt.clone().index_add_(axis, idx, src)
def _segment_sum(src, seg, n):
    out = torch.zeros((n,) + src.shape[1:], dtype=src.dtype)
    return out.index_add_(0, seg, src)
def _pad(x, pw):
    flat = tuple(v for pair in reversed(pw) for v in pair)
    return torch.nn.functional.pad(x, flat)

kernel_name = 'parallel_sum__ssm_conv_h3__glu_gated_bilinear__prompt'

def setup_inputs():

    _w = (lambda a: (lambda t: t.to(torch.bfloat16) if t.is_floating_point() else t)(torch.as_tensor(a)))
    def _A_setup():
        B, S, D = 1, 2048, 640
        ks = 4
        return {
            "q": _w((lambda *s: torch.randn(*s, dtype=torch.bfloat16) * 0.05)(B, S, D)),
            "k": _w((lambda *s: torch.randn(*s, dtype=torch.bfloat16) * 0.2)(B, S, D)),
            "v": _w((lambda *s: torch.randn(*s, dtype=torch.bfloat16) * 0.2)(B, S, D)),
            "shift_k": _w((lambda *s: torch.randn(*s, dtype=torch.bfloat16) * 0.2)(D, ks) * 0.5),
            "ssm_k": _w((lambda *s: torch.randn(*s, dtype=torch.bfloat16) * 0.4)(D, S) * (1.0 / S ** 0.5)),
            "ssm_D": _w((lambda *s: torch.randn(*s, dtype=torch.bfloat16) * 0.2)(D)),
        }
    _A_in = _A_setup()

    def _B_setup():
        B, S, D, F = 1, 2048, 640, 1728
        return {
            "x": _w((lambda *s: torch.randn(*s, dtype=torch.bfloat16) * 0.05)(B, S, D)),
            "w_gate": _w((lambda *s: torch.randn(*s, dtype=torch.bfloat16) * 0.2)(D, F) * (D ** -0.5)),
            "w_up": _w((lambda *s: torch.randn(*s, dtype=torch.bfloat16) * 0.2)(D, F) * (D ** -0.5)),
            "w_down": _w((lambda *s: torch.randn(*s, dtype=torch.bfloat16) * 0.2)(F, D) * (F ** -0.5)),
        }
    _B_in = _B_setup()

    return {
        "A_q": _A_in["q"],
        "A_k": _A_in["k"],
        "A_v": _A_in["v"],
        "A_shift_k": _A_in["shift_k"],
        "A_ssm_k": _A_in["ssm_k"],
        "A_ssm_D": _A_in["ssm_D"],
        "B_x": _B_in["x"],
        "B_w_gate": _B_in["w_gate"],
        "B_w_up": _B_in["w_up"],
        "B_w_down": _B_in["w_down"],
    }

def reference(A_q, A_k, A_v, A_shift_k, A_ssm_k, A_ssm_D, B_x, B_w_gate, B_w_up, B_w_down):
    def _A_ref(q, k, v, shift_k, ssm_k, ssm_D):
        B, S, D = q.shape
        ks = shift_k.shape[-1]
        k_pad = _pad(k, ((0, 0), (ks - 1, 0), (0, 0)))
        k_shift = torch.zeros_like(k)
        for t in range(ks):
            k_shift = k_shift + k_pad[:, t:t + S, :] * shift_k[:, ks - 1 - t][None, None, :]
        kv = k_shift * v
        L = 2 * S
        kv_pad = _pad(kv, ((0, 0), (0, S), (0, 0)))
        kf_pad = _pad(ssm_k, ((0, 0), (0, S)))
        kv_f = (lambda x, axes=(-2,-1): torch.fft.rfft2(x.float(), dim=axes))(kv_pad[:, None, :, :], axes=(1, 2))
        kf_f = (lambda x, axes=(-2,-1): torch.fft.rfft2(x.float(), dim=axes))(kf_pad[:, None, :], axes=(1, 2))
        kf_f = (lambda x, *d: x.permute(*d))(kf_f, 1, 2, 0)
        y_f = kv_f * kf_f[None, :, :, :]
        y = (lambda x, s, axes=(-2,-1): torch.fft.irfft2(x, s=s, dim=axes).to(torch.bfloat16))(y_f, (1, L), axes=(1, 2))[:, 0, :S, :]
        y = y + kv * ssm_D[None, None, :]
        return q * y

    def _B_ref(x, w_gate, w_up, w_down):
        g = torch.einsum("bsd,df->bsf", x, w_gate)
        u = torch.einsum("bsd,df->bsf", x, w_up)
        h = g * u
        return torch.einsum("bsf,fd->bsd", h, w_down)

    x = A_q
    xn = _layernorm(x, axis=-1)
    return x + _A_ref(xn, A_k, A_v, A_shift_k, A_ssm_k, A_ssm_D) + _B_ref(xn, B_w_gate, B_w_up, B_w_down)
```

```python
import sys

S, D, F = 2048, 640, 1728
WS_XN  = 0x0
WS_KVR = 0x280000
WS_WDT = 0x500000
WS_H   = 0x800000
WS_YT  = 0x1000000
SZ_SD = S * D * 2
SZ_W  = D * F * 2
SZ_H  = S * F * 2

out = []
def e(s=""):
    out.append(s)
def I(s):
    out.append("    " + s)

def srd(base, ptr, size, off=0):
    if off:
        I(f"s_add_u32 s{base}, s{ptr}, {off:#x}")
        I(f"s_addc_u32 s{base+1}, s{ptr+1}, 0")
    else:
        I(f"s_mov_b32 s{base}, s{ptr}")
        I(f"s_mov_b32 s{base+1}, s{ptr+1}")
    I(f"s_mov_b32 s{base+2}, {size:#x}")
    I(f"s_mov_b32 s{base+3}, 0x00020000")

def lo16(dst, src): I(f"v_lshlrev_b32 v{dst}, 16, v{src}")
def hi16(dst, src): I(f"v_and_b32 v{dst}, 0xffff0000, v{src}")

def kernel_header(name):
    e(".text")
    e(f".globl {name}")
    e(".p2align 8")
    e(f".type {name},@function")
    e(f"{name}:")

def kernel_desc(name, vgpr, sgpr, accum=None):
    if accum is None:
        accum = (vgpr + 3) // 4 * 4
    e('.section .rodata,"a"')
    e(".p2align 6")
    e(f".amdhsa_kernel {name}")
    e(f"  .amdhsa_next_free_vgpr {vgpr}")
    e(f"  .amdhsa_next_free_sgpr {sgpr}")
    e(f"  .amdhsa_accum_offset {accum}")
    e("  .amdhsa_group_segment_fixed_size 0")
    e("  .amdhsa_kernarg_size 104")
    e("  .amdhsa_user_sgpr_count 2")
    e("  .amdhsa_user_sgpr_kernarg_segment_ptr 1")
    e("  .amdhsa_system_sgpr_workgroup_id_x 1")
    e(".end_amdhsa_kernel")

N_LN, N_KV, N_WD = 128, 80, 68
def gen_prep():
    kernel_header("prep_kernel")
    I(f"s_cmp_ge_u32 s2, {N_LN+N_KV+N_WD}")
    I("s_cbranch_scc1 P_exit")
    I("s_load_dwordx2 s[6:7], s[0:1], 96")
    I(f"s_cmp_ge_u32 s2, {N_LN+N_KV}")
    I("s_cbranch_scc1 P_wd")
    I(f"s_cmp_ge_u32 s2, {N_LN}")
    I("s_cbranch_scc1 P_kv")
    I("s_load_dwordx2 s[4:5], s[0:1], 0")
    I("s_waitcnt lgkmcnt(0)")
    srd(8, 4, SZ_SD)
    srd(12, 6, SZ_SD, WS_XN)
    I("v_lshrrev_b32 v1, 4, v0")
    I("s_lshl_b32 s3, s2, 4")
    I("v_add_u32 v1, s3, v1")
    I("v_mul_u32_u24 v2, 0x500, v1")
    I("v_and_b32 v3, 15, v0")
    I("v_lshl_add_u32 v2, v3, 4, v2")
    for j in range(5):
        I(f"buffer_load_dwordx4 v[{4+4*j}:{7+4*j}], v2, s[8:11], 0 offen offset:{256*j}")
    I("s_waitcnt vmcnt(0)")
    X = 24
    for j in range(20):
        lo16(X + 2*j, 4 + j)
        hi16(X + 2*j + 1, 4 + j)
    T = 64
    for j in range(20):
        I(f"v_add_f32 v{T+j}, v{X+2*j}, v{X+2*j+1}")
    def tree(base, n):
        while n > 1:
            h = n // 2
            for j in range(h):
                I(f"v_add_f32 v{base+j}, v{base+j}, v{base+n-1-j}")
            n = n - h
    tree(T, 20)
    def dpp_reduce(r, tmp):
        for sh in (8, 4, 2, 1):
            I("s_nop 1")
            I(f"v_add_f32_dpp v{tmp}, v{r}, v{r} row_ror:{sh} row_mask:0xf bank_mask:0xf")
            I(f"v_mov_b32 v{r}, v{tmp}")
    dpp_reduce(T, T+1)
    I(f"v_mul_f32 v{T}, {1.0/640.0!r}, v{T}")
    for j in range(40):
        I(f"v_sub_f32 v{T+2+j}, v{X+j}, v{T}")
    for j in range(40):
        I(f"v_mul_f32 v{T+2+j}, v{T+2+j}, v{T+2+j}")
    tree(T+2, 40)
    dpp_reduce(T+2, T+1)
    I(f"v_mul_f32 v{T+2}, {1.0/640.0!r}, v{T+2}")
    I(f"v_cvt_pk_bf16_f32 v{T}, v{T}, v{T+2}")
    hi16(T+2, T)
    lo16(T, T)
    I(f"v_add_f32 v{T+2}, {1e-5!r}, v{T+2}")
    I(f"v_cvt_pk_bf16_f32 v{T+2}, v{T+2}, v{T+2}")
    lo16(T+2, T+2)
    I(f"v_sqrt_f32 v{T+2}, v{T+2}")
    I("s_nop 0")
    I(f"v_cvt_pk_bf16_f32 v{T+2}, v{T+2}, v{T+2}")
    lo16(T+2, T+2)
    I(f"v_rcp_f32 v{T+3}, v{T+2}")
    I("s_nop 0")
    for j in range(20):
        a, b = X + 2*j, X + 2*j + 1
        I(f"v_sub_f32 v{a}, v{a}, v{T}")
        I(f"v_sub_f32 v{b}, v{b}, v{T}")
        I(f"v_cvt_pk_bf16_f32 v{T+4}, v{a}, v{b}")
        lo16(a, T+4)
        hi16(b, T+4)
        for r in (a, b):
            I(f"v_mul_f32 v{T+5}, v{r}, v{T+3}")
            I(f"v_fma_f32 v{T+6}, -v{T+5}, v{T+2}, v{r}")
            I(f"v_fma_f32 v{r}, v{T+6}, v{T+3}, v{T+5}")
        I(f"v_cvt_pk_bf16_f32 v{4+j}, v{a}, v{b}")
    for j in range(5):
        I(f"buffer_store_dwordx4 v[{4+4*j}:{7+4*j}], v2, s[12:15], 0 offen offset:{256*j}")
    I("s_endpgm")
    e("P_kv:")
    I("s_load_dwordx4 s[16:19], s[0:1], 8")
    I("s_load_dwordx2 s[4:5], s[0:1], 24")
    I("s_waitcnt lgkmcnt(0)")
    srd(8, 16, SZ_SD)
    srd(12, 18, SZ_SD)
    srd(20, 4, D*4*2)
    srd(24, 6, SZ_SD, WS_KVR)
    I(f"s_sub_u32 s3, s2, {N_LN}")
    I("s_mul_i32 s28, s3, 0xCCCD")
    I("s_lshr_b32 s28, s28, 19")
    I("s_mul_i32 s29, s28, 10")
    I("s_sub_u32 s29, s3, s29")
    I("v_and_b32 v1, 7, v0")
    I("v_lshrrev_b32 v2, 3, v0")
    I("s_lshl_b32 s30, s29, 6")
    I("v_lshl_add_u32 v1, v1, 3, s30")
    I("s_lshl_b32 s31, s28, 8")
    I("v_lshl_add_u32 v2, v2, 3, s31")
    I("v_mul_u32_u24 v3, 0x500, v2")
    I("v_lshl_add_u32 v3, v1, 1, v3")
    I("v_add_u32 v4, 0x1400, v3")
    for i in range(3):
        I(f"v_subrev_u32 v{5+i}, {(3-i)*1280:#x}, v3")
    KR = 16
    for i in range(3):
        I(f"buffer_load_dwordx4 v[{KR+4*i}:{KR+4*i+3}], v{5+i}, s[8:11], 0 offen")
    for i in range(8):
        b = 3 if i < 4 else 4
        I(f"buffer_load_dwordx4 v[{KR+4*(i+3)}:{KR+4*(i+3)+3}], v{b}, s[8:11], 0 offen offset:{(i%4)*1280}")
    VR = KR + 44
    for i in range(8):
        b = 3 if i < 4 else 4
        I(f"buffer_load_dwordx4 v[{VR+4*i}:{VR+4*i+3}], v{b}, s[12:15], 0 offen offset:{(i%4)*1280}")
    SK = VR + 32
    I("v_lshlrev_b32 v8, 3, v1")
    for i in range(4):
        I(f"buffer_load_dwordx4 v[{SK+4*i}:{SK+4*i+3}], v8, s[20:23], 0 offen offset:{16*i}")
    I("v_lshlrev_b32 v9, 12, v1")
    I(f"v_sub_u32 v10, {S-8}, v2")
    I("v_lshl_add_u32 v9, v10, 1, v9")
    I("s_waitcnt vmcnt(0)")
    KF = 108
    VF = 119
    SF = 127
    TM = 131
    OB = 144
    for dd in range(8):
        ex = lo16 if dd % 2 == 0 else hi16
        for i in range(11):
            ex(KF + i, KR + 4*i + dd//2)
        for i in range(8):
            ex(VF + i, VR + 4*i + dd//2)
        lo16(SF+0, SK + 2*dd); hi16(SF+1, SK + 2*dd)
        lo16(SF+2, SK + 2*dd + 1); hi16(SF+3, SK + 2*dd + 1)
        ob = OB + 4*(dd % 2)
        for q in range(4):
            sa, sb = 7 - 2*q, 6 - 2*q
            t = TM
            I(f"v_mul_f32 v{t}, v{KF+sa}, v{SF+3}")
            I(f"v_mul_f32 v{t+1}, v{KF+sb}, v{SF+3}")
            I(f"v_mul_f32 v{t+2}, v{KF+sa+1}, v{SF+2}")
            I(f"v_mul_f32 v{t+3}, v{KF+sb+1}, v{SF+2}")
            I(f"v_mul_f32 v{t+4}, v{KF+sa+2}, v{SF+1}")
            I(f"v_mul_f32 v{t+5}, v{KF+sb+2}, v{SF+1}")
            I(f"v_mul_f32 v{t+6}, v{KF+sa+3}, v{SF+0}")
            I(f"v_mul_f32 v{t+7}, v{KF+sb+3}, v{SF+0}")
            for p in range(4):
                I(f"v_cvt_pk_bf16_f32 v{t+8+p}, v{t+2*p}, v{t+2*p+1}")
            for p in range(4):
                lo16(t+2*p, t+8+p); hi16(t+2*p+1, t+8+p)
            for step in (1, 2, 3):
                I(f"v_add_f32 v{t}, v{t}, v{t+2*step}")
                I(f"v_add_f32 v{t+1}, v{t+1}, v{t+2*step+1}")
                I(f"v_cvt_pk_bf16_f32 v{t+8}, v{t}, v{t+1}")
                lo16(t, t+8); hi16(t+1, t+8)
            I(f"v_mul_f32 v{t}, v{t}, v{VF+sa}")
            I(f"v_mul_f32 v{t+1}, v{t+1}, v{VF+sb}")
            I(f"v_cvt_pk_bf16_f32 v{ob+q}, v{t}, v{t+1}")
        if dd < 2:
            I(f"buffer_store_dwordx4 v[{ob}:{ob+3}], v9, s[24:27], 0 offen offset:{0}")
        else:
            I(f"buffer_store_dwordx4 v[{ob}:{ob+3}], v9, s[24:27], 0 offen")
        I("v_add_u32 v9, 0x1000, v9")
        I("s_nop 1")
    I("s_endpgm")
    e("P_wd:")
    I("s_load_dwordx2 s[4:5], s[0:1], 72")
    I("s_waitcnt lgkmcnt(0)")
    srd(8, 4, SZ_W)
    srd(12, 6, SZ_W, WS_WDT)
    I("v_lshrrev_b32 v1, 6, v0")
    I("s_nop 0")
    I("v_readfirstlane_b32 s3, v1")
    I(f"s_sub_u32 s16, s2, {N_LN+N_KV}")
    I("s_lshl_b32 s16, s16, 2")
    I("s_add_u32 s16, s16, s3")
    I("s_cmp_ge_u32 s16, 270")
    I("s_cbranch_scc1 P_exit")
    I("s_mul_i32 s17, s16, 0xCCCD")
    I("s_lshr_b32 s17, s17, 19")
    I("s_mul_i32 s18, s17, 10")
    I("s_sub_u32 s18, s16, s18")
    I("v_and_b32 v1, 7, v0")
    I("v_bfe_u32 v2, v0, 3, 3")
    I("s_lshl_b32 s18, s18, 6")
    I("v_lshl_add_u32 v1, v1, 3, s18")
    I("s_lshl_b32 s17, s17, 6")
    I("v_lshl_add_u32 v2, v2, 3, s17")
    I("v_mul_u32_u24 v3, 0x500, v2")
    I("v_lshl_add_u32 v3, v1, 1, v3")
    I("v_add_u32 v4, 0x1400, v3")
    for i in range(8):
        b = 3 if i < 4 else 4
        I(f"buffer_load_dwordx4 v[{8+4*i}:{11+4*i}], v{b}, s[8:11], 0 offen offset:{(i%4)*1280}")
    I("s_mov_b32 s20, 0x05040100")
    I("s_mov_b32 s21, 0x07060302")
    I("v_mul_u32_u24 v5, 3456, v1")
    I("v_lshl_add_u32 v5, v2, 1, v5")
    I("s_waitcnt vmcnt(0)")
    for dd in range(8):
        ob = 40 + 4*dd
        sel = 20 + (dd & 1)
        for q in range(4):
            I(f"v_perm_b32 v{ob+q}, v{8+4*(2*q+1)+dd//2}, v{8+4*(2*q)+dd//2}, s{sel}")
    for dd in range(8):
        ob = 40 + 4*dd
        I(f"buffer_store_dwordx4 v[{ob}:{ob+3}], v5, s[12:15], 0 offen")
        I("v_add_u32 v5, 3456, v5")
    e("P_exit:")
    I("s_endpgm")
    kernel_desc("prep_kernel", 160, 40)

BF = 112
WROW = BF * 2
WMAT = 64 * WROW + 8 * 128
WSTAGE = 2 * WMAT
LDS2 = 2 * WSTAGE
N_G1, N_CV = 256, 160

def gen_k2():
    kernel_header("mid_kernel")
    I(f"s_cmp_ge_u32 s2, {N_G1+N_CV}")
    I("s_cbranch_scc1 M_exit")
    I("s_load_dwordx2 s[6:7], s[0:1], 96")
    I(f"s_cmp_ge_u32 s2, {N_G1}")
    I("s_cbranch_scc1 M_conv")
    I("s_load_dwordx4 s[16:19], s[0:1], 56")
    I("v_lshrrev_b32 v1, 6, v0")
    I("s_nop 0")
    I("v_readfirstlane_b32 s3, v1")
    I("s_waitcnt lgkmcnt(0)")
    I("s_cmp_ge_u32 s3, 2")
    I("s_cselect_b32 s4, s18, s16")
    I("s_cselect_b32 s5, s19, s17")
    srd(8, 4, SZ_W)
    srd(12, 6, SZ_SD, WS_XN)
    srd(20, 6, SZ_H, WS_H)
    I("s_and_b32 s24, s2, 15")
    I("s_lshr_b32 s25, s2, 4")
    I(f"s_mul_i32 s25, s25, {BF}")
    I(f"s_min_u32 s25, s25, {F-BF}")
    GO = 2
    LO = 9
    I("v_and_b32 v16, 127, v0")
    I("v_lshrrev_b32 v17, 7, v0")
    I(f"v_mul_u32_u24 v17, {WMAT}, v17")
    for i in range(7):
        I(f"v_add_u32 v18, {128*i}, v16")
        I("v_mul_u32_u24 v19, 0x4925, v18")
        I("v_lshrrev_b32 v19, 18, v19")
        I("v_mul_u32_u24 v20, 14, v19")
        I("v_sub_u32 v20, v18, v20")
        I("v_mul_u32_u24 v21, 3456, v19")
        I("v_lshl_add_u32 v21, v20, 4, v21")
        I("s_lshl_b32 s26, s25, 1")
        I(f"v_add_u32 v{GO+i}, s26, v21")
        I(f"v_mul_u32_u24 v21, {WROW}, v19")
        I("v_lshrrev_b32 v22, 3, v19")
        I("v_lshl_add_u32 v21, v22, 7, v21")
        I("v_lshl_add_u32 v21, v20, 4, v21")
        I(f"v_add_u32 v{LO+i}, v17, v21")
    I("v_and_b32 v16, 15, v0")
    I("v_bfe_u32 v17, v0, 4, 2")
    I("s_lshl_b32 s26, s24, 7")
    I("s_lshl_b32 s27, s3, 5")
    I("s_add_u32 s26, s26, s27")
    I("v_add_u32 v18, s26, v16")
    I("v_mul_u32_u24 v23, 0x500, v18")
    I("v_lshl_add_u32 v23, v17, 4, v23")
    I("v_add_u32 v24, 0x5000, v23")
    I("v_mul_u32_u24 v25, 3456, v18")
    I("v_lshl_add_u32 v25, v17, 3, v25")
    I("s_lshl_b32 s26, s25, 1")
    I("v_add_u32 v25, s26, v25")
    I(f"v_add_u32 v26, {16*3456}, v25")
    I("v_bfe_u32 v18, v0, 2, 2")
    I("v_lshl_add_u32 v18, v17, 3, v18")
    I(f"v_mul_u32_u24 v27, {WROW}, v18")
    I("v_lshl_add_u32 v27, v17, 7, v27")
    I("v_and_b32 v18, 3, v0")
    I("v_lshl_add_u32 v27, v18, 3, v27")
    WR = 28
    BB = 56
    AF = 88
    ACC = 104
    for j in range(112):
        I(f"v_mov_b32 v{ACC+j}, 0")
    def acc(m, jf, js): return ACC + ((m*7 + jf)*2 + js)*4
    def bfr(st, ks, js): return BB + (st & 1)*16 + (ks*2 + js)*4
    def load_stage(st):
        I(f"s_mov_b32 s28, {st*64*3456}")
        for i in range(7):
            I(f"buffer_load_dwordx4 v[{WR+4*i}:{WR+4*i+3}], v{GO+i}, s[8:11], s28 offen")
        for ks in range(2):
            for js in range(2):
                r = bfr(st, ks, js)
                I(f"buffer_load_dwordx4 v[{r}:{r+3}], v{23+js}, s[12:15], 0 offen offset:{st*128 + ks*64}")
    def write_stage(st):
        for i in range(7):
            I(f"ds_write_b128 v{LO+i}, v[{WR+4*i}:{WR+4*i+3}] offset:{(st&1)*WSTAGE}")
    NST = 10
    load_stage(0)
    I("s_waitcnt vmcnt(4)")
    write_stage(0)
    I("s_waitcnt lgkmcnt(0)")
    I("s_barrier")
    for st in range(NST):
        if st + 1 < NST:
            load_stage(st + 1)
            I("s_waitcnt vmcnt(11)")
        else:
            I("s_waitcnt vmcnt(0)")
        seq = [(ks, m, jf) for ks in range(2) for m in range(2) for jf in range(7)]
        def rd(idx):
            ks, m, jf = seq[idx]
            a = AF + (idx % 4)*4
            off = (st&1)*WSTAGE + m*WMAT + ks*7680 + jf*32
            I(f"ds_read_b64_tr_b16 v[{a}:{a+1}], v27 offset:{off}")
            I(f"ds_read_b64_tr_b16 v[{a+2}:{a+3}], v27 offset:{off+896}")
        for i in range(3):
            rd(i)
        for idx in range(28):
            if idx + 3 < 28:
                rd(idx + 3)
                I("s_waitcnt lgkmcnt(6)")
            else:
                I(f"s_waitcnt lgkmcnt({2*(27-idx)})")
            ks, m, jf = seq[idx]
            a = AF + (idx % 4)*4
            for js in range(2):
                c = acc(m, jf, js); b = bfr(st, ks, js)
                I(f"v_mfma_f32_16x16x32_bf16 v[{c}:{c+3}], v[{a}:{a+3}], v[{b}:{b+3}], v[{c}:{c+3}]")
        if st + 1 < NST:
            I("s_waitcnt vmcnt(4)")
            write_stage(st + 1)
            I("s_waitcnt lgkmcnt(0)")
            I("s_barrier")
    I("s_nop 7")
    I("s_nop 3")
    T = 28
    for js in range(2):
        for jf in range(7):
            g = acc(0, jf, js); u = acc(1, jf, js)
            t = T + ((js*7 + jf) % 2) * 12
            I(f"v_cvt_pk_bf16_f32 v{t}, v{g}, v{g+1}")
            I(f"v_cvt_pk_bf16_f32 v{t+1}, v{g+2}, v{g+3}")
            I(f"v_cvt_pk_bf16_f32 v{t+2}, v{u}, v{u+1}")
            I(f"v_cvt_pk_bf16_f32 v{t+3}, v{u+2}, v{u+3}")
            lo16(g, t); hi16(g+1, t); lo16(g+2, t+1); hi16(g+3, t+1)
            lo16(u, t+2); hi16(u+1, t+2); lo16(u+2, t+3); hi16(u+3, t+3)
            for r in range(4):
                I(f"v_mul_f32 v{g+r}, v{g+r}, v{u+r}")
            I(f"v_cvt_pk_bf16_f32 v{t+4}, v{g}, v{g+1}")
            I(f"v_cvt_pk_bf16_f32 v{t+5}, v{g+2}, v{g+3}")
            I(f"buffer_store_dwordx2 v[{t+4}:{t+5}], v{25+js}, s[20:23], 0 offen offset:{jf*32}")
    I("s_endpgm")
    e("M_conv:")
    XREG = 8192; HREG = 4352; WREG = XREG + HREG
    I("s_load_dwordx4 s[16:19], s[0:1], 32")
    I("v_lshrrev_b32 v1, 6, v0")
    I("s_nop 0")
    I("v_readfirstlane_b32 s3, v1")
    I(f"s_sub_u32 s24, s2, {N_G1}")
    I("s_lshl_b32 s24, s24, 2")
    I("s_add_u32 s24, s24, s3")
    I("s_waitcnt lgkmcnt(0)")
    srd(8, 16, SZ_SD)
    srd(12, 6, SZ_SD, WS_KVR)
    srd(20, 6, SZ_SD, WS_YT)
    I("s_lshr_b32 s25, s24, 1")
    I("s_lshl_b32 s25, s25, 2")
    I("s_load_dword s26, s[18:19], s25")
    I("v_and_b32 v1, 63, v0")
    I("s_lshl_b32 s27, s24, 12")
    I("v_lshl_add_u32 v2, v1, 4, s27")
    for j in range(4):
        I(f"buffer_load_dwordx4 v[{8+4*j}:{11+4*j}], v2, s[8:11], 0 offen offset:{1024*j}")
    for j in range(4):
        I(f"buffer_load_dwordx4 v[{24+4*j}:{27+4*j}], v2, s[12:15], 0 offen offset:{1024*j}")
    I(f"s_mul_i32 s28, s3, {WREG}")
    for j in range(4):
        I(f"v_mov_b32 v{40+j}, 0")
    I("v_lshl_add_u32 v3, v1, 4, s28")
    for j in range(3):
        I(f"ds_write_b128 v3, v[40:43] offset:{5120+1024*j}")
    I(f"ds_write_b128 v3, v[40:43] offset:{XREG}")
    I("s_waitcnt lgkmcnt(0)")
    I("v_lshrrev_b32 v4, 2, v1")
    I("v_mul_u32_u24 v4, 80, v4")
    I("v_and_b32 v5, 3, v1")
    I("v_lshl_add_u32 v4, v5, 4, v4")
    I("v_add_u32 v4, s28, v4")
    I("s_waitcnt vmcnt(0)")
    for j in range(4):
        I(f"ds_write_b128 v3, v[{8+4*j}:{11+4*j}] offset:{XREG+64+1024*j}")
        I(f"ds_write_b128 v4, v[{24+4*j}:{27+4*j}] offset:{16*80*j}")
    I("v_and_b32 v5, 31, v1")
    I("v_lshrrev_b32 v6, 5, v1")
    I("v_lshlrev_b32 v7, 1, v5")
    I("v_lshl_add_u32 v7, v6, 4, v7")
    I(f"v_add_u32 v7, {XREG+2}, v7")
    I("v_add_u32 v7, s28, v7")
    I("v_sub_u32 v8, 63, v5")
    I("v_mul_u32_u24 v8, 80, v8")
    I("v_lshl_add_u32 v8, v6, 4, v8")
    I("v_add_u32 v8, s28, v8")
    I("v_subrev_u32 v9, 2560, v8")
    AC0, AC1 = 16, 32
    for j in range(32):
        I(f"v_mov_b32 v{AC0+j}, 0")
    FR = 48
    I("s_waitcnt lgkmcnt(0)")
    NCH = 128
    def crd(c):
        m = 16*c
        f = FR + (c % 4)*12
        boff = (m >> 5)*80 + (m & 16)*2
        I(f"ds_read_b128 v[{f}:{f+3}], v7 offset:{2*m}")
        I(f"ds_read_b128 v[{f+4}:{f+7}], v9 offset:{boff}")
        if c < 64:
            I(f"ds_read_b128 v[{f+8}:{f+11}], v8 offset:{boff}")
    def nrd(c): return 3 if c < 64 else 2
    for c in range(3):
        crd(c)
    for c in range(NCH):
        if c + 3 < NCH:
            crd(c + 3)
        pend = sum(nrd(x) for x in range(c+1, min(c+4, NCH)))
        I(f"s_waitcnt lgkmcnt({pend})")
        f = FR + (c % 4)*12
        I(f"v_mfma_f32_32x32x16_bf16 v[{AC1}:{AC1+15}], v[{f}:{f+3}], v[{f+4}:{f+7}], v[{AC1}:{AC1+15}]")
        if c < 64:
            I(f"v_mfma_f32_32x32x16_bf16 v[{AC0}:{AC0+15}], v[{f}:{f+3}], v[{f+8}:{f+11}], v[{AC0}:{AC0+15}]")
    I("v_mul_u32_u24 v10, 24, v6")
    I("v_sub_u32 v10, v8, v10")
    I("v_add_u32 v10, 8, v10")
    I("v_subrev_u32 v11, 2560, v10")
    KV = 48
    for cb in range(2):
        for q in range(4):
            I(f"ds_read_b64 v[{KV+cb*8+2*q}:{KV+cb*8+2*q+1}], v{10+cb} offset:{48-16*q}")
    I("s_and_b32 s25, s24, 1")
    I("s_lshl_b32 s25, s25, 4")
    I("s_lshr_b32 s26, s26, s25")
    I("s_lshl_b32 s26, s26, 16")
    I("v_lshlrev_b32 v12, 6, v5")
    I("v_lshl_add_u32 v12, v6, 3, v12")
    I("v_add_u32 v12, s27, v12")
    I("s_nop 7")
    I("s_waitcnt lgkmcnt(0)")
    for cb in range(2):
        ac = AC0 if cb == 0 else AC1
        for q in range(4):
            k0 = KV + cb*8 + 2*q
            t = 64 + (q % 2)*12
            y = ac + 4*q
            hi16(t+0, k0+1); lo16(t+1, k0+1); hi16(t+2, k0); lo16(t+3, k0)
            for r in range(4):
                I(f"v_mul_f32 v{t+r}, s26, v{t+r}")
            I(f"v_cvt_pk_bf16_f32 v{t+4}, v{t}, v{t+1}")
            I(f"v_cvt_pk_bf16_f32 v{t+5}, v{t+2}, v{t+3}")
            I(f"v_cvt_pk_bf16_f32 v{t+6}, v{y}, v{y+1}")
            I(f"v_cvt_pk_bf16_f32 v{t+7}, v{y+2}, v{y+3}")
            lo16(t, t+4); hi16(t+1, t+4); lo16(t+2, t+5); hi16(t+3, t+5)
            lo16(y, t+6); hi16(y+1, t+6); lo16(y+2, t+7); hi16(y+3, t+7)
            for r in range(4):
                I(f"v_add_f32 v{t+r}, v{t+r}, v{y+r}")
            I(f"v_cvt_pk_bf16_f32 v{t+8}, v{t}, v{t+1}")
            I(f"v_cvt_pk_bf16_f32 v{t+9}, v{t+2}, v{t+3}")
            I(f"buffer_store_dwordx2 v[{t+8}:{t+9}], v12, s[20:23], 0 offen offset:{cb*2048+16*q}")
    e("M_exit:")
    I("s_endpgm")
    kernel_desc("mid_kernel", 216, 40)

def gen_k3():
    kernel_header("fin_kernel")
    I("s_cmp_ge_u32 s2, 256")
    I("s_cbranch_scc1 F_exit")
    I("s_load_dwordx2 s[6:7], s[0:1], 96")
    I("s_load_dwordx2 s[4:5], s[0:1], 0")
    I("s_load_dwordx2 s[30:31], s[0:1], 80")
    I("v_lshrrev_b32 v1, 6, v0")
    I("s_nop 0")
    I("v_readfirstlane_b32 s3, v1")
    I("s_waitcnt lgkmcnt(0)")
    srd(8, 6, SZ_W, WS_WDT)
    srd(12, 6, SZ_H, WS_H)
    srd(16, 6, SZ_SD, WS_YT)
    srd(20, 6, SZ_SD, WS_XN)
    srd(24, 4, SZ_SD)
    srd(32, 30, SZ_SD)
    I("s_and_b32 s36, s2, 7")
    I("s_mul_i32 s36, s36, 80")
    I("s_lshr_b32 s37, s2, 3")
    I("s_lshl_b32 s37, s37, 6")
    I("s_mul_i32 s38, s3, 14")
    I("s_cmp_eq_u32 s3, 3")
    I("s_cselect_b32 s39, 1, 0")
    I("s_sub_u32 s38, s38, s39")
    I("s_lshl_b32 s38, s38, 6")
    I("v_and_b32 v1, 15, v0")
    I("v_bfe_u32 v2, v0, 4, 2")
    I("v_add_u32 v3, s36, v1")
    I("v_mul_u32_u24 v3, 3456, v3")
    I("v_lshl_add_u32 v3, v2, 4, v3")
    I("v_add_u32 v3, s38, v3")
    for jd in range(1, 5):
        I(f"v_add_u32 v{3+jd}, {jd*16*3456}, v3")
    I("v_add_u32 v8, s37, v1")
    I("v_mul_u32_u24 v8, 3456, v8")
    I("v_lshl_add_u32 v8, v2, 4, v8")
    I("v_add_u32 v8, s38, v8")
    for js in range(1, 4):
        I(f"v_add_u32 v{8+js}, {js*16*3456}, v8")
    ACC = 16
    for j in range(80):
        I(f"v_mov_b32 v{ACC+j}, 0")
    def acc(jd, js): return ACC + (js*5 + jd)*4
    FRB = 96
    def ld(k):
        f = FRB + (k % 3)*36
        for jd in range(5):
            I(f"buffer_load_dwordx4 v[{f+4*jd}:{f+4*jd+3}], v{3+jd}, s[8:11], 0 offen offset:{64*k}")
        for js in range(4):
            I(f"buffer_load_dwordx4 v[{f+20+4*js}:{f+23+4*js}], v{8+js}, s[12:15], 0 offen offset:{64*k}")
    def mm(k):
        f = FRB + (k % 3)*36
        for js in range(4):
            for jd in range(5):
                c = acc(jd, js)
                I(f"v_mfma_f32_16x16x32_bf16 v[{c}:{c+3}], v[{f+4*jd}:{f+4*jd+3}], v[{f+20+4*js}:{f+23+4*js}], v[{c}:{c+3}]")
    ld(0); ld(1)
    for k in range(13):
        if k + 2 < 13:
            ld(k + 2)
            I("s_waitcnt vmcnt(18)")
        elif k + 1 < 13:
            I("s_waitcnt vmcnt(9)")
        else:
            I("s_waitcnt vmcnt(0)")
        mm(k)
    I("s_cmp_ge_u32 s3, 2")
    I("s_cbranch_scc1 F_skip")
    ld(13)
    I("s_waitcnt vmcnt(0)")
    mm(13)
    e("F_skip:")
    I("v_and_b32 v12, 63, v0")
    I("v_lshlrev_b32 v12, 4, v12")
    I("s_mul_i32 s40, s3, 20480")
    I("v_add_u32 v13, s40, v12")
    I("s_nop 7")
    for js in range(4):
        for jd in range(5):
            c = acc(jd, js)
            I(f"ds_write_b128 v13, v[{c}:{c+3}] offset:{(js*5+jd)*1024}")
    I("s_waitcnt lgkmcnt(0)")
    I("s_barrier")
    I("s_mul_i32 s40, s3, 5120")
    I("v_add_u32 v13, s40, v12")
    I("v_add_u32 v12, 40960, v13")
    R = 96
    for src in range(4):
        for jd in range(5):
            r = R + (src*5 + jd)*4
            I(f"ds_read_b128 v[{r}:{r+3}], v{13 if src < 2 else 12} offset:{(src%2)*20480 + jd*1024}")
    I("s_lshr_b32 s41, s3, 1")
    I("s_lshl_b32 s41, s41, 5")
    I("s_add_u32 s41, s41, s37")
    I("s_lshl_b32 s41, s41, 1")
    I("v_add_u32 v14, s36, v1")
    I("v_lshlrev_b32 v14, 12, v14")
    I("v_lshl_add_u32 v14, v2, 4, v14")
    I("v_add_u32 v14, s41, v14")
    YF = 16
    for jd in range(5):
        I(f"v_add_u32 v15, {jd*16*4096}, v14")
        I(f"buffer_load_dwordx4 v[{YF+4*jd}:{YF+4*jd+3}], v15, s[16:19], 0 offen")
    I("s_lshl_b32 s42, s3, 4")
    I("s_add_u32 s42, s42, s37")
    I("v_add_u32 v15, s42, v1")
    I("v_mul_u32_u24 v15, 0x500, v15")
    I("v_lshl_add_u32 v15, v2, 3, v15")
    I("s_lshl_b32 s43, s36, 1")
    I("v_add_u32 v15, s43, v15")
    XX = 40
    for jd in range(5):
        I(f"buffer_load_dwordx2 v[{XX+2*jd}:{XX+2*jd+1}], v15, s[24:27], 0 offen offset:{32*jd}")
        I(f"buffer_load_dwordx2 v[{XX+10+2*jd}:{XX+11+2*jd}], v15, s[20:23], 0 offen offset:{32*jd}")
    IDB = 60
    I("s_and_b32 s44, s3, 1")
    I("s_lshl_b32 s44, s44, 4")
    I("v_add_u32 v64, s44, v1")
    I("v_lshrrev_b32 v65, 3, v64")
    I("v_cmp_eq_u32 vcc, v65, v2")
    I("v_and_b32 v65, 7, v64")
    I("v_and_b32 v66, 1, v65")
    I("v_lshlrev_b32 v66, 4, v66")
    I("v_mov_b32 v67, 0x3f80")
    I("v_lshlrev_b32 v67, v66, v67")
    I("v_lshrrev_b32 v65, 1, v65")
    I("v_cndmask_b32 v67, 0, v67, vcc")
    for j in range(4):
        I(f"v_cmp_eq_u32 vcc, {j}, v65")
        I("s_nop 1")
        I(f"v_cndmask_b32 v{IDB+j}, 0, v67, vcc")
    I("s_waitcnt lgkmcnt(0)")
    for jd in range(5):
        r0 = R + jd*4
        for src in range(1, 4):
            r = R + (src*5 + jd)*4
            for j in range(4):
                I(f"v_add_f32 v{r0+j}, v{r0+j}, v{r+j}")
    I("s_waitcnt vmcnt(10)")
    TY = 116
    for jd in range(5):
        I(f"v_mfma_f32_16x16x32_bf16 v[{TY+4*jd}:{TY+4*jd+3}], v[{YF+4*jd}:{YF+4*jd+3}], v[{IDB}:{IDB+3}], 0")
    I("s_waitcnt vmcnt(0)")
    I("s_nop 7")
    for jd in range(5):
        b = R + jd*4
        ty = TY + 4*jd
        t = 140 + (jd % 2)*16
        x0 = XX + 2*jd; n0 = XX + 10 + 2*jd
        lo16(t, n0); hi16(t+1, n0); lo16(t+2, n0+1); hi16(t+3, n0+1)
        for r in range(4):
            I(f"v_mul_f32 v{t+r}, v{t+r}, v{ty+r}")
        I(f"v_cvt_pk_bf16_f32 v{t+4}, v{t}, v{t+1}")
        I(f"v_cvt_pk_bf16_f32 v{t+5}, v{t+2}, v{t+3}")
        lo16(t, t+4); hi16(t+1, t+4); lo16(t+2, t+5); hi16(t+3, t+5)
        lo16(t+6, x0); hi16(t+7, x0); lo16(t+8, x0+1); hi16(t+9, x0+1)
        for r in range(4):
            I(f"v_add_f32 v{t+r}, v{t+r}, v{t+6+r}")
        I(f"v_cvt_pk_bf16_f32 v{t+4}, v{t}, v{t+1}")
        I(f"v_cvt_pk_bf16_f32 v{t+5}, v{t+2}, v{t+3}")
        lo16(t, t+4); hi16(t+1, t+4); lo16(t+2, t+5); hi16(t+3, t+5)
        I(f"v_cvt_pk_bf16_f32 v{t+4}, v{b}, v{b+1}")
        I(f"v_cvt_pk_bf16_f32 v{t+5}, v{b+2}, v{b+3}")
        lo16(t+6, t+4); hi16(t+7, t+4); lo16(t+8, t+5); hi16(t+9, t+5)
        for r in range(4):
            I(f"v_add_f32 v{t+r}, v{t+r}, v{t+6+r}")
        I(f"v_cvt_pk_bf16_f32 v{t+10}, v{t}, v{t+1}")
        I(f"v_cvt_pk_bf16_f32 v{t+11}, v{t+2}, v{t+3}")
        I(f"buffer_store_dwordx2 v[{t+10}:{t+11}], v15, s[32:35], 0 offen offset:{32*jd}")
    e("F_exit:")
    I("s_endpgm")
    kernel_desc("fin_kernel", 208, 48)

def main():
    hdr = open("parallel_sum__ssm_conv_h3__glu_gated_bilinear__prompt.s.ref").read().splitlines()
    for line in hdr:
        if line.startswith("; @launch"):
            break
        if line.startswith(";"):
            e(line)
    e(f"; @launch kernel=prep_kernel grid=({N_LN+N_KV+N_WD},1,1) block=(256,1,1) lds=0")
    e(f"; @launch kernel=mid_kernel grid=({N_G1+N_CV},1,1) block=(256,1,1) lds={LDS2}")
    e(f"; @launch kernel=fin_kernel grid=(256,1,1) block=(256,1,1) lds=81920")
    e('.amdgcn_target "amdgcn-amd-amdhsa--gfx950"')
    gen_prep()
    gen_k2()
    gen_k3()
    dst = sys.argv[1] if len(sys.argv) > 1 else "parallel_sum__ssm_conv_h3__glu_gated_bilinear__prompt.s"
    open(dst, "w").write("\n".join(out) + "\n")

main()
```

```python
import sys

import os
FLAGS = os.environ.get("GENFLAGS", "").split(",")
CP = " nt" if "cpnt" in FLAGS else (" sc1" if "cpsc1" in FLAGS else (" sc0 sc1" if "cpsc01" in FLAGS else ""))
S, D, F = 2048, 640, 1728
WS_XN  = 0x0
WS_KVR = 0x280000
WS_WDT = 0x500000
WS_H   = 0x800000
WS_YT  = 0x1000000
SZ_SD = S * D * 2
SZ_W  = D * F * 2
SZ_H  = S * F * 2

out = []
def e(s=""):
    out.append(s)
def I(s):
    out.append("    " + s)

def srd(base, ptr, size, off=0):
    if off:
        I(f"s_add_u32 s{base}, s{ptr}, {off:#x}")
        I(f"s_addc_u32 s{base+1}, s{ptr+1}, 0")
    else:
        I(f"s_mov_b32 s{base}, s{ptr}")
        I(f"s_mov_b32 s{base+1}, s{ptr+1}")
    I(f"s_mov_b32 s{base+2}, {size:#x}")
    I(f"s_mov_b32 s{base+3}, 0x00020000")

def lo16(dst, src): I(f"v_lshlrev_b32 v{dst}, 16, v{src}")
def hi16(dst, src): I(f"v_and_b32 v{dst}, 0xffff0000, v{src}")

STAMP = "stamp" in FLAGS
nst = [0]
def stamp():
    if STAMP:
        i = nst[0]; nst[0] += 1
        I(f"s_memtime s[{60+2*i}:{61+2*i}]")
def stamp_dump(wg):
    if not STAMP: return
    n = nst[0]; nst[0] = 0
    I("s_waitcnt lgkmcnt(0) vmcnt(0)")
    I(f"s_cmp_lg_u32 s2, {wg}")
    I(f"s_cbranch_scc1 SD_skip{wg}")
    I("s_cmp_lg_u32 s3, 0")
    I(f"s_cbranch_scc1 SD_skip{wg}")
    I("s_load_dwordx2 s[56:57], s[0:1], 88")
    I("s_waitcnt lgkmcnt(0)")
    I("s_mov_b32 s58, 256")
    I("s_mov_b32 s59, 0x00020000")
    I("v_mov_b32 v1, 0")
    for i in range(n):
        I(f"s_sub_u32 s{61+2*i}, s{60+2*i}, s60")
        I(f"v_mov_b32 v2, s{61+2*i}")
        I(f"buffer_store_dword v2, v1, s[56:59], 0 offen offset:{4*i}")
    I("s_waitcnt vmcnt(0)")
    e(f"SD_skip{wg}:")

def kernel_header(name):
    e(".text")
    e(f".globl {name}")
    e(".p2align 8")
    e(f".type {name},@function")
    e(f"{name}:")

def kernel_desc(name, vgpr, sgpr, accum=None):
    if accum is None:
        accum = (vgpr + 3) // 4 * 4
    e('.section .rodata,"a"')
    e(".p2align 6")
    e(f".amdhsa_kernel {name}")
    e(f"  .amdhsa_next_free_vgpr {vgpr}")
    e(f"  .amdhsa_next_free_sgpr {sgpr}")
    e(f"  .amdhsa_accum_offset {accum}")
    e("  .amdhsa_group_segment_fixed_size 0")
    e("  .amdhsa_kernarg_size 104")
    e("  .amdhsa_user_sgpr_count 2")
    e("  .amdhsa_user_sgpr_kernarg_segment_ptr 1")
    e("  .amdhsa_system_sgpr_workgroup_id_x 1")
    e(".end_amdhsa_kernel")

N_LN, N_KV, N_WD = 128, 80, 68
def gen_prep():
    kernel_header("prep_kernel")
    I(f"s_cmp_ge_u32 s2, {N_LN+N_KV+N_WD}")
    I("s_cbranch_scc1 P_exit")
    I("s_load_dwordx2 s[6:7], s[0:1], 96")
    I(f"s_cmp_ge_u32 s2, {N_LN+N_KV}")
    I("s_cbranch_scc1 P_wd")
    I(f"s_cmp_ge_u32 s2, {N_LN}")
    I("s_cbranch_scc1 P_kv")
    I("s_load_dwordx2 s[4:5], s[0:1], 0")
    I("s_waitcnt lgkmcnt(0)")
    srd(8, 4, SZ_SD)
    srd(12, 6, SZ_SD, WS_XN)
    I("v_lshrrev_b32 v1, 4, v0")
    I("s_lshl_b32 s3, s2, 4")
    I("v_add_u32 v1, s3, v1")
    I("v_mul_u32_u24 v2, 0x500, v1")
    I("v_and_b32 v3, 15, v0")
    I("v_lshl_add_u32 v2, v3, 4, v2")
    for j in range(5):
        I(f"buffer_load_dwordx4 v[{4+4*j}:{7+4*j}], v2, s[8:11], 0 offen offset:{256*j}")
    I("s_waitcnt vmcnt(0)")
    X = 24
    for j in range(20):
        lo16(X + 2*j, 4 + j)
        hi16(X + 2*j + 1, 4 + j)
    T = 64
    for j in range(20):
        I(f"v_add_f32 v{T+j}, v{X+2*j}, v{X+2*j+1}")
    def tree(base, n):
        while n > 1:
            h = n // 2
            for j in range(h):
                I(f"v_add_f32 v{base+j}, v{base+j}, v{base+n-1-j}")
            n = n - h
    tree(T, 20)
    def dpp_reduce(r, tmp):
        for sh in (8, 4, 2, 1):
            I("s_nop 1")
            I(f"v_add_f32_dpp v{tmp}, v{r}, v{r} row_ror:{sh} row_mask:0xf bank_mask:0xf")
            I(f"v_mov_b32 v{r}, v{tmp}")
    dpp_reduce(T, T+1)
    I(f"v_mul_f32 v{T}, {1.0/640.0!r}, v{T}")
    for j in range(40):
        I(f"v_sub_f32 v{T+2+j}, v{X+j}, v{T}")
    for j in range(40):
        I(f"v_mul_f32 v{T+2+j}, v{T+2+j}, v{T+2+j}")
    tree(T+2, 40)
    dpp_reduce(T+2, T+1)
    I(f"v_mul_f32 v{T+2}, {1.0/640.0!r}, v{T+2}")
    I(f"v_cvt_pk_bf16_f32 v{T}, v{T}, v{T+2}")
    hi16(T+2, T)
    lo16(T, T)
    I(f"v_add_f32 v{T+2}, {1e-5!r}, v{T+2}")
    I(f"v_cvt_pk_bf16_f32 v{T+2}, v{T+2}, v{T+2}")
    lo16(T+2, T+2)
    I(f"v_sqrt_f32 v{T+2}, v{T+2}")
    I("s_nop 0")
    I(f"v_cvt_pk_bf16_f32 v{T+2}, v{T+2}, v{T+2}")
    lo16(T+2, T+2)
    I(f"v_rcp_f32 v{T+3}, v{T+2}")
    I("s_nop 0")
    for j in range(20):
        a, b = X + 2*j, X + 2*j + 1
        I(f"v_sub_f32 v{a}, v{a}, v{T}")
        I(f"v_sub_f32 v{b}, v{b}, v{T}")
        I(f"v_cvt_pk_bf16_f32 v{T+4}, v{a}, v{b}")
        lo16(a, T+4)
        hi16(b, T+4)
        for r in (a, b):
            I(f"v_mul_f32 v{T+5}, v{r}, v{T+3}")
            I(f"v_fma_f32 v{T+6}, -v{T+5}, v{T+2}, v{r}")
            I(f"v_fma_f32 v{r}, v{T+6}, v{T+3}, v{T+5}")
        I(f"v_cvt_pk_bf16_f32 v{4+j}, v{a}, v{b}")
    I("v_lshrrev_b32 v2, 4, v1")
    I("v_mul_u32_u24 v2, 20480, v2")
    I("v_lshrrev_b32 v64, 2, v3")
    I("v_lshl_add_u32 v2, v64, 10, v2")
    I("v_and_b32 v64, 3, v3")
    I("v_lshl_add_u32 v2, v64, 8, v2")
    I("v_and_b32 v64, 15, v1")
    I("v_lshl_add_u32 v2, v64, 4, v2")
    for j in range(5):
        I(f"s_mov_b32 s16, {4096*j}")
        I(f"buffer_store_dwordx4 v[{4+4*j}:{7+4*j}], v2, s[12:15], s16 offen")
    I("s_endpgm")
    e("P_kv:")
    I("s_load_dwordx4 s[16:19], s[0:1], 8")
    I("s_load_dwordx2 s[4:5], s[0:1], 24")
    I("s_waitcnt lgkmcnt(0)")
    srd(8, 16, SZ_SD)
    srd(12, 18, SZ_SD)
    srd(20, 4, D*4*2)
    srd(24, 6, SZ_SD, WS_KVR)
    I(f"s_sub_u32 s3, s2, {N_LN}")
    I("s_mul_i32 s28, s3, 0xCCCD")
    I("s_lshr_b32 s28, s28, 19")
    I("s_mul_i32 s29, s28, 10")
    I("s_sub_u32 s29, s3, s29")
    I("v_and_b32 v1, 7, v0")
    I("v_lshrrev_b32 v2, 3, v0")
    I("s_lshl_b32 s30, s29, 6")
    I("v_lshl_add_u32 v1, v1, 3, s30")
    I("s_lshl_b32 s31, s28, 8")
    I("v_lshl_add_u32 v2, v2, 3, s31")
    I("v_mul_u32_u24 v3, 0x500, v2")
    I("v_lshl_add_u32 v3, v1, 1, v3")
    I("v_add_u32 v4, 0x1400, v3")
    for i in range(3):
        I(f"v_subrev_u32 v{5+i}, {(3-i)*1280:#x}, v3")
    KR = 16
    for i in range(3):
        I(f"buffer_load_dwordx4 v[{KR+4*i}:{KR+4*i+3}], v{5+i}, s[8:11], 0 offen")
    for i in range(8):
        b = 3 if i < 4 else 4
        I(f"buffer_load_dwordx4 v[{KR+4*(i+3)}:{KR+4*(i+3)+3}], v{b}, s[8:11], 0 offen offset:{(i%4)*1280}")
    VR = KR + 44
    for i in range(8):
        b = 3 if i < 4 else 4
        I(f"buffer_load_dwordx4 v[{VR+4*i}:{VR+4*i+3}], v{b}, s[12:15], 0 offen offset:{(i%4)*1280}")
    SK = VR + 32
    I("v_lshlrev_b32 v8, 3, v1")
    for i in range(4):
        I(f"buffer_load_dwordx4 v[{SK+4*i}:{SK+4*i+3}], v8, s[20:23], 0 offen offset:{16*i}")
    I("v_lshlrev_b32 v9, 12, v1")
    I(f"v_sub_u32 v10, {S-8}, v2")
    I("v_lshl_add_u32 v9, v10, 1, v9")
    I("s_waitcnt vmcnt(0)")
    KF = 108
    VF = 119
    SF = 127
    TM = 131
    OB = 144
    for dd in range(8):
        ex = lo16 if dd % 2 == 0 else hi16
        for i in range(11):
            ex(KF + i, KR + 4*i + dd//2)
        for i in range(8):
            ex(VF + i, VR + 4*i + dd//2)
        lo16(SF+0, SK + 2*dd); hi16(SF+1, SK + 2*dd)
        lo16(SF+2, SK + 2*dd + 1); hi16(SF+3, SK + 2*dd + 1)
        ob = OB + 4*(dd % 2)
        for q in range(4):
            sa, sb = 7 - 2*q, 6 - 2*q
            t = TM
            I(f"v_mul_f32 v{t}, v{KF+sa}, v{SF+3}")
            I(f"v_mul_f32 v{t+1}, v{KF+sb}, v{SF+3}")
            I(f"v_mul_f32 v{t+2}, v{KF+sa+1}, v{SF+2}")
            I(f"v_mul_f32 v{t+3}, v{KF+sb+1}, v{SF+2}")
            I(f"v_mul_f32 v{t+4}, v{KF+sa+2}, v{SF+1}")
            I(f"v_mul_f32 v{t+5}, v{KF+sb+2}, v{SF+1}")
            I(f"v_mul_f32 v{t+6}, v{KF+sa+3}, v{SF+0}")
            I(f"v_mul_f32 v{t+7}, v{KF+sb+3}, v{SF+0}")
            for p in range(4):
                I(f"v_cvt_pk_bf16_f32 v{t+8+p}, v{t+2*p}, v{t+2*p+1}")
            for p in range(4):
                lo16(t+2*p, t+8+p); hi16(t+2*p+1, t+8+p)
            for step in (1, 2, 3):
                I(f"v_add_f32 v{t}, v{t}, v{t+2*step}")
                I(f"v_add_f32 v{t+1}, v{t+1}, v{t+2*step+1}")
                I(f"v_cvt_pk_bf16_f32 v{t+8}, v{t}, v{t+1}")
                lo16(t, t+8); hi16(t+1, t+8)
            I(f"v_mul_f32 v{t}, v{t}, v{VF+sa}")
            I(f"v_mul_f32 v{t+1}, v{t+1}, v{VF+sb}")
            I(f"v_cvt_pk_bf16_f32 v{ob+q}, v{t}, v{t+1}")
        if dd < 2:
            I(f"buffer_store_dwordx4 v[{ob}:{ob+3}], v9, s[24:27], 0 offen offset:{0}")
        else:
            I(f"buffer_store_dwordx4 v[{ob}:{ob+3}], v9, s[24:27], 0 offen")
        I("v_add_u32 v9, 0x1000, v9")
        I("s_nop 1")
    I("s_endpgm")
    e("P_wd:")
    I("s_load_dwordx2 s[4:5], s[0:1], 72")
    I("s_waitcnt lgkmcnt(0)")
    srd(8, 4, SZ_W)
    srd(12, 6, SZ_W, WS_WDT)
    I("v_lshrrev_b32 v1, 6, v0")
    I("s_nop 0")
    I("v_readfirstlane_b32 s3, v1")
    I(f"s_sub_u32 s16, s2, {N_LN+N_KV}")
    I("s_lshl_b32 s16, s16, 2")
    I("s_add_u32 s16, s16, s3")
    I("s_cmp_ge_u32 s16, 270")
    I("s_cbranch_scc1 P_exit")
    I("s_mul_i32 s17, s16, 0xCCCD")
    I("s_lshr_b32 s17, s17, 19")
    I("s_mul_i32 s18, s17, 10")
    I("s_sub_u32 s18, s16, s18")
    I("v_and_b32 v1, 7, v0")
    I("v_bfe_u32 v2, v0, 3, 2")
    I("v_bfe_u32 v6, v0, 5, 1")
    I("s_lshl_b32 s18, s18, 6")
    I("v_lshl_add_u32 v1, v1, 3, s18")
    I("s_lshl_b32 s19, s17, 1")
    I("v_add_u32 v6, s19, v6")
    I("v_lshlrev_b32 v7, 5, v6")
    I("v_lshl_add_u32 v7, v2, 2, v7")
    I("v_mul_u32_u24 v3, 0x500, v7")
    I("v_lshl_add_u32 v3, v1, 1, v3")
    I("v_add_u32 v4, 0x5000, v3")
    for i in range(8):
        b = 3 if i < 4 else 4
        I(f"buffer_load_dwordx4 v[{8+4*i}:{11+4*i}], v{b}, s[8:11], 0 offen offset:{(i%4)*1280}")
    I("s_mov_b32 s20, 0x05040100")
    I("s_mov_b32 s21, 0x07060302")
    I("v_lshrrev_b32 v5, 4, v1")
    I("v_mul_u32_u24 v5, 54, v5")
    I("v_add_u32 v5, v5, v6")
    I("v_lshlrev_b32 v5, 10, v5")
    I("v_lshl_add_u32 v5, v2, 8, v5")
    I("v_and_b32 v7, 15, v1")
    I("v_lshl_add_u32 v5, v7, 4, v5")
    I("s_waitcnt vmcnt(0)")
    for dd in range(8):
        ob = 40 + 4*dd
        sel = 20 + (dd & 1)
        for q in range(4):
            I(f"v_perm_b32 v{ob+q}, v{8+4*(2*q+1)+dd//2}, v{8+4*(2*q)+dd//2}, s{sel}")
    for dd in range(8):
        ob = 40 + 4*dd
        I(f"buffer_store_dwordx4 v[{ob}:{ob+3}], v5, s[12:15], 0 offen offset:{16*dd}")
    e("P_exit:")
    I("s_endpgm")
    kernel_desc("prep_kernel", 160, 40)

BF = 112
NSLOT = 5
SLOT = 16384
LDS2 = NSLOT * SLOT
N_G1, N_CV = 256, 160

class DSQ:
    def __init__(self): self.q = []
    def push(self, tag): self.q.append(tag)
    def wait_for(self, tag):
        idx = max(i for i, t in enumerate(self.q) if t == tag)
        n = len(self.q) - 1 - idx
        I(f"s_waitcnt lgkmcnt({min(n,15)})")
        self.q = self.q[idx+1:] if n <= 15 else self.q[len(self.q)-15:]

def gen_k2():
    kernel_header("mid_kernel")
    I(f"s_cmp_ge_u32 s2, {N_G1+N_CV}")
    I("s_cbranch_scc1 M_exit")
    I("s_load_dwordx2 s[6:7], s[0:1], 96")
    I(f"s_cmp_ge_u32 s2, {N_G1}")
    I("s_cbranch_scc1 M_conv")
    if "nog1" in FLAGS: I("s_endpgm")
    stamp()
    I("s_load_dwordx4 s[16:19], s[0:1], 56")
    I("v_lshrrev_b32 v1, 6, v0")
    I("s_nop 0")
    I("v_readfirstlane_b32 s3, v1")
    I("s_waitcnt lgkmcnt(0)")
    I("s_cmp_ge_u32 s3, 2")
    I("s_cselect_b32 s4, s18, s16")
    I("s_cselect_b32 s5, s19, s17")
    srd(8, 4, SZ_W)
    srd(12, 6, SZ_SD, WS_XN)
    srd(20, 6, SZ_H, WS_H)
    if "g12d" in FLAGS:
        I("s_and_b32 s24, s2, 3")
        I("s_lshl_b32 s24, s24, 2")
        I("s_bfe_u32 s25, s2, 0x20003")
        I("s_add_u32 s24, s24, s25")
        I("s_bfe_u32 s25, s2, 0x10002")
        I("s_lshl_b32 s25, s25, 3")
        I("s_lshr_b32 s26, s2, 5")
        I("s_add_u32 s25, s25, s26")
    else:
        I("s_and_b32 s24, s2, 15")
        I("s_lshr_b32 s25, s2, 4")
    I(f"s_mul_i32 s25, s25, {BF}")
    I(f"s_min_u32 s25, s25, {F-BF}")
    I("v_and_b32 v1, 63, v0")
    I("v_lshrrev_b32 v10, 4, v1")
    I("v_bfe_u32 v11, v1, 1, 3")
    I("v_and_b32 v12, 1, v1")
    I("s_and_b32 s26, s3, 1")
    I("s_lshl_b32 s26, s26, 4")
    I("s_lshl_b32 s27, s25, 1")
    for i in range(4):
        bit = (i >> 1) & 1
        I(f"v_or_b32 v13, {bit<<2}, v10")
        I("v_xor_b32 v13, v13, v11")
        I(f"v_add_u32 v14, {4*i}, v10")
        I("v_add_u32 v14, s26, v14")
        I("v_mul_u32_u24 v14, 3456, v14")
        I("v_lshl_add_u32 v14, v13, 5, v14")
        I("v_lshl_add_u32 v14, v12, 4, v14")
        I("v_add_u32 v14, s27, v14")
        I(f"v_subrev_u32 v14, {1024*i}, v14")
        I("v_cmp_eq_u32 vcc, 7, v13")
        I("v_mov_b32 v15, 0x40000000")
        I("s_nop 0")
        I(f"v_cndmask_b32 v{2+i}, v14, v15, vcc")
    I("v_bfe_u32 v17, v0, 4, 2")
    I("s_lshl_b32 s26, s24, 3")
    I("s_lshl_b32 s27, s3, 1")
    I("s_add_u32 s26, s26, s27")
    I("s_mul_i32 s27, s26, 20480")
    I("v_lshl_add_u32 v6, v1, 4, s27")
    I("v_add_u32 v7, 20480, v6")
    I("s_mul_i32 s27, s26, 55296")
    I("v_lshl_add_u32 v8, v1, 4, s27")
    I("v_add_u32 v9, 55296, v8")
    I("v_bfe_u32 v18, v0, 2, 2")
    I("v_lshl_add_u32 v19, v17, 3, v18")
    I("v_lshlrev_b32 v19, 8, v19")
    I("v_and_b32 v20, 1, v17")
    I("v_lshl_or_b32 v20, v20, 2, v18")
    I("v_lshl_add_u32 v19, v20, 5, v19")
    I("v_and_b32 v18, 3, v0")
    I("v_lshl_add_u32 v19, v18, 3, v19")
    VA = 10
    I("v_mov_b32 v24, v19")
    for jf in range(7):
        I(f"v_xor_b32 v{VA+jf}, {jf<<5}, v24")
        I(f"v_add_u32 v{VA+7+jf}, 0x10000, v{VA+jf}")
    I("s_lshl_b32 s29, s3, 12")
    BB = 24
    AF = 64
    ACC = 80
    def acc(m, jf, js): return ACC + ((m*7 + jf)*2 + js)*4
    def bfr(st, js): return BB + (st % NSLOT)*8 + js*4
    NST = 20
    def issue(slot):
        I(f"s_add_u32 s30, s29, {slot*SLOT}")
        I("s_mov_b32 m0, s30")
        for i in range(4):
            I(f"buffer_load_dwordx4 v{2+i}, s[8:11], s28 offen offset:{1024*i} lds")
        for js in range(2):
            r = BB + slot*8 + js*4
            I(f"buffer_load_dwordx4 v[{r}:{r+3}], v{6+js}, s[12:15], s31 offen")
        I("s_add_u32 s36, s36, 1")
        I("s_cmp_ge_u32 s36, 20")
        I("s_cselect_b32 s36, 0, s36")
        I("s_add_u32 s37, s37, 1")
        I(f"s_mul_i32 s28, s36, {32*3456}")
        I("s_lshl_b32 s31, s36, 10")
        I("s_cmp_ge_u32 s37, 20")
        I("s_cselect_b32 s28, 0x40000000, s28")
        I("s_cselect_b32 s31, 0x40000000, s31")
    if "rot" in FLAGS:
        I("s_and_b32 s36, s24, 3")
        I("s_mul_i32 s36, s36, 5")
        I("s_lshr_b32 s37, s2, 5")
        I("s_mul_i32 s37, s37, 3")
        I("s_add_u32 s36, s36, s37")
        I("s_cmp_ge_u32 s36, 20")
        I("s_cselect_b32 s37, 20, 0")
        I("s_sub_u32 s36, s36, s37")
    else:
        I("s_mov_b32 s36, 0")
    I("s_mov_b32 s37, 0")
    I(f"s_mul_i32 s28, s36, {32*3456}")
    I("s_lshl_b32 s31, s36, 10")
    for st in range(NSLOT - 1):
        issue(st)
    for j in range(112):
        I(f"v_mov_b32 v{ACC+j}, 0")
    I("s_mov_b32 s33, 0")
    stamp()
    e("G1_loop:")
    for slot in range(NSLOT):
        I(f"s_waitcnt vmcnt({6*(NSLOT-2)})")
        I("s_barrier")
        issue((slot + NSLOT - 1) % NSLOT)
        seq = [(m, jf) for m in range(2) for jf in range(7)]
        def rd(idx):
            m, jf = seq[idx]
            a = AF + (idx % 4)*4
            if slot < 4:
                va = VA + jf; off = slot*SLOT + m*8192
            else:
                va = VA + 7 + jf; off = m*8192
            I(f"ds_read_b64_tr_b16 v[{a}:{a+1}], v{va} offset:{off}")
            I(f"ds_read_b64_tr_b16 v[{a+2}:{a+3}], v{va} offset:{off+1024}")
        for i in range(3):
            rd(i)
        for idx in range(14):
            if idx + 3 < 14:
                rd(idx + 3)
                I("s_waitcnt lgkmcnt(6)")
            else:
                I(f"s_waitcnt lgkmcnt({2*(13-idx)})")
            m, jf = seq[idx]
            a = AF + (idx % 4)*4
            for js in range(2):
                c = acc(m, jf, js); b = BB + slot*8 + js*4
                I(f"v_mfma_f32_16x16x32_bf16 v[{c}:{c+3}], v[{a}:{a+3}], v[{b}:{b+3}], v[{c}:{c+3}]")
    I("s_add_u32 s33, s33, 1")
    I(f"s_cmp_lt_u32 s33, {NST//NSLOT}")
    I("s_cbranch_scc1 G1_loop")
    stamp()
    I("s_waitcnt vmcnt(0)")
    I("s_nop 7")
    I("s_nop 3")
    T = 24
    for js in range(2):
        for jf in range(7):
            g = acc(0, jf, js); u = acc(1, jf, js)
            t = T + ((js*7 + jf) % 4) * 8
            I(f"v_cvt_pk_bf16_f32 v{t}, v{g}, v{g+1}")
            I(f"v_cvt_pk_bf16_f32 v{t+1}, v{g+2}, v{g+3}")
            I(f"v_cvt_pk_bf16_f32 v{t+2}, v{u}, v{u+1}")
            I(f"v_cvt_pk_bf16_f32 v{t+3}, v{u+2}, v{u+3}")
            lo16(g, t); hi16(g+1, t); lo16(g+2, t+1); hi16(g+3, t+1)
            lo16(u, t+2); hi16(u+1, t+2); lo16(u+2, t+3); hi16(u+3, t+3)
            for r in range(4):
                I(f"v_mul_f32 v{g+r}, v{g+r}, v{u+r}")
            I(f"v_cvt_pk_bf16_f32 v{t+4}, v{g}, v{g+1}")
            I(f"v_cvt_pk_bf16_f32 v{t+5}, v{g+2}, v{g+3}")
            I(f"s_add_u32 s34, s25, {16*jf}")
            I("s_lshr_b32 s35, s34, 5")
            I("s_lshl_b32 s35, s35, 10")
            I("s_and_b32 s34, s34, 16")
            I("s_lshr_b32 s34, s34, 1")
            I("s_add_u32 s35, s35, s34")
            I(f"buffer_store_dwordx2 v[{t+4}:{t+5}], v{8+js}, s[20:23], s35 offen")
    I("s_waitcnt vmcnt(0)")
    stamp()
    stamp_dump(5)
    I("s_endpgm")
    e("M_conv:")
    if "noconv" in FLAGS: I("s_endpgm")
    XREG = 7680; CST = 800; HBUF = 8*CST; WREG = 20480
    stamp()
    I("s_load_dwordx4 s[16:19], s[0:1], 32")
    I("v_lshrrev_b32 v1, 6, v0")
    I("s_nop 0")
    I("v_readfirstlane_b32 s3, v1")
    I(f"s_sub_u32 s24, s2, {N_G1}")
    I("s_lshl_b32 s24, s24, 2")
    I("s_add_u32 s24, s24, s3")
    I("s_waitcnt lgkmcnt(0)")
    srd(8, 16, SZ_SD)
    srd(12, 6, SZ_SD, WS_KVR)
    srd(20, 6, SZ_SD, WS_YT)
    I("s_lshr_b32 s25, s24, 1")
    I("s_lshl_b32 s25, s25, 2")
    I("s_load_dword s26, s[18:19], s25")
    I("v_and_b32 v1, 63, v0")
    I("s_lshl_b32 s27, s24, 12")
    I("v_lshl_add_u32 v2, v1, 4, s27")
    XL = 16
    for j in range(4):
        I(f"buffer_load_dwordx4 v[{XL+4*j}:{XL+4*j+3}], v2, s[12:15], 0 offen offset:{1024*j}")
    HW0, HW1 = 32, 40
    I("v_subrev_u32 v13, 64, v2")
    I("v_mov_b32 v5, 0x40000000")
    I("v_cmp_gt_u32 vcc, 4, v1")
    I("s_nop 1")
    I("v_cndmask_b32 v4, v13, v5, vcc")
    I("v_add_u32 v6, 16, v13")
    I("v_cmp_gt_u32 vcc, 3, v1")
    I("s_nop 1")
    I("v_cndmask_b32 v6, v6, v5, vcc")
    I(f"buffer_load_dwordx4 v[{HW0}:{HW0+3}], v4, s[8:11], 0 offen")
    I(f"buffer_load_dwordx4 v[{HW0+4}:{HW0+7}], v6, s[8:11], 0 offen")
    I(f"buffer_load_dwordx4 v[{HW1}:{HW1+3}], v2, s[8:11], 0 offen offset:448")
    I(f"buffer_load_dwordx4 v[{HW1+4}:{HW1+7}], v2, s[8:11], 0 offen offset:464")
    I("s_mov_b32 s29, 960")
    I(f"s_mul_i32 s28, s3, {WREG}")
    Z = 96
    for j in range(4):
        I(f"v_mov_b32 v{Z+j}, 0")
    I("v_lshl_add_u32 v3, v1, 4, s28")
    I(f"ds_write_b128 v3, v[{Z}:{Z+3}] offset:5120")
    I(f"ds_write_b128 v3, v[{Z}:{Z+3}] offset:6144")
    I(f"ds_write_b128 v3, v[{Z}:{Z+3}] offset:6656")
    I("v_lshrrev_b32 v4, 2, v1")
    I("v_mul_u32_u24 v4, 80, v4")
    I("v_and_b32 v5, 3, v1")
    I("v_lshl_add_u32 v4, v5, 4, v4")
    I("v_add_u32 v4, s28, v4")
    I("v_and_b32 v5, 31, v1")
    I("v_lshrrev_b32 v6, 5, v1")
    I("v_and_b32 v7, 7, v5")
    I(f"v_mul_u32_u24 v7, {CST}, v7")
    I("v_lshrrev_b32 v8, 3, v5")
    I("v_add_u32 v8, v8, v6")
    I("v_lshl_add_u32 v7, v8, 4, v7")
    I(f"v_add_u32 v7, {XREG}, v7")
    I("v_add_u32 v7, s28, v7")
    I(f"v_add_u32 v14, {HBUF}, v7")
    I("v_sub_u32 v8, 63, v5")
    I("v_mul_u32_u24 v8, 80, v8")
    I("v_lshl_add_u32 v8, v6, 4, v8")
    I("v_add_u32 v8, s28, v8")
    I("v_mov_b32 v15, v8")
    I("v_subrev_u32 v9, 2560, v8")
    I(f"v_add_u32 v10, {XREG}, v3")
    I(f"v_add_u32 v11, {HBUF}, v10")
    AC0, AC1 = 100, 116
    for j in range(32):
        I(f"v_mov_b32 v{AC0+j}, 0")
    FR = 132
    UE, UO, WO = 180, 189, 197
    I("s_mov_b32 s30, -1")
    I("s_mov_b32 s31, 0xf")
    q = DSQ()
    def stage_seg(w, addr):
        for t in range(7):
            I(f"v_alignbit_b32 v{UE+t}, v{w+t+1}, v{w+t}, 16")
            I(f"v_alignbit_b32 v{UO+t}, v{w+t+1}, v{w+t}, 16")
        for t in range(1, 7):
            I(f"v_mov_b32 v{WO+t}, v{w+t}")
        I("s_mov_b64 exec, s[30:31]")
        for c in range(8):
            if c % 2 == 0:
                t0 = c // 2
                r = UE + t0 if t0 % 2 == 0 else UO + t0
            else:
                t0 = (1 + c)//2
                r = w + t0 if t0 % 2 == 0 else WO + t0
            assert r % 2 == 0, (c, r)
            I(f"ds_write_b128 v{addr}, v[{r}:{r+3}] offset:{c*CST}")
            q.push(("w", 0))
        I("s_mov_b64 exec, -1")
    I("s_waitcnt vmcnt(2)")
    stamp()
    for j in range(4):
        I(f"ds_write_b128 v4, v[{XL+4*j}:{XL+4*j+3}] offset:{16*80*j}")
    stage_seg(HW0, 10)
    q = DSQ()
    def crd(c, both):
        f = FR + (c % 4)*12
        boff = (c >> 1)*80 + (c & 1)*32
        if c < 16:
            I(f"ds_read_b128 v[{f}:{f+3}], v7 offset:{32*c}")
        else:
            I(f"ds_read_b128 v[{f}:{f+3}], v14 offset:{32*(c-16)}")
        q.push(("r", c))
        I(f"ds_read_b128 v[{f+4}:{f+7}], v9 offset:{boff}")
        q.push(("r", c))
        if both:
            I(f"ds_read_b128 v[{f+8}:{f+11}], v8 offset:{boff}")
            q.push(("r", c))
    for c in range(3):
        crd(c, True)
    I("s_mov_b32 s33, 0")
    stamp()
    for phase in range(2):
        both = (phase == 0)
        e(f"CV_loop{phase}:")
        q.q = [("r", c) for c in range(3) for _ in range(3 if both else 2)]
        for c in range(16):
            if c == 1:
                I("s_waitcnt vmcnt(0)")
                stage_seg(HW1, 11)
                I(f"buffer_load_dwordx4 v[{HW1}:{HW1+3}], v2, s[8:11], s29 offen")
                I(f"buffer_load_dwordx4 v[{HW1+4}:{HW1+7}], v2, s[8:11], s29 offen offset:16")
                I("s_add_u32 s29, s29, 512")
            crd(c + 3, both)
            q.wait_for(("r", c))
            f = FR + (c % 4)*12
            I(f"v_mfma_f32_32x32x16_bf16 v[{AC1}:{AC1+15}], v[{f}:{f+3}], v[{f+4}:{f+7}], v[{AC1}:{AC1+15}]")
            if both:
                I(f"v_mfma_f32_32x32x16_bf16 v[{AC0}:{AC0+15}], v[{f}:{f+3}], v[{f+8}:{f+11}], v[{AC0}:{AC0+15}]")
        I("v_swap_b32 v7, v14")
        I("v_swap_b32 v10, v11")
        I("v_add_u32 v8, 640, v8")
        I("v_add_u32 v9, 640, v9")
        I("s_add_u32 s33, s33, 1")
        I(f"s_cmp_lt_u32 s33, {4*(phase+1)}")
        I(f"s_cbranch_scc1 CV_loop{phase}")
    I("v_mov_b32 v8, v15")
    I("s_waitcnt vmcnt(0) lgkmcnt(0)")
    stamp()
    I("v_mul_u32_u24 v10, 24, v6")
    I("v_sub_u32 v10, v8, v10")
    I("v_add_u32 v10, 8, v10")
    I("v_subrev_u32 v11, 2560, v10")
    KV = 16
    for cb in range(2):
        for qq in range(4):
            I(f"ds_read_b64 v[{KV+cb*8+2*qq}:{KV+cb*8+2*qq+1}], v{10+cb} offset:{48-16*qq}")
    I("s_and_b32 s25, s24, 1")
    I("s_lshl_b32 s25, s25, 4")
    I("s_lshr_b32 s26, s26, s25")
    I("s_lshl_b32 s26, s26, 16")
    I("v_lshlrev_b32 v12, 6, v5")
    I("v_lshl_add_u32 v12, v6, 3, v12")
    I("v_add_u32 v12, s27, v12")
    I("s_nop 7")
    I("s_waitcnt lgkmcnt(0)")
    for cb in range(2):
        ac = AC0 if cb == 0 else AC1
        for qq in range(4):
            k0 = KV + cb*8 + 2*qq
            t = 40 + (qq % 2)*12
            y = ac + 4*qq
            hi16(t+0, k0+1); lo16(t+1, k0+1); hi16(t+2, k0); lo16(t+3, k0)
            for r in range(4):
                I(f"v_mul_f32 v{t+r}, s26, v{t+r}")
            I(f"v_cvt_pk_bf16_f32 v{t+4}, v{t}, v{t+1}")
            I(f"v_cvt_pk_bf16_f32 v{t+5}, v{t+2}, v{t+3}")
            I(f"v_cvt_pk_bf16_f32 v{t+6}, v{y}, v{y+1}")
            I(f"v_cvt_pk_bf16_f32 v{t+7}, v{y+2}, v{y+3}")
            lo16(t, t+4); hi16(t+1, t+4); lo16(t+2, t+5); hi16(t+3, t+5)
            lo16(y, t+6); hi16(y+1, t+6); lo16(y+2, t+7); hi16(y+3, t+7)
            for r in range(4):
                I(f"v_add_f32 v{t+r}, v{t+r}, v{y+r}")
            I(f"v_cvt_pk_bf16_f32 v{t+8}, v{t}, v{t+1}")
            I(f"v_cvt_pk_bf16_f32 v{t+9}, v{t+2}, v{t+3}")
            I(f"buffer_store_dwordx2 v[{t+8}:{t+9}], v12, s[20:23], 0 offen offset:{cb*2048+16*qq}")
    I("s_waitcnt vmcnt(0)")
    stamp()
    stamp_dump(N_G1 + 7)
    e("M_exit:")
    I("s_endpgm")
    kernel_desc("mid_kernel", 208, 80)

def gen_k3():
    kernel_header("fin_kernel")
    I(f"s_cmp_ge_u32 s2, {64 if 'fin64' in FLAGS else 256}")
    I("s_cbranch_scc1 F_exit")
    I("s_load_dwordx2 s[6:7], s[0:1], 96")
    I("s_load_dwordx2 s[4:5], s[0:1], 0")
    I("s_load_dwordx2 s[30:31], s[0:1], 80")
    stamp()
    I("v_lshrrev_b32 v1, 6, v0")
    I("s_nop 0")
    I("v_readfirstlane_b32 s3, v1")
    I("s_waitcnt lgkmcnt(0)")
    srd(8, 6, SZ_W, WS_WDT)
    srd(12, 6, SZ_H, WS_H)
    srd(16, 6, SZ_SD, WS_YT)
    srd(20, 6, SZ_SD, WS_XN)
    srd(24, 4, SZ_SD)
    srd(32, 30, SZ_SD)
    if "fin2d" in FLAGS:
        I("s_and_b32 s36, s2, 1")
        I("s_lshl_b32 s36, s36, 2")
        I("s_bfe_u32 s37, s2, 0x20003")
        I("s_add_u32 s36, s36, s37")
        I("s_mul_i32 s36, s36, 80")
        I("s_bfe_u32 s37, s2, 0x20001")
        I("s_lshl_b32 s37, s37, 3")
        I("s_lshr_b32 s38, s2, 5")
        I("s_add_u32 s37, s37, s38")
        I("s_lshl_b32 s37, s37, 6")
    elif "finswap" in FLAGS:
        I("s_lshr_b32 s36, s2, 5")
        I("s_mul_i32 s36, s36, 80")
        I("s_and_b32 s37, s2, 31")
        I("s_lshl_b32 s37, s37, 6")
    else:
        I("s_and_b32 s36, s2, 7")
        I("s_mul_i32 s36, s36, 80")
        I("s_lshr_b32 s37, s2, 3")
        I("s_lshl_b32 s37, s37, 6")
    I("s_mul_i32 s38, s3, 14")
    I("s_cmp_eq_u32 s3, 3")
    I("s_cselect_b32 s39, 1, 0")
    I("s_sub_u32 s38, s38, s39")
    I("s_cmp_ge_u32 s3, 2")
    I("s_cselect_b32 s39, 13, 14")
    I("s_add_u32 s47, s38, s39")
    I("s_lshl_b32 s45, s38, 10")
    I("s_lshl_b32 s47, s47, 10")
    if "rot" in FLAGS:
        I("s_bfe_u32 s46, s2, 0x20003")
        I("s_lshl_b32 s46, s46, 2")
        I("s_lshr_b32 s44, s2, 5")
        I("s_lshl_b32 s44, s44, 1")
        I("s_add_u32 s46, s46, s44")
        I("s_cmp_ge_u32 s46, 13")
        I("s_cselect_b32 s44, 13, 0")
        I("s_sub_u32 s46, s46, s44")
        I("s_cmp_ge_u32 s46, 13")
        I("s_cselect_b32 s44, 13, 0")
        I("s_sub_u32 s46, s46, s44")
        I("s_lshl_b32 s46, s46, 10")
        I("s_add_u32 s46, s46, s45")
    else:
        I("s_mov_b32 s46, s45")
    I("s_mov_b32 s44, 0")
    I("v_and_b32 v1, 15, v0")
    I("v_bfe_u32 v2, v0, 4, 2")
    I("v_and_b32 v12, 63, v0")
    I("s_lshr_b32 s52, s36, 4")
    I("s_mul_i32 s52, s52, 55296")
    I("v_lshl_add_u32 v3, v12, 4, s52")
    for jd in range(1, 5):
        I(f"v_add_u32 v{3+jd}, {jd*55296}, v3")
    I("s_lshr_b32 s52, s37, 4")
    I("s_mul_i32 s52, s52, 55296")
    I("v_lshl_add_u32 v8, v12, 4, s52")
    for js in range(1, 4):
        I(f"v_add_u32 v{8+js}, {js*55296}, v8")
    def acc(jd, js): return (js*5 + jd)*4
    FRB = 16
    NB = 5
    def ld(buf):
        f = FRB + buf*36
        I("s_cmp_lt_u32 s44, s39")
        I("s_cselect_b32 s48, s46, 0x40000000")
        for jd in range(5):
            r = f + 4*jd
            I(f"buffer_load_dwordx4 v[{r}:{r+3}], v{3+jd}, s[8:11], s48 offen{CP}")
        for js in range(4):
            r = f + 20 + 4*js
            I(f"buffer_load_dwordx4 v[{r}:{r+3}], v{8+js}, s[12:15], s48 offen{CP}")
        I("s_add_u32 s46, s46, 1024")
        I("s_cmp_ge_u32 s46, s47")
        I("s_cselect_b32 s46, s45, s46")
        I("s_add_u32 s44, s44, 1")
    def mm(buf):
        f = FRB + buf*36
        for js in range(4):
            for jd in range(5):
                c = acc(jd, js)
                a = f + 4*jd; b = f + 20 + 4*js
                I(f"v_mfma_f32_16x16x32_bf16 a[{c}:{c+3}], v[{a}:{a+3}], v[{b}:{b+3}], a[{c}:{c+3}]")
    for b in range(NB-1):
        ld(b)
    for j in range(80):
        I(f"v_accvgpr_write_b32 a{j}, 0")
    I("s_mov_b32 s49, 0")
    stamp()
    e("F_loop:")
    for k in range(NB):
        ld((k + NB - 1) % NB)
        I(f"s_waitcnt vmcnt({9*(NB-1)})")
        mm(k)
    I("s_add_u32 s49, s49, 1")
    I("s_cmp_lt_u32 s49, 3")
    I("s_cbranch_scc1 F_loop")
    I("s_waitcnt vmcnt(0)")
    stamp()
    I("s_lshr_b32 s41, s3, 1")
    I("s_lshl_b32 s41, s41, 5")
    I("s_add_u32 s41, s41, s37")
    I("s_lshl_b32 s41, s41, 1")
    I("v_add_u32 v14, s36, v1")
    I("v_lshlrev_b32 v14, 12, v14")
    I("v_lshl_add_u32 v14, v2, 4, v14")
    I("v_add_u32 v14, s41, v14")
    YF = 16
    for jd in range(5):
        I(f"v_add_u32 v15, {jd*16*4096}, v14")
        I(f"buffer_load_dwordx4 v[{YF+4*jd}:{YF+4*jd+3}], v15, s[16:19], 0 offen")
    I("s_lshl_b32 s42, s3, 4")
    I("s_add_u32 s42, s42, s37")
    I("v_add_u32 v15, s42, v1")
    I("v_mul_u32_u24 v15, 0x500, v15")
    I("v_lshl_add_u32 v15, v2, 3, v15")
    I("s_lshl_b32 s43, s36, 1")
    I("v_add_u32 v15, s43, v15")
    XX = 40
    I("s_lshr_b32 s50, s42, 4")
    I("s_mul_i32 s50, s50, 20480")
    I("v_lshrrev_b32 v14, 1, v2")
    I("v_lshlrev_b32 v14, 8, v14")
    I("v_lshl_add_u32 v14, v1, 4, v14")
    I("v_and_b32 v13, 1, v2")
    I("v_lshl_add_u32 v14, v13, 3, v14")
    I("v_add_u32 v14, s50, v14")
    I("s_mul_i32 s40, s3, 20480")
    I("v_lshlrev_b32 v13, 4, v12")
    I("v_add_u32 v13, s40, v13")
    for jd in range(5):
        I(f"buffer_load_dwordx2 v[{XX+2*jd}:{XX+2*jd+1}], v15, s[24:27], 0 offen offset:{32*jd}")
        I(f"s_add_u32 s50, s36, {16*jd}")
        I("s_lshr_b32 s51, s50, 5")
        I("s_lshl_b32 s51, s51, 10")
        I("s_and_b32 s50, s50, 16")
        I("s_lshl_b32 s50, s50, 5")
        I("s_add_u32 s51, s51, s50")
        I(f"buffer_load_dwordx2 v[{XX+10+2*jd}:{XX+11+2*jd}], v14, s[20:23], s51 offen")
    I("s_nop 7")
    for js in range(4):
        for jd in range(5):
            c = acc(jd, js)
            I(f"ds_write_b128 v13, a[{c}:{c+3}] offset:{(js*5+jd)*1024}")
    I("s_waitcnt lgkmcnt(0)")
    I("s_barrier")
    I("s_mul_i32 s40, s3, 5120")
    I("v_lshlrev_b32 v12, 4, v12")
    I("v_add_u32 v13, s40, v12")
    I("v_add_u32 v12, 40960, v13")
    R = 96
    for src in range(4):
        for jd in range(5):
            r = R + (src*5 + jd)*4
            I(f"ds_read_b128 v[{r}:{r+3}], v{13 if src < 2 else 12} offset:{(src%2)*20480 + jd*1024}")
    IDB = 60
    I("s_and_b32 s44, s3, 1")
    I("s_lshl_b32 s44, s44, 4")
    I("v_add_u32 v64, s44, v1")
    I("v_lshrrev_b32 v65, 3, v64")
    I("v_cmp_eq_u32 vcc, v65, v2")
    I("v_and_b32 v65, 7, v64")
    I("v_and_b32 v66, 1, v65")
    I("v_lshlrev_b32 v66, 4, v66")
    I("v_mov_b32 v67, 0x3f80")
    I("v_lshlrev_b32 v67, v66, v67")
    I("v_lshrrev_b32 v65, 1, v65")
    I("v_cndmask_b32 v67, 0, v67, vcc")
    for j in range(4):
        I(f"v_cmp_eq_u32 vcc, {j}, v65")
        I("s_nop 1")
        I(f"v_cndmask_b32 v{IDB+j}, 0, v67, vcc")
    I("s_waitcnt vmcnt(10)")
    TY = 64
    I("s_nop 1")
    for jd in range(5):
        I(f"v_mfma_f32_16x16x32_bf16 v[{TY+4*jd}:{TY+4*jd+3}], v[{YF+4*jd}:{YF+4*jd+3}], v[{IDB}:{IDB+3}], 0")
    I("s_waitcnt lgkmcnt(0)")
    for jd in range(5):
        r0 = R + jd*4
        for src in range(1, 4):
            r = R + (src*5 + jd)*4
            for j in range(4):
                I(f"v_add_f32 v{r0+j}, v{r0+j}, v{r+j}")
    I("s_waitcnt vmcnt(0)")
    for jd in range(5):
        b = R + jd*4
        ty = TY + 4*jd
        t = 180 + (jd % 2)*16
        x0 = XX + 2*jd; n0 = XX + 10 + 2*jd
        lo16(t, n0); hi16(t+1, n0); lo16(t+2, n0+1); hi16(t+3, n0+1)
        for r in range(4):
            I(f"v_mul_f32 v{t+r}, v{t+r}, v{ty+r}")
        I(f"v_cvt_pk_bf16_f32 v{t+4}, v{t}, v{t+1}")
        I(f"v_cvt_pk_bf16_f32 v{t+5}, v{t+2}, v{t+3}")
        lo16(t, t+4); hi16(t+1, t+4); lo16(t+2, t+5); hi16(t+3, t+5)
        lo16(t+6, x0); hi16(t+7, x0); lo16(t+8, x0+1); hi16(t+9, x0+1)
        for r in range(4):
            I(f"v_add_f32 v{t+r}, v{t+r}, v{t+6+r}")
        I(f"v_cvt_pk_bf16_f32 v{t+4}, v{t}, v{t+1}")
        I(f"v_cvt_pk_bf16_f32 v{t+5}, v{t+2}, v{t+3}")
        lo16(t, t+4); hi16(t+1, t+4); lo16(t+2, t+5); hi16(t+3, t+5)
        I(f"v_cvt_pk_bf16_f32 v{t+4}, v{b}, v{b+1}")
        I(f"v_cvt_pk_bf16_f32 v{t+5}, v{b+2}, v{b+3}")
        lo16(t+6, t+4); hi16(t+7, t+4); lo16(t+8, t+5); hi16(t+9, t+5)
        for r in range(4):
            I(f"v_add_f32 v{t+r}, v{t+r}, v{t+6+r}")
        I(f"v_cvt_pk_bf16_f32 v{t+10}, v{t}, v{t+1}")
        I(f"v_cvt_pk_bf16_f32 v{t+11}, v{t+2}, v{t+3}")
        I(f"buffer_store_dwordx2 v[{t+10}:{t+11}], v15, s[32:35], 0 offen offset:{32*jd}")
    I("s_waitcnt vmcnt(0)")
    stamp()
    stamp_dump(9)
    e("F_exit:")
    I("s_endpgm")
    kernel_desc("fin_kernel", 256+80, 80, accum=256)

def main():
    hdr = open("parallel_sum__ssm_conv_h3__glu_gated_bilinear__prompt.s.ref").read().splitlines()
    for line in hdr:
        if line.startswith("; @launch"):
            break
        if line.startswith(";"):
            e(line)
    e(f"; @launch kernel=prep_kernel grid=({N_LN+N_KV+N_WD},1,1) block=(256,1,1) lds=0")
    e(f"; @launch kernel=mid_kernel grid=({N_G1+N_CV},1,1) block=(256,1,1) lds={LDS2}")
    e(f"; @launch kernel=fin_kernel grid=(256,1,1) block=(256,1,1) lds=81920")
    e('.amdgcn_target "amdgcn-amd-amdhsa--gfx950"')
    gen_prep()
    gen_k2()
    gen_k3()
    dst = sys.argv[1] if len(sys.argv) > 1 else "parallel_sum__ssm_conv_h3__glu_gated_bilinear__prompt.s"
    open(dst, "w").write("\n".join(out) + "\n")

main()
```

```python
import sys

import os
FLAGS = os.environ.get("GENFLAGS", "").split(",")
CP = " nt" if "cpnt" in FLAGS else (" sc1" if "cpsc1" in FLAGS else (" sc0 sc1" if "cpsc01" in FLAGS else ""))
S, D, F = 2048, 640, 1728
WS_XN  = 0x0
WS_KVR = 0x280000
WS_WDT = 0x500000
WS_H   = 0x800000
WS_YT  = 0x1000000
SZ_SD = S * D * 2
SZ_W  = D * F * 2
SZ_H  = S * F * 2

out = []
def e(s=""):
    out.append(s)
def I(s):
    out.append("    " + s)

def srd(base, ptr, size, off=0):
    if off:
        I(f"s_add_u32 s{base}, s{ptr}, {off:#x}")
        I(f"s_addc_u32 s{base+1}, s{ptr+1}, 0")
    else:
        I(f"s_mov_b32 s{base}, s{ptr}")
        I(f"s_mov_b32 s{base+1}, s{ptr+1}")
    I(f"s_mov_b32 s{base+2}, {size:#x}")
    I(f"s_mov_b32 s{base+3}, 0x00020000")

def lo16(dst, src): I(f"v_lshlrev_b32 v{dst}, 16, v{src}")
def hi16(dst, src): I(f"v_and_b32 v{dst}, 0xffff0000, v{src}")

STAMP = "stamp" in FLAGS
nst = [0]
def stamp():
    if STAMP:
        i = nst[0]; nst[0] += 1
        I(f"s_memtime s[{60+2*i}:{61+2*i}]")
def stamp_dump(wg):
    if not STAMP: return
    n = nst[0]; nst[0] = 0
    I("s_waitcnt lgkmcnt(0) vmcnt(0)")
    I(f"s_cmp_lg_u32 s2, {wg}")
    I(f"s_cbranch_scc1 SD_skip{wg}")
    I("s_cmp_lg_u32 s3, 0")
    I(f"s_cbranch_scc1 SD_skip{wg}")
    I("s_load_dwordx2 s[56:57], s[0:1], 88")
    I("s_waitcnt lgkmcnt(0)")
    I("s_mov_b32 s58, 256")
    I("s_mov_b32 s59, 0x00020000")
    I("v_mov_b32 v1, 0")
    for i in range(n):
        I(f"s_sub_u32 s{61+2*i}, s{60+2*i}, s60")
        I(f"v_mov_b32 v2, s{61+2*i}")
        I(f"buffer_store_dword v2, v1, s[56:59], 0 offen offset:{4*i}")
    I("s_waitcnt vmcnt(0)")
    e(f"SD_skip{wg}:")

def kernel_header(name):
    e(".text")
    e(f".globl {name}")
    e(".p2align 8")
    e(f".type {name},@function")
    e(f"{name}:")

def kernel_desc(name, vgpr, sgpr, accum=None):
    if accum is None:
        accum = (vgpr + 3) // 4 * 4
    e('.section .rodata,"a"')
    e(".p2align 6")
    e(f".amdhsa_kernel {name}")
    e(f"  .amdhsa_next_free_vgpr {vgpr}")
    e(f"  .amdhsa_next_free_sgpr {sgpr}")
    e(f"  .amdhsa_accum_offset {accum}")
    e("  .amdhsa_group_segment_fixed_size 0")
    e("  .amdhsa_kernarg_size 104")
    e("  .amdhsa_user_sgpr_count 2")
    e("  .amdhsa_user_sgpr_kernarg_segment_ptr 1")
    e("  .amdhsa_system_sgpr_workgroup_id_x 1")
    e(".end_amdhsa_kernel")

N_LN, N_KV = 128, 160
def gen_prep():
    kernel_header("prep_kernel")
    I(f"s_cmp_ge_u32 s2, {N_LN+N_KV}")
    I("s_cbranch_scc1 P_exit")
    I("s_load_dwordx2 s[6:7], s[0:1], 96")
    I(f"s_cmp_lt_u32 s2, {N_KV}")
    I("s_cbranch_scc1 P_kv")
    I("s_load_dwordx2 s[4:5], s[0:1], 0")
    I("v_lshrrev_b32 v1, 4, v0")
    I(f"s_sub_u32 s3, s2, {N_KV}")
    I("s_lshl_b32 s3, s3, 4")
    I("v_add_u32 v1, s3, v1")
    I("v_mul_u32_u24 v2, 0x500, v1")
    I("v_and_b32 v3, 15, v0")
    I("v_lshl_add_u32 v2, v3, 4, v2")
    I("s_waitcnt lgkmcnt(0)")
    srd(8, 4, SZ_SD)
    srd(12, 6, SZ_SD, WS_XN)
    for j in range(5):
        I(f"buffer_load_dwordx4 v[{4+4*j}:{7+4*j}], v2, s[8:11], 0 offen offset:{256*j}")
    I("v_lshrrev_b32 v2, 4, v1")
    I("v_mul_u32_u24 v2, 20480, v2")
    I("v_lshrrev_b32 v64, 2, v3")
    I("v_lshl_add_u32 v2, v64, 10, v2")
    I("v_and_b32 v64, 3, v3")
    I("v_lshl_add_u32 v2, v64, 8, v2")
    I("v_and_b32 v64, 15, v1")
    I("v_lshl_add_u32 v2, v64, 4, v2")
    I("s_waitcnt vmcnt(0)")
    X = 24
    for j in range(20):
        lo16(X + 2*j, 4 + j)
        hi16(X + 2*j + 1, 4 + j)
    T = 64
    for j in range(20):
        I(f"v_add_f32 v{T+j}, v{X+2*j}, v{X+2*j+1}")
    def tree(base, n):
        while n > 1:
            h = n // 2
            for j in range(h):
                I(f"v_add_f32 v{base+j}, v{base+j}, v{base+n-1-j}")
            n = n - h
    tree(T, 20)
    def dpp_reduce(r, tmp):
        for sh in (8, 4, 2, 1):
            I("s_nop 1")
            I(f"v_add_f32_dpp v{tmp}, v{r}, v{r} row_ror:{sh} row_mask:0xf bank_mask:0xf")
            I(f"v_mov_b32 v{r}, v{tmp}")
    dpp_reduce(T, T+1)
    I(f"v_mul_f32 v{T}, {1.0/640.0!r}, v{T}")
    for j in range(40):
        I(f"v_sub_f32 v{T+2+j}, v{X+j}, v{T}")
    for j in range(40):
        I(f"v_mul_f32 v{T+2+j}, v{T+2+j}, v{T+2+j}")
    tree(T+2, 40)
    dpp_reduce(T+2, T+1)
    I(f"v_mul_f32 v{T+2}, {1.0/640.0!r}, v{T+2}")
    I(f"v_cvt_pk_bf16_f32 v{T}, v{T}, v{T+2}")
    hi16(T+2, T)
    lo16(T, T)
    I(f"v_add_f32 v{T+2}, {1e-5!r}, v{T+2}")
    I(f"v_cvt_pk_bf16_f32 v{T+2}, v{T+2}, v{T+2}")
    lo16(T+2, T+2)
    I(f"v_sqrt_f32 v{T+2}, v{T+2}")
    I("s_nop 0")
    I(f"v_cvt_pk_bf16_f32 v{T+2}, v{T+2}, v{T+2}")
    lo16(T+2, T+2)
    I(f"v_rcp_f32 v{T+3}, v{T+2}")
    I("s_nop 0")
    for j in range(20):
        a, b = X + 2*j, X + 2*j + 1
        I(f"v_sub_f32 v{a}, v{a}, v{T}")
        I(f"v_sub_f32 v{b}, v{b}, v{T}")
        I(f"v_cvt_pk_bf16_f32 v{T+4}, v{a}, v{b}")
        lo16(a, T+4)
        hi16(b, T+4)
        for r in (a, b):
            I(f"v_mul_f32 v{T+5}, v{r}, v{T+3}")
            I(f"v_fma_f32 v{T+6}, -v{T+5}, v{T+2}, v{r}")
            I(f"v_fma_f32 v{r}, v{T+6}, v{T+3}, v{T+5}")
        I(f"v_cvt_pk_bf16_f32 v{4+j}, v{a}, v{b}")
        if j % 4 == 3:
            jj = j // 4
            I(f"s_mov_b32 s16, {4096*jj}")
            I(f"buffer_store_dwordx4 v[{4+4*jj}:{7+4*jj}], v2, s[12:15], s16 offen")
    I("s_endpgm")
    e("P_kv:")
    I("s_load_dwordx4 s[16:19], s[0:1], 8")
    I("s_load_dwordx2 s[4:5], s[0:1], 24")
    I("s_mul_i32 s28, s2, 0xCCCD")
    I("s_lshr_b32 s28, s28, 19")
    I("s_mul_i32 s29, s28, 10")
    I("s_sub_u32 s29, s2, s29")
    I("v_and_b32 v1, 7, v0")
    I("v_lshrrev_b32 v2, 3, v0")
    I("s_lshl_b32 s30, s29, 6")
    I("v_lshl_add_u32 v1, v1, 3, s30")
    I("s_lshl_b32 s31, s28, 7")
    I("v_lshl_add_u32 v2, v2, 2, s31")
    I("v_mul_u32_u24 v3, 0x500, v2")
    I("v_lshl_add_u32 v3, v1, 1, v3")
    for i in range(3):
        I(f"v_subrev_u32 v{5+i}, {(3-i)*1280:#x}, v3")
    I("v_lshlrev_b32 v8, 3, v1")
    I("s_waitcnt lgkmcnt(0)")
    srd(8, 16, SZ_SD)
    srd(12, 18, SZ_SD)
    srd(20, 4, D*4*2)
    srd(24, 6, SZ_SD, WS_KVR)
    KR = 16
    for i in range(3):
        I(f"buffer_load_dwordx4 v[{KR+4*i}:{KR+4*i+3}], v{5+i}, s[8:11], 0 offen")
    for i in range(4):
        I(f"buffer_load_dwordx4 v[{KR+4*(i+3)}:{KR+4*(i+3)+3}], v3, s[8:11], 0 offen offset:{i*1280}")
    VR = KR + 28
    for i in range(4):
        I(f"buffer_load_dwordx4 v[{VR+4*i}:{VR+4*i+3}], v3, s[12:15], 0 offen offset:{i*1280}")
    SK = VR + 16
    for i in range(4):
        I(f"buffer_load_dwordx4 v[{SK+4*i}:{SK+4*i+3}], v8, s[20:23], 0 offen offset:{16*i}")
    I("v_lshlrev_b32 v9, 12, v1")
    I(f"v_sub_u32 v10, {S-4}, v2")
    I("v_lshl_add_u32 v9, v10, 1, v9")
    I("s_waitcnt vmcnt(0)")
    KF = 76
    VF = 83
    SF = 87
    TM = 92
    OB = 104
    for dd in range(8):
        ex = lo16 if dd % 2 == 0 else hi16
        for i in range(7):
            ex(KF + i, KR + 4*i + dd//2)
        for i in range(4):
            ex(VF + i, VR + 4*i + dd//2)
        lo16(SF+0, SK + 2*dd); hi16(SF+1, SK + 2*dd)
        lo16(SF+2, SK + 2*dd + 1); hi16(SF+3, SK + 2*dd + 1)
        ob = OB + 2*(dd % 4)
        for q in range(2):
            sa, sb = 3 - 2*q, 2 - 2*q
            t = TM
            I(f"v_mul_f32 v{t}, v{KF+sa}, v{SF+3}")
            I(f"v_mul_f32 v{t+1}, v{KF+sb}, v{SF+3}")
            I(f"v_mul_f32 v{t+2}, v{KF+sa+1}, v{SF+2}")
            I(f"v_mul_f32 v{t+3}, v{KF+sb+1}, v{SF+2}")
            I(f"v_mul_f32 v{t+4}, v{KF+sa+2}, v{SF+1}")
            I(f"v_mul_f32 v{t+5}, v{KF+sb+2}, v{SF+1}")
            I(f"v_mul_f32 v{t+6}, v{KF+sa+3}, v{SF+0}")
            I(f"v_mul_f32 v{t+7}, v{KF+sb+3}, v{SF+0}")
            for p in range(4):
                I(f"v_cvt_pk_bf16_f32 v{t+8+p}, v{t+2*p}, v{t+2*p+1}")
            for p in range(4):
                lo16(t+2*p, t+8+p); hi16(t+2*p+1, t+8+p)
            for step in (1, 2, 3):
                I(f"v_add_f32 v{t}, v{t}, v{t+2*step}")
                I(f"v_add_f32 v{t+1}, v{t+1}, v{t+2*step+1}")
                I(f"v_cvt_pk_bf16_f32 v{t+8}, v{t}, v{t+1}")
                lo16(t, t+8); hi16(t+1, t+8)
            I(f"v_mul_f32 v{t}, v{t}, v{VF+sa}")
            I(f"v_mul_f32 v{t+1}, v{t+1}, v{VF+sb}")
            I(f"v_cvt_pk_bf16_f32 v{ob+q}, v{t}, v{t+1}")
        I(f"s_mov_b32 s16, {4096*dd}")
        I(f"buffer_store_dwordx2 v[{ob}:{ob+1}], v9, s[24:27], s16 offen")
    e("P_exit:")
    I("s_endpgm")
    kernel_desc("prep_kernel", 112, 40)

BF = 112
NSLOT = 5
SLOT = 16384
LDS2 = NSLOT * SLOT
N_G1, N_CV = 256, 256

class DSQ:
    def __init__(self): self.q = []
    def push(self, tag): self.q.append(tag)
    def wait_for(self, tag):
        idx = max(i for i, t in enumerate(self.q) if t == tag)
        n = len(self.q) - 1 - idx
        I(f"s_waitcnt lgkmcnt({min(n,15)})")
        self.q = self.q[idx+1:] if n <= 15 else self.q[len(self.q)-15:]

def gen_k2():
    kernel_header("mid_kernel")
    I(f"s_cmp_ge_u32 s2, {N_G1+N_CV}")
    I("s_cbranch_scc1 M_exit")
    I("s_load_dwordx2 s[6:7], s[0:1], 96")
    I(f"s_cmp_ge_u32 s2, {N_G1}")
    I("s_cbranch_scc1 M_conv")
    if "nog1" in FLAGS: I("s_endpgm")
    stamp()
    I("s_load_dwordx4 s[16:19], s[0:1], 56")
    I("v_lshrrev_b32 v1, 6, v0")
    I("s_nop 0")
    I("v_readfirstlane_b32 s3, v1")
    I("s_waitcnt lgkmcnt(0)")
    I("s_cmp_ge_u32 s3, 2")
    I("s_cselect_b32 s4, s18, s16")
    I("s_cselect_b32 s5, s19, s17")
    srd(8, 4, SZ_W)
    srd(12, 6, SZ_SD, WS_XN)
    srd(20, 6, SZ_H, WS_H)
    if "g12d" in FLAGS:
        I("s_and_b32 s24, s2, 3")
        I("s_lshl_b32 s24, s24, 2")
        I("s_bfe_u32 s25, s2, 0x20003")
        I("s_add_u32 s24, s24, s25")
        I("s_bfe_u32 s25, s2, 0x10002")
        I("s_lshl_b32 s25, s25, 3")
        I("s_lshr_b32 s26, s2, 5")
        I("s_add_u32 s25, s25, s26")
    else:
        I("s_and_b32 s24, s2, 15")
        I("s_lshr_b32 s25, s2, 4")
    I(f"s_mul_i32 s25, s25, {BF}")
    I(f"s_min_u32 s25, s25, {F-BF}")
    I("v_and_b32 v1, 63, v0")
    I("v_lshrrev_b32 v10, 4, v1")
    I("v_bfe_u32 v11, v1, 1, 3")
    I("v_and_b32 v12, 1, v1")
    I("s_and_b32 s26, s3, 1")
    I("s_lshl_b32 s26, s26, 4")
    I("s_lshl_b32 s27, s25, 1")
    for i in range(4):
        bit = (i >> 1) & 1
        I(f"v_or_b32 v13, {bit<<2}, v10")
        I("v_xor_b32 v13, v13, v11")
        I(f"v_add_u32 v14, {4*i}, v10")
        I("v_add_u32 v14, s26, v14")
        I("v_mul_u32_u24 v14, 3456, v14")
        I("v_lshl_add_u32 v14, v13, 5, v14")
        I("v_lshl_add_u32 v14, v12, 4, v14")
        I("v_add_u32 v14, s27, v14")
        I(f"v_subrev_u32 v14, {1024*i}, v14")
        I("v_cmp_eq_u32 vcc, 7, v13")
        I("v_mov_b32 v15, 0x40000000")
        I("s_nop 0")
        I(f"v_cndmask_b32 v{2+i}, v14, v15, vcc")
    I("v_bfe_u32 v17, v0, 4, 2")
    I("s_lshl_b32 s26, s24, 3")
    I("s_lshl_b32 s27, s3, 1")
    I("s_add_u32 s26, s26, s27")
    I("s_mul_i32 s27, s26, 20480")
    I("v_lshl_add_u32 v6, v1, 4, s27")
    I("v_add_u32 v7, 20480, v6")
    I("s_mul_i32 s27, s26, 55296")
    I("v_lshl_add_u32 v8, v1, 4, s27")
    I("v_add_u32 v9, 55296, v8")
    I("v_bfe_u32 v18, v0, 2, 2")
    I("v_lshl_add_u32 v19, v17, 3, v18")
    I("v_lshlrev_b32 v19, 8, v19")
    I("v_and_b32 v20, 1, v17")
    I("v_lshl_or_b32 v20, v20, 2, v18")
    I("v_lshl_add_u32 v19, v20, 5, v19")
    I("v_and_b32 v18, 3, v0")
    I("v_lshl_add_u32 v19, v18, 3, v19")
    VA = 10
    I("v_mov_b32 v24, v19")
    for jf in range(7):
        I(f"v_xor_b32 v{VA+jf}, {jf<<5}, v24")
        I(f"v_add_u32 v{VA+7+jf}, 0x10000, v{VA+jf}")
    I("s_lshl_b32 s29, s3, 12")
    BB = 24
    AF = 64
    ACC = 80
    def acc(m, jf, js): return ACC + ((m*7 + jf)*2 + js)*4
    def bfr(st, js): return BB + (st % NSLOT)*8 + js*4
    NST = 20
    def issue(slot):
        I(f"s_add_u32 s30, s29, {slot*SLOT}")
        I("s_mov_b32 m0, s30")
        for i in range(4):
            I(f"buffer_load_dwordx4 v{2+i}, s[8:11], s28 offen offset:{1024*i} lds")
        for js in range(2):
            r = BB + slot*8 + js*4
            I(f"buffer_load_dwordx4 v[{r}:{r+3}], v{6+js}, s[12:15], s31 offen")
        I("s_add_u32 s36, s36, 1")
        I("s_cmp_ge_u32 s36, 20")
        I("s_cselect_b32 s36, 0, s36")
        I("s_add_u32 s37, s37, 1")
        I(f"s_mul_i32 s28, s36, {32*3456}")
        I("s_lshl_b32 s31, s36, 10")
        I("s_cmp_ge_u32 s37, 20")
        I("s_cselect_b32 s28, 0x40000000, s28")
        I("s_cselect_b32 s31, 0x40000000, s31")
    if "rot" in FLAGS:
        I("s_and_b32 s36, s24, 3")
        I("s_mul_i32 s36, s36, 5")
        I("s_lshr_b32 s37, s2, 5")
        I("s_mul_i32 s37, s37, 3")
        I("s_add_u32 s36, s36, s37")
        I("s_cmp_ge_u32 s36, 20")
        I("s_cselect_b32 s37, 20, 0")
        I("s_sub_u32 s36, s36, s37")
    else:
        I("s_mov_b32 s36, 0")
    I("s_mov_b32 s37, 0")
    I(f"s_mul_i32 s28, s36, {32*3456}")
    I("s_lshl_b32 s31, s36, 10")
    for st in range(NSLOT - 1):
        issue(st)
    for j in range(112):
        I(f"v_mov_b32 v{ACC+j}, 0")
    I("s_mov_b32 s33, 0")
    stamp()
    e("G1_loop:")
    for slot in range(NSLOT):
        I(f"s_waitcnt vmcnt({6*(NSLOT-2)})")
        I("s_barrier")
        issue((slot + NSLOT - 1) % NSLOT)
        seq = [(m, jf) for m in range(2) for jf in range(7)]
        def rd(idx):
            m, jf = seq[idx]
            a = AF + (idx % 4)*4
            if slot < 4:
                va = VA + jf; off = slot*SLOT + m*8192
            else:
                va = VA + 7 + jf; off = m*8192
            I(f"ds_read_b64_tr_b16 v[{a}:{a+1}], v{va} offset:{off}")
            I(f"ds_read_b64_tr_b16 v[{a+2}:{a+3}], v{va} offset:{off+1024}")
        for i in range(3):
            rd(i)
        for idx in range(14):
            if idx + 3 < 14:
                rd(idx + 3)
                I("s_waitcnt lgkmcnt(6)")
            else:
                I(f"s_waitcnt lgkmcnt({2*(13-idx)})")
            m, jf = seq[idx]
            a = AF + (idx % 4)*4
            for js in range(2):
                c = acc(m, jf, js); b = BB + slot*8 + js*4
                I(f"v_mfma_f32_16x16x32_bf16 v[{c}:{c+3}], v[{a}:{a+3}], v[{b}:{b+3}], v[{c}:{c+3}]")
    I("s_add_u32 s33, s33, 1")
    I(f"s_cmp_lt_u32 s33, {NST//NSLOT}")
    I("s_cbranch_scc1 G1_loop")
    stamp()
    I("s_waitcnt vmcnt(0)")
    I("s_nop 7")
    I("s_nop 3")
    T = 24
    for js in range(2):
        for jf in range(7):
            g = acc(0, jf, js); u = acc(1, jf, js)
            t = T + ((js*7 + jf) % 4) * 8
            I(f"v_cvt_pk_bf16_f32 v{t}, v{g}, v{g+1}")
            I(f"v_cvt_pk_bf16_f32 v{t+1}, v{g+2}, v{g+3}")
            I(f"v_cvt_pk_bf16_f32 v{t+2}, v{u}, v{u+1}")
            I(f"v_cvt_pk_bf16_f32 v{t+3}, v{u+2}, v{u+3}")
            lo16(g, t); hi16(g+1, t); lo16(g+2, t+1); hi16(g+3, t+1)
            lo16(u, t+2); hi16(u+1, t+2); lo16(u+2, t+3); hi16(u+3, t+3)
            for r in range(4):
                I(f"v_mul_f32 v{g+r}, v{g+r}, v{u+r}")
            I(f"v_cvt_pk_bf16_f32 v{t+4}, v{g}, v{g+1}")
            I(f"v_cvt_pk_bf16_f32 v{t+5}, v{g+2}, v{g+3}")
            I(f"s_add_u32 s34, s25, {16*jf}")
            I("s_lshr_b32 s35, s34, 5")
            I("s_lshl_b32 s35, s35, 10")
            I("s_and_b32 s34, s34, 16")
            I("s_lshr_b32 s34, s34, 1")
            I("s_add_u32 s35, s35, s34")
            I(f"buffer_store_dwordx2 v[{t+4}:{t+5}], v{8+js}, s[20:23], s35 offen")
    I("s_waitcnt vmcnt(0)")
    stamp()
    stamp_dump(5)
    I("s_endpgm")
    e("M_conv:")
    if "noconv" in FLAGS: I("s_endpgm")
    XREG = 7680; CST = 800; HBUF = 8*CST; WREG = 20480
    stamp()
    I("s_load_dwordx4 s[16:19], s[0:1], 32")
    I("v_lshrrev_b32 v1, 6, v0")
    I("s_nop 0")
    I("v_readfirstlane_b32 s3, v1")
    I(f"s_sub_u32 s25, s2, {N_G1}")
    I("s_cmp_ge_u32 s25, 128")
    I("s_cbranch_scc1 M_aux_hi")
    I("s_mov_b32 s24, s25")
    I("s_cmp_eq_u32 s3, 3")
    I("s_cbranch_scc1 M_wdt")
    I("s_mul_i32 s24, s25, 3")
    I("s_add_u32 s24, s24, s3")
    I("s_branch M_conv2")
    e("M_aux_hi:")
    I("s_sub_u32 s25, s25, 128")
    I("s_lshl_b32 s25, s25, 1")
    I("s_add_u32 s24, s25, s3")
    I("s_add_u32 s24, s24, 126")
    I("s_cmp_ge_u32 s3, 2")
    I("s_cbranch_scc1 M_wdt")
    I("s_add_u32 s24, s25, s3")
    I("s_add_u32 s24, s24, 384")
    e("M_conv2:")
    I("s_waitcnt lgkmcnt(0)")
    srd(8, 16, SZ_SD)
    srd(12, 6, SZ_SD, WS_KVR)
    srd(20, 6, SZ_SD, WS_YT)
    I("s_lshr_b32 s25, s24, 1")
    I("s_lshl_b32 s25, s25, 2")
    I("s_load_dword s26, s[18:19], s25")
    I("v_and_b32 v1, 63, v0")
    I("s_lshl_b32 s27, s24, 12")
    I("v_lshl_add_u32 v2, v1, 4, s27")
    XL = 16
    for j in range(4):
        I(f"buffer_load_dwordx4 v[{XL+4*j}:{XL+4*j+3}], v2, s[12:15], 0 offen offset:{1024*j}")
    HW0, HW1 = 32, 40
    I("v_subrev_u32 v13, 64, v2")
    I("v_mov_b32 v5, 0x40000000")
    I("v_cmp_gt_u32 vcc, 4, v1")
    I("s_nop 1")
    I("v_cndmask_b32 v4, v13, v5, vcc")
    I("v_add_u32 v6, 16, v13")
    I("v_cmp_gt_u32 vcc, 3, v1")
    I("s_nop 1")
    I("v_cndmask_b32 v6, v6, v5, vcc")
    I(f"buffer_load_dwordx4 v[{HW0}:{HW0+3}], v4, s[8:11], 0 offen")
    I(f"buffer_load_dwordx4 v[{HW0+4}:{HW0+7}], v6, s[8:11], 0 offen")
    I(f"buffer_load_dwordx4 v[{HW1}:{HW1+3}], v2, s[8:11], 0 offen offset:448")
    I(f"buffer_load_dwordx4 v[{HW1+4}:{HW1+7}], v2, s[8:11], 0 offen offset:464")
    I("s_mov_b32 s29, 960")
    I(f"s_mul_i32 s28, s3, {WREG}")
    Z = 96
    for j in range(4):
        I(f"v_mov_b32 v{Z+j}, 0")
    I("v_lshl_add_u32 v3, v1, 4, s28")
    I(f"ds_write_b128 v3, v[{Z}:{Z+3}] offset:5120")
    I(f"ds_write_b128 v3, v[{Z}:{Z+3}] offset:6144")
    I(f"ds_write_b128 v3, v[{Z}:{Z+3}] offset:6656")
    I("v_lshrrev_b32 v4, 2, v1")
    I("v_mul_u32_u24 v4, 80, v4")
    I("v_and_b32 v5, 3, v1")
    I("v_lshl_add_u32 v4, v5, 4, v4")
    I("v_add_u32 v4, s28, v4")
    I("v_and_b32 v5, 31, v1")
    I("v_lshrrev_b32 v6, 5, v1")
    I("v_and_b32 v7, 7, v5")
    I(f"v_mul_u32_u24 v7, {CST}, v7")
    I("v_lshrrev_b32 v8, 3, v5")
    I("v_add_u32 v8, v8, v6")
    I("v_lshl_add_u32 v7, v8, 4, v7")
    I(f"v_add_u32 v7, {XREG}, v7")
    I("v_add_u32 v7, s28, v7")
    I(f"v_add_u32 v14, {HBUF}, v7")
    I("v_sub_u32 v8, 63, v5")
    I("v_mul_u32_u24 v8, 80, v8")
    I("v_lshl_add_u32 v8, v6, 4, v8")
    I("v_add_u32 v8, s28, v8")
    I("v_mov_b32 v15, v8")
    I("v_subrev_u32 v9, 2560, v8")
    I(f"v_add_u32 v10, {XREG}, v3")
    I(f"v_add_u32 v11, {HBUF}, v10")
    AC0, AC1 = 100, 116
    for j in range(32):
        I(f"v_mov_b32 v{AC0+j}, 0")
    FR = 132
    UE, UO, WO = 180, 189, 197
    I("s_mov_b32 s30, -1")
    I("s_mov_b32 s31, 0xf")
    q = DSQ()
    def stage_seg(w, addr):
        for t in range(7):
            I(f"v_alignbit_b32 v{UE+t}, v{w+t+1}, v{w+t}, 16")
            I(f"v_alignbit_b32 v{UO+t}, v{w+t+1}, v{w+t}, 16")
        for t in range(1, 7):
            I(f"v_mov_b32 v{WO+t}, v{w+t}")
        I("s_mov_b64 exec, s[30:31]")
        for c in range(8):
            if c % 2 == 0:
                t0 = c // 2
                r = UE + t0 if t0 % 2 == 0 else UO + t0
            else:
                t0 = (1 + c)//2
                r = w + t0 if t0 % 2 == 0 else WO + t0
            assert r % 2 == 0, (c, r)
            I(f"ds_write_b128 v{addr}, v[{r}:{r+3}] offset:{c*CST}")
            q.push(("w", 0))
        I("s_mov_b64 exec, -1")
    I("s_waitcnt vmcnt(2)")
    stamp()
    for j in range(4):
        I(f"ds_write_b128 v4, v[{XL+4*j}:{XL+4*j+3}] offset:{16*80*j}")
    stage_seg(HW0, 10)
    q = DSQ()
    def crd(c, both):
        f = FR + (c % 4)*12
        boff = (c >> 1)*80 + (c & 1)*32
        if c < 16:
            I(f"ds_read_b128 v[{f}:{f+3}], v7 offset:{32*c}")
        else:
            I(f"ds_read_b128 v[{f}:{f+3}], v14 offset:{32*(c-16)}")
        q.push(("r", c))
        I(f"ds_read_b128 v[{f+4}:{f+7}], v9 offset:{boff}")
        q.push(("r", c))
        if both:
            I(f"ds_read_b128 v[{f+8}:{f+11}], v8 offset:{boff}")
            q.push(("r", c))
    for c in range(3):
        crd(c, True)
    I("s_mov_b32 s33, 0")
    stamp()
    for phase in range(2):
        both = (phase == 0)
        e(f"CV_loop{phase}:")
        q.q = [("r", c) for c in range(3) for _ in range(3 if both else 2)]
        for c in range(16):
            if c == 1:
                I("s_waitcnt vmcnt(0)")
                stage_seg(HW1, 11)
                I(f"buffer_load_dwordx4 v[{HW1}:{HW1+3}], v2, s[8:11], s29 offen")
                I(f"buffer_load_dwordx4 v[{HW1+4}:{HW1+7}], v2, s[8:11], s29 offen offset:16")
                I("s_add_u32 s29, s29, 512")
            crd(c + 3, both)
            q.wait_for(("r", c))
            f = FR + (c % 4)*12
            I(f"v_mfma_f32_32x32x16_bf16 v[{AC1}:{AC1+15}], v[{f}:{f+3}], v[{f+4}:{f+7}], v[{AC1}:{AC1+15}]")
            if both:
                I(f"v_mfma_f32_32x32x16_bf16 v[{AC0}:{AC0+15}], v[{f}:{f+3}], v[{f+8}:{f+11}], v[{AC0}:{AC0+15}]")
        I("v_swap_b32 v7, v14")
        I("v_swap_b32 v10, v11")
        I("v_add_u32 v8, 640, v8")
        I("v_add_u32 v9, 640, v9")
        I("s_add_u32 s33, s33, 1")
        I(f"s_cmp_lt_u32 s33, {4*(phase+1)}")
        I(f"s_cbranch_scc1 CV_loop{phase}")
    I("v_mov_b32 v8, v15")
    I("s_waitcnt vmcnt(0) lgkmcnt(0)")
    stamp()
    I("v_mul_u32_u24 v10, 24, v6")
    I("v_sub_u32 v10, v8, v10")
    I("v_add_u32 v10, 8, v10")
    I("v_subrev_u32 v11, 2560, v10")
    KV = 16
    for cb in range(2):
        for qq in range(4):
            I(f"ds_read_b64 v[{KV+cb*8+2*qq}:{KV+cb*8+2*qq+1}], v{10+cb} offset:{48-16*qq}")
    I("s_and_b32 s25, s24, 1")
    I("s_lshl_b32 s25, s25, 4")
    I("s_lshr_b32 s26, s26, s25")
    I("s_lshl_b32 s26, s26, 16")
    I("v_lshlrev_b32 v12, 6, v5")
    I("v_lshl_add_u32 v12, v6, 3, v12")
    I("v_add_u32 v12, s27, v12")
    I("s_nop 7")
    I("s_waitcnt lgkmcnt(0)")
    for cb in range(2):
        ac = AC0 if cb == 0 else AC1
        for qq in range(4):
            k0 = KV + cb*8 + 2*qq
            t = 40 + (qq % 2)*12
            y = ac + 4*qq
            hi16(t+0, k0+1); lo16(t+1, k0+1); hi16(t+2, k0); lo16(t+3, k0)
            for r in range(4):
                I(f"v_mul_f32 v{t+r}, s26, v{t+r}")
            I(f"v_cvt_pk_bf16_f32 v{t+4}, v{t}, v{t+1}")
            I(f"v_cvt_pk_bf16_f32 v{t+5}, v{t+2}, v{t+3}")
            I(f"v_cvt_pk_bf16_f32 v{t+6}, v{y}, v{y+1}")
            I(f"v_cvt_pk_bf16_f32 v{t+7}, v{y+2}, v{y+3}")
            lo16(t, t+4); hi16(t+1, t+4); lo16(t+2, t+5); hi16(t+3, t+5)
            lo16(y, t+6); hi16(y+1, t+6); lo16(y+2, t+7); hi16(y+3, t+7)
            for r in range(4):
                I(f"v_add_f32 v{t+r}, v{t+r}, v{y+r}")
            I(f"v_cvt_pk_bf16_f32 v{t+8}, v{t}, v{t+1}")
            I(f"v_cvt_pk_bf16_f32 v{t+9}, v{t+2}, v{t+3}")
            I(f"buffer_store_dwordx2 v[{t+8}:{t+9}], v12, s[20:23], 0 offen offset:{cb*2048+16*qq}")
    I("s_waitcnt vmcnt(0)")
    stamp()
    stamp_dump(N_G1 + 7)
    I("s_endpgm")
    e("M_wdt:")
    I("s_cmp_ge_u32 s24, 270")
    I("s_cbranch_scc1 M_exit")
    I("s_waitcnt lgkmcnt(0)")
    I("s_load_dwordx2 s[4:5], s[0:1], 72")
    I("s_mul_i32 s17, s24, 0xCCCD")
    I("s_lshr_b32 s17, s17, 19")
    I("s_mul_i32 s18, s17, 10")
    I("s_sub_u32 s18, s24, s18")
    I("v_and_b32 v1, 7, v0")
    I("v_bfe_u32 v2, v0, 3, 2")
    I("v_bfe_u32 v6, v0, 5, 1")
    I("s_lshl_b32 s18, s18, 6")
    I("v_lshl_add_u32 v1, v1, 3, s18")
    I("s_lshl_b32 s19, s17, 1")
    I("v_add_u32 v6, s19, v6")
    I("v_lshlrev_b32 v7, 5, v6")
    I("v_lshl_add_u32 v7, v2, 2, v7")
    I("v_mul_u32_u24 v3, 0x500, v7")
    I("v_lshl_add_u32 v3, v1, 1, v3")
    I("v_add_u32 v4, 0x5000, v3")
    I("s_waitcnt lgkmcnt(0)")
    srd(8, 4, SZ_W)
    srd(12, 6, SZ_W, WS_WDT)
    for i in range(8):
        b = 3 if i < 4 else 4
        I(f"buffer_load_dwordx4 v[{8+4*i}:{11+4*i}], v{b}, s[8:11], 0 offen offset:{(i%4)*1280}")
    I("s_mov_b32 s20, 0x05040100")
    I("s_mov_b32 s21, 0x07060302")
    I("v_lshrrev_b32 v5, 4, v1")
    I("v_mul_u32_u24 v5, 54, v5")
    I("v_add_u32 v5, v5, v6")
    I("v_lshlrev_b32 v5, 10, v5")
    I("v_lshl_add_u32 v5, v2, 8, v5")
    I("v_and_b32 v7, 15, v1")
    I("v_lshl_add_u32 v5, v7, 4, v5")
    I("s_waitcnt vmcnt(0)")
    for dd in range(8):
        ob = 40 + 4*dd
        sel = 20 + (dd & 1)
        for q in range(4):
            I(f"v_perm_b32 v{ob+q}, v{8+4*(2*q+1)+dd//2}, v{8+4*(2*q)+dd//2}, s{sel}")
    for dd in range(8):
        ob = 40 + 4*dd
        I(f"buffer_store_dwordx4 v[{ob}:{ob+3}], v5, s[12:15], 0 offen offset:{16*dd}")
    e("M_exit:")
    I("s_endpgm")
    kernel_desc("mid_kernel", 208, 80)

def gen_k3():
    kernel_header("fin_kernel")
    I(f"s_cmp_ge_u32 s2, {64 if 'fin64' in FLAGS else 256}")
    I("s_cbranch_scc1 F_exit")
    I("s_load_dwordx2 s[6:7], s[0:1], 96")
    I("s_load_dwordx2 s[4:5], s[0:1], 0")
    I("s_load_dwordx2 s[30:31], s[0:1], 80")
    stamp()
    I("v_lshrrev_b32 v1, 6, v0")
    I("s_nop 0")
    I("v_readfirstlane_b32 s3, v1")
    I("s_waitcnt lgkmcnt(0)")
    srd(8, 6, SZ_W, WS_WDT)
    srd(12, 6, SZ_H, WS_H)
    srd(16, 6, SZ_SD, WS_YT)
    srd(20, 6, SZ_SD, WS_XN)
    srd(24, 4, SZ_SD)
    srd(32, 30, SZ_SD)
    if "fin2d" in FLAGS:
        I("s_and_b32 s36, s2, 1")
        I("s_lshl_b32 s36, s36, 2")
        I("s_bfe_u32 s37, s2, 0x20003")
        I("s_add_u32 s36, s36, s37")
        I("s_mul_i32 s36, s36, 80")
        I("s_bfe_u32 s37, s2, 0x20001")
        I("s_lshl_b32 s37, s37, 3")
        I("s_lshr_b32 s38, s2, 5")
        I("s_add_u32 s37, s37, s38")
        I("s_lshl_b32 s37, s37, 6")
    elif "finswap" in FLAGS:
        I("s_lshr_b32 s36, s2, 5")
        I("s_mul_i32 s36, s36, 80")
        I("s_and_b32 s37, s2, 31")
        I("s_lshl_b32 s37, s37, 6")
    else:
        I("s_and_b32 s36, s2, 7")
        I("s_mul_i32 s36, s36, 80")
        I("s_lshr_b32 s37, s2, 3")
        I("s_lshl_b32 s37, s37, 6")
    I("s_mul_i32 s38, s3, 14")
    I("s_cmp_eq_u32 s3, 3")
    I("s_cselect_b32 s39, 1, 0")
    I("s_sub_u32 s38, s38, s39")
    I("s_cmp_ge_u32 s3, 2")
    I("s_cselect_b32 s39, 13, 14")
    I("s_add_u32 s47, s38, s39")
    I("s_lshl_b32 s45, s38, 10")
    I("s_lshl_b32 s47, s47, 10")
    if "rot" in FLAGS:
        I("s_bfe_u32 s46, s2, 0x20003")
        I("s_lshl_b32 s46, s46, 2")
        I("s_lshr_b32 s44, s2, 5")
        I("s_lshl_b32 s44, s44, 1")
        I("s_add_u32 s46, s46, s44")
        I("s_cmp_ge_u32 s46, 13")
        I("s_cselect_b32 s44, 13, 0")
        I("s_sub_u32 s46, s46, s44")
        I("s_cmp_ge_u32 s46, 13")
        I("s_cselect_b32 s44, 13, 0")
        I("s_sub_u32 s46, s46, s44")
        I("s_lshl_b32 s46, s46, 10")
        I("s_add_u32 s46, s46, s45")
    else:
        I("s_mov_b32 s46, s45")
    I("s_mov_b32 s44, 0")
    I("v_and_b32 v1, 15, v0")
    I("v_bfe_u32 v2, v0, 4, 2")
    I("v_and_b32 v12, 63, v0")
    I("s_lshr_b32 s52, s36, 4")
    I("s_mul_i32 s52, s52, 55296")
    I("v_lshl_add_u32 v3, v12, 4, s52")
    for jd in range(1, 5):
        I(f"v_add_u32 v{3+jd}, {jd*55296}, v3")
    I("s_lshr_b32 s52, s37, 4")
    I("s_mul_i32 s52, s52, 55296")
    I("v_lshl_add_u32 v8, v12, 4, s52")
    for js in range(1, 4):
        I(f"v_add_u32 v{8+js}, {js*55296}, v8")
    def acc(jd, js): return (js*5 + jd)*4
    FRB = 16
    NB = 5
    def ld(buf):
        f = FRB + buf*36
        I("s_cmp_lt_u32 s44, s39")
        I("s_cselect_b32 s48, s46, 0x40000000")
        for jd in range(5):
            r = f + 4*jd
            I(f"buffer_load_dwordx4 v[{r}:{r+3}], v{3+jd}, s[8:11], s48 offen{CP}")
        for js in range(4):
            r = f + 20 + 4*js
            I(f"buffer_load_dwordx4 v[{r}:{r+3}], v{8+js}, s[12:15], s48 offen{CP}")
        I("s_add_u32 s46, s46, 1024")
        I("s_cmp_ge_u32 s46, s47")
        I("s_cselect_b32 s46, s45, s46")
        I("s_add_u32 s44, s44, 1")
    def mm(buf):
        f = FRB + buf*36
        for js in range(4):
            for jd in range(5):
                c = acc(jd, js)
                a = f + 4*jd; b = f + 20 + 4*js
                I(f"v_mfma_f32_16x16x32_bf16 a[{c}:{c+3}], v[{a}:{a+3}], v[{b}:{b+3}], a[{c}:{c+3}]")
    I("s_lshr_b32 s41, s3, 1")
    I("s_lshl_b32 s41, s41, 5")
    I("s_add_u32 s41, s41, s37")
    I("s_lshl_b32 s41, s41, 1")
    I("v_add_u32 v14, s36, v1")
    I("v_lshlrev_b32 v14, 12, v14")
    I("v_lshl_add_u32 v14, v2, 4, v14")
    I("v_add_u32 v14, s41, v14")
    YF = 196
    for jd in range(5):
        I(f"v_add_u32 v15, {jd*16*4096}, v14")
        I(f"buffer_load_dwordx4 v[{YF+4*jd}:{YF+4*jd+3}], v15, s[16:19], 0 offen")
    I("s_lshl_b32 s42, s3, 4")
    I("s_add_u32 s42, s42, s37")
    I("v_add_u32 v15, s42, v1")
    I("v_mul_u32_u24 v15, 0x500, v15")
    I("v_lshl_add_u32 v15, v2, 3, v15")
    I("s_lshl_b32 s43, s36, 1")
    I("v_add_u32 v15, s43, v15")
    XX = 216
    I("s_lshr_b32 s50, s42, 4")
    I("s_mul_i32 s50, s50, 20480")
    I("v_lshrrev_b32 v14, 1, v2")
    I("v_lshlrev_b32 v14, 8, v14")
    I("v_lshl_add_u32 v14, v1, 4, v14")
    I("v_and_b32 v13, 1, v2")
    I("v_lshl_add_u32 v14, v13, 3, v14")
    I("v_add_u32 v14, s50, v14")
    for jd in range(5):
        I(f"buffer_load_dwordx2 v[{XX+2*jd}:{XX+2*jd+1}], v15, s[24:27], 0 offen offset:{32*jd}")
        I(f"s_add_u32 s50, s36, {16*jd}")
        I("s_lshr_b32 s51, s50, 5")
        I("s_lshl_b32 s51, s51, 10")
        I("s_and_b32 s50, s50, 16")
        I("s_lshl_b32 s50, s50, 5")
        I("s_add_u32 s51, s51, s50")
        I(f"buffer_load_dwordx2 v[{XX+10+2*jd}:{XX+11+2*jd}], v14, s[20:23], s51 offen")
    for b in range(NB-1):
        ld(b)
    for j in range(80):
        I(f"v_accvgpr_write_b32 a{j}, 0")
    I("s_mov_b32 s49, 0")
    stamp()
    e("F_loop:")
    for k in range(NB):
        ld((k + NB - 1) % NB)
        I(f"s_waitcnt vmcnt({9*(NB-1)})")
        mm(k)
    I("s_add_u32 s49, s49, 1")
    I("s_cmp_lt_u32 s49, 3")
    I("s_cbranch_scc1 F_loop")
    I("s_waitcnt vmcnt(0)")
    stamp()
    I("s_mul_i32 s40, s3, 20480")
    I("v_lshlrev_b32 v13, 4, v12")
    I("v_add_u32 v13, s40, v13")
    I("s_nop 7")
    for js in range(4):
        for jd in range(5):
            c = acc(jd, js)
            I(f"ds_write_b128 v13, a[{c}:{c+3}] offset:{(js*5+jd)*1024}")
    I("s_waitcnt lgkmcnt(0)")
    I("s_barrier")
    I("s_mul_i32 s40, s3, 5120")
    I("v_lshlrev_b32 v12, 4, v12")
    I("v_add_u32 v13, s40, v12")
    I("v_add_u32 v12, 40960, v13")
    R = 96
    for src in range(4):
        for jd in range(5):
            r = R + (src*5 + jd)*4
            I(f"ds_read_b128 v[{r}:{r+3}], v{13 if src < 2 else 12} offset:{(src%2)*20480 + jd*1024}")
    IDB = 60
    I("s_and_b32 s44, s3, 1")
    I("s_lshl_b32 s44, s44, 4")
    I("v_add_u32 v64, s44, v1")
    I("v_lshrrev_b32 v65, 3, v64")
    I("v_cmp_eq_u32 vcc, v65, v2")
    I("v_and_b32 v65, 7, v64")
    I("v_and_b32 v66, 1, v65")
    I("v_lshlrev_b32 v66, 4, v66")
    I("v_mov_b32 v67, 0x3f80")
    I("v_lshlrev_b32 v67, v66, v67")
    I("v_lshrrev_b32 v65, 1, v65")
    I("v_cndmask_b32 v67, 0, v67, vcc")
    for j in range(4):
        I(f"v_cmp_eq_u32 vcc, {j}, v65")
        I("s_nop 1")
        I(f"v_cndmask_b32 v{IDB+j}, 0, v67, vcc")
    TY = 64
    I("s_nop 1")
    for jd in range(5):
        I(f"v_mfma_f32_16x16x32_bf16 v[{TY+4*jd}:{TY+4*jd+3}], v[{YF+4*jd}:{YF+4*jd+3}], v[{IDB}:{IDB+3}], 0")
    I("s_waitcnt lgkmcnt(0)")
    for jd in range(5):
        r0 = R + jd*4
        for src in range(1, 4):
            r = R + (src*5 + jd)*4
            for j in range(4):
                I(f"v_add_f32 v{r0+j}, v{r0+j}, v{r+j}")
    I("s_waitcnt vmcnt(0)")
    for jd in range(5):
        b = R + jd*4
        ty = TY + 4*jd
        t = 180 + (jd % 2)*16
        x0 = XX + 2*jd; n0 = XX + 10 + 2*jd
        lo16(t, n0); hi16(t+1, n0); lo16(t+2, n0+1); hi16(t+3, n0+1)
        for r in range(4):
            I(f"v_mul_f32 v{t+r}, v{t+r}, v{ty+r}")
        I(f"v_cvt_pk_bf16_f32 v{t+4}, v{t}, v{t+1}")
        I(f"v_cvt_pk_bf16_f32 v{t+5}, v{t+2}, v{t+3}")
        lo16(t, t+4); hi16(t+1, t+4); lo16(t+2, t+5); hi16(t+3, t+5)
        lo16(t+6, x0); hi16(t+7, x0); lo16(t+8, x0+1); hi16(t+9, x0+1)
        for r in range(4):
            I(f"v_add_f32 v{t+r}, v{t+r}, v{t+6+r}")
        I(f"v_cvt_pk_bf16_f32 v{t+4}, v{t}, v{t+1}")
        I(f"v_cvt_pk_bf16_f32 v{t+5}, v{t+2}, v{t+3}")
        lo16(t, t+4); hi16(t+1, t+4); lo16(t+2, t+5); hi16(t+3, t+5)
        I(f"v_cvt_pk_bf16_f32 v{t+4}, v{b}, v{b+1}")
        I(f"v_cvt_pk_bf16_f32 v{t+5}, v{b+2}, v{b+3}")
        lo16(t+6, t+4); hi16(t+7, t+4); lo16(t+8, t+5); hi16(t+9, t+5)
        for r in range(4):
            I(f"v_add_f32 v{t+r}, v{t+r}, v{t+6+r}")
        I(f"v_cvt_pk_bf16_f32 v{t+10}, v{t}, v{t+1}")
        I(f"v_cvt_pk_bf16_f32 v{t+11}, v{t+2}, v{t+3}")
        I(f"buffer_store_dwordx2 v[{t+10}:{t+11}], v15, s[32:35], 0 offen offset:{32*jd}")
    I("s_waitcnt vmcnt(0)")
    stamp()
    stamp_dump(9)
    e("F_exit:")
    I("s_endpgm")
    kernel_desc("fin_kernel", 256+80, 80, accum=256)

def main():
    hdr = open("parallel_sum__ssm_conv_h3__glu_gated_bilinear__prompt.s.ref").read().splitlines()
    for line in hdr:
        if line.startswith("; @launch"):
            break
        if line.startswith(";"):
            e(line)
    e(f"; @launch kernel=prep_kernel grid=({N_LN+N_KV},1,1) block=(256,1,1) lds=0")
    e(f"; @launch kernel=mid_kernel grid=({N_G1+N_CV},1,1) block=(256,1,1) lds={LDS2}")
    e(f"; @launch kernel=fin_kernel grid=(256,1,1) block=(256,1,1) lds=81920")
    e('.amdgcn_target "amdgcn-amd-amdhsa--gfx950"')
    gen_prep()
    gen_k2()
    gen_k3()
    dst = sys.argv[1] if len(sys.argv) > 1 else "parallel_sum__ssm_conv_h3__glu_gated_bilinear__prompt.s"
    open(dst, "w").write("\n".join(out) + "\n")

main()
```

```python
import sys

import os
FLAGS = os.environ.get("GENFLAGS", "").split(",")
CP = " nt" if "cpnt" in FLAGS else (" sc1" if "cpsc1" in FLAGS else (" sc0 sc1" if "cpsc01" in FLAGS else ""))
S, D, F = 2048, 640, 1728
WS_XN  = 0x0
WS_KVR = 0x280000
WS_WDT = 0x500000
WS_H   = 0x800000
WS_YT  = 0x1000000
SZ_SD = S * D * 2
SZ_W  = D * F * 2
SZ_H  = S * F * 2

out = []
def e(s=""):
    out.append(s)
SP = " nt" if "stnt" in FLAGS else (" sc0 sc1" if "stsc" in FLAGS else (" sc1" if "stsc1" in FLAGS else (" sc0 sc1 nt" if "stall" in FLAGS else "")))
def I(s):
    if s.startswith("buffer_store") and "s[56:59]" not in s: s += SP
    out.append("    " + s)

def srd(base, ptr, size, off=0):
    if off:
        I(f"s_add_u32 s{base}, s{ptr}, {off:#x}")
        I(f"s_addc_u32 s{base+1}, s{ptr+1}, 0")
    else:
        I(f"s_mov_b32 s{base}, s{ptr}")
        I(f"s_mov_b32 s{base+1}, s{ptr+1}")
    I(f"s_mov_b32 s{base+2}, {size:#x}")
    I(f"s_mov_b32 s{base+3}, 0x00020000")

def lo16(dst, src): I(f"v_lshlrev_b32 v{dst}, 16, v{src}")
def hi16(dst, src): I(f"v_and_b32 v{dst}, 0xffff0000, v{src}")

STAMP = "stamp" in FLAGS
nst = [0]
def stamp():
    if STAMP:
        i = nst[0]; nst[0] += 1
        I(f"s_memtime s[{60+2*i}:{61+2*i}]")
def stamp_dump(wg):
    if not STAMP: return
    n = nst[0]; nst[0] = 0
    I("s_waitcnt lgkmcnt(0) vmcnt(0)")
    I(f"s_cmp_lg_u32 s2, {wg}")
    I(f"s_cbranch_scc1 SD_skip{wg}")
    I("s_cmp_lg_u32 s3, 0")
    I(f"s_cbranch_scc1 SD_skip{wg}")
    I("s_load_dwordx2 s[56:57], s[0:1], 88")
    I("s_waitcnt lgkmcnt(0)")
    I("s_mov_b32 s58, 256")
    I("s_mov_b32 s59, 0x00020000")
    I("v_mov_b32 v1, 0")
    for i in range(n):
        I(f"s_sub_u32 s{61+2*i}, s{60+2*i}, s60")
        I(f"v_mov_b32 v2, s{61+2*i}")
        I(f"buffer_store_dword v2, v1, s[56:59], 0 offen offset:{4*i}")
    I("s_waitcnt vmcnt(0)")
    e(f"SD_skip{wg}:")

def kernel_header(name):
    e(".text")
    e(f".globl {name}")
    e(".p2align 8")
    e(f".type {name},@function")
    e(f"{name}:")

def kernel_desc(name, vgpr, sgpr, accum=None):
    if accum is None:
        accum = (vgpr + 3) // 4 * 4
    e('.section .rodata,"a"')
    e(".p2align 6")
    e(f".amdhsa_kernel {name}")
    e(f"  .amdhsa_next_free_vgpr {vgpr}")
    e(f"  .amdhsa_next_free_sgpr {sgpr}")
    e(f"  .amdhsa_accum_offset {accum}")
    e("  .amdhsa_group_segment_fixed_size 0")
    e("  .amdhsa_kernarg_size 104")
    e("  .amdhsa_user_sgpr_count 2")
    e("  .amdhsa_user_sgpr_kernarg_segment_ptr 1")
    e("  .amdhsa_system_sgpr_workgroup_id_x 1")
    e(".end_amdhsa_kernel")

N_LN, N_KV = 128, 160
N_PF = 0
if "pfw" in FLAGS: N_PF = 4*36
if "pfw2" in FLAGS: N_PF = 2*36
def gen_prep():
    kernel_header("prep_kernel")
    I(f"s_cmp_ge_u32 s2, {N_LN+N_KV+N_PF}")
    I("s_cbranch_scc1 P_exit")
    if N_PF:
        I(f"s_cmp_ge_u32 s2, {N_LN+N_KV}")
        I("s_cbranch_scc1 P_pf")
    I("s_load_dwordx2 s[6:7], s[0:1], 96")
    I(f"s_cmp_lt_u32 s2, {N_KV}")
    I("s_cbranch_scc1 P_kv")
    if "noln" in FLAGS: I("s_endpgm")
    I("s_load_dwordx2 s[4:5], s[0:1], 0")
    I("v_lshrrev_b32 v1, 4, v0")
    I(f"s_sub_u32 s3, s2, {N_KV}")
    I("s_lshl_b32 s3, s3, 4")
    I("v_add_u32 v1, s3, v1")
    I("v_mul_u32_u24 v2, 0x500, v1")
    I("v_and_b32 v3, 15, v0")
    I("v_lshl_add_u32 v2, v3, 4, v2")
    I("s_waitcnt lgkmcnt(0)")
    srd(8, 4, SZ_SD)
    srd(12, 6, SZ_SD, WS_XN)
    for j in range(5):
        I(f"buffer_load_dwordx4 v[{4+4*j}:{7+4*j}], v2, s[8:11], 0 offen offset:{256*j}")
    I("v_lshrrev_b32 v2, 4, v1")
    I("v_mul_u32_u24 v2, 20480, v2")
    I("v_lshrrev_b32 v64, 2, v3")
    I("v_lshl_add_u32 v2, v64, 10, v2")
    I("v_and_b32 v64, 3, v3")
    I("v_lshl_add_u32 v2, v64, 8, v2")
    I("v_and_b32 v64, 15, v1")
    I("v_lshl_add_u32 v2, v64, 4, v2")
    I("s_waitcnt vmcnt(0)")
    X = 24
    for j in range(20):
        lo16(X + 2*j, 4 + j)
        hi16(X + 2*j + 1, 4 + j)
    T = 64
    for j in range(20):
        I(f"v_add_f32 v{T+j}, v{X+2*j}, v{X+2*j+1}")
    def tree(base, n):
        while n > 1:
            h = n // 2
            for j in range(h):
                I(f"v_add_f32 v{base+j}, v{base+j}, v{base+n-1-j}")
            n = n - h
    tree(T, 20)
    def dpp_reduce(r, tmp):
        for sh in (8, 4, 2, 1):
            I("s_nop 1")
            I(f"v_add_f32_dpp v{tmp}, v{r}, v{r} row_ror:{sh} row_mask:0xf bank_mask:0xf")
            I(f"v_mov_b32 v{r}, v{tmp}")
    dpp_reduce(T, T+1)
    I(f"v_mul_f32 v{T}, {1.0/640.0!r}, v{T}")
    for j in range(40):
        I(f"v_sub_f32 v{T+2+j}, v{X+j}, v{T}")
    for j in range(40):
        I(f"v_mul_f32 v{T+2+j}, v{T+2+j}, v{T+2+j}")
    tree(T+2, 40)
    dpp_reduce(T+2, T+1)
    I(f"v_mul_f32 v{T+2}, {1.0/640.0!r}, v{T+2}")
    I(f"v_cvt_pk_bf16_f32 v{T}, v{T}, v{T+2}")
    hi16(T+2, T)
    lo16(T, T)
    I(f"v_add_f32 v{T+2}, {1e-5!r}, v{T+2}")
    I(f"v_cvt_pk_bf16_f32 v{T+2}, v{T+2}, v{T+2}")
    lo16(T+2, T+2)
    I(f"v_sqrt_f32 v{T+2}, v{T+2}")
    I("s_nop 0")
    I(f"v_cvt_pk_bf16_f32 v{T+2}, v{T+2}, v{T+2}")
    lo16(T+2, T+2)
    I(f"v_rcp_f32 v{T+3}, v{T+2}")
    I("s_nop 0")
    for j in range(20):
        a, b = X + 2*j, X + 2*j + 1
        I(f"v_sub_f32 v{a}, v{a}, v{T}")
        I(f"v_sub_f32 v{b}, v{b}, v{T}")
        I(f"v_cvt_pk_bf16_f32 v{T+4}, v{a}, v{b}")
        lo16(a, T+4)
        hi16(b, T+4)
        for r in (a, b):
            I(f"v_mul_f32 v{T+5}, v{r}, v{T+3}")
            I(f"v_fma_f32 v{T+6}, -v{T+5}, v{T+2}, v{r}")
            I(f"v_fma_f32 v{r}, v{T+6}, v{T+3}, v{T+5}")
        I(f"v_cvt_pk_bf16_f32 v{4+j}, v{a}, v{b}")
        if j % 4 == 3:
            jj = j // 4
            I(f"s_mov_b32 s16, {4096*jj}")
            I(f"buffer_store_dwordx4 v[{4+4*jj}:{7+4*jj}], v2, s[12:15], s16 offen")
    I("s_endpgm")
    e("P_kv:")
    if "nokv" in FLAGS: I("s_endpgm")
    I("s_load_dwordx4 s[16:19], s[0:1], 8")
    I("s_load_dwordx2 s[4:5], s[0:1], 24")
    I("s_mul_i32 s28, s2, 0xCCCD")
    I("s_lshr_b32 s28, s28, 19")
    I("s_mul_i32 s29, s28, 10")
    I("s_sub_u32 s29, s2, s29")
    I("v_and_b32 v1, 7, v0")
    I("v_lshrrev_b32 v2, 3, v0")
    I("s_lshl_b32 s30, s29, 6")
    I("v_lshl_add_u32 v1, v1, 3, s30")
    I("s_lshl_b32 s31, s28, 7")
    I("v_lshl_add_u32 v2, v2, 2, s31")
    I("v_mul_u32_u24 v3, 0x500, v2")
    I("v_lshl_add_u32 v3, v1, 1, v3")
    for i in range(3):
        I(f"v_subrev_u32 v{5+i}, {(3-i)*1280:#x}, v3")
    I("v_lshlrev_b32 v8, 3, v1")
    I("s_waitcnt lgkmcnt(0)")
    srd(8, 16, SZ_SD)
    srd(12, 18, SZ_SD)
    srd(20, 4, D*4*2)
    srd(24, 6, SZ_SD, WS_KVR)
    KR = 16
    for i in range(3):
        I(f"buffer_load_dwordx4 v[{KR+4*i}:{KR+4*i+3}], v{5+i}, s[8:11], 0 offen")
    for i in range(4):
        I(f"buffer_load_dwordx4 v[{KR+4*(i+3)}:{KR+4*(i+3)+3}], v3, s[8:11], 0 offen offset:{i*1280}")
    VR = KR + 28
    for i in range(4):
        I(f"buffer_load_dwordx4 v[{VR+4*i}:{VR+4*i+3}], v3, s[12:15], 0 offen offset:{i*1280}")
    SK = VR + 16
    for i in range(4):
        I(f"buffer_load_dwordx4 v[{SK+4*i}:{SK+4*i+3}], v8, s[20:23], 0 offen offset:{16*i}")
    I("v_lshlrev_b32 v9, 12, v1")
    I(f"v_sub_u32 v10, {S-4}, v2")
    I("v_lshl_add_u32 v9, v10, 1, v9")
    I("s_waitcnt vmcnt(0)")
    KF = 76
    VF = 83
    SF = 87
    TM = 92
    OB = 104
    for dd in range(8):
        ex = lo16 if dd % 2 == 0 else hi16
        for i in range(7):
            ex(KF + i, KR + 4*i + dd//2)
        for i in range(4):
            ex(VF + i, VR + 4*i + dd//2)
        lo16(SF+0, SK + 2*dd); hi16(SF+1, SK + 2*dd)
        lo16(SF+2, SK + 2*dd + 1); hi16(SF+3, SK + 2*dd + 1)
        ob = OB + 2*(dd % 4)
        for q in range(2):
            sa, sb = 3 - 2*q, 2 - 2*q
            t = TM
            I(f"v_mul_f32 v{t}, v{KF+sa}, v{SF+3}")
            I(f"v_mul_f32 v{t+1}, v{KF+sb}, v{SF+3}")
            I(f"v_mul_f32 v{t+2}, v{KF+sa+1}, v{SF+2}")
            I(f"v_mul_f32 v{t+3}, v{KF+sb+1}, v{SF+2}")
            I(f"v_mul_f32 v{t+4}, v{KF+sa+2}, v{SF+1}")
            I(f"v_mul_f32 v{t+5}, v{KF+sb+2}, v{SF+1}")
            I(f"v_mul_f32 v{t+6}, v{KF+sa+3}, v{SF+0}")
            I(f"v_mul_f32 v{t+7}, v{KF+sb+3}, v{SF+0}")
            for p in range(4):
                I(f"v_cvt_pk_bf16_f32 v{t+8+p}, v{t+2*p}, v{t+2*p+1}")
            for p in range(4):
                lo16(t+2*p, t+8+p); hi16(t+2*p+1, t+8+p)
            for step in (1, 2, 3):
                I(f"v_add_f32 v{t}, v{t}, v{t+2*step}")
                I(f"v_add_f32 v{t+1}, v{t+1}, v{t+2*step+1}")
                I(f"v_cvt_pk_bf16_f32 v{t+8}, v{t}, v{t+1}")
                lo16(t, t+8); hi16(t+1, t+8)
            I(f"v_mul_f32 v{t}, v{t}, v{VF+sa}")
            I(f"v_mul_f32 v{t+1}, v{t+1}, v{VF+sb}")
            I(f"v_cvt_pk_bf16_f32 v{ob+q}, v{t}, v{t+1}")
        I(f"s_mov_b32 s16, {4096*dd}")
        I(f"buffer_store_dwordx2 v[{ob}:{ob+1}], v9, s[24:27], s16 offen")
    if N_PF:
        I("s_endpgm")
        e("P_pf:")
        I(f"s_sub_u32 s3, s2, {N_LN+N_KV}")
        I("s_mul_i32 s4, s3, 1821")
        I("s_lshr_b32 s4, s4, 16")
        I("s_mul_i32 s5, s4, 36")
        I("s_sub_u32 s5, s3, s5")
        I("s_lshl_b32 s6, s4, 3")
        I("s_add_u32 s6, s6, 56")
        I("s_cmp_eq_u32 s4, 3")
        I("s_cselect_b32 s6, 32, s6")
        I("s_load_dwordx2 s[8:9], s[0:1], s6")
        I(f"s_mov_b32 s10, {SZ_W}")
        I(f"s_cselect_b32 s10, {SZ_SD}, s10")
        I("s_mov_b32 s11, 0x00020000")
        I("s_mov_b32 s7, 65536")
        I("s_cselect_b32 s7, 73728, s7")
        I("s_mul_i32 s5, s5, s7")
        I("v_lshlrev_b32 v1, 4, v0")
        I("s_waitcnt lgkmcnt(0)")
        for i in range(18):
            I(f"buffer_load_dwordx4 v[{4+4*i}:{7+4*i}], v1, s[8:11], s5 offen")
            I("s_add_u32 s5, s5, 4096")
        I("s_waitcnt vmcnt(0)")
    e("P_exit:")
    I("s_endpgm")
    kernel_desc("prep_kernel", 112, 40)

BF = 112
NSLOT = 5
SLOT = 16384
LDS2 = NSLOT * SLOT
N_G1, N_CV = 256, 256

class DSQ:
    def __init__(self): self.q = []
    def push(self, tag): self.q.append(tag)
    def wait_for(self, tag):
        idx = max(i for i, t in enumerate(self.q) if t == tag)
        n = len(self.q) - 1 - idx
        I(f"s_waitcnt lgkmcnt({min(n,15)})")
        self.q = self.q[idx+1:] if n <= 15 else self.q[len(self.q)-15:]

def gen_k2():
    kernel_header("mid_kernel")
    I(f"s_cmp_ge_u32 s2, {N_G1+N_CV}")
    I("s_cbranch_scc1 M_exit")
    I("s_load_dwordx2 s[6:7], s[0:1], 96")
    I(f"s_cmp_ge_u32 s2, {N_G1}")
    I("s_cbranch_scc1 M_conv")
    if "nog1" in FLAGS: I("s_endpgm")
    stamp()
    I("s_load_dwordx4 s[16:19], s[0:1], 56")
    I("v_lshrrev_b32 v1, 6, v0")
    I("s_nop 0")
    I("v_readfirstlane_b32 s3, v1")
    I("s_waitcnt lgkmcnt(0)")
    I("s_cmp_ge_u32 s3, 2")
    I("s_cselect_b32 s4, s18, s16")
    I("s_cselect_b32 s5, s19, s17")
    srd(8, 4, SZ_W)
    srd(12, 6, SZ_SD, WS_XN)
    srd(20, 6, SZ_H, WS_H)
    if "g12d" in FLAGS:
        I("s_and_b32 s24, s2, 3")
        I("s_lshl_b32 s24, s24, 2")
        I("s_bfe_u32 s25, s2, 0x20003")
        I("s_add_u32 s24, s24, s25")
        I("s_bfe_u32 s25, s2, 0x10002")
        I("s_lshl_b32 s25, s25, 3")
        I("s_lshr_b32 s26, s2, 5")
        I("s_add_u32 s25, s25, s26")
    else:
        I("s_and_b32 s24, s2, 15")
        I("s_lshr_b32 s25, s2, 4")
    I(f"s_mul_i32 s25, s25, {BF}")
    I(f"s_min_u32 s25, s25, {F-BF}")
    I("v_and_b32 v1, 63, v0")
    if "pf" in FLAGS:
        I("s_lshr_b32 s26, s2, 3")
        I("s_lshl_b32 s27, s26, 1")
        I("s_and_b32 s28, s3, 1")
        I("s_add_u32 s27, s27, s28")
        I("s_mul_i32 s27, s27, 34560")
        I("s_bfe_u32 s28, s2, 0x10002")
        I("s_mul_i32 s28, s28, 1792")
        I("s_add_u32 s27, s27, s28")
        I("v_lshrrev_b32 v192, 5, v1")
        I("v_mul_u32_u24 v192, 3456, v192")
        I("v_and_b32 v193, 31, v1")
        I("v_lshl_add_u32 v192, v193, 6, v192")
        I("v_add_u32 v192, s27, v192")
        for i in range(5):
            I(f"s_mov_b32 s27, {i*6912}")
            I(f"buffer_load_dword v{194+i}, v192, s[8:11], s27 offen")
        I("s_and_b32 s27, s2, 3")
        I("s_mul_i32 s27, s27, 655360")
        I("s_lshl_b32 s28, s26, 2")
        I("s_add_u32 s28, s28, s3")
        I("s_mul_i32 s28, s28, 5120")
        I("s_add_u32 s27, s27, s28")
        I("v_lshlrev_b32 v193, 6, v1")
        I("buffer_load_dword v199, v193, s[12:15], s27 offen")
        I("buffer_load_dword v200, v193, s[12:15], s27 offen offset:1024")
    I("v_lshrrev_b32 v10, 4, v1")
    I("v_bfe_u32 v11, v1, 1, 3")
    I("v_and_b32 v12, 1, v1")
    I("s_and_b32 s26, s3, 1")
    I("s_lshl_b32 s26, s26, 4")
    I("s_lshl_b32 s27, s25, 1")
    for i in range(4):
        bit = (i >> 1) & 1
        I(f"v_or_b32 v13, {bit<<2}, v10")
        I("v_xor_b32 v13, v13, v11")
        I(f"v_add_u32 v14, {4*i}, v10")
        I("v_add_u32 v14, s26, v14")
        I("v_mul_u32_u24 v14, 3456, v14")
        I("v_lshl_add_u32 v14, v13, 5, v14")
        I("v_lshl_add_u32 v14, v12, 4, v14")
        I("v_add_u32 v14, s27, v14")
        I(f"v_subrev_u32 v14, {1024*i}, v14")
        I("v_cmp_eq_u32 vcc, 7, v13")
        I("v_mov_b32 v15, 0x40000000")
        I("s_nop 0")
        I(f"v_cndmask_b32 v{2+i}, v14, v15, vcc")
    I("v_bfe_u32 v17, v0, 4, 2")
    I("s_lshl_b32 s26, s24, 3")
    I("s_lshl_b32 s27, s3, 1")
    I("s_add_u32 s26, s26, s27")
    I("s_mul_i32 s27, s26, 20480")
    I("v_lshl_add_u32 v6, v1, 4, s27")
    I("v_add_u32 v7, 20480, v6")
    I("s_mul_i32 s27, s26, 55296")
    I("v_lshl_add_u32 v8, v1, 4, s27")
    I("v_add_u32 v9, 55296, v8")
    I("v_bfe_u32 v18, v0, 2, 2")
    I("v_lshl_add_u32 v19, v17, 3, v18")
    I("v_lshlrev_b32 v19, 8, v19")
    I("v_and_b32 v20, 1, v17")
    I("v_lshl_or_b32 v20, v20, 2, v18")
    I("v_lshl_add_u32 v19, v20, 5, v19")
    I("v_and_b32 v18, 3, v0")
    I("v_lshl_add_u32 v19, v18, 3, v19")
    VA = 10
    I("v_mov_b32 v24, v19")
    for jf in range(7):
        I(f"v_xor_b32 v{VA+jf}, {jf<<5}, v24")
        I(f"v_add_u32 v{VA+7+jf}, 0x10000, v{VA+jf}")
    I("s_lshl_b32 s29, s3, 12")
    BB = 24
    AF = 64
    ACC = 80
    def acc(m, jf, js): return ACC + ((m*7 + jf)*2 + js)*4
    def bfr(st, js): return BB + (st % NSLOT)*8 + js*4
    NST = 20
    def issue(slot):
        I(f"s_add_u32 s30, s29, {slot*SLOT}")
        I("s_mov_b32 m0, s30")
        for i in range(4):
            I(f"buffer_load_dwordx4 v{2+i}, s[8:11], s28 offen offset:{1024*i} lds")
        for js in range(2):
            r = BB + slot*8 + js*4
            I(f"buffer_load_dwordx4 v[{r}:{r+3}], v{6+js}, s[12:15], s31 offen")
        I("s_add_u32 s36, s36, 1")
        I("s_cmp_ge_u32 s36, 20")
        I("s_cselect_b32 s36, 0, s36")
        I("s_add_u32 s37, s37, 1")
        I(f"s_mul_i32 s28, s36, {32*3456}")
        I("s_lshl_b32 s31, s36, 10")
        I("s_cmp_ge_u32 s37, 20")
        I("s_cselect_b32 s28, 0x40000000, s28")
        I("s_cselect_b32 s31, 0x40000000, s31")
    if "rot" in FLAGS:
        I("s_and_b32 s36, s24, 3")
        I("s_mul_i32 s36, s36, 5")
        I("s_lshr_b32 s37, s2, 5")
        I("s_mul_i32 s37, s37, 3")
        I("s_add_u32 s36, s36, s37")
        I("s_cmp_ge_u32 s36, 20")
        I("s_cselect_b32 s37, 20, 0")
        I("s_sub_u32 s36, s36, s37")
    else:
        I("s_mov_b32 s36, 0")
    I("s_mov_b32 s37, 0")
    I(f"s_mul_i32 s28, s36, {32*3456}")
    I("s_lshl_b32 s31, s36, 10")
    for st in range(NSLOT - 1):
        issue(st)
    for j in range(112):
        I(f"v_mov_b32 v{ACC+j}, 0")
    I("s_mov_b32 s33, 0")
    stamp()
    def body(last):
      for slot in range(NSLOT):
        if not last or slot <= 1:
            I(f"s_waitcnt vmcnt({6*(NSLOT-2)})")
        else:
            I(f"s_waitcnt vmcnt({6*(NSLOT-1-slot)})")
        I("s_barrier")
        if not last or slot == 0:
            issue((slot + NSLOT - 1) % NSLOT)
        seq = [(m, jf) for m in range(2) for jf in range(7)]
        def rd(idx):
            m, jf = seq[idx]
            a = AF + (idx % 4)*4
            if slot < 4:
                va = VA + jf; off = slot*SLOT + m*8192
            else:
                va = VA + 7 + jf; off = m*8192
            I(f"ds_read_b64_tr_b16 v[{a}:{a+1}], v{va} offset:{off}")
            I(f"ds_read_b64_tr_b16 v[{a+2}:{a+3}], v{va} offset:{off+1024}")
        for i in range(3):
            rd(i)
        for idx in range(14):
            if idx + 3 < 14:
                rd(idx + 3)
                I("s_waitcnt lgkmcnt(6)")
            else:
                I(f"s_waitcnt lgkmcnt({2*(13-idx)})")
            m, jf = seq[idx]
            a = AF + (idx % 4)*4
            for js in range(2):
                c = acc(m, jf, js); b = BB + slot*8 + js*4
                I(f"v_mfma_f32_16x16x32_bf16 v[{c}:{c+3}], v[{a}:{a+3}], v[{b}:{b+3}], v[{c}:{c+3}]")
    e("G1_loop:")
    body(False)
    I("s_add_u32 s33, s33, 1")
    I(f"s_cmp_lt_u32 s33, {NST//NSLOT - 1}")
    I("s_cbranch_scc1 G1_loop")
    body(True)
    stamp()
    I("s_waitcnt vmcnt(0)")
    I("s_nop 7")
    I("s_nop 3")
    T = 24
    for js in range(2):
        for jf in range(7):
            g = acc(0, jf, js); u = acc(1, jf, js)
            t = T + ((js*7 + jf) % 4) * 8
            I(f"v_cvt_pk_bf16_f32 v{t}, v{g}, v{g+1}")
            I(f"v_cvt_pk_bf16_f32 v{t+1}, v{g+2}, v{g+3}")
            I(f"v_cvt_pk_bf16_f32 v{t+2}, v{u}, v{u+1}")
            I(f"v_cvt_pk_bf16_f32 v{t+3}, v{u+2}, v{u+3}")
            lo16(g, t); hi16(g+1, t); lo16(g+2, t+1); hi16(g+3, t+1)
            lo16(u, t+2); hi16(u+1, t+2); lo16(u+2, t+3); hi16(u+3, t+3)
            for r in range(4):
                I(f"v_mul_f32 v{g+r}, v{g+r}, v{u+r}")
            I(f"v_cvt_pk_bf16_f32 v{t+4}, v{g}, v{g+1}")
            I(f"v_cvt_pk_bf16_f32 v{t+5}, v{g+2}, v{g+3}")
            I(f"s_add_u32 s34, s25, {16*jf}")
            I("s_lshr_b32 s35, s34, 5")
            I("s_lshl_b32 s35, s35, 10")
            I("s_and_b32 s34, s34, 16")
            I("s_lshr_b32 s34, s34, 1")
            I("s_add_u32 s35, s35, s34")
            I(f"buffer_store_dwordx2 v[{t+4}:{t+5}], v{8+js}, s[20:23], s35 offen")
    I("s_waitcnt vmcnt(0)")
    stamp()
    stamp_dump(5)
    I("s_endpgm")
    e("M_conv:")
    if "noconv" in FLAGS: I("s_endpgm")
    XREG = 7680; CST = 800; HBUF = 8*CST; WREG = 20480
    stamp()
    I("s_load_dwordx4 s[16:19], s[0:1], 32")
    I("v_lshrrev_b32 v1, 6, v0")
    I("s_nop 0")
    I("v_readfirstlane_b32 s3, v1")
    I(f"s_sub_u32 s25, s2, {N_G1}")
    I("s_cmp_ge_u32 s25, 128")
    I("s_cbranch_scc1 M_aux_hi")
    I("s_mov_b32 s24, s25")
    I("s_cmp_eq_u32 s3, 3")
    I("s_cbranch_scc1 M_wdt")
    I("s_mul_i32 s24, s25, 3")
    I("s_add_u32 s24, s24, s3")
    I("s_branch M_conv2")
    e("M_aux_hi:")
    I("s_sub_u32 s25, s25, 128")
    I("s_lshl_b32 s25, s25, 1")
    I("s_add_u32 s24, s25, s3")
    I("s_add_u32 s24, s24, 126")
    I("s_cmp_ge_u32 s3, 2")
    I("s_cbranch_scc1 M_wdt")
    I("s_add_u32 s24, s25, s3")
    I("s_add_u32 s24, s24, 384")
    e("M_conv2:")
    I("s_waitcnt lgkmcnt(0)")
    srd(8, 16, SZ_SD)
    srd(12, 6, SZ_SD, WS_KVR)
    srd(20, 6, SZ_SD, WS_YT)
    I("s_lshr_b32 s25, s24, 1")
    I("s_lshl_b32 s25, s25, 2")
    I("s_load_dword s26, s[18:19], s25")
    I("v_and_b32 v1, 63, v0")
    I("s_lshl_b32 s27, s24, 12")
    I("v_lshl_add_u32 v2, v1, 4, s27")
    XL = 16
    for j in range(4):
        I(f"buffer_load_dwordx4 v[{XL+4*j}:{XL+4*j+3}], v2, s[12:15], 0 offen offset:{1024*j}")
    HW0, HW1 = 32, 40
    I("v_subrev_u32 v13, 64, v2")
    I("v_mov_b32 v5, 0x40000000")
    I("v_cmp_gt_u32 vcc, 4, v1")
    I("s_nop 1")
    I("v_cndmask_b32 v4, v13, v5, vcc")
    I("v_add_u32 v6, 16, v13")
    I("v_cmp_gt_u32 vcc, 3, v1")
    I("s_nop 1")
    I("v_cndmask_b32 v6, v6, v5, vcc")
    I(f"buffer_load_dwordx4 v[{HW0}:{HW0+3}], v4, s[8:11], 0 offen")
    I(f"buffer_load_dwordx4 v[{HW0+4}:{HW0+7}], v6, s[8:11], 0 offen")
    I(f"buffer_load_dwordx4 v[{HW1}:{HW1+3}], v2, s[8:11], 0 offen offset:448")
    I(f"buffer_load_dwordx4 v[{HW1+4}:{HW1+7}], v2, s[8:11], 0 offen offset:464")
    I("s_mov_b32 s29, 960")
    I(f"s_mul_i32 s28, s3, {WREG}")
    Z = 96
    for j in range(4):
        I(f"v_mov_b32 v{Z+j}, 0")
    I("v_lshl_add_u32 v3, v1, 4, s28")
    I(f"ds_write_b128 v3, v[{Z}:{Z+3}] offset:5120")
    I(f"ds_write_b128 v3, v[{Z}:{Z+3}] offset:6144")
    I(f"ds_write_b128 v3, v[{Z}:{Z+3}] offset:6656")
    I("v_lshrrev_b32 v4, 2, v1")
    I("v_mul_u32_u24 v4, 80, v4")
    I("v_and_b32 v5, 3, v1")
    I("v_lshl_add_u32 v4, v5, 4, v4")
    I("v_add_u32 v4, s28, v4")
    I("v_and_b32 v5, 31, v1")
    I("v_lshrrev_b32 v6, 5, v1")
    I("v_and_b32 v7, 7, v5")
    I(f"v_mul_u32_u24 v7, {CST}, v7")
    I("v_lshrrev_b32 v8, 3, v5")
    I("v_add_u32 v8, v8, v6")
    I("v_lshl_add_u32 v7, v8, 4, v7")
    I(f"v_add_u32 v7, {XREG}, v7")
    I("v_add_u32 v7, s28, v7")
    I(f"v_add_u32 v14, {HBUF}, v7")
    I("v_sub_u32 v8, 63, v5")
    I("v_mul_u32_u24 v8, 80, v8")
    I("v_lshl_add_u32 v8, v6, 4, v8")
    I("v_add_u32 v8, s28, v8")
    I("v_mov_b32 v15, v8")
    I("v_subrev_u32 v9, 2560, v8")
    I(f"v_add_u32 v10, {XREG}, v3")
    I(f"v_add_u32 v11, {HBUF}, v10")
    AC0, AC1 = 100, 116
    for j in range(32):
        I(f"v_mov_b32 v{AC0+j}, 0")
    FR = 132
    UE, UO, WO = 180, 189, 197
    I("s_mov_b32 s30, -1")
    I("s_mov_b32 s31, 0xf")
    q = DSQ()
    def stage_seg(w, addr):
        for t in range(7):
            I(f"v_alignbit_b32 v{UE+t}, v{w+t+1}, v{w+t}, 16")
            I(f"v_alignbit_b32 v{UO+t}, v{w+t+1}, v{w+t}, 16")
        for t in range(1, 7):
            I(f"v_mov_b32 v{WO+t}, v{w+t}")
        I("s_mov_b64 exec, s[30:31]")
        for c in range(8):
            if c % 2 == 0:
                t0 = c // 2
                r = UE + t0 if t0 % 2 == 0 else UO + t0
            else:
                t0 = (1 + c)//2
                r = w + t0 if t0 % 2 == 0 else WO + t0
            assert r % 2 == 0, (c, r)
            I(f"ds_write_b128 v{addr}, v[{r}:{r+3}] offset:{c*CST}")
            q.push(("w", 0))
        I("s_mov_b64 exec, -1")
    I("s_waitcnt vmcnt(2)")
    stamp()
    for j in range(4):
        I(f"ds_write_b128 v4, v[{XL+4*j}:{XL+4*j+3}] offset:{16*80*j}")
    stage_seg(HW0, 10)
    q = DSQ()
    def crd(c, both):
        f = FR + (c % 4)*12
        boff = (c >> 1)*80 + (c & 1)*32
        if c < 16:
            I(f"ds_read_b128 v[{f}:{f+3}], v7 offset:{32*c}")
        else:
            I(f"ds_read_b128 v[{f}:{f+3}], v14 offset:{32*(c-16)}")
        q.push(("r", c))
        I(f"ds_read_b128 v[{f+4}:{f+7}], v9 offset:{boff}")
        q.push(("r", c))
        if both:
            I(f"ds_read_b128 v[{f+8}:{f+11}], v8 offset:{boff}")
            q.push(("r", c))
    for c in range(3):
        crd(c, True)
    I("s_mov_b32 s33, 0")
    stamp()
    for phase in range(2):
        both = (phase == 0)
        e(f"CV_loop{phase}:")
        q.q = [("r", c) for c in range(3) for _ in range(3 if both else 2)]
        for c in range(16):
            if c == 1:
                I("s_waitcnt vmcnt(0)")
                stage_seg(HW1, 11)
                I(f"buffer_load_dwordx4 v[{HW1}:{HW1+3}], v2, s[8:11], s29 offen")
                I(f"buffer_load_dwordx4 v[{HW1+4}:{HW1+7}], v2, s[8:11], s29 offen offset:16")
                I("s_add_u32 s29, s29, 512")
            crd(c + 3, both)
            q.wait_for(("r", c))
            f = FR + (c % 4)*12
            I(f"v_mfma_f32_32x32x16_bf16 v[{AC1}:{AC1+15}], v[{f}:{f+3}], v[{f+4}:{f+7}], v[{AC1}:{AC1+15}]")
            if both:
                I(f"v_mfma_f32_32x32x16_bf16 v[{AC0}:{AC0+15}], v[{f}:{f+3}], v[{f+8}:{f+11}], v[{AC0}:{AC0+15}]")
        I("v_swap_b32 v7, v14")
        I("v_swap_b32 v10, v11")
        I("v_add_u32 v8, 640, v8")
        I("v_add_u32 v9, 640, v9")
        I("s_add_u32 s33, s33, 1")
        I(f"s_cmp_lt_u32 s33, {4*(phase+1)}")
        I(f"s_cbranch_scc1 CV_loop{phase}")
    I("v_mov_b32 v8, v15")
    I("s_waitcnt vmcnt(0) lgkmcnt(0)")
    stamp()
    I("v_mul_u32_u24 v10, 24, v6")
    I("v_sub_u32 v10, v8, v10")
    I("v_add_u32 v10, 8, v10")
    I("v_subrev_u32 v11, 2560, v10")
    KV = 16
    for cb in range(2):
        for qq in range(4):
            I(f"ds_read_b64 v[{KV+cb*8+2*qq}:{KV+cb*8+2*qq+1}], v{10+cb} offset:{48-16*qq}")
    I("s_and_b32 s25, s24, 1")
    I("s_lshl_b32 s25, s25, 4")
    I("s_lshr_b32 s26, s26, s25")
    I("s_lshl_b32 s26, s26, 16")
    I("v_lshlrev_b32 v12, 6, v5")
    I("v_lshl_add_u32 v12, v6, 3, v12")
    I("v_add_u32 v12, s27, v12")
    I("s_nop 7")
    I("s_waitcnt lgkmcnt(0)")
    for cb in range(2):
        ac = AC0 if cb == 0 else AC1
        for qq in range(4):
            k0 = KV + cb*8 + 2*qq
            t = 40 + (qq % 2)*12
            y = ac + 4*qq
            hi16(t+0, k0+1); lo16(t+1, k0+1); hi16(t+2, k0); lo16(t+3, k0)
            for r in range(4):
                I(f"v_mul_f32 v{t+r}, s26, v{t+r}")
            I(f"v_cvt_pk_bf16_f32 v{t+4}, v{t}, v{t+1}")
            I(f"v_cvt_pk_bf16_f32 v{t+5}, v{t+2}, v{t+3}")
            I(f"v_cvt_pk_bf16_f32 v{t+6}, v{y}, v{y+1}")
            I(f"v_cvt_pk_bf16_f32 v{t+7}, v{y+2}, v{y+3}")
            lo16(t, t+4); hi16(t+1, t+4); lo16(t+2, t+5); hi16(t+3, t+5)
            lo16(y, t+6); hi16(y+1, t+6); lo16(y+2, t+7); hi16(y+3, t+7)
            for r in range(4):
                I(f"v_add_f32 v{t+r}, v{t+r}, v{y+r}")
            I(f"v_cvt_pk_bf16_f32 v{t+8}, v{t}, v{t+1}")
            I(f"v_cvt_pk_bf16_f32 v{t+9}, v{t+2}, v{t+3}")
            I(f"buffer_store_dwordx2 v[{t+8}:{t+9}], v12, s[20:23], 0 offen offset:{cb*2048+16*qq}")
    I("s_waitcnt vmcnt(0)")
    stamp()
    stamp_dump(N_G1 + 7)
    I("s_endpgm")
    e("M_wdt:")
    I("s_cmp_ge_u32 s24, 270")
    I("s_cbranch_scc1 M_exit")
    I("s_waitcnt lgkmcnt(0)")
    I("s_load_dwordx2 s[4:5], s[0:1], 72")
    I("s_mul_i32 s17, s24, 0xCCCD")
    I("s_lshr_b32 s17, s17, 19")
    I("s_mul_i32 s18, s17, 10")
    I("s_sub_u32 s18, s24, s18")
    I("v_and_b32 v1, 7, v0")
    I("v_bfe_u32 v2, v0, 3, 2")
    I("v_bfe_u32 v6, v0, 5, 1")
    I("s_lshl_b32 s18, s18, 6")
    I("v_lshl_add_u32 v1, v1, 3, s18")
    I("s_lshl_b32 s19, s17, 1")
    I("v_add_u32 v6, s19, v6")
    I("v_lshlrev_b32 v7, 5, v6")
    I("v_lshl_add_u32 v7, v2, 2, v7")
    I("v_mul_u32_u24 v3, 0x500, v7")
    I("v_lshl_add_u32 v3, v1, 1, v3")
    I("v_add_u32 v4, 0x5000, v3")
    I("s_waitcnt lgkmcnt(0)")
    srd(8, 4, SZ_W)
    srd(12, 6, SZ_W, WS_WDT)
    for i in range(8):
        b = 3 if i < 4 else 4
        I(f"buffer_load_dwordx4 v[{8+4*i}:{11+4*i}], v{b}, s[8:11], 0 offen offset:{(i%4)*1280}")
    I("s_mov_b32 s20, 0x05040100")
    I("s_mov_b32 s21, 0x07060302")
    I("v_lshrrev_b32 v5, 4, v1")
    I("v_mul_u32_u24 v5, 54, v5")
    I("v_add_u32 v5, v5, v6")
    I("v_lshlrev_b32 v5, 10, v5")
    I("v_lshl_add_u32 v5, v2, 8, v5")
    I("v_and_b32 v7, 15, v1")
    I("v_lshl_add_u32 v5, v7, 4, v5")
    I("s_waitcnt vmcnt(0)")
    for dd in range(8):
        ob = 40 + 4*dd
        sel = 20 + (dd & 1)
        for q in range(4):
            I(f"v_perm_b32 v{ob+q}, v{8+4*(2*q+1)+dd//2}, v{8+4*(2*q)+dd//2}, s{sel}")
    for dd in range(8):
        ob = 40 + 4*dd
        I(f"buffer_store_dwordx4 v[{ob}:{ob+3}], v5, s[12:15], 0 offen offset:{16*dd}")
    e("M_exit:")
    I("s_endpgm")
    kernel_desc("mid_kernel", 208, 80)

def gen_k3():
    kernel_header("fin_kernel")
    I(f"s_cmp_ge_u32 s2, {64 if 'fin64' in FLAGS else 256}")
    I("s_cbranch_scc1 F_exit")
    I("s_load_dwordx2 s[6:7], s[0:1], 96")
    I("s_load_dwordx2 s[4:5], s[0:1], 0")
    I("s_load_dwordx2 s[30:31], s[0:1], 80")
    stamp()
    I("v_lshrrev_b32 v1, 6, v0")
    I("s_nop 0")
    I("v_readfirstlane_b32 s3, v1")
    I("s_waitcnt lgkmcnt(0)")
    srd(8, 6, SZ_W, WS_WDT)
    srd(12, 6, SZ_H, WS_H)
    srd(16, 6, SZ_SD, WS_YT)
    srd(20, 6, SZ_SD, WS_XN)
    srd(24, 4, SZ_SD)
    srd(32, 30, SZ_SD)
    if "fin2d" in FLAGS:
        I("s_and_b32 s36, s2, 1")
        I("s_lshl_b32 s36, s36, 2")
        I("s_bfe_u32 s37, s2, 0x20003")
        I("s_add_u32 s36, s36, s37")
        I("s_mul_i32 s36, s36, 80")
        I("s_bfe_u32 s37, s2, 0x20001")
        I("s_lshl_b32 s37, s37, 3")
        I("s_lshr_b32 s38, s2, 5")
        I("s_add_u32 s37, s37, s38")
        I("s_lshl_b32 s37, s37, 6")
    elif "finswap" in FLAGS:
        I("s_lshr_b32 s36, s2, 5")
        I("s_mul_i32 s36, s36, 80")
        I("s_and_b32 s37, s2, 31")
        I("s_lshl_b32 s37, s37, 6")
    else:
        I("s_and_b32 s36, s2, 7")
        I("s_mul_i32 s36, s36, 80")
        I("s_lshr_b32 s37, s2, 3")
        I("s_lshl_b32 s37, s37, 6")
    I("s_mul_i32 s38, s3, 14")
    I("s_cmp_eq_u32 s3, 3")
    I("s_cselect_b32 s39, 1, 0")
    I("s_sub_u32 s38, s38, s39")
    I("s_cmp_ge_u32 s3, 2")
    I("s_cselect_b32 s39, 13, 14")
    I("s_add_u32 s47, s38, s39")
    I("s_lshl_b32 s45, s38, 10")
    I("s_lshl_b32 s47, s47, 10")
    if "rot" in FLAGS:
        I("s_bfe_u32 s46, s2, 0x20003")
        I("s_lshl_b32 s46, s46, 2")
        I("s_lshr_b32 s44, s2, 5")
        I("s_lshl_b32 s44, s44, 1")
        I("s_add_u32 s46, s46, s44")
        I("s_cmp_ge_u32 s46, 13")
        I("s_cselect_b32 s44, 13, 0")
        I("s_sub_u32 s46, s46, s44")
        I("s_cmp_ge_u32 s46, 13")
        I("s_cselect_b32 s44, 13, 0")
        I("s_sub_u32 s46, s46, s44")
        I("s_lshl_b32 s46, s46, 10")
        I("s_add_u32 s46, s46, s45")
    else:
        I("s_mov_b32 s46, s45")
    I("s_mov_b32 s44, 0")
    I("v_and_b32 v1, 15, v0")
    I("v_bfe_u32 v2, v0, 4, 2")
    I("v_and_b32 v12, 63, v0")
    if "pf" in FLAGS:
        I("s_lshr_b32 s52, s2, 3")
        I("s_lshl_b32 s52, s52, 2")
        I("s_add_u32 s52, s52, s3")
        I("s_and_b32 s53, s2, 1")
        I("s_mul_i32 s53, s53, 1105920")
        I("s_mul_i32 s54, s52, 8640")
        I("s_add_u32 s53, s53, s54")
        I("v_lshlrev_b32 v240, 6, v12")
        I("buffer_load_dword v241, v240, s[8:11], s53 offen")
        I("s_add_u32 s53, s53, 4096")
        I("buffer_load_dword v242, v240, s[8:11], s53 offen")
        I("s_add_u32 s53, s53, 544")
        I("buffer_load_dword v243, v240, s[8:11], s53 offen")
        I("s_bfe_u32 s53, s2, 0x20001")
        I("s_mul_i32 s53, s53, 1769472")
        I("s_mul_i32 s54, s52, 13824")
        I("s_add_u32 s53, s53, s54")
        for i, inc in enumerate((4096, 4096, 1536, 0)):
            I(f"buffer_load_dword v{244+i}, v240, s[12:15], s53 offen")
            if inc: I(f"s_add_u32 s53, s53, {inc}")
    I("s_lshr_b32 s52, s36, 4")
    I("s_mul_i32 s52, s52, 55296")
    I("v_lshl_add_u32 v3, v12, 4, s52")
    for jd in range(1, 5):
        I(f"v_add_u32 v{3+jd}, {jd*55296}, v3")
    I("s_lshr_b32 s52, s37, 4")
    I("s_mul_i32 s52, s52, 55296")
    I("v_lshl_add_u32 v8, v12, 4, s52")
    for js in range(1, 4):
        I(f"v_add_u32 v{8+js}, {js*55296}, v8")
    def acc(jd, js): return (js*5 + jd)*4
    FRB = 16
    NB = 5
    def ld(buf):
        f = FRB + buf*36
        I("s_cmp_lt_u32 s44, s39")
        I("s_cselect_b32 s48, s46, 0x40000000")
        for jd in range(5):
            r = f + 4*jd
            I(f"buffer_load_dwordx4 v[{r}:{r+3}], v{3+jd}, s[8:11], s48 offen{CP}")
        for js in range(4):
            r = f + 20 + 4*js
            I(f"buffer_load_dwordx4 v[{r}:{r+3}], v{8+js}, s[12:15], s48 offen{CP}")
        I("s_add_u32 s46, s46, 1024")
        I("s_cmp_ge_u32 s46, s47")
        I("s_cselect_b32 s46, s45, s46")
        I("s_add_u32 s44, s44, 1")
    def mm(buf):
        f = FRB + buf*36
        for js in range(4):
            for jd in range(5):
                c = acc(jd, js)
                a = f + 4*jd; b = f + 20 + 4*js
                I(f"v_mfma_f32_16x16x32_bf16 a[{c}:{c+3}], v[{a}:{a+3}], v[{b}:{b+3}], a[{c}:{c+3}]")
    I("s_lshr_b32 s41, s3, 1")
    I("s_lshl_b32 s41, s41, 5")
    I("s_add_u32 s41, s41, s37")
    I("s_lshl_b32 s41, s41, 1")
    I("v_add_u32 v14, s36, v1")
    I("v_lshlrev_b32 v14, 12, v14")
    I("v_lshl_add_u32 v14, v2, 4, v14")
    I("v_add_u32 v14, s41, v14")
    YF = 196
    for jd in range(5):
        I(f"v_add_u32 v15, {jd*16*4096}, v14")
        I(f"buffer_load_dwordx4 v[{YF+4*jd}:{YF+4*jd+3}], v15, s[16:19], 0 offen")
    I("s_lshl_b32 s42, s3, 4")
    I("s_add_u32 s42, s42, s37")
    I("v_add_u32 v15, s42, v1")
    I("v_mul_u32_u24 v15, 0x500, v15")
    I("v_lshl_add_u32 v15, v2, 3, v15")
    I("s_lshl_b32 s43, s36, 1")
    I("v_add_u32 v15, s43, v15")
    XX = 216
    I("s_lshr_b32 s50, s42, 4")
    I("s_mul_i32 s50, s50, 20480")
    I("v_lshrrev_b32 v14, 1, v2")
    I("v_lshlrev_b32 v14, 8, v14")
    I("v_lshl_add_u32 v14, v1, 4, v14")
    I("v_and_b32 v13, 1, v2")
    I("v_lshl_add_u32 v14, v13, 3, v14")
    I("v_add_u32 v14, s50, v14")
    for jd in range(5):
        I(f"buffer_load_dwordx2 v[{XX+2*jd}:{XX+2*jd+1}], v15, s[24:27], 0 offen offset:{32*jd}")
        I(f"s_add_u32 s50, s36, {16*jd}")
        I("s_lshr_b32 s51, s50, 5")
        I("s_lshl_b32 s51, s51, 10")
        I("s_and_b32 s50, s50, 16")
        I("s_lshl_b32 s50, s50, 5")
        I("s_add_u32 s51, s51, s50")
        I(f"buffer_load_dwordx2 v[{XX+10+2*jd}:{XX+11+2*jd}], v14, s[20:23], s51 offen")
    def ld2(buf):
        f = FRB + buf*36
        for jd in range(5):
            r = f + 4*jd
            I(f"buffer_load_dwordx4 v[{r}:{r+3}], v{3+jd}, s[8:11], s46 offen{CP}")
        for js in range(4):
            r = f + 20 + 4*js
            I(f"buffer_load_dwordx4 v[{r}:{r+3}], v{8+js}, s[12:15], s46 offen{CP}")
        I("s_add_u32 s46, s46, 1024")
    for b in range(NB-1):
        ld2(b)
    for j in range(80):
        I(f"v_accvgpr_write_b32 a{j}, 0")
    stamp()
    for k in range(14):
        nb = k + NB - 1
        if nb <= 12:
            ld2(nb % NB)
        elif nb == 13:
            I("s_cmp_ge_u32 s3, 2")
            I("s_cbranch_scc1 F_skip13")
            ld2(nb % NB)
            e("F_skip13:")
        if k == 13:
            I("s_cmp_ge_u32 s3, 2")
            I("s_cbranch_scc1 F_done")
        rem = max(0, min(12, nb) - k)
        if k < 13: I(f"s_waitcnt vmcnt({9*rem})")
        mm(k % NB)
    e("F_done:")
    stamp()
    I("s_mul_i32 s40, s3, 20480")
    I("v_lshlrev_b32 v13, 4, v12")
    I("v_add_u32 v13, s40, v13")
    I("s_nop 7")
    for js in range(4):
        for jd in range(5):
            c = acc(jd, js)
            I(f"ds_write_b128 v13, a[{c}:{c+3}] offset:{(js*5+jd)*1024}")
    I("s_waitcnt lgkmcnt(0)")
    I("s_barrier")
    I("s_mul_i32 s40, s3, 5120")
    I("v_lshlrev_b32 v12, 4, v12")
    I("v_add_u32 v13, s40, v12")
    I("v_add_u32 v12, 40960, v13")
    R = 96
    for src in range(4):
        for jd in range(5):
            r = R + (src*5 + jd)*4
            I(f"ds_read_b128 v[{r}:{r+3}], v{13 if src < 2 else 12} offset:{(src%2)*20480 + jd*1024}")
    IDB = 60
    I("s_and_b32 s44, s3, 1")
    I("s_lshl_b32 s44, s44, 4")
    I("v_add_u32 v64, s44, v1")
    I("v_lshrrev_b32 v65, 3, v64")
    I("v_cmp_eq_u32 vcc, v65, v2")
    I("v_and_b32 v65, 7, v64")
    I("v_and_b32 v66, 1, v65")
    I("v_lshlrev_b32 v66, 4, v66")
    I("v_mov_b32 v67, 0x3f80")
    I("v_lshlrev_b32 v67, v66, v67")
    I("v_lshrrev_b32 v65, 1, v65")
    I("v_cndmask_b32 v67, 0, v67, vcc")
    for j in range(4):
        I(f"v_cmp_eq_u32 vcc, {j}, v65")
        I("s_nop 1")
        I(f"v_cndmask_b32 v{IDB+j}, 0, v67, vcc")
    TY = 64
    I("s_nop 1")
    for jd in range(5):
        I(f"v_mfma_f32_16x16x32_bf16 v[{TY+4*jd}:{TY+4*jd+3}], v[{YF+4*jd}:{YF+4*jd+3}], v[{IDB}:{IDB+3}], 0")
    I("s_waitcnt lgkmcnt(0)")
    for jd in range(5):
        r0 = R + jd*4
        for src in range(1, 4):
            r = R + (src*5 + jd)*4
            for j in range(4):
                I(f"v_add_f32 v{r0+j}, v{r0+j}, v{r+j}")
    I("s_waitcnt vmcnt(0)")
    for jd in range(5):
        b = R + jd*4
        ty = TY + 4*jd
        t = 180 + (jd % 2)*16
        x0 = XX + 2*jd; n0 = XX + 10 + 2*jd
        lo16(t, n0); hi16(t+1, n0); lo16(t+2, n0+1); hi16(t+3, n0+1)
        for r in range(4):
            I(f"v_mul_f32 v{t+r}, v{t+r}, v{ty+r}")
        I(f"v_cvt_pk_bf16_f32 v{t+4}, v{t}, v{t+1}")
        I(f"v_cvt_pk_bf16_f32 v{t+5}, v{t+2}, v{t+3}")
        lo16(t, t+4); hi16(t+1, t+4); lo16(t+2, t+5); hi16(t+3, t+5)
        lo16(t+6, x0); hi16(t+7, x0); lo16(t+8, x0+1); hi16(t+9, x0+1)
        for r in range(4):
            I(f"v_add_f32 v{t+r}, v{t+r}, v{t+6+r}")
        I(f"v_cvt_pk_bf16_f32 v{t+4}, v{t}, v{t+1}")
        I(f"v_cvt_pk_bf16_f32 v{t+5}, v{t+2}, v{t+3}")
        lo16(t, t+4); hi16(t+1, t+4); lo16(t+2, t+5); hi16(t+3, t+5)
        I(f"v_cvt_pk_bf16_f32 v{t+4}, v{b}, v{b+1}")
        I(f"v_cvt_pk_bf16_f32 v{t+5}, v{b+2}, v{b+3}")
        lo16(t+6, t+4); hi16(t+7, t+4); lo16(t+8, t+5); hi16(t+9, t+5)
        for r in range(4):
            I(f"v_add_f32 v{t+r}, v{t+r}, v{t+6+r}")
        I(f"v_cvt_pk_bf16_f32 v{t+10}, v{t}, v{t+1}")
        I(f"v_cvt_pk_bf16_f32 v{t+11}, v{t+2}, v{t+3}")
        I(f"buffer_store_dwordx2 v[{t+10}:{t+11}], v15, s[32:35], 0 offen offset:{32*jd}")
    I("s_waitcnt vmcnt(0)")
    stamp()
    stamp_dump(9)
    e("F_exit:")
    I("s_endpgm")
    kernel_desc("fin_kernel", 256+80, 80, accum=256)

def main():
    hdr = open("parallel_sum__ssm_conv_h3__glu_gated_bilinear__prompt.s.ref").read().splitlines()
    for line in hdr:
        if line.startswith("; @launch"):
            break
        if line.startswith(";"):
            e(line)
    e(f"; @launch kernel=prep_kernel grid=({N_LN+N_KV+N_PF},1,1) block=(256,1,1) lds=0")
    e(f"; @launch kernel=mid_kernel grid=({N_G1+N_CV},1,1) block=(256,1,1) lds={LDS2}")
    e(f"; @launch kernel=fin_kernel grid=(256,1,1) block=(256,1,1) lds=81920")
    e('.amdgcn_target "amdgcn-amd-amdhsa--gfx950"')
    gen_prep()
    gen_k2()
    gen_k3()
    dst = sys.argv[1] if len(sys.argv) > 1 else "parallel_sum__ssm_conv_h3__glu_gated_bilinear__prompt.s"
    open(dst, "w").write("\n".join(out) + "\n")

main()
```

```python
import sys

import os
FLAGS = os.environ.get("GENFLAGS", "").split(",")
CP = " nt" if "cpnt" in FLAGS else (" sc1" if "cpsc1" in FLAGS else (" sc0 sc1" if "cpsc01" in FLAGS else ""))
S, D, F = 2048, 640, 1728
WS_XN  = 0x0
WS_KVR = 0x280000
WS_WDT = 0x500000
WS_H   = 0x800000
WS_YT  = 0x1000000
SZ_SD = S * D * 2
SZ_W  = D * F * 2
SZ_H  = S * F * 2

out = []
def e(s=""):
    out.append(s)
SP = " nt" if "stnt" in FLAGS else (" sc0 sc1" if "stsc" in FLAGS else (" sc1" if "stsc1" in FLAGS else (" sc0 sc1 nt" if "stall" in FLAGS else "")))
def I(s):
    if s.startswith("buffer_store") and "s[56:59]" not in s: s += SP
    out.append("    " + s)

def srd(base, ptr, size, off=0):
    if off:
        I(f"s_add_u32 s{base}, s{ptr}, {off:#x}")
        I(f"s_addc_u32 s{base+1}, s{ptr+1}, 0")
    else:
        I(f"s_mov_b32 s{base}, s{ptr}")
        I(f"s_mov_b32 s{base+1}, s{ptr+1}")
    I(f"s_mov_b32 s{base+2}, {size:#x}")
    I(f"s_mov_b32 s{base+3}, 0x00020000")

def lo16(dst, src): I(f"v_lshlrev_b32 v{dst}, 16, v{src}")
def hi16(dst, src): I(f"v_and_b32 v{dst}, 0xffff0000, v{src}")

STAMP = "stamp" in FLAGS
nst = [0]
def stamp():
    if STAMP:
        i = nst[0]; nst[0] += 1
        I(f"s_memtime s[{60+2*i}:{61+2*i}]")
def stamp_dump(wg):
    if not STAMP: return
    n = nst[0]; nst[0] = 0
    I("s_waitcnt lgkmcnt(0) vmcnt(0)")
    I(f"s_cmp_lg_u32 s2, {wg}")
    I(f"s_cbranch_scc1 SD_skip{wg}")
    I("s_cmp_lg_u32 s3, 0")
    I(f"s_cbranch_scc1 SD_skip{wg}")
    I("s_load_dwordx2 s[56:57], s[0:1], 88")
    I("s_waitcnt lgkmcnt(0)")
    I("s_mov_b32 s58, 256")
    I("s_mov_b32 s59, 0x00020000")
    I("v_mov_b32 v1, 0")
    for i in range(n):
        I(f"s_sub_u32 s{61+2*i}, s{60+2*i}, s60")
        I(f"v_mov_b32 v2, s{61+2*i}")
        I(f"buffer_store_dword v2, v1, s[56:59], 0 offen offset:{4*i}")
    I("s_waitcnt vmcnt(0)")
    e(f"SD_skip{wg}:")

def kernel_header(name):
    e(".text")
    e(f".globl {name}")
    e(".p2align 8")
    e(f".type {name},@function")
    e(f"{name}:")

def kernel_desc(name, vgpr, sgpr, accum=None):
    if accum is None:
        accum = (vgpr + 3) // 4 * 4
    e('.section .rodata,"a"')
    e(".p2align 6")
    e(f".amdhsa_kernel {name}")
    e(f"  .amdhsa_next_free_vgpr {vgpr}")
    e(f"  .amdhsa_next_free_sgpr {sgpr}")
    e(f"  .amdhsa_accum_offset {accum}")
    e("  .amdhsa_group_segment_fixed_size 0")
    e("  .amdhsa_kernarg_size 104")
    e("  .amdhsa_user_sgpr_count 2")
    e("  .amdhsa_user_sgpr_kernarg_segment_ptr 1")
    e("  .amdhsa_system_sgpr_workgroup_id_x 1")
    e(".end_amdhsa_kernel")

N_LN, N_KV = 128, 160
N_PF = 0
if "pfw" in FLAGS: N_PF = 4*36
if "pfw2" in FLAGS: N_PF = 2*36
def gen_prep():
    kernel_header("prep_kernel")
    I(f"s_cmp_ge_u32 s2, {N_LN+N_KV+N_PF}")
    I("s_cbranch_scc1 P_exit")
    if N_PF:
        I(f"s_cmp_ge_u32 s2, {N_LN+N_KV}")
        I("s_cbranch_scc1 P_pf")
    I("s_load_dwordx2 s[6:7], s[0:1], 96")
    I(f"s_cmp_lt_u32 s2, {N_KV}")
    I("s_cbranch_scc1 P_kv")
    if "noln" in FLAGS: I("s_endpgm")
    I("s_load_dwordx2 s[4:5], s[0:1], 0")
    I("v_lshrrev_b32 v1, 4, v0")
    I(f"s_sub_u32 s3, s2, {N_KV}")
    I("s_lshl_b32 s3, s3, 4")
    I("v_add_u32 v1, s3, v1")
    I("v_mul_u32_u24 v2, 0x500, v1")
    I("v_and_b32 v3, 15, v0")
    I("v_lshl_add_u32 v2, v3, 4, v2")
    I("s_waitcnt lgkmcnt(0)")
    srd(8, 4, SZ_SD)
    srd(12, 6, SZ_SD, WS_XN)
    for j in range(5):
        I(f"buffer_load_dwordx4 v[{4+4*j}:{7+4*j}], v2, s[8:11], 0 offen offset:{256*j}")
    I("v_lshrrev_b32 v2, 4, v1")
    I("v_mul_u32_u24 v2, 20480, v2")
    I("v_lshrrev_b32 v64, 2, v3")
    I("v_lshl_add_u32 v2, v64, 10, v2")
    I("v_and_b32 v64, 3, v3")
    I("v_lshl_add_u32 v2, v64, 8, v2")
    I("v_and_b32 v64, 15, v1")
    I("v_lshl_add_u32 v2, v64, 4, v2")
    I("s_waitcnt vmcnt(0)")
    X = 24
    for j in range(20):
        lo16(X + 2*j, 4 + j)
        hi16(X + 2*j + 1, 4 + j)
    T = 64
    for j in range(20):
        I(f"v_add_f32 v{T+j}, v{X+2*j}, v{X+2*j+1}")
    def tree(base, n):
        while n > 1:
            h = n // 2
            for j in range(h):
                I(f"v_add_f32 v{base+j}, v{base+j}, v{base+n-1-j}")
            n = n - h
    tree(T, 20)
    def dpp_reduce(r, tmp):
        for sh in (8, 4, 2, 1):
            I("s_nop 1")
            I(f"v_add_f32_dpp v{tmp}, v{r}, v{r} row_ror:{sh} row_mask:0xf bank_mask:0xf")
            I(f"v_mov_b32 v{r}, v{tmp}")
    dpp_reduce(T, T+1)
    I(f"v_mul_f32 v{T}, {1.0/640.0!r}, v{T}")
    for j in range(40):
        I(f"v_sub_f32 v{T+2+j}, v{X+j}, v{T}")
    for j in range(40):
        I(f"v_mul_f32 v{T+2+j}, v{T+2+j}, v{T+2+j}")
    tree(T+2, 40)
    dpp_reduce(T+2, T+1)
    I(f"v_mul_f32 v{T+2}, {1.0/640.0!r}, v{T+2}")
    I(f"v_cvt_pk_bf16_f32 v{T}, v{T}, v{T+2}")
    hi16(T+2, T)
    lo16(T, T)
    I(f"v_add_f32 v{T+2}, {1e-5!r}, v{T+2}")
    I(f"v_cvt_pk_bf16_f32 v{T+2}, v{T+2}, v{T+2}")
    lo16(T+2, T+2)
    I(f"v_sqrt_f32 v{T+2}, v{T+2}")
    I("s_nop 0")
    I(f"v_cvt_pk_bf16_f32 v{T+2}, v{T+2}, v{T+2}")
    lo16(T+2, T+2)
    I(f"v_rcp_f32 v{T+3}, v{T+2}")
    I("s_nop 0")
    for j in range(20):
        a, b = X + 2*j, X + 2*j + 1
        I(f"v_sub_f32 v{a}, v{a}, v{T}")
        I(f"v_sub_f32 v{b}, v{b}, v{T}")
        I(f"v_cvt_pk_bf16_f32 v{T+4}, v{a}, v{b}")
        lo16(a, T+4)
        hi16(b, T+4)
        for r in (a, b):
            I(f"v_mul_f32 v{T+5}, v{r}, v{T+3}")
            I(f"v_fma_f32 v{T+6}, -v{T+5}, v{T+2}, v{r}")
            I(f"v_fma_f32 v{r}, v{T+6}, v{T+3}, v{T+5}")
        I(f"v_cvt_pk_bf16_f32 v{4+j}, v{a}, v{b}")
        if j % 4 == 3:
            jj = j // 4
            I(f"s_mov_b32 s16, {4096*jj}")
            I(f"buffer_store_dwordx4 v[{4+4*jj}:{7+4*jj}], v2, s[12:15], s16 offen")
    I("s_endpgm")
    e("P_kv:")
    if "nokv" in FLAGS: I("s_endpgm")
    I("s_load_dwordx4 s[16:19], s[0:1], 8")
    I("s_load_dwordx2 s[4:5], s[0:1], 24")
    I("s_mul_i32 s28, s2, 0xCCCD")
    I("s_lshr_b32 s28, s28, 19")
    I("s_mul_i32 s29, s28, 10")
    I("s_sub_u32 s29, s2, s29")
    I("v_and_b32 v1, 7, v0")
    I("v_lshrrev_b32 v2, 3, v0")
    I("s_lshl_b32 s30, s29, 6")
    I("v_lshl_add_u32 v1, v1, 3, s30")
    I("s_lshl_b32 s31, s28, 7")
    I("v_lshl_add_u32 v2, v2, 2, s31")
    I("v_mul_u32_u24 v3, 0x500, v2")
    I("v_lshl_add_u32 v3, v1, 1, v3")
    for i in range(3):
        I(f"v_subrev_u32 v{5+i}, {(3-i)*1280:#x}, v3")
    I("v_lshlrev_b32 v8, 3, v1")
    I("s_waitcnt lgkmcnt(0)")
    srd(8, 16, SZ_SD)
    srd(12, 18, SZ_SD)
    srd(20, 4, D*4*2)
    srd(24, 6, SZ_SD, WS_KVR)
    KR = 16
    for i in range(3):
        I(f"buffer_load_dwordx4 v[{KR+4*i}:{KR+4*i+3}], v{5+i}, s[8:11], 0 offen")
    for i in range(4):
        I(f"buffer_load_dwordx4 v[{KR+4*(i+3)}:{KR+4*(i+3)+3}], v3, s[8:11], 0 offen offset:{i*1280}")
    VR = KR + 28
    for i in range(4):
        I(f"buffer_load_dwordx4 v[{VR+4*i}:{VR+4*i+3}], v3, s[12:15], 0 offen offset:{i*1280}")
    SK = VR + 16
    for i in range(4):
        I(f"buffer_load_dwordx4 v[{SK+4*i}:{SK+4*i+3}], v8, s[20:23], 0 offen offset:{16*i}")
    I("v_lshlrev_b32 v9, 12, v1")
    I(f"v_sub_u32 v10, {S-4}, v2")
    I("v_lshl_add_u32 v9, v10, 1, v9")
    I("s_waitcnt vmcnt(0)")
    KF = 76
    VF = 83
    SF = 87
    TM = 92
    OB = 104
    for dd in range(8):
        ex = lo16 if dd % 2 == 0 else hi16
        for i in range(7):
            ex(KF + i, KR + 4*i + dd//2)
        for i in range(4):
            ex(VF + i, VR + 4*i + dd//2)
        lo16(SF+0, SK + 2*dd); hi16(SF+1, SK + 2*dd)
        lo16(SF+2, SK + 2*dd + 1); hi16(SF+3, SK + 2*dd + 1)
        ob = OB + 2*(dd % 4)
        for q in range(2):
            sa, sb = 3 - 2*q, 2 - 2*q
            t = TM
            I(f"v_mul_f32 v{t}, v{KF+sa}, v{SF+3}")
            I(f"v_mul_f32 v{t+1}, v{KF+sb}, v{SF+3}")
            I(f"v_mul_f32 v{t+2}, v{KF+sa+1}, v{SF+2}")
            I(f"v_mul_f32 v{t+3}, v{KF+sb+1}, v{SF+2}")
            I(f"v_mul_f32 v{t+4}, v{KF+sa+2}, v{SF+1}")
            I(f"v_mul_f32 v{t+5}, v{KF+sb+2}, v{SF+1}")
            I(f"v_mul_f32 v{t+6}, v{KF+sa+3}, v{SF+0}")
            I(f"v_mul_f32 v{t+7}, v{KF+sb+3}, v{SF+0}")
            for p in range(4):
                I(f"v_cvt_pk_bf16_f32 v{t+8+p}, v{t+2*p}, v{t+2*p+1}")
            for p in range(4):
                lo16(t+2*p, t+8+p); hi16(t+2*p+1, t+8+p)
            for step in (1, 2, 3):
                I(f"v_add_f32 v{t}, v{t}, v{t+2*step}")
                I(f"v_add_f32 v{t+1}, v{t+1}, v{t+2*step+1}")
                I(f"v_cvt_pk_bf16_f32 v{t+8}, v{t}, v{t+1}")
                lo16(t, t+8); hi16(t+1, t+8)
            I(f"v_mul_f32 v{t}, v{t}, v{VF+sa}")
            I(f"v_mul_f32 v{t+1}, v{t+1}, v{VF+sb}")
            I(f"v_cvt_pk_bf16_f32 v{ob+q}, v{t}, v{t+1}")
        I(f"s_mov_b32 s16, {4096*dd}")
        I(f"buffer_store_dwordx2 v[{ob}:{ob+1}], v9, s[24:27], s16 offen")
    if N_PF:
        I("s_endpgm")
        e("P_pf:")
        I(f"s_sub_u32 s3, s2, {N_LN+N_KV}")
        I("s_mul_i32 s4, s3, 1821")
        I("s_lshr_b32 s4, s4, 16")
        I("s_mul_i32 s5, s4, 36")
        I("s_sub_u32 s5, s3, s5")
        I("s_lshl_b32 s6, s4, 3")
        I("s_add_u32 s6, s6, 56")
        I("s_cmp_eq_u32 s4, 3")
        I("s_cselect_b32 s6, 32, s6")
        I("s_load_dwordx2 s[8:9], s[0:1], s6")
        I(f"s_mov_b32 s10, {SZ_W}")
        I(f"s_cselect_b32 s10, {SZ_SD}, s10")
        I("s_mov_b32 s11, 0x00020000")
        I("s_mov_b32 s7, 65536")
        I("s_cselect_b32 s7, 73728, s7")
        I("s_mul_i32 s5, s5, s7")
        I("v_lshlrev_b32 v1, 4, v0")
        I("s_waitcnt lgkmcnt(0)")
        for i in range(18):
            I(f"buffer_load_dwordx4 v[{4+4*i}:{7+4*i}], v1, s[8:11], s5 offen")
            I("s_add_u32 s5, s5, 4096")
        I("s_waitcnt vmcnt(0)")
    e("P_exit:")
    I("s_endpgm")
    kernel_desc("prep_kernel", 112, 40)

BF = 112
NSLOT = 5
SLOT = 16384
LDS2 = NSLOT * SLOT
N_G1, N_CV = 256, 256

class DSQ:
    def __init__(self): self.q = []
    def push(self, tag): self.q.append(tag)
    def wait_for(self, tag):
        idx = max(i for i, t in enumerate(self.q) if t == tag)
        n = len(self.q) - 1 - idx
        I(f"s_waitcnt lgkmcnt({min(n,15)})")
        self.q = self.q[idx+1:] if n <= 15 else self.q[len(self.q)-15:]

def gen_k2():
    kernel_header("mid_kernel")
    I(f"s_cmp_ge_u32 s2, {N_G1+N_CV}")
    I("s_cbranch_scc1 M_exit")
    I("s_load_dwordx2 s[6:7], s[0:1], 96")
    I(f"s_cmp_ge_u32 s2, {N_G1}")
    I("s_cbranch_scc1 M_conv")
    if "nog1" in FLAGS: I("s_endpgm")
    stamp()
    I("s_load_dwordx4 s[16:19], s[0:1], 56")
    I("v_lshrrev_b32 v1, 6, v0")
    I("s_nop 0")
    I("v_readfirstlane_b32 s3, v1")
    I("s_waitcnt lgkmcnt(0)")
    if "stamp2" in FLAGS: stamp()
    I("s_cmp_ge_u32 s3, 2")
    I("s_cselect_b32 s4, s18, s16")
    I("s_cselect_b32 s5, s19, s17")
    srd(8, 4, SZ_W)
    srd(12, 6, SZ_SD, WS_XN)
    srd(20, 6, SZ_H, WS_H)
    if "g12d" in FLAGS:
        I("s_and_b32 s24, s2, 3")
        I("s_lshl_b32 s24, s24, 2")
        I("s_bfe_u32 s25, s2, 0x20003")
        I("s_add_u32 s24, s24, s25")
        I("s_bfe_u32 s25, s2, 0x10002")
        I("s_lshl_b32 s25, s25, 3")
        I("s_lshr_b32 s26, s2, 5")
        I("s_add_u32 s25, s25, s26")
    else:
        I("s_and_b32 s24, s2, 15")
        I("s_lshr_b32 s25, s2, 4")
    I(f"s_mul_i32 s25, s25, {BF}")
    I(f"s_min_u32 s25, s25, {F-BF}")
    I("v_and_b32 v1, 63, v0")
    if "pf" in FLAGS:
        I("s_lshr_b32 s26, s2, 3")
        I("s_lshl_b32 s27, s26, 1")
        I("s_and_b32 s28, s3, 1")
        I("s_add_u32 s27, s27, s28")
        I("s_mul_i32 s27, s27, 34560")
        I("s_bfe_u32 s28, s2, 0x10002")
        I("s_mul_i32 s28, s28, 1792")
        I("s_add_u32 s27, s27, s28")
        I("v_lshrrev_b32 v192, 5, v1")
        I("v_mul_u32_u24 v192, 3456, v192")
        I("v_and_b32 v193, 31, v1")
        I("v_lshl_add_u32 v192, v193, 6, v192")
        I("v_add_u32 v192, s27, v192")
        for i in range(5):
            I(f"s_mov_b32 s27, {i*6912}")
            I(f"buffer_load_dword v{194+i}, v192, s[8:11], s27 offen")
        I("s_and_b32 s27, s2, 3")
        I("s_mul_i32 s27, s27, 655360")
        I("s_lshl_b32 s28, s26, 2")
        I("s_add_u32 s28, s28, s3")
        I("s_mul_i32 s28, s28, 5120")
        I("s_add_u32 s27, s27, s28")
        I("v_lshlrev_b32 v193, 6, v1")
        I("buffer_load_dword v199, v193, s[12:15], s27 offen")
        I("buffer_load_dword v200, v193, s[12:15], s27 offen offset:1024")
    I("v_lshrrev_b32 v10, 4, v1")
    I("v_bfe_u32 v11, v1, 1, 3")
    I("v_and_b32 v12, 1, v1")
    I("s_and_b32 s26, s3, 1")
    I("s_lshl_b32 s26, s26, 4")
    I("s_lshl_b32 s27, s25, 1")
    for i in range(4):
        bit = (i >> 1) & 1
        I(f"v_or_b32 v13, {bit<<2}, v10")
        I("v_xor_b32 v13, v13, v11")
        I(f"v_add_u32 v14, {4*i}, v10")
        I("v_add_u32 v14, s26, v14")
        I("v_mul_u32_u24 v14, 3456, v14")
        I("v_lshl_add_u32 v14, v13, 5, v14")
        I("v_lshl_add_u32 v14, v12, 4, v14")
        I("v_add_u32 v14, s27, v14")
        I(f"v_subrev_u32 v14, {1024*i}, v14")
        I("v_cmp_eq_u32 vcc, 7, v13")
        I("v_mov_b32 v15, 0x40000000")
        I("s_nop 0")
        I(f"v_cndmask_b32 v{2+i}, v14, v15, vcc")
    I("v_bfe_u32 v17, v0, 4, 2")
    I("s_lshl_b32 s26, s24, 3")
    I("s_lshl_b32 s27, s3, 1")
    I("s_add_u32 s26, s26, s27")
    I("s_mul_i32 s27, s26, 20480")
    I("v_lshl_add_u32 v6, v1, 4, s27")
    I("v_add_u32 v7, 20480, v6")
    I("s_mul_i32 s27, s26, 55296")
    I("v_lshl_add_u32 v8, v1, 4, s27")
    I("v_add_u32 v9, 55296, v8")
    I("v_bfe_u32 v18, v0, 2, 2")
    I("v_lshl_add_u32 v19, v17, 3, v18")
    I("v_lshlrev_b32 v19, 8, v19")
    I("v_and_b32 v20, 1, v17")
    I("v_lshl_or_b32 v20, v20, 2, v18")
    I("v_lshl_add_u32 v19, v20, 5, v19")
    I("v_and_b32 v18, 3, v0")
    I("v_lshl_add_u32 v19, v18, 3, v19")
    VA = 10
    I("v_mov_b32 v24, v19")
    for jf in range(7):
        I(f"v_xor_b32 v{VA+jf}, {jf<<5}, v24")
        I(f"v_add_u32 v{VA+7+jf}, 0x10000, v{VA+jf}")
    I("s_lshl_b32 s29, s3, 12")
    BB = 24
    AF = 64
    ACC = 80
    def acc(m, jf, js): return ACC + ((m*7 + jf)*2 + js)*4
    def bfr(st, js): return BB + (st % NSLOT)*8 + js*4
    NST = 20
    def issue(slot):
        I(f"s_add_u32 s30, s29, {slot*SLOT}")
        I("s_mov_b32 m0, s30")
        for i in range(4):
            I(f"buffer_load_dwordx4 v{2+i}, s[8:11], s28 offen offset:{1024*i} lds")
        for js in range(2):
            r = BB + slot*8 + js*4
            I(f"buffer_load_dwordx4 v[{r}:{r+3}], v{6+js}, s[12:15], s31 offen")
        I("s_add_u32 s36, s36, 1")
        I("s_cmp_ge_u32 s36, 20")
        I("s_cselect_b32 s36, 0, s36")
        I("s_add_u32 s37, s37, 1")
        I(f"s_mul_i32 s28, s36, {32*3456}")
        I("s_lshl_b32 s31, s36, 10")
        I("s_cmp_ge_u32 s37, 20")
        I("s_cselect_b32 s28, 0x40000000, s28")
        I("s_cselect_b32 s31, 0x40000000, s31")
    if "rot" in FLAGS:
        I("s_and_b32 s36, s24, 3")
        I("s_mul_i32 s36, s36, 5")
        I("s_lshr_b32 s37, s2, 5")
        I("s_mul_i32 s37, s37, 3")
        I("s_add_u32 s36, s36, s37")
        I("s_cmp_ge_u32 s36, 20")
        I("s_cselect_b32 s37, 20, 0")
        I("s_sub_u32 s36, s36, s37")
    else:
        I("s_mov_b32 s36, 0")
    I("s_mov_b32 s37, 0")
    I(f"s_mul_i32 s28, s36, {32*3456}")
    I("s_lshl_b32 s31, s36, 10")
    if "stamp2" in FLAGS: stamp()
    for st in range(NSLOT - 1):
        issue(st)
    if "stamp2" in FLAGS: stamp()
    for j in range(112):
        I(f"v_mov_b32 v{ACC+j}, 0")
    I("s_mov_b32 s33, 0")
    stamp()
    def body(last):
      for slot in range(NSLOT):
        if not last or slot <= 1:
            I(f"s_waitcnt vmcnt({6*(NSLOT-2)})")
        else:
            I(f"s_waitcnt vmcnt({6*(NSLOT-1-slot)})")
        I("s_barrier")
        if not last or slot == 0:
            issue((slot + NSLOT - 1) % NSLOT)
        seq = [(m, jf) for m in range(2) for jf in range(7)]
        def rd(idx):
            m, jf = seq[idx]
            a = AF + (idx % 4)*4
            if slot < 4:
                va = VA + jf; off = slot*SLOT + m*8192
            else:
                va = VA + 7 + jf; off = m*8192
            I(f"ds_read_b64_tr_b16 v[{a}:{a+1}], v{va} offset:{off}")
            I(f"ds_read_b64_tr_b16 v[{a+2}:{a+3}], v{va} offset:{off+1024}")
        for i in range(3):
            rd(i)
        for idx in range(14):
            if idx + 3 < 14:
                rd(idx + 3)
                I("s_waitcnt lgkmcnt(6)")
            else:
                I(f"s_waitcnt lgkmcnt({2*(13-idx)})")
            m, jf = seq[idx]
            a = AF + (idx % 4)*4
            for js in range(2):
                c = acc(m, jf, js); b = BB + slot*8 + js*4
                I(f"v_mfma_f32_16x16x32_bf16 v[{c}:{c+3}], v[{a}:{a+3}], v[{b}:{b+3}], v[{c}:{c+3}]")
    XS = "xs" in FLAGS
    seq = [(m, jf) for m in range(2) for jf in range(7)]
    ring = [0]
    def rdx(slot, idx, pos):
        m, jf = seq[idx]
        a = [64,68,72,76,192][pos % 5]
        if slot < 4:
            va = VA + jf; off = slot*SLOT + m*8192
        else:
            va = VA + 7 + jf; off = m*8192
        I(f"ds_read_b64_tr_b16 v[{a}:{a+1}], v{va} offset:{off}")
        I(f"ds_read_b64_tr_b16 v[{a+2}:{a+3}], v{va} offset:{off+1024}")
    def body_xs(last):
      for slot in range(NSLOT):
        fin_stage = last and slot == NSLOT-1
        if not fin_stage:
            if not last or slot <= 1:
                I("s_waitcnt vmcnt(12)")
            else:
                I(f"s_waitcnt vmcnt({6*(NSLOT-2-slot)})")
            I("s_barrier")
        if not last or slot == 0:
            issue((slot + NSLOT - 1) % NSLOT)
        for idx in range(14):
            pos = idx + 14*slot
            if idx + 3 < 14:
                rdx(slot, idx + 3, pos + 3)
                I("s_waitcnt lgkmcnt(6)")
            elif not fin_stage:
                rdx((slot + 1) % NSLOT, idx + 3 - 14, pos + 3)
                I("s_waitcnt lgkmcnt(6)")
            else:
                I(f"s_waitcnt lgkmcnt({2*(13-idx)})")
            m, jf = seq[idx]
            a = [64,68,72,76,192][pos % 5]
            for js in range(2):
                c = acc(m, jf, js); b = BB + slot*8 + js*4
                I(f"v_mfma_f32_16x16x32_bf16 v[{c}:{c+3}], v[{a}:{a+3}], v[{b}:{b+3}], v[{c}:{c+3}]")
    if "stamp2" in FLAGS:
        I("s_waitcnt vmcnt(18)")
        stamp()
    if XS:
        I("s_waitcnt vmcnt(18)")
        I("s_barrier")
        for i in range(3):
            rdx(0, i, i)
    e("G1_loop:")
    (body_xs if XS else body)(False)
    I("s_add_u32 s33, s33, 1")
    I(f"s_cmp_lt_u32 s33, {NST//NSLOT - 1}")
    I("s_cbranch_scc1 G1_loop")
    (body_xs if XS else body)(True)
    stamp()
    I("s_waitcnt vmcnt(0)")
    I("s_nop 7")
    I("s_nop 3")
    T = 24
    for js in range(2):
        for jf in range(7):
            g = acc(0, jf, js); u = acc(1, jf, js)
            t = T + ((js*7 + jf) % 4) * 8
            I(f"v_cvt_pk_bf16_f32 v{t}, v{g}, v{g+1}")
            I(f"v_cvt_pk_bf16_f32 v{t+1}, v{g+2}, v{g+3}")
            I(f"v_cvt_pk_bf16_f32 v{t+2}, v{u}, v{u+1}")
            I(f"v_cvt_pk_bf16_f32 v{t+3}, v{u+2}, v{u+3}")
            lo16(g, t); hi16(g+1, t); lo16(g+2, t+1); hi16(g+3, t+1)
            lo16(u, t+2); hi16(u+1, t+2); lo16(u+2, t+3); hi16(u+3, t+3)
            for r in range(4):
                I(f"v_mul_f32 v{g+r}, v{g+r}, v{u+r}")
            I(f"v_cvt_pk_bf16_f32 v{t+4}, v{g}, v{g+1}")
            I(f"v_cvt_pk_bf16_f32 v{t+5}, v{g+2}, v{g+3}")
            I(f"s_add_u32 s34, s25, {16*jf}")
            I("s_lshr_b32 s35, s34, 5")
            I("s_lshl_b32 s35, s35, 10")
            I("s_and_b32 s34, s34, 16")
            I("s_lshr_b32 s34, s34, 1")
            I("s_add_u32 s35, s35, s34")
            I(f"buffer_store_dwordx2 v[{t+4}:{t+5}], v{8+js}, s[20:23], s35 offen")
    I("s_waitcnt vmcnt(0)")
    stamp()
    stamp_dump(5)
    I("s_endpgm")
    e("M_conv:")
    if "noconv" in FLAGS: I("s_endpgm")
    XREG = 7680; CST = 800; HBUF = 8*CST; WREG = 20480
    stamp()
    I("s_load_dwordx4 s[16:19], s[0:1], 32")
    I("v_lshrrev_b32 v1, 6, v0")
    I("s_nop 0")
    I("v_readfirstlane_b32 s3, v1")
    I(f"s_sub_u32 s25, s2, {N_G1}")
    I("s_cmp_ge_u32 s25, 128")
    I("s_cbranch_scc1 M_aux_hi")
    I("s_mov_b32 s24, s25")
    I("s_cmp_eq_u32 s3, 3")
    I("s_cbranch_scc1 M_wdt")
    I("s_mul_i32 s24, s25, 3")
    I("s_add_u32 s24, s24, s3")
    I("s_branch M_conv2")
    e("M_aux_hi:")
    I("s_sub_u32 s25, s25, 128")
    I("s_lshl_b32 s25, s25, 1")
    I("s_add_u32 s24, s25, s3")
    I("s_add_u32 s24, s24, 126")
    I("s_cmp_ge_u32 s3, 2")
    I("s_cbranch_scc1 M_wdt")
    I("s_add_u32 s24, s25, s3")
    I("s_add_u32 s24, s24, 384")
    e("M_conv2:")
    I("s_waitcnt lgkmcnt(0)")
    srd(8, 16, SZ_SD)
    srd(12, 6, SZ_SD, WS_KVR)
    srd(20, 6, SZ_SD, WS_YT)
    I("s_lshr_b32 s25, s24, 1")
    I("s_lshl_b32 s25, s25, 2")
    I("s_load_dword s26, s[18:19], s25")
    I("v_and_b32 v1, 63, v0")
    I("s_lshl_b32 s27, s24, 12")
    I("v_lshl_add_u32 v2, v1, 4, s27")
    XL = 16
    for j in range(4):
        I(f"buffer_load_dwordx4 v[{XL+4*j}:{XL+4*j+3}], v2, s[12:15], 0 offen offset:{1024*j}")
    HW0, HW1 = 32, 40
    I("v_subrev_u32 v13, 64, v2")
    I("v_mov_b32 v5, 0x40000000")
    I("v_cmp_gt_u32 vcc, 4, v1")
    I("s_nop 1")
    I("v_cndmask_b32 v4, v13, v5, vcc")
    I("v_add_u32 v6, 16, v13")
    I("v_cmp_gt_u32 vcc, 3, v1")
    I("s_nop 1")
    I("v_cndmask_b32 v6, v6, v5, vcc")
    I(f"buffer_load_dwordx4 v[{HW0}:{HW0+3}], v4, s[8:11], 0 offen")
    I(f"buffer_load_dwordx4 v[{HW0+4}:{HW0+7}], v6, s[8:11], 0 offen")
    I(f"buffer_load_dwordx4 v[{HW1}:{HW1+3}], v2, s[8:11], 0 offen offset:448")
    I(f"buffer_load_dwordx4 v[{HW1+4}:{HW1+7}], v2, s[8:11], 0 offen offset:464")
    I("s_mov_b32 s29, 960")
    I(f"s_mul_i32 s28, s3, {WREG}")
    Z = 96
    for j in range(4):
        I(f"v_mov_b32 v{Z+j}, 0")
    I("v_lshl_add_u32 v3, v1, 4, s28")
    I(f"ds_write_b128 v3, v[{Z}:{Z+3}] offset:5120")
    I(f"ds_write_b128 v3, v[{Z}:{Z+3}] offset:6144")
    I(f"ds_write_b128 v3, v[{Z}:{Z+3}] offset:6656")
    I("v_lshrrev_b32 v4, 2, v1")
    I("v_mul_u32_u24 v4, 80, v4")
    I("v_and_b32 v5, 3, v1")
    I("v_lshl_add_u32 v4, v5, 4, v4")
    I("v_add_u32 v4, s28, v4")
    I("v_and_b32 v5, 31, v1")
    I("v_lshrrev_b32 v6, 5, v1")
    I("v_and_b32 v7, 7, v5")
    I(f"v_mul_u32_u24 v7, {CST}, v7")
    I("v_lshrrev_b32 v8, 3, v5")
    I("v_add_u32 v8, v8, v6")
    I("v_lshl_add_u32 v7, v8, 4, v7")
    I(f"v_add_u32 v7, {XREG}, v7")
    I("v_add_u32 v7, s28, v7")
    I(f"v_add_u32 v14, {HBUF}, v7")
    I("v_sub_u32 v8, 63, v5")
    I("v_mul_u32_u24 v8, 80, v8")
    I("v_lshl_add_u32 v8, v6, 4, v8")
    I("v_add_u32 v8, s28, v8")
    I("v_mov_b32 v15, v8")
    I("v_subrev_u32 v9, 2560, v8")
    I(f"v_add_u32 v10, {XREG}, v3")
    I(f"v_add_u32 v11, {HBUF}, v10")
    AC0, AC1 = 100, 116
    for j in range(32):
        I(f"v_mov_b32 v{AC0+j}, 0")
    FR = 132
    UE, UO, WO = 180, 189, 197
    I("s_mov_b32 s30, -1")
    I("s_mov_b32 s31, 0xf")
    q = DSQ()
    def stage_seg(w, addr):
        for t in range(7):
            I(f"v_alignbit_b32 v{UE+t}, v{w+t+1}, v{w+t}, 16")
            I(f"v_alignbit_b32 v{UO+t}, v{w+t+1}, v{w+t}, 16")
        for t in range(1, 7):
            I(f"v_mov_b32 v{WO+t}, v{w+t}")
        I("s_mov_b64 exec, s[30:31]")
        for c in range(8):
            if c % 2 == 0:
                t0 = c // 2
                r = UE + t0 if t0 % 2 == 0 else UO + t0
            else:
                t0 = (1 + c)//2
                r = w + t0 if t0 % 2 == 0 else WO + t0
            assert r % 2 == 0, (c, r)
            I(f"ds_write_b128 v{addr}, v[{r}:{r+3}] offset:{c*CST}")
            q.push(("w", 0))
        I("s_mov_b64 exec, -1")
    I("s_waitcnt vmcnt(2)")
    stamp()
    for j in range(4):
        I(f"ds_write_b128 v4, v[{XL+4*j}:{XL+4*j+3}] offset:{16*80*j}")
    stage_seg(HW0, 10)
    q = DSQ()
    def crd(c, both):
        f = FR + (c % 4)*12
        boff = (c >> 1)*80 + (c & 1)*32
        if c < 16:
            I(f"ds_read_b128 v[{f}:{f+3}], v7 offset:{32*c}")
        else:
            I(f"ds_read_b128 v[{f}:{f+3}], v14 offset:{32*(c-16)}")
        q.push(("r", c))
        I(f"ds_read_b128 v[{f+4}:{f+7}], v9 offset:{boff}")
        q.push(("r", c))
        if both:
            I(f"ds_read_b128 v[{f+8}:{f+11}], v8 offset:{boff}")
            q.push(("r", c))
    for c in range(3):
        crd(c, True)
    I("s_mov_b32 s33, 0")
    stamp()
    for phase in range(2):
        both = (phase == 0)
        e(f"CV_loop{phase}:")
        q.q = [("r", c) for c in range(3) for _ in range(3 if both else 2)]
        for c in range(16):
            if c == 1:
                I("s_waitcnt vmcnt(0)")
                stage_seg(HW1, 11)
                I(f"buffer_load_dwordx4 v[{HW1}:{HW1+3}], v2, s[8:11], s29 offen")
                I(f"buffer_load_dwordx4 v[{HW1+4}:{HW1+7}], v2, s[8:11], s29 offen offset:16")
                I("s_add_u32 s29, s29, 512")
            crd(c + 3, both)
            q.wait_for(("r", c))
            f = FR + (c % 4)*12
            I(f"v_mfma_f32_32x32x16_bf16 v[{AC1}:{AC1+15}], v[{f}:{f+3}], v[{f+4}:{f+7}], v[{AC1}:{AC1+15}]")
            if both:
                I(f"v_mfma_f32_32x32x16_bf16 v[{AC0}:{AC0+15}], v[{f}:{f+3}], v[{f+8}:{f+11}], v[{AC0}:{AC0+15}]")
        I("v_swap_b32 v7, v14")
        I("v_swap_b32 v10, v11")
        I("v_add_u32 v8, 640, v8")
        I("v_add_u32 v9, 640, v9")
        I("s_add_u32 s33, s33, 1")
        I(f"s_cmp_lt_u32 s33, {4*(phase+1)}")
        I(f"s_cbranch_scc1 CV_loop{phase}")
    I("v_mov_b32 v8, v15")
    I("s_waitcnt vmcnt(0) lgkmcnt(0)")
    stamp()
    I("v_mul_u32_u24 v10, 24, v6")
    I("v_sub_u32 v10, v8, v10")
    I("v_add_u32 v10, 8, v10")
    I("v_subrev_u32 v11, 2560, v10")
    KV = 16
    for cb in range(2):
        for qq in range(4):
            I(f"ds_read_b64 v[{KV+cb*8+2*qq}:{KV+cb*8+2*qq+1}], v{10+cb} offset:{48-16*qq}")
    I("s_and_b32 s25, s24, 1")
    I("s_lshl_b32 s25, s25, 4")
    I("s_lshr_b32 s26, s26, s25")
    I("s_lshl_b32 s26, s26, 16")
    I("v_lshlrev_b32 v12, 6, v5")
    I("v_lshl_add_u32 v12, v6, 3, v12")
    I("v_add_u32 v12, s27, v12")
    I("s_nop 7")
    I("s_waitcnt lgkmcnt(0)")
    for cb in range(2):
        ac = AC0 if cb == 0 else AC1
        for qq in range(4):
            k0 = KV + cb*8 + 2*qq
            t = 40 + (qq % 2)*12
            y = ac + 4*qq
            hi16(t+0, k0+1); lo16(t+1, k0+1); hi16(t+2, k0); lo16(t+3, k0)
            for r in range(4):
                I(f"v_mul_f32 v{t+r}, s26, v{t+r}")
            I(f"v_cvt_pk_bf16_f32 v{t+4}, v{t}, v{t+1}")
            I(f"v_cvt_pk_bf16_f32 v{t+5}, v{t+2}, v{t+3}")
            I(f"v_cvt_pk_bf16_f32 v{t+6}, v{y}, v{y+1}")
            I(f"v_cvt_pk_bf16_f32 v{t+7}, v{y+2}, v{y+3}")
            lo16(t, t+4); hi16(t+1, t+4); lo16(t+2, t+5); hi16(t+3, t+5)
            lo16(y, t+6); hi16(y+1, t+6); lo16(y+2, t+7); hi16(y+3, t+7)
            for r in range(4):
                I(f"v_add_f32 v{t+r}, v{t+r}, v{y+r}")
            I(f"v_cvt_pk_bf16_f32 v{t+8}, v{t}, v{t+1}")
            I(f"v_cvt_pk_bf16_f32 v{t+9}, v{t+2}, v{t+3}")
            I(f"buffer_store_dwordx2 v[{t+8}:{t+9}], v12, s[20:23], 0 offen offset:{cb*2048+16*qq}")
    I("s_waitcnt vmcnt(0)")
    stamp()
    stamp_dump(N_G1 + 7)
    I("s_endpgm")
    e("M_wdt:")
    I("s_cmp_ge_u32 s24, 270")
    I("s_cbranch_scc1 M_exit")
    I("s_waitcnt lgkmcnt(0)")
    I("s_load_dwordx2 s[4:5], s[0:1], 72")
    I("s_mul_i32 s17, s24, 0xCCCD")
    I("s_lshr_b32 s17, s17, 19")
    I("s_mul_i32 s18, s17, 10")
    I("s_sub_u32 s18, s24, s18")
    I("v_and_b32 v1, 7, v0")
    I("v_bfe_u32 v2, v0, 3, 2")
    I("v_bfe_u32 v6, v0, 5, 1")
    I("s_lshl_b32 s18, s18, 6")
    I("v_lshl_add_u32 v1, v1, 3, s18")
    I("s_lshl_b32 s19, s17, 1")
    I("v_add_u32 v6, s19, v6")
    I("v_lshlrev_b32 v7, 5, v6")
    I("v_lshl_add_u32 v7, v2, 2, v7")
    I("v_mul_u32_u24 v3, 0x500, v7")
    I("v_lshl_add_u32 v3, v1, 1, v3")
    I("v_add_u32 v4, 0x5000, v3")
    I("s_waitcnt lgkmcnt(0)")
    srd(8, 4, SZ_W)
    srd(12, 6, SZ_W, WS_WDT)
    for i in range(8):
        b = 3 if i < 4 else 4
        I(f"buffer_load_dwordx4 v[{8+4*i}:{11+4*i}], v{b}, s[8:11], 0 offen offset:{(i%4)*1280}")
    I("s_mov_b32 s20, 0x05040100")
    I("s_mov_b32 s21, 0x07060302")
    I("v_lshrrev_b32 v5, 4, v1")
    I("v_mul_u32_u24 v5, 54, v5")
    I("v_add_u32 v5, v5, v6")
    I("v_lshlrev_b32 v5, 10, v5")
    I("v_lshl_add_u32 v5, v2, 8, v5")
    I("v_and_b32 v7, 15, v1")
    I("v_lshl_add_u32 v5, v7, 4, v5")
    I("s_waitcnt vmcnt(0)")
    for dd in range(8):
        ob = 40 + 4*dd
        sel = 20 + (dd & 1)
        for q in range(4):
            I(f"v_perm_b32 v{ob+q}, v{8+4*(2*q+1)+dd//2}, v{8+4*(2*q)+dd//2}, s{sel}")
    for dd in range(8):
        ob = 40 + 4*dd
        I(f"buffer_store_dwordx4 v[{ob}:{ob+3}], v5, s[12:15], 0 offen offset:{16*dd}")
    e("M_exit:")
    I("s_endpgm")
    kernel_desc("mid_kernel", 208, 80)

def gen_k3():
    kernel_header("fin_kernel")
    I(f"s_cmp_ge_u32 s2, {64 if 'fin64' in FLAGS else 256}")
    I("s_cbranch_scc1 F_exit")
    I("s_load_dwordx2 s[6:7], s[0:1], 96")
    I("s_load_dwordx2 s[4:5], s[0:1], 0")
    I("s_load_dwordx2 s[30:31], s[0:1], 80")
    stamp()
    I("v_lshrrev_b32 v1, 6, v0")
    I("s_nop 0")
    I("v_readfirstlane_b32 s3, v1")
    I("s_waitcnt lgkmcnt(0)")
    srd(8, 6, SZ_W, WS_WDT)
    srd(12, 6, SZ_H, WS_H)
    srd(16, 6, SZ_SD, WS_YT)
    srd(20, 6, SZ_SD, WS_XN)
    srd(24, 4, SZ_SD)
    srd(32, 30, SZ_SD)
    if "fin2d" in FLAGS:
        I("s_and_b32 s36, s2, 1")
        I("s_lshl_b32 s36, s36, 2")
        I("s_bfe_u32 s37, s2, 0x20003")
        I("s_add_u32 s36, s36, s37")
        I("s_mul_i32 s36, s36, 80")
        I("s_bfe_u32 s37, s2, 0x20001")
        I("s_lshl_b32 s37, s37, 3")
        I("s_lshr_b32 s38, s2, 5")
        I("s_add_u32 s37, s37, s38")
        I("s_lshl_b32 s37, s37, 6")
    elif "finswap" in FLAGS:
        I("s_lshr_b32 s36, s2, 5")
        I("s_mul_i32 s36, s36, 80")
        I("s_and_b32 s37, s2, 31")
        I("s_lshl_b32 s37, s37, 6")
    else:
        I("s_and_b32 s36, s2, 7")
        I("s_mul_i32 s36, s36, 80")
        I("s_lshr_b32 s37, s2, 3")
        I("s_lshl_b32 s37, s37, 6")
    I("s_mul_i32 s38, s3, 14")
    I("s_cmp_eq_u32 s3, 3")
    I("s_cselect_b32 s39, 1, 0")
    I("s_sub_u32 s38, s38, s39")
    I("s_cmp_ge_u32 s3, 2")
    I("s_cselect_b32 s39, 13, 14")
    I("s_add_u32 s47, s38, s39")
    I("s_lshl_b32 s45, s38, 10")
    I("s_lshl_b32 s47, s47, 10")
    if "rot" in FLAGS:
        I("s_bfe_u32 s46, s2, 0x20003")
        I("s_lshl_b32 s46, s46, 2")
        I("s_lshr_b32 s44, s2, 5")
        I("s_lshl_b32 s44, s44, 1")
        I("s_add_u32 s46, s46, s44")
        I("s_cmp_ge_u32 s46, 13")
        I("s_cselect_b32 s44, 13, 0")
        I("s_sub_u32 s46, s46, s44")
        I("s_cmp_ge_u32 s46, 13")
        I("s_cselect_b32 s44, 13, 0")
        I("s_sub_u32 s46, s46, s44")
        I("s_lshl_b32 s46, s46, 10")
        I("s_add_u32 s46, s46, s45")
    else:
        I("s_mov_b32 s46, s45")
    I("s_mov_b32 s44, 0")
    I("v_and_b32 v1, 15, v0")
    I("v_bfe_u32 v2, v0, 4, 2")
    I("v_and_b32 v12, 63, v0")
    if "pf" in FLAGS:
        I("s_lshr_b32 s52, s2, 3")
        I("s_lshl_b32 s52, s52, 2")
        I("s_add_u32 s52, s52, s3")
        I("s_and_b32 s53, s2, 1")
        I("s_mul_i32 s53, s53, 1105920")
        I("s_mul_i32 s54, s52, 8640")
        I("s_add_u32 s53, s53, s54")
        I("v_lshlrev_b32 v240, 6, v12")
        I("buffer_load_dword v241, v240, s[8:11], s53 offen")
        I("s_add_u32 s53, s53, 4096")
        I("buffer_load_dword v242, v240, s[8:11], s53 offen")
        I("s_add_u32 s53, s53, 544")
        I("buffer_load_dword v243, v240, s[8:11], s53 offen")
        I("s_bfe_u32 s53, s2, 0x20001")
        I("s_mul_i32 s53, s53, 1769472")
        I("s_mul_i32 s54, s52, 13824")
        I("s_add_u32 s53, s53, s54")
        for i, inc in enumerate((4096, 4096, 1536, 0)):
            I(f"buffer_load_dword v{244+i}, v240, s[12:15], s53 offen")
            if inc: I(f"s_add_u32 s53, s53, {inc}")
    I("s_lshr_b32 s52, s36, 4")
    I("s_mul_i32 s52, s52, 55296")
    I("v_lshl_add_u32 v3, v12, 4, s52")
    for jd in range(1, 5):
        I(f"v_add_u32 v{3+jd}, {jd*55296}, v3")
    I("s_lshr_b32 s52, s37, 4")
    I("s_mul_i32 s52, s52, 55296")
    I("v_lshl_add_u32 v8, v12, 4, s52")
    for js in range(1, 4):
        I(f"v_add_u32 v{8+js}, {js*55296}, v8")
    def acc(jd, js): return (js*5 + jd)*4
    FRB = 16
    NB = 5
    def ld(buf):
        f = FRB + buf*36
        I("s_cmp_lt_u32 s44, s39")
        I("s_cselect_b32 s48, s46, 0x40000000")
        for jd in range(5):
            r = f + 4*jd
            I(f"buffer_load_dwordx4 v[{r}:{r+3}], v{3+jd}, s[8:11], s48 offen{CP}")
        for js in range(4):
            r = f + 20 + 4*js
            I(f"buffer_load_dwordx4 v[{r}:{r+3}], v{8+js}, s[12:15], s48 offen{CP}")
        I("s_add_u32 s46, s46, 1024")
        I("s_cmp_ge_u32 s46, s47")
        I("s_cselect_b32 s46, s45, s46")
        I("s_add_u32 s44, s44, 1")
    def mm(buf):
        f = FRB + buf*36
        for js in range(4):
            for jd in range(5):
                c = acc(jd, js)
                a = f + 4*jd; b = f + 20 + 4*js
                I(f"v_mfma_f32_16x16x32_bf16 a[{c}:{c+3}], v[{a}:{a+3}], v[{b}:{b+3}], a[{c}:{c+3}]")
    I("s_lshr_b32 s41, s3, 1")
    I("s_lshl_b32 s41, s41, 5")
    I("s_add_u32 s41, s41, s37")
    I("s_lshl_b32 s41, s41, 1")
    I("v_add_u32 v14, s36, v1")
    I("v_lshlrev_b32 v14, 12, v14")
    I("v_lshl_add_u32 v14, v2, 4, v14")
    I("v_add_u32 v14, s41, v14")
    YF = 196
    for jd in range(5):
        I(f"v_add_u32 v15, {jd*16*4096}, v14")
        I(f"buffer_load_dwordx4 v[{YF+4*jd}:{YF+4*jd+3}], v15, s[16:19], 0 offen")
    I("s_lshl_b32 s42, s3, 4")
    I("s_add_u32 s42, s42, s37")
    I("v_add_u32 v15, s42, v1")
    I("v_mul_u32_u24 v15, 0x500, v15")
    I("v_lshl_add_u32 v15, v2, 3, v15")
    I("s_lshl_b32 s43, s36, 1")
    I("v_add_u32 v15, s43, v15")
    XX = 216
    I("s_lshr_b32 s50, s42, 4")
    I("s_mul_i32 s50, s50, 20480")
    I("v_lshrrev_b32 v14, 1, v2")
    I("v_lshlrev_b32 v14, 8, v14")
    I("v_lshl_add_u32 v14, v1, 4, v14")
    I("v_and_b32 v13, 1, v2")
    I("v_lshl_add_u32 v14, v13, 3, v14")
    I("v_add_u32 v14, s50, v14")
    for jd in range(5):
        I(f"buffer_load_dwordx2 v[{XX+2*jd}:{XX+2*jd+1}], v15, s[24:27], 0 offen offset:{32*jd}")
        I(f"s_add_u32 s50, s36, {16*jd}")
        I("s_lshr_b32 s51, s50, 5")
        I("s_lshl_b32 s51, s51, 10")
        I("s_and_b32 s50, s50, 16")
        I("s_lshl_b32 s50, s50, 5")
        I("s_add_u32 s51, s51, s50")
        I(f"buffer_load_dwordx2 v[{XX+10+2*jd}:{XX+11+2*jd}], v14, s[20:23], s51 offen")
    def ld2(buf):
        f = FRB + buf*36
        for jd in range(5):
            r = f + 4*jd
            I(f"buffer_load_dwordx4 v[{r}:{r+3}], v{3+jd}, s[8:11], s46 offen{CP}")
        for js in range(4):
            r = f + 20 + 4*js
            I(f"buffer_load_dwordx4 v[{r}:{r+3}], v{8+js}, s[12:15], s46 offen{CP}")
        I("s_add_u32 s46, s46, 1024")
    for b in range(NB-1):
        ld2(b)
    for j in range(80):
        I(f"v_accvgpr_write_b32 a{j}, 0")
    stamp()
    for k in range(14):
        nb = k + NB - 1
        if nb <= 12:
            ld2(nb % NB)
        elif nb == 13:
            I("s_cmp_ge_u32 s3, 2")
            I("s_cbranch_scc1 F_skip13")
            ld2(nb % NB)
            e("F_skip13:")
        if k == 13:
            I("s_cmp_ge_u32 s3, 2")
            I("s_cbranch_scc1 F_done")
        rem = max(0, min(12, nb) - k)
        if k < 13: I(f"s_waitcnt vmcnt({9*rem})")
        mm(k % NB)
    e("F_done:")
    stamp()
    I("s_mul_i32 s40, s3, 20480")
    I("v_lshlrev_b32 v13, 4, v12")
    I("v_add_u32 v13, s40, v13")
    I("s_nop 7")
    for js in range(4):
        for jd in range(5):
            c = acc(jd, js)
            I(f"ds_write_b128 v13, a[{c}:{c+3}] offset:{(js*5+jd)*1024}")
    I("s_waitcnt lgkmcnt(0)")
    I("s_barrier")
    I("s_mul_i32 s40, s3, 5120")
    I("v_lshlrev_b32 v12, 4, v12")
    I("v_add_u32 v13, s40, v12")
    I("v_add_u32 v12, 40960, v13")
    R = 96
    for src in range(4):
        for jd in range(5):
            r = R + (src*5 + jd)*4
            I(f"ds_read_b128 v[{r}:{r+3}], v{13 if src < 2 else 12} offset:{(src%2)*20480 + jd*1024}")
    IDB = 60
    I("s_and_b32 s44, s3, 1")
    I("s_lshl_b32 s44, s44, 4")
    I("v_add_u32 v64, s44, v1")
    I("v_lshrrev_b32 v65, 3, v64")
    I("v_cmp_eq_u32 vcc, v65, v2")
    I("v_and_b32 v65, 7, v64")
    I("v_and_b32 v66, 1, v65")
    I("v_lshlrev_b32 v66, 4, v66")
    I("v_mov_b32 v67, 0x3f80")
    I("v_lshlrev_b32 v67, v66, v67")
    I("v_lshrrev_b32 v65, 1, v65")
    I("v_cndmask_b32 v67, 0, v67, vcc")
    for j in range(4):
        I(f"v_cmp_eq_u32 vcc, {j}, v65")
        I("s_nop 1")
        I(f"v_cndmask_b32 v{IDB+j}, 0, v67, vcc")
    TY = 64
    I("s_nop 1")
    for jd in range(5):
        I(f"v_mfma_f32_16x16x32_bf16 v[{TY+4*jd}:{TY+4*jd+3}], v[{YF+4*jd}:{YF+4*jd+3}], v[{IDB}:{IDB+3}], 0")
    I("s_waitcnt lgkmcnt(0)")
    for jd in range(5):
        r0 = R + jd*4
        for src in range(1, 4):
            r = R + (src*5 + jd)*4
            for j in range(4):
                I(f"v_add_f32 v{r0+j}, v{r0+j}, v{r+j}")
    I("s_waitcnt vmcnt(0)")
    for jd in range(5):
        b = R + jd*4
        ty = TY + 4*jd
        t = 180 + (jd % 2)*16
        x0 = XX + 2*jd; n0 = XX + 10 + 2*jd
        lo16(t, n0); hi16(t+1, n0); lo16(t+2, n0+1); hi16(t+3, n0+1)
        for r in range(4):
            I(f"v_mul_f32 v{t+r}, v{t+r}, v{ty+r}")
        I(f"v_cvt_pk_bf16_f32 v{t+4}, v{t}, v{t+1}")
        I(f"v_cvt_pk_bf16_f32 v{t+5}, v{t+2}, v{t+3}")
        lo16(t, t+4); hi16(t+1, t+4); lo16(t+2, t+5); hi16(t+3, t+5)
        lo16(t+6, x0); hi16(t+7, x0); lo16(t+8, x0+1); hi16(t+9, x0+1)
        for r in range(4):
            I(f"v_add_f32 v{t+r}, v{t+r}, v{t+6+r}")
        I(f"v_cvt_pk_bf16_f32 v{t+4}, v{t}, v{t+1}")
        I(f"v_cvt_pk_bf16_f32 v{t+5}, v{t+2}, v{t+3}")
        lo16(t, t+4); hi16(t+1, t+4); lo16(t+2, t+5); hi16(t+3, t+5)
        I(f"v_cvt_pk_bf16_f32 v{t+4}, v{b}, v{b+1}")
        I(f"v_cvt_pk_bf16_f32 v{t+5}, v{b+2}, v{b+3}")
        lo16(t+6, t+4); hi16(t+7, t+4); lo16(t+8, t+5); hi16(t+9, t+5)
        for r in range(4):
            I(f"v_add_f32 v{t+r}, v{t+r}, v{t+6+r}")
        I(f"v_cvt_pk_bf16_f32 v{t+10}, v{t}, v{t+1}")
        I(f"v_cvt_pk_bf16_f32 v{t+11}, v{t+2}, v{t+3}")
        I(f"buffer_store_dwordx2 v[{t+10}:{t+11}], v15, s[32:35], 0 offen offset:{32*jd}")
    I("s_waitcnt vmcnt(0)")
    stamp()
    stamp_dump(9)
    e("F_exit:")
    I("s_endpgm")
    kernel_desc("fin_kernel", 256+80, 80, accum=256)

def main():
    hdr = open("parallel_sum__ssm_conv_h3__glu_gated_bilinear__prompt.s.ref").read().splitlines()
    for line in hdr:
        if line.startswith("; @launch"):
            break
        if line.startswith(";"):
            e(line)
    e(f"; @launch kernel=prep_kernel grid=({N_LN+N_KV+N_PF},1,1) block=(256,1,1) lds=0")
    e(f"; @launch kernel=mid_kernel grid=({N_G1+N_CV},1,1) block=(256,1,1) lds={LDS2}")
    e(f"; @launch kernel=fin_kernel grid=(256,1,1) block=(256,1,1) lds=81920")
    e('.amdgcn_target "amdgcn-amd-amdhsa--gfx950"')
    gen_prep()
    gen_k2()
    gen_k3()
    dst = sys.argv[1] if len(sys.argv) > 1 else "parallel_sum__ssm_conv_h3__glu_gated_bilinear__prompt.s"
    open(dst, "w").write("\n".join(out) + "\n")

main()
```

```python
import sys

import os
FLAGS = os.environ.get("GENFLAGS", "").split(",")
CP = " nt" if "cpnt" in FLAGS else (" sc1" if "cpsc1" in FLAGS else (" sc0 sc1" if "cpsc01" in FLAGS else ""))
S, D, F = 2048, 640, 1728
WS_XN  = 0x0
WS_KVR = 0x280000
WS_WDT = 0x500000
WS_H   = 0x800000
WS_YT  = 0x1000000
SZ_SD = S * D * 2
SZ_W  = D * F * 2
SZ_H  = S * F * 2

out = []
def e(s=""):
    out.append(s)
SP = " nt" if "stnt" in FLAGS else (" sc0 sc1" if "stsc" in FLAGS else (" sc1" if "stsc1" in FLAGS else (" sc0 sc1 nt" if "stall" in FLAGS else "")))
def I(s):
    if s.startswith("buffer_store") and "s[56:59]" not in s: s += SP
    out.append("    " + s)

def srd(base, ptr, size, off=0):
    if off:
        I(f"s_add_u32 s{base}, s{ptr}, {off:#x}")
        I(f"s_addc_u32 s{base+1}, s{ptr+1}, 0")
    else:
        I(f"s_mov_b32 s{base}, s{ptr}")
        I(f"s_mov_b32 s{base+1}, s{ptr+1}")
    I(f"s_mov_b32 s{base+2}, {size:#x}")
    I(f"s_mov_b32 s{base+3}, 0x00020000")

def lo16(dst, src): I(f"v_lshlrev_b32 v{dst}, 16, v{src}")
def hi16(dst, src): I(f"v_and_b32 v{dst}, 0xffff0000, v{src}")

STAMP = "stamp" in FLAGS
nst = [0]
def stamp():
    if STAMP:
        i = nst[0]; nst[0] += 1
        I(f"s_memtime s[{60+2*i}:{61+2*i}]")
def stamp_dump(wg):
    if not STAMP: return
    n = nst[0]; nst[0] = 0
    I("s_waitcnt lgkmcnt(0) vmcnt(0)")
    I(f"s_cmp_lg_u32 s2, {wg}")
    I(f"s_cbranch_scc1 SD_skip{wg}")
    I("s_cmp_lg_u32 s3, 0")
    I(f"s_cbranch_scc1 SD_skip{wg}")
    I("s_load_dwordx2 s[56:57], s[0:1], 88")
    I("s_waitcnt lgkmcnt(0)")
    I("s_mov_b32 s58, 256")
    I("s_mov_b32 s59, 0x00020000")
    I("v_mov_b32 v1, 0")
    for i in range(n):
        I(f"s_sub_u32 s{61+2*i}, s{60+2*i}, s60")
        I(f"v_mov_b32 v2, s{61+2*i}")
        I(f"buffer_store_dword v2, v1, s[56:59], 0 offen offset:{4*i}")
    I("s_waitcnt vmcnt(0)")
    e(f"SD_skip{wg}:")

def kernel_header(name):
    e(".text")
    e(f".globl {name}")
    e(".p2align 8")
    e(f".type {name},@function")
    e(f"{name}:")

def kernel_desc(name, vgpr, sgpr, accum=None):
    if accum is None:
        accum = (vgpr + 3) // 4 * 4
    e('.section .rodata,"a"')
    e(".p2align 6")
    e(f".amdhsa_kernel {name}")
    e(f"  .amdhsa_next_free_vgpr {vgpr}")
    e(f"  .amdhsa_next_free_sgpr {sgpr}")
    e(f"  .amdhsa_accum_offset {accum}")
    e("  .amdhsa_group_segment_fixed_size 0")
    e("  .amdhsa_kernarg_size 104")
    e("  .amdhsa_user_sgpr_count 2")
    e("  .amdhsa_user_sgpr_kernarg_segment_ptr 1")
    e("  .amdhsa_system_sgpr_workgroup_id_x 1")
    e(".end_amdhsa_kernel")

N_LN, N_KV = 128, 160
N_PF = 0
if "pfw" in FLAGS: N_PF = 4*36
if "pfw2" in FLAGS: N_PF = 2*36
def gen_prep():
    kernel_header("prep_kernel")
    I(f"s_cmp_ge_u32 s2, {N_LN+N_KV+N_PF}")
    I("s_cbranch_scc1 P_exit")
    if N_PF:
        I(f"s_cmp_ge_u32 s2, {N_LN+N_KV}")
        I("s_cbranch_scc1 P_pf")
    I("s_load_dwordx2 s[6:7], s[0:1], 96")
    I(f"s_cmp_lt_u32 s2, {N_KV}")
    I("s_cbranch_scc1 P_kv")
    if "noln" in FLAGS: I("s_endpgm")
    I("s_load_dwordx2 s[4:5], s[0:1], 0")
    I("v_lshrrev_b32 v1, 4, v0")
    I(f"s_sub_u32 s3, s2, {N_KV}")
    I("s_lshl_b32 s3, s3, 4")
    I("v_add_u32 v1, s3, v1")
    I("v_mul_u32_u24 v2, 0x500, v1")
    I("v_and_b32 v3, 15, v0")
    I("v_lshl_add_u32 v2, v3, 4, v2")
    I("s_waitcnt lgkmcnt(0)")
    srd(8, 4, SZ_SD)
    srd(12, 6, SZ_SD, WS_XN)
    for j in range(5):
        I(f"buffer_load_dwordx4 v[{4+4*j}:{7+4*j}], v2, s[8:11], 0 offen offset:{256*j}")
    I("v_lshrrev_b32 v2, 4, v1")
    I("v_mul_u32_u24 v2, 20480, v2")
    I("v_lshrrev_b32 v64, 2, v3")
    I("v_lshl_add_u32 v2, v64, 10, v2")
    I("v_and_b32 v64, 3, v3")
    I("v_lshl_add_u32 v2, v64, 8, v2")
    I("v_and_b32 v64, 15, v1")
    I("v_lshl_add_u32 v2, v64, 4, v2")
    I("s_waitcnt vmcnt(0)")
    X = 24
    for j in range(20):
        lo16(X + 2*j, 4 + j)
        hi16(X + 2*j + 1, 4 + j)
    T = 64
    for j in range(20):
        I(f"v_add_f32 v{T+j}, v{X+2*j}, v{X+2*j+1}")
    def tree(base, n):
        while n > 1:
            h = n // 2
            for j in range(h):
                I(f"v_add_f32 v{base+j}, v{base+j}, v{base+n-1-j}")
            n = n - h
    tree(T, 20)
    def dpp_reduce(r, tmp):
        for sh in (8, 4, 2, 1):
            I("s_nop 1")
            I(f"v_add_f32_dpp v{tmp}, v{r}, v{r} row_ror:{sh} row_mask:0xf bank_mask:0xf")
            I(f"v_mov_b32 v{r}, v{tmp}")
    dpp_reduce(T, T+1)
    I(f"v_mul_f32 v{T}, {1.0/640.0!r}, v{T}")
    for j in range(40):
        I(f"v_sub_f32 v{T+2+j}, v{X+j}, v{T}")
    for j in range(40):
        I(f"v_mul_f32 v{T+2+j}, v{T+2+j}, v{T+2+j}")
    tree(T+2, 40)
    dpp_reduce(T+2, T+1)
    I(f"v_mul_f32 v{T+2}, {1.0/640.0!r}, v{T+2}")
    I(f"v_cvt_pk_bf16_f32 v{T}, v{T}, v{T+2}")
    hi16(T+2, T)
    lo16(T, T)
    I(f"v_add_f32 v{T+2}, {1e-5!r}, v{T+2}")
    I(f"v_cvt_pk_bf16_f32 v{T+2}, v{T+2}, v{T+2}")
    lo16(T+2, T+2)
    I(f"v_sqrt_f32 v{T+2}, v{T+2}")
    I("s_nop 0")
    I(f"v_cvt_pk_bf16_f32 v{T+2}, v{T+2}, v{T+2}")
    lo16(T+2, T+2)
    I(f"v_rcp_f32 v{T+3}, v{T+2}")
    I("s_nop 0")
    for j in range(20):
        a, b = X + 2*j, X + 2*j + 1
        I(f"v_sub_f32 v{a}, v{a}, v{T}")
        I(f"v_sub_f32 v{b}, v{b}, v{T}")
        I(f"v_cvt_pk_bf16_f32 v{T+4}, v{a}, v{b}")
        lo16(a, T+4)
        hi16(b, T+4)
        for r in (a, b):
            I(f"v_mul_f32 v{T+5}, v{r}, v{T+3}")
            I(f"v_fma_f32 v{T+6}, -v{T+5}, v{T+2}, v{r}")
            I(f"v_fma_f32 v{r}, v{T+6}, v{T+3}, v{T+5}")
        I(f"v_cvt_pk_bf16_f32 v{4+j}, v{a}, v{b}")
        if j % 4 == 3:
            jj = j // 4
            I(f"s_mov_b32 s16, {4096*jj}")
            I(f"buffer_store_dwordx4 v[{4+4*jj}:{7+4*jj}], v2, s[12:15], s16 offen")
    I("s_endpgm")
    e("P_kv:")
    if "nokv" in FLAGS: I("s_endpgm")
    I("s_load_dwordx4 s[16:19], s[0:1], 8")
    I("s_load_dwordx2 s[4:5], s[0:1], 24")
    I("s_mul_i32 s28, s2, 0xCCCD")
    I("s_lshr_b32 s28, s28, 19")
    I("s_mul_i32 s29, s28, 10")
    I("s_sub_u32 s29, s2, s29")
    I("v_and_b32 v1, 7, v0")
    I("v_lshrrev_b32 v2, 3, v0")
    I("s_lshl_b32 s30, s29, 6")
    I("v_lshl_add_u32 v1, v1, 3, s30")
    I("s_lshl_b32 s31, s28, 7")
    I("v_lshl_add_u32 v2, v2, 2, s31")
    I("v_mul_u32_u24 v3, 0x500, v2")
    I("v_lshl_add_u32 v3, v1, 1, v3")
    for i in range(3):
        I(f"v_subrev_u32 v{5+i}, {(3-i)*1280:#x}, v3")
    I("v_lshlrev_b32 v8, 3, v1")
    I("s_waitcnt lgkmcnt(0)")
    srd(8, 16, SZ_SD)
    srd(12, 18, SZ_SD)
    srd(20, 4, D*4*2)
    srd(24, 6, SZ_SD, WS_KVR)
    KR = 16
    for i in range(3):
        I(f"buffer_load_dwordx4 v[{KR+4*i}:{KR+4*i+3}], v{5+i}, s[8:11], 0 offen")
    for i in range(4):
        I(f"buffer_load_dwordx4 v[{KR+4*(i+3)}:{KR+4*(i+3)+3}], v3, s[8:11], 0 offen offset:{i*1280}")
    VR = KR + 28
    for i in range(4):
        I(f"buffer_load_dwordx4 v[{VR+4*i}:{VR+4*i+3}], v3, s[12:15], 0 offen offset:{i*1280}")
    SK = VR + 16
    for i in range(4):
        I(f"buffer_load_dwordx4 v[{SK+4*i}:{SK+4*i+3}], v8, s[20:23], 0 offen offset:{16*i}")
    I("v_lshlrev_b32 v9, 12, v1")
    I(f"v_sub_u32 v10, {S-4}, v2")
    I("v_lshl_add_u32 v9, v10, 1, v9")
    I("s_waitcnt vmcnt(0)")
    KF = 76
    VF = 83
    SF = 87
    TM = 92
    OB = 104
    for dd in range(8):
        ex = lo16 if dd % 2 == 0 else hi16
        for i in range(7):
            ex(KF + i, KR + 4*i + dd//2)
        for i in range(4):
            ex(VF + i, VR + 4*i + dd//2)
        lo16(SF+0, SK + 2*dd); hi16(SF+1, SK + 2*dd)
        lo16(SF+2, SK + 2*dd + 1); hi16(SF+3, SK + 2*dd + 1)
        ob = OB + 2*(dd % 4)
        for q in range(2):
            sa, sb = 3 - 2*q, 2 - 2*q
            t = TM
            I(f"v_mul_f32 v{t}, v{KF+sa}, v{SF+3}")
            I(f"v_mul_f32 v{t+1}, v{KF+sb}, v{SF+3}")
            I(f"v_mul_f32 v{t+2}, v{KF+sa+1}, v{SF+2}")
            I(f"v_mul_f32 v{t+3}, v{KF+sb+1}, v{SF+2}")
            I(f"v_mul_f32 v{t+4}, v{KF+sa+2}, v{SF+1}")
            I(f"v_mul_f32 v{t+5}, v{KF+sb+2}, v{SF+1}")
            I(f"v_mul_f32 v{t+6}, v{KF+sa+3}, v{SF+0}")
            I(f"v_mul_f32 v{t+7}, v{KF+sb+3}, v{SF+0}")
            for p in range(4):
                I(f"v_cvt_pk_bf16_f32 v{t+8+p}, v{t+2*p}, v{t+2*p+1}")
            for p in range(4):
                lo16(t+2*p, t+8+p); hi16(t+2*p+1, t+8+p)
            for step in (1, 2, 3):
                I(f"v_add_f32 v{t}, v{t}, v{t+2*step}")
                I(f"v_add_f32 v{t+1}, v{t+1}, v{t+2*step+1}")
                I(f"v_cvt_pk_bf16_f32 v{t+8}, v{t}, v{t+1}")
                lo16(t, t+8); hi16(t+1, t+8)
            I(f"v_mul_f32 v{t}, v{t}, v{VF+sa}")
            I(f"v_mul_f32 v{t+1}, v{t+1}, v{VF+sb}")
            I(f"v_cvt_pk_bf16_f32 v{ob+q}, v{t}, v{t+1}")
        I(f"s_mov_b32 s16, {4096*dd}")
        I(f"buffer_store_dwordx2 v[{ob}:{ob+1}], v9, s[24:27], s16 offen")
    if N_PF:
        I("s_endpgm")
        e("P_pf:")
        I(f"s_sub_u32 s3, s2, {N_LN+N_KV}")
        I("s_mul_i32 s4, s3, 1821")
        I("s_lshr_b32 s4, s4, 16")
        I("s_mul_i32 s5, s4, 36")
        I("s_sub_u32 s5, s3, s5")
        I("s_lshl_b32 s6, s4, 3")
        I("s_add_u32 s6, s6, 56")
        I("s_cmp_eq_u32 s4, 3")
        I("s_cselect_b32 s6, 32, s6")
        I("s_load_dwordx2 s[8:9], s[0:1], s6")
        I(f"s_mov_b32 s10, {SZ_W}")
        I(f"s_cselect_b32 s10, {SZ_SD}, s10")
        I("s_mov_b32 s11, 0x00020000")
        I("s_mov_b32 s7, 65536")
        I("s_cselect_b32 s7, 73728, s7")
        I("s_mul_i32 s5, s5, s7")
        I("v_lshlrev_b32 v1, 4, v0")
        I("s_waitcnt lgkmcnt(0)")
        for i in range(18):
            I(f"buffer_load_dwordx4 v[{4+4*i}:{7+4*i}], v1, s[8:11], s5 offen")
            I("s_add_u32 s5, s5, 4096")
        I("s_waitcnt vmcnt(0)")
    e("P_exit:")
    I("s_endpgm")
    kernel_desc("prep_kernel", 112, 40)

BF = 112
NSLOT = 5
SLOT = 16384
LDS2 = NSLOT * SLOT
N_G1, N_CV = 256, 256

class DSQ:
    def __init__(self): self.q = []
    def push(self, tag): self.q.append(tag)
    def wait_for(self, tag):
        idx = max(i for i, t in enumerate(self.q) if t == tag)
        n = len(self.q) - 1 - idx
        I(f"s_waitcnt lgkmcnt({min(n,15)})")
        self.q = self.q[idx+1:] if n <= 15 else self.q[len(self.q)-15:]

BIG = "big" in FLAGS
def gen_g1big():
    NF = 10; RS = 320; MS = 32*RS; SL = 2*MS; NS = 8; DB = 3; LA = 3; NST = 20
    for f_ in FLAGS:
        if f_.startswith("ns"): NS = int(f_[2:])
    DW = NS - 1
    stamp()
    I("s_load_dwordx4 s[16:19], s[0:1], 56")
    I(f"s_mul_i32 s25, s25, {16*NF}")
    I(f"s_min_u32 s25, s25, {F-16*NF}")
    I("v_and_b32 v1, 63, v0")
    PROD = "prod" in FLAGS
    if PROD:
        I("s_cmp_lt_u32 s3, 4")
        I("s_cbranch_scc1 G1_cons")
        DWP = 6
        I("s_lshl_b32 s27, s25, 1")
        for i in range(10):
            I(f"v_add_u32 v20, {64*i}, v1")
            I("v_mul_u32_u24 v21, 3277, v20")
            I("v_lshrrev_b32 v21, 16, v21")
            I("v_mul_u32_u24 v22, 20, v21")
            I("v_sub_u32 v22, v20, v22")
            I("v_bfe_u32 v23, v21, 3, 1")
            I("v_lshlrev_b32 v23, 1, v23")
            I("v_xor_b32 v22, v22, v23")
            I("v_mul_u32_u24 v21, 3456, v21")
            I("v_lshl_add_u32 v21, v22, 4, v21")
            I("v_add_u32 v21, s27, v21")
            I(f"v_subrev_u32 v{2+i}, {1024*(i%4)}, v21")
        I("s_sub_u32 s29, s3, 4")
        I(f"s_mul_i32 s29, s29, {MS}")
        I("s_waitcnt lgkmcnt(0)")
        I("s_cmp_ge_u32 s3, 5")
        I("s_cselect_b32 s4, s18, s16")
        I("s_cselect_b32 s5, s19, s17")
        srd(8, 4, SZ_W)
        pq = []
        def pdma(st):
            I(f"s_mov_b32 s28, {st*32*3456}")
            for i in range(10):
                if i % 4 == 0: I(f"s_add_u32 m0, s29, {(st % NS)*SL + (i//4)*4096}")
                I(f"buffer_load_dwordx4 v{2+i}, s[8:11], s28 offen offset:{1024*(i%4)} lds")
                pq.append(st)
        def pwait(st):
            idx = max(i for i, t in enumerate(pq) if t == st)
            I(f"s_waitcnt vmcnt({len(pq)-1-idx})")
            del pq[:idx+1]
        for st in range(DWP): pdma(st)
        pwait(0)
        I("s_barrier")
        for st in range(NST-1):
            pwait(st+1)
            I("s_barrier")
            if st + DWP < NST: pdma(st + DWP)
        I("s_endpgm")
        e("G1_cons:")
    I("s_and_b32 s26, s3, 1")
    I("s_lshl_b32 s26, s26, 4")
    I("s_lshl_b32 s27, s25, 1")
    for i in range(5 if not PROD else 0):
        I(f"v_add_u32 v10, {64*i}, v1")
        I("v_mul_u32_u24 v11, 3277, v10")
        I("v_lshrrev_b32 v11, 16, v11")
        I("v_mul_u32_u24 v12, 20, v11")
        I("v_sub_u32 v12, v10, v12")
        I("v_add_u32 v11, s26, v11")
        I("v_bfe_u32 v13, v11, 3, 1")
        I("v_lshlrev_b32 v13, 1, v13")
        I("v_xor_b32 v12, v12, v13")
        I("v_mul_u32_u24 v11, 3456, v11")
        I("v_lshl_add_u32 v11, v12, 4, v11")
        I("v_add_u32 v11, s27, v11")
        I(f"v_subrev_u32 v{2+i}, {1024*(i%4)}, v11")
    I("s_lshl_b32 s26, s24, 3")
    I("s_lshl_b32 s27, s3, 1")
    I("s_add_u32 s26, s26, s27")
    I("s_mul_i32 s27, s26, 20480")
    I("v_lshl_add_u32 v7, v1, 4, s27")
    I("v_add_u32 v8, 20480, v7")
    I("s_mul_i32 s27, s26, 55296")
    I("v_lshl_add_u32 v9, v1, 4, s27")
    I("v_add_u32 v10, 55296, v9")
    I("v_bfe_u32 v17, v0, 4, 2")
    I("v_bfe_u32 v18, v0, 2, 2")
    I("v_lshl_add_u32 v19, v17, 3, v18")
    I(f"v_mul_u32_u24 v19, {RS}, v19")
    I("v_and_b32 v18, 3, v0")
    I("v_lshl_add_u32 v19, v18, 3, v19")
    I("v_and_b32 v20, 1, v17")
    I("v_lshlrev_b32 v20, 5, v20")
    I("v_add_u32 v11, v19, v20")
    I("v_sub_u32 v12, v19, v20")
    ROLL = "roll" in FLAGS
    if ROLL:
        for k_, offs in ((1, 3*SL), (2, 4*SL), (3, 7*SL)):
            I(f"v_add_u32 v{11+2*k_}, {offs}, v11")
            I(f"v_add_u32 v{12+2*k_}, {offs}, v12")
    else:
        for rg in (1, 2):
            I(f"v_add_u32 v{11+2*rg}, {rg*3*SL}, v11")
            I(f"v_add_u32 v{12+2*rg}, {rg*3*SL}, v12")
    I("s_mul_i32 s29, s3, 5120")
    I("s_waitcnt lgkmcnt(0)")
    I("s_cmp_ge_u32 s3, 2")
    I("s_cselect_b32 s4, s18, s16")
    I("s_cselect_b32 s5, s19, s17")
    srd(8, 4, SZ_W)
    srd(12, 6, SZ_SD, WS_XN)
    srd(20, 6, SZ_H, WS_H)
    BB = 24; AF = 56; ACC = 80
    def acc(m, jf, js): return ACC + ((m*NF + jf)*2 + js)*4
    vq = []
    def vwait(tags):
        if not any(t in tags for t in vq): return
        idx = max(i for i, t in enumerate(vq) if t in tags)
        n = len(vq) - 1 - idx
        I(f"s_waitcnt vmcnt({n})")
        del vq[:idx+1]
    def dma(st):
        if PROD: return
        I(f"s_add_u32 m0, s29, {(st % NS)*SL}")
        I(f"s_mov_b32 s28, {st*32*3456}")
        for i in range(5):
            if i == 4: I(f"s_add_u32 m0, s29, {(st % NS)*SL + 4096}")
            I(f"buffer_load_dwordx4 v{2+i}, s[8:11], s28 offen offset:{1024*(i%4)} lds")
            vq.append(("D", st))
    def bld(st):
        I(f"s_mov_b32 s31, {st*1024}")
        for js in range(2):
            r = BB + (st % (DB+1))*8 + js*4
            I(f"buffer_load_dwordx4 v[{r}:{r+3}], v{7+js}, s[12:15], s31 offen")
            vq.append(("B", st))
    seq = [(m, jf) for m in range(2) for jf in range(NF)]
    NQ = len(seq)
    def rdx(gpos):
        st, idx = divmod(gpos, NQ)
        m, jf = seq[idx]
        slot = st % NS
        a = AF + (gpos % 4)*4
        va = 11 + 2*(slot // 3) + (jf & 1)
        off = (slot % 3)*SL + m*MS + jf*32
        return [f"ds_read_b64_tr_b16 v[{a}:{a+1}], v{va} offset:{off}",
                f"ds_read_b64_tr_b16 v[{a+2}:{a+3}], v{va} offset:{off+4*RS}"]
    for st in range(DW):
        dma(st)
        if ROLL:
            if st >= DW - DB: bld(st - (DW - DB))
        elif st < DB: bld(st)
    for j in range(4*2*2*NF):
        I(f"v_mov_b32 v{ACC+j}, 0")
    stamp()
    vwait([("D", 0)])
    I("s_barrier")
    for i in range(LA):
        for x in rdx(i): I(x)
    if ROLL:
        assert NS == 8
        I("s_mov_b32 s33, 0")
        I("s_mov_b32 s36, s29")
        I(f"s_add_u32 s37, s29, {4*SL}")
        I(f"s_mov_b32 s28, {DW*32*3456}")
        I(f"s_mov_b32 s31, {DB*1024}")
        def rdr(p, idx, ring):
            m, jf = seq[idx]
            a = AF + (ring % 4)*4
            if p < 3: va = 11 + (jf & 1); off = p*SL
            elif p == 3: va = 13 + (jf & 1); off = 0
            else: va = 15 + (jf & 1); off = 0
            off += m*MS + jf*32
            return [f"ds_read_b64_tr_b16 v[{a}:{a+1}], v{va} offset:{off}",
                    f"ds_read_b64_tr_b16 v[{a+2}:{a+3}], v{va} offset:{off+4*RS}"]
        e("G1_loop:")
        for p_ in range(4):
            I("s_waitcnt vmcnt(14)")
            I(f"s_cmp_lt_u32 s33, {4 if p_ < 2 else 3}")
            I(f"s_cbranch_scc1 G1_w{p_}")
            I("s_waitcnt vmcnt(2)")
            if p_ >= 2:
                I("s_cmp_lt_u32 s33, 4")
                I(f"s_cbranch_scc1 G1_w{p_}")
                I("s_waitcnt vmcnt(0)")
            e(f"G1_w{p_}:")
            I("s_barrier")
            I(f"s_cmp_ge_u32 s33, {4 if p_ == 0 else 3}")
            I(f"s_cbranch_scc1 G1_d{p_}")
            base, offs = ("s37", 3*SL) if p_ == 0 else ("s36", (p_-1)*SL)
            I(f"s_add_u32 m0, {base}, {offs}")
            for i in range(5):
                if i == 4: I(f"s_add_u32 m0, {base}, {offs + 4096}")
                I(f"buffer_load_dwordx4 v{2+i}, s[8:11], s28 offen offset:{1024*(i%4)} lds")
            I(f"s_add_u32 s28, s28, {32*3456}")
            e(f"G1_d{p_}:")
            if p_ > 0:
                I("s_cmp_ge_u32 s33, 4")
                I(f"s_cbranch_scc1 G1_b{p_}")
            for js in range(2):
                r = BB + ((p_ + DB) % 4)*8 + js*4
                I(f"buffer_load_dwordx4 v[{r}:{r+3}], v{7+js}, s[12:15], s31 offen")
            I("s_add_u32 s31, s31, 1024")
            if p_ > 0: e(f"G1_b{p_}:")
            for idx in range(NQ):
                if idx + LA < NQ: rr = rdr(p_, idx + LA, idx + LA)
                else: rr = rdr(p_ + 1, idx + LA - NQ, idx + LA)
                I(f"s_waitcnt lgkmcnt({2*LA-2})")
                m, jf = seq[idx]
                a = AF + (idx % 4)*4
                for js in range(2):
                    c = acc(m, jf, js); b = BB + p_*8 + js*4
                    I(f"v_mfma_f32_16x16x32_bf16 v[{c}:{c+3}], v[{a}:{a+3}], v[{b}:{b+3}], v[{c}:{c+3}]")
                    I(rr[js])
        for k_ in range(4):
            I(f"v_swap_b32 v{11+k_}, v{15+k_}")
        I("s_mov_b32 s38, s36")
        I("s_mov_b32 s36, s37")
        I("s_mov_b32 s37, s38")
        I("s_add_u32 s33, s33, 1")
        I("s_cmp_lt_u32 s33, 5")
        I("s_cbranch_scc1 G1_loop")
        I("s_waitcnt lgkmcnt(0)")
    for st in range(NST if not ROLL else 0):
        if st + 1 < NST:
            vwait([("D", st+1), ("B", st)])
            I("s_barrier")
        else:
            vwait([("B", st)])
        if st + DW < NST and "g1nodma" not in FLAGS: dma(st + DW)
        if st + DB < NST and "g1nob" not in FLAGS: bld(st + DB)
        for idx in range(NQ if "g1nocomp" not in FLAGS else 0):
            gpos = st*NQ + idx
            rr = rdx(gpos + LA) if gpos + LA < NST*NQ else None
            I(f"s_waitcnt lgkmcnt({2*min(LA-1, NST*NQ-1-gpos)})")
            m, jf = seq[idx]
            a = AF + (gpos % 4)*4
            for js in range(2):
                c = acc(m, jf, js); b = BB + (st % (DB+1))*8 + js*4
                I(f"v_mfma_f32_16x16x32_bf16 v[{c}:{c+3}], v[{a}:{a+3}], v[{b}:{b+3}], v[{c}:{c+3}]")
                if rr: I(rr[js])
    stamp()
    I("s_lshr_b32 s34, s25, 5")
    I("s_lshl_b32 s34, s34, 10")
    I("s_add_u32 s35, s34, 4096")
    I("s_nop 7")
    I("s_nop 3")
    for js in range(2):
        for jp in range(NF//2):
            t = 24 + ((js*5 + jp) % 4) * 12
            for hh in range(2):
                jf = 2*jp + hh
                g = acc(0, jf, js); u = acc(1, jf, js)
                I(f"v_cvt_pk_bf16_f32 v{t}, v{g}, v{g+1}")
                I(f"v_cvt_pk_bf16_f32 v{t+1}, v{g+2}, v{g+3}")
                I(f"v_cvt_pk_bf16_f32 v{t+2}, v{u}, v{u+1}")
                I(f"v_cvt_pk_bf16_f32 v{t+3}, v{u+2}, v{u+3}")
                lo16(g, t); hi16(g+1, t); lo16(g+2, t+1); hi16(g+3, t+1)
                lo16(u, t+2); hi16(u+1, t+2); lo16(u+2, t+3); hi16(u+3, t+3)
                for r in range(4):
                    I(f"v_mul_f32 v{g+r}, v{g+r}, v{u+r}")
                I(f"v_cvt_pk_bf16_f32 v{t+4+2*hh}, v{g}, v{g+1}")
                I(f"v_cvt_pk_bf16_f32 v{t+5+2*hh}, v{g+2}, v{g+3}")
            if jp < 4:
                I(f"buffer_store_dwordx4 v[{t+4}:{t+7}], v{9+js}, s[20:23], s34 offen offset:{1024*jp}")
            else:
                I(f"buffer_store_dwordx4 v[{t+4}:{t+7}], v{9+js}, s[20:23], s35 offen")
    if STAMP: I("s_waitcnt vmcnt(0)")
    stamp()
    stamp_dump(5)
    I("s_endpgm")

def gen_k2():
    kernel_header("mid_kernel")
    if BIG:
        I("s_cmp_ge_u32 s2, 256")
        I("s_cbranch_scc1 M_exit")
        I("s_load_dwordx2 s[6:7], s[0:1], 96")
        I("v_lshrrev_b32 v1, 6, v0")
        I("s_nop 0")
        I("v_readfirstlane_b32 s3, v1")
        I("s_lshr_b32 s40, s2, 3")
        I("s_bfe_u32 s41, s2, 0x10002")
        I("s_and_b32 s42, s2, 3")
        I("s_lshl_b32 s43, s41, 2")
        I("s_sub_u32 s43, 24, s43")
        I("s_cmp_ge_u32 s40, s43")
        I("s_cbranch_scc1 M_conv")
        if "nog1" in FLAGS: I("s_endpgm")
        I("s_mul_i32 s24, s42, s43")
        I("s_add_u32 s24, s24, s40")
        I("s_mul_i32 s25, s41, 96")
        I("s_add_u32 s24, s24, s25")
        W0 = 6 if "prod" in FLAGS else 4
        I(f"s_sub_u32 s25, s3, {W0}")
        I("s_mul_i32 s25, s25, 176")
        I("s_add_u32 s24, s24, s25")
        I(f"s_cmp_ge_u32 s3, {W0}")
        I("s_cbranch_scc1 M_wdt")
        I("s_lshl_b32 s24, s42, 2")
        I("s_and_b32 s25, s40, 3")
        I("s_add_u32 s24, s24, s25")
        I("s_mul_i32 s25, s41, 6")
        I("s_lshr_b32 s26, s40, 2")
        I("s_add_u32 s25, s25, s26")
        gen_g1big()
    else:
        gen_g1old()
    gen_aux()

def gen_g1old():
    I(f"s_cmp_ge_u32 s2, {N_G1+N_CV}")
    I("s_cbranch_scc1 M_exit")
    I("s_load_dwordx2 s[6:7], s[0:1], 96")
    I(f"s_cmp_ge_u32 s2, {N_G1}")
    I("s_cbranch_scc1 M_conv")
    if "nog1" in FLAGS: I("s_endpgm")
    stamp()
    if "prio" in FLAGS: I("s_setprio 3")
    I("s_load_dwordx4 s[16:19], s[0:1], 56")
    I("v_lshrrev_b32 v1, 6, v0")
    I("s_nop 0")
    I("v_readfirstlane_b32 s3, v1")
    I("s_waitcnt lgkmcnt(0)")
    if "stamp2" in FLAGS: stamp()
    I("s_cmp_ge_u32 s3, 2")
    I("s_cselect_b32 s4, s18, s16")
    I("s_cselect_b32 s5, s19, s17")
    srd(8, 4, SZ_W)
    srd(12, 6, SZ_SD, WS_XN)
    srd(20, 6, SZ_H, WS_H)
    if "g12d" in FLAGS:
        I("s_and_b32 s24, s2, 3")
        I("s_lshl_b32 s24, s24, 2")
        I("s_bfe_u32 s25, s2, 0x20003")
        I("s_add_u32 s24, s24, s25")
        I("s_bfe_u32 s25, s2, 0x10002")
        I("s_lshl_b32 s25, s25, 3")
        I("s_lshr_b32 s26, s2, 5")
        I("s_add_u32 s25, s25, s26")
    else:
        I("s_and_b32 s24, s2, 15")
        I("s_lshr_b32 s25, s2, 4")
    I(f"s_mul_i32 s25, s25, {BF}")
    I(f"s_min_u32 s25, s25, {F-BF}")
    I("v_and_b32 v1, 63, v0")
    if "pf" in FLAGS:
        I("s_lshr_b32 s26, s2, 3")
        I("s_lshl_b32 s27, s26, 1")
        I("s_and_b32 s28, s3, 1")
        I("s_add_u32 s27, s27, s28")
        I("s_mul_i32 s27, s27, 34560")
        I("s_bfe_u32 s28, s2, 0x10002")
        I("s_mul_i32 s28, s28, 1792")
        I("s_add_u32 s27, s27, s28")
        I("v_lshrrev_b32 v192, 5, v1")
        I("v_mul_u32_u24 v192, 3456, v192")
        I("v_and_b32 v193, 31, v1")
        I("v_lshl_add_u32 v192, v193, 6, v192")
        I("v_add_u32 v192, s27, v192")
        for i in range(5):
            I(f"s_mov_b32 s27, {i*6912}")
            I(f"buffer_load_dword v{194+i}, v192, s[8:11], s27 offen")
        I("s_and_b32 s27, s2, 3")
        I("s_mul_i32 s27, s27, 655360")
        I("s_lshl_b32 s28, s26, 2")
        I("s_add_u32 s28, s28, s3")
        I("s_mul_i32 s28, s28, 5120")
        I("s_add_u32 s27, s27, s28")
        I("v_lshlrev_b32 v193, 6, v1")
        I("buffer_load_dword v199, v193, s[12:15], s27 offen")
        I("buffer_load_dword v200, v193, s[12:15], s27 offen offset:1024")
    I("v_lshrrev_b32 v10, 4, v1")
    I("v_bfe_u32 v11, v1, 1, 3")
    I("v_and_b32 v12, 1, v1")
    I("s_and_b32 s26, s3, 1")
    I("s_lshl_b32 s26, s26, 4")
    I("s_lshl_b32 s27, s25, 1")
    for i in range(4):
        bit = (i >> 1) & 1
        I(f"v_or_b32 v13, {bit<<2}, v10")
        I("v_xor_b32 v13, v13, v11")
        I(f"v_add_u32 v14, {4*i}, v10")
        I("v_add_u32 v14, s26, v14")
        I("v_mul_u32_u24 v14, 3456, v14")
        I("v_lshl_add_u32 v14, v13, 5, v14")
        I("v_lshl_add_u32 v14, v12, 4, v14")
        I("v_add_u32 v14, s27, v14")
        I(f"v_subrev_u32 v14, {1024*i}, v14")
        I("v_cmp_eq_u32 vcc, 7, v13")
        I("v_mov_b32 v15, 0x40000000")
        I("s_nop 0")
        I(f"v_cndmask_b32 v{2+i}, v14, v15, vcc")
    I("v_bfe_u32 v17, v0, 4, 2")
    I("s_lshl_b32 s26, s24, 3")
    I("s_lshl_b32 s27, s3, 1")
    I("s_add_u32 s26, s26, s27")
    I("s_mul_i32 s27, s26, 20480")
    I("v_lshl_add_u32 v6, v1, 4, s27")
    I("v_add_u32 v7, 20480, v6")
    I("s_mul_i32 s27, s26, 55296")
    I("v_lshl_add_u32 v8, v1, 4, s27")
    I("v_add_u32 v9, 55296, v8")
    I("v_bfe_u32 v18, v0, 2, 2")
    I("v_lshl_add_u32 v19, v17, 3, v18")
    I("v_lshlrev_b32 v19, 8, v19")
    I("v_and_b32 v20, 1, v17")
    I("v_lshl_or_b32 v20, v20, 2, v18")
    I("v_lshl_add_u32 v19, v20, 5, v19")
    I("v_and_b32 v18, 3, v0")
    I("v_lshl_add_u32 v19, v18, 3, v19")
    VA = 10
    I("v_mov_b32 v24, v19")
    for jf in range(7):
        I(f"v_xor_b32 v{VA+jf}, {jf<<5}, v24")
        I(f"v_add_u32 v{VA+7+jf}, 0x10000, v{VA+jf}")
    I("s_lshl_b32 s29, s3, 12")
    BB = 24
    AF = 64
    ACC = 80
    def acc(m, jf, js): return ACC + ((m*7 + jf)*2 + js)*4
    def bfr(st, js): return BB + (st % NSLOT)*8 + js*4
    NST = 20
    def issue(slot):
        I(f"s_add_u32 s30, s29, {slot*SLOT}")
        I("s_mov_b32 m0, s30")
        for i in range(4):
            I(f"buffer_load_dwordx4 v{2+i}, s[8:11], s28 offen offset:{1024*i} lds")
        for js in range(2):
            r = BB + slot*8 + js*4
            I(f"buffer_load_dwordx4 v[{r}:{r+3}], v{6+js}, s[12:15], s31 offen")
        I("s_add_u32 s36, s36, 1")
        I("s_cmp_ge_u32 s36, 20")
        I("s_cselect_b32 s36, 0, s36")
        I("s_add_u32 s37, s37, 1")
        I(f"s_mul_i32 s28, s36, {32*3456}")
        I("s_lshl_b32 s31, s36, 10")
        I("s_cmp_ge_u32 s37, 20")
        I("s_cselect_b32 s28, 0x40000000, s28")
        I("s_cselect_b32 s31, 0x40000000, s31")
    if "rot" in FLAGS:
        I("s_and_b32 s36, s24, 3")
        I("s_mul_i32 s36, s36, 5")
        I("s_lshr_b32 s37, s2, 5")
        I("s_mul_i32 s37, s37, 3")
        I("s_add_u32 s36, s36, s37")
        I("s_cmp_ge_u32 s36, 20")
        I("s_cselect_b32 s37, 20, 0")
        I("s_sub_u32 s36, s36, s37")
    else:
        I("s_mov_b32 s36, 0")
    I("s_mov_b32 s37, 0")
    I(f"s_mul_i32 s28, s36, {32*3456}")
    I("s_lshl_b32 s31, s36, 10")
    if "stamp2" in FLAGS: stamp()
    for st in range(NSLOT - 1):
        issue(st)
    if "stamp2" in FLAGS: stamp()
    for j in range(112):
        I(f"v_mov_b32 v{ACC+j}, 0")
    I("s_mov_b32 s33, 0")
    stamp()
    def body(last):
      for slot in range(NSLOT):
        if not last or slot <= 1:
            I(f"s_waitcnt vmcnt({6*(NSLOT-2)})")
        else:
            I(f"s_waitcnt vmcnt({6*(NSLOT-1-slot)})")
        I("s_barrier")
        if not last or slot == 0:
            issue((slot + NSLOT - 1) % NSLOT)
        seq = [(m, jf) for m in range(2) for jf in range(7)]
        def rd(idx):
            m, jf = seq[idx]
            a = AF + (idx % 4)*4
            if slot < 4:
                va = VA + jf; off = slot*SLOT + m*8192
            else:
                va = VA + 7 + jf; off = m*8192
            I(f"ds_read_b64_tr_b16 v[{a}:{a+1}], v{va} offset:{off}")
            I(f"ds_read_b64_tr_b16 v[{a+2}:{a+3}], v{va} offset:{off+1024}")
        for i in range(3):
            rd(i)
        for idx in range(14):
            if idx + 3 < 14:
                rd(idx + 3)
                I("s_waitcnt lgkmcnt(6)")
            else:
                I(f"s_waitcnt lgkmcnt({2*(13-idx)})")
            m, jf = seq[idx]
            a = AF + (idx % 4)*4
            for js in range(2):
                c = acc(m, jf, js); b = BB + slot*8 + js*4
                I(f"v_mfma_f32_16x16x32_bf16 v[{c}:{c+3}], v[{a}:{a+3}], v[{b}:{b+3}], v[{c}:{c+3}]")
    XS = "xs" in FLAGS
    LA = 3
    for f in FLAGS:
        if f.startswith("la"): LA = int(f[2:])
    RING = [64,68,72,76,192,196,200] if LA > 3 else [64,68,72,76,192]
    seq = [(m, jf) for m in range(2) for jf in range(7)]
    ring = [0]
    def rdx(slot, idx, pos):
        m, jf = seq[idx]
        a = RING[pos % len(RING)]
        if slot < 4:
            va = VA + jf; off = slot*SLOT + m*8192
        else:
            va = VA + 7 + jf; off = m*8192
        return [f"ds_read_b64_tr_b16 v[{a}:{a+1}], v{va} offset:{off}",
                f"ds_read_b64_tr_b16 v[{a+2}:{a+3}], v{va} offset:{off+1024}"]
    def body_xs(last):
      for slot in range(NSLOT):
        fin_stage = last and slot == NSLOT-1
        if not fin_stage:
            if not last or slot <= 1:
                I("s_waitcnt vmcnt(12)")
            else:
                I(f"s_waitcnt vmcnt({6*(NSLOT-2-slot)})")
            if "g1nobar" not in FLAGS: I("s_barrier")
        if (not last or slot == 0) and "g1noload" not in FLAGS:
            issue((slot + NSLOT - 1) % NSLOT)
        for idx in range(14 if "g1nocomp" not in FLAGS else 0):
            pos = idx + 14*slot
            if idx + LA < 14:
                rr = rdx(slot, idx + LA, pos + LA)
            elif not fin_stage:
                rr = rdx((slot + 1) % NSLOT, idx + LA - 14, pos + LA)
            else:
                rr = None
            I(f"s_waitcnt lgkmcnt({2*(LA-1) if not fin_stage else 2*min(LA-1, 13-idx)})")
            m, jf = seq[idx]
            a = RING[pos % len(RING)]
            for js in range(2):
                c = acc(m, jf, js); b = BB + slot*8 + js*4
                I(f"v_mfma_f32_16x16x32_bf16 v[{c}:{c+3}], v[{a}:{a+3}], v[{b}:{b+3}], v[{c}:{c+3}]")
                if rr: I(rr[js])
    if XS:
        I("s_waitcnt vmcnt(18)")
        I("s_barrier")
        for i in range(LA):
            for x in rdx(0, i, i): I(x)
    e("G1_loop:")
    (body_xs if XS else body)(False)
    I("s_add_u32 s33, s33, 1")
    I(f"s_cmp_lt_u32 s33, {NST//NSLOT - 1}")
    I("s_cbranch_scc1 G1_loop")
    (body_xs if XS else body)(True)
    stamp()
    I("s_waitcnt vmcnt(0)")
    I("s_nop 7")
    I("s_nop 3")
    T = 24
    for js in range(2):
        for jf in range(7):
            g = acc(0, jf, js); u = acc(1, jf, js)
            t = T + ((js*7 + jf) % 4) * 8
            I(f"v_cvt_pk_bf16_f32 v{t}, v{g}, v{g+1}")
            I(f"v_cvt_pk_bf16_f32 v{t+1}, v{g+2}, v{g+3}")
            I(f"v_cvt_pk_bf16_f32 v{t+2}, v{u}, v{u+1}")
            I(f"v_cvt_pk_bf16_f32 v{t+3}, v{u+2}, v{u+3}")
            lo16(g, t); hi16(g+1, t); lo16(g+2, t+1); hi16(g+3, t+1)
            lo16(u, t+2); hi16(u+1, t+2); lo16(u+2, t+3); hi16(u+3, t+3)
            for r in range(4):
                I(f"v_mul_f32 v{g+r}, v{g+r}, v{u+r}")
            I(f"v_cvt_pk_bf16_f32 v{t+4}, v{g}, v{g+1}")
            I(f"v_cvt_pk_bf16_f32 v{t+5}, v{g+2}, v{g+3}")
            I(f"s_add_u32 s34, s25, {16*jf}")
            I("s_lshr_b32 s35, s34, 5")
            I("s_lshl_b32 s35, s35, 10")
            I("s_and_b32 s34, s34, 16")
            I("s_lshr_b32 s34, s34, 1")
            I("s_add_u32 s35, s35, s34")
            I(f"buffer_store_dwordx2 v[{t+4}:{t+5}], v{8+js}, s[20:23], s35 offen")
    I("s_waitcnt vmcnt(0)")
    stamp()
    stamp_dump(5)
    I("s_endpgm")

def gen_aux():
    e("M_conv:")
    if "noconv" in FLAGS: I("s_endpgm")
    XREG = 7680; CST = 800; HBUF = 8*CST; WREG = 20480
    stamp()
    I("s_load_dwordx4 s[16:19], s[0:1], 32")
    if BIG:
        I("s_sub_u32 s24, 32, s43")
        I("s_mul_i32 s24, s24, s42")
        I("s_add_u32 s24, s24, s40")
        I("s_sub_u32 s24, s24, s43")
        I("s_lshl_b32 s25, s41, 5")
        I("s_add_u32 s24, s24, s25")
        I("s_lshl_b32 s24, s24, 3")
        I("s_add_u32 s24, s24, s3")
    else:
        I("v_lshrrev_b32 v1, 6, v0")
        I("s_nop 0")
        I("v_readfirstlane_b32 s3, v1")
        I(f"s_sub_u32 s25, s2, {N_G1}")
        I("s_cmp_ge_u32 s25, 128")
        I("s_cbranch_scc1 M_aux_hi")
        I("s_mov_b32 s24, s25")
        I("s_cmp_eq_u32 s3, 3")
        I("s_cbranch_scc1 M_wdt")
        I("s_mul_i32 s24, s25, 3")
        I("s_add_u32 s24, s24, s3")
        I("s_branch M_conv2")
        e("M_aux_hi:")
        I("s_sub_u32 s25, s25, 128")
        I("s_lshl_b32 s25, s25, 1")
        I("s_add_u32 s24, s25, s3")
        I("s_add_u32 s24, s24, 126")
        I("s_cmp_ge_u32 s3, 2")
        I("s_cbranch_scc1 M_wdt")
        I("s_add_u32 s24, s25, s3")
        I("s_add_u32 s24, s24, 384")
    e("M_conv2:")
    I("s_waitcnt lgkmcnt(0)")
    srd(8, 16, SZ_SD)
    srd(12, 6, SZ_SD, WS_KVR)
    srd(20, 6, SZ_SD, WS_YT)
    I("s_lshr_b32 s25, s24, 1")
    I("s_lshl_b32 s25, s25, 2")
    I("s_load_dword s26, s[18:19], s25")
    I("v_and_b32 v1, 63, v0")
    I("s_lshl_b32 s27, s24, 12")
    I("v_lshl_add_u32 v2, v1, 4, s27")
    XL = 16
    for j in range(4):
        I(f"buffer_load_dwordx4 v[{XL+4*j}:{XL+4*j+3}], v2, s[12:15], 0 offen offset:{1024*j}")
    HW0, HW1 = 32, 40
    I("v_subrev_u32 v13, 64, v2")
    I("v_mov_b32 v5, 0x40000000")
    I("v_cmp_gt_u32 vcc, 4, v1")
    I("s_nop 1")
    I("v_cndmask_b32 v4, v13, v5, vcc")
    I("v_add_u32 v6, 16, v13")
    I("v_cmp_gt_u32 vcc, 3, v1")
    I("s_nop 1")
    I("v_cndmask_b32 v6, v6, v5, vcc")
    I(f"buffer_load_dwordx4 v[{HW0}:{HW0+3}], v4, s[8:11], 0 offen")
    I(f"buffer_load_dwordx4 v[{HW0+4}:{HW0+7}], v6, s[8:11], 0 offen")
    I(f"buffer_load_dwordx4 v[{HW1}:{HW1+3}], v2, s[8:11], 0 offen offset:448")
    I(f"buffer_load_dwordx4 v[{HW1+4}:{HW1+7}], v2, s[8:11], 0 offen offset:464")
    I("s_mov_b32 s29, 960")
    I(f"s_mul_i32 s28, s3, {WREG}")
    Z = 96
    for j in range(4):
        I(f"v_mov_b32 v{Z+j}, 0")
    I("v_lshl_add_u32 v3, v1, 4, s28")
    I(f"ds_write_b128 v3, v[{Z}:{Z+3}] offset:5120")
    I(f"ds_write_b128 v3, v[{Z}:{Z+3}] offset:6144")
    I(f"ds_write_b128 v3, v[{Z}:{Z+3}] offset:6656")
    I("v_lshrrev_b32 v4, 2, v1")
    I("v_mul_u32_u24 v4, 80, v4")
    I("v_and_b32 v5, 3, v1")
    I("v_lshl_add_u32 v4, v5, 4, v4")
    I("v_add_u32 v4, s28, v4")
    I("v_and_b32 v5, 31, v1")
    I("v_lshrrev_b32 v6, 5, v1")
    I("v_and_b32 v7, 7, v5")
    I(f"v_mul_u32_u24 v7, {CST}, v7")
    I("v_lshrrev_b32 v8, 3, v5")
    I("v_add_u32 v8, v8, v6")
    I("v_lshl_add_u32 v7, v8, 4, v7")
    I(f"v_add_u32 v7, {XREG}, v7")
    I("v_add_u32 v7, s28, v7")
    I(f"v_add_u32 v14, {HBUF}, v7")
    I("v_sub_u32 v8, 63, v5")
    I("v_mul_u32_u24 v8, 80, v8")
    I("v_lshl_add_u32 v8, v6, 4, v8")
    I("v_add_u32 v8, s28, v8")
    I("v_mov_b32 v15, v8")
    I("v_subrev_u32 v9, 2560, v8")
    I(f"v_add_u32 v10, {XREG}, v3")
    I(f"v_add_u32 v11, {HBUF}, v10")
    AC0, AC1 = 100, 116
    for j in range(32):
        I(f"v_mov_b32 v{AC0+j}, 0")
    FR = 132
    UE, UO, WO = 180, 189, 197
    I("s_mov_b32 s30, -1")
    I("s_mov_b32 s31, 0xf")
    q = DSQ()
    def stage_seg(w, addr):
        for t in range(7):
            I(f"v_alignbit_b32 v{UE+t}, v{w+t+1}, v{w+t}, 16")
            I(f"v_alignbit_b32 v{UO+t}, v{w+t+1}, v{w+t}, 16")
        for t in range(1, 7):
            I(f"v_mov_b32 v{WO+t}, v{w+t}")
        I("s_mov_b64 exec, s[30:31]")
        for c in range(8):
            if c % 2 == 0:
                t0 = c // 2
                r = UE + t0 if t0 % 2 == 0 else UO + t0
            else:
                t0 = (1 + c)//2
                r = w + t0 if t0 % 2 == 0 else WO + t0
            assert r % 2 == 0, (c, r)
            I(f"ds_write_b128 v{addr}, v[{r}:{r+3}] offset:{c*CST}")
            q.push(("w", 0))
        I("s_mov_b64 exec, -1")
    I("s_waitcnt vmcnt(2)")
    stamp()
    for j in range(4):
        I(f"ds_write_b128 v4, v[{XL+4*j}:{XL+4*j+3}] offset:{16*80*j}")
    stage_seg(HW0, 10)
    q = DSQ()
    def crd(c, both):
        f = FR + (c % 4)*12
        boff = (c >> 1)*80 + (c & 1)*32
        if c < 16:
            I(f"ds_read_b128 v[{f}:{f+3}], v7 offset:{32*c}")
        else:
            I(f"ds_read_b128 v[{f}:{f+3}], v14 offset:{32*(c-16)}")
        q.push(("r", c))
        I(f"ds_read_b128 v[{f+4}:{f+7}], v9 offset:{boff}")
        q.push(("r", c))
        if both:
            I(f"ds_read_b128 v[{f+8}:{f+11}], v8 offset:{boff}")
            q.push(("r", c))
    for c in range(3):
        crd(c, True)
    I("s_mov_b32 s33, 0")
    stamp()
    for phase in range(2):
        both = (phase == 0)
        e(f"CV_loop{phase}:")
        q.q = [("r", c) for c in range(3) for _ in range(3 if both else 2)]
        for c in range(16):
            if c == 1:
                I("s_waitcnt vmcnt(0)")
                stage_seg(HW1, 11)
                I(f"buffer_load_dwordx4 v[{HW1}:{HW1+3}], v2, s[8:11], s29 offen")
                I(f"buffer_load_dwordx4 v[{HW1+4}:{HW1+7}], v2, s[8:11], s29 offen offset:16")
                I("s_add_u32 s29, s29, 512")
            crd(c + 3, both)
            q.wait_for(("r", c))
            f = FR + (c % 4)*12
            I(f"v_mfma_f32_32x32x16_bf16 v[{AC1}:{AC1+15}], v[{f}:{f+3}], v[{f+4}:{f+7}], v[{AC1}:{AC1+15}]")
            if both:
                I(f"v_mfma_f32_32x32x16_bf16 v[{AC0}:{AC0+15}], v[{f}:{f+3}], v[{f+8}:{f+11}], v[{AC0}:{AC0+15}]")
        I("v_swap_b32 v7, v14")
        I("v_swap_b32 v10, v11")
        I("v_add_u32 v8, 640, v8")
        I("v_add_u32 v9, 640, v9")
        I("s_add_u32 s33, s33, 1")
        I(f"s_cmp_lt_u32 s33, {4*(phase+1)}")
        I(f"s_cbranch_scc1 CV_loop{phase}")
    I("v_mov_b32 v8, v15")
    I("s_waitcnt vmcnt(0) lgkmcnt(0)")
    stamp()
    I("v_mul_u32_u24 v10, 24, v6")
    I("v_sub_u32 v10, v8, v10")
    I("v_add_u32 v10, 8, v10")
    I("v_subrev_u32 v11, 2560, v10")
    KV = 16
    for cb in range(2):
        for qq in range(4):
            I(f"ds_read_b64 v[{KV+cb*8+2*qq}:{KV+cb*8+2*qq+1}], v{10+cb} offset:{48-16*qq}")
    I("s_and_b32 s25, s24, 1")
    I("s_lshl_b32 s25, s25, 4")
    I("s_lshr_b32 s26, s26, s25")
    I("s_lshl_b32 s26, s26, 16")
    I("v_lshlrev_b32 v12, 6, v5")
    I("v_lshl_add_u32 v12, v6, 3, v12")
    I("v_add_u32 v12, s27, v12")
    I("s_nop 7")
    I("s_waitcnt lgkmcnt(0)")
    for cb in range(2):
        ac = AC0 if cb == 0 else AC1
        for qq in range(4):
            k0 = KV + cb*8 + 2*qq
            t = 40 + (qq % 2)*12
            y = ac + 4*qq
            hi16(t+0, k0+1); lo16(t+1, k0+1); hi16(t+2, k0); lo16(t+3, k0)
            for r in range(4):
                I(f"v_mul_f32 v{t+r}, s26, v{t+r}")
            I(f"v_cvt_pk_bf16_f32 v{t+4}, v{t}, v{t+1}")
            I(f"v_cvt_pk_bf16_f32 v{t+5}, v{t+2}, v{t+3}")
            I(f"v_cvt_pk_bf16_f32 v{t+6}, v{y}, v{y+1}")
            I(f"v_cvt_pk_bf16_f32 v{t+7}, v{y+2}, v{y+3}")
            lo16(t, t+4); hi16(t+1, t+4); lo16(t+2, t+5); hi16(t+3, t+5)
            lo16(y, t+6); hi16(y+1, t+6); lo16(y+2, t+7); hi16(y+3, t+7)
            for r in range(4):
                I(f"v_add_f32 v{t+r}, v{t+r}, v{y+r}")
            I(f"v_cvt_pk_bf16_f32 v{t+8}, v{t}, v{t+1}")
            I(f"v_cvt_pk_bf16_f32 v{t+9}, v{t+2}, v{t+3}")
            I(f"buffer_store_dwordx2 v[{t+8}:{t+9}], v12, s[20:23], 0 offen offset:{cb*2048+16*qq}")
    I("s_waitcnt vmcnt(0)")
    stamp()
    stamp_dump(255 if BIG else N_G1 + 7)
    I("s_endpgm")
    e("M_wdt:")
    I("s_waitcnt lgkmcnt(0)")
    if "pfa128" in FLAGS or "pfa64" in FLAGS:
        G = 128 if "pfa128" in FLAGS else 64
        NL = 1792 // G
        I("s_cmp_lg_u32 s3, 3")
        I("s_cbranch_scc1 M_nopf")
        I("s_bfe_u32 s26, s2, 0x50003")
        I("s_lshr_b32 s27, s26, 4")
        I("s_lshl_b32 s27, s27, 3")
        I("s_add_u32 s27, s27, 56")
        I("s_load_dwordx2 s[28:29], s[0:1], s27")
        I("s_and_b32 s26, s26, 15")
        I("s_mul_i32 s26, s26, 138240")
        I("s_bfe_u32 s27, s2, 0x10002")
        I("s_mul_i32 s27, s27, 1792")
        I("s_add_u32 s26, s26, s27")
        I(f"s_mov_b32 s30, {SZ_W}")
        I("s_mov_b32 s31, 0x00020000")
        I("v_and_b32 v1, 63, v0")
        I("s_waitcnt lgkmcnt(0)")
        n = (40*NL + 63)//64
        mul = (65536 + NL - 1)//NL
        for i in range(n):
            I(f"v_add_u32 v2, {64*i}, v1")
            I(f"v_mul_u32_u24 v3, {mul}, v2")
            I("v_lshrrev_b32 v3, 16, v3")
            I(f"v_mul_u32_u24 v4, {NL}, v3")
            I("v_sub_u32 v4, v2, v4")
            I("v_mul_u32_u24 v3, 3456, v3")
            I(f"v_lshl_add_u32 v{100+i}, v4, {7 if G==128 else 6}, v3")
            I(f"buffer_load_dword v{140+i}, v{100+i}, s[28:31], s26 offen")
        e("M_nopf:")
    I("s_cmp_ge_u32 s24, 270")
    I("s_cbranch_scc1 M_exitw")
    I("s_load_dwordx2 s[4:5], s[0:1], 72")
    I("s_mul_i32 s17, s24, 0xCCCD")
    I("s_lshr_b32 s17, s17, 19")
    I("s_mul_i32 s18, s17, 10")
    I("s_sub_u32 s18, s24, s18")
    I("v_and_b32 v1, 7, v0")
    I("v_bfe_u32 v2, v0, 3, 2")
    I("v_bfe_u32 v6, v0, 5, 1")
    I("s_lshl_b32 s18, s18, 6")
    I("v_lshl_add_u32 v1, v1, 3, s18")
    I("s_lshl_b32 s19, s17, 1")
    I("v_add_u32 v6, s19, v6")
    I("v_lshlrev_b32 v7, 5, v6")
    I("v_lshl_add_u32 v7, v2, 2, v7")
    I("v_mul_u32_u24 v3, 0x500, v7")
    I("v_lshl_add_u32 v3, v1, 1, v3")
    I("v_add_u32 v4, 0x5000, v3")
    I("s_waitcnt lgkmcnt(0)")
    srd(8, 4, SZ_W)
    srd(12, 6, SZ_W, WS_WDT)
    for i in range(8):
        b = 3 if i < 4 else 4
        I(f"buffer_load_dwordx4 v[{8+4*i}:{11+4*i}], v{b}, s[8:11], 0 offen offset:{(i%4)*1280}")
    I("s_mov_b32 s20, 0x05040100")
    I("s_mov_b32 s21, 0x07060302")
    I("v_lshrrev_b32 v5, 4, v1")
    I("v_mul_u32_u24 v5, 54, v5")
    I("v_add_u32 v5, v5, v6")
    I("v_lshlrev_b32 v5, 10, v5")
    I("v_lshl_add_u32 v5, v2, 8, v5")
    I("v_and_b32 v7, 15, v1")
    I("v_lshl_add_u32 v5, v7, 4, v5")
    I("s_waitcnt vmcnt(0)")
    for dd in range(8):
        ob = 40 + 4*dd
        sel = 20 + (dd & 1)
        for q in range(4):
            I(f"v_perm_b32 v{ob+q}, v{8+4*(2*q+1)+dd//2}, v{8+4*(2*q)+dd//2}, s{sel}")
    for dd in range(8):
        ob = 40 + 4*dd
        I(f"buffer_store_dwordx4 v[{ob}:{ob+3}], v5, s[12:15], 0 offen offset:{16*dd}")
    e("M_exitw:")
    I("s_waitcnt vmcnt(0)")
    e("M_exit:")
    I("s_endpgm")
    kernel_desc("mid_kernel", 240 if BIG else 208, 80)

def gen_k3():
    kernel_header("fin_kernel")
    I(f"s_cmp_ge_u32 s2, {64 if 'fin64' in FLAGS else 256}")
    I("s_cbranch_scc1 F_exit")
    I("s_load_dwordx2 s[6:7], s[0:1], 96")
    I("s_load_dwordx2 s[4:5], s[0:1], 0")
    I("s_load_dwordx2 s[30:31], s[0:1], 80")
    stamp()
    I("v_lshrrev_b32 v1, 6, v0")
    I("s_nop 0")
    I("v_readfirstlane_b32 s3, v1")
    I("s_waitcnt lgkmcnt(0)")
    srd(8, 6, SZ_W, WS_WDT)
    srd(12, 6, SZ_H, WS_H)
    srd(16, 6, SZ_SD, WS_YT)
    srd(20, 6, SZ_SD, WS_XN)
    srd(24, 4, SZ_SD)
    srd(32, 30, SZ_SD)
    if "fin2d" in FLAGS:
        I("s_and_b32 s36, s2, 1")
        I("s_lshl_b32 s36, s36, 2")
        I("s_bfe_u32 s37, s2, 0x20003")
        I("s_add_u32 s36, s36, s37")
        I("s_mul_i32 s36, s36, 80")
        I("s_bfe_u32 s37, s2, 0x20001")
        I("s_lshl_b32 s37, s37, 3")
        I("s_lshr_b32 s38, s2, 5")
        I("s_add_u32 s37, s37, s38")
        I("s_lshl_b32 s37, s37, 6")
    elif "finswap" in FLAGS:
        I("s_lshr_b32 s36, s2, 5")
        I("s_mul_i32 s36, s36, 80")
        I("s_and_b32 s37, s2, 31")
        I("s_lshl_b32 s37, s37, 6")
    else:
        I("s_and_b32 s36, s2, 7")
        I("s_mul_i32 s36, s36, 80")
        I("s_lshr_b32 s37, s2, 3")
        I("s_lshl_b32 s37, s37, 6")
    I("s_mul_i32 s38, s3, 14")
    I("s_cmp_eq_u32 s3, 3")
    I("s_cselect_b32 s39, 1, 0")
    I("s_sub_u32 s38, s38, s39")
    I("s_cmp_ge_u32 s3, 2")
    I("s_cselect_b32 s39, 13, 14")
    I("s_add_u32 s47, s38, s39")
    I("s_lshl_b32 s45, s38, 10")
    I("s_lshl_b32 s47, s47, 10")
    if "rot" in FLAGS:
        I("s_bfe_u32 s46, s2, 0x20003")
        I("s_lshl_b32 s46, s46, 2")
        I("s_lshr_b32 s44, s2, 5")
        I("s_lshl_b32 s44, s44, 1")
        I("s_add_u32 s46, s46, s44")
        I("s_cmp_ge_u32 s46, 13")
        I("s_cselect_b32 s44, 13, 0")
        I("s_sub_u32 s46, s46, s44")
        I("s_cmp_ge_u32 s46, 13")
        I("s_cselect_b32 s44, 13, 0")
        I("s_sub_u32 s46, s46, s44")
        I("s_lshl_b32 s46, s46, 10")
        I("s_add_u32 s46, s46, s45")
    else:
        I("s_mov_b32 s46, s45")
    I("s_mov_b32 s44, 0")
    I("v_and_b32 v1, 15, v0")
    I("v_bfe_u32 v2, v0, 4, 2")
    I("v_and_b32 v12, 63, v0")
    if "pf" in FLAGS:
        I("s_lshr_b32 s52, s2, 3")
        I("s_lshl_b32 s52, s52, 2")
        I("s_add_u32 s52, s52, s3")
        I("s_and_b32 s53, s2, 1")
        I("s_mul_i32 s53, s53, 1105920")
        I("s_mul_i32 s54, s52, 8640")
        I("s_add_u32 s53, s53, s54")
        I("v_lshlrev_b32 v240, 6, v12")
        I("buffer_load_dword v241, v240, s[8:11], s53 offen")
        I("s_add_u32 s53, s53, 4096")
        I("buffer_load_dword v242, v240, s[8:11], s53 offen")
        I("s_add_u32 s53, s53, 544")
        I("buffer_load_dword v243, v240, s[8:11], s53 offen")
        I("s_bfe_u32 s53, s2, 0x20001")
        I("s_mul_i32 s53, s53, 1769472")
        I("s_mul_i32 s54, s52, 13824")
        I("s_add_u32 s53, s53, s54")
        for i, inc in enumerate((4096, 4096, 1536, 0)):
            I(f"buffer_load_dword v{244+i}, v240, s[12:15], s53 offen")
            if inc: I(f"s_add_u32 s53, s53, {inc}")
    I("s_lshr_b32 s52, s36, 4")
    I("s_mul_i32 s52, s52, 55296")
    I("v_lshl_add_u32 v3, v12, 4, s52")
    for jd in range(1, 5):
        I(f"v_add_u32 v{3+jd}, {jd*55296}, v3")
    I("s_lshr_b32 s52, s37, 4")
    I("s_mul_i32 s52, s52, 55296")
    I("v_lshl_add_u32 v8, v12, 4, s52")
    for js in range(1, 4):
        I(f"v_add_u32 v{8+js}, {js*55296}, v8")
    def acc(jd, js): return (js*5 + jd)*4
    FRB = 16
    NB = 5
    def ld(buf):
        f = FRB + buf*36
        I("s_cmp_lt_u32 s44, s39")
        I("s_cselect_b32 s48, s46, 0x40000000")
        for jd in range(5):
            r = f + 4*jd
            I(f"buffer_load_dwordx4 v[{r}:{r+3}], v{3+jd}, s[8:11], s48 offen{CP}")
        for js in range(4):
            r = f + 20 + 4*js
            I(f"buffer_load_dwordx4 v[{r}:{r+3}], v{8+js}, s[12:15], s48 offen{CP}")
        I("s_add_u32 s46, s46, 1024")
        I("s_cmp_ge_u32 s46, s47")
        I("s_cselect_b32 s46, s45, s46")
        I("s_add_u32 s44, s44, 1")
    def mm(buf):
        f = FRB + buf*36
        for js in range(4):
            for jd in range(5):
                c = acc(jd, js)
                a = f + 4*jd; b = f + 20 + 4*js
                I(f"v_mfma_f32_16x16x32_bf16 a[{c}:{c+3}], v[{a}:{a+3}], v[{b}:{b+3}], a[{c}:{c+3}]")
    I("s_lshr_b32 s41, s3, 1")
    I("s_lshl_b32 s41, s41, 5")
    I("s_add_u32 s41, s41, s37")
    I("s_lshl_b32 s41, s41, 1")
    I("v_add_u32 v14, s36, v1")
    I("v_lshlrev_b32 v14, 12, v14")
    I("v_lshl_add_u32 v14, v2, 4, v14")
    I("v_add_u32 v14, s41, v14")
    YF = 196
    for jd in range(5):
        I(f"v_add_u32 v15, {jd*16*4096}, v14")
        I(f"buffer_load_dwordx4 v[{YF+4*jd}:{YF+4*jd+3}], v15, s[16:19], 0 offen")
    I("s_lshl_b32 s42, s3, 4")
    I("s_add_u32 s42, s42, s37")
    I("v_add_u32 v15, s42, v1")
    I("v_mul_u32_u24 v15, 0x500, v15")
    I("v_lshl_add_u32 v15, v2, 3, v15")
    I("s_lshl_b32 s43, s36, 1")
    I("v_add_u32 v15, s43, v15")
    XX = 216
    I("s_lshr_b32 s50, s42, 4")
    I("s_mul_i32 s50, s50, 20480")
    I("v_lshrrev_b32 v14, 1, v2")
    I("v_lshlrev_b32 v14, 8, v14")
    I("v_lshl_add_u32 v14, v1, 4, v14")
    I("v_and_b32 v13, 1, v2")
    I("v_lshl_add_u32 v14, v13, 3, v14")
    I("v_add_u32 v14, s50, v14")
    for jd in range(5):
        I(f"buffer_load_dwordx2 v[{XX+2*jd}:{XX+2*jd+1}], v15, s[24:27], 0 offen offset:{32*jd}")
        I(f"s_add_u32 s50, s36, {16*jd}")
        I("s_lshr_b32 s51, s50, 5")
        I("s_lshl_b32 s51, s51, 10")
        I("s_and_b32 s50, s50, 16")
        I("s_lshl_b32 s50, s50, 5")
        I("s_add_u32 s51, s51, s50")
        I(f"buffer_load_dwordx2 v[{XX+10+2*jd}:{XX+11+2*jd}], v14, s[20:23], s51 offen")
    NB2 = NB
    for f_ in FLAGS:
        if f_.startswith("nb"): NB2 = int(f_[2:])
    def breg(buf, i):
        if buf < 5: return "v", FRB + buf*36 + 4*i
        return "a", 80 + (buf-5)*36 + 4*i
    def ld2(buf):
        for jd in range(5):
            t, r = breg(buf, jd)
            I(f"buffer_load_dwordx4 {t}[{r}:{r+3}], v{3+jd}, s[8:11], s46 offen{CP}")
        for js in range(4):
            t, r = breg(buf, 5+js)
            I(f"buffer_load_dwordx4 {t}[{r}:{r+3}], v{8+js}, s[12:15], s46 offen{CP}")
        I("s_add_u32 s46, s46, 1024")
    def mm2(buf):
        for js in range(4):
            for jd in range(5):
                c = acc(jd, js)
                t, a = breg(buf, jd); t, b = breg(buf, 5+js)
                I(f"v_mfma_f32_16x16x32_bf16 a[{c}:{c+3}], {t}[{a}:{a+3}], {t}[{b}:{b+3}], a[{c}:{c+3}]")
    for b in range(NB2-1):
        ld2(b)
    for j in range(80):
        I(f"v_accvgpr_write_b32 a{j}, 0")
    stamp()
    for k in range(14):
        nb = k + NB2 - 1
        if nb <= 12:
            ld2(nb % NB2)
        elif nb == 13:
            I("s_cmp_ge_u32 s3, 2")
            I("s_cbranch_scc1 F_skip13")
            ld2(nb % NB2)
            e("F_skip13:")
        if k == 13:
            I("s_cmp_ge_u32 s3, 2")
            I("s_cbranch_scc1 F_done")
        rem = max(0, min(12, nb) - k)
        if k < 13: I(f"s_waitcnt vmcnt({9*rem})")
        mm2(k % NB2)
    e("F_done:")
    stamp()
    I("s_mul_i32 s40, s3, 20480")
    I("v_lshlrev_b32 v13, 4, v12")
    I("v_add_u32 v13, s40, v13")
    I("s_nop 7")
    for js in range(4):
        for jd in range(5):
            c = acc(jd, js)
            I(f"ds_write_b128 v13, a[{c}:{c+3}] offset:{(js*5+jd)*1024}")
    I("s_waitcnt lgkmcnt(0)")
    I("s_barrier")
    I("s_mul_i32 s40, s3, 5120")
    I("v_lshlrev_b32 v12, 4, v12")
    I("v_add_u32 v13, s40, v12")
    I("v_add_u32 v12, 40960, v13")
    R = 96
    for src in range(4):
        for jd in range(5):
            r = R + (src*5 + jd)*4
            I(f"ds_read_b128 v[{r}:{r+3}], v{13 if src < 2 else 12} offset:{(src%2)*20480 + jd*1024}")
    IDB = 60
    I("s_and_b32 s44, s3, 1")
    I("s_lshl_b32 s44, s44, 4")
    I("v_add_u32 v64, s44, v1")
    I("v_lshrrev_b32 v65, 3, v64")
    I("v_cmp_eq_u32 vcc, v65, v2")
    I("v_and_b32 v65, 7, v64")
    I("v_and_b32 v66, 1, v65")
    I("v_lshlrev_b32 v66, 4, v66")
    I("v_mov_b32 v67, 0x3f80")
    I("v_lshlrev_b32 v67, v66, v67")
    I("v_lshrrev_b32 v65, 1, v65")
    I("v_cndmask_b32 v67, 0, v67, vcc")
    for j in range(4):
        I(f"v_cmp_eq_u32 vcc, {j}, v65")
        I("s_nop 1")
        I(f"v_cndmask_b32 v{IDB+j}, 0, v67, vcc")
    TY = 64
    I("s_nop 1")
    for jd in range(5):
        I(f"v_mfma_f32_16x16x32_bf16 v[{TY+4*jd}:{TY+4*jd+3}], v[{YF+4*jd}:{YF+4*jd+3}], v[{IDB}:{IDB+3}], 0")
    I("s_waitcnt lgkmcnt(0)")
    for jd in range(5):
        r0 = R + jd*4
        for src in range(1, 4):
            r = R + (src*5 + jd)*4
            for j in range(4):
                I(f"v_add_f32 v{r0+j}, v{r0+j}, v{r+j}")
    I("s_waitcnt vmcnt(0)")
    for jd in range(5):
        b = R + jd*4
        ty = TY + 4*jd
        t = 180 + (jd % 2)*16
        x0 = XX + 2*jd; n0 = XX + 10 + 2*jd
        lo16(t, n0); hi16(t+1, n0); lo16(t+2, n0+1); hi16(t+3, n0+1)
        for r in range(4):
            I(f"v_mul_f32 v{t+r}, v{t+r}, v{ty+r}")
        I(f"v_cvt_pk_bf16_f32 v{t+4}, v{t}, v{t+1}")
        I(f"v_cvt_pk_bf16_f32 v{t+5}, v{t+2}, v{t+3}")
        lo16(t, t+4); hi16(t+1, t+4); lo16(t+2, t+5); hi16(t+3, t+5)
        lo16(t+6, x0); hi16(t+7, x0); lo16(t+8, x0+1); hi16(t+9, x0+1)
        for r in range(4):
            I(f"v_add_f32 v{t+r}, v{t+r}, v{t+6+r}")
        I(f"v_cvt_pk_bf16_f32 v{t+4}, v{t}, v{t+1}")
        I(f"v_cvt_pk_bf16_f32 v{t+5}, v{t+2}, v{t+3}")
        lo16(t, t+4); hi16(t+1, t+4); lo16(t+2, t+5); hi16(t+3, t+5)
        I(f"v_cvt_pk_bf16_f32 v{t+4}, v{b}, v{b+1}")
        I(f"v_cvt_pk_bf16_f32 v{t+5}, v{b+2}, v{b+3}")
        lo16(t+6, t+4); hi16(t+7, t+4); lo16(t+8, t+5); hi16(t+9, t+5)
        for r in range(4):
            I(f"v_add_f32 v{t+r}, v{t+r}, v{t+6+r}")
        I(f"v_cvt_pk_bf16_f32 v{t+10}, v{t}, v{t+1}")
        I(f"v_cvt_pk_bf16_f32 v{t+11}, v{t+2}, v{t+3}")
        I(f"buffer_store_dwordx2 v[{t+10}:{t+11}], v15, s[32:35], 0 offen offset:{32*jd}")
    I("s_waitcnt vmcnt(0)")
    stamp()
    stamp_dump(9)
    e("F_exit:")
    I("s_endpgm")
    kernel_desc("fin_kernel", 256+80+36*max(0, NB2-5), 80, accum=256)

def main():
    hdr = open("parallel_sum__ssm_conv_h3__glu_gated_bilinear__prompt.s.ref").read().splitlines()
    for line in hdr:
        if line.startswith("; @launch"):
            break
        if line.startswith(";"):
            e(line)
    e(f"; @launch kernel=prep_kernel grid=({N_LN+N_KV+N_PF},1,1) block=(256,1,1) lds=0")
    if BIG:
        e("; @launch kernel=mid_kernel grid=(256,1,1) block=(512,1,1) lds=163840")
    else:
        e(f"; @launch kernel=mid_kernel grid=({N_G1+N_CV},1,1) block=(256,1,1) lds={LDS2}")
    e(f"; @launch kernel=fin_kernel grid=(256,1,1) block=(256,1,1) lds=81920")
    e('.amdgcn_target "amdgcn-amd-amdhsa--gfx950"')
    gen_prep()
    gen_k2()
    gen_k3()
    dst = sys.argv[1] if len(sys.argv) > 1 else "parallel_sum__ssm_conv_h3__glu_gated_bilinear__prompt.s"
    open(dst, "w").write("\n".join(out) + "\n")

main()
```

```python
import sys

import os
FLAGS = os.environ.get("GENFLAGS", "").split(",")
CP = " nt" if "cpnt" in FLAGS else (" sc1" if "cpsc1" in FLAGS else (" sc0 sc1" if "cpsc01" in FLAGS else ""))
S, D, F = 2048, 640, 1728
WS_XN  = 0x0
WS_KVR = 0x280000
WS_WDT = 0x500000
WS_H   = 0x800000
WS_YT  = 0x1000000
SZ_SD = S * D * 2
SZ_W  = D * F * 2
SZ_H  = S * F * 2

out = []
def e(s=""):
    out.append(s)
SP = " nt" if "stnt" in FLAGS else (" sc0 sc1" if "stsc" in FLAGS else (" sc1" if "stsc1" in FLAGS else (" sc0 sc1 nt" if "stall" in FLAGS else "")))
def I(s):
    if s.startswith("buffer_store") and "s[56:59]" not in s: s += SP
    out.append("    " + s)

def srd(base, ptr, size, off=0):
    if off:
        I(f"s_add_u32 s{base}, s{ptr}, {off:#x}")
        I(f"s_addc_u32 s{base+1}, s{ptr+1}, 0")
    else:
        I(f"s_mov_b32 s{base}, s{ptr}")
        I(f"s_mov_b32 s{base+1}, s{ptr+1}")
    I(f"s_mov_b32 s{base+2}, {size:#x}")
    I(f"s_mov_b32 s{base+3}, 0x00020000")

def lo16(dst, src): I(f"v_lshlrev_b32 v{dst}, 16, v{src}")
def hi16(dst, src): I(f"v_and_b32 v{dst}, 0xffff0000, v{src}")

STAMP = "stamp" in FLAGS
nst = [0]
def stamp():
    if STAMP:
        i = nst[0]; nst[0] += 1
        I(f"s_memtime s[{60+2*i}:{61+2*i}]")
def stamp_dump(wg):
    if not STAMP: return
    n = nst[0]; nst[0] = 0
    I("s_waitcnt lgkmcnt(0) vmcnt(0)")
    I(f"s_cmp_lg_u32 s2, {wg}")
    I(f"s_cbranch_scc1 SD_skip{wg}")
    I("s_cmp_lg_u32 s3, 0")
    I(f"s_cbranch_scc1 SD_skip{wg}")
    I("s_load_dwordx2 s[56:57], s[0:1], 88")
    I("s_waitcnt lgkmcnt(0)")
    I("s_mov_b32 s58, 256")
    I("s_mov_b32 s59, 0x00020000")
    I("v_mov_b32 v1, 0")
    for i in range(n):
        I(f"s_sub_u32 s{61+2*i}, s{60+2*i}, s60")
        I(f"v_mov_b32 v2, s{61+2*i}")
        I(f"buffer_store_dword v2, v1, s[56:59], 0 offen offset:{4*i}")
    I("s_waitcnt vmcnt(0)")
    e(f"SD_skip{wg}:")

WGT = "wgt" in FLAGS
def wgt_start():
    if WGT: I("s_memrealtime s[76:77]")
wgtn = [0]
def wgt_end(kidx):
    if not WGT: return
    n = wgtn[0]; wgtn[0] += 1
    I("s_waitcnt vmcnt(0) lgkmcnt(0)")
    I("s_memrealtime s[78:79]")
    I("s_load_dwordx2 s[72:73], s[0:1], 96")
    I("v_lshrrev_b32 v1, 6, v0")
    I("s_nop 0")
    I("v_readfirstlane_b32 s70, v1")
    I("s_lshl_b32 s71, s2, 3")
    I("s_add_u32 s70, s70, s71")
    I("s_lshl_b32 s70, s70, 3")
    I("s_waitcnt lgkmcnt(0)")
    I(f"s_add_u32 s72, s72, {0x1800000 + kidx*0x10000}")
    I("s_addc_u32 s73, s73, 0")
    I("s_mov_b32 s74, 0x10000")
    I("s_mov_b32 s75, 0x00020000")
    I("v_mov_b32 v2, s76")
    I("v_mov_b32 v3, s78")
    I("v_mov_b32 v1, s70")
    I("buffer_store_dwordx2 v[2:3], v1, s[72:75], 0 offen")
    I("s_waitcnt vmcnt(0)")

def kernel_header(name):
    e(".text")
    e(f".globl {name}")
    e(".p2align 8")
    e(f".type {name},@function")
    e(f"{name}:")

def kernel_desc(name, vgpr, sgpr, accum=None):
    if accum is None:
        accum = (vgpr + 3) // 4 * 4
    e('.section .rodata,"a"')
    e(".p2align 6")
    e(f".amdhsa_kernel {name}")
    e(f"  .amdhsa_next_free_vgpr {vgpr}")
    e(f"  .amdhsa_next_free_sgpr {sgpr}")
    e(f"  .amdhsa_accum_offset {accum}")
    e("  .amdhsa_group_segment_fixed_size 0")
    e("  .amdhsa_kernarg_size 104")
    e("  .amdhsa_user_sgpr_count 2")
    e("  .amdhsa_user_sgpr_kernarg_segment_ptr 1")
    e("  .amdhsa_system_sgpr_workgroup_id_x 1")
    e(".end_amdhsa_kernel")

N_LN, N_KV = 128, 160
N_PF = 0
if "pfw" in FLAGS: N_PF = 4*36
if "pfw2" in FLAGS: N_PF = 2*36
def gen_prep():
    kernel_header("prep_kernel")
    I(f"s_cmp_ge_u32 s2, {N_LN+N_KV+N_PF}")
    I("s_cbranch_scc1 P_exit")
    if N_PF:
        I(f"s_cmp_ge_u32 s2, {N_LN+N_KV}")
        I("s_cbranch_scc1 P_pf")
    I("s_load_dwordx2 s[6:7], s[0:1], 96")
    I(f"s_cmp_lt_u32 s2, {N_KV}")
    I("s_cbranch_scc1 P_kv")
    if "noln" in FLAGS: I("s_endpgm")
    I("s_load_dwordx2 s[4:5], s[0:1], 0")
    I("v_lshrrev_b32 v1, 4, v0")
    I(f"s_sub_u32 s3, s2, {N_KV}")
    I("s_lshl_b32 s3, s3, 4")
    I("v_add_u32 v1, s3, v1")
    I("v_mul_u32_u24 v2, 0x500, v1")
    I("v_and_b32 v3, 15, v0")
    I("v_lshl_add_u32 v2, v3, 4, v2")
    I("s_waitcnt lgkmcnt(0)")
    srd(8, 4, SZ_SD)
    srd(12, 6, SZ_SD, WS_XN)
    for j in range(5):
        I(f"buffer_load_dwordx4 v[{4+4*j}:{7+4*j}], v2, s[8:11], 0 offen offset:{256*j}")
    I("v_lshrrev_b32 v2, 4, v1")
    I("v_mul_u32_u24 v2, 20480, v2")
    I("v_lshrrev_b32 v64, 2, v3")
    I("v_lshl_add_u32 v2, v64, 10, v2")
    I("v_and_b32 v64, 3, v3")
    I("v_lshl_add_u32 v2, v64, 8, v2")
    I("v_and_b32 v64, 15, v1")
    I("v_lshl_add_u32 v2, v64, 4, v2")
    I("s_waitcnt vmcnt(0)")
    X = 24
    for j in range(20):
        lo16(X + 2*j, 4 + j)
        hi16(X + 2*j + 1, 4 + j)
    T = 64
    for j in range(20):
        I(f"v_add_f32 v{T+j}, v{X+2*j}, v{X+2*j+1}")
    def tree(base, n):
        while n > 1:
            h = n // 2
            for j in range(h):
                I(f"v_add_f32 v{base+j}, v{base+j}, v{base+n-1-j}")
            n = n - h
    tree(T, 20)
    def dpp_reduce(r, tmp):
        for sh in (8, 4, 2, 1):
            I("s_nop 1")
            I(f"v_add_f32_dpp v{tmp}, v{r}, v{r} row_ror:{sh} row_mask:0xf bank_mask:0xf")
            I(f"v_mov_b32 v{r}, v{tmp}")
    dpp_reduce(T, T+1)
    I(f"v_mul_f32 v{T}, {1.0/640.0!r}, v{T}")
    for j in range(40):
        I(f"v_sub_f32 v{T+2+j}, v{X+j}, v{T}")
    for j in range(40):
        I(f"v_mul_f32 v{T+2+j}, v{T+2+j}, v{T+2+j}")
    tree(T+2, 40)
    dpp_reduce(T+2, T+1)
    I(f"v_mul_f32 v{T+2}, {1.0/640.0!r}, v{T+2}")
    I(f"v_cvt_pk_bf16_f32 v{T}, v{T}, v{T+2}")
    hi16(T+2, T)
    lo16(T, T)
    I(f"v_add_f32 v{T+2}, {1e-5!r}, v{T+2}")
    I(f"v_cvt_pk_bf16_f32 v{T+2}, v{T+2}, v{T+2}")
    lo16(T+2, T+2)
    I(f"v_sqrt_f32 v{T+2}, v{T+2}")
    I("s_nop 0")
    I(f"v_cvt_pk_bf16_f32 v{T+2}, v{T+2}, v{T+2}")
    lo16(T+2, T+2)
    I(f"v_rcp_f32 v{T+3}, v{T+2}")
    I("s_nop 0")
    for j in range(20):
        a, b = X + 2*j, X + 2*j + 1
        I(f"v_sub_f32 v{a}, v{a}, v{T}")
        I(f"v_sub_f32 v{b}, v{b}, v{T}")
        I(f"v_cvt_pk_bf16_f32 v{T+4}, v{a}, v{b}")
        lo16(a, T+4)
        hi16(b, T+4)
        for r in (a, b):
            I(f"v_mul_f32 v{T+5}, v{r}, v{T+3}")
            I(f"v_fma_f32 v{T+6}, -v{T+5}, v{T+2}, v{r}")
            I(f"v_fma_f32 v{r}, v{T+6}, v{T+3}, v{T+5}")
        I(f"v_cvt_pk_bf16_f32 v{4+j}, v{a}, v{b}")
        if j % 4 == 3:
            jj = j // 4
            I(f"s_mov_b32 s16, {4096*jj}")
            I(f"buffer_store_dwordx4 v[{4+4*jj}:{7+4*jj}], v2, s[12:15], s16 offen")
    I("s_endpgm")
    e("P_kv:")
    if "nokv" in FLAGS: I("s_endpgm")
    I("s_load_dwordx4 s[16:19], s[0:1], 8")
    I("s_load_dwordx2 s[4:5], s[0:1], 24")
    I("s_mul_i32 s28, s2, 0xCCCD")
    I("s_lshr_b32 s28, s28, 19")
    I("s_mul_i32 s29, s28, 10")
    I("s_sub_u32 s29, s2, s29")
    I("v_and_b32 v1, 7, v0")
    I("v_lshrrev_b32 v2, 3, v0")
    I("s_lshl_b32 s30, s29, 6")
    I("v_lshl_add_u32 v1, v1, 3, s30")
    I("s_lshl_b32 s31, s28, 7")
    I("v_lshl_add_u32 v2, v2, 2, s31")
    I("v_mul_u32_u24 v3, 0x500, v2")
    I("v_lshl_add_u32 v3, v1, 1, v3")
    for i in range(3):
        I(f"v_subrev_u32 v{5+i}, {(3-i)*1280:#x}, v3")
    I("v_lshlrev_b32 v8, 3, v1")
    I("s_waitcnt lgkmcnt(0)")
    srd(8, 16, SZ_SD)
    srd(12, 18, SZ_SD)
    srd(20, 4, D*4*2)
    srd(24, 6, SZ_SD, WS_KVR)
    KR = 16
    for i in range(3):
        I(f"buffer_load_dwordx4 v[{KR+4*i}:{KR+4*i+3}], v{5+i}, s[8:11], 0 offen")
    for i in range(4):
        I(f"buffer_load_dwordx4 v[{KR+4*(i+3)}:{KR+4*(i+3)+3}], v3, s[8:11], 0 offen offset:{i*1280}")
    VR = KR + 28
    for i in range(4):
        I(f"buffer_load_dwordx4 v[{VR+4*i}:{VR+4*i+3}], v3, s[12:15], 0 offen offset:{i*1280}")
    SK = VR + 16
    for i in range(4):
        I(f"buffer_load_dwordx4 v[{SK+4*i}:{SK+4*i+3}], v8, s[20:23], 0 offen offset:{16*i}")
    I("v_lshlrev_b32 v9, 12, v1")
    I(f"v_sub_u32 v10, {S-4}, v2")
    I("v_lshl_add_u32 v9, v10, 1, v9")
    I("s_waitcnt vmcnt(0)")
    KF = 76
    VF = 83
    SF = 87
    TM = 92
    OB = 104
    for dd in range(8):
        ex = lo16 if dd % 2 == 0 else hi16
        for i in range(7):
            ex(KF + i, KR + 4*i + dd//2)
        for i in range(4):
            ex(VF + i, VR + 4*i + dd//2)
        lo16(SF+0, SK + 2*dd); hi16(SF+1, SK + 2*dd)
        lo16(SF+2, SK + 2*dd + 1); hi16(SF+3, SK + 2*dd + 1)
        ob = OB + 2*(dd % 4)
        for q in range(2):
            sa, sb = 3 - 2*q, 2 - 2*q
            t = TM
            I(f"v_mul_f32 v{t}, v{KF+sa}, v{SF+3}")
            I(f"v_mul_f32 v{t+1}, v{KF+sb}, v{SF+3}")
            I(f"v_mul_f32 v{t+2}, v{KF+sa+1}, v{SF+2}")
            I(f"v_mul_f32 v{t+3}, v{KF+sb+1}, v{SF+2}")
            I(f"v_mul_f32 v{t+4}, v{KF+sa+2}, v{SF+1}")
            I(f"v_mul_f32 v{t+5}, v{KF+sb+2}, v{SF+1}")
            I(f"v_mul_f32 v{t+6}, v{KF+sa+3}, v{SF+0}")
            I(f"v_mul_f32 v{t+7}, v{KF+sb+3}, v{SF+0}")
            for p in range(4):
                I(f"v_cvt_pk_bf16_f32 v{t+8+p}, v{t+2*p}, v{t+2*p+1}")
            for p in range(4):
                lo16(t+2*p, t+8+p); hi16(t+2*p+1, t+8+p)
            for step in (1, 2, 3):
                I(f"v_add_f32 v{t}, v{t}, v{t+2*step}")
                I(f"v_add_f32 v{t+1}, v{t+1}, v{t+2*step+1}")
                I(f"v_cvt_pk_bf16_f32 v{t+8}, v{t}, v{t+1}")
                lo16(t, t+8); hi16(t+1, t+8)
            I(f"v_mul_f32 v{t}, v{t}, v{VF+sa}")
            I(f"v_mul_f32 v{t+1}, v{t+1}, v{VF+sb}")
            I(f"v_cvt_pk_bf16_f32 v{ob+q}, v{t}, v{t+1}")
        I(f"s_mov_b32 s16, {4096*dd}")
        I(f"buffer_store_dwordx2 v[{ob}:{ob+1}], v9, s[24:27], s16 offen")
    if N_PF:
        I("s_endpgm")
        e("P_pf:")
        I(f"s_sub_u32 s3, s2, {N_LN+N_KV}")
        I("s_mul_i32 s4, s3, 1821")
        I("s_lshr_b32 s4, s4, 16")
        I("s_mul_i32 s5, s4, 36")
        I("s_sub_u32 s5, s3, s5")
        I("s_lshl_b32 s6, s4, 3")
        I("s_add_u32 s6, s6, 56")
        I("s_cmp_eq_u32 s4, 3")
        I("s_cselect_b32 s6, 32, s6")
        I("s_load_dwordx2 s[8:9], s[0:1], s6")
        I(f"s_mov_b32 s10, {SZ_W}")
        I(f"s_cselect_b32 s10, {SZ_SD}, s10")
        I("s_mov_b32 s11, 0x00020000")
        I("s_mov_b32 s7, 65536")
        I("s_cselect_b32 s7, 73728, s7")
        I("s_mul_i32 s5, s5, s7")
        I("v_lshlrev_b32 v1, 4, v0")
        I("s_waitcnt lgkmcnt(0)")
        for i in range(18):
            I(f"buffer_load_dwordx4 v[{4+4*i}:{7+4*i}], v1, s[8:11], s5 offen")
            I("s_add_u32 s5, s5, 4096")
        I("s_waitcnt vmcnt(0)")
    e("P_exit:")
    I("s_endpgm")
    kernel_desc("prep_kernel", 112, 40)

BF = 112
NSLOT = 5
SLOT = 16384
LDS2 = NSLOT * SLOT
N_G1, N_CV = 256, 256

class DSQ:
    def __init__(self): self.q = []
    def push(self, tag): self.q.append(tag)
    def wait_for(self, tag):
        idx = max(i for i, t in enumerate(self.q) if t == tag)
        n = len(self.q) - 1 - idx
        I(f"s_waitcnt lgkmcnt({min(n,15)})")
        self.q = self.q[idx+1:] if n <= 15 else self.q[len(self.q)-15:]

BIG = "big" in FLAGS
def gen_g1big():
    NF = 10; RS = 320; MS = 32*RS; SL = 2*MS; NS = 8; DB = 3; LA = 3; NST = 20
    for f_ in FLAGS:
        if f_.startswith("ns"): NS = int(f_[2:])
    DW = NS - 1
    stamp()
    I("s_load_dwordx4 s[16:19], s[0:1], 56")
    I(f"s_mul_i32 s25, s25, {16*NF}")
    I(f"s_min_u32 s25, s25, {F-16*NF}")
    I("v_and_b32 v1, 63, v0")
    PROD = "prod" in FLAGS
    if PROD:
        I("s_cmp_lt_u32 s3, 4")
        I("s_cbranch_scc1 G1_cons")
        DWP = 6
        I("s_lshl_b32 s27, s25, 1")
        for i in range(10):
            I(f"v_add_u32 v20, {64*i}, v1")
            I("v_mul_u32_u24 v21, 3277, v20")
            I("v_lshrrev_b32 v21, 16, v21")
            I("v_mul_u32_u24 v22, 20, v21")
            I("v_sub_u32 v22, v20, v22")
            I("v_bfe_u32 v23, v21, 3, 1")
            I("v_lshlrev_b32 v23, 1, v23")
            I("v_xor_b32 v22, v22, v23")
            I("v_mul_u32_u24 v21, 3456, v21")
            I("v_lshl_add_u32 v21, v22, 4, v21")
            I("v_add_u32 v21, s27, v21")
            I(f"v_subrev_u32 v{2+i}, {1024*(i%4)}, v21")
        I("s_sub_u32 s29, s3, 4")
        I(f"s_mul_i32 s29, s29, {MS}")
        I("s_waitcnt lgkmcnt(0)")
        I("s_cmp_ge_u32 s3, 5")
        I("s_cselect_b32 s4, s18, s16")
        I("s_cselect_b32 s5, s19, s17")
        srd(8, 4, SZ_W)
        pq = []
        def pdma(st):
            I(f"s_mov_b32 s28, {st*32*3456}")
            for i in range(10):
                if i % 4 == 0: I(f"s_add_u32 m0, s29, {(st % NS)*SL + (i//4)*4096}")
                I(f"buffer_load_dwordx4 v{2+i}, s[8:11], s28 offen offset:{1024*(i%4)} lds")
                pq.append(st)
        def pwait(st):
            idx = max(i for i, t in enumerate(pq) if t == st)
            I(f"s_waitcnt vmcnt({len(pq)-1-idx})")
            del pq[:idx+1]
        for st in range(DWP): pdma(st)
        pwait(0)
        I("s_barrier")
        for st in range(NST-1):
            pwait(st+1)
            I("s_barrier")
            if st + DWP < NST: pdma(st + DWP)
        I("s_endpgm")
        e("G1_cons:")
    I("s_and_b32 s26, s3, 1")
    I("s_lshl_b32 s26, s26, 4")
    I("s_lshl_b32 s27, s25, 1")
    for i in range(5 if not PROD else 0):
        I(f"v_add_u32 v10, {64*i}, v1")
        I("v_mul_u32_u24 v11, 3277, v10")
        I("v_lshrrev_b32 v11, 16, v11")
        I("v_mul_u32_u24 v12, 20, v11")
        I("v_sub_u32 v12, v10, v12")
        I("v_add_u32 v11, s26, v11")
        I("v_bfe_u32 v13, v11, 3, 1")
        I("v_lshlrev_b32 v13, 1, v13")
        I("v_xor_b32 v12, v12, v13")
        I("v_mul_u32_u24 v11, 3456, v11")
        I("v_lshl_add_u32 v11, v12, 4, v11")
        I("v_add_u32 v11, s27, v11")
        I(f"v_subrev_u32 v{2+i}, {1024*(i%4)}, v11")
    I("s_lshl_b32 s26, s24, 3")
    I("s_lshl_b32 s27, s3, 1")
    I("s_add_u32 s26, s26, s27")
    I("s_mul_i32 s27, s26, 20480")
    I("v_lshl_add_u32 v7, v1, 4, s27")
    I("v_add_u32 v8, 20480, v7")
    I("s_mul_i32 s27, s26, 55296")
    I("v_lshl_add_u32 v9, v1, 4, s27")
    I("v_add_u32 v10, 55296, v9")
    I("v_bfe_u32 v17, v0, 4, 2")
    I("v_bfe_u32 v18, v0, 2, 2")
    I("v_lshl_add_u32 v19, v17, 3, v18")
    I(f"v_mul_u32_u24 v19, {RS}, v19")
    I("v_and_b32 v18, 3, v0")
    I("v_lshl_add_u32 v19, v18, 3, v19")
    I("v_and_b32 v20, 1, v17")
    I("v_lshlrev_b32 v20, 5, v20")
    I("v_add_u32 v11, v19, v20")
    I("v_sub_u32 v12, v19, v20")
    ROLL = "roll" in FLAGS
    if ROLL:
        for k_, offs in ((1, 3*SL), (2, 4*SL), (3, 7*SL)):
            I(f"v_add_u32 v{11+2*k_}, {offs}, v11")
            I(f"v_add_u32 v{12+2*k_}, {offs}, v12")
    else:
        for rg in (1, 2):
            I(f"v_add_u32 v{11+2*rg}, {rg*3*SL}, v11")
            I(f"v_add_u32 v{12+2*rg}, {rg*3*SL}, v12")
    I("s_mul_i32 s29, s3, 5120")
    I("s_waitcnt lgkmcnt(0)")
    I("s_cmp_ge_u32 s3, 2")
    I("s_cselect_b32 s4, s18, s16")
    I("s_cselect_b32 s5, s19, s17")
    srd(8, 4, SZ_W)
    srd(12, 6, SZ_SD, WS_XN)
    srd(20, 6, SZ_H, WS_H)
    BB = 24; AF = 56; ACC = 80
    def acc(m, jf, js): return ACC + ((m*NF + jf)*2 + js)*4
    vq = []
    def vwait(tags):
        if not any(t in tags for t in vq): return
        idx = max(i for i, t in enumerate(vq) if t in tags)
        n = len(vq) - 1 - idx
        I(f"s_waitcnt vmcnt({n})")
        del vq[:idx+1]
    def dma(st):
        if PROD: return
        I(f"s_add_u32 m0, s29, {(st % NS)*SL}")
        I(f"s_mov_b32 s28, {st*32*3456}")
        for i in range(5):
            if i == 4: I(f"s_add_u32 m0, s29, {(st % NS)*SL + 4096}")
            I(f"buffer_load_dwordx4 v{2+i}, s[8:11], s28 offen offset:{1024*(i%4)} lds")
            vq.append(("D", st))
    def bld(st):
        I(f"s_mov_b32 s31, {st*1024}")
        for js in range(2):
            r = BB + (st % (DB+1))*8 + js*4
            I(f"buffer_load_dwordx4 v[{r}:{r+3}], v{7+js}, s[12:15], s31 offen")
            vq.append(("B", st))
    seq = [(m, jf) for m in range(2) for jf in range(NF)]
    NQ = len(seq)
    def rdx(gpos):
        st, idx = divmod(gpos, NQ)
        m, jf = seq[idx]
        slot = st % NS
        a = AF + (gpos % 4)*4
        va = 11 + 2*(slot // 3) + (jf & 1)
        off = (slot % 3)*SL + m*MS + jf*32
        return [f"ds_read_b64_tr_b16 v[{a}:{a+1}], v{va} offset:{off}",
                f"ds_read_b64_tr_b16 v[{a+2}:{a+3}], v{va} offset:{off+4*RS}"]
    for st in range(DW):
        dma(st)
        if ROLL:
            if st >= DW - DB: bld(st - (DW - DB))
        elif st < DB: bld(st)
    for j in range(4*2*2*NF):
        I(f"v_mov_b32 v{ACC+j}, 0")
    stamp()
    vwait([("D", 0)])
    I("s_barrier")
    for i in range(LA):
        for x in rdx(i): I(x)
    if ROLL:
        assert NS == 8
        I("s_mov_b32 s33, 0")
        I("s_mov_b32 s36, s29")
        I(f"s_add_u32 s37, s29, {4*SL}")
        I(f"s_mov_b32 s28, {DW*32*3456}")
        I(f"s_mov_b32 s31, {DB*1024}")
        def rdr(p, idx, ring):
            m, jf = seq[idx]
            a = AF + (ring % 4)*4
            if p < 3: va = 11 + (jf & 1); off = p*SL
            elif p == 3: va = 13 + (jf & 1); off = 0
            else: va = 15 + (jf & 1); off = 0
            off += m*MS + jf*32
            return [f"ds_read_b64_tr_b16 v[{a}:{a+1}], v{va} offset:{off}",
                    f"ds_read_b64_tr_b16 v[{a+2}:{a+3}], v{va} offset:{off+4*RS}"]
        e("G1_loop:")
        for p_ in range(4):
            I("s_waitcnt vmcnt(14)")
            I(f"s_cmp_lt_u32 s33, {4 if p_ < 2 else 3}")
            I(f"s_cbranch_scc1 G1_w{p_}")
            I("s_waitcnt vmcnt(2)")
            if p_ >= 2:
                I("s_cmp_lt_u32 s33, 4")
                I(f"s_cbranch_scc1 G1_w{p_}")
                I("s_waitcnt vmcnt(0)")
            e(f"G1_w{p_}:")
            I("s_barrier")
            I(f"s_cmp_ge_u32 s33, {4 if p_ == 0 else 3}")
            I(f"s_cbranch_scc1 G1_d{p_}")
            base, offs = ("s37", 3*SL) if p_ == 0 else ("s36", (p_-1)*SL)
            I(f"s_add_u32 m0, {base}, {offs}")
            for i in range(5):
                if i == 4: I(f"s_add_u32 m0, {base}, {offs + 4096}")
                I(f"buffer_load_dwordx4 v{2+i}, s[8:11], s28 offen offset:{1024*(i%4)} lds")
            I(f"s_add_u32 s28, s28, {32*3456}")
            e(f"G1_d{p_}:")
            if p_ > 0:
                I("s_cmp_ge_u32 s33, 4")
                I(f"s_cbranch_scc1 G1_b{p_}")
            for js in range(2):
                r = BB + ((p_ + DB) % 4)*8 + js*4
                I(f"buffer_load_dwordx4 v[{r}:{r+3}], v{7+js}, s[12:15], s31 offen")
            I("s_add_u32 s31, s31, 1024")
            if p_ > 0: e(f"G1_b{p_}:")
            for idx in range(NQ):
                if idx + LA < NQ: rr = rdr(p_, idx + LA, idx + LA)
                else: rr = rdr(p_ + 1, idx + LA - NQ, idx + LA)
                I(f"s_waitcnt lgkmcnt({2*LA-2})")
                m, jf = seq[idx]
                a = AF + (idx % 4)*4
                for js in range(2):
                    c = acc(m, jf, js); b = BB + p_*8 + js*4
                    I(f"v_mfma_f32_16x16x32_bf16 v[{c}:{c+3}], v[{a}:{a+3}], v[{b}:{b+3}], v[{c}:{c+3}]")
                    I(rr[js])
        for k_ in range(4):
            I(f"v_swap_b32 v{11+k_}, v{15+k_}")
        I("s_mov_b32 s38, s36")
        I("s_mov_b32 s36, s37")
        I("s_mov_b32 s37, s38")
        I("s_add_u32 s33, s33, 1")
        I("s_cmp_lt_u32 s33, 5")
        I("s_cbranch_scc1 G1_loop")
        I("s_waitcnt lgkmcnt(0)")
    for st in range(NST if not ROLL else 0):
        if st + 1 < NST:
            vwait([("D", st+1), ("B", st)])
            I("s_barrier")
        else:
            vwait([("B", st)])
        if st + DW < NST and "g1nodma" not in FLAGS: dma(st + DW)
        if st + DB < NST and "g1nob" not in FLAGS: bld(st + DB)
        for idx in range(NQ if "g1nocomp" not in FLAGS else 0):
            gpos = st*NQ + idx
            rr = rdx(gpos + LA) if gpos + LA < NST*NQ else None
            I(f"s_waitcnt lgkmcnt({2*min(LA-1, NST*NQ-1-gpos)})")
            m, jf = seq[idx]
            a = AF + (gpos % 4)*4
            for js in range(2):
                c = acc(m, jf, js); b = BB + (st % (DB+1))*8 + js*4
                I(f"v_mfma_f32_16x16x32_bf16 v[{c}:{c+3}], v[{a}:{a+3}], v[{b}:{b+3}], v[{c}:{c+3}]")
                if rr: I(rr[js])
    stamp()
    I("s_lshr_b32 s34, s25, 5")
    I("s_lshl_b32 s34, s34, 10")
    I("s_add_u32 s35, s34, 4096")
    I("s_nop 7")
    I("s_nop 3")
    for js in range(2):
        for jp in range(NF//2):
            t = 24 + ((js*5 + jp) % 4) * 12
            for hh in range(2):
                jf = 2*jp + hh
                g = acc(0, jf, js); u = acc(1, jf, js)
                I(f"v_cvt_pk_bf16_f32 v{t}, v{g}, v{g+1}")
                I(f"v_cvt_pk_bf16_f32 v{t+1}, v{g+2}, v{g+3}")
                I(f"v_cvt_pk_bf16_f32 v{t+2}, v{u}, v{u+1}")
                I(f"v_cvt_pk_bf16_f32 v{t+3}, v{u+2}, v{u+3}")
                lo16(g, t); hi16(g+1, t); lo16(g+2, t+1); hi16(g+3, t+1)
                lo16(u, t+2); hi16(u+1, t+2); lo16(u+2, t+3); hi16(u+3, t+3)
                for r in range(4):
                    I(f"v_mul_f32 v{g+r}, v{g+r}, v{u+r}")
                I(f"v_cvt_pk_bf16_f32 v{t+4+2*hh}, v{g}, v{g+1}")
                I(f"v_cvt_pk_bf16_f32 v{t+5+2*hh}, v{g+2}, v{g+3}")
            if jp < 4:
                I(f"buffer_store_dwordx4 v[{t+4}:{t+7}], v{9+js}, s[20:23], s34 offen offset:{1024*jp}")
            else:
                I(f"buffer_store_dwordx4 v[{t+4}:{t+7}], v{9+js}, s[20:23], s35 offen")
    if STAMP: I("s_waitcnt vmcnt(0)")
    stamp()
    stamp_dump(5)
    wgt_end(1)
    I("s_endpgm")

def gen_k2():
    kernel_header("mid_kernel")
    if BIG:
        I("s_cmp_ge_u32 s2, 256")
        I("s_cbranch_scc1 M_exit")
        wgt_start()
        I("s_load_dwordx2 s[6:7], s[0:1], 96")
        I("v_lshrrev_b32 v1, 6, v0")
        I("s_nop 0")
        I("v_readfirstlane_b32 s3, v1")
        I("s_lshr_b32 s40, s2, 3")
        I("s_bfe_u32 s41, s2, 0x10002")
        I("s_and_b32 s42, s2, 3")
        I("s_lshl_b32 s43, s41, 2")
        I("s_sub_u32 s43, 24, s43")
        I("s_cmp_ge_u32 s40, s43")
        I("s_cbranch_scc1 M_conv")
        if "nog1" in FLAGS: I("s_endpgm")
        I("s_mul_i32 s24, s42, s43")
        I("s_add_u32 s24, s24, s40")
        I("s_mul_i32 s25, s41, 96")
        I("s_add_u32 s24, s24, s25")
        W0 = 6 if "prod" in FLAGS else 4
        I(f"s_sub_u32 s25, s3, {W0}")
        I("s_mul_i32 s25, s25, 176")
        I("s_add_u32 s24, s24, s25")
        I(f"s_cmp_ge_u32 s3, {W0}")
        I("s_cbranch_scc1 M_wdt")
        I("s_lshl_b32 s24, s42, 2")
        I("s_and_b32 s25, s40, 3")
        I("s_add_u32 s24, s24, s25")
        I("s_mul_i32 s25, s41, 6")
        I("s_lshr_b32 s26, s40, 2")
        I("s_add_u32 s25, s25, s26")
        gen_g1big()
    else:
        gen_g1old()
    gen_aux()

def gen_g1old():
    I(f"s_cmp_ge_u32 s2, {N_G1+N_CV}")
    I("s_cbranch_scc1 M_exit")
    I("s_load_dwordx2 s[6:7], s[0:1], 96")
    I(f"s_cmp_ge_u32 s2, {N_G1}")
    I("s_cbranch_scc1 M_conv")
    if "nog1" in FLAGS: I("s_endpgm")
    stamp()
    if "prio" in FLAGS: I("s_setprio 3")
    I("s_load_dwordx4 s[16:19], s[0:1], 56")
    I("v_lshrrev_b32 v1, 6, v0")
    I("s_nop 0")
    I("v_readfirstlane_b32 s3, v1")
    I("s_waitcnt lgkmcnt(0)")
    if "stamp2" in FLAGS: stamp()
    I("s_cmp_ge_u32 s3, 2")
    I("s_cselect_b32 s4, s18, s16")
    I("s_cselect_b32 s5, s19, s17")
    srd(8, 4, SZ_W)
    srd(12, 6, SZ_SD, WS_XN)
    srd(20, 6, SZ_H, WS_H)
    if "g12d" in FLAGS:
        I("s_and_b32 s24, s2, 3")
        I("s_lshl_b32 s24, s24, 2")
        I("s_bfe_u32 s25, s2, 0x20003")
        I("s_add_u32 s24, s24, s25")
        I("s_bfe_u32 s25, s2, 0x10002")
        I("s_lshl_b32 s25, s25, 3")
        I("s_lshr_b32 s26, s2, 5")
        I("s_add_u32 s25, s25, s26")
    else:
        I("s_and_b32 s24, s2, 15")
        I("s_lshr_b32 s25, s2, 4")
    I(f"s_mul_i32 s25, s25, {BF}")
    I(f"s_min_u32 s25, s25, {F-BF}")
    I("v_and_b32 v1, 63, v0")
    if "pf" in FLAGS:
        I("s_lshr_b32 s26, s2, 3")
        I("s_lshl_b32 s27, s26, 1")
        I("s_and_b32 s28, s3, 1")
        I("s_add_u32 s27, s27, s28")
        I("s_mul_i32 s27, s27, 34560")
        I("s_bfe_u32 s28, s2, 0x10002")
        I("s_mul_i32 s28, s28, 1792")
        I("s_add_u32 s27, s27, s28")
        I("v_lshrrev_b32 v192, 5, v1")
        I("v_mul_u32_u24 v192, 3456, v192")
        I("v_and_b32 v193, 31, v1")
        I("v_lshl_add_u32 v192, v193, 6, v192")
        I("v_add_u32 v192, s27, v192")
        for i in range(5):
            I(f"s_mov_b32 s27, {i*6912}")
            I(f"buffer_load_dword v{194+i}, v192, s[8:11], s27 offen")
        I("s_and_b32 s27, s2, 3")
        I("s_mul_i32 s27, s27, 655360")
        I("s_lshl_b32 s28, s26, 2")
        I("s_add_u32 s28, s28, s3")
        I("s_mul_i32 s28, s28, 5120")
        I("s_add_u32 s27, s27, s28")
        I("v_lshlrev_b32 v193, 6, v1")
        I("buffer_load_dword v199, v193, s[12:15], s27 offen")
        I("buffer_load_dword v200, v193, s[12:15], s27 offen offset:1024")
    I("v_lshrrev_b32 v10, 4, v1")
    I("v_bfe_u32 v11, v1, 1, 3")
    I("v_and_b32 v12, 1, v1")
    I("s_and_b32 s26, s3, 1")
    I("s_lshl_b32 s26, s26, 4")
    I("s_lshl_b32 s27, s25, 1")
    for i in range(4):
        bit = (i >> 1) & 1
        I(f"v_or_b32 v13, {bit<<2}, v10")
        I("v_xor_b32 v13, v13, v11")
        I(f"v_add_u32 v14, {4*i}, v10")
        I("v_add_u32 v14, s26, v14")
        I("v_mul_u32_u24 v14, 3456, v14")
        I("v_lshl_add_u32 v14, v13, 5, v14")
        I("v_lshl_add_u32 v14, v12, 4, v14")
        I("v_add_u32 v14, s27, v14")
        I(f"v_subrev_u32 v14, {1024*i}, v14")
        I("v_cmp_eq_u32 vcc, 7, v13")
        I("v_mov_b32 v15, 0x40000000")
        I("s_nop 0")
        I(f"v_cndmask_b32 v{2+i}, v14, v15, vcc")
    I("v_bfe_u32 v17, v0, 4, 2")
    I("s_lshl_b32 s26, s24, 3")
    I("s_lshl_b32 s27, s3, 1")
    I("s_add_u32 s26, s26, s27")
    I("s_mul_i32 s27, s26, 20480")
    I("v_lshl_add_u32 v6, v1, 4, s27")
    I("v_add_u32 v7, 20480, v6")
    I("s_mul_i32 s27, s26, 55296")
    I("v_lshl_add_u32 v8, v1, 4, s27")
    I("v_add_u32 v9, 55296, v8")
    I("v_bfe_u32 v18, v0, 2, 2")
    I("v_lshl_add_u32 v19, v17, 3, v18")
    I("v_lshlrev_b32 v19, 8, v19")
    I("v_and_b32 v20, 1, v17")
    I("v_lshl_or_b32 v20, v20, 2, v18")
    I("v_lshl_add_u32 v19, v20, 5, v19")
    I("v_and_b32 v18, 3, v0")
    I("v_lshl_add_u32 v19, v18, 3, v19")
    VA = 10
    I("v_mov_b32 v24, v19")
    for jf in range(7):
        I(f"v_xor_b32 v{VA+jf}, {jf<<5}, v24")
        I(f"v_add_u32 v{VA+7+jf}, 0x10000, v{VA+jf}")
    I("s_lshl_b32 s29, s3, 12")
    BB = 24
    AF = 64
    ACC = 80
    def acc(m, jf, js): return ACC + ((m*7 + jf)*2 + js)*4
    def bfr(st, js): return BB + (st % NSLOT)*8 + js*4
    NST = 20
    def issue(slot):
        I(f"s_add_u32 s30, s29, {slot*SLOT}")
        I("s_mov_b32 m0, s30")
        for i in range(4):
            I(f"buffer_load_dwordx4 v{2+i}, s[8:11], s28 offen offset:{1024*i} lds")
        for js in range(2):
            r = BB + slot*8 + js*4
            I(f"buffer_load_dwordx4 v[{r}:{r+3}], v{6+js}, s[12:15], s31 offen")
        I("s_add_u32 s36, s36, 1")
        I("s_cmp_ge_u32 s36, 20")
        I("s_cselect_b32 s36, 0, s36")
        I("s_add_u32 s37, s37, 1")
        I(f"s_mul_i32 s28, s36, {32*3456}")
        I("s_lshl_b32 s31, s36, 10")
        I("s_cmp_ge_u32 s37, 20")
        I("s_cselect_b32 s28, 0x40000000, s28")
        I("s_cselect_b32 s31, 0x40000000, s31")
    if "rot" in FLAGS:
        I("s_and_b32 s36, s24, 3")
        I("s_mul_i32 s36, s36, 5")
        I("s_lshr_b32 s37, s2, 5")
        I("s_mul_i32 s37, s37, 3")
        I("s_add_u32 s36, s36, s37")
        I("s_cmp_ge_u32 s36, 20")
        I("s_cselect_b32 s37, 20, 0")
        I("s_sub_u32 s36, s36, s37")
    else:
        I("s_mov_b32 s36, 0")
    I("s_mov_b32 s37, 0")
    I(f"s_mul_i32 s28, s36, {32*3456}")
    I("s_lshl_b32 s31, s36, 10")
    if "stamp2" in FLAGS: stamp()
    for st in range(NSLOT - 1):
        issue(st)
    if "stamp2" in FLAGS: stamp()
    for j in range(112):
        I(f"v_mov_b32 v{ACC+j}, 0")
    I("s_mov_b32 s33, 0")
    stamp()
    def body(last):
      for slot in range(NSLOT):
        if not last or slot <= 1:
            I(f"s_waitcnt vmcnt({6*(NSLOT-2)})")
        else:
            I(f"s_waitcnt vmcnt({6*(NSLOT-1-slot)})")
        I("s_barrier")
        if not last or slot == 0:
            issue((slot + NSLOT - 1) % NSLOT)
        seq = [(m, jf) for m in range(2) for jf in range(7)]
        def rd(idx):
            m, jf = seq[idx]
            a = AF + (idx % 4)*4
            if slot < 4:
                va = VA + jf; off = slot*SLOT + m*8192
            else:
                va = VA + 7 + jf; off = m*8192
            I(f"ds_read_b64_tr_b16 v[{a}:{a+1}], v{va} offset:{off}")
            I(f"ds_read_b64_tr_b16 v[{a+2}:{a+3}], v{va} offset:{off+1024}")
        for i in range(3):
            rd(i)
        for idx in range(14):
            if idx + 3 < 14:
                rd(idx + 3)
                I("s_waitcnt lgkmcnt(6)")
            else:
                I(f"s_waitcnt lgkmcnt({2*(13-idx)})")
            m, jf = seq[idx]
            a = AF + (idx % 4)*4
            for js in range(2):
                c = acc(m, jf, js); b = BB + slot*8 + js*4
                I(f"v_mfma_f32_16x16x32_bf16 v[{c}:{c+3}], v[{a}:{a+3}], v[{b}:{b+3}], v[{c}:{c+3}]")
    XS = "xs" in FLAGS
    LA = 3
    for f in FLAGS:
        if f.startswith("la"): LA = int(f[2:])
    RING = [64,68,72,76,192,196,200] if LA > 3 else [64,68,72,76,192]
    seq = [(m, jf) for m in range(2) for jf in range(7)]
    ring = [0]
    def rdx(slot, idx, pos):
        m, jf = seq[idx]
        a = RING[pos % len(RING)]
        if slot < 4:
            va = VA + jf; off = slot*SLOT + m*8192
        else:
            va = VA + 7 + jf; off = m*8192
        return [f"ds_read_b64_tr_b16 v[{a}:{a+1}], v{va} offset:{off}",
                f"ds_read_b64_tr_b16 v[{a+2}:{a+3}], v{va} offset:{off+1024}"]
    def body_xs(last):
      for slot in range(NSLOT):
        fin_stage = last and slot == NSLOT-1
        if not fin_stage:
            if not last or slot <= 1:
                I("s_waitcnt vmcnt(12)")
            else:
                I(f"s_waitcnt vmcnt({6*(NSLOT-2-slot)})")
            if "g1nobar" not in FLAGS: I("s_barrier")
        if (not last or slot == 0) and "g1noload" not in FLAGS:
            issue((slot + NSLOT - 1) % NSLOT)
        for idx in range(14 if "g1nocomp" not in FLAGS else 0):
            pos = idx + 14*slot
            if idx + LA < 14:
                rr = rdx(slot, idx + LA, pos + LA)
            elif not fin_stage:
                rr = rdx((slot + 1) % NSLOT, idx + LA - 14, pos + LA)
            else:
                rr = None
            I(f"s_waitcnt lgkmcnt({2*(LA-1) if not fin_stage else 2*min(LA-1, 13-idx)})")
            m, jf = seq[idx]
            a = RING[pos % len(RING)]
            for js in range(2):
                c = acc(m, jf, js); b = BB + slot*8 + js*4
                I(f"v_mfma_f32_16x16x32_bf16 v[{c}:{c+3}], v[{a}:{a+3}], v[{b}:{b+3}], v[{c}:{c+3}]")
                if rr: I(rr[js])
    if XS:
        I("s_waitcnt vmcnt(18)")
        I("s_barrier")
        for i in range(LA):
            for x in rdx(0, i, i): I(x)
    e("G1_loop:")
    (body_xs if XS else body)(False)
    I("s_add_u32 s33, s33, 1")
    I(f"s_cmp_lt_u32 s33, {NST//NSLOT - 1}")
    I("s_cbranch_scc1 G1_loop")
    (body_xs if XS else body)(True)
    stamp()
    I("s_waitcnt vmcnt(0)")
    I("s_nop 7")
    I("s_nop 3")
    T = 24
    for js in range(2):
        for jf in range(7):
            g = acc(0, jf, js); u = acc(1, jf, js)
            t = T + ((js*7 + jf) % 4) * 8
            I(f"v_cvt_pk_bf16_f32 v{t}, v{g}, v{g+1}")
            I(f"v_cvt_pk_bf16_f32 v{t+1}, v{g+2}, v{g+3}")
            I(f"v_cvt_pk_bf16_f32 v{t+2}, v{u}, v{u+1}")
            I(f"v_cvt_pk_bf16_f32 v{t+3}, v{u+2}, v{u+3}")
            lo16(g, t); hi16(g+1, t); lo16(g+2, t+1); hi16(g+3, t+1)
            lo16(u, t+2); hi16(u+1, t+2); lo16(u+2, t+3); hi16(u+3, t+3)
            for r in range(4):
                I(f"v_mul_f32 v{g+r}, v{g+r}, v{u+r}")
            I(f"v_cvt_pk_bf16_f32 v{t+4}, v{g}, v{g+1}")
            I(f"v_cvt_pk_bf16_f32 v{t+5}, v{g+2}, v{g+3}")
            I(f"s_add_u32 s34, s25, {16*jf}")
            I("s_lshr_b32 s35, s34, 5")
            I("s_lshl_b32 s35, s35, 10")
            I("s_and_b32 s34, s34, 16")
            I("s_lshr_b32 s34, s34, 1")
            I("s_add_u32 s35, s35, s34")
            I(f"buffer_store_dwordx2 v[{t+4}:{t+5}], v{8+js}, s[20:23], s35 offen")
    I("s_waitcnt vmcnt(0)")
    stamp()
    stamp_dump(5)
    I("s_endpgm")

def gen_aux():
    e("M_conv:")
    if "noconv" in FLAGS: I("s_endpgm")
    XREG = 7680; CST = 800; HBUF = 8*CST; WREG = 20480
    stamp()
    I("s_load_dwordx4 s[16:19], s[0:1], 32")
    if BIG:
        I("s_sub_u32 s24, 32, s43")
        I("s_mul_i32 s24, s24, s42")
        I("s_add_u32 s24, s24, s40")
        I("s_sub_u32 s24, s24, s43")
        I("s_lshl_b32 s25, s41, 5")
        I("s_add_u32 s24, s24, s25")
        I("s_lshl_b32 s24, s24, 3")
        I("s_add_u32 s24, s24, s3")
    else:
        I("v_lshrrev_b32 v1, 6, v0")
        I("s_nop 0")
        I("v_readfirstlane_b32 s3, v1")
        I(f"s_sub_u32 s25, s2, {N_G1}")
        I("s_cmp_ge_u32 s25, 128")
        I("s_cbranch_scc1 M_aux_hi")
        I("s_mov_b32 s24, s25")
        I("s_cmp_eq_u32 s3, 3")
        I("s_cbranch_scc1 M_wdt")
        I("s_mul_i32 s24, s25, 3")
        I("s_add_u32 s24, s24, s3")
        I("s_branch M_conv2")
        e("M_aux_hi:")
        I("s_sub_u32 s25, s25, 128")
        I("s_lshl_b32 s25, s25, 1")
        I("s_add_u32 s24, s25, s3")
        I("s_add_u32 s24, s24, 126")
        I("s_cmp_ge_u32 s3, 2")
        I("s_cbranch_scc1 M_wdt")
        I("s_add_u32 s24, s25, s3")
        I("s_add_u32 s24, s24, 384")
    e("M_conv2:")
    I("s_waitcnt lgkmcnt(0)")
    srd(8, 16, SZ_SD)
    srd(12, 6, SZ_SD, WS_KVR)
    srd(20, 6, SZ_SD, WS_YT)
    I("s_lshr_b32 s25, s24, 1")
    I("s_lshl_b32 s25, s25, 2")
    I("s_load_dword s26, s[18:19], s25")
    I("v_and_b32 v1, 63, v0")
    I("s_lshl_b32 s27, s24, 12")
    I("v_lshl_add_u32 v2, v1, 4, s27")
    XL = 16
    for j in range(4):
        I(f"buffer_load_dwordx4 v[{XL+4*j}:{XL+4*j+3}], v2, s[12:15], 0 offen offset:{1024*j}")
    HW0, HW1 = 32, 40
    I("v_subrev_u32 v13, 64, v2")
    I("v_mov_b32 v5, 0x40000000")
    I("v_cmp_gt_u32 vcc, 4, v1")
    I("s_nop 1")
    I("v_cndmask_b32 v4, v13, v5, vcc")
    I("v_add_u32 v6, 16, v13")
    I("v_cmp_gt_u32 vcc, 3, v1")
    I("s_nop 1")
    I("v_cndmask_b32 v6, v6, v5, vcc")
    I(f"buffer_load_dwordx4 v[{HW0}:{HW0+3}], v4, s[8:11], 0 offen")
    I(f"buffer_load_dwordx4 v[{HW0+4}:{HW0+7}], v6, s[8:11], 0 offen")
    I(f"buffer_load_dwordx4 v[{HW1}:{HW1+3}], v2, s[8:11], 0 offen offset:448")
    I(f"buffer_load_dwordx4 v[{HW1+4}:{HW1+7}], v2, s[8:11], 0 offen offset:464")
    I("s_mov_b32 s29, 960")
    I(f"s_mul_i32 s28, s3, {WREG}")
    Z = 96
    for j in range(4):
        I(f"v_mov_b32 v{Z+j}, 0")
    I("v_lshl_add_u32 v3, v1, 4, s28")
    I(f"ds_write_b128 v3, v[{Z}:{Z+3}] offset:5120")
    I(f"ds_write_b128 v3, v[{Z}:{Z+3}] offset:6144")
    I(f"ds_write_b128 v3, v[{Z}:{Z+3}] offset:6656")
    I("v_lshrrev_b32 v4, 2, v1")
    I("v_mul_u32_u24 v4, 80, v4")
    I("v_and_b32 v5, 3, v1")
    I("v_lshl_add_u32 v4, v5, 4, v4")
    I("v_add_u32 v4, s28, v4")
    I("v_and_b32 v5, 31, v1")
    I("v_lshrrev_b32 v6, 5, v1")
    I("v_and_b32 v7, 7, v5")
    I(f"v_mul_u32_u24 v7, {CST}, v7")
    I("v_lshrrev_b32 v8, 3, v5")
    I("v_add_u32 v8, v8, v6")
    I("v_lshl_add_u32 v7, v8, 4, v7")
    I(f"v_add_u32 v7, {XREG}, v7")
    I("v_add_u32 v7, s28, v7")
    I(f"v_add_u32 v14, {HBUF}, v7")
    I("v_sub_u32 v8, 63, v5")
    I("v_mul_u32_u24 v8, 80, v8")
    I("v_lshl_add_u32 v8, v6, 4, v8")
    I("v_add_u32 v8, s28, v8")
    I("v_mov_b32 v15, v8")
    I("v_subrev_u32 v9, 2560, v8")
    I(f"v_add_u32 v10, {XREG}, v3")
    I(f"v_add_u32 v11, {HBUF}, v10")
    AC0, AC1 = 100, 116
    for j in range(32):
        I(f"v_mov_b32 v{AC0+j}, 0")
    FR = 132
    UE, UO, WO = 180, 189, 197
    I("s_mov_b32 s30, -1")
    I("s_mov_b32 s31, 0xf")
    q = DSQ()
    def stage_seg(w, addr):
        for t in range(7):
            I(f"v_alignbit_b32 v{UE+t}, v{w+t+1}, v{w+t}, 16")
            I(f"v_alignbit_b32 v{UO+t}, v{w+t+1}, v{w+t}, 16")
        for t in range(1, 7):
            I(f"v_mov_b32 v{WO+t}, v{w+t}")
        I("s_mov_b64 exec, s[30:31]")
        for c in range(8):
            if c % 2 == 0:
                t0 = c // 2
                r = UE + t0 if t0 % 2 == 0 else UO + t0
            else:
                t0 = (1 + c)//2
                r = w + t0 if t0 % 2 == 0 else WO + t0
            assert r % 2 == 0, (c, r)
            I(f"ds_write_b128 v{addr}, v[{r}:{r+3}] offset:{c*CST}")
            q.push(("w", 0))
        I("s_mov_b64 exec, -1")
    I("s_waitcnt vmcnt(2)")
    stamp()
    for j in range(4):
        I(f"ds_write_b128 v4, v[{XL+4*j}:{XL+4*j+3}] offset:{16*80*j}")
    stage_seg(HW0, 10)
    q = DSQ()
    def crd(c, both):
        f = FR + (c % 4)*12
        boff = (c >> 1)*80 + (c & 1)*32
        if c < 16:
            I(f"ds_read_b128 v[{f}:{f+3}], v7 offset:{32*c}")
        else:
            I(f"ds_read_b128 v[{f}:{f+3}], v14 offset:{32*(c-16)}")
        q.push(("r", c))
        I(f"ds_read_b128 v[{f+4}:{f+7}], v9 offset:{boff}")
        q.push(("r", c))
        if both:
            I(f"ds_read_b128 v[{f+8}:{f+11}], v8 offset:{boff}")
            q.push(("r", c))
    for c in range(3):
        crd(c, True)
    I("s_mov_b32 s33, 0")
    stamp()
    for phase in range(2):
        both = (phase == 0)
        e(f"CV_loop{phase}:")
        q.q = [("r", c) for c in range(3) for _ in range(3 if both else 2)]
        for c in range(16):
            if c == 1:
                I("s_waitcnt vmcnt(0)")
                stage_seg(HW1, 11)
                I(f"buffer_load_dwordx4 v[{HW1}:{HW1+3}], v2, s[8:11], s29 offen")
                I(f"buffer_load_dwordx4 v[{HW1+4}:{HW1+7}], v2, s[8:11], s29 offen offset:16")
                I("s_add_u32 s29, s29, 512")
            crd(c + 3, both)
            q.wait_for(("r", c))
            f = FR + (c % 4)*12
            I(f"v_mfma_f32_32x32x16_bf16 v[{AC1}:{AC1+15}], v[{f}:{f+3}], v[{f+4}:{f+7}], v[{AC1}:{AC1+15}]")
            if both:
                I(f"v_mfma_f32_32x32x16_bf16 v[{AC0}:{AC0+15}], v[{f}:{f+3}], v[{f+8}:{f+11}], v[{AC0}:{AC0+15}]")
        I("v_swap_b32 v7, v14")
        I("v_swap_b32 v10, v11")
        I("v_add_u32 v8, 640, v8")
        I("v_add_u32 v9, 640, v9")
        I("s_add_u32 s33, s33, 1")
        I(f"s_cmp_lt_u32 s33, {4*(phase+1)}")
        I(f"s_cbranch_scc1 CV_loop{phase}")
    I("v_mov_b32 v8, v15")
    I("s_waitcnt vmcnt(0) lgkmcnt(0)")
    stamp()
    I("v_mul_u32_u24 v10, 24, v6")
    I("v_sub_u32 v10, v8, v10")
    I("v_add_u32 v10, 8, v10")
    I("v_subrev_u32 v11, 2560, v10")
    KV = 16
    for cb in range(2):
        for qq in range(4):
            I(f"ds_read_b64 v[{KV+cb*8+2*qq}:{KV+cb*8+2*qq+1}], v{10+cb} offset:{48-16*qq}")
    I("s_and_b32 s25, s24, 1")
    I("s_lshl_b32 s25, s25, 4")
    I("s_lshr_b32 s26, s26, s25")
    I("s_lshl_b32 s26, s26, 16")
    I("v_lshlrev_b32 v12, 6, v5")
    I("v_lshl_add_u32 v12, v6, 3, v12")
    I("v_add_u32 v12, s27, v12")
    I("s_nop 7")
    I("s_waitcnt lgkmcnt(0)")
    for cb in range(2):
        ac = AC0 if cb == 0 else AC1
        for qq in range(4):
            k0 = KV + cb*8 + 2*qq
            t = 40 + (qq % 2)*12
            y = ac + 4*qq
            hi16(t+0, k0+1); lo16(t+1, k0+1); hi16(t+2, k0); lo16(t+3, k0)
            for r in range(4):
                I(f"v_mul_f32 v{t+r}, s26, v{t+r}")
            I(f"v_cvt_pk_bf16_f32 v{t+4}, v{t}, v{t+1}")
            I(f"v_cvt_pk_bf16_f32 v{t+5}, v{t+2}, v{t+3}")
            I(f"v_cvt_pk_bf16_f32 v{t+6}, v{y}, v{y+1}")
            I(f"v_cvt_pk_bf16_f32 v{t+7}, v{y+2}, v{y+3}")
            lo16(t, t+4); hi16(t+1, t+4); lo16(t+2, t+5); hi16(t+3, t+5)
            lo16(y, t+6); hi16(y+1, t+6); lo16(y+2, t+7); hi16(y+3, t+7)
            for r in range(4):
                I(f"v_add_f32 v{t+r}, v{t+r}, v{y+r}")
            I(f"v_cvt_pk_bf16_f32 v{t+8}, v{t}, v{t+1}")
            I(f"v_cvt_pk_bf16_f32 v{t+9}, v{t+2}, v{t+3}")
            I(f"buffer_store_dwordx2 v[{t+8}:{t+9}], v12, s[20:23], 0 offen offset:{cb*2048+16*qq}")
    I("s_waitcnt vmcnt(0)")
    stamp()
    stamp_dump(255 if BIG else N_G1 + 7)
    if BIG: wgt_end(1)
    I("s_endpgm")
    e("M_wdt:")
    I("s_waitcnt lgkmcnt(0)")
    if BIG and "pfm" in FLAGS:
        I("s_sub_u32 s26, s3, 6")
        I("s_mul_i32 s27, s26, 176")
        I("s_sub_u32 s27, s24, s27")
        I("s_lshl_b32 s26, s26, 3")
        I("s_add_u32 s26, s26, 56")
        I("s_load_dwordx2 s[28:29], s[0:1], s26")
        I("s_mul_i32 s27, s27, 12800")
        I(f"s_mov_b32 s30, {SZ_W}")
        I("s_mov_b32 s31, 0x00020000")
        I("v_and_b32 v1, 63, v0")
        I("v_lshlrev_b32 v1, 4, v1")
        I("s_waitcnt lgkmcnt(0)")
        for i in range(13):
            I(f"buffer_load_dwordx4 v[{100+4*i}:{103+4*i}], v1, s[28:31], s27 offen")
            I("s_add_u32 s27, s27, 1024")
    if "pfa128" in FLAGS or "pfa64" in FLAGS:
        G = 128 if "pfa128" in FLAGS else 64
        NL = 1792 // G
        I("s_cmp_lg_u32 s3, 3")
        I("s_cbranch_scc1 M_nopf")
        I("s_bfe_u32 s26, s2, 0x50003")
        I("s_lshr_b32 s27, s26, 4")
        I("s_lshl_b32 s27, s27, 3")
        I("s_add_u32 s27, s27, 56")
        I("s_load_dwordx2 s[28:29], s[0:1], s27")
        I("s_and_b32 s26, s26, 15")
        I("s_mul_i32 s26, s26, 138240")
        I("s_bfe_u32 s27, s2, 0x10002")
        I("s_mul_i32 s27, s27, 1792")
        I("s_add_u32 s26, s26, s27")
        I(f"s_mov_b32 s30, {SZ_W}")
        I("s_mov_b32 s31, 0x00020000")
        I("v_and_b32 v1, 63, v0")
        I("s_waitcnt lgkmcnt(0)")
        n = (40*NL + 63)//64
        mul = (65536 + NL - 1)//NL
        for i in range(n):
            I(f"v_add_u32 v2, {64*i}, v1")
            I(f"v_mul_u32_u24 v3, {mul}, v2")
            I("v_lshrrev_b32 v3, 16, v3")
            I(f"v_mul_u32_u24 v4, {NL}, v3")
            I("v_sub_u32 v4, v2, v4")
            I("v_mul_u32_u24 v3, 3456, v3")
            I(f"v_lshl_add_u32 v{100+i}, v4, {7 if G==128 else 6}, v3")
            I(f"buffer_load_dword v{140+i}, v{100+i}, s[28:31], s26 offen")
        e("M_nopf:")
    I("s_cmp_ge_u32 s24, 270")
    I("s_cbranch_scc1 M_exitw")
    I("s_load_dwordx2 s[4:5], s[0:1], 72")
    I("s_mul_i32 s17, s24, 0xCCCD")
    I("s_lshr_b32 s17, s17, 19")
    I("s_mul_i32 s18, s17, 10")
    I("s_sub_u32 s18, s24, s18")
    I("v_and_b32 v1, 7, v0")
    I("v_bfe_u32 v2, v0, 3, 2")
    I("v_bfe_u32 v6, v0, 5, 1")
    I("s_lshl_b32 s18, s18, 6")
    I("v_lshl_add_u32 v1, v1, 3, s18")
    I("s_lshl_b32 s19, s17, 1")
    I("v_add_u32 v6, s19, v6")
    I("v_lshlrev_b32 v7, 5, v6")
    I("v_lshl_add_u32 v7, v2, 2, v7")
    I("v_mul_u32_u24 v3, 0x500, v7")
    I("v_lshl_add_u32 v3, v1, 1, v3")
    I("v_add_u32 v4, 0x5000, v3")
    I("s_waitcnt lgkmcnt(0)")
    srd(8, 4, SZ_W)
    srd(12, 6, SZ_W, WS_WDT)
    for i in range(8):
        b = 3 if i < 4 else 4
        I(f"buffer_load_dwordx4 v[{8+4*i}:{11+4*i}], v{b}, s[8:11], 0 offen offset:{(i%4)*1280}")
    I("s_mov_b32 s20, 0x05040100")
    I("s_mov_b32 s21, 0x07060302")
    I("v_lshrrev_b32 v5, 4, v1")
    I("v_mul_u32_u24 v5, 54, v5")
    I("v_add_u32 v5, v5, v6")
    I("v_lshlrev_b32 v5, 10, v5")
    I("v_lshl_add_u32 v5, v2, 8, v5")
    I("v_and_b32 v7, 15, v1")
    I("v_lshl_add_u32 v5, v7, 4, v5")
    I("s_waitcnt vmcnt(0)")
    for dd in range(8):
        ob = 40 + 4*dd
        sel = 20 + (dd & 1)
        for q in range(4):
            I(f"v_perm_b32 v{ob+q}, v{8+4*(2*q+1)+dd//2}, v{8+4*(2*q)+dd//2}, s{sel}")
    for dd in range(8):
        ob = 40 + 4*dd
        I(f"buffer_store_dwordx4 v[{ob}:{ob+3}], v5, s[12:15], 0 offen offset:{16*dd}")
    e("M_exitw:")
    I("s_waitcnt vmcnt(0)")
    e("M_exit:")
    I("s_endpgm")
    kernel_desc("mid_kernel", 240 if BIG else 208, 80)

def gen_k3():
    kernel_header("fin_kernel")
    I(f"s_cmp_ge_u32 s2, {64 if 'fin64' in FLAGS else 256}")
    I("s_cbranch_scc1 F_exit")
    I("s_load_dwordx2 s[6:7], s[0:1], 96")
    I("s_load_dwordx2 s[4:5], s[0:1], 0")
    I("s_load_dwordx2 s[30:31], s[0:1], 80")
    stamp()
    I("v_lshrrev_b32 v1, 6, v0")
    I("s_nop 0")
    I("v_readfirstlane_b32 s3, v1")
    I("s_waitcnt lgkmcnt(0)")
    srd(8, 6, SZ_W, WS_WDT)
    srd(12, 6, SZ_H, WS_H)
    srd(16, 6, SZ_SD, WS_YT)
    srd(20, 6, SZ_SD, WS_XN)
    srd(24, 4, SZ_SD)
    srd(32, 30, SZ_SD)
    if "fin2d" in FLAGS:
        I("s_and_b32 s36, s2, 1")
        I("s_lshl_b32 s36, s36, 2")
        I("s_bfe_u32 s37, s2, 0x20003")
        I("s_add_u32 s36, s36, s37")
        I("s_mul_i32 s36, s36, 80")
        I("s_bfe_u32 s37, s2, 0x20001")
        I("s_lshl_b32 s37, s37, 3")
        I("s_lshr_b32 s38, s2, 5")
        I("s_add_u32 s37, s37, s38")
        I("s_lshl_b32 s37, s37, 6")
    elif "finswap" in FLAGS:
        I("s_lshr_b32 s36, s2, 5")
        I("s_mul_i32 s36, s36, 80")
        I("s_and_b32 s37, s2, 31")
        I("s_lshl_b32 s37, s37, 6")
    else:
        I("s_and_b32 s36, s2, 7")
        I("s_mul_i32 s36, s36, 80")
        I("s_lshr_b32 s37, s2, 3")
        I("s_lshl_b32 s37, s37, 6")
    I("s_mul_i32 s38, s3, 14")
    I("s_cmp_eq_u32 s3, 3")
    I("s_cselect_b32 s39, 1, 0")
    I("s_sub_u32 s38, s38, s39")
    I("s_cmp_ge_u32 s3, 2")
    I("s_cselect_b32 s39, 13, 14")
    I("s_add_u32 s47, s38, s39")
    I("s_lshl_b32 s45, s38, 10")
    I("s_lshl_b32 s47, s47, 10")
    if "rot" in FLAGS:
        I("s_bfe_u32 s46, s2, 0x20003")
        I("s_lshl_b32 s46, s46, 2")
        I("s_lshr_b32 s44, s2, 5")
        I("s_lshl_b32 s44, s44, 1")
        I("s_add_u32 s46, s46, s44")
        I("s_cmp_ge_u32 s46, 13")
        I("s_cselect_b32 s44, 13, 0")
        I("s_sub_u32 s46, s46, s44")
        I("s_cmp_ge_u32 s46, 13")
        I("s_cselect_b32 s44, 13, 0")
        I("s_sub_u32 s46, s46, s44")
        I("s_lshl_b32 s46, s46, 10")
        I("s_add_u32 s46, s46, s45")
    else:
        I("s_mov_b32 s46, s45")
    I("s_mov_b32 s44, 0")
    I("v_and_b32 v1, 15, v0")
    I("v_bfe_u32 v2, v0, 4, 2")
    I("v_and_b32 v12, 63, v0")
    if "pf" in FLAGS:
        I("s_lshr_b32 s52, s2, 3")
        I("s_lshl_b32 s52, s52, 2")
        I("s_add_u32 s52, s52, s3")
        I("s_and_b32 s53, s2, 1")
        I("s_mul_i32 s53, s53, 1105920")
        I("s_mul_i32 s54, s52, 8640")
        I("s_add_u32 s53, s53, s54")
        I("v_lshlrev_b32 v240, 6, v12")
        I("buffer_load_dword v241, v240, s[8:11], s53 offen")
        I("s_add_u32 s53, s53, 4096")
        I("buffer_load_dword v242, v240, s[8:11], s53 offen")
        I("s_add_u32 s53, s53, 544")
        I("buffer_load_dword v243, v240, s[8:11], s53 offen")
        I("s_bfe_u32 s53, s2, 0x20001")
        I("s_mul_i32 s53, s53, 1769472")
        I("s_mul_i32 s54, s52, 13824")
        I("s_add_u32 s53, s53, s54")
        for i, inc in enumerate((4096, 4096, 1536, 0)):
            I(f"buffer_load_dword v{244+i}, v240, s[12:15], s53 offen")
            if inc: I(f"s_add_u32 s53, s53, {inc}")
    I("s_lshr_b32 s52, s36, 4")
    I("s_mul_i32 s52, s52, 55296")
    I("v_lshl_add_u32 v3, v12, 4, s52")
    for jd in range(1, 5):
        I(f"v_add_u32 v{3+jd}, {jd*55296}, v3")
    I("s_lshr_b32 s52, s37, 4")
    I("s_mul_i32 s52, s52, 55296")
    I("v_lshl_add_u32 v8, v12, 4, s52")
    for js in range(1, 4):
        I(f"v_add_u32 v{8+js}, {js*55296}, v8")
    def acc(jd, js): return (js*5 + jd)*4
    FRB = 16
    NB = 5
    def ld(buf):
        f = FRB + buf*36
        I("s_cmp_lt_u32 s44, s39")
        I("s_cselect_b32 s48, s46, 0x40000000")
        for jd in range(5):
            r = f + 4*jd
            I(f"buffer_load_dwordx4 v[{r}:{r+3}], v{3+jd}, s[8:11], s48 offen{CP}")
        for js in range(4):
            r = f + 20 + 4*js
            I(f"buffer_load_dwordx4 v[{r}:{r+3}], v{8+js}, s[12:15], s48 offen{CP}")
        I("s_add_u32 s46, s46, 1024")
        I("s_cmp_ge_u32 s46, s47")
        I("s_cselect_b32 s46, s45, s46")
        I("s_add_u32 s44, s44, 1")
    def mm(buf):
        f = FRB + buf*36
        for js in range(4):
            for jd in range(5):
                c = acc(jd, js)
                a = f + 4*jd; b = f + 20 + 4*js
                I(f"v_mfma_f32_16x16x32_bf16 a[{c}:{c+3}], v[{a}:{a+3}], v[{b}:{b+3}], a[{c}:{c+3}]")
    I("s_lshr_b32 s41, s3, 1")
    I("s_lshl_b32 s41, s41, 5")
    I("s_add_u32 s41, s41, s37")
    I("s_lshl_b32 s41, s41, 1")
    I("v_add_u32 v14, s36, v1")
    I("v_lshlrev_b32 v14, 12, v14")
    I("v_lshl_add_u32 v14, v2, 4, v14")
    I("v_add_u32 v14, s41, v14")
    YF = 196
    for jd in range(5):
        I(f"v_add_u32 v15, {jd*16*4096}, v14")
        I(f"buffer_load_dwordx4 v[{YF+4*jd}:{YF+4*jd+3}], v15, s[16:19], 0 offen")
    I("s_lshl_b32 s42, s3, 4")
    I("s_add_u32 s42, s42, s37")
    I("v_add_u32 v15, s42, v1")
    I("v_mul_u32_u24 v15, 0x500, v15")
    I("v_lshl_add_u32 v15, v2, 3, v15")
    I("s_lshl_b32 s43, s36, 1")
    I("v_add_u32 v15, s43, v15")
    XX = 216
    I("s_lshr_b32 s50, s42, 4")
    I("s_mul_i32 s50, s50, 20480")
    I("v_lshrrev_b32 v14, 1, v2")
    I("v_lshlrev_b32 v14, 8, v14")
    I("v_lshl_add_u32 v14, v1, 4, v14")
    I("v_and_b32 v13, 1, v2")
    I("v_lshl_add_u32 v14, v13, 3, v14")
    I("v_add_u32 v14, s50, v14")
    for jd in range(5):
        I(f"buffer_load_dwordx2 v[{XX+2*jd}:{XX+2*jd+1}], v15, s[24:27], 0 offen offset:{32*jd}")
        I(f"s_add_u32 s50, s36, {16*jd}")
        I("s_lshr_b32 s51, s50, 5")
        I("s_lshl_b32 s51, s51, 10")
        I("s_and_b32 s50, s50, 16")
        I("s_lshl_b32 s50, s50, 5")
        I("s_add_u32 s51, s51, s50")
        I(f"buffer_load_dwordx2 v[{XX+10+2*jd}:{XX+11+2*jd}], v14, s[20:23], s51 offen")
    NB2 = NB
    for f_ in FLAGS:
        if f_.startswith("nb"): NB2 = int(f_[2:])
    def breg(buf, i):
        if buf < 5: return "v", FRB + buf*36 + 4*i
        return "a", 80 + (buf-5)*36 + 4*i
    def ld2(buf):
        for jd in range(5):
            t, r = breg(buf, jd)
            I(f"buffer_load_dwordx4 {t}[{r}:{r+3}], v{3+jd}, s[8:11], s46 offen{CP}")
        for js in range(4):
            t, r = breg(buf, 5+js)
            I(f"buffer_load_dwordx4 {t}[{r}:{r+3}], v{8+js}, s[12:15], s46 offen{CP}")
        I("s_add_u32 s46, s46, 1024")
    def mm2(buf):
        for js in range(4):
            for jd in range(5):
                c = acc(jd, js)
                t, a = breg(buf, jd); t, b = breg(buf, 5+js)
                I(f"v_mfma_f32_16x16x32_bf16 a[{c}:{c+3}], {t}[{a}:{a+3}], {t}[{b}:{b+3}], a[{c}:{c+3}]")
    for b in range(NB2-1):
        ld2(b)
    for j in range(80):
        I(f"v_accvgpr_write_b32 a{j}, 0")
    stamp()
    for k in range(14):
        nb = k + NB2 - 1
        if nb <= 12:
            ld2(nb % NB2)
        elif nb == 13:
            I("s_cmp_ge_u32 s3, 2")
            I("s_cbranch_scc1 F_skip13")
            ld2(nb % NB2)
            e("F_skip13:")
        if k == 13:
            I("s_cmp_ge_u32 s3, 2")
            I("s_cbranch_scc1 F_done")
        rem = max(0, min(12, nb) - k)
        if k < 13: I(f"s_waitcnt vmcnt({9*rem})")
        mm2(k % NB2)
    e("F_done:")
    stamp()
    I("s_mul_i32 s40, s3, 20480")
    I("v_lshlrev_b32 v13, 4, v12")
    I("v_add_u32 v13, s40, v13")
    I("s_nop 7")
    for js in range(4):
        for jd in range(5):
            c = acc(jd, js)
            I(f"ds_write_b128 v13, a[{c}:{c+3}] offset:{(js*5+jd)*1024}")
    I("s_waitcnt lgkmcnt(0)")
    I("s_barrier")
    I("s_mul_i32 s40, s3, 5120")
    I("v_lshlrev_b32 v12, 4, v12")
    I("v_add_u32 v13, s40, v12")
    I("v_add_u32 v12, 40960, v13")
    R = 96
    for src in range(4):
        for jd in range(5):
            r = R + (src*5 + jd)*4
            I(f"ds_read_b128 v[{r}:{r+3}], v{13 if src < 2 else 12} offset:{(src%2)*20480 + jd*1024}")
    IDB = 60
    I("s_and_b32 s44, s3, 1")
    I("s_lshl_b32 s44, s44, 4")
    I("v_add_u32 v64, s44, v1")
    I("v_lshrrev_b32 v65, 3, v64")
    I("v_cmp_eq_u32 vcc, v65, v2")
    I("v_and_b32 v65, 7, v64")
    I("v_and_b32 v66, 1, v65")
    I("v_lshlrev_b32 v66, 4, v66")
    I("v_mov_b32 v67, 0x3f80")
    I("v_lshlrev_b32 v67, v66, v67")
    I("v_lshrrev_b32 v65, 1, v65")
    I("v_cndmask_b32 v67, 0, v67, vcc")
    for j in range(4):
        I(f"v_cmp_eq_u32 vcc, {j}, v65")
        I("s_nop 1")
        I(f"v_cndmask_b32 v{IDB+j}, 0, v67, vcc")
    TY = 64
    I("s_nop 1")
    for jd in range(5):
        I(f"v_mfma_f32_16x16x32_bf16 v[{TY+4*jd}:{TY+4*jd+3}], v[{YF+4*jd}:{YF+4*jd+3}], v[{IDB}:{IDB+3}], 0")
    I("s_waitcnt lgkmcnt(0)")
    for jd in range(5):
        r0 = R + jd*4
        for src in range(1, 4):
            r = R + (src*5 + jd)*4
            for j in range(4):
                I(f"v_add_f32 v{r0+j}, v{r0+j}, v{r+j}")
    I("s_waitcnt vmcnt(0)")
    for jd in range(5):
        b = R + jd*4
        ty = TY + 4*jd
        t = 180 + (jd % 2)*16
        x0 = XX + 2*jd; n0 = XX + 10 + 2*jd
        lo16(t, n0); hi16(t+1, n0); lo16(t+2, n0+1); hi16(t+3, n0+1)
        for r in range(4):
            I(f"v_mul_f32 v{t+r}, v{t+r}, v{ty+r}")
        I(f"v_cvt_pk_bf16_f32 v{t+4}, v{t}, v{t+1}")
        I(f"v_cvt_pk_bf16_f32 v{t+5}, v{t+2}, v{t+3}")
        lo16(t, t+4); hi16(t+1, t+4); lo16(t+2, t+5); hi16(t+3, t+5)
        lo16(t+6, x0); hi16(t+7, x0); lo16(t+8, x0+1); hi16(t+9, x0+1)
        for r in range(4):
            I(f"v_add_f32 v{t+r}, v{t+r}, v{t+6+r}")
        I(f"v_cvt_pk_bf16_f32 v{t+4}, v{t}, v{t+1}")
        I(f"v_cvt_pk_bf16_f32 v{t+5}, v{t+2}, v{t+3}")
        lo16(t, t+4); hi16(t+1, t+4); lo16(t+2, t+5); hi16(t+3, t+5)
        I(f"v_cvt_pk_bf16_f32 v{t+4}, v{b}, v{b+1}")
        I(f"v_cvt_pk_bf16_f32 v{t+5}, v{b+2}, v{b+3}")
        lo16(t+6, t+4); hi16(t+7, t+4); lo16(t+8, t+5); hi16(t+9, t+5)
        for r in range(4):
            I(f"v_add_f32 v{t+r}, v{t+r}, v{t+6+r}")
        I(f"v_cvt_pk_bf16_f32 v{t+10}, v{t}, v{t+1}")
        I(f"v_cvt_pk_bf16_f32 v{t+11}, v{t+2}, v{t+3}")
        I(f"buffer_store_dwordx2 v[{t+10}:{t+11}], v15, s[32:35], 0 offen offset:{32*jd}")
    I("s_waitcnt vmcnt(0)")
    stamp()
    stamp_dump(9)
    e("F_exit:")
    I("s_endpgm")
    kernel_desc("fin_kernel", 256+80+36*max(0, NB2-5), 80, accum=256)

def main():
    hdr = open("parallel_sum__ssm_conv_h3__glu_gated_bilinear__prompt.s.ref").read().splitlines()
    for line in hdr:
        if line.startswith("; @launch"):
            break
        if line.startswith(";"):
            e(line)
    e(f"; @launch kernel=prep_kernel grid=({N_LN+N_KV+N_PF},1,1) block=(256,1,1) lds=0")
    if BIG:
        e("; @launch kernel=mid_kernel grid=(256,1,1) block=(512,1,1) lds=163840")
    else:
        e(f"; @launch kernel=mid_kernel grid=({N_G1+N_CV},1,1) block=(256,1,1) lds={LDS2}")
    e(f"; @launch kernel=fin_kernel grid=(256,1,1) block=(256,1,1) lds=81920")
    e('.amdgcn_target "amdgcn-amd-amdhsa--gfx950"')
    gen_prep()
    gen_k2()
    gen_k3()
    dst = sys.argv[1] if len(sys.argv) > 1 else "parallel_sum__ssm_conv_h3__glu_gated_bilinear__prompt.s"
    open(dst, "w").write("\n".join(out) + "\n")

main()
```

```python
import sys

import os
FLAGS = os.environ.get("GENFLAGS", "").split(",")
CP = " nt" if "cpnt" in FLAGS else (" sc1" if "cpsc1" in FLAGS else (" sc0 sc1" if "cpsc01" in FLAGS else ""))
S, D, F = 2048, 640, 1728
WS_XN  = 0x0
WS_KVR = 0x280000
WS_WDT = 0x500000
WS_H   = 0x800000
WS_YT  = 0x1000000
SZ_SD = S * D * 2
SZ_W  = D * F * 2
SZ_H  = S * F * 2

out = []
def e(s=""):
    out.append(s)
SP = " nt" if "stnt" in FLAGS else (" sc0 sc1" if "stsc" in FLAGS else (" sc1" if "stsc1" in FLAGS else (" sc0 sc1 nt" if "stall" in FLAGS else "")))
def I(s):
    if s.startswith("buffer_store") and "s[56:59]" not in s: s += SP
    out.append("    " + s)

def srd(base, ptr, size, off=0):
    if off:
        I(f"s_add_u32 s{base}, s{ptr}, {off:#x}")
        I(f"s_addc_u32 s{base+1}, s{ptr+1}, 0")
    else:
        I(f"s_mov_b32 s{base}, s{ptr}")
        I(f"s_mov_b32 s{base+1}, s{ptr+1}")
    I(f"s_mov_b32 s{base+2}, {size:#x}")
    I(f"s_mov_b32 s{base+3}, 0x00020000")

def lo16(dst, src): I(f"v_lshlrev_b32 v{dst}, 16, v{src}")
def hi16(dst, src): I(f"v_and_b32 v{dst}, 0xffff0000, v{src}")

STAMP = "stamp" in FLAGS
nst = [0]
def stamp():
    if STAMP:
        i = nst[0]; nst[0] += 1
        I(f"s_memtime s[{60+2*i}:{61+2*i}]")
def stamp_dump(wg):
    if not STAMP: return
    n = nst[0]; nst[0] = 0
    I("s_waitcnt lgkmcnt(0) vmcnt(0)")
    I(f"s_cmp_lg_u32 s2, {wg}")
    I(f"s_cbranch_scc1 SD_skip{wg}")
    I("s_cmp_lg_u32 s3, 0")
    I(f"s_cbranch_scc1 SD_skip{wg}")
    I("s_load_dwordx2 s[56:57], s[0:1], 88")
    I("s_waitcnt lgkmcnt(0)")
    I("s_mov_b32 s58, 256")
    I("s_mov_b32 s59, 0x00020000")
    I("v_mov_b32 v1, 0")
    for i in range(n):
        I(f"s_sub_u32 s{61+2*i}, s{60+2*i}, s60")
        I(f"v_mov_b32 v2, s{61+2*i}")
        I(f"buffer_store_dword v2, v1, s[56:59], 0 offen offset:{4*i}")
    I("s_waitcnt vmcnt(0)")
    e(f"SD_skip{wg}:")

WGT = "wgt" in FLAGS
def wgt_start():
    if WGT: I("s_memrealtime s[76:77]")
wgtn = [0]
def wgt_end(kidx):
    if not WGT: return
    n = wgtn[0]; wgtn[0] += 1
    I("s_waitcnt vmcnt(0) lgkmcnt(0)")
    I("s_memrealtime s[78:79]")
    I("s_load_dwordx2 s[72:73], s[0:1], 96")
    I("v_lshrrev_b32 v1, 6, v0")
    I("s_nop 0")
    I("v_readfirstlane_b32 s70, v1")
    I("s_lshl_b32 s71, s2, 3")
    I("s_add_u32 s70, s70, s71")
    I("s_lshl_b32 s70, s70, 3")
    I("s_waitcnt lgkmcnt(0)")
    I(f"s_add_u32 s72, s72, {0x1800000 + kidx*0x10000}")
    I("s_addc_u32 s73, s73, 0")
    I("s_mov_b32 s74, 0x10000")
    I("s_mov_b32 s75, 0x00020000")
    I("v_mov_b32 v2, s76")
    I("v_mov_b32 v3, s78")
    I("v_mov_b32 v1, s70")
    I("buffer_store_dwordx2 v[2:3], v1, s[72:75], 0 offen")
    I("s_waitcnt vmcnt(0)")

def kernel_header(name):
    e(".text")
    e(f".globl {name}")
    e(".p2align 8")
    e(f".type {name},@function")
    e(f"{name}:")

def kernel_desc(name, vgpr, sgpr, accum=None):
    if accum is None:
        accum = (vgpr + 3) // 4 * 4
    e('.section .rodata,"a"')
    e(".p2align 6")
    e(f".amdhsa_kernel {name}")
    e(f"  .amdhsa_next_free_vgpr {vgpr}")
    e(f"  .amdhsa_next_free_sgpr {sgpr}")
    e(f"  .amdhsa_accum_offset {accum}")
    e("  .amdhsa_group_segment_fixed_size 0")
    e("  .amdhsa_kernarg_size 104")
    e("  .amdhsa_user_sgpr_count 2")
    e("  .amdhsa_user_sgpr_kernarg_segment_ptr 1")
    e("  .amdhsa_system_sgpr_workgroup_id_x 1")
    e(".end_amdhsa_kernel")

N_LN, N_KV = 128, 160
N_PF = 0
if "pfw" in FLAGS: N_PF = 4*36
if "pfw2" in FLAGS: N_PF = 2*36
def gen_prep():
    kernel_header("prep_kernel")
    I(f"s_cmp_ge_u32 s2, {N_LN+N_KV+N_PF}")
    I("s_cbranch_scc1 P_exit")
    if N_PF:
        I(f"s_cmp_ge_u32 s2, {N_LN+N_KV}")
        I("s_cbranch_scc1 P_pf")
    I("s_load_dwordx2 s[6:7], s[0:1], 96")
    I(f"s_cmp_lt_u32 s2, {N_KV}")
    I("s_cbranch_scc1 P_kv")
    if "noln" in FLAGS: I("s_endpgm")
    I("s_load_dwordx2 s[4:5], s[0:1], 0")
    I("v_lshrrev_b32 v1, 4, v0")
    I(f"s_sub_u32 s3, s2, {N_KV}")
    I("s_lshl_b32 s3, s3, 4")
    I("v_add_u32 v1, s3, v1")
    I("v_mul_u32_u24 v2, 0x500, v1")
    I("v_and_b32 v3, 15, v0")
    I("v_lshl_add_u32 v2, v3, 4, v2")
    I("s_waitcnt lgkmcnt(0)")
    srd(8, 4, SZ_SD)
    srd(12, 6, SZ_SD, WS_XN)
    for j in range(5):
        I(f"buffer_load_dwordx4 v[{4+4*j}:{7+4*j}], v2, s[8:11], 0 offen offset:{256*j}")
    I("v_lshrrev_b32 v2, 4, v1")
    I("v_mul_u32_u24 v2, 20480, v2")
    I("v_lshrrev_b32 v64, 2, v3")
    I("v_lshl_add_u32 v2, v64, 10, v2")
    I("v_and_b32 v64, 3, v3")
    I("v_lshl_add_u32 v2, v64, 8, v2")
    I("v_and_b32 v64, 15, v1")
    I("v_lshl_add_u32 v2, v64, 4, v2")
    I("s_waitcnt vmcnt(0)")
    X = 24
    for j in range(20):
        lo16(X + 2*j, 4 + j)
        hi16(X + 2*j + 1, 4 + j)
    T = 64
    for j in range(20):
        I(f"v_add_f32 v{T+j}, v{X+2*j}, v{X+2*j+1}")
    def tree(base, n):
        while n > 1:
            h = n // 2
            for j in range(h):
                I(f"v_add_f32 v{base+j}, v{base+j}, v{base+n-1-j}")
            n = n - h
    tree(T, 20)
    def dpp_reduce(r, tmp):
        for sh in (8, 4, 2, 1):
            I("s_nop 1")
            I(f"v_add_f32_dpp v{tmp}, v{r}, v{r} row_ror:{sh} row_mask:0xf bank_mask:0xf")
            I(f"v_mov_b32 v{r}, v{tmp}")
    dpp_reduce(T, T+1)
    I(f"v_mul_f32 v{T}, {1.0/640.0!r}, v{T}")
    for j in range(40):
        I(f"v_sub_f32 v{T+2+j}, v{X+j}, v{T}")
    for j in range(40):
        I(f"v_mul_f32 v{T+2+j}, v{T+2+j}, v{T+2+j}")
    tree(T+2, 40)
    dpp_reduce(T+2, T+1)
    I(f"v_mul_f32 v{T+2}, {1.0/640.0!r}, v{T+2}")
    I(f"v_cvt_pk_bf16_f32 v{T}, v{T}, v{T+2}")
    hi16(T+2, T)
    lo16(T, T)
    I(f"v_add_f32 v{T+2}, {1e-5!r}, v{T+2}")
    I(f"v_cvt_pk_bf16_f32 v{T+2}, v{T+2}, v{T+2}")
    lo16(T+2, T+2)
    I(f"v_sqrt_f32 v{T+2}, v{T+2}")
    I("s_nop 0")
    I(f"v_cvt_pk_bf16_f32 v{T+2}, v{T+2}, v{T+2}")
    lo16(T+2, T+2)
    I(f"v_rcp_f32 v{T+3}, v{T+2}")
    I("s_nop 0")
    for j in range(20):
        a, b = X + 2*j, X + 2*j + 1
        I(f"v_sub_f32 v{a}, v{a}, v{T}")
        I(f"v_sub_f32 v{b}, v{b}, v{T}")
        I(f"v_cvt_pk_bf16_f32 v{T+4}, v{a}, v{b}")
        lo16(a, T+4)
        hi16(b, T+4)
        for r in (a, b):
            I(f"v_mul_f32 v{T+5}, v{r}, v{T+3}")
            I(f"v_fma_f32 v{T+6}, -v{T+5}, v{T+2}, v{r}")
            I(f"v_fma_f32 v{r}, v{T+6}, v{T+3}, v{T+5}")
        I(f"v_cvt_pk_bf16_f32 v{4+j}, v{a}, v{b}")
        if j % 4 == 3:
            jj = j // 4
            I(f"s_mov_b32 s16, {4096*jj}")
            I(f"buffer_store_dwordx4 v[{4+4*jj}:{7+4*jj}], v2, s[12:15], s16 offen")
    I("s_endpgm")
    e("P_kv:")
    if "nokv" in FLAGS: I("s_endpgm")
    I("s_load_dwordx4 s[16:19], s[0:1], 8")
    I("s_load_dwordx2 s[4:5], s[0:1], 24")
    I("s_mul_i32 s28, s2, 0xCCCD")
    I("s_lshr_b32 s28, s28, 19")
    I("s_mul_i32 s29, s28, 10")
    I("s_sub_u32 s29, s2, s29")
    I("v_and_b32 v1, 7, v0")
    I("v_lshrrev_b32 v2, 3, v0")
    I("s_lshl_b32 s30, s29, 6")
    I("v_lshl_add_u32 v1, v1, 3, s30")
    I("s_lshl_b32 s31, s28, 7")
    I("v_lshl_add_u32 v2, v2, 2, s31")
    I("v_mul_u32_u24 v3, 0x500, v2")
    I("v_lshl_add_u32 v3, v1, 1, v3")
    for i in range(3):
        I(f"v_subrev_u32 v{5+i}, {(3-i)*1280:#x}, v3")
    I("v_lshlrev_b32 v8, 3, v1")
    I("s_waitcnt lgkmcnt(0)")
    srd(8, 16, SZ_SD)
    srd(12, 18, SZ_SD)
    srd(20, 4, D*4*2)
    srd(24, 6, SZ_SD, WS_KVR)
    KR = 16
    for i in range(3):
        I(f"buffer_load_dwordx4 v[{KR+4*i}:{KR+4*i+3}], v{5+i}, s[8:11], 0 offen")
    for i in range(4):
        I(f"buffer_load_dwordx4 v[{KR+4*(i+3)}:{KR+4*(i+3)+3}], v3, s[8:11], 0 offen offset:{i*1280}")
    VR = KR + 28
    for i in range(4):
        I(f"buffer_load_dwordx4 v[{VR+4*i}:{VR+4*i+3}], v3, s[12:15], 0 offen offset:{i*1280}")
    SK = VR + 16
    for i in range(4):
        I(f"buffer_load_dwordx4 v[{SK+4*i}:{SK+4*i+3}], v8, s[20:23], 0 offen offset:{16*i}")
    I("v_lshlrev_b32 v9, 12, v1")
    I(f"v_sub_u32 v10, {S-4}, v2")
    I("v_lshl_add_u32 v9, v10, 1, v9")
    I("s_waitcnt vmcnt(0)")
    KF = 76
    VF = 83
    SF = 87
    TM = 92
    OB = 104
    for dd in range(8):
        ex = lo16 if dd % 2 == 0 else hi16
        for i in range(7):
            ex(KF + i, KR + 4*i + dd//2)
        for i in range(4):
            ex(VF + i, VR + 4*i + dd//2)
        lo16(SF+0, SK + 2*dd); hi16(SF+1, SK + 2*dd)
        lo16(SF+2, SK + 2*dd + 1); hi16(SF+3, SK + 2*dd + 1)
        ob = OB + 2*(dd % 4)
        for q in range(2):
            sa, sb = 3 - 2*q, 2 - 2*q
            t = TM
            I(f"v_mul_f32 v{t}, v{KF+sa}, v{SF+3}")
            I(f"v_mul_f32 v{t+1}, v{KF+sb}, v{SF+3}")
            I(f"v_mul_f32 v{t+2}, v{KF+sa+1}, v{SF+2}")
            I(f"v_mul_f32 v{t+3}, v{KF+sb+1}, v{SF+2}")
            I(f"v_mul_f32 v{t+4}, v{KF+sa+2}, v{SF+1}")
            I(f"v_mul_f32 v{t+5}, v{KF+sb+2}, v{SF+1}")
            I(f"v_mul_f32 v{t+6}, v{KF+sa+3}, v{SF+0}")
            I(f"v_mul_f32 v{t+7}, v{KF+sb+3}, v{SF+0}")
            for p in range(4):
                I(f"v_cvt_pk_bf16_f32 v{t+8+p}, v{t+2*p}, v{t+2*p+1}")
            for p in range(4):
                lo16(t+2*p, t+8+p); hi16(t+2*p+1, t+8+p)
            for step in (1, 2, 3):
                I(f"v_add_f32 v{t}, v{t}, v{t+2*step}")
                I(f"v_add_f32 v{t+1}, v{t+1}, v{t+2*step+1}")
                I(f"v_cvt_pk_bf16_f32 v{t+8}, v{t}, v{t+1}")
                lo16(t, t+8); hi16(t+1, t+8)
            I(f"v_mul_f32 v{t}, v{t}, v{VF+sa}")
            I(f"v_mul_f32 v{t+1}, v{t+1}, v{VF+sb}")
            I(f"v_cvt_pk_bf16_f32 v{ob+q}, v{t}, v{t+1}")
        I(f"s_mov_b32 s16, {4096*dd}")
        I(f"buffer_store_dwordx2 v[{ob}:{ob+1}], v9, s[24:27], s16 offen")
    if N_PF:
        I("s_endpgm")
        e("P_pf:")
        I(f"s_sub_u32 s3, s2, {N_LN+N_KV}")
        I("s_mul_i32 s4, s3, 1821")
        I("s_lshr_b32 s4, s4, 16")
        I("s_mul_i32 s5, s4, 36")
        I("s_sub_u32 s5, s3, s5")
        I("s_lshl_b32 s6, s4, 3")
        I("s_add_u32 s6, s6, 56")
        I("s_cmp_eq_u32 s4, 3")
        I("s_cselect_b32 s6, 32, s6")
        I("s_load_dwordx2 s[8:9], s[0:1], s6")
        I(f"s_mov_b32 s10, {SZ_W}")
        I(f"s_cselect_b32 s10, {SZ_SD}, s10")
        I("s_mov_b32 s11, 0x00020000")
        I("s_mov_b32 s7, 65536")
        I("s_cselect_b32 s7, 73728, s7")
        I("s_mul_i32 s5, s5, s7")
        I("v_lshlrev_b32 v1, 4, v0")
        I("s_waitcnt lgkmcnt(0)")
        for i in range(18):
            I(f"buffer_load_dwordx4 v[{4+4*i}:{7+4*i}], v1, s[8:11], s5 offen")
            I("s_add_u32 s5, s5, 4096")
        I("s_waitcnt vmcnt(0)")
    e("P_exit:")
    I("s_endpgm")
    kernel_desc("prep_kernel", 112, 40)

BF = 112
NSLOT = 5
SLOT = 16384
LDS2 = NSLOT * SLOT
N_G1, N_CV = 256, 256

class DSQ:
    def __init__(self): self.q = []
    def push(self, tag): self.q.append(tag)
    def wait_for(self, tag):
        if tag not in self.q: return
        idx = max(i for i, t in enumerate(self.q) if t == tag)
        n = len(self.q) - 1 - idx
        I(f"s_waitcnt lgkmcnt({min(n,15)})")
        self.q = self.q[idx+1:] if n <= 15 else self.q[len(self.q)-15:]

BIG = "big" in FLAGS
def gen_g1big():
    NF = 10; RS = 320; MS = 32*RS; SL = 2*MS; NS = 8; DB = 3; LA = 3; NST = 20
    for f_ in FLAGS:
        if f_.startswith("ns"): NS = int(f_[2:])
    DW = NS - 1
    stamp()
    I("s_load_dwordx4 s[16:19], s[0:1], 56")
    I(f"s_mul_i32 s25, s25, {16*NF}")
    I(f"s_min_u32 s25, s25, {F-16*NF}")
    I("v_and_b32 v1, 63, v0")
    PROD = "prod" in FLAGS
    if PROD:
        I("s_cmp_lt_u32 s3, 4")
        I("s_cbranch_scc1 G1_cons")
        DWP = 6
        I("s_lshl_b32 s27, s25, 1")
        for i in range(10):
            I(f"v_add_u32 v20, {64*i}, v1")
            I("v_mul_u32_u24 v21, 3277, v20")
            I("v_lshrrev_b32 v21, 16, v21")
            I("v_mul_u32_u24 v22, 20, v21")
            I("v_sub_u32 v22, v20, v22")
            I("v_bfe_u32 v23, v21, 3, 1")
            I("v_lshlrev_b32 v23, 1, v23")
            I("v_xor_b32 v22, v22, v23")
            I("v_mul_u32_u24 v21, 3456, v21")
            I("v_lshl_add_u32 v21, v22, 4, v21")
            I("v_add_u32 v21, s27, v21")
            I(f"v_subrev_u32 v{2+i}, {1024*(i%4)}, v21")
        I("s_sub_u32 s29, s3, 4")
        I(f"s_mul_i32 s29, s29, {MS}")
        I("s_waitcnt lgkmcnt(0)")
        I("s_cmp_ge_u32 s3, 5")
        I("s_cselect_b32 s4, s18, s16")
        I("s_cselect_b32 s5, s19, s17")
        srd(8, 4, SZ_W)
        pq = []
        def pdma(st):
            I(f"s_mov_b32 s28, {st*32*3456}")
            for i in range(10):
                if i % 4 == 0: I(f"s_add_u32 m0, s29, {(st % NS)*SL + (i//4)*4096}")
                I(f"buffer_load_dwordx4 v{2+i}, s[8:11], s28 offen offset:{1024*(i%4)} lds")
                pq.append(st)
        def pwait(st):
            idx = max(i for i, t in enumerate(pq) if t == st)
            I(f"s_waitcnt vmcnt({len(pq)-1-idx})")
            del pq[:idx+1]
        for st in range(DWP): pdma(st)
        pwait(0)
        I("s_barrier")
        for st in range(NST-1):
            pwait(st+1)
            I("s_barrier")
            if st + DWP < NST: pdma(st + DWP)
        I("s_endpgm")
        e("G1_cons:")
    I("s_and_b32 s26, s3, 1")
    I("s_lshl_b32 s26, s26, 4")
    I("s_lshl_b32 s27, s25, 1")
    for i in range(5 if not PROD else 0):
        I(f"v_add_u32 v10, {64*i}, v1")
        I("v_mul_u32_u24 v11, 3277, v10")
        I("v_lshrrev_b32 v11, 16, v11")
        I("v_mul_u32_u24 v12, 20, v11")
        I("v_sub_u32 v12, v10, v12")
        I("v_add_u32 v11, s26, v11")
        I("v_bfe_u32 v13, v11, 3, 1")
        I("v_lshlrev_b32 v13, 1, v13")
        I("v_xor_b32 v12, v12, v13")
        I("v_mul_u32_u24 v11, 3456, v11")
        I("v_lshl_add_u32 v11, v12, 4, v11")
        I("v_add_u32 v11, s27, v11")
        I(f"v_subrev_u32 v{2+i}, {1024*(i%4)}, v11")
    I("s_lshl_b32 s26, s24, 3")
    I("s_lshl_b32 s27, s3, 1")
    I("s_add_u32 s26, s26, s27")
    I("s_mul_i32 s27, s26, 20480")
    I("v_lshl_add_u32 v7, v1, 4, s27")
    I("v_add_u32 v8, 20480, v7")
    I("s_mul_i32 s27, s26, 55296")
    I("v_lshl_add_u32 v9, v1, 4, s27")
    I("v_add_u32 v10, 55296, v9")
    I("v_bfe_u32 v17, v0, 4, 2")
    I("v_bfe_u32 v18, v0, 2, 2")
    I("v_lshl_add_u32 v19, v17, 3, v18")
    I(f"v_mul_u32_u24 v19, {RS}, v19")
    I("v_and_b32 v18, 3, v0")
    I("v_lshl_add_u32 v19, v18, 3, v19")
    I("v_and_b32 v20, 1, v17")
    I("v_lshlrev_b32 v20, 5, v20")
    I("v_add_u32 v11, v19, v20")
    I("v_sub_u32 v12, v19, v20")
    ROLL = "roll" in FLAGS
    if ROLL:
        for k_, offs in ((1, 3*SL), (2, 4*SL), (3, 7*SL)):
            I(f"v_add_u32 v{11+2*k_}, {offs}, v11")
            I(f"v_add_u32 v{12+2*k_}, {offs}, v12")
    else:
        for rg in (1, 2):
            I(f"v_add_u32 v{11+2*rg}, {rg*3*SL}, v11")
            I(f"v_add_u32 v{12+2*rg}, {rg*3*SL}, v12")
    I("s_mul_i32 s29, s3, 5120")
    I("s_waitcnt lgkmcnt(0)")
    I("s_cmp_ge_u32 s3, 2")
    I("s_cselect_b32 s4, s18, s16")
    I("s_cselect_b32 s5, s19, s17")
    srd(8, 4, SZ_W)
    srd(12, 6, SZ_SD, WS_XN)
    srd(20, 6, SZ_H, WS_H)
    BB = 24; AF = 56; ACC = 80
    def acc(m, jf, js): return ACC + ((m*NF + jf)*2 + js)*4
    vq = []
    def vwait(tags):
        if not any(t in tags for t in vq): return
        idx = max(i for i, t in enumerate(vq) if t in tags)
        n = len(vq) - 1 - idx
        I(f"s_waitcnt vmcnt({n})")
        del vq[:idx+1]
    def dma(st):
        if PROD: return
        I(f"s_add_u32 m0, s29, {(st % NS)*SL}")
        I(f"s_mov_b32 s28, {st*32*3456}")
        for i in range(5):
            if i == 4: I(f"s_add_u32 m0, s29, {(st % NS)*SL + 4096}")
            I(f"buffer_load_dwordx4 v{2+i}, s[8:11], s28 offen offset:{1024*(i%4)} lds")
            vq.append(("D", st))
    def bld(st):
        I(f"s_mov_b32 s31, {st*1024}")
        for js in range(2):
            r = BB + (st % (DB+1))*8 + js*4
            I(f"buffer_load_dwordx4 v[{r}:{r+3}], v{7+js}, s[12:15], s31 offen")
            vq.append(("B", st))
    seq = [(m, jf) for m in range(2) for jf in range(NF)]
    NQ = len(seq)
    def rdx(gpos):
        st, idx = divmod(gpos, NQ)
        m, jf = seq[idx]
        slot = st % NS
        a = AF + (gpos % 4)*4
        va = 11 + 2*(slot // 3) + (jf & 1)
        off = (slot % 3)*SL + m*MS + jf*32
        return [f"ds_read_b64_tr_b16 v[{a}:{a+1}], v{va} offset:{off}",
                f"ds_read_b64_tr_b16 v[{a+2}:{a+3}], v{va} offset:{off+4*RS}"]
    for st in range(DW):
        dma(st)
        if ROLL:
            if st >= DW - DB: bld(st - (DW - DB))
        elif st < DB: bld(st)
    for j in range(4*2*2*NF):
        I(f"v_mov_b32 v{ACC+j}, 0")
    stamp()
    vwait([("D", 0)])
    I("s_barrier")
    for i in range(LA):
        for x in rdx(i): I(x)
    if ROLL:
        assert NS == 8
        I("s_mov_b32 s33, 0")
        I("s_mov_b32 s36, s29")
        I(f"s_add_u32 s37, s29, {4*SL}")
        I(f"s_mov_b32 s28, {DW*32*3456}")
        I(f"s_mov_b32 s31, {DB*1024}")
        def rdr(p, idx, ring):
            m, jf = seq[idx]
            a = AF + (ring % 4)*4
            if p < 3: va = 11 + (jf & 1); off = p*SL
            elif p == 3: va = 13 + (jf & 1); off = 0
            else: va = 15 + (jf & 1); off = 0
            off += m*MS + jf*32
            return [f"ds_read_b64_tr_b16 v[{a}:{a+1}], v{va} offset:{off}",
                    f"ds_read_b64_tr_b16 v[{a+2}:{a+3}], v{va} offset:{off+4*RS}"]
        e("G1_loop:")
        for p_ in range(4):
            I("s_waitcnt vmcnt(14)")
            I(f"s_cmp_lt_u32 s33, {4 if p_ < 2 else 3}")
            I(f"s_cbranch_scc1 G1_w{p_}")
            I("s_waitcnt vmcnt(2)")
            if p_ >= 2:
                I("s_cmp_lt_u32 s33, 4")
                I(f"s_cbranch_scc1 G1_w{p_}")
                I("s_waitcnt vmcnt(0)")
            e(f"G1_w{p_}:")
            I("s_barrier")
            I(f"s_cmp_ge_u32 s33, {4 if p_ == 0 else 3}")
            I(f"s_cbranch_scc1 G1_d{p_}")
            base, offs = ("s37", 3*SL) if p_ == 0 else ("s36", (p_-1)*SL)
            I(f"s_add_u32 m0, {base}, {offs}")
            for i in range(5):
                if i == 4: I(f"s_add_u32 m0, {base}, {offs + 4096}")
                I(f"buffer_load_dwordx4 v{2+i}, s[8:11], s28 offen offset:{1024*(i%4)} lds")
            I(f"s_add_u32 s28, s28, {32*3456}")
            e(f"G1_d{p_}:")
            if p_ > 0:
                I("s_cmp_ge_u32 s33, 4")
                I(f"s_cbranch_scc1 G1_b{p_}")
            for js in range(2):
                r = BB + ((p_ + DB) % 4)*8 + js*4
                I(f"buffer_load_dwordx4 v[{r}:{r+3}], v{7+js}, s[12:15], s31 offen")
            I("s_add_u32 s31, s31, 1024")
            if p_ > 0: e(f"G1_b{p_}:")
            for idx in range(NQ):
                if idx + LA < NQ: rr = rdr(p_, idx + LA, idx + LA)
                else: rr = rdr(p_ + 1, idx + LA - NQ, idx + LA)
                I(f"s_waitcnt lgkmcnt({2*LA-2})")
                m, jf = seq[idx]
                a = AF + (idx % 4)*4
                for js in range(2):
                    c = acc(m, jf, js); b = BB + p_*8 + js*4
                    I(f"v_mfma_f32_16x16x32_bf16 v[{c}:{c+3}], v[{a}:{a+3}], v[{b}:{b+3}], v[{c}:{c+3}]")
                    I(rr[js])
        for k_ in range(4):
            I(f"v_swap_b32 v{11+k_}, v{15+k_}")
        I("s_mov_b32 s38, s36")
        I("s_mov_b32 s36, s37")
        I("s_mov_b32 s37, s38")
        I("s_add_u32 s33, s33, 1")
        I("s_cmp_lt_u32 s33, 5")
        I("s_cbranch_scc1 G1_loop")
        I("s_waitcnt lgkmcnt(0)")
    for st in range(NST if not ROLL else 0):
        if st + 1 < NST:
            vwait([("D", st+1), ("B", st)])
            I("s_barrier")
        else:
            vwait([("B", st)])
        if st + DW < NST and "g1nodma" not in FLAGS: dma(st + DW)
        if st + DB < NST and "g1nob" not in FLAGS: bld(st + DB)
        for idx in range(NQ if "g1nocomp" not in FLAGS else 0):
            gpos = st*NQ + idx
            rr = rdx(gpos + LA) if gpos + LA < NST*NQ else None
            I(f"s_waitcnt lgkmcnt({2*min(LA-1, NST*NQ-1-gpos)})")
            m, jf = seq[idx]
            a = AF + (gpos % 4)*4
            for js in range(2):
                c = acc(m, jf, js); b = BB + (st % (DB+1))*8 + js*4
                I(f"v_mfma_f32_16x16x32_bf16 v[{c}:{c+3}], v[{a}:{a+3}], v[{b}:{b+3}], v[{c}:{c+3}]")
                if rr: I(rr[js])
    stamp()
    I("s_lshr_b32 s34, s25, 5")
    I("s_lshl_b32 s34, s34, 10")
    I("s_add_u32 s35, s34, 4096")
    I("s_nop 7")
    I("s_nop 3")
    for js in range(2):
        for jp in range(NF//2):
            t = 24 + ((js*5 + jp) % 4) * 12
            for hh in range(2):
                jf = 2*jp + hh
                g = acc(0, jf, js); u = acc(1, jf, js)
                I(f"v_cvt_pk_bf16_f32 v{t}, v{g}, v{g+1}")
                I(f"v_cvt_pk_bf16_f32 v{t+1}, v{g+2}, v{g+3}")
                I(f"v_cvt_pk_bf16_f32 v{t+2}, v{u}, v{u+1}")
                I(f"v_cvt_pk_bf16_f32 v{t+3}, v{u+2}, v{u+3}")
                lo16(g, t); hi16(g+1, t); lo16(g+2, t+1); hi16(g+3, t+1)
                lo16(u, t+2); hi16(u+1, t+2); lo16(u+2, t+3); hi16(u+3, t+3)
                for r in range(4):
                    I(f"v_mul_f32 v{g+r}, v{g+r}, v{u+r}")
                I(f"v_cvt_pk_bf16_f32 v{t+4+2*hh}, v{g}, v{g+1}")
                I(f"v_cvt_pk_bf16_f32 v{t+5+2*hh}, v{g+2}, v{g+3}")
            if jp < 4:
                I(f"buffer_store_dwordx4 v[{t+4}:{t+7}], v{9+js}, s[20:23], s34 offen offset:{1024*jp}")
            else:
                I(f"buffer_store_dwordx4 v[{t+4}:{t+7}], v{9+js}, s[20:23], s35 offen")
    if STAMP: I("s_waitcnt vmcnt(0)")
    stamp()
    stamp_dump(5)
    wgt_end(1)
    I("s_endpgm")

def gen_k2():
    kernel_header("mid_kernel")
    if BIG:
        I("s_cmp_ge_u32 s2, 256")
        I("s_cbranch_scc1 M_exit")
        wgt_start()
        I("s_load_dwordx2 s[6:7], s[0:1], 96")
        I("v_lshrrev_b32 v1, 6, v0")
        I("s_nop 0")
        I("v_readfirstlane_b32 s3, v1")
        I("s_lshr_b32 s40, s2, 3")
        I("s_bfe_u32 s41, s2, 0x10002")
        I("s_and_b32 s42, s2, 3")
        I("s_lshl_b32 s43, s41, 2")
        I("s_sub_u32 s43, 24, s43")
        I("s_cmp_ge_u32 s40, s43")
        I("s_cbranch_scc1 M_conv")
        if "nog1" in FLAGS: I("s_endpgm")
        I("s_mul_i32 s24, s42, s43")
        I("s_add_u32 s24, s24, s40")
        I("s_mul_i32 s25, s41, 96")
        I("s_add_u32 s24, s24, s25")
        W0 = 6 if "prod" in FLAGS else 4
        I(f"s_sub_u32 s25, s3, {W0}")
        I("s_mul_i32 s25, s25, 176")
        I("s_add_u32 s24, s24, s25")
        I(f"s_cmp_ge_u32 s3, {W0}")
        I("s_cbranch_scc1 M_wdt")
        I("s_lshl_b32 s24, s42, 2")
        I("s_and_b32 s25, s40, 3")
        I("s_add_u32 s24, s24, s25")
        I("s_mul_i32 s25, s41, 6")
        I("s_lshr_b32 s26, s40, 2")
        I("s_add_u32 s25, s25, s26")
        gen_g1big()
    else:
        gen_g1old()
    gen_aux()

def gen_g1old():
    I(f"s_cmp_ge_u32 s2, {N_G1+N_CV}")
    I("s_cbranch_scc1 M_exit")
    I("s_load_dwordx2 s[6:7], s[0:1], 96")
    I(f"s_cmp_ge_u32 s2, {N_G1}")
    I("s_cbranch_scc1 M_conv")
    if "nog1" in FLAGS: I("s_endpgm")
    stamp()
    if "prio" in FLAGS: I("s_setprio 3")
    I("s_load_dwordx4 s[16:19], s[0:1], 56")
    I("v_lshrrev_b32 v1, 6, v0")
    I("s_nop 0")
    I("v_readfirstlane_b32 s3, v1")
    I("s_waitcnt lgkmcnt(0)")
    if "stamp2" in FLAGS: stamp()
    I("s_cmp_ge_u32 s3, 2")
    I("s_cselect_b32 s4, s18, s16")
    I("s_cselect_b32 s5, s19, s17")
    srd(8, 4, SZ_W)
    srd(12, 6, SZ_SD, WS_XN)
    srd(20, 6, SZ_H, WS_H)
    if "g12d" in FLAGS:
        I("s_and_b32 s24, s2, 3")
        I("s_lshl_b32 s24, s24, 2")
        I("s_bfe_u32 s25, s2, 0x20003")
        I("s_add_u32 s24, s24, s25")
        I("s_bfe_u32 s25, s2, 0x10002")
        I("s_lshl_b32 s25, s25, 3")
        I("s_lshr_b32 s26, s2, 5")
        I("s_add_u32 s25, s25, s26")
    else:
        I("s_and_b32 s24, s2, 15")
        I("s_lshr_b32 s25, s2, 4")
    I(f"s_mul_i32 s25, s25, {BF}")
    I(f"s_min_u32 s25, s25, {F-BF}")
    I("v_and_b32 v1, 63, v0")
    if "pf" in FLAGS:
        I("s_lshr_b32 s26, s2, 3")
        I("s_lshl_b32 s27, s26, 1")
        I("s_and_b32 s28, s3, 1")
        I("s_add_u32 s27, s27, s28")
        I("s_mul_i32 s27, s27, 34560")
        I("s_bfe_u32 s28, s2, 0x10002")
        I("s_mul_i32 s28, s28, 1792")
        I("s_add_u32 s27, s27, s28")
        I("v_lshrrev_b32 v192, 5, v1")
        I("v_mul_u32_u24 v192, 3456, v192")
        I("v_and_b32 v193, 31, v1")
        I("v_lshl_add_u32 v192, v193, 6, v192")
        I("v_add_u32 v192, s27, v192")
        for i in range(5):
            I(f"s_mov_b32 s27, {i*6912}")
            I(f"buffer_load_dword v{194+i}, v192, s[8:11], s27 offen")
        I("s_and_b32 s27, s2, 3")
        I("s_mul_i32 s27, s27, 655360")
        I("s_lshl_b32 s28, s26, 2")
        I("s_add_u32 s28, s28, s3")
        I("s_mul_i32 s28, s28, 5120")
        I("s_add_u32 s27, s27, s28")
        I("v_lshlrev_b32 v193, 6, v1")
        I("buffer_load_dword v199, v193, s[12:15], s27 offen")
        I("buffer_load_dword v200, v193, s[12:15], s27 offen offset:1024")
    I("v_lshrrev_b32 v10, 4, v1")
    I("v_bfe_u32 v11, v1, 1, 3")
    I("v_and_b32 v12, 1, v1")
    I("s_and_b32 s26, s3, 1")
    I("s_lshl_b32 s26, s26, 4")
    I("s_lshl_b32 s27, s25, 1")
    for i in range(4):
        bit = (i >> 1) & 1
        I(f"v_or_b32 v13, {bit<<2}, v10")
        I("v_xor_b32 v13, v13, v11")
        I(f"v_add_u32 v14, {4*i}, v10")
        I("v_add_u32 v14, s26, v14")
        I("v_mul_u32_u24 v14, 3456, v14")
        I("v_lshl_add_u32 v14, v13, 5, v14")
        I("v_lshl_add_u32 v14, v12, 4, v14")
        I("v_add_u32 v14, s27, v14")
        I(f"v_subrev_u32 v14, {1024*i}, v14")
        I("v_cmp_eq_u32 vcc, 7, v13")
        I("v_mov_b32 v15, 0x40000000")
        I("s_nop 0")
        I(f"v_cndmask_b32 v{2+i}, v14, v15, vcc")
    I("v_bfe_u32 v17, v0, 4, 2")
    I("s_lshl_b32 s26, s24, 3")
    I("s_lshl_b32 s27, s3, 1")
    I("s_add_u32 s26, s26, s27")
    I("s_mul_i32 s27, s26, 20480")
    I("v_lshl_add_u32 v6, v1, 4, s27")
    I("v_add_u32 v7, 20480, v6")
    I("s_mul_i32 s27, s26, 55296")
    I("v_lshl_add_u32 v8, v1, 4, s27")
    I("v_add_u32 v9, 55296, v8")
    I("v_bfe_u32 v18, v0, 2, 2")
    I("v_lshl_add_u32 v19, v17, 3, v18")
    I("v_lshlrev_b32 v19, 8, v19")
    I("v_and_b32 v20, 1, v17")
    I("v_lshl_or_b32 v20, v20, 2, v18")
    I("v_lshl_add_u32 v19, v20, 5, v19")
    I("v_and_b32 v18, 3, v0")
    I("v_lshl_add_u32 v19, v18, 3, v19")
    VA = 10
    I("v_mov_b32 v24, v19")
    for jf in range(7):
        I(f"v_xor_b32 v{VA+jf}, {jf<<5}, v24")
        I(f"v_add_u32 v{VA+7+jf}, 0x10000, v{VA+jf}")
    I("s_lshl_b32 s29, s3, 12")
    BB = 24
    AF = 64
    ACC = 80
    def acc(m, jf, js): return ACC + ((m*7 + jf)*2 + js)*4
    def bfr(st, js): return BB + (st % NSLOT)*8 + js*4
    NST = 20
    def issue(slot):
        I(f"s_add_u32 s30, s29, {slot*SLOT}")
        I("s_mov_b32 m0, s30")
        for i in range(4):
            I(f"buffer_load_dwordx4 v{2+i}, s[8:11], s28 offen offset:{1024*i} lds")
        for js in range(2):
            r = BB + slot*8 + js*4
            I(f"buffer_load_dwordx4 v[{r}:{r+3}], v{6+js}, s[12:15], s31 offen")
        I("s_add_u32 s36, s36, 1")
        I("s_cmp_ge_u32 s36, 20")
        I("s_cselect_b32 s36, 0, s36")
        I("s_add_u32 s37, s37, 1")
        I(f"s_mul_i32 s28, s36, {32*3456}")
        I("s_lshl_b32 s31, s36, 10")
        I("s_cmp_ge_u32 s37, 20")
        I("s_cselect_b32 s28, 0x40000000, s28")
        I("s_cselect_b32 s31, 0x40000000, s31")
    if "rot" in FLAGS:
        I("s_and_b32 s36, s24, 3")
        I("s_mul_i32 s36, s36, 5")
        I("s_lshr_b32 s37, s2, 5")
        I("s_mul_i32 s37, s37, 3")
        I("s_add_u32 s36, s36, s37")
        I("s_cmp_ge_u32 s36, 20")
        I("s_cselect_b32 s37, 20, 0")
        I("s_sub_u32 s36, s36, s37")
    else:
        I("s_mov_b32 s36, 0")
    I("s_mov_b32 s37, 0")
    I(f"s_mul_i32 s28, s36, {32*3456}")
    I("s_lshl_b32 s31, s36, 10")
    if "stamp2" in FLAGS: stamp()
    for st in range(NSLOT - 1):
        issue(st)
    if "stamp2" in FLAGS: stamp()
    for j in range(112):
        I(f"v_mov_b32 v{ACC+j}, 0")
    I("s_mov_b32 s33, 0")
    stamp()
    def body(last):
      for slot in range(NSLOT):
        if not last or slot <= 1:
            I(f"s_waitcnt vmcnt({6*(NSLOT-2)})")
        else:
            I(f"s_waitcnt vmcnt({6*(NSLOT-1-slot)})")
        I("s_barrier")
        if not last or slot == 0:
            issue((slot + NSLOT - 1) % NSLOT)
        seq = [(m, jf) for m in range(2) for jf in range(7)]
        def rd(idx):
            m, jf = seq[idx]
            a = AF + (idx % 4)*4
            if slot < 4:
                va = VA + jf; off = slot*SLOT + m*8192
            else:
                va = VA + 7 + jf; off = m*8192
            I(f"ds_read_b64_tr_b16 v[{a}:{a+1}], v{va} offset:{off}")
            I(f"ds_read_b64_tr_b16 v[{a+2}:{a+3}], v{va} offset:{off+1024}")
        for i in range(3):
            rd(i)
        for idx in range(14):
            if idx + 3 < 14:
                rd(idx + 3)
                I("s_waitcnt lgkmcnt(6)")
            else:
                I(f"s_waitcnt lgkmcnt({2*(13-idx)})")
            m, jf = seq[idx]
            a = AF + (idx % 4)*4
            for js in range(2):
                c = acc(m, jf, js); b = BB + slot*8 + js*4
                I(f"v_mfma_f32_16x16x32_bf16 v[{c}:{c+3}], v[{a}:{a+3}], v[{b}:{b+3}], v[{c}:{c+3}]")
    XS = "xs" in FLAGS
    LA = 3
    for f in FLAGS:
        if f.startswith("la"): LA = int(f[2:])
    RING = [64,68,72,76,192,196,200] if LA > 3 else [64,68,72,76,192]
    seq = [(m, jf) for m in range(2) for jf in range(7)]
    ring = [0]
    def rdx(slot, idx, pos):
        m, jf = seq[idx]
        a = RING[pos % len(RING)]
        if slot < 4:
            va = VA + jf; off = slot*SLOT + m*8192
        else:
            va = VA + 7 + jf; off = m*8192
        return [f"ds_read_b64_tr_b16 v[{a}:{a+1}], v{va} offset:{off}",
                f"ds_read_b64_tr_b16 v[{a+2}:{a+3}], v{va} offset:{off+1024}"]
    def body_xs(last):
      for slot in range(NSLOT):
        fin_stage = last and slot == NSLOT-1
        if not fin_stage:
            if not last or slot <= 1:
                I("s_waitcnt vmcnt(12)")
            else:
                I(f"s_waitcnt vmcnt({6*(NSLOT-2-slot)})")
            if "g1nobar" not in FLAGS: I("s_barrier")
        if (not last or slot == 0) and "g1noload" not in FLAGS:
            issue((slot + NSLOT - 1) % NSLOT)
        for idx in range(14 if "g1nocomp" not in FLAGS else 0):
            pos = idx + 14*slot
            if idx + LA < 14:
                rr = rdx(slot, idx + LA, pos + LA)
            elif not fin_stage:
                rr = rdx((slot + 1) % NSLOT, idx + LA - 14, pos + LA)
            else:
                rr = None
            I(f"s_waitcnt lgkmcnt({2*(LA-1) if not fin_stage else 2*min(LA-1, 13-idx)})")
            m, jf = seq[idx]
            a = RING[pos % len(RING)]
            for js in range(2):
                c = acc(m, jf, js); b = BB + slot*8 + js*4
                I(f"v_mfma_f32_16x16x32_bf16 v[{c}:{c+3}], v[{a}:{a+3}], v[{b}:{b+3}], v[{c}:{c+3}]")
                if rr: I(rr[js])
    if XS:
        I("s_waitcnt vmcnt(18)")
        I("s_barrier")
        for i in range(LA):
            for x in rdx(0, i, i): I(x)
    e("G1_loop:")
    (body_xs if XS else body)(False)
    I("s_add_u32 s33, s33, 1")
    I(f"s_cmp_lt_u32 s33, {NST//NSLOT - 1}")
    I("s_cbranch_scc1 G1_loop")
    (body_xs if XS else body)(True)
    stamp()
    I("s_waitcnt vmcnt(0)")
    I("s_nop 7")
    I("s_nop 3")
    T = 24
    for js in range(2):
        for jf in range(7):
            g = acc(0, jf, js); u = acc(1, jf, js)
            t = T + ((js*7 + jf) % 4) * 8
            I(f"v_cvt_pk_bf16_f32 v{t}, v{g}, v{g+1}")
            I(f"v_cvt_pk_bf16_f32 v{t+1}, v{g+2}, v{g+3}")
            I(f"v_cvt_pk_bf16_f32 v{t+2}, v{u}, v{u+1}")
            I(f"v_cvt_pk_bf16_f32 v{t+3}, v{u+2}, v{u+3}")
            lo16(g, t); hi16(g+1, t); lo16(g+2, t+1); hi16(g+3, t+1)
            lo16(u, t+2); hi16(u+1, t+2); lo16(u+2, t+3); hi16(u+3, t+3)
            for r in range(4):
                I(f"v_mul_f32 v{g+r}, v{g+r}, v{u+r}")
            I(f"v_cvt_pk_bf16_f32 v{t+4}, v{g}, v{g+1}")
            I(f"v_cvt_pk_bf16_f32 v{t+5}, v{g+2}, v{g+3}")
            I(f"s_add_u32 s34, s25, {16*jf}")
            I("s_lshr_b32 s35, s34, 5")
            I("s_lshl_b32 s35, s35, 10")
            I("s_and_b32 s34, s34, 16")
            I("s_lshr_b32 s34, s34, 1")
            I("s_add_u32 s35, s35, s34")
            I(f"buffer_store_dwordx2 v[{t+4}:{t+5}], v{8+js}, s[20:23], s35 offen")
    I("s_waitcnt vmcnt(0)")
    stamp()
    stamp_dump(5)
    I("s_endpgm")

def gen_aux():
    e("M_conv:")
    if "noconv" in FLAGS: I("s_endpgm")
    XREG = 7680; CST = 576 if "cst" in FLAGS else 800; HBUF = 8*CST; WREG = 20480
    stamp()
    I("s_load_dwordx4 s[16:19], s[0:1], 32")
    if BIG:
        I("s_sub_u32 s24, 32, s43")
        I("s_mul_i32 s24, s24, s42")
        I("s_add_u32 s24, s24, s40")
        I("s_sub_u32 s24, s24, s43")
        I("s_lshl_b32 s25, s41, 5")
        I("s_add_u32 s24, s24, s25")
        I("s_lshl_b32 s24, s24, 3")
        I("s_add_u32 s24, s24, s3")
    else:
        I("v_lshrrev_b32 v1, 6, v0")
        I("s_nop 0")
        I("v_readfirstlane_b32 s3, v1")
        I(f"s_sub_u32 s25, s2, {N_G1}")
        I("s_cmp_ge_u32 s25, 128")
        I("s_cbranch_scc1 M_aux_hi")
        I("s_mov_b32 s24, s25")
        I("s_cmp_eq_u32 s3, 3")
        I("s_cbranch_scc1 M_wdt")
        I("s_mul_i32 s24, s25, 3")
        I("s_add_u32 s24, s24, s3")
        I("s_branch M_conv2")
        e("M_aux_hi:")
        I("s_sub_u32 s25, s25, 128")
        I("s_lshl_b32 s25, s25, 1")
        I("s_add_u32 s24, s25, s3")
        I("s_add_u32 s24, s24, 126")
        I("s_cmp_ge_u32 s3, 2")
        I("s_cbranch_scc1 M_wdt")
        I("s_add_u32 s24, s25, s3")
        I("s_add_u32 s24, s24, 384")
    e("M_conv2:")
    I("s_waitcnt lgkmcnt(0)")
    srd(8, 16, SZ_SD)
    srd(12, 6, SZ_SD, WS_KVR)
    srd(20, 6, SZ_SD, WS_YT)
    I("s_lshr_b32 s25, s24, 1")
    I("s_lshl_b32 s25, s25, 2")
    I("s_load_dword s26, s[18:19], s25")
    I("v_and_b32 v1, 63, v0")
    I("s_lshl_b32 s27, s24, 12")
    I("v_lshl_add_u32 v2, v1, 4, s27")
    XL = 16
    for j in range(4):
        I(f"buffer_load_dwordx4 v[{XL+4*j}:{XL+4*j+3}], v2, s[12:15], 0 offen offset:{1024*j}")
    HW0, HW1 = 32, 40
    I("v_subrev_u32 v13, 64, v2")
    I("v_mov_b32 v5, 0x40000000")
    I("v_cmp_gt_u32 vcc, 4, v1")
    I("s_nop 1")
    I("v_cndmask_b32 v4, v13, v5, vcc")
    I("v_add_u32 v6, 16, v13")
    I("v_cmp_gt_u32 vcc, 3, v1")
    I("s_nop 1")
    I("v_cndmask_b32 v6, v6, v5, vcc")
    I(f"buffer_load_dwordx4 v[{HW0}:{HW0+3}], v4, s[8:11], 0 offen")
    I(f"buffer_load_dwordx4 v[{HW0+4}:{HW0+7}], v6, s[8:11], 0 offen")
    I(f"buffer_load_dwordx4 v[{HW1}:{HW1+3}], v2, s[8:11], 0 offen offset:448")
    I(f"buffer_load_dwordx4 v[{HW1+4}:{HW1+7}], v2, s[8:11], 0 offen offset:464")
    I("s_mov_b32 s29, 960")
    I(f"s_mul_i32 s28, s3, {WREG}")
    Z = 96
    for j in range(4):
        I(f"v_mov_b32 v{Z+j}, 0")
    I("v_lshl_add_u32 v3, v1, 4, s28")
    I(f"ds_write_b128 v3, v[{Z}:{Z+3}] offset:5120")
    I(f"ds_write_b128 v3, v[{Z}:{Z+3}] offset:6144")
    I(f"ds_write_b128 v3, v[{Z}:{Z+3}] offset:6656")
    I("v_lshrrev_b32 v4, 2, v1")
    I("v_mul_u32_u24 v4, 80, v4")
    I("v_and_b32 v5, 3, v1")
    I("v_lshl_add_u32 v4, v5, 4, v4")
    I("v_add_u32 v4, s28, v4")
    I("v_and_b32 v5, 31, v1")
    I("v_lshrrev_b32 v6, 5, v1")
    I("v_and_b32 v7, 7, v5")
    I(f"v_mul_u32_u24 v7, {CST}, v7")
    I("v_lshrrev_b32 v8, 3, v5")
    I("v_add_u32 v8, v8, v6")
    I("v_lshl_add_u32 v7, v8, 4, v7")
    I(f"v_add_u32 v7, {XREG}, v7")
    I("v_add_u32 v7, s28, v7")
    I(f"v_add_u32 v14, {HBUF}, v7")
    I("v_sub_u32 v8, 63, v5")
    I("v_mul_u32_u24 v8, 80, v8")
    I("v_lshl_add_u32 v8, v6, 4, v8")
    I("v_add_u32 v8, s28, v8")
    I("v_mov_b32 v15, v8")
    I("v_subrev_u32 v9, 2560, v8")
    I(f"v_add_u32 v10, {XREG}, v3")
    I(f"v_add_u32 v11, {HBUF}, v10")
    AC0, AC1 = 100, 116
    for j in range(32):
        I(f"v_mov_b32 v{AC0+j}, 0")
    FR = 132
    UE, UO, WO = 180, 189, 197
    CLA, CR = 3, 4
    for f_ in FLAGS:
        if f_.startswith("cla"): CLA = int(f_[3:]); CR = 8; UE, UO, WO = 228, 237, 245
    I("s_mov_b32 s30, -1")
    I("s_mov_b32 s31, 0xf")
    q = DSQ()
    def stage_seg(w, addr):
        for t in range(7):
            I(f"v_alignbit_b32 v{UE+t}, v{w+t+1}, v{w+t}, 16")
            I(f"v_alignbit_b32 v{UO+t}, v{w+t+1}, v{w+t}, 16")
        for t in range(1, 7):
            I(f"v_mov_b32 v{WO+t}, v{w+t}")
        I("s_mov_b64 exec, s[30:31]")
        for c in range(8):
            if c % 2 == 0:
                t0 = c // 2
                r = UE + t0 if t0 % 2 == 0 else UO + t0
            else:
                t0 = (1 + c)//2
                r = w + t0 if t0 % 2 == 0 else WO + t0
            assert r % 2 == 0, (c, r)
            I(f"ds_write_b128 v{addr}, v[{r}:{r+3}] offset:{c*CST}")
            q.push(("w", 0))
        I("s_mov_b64 exec, -1")
    I("s_waitcnt vmcnt(2)")
    stamp()
    for j in range(4):
        I(f"ds_write_b128 v4, v[{XL+4*j}:{XL+4*j+3}] offset:{16*80*j}")
    stage_seg(HW0, 10)
    q = DSQ()
    def crd(c, both, part=None):
        f = FR + (c % CR)*12
        boff = (c >> 1)*80 + (c & 1)*32
        if part in (None, 0):
            if c < 16:
                I(f"ds_read_b128 v[{f}:{f+3}], v7 offset:{32*c}")
            else:
                I(f"ds_read_b128 v[{f}:{f+3}], v14 offset:{32*(c-16)}")
            q.push(("r", c))
            I(f"ds_read_b128 v[{f+4}:{f+7}], v9 offset:{boff}")
            q.push(("r", c))
        if both and part in (None, 1):
            I(f"ds_read_b128 v[{f+8}:{f+11}], v8 offset:{boff}")
            q.push(("r", c))
    for c in range(CLA):
        crd(c, True)
    I("s_mov_b32 s33, 0")
    stamp()
    for phase in range(2):
        both = (phase == 0)
        e(f"CV_loop{phase}:")
        q.q = [("r", c) for c in range(CLA) for _ in range(3 if both else 2)]
        for c in range(16):
            if c == 1:
                I("s_waitcnt vmcnt(0)")
                stage_seg(HW1, 11)
                I(f"buffer_load_dwordx4 v[{HW1}:{HW1+3}], v2, s[8:11], s29 offen")
                I(f"buffer_load_dwordx4 v[{HW1+4}:{HW1+7}], v2, s[8:11], s29 offen offset:16")
                I("s_add_u32 s29, s29, 512")
            f = FR + (c % CR)*12
            if "cvi" in FLAGS:
                q.wait_for(("r", c))
                I(f"v_mfma_f32_32x32x16_bf16 v[{AC1}:{AC1+15}], v[{f}:{f+3}], v[{f+4}:{f+7}], v[{AC1}:{AC1+15}]")
                crd(c + CLA, both, 0)
                if both:
                    I(f"v_mfma_f32_32x32x16_bf16 v[{AC0}:{AC0+15}], v[{f}:{f+3}], v[{f+8}:{f+11}], v[{AC0}:{AC0+15}]")
                    crd(c + CLA, both, 1)
            else:
                crd(c + CLA, both)
                q.wait_for(("r", c))
                I(f"v_mfma_f32_32x32x16_bf16 v[{AC1}:{AC1+15}], v[{f}:{f+3}], v[{f+4}:{f+7}], v[{AC1}:{AC1+15}]")
                if both:
                    I(f"v_mfma_f32_32x32x16_bf16 v[{AC0}:{AC0+15}], v[{f}:{f+3}], v[{f+8}:{f+11}], v[{AC0}:{AC0+15}]")
        I("v_swap_b32 v7, v14")
        I("v_swap_b32 v10, v11")
        I("v_add_u32 v8, 640, v8")
        I("v_add_u32 v9, 640, v9")
        I("s_add_u32 s33, s33, 1")
        I(f"s_cmp_lt_u32 s33, {4*(phase+1)}")
        I(f"s_cbranch_scc1 CV_loop{phase}")
    I("v_mov_b32 v8, v15")
    I("s_waitcnt vmcnt(0) lgkmcnt(0)")
    stamp()
    I("v_mul_u32_u24 v10, 24, v6")
    I("v_sub_u32 v10, v8, v10")
    I("v_add_u32 v10, 8, v10")
    I("v_subrev_u32 v11, 2560, v10")
    KV = 16
    for cb in range(2):
        for qq in range(4):
            I(f"ds_read_b64 v[{KV+cb*8+2*qq}:{KV+cb*8+2*qq+1}], v{10+cb} offset:{48-16*qq}")
    I("s_and_b32 s25, s24, 1")
    I("s_lshl_b32 s25, s25, 4")
    I("s_lshr_b32 s26, s26, s25")
    I("s_lshl_b32 s26, s26, 16")
    I("v_lshlrev_b32 v12, 6, v5")
    I("v_lshl_add_u32 v12, v6, 3, v12")
    I("v_add_u32 v12, s27, v12")
    I("s_nop 7")
    I("s_waitcnt lgkmcnt(0)")
    for cb in range(2):
        ac = AC0 if cb == 0 else AC1
        for qq in range(4):
            k0 = KV + cb*8 + 2*qq
            t = 40 + (qq % 2)*12
            y = ac + 4*qq
            hi16(t+0, k0+1); lo16(t+1, k0+1); hi16(t+2, k0); lo16(t+3, k0)
            for r in range(4):
                I(f"v_mul_f32 v{t+r}, s26, v{t+r}")
            I(f"v_cvt_pk_bf16_f32 v{t+4}, v{t}, v{t+1}")
            I(f"v_cvt_pk_bf16_f32 v{t+5}, v{t+2}, v{t+3}")
            I(f"v_cvt_pk_bf16_f32 v{t+6}, v{y}, v{y+1}")
            I(f"v_cvt_pk_bf16_f32 v{t+7}, v{y+2}, v{y+3}")
            lo16(t, t+4); hi16(t+1, t+4); lo16(t+2, t+5); hi16(t+3, t+5)
            lo16(y, t+6); hi16(y+1, t+6); lo16(y+2, t+7); hi16(y+3, t+7)
            for r in range(4):
                I(f"v_add_f32 v{t+r}, v{t+r}, v{y+r}")
            I(f"v_cvt_pk_bf16_f32 v{t+8}, v{t}, v{t+1}")
            I(f"v_cvt_pk_bf16_f32 v{t+9}, v{t+2}, v{t+3}")
            I(f"buffer_store_dwordx2 v[{t+8}:{t+9}], v12, s[20:23], 0 offen offset:{cb*2048+16*qq}")
    I("s_waitcnt vmcnt(0)")
    stamp()
    stamp_dump(255 if BIG else N_G1 + 7)
    if BIG: wgt_end(1)
    I("s_endpgm")
    e("M_wdt:")
    I("s_waitcnt lgkmcnt(0)")
    if BIG and "pfm" in FLAGS:
        I("s_sub_u32 s26, s3, 6")
        I("s_mul_i32 s27, s26, 176")
        I("s_sub_u32 s27, s24, s27")
        I("s_lshl_b32 s26, s26, 3")
        I("s_add_u32 s26, s26, 56")
        I("s_load_dwordx2 s[28:29], s[0:1], s26")
        I("s_mul_i32 s27, s27, 12800")
        I(f"s_mov_b32 s30, {SZ_W}")
        I("s_mov_b32 s31, 0x00020000")
        I("v_and_b32 v1, 63, v0")
        I("v_lshlrev_b32 v1, 4, v1")
        I("s_waitcnt lgkmcnt(0)")
        for i in range(13):
            I(f"buffer_load_dwordx4 v[{100+4*i}:{103+4*i}], v1, s[28:31], s27 offen")
            I("s_add_u32 s27, s27, 1024")
    if "pfa128" in FLAGS or "pfa64" in FLAGS:
        G = 128 if "pfa128" in FLAGS else 64
        NL = 1792 // G
        I("s_cmp_lg_u32 s3, 3")
        I("s_cbranch_scc1 M_nopf")
        I("s_bfe_u32 s26, s2, 0x50003")
        I("s_lshr_b32 s27, s26, 4")
        I("s_lshl_b32 s27, s27, 3")
        I("s_add_u32 s27, s27, 56")
        I("s_load_dwordx2 s[28:29], s[0:1], s27")
        I("s_and_b32 s26, s26, 15")
        I("s_mul_i32 s26, s26, 138240")
        I("s_bfe_u32 s27, s2, 0x10002")
        I("s_mul_i32 s27, s27, 1792")
        I("s_add_u32 s26, s26, s27")
        I(f"s_mov_b32 s30, {SZ_W}")
        I("s_mov_b32 s31, 0x00020000")
        I("v_and_b32 v1, 63, v0")
        I("s_waitcnt lgkmcnt(0)")
        n = (40*NL + 63)//64
        mul = (65536 + NL - 1)//NL
        for i in range(n):
            I(f"v_add_u32 v2, {64*i}, v1")
            I(f"v_mul_u32_u24 v3, {mul}, v2")
            I("v_lshrrev_b32 v3, 16, v3")
            I(f"v_mul_u32_u24 v4, {NL}, v3")
            I("v_sub_u32 v4, v2, v4")
            I("v_mul_u32_u24 v3, 3456, v3")
            I(f"v_lshl_add_u32 v{100+i}, v4, {7 if G==128 else 6}, v3")
            I(f"buffer_load_dword v{140+i}, v{100+i}, s[28:31], s26 offen")
        e("M_nopf:")
    WBAR = 0
    for f_ in FLAGS:
        if f_.startswith("wbar"): WBAR = int(f_[4:])
    I("s_cmp_ge_u32 s24, 270")
    I(f"s_cbranch_scc1 {'M_exitb' if WBAR else 'M_exitw'}")
    I("s_load_dwordx2 s[4:5], s[0:1], 72")
    I("s_mul_i32 s17, s24, 0xCCCD")
    I("s_lshr_b32 s17, s17, 19")
    I("s_mul_i32 s18, s17, 10")
    I("s_sub_u32 s18, s24, s18")
    I("v_and_b32 v1, 7, v0")
    I("v_bfe_u32 v2, v0, 3, 2")
    I("v_bfe_u32 v6, v0, 5, 1")
    I("s_lshl_b32 s18, s18, 6")
    I("v_lshl_add_u32 v1, v1, 3, s18")
    I("s_lshl_b32 s19, s17, 1")
    I("v_add_u32 v6, s19, v6")
    I("v_lshlrev_b32 v7, 5, v6")
    I("v_lshl_add_u32 v7, v2, 2, v7")
    I("v_mul_u32_u24 v3, 0x500, v7")
    I("v_lshl_add_u32 v3, v1, 1, v3")
    I("v_add_u32 v4, 0x5000, v3")
    I("s_waitcnt lgkmcnt(0)")
    srd(8, 4, SZ_W)
    srd(12, 6, SZ_W, WS_WDT)
    for i in range(8):
        b = 3 if i < 4 else 4
        I(f"buffer_load_dwordx4 v[{8+4*i}:{11+4*i}], v{b}, s[8:11], 0 offen offset:{(i%4)*1280}")
    I("s_mov_b32 s20, 0x05040100")
    I("s_mov_b32 s21, 0x07060302")
    I("v_lshrrev_b32 v5, 4, v1")
    I("v_mul_u32_u24 v5, 54, v5")
    I("v_add_u32 v5, v5, v6")
    I("v_lshlrev_b32 v5, 10, v5")
    I("v_lshl_add_u32 v5, v2, 8, v5")
    I("v_and_b32 v7, 15, v1")
    I("v_lshl_add_u32 v5, v7, 4, v5")
    for _ in range(WBAR): I("s_barrier")
    I("s_waitcnt vmcnt(0)")
    for dd in range(8):
        ob = 40 + 4*dd
        sel = 20 + (dd & 1)
        for q in range(4):
            I(f"v_perm_b32 v{ob+q}, v{8+4*(2*q+1)+dd//2}, v{8+4*(2*q)+dd//2}, s{sel}")
    for dd in range(8):
        ob = 40 + 4*dd
        I(f"buffer_store_dwordx4 v[{ob}:{ob+3}], v5, s[12:15], 0 offen offset:{16*dd}")
    if WBAR:
        I("s_endpgm")
        e("M_exitb:")
        for _ in range(WBAR): I("s_barrier")
    e("M_exitw:")
    I("s_waitcnt vmcnt(0)")
    e("M_exit:")
    I("s_endpgm")
    kernel_desc("mid_kernel", 256 if any(f.startswith("cla") for f in FLAGS) else (240 if BIG else 208), 80)

def gen_k3():
    kernel_header("fin_kernel")
    I(f"s_cmp_ge_u32 s2, {64 if 'fin64' in FLAGS else 256}")
    I("s_cbranch_scc1 F_exit")
    I("s_load_dwordx2 s[6:7], s[0:1], 96")
    I("s_load_dwordx2 s[4:5], s[0:1], 0")
    I("s_load_dwordx2 s[30:31], s[0:1], 80")
    stamp()
    I("v_lshrrev_b32 v1, 6, v0")
    I("s_nop 0")
    I("v_readfirstlane_b32 s3, v1")
    I("s_waitcnt lgkmcnt(0)")
    srd(8, 6, SZ_W, WS_WDT)
    srd(12, 6, SZ_H, WS_H)
    srd(16, 6, SZ_SD, WS_YT)
    srd(20, 6, SZ_SD, WS_XN)
    srd(24, 4, SZ_SD)
    srd(32, 30, SZ_SD)
    if "fin2d" in FLAGS:
        I("s_and_b32 s36, s2, 1")
        I("s_lshl_b32 s36, s36, 2")
        I("s_bfe_u32 s37, s2, 0x20003")
        I("s_add_u32 s36, s36, s37")
        I("s_mul_i32 s36, s36, 80")
        I("s_bfe_u32 s37, s2, 0x20001")
        I("s_lshl_b32 s37, s37, 3")
        I("s_lshr_b32 s38, s2, 5")
        I("s_add_u32 s37, s37, s38")
        I("s_lshl_b32 s37, s37, 6")
    elif "finswap" in FLAGS:
        I("s_lshr_b32 s36, s2, 5")
        I("s_mul_i32 s36, s36, 80")
        I("s_and_b32 s37, s2, 31")
        I("s_lshl_b32 s37, s37, 6")
    else:
        I("s_and_b32 s36, s2, 7")
        I("s_mul_i32 s36, s36, 80")
        I("s_lshr_b32 s37, s2, 3")
        I("s_lshl_b32 s37, s37, 6")
    I("s_mul_i32 s38, s3, 14")
    I("s_cmp_eq_u32 s3, 3")
    I("s_cselect_b32 s39, 1, 0")
    I("s_sub_u32 s38, s38, s39")
    I("s_cmp_ge_u32 s3, 2")
    I("s_cselect_b32 s39, 13, 14")
    I("s_add_u32 s47, s38, s39")
    I("s_lshl_b32 s45, s38, 10")
    I("s_lshl_b32 s47, s47, 10")
    if "rot" in FLAGS:
        I("s_bfe_u32 s46, s2, 0x20003")
        I("s_lshl_b32 s46, s46, 2")
        I("s_lshr_b32 s44, s2, 5")
        I("s_lshl_b32 s44, s44, 1")
        I("s_add_u32 s46, s46, s44")
        I("s_cmp_ge_u32 s46, 13")
        I("s_cselect_b32 s44, 13, 0")
        I("s_sub_u32 s46, s46, s44")
        I("s_cmp_ge_u32 s46, 13")
        I("s_cselect_b32 s44, 13, 0")
        I("s_sub_u32 s46, s46, s44")
        I("s_lshl_b32 s46, s46, 10")
        I("s_add_u32 s46, s46, s45")
    else:
        I("s_mov_b32 s46, s45")
    I("s_mov_b32 s44, 0")
    I("v_and_b32 v1, 15, v0")
    I("v_bfe_u32 v2, v0, 4, 2")
    I("v_and_b32 v12, 63, v0")
    if "pf" in FLAGS:
        I("s_lshr_b32 s52, s2, 3")
        I("s_lshl_b32 s52, s52, 2")
        I("s_add_u32 s52, s52, s3")
        I("s_and_b32 s53, s2, 1")
        I("s_mul_i32 s53, s53, 1105920")
        I("s_mul_i32 s54, s52, 8640")
        I("s_add_u32 s53, s53, s54")
        I("v_lshlrev_b32 v240, 6, v12")
        I("buffer_load_dword v241, v240, s[8:11], s53 offen")
        I("s_add_u32 s53, s53, 4096")
        I("buffer_load_dword v242, v240, s[8:11], s53 offen")
        I("s_add_u32 s53, s53, 544")
        I("buffer_load_dword v243, v240, s[8:11], s53 offen")
        I("s_bfe_u32 s53, s2, 0x20001")
        I("s_mul_i32 s53, s53, 1769472")
        I("s_mul_i32 s54, s52, 13824")
        I("s_add_u32 s53, s53, s54")
        for i, inc in enumerate((4096, 4096, 1536, 0)):
            I(f"buffer_load_dword v{244+i}, v240, s[12:15], s53 offen")
            if inc: I(f"s_add_u32 s53, s53, {inc}")
    I("s_lshr_b32 s52, s36, 4")
    I("s_mul_i32 s52, s52, 55296")
    I("v_lshl_add_u32 v3, v12, 4, s52")
    for jd in range(1, 5):
        I(f"v_add_u32 v{3+jd}, {jd*55296}, v3")
    I("s_lshr_b32 s52, s37, 4")
    I("s_mul_i32 s52, s52, 55296")
    I("v_lshl_add_u32 v8, v12, 4, s52")
    for js in range(1, 4):
        I(f"v_add_u32 v{8+js}, {js*55296}, v8")
    def acc(jd, js): return (js*5 + jd)*4
    FRB = 16
    NB = 5
    def ld(buf):
        f = FRB + buf*36
        I("s_cmp_lt_u32 s44, s39")
        I("s_cselect_b32 s48, s46, 0x40000000")
        for jd in range(5):
            r = f + 4*jd
            I(f"buffer_load_dwordx4 v[{r}:{r+3}], v{3+jd}, s[8:11], s48 offen{CP}")
        for js in range(4):
            r = f + 20 + 4*js
            I(f"buffer_load_dwordx4 v[{r}:{r+3}], v{8+js}, s[12:15], s48 offen{CP}")
        I("s_add_u32 s46, s46, 1024")
        I("s_cmp_ge_u32 s46, s47")
        I("s_cselect_b32 s46, s45, s46")
        I("s_add_u32 s44, s44, 1")
    def mm(buf):
        f = FRB + buf*36
        for js in range(4):
            for jd in range(5):
                c = acc(jd, js)
                a = f + 4*jd; b = f + 20 + 4*js
                I(f"v_mfma_f32_16x16x32_bf16 a[{c}:{c+3}], v[{a}:{a+3}], v[{b}:{b+3}], a[{c}:{c+3}]")
    I("s_lshr_b32 s41, s3, 1")
    I("s_lshl_b32 s41, s41, 5")
    I("s_add_u32 s41, s41, s37")
    I("s_lshl_b32 s41, s41, 1")
    I("v_add_u32 v14, s36, v1")
    I("v_lshlrev_b32 v14, 12, v14")
    I("v_lshl_add_u32 v14, v2, 4, v14")
    I("v_add_u32 v14, s41, v14")
    YF = 196
    for jd in range(5):
        I(f"v_add_u32 v15, {jd*16*4096}, v14")
        I(f"buffer_load_dwordx4 v[{YF+4*jd}:{YF+4*jd+3}], v15, s[16:19], 0 offen")
    I("s_lshl_b32 s42, s3, 4")
    I("s_add_u32 s42, s42, s37")
    I("v_add_u32 v15, s42, v1")
    I("v_mul_u32_u24 v15, 0x500, v15")
    I("v_lshl_add_u32 v15, v2, 3, v15")
    I("s_lshl_b32 s43, s36, 1")
    I("v_add_u32 v15, s43, v15")
    XX = 216
    I("s_lshr_b32 s50, s42, 4")
    I("s_mul_i32 s50, s50, 20480")
    I("v_lshrrev_b32 v14, 1, v2")
    I("v_lshlrev_b32 v14, 8, v14")
    I("v_lshl_add_u32 v14, v1, 4, v14")
    I("v_and_b32 v13, 1, v2")
    I("v_lshl_add_u32 v14, v13, 3, v14")
    I("v_add_u32 v14, s50, v14")
    for jd in range(5):
        I(f"buffer_load_dwordx2 v[{XX+2*jd}:{XX+2*jd+1}], v15, s[24:27], 0 offen offset:{32*jd}")
        I(f"s_add_u32 s50, s36, {16*jd}")
        I("s_lshr_b32 s51, s50, 5")
        I("s_lshl_b32 s51, s51, 10")
        I("s_and_b32 s50, s50, 16")
        I("s_lshl_b32 s50, s50, 5")
        I("s_add_u32 s51, s51, s50")
        I(f"buffer_load_dwordx2 v[{XX+10+2*jd}:{XX+11+2*jd}], v14, s[20:23], s51 offen")
    NB2 = NB
    for f_ in FLAGS:
        if f_.startswith("nb"): NB2 = int(f_[2:])
    def breg(buf, i):
        if buf < 5: return "v", FRB + buf*36 + 4*i
        return "a", 80 + (buf-5)*36 + 4*i
    def ld2(buf):
        for jd in range(5):
            t, r = breg(buf, jd)
            I(f"buffer_load_dwordx4 {t}[{r}:{r+3}], v{3+jd}, s[8:11], s46 offen{CP}")
        for js in range(4):
            t, r = breg(buf, 5+js)
            I(f"buffer_load_dwordx4 {t}[{r}:{r+3}], v{8+js}, s[12:15], s46 offen{CP}")
        I("s_add_u32 s46, s46, 1024")
    def mm2(buf):
        for js in range(4):
            for jd in range(5):
                c = acc(jd, js)
                t, a = breg(buf, jd); t, b = breg(buf, 5+js)
                I(f"v_mfma_f32_16x16x32_bf16 a[{c}:{c+3}], {t}[{a}:{a+3}], {t}[{b}:{b+3}], a[{c}:{c+3}]")
    for b in range(NB2-1):
        ld2(b)
    for j in range(80):
        I(f"v_accvgpr_write_b32 a{j}, 0")
    stamp()
    for k in range(14):
        nb = k + NB2 - 1
        if nb <= 12:
            ld2(nb % NB2)
        elif nb == 13:
            I("s_cmp_ge_u32 s3, 2")
            I("s_cbranch_scc1 F_skip13")
            ld2(nb % NB2)
            e("F_skip13:")
        if k == 13:
            I("s_cmp_ge_u32 s3, 2")
            I("s_cbranch_scc1 F_done")
        rem = max(0, min(12, nb) - k)
        if k < 13: I(f"s_waitcnt vmcnt({9*rem})")
        mm2(k % NB2)
    e("F_done:")
    stamp()
    I("s_mul_i32 s40, s3, 20480")
    I("v_lshlrev_b32 v13, 4, v12")
    I("v_add_u32 v13, s40, v13")
    I("s_nop 7")
    for js in range(4):
        for jd in range(5):
            c = acc(jd, js)
            I(f"ds_write_b128 v13, a[{c}:{c+3}] offset:{(js*5+jd)*1024}")
    I("s_waitcnt lgkmcnt(0)")
    I("s_barrier")
    I("s_mul_i32 s40, s3, 5120")
    I("v_lshlrev_b32 v12, 4, v12")
    I("v_add_u32 v13, s40, v12")
    I("v_add_u32 v12, 40960, v13")
    R = 96
    for src in range(4):
        for jd in range(5):
            r = R + (src*5 + jd)*4
            I(f"ds_read_b128 v[{r}:{r+3}], v{13 if src < 2 else 12} offset:{(src%2)*20480 + jd*1024}")
    IDB = 60
    I("s_and_b32 s44, s3, 1")
    I("s_lshl_b32 s44, s44, 4")
    I("v_add_u32 v64, s44, v1")
    I("v_lshrrev_b32 v65, 3, v64")
    I("v_cmp_eq_u32 vcc, v65, v2")
    I("v_and_b32 v65, 7, v64")
    I("v_and_b32 v66, 1, v65")
    I("v_lshlrev_b32 v66, 4, v66")
    I("v_mov_b32 v67, 0x3f80")
    I("v_lshlrev_b32 v67, v66, v67")
    I("v_lshrrev_b32 v65, 1, v65")
    I("v_cndmask_b32 v67, 0, v67, vcc")
    for j in range(4):
        I(f"v_cmp_eq_u32 vcc, {j}, v65")
        I("s_nop 1")
        I(f"v_cndmask_b32 v{IDB+j}, 0, v67, vcc")
    TY = 64
    I("s_nop 1")
    for jd in range(5):
        I(f"v_mfma_f32_16x16x32_bf16 v[{TY+4*jd}:{TY+4*jd+3}], v[{YF+4*jd}:{YF+4*jd+3}], v[{IDB}:{IDB+3}], 0")
    I("s_waitcnt lgkmcnt(0)")
    for jd in range(5):
        r0 = R + jd*4
        for src in range(1, 4):
            r = R + (src*5 + jd)*4
            for j in range(4):
                I(f"v_add_f32 v{r0+j}, v{r0+j}, v{r+j}")
    I("s_waitcnt vmcnt(0)")
    for jd in range(5):
        b = R + jd*4
        ty = TY + 4*jd
        t = 180 + (jd % 2)*16
        x0 = XX + 2*jd; n0 = XX + 10 + 2*jd
        lo16(t, n0); hi16(t+1, n0); lo16(t+2, n0+1); hi16(t+3, n0+1)
        for r in range(4):
            I(f"v_mul_f32 v{t+r}, v{t+r}, v{ty+r}")
        I(f"v_cvt_pk_bf16_f32 v{t+4}, v{t}, v{t+1}")
        I(f"v_cvt_pk_bf16_f32 v{t+5}, v{t+2}, v{t+3}")
        lo16(t, t+4); hi16(t+1, t+4); lo16(t+2, t+5); hi16(t+3, t+5)
        lo16(t+6, x0); hi16(t+7, x0); lo16(t+8, x0+1); hi16(t+9, x0+1)
        for r in range(4):
            I(f"v_add_f32 v{t+r}, v{t+r}, v{t+6+r}")
        I(f"v_cvt_pk_bf16_f32 v{t+4}, v{t}, v{t+1}")
        I(f"v_cvt_pk_bf16_f32 v{t+5}, v{t+2}, v{t+3}")
        lo16(t, t+4); hi16(t+1, t+4); lo16(t+2, t+5); hi16(t+3, t+5)
        I(f"v_cvt_pk_bf16_f32 v{t+4}, v{b}, v{b+1}")
        I(f"v_cvt_pk_bf16_f32 v{t+5}, v{b+2}, v{b+3}")
        lo16(t+6, t+4); hi16(t+7, t+4); lo16(t+8, t+5); hi16(t+9, t+5)
        for r in range(4):
            I(f"v_add_f32 v{t+r}, v{t+r}, v{t+6+r}")
        I(f"v_cvt_pk_bf16_f32 v{t+10}, v{t}, v{t+1}")
        I(f"v_cvt_pk_bf16_f32 v{t+11}, v{t+2}, v{t+3}")
        I(f"buffer_store_dwordx2 v[{t+10}:{t+11}], v15, s[32:35], 0 offen offset:{32*jd}")
    I("s_waitcnt vmcnt(0)")
    stamp()
    stamp_dump(9)
    e("F_exit:")
    I("s_endpgm")
    kernel_desc("fin_kernel", 256+80+36*max(0, NB2-5), 80, accum=256)

def main():
    hdr = open("parallel_sum__ssm_conv_h3__glu_gated_bilinear__prompt.s.ref").read().splitlines()
    for line in hdr:
        if line.startswith("; @launch"):
            break
        if line.startswith(";"):
            e(line)
    e(f"; @launch kernel=prep_kernel grid=({N_LN+N_KV+N_PF},1,1) block=(256,1,1) lds=0")
    if BIG:
        e("; @launch kernel=mid_kernel grid=(256,1,1) block=(512,1,1) lds=163840")
    else:
        e(f"; @launch kernel=mid_kernel grid=({N_G1+N_CV},1,1) block=(256,1,1) lds={LDS2}")
    e(f"; @launch kernel=fin_kernel grid=(256,1,1) block=(256,1,1) lds=81920")
    e('.amdgcn_target "amdgcn-amd-amdhsa--gfx950"')
    gen_prep()
    gen_k2()
    gen_k3()
    dst = sys.argv[1] if len(sys.argv) > 1 else "parallel_sum__ssm_conv_h3__glu_gated_bilinear__prompt.s"
    open(dst, "w").write("\n".join(out) + "\n")

main()
```

```python
import sys

import os
FLAGS = os.environ.get("GENFLAGS", "").split(",")
CP = " nt" if "cpnt" in FLAGS else (" sc1" if "cpsc1" in FLAGS else (" sc0 sc1" if "cpsc01" in FLAGS else ""))
S, D, F = 2048, 640, 1728
WS_XN  = 0x0
WS_KVR = 0x280000
WS_WDT = 0x500000
WS_H   = 0x800000
WS_YT  = 0x1000000
SZ_SD = S * D * 2
SZ_W  = D * F * 2
SZ_H  = S * F * 2

out = []
def e(s=""):
    out.append(s)
SP = " nt" if "stnt" in FLAGS else (" sc0 sc1" if "stsc" in FLAGS else (" sc1" if "stsc1" in FLAGS else (" sc0 sc1 nt" if "stall" in FLAGS else "")))
def I(s):
    if s.startswith("buffer_store") and "s[56:59]" not in s: s += SP
    out.append("    " + s)

def srd(base, ptr, size, off=0):
    if off:
        I(f"s_add_u32 s{base}, s{ptr}, {off:#x}")
        I(f"s_addc_u32 s{base+1}, s{ptr+1}, 0")
    else:
        I(f"s_mov_b32 s{base}, s{ptr}")
        I(f"s_mov_b32 s{base+1}, s{ptr+1}")
    I(f"s_mov_b32 s{base+2}, {size:#x}")
    I(f"s_mov_b32 s{base+3}, 0x00020000")

def lo16(dst, src): I(f"v_lshlrev_b32 v{dst}, 16, v{src}")
def hi16(dst, src): I(f"v_and_b32 v{dst}, 0xffff0000, v{src}")

STAMP = "stamp" in FLAGS
nst = [0]
def stamp():
    if STAMP:
        i = nst[0]; nst[0] += 1
        I(f"s_memtime s[{60+2*i}:{61+2*i}]")
def stamp_dump(wg):
    if not STAMP: return
    n = nst[0]; nst[0] = 0
    I("s_waitcnt lgkmcnt(0) vmcnt(0)")
    I(f"s_cmp_lg_u32 s2, {wg}")
    I(f"s_cbranch_scc1 SD_skip{wg}")
    I("s_cmp_lg_u32 s3, 0")
    I(f"s_cbranch_scc1 SD_skip{wg}")
    I("s_load_dwordx2 s[56:57], s[0:1], 88")
    I("s_waitcnt lgkmcnt(0)")
    I("s_mov_b32 s58, 256")
    I("s_mov_b32 s59, 0x00020000")
    I("v_mov_b32 v1, 0")
    for i in range(n):
        I(f"s_sub_u32 s{61+2*i}, s{60+2*i}, s60")
        I(f"v_mov_b32 v2, s{61+2*i}")
        I(f"buffer_store_dword v2, v1, s[56:59], 0 offen offset:{4*i}")
    I("s_waitcnt vmcnt(0)")
    e(f"SD_skip{wg}:")

WGT = "wgt" in FLAGS
def wgt_start():
    if WGT: I("s_memrealtime s[76:77]")
wgtn = [0]
def wgt_end(kidx):
    if not WGT: return
    n = wgtn[0]; wgtn[0] += 1
    I("s_waitcnt vmcnt(0) lgkmcnt(0)")
    I("s_memrealtime s[78:79]")
    I("s_load_dwordx2 s[72:73], s[0:1], 96")
    I("v_lshrrev_b32 v1, 6, v0")
    I("s_nop 0")
    I("v_readfirstlane_b32 s70, v1")
    I("s_lshl_b32 s71, s2, 3")
    I("s_add_u32 s70, s70, s71")
    I("s_lshl_b32 s70, s70, 3")
    I("s_waitcnt lgkmcnt(0)")
    I(f"s_add_u32 s72, s72, {0x1800000 + kidx*0x10000}")
    I("s_addc_u32 s73, s73, 0")
    I("s_mov_b32 s74, 0x10000")
    I("s_mov_b32 s75, 0x00020000")
    I("v_mov_b32 v2, s76")
    I("v_mov_b32 v3, s78")
    I("v_mov_b32 v1, s70")
    I("buffer_store_dwordx2 v[2:3], v1, s[72:75], 0 offen")
    I("s_waitcnt vmcnt(0)")

def kernel_header(name):
    e(".text")
    e(f".globl {name}")
    e(".p2align 8")
    e(f".type {name},@function")
    e(f"{name}:")

def kernel_desc(name, vgpr, sgpr, accum=None):
    if accum is None:
        accum = (vgpr + 3) // 4 * 4
    e('.section .rodata,"a"')
    e(".p2align 6")
    e(f".amdhsa_kernel {name}")
    e(f"  .amdhsa_next_free_vgpr {vgpr}")
    e(f"  .amdhsa_next_free_sgpr {sgpr}")
    e(f"  .amdhsa_accum_offset {accum}")
    e("  .amdhsa_group_segment_fixed_size 0")
    e("  .amdhsa_kernarg_size 104")
    e("  .amdhsa_user_sgpr_count 2")
    e("  .amdhsa_user_sgpr_kernarg_segment_ptr 1")
    e("  .amdhsa_system_sgpr_workgroup_id_x 1")
    e(".end_amdhsa_kernel")

N_LN, N_KV = 128, 160
N_PF = 0
if "pfw" in FLAGS: N_PF = 4*36
if "pfw2" in FLAGS: N_PF = 2*36
def gen_prep():
    kernel_header("prep_kernel")
    I(f"s_cmp_ge_u32 s2, {N_LN+N_KV+N_PF}")
    I("s_cbranch_scc1 P_exit")
    if N_PF:
        I(f"s_cmp_ge_u32 s2, {N_LN+N_KV}")
        I("s_cbranch_scc1 P_pf")
    I("s_load_dwordx2 s[6:7], s[0:1], 96")
    I(f"s_cmp_lt_u32 s2, {N_KV}")
    I("s_cbranch_scc1 P_kv")
    if "noln" in FLAGS: I("s_endpgm")
    I("s_load_dwordx2 s[4:5], s[0:1], 0")
    I("v_lshrrev_b32 v1, 4, v0")
    I(f"s_sub_u32 s3, s2, {N_KV}")
    I("s_lshl_b32 s3, s3, 4")
    I("v_add_u32 v1, s3, v1")
    I("v_mul_u32_u24 v2, 0x500, v1")
    I("v_and_b32 v3, 15, v0")
    I("v_lshl_add_u32 v2, v3, 4, v2")
    I("s_waitcnt lgkmcnt(0)")
    srd(8, 4, SZ_SD)
    srd(12, 6, SZ_SD, WS_XN)
    for j in range(5):
        I(f"buffer_load_dwordx4 v[{4+4*j}:{7+4*j}], v2, s[8:11], 0 offen offset:{256*j}")
    I("v_lshrrev_b32 v2, 4, v1")
    I("v_mul_u32_u24 v2, 20480, v2")
    I("v_lshrrev_b32 v64, 2, v3")
    I("v_lshl_add_u32 v2, v64, 10, v2")
    I("v_and_b32 v64, 3, v3")
    I("v_lshl_add_u32 v2, v64, 8, v2")
    I("v_and_b32 v64, 15, v1")
    I("v_lshl_add_u32 v2, v64, 4, v2")
    I("s_waitcnt vmcnt(0)")
    X = 24
    for j in range(20):
        lo16(X + 2*j, 4 + j)
        hi16(X + 2*j + 1, 4 + j)
    T = 64
    for j in range(20):
        I(f"v_add_f32 v{T+j}, v{X+2*j}, v{X+2*j+1}")
    def tree(base, n):
        while n > 1:
            h = n // 2
            for j in range(h):
                I(f"v_add_f32 v{base+j}, v{base+j}, v{base+n-1-j}")
            n = n - h
    tree(T, 20)
    def dpp_reduce(r, tmp):
        for sh in (8, 4, 2, 1):
            I("s_nop 1")
            I(f"v_add_f32_dpp v{tmp}, v{r}, v{r} row_ror:{sh} row_mask:0xf bank_mask:0xf")
            I(f"v_mov_b32 v{r}, v{tmp}")
    dpp_reduce(T, T+1)
    I(f"v_mul_f32 v{T}, {1.0/640.0!r}, v{T}")
    for j in range(40):
        I(f"v_sub_f32 v{T+2+j}, v{X+j}, v{T}")
    for j in range(40):
        I(f"v_mul_f32 v{T+2+j}, v{T+2+j}, v{T+2+j}")
    tree(T+2, 40)
    dpp_reduce(T+2, T+1)
    I(f"v_mul_f32 v{T+2}, {1.0/640.0!r}, v{T+2}")
    I(f"v_cvt_pk_bf16_f32 v{T}, v{T}, v{T+2}")
    hi16(T+2, T)
    lo16(T, T)
    I(f"v_add_f32 v{T+2}, {1e-5!r}, v{T+2}")
    I(f"v_cvt_pk_bf16_f32 v{T+2}, v{T+2}, v{T+2}")
    lo16(T+2, T+2)
    I(f"v_sqrt_f32 v{T+2}, v{T+2}")
    I("s_nop 0")
    I(f"v_cvt_pk_bf16_f32 v{T+2}, v{T+2}, v{T+2}")
    lo16(T+2, T+2)
    I(f"v_rcp_f32 v{T+3}, v{T+2}")
    I("s_nop 0")
    for j in range(20):
        a, b = X + 2*j, X + 2*j + 1
        I(f"v_sub_f32 v{a}, v{a}, v{T}")
        I(f"v_sub_f32 v{b}, v{b}, v{T}")
        I(f"v_cvt_pk_bf16_f32 v{T+4}, v{a}, v{b}")
        lo16(a, T+4)
        hi16(b, T+4)
        for r in (a, b):
            I(f"v_mul_f32 v{T+5}, v{r}, v{T+3}")
            I(f"v_fma_f32 v{T+6}, -v{T+5}, v{T+2}, v{r}")
            I(f"v_fma_f32 v{r}, v{T+6}, v{T+3}, v{T+5}")
        I(f"v_cvt_pk_bf16_f32 v{4+j}, v{a}, v{b}")
        if j % 4 == 3:
            jj = j // 4
            I(f"s_mov_b32 s16, {4096*jj}")
            I(f"buffer_store_dwordx4 v[{4+4*jj}:{7+4*jj}], v2, s[12:15], s16 offen")
    I("s_endpgm")
    e("P_kv:")
    if "nokv" in FLAGS: I("s_endpgm")
    I("s_load_dwordx4 s[16:19], s[0:1], 8")
    I("s_load_dwordx2 s[4:5], s[0:1], 24")
    I("s_mul_i32 s28, s2, 0xCCCD")
    I("s_lshr_b32 s28, s28, 19")
    I("s_mul_i32 s29, s28, 10")
    I("s_sub_u32 s29, s2, s29")
    I("v_and_b32 v1, 7, v0")
    I("v_lshrrev_b32 v2, 3, v0")
    I("s_lshl_b32 s30, s29, 6")
    I("v_lshl_add_u32 v1, v1, 3, s30")
    I("s_lshl_b32 s31, s28, 7")
    I("v_lshl_add_u32 v2, v2, 2, s31")
    I("v_mul_u32_u24 v3, 0x500, v2")
    I("v_lshl_add_u32 v3, v1, 1, v3")
    for i in range(3):
        I(f"v_subrev_u32 v{5+i}, {(3-i)*1280:#x}, v3")
    I("v_lshlrev_b32 v8, 3, v1")
    I("s_waitcnt lgkmcnt(0)")
    srd(8, 16, SZ_SD)
    srd(12, 18, SZ_SD)
    srd(20, 4, D*4*2)
    srd(24, 6, SZ_SD, WS_KVR)
    KR = 16
    for i in range(3):
        I(f"buffer_load_dwordx4 v[{KR+4*i}:{KR+4*i+3}], v{5+i}, s[8:11], 0 offen")
    for i in range(4):
        I(f"buffer_load_dwordx4 v[{KR+4*(i+3)}:{KR+4*(i+3)+3}], v3, s[8:11], 0 offen offset:{i*1280}")
    VR = KR + 28
    for i in range(4):
        I(f"buffer_load_dwordx4 v[{VR+4*i}:{VR+4*i+3}], v3, s[12:15], 0 offen offset:{i*1280}")
    SK = VR + 16
    for i in range(4):
        I(f"buffer_load_dwordx4 v[{SK+4*i}:{SK+4*i+3}], v8, s[20:23], 0 offen offset:{16*i}")
    I("v_lshlrev_b32 v9, 12, v1")
    I(f"v_sub_u32 v10, {S-4}, v2")
    I("v_lshl_add_u32 v9, v10, 1, v9")
    I("s_waitcnt vmcnt(0)")
    KF = 76
    VF = 83
    SF = 87
    TM = 92
    OB = 104
    for dd in range(8):
        ex = lo16 if dd % 2 == 0 else hi16
        for i in range(7):
            ex(KF + i, KR + 4*i + dd//2)
        for i in range(4):
            ex(VF + i, VR + 4*i + dd//2)
        lo16(SF+0, SK + 2*dd); hi16(SF+1, SK + 2*dd)
        lo16(SF+2, SK + 2*dd + 1); hi16(SF+3, SK + 2*dd + 1)
        ob = OB + 2*(dd % 4)
        for q in range(2):
            sa, sb = 3 - 2*q, 2 - 2*q
            t = TM
            I(f"v_mul_f32 v{t}, v{KF+sa}, v{SF+3}")
            I(f"v_mul_f32 v{t+1}, v{KF+sb}, v{SF+3}")
            I(f"v_mul_f32 v{t+2}, v{KF+sa+1}, v{SF+2}")
            I(f"v_mul_f32 v{t+3}, v{KF+sb+1}, v{SF+2}")
            I(f"v_mul_f32 v{t+4}, v{KF+sa+2}, v{SF+1}")
            I(f"v_mul_f32 v{t+5}, v{KF+sb+2}, v{SF+1}")
            I(f"v_mul_f32 v{t+6}, v{KF+sa+3}, v{SF+0}")
            I(f"v_mul_f32 v{t+7}, v{KF+sb+3}, v{SF+0}")
            for p in range(4):
                I(f"v_cvt_pk_bf16_f32 v{t+8+p}, v{t+2*p}, v{t+2*p+1}")
            for p in range(4):
                lo16(t+2*p, t+8+p); hi16(t+2*p+1, t+8+p)
            for step in (1, 2, 3):
                I(f"v_add_f32 v{t}, v{t}, v{t+2*step}")
                I(f"v_add_f32 v{t+1}, v{t+1}, v{t+2*step+1}")
                I(f"v_cvt_pk_bf16_f32 v{t+8}, v{t}, v{t+1}")
                lo16(t, t+8); hi16(t+1, t+8)
            I(f"v_mul_f32 v{t}, v{t}, v{VF+sa}")
            I(f"v_mul_f32 v{t+1}, v{t+1}, v{VF+sb}")
            I(f"v_cvt_pk_bf16_f32 v{ob+q}, v{t}, v{t+1}")
        I(f"s_mov_b32 s16, {4096*dd}")
        I(f"buffer_store_dwordx2 v[{ob}:{ob+1}], v9, s[24:27], s16 offen")
    if N_PF:
        I("s_endpgm")
        e("P_pf:")
        I(f"s_sub_u32 s3, s2, {N_LN+N_KV}")
        I("s_mul_i32 s4, s3, 1821")
        I("s_lshr_b32 s4, s4, 16")
        I("s_mul_i32 s5, s4, 36")
        I("s_sub_u32 s5, s3, s5")
        I("s_lshl_b32 s6, s4, 3")
        I("s_add_u32 s6, s6, 56")
        I("s_cmp_eq_u32 s4, 3")
        I("s_cselect_b32 s6, 32, s6")
        I("s_load_dwordx2 s[8:9], s[0:1], s6")
        I(f"s_mov_b32 s10, {SZ_W}")
        I(f"s_cselect_b32 s10, {SZ_SD}, s10")
        I("s_mov_b32 s11, 0x00020000")
        I("s_mov_b32 s7, 65536")
        I("s_cselect_b32 s7, 73728, s7")
        I("s_mul_i32 s5, s5, s7")
        I("v_lshlrev_b32 v1, 4, v0")
        I("s_waitcnt lgkmcnt(0)")
        for i in range(18):
            I(f"buffer_load_dwordx4 v[{4+4*i}:{7+4*i}], v1, s[8:11], s5 offen")
            I("s_add_u32 s5, s5, 4096")
        I("s_waitcnt vmcnt(0)")
    e("P_exit:")
    I("s_endpgm")
    kernel_desc("prep_kernel", 112, 40)

BF = 112
NSLOT = 5
SLOT = 16384
LDS2 = NSLOT * SLOT
N_G1, N_CV = 256, 256

class DSQ:
    def __init__(self): self.q = []
    def push(self, tag): self.q.append(tag)
    def wait_for(self, tag):
        if tag not in self.q: return
        idx = max(i for i, t in enumerate(self.q) if t == tag)
        n = len(self.q) - 1 - idx
        I(f"s_waitcnt lgkmcnt({min(n,15)})")
        self.q = self.q[idx+1:] if n <= 15 else self.q[len(self.q)-15:]

BIG = "big" in FLAGS
def gen_g1big():
    NF = 10; RS = 320; MS = 32*RS; SL = 2*MS; NS = 8; DB = 3; LA = 3; NST = 20
    for f_ in FLAGS:
        if f_.startswith("ns"): NS = int(f_[2:])
    DW = NS - 1
    stamp()
    I("s_load_dwordx4 s[16:19], s[0:1], 56")
    I(f"s_mul_i32 s25, s25, {16*NF}")
    I(f"s_min_u32 s25, s25, {F-16*NF}")
    I("v_and_b32 v1, 63, v0")
    PROD = "prod" in FLAGS
    if PROD:
        I("s_cmp_lt_u32 s3, 4")
        I("s_cbranch_scc1 G1_cons")
        DWP = 6
        I("s_lshl_b32 s27, s25, 1")
        for i in range(10):
            I(f"v_add_u32 v20, {64*i}, v1")
            I("v_mul_u32_u24 v21, 3277, v20")
            I("v_lshrrev_b32 v21, 16, v21")
            I("v_mul_u32_u24 v22, 20, v21")
            I("v_sub_u32 v22, v20, v22")
            I("v_bfe_u32 v23, v21, 3, 1")
            I("v_lshlrev_b32 v23, 1, v23")
            I("v_xor_b32 v22, v22, v23")
            I("v_mul_u32_u24 v21, 3456, v21")
            I("v_lshl_add_u32 v21, v22, 4, v21")
            I("v_add_u32 v21, s27, v21")
            I(f"v_subrev_u32 v{2+i}, {1024*(i%4)}, v21")
        I("s_sub_u32 s29, s3, 4")
        I(f"s_mul_i32 s29, s29, {MS}")
        I("s_waitcnt lgkmcnt(0)")
        I("s_cmp_ge_u32 s3, 5")
        I("s_cselect_b32 s4, s18, s16")
        I("s_cselect_b32 s5, s19, s17")
        srd(8, 4, SZ_W)
        pq = []
        def pdma(st):
            I(f"s_mov_b32 s28, {st*32*3456}")
            for i in range(10):
                if i % 4 == 0: I(f"s_add_u32 m0, s29, {(st % NS)*SL + (i//4)*4096}")
                I(f"buffer_load_dwordx4 v{2+i}, s[8:11], s28 offen offset:{1024*(i%4)} lds")
                pq.append(st)
        def pwait(st):
            idx = max(i for i, t in enumerate(pq) if t == st)
            I(f"s_waitcnt vmcnt({len(pq)-1-idx})")
            del pq[:idx+1]
        if "ramp" in FLAGS:
            for st in range(3): pdma(st)
            pwait(0)
            I("s_barrier")
            pdma(3); pdma(4)
            for st in range(NST-1):
                pwait(st+1)
                I("s_barrier")
                if st == 0: pdma(5)
                if st + DWP < NST: pdma(st + DWP)
        else:
            for st in range(DWP): pdma(st)
            pwait(0)
            I("s_barrier")
            for st in range(NST-1):
                pwait(st+1)
                I("s_barrier")
                if st + DWP < NST: pdma(st + DWP)
        I("s_endpgm")
        e("G1_cons:")
    I("s_and_b32 s26, s3, 1")
    I("s_lshl_b32 s26, s26, 4")
    I("s_lshl_b32 s27, s25, 1")
    for i in range(5 if not PROD else 0):
        I(f"v_add_u32 v10, {64*i}, v1")
        I("v_mul_u32_u24 v11, 3277, v10")
        I("v_lshrrev_b32 v11, 16, v11")
        I("v_mul_u32_u24 v12, 20, v11")
        I("v_sub_u32 v12, v10, v12")
        I("v_add_u32 v11, s26, v11")
        I("v_bfe_u32 v13, v11, 3, 1")
        I("v_lshlrev_b32 v13, 1, v13")
        I("v_xor_b32 v12, v12, v13")
        I("v_mul_u32_u24 v11, 3456, v11")
        I("v_lshl_add_u32 v11, v12, 4, v11")
        I("v_add_u32 v11, s27, v11")
        I(f"v_subrev_u32 v{2+i}, {1024*(i%4)}, v11")
    I("s_lshl_b32 s26, s24, 3")
    I("s_lshl_b32 s27, s3, 1")
    I("s_add_u32 s26, s26, s27")
    I("s_mul_i32 s27, s26, 20480")
    I("v_lshl_add_u32 v7, v1, 4, s27")
    I("v_add_u32 v8, 20480, v7")
    I("s_mul_i32 s27, s26, 55296")
    I("v_lshl_add_u32 v9, v1, 4, s27")
    I("v_add_u32 v10, 55296, v9")
    I("v_bfe_u32 v17, v0, 4, 2")
    I("v_bfe_u32 v18, v0, 2, 2")
    I("v_lshl_add_u32 v19, v17, 3, v18")
    I(f"v_mul_u32_u24 v19, {RS}, v19")
    I("v_and_b32 v18, 3, v0")
    I("v_lshl_add_u32 v19, v18, 3, v19")
    I("v_and_b32 v20, 1, v17")
    I("v_lshlrev_b32 v20, 5, v20")
    I("v_add_u32 v11, v19, v20")
    I("v_sub_u32 v12, v19, v20")
    ROLL = "roll" in FLAGS
    if ROLL:
        for k_, offs in ((1, 3*SL), (2, 4*SL), (3, 7*SL)):
            I(f"v_add_u32 v{11+2*k_}, {offs}, v11")
            I(f"v_add_u32 v{12+2*k_}, {offs}, v12")
    else:
        for rg in (1, 2):
            I(f"v_add_u32 v{11+2*rg}, {rg*3*SL}, v11")
            I(f"v_add_u32 v{12+2*rg}, {rg*3*SL}, v12")
    I("s_mul_i32 s29, s3, 5120")
    I("s_waitcnt lgkmcnt(0)")
    I("s_cmp_ge_u32 s3, 2")
    I("s_cselect_b32 s4, s18, s16")
    I("s_cselect_b32 s5, s19, s17")
    srd(8, 4, SZ_W)
    srd(12, 6, SZ_SD, WS_XN)
    srd(20, 6, SZ_H, WS_H)
    BB = 24; AF = 56; ACC = 80
    def acc(m, jf, js): return ACC + ((m*NF + jf)*2 + js)*4
    vq = []
    def vwait(tags):
        if not any(t in tags for t in vq): return
        idx = max(i for i, t in enumerate(vq) if t in tags)
        n = len(vq) - 1 - idx
        I(f"s_waitcnt vmcnt({n})")
        del vq[:idx+1]
    def dma(st):
        if PROD: return
        I(f"s_add_u32 m0, s29, {(st % NS)*SL}")
        I(f"s_mov_b32 s28, {st*32*3456}")
        for i in range(5):
            if i == 4: I(f"s_add_u32 m0, s29, {(st % NS)*SL + 4096}")
            I(f"buffer_load_dwordx4 v{2+i}, s[8:11], s28 offen offset:{1024*(i%4)} lds")
            vq.append(("D", st))
    def bld(st):
        I(f"s_mov_b32 s31, {st*1024}")
        for js in range(2):
            r = BB + (st % (DB+1))*8 + js*4
            I(f"buffer_load_dwordx4 v[{r}:{r+3}], v{7+js}, s[12:15], s31 offen")
            vq.append(("B", st))
    seq = [(m, jf) for m in range(2) for jf in range(NF)]
    NQ = len(seq)
    def rdx(gpos):
        st, idx = divmod(gpos, NQ)
        m, jf = seq[idx]
        slot = st % NS
        a = AF + (gpos % 4)*4
        va = 11 + 2*(slot // 3) + (jf & 1)
        off = (slot % 3)*SL + m*MS + jf*32
        return [f"ds_read_b64_tr_b16 v[{a}:{a+1}], v{va} offset:{off}",
                f"ds_read_b64_tr_b16 v[{a+2}:{a+3}], v{va} offset:{off+4*RS}"]
    for st in range(DW):
        dma(st)
        if ROLL:
            if st >= DW - DB: bld(st - (DW - DB))
        elif st < DB: bld(st)
    for j in range(4*2*2*NF):
        I(f"v_mov_b32 v{ACC+j}, 0")
    stamp()
    vwait([("D", 0)])
    I("s_barrier")
    for i in range(LA):
        for x in rdx(i): I(x)
    if ROLL:
        assert NS == 8
        I("s_mov_b32 s33, 0")
        I("s_mov_b32 s36, s29")
        I(f"s_add_u32 s37, s29, {4*SL}")
        I(f"s_mov_b32 s28, {DW*32*3456}")
        I(f"s_mov_b32 s31, {DB*1024}")
        def rdr(p, idx, ring):
            m, jf = seq[idx]
            a = AF + (ring % 4)*4
            if p < 3: va = 11 + (jf & 1); off = p*SL
            elif p == 3: va = 13 + (jf & 1); off = 0
            else: va = 15 + (jf & 1); off = 0
            off += m*MS + jf*32
            return [f"ds_read_b64_tr_b16 v[{a}:{a+1}], v{va} offset:{off}",
                    f"ds_read_b64_tr_b16 v[{a+2}:{a+3}], v{va} offset:{off+4*RS}"]
        e("G1_loop:")
        for p_ in range(4):
            I("s_waitcnt vmcnt(14)")
            I(f"s_cmp_lt_u32 s33, {4 if p_ < 2 else 3}")
            I(f"s_cbranch_scc1 G1_w{p_}")
            I("s_waitcnt vmcnt(2)")
            if p_ >= 2:
                I("s_cmp_lt_u32 s33, 4")
                I(f"s_cbranch_scc1 G1_w{p_}")
                I("s_waitcnt vmcnt(0)")
            e(f"G1_w{p_}:")
            I("s_barrier")
            I(f"s_cmp_ge_u32 s33, {4 if p_ == 0 else 3}")
            I(f"s_cbranch_scc1 G1_d{p_}")
            base, offs = ("s37", 3*SL) if p_ == 0 else ("s36", (p_-1)*SL)
            I(f"s_add_u32 m0, {base}, {offs}")
            for i in range(5):
                if i == 4: I(f"s_add_u32 m0, {base}, {offs + 4096}")
                I(f"buffer_load_dwordx4 v{2+i}, s[8:11], s28 offen offset:{1024*(i%4)} lds")
            I(f"s_add_u32 s28, s28, {32*3456}")
            e(f"G1_d{p_}:")
            if p_ > 0:
                I("s_cmp_ge_u32 s33, 4")
                I(f"s_cbranch_scc1 G1_b{p_}")
            for js in range(2):
                r = BB + ((p_ + DB) % 4)*8 + js*4
                I(f"buffer_load_dwordx4 v[{r}:{r+3}], v{7+js}, s[12:15], s31 offen")
            I("s_add_u32 s31, s31, 1024")
            if p_ > 0: e(f"G1_b{p_}:")
            for idx in range(NQ):
                if idx + LA < NQ: rr = rdr(p_, idx + LA, idx + LA)
                else: rr = rdr(p_ + 1, idx + LA - NQ, idx + LA)
                I(f"s_waitcnt lgkmcnt({2*LA-2})")
                m, jf = seq[idx]
                a = AF + (idx % 4)*4
                for js in range(2):
                    c = acc(m, jf, js); b = BB + p_*8 + js*4
                    I(f"v_mfma_f32_16x16x32_bf16 v[{c}:{c+3}], v[{a}:{a+3}], v[{b}:{b+3}], v[{c}:{c+3}]")
                    I(rr[js])
        for k_ in range(4):
            I(f"v_swap_b32 v{11+k_}, v{15+k_}")
        I("s_mov_b32 s38, s36")
        I("s_mov_b32 s36, s37")
        I("s_mov_b32 s37, s38")
        I("s_add_u32 s33, s33, 1")
        I("s_cmp_lt_u32 s33, 5")
        I("s_cbranch_scc1 G1_loop")
        I("s_waitcnt lgkmcnt(0)")
    for st in range(NST if not ROLL else 0):
        if st + 1 < NST:
            vwait([("D", st+1), ("B", st)])
            I("s_barrier")
        else:
            vwait([("B", st)])
        if "stamp3" in FLAGS and st in (0, 1, 5, 10, 15): stamp()
        if st + DW < NST and "g1nodma" not in FLAGS: dma(st + DW)
        if st + DB < NST and "g1nob" not in FLAGS: bld(st + DB)
        for idx in range(NQ if "g1nocomp" not in FLAGS else 0):
            gpos = st*NQ + idx
            rr = rdx(gpos + LA) if gpos + LA < NST*NQ else None
            I(f"s_waitcnt lgkmcnt({2*min(LA-1, NST*NQ-1-gpos)})")
            m, jf = seq[idx]
            a = AF + (gpos % 4)*4
            for js in range(2):
                c = acc(m, jf, js); b = BB + (st % (DB+1))*8 + js*4
                I(f"v_mfma_f32_16x16x32_bf16 v[{c}:{c+3}], v[{a}:{a+3}], v[{b}:{b+3}], v[{c}:{c+3}]")
                if rr: I(rr[js])
    stamp()
    I("s_lshr_b32 s34, s25, 5")
    I("s_lshl_b32 s34, s34, 10")
    I("s_add_u32 s35, s34, 4096")
    I("s_nop 7")
    I("s_nop 3")
    for js in range(2):
        for jp in range(NF//2):
            t = 24 + ((js*5 + jp) % 4) * 12
            for hh in range(2):
                jf = 2*jp + hh
                g = acc(0, jf, js); u = acc(1, jf, js)
                I(f"v_cvt_pk_bf16_f32 v{t}, v{g}, v{g+1}")
                I(f"v_cvt_pk_bf16_f32 v{t+1}, v{g+2}, v{g+3}")
                I(f"v_cvt_pk_bf16_f32 v{t+2}, v{u}, v{u+1}")
                I(f"v_cvt_pk_bf16_f32 v{t+3}, v{u+2}, v{u+3}")
                lo16(g, t); hi16(g+1, t); lo16(g+2, t+1); hi16(g+3, t+1)
                lo16(u, t+2); hi16(u+1, t+2); lo16(u+2, t+3); hi16(u+3, t+3)
                for r in range(4):
                    I(f"v_mul_f32 v{g+r}, v{g+r}, v{u+r}")
                I(f"v_cvt_pk_bf16_f32 v{t+4+2*hh}, v{g}, v{g+1}")
                I(f"v_cvt_pk_bf16_f32 v{t+5+2*hh}, v{g+2}, v{g+3}")
            if jp < 4:
                I(f"buffer_store_dwordx4 v[{t+4}:{t+7}], v{9+js}, s[20:23], s34 offen offset:{1024*jp}")
            else:
                I(f"buffer_store_dwordx4 v[{t+4}:{t+7}], v{9+js}, s[20:23], s35 offen")
    if STAMP: I("s_waitcnt vmcnt(0)")
    stamp()
    stamp_dump(5)
    wgt_end(1)
    I("s_endpgm")

def gen_k2():
    kernel_header("mid_kernel")
    if BIG:
        I("s_cmp_ge_u32 s2, 256")
        I("s_cbranch_scc1 M_exit")
        wgt_start()
        I("s_load_dwordx2 s[6:7], s[0:1], 96")
        I("v_lshrrev_b32 v1, 6, v0")
        I("s_nop 0")
        I("v_readfirstlane_b32 s3, v1")
        I("s_lshr_b32 s40, s2, 3")
        I("s_bfe_u32 s41, s2, 0x10002")
        I("s_and_b32 s42, s2, 3")
        I("s_lshl_b32 s43, s41, 2")
        I("s_sub_u32 s43, 24, s43")
        I("s_cmp_ge_u32 s40, s43")
        I("s_cbranch_scc1 M_conv")
        if "nog1" in FLAGS: I("s_endpgm")
        I("s_mul_i32 s24, s42, s43")
        I("s_add_u32 s24, s24, s40")
        I("s_mul_i32 s25, s41, 96")
        I("s_add_u32 s24, s24, s25")
        W0 = 6 if "prod" in FLAGS else 4
        I(f"s_sub_u32 s25, s3, {W0}")
        I("s_mul_i32 s25, s25, 176")
        I("s_add_u32 s24, s24, s25")
        I(f"s_cmp_ge_u32 s3, {W0}")
        I("s_cbranch_scc1 M_wdt")
        I("s_lshl_b32 s24, s42, 2")
        I("s_and_b32 s25, s40, 3")
        I("s_add_u32 s24, s24, s25")
        I("s_mul_i32 s25, s41, 6")
        I("s_lshr_b32 s26, s40, 2")
        I("s_add_u32 s25, s25, s26")
        gen_g1big()
    else:
        gen_g1old()
    gen_aux()

def gen_g1old():
    I(f"s_cmp_ge_u32 s2, {N_G1+N_CV}")
    I("s_cbranch_scc1 M_exit")
    I("s_load_dwordx2 s[6:7], s[0:1], 96")
    I(f"s_cmp_ge_u32 s2, {N_G1}")
    I("s_cbranch_scc1 M_conv")
    if "nog1" in FLAGS: I("s_endpgm")
    stamp()
    if "prio" in FLAGS: I("s_setprio 3")
    I("s_load_dwordx4 s[16:19], s[0:1], 56")
    I("v_lshrrev_b32 v1, 6, v0")
    I("s_nop 0")
    I("v_readfirstlane_b32 s3, v1")
    I("s_waitcnt lgkmcnt(0)")
    if "stamp2" in FLAGS: stamp()
    I("s_cmp_ge_u32 s3, 2")
    I("s_cselect_b32 s4, s18, s16")
    I("s_cselect_b32 s5, s19, s17")
    srd(8, 4, SZ_W)
    srd(12, 6, SZ_SD, WS_XN)
    srd(20, 6, SZ_H, WS_H)
    if "g12d" in FLAGS:
        I("s_and_b32 s24, s2, 3")
        I("s_lshl_b32 s24, s24, 2")
        I("s_bfe_u32 s25, s2, 0x20003")
        I("s_add_u32 s24, s24, s25")
        I("s_bfe_u32 s25, s2, 0x10002")
        I("s_lshl_b32 s25, s25, 3")
        I("s_lshr_b32 s26, s2, 5")
        I("s_add_u32 s25, s25, s26")
    else:
        I("s_and_b32 s24, s2, 15")
        I("s_lshr_b32 s25, s2, 4")
    I(f"s_mul_i32 s25, s25, {BF}")
    I(f"s_min_u32 s25, s25, {F-BF}")
    I("v_and_b32 v1, 63, v0")
    if "pf" in FLAGS:
        I("s_lshr_b32 s26, s2, 3")
        I("s_lshl_b32 s27, s26, 1")
        I("s_and_b32 s28, s3, 1")
        I("s_add_u32 s27, s27, s28")
        I("s_mul_i32 s27, s27, 34560")
        I("s_bfe_u32 s28, s2, 0x10002")
        I("s_mul_i32 s28, s28, 1792")
        I("s_add_u32 s27, s27, s28")
        I("v_lshrrev_b32 v192, 5, v1")
        I("v_mul_u32_u24 v192, 3456, v192")
        I("v_and_b32 v193, 31, v1")
        I("v_lshl_add_u32 v192, v193, 6, v192")
        I("v_add_u32 v192, s27, v192")
        for i in range(5):
            I(f"s_mov_b32 s27, {i*6912}")
            I(f"buffer_load_dword v{194+i}, v192, s[8:11], s27 offen")
        I("s_and_b32 s27, s2, 3")
        I("s_mul_i32 s27, s27, 655360")
        I("s_lshl_b32 s28, s26, 2")
        I("s_add_u32 s28, s28, s3")
        I("s_mul_i32 s28, s28, 5120")
        I("s_add_u32 s27, s27, s28")
        I("v_lshlrev_b32 v193, 6, v1")
        I("buffer_load_dword v199, v193, s[12:15], s27 offen")
        I("buffer_load_dword v200, v193, s[12:15], s27 offen offset:1024")
    I("v_lshrrev_b32 v10, 4, v1")
    I("v_bfe_u32 v11, v1, 1, 3")
    I("v_and_b32 v12, 1, v1")
    I("s_and_b32 s26, s3, 1")
    I("s_lshl_b32 s26, s26, 4")
    I("s_lshl_b32 s27, s25, 1")
    for i in range(4):
        bit = (i >> 1) & 1
        I(f"v_or_b32 v13, {bit<<2}, v10")
        I("v_xor_b32 v13, v13, v11")
        I(f"v_add_u32 v14, {4*i}, v10")
        I("v_add_u32 v14, s26, v14")
        I("v_mul_u32_u24 v14, 3456, v14")
        I("v_lshl_add_u32 v14, v13, 5, v14")
        I("v_lshl_add_u32 v14, v12, 4, v14")
        I("v_add_u32 v14, s27, v14")
        I(f"v_subrev_u32 v14, {1024*i}, v14")
        I("v_cmp_eq_u32 vcc, 7, v13")
        I("v_mov_b32 v15, 0x40000000")
        I("s_nop 0")
        I(f"v_cndmask_b32 v{2+i}, v14, v15, vcc")
    I("v_bfe_u32 v17, v0, 4, 2")
    I("s_lshl_b32 s26, s24, 3")
    I("s_lshl_b32 s27, s3, 1")
    I("s_add_u32 s26, s26, s27")
    I("s_mul_i32 s27, s26, 20480")
    I("v_lshl_add_u32 v6, v1, 4, s27")
    I("v_add_u32 v7, 20480, v6")
    I("s_mul_i32 s27, s26, 55296")
    I("v_lshl_add_u32 v8, v1, 4, s27")
    I("v_add_u32 v9, 55296, v8")
    I("v_bfe_u32 v18, v0, 2, 2")
    I("v_lshl_add_u32 v19, v17, 3, v18")
    I("v_lshlrev_b32 v19, 8, v19")
    I("v_and_b32 v20, 1, v17")
    I("v_lshl_or_b32 v20, v20, 2, v18")
    I("v_lshl_add_u32 v19, v20, 5, v19")
    I("v_and_b32 v18, 3, v0")
    I("v_lshl_add_u32 v19, v18, 3, v19")
    VA = 10
    I("v_mov_b32 v24, v19")
    for jf in range(7):
        I(f"v_xor_b32 v{VA+jf}, {jf<<5}, v24")
        I(f"v_add_u32 v{VA+7+jf}, 0x10000, v{VA+jf}")
    I("s_lshl_b32 s29, s3, 12")
    BB = 24
    AF = 64
    ACC = 80
    def acc(m, jf, js): return ACC + ((m*7 + jf)*2 + js)*4
    def bfr(st, js): return BB + (st % NSLOT)*8 + js*4
    NST = 20
    def issue(slot):
        I(f"s_add_u32 s30, s29, {slot*SLOT}")
        I("s_mov_b32 m0, s30")
        for i in range(4):
            I(f"buffer_load_dwordx4 v{2+i}, s[8:11], s28 offen offset:{1024*i} lds")
        for js in range(2):
            r = BB + slot*8 + js*4
            I(f"buffer_load_dwordx4 v[{r}:{r+3}], v{6+js}, s[12:15], s31 offen")
        I("s_add_u32 s36, s36, 1")
        I("s_cmp_ge_u32 s36, 20")
        I("s_cselect_b32 s36, 0, s36")
        I("s_add_u32 s37, s37, 1")
        I(f"s_mul_i32 s28, s36, {32*3456}")
        I("s_lshl_b32 s31, s36, 10")
        I("s_cmp_ge_u32 s37, 20")
        I("s_cselect_b32 s28, 0x40000000, s28")
        I("s_cselect_b32 s31, 0x40000000, s31")
    if "rot" in FLAGS:
        I("s_and_b32 s36, s24, 3")
        I("s_mul_i32 s36, s36, 5")
        I("s_lshr_b32 s37, s2, 5")
        I("s_mul_i32 s37, s37, 3")
        I("s_add_u32 s36, s36, s37")
        I("s_cmp_ge_u32 s36, 20")
        I("s_cselect_b32 s37, 20, 0")
        I("s_sub_u32 s36, s36, s37")
    else:
        I("s_mov_b32 s36, 0")
    I("s_mov_b32 s37, 0")
    I(f"s_mul_i32 s28, s36, {32*3456}")
    I("s_lshl_b32 s31, s36, 10")
    if "stamp2" in FLAGS: stamp()
    for st in range(NSLOT - 1):
        issue(st)
    if "stamp2" in FLAGS: stamp()
    for j in range(112):
        I(f"v_mov_b32 v{ACC+j}, 0")
    I("s_mov_b32 s33, 0")
    stamp()
    def body(last):
      for slot in range(NSLOT):
        if not last or slot <= 1:
            I(f"s_waitcnt vmcnt({6*(NSLOT-2)})")
        else:
            I(f"s_waitcnt vmcnt({6*(NSLOT-1-slot)})")
        I("s_barrier")
        if not last or slot == 0:
            issue((slot + NSLOT - 1) % NSLOT)
        seq = [(m, jf) for m in range(2) for jf in range(7)]
        def rd(idx):
            m, jf = seq[idx]
            a = AF + (idx % 4)*4
            if slot < 4:
                va = VA + jf; off = slot*SLOT + m*8192
            else:
                va = VA + 7 + jf; off = m*8192
            I(f"ds_read_b64_tr_b16 v[{a}:{a+1}], v{va} offset:{off}")
            I(f"ds_read_b64_tr_b16 v[{a+2}:{a+3}], v{va} offset:{off+1024}")
        for i in range(3):
            rd(i)
        for idx in range(14):
            if idx + 3 < 14:
                rd(idx + 3)
                I("s_waitcnt lgkmcnt(6)")
            else:
                I(f"s_waitcnt lgkmcnt({2*(13-idx)})")
            m, jf = seq[idx]
            a = AF + (idx % 4)*4
            for js in range(2):
                c = acc(m, jf, js); b = BB + slot*8 + js*4
                I(f"v_mfma_f32_16x16x32_bf16 v[{c}:{c+3}], v[{a}:{a+3}], v[{b}:{b+3}], v[{c}:{c+3}]")
    XS = "xs" in FLAGS
    LA = 3
    for f in FLAGS:
        if f.startswith("la"): LA = int(f[2:])
    RING = [64,68,72,76,192,196,200] if LA > 3 else [64,68,72,76,192]
    seq = [(m, jf) for m in range(2) for jf in range(7)]
    ring = [0]
    def rdx(slot, idx, pos):
        m, jf = seq[idx]
        a = RING[pos % len(RING)]
        if slot < 4:
            va = VA + jf; off = slot*SLOT + m*8192
        else:
            va = VA + 7 + jf; off = m*8192
        return [f"ds_read_b64_tr_b16 v[{a}:{a+1}], v{va} offset:{off}",
                f"ds_read_b64_tr_b16 v[{a+2}:{a+3}], v{va} offset:{off+1024}"]
    def body_xs(last):
      for slot in range(NSLOT):
        fin_stage = last and slot == NSLOT-1
        if not fin_stage:
            if not last or slot <= 1:
                I("s_waitcnt vmcnt(12)")
            else:
                I(f"s_waitcnt vmcnt({6*(NSLOT-2-slot)})")
            if "g1nobar" not in FLAGS: I("s_barrier")
        if (not last or slot == 0) and "g1noload" not in FLAGS:
            issue((slot + NSLOT - 1) % NSLOT)
        for idx in range(14 if "g1nocomp" not in FLAGS else 0):
            pos = idx + 14*slot
            if idx + LA < 14:
                rr = rdx(slot, idx + LA, pos + LA)
            elif not fin_stage:
                rr = rdx((slot + 1) % NSLOT, idx + LA - 14, pos + LA)
            else:
                rr = None
            I(f"s_waitcnt lgkmcnt({2*(LA-1) if not fin_stage else 2*min(LA-1, 13-idx)})")
            m, jf = seq[idx]
            a = RING[pos % len(RING)]
            for js in range(2):
                c = acc(m, jf, js); b = BB + slot*8 + js*4
                I(f"v_mfma_f32_16x16x32_bf16 v[{c}:{c+3}], v[{a}:{a+3}], v[{b}:{b+3}], v[{c}:{c+3}]")
                if rr: I(rr[js])
    if XS:
        I("s_waitcnt vmcnt(18)")
        I("s_barrier")
        for i in range(LA):
            for x in rdx(0, i, i): I(x)
    e("G1_loop:")
    (body_xs if XS else body)(False)
    I("s_add_u32 s33, s33, 1")
    I(f"s_cmp_lt_u32 s33, {NST//NSLOT - 1}")
    I("s_cbranch_scc1 G1_loop")
    (body_xs if XS else body)(True)
    stamp()
    I("s_waitcnt vmcnt(0)")
    I("s_nop 7")
    I("s_nop 3")
    T = 24
    for js in range(2):
        for jf in range(7):
            g = acc(0, jf, js); u = acc(1, jf, js)
            t = T + ((js*7 + jf) % 4) * 8
            I(f"v_cvt_pk_bf16_f32 v{t}, v{g}, v{g+1}")
            I(f"v_cvt_pk_bf16_f32 v{t+1}, v{g+2}, v{g+3}")
            I(f"v_cvt_pk_bf16_f32 v{t+2}, v{u}, v{u+1}")
            I(f"v_cvt_pk_bf16_f32 v{t+3}, v{u+2}, v{u+3}")
            lo16(g, t); hi16(g+1, t); lo16(g+2, t+1); hi16(g+3, t+1)
            lo16(u, t+2); hi16(u+1, t+2); lo16(u+2, t+3); hi16(u+3, t+3)
            for r in range(4):
                I(f"v_mul_f32 v{g+r}, v{g+r}, v{u+r}")
            I(f"v_cvt_pk_bf16_f32 v{t+4}, v{g}, v{g+1}")
            I(f"v_cvt_pk_bf16_f32 v{t+5}, v{g+2}, v{g+3}")
            I(f"s_add_u32 s34, s25, {16*jf}")
            I("s_lshr_b32 s35, s34, 5")
            I("s_lshl_b32 s35, s35, 10")
            I("s_and_b32 s34, s34, 16")
            I("s_lshr_b32 s34, s34, 1")
            I("s_add_u32 s35, s35, s34")
            I(f"buffer_store_dwordx2 v[{t+4}:{t+5}], v{8+js}, s[20:23], s35 offen")
    I("s_waitcnt vmcnt(0)")
    stamp()
    stamp_dump(5)
    I("s_endpgm")

def gen_aux():
    e("M_conv:")
    if "noconv" in FLAGS: I("s_endpgm")
    XREG = 7680; CST = 576 if "cst" in FLAGS else 800; HBUF = 8*CST; WREG = 20480
    stamp()
    I("s_load_dwordx4 s[16:19], s[0:1], 32")
    if BIG:
        I("s_sub_u32 s24, 32, s43")
        I("s_mul_i32 s24, s24, s42")
        I("s_add_u32 s24, s24, s40")
        I("s_sub_u32 s24, s24, s43")
        I("s_lshl_b32 s25, s41, 5")
        I("s_add_u32 s24, s24, s25")
        I("s_lshl_b32 s24, s24, 3")
        I("s_add_u32 s24, s24, s3")
    else:
        I("v_lshrrev_b32 v1, 6, v0")
        I("s_nop 0")
        I("v_readfirstlane_b32 s3, v1")
        I(f"s_sub_u32 s25, s2, {N_G1}")
        I("s_cmp_ge_u32 s25, 128")
        I("s_cbranch_scc1 M_aux_hi")
        I("s_mov_b32 s24, s25")
        I("s_cmp_eq_u32 s3, 3")
        I("s_cbranch_scc1 M_wdt")
        I("s_mul_i32 s24, s25, 3")
        I("s_add_u32 s24, s24, s3")
        I("s_branch M_conv2")
        e("M_aux_hi:")
        I("s_sub_u32 s25, s25, 128")
        I("s_lshl_b32 s25, s25, 1")
        I("s_add_u32 s24, s25, s3")
        I("s_add_u32 s24, s24, 126")
        I("s_cmp_ge_u32 s3, 2")
        I("s_cbranch_scc1 M_wdt")
        I("s_add_u32 s24, s25, s3")
        I("s_add_u32 s24, s24, 384")
    e("M_conv2:")
    I("s_waitcnt lgkmcnt(0)")
    srd(8, 16, SZ_SD)
    srd(12, 6, SZ_SD, WS_KVR)
    srd(20, 6, SZ_SD, WS_YT)
    I("s_lshr_b32 s25, s24, 1")
    I("s_lshl_b32 s25, s25, 2")
    I("s_load_dword s26, s[18:19], s25")
    I("v_and_b32 v1, 63, v0")
    I("s_lshl_b32 s27, s24, 12")
    I("v_lshl_add_u32 v2, v1, 4, s27")
    XL = 16
    for j in range(4):
        I(f"buffer_load_dwordx4 v[{XL+4*j}:{XL+4*j+3}], v2, s[12:15], 0 offen offset:{1024*j}")
    HW0, HW1 = 32, 40
    I("v_subrev_u32 v13, 64, v2")
    I("v_mov_b32 v5, 0x40000000")
    I("v_cmp_gt_u32 vcc, 4, v1")
    I("s_nop 1")
    I("v_cndmask_b32 v4, v13, v5, vcc")
    I("v_add_u32 v6, 16, v13")
    I("v_cmp_gt_u32 vcc, 3, v1")
    I("s_nop 1")
    I("v_cndmask_b32 v6, v6, v5, vcc")
    I(f"buffer_load_dwordx4 v[{HW0}:{HW0+3}], v4, s[8:11], 0 offen")
    I(f"buffer_load_dwordx4 v[{HW0+4}:{HW0+7}], v6, s[8:11], 0 offen")
    I(f"buffer_load_dwordx4 v[{HW1}:{HW1+3}], v2, s[8:11], 0 offen offset:448")
    I(f"buffer_load_dwordx4 v[{HW1+4}:{HW1+7}], v2, s[8:11], 0 offen offset:464")
    I("s_mov_b32 s29, 960")
    I(f"s_mul_i32 s28, s3, {WREG}")
    Z = 96
    for j in range(4):
        I(f"v_mov_b32 v{Z+j}, 0")
    I("v_lshl_add_u32 v3, v1, 4, s28")
    I(f"ds_write_b128 v3, v[{Z}:{Z+3}] offset:5120")
    I(f"ds_write_b128 v3, v[{Z}:{Z+3}] offset:6144")
    I(f"ds_write_b128 v3, v[{Z}:{Z+3}] offset:6656")
    I("v_lshrrev_b32 v4, 2, v1")
    I("v_mul_u32_u24 v4, 80, v4")
    I("v_and_b32 v5, 3, v1")
    I("v_lshl_add_u32 v4, v5, 4, v4")
    I("v_add_u32 v4, s28, v4")
    I("v_and_b32 v5, 31, v1")
    I("v_lshrrev_b32 v6, 5, v1")
    I("v_and_b32 v7, 7, v5")
    I(f"v_mul_u32_u24 v7, {CST}, v7")
    I("v_lshrrev_b32 v8, 3, v5")
    I("v_add_u32 v8, v8, v6")
    I("v_lshl_add_u32 v7, v8, 4, v7")
    I(f"v_add_u32 v7, {XREG}, v7")
    I("v_add_u32 v7, s28, v7")
    I(f"v_add_u32 v14, {HBUF}, v7")
    I("v_sub_u32 v8, 63, v5")
    I("v_mul_u32_u24 v8, 80, v8")
    I("v_lshl_add_u32 v8, v6, 4, v8")
    I("v_add_u32 v8, s28, v8")
    I("v_mov_b32 v15, v8")
    I("v_subrev_u32 v9, 2560, v8")
    I(f"v_add_u32 v10, {XREG}, v3")
    I(f"v_add_u32 v11, {HBUF}, v10")
    AC0, AC1 = 100, 116
    for j in range(32):
        I(f"v_mov_b32 v{AC0+j}, 0")
    FR = 132
    UE, UO, WO = 180, 189, 197
    CLA, CR = 3, 4
    for f_ in FLAGS:
        if f_.startswith("cla"): CLA = int(f_[3:]); CR = 8; UE, UO, WO = 228, 237, 245
    I("s_mov_b32 s30, -1")
    I("s_mov_b32 s31, 0xf")
    q = DSQ()
    def stage_seg(w, addr):
        for t in range(7):
            I(f"v_alignbit_b32 v{UE+t}, v{w+t+1}, v{w+t}, 16")
            I(f"v_alignbit_b32 v{UO+t}, v{w+t+1}, v{w+t}, 16")
        for t in range(1, 7):
            I(f"v_mov_b32 v{WO+t}, v{w+t}")
        I("s_mov_b64 exec, s[30:31]")
        for c in range(8):
            if c % 2 == 0:
                t0 = c // 2
                r = UE + t0 if t0 % 2 == 0 else UO + t0
            else:
                t0 = (1 + c)//2
                r = w + t0 if t0 % 2 == 0 else WO + t0
            assert r % 2 == 0, (c, r)
            I(f"ds_write_b128 v{addr}, v[{r}:{r+3}] offset:{c*CST}")
            q.push(("w", 0))
        I("s_mov_b64 exec, -1")
    I("s_waitcnt vmcnt(2)")
    stamp()
    for j in range(4):
        I(f"ds_write_b128 v4, v[{XL+4*j}:{XL+4*j+3}] offset:{16*80*j}")
    stage_seg(HW0, 10)
    q = DSQ()
    def crd(c, both, part=None):
        f = FR + (c % CR)*12
        boff = (c >> 1)*80 + (c & 1)*32
        if part in (None, 0):
            if c < 16:
                I(f"ds_read_b128 v[{f}:{f+3}], v7 offset:{32*c}")
            else:
                I(f"ds_read_b128 v[{f}:{f+3}], v14 offset:{32*(c-16)}")
            q.push(("r", c))
            I(f"ds_read_b128 v[{f+4}:{f+7}], v9 offset:{boff}")
            q.push(("r", c))
        if both and part in (None, 1):
            I(f"ds_read_b128 v[{f+8}:{f+11}], v8 offset:{boff}")
            q.push(("r", c))
    for c in range(CLA):
        crd(c, True)
    I("s_mov_b32 s33, 0")
    stamp()
    for phase in range(2):
        both = (phase == 0)
        e(f"CV_loop{phase}:")
        q.q = [("r", c) for c in range(CLA) for _ in range(3 if both else 2)]
        for c in range(16):
            if c == 1:
                I("s_waitcnt vmcnt(0)")
                stage_seg(HW1, 11)
                if "cvnoload" not in FLAGS:
                    I(f"buffer_load_dwordx4 v[{HW1}:{HW1+3}], v2, s[8:11], s29 offen")
                    I(f"buffer_load_dwordx4 v[{HW1+4}:{HW1+7}], v2, s[8:11], s29 offen offset:16")
                I("s_add_u32 s29, s29, 512")
            f = FR + (c % CR)*12
            if "cvi" in FLAGS:
                q.wait_for(("r", c))
                I(f"v_mfma_f32_32x32x16_bf16 v[{AC1}:{AC1+15}], v[{f}:{f+3}], v[{f+4}:{f+7}], v[{AC1}:{AC1+15}]")
                crd(c + CLA, both, 0)
                if both:
                    I(f"v_mfma_f32_32x32x16_bf16 v[{AC0}:{AC0+15}], v[{f}:{f+3}], v[{f+8}:{f+11}], v[{AC0}:{AC0+15}]")
                    crd(c + CLA, both, 1)
            else:
                crd(c + CLA, both)
                q.wait_for(("r", c))
                I(f"v_mfma_f32_32x32x16_bf16 v[{AC1}:{AC1+15}], v[{f}:{f+3}], v[{f+4}:{f+7}], v[{AC1}:{AC1+15}]")
                if both:
                    I(f"v_mfma_f32_32x32x16_bf16 v[{AC0}:{AC0+15}], v[{f}:{f+3}], v[{f+8}:{f+11}], v[{AC0}:{AC0+15}]")
        I("v_swap_b32 v7, v14")
        I("v_swap_b32 v10, v11")
        I("v_add_u32 v8, 640, v8")
        I("v_add_u32 v9, 640, v9")
        I("s_add_u32 s33, s33, 1")
        I(f"s_cmp_lt_u32 s33, {4*(phase+1)}")
        I(f"s_cbranch_scc1 CV_loop{phase}")
    I("v_mov_b32 v8, v15")
    I("s_waitcnt vmcnt(0) lgkmcnt(0)")
    stamp()
    I("v_mul_u32_u24 v10, 24, v6")
    I("v_sub_u32 v10, v8, v10")
    I("v_add_u32 v10, 8, v10")
    I("v_subrev_u32 v11, 2560, v10")
    KV = 16
    for cb in range(2):
        for qq in range(4):
            I(f"ds_read_b64 v[{KV+cb*8+2*qq}:{KV+cb*8+2*qq+1}], v{10+cb} offset:{48-16*qq}")
    I("s_and_b32 s25, s24, 1")
    I("s_lshl_b32 s25, s25, 4")
    I("s_lshr_b32 s26, s26, s25")
    I("s_lshl_b32 s26, s26, 16")
    I("v_lshlrev_b32 v12, 6, v5")
    I("v_lshl_add_u32 v12, v6, 3, v12")
    I("v_add_u32 v12, s27, v12")
    I("s_nop 7")
    I("s_waitcnt lgkmcnt(0)")
    for cb in range(2):
        ac = AC0 if cb == 0 else AC1
        for qq in range(4):
            k0 = KV + cb*8 + 2*qq
            t = 40 + (qq % 2)*12
            y = ac + 4*qq
            hi16(t+0, k0+1); lo16(t+1, k0+1); hi16(t+2, k0); lo16(t+3, k0)
            for r in range(4):
                I(f"v_mul_f32 v{t+r}, s26, v{t+r}")
            I(f"v_cvt_pk_bf16_f32 v{t+4}, v{t}, v{t+1}")
            I(f"v_cvt_pk_bf16_f32 v{t+5}, v{t+2}, v{t+3}")
            I(f"v_cvt_pk_bf16_f32 v{t+6}, v{y}, v{y+1}")
            I(f"v_cvt_pk_bf16_f32 v{t+7}, v{y+2}, v{y+3}")
            lo16(t, t+4); hi16(t+1, t+4); lo16(t+2, t+5); hi16(t+3, t+5)
            lo16(y, t+6); hi16(y+1, t+6); lo16(y+2, t+7); hi16(y+3, t+7)
            for r in range(4):
                I(f"v_add_f32 v{t+r}, v{t+r}, v{y+r}")
            I(f"v_cvt_pk_bf16_f32 v{t+8}, v{t}, v{t+1}")
            I(f"v_cvt_pk_bf16_f32 v{t+9}, v{t+2}, v{t+3}")
            I(f"buffer_store_dwordx2 v[{t+8}:{t+9}], v12, s[20:23], 0 offen offset:{cb*2048+16*qq}")
    I("s_waitcnt vmcnt(0)")
    stamp()
    stamp_dump(255 if BIG else N_G1 + 7)
    if BIG: wgt_end(1)
    I("s_endpgm")
    e("M_wdt:")
    I("s_waitcnt lgkmcnt(0)")
    if "wlate" in FLAGS: I("s_barrier")
    if BIG and "pfm" in FLAGS:
        I("s_sub_u32 s26, s3, 6")
        I("s_mul_i32 s27, s26, 176")
        I("s_sub_u32 s27, s24, s27")
        I("s_lshl_b32 s26, s26, 3")
        I("s_add_u32 s26, s26, 56")
        I("s_load_dwordx2 s[28:29], s[0:1], s26")
        I("s_mul_i32 s27, s27, 12800")
        I(f"s_mov_b32 s30, {SZ_W}")
        I("s_mov_b32 s31, 0x00020000")
        I("v_and_b32 v1, 63, v0")
        I("v_lshlrev_b32 v1, 4, v1")
        I("s_waitcnt lgkmcnt(0)")
        for i in range(13):
            I(f"buffer_load_dwordx4 v[{100+4*i}:{103+4*i}], v1, s[28:31], s27 offen")
            I("s_add_u32 s27, s27, 1024")
    if "pfa128" in FLAGS or "pfa64" in FLAGS:
        G = 128 if "pfa128" in FLAGS else 64
        NL = 1792 // G
        I("s_cmp_lg_u32 s3, 3")
        I("s_cbranch_scc1 M_nopf")
        I("s_bfe_u32 s26, s2, 0x50003")
        I("s_lshr_b32 s27, s26, 4")
        I("s_lshl_b32 s27, s27, 3")
        I("s_add_u32 s27, s27, 56")
        I("s_load_dwordx2 s[28:29], s[0:1], s27")
        I("s_and_b32 s26, s26, 15")
        I("s_mul_i32 s26, s26, 138240")
        I("s_bfe_u32 s27, s2, 0x10002")
        I("s_mul_i32 s27, s27, 1792")
        I("s_add_u32 s26, s26, s27")
        I(f"s_mov_b32 s30, {SZ_W}")
        I("s_mov_b32 s31, 0x00020000")
        I("v_and_b32 v1, 63, v0")
        I("s_waitcnt lgkmcnt(0)")
        n = (40*NL + 63)//64
        mul = (65536 + NL - 1)//NL
        for i in range(n):
            I(f"v_add_u32 v2, {64*i}, v1")
            I(f"v_mul_u32_u24 v3, {mul}, v2")
            I("v_lshrrev_b32 v3, 16, v3")
            I(f"v_mul_u32_u24 v4, {NL}, v3")
            I("v_sub_u32 v4, v2, v4")
            I("v_mul_u32_u24 v3, 3456, v3")
            I(f"v_lshl_add_u32 v{100+i}, v4, {7 if G==128 else 6}, v3")
            I(f"buffer_load_dword v{140+i}, v{100+i}, s[28:31], s26 offen")
        e("M_nopf:")
    WBAR = 0
    for f_ in FLAGS:
        if f_.startswith("wbar"): WBAR = int(f_[4:])
    I("s_cmp_ge_u32 s24, 270")
    I(f"s_cbranch_scc1 {'M_exitb' if WBAR else 'M_exitw'}")
    I("s_load_dwordx2 s[4:5], s[0:1], 72")
    I("s_mul_i32 s17, s24, 0xCCCD")
    I("s_lshr_b32 s17, s17, 19")
    I("s_mul_i32 s18, s17, 10")
    I("s_sub_u32 s18, s24, s18")
    I("v_and_b32 v1, 7, v0")
    I("v_bfe_u32 v2, v0, 3, 2")
    I("v_bfe_u32 v6, v0, 5, 1")
    I("s_lshl_b32 s18, s18, 6")
    I("v_lshl_add_u32 v1, v1, 3, s18")
    I("s_lshl_b32 s19, s17, 1")
    I("v_add_u32 v6, s19, v6")
    I("v_lshlrev_b32 v7, 5, v6")
    I("v_lshl_add_u32 v7, v2, 2, v7")
    I("v_mul_u32_u24 v3, 0x500, v7")
    I("v_lshl_add_u32 v3, v1, 1, v3")
    I("v_add_u32 v4, 0x5000, v3")
    I("s_waitcnt lgkmcnt(0)")
    srd(8, 4, SZ_W)
    srd(12, 6, SZ_W, WS_WDT)
    for i in range(8):
        b = 3 if i < 4 else 4
        I(f"buffer_load_dwordx4 v[{8+4*i}:{11+4*i}], v{b}, s[8:11], 0 offen offset:{(i%4)*1280}")
    I("s_mov_b32 s20, 0x05040100")
    I("s_mov_b32 s21, 0x07060302")
    I("v_lshrrev_b32 v5, 4, v1")
    I("v_mul_u32_u24 v5, 54, v5")
    I("v_add_u32 v5, v5, v6")
    I("v_lshlrev_b32 v5, 10, v5")
    I("v_lshl_add_u32 v5, v2, 8, v5")
    I("v_and_b32 v7, 15, v1")
    I("v_lshl_add_u32 v5, v7, 4, v5")
    for _ in range(WBAR): I("s_barrier")
    I("s_waitcnt vmcnt(0)")
    for dd in range(8):
        ob = 40 + 4*dd
        sel = 20 + (dd & 1)
        for q in range(4):
            I(f"v_perm_b32 v{ob+q}, v{8+4*(2*q+1)+dd//2}, v{8+4*(2*q)+dd//2}, s{sel}")
    for dd in range(8):
        ob = 40 + 4*dd
        I(f"buffer_store_dwordx4 v[{ob}:{ob+3}], v5, s[12:15], 0 offen offset:{16*dd}")
    if WBAR:
        I("s_endpgm")
        e("M_exitb:")
        for _ in range(WBAR): I("s_barrier")
    e("M_exitw:")
    I("s_waitcnt vmcnt(0)")
    e("M_exit:")
    I("s_endpgm")
    kernel_desc("mid_kernel", 256 if any(f.startswith("cla") for f in FLAGS) else (240 if BIG else 208), 80)

def gen_k3():
    kernel_header("fin_kernel")
    I(f"s_cmp_ge_u32 s2, {64 if 'fin64' in FLAGS else 256}")
    I("s_cbranch_scc1 F_exit")
    I("s_load_dwordx2 s[6:7], s[0:1], 96")
    I("s_load_dwordx2 s[4:5], s[0:1], 0")
    I("s_load_dwordx2 s[30:31], s[0:1], 80")
    stamp()
    I("v_lshrrev_b32 v1, 6, v0")
    I("s_nop 0")
    I("v_readfirstlane_b32 s3, v1")
    I("s_waitcnt lgkmcnt(0)")
    srd(8, 6, SZ_W, WS_WDT)
    srd(12, 6, SZ_H, WS_H)
    srd(16, 6, SZ_SD, WS_YT)
    srd(20, 6, SZ_SD, WS_XN)
    srd(24, 4, SZ_SD)
    srd(32, 30, SZ_SD)
    if "fin2d" in FLAGS:
        I("s_and_b32 s36, s2, 1")
        I("s_lshl_b32 s36, s36, 2")
        I("s_bfe_u32 s37, s2, 0x20003")
        I("s_add_u32 s36, s36, s37")
        I("s_mul_i32 s36, s36, 80")
        I("s_bfe_u32 s37, s2, 0x20001")
        I("s_lshl_b32 s37, s37, 3")
        I("s_lshr_b32 s38, s2, 5")
        I("s_add_u32 s37, s37, s38")
        I("s_lshl_b32 s37, s37, 6")
    elif "finswap" in FLAGS:
        I("s_lshr_b32 s36, s2, 5")
        I("s_mul_i32 s36, s36, 80")
        I("s_and_b32 s37, s2, 31")
        I("s_lshl_b32 s37, s37, 6")
    else:
        I("s_and_b32 s36, s2, 7")
        I("s_mul_i32 s36, s36, 80")
        I("s_lshr_b32 s37, s2, 3")
        I("s_lshl_b32 s37, s37, 6")
    I("s_mul_i32 s38, s3, 14")
    I("s_cmp_eq_u32 s3, 3")
    I("s_cselect_b32 s39, 1, 0")
    I("s_sub_u32 s38, s38, s39")
    I("s_cmp_ge_u32 s3, 2")
    I("s_cselect_b32 s39, 13, 14")
    I("s_add_u32 s47, s38, s39")
    I("s_lshl_b32 s45, s38, 10")
    I("s_lshl_b32 s47, s47, 10")
    if "rot" in FLAGS:
        I("s_bfe_u32 s46, s2, 0x20003")
        I("s_lshl_b32 s46, s46, 2")
        I("s_lshr_b32 s44, s2, 5")
        I("s_lshl_b32 s44, s44, 1")
        I("s_add_u32 s46, s46, s44")
        I("s_cmp_ge_u32 s46, 13")
        I("s_cselect_b32 s44, 13, 0")
        I("s_sub_u32 s46, s46, s44")
        I("s_cmp_ge_u32 s46, 13")
        I("s_cselect_b32 s44, 13, 0")
        I("s_sub_u32 s46, s46, s44")
        I("s_lshl_b32 s46, s46, 10")
        I("s_add_u32 s46, s46, s45")
    else:
        I("s_mov_b32 s46, s45")
    I("s_mov_b32 s44, 0")
    I("v_and_b32 v1, 15, v0")
    I("v_bfe_u32 v2, v0, 4, 2")
    I("v_and_b32 v12, 63, v0")
    if "pf" in FLAGS:
        I("s_lshr_b32 s52, s2, 3")
        I("s_lshl_b32 s52, s52, 2")
        I("s_add_u32 s52, s52, s3")
        I("s_and_b32 s53, s2, 1")
        I("s_mul_i32 s53, s53, 1105920")
        I("s_mul_i32 s54, s52, 8640")
        I("s_add_u32 s53, s53, s54")
        I("v_lshlrev_b32 v240, 6, v12")
        I("buffer_load_dword v241, v240, s[8:11], s53 offen")
        I("s_add_u32 s53, s53, 4096")
        I("buffer_load_dword v242, v240, s[8:11], s53 offen")
        I("s_add_u32 s53, s53, 544")
        I("buffer_load_dword v243, v240, s[8:11], s53 offen")
        I("s_bfe_u32 s53, s2, 0x20001")
        I("s_mul_i32 s53, s53, 1769472")
        I("s_mul_i32 s54, s52, 13824")
        I("s_add_u32 s53, s53, s54")
        for i, inc in enumerate((4096, 4096, 1536, 0)):
            I(f"buffer_load_dword v{244+i}, v240, s[12:15], s53 offen")
            if inc: I(f"s_add_u32 s53, s53, {inc}")
    I("s_lshr_b32 s52, s36, 4")
    I("s_mul_i32 s52, s52, 55296")
    I("v_lshl_add_u32 v3, v12, 4, s52")
    for jd in range(1, 5):
        I(f"v_add_u32 v{3+jd}, {jd*55296}, v3")
    I("s_lshr_b32 s52, s37, 4")
    I("s_mul_i32 s52, s52, 55296")
    I("v_lshl_add_u32 v8, v12, 4, s52")
    for js in range(1, 4):
        I(f"v_add_u32 v{8+js}, {js*55296}, v8")
    def acc(jd, js): return (js*5 + jd)*4
    FRB = 16
    NB = 5
    def ld(buf):
        f = FRB + buf*36
        I("s_cmp_lt_u32 s44, s39")
        I("s_cselect_b32 s48, s46, 0x40000000")
        for jd in range(5):
            r = f + 4*jd
            I(f"buffer_load_dwordx4 v[{r}:{r+3}], v{3+jd}, s[8:11], s48 offen{CP}")
        for js in range(4):
            r = f + 20 + 4*js
            I(f"buffer_load_dwordx4 v[{r}:{r+3}], v{8+js}, s[12:15], s48 offen{CP}")
        I("s_add_u32 s46, s46, 1024")
        I("s_cmp_ge_u32 s46, s47")
        I("s_cselect_b32 s46, s45, s46")
        I("s_add_u32 s44, s44, 1")
    def mm(buf):
        f = FRB + buf*36
        for js in range(4):
            for jd in range(5):
                c = acc(jd, js)
                a = f + 4*jd; b = f + 20 + 4*js
                I(f"v_mfma_f32_16x16x32_bf16 a[{c}:{c+3}], v[{a}:{a+3}], v[{b}:{b+3}], a[{c}:{c+3}]")
    I("s_lshr_b32 s41, s3, 1")
    I("s_lshl_b32 s41, s41, 5")
    I("s_add_u32 s41, s41, s37")
    I("s_lshl_b32 s41, s41, 1")
    I("v_add_u32 v14, s36, v1")
    I("v_lshlrev_b32 v14, 12, v14")
    I("v_lshl_add_u32 v14, v2, 4, v14")
    I("v_add_u32 v14, s41, v14")
    YF = 196
    for jd in range(5):
        I(f"v_add_u32 v15, {jd*16*4096}, v14")
        I(f"buffer_load_dwordx4 v[{YF+4*jd}:{YF+4*jd+3}], v15, s[16:19], 0 offen")
    I("s_lshl_b32 s42, s3, 4")
    I("s_add_u32 s42, s42, s37")
    I("v_add_u32 v15, s42, v1")
    I("v_mul_u32_u24 v15, 0x500, v15")
    I("v_lshl_add_u32 v15, v2, 3, v15")
    I("s_lshl_b32 s43, s36, 1")
    I("v_add_u32 v15, s43, v15")
    XX = 216
    I("s_lshr_b32 s50, s42, 4")
    I("s_mul_i32 s50, s50, 20480")
    I("v_lshrrev_b32 v14, 1, v2")
    I("v_lshlrev_b32 v14, 8, v14")
    I("v_lshl_add_u32 v14, v1, 4, v14")
    I("v_and_b32 v13, 1, v2")
    I("v_lshl_add_u32 v14, v13, 3, v14")
    I("v_add_u32 v14, s50, v14")
    for jd in range(5):
        I(f"buffer_load_dwordx2 v[{XX+2*jd}:{XX+2*jd+1}], v15, s[24:27], 0 offen offset:{32*jd}")
        I(f"s_add_u32 s50, s36, {16*jd}")
        I("s_lshr_b32 s51, s50, 5")
        I("s_lshl_b32 s51, s51, 10")
        I("s_and_b32 s50, s50, 16")
        I("s_lshl_b32 s50, s50, 5")
        I("s_add_u32 s51, s51, s50")
        I(f"buffer_load_dwordx2 v[{XX+10+2*jd}:{XX+11+2*jd}], v14, s[20:23], s51 offen")
    NB2 = NB
    for f_ in FLAGS:
        if f_.startswith("nb"): NB2 = int(f_[2:])
    def breg(buf, i):
        if buf < 5: return "v", FRB + buf*36 + 4*i
        return "a", 80 + (buf-5)*36 + 4*i
    def ld2(buf):
        for jd in range(5):
            t, r = breg(buf, jd)
            I(f"buffer_load_dwordx4 {t}[{r}:{r+3}], v{3+jd}, s[8:11], s46 offen{CP}")
        for js in range(4):
            t, r = breg(buf, 5+js)
            I(f"buffer_load_dwordx4 {t}[{r}:{r+3}], v{8+js}, s[12:15], s46 offen{CP}")
        I("s_add_u32 s46, s46, 1024")
    def mm2(buf):
        for js in range(4):
            for jd in range(5):
                c = acc(jd, js)
                t, a = breg(buf, jd); t, b = breg(buf, 5+js)
                I(f"v_mfma_f32_16x16x32_bf16 a[{c}:{c+3}], {t}[{a}:{a+3}], {t}[{b}:{b+3}], a[{c}:{c+3}]")
    for b in range(NB2-1):
        ld2(b)
    for j in range(80):
        I(f"v_accvgpr_write_b32 a{j}, 0")
    HOIST = "hoist" in FLAGS
    if HOIST:
        IDB2, TQ, TYQ = 244, 248, 236
        I("s_and_b32 s44, s3, 1")
        I("s_lshl_b32 s44, s44, 4")
        I(f"v_add_u32 v{TQ}, s44, v1")
        I(f"v_lshrrev_b32 v{TQ+1}, 3, v{TQ}")
        I(f"v_cmp_eq_u32 vcc, v{TQ+1}, v2")
        I(f"v_and_b32 v{TQ+1}, 7, v{TQ}")
        I(f"v_and_b32 v{TQ+2}, 1, v{TQ+1}")
        I(f"v_lshlrev_b32 v{TQ+2}, 4, v{TQ+2}")
        I(f"v_mov_b32 v{TQ+3}, 0x3f80")
        I(f"v_lshlrev_b32 v{TQ+3}, v{TQ+2}, v{TQ+3}")
        I(f"v_lshrrev_b32 v{TQ+1}, 1, v{TQ+1}")
        I(f"v_cndmask_b32 v{TQ+3}, 0, v{TQ+3}, vcc")
        for j in range(4):
            I(f"v_cmp_eq_u32 vcc, {j}, v{TQ+1}")
            I("s_nop 1")
            I(f"v_cndmask_b32 v{IDB2+j}, 0, v{TQ+3}, vcc")
        I(f"s_waitcnt vmcnt({9*(NB2-1)})")
        I("s_nop 1")
        for jd in range(5):
            ty = TYQ + (jd % 2)*4; t = TQ + (jd % 2)*4
            x0 = XX + 2*jd; n0 = XX + 10 + 2*jd
            I(f"v_mfma_f32_16x16x32_bf16 v[{ty}:{ty+3}], v[{YF+4*jd}:{YF+4*jd+3}], v[{IDB2}:{IDB2+3}], 0")
            lo16(t, n0); hi16(t+1, n0); lo16(t+2, n0+1); hi16(t+3, n0+1)
            I("s_nop 7")
            I("s_nop 3")
            for r in range(4):
                I(f"v_mul_f32 v{t+r}, v{t+r}, v{ty+r}")
            I(f"v_cvt_pk_bf16_f32 v{ty}, v{t}, v{t+1}")
            I(f"v_cvt_pk_bf16_f32 v{ty+1}, v{t+2}, v{t+3}")
            lo16(t, ty); hi16(t+1, ty); lo16(t+2, ty+1); hi16(t+3, ty+1)
            lo16(ty, x0); hi16(ty+1, x0); lo16(ty+2, x0+1); hi16(ty+3, x0+1)
            for r in range(4):
                I(f"v_add_f32 v{t+r}, v{t+r}, v{ty+r}")
            I(f"v_cvt_pk_bf16_f32 v{x0}, v{t}, v{t+1}")
            I(f"v_cvt_pk_bf16_f32 v{x0+1}, v{t+2}, v{t+3}")
    stamp()
    for k in range(14):
        nb = k + NB2 - 1
        if nb <= 12:
            ld2(nb % NB2)
        elif nb == 13:
            I("s_cmp_ge_u32 s3, 2")
            I("s_cbranch_scc1 F_skip13")
            ld2(nb % NB2)
            e("F_skip13:")
        if k == 13:
            I("s_cmp_ge_u32 s3, 2")
            I("s_cbranch_scc1 F_done")
        rem = max(0, min(12, nb) - k)
        if k < 13: I(f"s_waitcnt vmcnt({9*rem})")
        mm2(k % NB2)
    e("F_done:")
    stamp()
    I("s_mul_i32 s40, s3, 20480")
    I("v_lshlrev_b32 v13, 4, v12")
    I("v_add_u32 v13, s40, v13")
    I("s_nop 7")
    for js in range(4):
        for jd in range(5):
            c = acc(jd, js)
            I(f"ds_write_b128 v13, a[{c}:{c+3}] offset:{(js*5+jd)*1024}")
    I("s_waitcnt lgkmcnt(0)")
    I("s_barrier")
    I("s_mul_i32 s40, s3, 5120")
    I("v_lshlrev_b32 v12, 4, v12")
    I("v_add_u32 v13, s40, v12")
    I("v_add_u32 v12, 40960, v13")
    R = 96
    for src in range(4):
        for jd in range(5):
            r = R + (src*5 + jd)*4
            I(f"ds_read_b128 v[{r}:{r+3}], v{13 if src < 2 else 12} offset:{(src%2)*20480 + jd*1024}")
    if HOIST:
        I("s_waitcnt lgkmcnt(0)")
        for jd in range(5):
            r0 = R + jd*4
            I(f"v_add_f32 v{r0}, v{r0}, v{R+(5+jd)*4}")
            I(f"v_add_f32 v{r0+1}, v{r0+1}, v{R+(5+jd)*4+1}")
            I(f"v_add_f32 v{r0+2}, v{r0+2}, v{R+(5+jd)*4+2}")
            I(f"v_add_f32 v{r0+3}, v{r0+3}, v{R+(5+jd)*4+3}")
            for src in range(2, 4):
                r = R + (src*5 + jd)*4
                for j in range(4):
                    I(f"v_add_f32 v{r0+j}, v{r0+j}, v{r+j}")
            b = r0; t = 16 + (jd % 2)*16; x0 = XX + 2*jd
            I(f"v_cvt_pk_bf16_f32 v{t+4}, v{b}, v{b+1}")
            I(f"v_cvt_pk_bf16_f32 v{t+5}, v{b+2}, v{b+3}")
            lo16(t, x0); hi16(t+1, x0); lo16(t+2, x0+1); hi16(t+3, x0+1)
            lo16(t+6, t+4); hi16(t+7, t+4); lo16(t+8, t+5); hi16(t+9, t+5)
            for r in range(4):
                I(f"v_add_f32 v{t+r}, v{t+r}, v{t+6+r}")
            I(f"v_cvt_pk_bf16_f32 v{t+10}, v{t}, v{t+1}")
            I(f"v_cvt_pk_bf16_f32 v{t+11}, v{t+2}, v{t+3}")
            I(f"buffer_store_dwordx2 v[{t+10}:{t+11}], v15, s[32:35], 0 offen offset:{32*jd}")
    else:
        IDB = 60
        I("s_and_b32 s44, s3, 1")
        I("s_lshl_b32 s44, s44, 4")
        I("v_add_u32 v64, s44, v1")
        I("v_lshrrev_b32 v65, 3, v64")
        I("v_cmp_eq_u32 vcc, v65, v2")
        I("v_and_b32 v65, 7, v64")
        I("v_and_b32 v66, 1, v65")
        I("v_lshlrev_b32 v66, 4, v66")
        I("v_mov_b32 v67, 0x3f80")
        I("v_lshlrev_b32 v67, v66, v67")
        I("v_lshrrev_b32 v65, 1, v65")
        I("v_cndmask_b32 v67, 0, v67, vcc")
        for j in range(4):
            I(f"v_cmp_eq_u32 vcc, {j}, v65")
            I("s_nop 1")
            I(f"v_cndmask_b32 v{IDB+j}, 0, v67, vcc")
        TY = 64
        I("s_nop 1")
        for jd in range(5):
            I(f"v_mfma_f32_16x16x32_bf16 v[{TY+4*jd}:{TY+4*jd+3}], v[{YF+4*jd}:{YF+4*jd+3}], v[{IDB}:{IDB+3}], 0")
        I("s_waitcnt lgkmcnt(0)")
        for jd in range(5):
            r0 = R + jd*4
            for src in range(1, 4):
                r = R + (src*5 + jd)*4
                for j in range(4):
                    I(f"v_add_f32 v{r0+j}, v{r0+j}, v{r+j}")
        I("s_waitcnt vmcnt(0)")
        for jd in range(5):
            b = R + jd*4
            ty = TY + 4*jd
            t = 180 + (jd % 2)*16
            x0 = XX + 2*jd; n0 = XX + 10 + 2*jd
            lo16(t, n0); hi16(t+1, n0); lo16(t+2, n0+1); hi16(t+3, n0+1)
            for r in range(4):
                I(f"v_mul_f32 v{t+r}, v{t+r}, v{ty+r}")
            I(f"v_cvt_pk_bf16_f32 v{t+4}, v{t}, v{t+1}")
            I(f"v_cvt_pk_bf16_f32 v{t+5}, v{t+2}, v{t+3}")
            lo16(t, t+4); hi16(t+1, t+4); lo16(t+2, t+5); hi16(t+3, t+5)
            lo16(t+6, x0); hi16(t+7, x0); lo16(t+8, x0+1); hi16(t+9, x0+1)
            for r in range(4):
                I(f"v_add_f32 v{t+r}, v{t+r}, v{t+6+r}")
            I(f"v_cvt_pk_bf16_f32 v{t+4}, v{t}, v{t+1}")
            I(f"v_cvt_pk_bf16_f32 v{t+5}, v{t+2}, v{t+3}")
            lo16(t, t+4); hi16(t+1, t+4); lo16(t+2, t+5); hi16(t+3, t+5)
            I(f"v_cvt_pk_bf16_f32 v{t+4}, v{b}, v{b+1}")
            I(f"v_cvt_pk_bf16_f32 v{t+5}, v{b+2}, v{b+3}")
            lo16(t+6, t+4); hi16(t+7, t+4); lo16(t+8, t+5); hi16(t+9, t+5)
            for r in range(4):
                I(f"v_add_f32 v{t+r}, v{t+r}, v{t+6+r}")
            I(f"v_cvt_pk_bf16_f32 v{t+10}, v{t}, v{t+1}")
            I(f"v_cvt_pk_bf16_f32 v{t+11}, v{t+2}, v{t+3}")
            I(f"buffer_store_dwordx2 v[{t+10}:{t+11}], v15, s[32:35], 0 offen offset:{32*jd}")
    I("s_waitcnt vmcnt(0)")
    stamp()
    stamp_dump(9)
    e("F_exit:")
    I("s_endpgm")
    kernel_desc("fin_kernel", 256+80+36*max(0, NB2-5), 80, accum=256)

def main():
    hdr = open("parallel_sum__ssm_conv_h3__glu_gated_bilinear__prompt.s.ref").read().splitlines()
    for line in hdr:
        if line.startswith("; @launch"):
            break
        if line.startswith(";"):
            e(line)
    e(f"; @launch kernel=prep_kernel grid=({N_LN+N_KV+N_PF},1,1) block=(256,1,1) lds=0")
    if BIG:
        e("; @launch kernel=mid_kernel grid=(256,1,1) block=(512,1,1) lds=163840")
    else:
        e(f"; @launch kernel=mid_kernel grid=({N_G1+N_CV},1,1) block=(256,1,1) lds={LDS2}")
    e(f"; @launch kernel=fin_kernel grid=(256,1,1) block=(256,1,1) lds=81920")
    e('.amdgcn_target "amdgcn-amd-amdhsa--gfx950"')
    gen_prep()
    gen_k2()
    gen_k3()
    dst = sys.argv[1] if len(sys.argv) > 1 else "parallel_sum__ssm_conv_h3__glu_gated_bilinear__prompt.s"
    open(dst, "w").write("\n".join(out) + "\n")

main()
```

```python
import sys

import os
FLAGS = os.environ.get("GENFLAGS", "").split(",")
CP = " nt" if "cpnt" in FLAGS else (" sc1" if "cpsc1" in FLAGS else (" sc0 sc1" if "cpsc01" in FLAGS else ""))
S, D, F = 2048, 640, 1728
WS_XN  = 0x0
WS_KVR = 0x280000
WS_WDT = 0x500000
WS_H   = 0x800000
WS_YT  = 0x1000000
WS_ST  = 0x1400000
FUSE = "fuse" in FLAGS
SZ_SD = S * D * 2
SZ_W  = D * F * 2
SZ_H  = S * F * 2

out = []
def e(s=""):
    out.append(s)
SP = " nt" if "stnt" in FLAGS else (" sc0 sc1" if "stsc" in FLAGS else (" sc1" if "stsc1" in FLAGS else (" sc0 sc1 nt" if "stall" in FLAGS else "")))
def I(s):
    if s.startswith("buffer_store") and "s[56:59]" not in s: s += SP
    out.append("    " + s)

def srd(base, ptr, size, off=0):
    if off:
        I(f"s_add_u32 s{base}, s{ptr}, {off:#x}")
        I(f"s_addc_u32 s{base+1}, s{ptr+1}, 0")
    else:
        I(f"s_mov_b32 s{base}, s{ptr}")
        I(f"s_mov_b32 s{base+1}, s{ptr+1}")
    I(f"s_mov_b32 s{base+2}, {size:#x}")
    I(f"s_mov_b32 s{base+3}, 0x00020000")

def lo16(dst, src): I(f"v_lshlrev_b32 v{dst}, 16, v{src}")
def hi16(dst, src): I(f"v_and_b32 v{dst}, 0xffff0000, v{src}")

STAMP = "stamp" in FLAGS
nst = [0]
def stamp():
    if STAMP:
        i = nst[0]; nst[0] += 1
        I(f"s_memtime s[{60+2*i}:{61+2*i}]")
def stamp_dump(wg):
    if not STAMP: return
    n = nst[0]; nst[0] = 0
    I("s_waitcnt lgkmcnt(0) vmcnt(0)")
    I(f"s_cmp_lg_u32 s2, {wg}")
    I(f"s_cbranch_scc1 SD_skip{wg}")
    I("s_cmp_lg_u32 s3, 0")
    I(f"s_cbranch_scc1 SD_skip{wg}")
    I("s_load_dwordx2 s[56:57], s[0:1], 88")
    I("s_waitcnt lgkmcnt(0)")
    I("s_mov_b32 s58, 256")
    I("s_mov_b32 s59, 0x00020000")
    I("v_mov_b32 v1, 0")
    for i in range(n):
        I(f"s_sub_u32 s{61+2*i}, s{60+2*i}, s60")
        I(f"v_mov_b32 v2, s{61+2*i}")
        I(f"buffer_store_dword v2, v1, s[56:59], 0 offen offset:{4*i + (64 if wg == 255 else 0)}")
    I("s_waitcnt vmcnt(0)")
    e(f"SD_skip{wg}:")

WGT = "wgt" in FLAGS
def wgt_start():
    if WGT: I("s_memrealtime s[76:77]")
wgtn = [0]
def wgt_end(kidx):
    if not WGT: return
    n = wgtn[0]; wgtn[0] += 1
    I("s_waitcnt vmcnt(0) lgkmcnt(0)")
    I("s_memrealtime s[78:79]")
    I("s_load_dwordx2 s[72:73], s[0:1], 96")
    I("v_lshrrev_b32 v1, 6, v0")
    I("s_nop 0")
    I("v_readfirstlane_b32 s70, v1")
    I("s_lshl_b32 s71, s2, 3")
    I("s_add_u32 s70, s70, s71")
    I("s_lshl_b32 s70, s70, 3")
    I("s_waitcnt lgkmcnt(0)")
    I(f"s_add_u32 s72, s72, {0x1800000 + kidx*0x10000}")
    I("s_addc_u32 s73, s73, 0")
    I("s_mov_b32 s74, 0x10000")
    I("s_mov_b32 s75, 0x00020000")
    I("v_mov_b32 v2, s76")
    I("v_mov_b32 v3, s78")
    I("v_mov_b32 v1, s70")
    I("buffer_store_dwordx2 v[2:3], v1, s[72:75], 0 offen")
    I("s_waitcnt vmcnt(0)")

def kernel_header(name):
    e(".text")
    e(f".globl {name}")
    e(".p2align 8")
    e(f".type {name},@function")
    e(f"{name}:")

def kernel_desc(name, vgpr, sgpr, accum=None):
    if accum is None:
        accum = (vgpr + 3) // 4 * 4
    e('.section .rodata,"a"')
    e(".p2align 6")
    e(f".amdhsa_kernel {name}")
    e(f"  .amdhsa_next_free_vgpr {vgpr}")
    e(f"  .amdhsa_next_free_sgpr {sgpr}")
    e(f"  .amdhsa_accum_offset {accum}")
    e("  .amdhsa_group_segment_fixed_size 0")
    e("  .amdhsa_kernarg_size 104")
    e("  .amdhsa_user_sgpr_count 2")
    e("  .amdhsa_user_sgpr_kernarg_segment_ptr 1")
    e("  .amdhsa_system_sgpr_workgroup_id_x 1")
    e(".end_amdhsa_kernel")

N_LN, N_KV = 128, 160
N_PF = 0
if "pfw" in FLAGS: N_PF = 4*36
if "pfw2" in FLAGS: N_PF = 2*36
def gen_prep():
    kernel_header("prep_kernel")
    I(f"s_cmp_ge_u32 s2, {N_LN+N_KV+N_PF}")
    I("s_cbranch_scc1 P_exit")
    if N_PF:
        I(f"s_cmp_ge_u32 s2, {N_LN+N_KV}")
        I("s_cbranch_scc1 P_pf")
    I("s_load_dwordx2 s[6:7], s[0:1], 96")
    I(f"s_cmp_lt_u32 s2, {N_KV}")
    I("s_cbranch_scc1 P_kv")
    if "noln" in FLAGS: I("s_endpgm")
    I("s_load_dwordx2 s[4:5], s[0:1], 0")
    I("v_lshrrev_b32 v1, 4, v0")
    I(f"s_sub_u32 s3, s2, {N_KV}")
    I("s_lshl_b32 s3, s3, 4")
    I("v_add_u32 v1, s3, v1")
    I("v_mul_u32_u24 v2, 0x500, v1")
    I("v_and_b32 v3, 15, v0")
    I("v_lshl_add_u32 v2, v3, 4, v2")
    I("s_waitcnt lgkmcnt(0)")
    srd(8, 4, SZ_SD)
    srd(12, 6, SZ_SD, WS_XN)
    for j in range(5):
        I(f"buffer_load_dwordx4 v[{4+4*j}:{7+4*j}], v2, s[8:11], 0 offen offset:{256*j}")
    I("v_lshrrev_b32 v2, 4, v1")
    I("v_mul_u32_u24 v2, 20480, v2")
    I("v_lshrrev_b32 v64, 2, v3")
    I("v_lshl_add_u32 v2, v64, 10, v2")
    I("v_and_b32 v64, 3, v3")
    I("v_lshl_add_u32 v2, v64, 8, v2")
    I("v_and_b32 v64, 15, v1")
    I("v_lshl_add_u32 v2, v64, 4, v2")
    I("s_waitcnt vmcnt(0)")
    X = 24
    for j in range(20):
        lo16(X + 2*j, 4 + j)
        hi16(X + 2*j + 1, 4 + j)
    T = 64
    for j in range(20):
        I(f"v_add_f32 v{T+j}, v{X+2*j}, v{X+2*j+1}")
    def tree(base, n):
        while n > 1:
            h = n // 2
            for j in range(h):
                I(f"v_add_f32 v{base+j}, v{base+j}, v{base+n-1-j}")
            n = n - h
    tree(T, 20)
    def dpp_reduce(r, tmp):
        for sh in (8, 4, 2, 1):
            I("s_nop 1")
            I(f"v_add_f32_dpp v{tmp}, v{r}, v{r} row_ror:{sh} row_mask:0xf bank_mask:0xf")
            I(f"v_mov_b32 v{r}, v{tmp}")
    dpp_reduce(T, T+1)
    I(f"v_mul_f32 v{T}, {1.0/640.0!r}, v{T}")
    for j in range(40):
        I(f"v_sub_f32 v{T+2+j}, v{X+j}, v{T}")
    for j in range(40):
        I(f"v_mul_f32 v{T+2+j}, v{T+2+j}, v{T+2+j}")
    tree(T+2, 40)
    dpp_reduce(T+2, T+1)
    I(f"v_mul_f32 v{T+2}, {1.0/640.0!r}, v{T+2}")
    I(f"v_cvt_pk_bf16_f32 v{T}, v{T}, v{T+2}")
    hi16(T+2, T)
    lo16(T, T)
    I(f"v_add_f32 v{T+2}, {1e-5!r}, v{T+2}")
    I(f"v_cvt_pk_bf16_f32 v{T+2}, v{T+2}, v{T+2}")
    lo16(T+2, T+2)
    I(f"v_sqrt_f32 v{T+2}, v{T+2}")
    I("s_nop 0")
    I(f"v_cvt_pk_bf16_f32 v{T+2}, v{T+2}, v{T+2}")
    lo16(T+2, T+2)
    I(f"v_rcp_f32 v{T+3}, v{T+2}")
    I("s_nop 0")
    for j in range(20):
        a, b = X + 2*j, X + 2*j + 1
        I(f"v_sub_f32 v{a}, v{a}, v{T}")
        I(f"v_sub_f32 v{b}, v{b}, v{T}")
        I(f"v_cvt_pk_bf16_f32 v{T+4}, v{a}, v{b}")
        lo16(a, T+4)
        hi16(b, T+4)
        for r in (a, b):
            I(f"v_mul_f32 v{T+5}, v{r}, v{T+3}")
            I(f"v_fma_f32 v{T+6}, -v{T+5}, v{T+2}, v{r}")
            I(f"v_fma_f32 v{r}, v{T+6}, v{T+3}, v{T+5}")
        I(f"v_cvt_pk_bf16_f32 v{4+j}, v{a}, v{b}")
        if j % 4 == 3:
            jj = j // 4
            I(f"s_mov_b32 s16, {4096*jj}")
            I(f"buffer_store_dwordx4 v[{4+4*jj}:{7+4*jj}], v2, s[12:15], s16 offen")
    I("s_endpgm")
    e("P_kv:")
    if "nokv" in FLAGS: I("s_endpgm")
    I("s_load_dwordx4 s[16:19], s[0:1], 8")
    I("s_load_dwordx2 s[4:5], s[0:1], 24")
    I("s_mul_i32 s28, s2, 0xCCCD")
    I("s_lshr_b32 s28, s28, 19")
    I("s_mul_i32 s29, s28, 10")
    I("s_sub_u32 s29, s2, s29")
    I("v_and_b32 v1, 7, v0")
    I("v_lshrrev_b32 v2, 3, v0")
    I("s_lshl_b32 s30, s29, 6")
    I("v_lshl_add_u32 v1, v1, 3, s30")
    I("s_lshl_b32 s31, s28, 7")
    I("v_lshl_add_u32 v2, v2, 2, s31")
    I("v_mul_u32_u24 v3, 0x500, v2")
    I("v_lshl_add_u32 v3, v1, 1, v3")
    for i in range(3):
        I(f"v_subrev_u32 v{5+i}, {(3-i)*1280:#x}, v3")
    I("v_lshlrev_b32 v8, 3, v1")
    I("s_waitcnt lgkmcnt(0)")
    srd(8, 16, SZ_SD)
    srd(12, 18, SZ_SD)
    srd(20, 4, D*4*2)
    srd(24, 6, SZ_SD, WS_KVR)
    KR = 16
    for i in range(3):
        I(f"buffer_load_dwordx4 v[{KR+4*i}:{KR+4*i+3}], v{5+i}, s[8:11], 0 offen")
    for i in range(4):
        I(f"buffer_load_dwordx4 v[{KR+4*(i+3)}:{KR+4*(i+3)+3}], v3, s[8:11], 0 offen offset:{i*1280}")
    VR = KR + 28
    for i in range(4):
        I(f"buffer_load_dwordx4 v[{VR+4*i}:{VR+4*i+3}], v3, s[12:15], 0 offen offset:{i*1280}")
    SK = VR + 16
    for i in range(4):
        I(f"buffer_load_dwordx4 v[{SK+4*i}:{SK+4*i+3}], v8, s[20:23], 0 offen offset:{16*i}")
    I("v_lshlrev_b32 v9, 12, v1")
    I(f"v_sub_u32 v10, {S-4}, v2")
    I("v_lshl_add_u32 v9, v10, 1, v9")
    I("s_waitcnt vmcnt(0)")
    KF = 76
    VF = 83
    SF = 87
    TM = 92
    OB = 104
    for dd in range(8):
        ex = lo16 if dd % 2 == 0 else hi16
        for i in range(7):
            ex(KF + i, KR + 4*i + dd//2)
        for i in range(4):
            ex(VF + i, VR + 4*i + dd//2)
        lo16(SF+0, SK + 2*dd); hi16(SF+1, SK + 2*dd)
        lo16(SF+2, SK + 2*dd + 1); hi16(SF+3, SK + 2*dd + 1)
        ob = OB + 2*(dd % 4)
        for q in range(2):
            sa, sb = 3 - 2*q, 2 - 2*q
            t = TM
            I(f"v_mul_f32 v{t}, v{KF+sa}, v{SF+3}")
            I(f"v_mul_f32 v{t+1}, v{KF+sb}, v{SF+3}")
            I(f"v_mul_f32 v{t+2}, v{KF+sa+1}, v{SF+2}")
            I(f"v_mul_f32 v{t+3}, v{KF+sb+1}, v{SF+2}")
            I(f"v_mul_f32 v{t+4}, v{KF+sa+2}, v{SF+1}")
            I(f"v_mul_f32 v{t+5}, v{KF+sb+2}, v{SF+1}")
            I(f"v_mul_f32 v{t+6}, v{KF+sa+3}, v{SF+0}")
            I(f"v_mul_f32 v{t+7}, v{KF+sb+3}, v{SF+0}")
            for p in range(4):
                I(f"v_cvt_pk_bf16_f32 v{t+8+p}, v{t+2*p}, v{t+2*p+1}")
            for p in range(4):
                lo16(t+2*p, t+8+p); hi16(t+2*p+1, t+8+p)
            for step in (1, 2, 3):
                I(f"v_add_f32 v{t}, v{t}, v{t+2*step}")
                I(f"v_add_f32 v{t+1}, v{t+1}, v{t+2*step+1}")
                I(f"v_cvt_pk_bf16_f32 v{t+8}, v{t}, v{t+1}")
                lo16(t, t+8); hi16(t+1, t+8)
            I(f"v_mul_f32 v{t}, v{t}, v{VF+sa}")
            I(f"v_mul_f32 v{t+1}, v{t+1}, v{VF+sb}")
            I(f"v_cvt_pk_bf16_f32 v{ob+q}, v{t}, v{t+1}")
        I(f"s_mov_b32 s16, {4096*dd}")
        I(f"buffer_store_dwordx2 v[{ob}:{ob+1}], v9, s[24:27], s16 offen")
    if N_PF:
        I("s_endpgm")
        e("P_pf:")
        I(f"s_sub_u32 s3, s2, {N_LN+N_KV}")
        I("s_mul_i32 s4, s3, 1821")
        I("s_lshr_b32 s4, s4, 16")
        I("s_mul_i32 s5, s4, 36")
        I("s_sub_u32 s5, s3, s5")
        I("s_lshl_b32 s6, s4, 3")
        I("s_add_u32 s6, s6, 56")
        I("s_cmp_eq_u32 s4, 3")
        I("s_cselect_b32 s6, 32, s6")
        I("s_load_dwordx2 s[8:9], s[0:1], s6")
        I(f"s_mov_b32 s10, {SZ_W}")
        I(f"s_cselect_b32 s10, {SZ_SD}, s10")
        I("s_mov_b32 s11, 0x00020000")
        I("s_mov_b32 s7, 65536")
        I("s_cselect_b32 s7, 73728, s7")
        I("s_mul_i32 s5, s5, s7")
        I("v_lshlrev_b32 v1, 4, v0")
        I("s_waitcnt lgkmcnt(0)")
        for i in range(18):
            I(f"buffer_load_dwordx4 v[{4+4*i}:{7+4*i}], v1, s[8:11], s5 offen")
            I("s_add_u32 s5, s5, 4096")
        I("s_waitcnt vmcnt(0)")
    e("P_exit:")
    I("s_endpgm")
    kernel_desc("prep_kernel", 112, 40)

BF = 112
NSLOT = 5
SLOT = 16384
LDS2 = NSLOT * SLOT
N_G1, N_CV = 256, 256

class DSQ:
    def __init__(self): self.q = []
    def push(self, tag): self.q.append(tag)
    def wait_for(self, tag):
        if tag not in self.q: return
        idx = max(i for i, t in enumerate(self.q) if t == tag)
        n = len(self.q) - 1 - idx
        I(f"s_waitcnt lgkmcnt({min(n,15)})")
        self.q = self.q[idx+1:] if n <= 15 else self.q[len(self.q)-15:]

BIG = "big" in FLAGS
def gen_g1big():
    NF = 10; RS = 320; MS = 32*RS; SL = 2*MS; NS = 8; DB = 3; LA = 3; NST = 20
    for f_ in FLAGS:
        if f_.startswith("ns"): NS = int(f_[2:])
    DW = NS - 1
    stamp()
    I("s_load_dwordx4 s[16:19], s[0:1], 56")
    I(f"s_mul_i32 s25, s25, {16*NF}")
    I(f"s_min_u32 s25, s25, {F-16*NF}")
    I("v_and_b32 v1, 63, v0")
    PROD = "prod" in FLAGS
    if PROD:
        I("s_cmp_lt_u32 s3, 4")
        I("s_cbranch_scc1 G1_cons")
        DWP = 6
        I("s_lshl_b32 s27, s25, 1")
        for i in range(10):
            I(f"v_add_u32 v20, {64*i}, v1")
            I("v_mul_u32_u24 v21, 3277, v20")
            I("v_lshrrev_b32 v21, 16, v21")
            I("v_mul_u32_u24 v22, 20, v21")
            I("v_sub_u32 v22, v20, v22")
            I("v_bfe_u32 v23, v21, 3, 1")
            I("v_lshlrev_b32 v23, 1, v23")
            I("v_xor_b32 v22, v22, v23")
            I("v_mul_u32_u24 v21, 3456, v21")
            I("v_lshl_add_u32 v21, v22, 4, v21")
            I("v_add_u32 v21, s27, v21")
            I(f"v_subrev_u32 v{2+i}, {1024*(i%4)}, v21")
        I("s_sub_u32 s29, s3, 4")
        I(f"s_mul_i32 s29, s29, {MS}")
        I("s_waitcnt lgkmcnt(0)")
        I("s_cmp_ge_u32 s3, 5")
        I("s_cselect_b32 s4, s18, s16")
        I("s_cselect_b32 s5, s19, s17")
        srd(8, 4, SZ_W)
        pq = []
        def pdma(st):
            I(f"s_mov_b32 s28, {st*32*3456}")
            for i in range(10):
                if i % 4 == 0: I(f"s_add_u32 m0, s29, {(st % NS)*SL + (i//4)*4096}")
                I(f"buffer_load_dwordx4 v{2+i}, s[8:11], s28 offen offset:{1024*(i%4)} lds")
                pq.append(st)
        def pwait(st):
            idx = max(i for i, t in enumerate(pq) if t == st)
            I(f"s_waitcnt vmcnt({len(pq)-1-idx})")
            del pq[:idx+1]
        if "ramp" in FLAGS:
            for st in range(3): pdma(st)
            pwait(0)
            I("s_barrier")
            pdma(3); pdma(4)
            for st in range(NST-1):
                pwait(st+1)
                I("s_barrier")
                if st == 0: pdma(5)
                if st + DWP < NST: pdma(st + DWP)
        else:
            for st in range(DWP): pdma(st)
            pwait(0)
            I("s_barrier")
            for st in range(NST-1):
                pwait(st+1)
                I("s_barrier")
                if st + DWP < NST: pdma(st + DWP)
        I("s_endpgm")
        e("G1_cons:")
    I("s_and_b32 s26, s3, 1")
    I("s_lshl_b32 s26, s26, 4")
    I("s_lshl_b32 s27, s25, 1")
    for i in range(5 if not PROD else 0):
        I(f"v_add_u32 v10, {64*i}, v1")
        I("v_mul_u32_u24 v11, 3277, v10")
        I("v_lshrrev_b32 v11, 16, v11")
        I("v_mul_u32_u24 v12, 20, v11")
        I("v_sub_u32 v12, v10, v12")
        I("v_add_u32 v11, s26, v11")
        I("v_bfe_u32 v13, v11, 3, 1")
        I("v_lshlrev_b32 v13, 1, v13")
        I("v_xor_b32 v12, v12, v13")
        I("v_mul_u32_u24 v11, 3456, v11")
        I("v_lshl_add_u32 v11, v12, 4, v11")
        I("v_add_u32 v11, s27, v11")
        I(f"v_subrev_u32 v{2+i}, {1024*(i%4)}, v11")
    I("s_lshl_b32 s26, s24, 3")
    I("s_lshl_b32 s27, s3, 1")
    I("s_add_u32 s26, s26, s27")
    I("s_mul_i32 s27, s26, 20480")
    I("v_lshl_add_u32 v7, v1, 4, s27")
    I("v_add_u32 v8, 20480, v7")
    I("s_mul_i32 s27, s26, 55296")
    I("v_lshl_add_u32 v9, v1, 4, s27")
    I("v_add_u32 v10, 55296, v9")
    I("v_bfe_u32 v17, v0, 4, 2")
    I("v_bfe_u32 v18, v0, 2, 2")
    I("v_lshl_add_u32 v19, v17, 3, v18")
    I(f"v_mul_u32_u24 v19, {RS}, v19")
    I("v_and_b32 v18, 3, v0")
    I("v_lshl_add_u32 v19, v18, 3, v19")
    I("v_and_b32 v20, 1, v17")
    I("v_lshlrev_b32 v20, 5, v20")
    I("v_add_u32 v11, v19, v20")
    I("v_sub_u32 v12, v19, v20")
    ROLL = "roll" in FLAGS
    if ROLL:
        for k_, offs in ((1, 3*SL), (2, 4*SL), (3, 7*SL)):
            I(f"v_add_u32 v{11+2*k_}, {offs}, v11")
            I(f"v_add_u32 v{12+2*k_}, {offs}, v12")
    else:
        for rg in (1, 2):
            I(f"v_add_u32 v{11+2*rg}, {rg*3*SL}, v11")
            I(f"v_add_u32 v{12+2*rg}, {rg*3*SL}, v12")
    I("s_mul_i32 s29, s3, 5120")
    I("s_waitcnt lgkmcnt(0)")
    I("s_cmp_ge_u32 s3, 2")
    I("s_cselect_b32 s4, s18, s16")
    I("s_cselect_b32 s5, s19, s17")
    srd(8, 4, SZ_W)
    srd(12, 6, SZ_SD, WS_XN)
    srd(20, 6, SZ_H, WS_H)
    BB = 24; AF = 56; ACC = 80
    def acc(m, jf, js): return ACC + ((m*NF + jf)*2 + js)*4
    vq = []
    def vwait(tags):
        if not any(t in tags for t in vq): return
        idx = max(i for i, t in enumerate(vq) if t in tags)
        n = len(vq) - 1 - idx
        I(f"s_waitcnt vmcnt({n})")
        del vq[:idx+1]
    def dma(st):
        if PROD: return
        I(f"s_add_u32 m0, s29, {(st % NS)*SL}")
        I(f"s_mov_b32 s28, {st*32*3456}")
        for i in range(5):
            if i == 4: I(f"s_add_u32 m0, s29, {(st % NS)*SL + 4096}")
            I(f"buffer_load_dwordx4 v{2+i}, s[8:11], s28 offen offset:{1024*(i%4)} lds")
            vq.append(("D", st))
    def bld(st):
        I(f"s_mov_b32 s31, {st*1024}")
        for js in range(2):
            r = BB + (st % (DB+1))*8 + js*4
            I(f"buffer_load_dwordx4 v[{r}:{r+3}], v{7+js}, s[12:15], s31 offen")
            vq.append(("B", st))
    seq = [(m, jf) for m in range(2) for jf in range(NF)]
    NQ = len(seq)
    def rdx(gpos):
        st, idx = divmod(gpos, NQ)
        m, jf = seq[idx]
        slot = st % NS
        a = AF + (gpos % 4)*4
        va = 11 + 2*(slot // 3) + (jf & 1)
        off = (slot % 3)*SL + m*MS + jf*32
        return [f"ds_read_b64_tr_b16 v[{a}:{a+1}], v{va} offset:{off}",
                f"ds_read_b64_tr_b16 v[{a+2}:{a+3}], v{va} offset:{off+4*RS}"]
    for st in range(DW):
        dma(st)
        if ROLL:
            if st >= DW - DB: bld(st - (DW - DB))
        elif st < DB: bld(st)
    for j in range(4*2*2*NF):
        I(f"v_mov_b32 v{ACC+j}, 0")
    stamp()
    vwait([("D", 0)])
    I("s_barrier")
    for i in range(LA):
        for x in rdx(i): I(x)
    if ROLL:
        assert NS == 8
        I("s_mov_b32 s33, 0")
        I("s_mov_b32 s36, s29")
        I(f"s_add_u32 s37, s29, {4*SL}")
        I(f"s_mov_b32 s28, {DW*32*3456}")
        I(f"s_mov_b32 s31, {DB*1024}")
        def rdr(p, idx, ring):
            m, jf = seq[idx]
            a = AF + (ring % 4)*4
            if p < 3: va = 11 + (jf & 1); off = p*SL
            elif p == 3: va = 13 + (jf & 1); off = 0
            else: va = 15 + (jf & 1); off = 0
            off += m*MS + jf*32
            return [f"ds_read_b64_tr_b16 v[{a}:{a+1}], v{va} offset:{off}",
                    f"ds_read_b64_tr_b16 v[{a+2}:{a+3}], v{va} offset:{off+4*RS}"]
        e("G1_loop:")
        for p_ in range(4):
            I("s_waitcnt vmcnt(14)")
            I(f"s_cmp_lt_u32 s33, {4 if p_ < 2 else 3}")
            I(f"s_cbranch_scc1 G1_w{p_}")
            I("s_waitcnt vmcnt(2)")
            if p_ >= 2:
                I("s_cmp_lt_u32 s33, 4")
                I(f"s_cbranch_scc1 G1_w{p_}")
                I("s_waitcnt vmcnt(0)")
            e(f"G1_w{p_}:")
            I("s_barrier")
            I(f"s_cmp_ge_u32 s33, {4 if p_ == 0 else 3}")
            I(f"s_cbranch_scc1 G1_d{p_}")
            base, offs = ("s37", 3*SL) if p_ == 0 else ("s36", (p_-1)*SL)
            I(f"s_add_u32 m0, {base}, {offs}")
            for i in range(5):
                if i == 4: I(f"s_add_u32 m0, {base}, {offs + 4096}")
                I(f"buffer_load_dwordx4 v{2+i}, s[8:11], s28 offen offset:{1024*(i%4)} lds")
            I(f"s_add_u32 s28, s28, {32*3456}")
            e(f"G1_d{p_}:")
            if p_ > 0:
                I("s_cmp_ge_u32 s33, 4")
                I(f"s_cbranch_scc1 G1_b{p_}")
            for js in range(2):
                r = BB + ((p_ + DB) % 4)*8 + js*4
                I(f"buffer_load_dwordx4 v[{r}:{r+3}], v{7+js}, s[12:15], s31 offen")
            I("s_add_u32 s31, s31, 1024")
            if p_ > 0: e(f"G1_b{p_}:")
            for idx in range(NQ):
                if idx + LA < NQ: rr = rdr(p_, idx + LA, idx + LA)
                else: rr = rdr(p_ + 1, idx + LA - NQ, idx + LA)
                I(f"s_waitcnt lgkmcnt({2*LA-2})")
                m, jf = seq[idx]
                a = AF + (idx % 4)*4
                for js in range(2):
                    c = acc(m, jf, js); b = BB + p_*8 + js*4
                    I(f"v_mfma_f32_16x16x32_bf16 v[{c}:{c+3}], v[{a}:{a+3}], v[{b}:{b+3}], v[{c}:{c+3}]")
                    I(rr[js])
        for k_ in range(4):
            I(f"v_swap_b32 v{11+k_}, v{15+k_}")
        I("s_mov_b32 s38, s36")
        I("s_mov_b32 s36, s37")
        I("s_mov_b32 s37, s38")
        I("s_add_u32 s33, s33, 1")
        I("s_cmp_lt_u32 s33, 5")
        I("s_cbranch_scc1 G1_loop")
        I("s_waitcnt lgkmcnt(0)")
    for st in range(NST if not ROLL else 0):
        if st + 1 < NST:
            vwait([("D", st+1), ("B", st)])
            I("s_barrier")
        else:
            vwait([("B", st)])
        if "stamp3" in FLAGS and st in (0, 1, 5, 10, 15): stamp()
        if st + DW < NST and "g1nodma" not in FLAGS: dma(st + DW)
        if st + DB < NST and "g1nob" not in FLAGS: bld(st + DB)
        for idx in range(NQ if "g1nocomp" not in FLAGS else 0):
            gpos = st*NQ + idx
            rr = rdx(gpos + LA) if gpos + LA < NST*NQ else None
            I(f"s_waitcnt lgkmcnt({2*min(LA-1, NST*NQ-1-gpos)})")
            m, jf = seq[idx]
            a = AF + (gpos % 4)*4
            for js in range(2):
                c = acc(m, jf, js); b = BB + (st % (DB+1))*8 + js*4
                I(f"v_mfma_f32_16x16x32_bf16 v[{c}:{c+3}], v[{a}:{a+3}], v[{b}:{b+3}], v[{c}:{c+3}]")
                if rr: I(rr[js])
    stamp()
    I("s_lshr_b32 s34, s25, 5")
    I("s_lshl_b32 s34, s34, 10")
    I("s_add_u32 s35, s34, 4096")
    I("s_nop 7")
    I("s_nop 3")
    for js in range(2):
        for jp in range(NF//2):
            t = 24 + ((js*5 + jp) % 4) * 12
            for hh in range(2):
                jf = 2*jp + hh
                g = acc(0, jf, js); u = acc(1, jf, js)
                I(f"v_cvt_pk_bf16_f32 v{t}, v{g}, v{g+1}")
                I(f"v_cvt_pk_bf16_f32 v{t+1}, v{g+2}, v{g+3}")
                I(f"v_cvt_pk_bf16_f32 v{t+2}, v{u}, v{u+1}")
                I(f"v_cvt_pk_bf16_f32 v{t+3}, v{u+2}, v{u+3}")
                lo16(g, t); hi16(g+1, t); lo16(g+2, t+1); hi16(g+3, t+1)
                lo16(u, t+2); hi16(u+1, t+2); lo16(u+2, t+3); hi16(u+3, t+3)
                for r in range(4):
                    I(f"v_mul_f32 v{g+r}, v{g+r}, v{u+r}")
                I(f"v_cvt_pk_bf16_f32 v{t+4+2*hh}, v{g}, v{g+1}")
                I(f"v_cvt_pk_bf16_f32 v{t+5+2*hh}, v{g+2}, v{g+3}")
            if jp < 4:
                I(f"buffer_store_dwordx4 v[{t+4}:{t+7}], v{9+js}, s[20:23], s34 offen offset:{1024*jp}")
            else:
                I(f"buffer_store_dwordx4 v[{t+4}:{t+7}], v{9+js}, s[20:23], s35 offen")
    if STAMP: I("s_waitcnt vmcnt(0)")
    stamp()
    stamp_dump(5)
    wgt_end(1)
    I("s_endpgm")

def gen_g1fuse():
    NF = 10; RS = 320; MS = 32*RS; SL = 2*MS; NS = 6; LA = 3; NST = 20; DWP = 5
    XB = NS*SL
    XP = 18432; XR = 144
    I(f"s_mul_i32 s25, s25, {16*NF}")
    I(f"s_min_u32 s25, s25, {F-16*NF}")
    I("v_and_b32 v1, 63, v0")
    I("s_and_b32 s26, s3, 3")
    I(f"s_mul_i32 s30, s26, {32*XR}")
    I(f"s_add_u32 s30, s30, {XB}")
    I("s_lshl_b32 s27, s24, 3")
    I("s_lshl_b32 s26, s26, 1")
    I("s_add_u32 s26, s26, s27")
    I("s_cmp_lt_u32 s3, 4")
    I("s_cbranch_scc1 G1_cons")
    if "hprio" in FLAGS: I("s_setprio 3")
    RAW = 64
    def raw(rg, p): return RAW + (p*4 + rg)*4
    I("s_mul_i32 s27, s26, 20480")
    I("v_lshrrev_b32 v12, 3, v1")
    I("v_and_b32 v11, 7, v1")
    I("v_mul_u32_u24 v13, 0x500, v12")
    I("v_lshl_add_u32 v13, v11, 4, v13")
    I("v_add_u32 v13, s27, v13")
    for rg in range(1, 4): I(f"v_add_u32 v{13+rg}, {rg*10240}, v13")
    I("s_lshl_b32 s27, s26, 7")
    I("v_lshl_add_u32 v7, v12, 3, s27")
    I(f"v_mul_u32_u24 v6, {XR}, v12")
    I("v_lshl_add_u32 v6, v11, 4, v6")
    I("v_add_u32 v6, s30, v6")
    I("s_waitcnt lgkmcnt(0)")
    srd(12, 44, SZ_SD)
    srd(20, 6, S*8, WS_ST)
    for p in range(10):
        for rg in range(4):
            r = raw(rg, p)
            I(f"buffer_load_dwordx4 v[{r}:{r+3}], v{13+rg}, s[12:15], 0 offen offset:{128*p}")
    SM = 24; SS = 32; TT = 40; STA = 48
    for j in range(16): I(f"v_mov_b32 v{SM+j}, 0")
    I("s_mov_b32 s49, 0x3f803f80")
    I("s_cmp_ge_u32 s3, 6")
    I("s_cbranch_scc1 G1_hw")
    def helper(kind):
        vq = [("Q", i) for i in range(40)]
        def vwait(pred):
            idxs = [i for i, t in enumerate(vq) if pred(t)]
            if not idxs: return
            idx = max(idxs)
            n = len(vq) - 1 - idx
            assert n <= 63
            I(f"s_waitcnt vmcnt({n})")
            del vq[:idx+1]
        def pdma(st):
            I(f"s_mov_b32 s28, {st*32*3456}")
            for i in range(10):
                if i % 4 == 0: I(f"s_add_u32 m0, s29, {(st % NS)*SL + (i//4)*4096}")
                I(f"buffer_load_dwordx4 v{224+i}, s[8:11], s28 offen offset:{1024*(i%4)} lds")
                vq.append(("D", st))
        if kind == "prod":
            I("s_lshl_b32 s27, s25, 1")
            for i in range(10):
                I(f"v_add_u32 v20, {64*i}, v1")
                I("v_mul_u32_u24 v21, 3277, v20")
                I("v_lshrrev_b32 v21, 16, v21")
                I("v_mul_u32_u24 v22, 20, v21")
                I("v_sub_u32 v22, v20, v22")
                I("v_bfe_u32 v23, v21, 3, 1")
                I("v_lshlrev_b32 v23, 1, v23")
                I("v_xor_b32 v22, v22, v23")
                I("v_mul_u32_u24 v21, 3456, v21")
                I("v_lshl_add_u32 v21, v22, 4, v21")
                I("v_add_u32 v21, s27, v21")
                I(f"v_subrev_u32 v{224+i}, {1024*(i%4)}, v21")
            I("s_sub_u32 s29, s3, 4")
            I(f"s_mul_i32 s29, s29, {MS}")
            I("s_cmp_ge_u32 s3, 5")
            I("s_cselect_b32 s4, s18, s16")
            I("s_cselect_b32 s5, s19, s17")
            srd(8, 4, SZ_W)
            DSCH = {5: [0], 8: [1], 9: [2]}
            for f_ in FLAGS:
                if f_.startswith("dsch"):
                    if f_ == "dsch1": DSCH = {3: [0], 6: [1], 9: [2]}
                    if f_ == "dsch2": DSCH = {7: [0], 9: [1, 2]}
                    if f_ == "dsch3": DSCH = {-1: [0], 5: [1], 9: [2]}
            for st in DSCH.get(-1, []): pdma(st)
        else:
            I("s_cmp_ge_u32 s3, 7")
            I("s_cselect_b32 s28, s18, s16")
            I("s_cselect_b32 s29, s19, s17")
            I("s_mul_i32 s27, s47, 12800")
            I(f"s_mov_b32 s30, {SZ_W}")
            I("s_mov_b32 s31, 0x00020000")
            I("v_lshlrev_b32 v5, 4, v1")
            I("s_load_dwordx2 s[4:5], s[0:1], 72")
            I("s_min_u32 s48, s46, 269")
            I("s_mul_i32 s17, s48, 0xCCCD")
            I("s_lshr_b32 s17, s17, 19")
            I("s_mul_i32 s18, s17, 10")
            I("s_sub_u32 s18, s48, s18")
            I("v_and_b32 v23, 7, v0")
            I("v_bfe_u32 v17, v0, 3, 2")
            I("v_bfe_u32 v18, v0, 5, 1")
            I("s_lshl_b32 s18, s18, 6")
            I("v_lshl_add_u32 v23, v23, 3, s18")
            I("s_lshl_b32 s19, s17, 1")
            I("v_add_u32 v18, s19, v18")
            I("v_lshlrev_b32 v19, 5, v18")
            I("v_lshl_add_u32 v19, v17, 2, v19")
            I("v_mul_u32_u24 v20, 0x500, v19")
            I("v_lshl_add_u32 v20, v23, 1, v20")
            I("v_add_u32 v21, 0x5000, v20")
            I("s_waitcnt lgkmcnt(0)")
            srd(8, 4, SZ_W)
            srd(32, 6, SZ_W, WS_WDT)
            I("s_mov_b32 s36, 0x05040100")
            I("s_mov_b32 s37, 0x07060302")
            I("v_lshrrev_b32 v22, 4, v23")
            I("v_mul_u32_u24 v22, 54, v22")
            I("v_add_u32 v22, v22, v18")
            I("v_lshlrev_b32 v22, 10, v22")
            I("v_lshl_add_u32 v22, v17, 8, v22")
            I("v_and_b32 v19, 15, v23")
            I("v_lshl_add_u32 v22, v19, 4, v22")
        for p in range(10):
            vwait(lambda t: t[0] == "Q" and t[1] <= 4*p + 3)
            for c in range(4):
                for rg in range(4):
                    r = raw(rg, p) + c
                    I(f"v_dot2_f32_bf16 v{SM+2*rg+(c&1)}, v{r}, s49, v{SM+2*rg+(c&1)}")
                    I(f"v_dot2_f32_bf16 v{SS+2*rg+(c&1)}, v{r}, v{r}, v{SS+2*rg+(c&1)}")
            if kind == "prod":
                for st in DSCH.get(p, []): pdma(st)
        I("s_nop 3")
        V8 = [SM+2*rg for rg in range(4)] + [SS+2*rg for rg in range(4)]
        for a in V8: I(f"v_add_f32 v{a}, v{a}, v{a+1}")
        for dpp in ("quad_perm:[1,0,3,2]", "quad_perm:[2,3,0,1]", "row_half_mirror"):
            for a in V8: I(f"v_add_f32_dpp v{a+1}, v{a}, v{a} {dpp} row_mask:0xf bank_mask:0xf")
            for a in V8: I(f"v_mov_b32 v{a}, v{a+1}")
        R4 = range(4)
        for a in V8: I(f"v_mul_f32 v{a}, {1.0/640.0!r}, v{a}")
        for rg in R4: I(f"v_fma_f32 v{SS+2*rg}, -v{SM+2*rg}, v{SM+2*rg}, v{SS+2*rg}")
        for rg in R4:
            I(f"v_cvt_pk_bf16_f32 v{STA+2*rg+1}, 0, -v{SM+2*rg}")
            I(f"v_cvt_pk_bf16_f32 v{SS+2*rg}, 0, v{SS+2*rg}")
        for rg in R4: I(f"v_add_f32 v{SS+2*rg}, {1e-5!r}, v{SS+2*rg}")
        for rg in R4: I(f"v_cvt_pk_bf16_f32 v{SS+2*rg}, 0, v{SS+2*rg}")
        for rg in R4: I(f"v_sqrt_f32 v{SS+2*rg}, v{SS+2*rg}")
        I("s_nop 0")
        for rg in R4: I(f"v_cvt_pk_bf16_f32 v{SS+2*rg}, 0, v{SS+2*rg}")
        for rg in R4: I(f"v_rcp_f32 v{STA+2*rg}, v{SS+2*rg}")
        I("s_nop 0")
        MN = "mnorm" in FLAGS
        SEL = 24; NEG = 32; T2 = 234
        if MN:
            I("v_and_b32 v2, 15, v1")
            I("v_lshrrev_b32 v3, 4, v1")
            I("v_lshrrev_b32 v4, 2, v2")
            I("v_cmp_eq_u32 vcc, v3, v4")
            I("v_and_b32 v4, 1, v2")
            I("v_lshlrev_b32 v4, 4, v4")
            I("v_mov_b32 v3, 0x3f80")
            I("v_lshlrev_b32 v3, v4, v3")
            I("v_cndmask_b32 v3, 0, v3, vcc")
            I("v_bfe_u32 v4, v2, 1, 1")
            I("v_cmp_eq_u32 vcc, 0, v4")
            I("s_nop 1")
            I(f"v_cndmask_b32 v{SEL}, 0, v3, vcc")
            I(f"v_cndmask_b32 v{SEL+1}, v3, 0, vcc")
            I(f"v_mov_b32 v{SEL+2}, 0")
            I(f"v_mov_b32 v{SEL+3}, 0")
            I(f"v_mov_b32 v{SEL+4}, 0")
            I(f"v_mov_b32 v{SEL+5}, 0")
            I(f"v_mov_b32 v{SEL+6}, v{SEL}")
            I(f"v_mov_b32 v{SEL+7}, v{SEL+1}")
            for rg in R4:
                for c in range(4): I(f"v_mov_b32 v{NEG+4*rg+c}, v{STA+2*rg+1}")
            I("s_nop 1")
        def norm(p, rgs):
            if MN:
                TB = [T2, T2+8]
                def mf(i):
                    rg = rgs[i]; r = raw(rg, p); t = TB[i % 2]
                    for h in range(2):
                        I(f"v_mfma_f32_16x16x32_bf16 v[{t+4*h}:{t+4*h+3}], v[{SEL+4*h}:{SEL+4*h+3}], v[{r}:{r+3}], v[{NEG+4*rg}:{NEG+4*rg+3}]")
                mf(0)
                for i, rg in enumerate(rgs):
                    r = raw(rg, p); R_ = STA + 2*rg; t = TB[i % 2]
                    if i + 1 < len(rgs): mf(i+1)
                    else: I("s_nop 7")
                    if i == 0: I("s_nop 7")
                    for c in range(8): I(f"v_cvt_pk_bf16_f32 v{t+c}, 0, v{t+c}")
                    for c in range(8): I(f"v_mul_f32 v{t+c}, v{t+c}, v{R_}")
                    for c in range(4): I(f"v_cvt_pk_bf16_f32 v{r+c}, v{t+2*c}, v{t+2*c+1}")
                    I(f"ds_write_b128 v6, v[{r}:{r+3}] offset:{(p & 1)*XP + rg*8*XR}")
                return
            for rg in rgs:
                r = raw(rg, p); R_, M_ = STA + 2*rg, STA + 2*rg + 1
                if "nonorm" not in FLAGS:
                    for c in range(4):
                        lo16(TT+2*c, r+c); hi16(TT+2*c+1, r+c)
                    for c in range(8): I(f"v_add_f32 v{TT+c}, v{TT+c}, v{M_}")
                    for c in range(8): I(f"v_cvt_pk_bf16_f32 v{TT+c}, 0, v{TT+c}")
                    for c in range(8): I(f"v_mul_f32 v{TT+c}, v{TT+c}, v{R_}")
                    for c in range(4): I(f"v_cvt_pk_bf16_f32 v{r+c}, v{TT+2*c}, v{TT+2*c+1}")
                I(f"ds_write_b128 v6, v[{r}:{r+3}] offset:{(p & 1)*XP + rg*8*XR}")
        WLK = 3; PFK = 0
        for f_ in FLAGS:
            if f_.startswith("wlk"): WLK = int(f_[3:])
            if f_.startswith("pfk"): PFK = int(f_[3:])
        for k in range(NST):
            if k == 0:
                norm(0, (0, 1, 2, 3))
                if kind == "prod": pdma(3); pdma(4)
            else:
                if kind == "prod" and k >= 2 and k - 2 + DWP < NST: pdma(k - 2 + DWP)
                p = (k-1)//2 + 1
                if p < 10: norm(p, (0, 1) if (k-1) % 2 == 0 else (2, 3))
            if kind == "wdt" and k == PFK and "nopfm" not in FLAGS:
                for i in range(13):
                    I(f"buffer_load_dwordx4 v[60:63], v5, s[28:31], s27 offen")
                    I("s_add_u32 s27, s27, 1024")
            if kind == "wdt" and k == WLK:
                for i in range(8):
                    b = 20 if i < 4 else 21
                    I(f"buffer_load_dwordx4 v[{RAW+4*i}:{RAW+3+4*i}], v{b}, s[8:11], 0 offen offset:{(i%4)*1280}")
            if k == 1:
                for rg in R4:
                    I(f"buffer_store_dwordx2 v[{STA+2*rg}:{STA+2*rg+1}], v7, s[20:23], 0 offen offset:{64*rg}")
                    vq.append(("S", rg))
            if kind == "wdt" and k == WLK + 5:
                I("s_cmp_ge_u32 s46, 270")
                I("s_cbranch_scc1 G1_hwskip")
                I("s_waitcnt vmcnt(0)")
                for dd in range(8):
                    ob = RAW + 32 + 4*dd
                    sel = 36 + (dd & 1)
                    for q in range(4):
                        I(f"v_perm_b32 v{ob+q}, v{RAW+4*(2*q+1)+dd//2}, v{RAW+4*(2*q)+dd//2}, s{sel}")
                for dd in range(8):
                    ob = RAW + 32 + 4*dd
                    I(f"buffer_store_dwordx4 v[{ob}:{ob+3}], v22, s[32:35], 0 offen offset:{16*dd}")
                e("G1_hwskip:")
            if kind == "prod": vwait(lambda t: t == ("D", k))
            I("s_waitcnt lgkmcnt(0)")
            I("s_barrier")
        I("s_endpgm")
    helper("prod")
    e("G1_hw:")
    helper("wdt")
    e("G1_cons:")
    if "prio" in FLAGS: I("s_setprio 3")
    I("s_and_b32 s31, s3, 1")
    I("s_lshr_b32 s33, s3, 1")
    I("s_lshl_b32 s27, s24, 3")
    I("s_lshl_b32 s26, s31, 2")
    I("s_add_u32 s26, s26, s27")
    I("s_mul_i32 s27, s26, 55296")
    I("v_lshl_add_u32 v9, v1, 4, s27")
    I("v_bfe_u32 v17, v0, 4, 2")
    I("v_and_b32 v18, 15, v0")
    I(f"v_mul_u32_u24 v6, {XR}, v18")
    I("v_lshl_add_u32 v6, v17, 4, v6")
    I(f"s_mul_i32 s30, s31, {64*XR}")
    I(f"s_add_u32 s30, s30, {XB}")
    I("v_add_u32 v6, s30, v6")
    I("v_bfe_u32 v18, v0, 2, 2")
    I("v_lshl_add_u32 v19, v17, 3, v18")
    I(f"v_mul_u32_u24 v19, {RS}, v19")
    I("v_and_b32 v18, 3, v0")
    I("v_lshl_add_u32 v19, v18, 3, v19")
    I("s_mul_i32 s27, s33, 160")
    I("v_add_u32 v19, s27, v19")
    I("v_and_b32 v20, 1, v17")
    I("v_lshlrev_b32 v20, 5, v20")
    I("s_lshl_b32 s27, s33, 1")
    I("s_sub_u32 s27, 1, s27")
    I("v_mul_lo_u32 v20, v20, s27")
    I("v_add_u32 v11, v19, v20")
    I("v_sub_u32 v12, v19, v20")
    for rg in (1,):
        I(f"v_add_u32 v{11+2*rg}, {rg*3*SL}, v11")
        I(f"v_add_u32 v{12+2*rg}, {rg*3*SL}, v12")
    I("s_waitcnt lgkmcnt(0)")
    srd(20, 6, SZ_H, WS_H)
    BB = 24; AF = 56; ACC = 80; LA = 2
    for f_ in FLAGS:
        if f_.startswith("la"): LA = int(f_[2:])
    def acc(m, j, js): return ACC + ((m*5 + j)*4 + js)*4
    seq = [(m, j) for m in range(2) for j in range(5)]
    NQ = len(seq)
    dq = []
    def dwait(tags):
        idxs = [i for i, t in enumerate(dq) if t in tags]
        if not idxs: return
        idx = max(idxs); n = len(dq) - 1 - idx
        assert n <= 15
        I(f"s_waitcnt lgkmcnt({n})")
        del dq[:idx+1]
    def rdx(gpos):
        st, idx = divmod(gpos, NQ)
        m, j = seq[idx]
        slot = st % NS
        a = AF + (gpos % 4)*4
        va = 11 + 2*(slot // 3) + (j & 1)
        off = (slot % 3)*SL + m*MS + j*32
        return [f"ds_read_b64_tr_b16 v[{a}:{a+1}], v{va} offset:{off}",
                f"ds_read_b64_tr_b16 v[{a+2}:{a+3}], v{va} offset:{off+4*RS}"]
    def xrd(st, js):
        b = BB + (st & 1)*16 + js*4
        I(f"ds_read_b128 v[{b}:{b+3}], v6 offset:{((st >> 1) & 1)*XP + js*16*XR + (st & 1)*64}")
        dq.append(("X", st))
    stamp()
    I("s_barrier")
    stamp()
    for js in range(4): xrd(0, js)
    for i in range(LA):
        for x in rdx(i): I(x); dq.append(("A", i))
    for st in range(NST):
        if st + 1 < NST: I("s_barrier")
        if "stamp3" in FLAGS and st in (1, 5, 10): stamp()
        for idx in range(NQ):
            gpos = st*NQ + idx
            rr = rdx(gpos + LA) if gpos + LA < NST*NQ else None
            dwait([("A", gpos), ("X", st)])
            m, j = seq[idx]
            a = AF + (gpos % 4)*4
            for js in range(4):
                c = acc(m, j, js); b = BB + (st & 1)*16 + js*4
                cc = "0" if st == 0 else f"v[{c}:{c+3}]"
                I(f"v_mfma_f32_16x16x32_bf16 v[{c}:{c+3}], v[{a}:{a+3}], v[{b}:{b+3}], {cc}")
                if rr and js < 2: I(rr[js]); dq.append(("A", gpos + LA))
                if js == 2 and st + 1 < NST and 1 <= idx <= 4: xrd(st + 1, idx - 1)
    stamp()
    I("s_lshr_b32 s34, s25, 5")
    I("s_lshl_b32 s34, s34, 10")
    I("s_nop 7")
    I("s_nop 3")
    cnt = [0]
    def hq(j, js, dst, t):
        g = acc(0, j, js); u = acc(1, j, js)
        I(f"v_cvt_pk_bf16_f32 v{t}, v{g}, v{g+1}")
        I(f"v_cvt_pk_bf16_f32 v{t+1}, v{g+2}, v{g+3}")
        I(f"v_cvt_pk_bf16_f32 v{t+2}, v{u}, v{u+1}")
        I(f"v_cvt_pk_bf16_f32 v{t+3}, v{u+2}, v{u+3}")
        lo16(g, t); hi16(g+1, t); lo16(g+2, t+1); hi16(g+3, t+1)
        lo16(u, t+2); hi16(u+1, t+2); lo16(u+2, t+3); hi16(u+3, t+3)
        for r in range(4):
            I(f"v_mul_f32 v{g+r}, v{g+r}, v{u+r}")
        I(f"v_cvt_pk_bf16_f32 v{dst}, v{g}, v{g+1}")
        I(f"v_cvt_pk_bf16_f32 v{dst+1}, v{g+2}, v{g+3}")
    def epi(fq):
        units = [((0, 1), 0, 0), ((2, 3), 1, 0), ((4,), 2, 0)] if fq == 0 else [((0,), 2, 8), ((1, 2), 3, 0), ((3, 4), 4, 0)]
        for js in range(4):
            I(f"s_add_u32 s35, s34, {js*55296}")
            I(f"s_add_u32 s36, s34, {js*55296 + 4096}")
            for (jl, blk, ho) in units:
                t = 24 + (cnt[0] % 4) * 12; cnt[0] += 1
                for hh, j in enumerate(jl): hq(j, js, t+4+2*hh, t)
                so, off = ("s35", 1024*blk + ho) if blk < 4 else ("s36", ho)
                if len(jl) == 2:
                    I(f"buffer_store_dwordx4 v[{t+4}:{t+7}], v9, s[20:23], {so} offen offset:{off}")
                else:
                    I(f"buffer_store_dwordx2 v[{t+4}:{t+5}], v9, s[20:23], {so} offen offset:{off}")
    I("s_cmp_eq_u32 s33, 0")
    I("s_cbranch_scc0 G1_epi1")
    epi(0)
    I("s_branch G1_epid")
    e("G1_epi1:")
    epi(1)
    e("G1_epid:")
    if STAMP: I("s_waitcnt vmcnt(0)")
    stamp()
    stamp_dump(5)
    wgt_end(1)
    I("s_endpgm")

def g1_epi(NF, acc):
    I("s_lshr_b32 s34, s25, 5")
    I("s_lshl_b32 s34, s34, 10")
    I("s_add_u32 s35, s34, 4096")
    I("s_nop 7")
    I("s_nop 3")
    for js in range(2):
        for jp in range(NF//2):
            t = 24 + ((js*5 + jp) % 4) * 12
            for hh in range(2):
                jf = 2*jp + hh
                g = acc(0, jf, js); u = acc(1, jf, js)
                I(f"v_cvt_pk_bf16_f32 v{t}, v{g}, v{g+1}")
                I(f"v_cvt_pk_bf16_f32 v{t+1}, v{g+2}, v{g+3}")
                I(f"v_cvt_pk_bf16_f32 v{t+2}, v{u}, v{u+1}")
                I(f"v_cvt_pk_bf16_f32 v{t+3}, v{u+2}, v{u+3}")
                lo16(g, t); hi16(g+1, t); lo16(g+2, t+1); hi16(g+3, t+1)
                lo16(u, t+2); hi16(u+1, t+2); lo16(u+2, t+3); hi16(u+3, t+3)
                for r in range(4):
                    I(f"v_mul_f32 v{g+r}, v{g+r}, v{u+r}")
                I(f"v_cvt_pk_bf16_f32 v{t+4+2*hh}, v{g}, v{g+1}")
                I(f"v_cvt_pk_bf16_f32 v{t+5+2*hh}, v{g+2}, v{g+3}")
            if jp < 4:
                I(f"buffer_store_dwordx4 v[{t+4}:{t+7}], v{9+js}, s[20:23], s34 offen offset:{1024*jp}")
            else:
                I(f"buffer_store_dwordx4 v[{t+4}:{t+7}], v{9+js}, s[20:23], s35 offen")
    if STAMP: I("s_waitcnt vmcnt(0)")
    stamp()
    stamp_dump(5)
    wgt_end(1)
    I("s_endpgm")

def gen_k2():
    kernel_header("mid_kernel")
    if BIG:
        I("s_cmp_ge_u32 s2, 256")
        I("s_cbranch_scc1 M_exit")
        wgt_start()
        I("s_load_dwordx2 s[6:7], s[0:1], 96")
        I("v_lshrrev_b32 v1, 6, v0")
        I("s_nop 0")
        I("v_readfirstlane_b32 s3, v1")
        I("s_lshr_b32 s40, s2, 3")
        I("s_bfe_u32 s41, s2, 0x10002")
        I("s_and_b32 s42, s2, 3")
        I("s_lshl_b32 s43, s41, 2")
        I("s_sub_u32 s43, 24, s43")
        I("s_cmp_ge_u32 s40, s43")
        I("s_cbranch_scc1 M_conv")
        if "nog1" in FLAGS: I("s_endpgm")
        I("s_mul_i32 s24, s42, s43")
        I("s_add_u32 s24, s24, s40")
        I("s_mul_i32 s25, s41, 96")
        I("s_add_u32 s24, s24, s25")
        W0 = 6 if "prod" in FLAGS else 4
        if FUSE:
            stamp()
            I("s_load_dwordx4 s[16:19], s[0:1], 56")
            I("s_load_dwordx2 s[44:45], s[0:1], 0")
            I("s_mov_b32 s47, s24")
        I(f"s_sub_u32 s25, s3, {W0}")
        I("s_mul_i32 s25, s25, 176")
        I("s_add_u32 s24, s24, s25")
        if FUSE:
            I("s_mov_b32 s46, s24")
        else:
            I(f"s_cmp_ge_u32 s3, {W0}")
            I("s_cbranch_scc1 M_wdt")
        I("s_lshl_b32 s24, s42, 2")
        I("s_and_b32 s25, s40, 3")
        I("s_add_u32 s24, s24, s25")
        I("s_mul_i32 s25, s41, 6")
        I("s_lshr_b32 s26, s40, 2")
        I("s_add_u32 s25, s25, s26")
        if FUSE: gen_g1fuse()
        else: gen_g1big()
    else:
        gen_g1old()
    gen_aux()

def gen_g1old():
    I(f"s_cmp_ge_u32 s2, {N_G1+N_CV}")
    I("s_cbranch_scc1 M_exit")
    I("s_load_dwordx2 s[6:7], s[0:1], 96")
    I(f"s_cmp_ge_u32 s2, {N_G1}")
    I("s_cbranch_scc1 M_conv")
    if "nog1" in FLAGS: I("s_endpgm")
    stamp()
    if "prio" in FLAGS: I("s_setprio 3")
    I("s_load_dwordx4 s[16:19], s[0:1], 56")
    I("v_lshrrev_b32 v1, 6, v0")
    I("s_nop 0")
    I("v_readfirstlane_b32 s3, v1")
    I("s_waitcnt lgkmcnt(0)")
    if "stamp2" in FLAGS: stamp()
    I("s_cmp_ge_u32 s3, 2")
    I("s_cselect_b32 s4, s18, s16")
    I("s_cselect_b32 s5, s19, s17")
    srd(8, 4, SZ_W)
    srd(12, 6, SZ_SD, WS_XN)
    srd(20, 6, SZ_H, WS_H)
    if "g12d" in FLAGS:
        I("s_and_b32 s24, s2, 3")
        I("s_lshl_b32 s24, s24, 2")
        I("s_bfe_u32 s25, s2, 0x20003")
        I("s_add_u32 s24, s24, s25")
        I("s_bfe_u32 s25, s2, 0x10002")
        I("s_lshl_b32 s25, s25, 3")
        I("s_lshr_b32 s26, s2, 5")
        I("s_add_u32 s25, s25, s26")
    else:
        I("s_and_b32 s24, s2, 15")
        I("s_lshr_b32 s25, s2, 4")
    I(f"s_mul_i32 s25, s25, {BF}")
    I(f"s_min_u32 s25, s25, {F-BF}")
    I("v_and_b32 v1, 63, v0")
    if "pf" in FLAGS:
        I("s_lshr_b32 s26, s2, 3")
        I("s_lshl_b32 s27, s26, 1")
        I("s_and_b32 s28, s3, 1")
        I("s_add_u32 s27, s27, s28")
        I("s_mul_i32 s27, s27, 34560")
        I("s_bfe_u32 s28, s2, 0x10002")
        I("s_mul_i32 s28, s28, 1792")
        I("s_add_u32 s27, s27, s28")
        I("v_lshrrev_b32 v192, 5, v1")
        I("v_mul_u32_u24 v192, 3456, v192")
        I("v_and_b32 v193, 31, v1")
        I("v_lshl_add_u32 v192, v193, 6, v192")
        I("v_add_u32 v192, s27, v192")
        for i in range(5):
            I(f"s_mov_b32 s27, {i*6912}")
            I(f"buffer_load_dword v{194+i}, v192, s[8:11], s27 offen")
        I("s_and_b32 s27, s2, 3")
        I("s_mul_i32 s27, s27, 655360")
        I("s_lshl_b32 s28, s26, 2")
        I("s_add_u32 s28, s28, s3")
        I("s_mul_i32 s28, s28, 5120")
        I("s_add_u32 s27, s27, s28")
        I("v_lshlrev_b32 v193, 6, v1")
        I("buffer_load_dword v199, v193, s[12:15], s27 offen")
        I("buffer_load_dword v200, v193, s[12:15], s27 offen offset:1024")
    I("v_lshrrev_b32 v10, 4, v1")
    I("v_bfe_u32 v11, v1, 1, 3")
    I("v_and_b32 v12, 1, v1")
    I("s_and_b32 s26, s3, 1")
    I("s_lshl_b32 s26, s26, 4")
    I("s_lshl_b32 s27, s25, 1")
    for i in range(4):
        bit = (i >> 1) & 1
        I(f"v_or_b32 v13, {bit<<2}, v10")
        I("v_xor_b32 v13, v13, v11")
        I(f"v_add_u32 v14, {4*i}, v10")
        I("v_add_u32 v14, s26, v14")
        I("v_mul_u32_u24 v14, 3456, v14")
        I("v_lshl_add_u32 v14, v13, 5, v14")
        I("v_lshl_add_u32 v14, v12, 4, v14")
        I("v_add_u32 v14, s27, v14")
        I(f"v_subrev_u32 v14, {1024*i}, v14")
        I("v_cmp_eq_u32 vcc, 7, v13")
        I("v_mov_b32 v15, 0x40000000")
        I("s_nop 0")
        I(f"v_cndmask_b32 v{2+i}, v14, v15, vcc")
    I("v_bfe_u32 v17, v0, 4, 2")
    I("s_lshl_b32 s26, s24, 3")
    I("s_lshl_b32 s27, s3, 1")
    I("s_add_u32 s26, s26, s27")
    I("s_mul_i32 s27, s26, 20480")
    I("v_lshl_add_u32 v6, v1, 4, s27")
    I("v_add_u32 v7, 20480, v6")
    I("s_mul_i32 s27, s26, 55296")
    I("v_lshl_add_u32 v8, v1, 4, s27")
    I("v_add_u32 v9, 55296, v8")
    I("v_bfe_u32 v18, v0, 2, 2")
    I("v_lshl_add_u32 v19, v17, 3, v18")
    I("v_lshlrev_b32 v19, 8, v19")
    I("v_and_b32 v20, 1, v17")
    I("v_lshl_or_b32 v20, v20, 2, v18")
    I("v_lshl_add_u32 v19, v20, 5, v19")
    I("v_and_b32 v18, 3, v0")
    I("v_lshl_add_u32 v19, v18, 3, v19")
    VA = 10
    I("v_mov_b32 v24, v19")
    for jf in range(7):
        I(f"v_xor_b32 v{VA+jf}, {jf<<5}, v24")
        I(f"v_add_u32 v{VA+7+jf}, 0x10000, v{VA+jf}")
    I("s_lshl_b32 s29, s3, 12")
    BB = 24
    AF = 64
    ACC = 80
    def acc(m, jf, js): return ACC + ((m*7 + jf)*2 + js)*4
    def bfr(st, js): return BB + (st % NSLOT)*8 + js*4
    NST = 20
    def issue(slot):
        I(f"s_add_u32 s30, s29, {slot*SLOT}")
        I("s_mov_b32 m0, s30")
        for i in range(4):
            I(f"buffer_load_dwordx4 v{2+i}, s[8:11], s28 offen offset:{1024*i} lds")
        for js in range(2):
            r = BB + slot*8 + js*4
            I(f"buffer_load_dwordx4 v[{r}:{r+3}], v{6+js}, s[12:15], s31 offen")
        I("s_add_u32 s36, s36, 1")
        I("s_cmp_ge_u32 s36, 20")
        I("s_cselect_b32 s36, 0, s36")
        I("s_add_u32 s37, s37, 1")
        I(f"s_mul_i32 s28, s36, {32*3456}")
        I("s_lshl_b32 s31, s36, 10")
        I("s_cmp_ge_u32 s37, 20")
        I("s_cselect_b32 s28, 0x40000000, s28")
        I("s_cselect_b32 s31, 0x40000000, s31")
    if "rot" in FLAGS:
        I("s_and_b32 s36, s24, 3")
        I("s_mul_i32 s36, s36, 5")
        I("s_lshr_b32 s37, s2, 5")
        I("s_mul_i32 s37, s37, 3")
        I("s_add_u32 s36, s36, s37")
        I("s_cmp_ge_u32 s36, 20")
        I("s_cselect_b32 s37, 20, 0")
        I("s_sub_u32 s36, s36, s37")
    else:
        I("s_mov_b32 s36, 0")
    I("s_mov_b32 s37, 0")
    I(f"s_mul_i32 s28, s36, {32*3456}")
    I("s_lshl_b32 s31, s36, 10")
    if "stamp2" in FLAGS: stamp()
    for st in range(NSLOT - 1):
        issue(st)
    if "stamp2" in FLAGS: stamp()
    for j in range(112):
        I(f"v_mov_b32 v{ACC+j}, 0")
    I("s_mov_b32 s33, 0")
    stamp()
    def body(last):
      for slot in range(NSLOT):
        if not last or slot <= 1:
            I(f"s_waitcnt vmcnt({6*(NSLOT-2)})")
        else:
            I(f"s_waitcnt vmcnt({6*(NSLOT-1-slot)})")
        I("s_barrier")
        if not last or slot == 0:
            issue((slot + NSLOT - 1) % NSLOT)
        seq = [(m, jf) for m in range(2) for jf in range(7)]
        def rd(idx):
            m, jf = seq[idx]
            a = AF + (idx % 4)*4
            if slot < 4:
                va = VA + jf; off = slot*SLOT + m*8192
            else:
                va = VA + 7 + jf; off = m*8192
            I(f"ds_read_b64_tr_b16 v[{a}:{a+1}], v{va} offset:{off}")
            I(f"ds_read_b64_tr_b16 v[{a+2}:{a+3}], v{va} offset:{off+1024}")
        for i in range(3):
            rd(i)
        for idx in range(14):
            if idx + 3 < 14:
                rd(idx + 3)
                I("s_waitcnt lgkmcnt(6)")
            else:
                I(f"s_waitcnt lgkmcnt({2*(13-idx)})")
            m, jf = seq[idx]
            a = AF + (idx % 4)*4
            for js in range(2):
                c = acc(m, jf, js); b = BB + slot*8 + js*4
                I(f"v_mfma_f32_16x16x32_bf16 v[{c}:{c+3}], v[{a}:{a+3}], v[{b}:{b+3}], v[{c}:{c+3}]")
    XS = "xs" in FLAGS
    LA = 3
    for f in FLAGS:
        if f.startswith("la"): LA = int(f[2:])
    RING = [64,68,72,76,192,196,200] if LA > 3 else [64,68,72,76,192]
    seq = [(m, jf) for m in range(2) for jf in range(7)]
    ring = [0]
    def rdx(slot, idx, pos):
        m, jf = seq[idx]
        a = RING[pos % len(RING)]
        if slot < 4:
            va = VA + jf; off = slot*SLOT + m*8192
        else:
            va = VA + 7 + jf; off = m*8192
        return [f"ds_read_b64_tr_b16 v[{a}:{a+1}], v{va} offset:{off}",
                f"ds_read_b64_tr_b16 v[{a+2}:{a+3}], v{va} offset:{off+1024}"]
    def body_xs(last):
      for slot in range(NSLOT):
        fin_stage = last and slot == NSLOT-1
        if not fin_stage:
            if not last or slot <= 1:
                I("s_waitcnt vmcnt(12)")
            else:
                I(f"s_waitcnt vmcnt({6*(NSLOT-2-slot)})")
            if "g1nobar" not in FLAGS: I("s_barrier")
        if (not last or slot == 0) and "g1noload" not in FLAGS:
            issue((slot + NSLOT - 1) % NSLOT)
        for idx in range(14 if "g1nocomp" not in FLAGS else 0):
            pos = idx + 14*slot
            if idx + LA < 14:
                rr = rdx(slot, idx + LA, pos + LA)
            elif not fin_stage:
                rr = rdx((slot + 1) % NSLOT, idx + LA - 14, pos + LA)
            else:
                rr = None
            I(f"s_waitcnt lgkmcnt({2*(LA-1) if not fin_stage else 2*min(LA-1, 13-idx)})")
            m, jf = seq[idx]
            a = RING[pos % len(RING)]
            for js in range(2):
                c = acc(m, jf, js); b = BB + slot*8 + js*4
                I(f"v_mfma_f32_16x16x32_bf16 v[{c}:{c+3}], v[{a}:{a+3}], v[{b}:{b+3}], v[{c}:{c+3}]")
                if rr: I(rr[js])
    if XS:
        I("s_waitcnt vmcnt(18)")
        I("s_barrier")
        for i in range(LA):
            for x in rdx(0, i, i): I(x)
    e("G1_loop:")
    (body_xs if XS else body)(False)
    I("s_add_u32 s33, s33, 1")
    I(f"s_cmp_lt_u32 s33, {NST//NSLOT - 1}")
    I("s_cbranch_scc1 G1_loop")
    (body_xs if XS else body)(True)
    stamp()
    I("s_waitcnt vmcnt(0)")
    I("s_nop 7")
    I("s_nop 3")
    T = 24
    for js in range(2):
        for jf in range(7):
            g = acc(0, jf, js); u = acc(1, jf, js)
            t = T + ((js*7 + jf) % 4) * 8
            I(f"v_cvt_pk_bf16_f32 v{t}, v{g}, v{g+1}")
            I(f"v_cvt_pk_bf16_f32 v{t+1}, v{g+2}, v{g+3}")
            I(f"v_cvt_pk_bf16_f32 v{t+2}, v{u}, v{u+1}")
            I(f"v_cvt_pk_bf16_f32 v{t+3}, v{u+2}, v{u+3}")
            lo16(g, t); hi16(g+1, t); lo16(g+2, t+1); hi16(g+3, t+1)
            lo16(u, t+2); hi16(u+1, t+2); lo16(u+2, t+3); hi16(u+3, t+3)
            for r in range(4):
                I(f"v_mul_f32 v{g+r}, v{g+r}, v{u+r}")
            I(f"v_cvt_pk_bf16_f32 v{t+4}, v{g}, v{g+1}")
            I(f"v_cvt_pk_bf16_f32 v{t+5}, v{g+2}, v{g+3}")
            I(f"s_add_u32 s34, s25, {16*jf}")
            I("s_lshr_b32 s35, s34, 5")
            I("s_lshl_b32 s35, s35, 10")
            I("s_and_b32 s34, s34, 16")
            I("s_lshr_b32 s34, s34, 1")
            I("s_add_u32 s35, s35, s34")
            I(f"buffer_store_dwordx2 v[{t+4}:{t+5}], v{8+js}, s[20:23], s35 offen")
    I("s_waitcnt vmcnt(0)")
    stamp()
    stamp_dump(5)
    I("s_endpgm")

def gen_aux():
    e("M_conv:")
    if "noconv" in FLAGS: I("s_endpgm")
    XREG = 7680; CST = 576 if "cst" in FLAGS else 800; HBUF = 8*CST; WREG = 20480
    stamp()
    I("s_load_dwordx4 s[16:19], s[0:1], 32")
    if FUSE:
        I("s_load_dwordx4 s[44:47], s[0:1], 8")
        I("s_load_dwordx2 s[48:49], s[0:1], 24")
    if BIG:
        I("s_sub_u32 s24, 32, s43")
        I("s_mul_i32 s24, s24, s42")
        I("s_add_u32 s24, s24, s40")
        I("s_sub_u32 s24, s24, s43")
        I("s_lshl_b32 s25, s41, 5")
        I("s_add_u32 s24, s24, s25")
        I("s_lshl_b32 s24, s24, 3")
        I("s_add_u32 s24, s24, s3")
    else:
        I("v_lshrrev_b32 v1, 6, v0")
        I("s_nop 0")
        I("v_readfirstlane_b32 s3, v1")
        I(f"s_sub_u32 s25, s2, {N_G1}")
        I("s_cmp_ge_u32 s25, 128")
        I("s_cbranch_scc1 M_aux_hi")
        I("s_mov_b32 s24, s25")
        I("s_cmp_eq_u32 s3, 3")
        I("s_cbranch_scc1 M_wdt")
        I("s_mul_i32 s24, s25, 3")
        I("s_add_u32 s24, s24, s3")
        I("s_branch M_conv2")
        e("M_aux_hi:")
        I("s_sub_u32 s25, s25, 128")
        I("s_lshl_b32 s25, s25, 1")
        I("s_add_u32 s24, s25, s3")
        I("s_add_u32 s24, s24, 126")
        I("s_cmp_ge_u32 s3, 2")
        I("s_cbranch_scc1 M_wdt")
        I("s_add_u32 s24, s25, s3")
        I("s_add_u32 s24, s24, 384")
    e("M_conv2:")
    I("s_waitcnt lgkmcnt(0)")
    srd(8, 16, SZ_SD)
    if FUSE:
        I("s_sub_u32 s25, s24, s3")
        I("s_lshl_b32 s25, s25, 3")
        I("s_load_dwordx16 s[84:99], s[48:49], s25")
        srd(32, 44, SZ_SD)
        srd(36, 46, SZ_SD)
    else:
        srd(12, 6, SZ_SD, WS_KVR)
    srd(20, 6, SZ_SD, WS_YT)
    I("s_lshr_b32 s25, s24, 1")
    I("s_lshl_b32 s25, s25, 2")
    I("s_load_dword s26, s[18:19], s25")
    I("v_and_b32 v1, 63, v0")
    I("s_lshl_b32 s27, s24, 12")
    I("v_lshl_add_u32 v2, v1, 4, s27")
    XL = 16
    for j in range(4 if not FUSE else 0):
        I(f"buffer_load_dwordx4 v[{XL+4*j}:{XL+4*j+3}], v2, s[12:15], 0 offen offset:{1024*j}")
    HW0, HW1 = 32, 40
    I("v_subrev_u32 v13, 64, v2")
    I("v_mov_b32 v5, 0x40000000")
    I("v_cmp_gt_u32 vcc, 4, v1")
    I("s_nop 1")
    I("v_cndmask_b32 v4, v13, v5, vcc")
    I("v_add_u32 v6, 16, v13")
    I("v_cmp_gt_u32 vcc, 3, v1")
    I("s_nop 1")
    I("v_cndmask_b32 v6, v6, v5, vcc")
    I(f"buffer_load_dwordx4 v[{HW0}:{HW0+3}], v4, s[8:11], 0 offen")
    I(f"buffer_load_dwordx4 v[{HW0+4}:{HW0+7}], v6, s[8:11], 0 offen")
    I(f"buffer_load_dwordx4 v[{HW1}:{HW1+3}], v2, s[8:11], 0 offen offset:448")
    I(f"buffer_load_dwordx4 v[{HW1+4}:{HW1+7}], v2, s[8:11], 0 offen offset:464")
    KP, KO, VV, KF, PP, TC, OO = 132, 144, 160, 176, 190, 222, 230
    if FUSE:
        I("s_sub_u32 s25, s24, s3")
        I("s_lshl_b32 s25, s25, 1")
        I("v_mul_u32_u24 v50, 5120, v0")
        I("v_add_u32 v50, s25, v50")
        I("s_cmp_eq_u32 s3, 0")
        I("s_cselect_b32 s25, 0x40000000, -3840")
        I("v_add_u32 v51, s25, v50")
        def kvloads():
            for i in range(4):
                I(f"buffer_load_dwordx4 v[{KO+4*i}:{KO+4*i+3}], v50, s[32:35], 0 offen offset:{1280*i}")
            I("s_mov_b64 exec, 1")
            for i in range(3):
                I(f"buffer_load_dwordx4 v[{KP+4*i}:{KP+4*i+3}], v51, s[32:35], 0 offen offset:{1280*i}")
            I("s_mov_b64 exec, -1")
            for i in range(4):
                I(f"buffer_load_dwordx4 v[{VV+4*i}:{VV+4*i+3}], v50, s[36:39], 0 offen offset:{1280*i}")
        KPF = "nokpf" not in FLAGS
        if KPF:
            I("s_cmp_ge_u32 s3, 4")
            I("s_cselect_b32 s12, s36, s32")
            I("s_cselect_b32 s13, s37, s33")
            I(f"s_mov_b32 s14, {SZ_SD:#x}")
            I("s_mov_b32 s15, 0x00020000")
            I("s_sub_u32 s50, s40, s43")
            I("v_and_b32 v54, 255, v0")
            I("s_cmp_eq_u32 s41, 0")
            I("s_cbranch_scc0 CV_pf1")
            I("s_lshl_b32 s50, s50, 8")
            I("v_add_u32 v54, s50, v54")
            I("v_mul_u32_u24 v54, 0x500, v54")
            I("s_lshl_b32 s51, s42, 7")
            I("buffer_load_dword v55, v54, s[12:15], s51 offen")
            I("s_branch CV_pfd")
            e("CV_pf1:")
            I("s_mul_i32 s50, s50, 176")
            I("s_mul_i32 s51, s42, 192")
            I("s_add_u32 s51, s51, 512")
            I("s_and_b32 s51, s51, 0xffffff80")
            I("v_lshrrev_b32 v55, 1, v54")
            I("v_add_u32 v55, s50, v55")
            I("v_mul_u32_u24 v55, 0x500, v55")
            I("v_and_b32 v56, 1, v54")
            I("v_lshl_add_u32 v55, v56, 7, v55")
            I("buffer_load_dword v57, v55, s[12:15], s51 offen")
            I("v_cmp_gt_u32 vcc, 96, v54")
            I(f"v_add_u32 v55, {128*0x500}, v55")
            I("s_and_saveexec_b64 s[52:53], vcc")
            I("buffer_load_dword v56, v55, s[12:15], s51 offen")
            I("s_mov_b64 exec, -1")
            e("CV_pfd:")
        else:
            kvloads()
        I("v_lshlrev_b32 v52, 2, v0")
        I("v_sub_u32 v52, 2044, v52")
        I("v_lshrrev_b32 v53, 5, v52")
        I("v_mul_u32_u24 v53, 80, v53")
        I("v_and_b32 v52, 31, v52")
        I("v_lshl_add_u32 v52, v52, 1, v53")
        I(f"v_add_u32 v53, {4*WREG}, v52")
    I("s_mov_b32 s29, 960")
    I(f"s_mul_i32 s28, s3, {WREG}")
    Z = 96
    for j in range(4):
        I(f"v_mov_b32 v{Z+j}, 0")
    I("v_lshl_add_u32 v3, v1, 4, s28")
    I(f"ds_write_b128 v3, v[{Z}:{Z+3}] offset:5120")
    I(f"ds_write_b128 v3, v[{Z}:{Z+3}] offset:6144")
    I(f"ds_write_b128 v3, v[{Z}:{Z+3}] offset:6656")
    I("v_lshrrev_b32 v4, 2, v1")
    I("v_mul_u32_u24 v4, 80, v4")
    I("v_and_b32 v5, 3, v1")
    I("v_lshl_add_u32 v4, v5, 4, v4")
    I("v_add_u32 v4, s28, v4")
    I("v_and_b32 v5, 31, v1")
    I("v_lshrrev_b32 v6, 5, v1")
    I("v_and_b32 v7, 7, v5")
    I(f"v_mul_u32_u24 v7, {CST}, v7")
    I("v_lshrrev_b32 v8, 3, v5")
    I("v_add_u32 v8, v8, v6")
    I("v_lshl_add_u32 v7, v8, 4, v7")
    I(f"v_add_u32 v7, {XREG}, v7")
    I("v_add_u32 v7, s28, v7")
    I(f"v_add_u32 v14, {HBUF}, v7")
    I("v_sub_u32 v8, 63, v5")
    I("v_mul_u32_u24 v8, 80, v8")
    I("v_lshl_add_u32 v8, v6, 4, v8")
    I("v_add_u32 v8, s28, v8")
    I("v_mov_b32 v15, v8")
    I("v_subrev_u32 v9, 2560, v8")
    I(f"v_add_u32 v10, {XREG}, v3")
    I(f"v_add_u32 v11, {HBUF}, v10")
    AC0, AC1 = 100, 116
    for j in range(32):
        I(f"v_mov_b32 v{AC0+j}, 0")
    FR = 132
    UE, UO, WO = 180, 189, 197
    CLA, CR = 3, 4
    for f_ in FLAGS:
        if f_.startswith("cla"): CLA = int(f_[3:]); CR = 8; UE, UO, WO = 228, 237, 245
    I("s_mov_b32 s30, -1")
    I("s_mov_b32 s31, 0xf")
    q = DSQ()
    def stage_seg(w, addr):
        for t in range(7):
            I(f"v_alignbit_b32 v{UE+t}, v{w+t+1}, v{w+t}, 16")
            I(f"v_alignbit_b32 v{UO+t}, v{w+t+1}, v{w+t}, 16")
        for t in range(1, 7):
            I(f"v_mov_b32 v{WO+t}, v{w+t}")
        I("s_mov_b64 exec, s[30:31]")
        for c in range(8):
            if c % 2 == 0:
                t0 = c // 2
                r = UE + t0 if t0 % 2 == 0 else UO + t0
            else:
                t0 = (1 + c)//2
                r = w + t0 if t0 % 2 == 0 else WO + t0
            assert r % 2 == 0, (c, r)
            I(f"ds_write_b128 v{addr}, v[{r}:{r+3}] offset:{c*CST}")
            q.push(("w", 0))
        I("s_mov_b64 exec, -1")
    if FUSE:
        if KPF:
            I("s_waitcnt vmcnt(0)")
            I("s_barrier")
            kvloads()
        else:
            I("s_waitcnt vmcnt(13)")
        stage_seg(HW0, 10)
        I("s_mov_b32 s49, 0x3f803f80")
        I("s_waitcnt vmcnt(4) lgkmcnt(0)")
        stamp()
        for r in range(3):
            for c in range(4):
                I(f"v_mov_b32_dpp v{KP+4*r+c}, v{KO+4*(r+1)+c} wave_shr:1 row_mask:0xf bank_mask:0xf")
        def krow(r): return (KP + 4*r) if r < 3 else (KO + 4*(r-3))
        chains = [(i, h) for i in range(4) for h in range(2)]
        for j in range(4):
            for h in range(2):
                I(f"s_lshl_b32 s{50+h}, s{84+4*j+2*h}, 16")
                I(f"s_and_b32 s{52+h}, s{84+4*j+2*h}, 0xffff0000")
                I(f"s_lshl_b32 s{54+h}, s{85+4*j+2*h}, 16")
                I(f"s_and_b32 s{56+h}, s{85+4*j+2*h}, 0xffff0000")
            for r in range(7):
                lo16(KF+2*r, krow(r)+j); hi16(KF+2*r+1, krow(r)+j)
            def P(i, t): return PP + (i*4 + t)*2
            for i in range(4):
                for t in range(4):
                    r = i + 3 - t
                    I(f"v_pk_mul_f32 v[{P(i,t)}:{P(i,t)+1}], v[{KF+2*r}:{KF+2*r+1}], s[{50+2*t}:{51+2*t}]")
            if j == 0: I("s_waitcnt vmcnt(0)")
            def T(i, h): return TC + 2*i + h
            for (i, h) in chains: I(f"v_cvt_pk_bf16_f32 v{T(i,h)}, v{P(i,3)+h}, v{P(i,2)+h}")
            for t in (1, 0):
                for (i, h) in chains: I(f"v_dot2_f32_bf16 v{T(i,h)}, v{T(i,h)}, s49, 0")
                for (i, h) in chains: I(f"v_cvt_pk_bf16_f32 v{T(i,h)}, v{T(i,h)}, v{P(i,t)+h}")
            for (i, h) in chains: I(f"v_dot2_f32_bf16 v{T(i,h)}, v{T(i,h)}, s49, 0")
            for (i, h) in chains:
                if h == 0: I(f"v_cvt_pk_bf16_f32 v{T(i,h)}, v{T(i,h)}, 0")
                else: I(f"v_cvt_pk_bf16_f32 v{T(i,h)}, 0, v{T(i,h)}")
            for (i, h) in chains: I(f"v_dot2_f32_bf16 v{T(i,h)}, v{T(i,h)}, v{VV+4*i+j}, 0")
            I("s_nop 1")
            for h in range(2):
                o = OO + 2*h + 4*(j & 1)
                I(f"v_cvt_pk_bf16_f32 v{o+1}, v{T(1,h)}, v{T(0,h)}")
                I(f"v_cvt_pk_bf16_f32 v{o}, v{T(3,h)}, v{T(2,h)}")
            for h in range(2):
                o = OO + 2*h + 4*(j & 1)
                ch = 2*j + h
                I(f"ds_write_b64 v{52 + ch//4}, v[{o}:{o+1}] offset:{(ch % 4)*WREG}")
        I("s_waitcnt lgkmcnt(0)")
        I("s_barrier")
    else:
        I("s_waitcnt vmcnt(2)")
        stamp()
        for j in range(4):
            I(f"ds_write_b128 v4, v[{XL+4*j}:{XL+4*j+3}] offset:{16*80*j}")
        stage_seg(HW0, 10)
    q = DSQ()
    def crd(c, both, part=None):
        f = FR + (c % CR)*12
        boff = (c >> 1)*80 + (c & 1)*32
        if part in (None, 0):
            if c < 16:
                I(f"ds_read_b128 v[{f}:{f+3}], v7 offset:{32*c}")
            else:
                I(f"ds_read_b128 v[{f}:{f+3}], v14 offset:{32*(c-16)}")
            q.push(("r", c))
            I(f"ds_read_b128 v[{f+4}:{f+7}], v9 offset:{boff}")
            q.push(("r", c))
        if both and part in (None, 1):
            I(f"ds_read_b128 v[{f+8}:{f+11}], v8 offset:{boff}")
            q.push(("r", c))
    for c in range(CLA):
        crd(c, True)
    I("s_mov_b32 s33, 0")
    stamp()
    for phase in range(2):
        both = (phase == 0)
        e(f"CV_loop{phase}:")
        q.q = [("r", c) for c in range(CLA) for _ in range(3 if both else 2)]
        for c in range(16):
            if c == 1:
                I("s_waitcnt vmcnt(0)")
                stage_seg(HW1, 11)
                if "cvnoload" not in FLAGS:
                    I(f"buffer_load_dwordx4 v[{HW1}:{HW1+3}], v2, s[8:11], s29 offen")
                    I(f"buffer_load_dwordx4 v[{HW1+4}:{HW1+7}], v2, s[8:11], s29 offen offset:16")
                I("s_add_u32 s29, s29, 512")
            f = FR + (c % CR)*12
            if "cvi" in FLAGS:
                q.wait_for(("r", c))
                I(f"v_mfma_f32_32x32x16_bf16 v[{AC1}:{AC1+15}], v[{f}:{f+3}], v[{f+4}:{f+7}], v[{AC1}:{AC1+15}]")
                crd(c + CLA, both, 0)
                if both:
                    I(f"v_mfma_f32_32x32x16_bf16 v[{AC0}:{AC0+15}], v[{f}:{f+3}], v[{f+8}:{f+11}], v[{AC0}:{AC0+15}]")
                    crd(c + CLA, both, 1)
            else:
                crd(c + CLA, both)
                q.wait_for(("r", c))
                I(f"v_mfma_f32_32x32x16_bf16 v[{AC1}:{AC1+15}], v[{f}:{f+3}], v[{f+4}:{f+7}], v[{AC1}:{AC1+15}]")
                if both:
                    I(f"v_mfma_f32_32x32x16_bf16 v[{AC0}:{AC0+15}], v[{f}:{f+3}], v[{f+8}:{f+11}], v[{AC0}:{AC0+15}]")
        I("v_swap_b32 v7, v14")
        I("v_swap_b32 v10, v11")
        I("v_add_u32 v8, 640, v8")
        I("v_add_u32 v9, 640, v9")
        I("s_add_u32 s33, s33, 1")
        I(f"s_cmp_lt_u32 s33, {4*(phase+1)}")
        I(f"s_cbranch_scc1 CV_loop{phase}")
    I("v_mov_b32 v8, v15")
    I("s_waitcnt vmcnt(0) lgkmcnt(0)")
    stamp()
    I("v_mul_u32_u24 v10, 24, v6")
    I("v_sub_u32 v10, v8, v10")
    I("v_add_u32 v10, 8, v10")
    I("v_subrev_u32 v11, 2560, v10")
    KV = 16
    for cb in range(2):
        for qq in range(4):
            I(f"ds_read_b64 v[{KV+cb*8+2*qq}:{KV+cb*8+2*qq+1}], v{10+cb} offset:{48-16*qq}")
    I("s_and_b32 s25, s24, 1")
    I("s_lshl_b32 s25, s25, 4")
    I("s_lshr_b32 s26, s26, s25")
    I("s_lshl_b32 s26, s26, 16")
    I("v_lshlrev_b32 v12, 6, v5")
    I("v_lshl_add_u32 v12, v6, 3, v12")
    I("v_add_u32 v12, s27, v12")
    I("s_nop 7")
    I("s_waitcnt lgkmcnt(0)")
    for cb in range(2):
        ac = AC0 if cb == 0 else AC1
        for qq in range(4):
            k0 = KV + cb*8 + 2*qq
            t = 40 + (qq % 2)*12
            y = ac + 4*qq
            hi16(t+0, k0+1); lo16(t+1, k0+1); hi16(t+2, k0); lo16(t+3, k0)
            for r in range(4):
                I(f"v_mul_f32 v{t+r}, s26, v{t+r}")
            I(f"v_cvt_pk_bf16_f32 v{t+4}, v{t}, v{t+1}")
            I(f"v_cvt_pk_bf16_f32 v{t+5}, v{t+2}, v{t+3}")
            I(f"v_cvt_pk_bf16_f32 v{t+6}, v{y}, v{y+1}")
            I(f"v_cvt_pk_bf16_f32 v{t+7}, v{y+2}, v{y+3}")
            lo16(t, t+4); hi16(t+1, t+4); lo16(t+2, t+5); hi16(t+3, t+5)
            lo16(y, t+6); hi16(y+1, t+6); lo16(y+2, t+7); hi16(y+3, t+7)
            for r in range(4):
                I(f"v_add_f32 v{t+r}, v{t+r}, v{y+r}")
            I(f"v_cvt_pk_bf16_f32 v{t+8}, v{t}, v{t+1}")
            I(f"v_cvt_pk_bf16_f32 v{t+9}, v{t+2}, v{t+3}")
            I(f"buffer_store_dwordx2 v[{t+8}:{t+9}], v12, s[20:23], 0 offen offset:{cb*2048+16*qq}")
    I("s_waitcnt vmcnt(0)")
    stamp()
    stamp_dump(255 if BIG else N_G1 + 7)
    if BIG: wgt_end(1)
    I("s_endpgm")
    e("M_wdt:")
    I("s_waitcnt lgkmcnt(0)")
    if "wlate" in FLAGS: I("s_barrier")
    if BIG and "pfm" in FLAGS:
        I("s_sub_u32 s26, s3, 6")
        I("s_mul_i32 s27, s26, 176")
        I("s_sub_u32 s27, s24, s27")
        I("s_lshl_b32 s26, s26, 3")
        I("s_add_u32 s26, s26, 56")
        I("s_load_dwordx2 s[28:29], s[0:1], s26")
        I("s_mul_i32 s27, s27, 12800")
        I(f"s_mov_b32 s30, {SZ_W}")
        I("s_mov_b32 s31, 0x00020000")
        I("v_and_b32 v1, 63, v0")
        I("v_lshlrev_b32 v1, 4, v1")
        I("s_waitcnt lgkmcnt(0)")
        for i in range(13):
            I(f"buffer_load_dwordx4 v[{100+4*i}:{103+4*i}], v1, s[28:31], s27 offen")
            I("s_add_u32 s27, s27, 1024")
    if "pfa128" in FLAGS or "pfa64" in FLAGS:
        G = 128 if "pfa128" in FLAGS else 64
        NL = 1792 // G
        I("s_cmp_lg_u32 s3, 3")
        I("s_cbranch_scc1 M_nopf")
        I("s_bfe_u32 s26, s2, 0x50003")
        I("s_lshr_b32 s27, s26, 4")
        I("s_lshl_b32 s27, s27, 3")
        I("s_add_u32 s27, s27, 56")
        I("s_load_dwordx2 s[28:29], s[0:1], s27")
        I("s_and_b32 s26, s26, 15")
        I("s_mul_i32 s26, s26, 138240")
        I("s_bfe_u32 s27, s2, 0x10002")
        I("s_mul_i32 s27, s27, 1792")
        I("s_add_u32 s26, s26, s27")
        I(f"s_mov_b32 s30, {SZ_W}")
        I("s_mov_b32 s31, 0x00020000")
        I("v_and_b32 v1, 63, v0")
        I("s_waitcnt lgkmcnt(0)")
        n = (40*NL + 63)//64
        mul = (65536 + NL - 1)//NL
        for i in range(n):
            I(f"v_add_u32 v2, {64*i}, v1")
            I(f"v_mul_u32_u24 v3, {mul}, v2")
            I("v_lshrrev_b32 v3, 16, v3")
            I(f"v_mul_u32_u24 v4, {NL}, v3")
            I("v_sub_u32 v4, v2, v4")
            I("v_mul_u32_u24 v3, 3456, v3")
            I(f"v_lshl_add_u32 v{100+i}, v4, {7 if G==128 else 6}, v3")
            I(f"buffer_load_dword v{140+i}, v{100+i}, s[28:31], s26 offen")
        e("M_nopf:")
    WBAR = 0
    for f_ in FLAGS:
        if f_.startswith("wbar"): WBAR = int(f_[4:])
    I("s_cmp_ge_u32 s24, 270")
    I(f"s_cbranch_scc1 {'M_exitb' if WBAR else 'M_exitw'}")
    I("s_load_dwordx2 s[4:5], s[0:1], 72")
    I("s_mul_i32 s17, s24, 0xCCCD")
    I("s_lshr_b32 s17, s17, 19")
    I("s_mul_i32 s18, s17, 10")
    I("s_sub_u32 s18, s24, s18")
    I("v_and_b32 v1, 7, v0")
    I("v_bfe_u32 v2, v0, 3, 2")
    I("v_bfe_u32 v6, v0, 5, 1")
    I("s_lshl_b32 s18, s18, 6")
    I("v_lshl_add_u32 v1, v1, 3, s18")
    I("s_lshl_b32 s19, s17, 1")
    I("v_add_u32 v6, s19, v6")
    I("v_lshlrev_b32 v7, 5, v6")
    I("v_lshl_add_u32 v7, v2, 2, v7")
    I("v_mul_u32_u24 v3, 0x500, v7")
    I("v_lshl_add_u32 v3, v1, 1, v3")
    I("v_add_u32 v4, 0x5000, v3")
    I("s_waitcnt lgkmcnt(0)")
    srd(8, 4, SZ_W)
    srd(12, 6, SZ_W, WS_WDT)
    for i in range(8):
        b = 3 if i < 4 else 4
        I(f"buffer_load_dwordx4 v[{8+4*i}:{11+4*i}], v{b}, s[8:11], 0 offen offset:{(i%4)*1280}")
    I("s_mov_b32 s20, 0x05040100")
    I("s_mov_b32 s21, 0x07060302")
    I("v_lshrrev_b32 v5, 4, v1")
    I("v_mul_u32_u24 v5, 54, v5")
    I("v_add_u32 v5, v5, v6")
    I("v_lshlrev_b32 v5, 10, v5")
    I("v_lshl_add_u32 v5, v2, 8, v5")
    I("v_and_b32 v7, 15, v1")
    I("v_lshl_add_u32 v5, v7, 4, v5")
    for _ in range(WBAR): I("s_barrier")
    I("s_waitcnt vmcnt(0)")
    for dd in range(8):
        ob = 40 + 4*dd
        sel = 20 + (dd & 1)
        for q in range(4):
            I(f"v_perm_b32 v{ob+q}, v{8+4*(2*q+1)+dd//2}, v{8+4*(2*q)+dd//2}, s{sel}")
    for dd in range(8):
        ob = 40 + 4*dd
        I(f"buffer_store_dwordx4 v[{ob}:{ob+3}], v5, s[12:15], 0 offen offset:{16*dd}")
    if WBAR:
        I("s_endpgm")
        e("M_exitb:")
        for _ in range(WBAR): I("s_barrier")
    e("M_exitw:")
    I("s_waitcnt vmcnt(0)")
    e("M_exit:")
    I("s_endpgm")
    if FUSE: kernel_desc("mid_kernel", 256, 102)
    else: kernel_desc("mid_kernel", 256 if any(f.startswith("cla") for f in FLAGS) else (240 if BIG else 208), 80)

def gen_k3():
    kernel_header("fin_kernel")
    I(f"s_cmp_ge_u32 s2, {64 if 'fin64' in FLAGS else 256}")
    I("s_cbranch_scc1 F_exit")
    I("s_load_dwordx2 s[6:7], s[0:1], 96")
    I("s_load_dwordx2 s[4:5], s[0:1], 0")
    I("s_load_dwordx2 s[30:31], s[0:1], 80")
    stamp()
    I("v_lshrrev_b32 v1, 6, v0")
    I("s_nop 0")
    I("v_readfirstlane_b32 s3, v1")
    I("s_waitcnt lgkmcnt(0)")
    srd(8, 6, SZ_W, WS_WDT)
    srd(12, 6, SZ_H, WS_H)
    srd(16, 6, SZ_SD, WS_YT)
    if FUSE: srd(20, 6, S*8, WS_ST)
    else: srd(20, 6, SZ_SD, WS_XN)
    srd(24, 4, SZ_SD)
    srd(32, 30, SZ_SD)
    if "fin2d" in FLAGS:
        I("s_and_b32 s36, s2, 1")
        I("s_lshl_b32 s36, s36, 2")
        I("s_bfe_u32 s37, s2, 0x20003")
        I("s_add_u32 s36, s36, s37")
        I("s_mul_i32 s36, s36, 80")
        I("s_bfe_u32 s37, s2, 0x20001")
        I("s_lshl_b32 s37, s37, 3")
        I("s_lshr_b32 s38, s2, 5")
        I("s_add_u32 s37, s37, s38")
        I("s_lshl_b32 s37, s37, 6")
    elif "finswap" in FLAGS:
        I("s_lshr_b32 s36, s2, 5")
        I("s_mul_i32 s36, s36, 80")
        I("s_and_b32 s37, s2, 31")
        I("s_lshl_b32 s37, s37, 6")
    else:
        I("s_and_b32 s36, s2, 7")
        I("s_mul_i32 s36, s36, 80")
        I("s_lshr_b32 s37, s2, 3")
        I("s_lshl_b32 s37, s37, 6")
    I("s_mul_i32 s38, s3, 14")
    I("s_cmp_eq_u32 s3, 3")
    I("s_cselect_b32 s39, 1, 0")
    I("s_sub_u32 s38, s38, s39")
    I("s_cmp_ge_u32 s3, 2")
    I("s_cselect_b32 s39, 13, 14")
    I("s_add_u32 s47, s38, s39")
    I("s_lshl_b32 s45, s38, 10")
    I("s_lshl_b32 s47, s47, 10")
    if "rot" in FLAGS:
        I("s_bfe_u32 s46, s2, 0x20003")
        I("s_lshl_b32 s46, s46, 2")
        I("s_lshr_b32 s44, s2, 5")
        I("s_lshl_b32 s44, s44, 1")
        I("s_add_u32 s46, s46, s44")
        I("s_cmp_ge_u32 s46, 13")
        I("s_cselect_b32 s44, 13, 0")
        I("s_sub_u32 s46, s46, s44")
        I("s_cmp_ge_u32 s46, 13")
        I("s_cselect_b32 s44, 13, 0")
        I("s_sub_u32 s46, s46, s44")
        I("s_lshl_b32 s46, s46, 10")
        I("s_add_u32 s46, s46, s45")
    else:
        I("s_mov_b32 s46, s45")
    I("s_mov_b32 s44, 0")
    I("v_and_b32 v1, 15, v0")
    I("v_bfe_u32 v2, v0, 4, 2")
    I("v_and_b32 v12, 63, v0")
    if "pf" in FLAGS:
        I("s_lshr_b32 s52, s2, 3")
        I("s_lshl_b32 s52, s52, 2")
        I("s_add_u32 s52, s52, s3")
        I("s_and_b32 s53, s2, 1")
        I("s_mul_i32 s53, s53, 1105920")
        I("s_mul_i32 s54, s52, 8640")
        I("s_add_u32 s53, s53, s54")
        I("v_lshlrev_b32 v240, 6, v12")
        I("buffer_load_dword v241, v240, s[8:11], s53 offen")
        I("s_add_u32 s53, s53, 4096")
        I("buffer_load_dword v242, v240, s[8:11], s53 offen")
        I("s_add_u32 s53, s53, 544")
        I("buffer_load_dword v243, v240, s[8:11], s53 offen")
        I("s_bfe_u32 s53, s2, 0x20001")
        I("s_mul_i32 s53, s53, 1769472")
        I("s_mul_i32 s54, s52, 13824")
        I("s_add_u32 s53, s53, s54")
        for i, inc in enumerate((4096, 4096, 1536, 0)):
            I(f"buffer_load_dword v{244+i}, v240, s[12:15], s53 offen")
            if inc: I(f"s_add_u32 s53, s53, {inc}")
    I("s_lshr_b32 s52, s36, 4")
    I("s_mul_i32 s52, s52, 55296")
    I("v_lshl_add_u32 v3, v12, 4, s52")
    for jd in range(1, 5):
        I(f"v_add_u32 v{3+jd}, {jd*55296}, v3")
    I("s_lshr_b32 s52, s37, 4")
    I("s_mul_i32 s52, s52, 55296")
    I("v_lshl_add_u32 v8, v12, 4, s52")
    for js in range(1, 4):
        I(f"v_add_u32 v{8+js}, {js*55296}, v8")
    def acc(jd, js): return (js*5 + jd)*4
    FRB = 16
    NB = 5
    def ld(buf):
        f = FRB + buf*36
        I("s_cmp_lt_u32 s44, s39")
        I("s_cselect_b32 s48, s46, 0x40000000")
        for jd in range(5):
            r = f + 4*jd
            I(f"buffer_load_dwordx4 v[{r}:{r+3}], v{3+jd}, s[8:11], s48 offen{CP}")
        for js in range(4):
            r = f + 20 + 4*js
            I(f"buffer_load_dwordx4 v[{r}:{r+3}], v{8+js}, s[12:15], s48 offen{CP}")
        I("s_add_u32 s46, s46, 1024")
        I("s_cmp_ge_u32 s46, s47")
        I("s_cselect_b32 s46, s45, s46")
        I("s_add_u32 s44, s44, 1")
    def mm(buf):
        f = FRB + buf*36
        for js in range(4):
            for jd in range(5):
                c = acc(jd, js)
                a = f + 4*jd; b = f + 20 + 4*js
                I(f"v_mfma_f32_16x16x32_bf16 a[{c}:{c+3}], v[{a}:{a+3}], v[{b}:{b+3}], a[{c}:{c+3}]")
    I("s_lshr_b32 s41, s3, 1")
    I("s_lshl_b32 s41, s41, 5")
    I("s_add_u32 s41, s41, s37")
    I("s_lshl_b32 s41, s41, 1")
    I("v_add_u32 v14, s36, v1")
    I("v_lshlrev_b32 v14, 12, v14")
    I("v_lshl_add_u32 v14, v2, 4, v14")
    I("v_add_u32 v14, s41, v14")
    YF = 196
    for jd in range(5):
        I(f"v_add_u32 v15, {jd*16*4096}, v14")
        I(f"buffer_load_dwordx4 v[{YF+4*jd}:{YF+4*jd+3}], v15, s[16:19], 0 offen")
    I("s_lshl_b32 s42, s3, 4")
    I("s_add_u32 s42, s42, s37")
    I("v_add_u32 v15, s42, v1")
    I("v_mul_u32_u24 v15, 0x500, v15")
    I("v_lshl_add_u32 v15, v2, 3, v15")
    I("s_lshl_b32 s43, s36, 1")
    I("v_add_u32 v15, s43, v15")
    XX = 216
    I("s_lshr_b32 s50, s42, 4")
    I("s_mul_i32 s50, s50, 20480")
    I("v_lshrrev_b32 v14, 1, v2")
    I("v_lshlrev_b32 v14, 8, v14")
    I("v_lshl_add_u32 v14, v1, 4, v14")
    I("v_and_b32 v13, 1, v2")
    I("v_lshl_add_u32 v14, v13, 3, v14")
    I("v_add_u32 v14, s50, v14")
    if FUSE:
        I("v_add_u32 v14, s42, v1")
        I("v_lshlrev_b32 v14, 3, v14")
        I(f"buffer_load_dwordx2 v[{XX+10}:{XX+11}], v14, s[20:23], 0 offen")
    for jd in range(5):
        I(f"buffer_load_dwordx2 v[{XX+2*jd}:{XX+2*jd+1}], v15, s[24:27], 0 offen offset:{32*jd}")
        if FUSE: continue
        I(f"s_add_u32 s50, s36, {16*jd}")
        I("s_lshr_b32 s51, s50, 5")
        I("s_lshl_b32 s51, s51, 10")
        I("s_and_b32 s50, s50, 16")
        I("s_lshl_b32 s50, s50, 5")
        I("s_add_u32 s51, s51, s50")
        I(f"buffer_load_dwordx2 v[{XX+10+2*jd}:{XX+11+2*jd}], v14, s[20:23], s51 offen")
    NB2 = NB
    for f_ in FLAGS:
        if f_.startswith("nb"): NB2 = int(f_[2:])
    def breg(buf, i):
        if buf < 5: return "v", FRB + buf*36 + 4*i
        return "a", 80 + (buf-5)*36 + 4*i
    def ld2(buf):
        for jd in range(5):
            t, r = breg(buf, jd)
            I(f"buffer_load_dwordx4 {t}[{r}:{r+3}], v{3+jd}, s[8:11], s46 offen{CP}")
        for js in range(4):
            t, r = breg(buf, 5+js)
            I(f"buffer_load_dwordx4 {t}[{r}:{r+3}], v{8+js}, s[12:15], s46 offen{CP}")
        I("s_add_u32 s46, s46, 1024")
    def mm2(buf):
        for js in range(4):
            for jd in range(5):
                c = acc(jd, js)
                t, a = breg(buf, jd); t, b = breg(buf, 5+js)
                I(f"v_mfma_f32_16x16x32_bf16 a[{c}:{c+3}], {t}[{a}:{a+3}], {t}[{b}:{b+3}], a[{c}:{c+3}]")
    for b in range(NB2-1):
        ld2(b)
    for j in range(80):
        I(f"v_accvgpr_write_b32 a{j}, 0")
    HOIST = "hoist" in FLAGS
    if HOIST:
        IDB2, TQ, TYQ = 244, 248, 236
        I("s_and_b32 s44, s3, 1")
        I("s_lshl_b32 s44, s44, 4")
        I(f"v_add_u32 v{TQ}, s44, v1")
        I(f"v_lshrrev_b32 v{TQ+1}, 3, v{TQ}")
        I(f"v_cmp_eq_u32 vcc, v{TQ+1}, v2")
        I(f"v_and_b32 v{TQ+1}, 7, v{TQ}")
        I(f"v_and_b32 v{TQ+2}, 1, v{TQ+1}")
        I(f"v_lshlrev_b32 v{TQ+2}, 4, v{TQ+2}")
        I(f"v_mov_b32 v{TQ+3}, 0x3f80")
        I(f"v_lshlrev_b32 v{TQ+3}, v{TQ+2}, v{TQ+3}")
        I(f"v_lshrrev_b32 v{TQ+1}, 1, v{TQ+1}")
        I(f"v_cndmask_b32 v{TQ+3}, 0, v{TQ+3}, vcc")
        for j in range(4):
            I(f"v_cmp_eq_u32 vcc, {j}, v{TQ+1}")
            I("s_nop 1")
            I(f"v_cndmask_b32 v{IDB2+j}, 0, v{TQ+3}, vcc")
        I(f"s_waitcnt vmcnt({9*(NB2-1)})")
        I("s_nop 1")
        for jd in range(5):
            ty = TYQ + (jd % 2)*4; t = TQ + (jd % 2)*4
            x0 = XX + 2*jd; n0 = XX + 10 + 2*jd
            I(f"v_mfma_f32_16x16x32_bf16 v[{ty}:{ty+3}], v[{YF+4*jd}:{YF+4*jd+3}], v[{IDB2}:{IDB2+3}], 0")
            if FUSE:
                lo16(t, x0); hi16(t+1, x0); lo16(t+2, x0+1); hi16(t+3, x0+1)
                for r in range(4): I(f"v_add_f32 v{t+r}, v{t+r}, v{XX+11}")
                for r in range(4): I(f"v_cvt_pk_bf16_f32 v{t+r}, 0, v{t+r}")
                for r in range(4): I(f"v_mul_f32 v{t+r}, v{t+r}, v{XX+10}")
                for r in range(4): I(f"v_cvt_pk_bf16_f32 v{t+r}, 0, v{t+r}")
            else:
                lo16(t, n0); hi16(t+1, n0); lo16(t+2, n0+1); hi16(t+3, n0+1)
            I("s_nop 7")
            I("s_nop 3")
            for r in range(4):
                I(f"v_mul_f32 v{t+r}, v{t+r}, v{ty+r}")
            I(f"v_cvt_pk_bf16_f32 v{ty}, v{t}, v{t+1}")
            I(f"v_cvt_pk_bf16_f32 v{ty+1}, v{t+2}, v{t+3}")
            lo16(t, ty); hi16(t+1, ty); lo16(t+2, ty+1); hi16(t+3, ty+1)
            lo16(ty, x0); hi16(ty+1, x0); lo16(ty+2, x0+1); hi16(ty+3, x0+1)
            for r in range(4):
                I(f"v_add_f32 v{t+r}, v{t+r}, v{ty+r}")
            I(f"v_cvt_pk_bf16_f32 v{x0}, v{t}, v{t+1}")
            I(f"v_cvt_pk_bf16_f32 v{x0+1}, v{t+2}, v{t+3}")
    stamp()
    for k in range(14):
        nb = k + NB2 - 1
        if nb <= 12:
            ld2(nb % NB2)
        elif nb == 13:
            I("s_cmp_ge_u32 s3, 2")
            I("s_cbranch_scc1 F_skip13")
            ld2(nb % NB2)
            e("F_skip13:")
        if k == 13:
            I("s_cmp_ge_u32 s3, 2")
            I("s_cbranch_scc1 F_done")
        rem = max(0, min(12, nb) - k)
        if k < 13: I(f"s_waitcnt vmcnt({9*rem})")
        mm2(k % NB2)
    e("F_done:")
    stamp()
    I("s_mul_i32 s40, s3, 20480")
    I("v_lshlrev_b32 v13, 4, v12")
    I("v_add_u32 v13, s40, v13")
    I("s_nop 7")
    for js in range(4):
        for jd in range(5):
            c = acc(jd, js)
            I(f"ds_write_b128 v13, a[{c}:{c+3}] offset:{(js*5+jd)*1024}")
    I("s_waitcnt lgkmcnt(0)")
    I("s_barrier")
    I("s_mul_i32 s40, s3, 5120")
    I("v_lshlrev_b32 v12, 4, v12")
    I("v_add_u32 v13, s40, v12")
    I("v_add_u32 v12, 40960, v13")
    R = 96
    for src in range(4):
        for jd in range(5):
            r = R + (src*5 + jd)*4
            I(f"ds_read_b128 v[{r}:{r+3}], v{13 if src < 2 else 12} offset:{(src%2)*20480 + jd*1024}")
    if HOIST:
        I("s_waitcnt lgkmcnt(0)")
        for jd in range(5):
            r0 = R + jd*4
            I(f"v_add_f32 v{r0}, v{r0}, v{R+(5+jd)*4}")
            I(f"v_add_f32 v{r0+1}, v{r0+1}, v{R+(5+jd)*4+1}")
            I(f"v_add_f32 v{r0+2}, v{r0+2}, v{R+(5+jd)*4+2}")
            I(f"v_add_f32 v{r0+3}, v{r0+3}, v{R+(5+jd)*4+3}")
            for src in range(2, 4):
                r = R + (src*5 + jd)*4
                for j in range(4):
                    I(f"v_add_f32 v{r0+j}, v{r0+j}, v{r+j}")
            b = r0; t = 16 + (jd % 2)*16; x0 = XX + 2*jd
            I(f"v_cvt_pk_bf16_f32 v{t+4}, v{b}, v{b+1}")
            I(f"v_cvt_pk_bf16_f32 v{t+5}, v{b+2}, v{b+3}")
            lo16(t, x0); hi16(t+1, x0); lo16(t+2, x0+1); hi16(t+3, x0+1)
            lo16(t+6, t+4); hi16(t+7, t+4); lo16(t+8, t+5); hi16(t+9, t+5)
            for r in range(4):
                I(f"v_add_f32 v{t+r}, v{t+r}, v{t+6+r}")
            I(f"v_cvt_pk_bf16_f32 v{t+10}, v{t}, v{t+1}")
            I(f"v_cvt_pk_bf16_f32 v{t+11}, v{t+2}, v{t+3}")
            I(f"buffer_store_dwordx2 v[{t+10}:{t+11}], v15, s[32:35], 0 offen offset:{32*jd}")
    else:
        IDB = 60
        I("s_and_b32 s44, s3, 1")
        I("s_lshl_b32 s44, s44, 4")
        I("v_add_u32 v64, s44, v1")
        I("v_lshrrev_b32 v65, 3, v64")
        I("v_cmp_eq_u32 vcc, v65, v2")
        I("v_and_b32 v65, 7, v64")
        I("v_and_b32 v66, 1, v65")
        I("v_lshlrev_b32 v66, 4, v66")
        I("v_mov_b32 v67, 0x3f80")
        I("v_lshlrev_b32 v67, v66, v67")
        I("v_lshrrev_b32 v65, 1, v65")
        I("v_cndmask_b32 v67, 0, v67, vcc")
        for j in range(4):
            I(f"v_cmp_eq_u32 vcc, {j}, v65")
            I("s_nop 1")
            I(f"v_cndmask_b32 v{IDB+j}, 0, v67, vcc")
        TY = 64
        I("s_nop 1")
        for jd in range(5):
            I(f"v_mfma_f32_16x16x32_bf16 v[{TY+4*jd}:{TY+4*jd+3}], v[{YF+4*jd}:{YF+4*jd+3}], v[{IDB}:{IDB+3}], 0")
        I("s_waitcnt lgkmcnt(0)")
        for jd in range(5):
            r0 = R + jd*4
            for src in range(1, 4):
                r = R + (src*5 + jd)*4
                for j in range(4):
                    I(f"v_add_f32 v{r0+j}, v{r0+j}, v{r+j}")
        I("s_waitcnt vmcnt(0)")
        for jd in range(5):
            b = R + jd*4
            ty = TY + 4*jd
            t = 180 + (jd % 2)*16
            x0 = XX + 2*jd; n0 = XX + 10 + 2*jd
            lo16(t, n0); hi16(t+1, n0); lo16(t+2, n0+1); hi16(t+3, n0+1)
            for r in range(4):
                I(f"v_mul_f32 v{t+r}, v{t+r}, v{ty+r}")
            I(f"v_cvt_pk_bf16_f32 v{t+4}, v{t}, v{t+1}")
            I(f"v_cvt_pk_bf16_f32 v{t+5}, v{t+2}, v{t+3}")
            lo16(t, t+4); hi16(t+1, t+4); lo16(t+2, t+5); hi16(t+3, t+5)
            lo16(t+6, x0); hi16(t+7, x0); lo16(t+8, x0+1); hi16(t+9, x0+1)
            for r in range(4):
                I(f"v_add_f32 v{t+r}, v{t+r}, v{t+6+r}")
            I(f"v_cvt_pk_bf16_f32 v{t+4}, v{t}, v{t+1}")
            I(f"v_cvt_pk_bf16_f32 v{t+5}, v{t+2}, v{t+3}")
            lo16(t, t+4); hi16(t+1, t+4); lo16(t+2, t+5); hi16(t+3, t+5)
            I(f"v_cvt_pk_bf16_f32 v{t+4}, v{b}, v{b+1}")
            I(f"v_cvt_pk_bf16_f32 v{t+5}, v{b+2}, v{b+3}")
            lo16(t+6, t+4); hi16(t+7, t+4); lo16(t+8, t+5); hi16(t+9, t+5)
            for r in range(4):
                I(f"v_add_f32 v{t+r}, v{t+r}, v{t+6+r}")
            I(f"v_cvt_pk_bf16_f32 v{t+10}, v{t}, v{t+1}")
            I(f"v_cvt_pk_bf16_f32 v{t+11}, v{t+2}, v{t+3}")
            I(f"buffer_store_dwordx2 v[{t+10}:{t+11}], v15, s[32:35], 0 offen offset:{32*jd}")
    I("s_waitcnt vmcnt(0)")
    stamp()
    stamp_dump(9)
    e("F_exit:")
    I("s_endpgm")
    kernel_desc("fin_kernel", 256+80+36*max(0, NB2-5), 80, accum=256)

def main():
    hdr = open("parallel_sum__ssm_conv_h3__glu_gated_bilinear__prompt.s.ref").read().splitlines()
    for line in hdr:
        if line.startswith("; @launch"):
            break
        if line.startswith(";"):
            e(line)
    if not FUSE: e(f"; @launch kernel=prep_kernel grid=({N_LN+N_KV+N_PF},1,1) block=(256,1,1) lds=0")
    if BIG:
        e("; @launch kernel=mid_kernel grid=(256,1,1) block=(512,1,1) lds=163840")
    else:
        e(f"; @launch kernel=mid_kernel grid=({N_G1+N_CV},1,1) block=(256,1,1) lds={LDS2}")
    e(f"; @launch kernel=fin_kernel grid=(256,1,1) block=(256,1,1) lds=81920")
    e('.amdgcn_target "amdgcn-amd-amdhsa--gfx950"')
    if not FUSE: gen_prep()
    gen_k2()
    gen_k3()
    dst = sys.argv[1] if len(sys.argv) > 1 else "parallel_sum__ssm_conv_h3__glu_gated_bilinear__prompt.s"
    open(dst, "w").write("\n".join(out) + "\n")

main()
```

```python
import sys

import os
FLAGS = os.environ.get("GENFLAGS", "").split(",")
CP = " nt" if "cpnt" in FLAGS else (" sc1" if "cpsc1" in FLAGS else (" sc0 sc1" if "cpsc01" in FLAGS else ""))
S, D, F = 2048, 640, 1728
WS_XN  = 0x0
WS_KVR = 0x280000
WS_WDT = 0x500000
WS_H   = 0x800000
WS_YT  = 0x1000000
WS_ST  = 0x1400000
FUSE = "fuse" in FLAGS
SZ_SD = S * D * 2
SZ_W  = D * F * 2
SZ_H  = S * F * 2

out = []
def e(s=""):
    out.append(s)
SP = " nt" if "stnt" in FLAGS else (" sc0 sc1" if "stsc" in FLAGS else (" sc1" if "stsc1" in FLAGS else (" sc0 sc1 nt" if "stall" in FLAGS else "")))
def I(s):
    if s.startswith("buffer_store") and "s[56:59]" not in s: s += SP
    out.append("    " + s)

def srd(base, ptr, size, off=0):
    if off:
        I(f"s_add_u32 s{base}, s{ptr}, {off:#x}")
        I(f"s_addc_u32 s{base+1}, s{ptr+1}, 0")
    else:
        I(f"s_mov_b32 s{base}, s{ptr}")
        I(f"s_mov_b32 s{base+1}, s{ptr+1}")
    I(f"s_mov_b32 s{base+2}, {size:#x}")
    I(f"s_mov_b32 s{base+3}, 0x00020000")

def lo16(dst, src): I(f"v_lshlrev_b32 v{dst}, 16, v{src}")
def hi16(dst, src): I(f"v_and_b32 v{dst}, 0xffff0000, v{src}")

STAMP = "stamp" in FLAGS
nst = [0]
def stamp():
    if STAMP:
        i = nst[0]; nst[0] += 1
        I(f"s_memtime s[{60+2*i}:{61+2*i}]")
def stamp_dump(wg):
    if not STAMP: return
    n = nst[0]; nst[0] = 0
    I("s_waitcnt lgkmcnt(0) vmcnt(0)")
    I(f"s_cmp_lg_u32 s2, {wg}")
    I(f"s_cbranch_scc1 SD_skip{wg}")
    I("s_cmp_lg_u32 s3, 0")
    I(f"s_cbranch_scc1 SD_skip{wg}")
    I("s_load_dwordx2 s[56:57], s[0:1], 88")
    I("s_waitcnt lgkmcnt(0)")
    I("s_mov_b32 s58, 256")
    I("s_mov_b32 s59, 0x00020000")
    I("v_mov_b32 v1, 0")
    for i in range(n):
        I(f"s_sub_u32 s{61+2*i}, s{60+2*i}, s60")
        I(f"v_mov_b32 v2, s{61+2*i}")
        I(f"buffer_store_dword v2, v1, s[56:59], 0 offen offset:{4*i + (64 if wg == 255 else 0)}")
    I("s_waitcnt vmcnt(0)")
    e(f"SD_skip{wg}:")

WGT = "wgt" in FLAGS
def wgt_start():
    if WGT: I("s_memrealtime s[76:77]")
wgtn = [0]
def wgt_end(kidx):
    if not WGT: return
    n = wgtn[0]; wgtn[0] += 1
    I("s_waitcnt vmcnt(0) lgkmcnt(0)")
    I("s_memrealtime s[78:79]")
    I("s_load_dwordx2 s[72:73], s[0:1], 96")
    I("v_lshrrev_b32 v1, 6, v0")
    I("s_nop 0")
    I("v_readfirstlane_b32 s70, v1")
    I("s_lshl_b32 s71, s2, 3")
    I("s_add_u32 s70, s70, s71")
    I("s_lshl_b32 s70, s70, 3")
    I("s_waitcnt lgkmcnt(0)")
    I(f"s_add_u32 s72, s72, {0x1800000 + kidx*0x10000}")
    I("s_addc_u32 s73, s73, 0")
    I("s_mov_b32 s74, 0x10000")
    I("s_mov_b32 s75, 0x00020000")
    I("v_mov_b32 v2, s76")
    I("v_mov_b32 v3, s78")
    I("v_mov_b32 v1, s70")
    I("buffer_store_dwordx2 v[2:3], v1, s[72:75], 0 offen")
    I("s_waitcnt vmcnt(0)")

def kernel_header(name):
    e(".text")
    e(f".globl {name}")
    e(".p2align 8")
    e(f".type {name},@function")
    e(f"{name}:")

def kernel_desc(name, vgpr, sgpr, accum=None):
    if accum is None:
        accum = (vgpr + 3) // 4 * 4
    e('.section .rodata,"a"')
    e(".p2align 6")
    e(f".amdhsa_kernel {name}")
    e(f"  .amdhsa_next_free_vgpr {vgpr}")
    e(f"  .amdhsa_next_free_sgpr {sgpr}")
    e(f"  .amdhsa_accum_offset {accum}")
    e("  .amdhsa_group_segment_fixed_size 0")
    e("  .amdhsa_kernarg_size 104")
    e("  .amdhsa_user_sgpr_count 2")
    e("  .amdhsa_user_sgpr_kernarg_segment_ptr 1")
    e("  .amdhsa_system_sgpr_workgroup_id_x 1")
    e(".end_amdhsa_kernel")

N_LN, N_KV = 128, 160
N_PF = 0
if "pfw" in FLAGS: N_PF = 4*36
if "pfw2" in FLAGS: N_PF = 2*36
def gen_prep():
    kernel_header("prep_kernel")
    I(f"s_cmp_ge_u32 s2, {N_LN+N_KV+N_PF}")
    I("s_cbranch_scc1 P_exit")
    if N_PF:
        I(f"s_cmp_ge_u32 s2, {N_LN+N_KV}")
        I("s_cbranch_scc1 P_pf")
    I("s_load_dwordx2 s[6:7], s[0:1], 96")
    I(f"s_cmp_lt_u32 s2, {N_KV}")
    I("s_cbranch_scc1 P_kv")
    if "noln" in FLAGS: I("s_endpgm")
    I("s_load_dwordx2 s[4:5], s[0:1], 0")
    I("v_lshrrev_b32 v1, 4, v0")
    I(f"s_sub_u32 s3, s2, {N_KV}")
    I("s_lshl_b32 s3, s3, 4")
    I("v_add_u32 v1, s3, v1")
    I("v_mul_u32_u24 v2, 0x500, v1")
    I("v_and_b32 v3, 15, v0")
    I("v_lshl_add_u32 v2, v3, 4, v2")
    I("s_waitcnt lgkmcnt(0)")
    srd(8, 4, SZ_SD)
    srd(12, 6, SZ_SD, WS_XN)
    for j in range(5):
        I(f"buffer_load_dwordx4 v[{4+4*j}:{7+4*j}], v2, s[8:11], 0 offen offset:{256*j}")
    I("v_lshrrev_b32 v2, 4, v1")
    I("v_mul_u32_u24 v2, 20480, v2")
    I("v_lshrrev_b32 v64, 2, v3")
    I("v_lshl_add_u32 v2, v64, 10, v2")
    I("v_and_b32 v64, 3, v3")
    I("v_lshl_add_u32 v2, v64, 8, v2")
    I("v_and_b32 v64, 15, v1")
    I("v_lshl_add_u32 v2, v64, 4, v2")
    I("s_waitcnt vmcnt(0)")
    X = 24
    for j in range(20):
        lo16(X + 2*j, 4 + j)
        hi16(X + 2*j + 1, 4 + j)
    T = 64
    for j in range(20):
        I(f"v_add_f32 v{T+j}, v{X+2*j}, v{X+2*j+1}")
    def tree(base, n):
        while n > 1:
            h = n // 2
            for j in range(h):
                I(f"v_add_f32 v{base+j}, v{base+j}, v{base+n-1-j}")
            n = n - h
    tree(T, 20)
    def dpp_reduce(r, tmp):
        for sh in (8, 4, 2, 1):
            I("s_nop 1")
            I(f"v_add_f32_dpp v{tmp}, v{r}, v{r} row_ror:{sh} row_mask:0xf bank_mask:0xf")
            I(f"v_mov_b32 v{r}, v{tmp}")
    dpp_reduce(T, T+1)
    I(f"v_mul_f32 v{T}, {1.0/640.0!r}, v{T}")
    for j in range(40):
        I(f"v_sub_f32 v{T+2+j}, v{X+j}, v{T}")
    for j in range(40):
        I(f"v_mul_f32 v{T+2+j}, v{T+2+j}, v{T+2+j}")
    tree(T+2, 40)
    dpp_reduce(T+2, T+1)
    I(f"v_mul_f32 v{T+2}, {1.0/640.0!r}, v{T+2}")
    I(f"v_cvt_pk_bf16_f32 v{T}, v{T}, v{T+2}")
    hi16(T+2, T)
    lo16(T, T)
    I(f"v_add_f32 v{T+2}, {1e-5!r}, v{T+2}")
    I(f"v_cvt_pk_bf16_f32 v{T+2}, v{T+2}, v{T+2}")
    lo16(T+2, T+2)
    I(f"v_sqrt_f32 v{T+2}, v{T+2}")
    I("s_nop 0")
    I(f"v_cvt_pk_bf16_f32 v{T+2}, v{T+2}, v{T+2}")
    lo16(T+2, T+2)
    I(f"v_rcp_f32 v{T+3}, v{T+2}")
    I("s_nop 0")
    for j in range(20):
        a, b = X + 2*j, X + 2*j + 1
        I(f"v_sub_f32 v{a}, v{a}, v{T}")
        I(f"v_sub_f32 v{b}, v{b}, v{T}")
        I(f"v_cvt_pk_bf16_f32 v{T+4}, v{a}, v{b}")
        lo16(a, T+4)
        hi16(b, T+4)
        for r in (a, b):
            I(f"v_mul_f32 v{T+5}, v{r}, v{T+3}")
            I(f"v_fma_f32 v{T+6}, -v{T+5}, v{T+2}, v{r}")
            I(f"v_fma_f32 v{r}, v{T+6}, v{T+3}, v{T+5}")
        I(f"v_cvt_pk_bf16_f32 v{4+j}, v{a}, v{b}")
        if j % 4 == 3:
            jj = j // 4
            I(f"s_mov_b32 s16, {4096*jj}")
            I(f"buffer_store_dwordx4 v[{4+4*jj}:{7+4*jj}], v2, s[12:15], s16 offen")
    I("s_endpgm")
    e("P_kv:")
    if "nokv" in FLAGS: I("s_endpgm")
    I("s_load_dwordx4 s[16:19], s[0:1], 8")
    I("s_load_dwordx2 s[4:5], s[0:1], 24")
    I("s_mul_i32 s28, s2, 0xCCCD")
    I("s_lshr_b32 s28, s28, 19")
    I("s_mul_i32 s29, s28, 10")
    I("s_sub_u32 s29, s2, s29")
    I("v_and_b32 v1, 7, v0")
    I("v_lshrrev_b32 v2, 3, v0")
    I("s_lshl_b32 s30, s29, 6")
    I("v_lshl_add_u32 v1, v1, 3, s30")
    I("s_lshl_b32 s31, s28, 7")
    I("v_lshl_add_u32 v2, v2, 2, s31")
    I("v_mul_u32_u24 v3, 0x500, v2")
    I("v_lshl_add_u32 v3, v1, 1, v3")
    for i in range(3):
        I(f"v_subrev_u32 v{5+i}, {(3-i)*1280:#x}, v3")
    I("v_lshlrev_b32 v8, 3, v1")
    I("s_waitcnt lgkmcnt(0)")
    srd(8, 16, SZ_SD)
    srd(12, 18, SZ_SD)
    srd(20, 4, D*4*2)
    srd(24, 6, SZ_SD, WS_KVR)
    KR = 16
    for i in range(3):
        I(f"buffer_load_dwordx4 v[{KR+4*i}:{KR+4*i+3}], v{5+i}, s[8:11], 0 offen")
    for i in range(4):
        I(f"buffer_load_dwordx4 v[{KR+4*(i+3)}:{KR+4*(i+3)+3}], v3, s[8:11], 0 offen offset:{i*1280}")
    VR = KR + 28
    for i in range(4):
        I(f"buffer_load_dwordx4 v[{VR+4*i}:{VR+4*i+3}], v3, s[12:15], 0 offen offset:{i*1280}")
    SK = VR + 16
    for i in range(4):
        I(f"buffer_load_dwordx4 v[{SK+4*i}:{SK+4*i+3}], v8, s[20:23], 0 offen offset:{16*i}")
    I("v_lshlrev_b32 v9, 12, v1")
    I(f"v_sub_u32 v10, {S-4}, v2")
    I("v_lshl_add_u32 v9, v10, 1, v9")
    I("s_waitcnt vmcnt(0)")
    KF = 76
    VF = 83
    SF = 87
    TM = 92
    OB = 104
    for dd in range(8):
        ex = lo16 if dd % 2 == 0 else hi16
        for i in range(7):
            ex(KF + i, KR + 4*i + dd//2)
        for i in range(4):
            ex(VF + i, VR + 4*i + dd//2)
        lo16(SF+0, SK + 2*dd); hi16(SF+1, SK + 2*dd)
        lo16(SF+2, SK + 2*dd + 1); hi16(SF+3, SK + 2*dd + 1)
        ob = OB + 2*(dd % 4)
        for q in range(2):
            sa, sb = 3 - 2*q, 2 - 2*q
            t = TM
            I(f"v_mul_f32 v{t}, v{KF+sa}, v{SF+3}")
            I(f"v_mul_f32 v{t+1}, v{KF+sb}, v{SF+3}")
            I(f"v_mul_f32 v{t+2}, v{KF+sa+1}, v{SF+2}")
            I(f"v_mul_f32 v{t+3}, v{KF+sb+1}, v{SF+2}")
            I(f"v_mul_f32 v{t+4}, v{KF+sa+2}, v{SF+1}")
            I(f"v_mul_f32 v{t+5}, v{KF+sb+2}, v{SF+1}")
            I(f"v_mul_f32 v{t+6}, v{KF+sa+3}, v{SF+0}")
            I(f"v_mul_f32 v{t+7}, v{KF+sb+3}, v{SF+0}")
            for p in range(4):
                I(f"v_cvt_pk_bf16_f32 v{t+8+p}, v{t+2*p}, v{t+2*p+1}")
            for p in range(4):
                lo16(t+2*p, t+8+p); hi16(t+2*p+1, t+8+p)
            for step in (1, 2, 3):
                I(f"v_add_f32 v{t}, v{t}, v{t+2*step}")
                I(f"v_add_f32 v{t+1}, v{t+1}, v{t+2*step+1}")
                I(f"v_cvt_pk_bf16_f32 v{t+8}, v{t}, v{t+1}")
                lo16(t, t+8); hi16(t+1, t+8)
            I(f"v_mul_f32 v{t}, v{t}, v{VF+sa}")
            I(f"v_mul_f32 v{t+1}, v{t+1}, v{VF+sb}")
            I(f"v_cvt_pk_bf16_f32 v{ob+q}, v{t}, v{t+1}")
        I(f"s_mov_b32 s16, {4096*dd}")
        I(f"buffer_store_dwordx2 v[{ob}:{ob+1}], v9, s[24:27], s16 offen")
    if N_PF:
        I("s_endpgm")
        e("P_pf:")
        I(f"s_sub_u32 s3, s2, {N_LN+N_KV}")
        I("s_mul_i32 s4, s3, 1821")
        I("s_lshr_b32 s4, s4, 16")
        I("s_mul_i32 s5, s4, 36")
        I("s_sub_u32 s5, s3, s5")
        I("s_lshl_b32 s6, s4, 3")
        I("s_add_u32 s6, s6, 56")
        I("s_cmp_eq_u32 s4, 3")
        I("s_cselect_b32 s6, 32, s6")
        I("s_load_dwordx2 s[8:9], s[0:1], s6")
        I(f"s_mov_b32 s10, {SZ_W}")
        I(f"s_cselect_b32 s10, {SZ_SD}, s10")
        I("s_mov_b32 s11, 0x00020000")
        I("s_mov_b32 s7, 65536")
        I("s_cselect_b32 s7, 73728, s7")
        I("s_mul_i32 s5, s5, s7")
        I("v_lshlrev_b32 v1, 4, v0")
        I("s_waitcnt lgkmcnt(0)")
        for i in range(18):
            I(f"buffer_load_dwordx4 v[{4+4*i}:{7+4*i}], v1, s[8:11], s5 offen")
            I("s_add_u32 s5, s5, 4096")
        I("s_waitcnt vmcnt(0)")
    e("P_exit:")
    I("s_endpgm")
    kernel_desc("prep_kernel", 112, 40)

BF = 112
NSLOT = 5
SLOT = 16384
LDS2 = NSLOT * SLOT
N_G1, N_CV = 256, 256

class DSQ:
    def __init__(self): self.q = []
    def push(self, tag): self.q.append(tag)
    def wait_for(self, tag):
        if tag not in self.q: return
        idx = max(i for i, t in enumerate(self.q) if t == tag)
        n = len(self.q) - 1 - idx
        I(f"s_waitcnt lgkmcnt({min(n,15)})")
        self.q = self.q[idx+1:] if n <= 15 else self.q[len(self.q)-15:]

BIG = "big" in FLAGS
def gen_g1big():
    NF = 10; RS = 320; MS = 32*RS; SL = 2*MS; NS = 8; DB = 3; LA = 3; NST = 20
    for f_ in FLAGS:
        if f_.startswith("ns"): NS = int(f_[2:])
    DW = NS - 1
    stamp()
    I("s_load_dwordx4 s[16:19], s[0:1], 56")
    I(f"s_mul_i32 s25, s25, {16*NF}")
    I(f"s_min_u32 s25, s25, {F-16*NF}")
    I("v_and_b32 v1, 63, v0")
    PROD = "prod" in FLAGS
    if PROD:
        I("s_cmp_lt_u32 s3, 4")
        I("s_cbranch_scc1 G1_cons")
        DWP = 6
        I("s_lshl_b32 s27, s25, 1")
        for i in range(10):
            I(f"v_add_u32 v20, {64*i}, v1")
            I("v_mul_u32_u24 v21, 3277, v20")
            I("v_lshrrev_b32 v21, 16, v21")
            I("v_mul_u32_u24 v22, 20, v21")
            I("v_sub_u32 v22, v20, v22")
            I("v_bfe_u32 v23, v21, 3, 1")
            I("v_lshlrev_b32 v23, 1, v23")
            I("v_xor_b32 v22, v22, v23")
            I("v_mul_u32_u24 v21, 3456, v21")
            I("v_lshl_add_u32 v21, v22, 4, v21")
            I("v_add_u32 v21, s27, v21")
            I(f"v_subrev_u32 v{2+i}, {1024*(i%4)}, v21")
        I("s_sub_u32 s29, s3, 4")
        I(f"s_mul_i32 s29, s29, {MS}")
        I("s_waitcnt lgkmcnt(0)")
        I("s_cmp_ge_u32 s3, 5")
        I("s_cselect_b32 s4, s18, s16")
        I("s_cselect_b32 s5, s19, s17")
        srd(8, 4, SZ_W)
        pq = []
        def pdma(st):
            I(f"s_mov_b32 s28, {st*32*3456}")
            for i in range(10):
                if i % 4 == 0: I(f"s_add_u32 m0, s29, {(st % NS)*SL + (i//4)*4096}")
                I(f"buffer_load_dwordx4 v{2+i}, s[8:11], s28 offen offset:{1024*(i%4)} lds")
                pq.append(st)
        def pwait(st):
            idx = max(i for i, t in enumerate(pq) if t == st)
            I(f"s_waitcnt vmcnt({len(pq)-1-idx})")
            del pq[:idx+1]
        if "ramp" in FLAGS:
            for st in range(3): pdma(st)
            pwait(0)
            I("s_barrier")
            pdma(3); pdma(4)
            for st in range(NST-1):
                pwait(st+1)
                I("s_barrier")
                if st == 0: pdma(5)
                if st + DWP < NST: pdma(st + DWP)
        else:
            for st in range(DWP): pdma(st)
            pwait(0)
            I("s_barrier")
            for st in range(NST-1):
                pwait(st+1)
                I("s_barrier")
                if st + DWP < NST: pdma(st + DWP)
        I("s_endpgm")
        e("G1_cons:")
    I("s_and_b32 s26, s3, 1")
    I("s_lshl_b32 s26, s26, 4")
    I("s_lshl_b32 s27, s25, 1")
    for i in range(5 if not PROD else 0):
        I(f"v_add_u32 v10, {64*i}, v1")
        I("v_mul_u32_u24 v11, 3277, v10")
        I("v_lshrrev_b32 v11, 16, v11")
        I("v_mul_u32_u24 v12, 20, v11")
        I("v_sub_u32 v12, v10, v12")
        I("v_add_u32 v11, s26, v11")
        I("v_bfe_u32 v13, v11, 3, 1")
        I("v_lshlrev_b32 v13, 1, v13")
        I("v_xor_b32 v12, v12, v13")
        I("v_mul_u32_u24 v11, 3456, v11")
        I("v_lshl_add_u32 v11, v12, 4, v11")
        I("v_add_u32 v11, s27, v11")
        I(f"v_subrev_u32 v{2+i}, {1024*(i%4)}, v11")
    I("s_lshl_b32 s26, s24, 3")
    I("s_lshl_b32 s27, s3, 1")
    I("s_add_u32 s26, s26, s27")
    I("s_mul_i32 s27, s26, 20480")
    I("v_lshl_add_u32 v7, v1, 4, s27")
    I("v_add_u32 v8, 20480, v7")
    I("s_mul_i32 s27, s26, 55296")
    I("v_lshl_add_u32 v9, v1, 4, s27")
    I("v_add_u32 v10, 55296, v9")
    I("v_bfe_u32 v17, v0, 4, 2")
    I("v_bfe_u32 v18, v0, 2, 2")
    I("v_lshl_add_u32 v19, v17, 3, v18")
    I(f"v_mul_u32_u24 v19, {RS}, v19")
    I("v_and_b32 v18, 3, v0")
    I("v_lshl_add_u32 v19, v18, 3, v19")
    I("v_and_b32 v20, 1, v17")
    I("v_lshlrev_b32 v20, 5, v20")
    I("v_add_u32 v11, v19, v20")
    I("v_sub_u32 v12, v19, v20")
    ROLL = "roll" in FLAGS
    if ROLL:
        for k_, offs in ((1, 3*SL), (2, 4*SL), (3, 7*SL)):
            I(f"v_add_u32 v{11+2*k_}, {offs}, v11")
            I(f"v_add_u32 v{12+2*k_}, {offs}, v12")
    else:
        for rg in (1, 2):
            I(f"v_add_u32 v{11+2*rg}, {rg*3*SL}, v11")
            I(f"v_add_u32 v{12+2*rg}, {rg*3*SL}, v12")
    I("s_mul_i32 s29, s3, 5120")
    I("s_waitcnt lgkmcnt(0)")
    I("s_cmp_ge_u32 s3, 2")
    I("s_cselect_b32 s4, s18, s16")
    I("s_cselect_b32 s5, s19, s17")
    srd(8, 4, SZ_W)
    srd(12, 6, SZ_SD, WS_XN)
    srd(20, 6, SZ_H, WS_H)
    BB = 24; AF = 56; ACC = 80
    def acc(m, jf, js): return ACC + ((m*NF + jf)*2 + js)*4
    vq = []
    def vwait(tags):
        if not any(t in tags for t in vq): return
        idx = max(i for i, t in enumerate(vq) if t in tags)
        n = len(vq) - 1 - idx
        I(f"s_waitcnt vmcnt({n})")
        del vq[:idx+1]
    def dma(st):
        if PROD: return
        I(f"s_add_u32 m0, s29, {(st % NS)*SL}")
        I(f"s_mov_b32 s28, {st*32*3456}")
        for i in range(5):
            if i == 4: I(f"s_add_u32 m0, s29, {(st % NS)*SL + 4096}")
            I(f"buffer_load_dwordx4 v{2+i}, s[8:11], s28 offen offset:{1024*(i%4)} lds")
            vq.append(("D", st))
    def bld(st):
        I(f"s_mov_b32 s31, {st*1024}")
        for js in range(2):
            r = BB + (st % (DB+1))*8 + js*4
            I(f"buffer_load_dwordx4 v[{r}:{r+3}], v{7+js}, s[12:15], s31 offen")
            vq.append(("B", st))
    seq = [(m, jf) for m in range(2) for jf in range(NF)]
    NQ = len(seq)
    def rdx(gpos):
        st, idx = divmod(gpos, NQ)
        m, jf = seq[idx]
        slot = st % NS
        a = AF + (gpos % 4)*4
        va = 11 + 2*(slot // 3) + (jf & 1)
        off = (slot % 3)*SL + m*MS + jf*32
        return [f"ds_read_b64_tr_b16 v[{a}:{a+1}], v{va} offset:{off}",
                f"ds_read_b64_tr_b16 v[{a+2}:{a+3}], v{va} offset:{off+4*RS}"]
    for st in range(DW):
        dma(st)
        if ROLL:
            if st >= DW - DB: bld(st - (DW - DB))
        elif st < DB: bld(st)
    for j in range(4*2*2*NF):
        I(f"v_mov_b32 v{ACC+j}, 0")
    stamp()
    vwait([("D", 0)])
    I("s_barrier")
    for i in range(LA):
        for x in rdx(i): I(x)
    if ROLL:
        assert NS == 8
        I("s_mov_b32 s33, 0")
        I("s_mov_b32 s36, s29")
        I(f"s_add_u32 s37, s29, {4*SL}")
        I(f"s_mov_b32 s28, {DW*32*3456}")
        I(f"s_mov_b32 s31, {DB*1024}")
        def rdr(p, idx, ring):
            m, jf = seq[idx]
            a = AF + (ring % 4)*4
            if p < 3: va = 11 + (jf & 1); off = p*SL
            elif p == 3: va = 13 + (jf & 1); off = 0
            else: va = 15 + (jf & 1); off = 0
            off += m*MS + jf*32
            return [f"ds_read_b64_tr_b16 v[{a}:{a+1}], v{va} offset:{off}",
                    f"ds_read_b64_tr_b16 v[{a+2}:{a+3}], v{va} offset:{off+4*RS}"]
        e("G1_loop:")
        for p_ in range(4):
            I("s_waitcnt vmcnt(14)")
            I(f"s_cmp_lt_u32 s33, {4 if p_ < 2 else 3}")
            I(f"s_cbranch_scc1 G1_w{p_}")
            I("s_waitcnt vmcnt(2)")
            if p_ >= 2:
                I("s_cmp_lt_u32 s33, 4")
                I(f"s_cbranch_scc1 G1_w{p_}")
                I("s_waitcnt vmcnt(0)")
            e(f"G1_w{p_}:")
            I("s_barrier")
            I(f"s_cmp_ge_u32 s33, {4 if p_ == 0 else 3}")
            I(f"s_cbranch_scc1 G1_d{p_}")
            base, offs = ("s37", 3*SL) if p_ == 0 else ("s36", (p_-1)*SL)
            I(f"s_add_u32 m0, {base}, {offs}")
            for i in range(5):
                if i == 4: I(f"s_add_u32 m0, {base}, {offs + 4096}")
                I(f"buffer_load_dwordx4 v{2+i}, s[8:11], s28 offen offset:{1024*(i%4)} lds")
            I(f"s_add_u32 s28, s28, {32*3456}")
            e(f"G1_d{p_}:")
            if p_ > 0:
                I("s_cmp_ge_u32 s33, 4")
                I(f"s_cbranch_scc1 G1_b{p_}")
            for js in range(2):
                r = BB + ((p_ + DB) % 4)*8 + js*4
                I(f"buffer_load_dwordx4 v[{r}:{r+3}], v{7+js}, s[12:15], s31 offen")
            I("s_add_u32 s31, s31, 1024")
            if p_ > 0: e(f"G1_b{p_}:")
            for idx in range(NQ):
                if idx + LA < NQ: rr = rdr(p_, idx + LA, idx + LA)
                else: rr = rdr(p_ + 1, idx + LA - NQ, idx + LA)
                I(f"s_waitcnt lgkmcnt({2*LA-2})")
                m, jf = seq[idx]
                a = AF + (idx % 4)*4
                for js in range(2):
                    c = acc(m, jf, js); b = BB + p_*8 + js*4
                    I(f"v_mfma_f32_16x16x32_bf16 v[{c}:{c+3}], v[{a}:{a+3}], v[{b}:{b+3}], v[{c}:{c+3}]")
                    I(rr[js])
        for k_ in range(4):
            I(f"v_swap_b32 v{11+k_}, v{15+k_}")
        I("s_mov_b32 s38, s36")
        I("s_mov_b32 s36, s37")
        I("s_mov_b32 s37, s38")
        I("s_add_u32 s33, s33, 1")
        I("s_cmp_lt_u32 s33, 5")
        I("s_cbranch_scc1 G1_loop")
        I("s_waitcnt lgkmcnt(0)")
    for st in range(NST if not ROLL else 0):
        if st + 1 < NST:
            vwait([("D", st+1), ("B", st)])
            I("s_barrier")
        else:
            vwait([("B", st)])
        if "stamp3" in FLAGS and st in (0, 1, 5, 10, 15): stamp()
        if st + DW < NST and "g1nodma" not in FLAGS: dma(st + DW)
        if st + DB < NST and "g1nob" not in FLAGS: bld(st + DB)
        for idx in range(NQ if "g1nocomp" not in FLAGS else 0):
            gpos = st*NQ + idx
            rr = rdx(gpos + LA) if gpos + LA < NST*NQ else None
            I(f"s_waitcnt lgkmcnt({2*min(LA-1, NST*NQ-1-gpos)})")
            m, jf = seq[idx]
            a = AF + (gpos % 4)*4
            for js in range(2):
                c = acc(m, jf, js); b = BB + (st % (DB+1))*8 + js*4
                I(f"v_mfma_f32_16x16x32_bf16 v[{c}:{c+3}], v[{a}:{a+3}], v[{b}:{b+3}], v[{c}:{c+3}]")
                if rr: I(rr[js])
    stamp()
    I("s_lshr_b32 s34, s25, 5")
    I("s_lshl_b32 s34, s34, 10")
    I("s_add_u32 s35, s34, 4096")
    I("s_nop 7")
    I("s_nop 3")
    for js in range(2):
        for jp in range(NF//2):
            t = 24 + ((js*5 + jp) % 4) * 12
            for hh in range(2):
                jf = 2*jp + hh
                g = acc(0, jf, js); u = acc(1, jf, js)
                I(f"v_cvt_pk_bf16_f32 v{t}, v{g}, v{g+1}")
                I(f"v_cvt_pk_bf16_f32 v{t+1}, v{g+2}, v{g+3}")
                I(f"v_cvt_pk_bf16_f32 v{t+2}, v{u}, v{u+1}")
                I(f"v_cvt_pk_bf16_f32 v{t+3}, v{u+2}, v{u+3}")
                lo16(g, t); hi16(g+1, t); lo16(g+2, t+1); hi16(g+3, t+1)
                lo16(u, t+2); hi16(u+1, t+2); lo16(u+2, t+3); hi16(u+3, t+3)
                for r in range(4):
                    I(f"v_mul_f32 v{g+r}, v{g+r}, v{u+r}")
                I(f"v_cvt_pk_bf16_f32 v{t+4+2*hh}, v{g}, v{g+1}")
                I(f"v_cvt_pk_bf16_f32 v{t+5+2*hh}, v{g+2}, v{g+3}")
            if jp < 4:
                I(f"buffer_store_dwordx4 v[{t+4}:{t+7}], v{9+js}, s[20:23], s34 offen offset:{1024*jp}")
            else:
                I(f"buffer_store_dwordx4 v[{t+4}:{t+7}], v{9+js}, s[20:23], s35 offen")
    if STAMP: I("s_waitcnt vmcnt(0)")
    stamp()
    stamp_dump(5)
    wgt_end(1)
    I("s_endpgm")

def gen_g1fuse():
    NF = 10; RS = 320; MS = 32*RS; SL = 2*MS; NS = 6; LA = 3; NST = 20; DWP = 5
    XB = NS*SL
    XP = 18432; XR = 144
    I(f"s_mul_i32 s25, s25, {16*NF}")
    I(f"s_min_u32 s25, s25, {F-16*NF}")
    I("v_and_b32 v1, 63, v0")
    I("s_and_b32 s26, s3, 3")
    I(f"s_mul_i32 s30, s26, {32*XR}")
    I(f"s_add_u32 s30, s30, {XB}")
    I("s_lshl_b32 s27, s24, 3")
    I("s_lshl_b32 s26, s26, 1")
    I("s_add_u32 s26, s26, s27")
    I("s_cmp_lt_u32 s3, 4")
    I("s_cbranch_scc1 G1_cons")
    if "hprio" in FLAGS: I("s_setprio 3")
    RAW = 64
    def raw(rg, p): return RAW + (p*4 + rg)*4
    I("s_mul_i32 s27, s26, 20480")
    I("v_lshrrev_b32 v12, 3, v1")
    I("v_and_b32 v11, 7, v1")
    I("v_mul_u32_u24 v13, 0x500, v12")
    I("v_lshl_add_u32 v13, v11, 4, v13")
    I("v_add_u32 v13, s27, v13")
    for rg in range(1, 4): I(f"v_add_u32 v{13+rg}, {rg*10240}, v13")
    I("s_lshl_b32 s27, s26, 7")
    I("v_lshl_add_u32 v7, v12, 3, s27")
    I(f"v_mul_u32_u24 v6, {XR}, v12")
    I("v_lshl_add_u32 v6, v11, 4, v6")
    I("v_add_u32 v6, s30, v6")
    I("s_waitcnt lgkmcnt(0)")
    srd(12, 44, SZ_SD)
    srd(20, 6, S*8, WS_ST)
    for p in range(10):
        for rg in range(4):
            r = raw(rg, p)
            I(f"buffer_load_dwordx4 v[{r}:{r+3}], v{13+rg}, s[12:15], 0 offen offset:{128*p}")
    SM = 24; SS = 32; TT = 40; STA = 48
    for j in range(16): I(f"v_mov_b32 v{SM+j}, 0")
    I("s_mov_b32 s49, 0x3f803f80")
    I("s_cmp_ge_u32 s3, 6")
    I("s_cbranch_scc1 G1_hw")
    def helper(kind):
        vq = [("Q", i) for i in range(40)]
        def vwait(pred):
            idxs = [i for i, t in enumerate(vq) if pred(t)]
            if not idxs: return
            idx = max(idxs)
            n = len(vq) - 1 - idx
            assert n <= 63
            I(f"s_waitcnt vmcnt({n})")
            del vq[:idx+1]
        def pdma(st):
            I(f"s_mov_b32 s28, {st*32*3456}")
            for i in range(10):
                if i % 4 == 0: I(f"s_add_u32 m0, s29, {(st % NS)*SL + (i//4)*4096}")
                I(f"buffer_load_dwordx4 v{224+i}, s[8:11], s28 offen offset:{1024*(i%4)} lds")
                vq.append(("D", st))
        if kind == "prod":
            I("s_lshl_b32 s27, s25, 1")
            for i in range(10):
                I(f"v_add_u32 v20, {64*i}, v1")
                I("v_mul_u32_u24 v21, 3277, v20")
                I("v_lshrrev_b32 v21, 16, v21")
                I("v_mul_u32_u24 v22, 20, v21")
                I("v_sub_u32 v22, v20, v22")
                I("v_bfe_u32 v23, v21, 3, 1")
                I("v_lshlrev_b32 v23, 1, v23")
                I("v_xor_b32 v22, v22, v23")
                I("v_mul_u32_u24 v21, 3456, v21")
                I("v_lshl_add_u32 v21, v22, 4, v21")
                I("v_add_u32 v21, s27, v21")
                I(f"v_subrev_u32 v{224+i}, {1024*(i%4)}, v21")
            I("s_sub_u32 s29, s3, 4")
            I(f"s_mul_i32 s29, s29, {MS}")
            I("s_cmp_ge_u32 s3, 5")
            I("s_cselect_b32 s4, s18, s16")
            I("s_cselect_b32 s5, s19, s17")
            srd(8, 4, SZ_W)
            DSCH = {5: [0], 8: [1], 9: [2]}
            for f_ in FLAGS:
                if f_.startswith("dsch"):
                    if f_ == "dsch1": DSCH = {3: [0], 6: [1], 9: [2]}
                    if f_ == "dsch2": DSCH = {7: [0], 9: [1, 2]}
                    if f_ == "dsch3": DSCH = {-1: [0], 5: [1], 9: [2]}
            for st in DSCH.get(-1, []): pdma(st)
        else:
            I("s_cmp_ge_u32 s3, 7")
            I("s_cselect_b32 s28, s18, s16")
            I("s_cselect_b32 s29, s19, s17")
            I("s_mul_i32 s27, s47, 12800")
            I(f"s_mov_b32 s30, {SZ_W}")
            I("s_mov_b32 s31, 0x00020000")
            I("v_lshlrev_b32 v5, 4, v1")
            I("s_load_dwordx2 s[4:5], s[0:1], 72")
            I("s_min_u32 s48, s46, 269")
            I("s_mul_i32 s17, s48, 0xCCCD")
            I("s_lshr_b32 s17, s17, 19")
            I("s_mul_i32 s18, s17, 10")
            I("s_sub_u32 s18, s48, s18")
            I("v_and_b32 v23, 7, v0")
            I("v_bfe_u32 v17, v0, 3, 2")
            I("v_bfe_u32 v18, v0, 5, 1")
            I("s_lshl_b32 s18, s18, 6")
            I("v_lshl_add_u32 v23, v23, 3, s18")
            I("s_lshl_b32 s19, s17, 1")
            I("v_add_u32 v18, s19, v18")
            I("v_lshlrev_b32 v19, 5, v18")
            I("v_lshl_add_u32 v19, v17, 2, v19")
            I("v_mul_u32_u24 v20, 0x500, v19")
            I("v_lshl_add_u32 v20, v23, 1, v20")
            I("v_add_u32 v21, 0x5000, v20")
            I("s_waitcnt lgkmcnt(0)")
            srd(8, 4, SZ_W)
            srd(32, 6, SZ_W, WS_WDT)
            I("s_mov_b32 s36, 0x05040100")
            I("s_mov_b32 s37, 0x07060302")
            I("v_lshrrev_b32 v22, 4, v23")
            I("v_mul_u32_u24 v22, 54, v22")
            I("v_add_u32 v22, v22, v18")
            I("v_lshlrev_b32 v22, 10, v22")
            I("v_lshl_add_u32 v22, v17, 8, v22")
            I("v_and_b32 v19, 15, v23")
            I("v_lshl_add_u32 v22, v19, 4, v22")
        for p in range(10):
            vwait(lambda t: t[0] == "Q" and t[1] <= 4*p + 3)
            for c in range(4):
                for rg in range(4):
                    r = raw(rg, p) + c
                    I(f"v_dot2_f32_bf16 v{SM+2*rg+(c&1)}, v{r}, s49, v{SM+2*rg+(c&1)}")
                    I(f"v_dot2_f32_bf16 v{SS+2*rg+(c&1)}, v{r}, v{r}, v{SS+2*rg+(c&1)}")
            if kind == "prod":
                for st in DSCH.get(p, []): pdma(st)
        I("s_nop 3")
        V8 = [SM+2*rg for rg in range(4)] + [SS+2*rg for rg in range(4)]
        for a in V8: I(f"v_add_f32 v{a}, v{a}, v{a+1}")
        for dpp in ("quad_perm:[1,0,3,2]", "quad_perm:[2,3,0,1]", "row_half_mirror"):
            for a in V8: I(f"v_add_f32_dpp v{a+1}, v{a}, v{a} {dpp} row_mask:0xf bank_mask:0xf")
            for a in V8: I(f"v_mov_b32 v{a}, v{a+1}")
        R4 = range(4)
        for a in V8: I(f"v_mul_f32 v{a}, {1.0/640.0!r}, v{a}")
        for rg in R4: I(f"v_fma_f32 v{SS+2*rg}, -v{SM+2*rg}, v{SM+2*rg}, v{SS+2*rg}")
        for rg in R4:
            I(f"v_cvt_pk_bf16_f32 v{STA+2*rg+1}, 0, -v{SM+2*rg}")
            I(f"v_cvt_pk_bf16_f32 v{SS+2*rg}, 0, v{SS+2*rg}")
        for rg in R4: I(f"v_add_f32 v{SS+2*rg}, {1e-5!r}, v{SS+2*rg}")
        for rg in R4: I(f"v_cvt_pk_bf16_f32 v{SS+2*rg}, 0, v{SS+2*rg}")
        for rg in R4: I(f"v_sqrt_f32 v{SS+2*rg}, v{SS+2*rg}")
        I("s_nop 0")
        for rg in R4: I(f"v_cvt_pk_bf16_f32 v{SS+2*rg}, 0, v{SS+2*rg}")
        for rg in R4: I(f"v_rcp_f32 v{STA+2*rg}, v{SS+2*rg}")
        I("s_nop 0")
        MN = "mnorm" in FLAGS
        SEL = 24; NEG = 32; T2 = 234
        if MN:
            I("v_and_b32 v2, 15, v1")
            I("v_lshrrev_b32 v3, 4, v1")
            I("v_lshrrev_b32 v4, 2, v2")
            I("v_cmp_eq_u32 vcc, v3, v4")
            I("v_and_b32 v4, 1, v2")
            I("v_lshlrev_b32 v4, 4, v4")
            I("v_mov_b32 v3, 0x3f80")
            I("v_lshlrev_b32 v3, v4, v3")
            I("v_cndmask_b32 v3, 0, v3, vcc")
            I("v_bfe_u32 v4, v2, 1, 1")
            I("v_cmp_eq_u32 vcc, 0, v4")
            I("s_nop 1")
            I(f"v_cndmask_b32 v{SEL}, 0, v3, vcc")
            I(f"v_cndmask_b32 v{SEL+1}, v3, 0, vcc")
            I(f"v_mov_b32 v{SEL+2}, 0")
            I(f"v_mov_b32 v{SEL+3}, 0")
            I(f"v_mov_b32 v{SEL+4}, 0")
            I(f"v_mov_b32 v{SEL+5}, 0")
            I(f"v_mov_b32 v{SEL+6}, v{SEL}")
            I(f"v_mov_b32 v{SEL+7}, v{SEL+1}")
            for rg in R4:
                for c in range(4): I(f"v_mov_b32 v{NEG+4*rg+c}, v{STA+2*rg+1}")
            I("s_nop 1")
        def norm(p, rgs):
            if MN:
                TB = [T2, T2+8]
                def mf(i):
                    rg = rgs[i]; r = raw(rg, p); t = TB[i % 2]
                    for h in range(2):
                        I(f"v_mfma_f32_16x16x32_bf16 v[{t+4*h}:{t+4*h+3}], v[{SEL+4*h}:{SEL+4*h+3}], v[{r}:{r+3}], v[{NEG+4*rg}:{NEG+4*rg+3}]")
                mf(0)
                for i, rg in enumerate(rgs):
                    r = raw(rg, p); R_ = STA + 2*rg; t = TB[i % 2]
                    if i + 1 < len(rgs): mf(i+1)
                    else: I("s_nop 7")
                    if i == 0: I("s_nop 7")
                    for c in range(8): I(f"v_cvt_pk_bf16_f32 v{t+c}, 0, v{t+c}")
                    for c in range(8): I(f"v_mul_f32 v{t+c}, v{t+c}, v{R_}")
                    for c in range(4): I(f"v_cvt_pk_bf16_f32 v{r+c}, v{t+2*c}, v{t+2*c+1}")
                    I(f"ds_write_b128 v6, v[{r}:{r+3}] offset:{(p & 1)*XP + rg*8*XR}")
                return
            for rg in rgs:
                r = raw(rg, p); R_, M_ = STA + 2*rg, STA + 2*rg + 1
                if "nonorm" not in FLAGS:
                    for c in range(4):
                        lo16(TT+2*c, r+c); hi16(TT+2*c+1, r+c)
                    for c in range(8): I(f"v_add_f32 v{TT+c}, v{TT+c}, v{M_}")
                    for c in range(8): I(f"v_cvt_pk_bf16_f32 v{TT+c}, 0, v{TT+c}")
                    for c in range(8): I(f"v_mul_f32 v{TT+c}, v{TT+c}, v{R_}")
                    for c in range(4): I(f"v_cvt_pk_bf16_f32 v{r+c}, v{TT+2*c}, v{TT+2*c+1}")
                I(f"ds_write_b128 v6, v[{r}:{r+3}] offset:{(p & 1)*XP + rg*8*XR}")
        WLK = 3; PFK = 0
        for f_ in FLAGS:
            if f_.startswith("wlk"): WLK = int(f_[3:])
            if f_.startswith("pfk"): PFK = int(f_[3:])
        for k in range(NST):
            if k == 0:
                norm(0, (0, 1, 2, 3))
                if kind == "prod": pdma(3); pdma(4)
            else:
                if kind == "prod" and k >= 2 and k - 2 + DWP < NST: pdma(k - 2 + DWP)
                p = (k-1)//2 + 1
                if p < 10: norm(p, (0, 1) if (k-1) % 2 == 0 else (2, 3))
            if kind == "wdt" and k == PFK and "nopfm" not in FLAGS:
                for i in range(13):
                    I(f"buffer_load_dwordx4 v[60:63], v5, s[28:31], s27 offen")
                    I("s_add_u32 s27, s27, 1024")
            if kind == "wdt" and k == WLK:
                for i in range(8):
                    b = 20 if i < 4 else 21
                    I(f"buffer_load_dwordx4 v[{RAW+4*i}:{RAW+3+4*i}], v{b}, s[8:11], 0 offen offset:{(i%4)*1280}")
            if k == 1:
                for rg in R4:
                    I(f"buffer_store_dwordx2 v[{STA+2*rg}:{STA+2*rg+1}], v7, s[20:23], 0 offen offset:{64*rg}")
                    vq.append(("S", rg))
            if kind == "wdt" and k == WLK + 5:
                I("s_cmp_ge_u32 s46, 270")
                I("s_cbranch_scc1 G1_hwskip")
                I("s_waitcnt vmcnt(0)")
                for dd in range(8):
                    ob = RAW + 32 + 4*dd
                    sel = 36 + (dd & 1)
                    for q in range(4):
                        I(f"v_perm_b32 v{ob+q}, v{RAW+4*(2*q+1)+dd//2}, v{RAW+4*(2*q)+dd//2}, s{sel}")
                for dd in range(8):
                    ob = RAW + 32 + 4*dd
                    I(f"buffer_store_dwordx4 v[{ob}:{ob+3}], v22, s[32:35], 0 offen offset:{16*dd}")
                e("G1_hwskip:")
            if kind == "prod": vwait(lambda t: t == ("D", k))
            I("s_waitcnt lgkmcnt(0)")
            I("s_barrier")
        I("s_endpgm")
    helper("prod")
    e("G1_hw:")
    helper("wdt")
    e("G1_cons:")
    if "prio" in FLAGS: I("s_setprio 3")
    I("s_and_b32 s31, s3, 1")
    I("s_lshr_b32 s33, s3, 1")
    I("s_lshl_b32 s27, s24, 3")
    I("s_lshl_b32 s26, s31, 2")
    I("s_add_u32 s26, s26, s27")
    I("s_mul_i32 s27, s26, 55296")
    I("v_lshl_add_u32 v9, v1, 4, s27")
    I("v_bfe_u32 v17, v0, 4, 2")
    I("v_and_b32 v18, 15, v0")
    I(f"v_mul_u32_u24 v6, {XR}, v18")
    I("v_lshl_add_u32 v6, v17, 4, v6")
    I(f"s_mul_i32 s30, s31, {64*XR}")
    I(f"s_add_u32 s30, s30, {XB}")
    I("v_add_u32 v6, s30, v6")
    I("v_bfe_u32 v18, v0, 2, 2")
    I("v_lshl_add_u32 v19, v17, 3, v18")
    I(f"v_mul_u32_u24 v19, {RS}, v19")
    I("v_and_b32 v18, 3, v0")
    I("v_lshl_add_u32 v19, v18, 3, v19")
    I("s_mul_i32 s27, s33, 160")
    I("v_add_u32 v19, s27, v19")
    I("v_and_b32 v20, 1, v17")
    I("v_lshlrev_b32 v20, 5, v20")
    I("s_lshl_b32 s27, s33, 1")
    I("s_sub_u32 s27, 1, s27")
    I("v_mul_lo_u32 v20, v20, s27")
    I("v_add_u32 v11, v19, v20")
    I("v_sub_u32 v12, v19, v20")
    for rg in (1,):
        I(f"v_add_u32 v{11+2*rg}, {rg*3*SL}, v11")
        I(f"v_add_u32 v{12+2*rg}, {rg*3*SL}, v12")
    I("s_waitcnt lgkmcnt(0)")
    srd(20, 6, SZ_H, WS_H)
    BB = 24; AF = 56; ACC = 80; LA = 2
    for f_ in FLAGS:
        if f_.startswith("la"): LA = int(f_[2:])
    def acc(m, j, js): return ACC + ((m*5 + j)*4 + js)*4
    seq = [(m, j) for m in range(2) for j in range(5)]
    NQ = len(seq)
    dq = []
    def dwait(tags):
        idxs = [i for i, t in enumerate(dq) if t in tags]
        if not idxs: return
        idx = max(idxs); n = len(dq) - 1 - idx
        assert n <= 15
        I(f"s_waitcnt lgkmcnt({n})")
        del dq[:idx+1]
    def rdx(gpos):
        st, idx = divmod(gpos, NQ)
        m, j = seq[idx]
        slot = st % NS
        a = AF + (gpos % 4)*4
        va = 11 + 2*(slot // 3) + (j & 1)
        off = (slot % 3)*SL + m*MS + j*32
        return [f"ds_read_b64_tr_b16 v[{a}:{a+1}], v{va} offset:{off}",
                f"ds_read_b64_tr_b16 v[{a+2}:{a+3}], v{va} offset:{off+4*RS}"]
    def xrd(st, js):
        b = BB + (st & 1)*16 + js*4
        I(f"ds_read_b128 v[{b}:{b+3}], v6 offset:{((st >> 1) & 1)*XP + js*16*XR + (st & 1)*64}")
        dq.append(("X", st))
    stamp()
    I("s_barrier")
    stamp()
    for js in range(4): xrd(0, js)
    for i in range(LA):
        for x in rdx(i): I(x); dq.append(("A", i))
    for st in range(NST):
        if st + 1 < NST: I("s_barrier")
        if "stamp3" in FLAGS and st in (1, 5, 10): stamp()
        for idx in range(NQ):
            gpos = st*NQ + idx
            rr = rdx(gpos + LA) if gpos + LA < NST*NQ else None
            dwait([("A", gpos), ("X", st)])
            m, j = seq[idx]
            a = AF + (gpos % 4)*4
            for js in range(4):
                c = acc(m, j, js); b = BB + (st & 1)*16 + js*4
                cc = "0" if st == 0 else f"v[{c}:{c+3}]"
                I(f"v_mfma_f32_16x16x32_bf16 v[{c}:{c+3}], v[{a}:{a+3}], v[{b}:{b+3}], {cc}")
                if rr and js < 2: I(rr[js]); dq.append(("A", gpos + LA))
                if js == 2 and st + 1 < NST and 1 <= idx <= 4: xrd(st + 1, idx - 1)
    stamp()
    I("s_lshr_b32 s34, s25, 5")
    I("s_lshl_b32 s34, s34, 10")
    I("s_nop 7")
    I("s_nop 3")
    cnt = [0]
    def hq(j, js, dst, t):
        g = acc(0, j, js); u = acc(1, j, js)
        I(f"v_cvt_pk_bf16_f32 v{t}, v{g}, v{g+1}")
        I(f"v_cvt_pk_bf16_f32 v{t+1}, v{g+2}, v{g+3}")
        I(f"v_cvt_pk_bf16_f32 v{t+2}, v{u}, v{u+1}")
        I(f"v_cvt_pk_bf16_f32 v{t+3}, v{u+2}, v{u+3}")
        lo16(g, t); hi16(g+1, t); lo16(g+2, t+1); hi16(g+3, t+1)
        lo16(u, t+2); hi16(u+1, t+2); lo16(u+2, t+3); hi16(u+3, t+3)
        for r in range(4):
            I(f"v_mul_f32 v{g+r}, v{g+r}, v{u+r}")
        I(f"v_cvt_pk_bf16_f32 v{dst}, v{g}, v{g+1}")
        I(f"v_cvt_pk_bf16_f32 v{dst+1}, v{g+2}, v{g+3}")
    def epi(fq):
        units = [((0, 1), 0, 0), ((2, 3), 1, 0), ((4,), 2, 0)] if fq == 0 else [((0,), 2, 8), ((1, 2), 3, 0), ((3, 4), 4, 0)]
        for js in range(4):
            I(f"s_add_u32 s35, s34, {js*55296}")
            I(f"s_add_u32 s36, s34, {js*55296 + 4096}")
            for (jl, blk, ho) in units:
                t = 24 + (cnt[0] % 4) * 12; cnt[0] += 1
                for hh, j in enumerate(jl): hq(j, js, t+4+2*hh, t)
                so, off = ("s35", 1024*blk + ho) if blk < 4 else ("s36", ho)
                if len(jl) == 2:
                    I(f"buffer_store_dwordx4 v[{t+4}:{t+7}], v9, s[20:23], {so} offen offset:{off}")
                else:
                    I(f"buffer_store_dwordx2 v[{t+4}:{t+5}], v9, s[20:23], {so} offen offset:{off}")
    I("s_cmp_eq_u32 s33, 0")
    I("s_cbranch_scc0 G1_epi1")
    epi(0)
    I("s_branch G1_epid")
    e("G1_epi1:")
    epi(1)
    e("G1_epid:")
    if STAMP: I("s_waitcnt vmcnt(0)")
    stamp()
    stamp_dump(5)
    wgt_end(1)
    I("s_endpgm")

def g1_epi(NF, acc):
    I("s_lshr_b32 s34, s25, 5")
    I("s_lshl_b32 s34, s34, 10")
    I("s_add_u32 s35, s34, 4096")
    I("s_nop 7")
    I("s_nop 3")
    for js in range(2):
        for jp in range(NF//2):
            t = 24 + ((js*5 + jp) % 4) * 12
            for hh in range(2):
                jf = 2*jp + hh
                g = acc(0, jf, js); u = acc(1, jf, js)
                I(f"v_cvt_pk_bf16_f32 v{t}, v{g}, v{g+1}")
                I(f"v_cvt_pk_bf16_f32 v{t+1}, v{g+2}, v{g+3}")
                I(f"v_cvt_pk_bf16_f32 v{t+2}, v{u}, v{u+1}")
                I(f"v_cvt_pk_bf16_f32 v{t+3}, v{u+2}, v{u+3}")
                lo16(g, t); hi16(g+1, t); lo16(g+2, t+1); hi16(g+3, t+1)
                lo16(u, t+2); hi16(u+1, t+2); lo16(u+2, t+3); hi16(u+3, t+3)
                for r in range(4):
                    I(f"v_mul_f32 v{g+r}, v{g+r}, v{u+r}")
                I(f"v_cvt_pk_bf16_f32 v{t+4+2*hh}, v{g}, v{g+1}")
                I(f"v_cvt_pk_bf16_f32 v{t+5+2*hh}, v{g+2}, v{g+3}")
            if jp < 4:
                I(f"buffer_store_dwordx4 v[{t+4}:{t+7}], v{9+js}, s[20:23], s34 offen offset:{1024*jp}")
            else:
                I(f"buffer_store_dwordx4 v[{t+4}:{t+7}], v{9+js}, s[20:23], s35 offen")
    if STAMP: I("s_waitcnt vmcnt(0)")
    stamp()
    stamp_dump(5)
    wgt_end(1)
    I("s_endpgm")

def gen_k2():
    kernel_header("mid_kernel")
    if BIG:
        I("s_cmp_ge_u32 s2, 256")
        I("s_cbranch_scc1 M_exit")
        wgt_start()
        I("s_load_dwordx2 s[6:7], s[0:1], 96")
        I("v_lshrrev_b32 v1, 6, v0")
        I("s_nop 0")
        I("v_readfirstlane_b32 s3, v1")
        I("s_lshr_b32 s40, s2, 3")
        I("s_bfe_u32 s41, s2, 0x10002")
        I("s_and_b32 s42, s2, 3")
        I("s_lshl_b32 s43, s41, 2")
        I("s_sub_u32 s43, 24, s43")
        I("s_cmp_ge_u32 s40, s43")
        I("s_cbranch_scc1 M_conv")
        if "nog1" in FLAGS: I("s_endpgm")
        I("s_mul_i32 s24, s42, s43")
        I("s_add_u32 s24, s24, s40")
        I("s_mul_i32 s25, s41, 96")
        I("s_add_u32 s24, s24, s25")
        W0 = 6 if "prod" in FLAGS else 4
        if FUSE:
            stamp()
            I("s_load_dwordx4 s[16:19], s[0:1], 56")
            I("s_load_dwordx2 s[44:45], s[0:1], 0")
            I("s_mov_b32 s47, s24")
        I(f"s_sub_u32 s25, s3, {W0}")
        I("s_mul_i32 s25, s25, 176")
        I("s_add_u32 s24, s24, s25")
        if FUSE:
            I("s_mov_b32 s46, s24")
        else:
            I(f"s_cmp_ge_u32 s3, {W0}")
            I("s_cbranch_scc1 M_wdt")
        I("s_lshl_b32 s24, s42, 2")
        I("s_and_b32 s25, s40, 3")
        I("s_add_u32 s24, s24, s25")
        I("s_mul_i32 s25, s41, 6")
        I("s_lshr_b32 s26, s40, 2")
        I("s_add_u32 s25, s25, s26")
        if FUSE: gen_g1fuse()
        else: gen_g1big()
    else:
        gen_g1old()
    gen_aux()

def gen_g1old():
    I(f"s_cmp_ge_u32 s2, {N_G1+N_CV}")
    I("s_cbranch_scc1 M_exit")
    I("s_load_dwordx2 s[6:7], s[0:1], 96")
    I(f"s_cmp_ge_u32 s2, {N_G1}")
    I("s_cbranch_scc1 M_conv")
    if "nog1" in FLAGS: I("s_endpgm")
    stamp()
    if "prio" in FLAGS: I("s_setprio 3")
    I("s_load_dwordx4 s[16:19], s[0:1], 56")
    I("v_lshrrev_b32 v1, 6, v0")
    I("s_nop 0")
    I("v_readfirstlane_b32 s3, v1")
    I("s_waitcnt lgkmcnt(0)")
    if "stamp2" in FLAGS: stamp()
    I("s_cmp_ge_u32 s3, 2")
    I("s_cselect_b32 s4, s18, s16")
    I("s_cselect_b32 s5, s19, s17")
    srd(8, 4, SZ_W)
    srd(12, 6, SZ_SD, WS_XN)
    srd(20, 6, SZ_H, WS_H)
    if "g12d" in FLAGS:
        I("s_and_b32 s24, s2, 3")
        I("s_lshl_b32 s24, s24, 2")
        I("s_bfe_u32 s25, s2, 0x20003")
        I("s_add_u32 s24, s24, s25")
        I("s_bfe_u32 s25, s2, 0x10002")
        I("s_lshl_b32 s25, s25, 3")
        I("s_lshr_b32 s26, s2, 5")
        I("s_add_u32 s25, s25, s26")
    else:
        I("s_and_b32 s24, s2, 15")
        I("s_lshr_b32 s25, s2, 4")
    I(f"s_mul_i32 s25, s25, {BF}")
    I(f"s_min_u32 s25, s25, {F-BF}")
    I("v_and_b32 v1, 63, v0")
    if "pf" in FLAGS:
        I("s_lshr_b32 s26, s2, 3")
        I("s_lshl_b32 s27, s26, 1")
        I("s_and_b32 s28, s3, 1")
        I("s_add_u32 s27, s27, s28")
        I("s_mul_i32 s27, s27, 34560")
        I("s_bfe_u32 s28, s2, 0x10002")
        I("s_mul_i32 s28, s28, 1792")
        I("s_add_u32 s27, s27, s28")
        I("v_lshrrev_b32 v192, 5, v1")
        I("v_mul_u32_u24 v192, 3456, v192")
        I("v_and_b32 v193, 31, v1")
        I("v_lshl_add_u32 v192, v193, 6, v192")
        I("v_add_u32 v192, s27, v192")
        for i in range(5):
            I(f"s_mov_b32 s27, {i*6912}")
            I(f"buffer_load_dword v{194+i}, v192, s[8:11], s27 offen")
        I("s_and_b32 s27, s2, 3")
        I("s_mul_i32 s27, s27, 655360")
        I("s_lshl_b32 s28, s26, 2")
        I("s_add_u32 s28, s28, s3")
        I("s_mul_i32 s28, s28, 5120")
        I("s_add_u32 s27, s27, s28")
        I("v_lshlrev_b32 v193, 6, v1")
        I("buffer_load_dword v199, v193, s[12:15], s27 offen")
        I("buffer_load_dword v200, v193, s[12:15], s27 offen offset:1024")
    I("v_lshrrev_b32 v10, 4, v1")
    I("v_bfe_u32 v11, v1, 1, 3")
    I("v_and_b32 v12, 1, v1")
    I("s_and_b32 s26, s3, 1")
    I("s_lshl_b32 s26, s26, 4")
    I("s_lshl_b32 s27, s25, 1")
    for i in range(4):
        bit = (i >> 1) & 1
        I(f"v_or_b32 v13, {bit<<2}, v10")
        I("v_xor_b32 v13, v13, v11")
        I(f"v_add_u32 v14, {4*i}, v10")
        I("v_add_u32 v14, s26, v14")
        I("v_mul_u32_u24 v14, 3456, v14")
        I("v_lshl_add_u32 v14, v13, 5, v14")
        I("v_lshl_add_u32 v14, v12, 4, v14")
        I("v_add_u32 v14, s27, v14")
        I(f"v_subrev_u32 v14, {1024*i}, v14")
        I("v_cmp_eq_u32 vcc, 7, v13")
        I("v_mov_b32 v15, 0x40000000")
        I("s_nop 0")
        I(f"v_cndmask_b32 v{2+i}, v14, v15, vcc")
    I("v_bfe_u32 v17, v0, 4, 2")
    I("s_lshl_b32 s26, s24, 3")
    I("s_lshl_b32 s27, s3, 1")
    I("s_add_u32 s26, s26, s27")
    I("s_mul_i32 s27, s26, 20480")
    I("v_lshl_add_u32 v6, v1, 4, s27")
    I("v_add_u32 v7, 20480, v6")
    I("s_mul_i32 s27, s26, 55296")
    I("v_lshl_add_u32 v8, v1, 4, s27")
    I("v_add_u32 v9, 55296, v8")
    I("v_bfe_u32 v18, v0, 2, 2")
    I("v_lshl_add_u32 v19, v17, 3, v18")
    I("v_lshlrev_b32 v19, 8, v19")
    I("v_and_b32 v20, 1, v17")
    I("v_lshl_or_b32 v20, v20, 2, v18")
    I("v_lshl_add_u32 v19, v20, 5, v19")
    I("v_and_b32 v18, 3, v0")
    I("v_lshl_add_u32 v19, v18, 3, v19")
    VA = 10
    I("v_mov_b32 v24, v19")
    for jf in range(7):
        I(f"v_xor_b32 v{VA+jf}, {jf<<5}, v24")
        I(f"v_add_u32 v{VA+7+jf}, 0x10000, v{VA+jf}")
    I("s_lshl_b32 s29, s3, 12")
    BB = 24
    AF = 64
    ACC = 80
    def acc(m, jf, js): return ACC + ((m*7 + jf)*2 + js)*4
    def bfr(st, js): return BB + (st % NSLOT)*8 + js*4
    NST = 20
    def issue(slot):
        I(f"s_add_u32 s30, s29, {slot*SLOT}")
        I("s_mov_b32 m0, s30")
        for i in range(4):
            I(f"buffer_load_dwordx4 v{2+i}, s[8:11], s28 offen offset:{1024*i} lds")
        for js in range(2):
            r = BB + slot*8 + js*4
            I(f"buffer_load_dwordx4 v[{r}:{r+3}], v{6+js}, s[12:15], s31 offen")
        I("s_add_u32 s36, s36, 1")
        I("s_cmp_ge_u32 s36, 20")
        I("s_cselect_b32 s36, 0, s36")
        I("s_add_u32 s37, s37, 1")
        I(f"s_mul_i32 s28, s36, {32*3456}")
        I("s_lshl_b32 s31, s36, 10")
        I("s_cmp_ge_u32 s37, 20")
        I("s_cselect_b32 s28, 0x40000000, s28")
        I("s_cselect_b32 s31, 0x40000000, s31")
    if "rot" in FLAGS:
        I("s_and_b32 s36, s24, 3")
        I("s_mul_i32 s36, s36, 5")
        I("s_lshr_b32 s37, s2, 5")
        I("s_mul_i32 s37, s37, 3")
        I("s_add_u32 s36, s36, s37")
        I("s_cmp_ge_u32 s36, 20")
        I("s_cselect_b32 s37, 20, 0")
        I("s_sub_u32 s36, s36, s37")
    else:
        I("s_mov_b32 s36, 0")
    I("s_mov_b32 s37, 0")
    I(f"s_mul_i32 s28, s36, {32*3456}")
    I("s_lshl_b32 s31, s36, 10")
    if "stamp2" in FLAGS: stamp()
    for st in range(NSLOT - 1):
        issue(st)
    if "stamp2" in FLAGS: stamp()
    for j in range(112):
        I(f"v_mov_b32 v{ACC+j}, 0")
    I("s_mov_b32 s33, 0")
    stamp()
    def body(last):
      for slot in range(NSLOT):
        if not last or slot <= 1:
            I(f"s_waitcnt vmcnt({6*(NSLOT-2)})")
        else:
            I(f"s_waitcnt vmcnt({6*(NSLOT-1-slot)})")
        I("s_barrier")
        if not last or slot == 0:
            issue((slot + NSLOT - 1) % NSLOT)
        seq = [(m, jf) for m in range(2) for jf in range(7)]
        def rd(idx):
            m, jf = seq[idx]
            a = AF + (idx % 4)*4
            if slot < 4:
                va = VA + jf; off = slot*SLOT + m*8192
            else:
                va = VA + 7 + jf; off = m*8192
            I(f"ds_read_b64_tr_b16 v[{a}:{a+1}], v{va} offset:{off}")
            I(f"ds_read_b64_tr_b16 v[{a+2}:{a+3}], v{va} offset:{off+1024}")
        for i in range(3):
            rd(i)
        for idx in range(14):
            if idx + 3 < 14:
                rd(idx + 3)
                I("s_waitcnt lgkmcnt(6)")
            else:
                I(f"s_waitcnt lgkmcnt({2*(13-idx)})")
            m, jf = seq[idx]
            a = AF + (idx % 4)*4
            for js in range(2):
                c = acc(m, jf, js); b = BB + slot*8 + js*4
                I(f"v_mfma_f32_16x16x32_bf16 v[{c}:{c+3}], v[{a}:{a+3}], v[{b}:{b+3}], v[{c}:{c+3}]")
    XS = "xs" in FLAGS
    LA = 3
    for f in FLAGS:
        if f.startswith("la"): LA = int(f[2:])
    RING = [64,68,72,76,192,196,200] if LA > 3 else [64,68,72,76,192]
    seq = [(m, jf) for m in range(2) for jf in range(7)]
    ring = [0]
    def rdx(slot, idx, pos):
        m, jf = seq[idx]
        a = RING[pos % len(RING)]
        if slot < 4:
            va = VA + jf; off = slot*SLOT + m*8192
        else:
            va = VA + 7 + jf; off = m*8192
        return [f"ds_read_b64_tr_b16 v[{a}:{a+1}], v{va} offset:{off}",
                f"ds_read_b64_tr_b16 v[{a+2}:{a+3}], v{va} offset:{off+1024}"]
    def body_xs(last):
      for slot in range(NSLOT):
        fin_stage = last and slot == NSLOT-1
        if not fin_stage:
            if not last or slot <= 1:
                I("s_waitcnt vmcnt(12)")
            else:
                I(f"s_waitcnt vmcnt({6*(NSLOT-2-slot)})")
            if "g1nobar" not in FLAGS: I("s_barrier")
        if (not last or slot == 0) and "g1noload" not in FLAGS:
            issue((slot + NSLOT - 1) % NSLOT)
        for idx in range(14 if "g1nocomp" not in FLAGS else 0):
            pos = idx + 14*slot
            if idx + LA < 14:
                rr = rdx(slot, idx + LA, pos + LA)
            elif not fin_stage:
                rr = rdx((slot + 1) % NSLOT, idx + LA - 14, pos + LA)
            else:
                rr = None
            I(f"s_waitcnt lgkmcnt({2*(LA-1) if not fin_stage else 2*min(LA-1, 13-idx)})")
            m, jf = seq[idx]
            a = RING[pos % len(RING)]
            for js in range(2):
                c = acc(m, jf, js); b = BB + slot*8 + js*4
                I(f"v_mfma_f32_16x16x32_bf16 v[{c}:{c+3}], v[{a}:{a+3}], v[{b}:{b+3}], v[{c}:{c+3}]")
                if rr: I(rr[js])
    if XS:
        I("s_waitcnt vmcnt(18)")
        I("s_barrier")
        for i in range(LA):
            for x in rdx(0, i, i): I(x)
    e("G1_loop:")
    (body_xs if XS else body)(False)
    I("s_add_u32 s33, s33, 1")
    I(f"s_cmp_lt_u32 s33, {NST//NSLOT - 1}")
    I("s_cbranch_scc1 G1_loop")
    (body_xs if XS else body)(True)
    stamp()
    I("s_waitcnt vmcnt(0)")
    I("s_nop 7")
    I("s_nop 3")
    T = 24
    for js in range(2):
        for jf in range(7):
            g = acc(0, jf, js); u = acc(1, jf, js)
            t = T + ((js*7 + jf) % 4) * 8
            I(f"v_cvt_pk_bf16_f32 v{t}, v{g}, v{g+1}")
            I(f"v_cvt_pk_bf16_f32 v{t+1}, v{g+2}, v{g+3}")
            I(f"v_cvt_pk_bf16_f32 v{t+2}, v{u}, v{u+1}")
            I(f"v_cvt_pk_bf16_f32 v{t+3}, v{u+2}, v{u+3}")
            lo16(g, t); hi16(g+1, t); lo16(g+2, t+1); hi16(g+3, t+1)
            lo16(u, t+2); hi16(u+1, t+2); lo16(u+2, t+3); hi16(u+3, t+3)
            for r in range(4):
                I(f"v_mul_f32 v{g+r}, v{g+r}, v{u+r}")
            I(f"v_cvt_pk_bf16_f32 v{t+4}, v{g}, v{g+1}")
            I(f"v_cvt_pk_bf16_f32 v{t+5}, v{g+2}, v{g+3}")
            I(f"s_add_u32 s34, s25, {16*jf}")
            I("s_lshr_b32 s35, s34, 5")
            I("s_lshl_b32 s35, s35, 10")
            I("s_and_b32 s34, s34, 16")
            I("s_lshr_b32 s34, s34, 1")
            I("s_add_u32 s35, s35, s34")
            I(f"buffer_store_dwordx2 v[{t+4}:{t+5}], v{8+js}, s[20:23], s35 offen")
    I("s_waitcnt vmcnt(0)")
    stamp()
    stamp_dump(5)
    I("s_endpgm")

def gen_aux():
    e("M_conv:")
    if "noconv" in FLAGS: I("s_endpgm")
    XREG = 7680; CST = 576 if "cst" in FLAGS else 800; HBUF = 8*CST; WREG = 20480
    CMG = "cmg" in FLAGS
    if CMG: CST = 320; HBUF = 16*CST; HHI = 8*CST
    stamp()
    I("s_load_dwordx4 s[16:19], s[0:1], 32")
    if FUSE:
        I("s_load_dwordx4 s[44:47], s[0:1], 8")
        I("s_load_dwordx2 s[48:49], s[0:1], 24")
    if BIG:
        I("s_sub_u32 s24, 32, s43")
        I("s_mul_i32 s24, s24, s42")
        I("s_add_u32 s24, s24, s40")
        I("s_sub_u32 s24, s24, s43")
        I("s_lshl_b32 s25, s41, 5")
        I("s_add_u32 s24, s24, s25")
        I("s_lshl_b32 s24, s24, 3")
        I("s_add_u32 s24, s24, s3")
    else:
        I("v_lshrrev_b32 v1, 6, v0")
        I("s_nop 0")
        I("v_readfirstlane_b32 s3, v1")
        I(f"s_sub_u32 s25, s2, {N_G1}")
        I("s_cmp_ge_u32 s25, 128")
        I("s_cbranch_scc1 M_aux_hi")
        I("s_mov_b32 s24, s25")
        I("s_cmp_eq_u32 s3, 3")
        I("s_cbranch_scc1 M_wdt")
        I("s_mul_i32 s24, s25, 3")
        I("s_add_u32 s24, s24, s3")
        I("s_branch M_conv2")
        e("M_aux_hi:")
        I("s_sub_u32 s25, s25, 128")
        I("s_lshl_b32 s25, s25, 1")
        I("s_add_u32 s24, s25, s3")
        I("s_add_u32 s24, s24, 126")
        I("s_cmp_ge_u32 s3, 2")
        I("s_cbranch_scc1 M_wdt")
        I("s_add_u32 s24, s25, s3")
        I("s_add_u32 s24, s24, 384")
    e("M_conv2:")
    I("s_waitcnt lgkmcnt(0)")
    srd(8, 16, SZ_SD)
    if FUSE:
        I("s_sub_u32 s25, s24, s3")
        I("s_lshl_b32 s25, s25, 3")
        I("s_load_dwordx16 s[84:99], s[48:49], s25")
        srd(32, 44, SZ_SD)
        srd(36, 46, SZ_SD)
    else:
        srd(12, 6, SZ_SD, WS_KVR)
    srd(20, 6, SZ_SD, WS_YT)
    I("s_lshr_b32 s25, s24, 1")
    I("s_lshl_b32 s25, s25, 2")
    I("s_load_dword s26, s[18:19], s25")
    I("v_and_b32 v1, 63, v0")
    I("s_lshl_b32 s27, s24, 12")
    I("v_lshl_add_u32 v2, v1, 4, s27")
    if CMG:
        I("v_lshrrev_b32 v3, 5, v1")
        I("v_mul_u32_u24 v3, 1536, v3")
        I("v_add_u32 v2, v2, v3")
    XL = 16
    for j in range(4 if not FUSE else 0):
        I(f"buffer_load_dwordx4 v[{XL+4*j}:{XL+4*j+3}], v2, s[12:15], 0 offen offset:{1024*j}")
    HW0, HW1 = 32, 40
    I("v_subrev_u32 v13, 64, v2")
    I("v_mov_b32 v5, 0x40000000")
    I("v_cmp_gt_u32 vcc, 4, v1")
    I("s_nop 1")
    I("v_cndmask_b32 v4, v13, v5, vcc")
    I("v_add_u32 v6, 16, v13")
    I("v_cmp_gt_u32 vcc, 3, v1")
    I("s_nop 1")
    I("v_cndmask_b32 v6, v6, v5, vcc")
    I(f"buffer_load_dwordx4 v[{HW0}:{HW0+3}], v4, s[8:11], 0 offen")
    I(f"buffer_load_dwordx4 v[{HW0+4}:{HW0+7}], v6, s[8:11], 0 offen")
    I(f"buffer_load_dwordx4 v[{HW1}:{HW1+3}], v2, s[8:11], 0 offen offset:{192 if CMG else 448}")
    I(f"buffer_load_dwordx4 v[{HW1+4}:{HW1+7}], v2, s[8:11], 0 offen offset:{208 if CMG else 464}")
    KP, KO, VV, KF, PP, TC, OO = 132, 144, 160, 176, 190, 222, 230
    if FUSE:
        I("s_sub_u32 s25, s24, s3")
        I("s_lshl_b32 s25, s25, 1")
        I("v_mul_u32_u24 v50, 5120, v0")
        I("v_add_u32 v50, s25, v50")
        I("s_cmp_eq_u32 s3, 0")
        I("s_cselect_b32 s25, 0x40000000, -3840")
        I("v_add_u32 v51, s25, v50")
        def kvloads():
            for i in range(4):
                I(f"buffer_load_dwordx4 v[{KO+4*i}:{KO+4*i+3}], v50, s[32:35], 0 offen offset:{1280*i}")
            I("s_mov_b64 exec, 1")
            for i in range(3):
                I(f"buffer_load_dwordx4 v[{KP+4*i}:{KP+4*i+3}], v51, s[32:35], 0 offen offset:{1280*i}")
            I("s_mov_b64 exec, -1")
        def vloads():
            for i in range(4):
                I(f"buffer_load_dwordx4 v[{VV+4*i}:{VV+4*i+3}], v50, s[36:39], 0 offen offset:{1280*i}")
        KPF = True
        if KPF:
            I("s_sub_u32 s50, s40, s43")
            I("v_xor_b32 v57, 256, v0")
            I("s_cmp_eq_u32 s41, 0")
            I("s_cbranch_scc0 CV_pf1")
            I("s_lshl_b32 s50, s50, 8")
            I("s_lshl_b32 s51, s42, 7")
            for (d, src) in ((54, 0), (55, 57)):
                I(f"v_add_u32 v{d}, s50, v{src}")
                I(f"v_mul_u32_u24 v{d}, 0x500, v{d}")
            I("s_movk_i32 s56, 256")
            I("s_branch CV_pfd")
            e("CV_pf1:")
            I("s_mul_i32 s50, s50, 176")
            I("s_mul_i32 s51, s42, 192")
            I("s_add_u32 s51, s51, 512")
            I("s_and_b32 s51, s51, 0xffffff80")
            for (d, src) in ((54, 0), (55, 57)):
                I(f"v_lshrrev_b32 v{d}, 1, v{src}")
                I(f"v_add_u32 v{d}, s50, v{d}")
                I(f"v_mul_u32_u24 v{d}, 0x500, v{d}")
                I(f"v_and_b32 v56, 1, v{src}")
                I(f"v_lshl_add_u32 v{d}, v56, 7, v{d}")
            I("s_movk_i32 s56, 352")
            e("CV_pfd:")
            I("v_cmp_gt_u32 s[52:53], s56, v0")
            I("v_cmp_gt_u32 s[54:55], s56, v57")
            I("s_mov_b64 exec, s[52:53]")
            I("buffer_load_dword v56, v54, s[32:35], s51 offen")
            if "vpf1" not in FLAGS:
                I("s_mov_b64 exec, s[54:55]")
                I("buffer_load_dword v57, v55, s[36:39], s51 offen")
            I("s_mov_b64 exec, -1")
        else:
            kvloads()
        I("v_lshlrev_b32 v52, 2, v0")
        I("v_sub_u32 v52, 2044, v52")
        I("v_lshrrev_b32 v53, 5, v52")
        I("v_mul_u32_u24 v53, 80, v53")
        I("v_and_b32 v52, 31, v52")
        I("v_lshl_add_u32 v52, v52, 1, v53")
        I(f"v_add_u32 v53, {4*WREG}, v52")
    I(f"s_mov_b32 s29, {448 if CMG else 960}")
    I(f"s_mul_i32 s28, s3, {WREG}")
    Z = 96
    for j in range(4):
        I(f"v_mov_b32 v{Z+j}, 0")
    I("v_lshl_add_u32 v3, v1, 4, s28")
    I(f"ds_write_b128 v3, v[{Z}:{Z+3}] offset:5120")
    I(f"ds_write_b128 v3, v[{Z}:{Z+3}] offset:6144")
    I(f"ds_write_b128 v3, v[{Z}:{Z+3}] offset:6656")
    I("v_lshrrev_b32 v4, 2, v1")
    I("v_mul_u32_u24 v4, 80, v4")
    I("v_and_b32 v5, 3, v1")
    I("v_lshl_add_u32 v4, v5, 4, v4")
    I("v_add_u32 v4, s28, v4")
    I("v_and_b32 v5, 31, v1")
    I("v_lshrrev_b32 v6, 5, v1")
    I("v_and_b32 v7, 7, v5")
    I(f"v_mul_u32_u24 v7, {CST}, v7")
    I("v_lshrrev_b32 v8, 3, v5")
    I("v_add_u32 v8, v8, v6")
    I("v_lshl_add_u32 v7, v8, 4, v7")
    I(f"v_add_u32 v7, {XREG}, v7")
    I("v_add_u32 v7, s28, v7")
    I(f"v_add_u32 v14, {HBUF}, v7")
    I("v_sub_u32 v8, 63, v5")
    I("v_mul_u32_u24 v8, 80, v8")
    I("v_lshl_add_u32 v8, v6, 4, v8")
    I("v_add_u32 v8, s28, v8")
    I("v_mov_b32 v15, v8")
    I("v_subrev_u32 v9, 2560, v8")
    I(f"v_add_u32 v10, {XREG}, v3")
    if CMG:
        I(f"v_mul_u32_u24 v11, {HHI-512}, v6")
        I("v_add_u32 v10, v10, v11")
    I(f"v_add_u32 v11, {HBUF}, v10")
    AC0, AC1 = 100, 116
    for j in range(32):
        I(f"v_mov_b32 v{AC0+j}, 0")
    FR = 132
    UE, UO, WO = 180, 189, 197
    CLA, CR = 3, 4
    for f_ in FLAGS:
        if f_.startswith("cla"): CLA = int(f_[3:]); CR = 8; UE, UO, WO = 228, 237, 245
    if CMG:
        UE, UO, WO = 196, 205, 213
        AC2 = 220
        I("s_mov_b32 s30, 0xfffff")
        I("s_mov_b32 s31, 0xfffff")
    else:
        I("s_mov_b32 s30, -1")
        I("s_mov_b32 s31, 0xf")
    q = DSQ()
    def stage_seg(w, addr):
        for t in range(7):
            I(f"v_alignbit_b32 v{UE+t}, v{w+t+1}, v{w+t}, 16")
            I(f"v_alignbit_b32 v{UO+t}, v{w+t+1}, v{w+t}, 16")
        for t in range(1, 7):
            I(f"v_mov_b32 v{WO+t}, v{w+t}")
        I("s_mov_b64 exec, s[30:31]")
        for c in range(8):
            if c % 2 == 0:
                t0 = c // 2
                r = UE + t0 if t0 % 2 == 0 else UO + t0
            else:
                t0 = (1 + c)//2
                r = w + t0 if t0 % 2 == 0 else WO + t0
            assert r % 2 == 0, (c, r)
            I(f"ds_write_b128 v{addr}, v[{r}:{r+3}] offset:{c*CST}")
            q.push(("w", 0))
        I("s_mov_b64 exec, -1")
    if FUSE:
        if KPF:
            I("s_waitcnt vmcnt(0)")
            I("s_barrier")
            kvloads()
            if "vpf1" in FLAGS:
                I("s_mov_b64 exec, s[54:55]")
                I("buffer_load_dword v57, v55, s[36:39], s51 offen")
                I("s_mov_b64 exec, -1")
        else:
            I("s_waitcnt vmcnt(13)")
        stage_seg(HW0, 10)
        I("s_mov_b32 s49, 0x3f803f80")
        I(f"s_waitcnt vmcnt({0 if 'vpf1' not in FLAGS else 1}) lgkmcnt(0)")
        vloads()
        stamp()
        for r in range(3):
            for c in range(4):
                I(f"v_mov_b32_dpp v{KP+4*r+c}, v{KO+4*(r+1)+c} wave_shr:1 row_mask:0xf bank_mask:0xf")
        def krow(r): return (KP + 4*r) if r < 3 else (KO + 4*(r-3))
        chains = [(i, h) for i in range(4) for h in range(2)]
        def T(j, i, h): return TC + 8*j + 2*i + h
        for j in range(4):
            for h in range(2):
                I(f"s_lshl_b32 s{50+h}, s{84+4*j+2*h}, 16")
                I(f"s_and_b32 s{52+h}, s{84+4*j+2*h}, 0xffff0000")
                I(f"s_lshl_b32 s{54+h}, s{85+4*j+2*h}, 16")
                I(f"s_and_b32 s{56+h}, s{85+4*j+2*h}, 0xffff0000")
            for r in range(7):
                lo16(KF+2*r, krow(r)+j); hi16(KF+2*r+1, krow(r)+j)
            def P(i, t): return PP + (i*4 + t)*2
            for i in range(4):
                for t in range(4):
                    r = i + 3 - t
                    I(f"v_pk_mul_f32 v[{P(i,t)}:{P(i,t)+1}], v[{KF+2*r}:{KF+2*r+1}], s[{50+2*t}:{51+2*t}]")
            for (i, h) in chains: I(f"v_cvt_pk_bf16_f32 v{T(j,i,h)}, v{P(i,3)+h}, v{P(i,2)+h}")
            for t in (1, 0):
                for (i, h) in chains: I(f"v_dot2_f32_bf16 v{T(j,i,h)}, v{T(j,i,h)}, s49, 0")
                for (i, h) in chains: I(f"v_cvt_pk_bf16_f32 v{T(j,i,h)}, v{T(j,i,h)}, v{P(i,t)+h}")
            for (i, h) in chains: I(f"v_dot2_f32_bf16 v{T(j,i,h)}, v{T(j,i,h)}, s49, 0")
            for (i, h) in chains:
                if h == 0: I(f"v_cvt_pk_bf16_f32 v{T(j,i,h)}, v{T(j,i,h)}, 0")
                else: I(f"v_cvt_pk_bf16_f32 v{T(j,i,h)}, 0, v{T(j,i,h)}")
        I("s_waitcnt vmcnt(0)")
        for j in range(4):
            for (i, h) in chains: I(f"v_dot2_f32_bf16 v{T(j,i,h)}, v{T(j,i,h)}, v{VV+4*i+j}, 0")
        I("s_nop 1")
        for j in range(4):
            for h in range(2):
                o = PP + 2*h + 4*j
                I(f"v_cvt_pk_bf16_f32 v{o+1}, v{T(j,1,h)}, v{T(j,0,h)}")
                I(f"v_cvt_pk_bf16_f32 v{o}, v{T(j,3,h)}, v{T(j,2,h)}")
            for h in range(2):
                o = PP + 2*h + 4*j
                ch = 2*j + h
                I(f"ds_write_b64 v{52 + ch//4}, v[{o}:{o+1}] offset:{(ch % 4)*WREG}")
        I("s_waitcnt lgkmcnt(0)")
        I("s_barrier")
    else:
        I("s_waitcnt vmcnt(2)")
        stamp()
        for j in range(4):
            I(f"ds_write_b128 v4, v[{XL+4*j}:{XL+4*j+3}] offset:{16*80*j}")
        stage_seg(HW0, 10)
    q = DSQ()
    def crd(c, both, part=None):
        f = FR + (c % CR)*12
        boff = (c >> 1)*80 + (c & 1)*32
        if part in (None, 0):
            if c < 16:
                I(f"ds_read_b128 v[{f}:{f+3}], v7 offset:{32*c}")
            else:
                I(f"ds_read_b128 v[{f}:{f+3}], v14 offset:{32*(c-16)}")
            q.push(("r", c))
            I(f"ds_read_b128 v[{f+4}:{f+7}], v9 offset:{boff}")
            q.push(("r", c))
        if both and part in (None, 1):
            I(f"ds_read_b128 v[{f+8}:{f+11}], v8 offset:{boff}")
            q.push(("r", c))
    if CMG:
        def mrd(c, part):
            f = FR + (c % 4)*16
            boff = (c >> 1)*80 + (c & 1)*32
            va, ao = (7, 32*c) if c < 8 else (14, 32*(c-8))
            if part == 0: I(f"ds_read_b128 v[{f}:{f+3}], v{va} offset:{ao}")
            if part == 1: I(f"ds_read_b128 v[{f+4}:{f+7}], v{va} offset:{ao+HHI}")
            if part == 2: I(f"ds_read_b128 v[{f+8}:{f+11}], v8 offset:{boff}")
            if part == 3: I(f"ds_read_b128 v[{f+12}:{f+15}], v9 offset:{boff}")
            q.push(("r", c))
        for j in range(16): I(f"v_mov_b32 v{AC2+j}, 0")
        for c in range(CLA):
            for part in range(4): mrd(c, part)
        I("s_mov_b32 s33, 0")
        stamp()
        e("CV_loopm:")
        q.q = [("r", c) for c in range(CLA) for _ in range(4)]
        w = HW1
        def AL(dst, t): return f"v_alignbit_b32 v{dst+t}, v{w+t+1}, v{w+t}, 16"
        def MV(t): return f"v_mov_b32 v{WO+t}, v{w+t}"
        def WR(c):
            if c % 2 == 0:
                t0 = c // 2
                r = UE + t0 if t0 % 2 == 0 else UO + t0
            else:
                t0 = (1 + c)//2
                r = w + t0 if t0 % 2 == 0 else WO + t0
            return ("W", f"ds_write_b128 v11, v[{r}:{r+3}] offset:{c*CST}")
        slots = [[WR(3), AL(UE,0), AL(UE,1)], [WR(7), AL(UE,2), AL(UE,3)], [WR(0), AL(UE,4), AL(UE,5)],
                 [WR(4), MV(1), MV(2)], [MV(3), MV(4)], [WR(1), MV(5), MV(6)],
                 [WR(5), AL(UO,1), AL(UO,2)], [AL(UO,3), AL(UO,4)], [WR(2), AL(UO,5), AL(UO,6)],
                 [WR(6)], ["L"], []]
        def slot(i):
            if i < 0 or i >= len(slots): return
            for x in slots[i]:
                if x == "L":
                    I(f"buffer_load_dwordx4 v[{HW1}:{HW1+3}], v2, s[8:11], s29 offen")
                    I(f"buffer_load_dwordx4 v[{HW1+4}:{HW1+7}], v2, s[8:11], s29 offen offset:16")
                    I("s_add_u32 s29, s29, 256")
                elif isinstance(x, tuple):
                    I("s_mov_b64 exec, s[30:31]")
                    I(x[1]); q.push(("w", 0))
                    I("s_mov_b64 exec, -1")
                else: I(x)
        for c in range(8):
            if c == 1: I("s_waitcnt vmcnt(0)")
            f = FR + (c % 4)*16
            q.wait_for(("r", c))
            I(f"v_mfma_f32_32x32x16_bf16 v[{AC0}:{AC0+15}], v[{f}:{f+3}], v[{f+8}:{f+11}], v[{AC0}:{AC0+15}]")
            mrd(c + CLA, 0)
            slot(3*(c-1))
            I(f"v_mfma_f32_32x32x16_bf16 v[{AC1}:{AC1+15}], v[{f}:{f+3}], v[{f+12}:{f+15}], v[{AC1}:{AC1+15}]")
            mrd(c + CLA, 1); mrd(c + CLA, 2)
            slot(3*(c-1)+1 if c >= 1 else -1)
            I(f"v_mfma_f32_32x32x16_bf16 v[{AC2}:{AC2+15}], v[{f+4}:{f+7}], v[{f+8}:{f+11}], v[{AC2}:{AC2+15}]")
            mrd(c + CLA, 3)
            slot(3*(c-1)+2 if c >= 1 else -1)
        I("v_swap_b32 v7, v14")
        I("v_swap_b32 v10, v11")
        I("v_add_u32 v8, 320, v8")
        I("v_add_u32 v9, 320, v9")
        I("s_add_u32 s33, s33, 1")
        I("s_cmp_lt_u32 s33, 8")
        I("s_cbranch_scc1 CV_loopm")
        I("s_nop 7")
        I("s_nop 7")
        I("s_nop 3")
        for j in range(16): I(f"v_add_f32 v{AC1+j}, v{AC1+j}, v{AC2+j}")
    else:
        for c in range(CLA):
            crd(c, True)
        I("s_mov_b32 s33, 0")
        stamp()
    for phase in range(2 if not CMG else 0):
        both = (phase == 0)
        e(f"CV_loop{phase}:")
        q.q = [("r", c) for c in range(CLA) for _ in range(3 if both else 2)]
        for c in range(16):
            if c == 1:
                I("s_waitcnt vmcnt(0)")
                stage_seg(HW1, 11)
                if "cvnoload" not in FLAGS:
                    I(f"buffer_load_dwordx4 v[{HW1}:{HW1+3}], v2, s[8:11], s29 offen")
                    I(f"buffer_load_dwordx4 v[{HW1+4}:{HW1+7}], v2, s[8:11], s29 offen offset:16")
                I("s_add_u32 s29, s29, 512")
            f = FR + (c % CR)*12
            if "cvi" in FLAGS:
                q.wait_for(("r", c))
                I(f"v_mfma_f32_32x32x16_bf16 v[{AC1}:{AC1+15}], v[{f}:{f+3}], v[{f+4}:{f+7}], v[{AC1}:{AC1+15}]")
                crd(c + CLA, both, 0)
                if both:
                    I(f"v_mfma_f32_32x32x16_bf16 v[{AC0}:{AC0+15}], v[{f}:{f+3}], v[{f+8}:{f+11}], v[{AC0}:{AC0+15}]")
                    crd(c + CLA, both, 1)
            else:
                crd(c + CLA, both)
                q.wait_for(("r", c))
                I(f"v_mfma_f32_32x32x16_bf16 v[{AC1}:{AC1+15}], v[{f}:{f+3}], v[{f+4}:{f+7}], v[{AC1}:{AC1+15}]")
                if both:
                    I(f"v_mfma_f32_32x32x16_bf16 v[{AC0}:{AC0+15}], v[{f}:{f+3}], v[{f+8}:{f+11}], v[{AC0}:{AC0+15}]")
        I("v_swap_b32 v7, v14")
        I("v_swap_b32 v10, v11")
        I("v_add_u32 v8, 640, v8")
        I("v_add_u32 v9, 640, v9")
        I("s_add_u32 s33, s33, 1")
        I(f"s_cmp_lt_u32 s33, {4*(phase+1)}")
        I(f"s_cbranch_scc1 CV_loop{phase}")
    I("v_mov_b32 v8, v15")
    I("s_waitcnt vmcnt(0) lgkmcnt(0)")
    stamp()
    I("v_mul_u32_u24 v10, 24, v6")
    I("v_sub_u32 v10, v8, v10")
    I("v_add_u32 v10, 8, v10")
    I("v_subrev_u32 v11, 2560, v10")
    KV = 16
    for cb in range(2):
        for qq in range(4):
            I(f"ds_read_b64 v[{KV+cb*8+2*qq}:{KV+cb*8+2*qq+1}], v{10+cb} offset:{48-16*qq}")
    I("s_and_b32 s25, s24, 1")
    I("s_lshl_b32 s25, s25, 4")
    I("s_lshr_b32 s26, s26, s25")
    I("s_lshl_b32 s26, s26, 16")
    I("v_lshlrev_b32 v12, 6, v5")
    I("v_lshl_add_u32 v12, v6, 3, v12")
    I("v_add_u32 v12, s27, v12")
    I("s_nop 7")
    I("s_waitcnt lgkmcnt(0)")
    for cb in range(2):
        ac = AC0 if cb == 0 else AC1
        for qq in range(4):
            k0 = KV + cb*8 + 2*qq
            t = 40 + (qq % 2)*12
            y = ac + 4*qq
            hi16(t+0, k0+1); lo16(t+1, k0+1); hi16(t+2, k0); lo16(t+3, k0)
            for r in range(4):
                I(f"v_mul_f32 v{t+r}, s26, v{t+r}")
            I(f"v_cvt_pk_bf16_f32 v{t+4}, v{t}, v{t+1}")
            I(f"v_cvt_pk_bf16_f32 v{t+5}, v{t+2}, v{t+3}")
            I(f"v_cvt_pk_bf16_f32 v{t+6}, v{y}, v{y+1}")
            I(f"v_cvt_pk_bf16_f32 v{t+7}, v{y+2}, v{y+3}")
            lo16(t, t+4); hi16(t+1, t+4); lo16(t+2, t+5); hi16(t+3, t+5)
            lo16(y, t+6); hi16(y+1, t+6); lo16(y+2, t+7); hi16(y+3, t+7)
            for r in range(4):
                I(f"v_add_f32 v{t+r}, v{t+r}, v{y+r}")
            I(f"v_cvt_pk_bf16_f32 v{t+8}, v{t}, v{t+1}")
            I(f"v_cvt_pk_bf16_f32 v{t+9}, v{t+2}, v{t+3}")
            I(f"buffer_store_dwordx2 v[{t+8}:{t+9}], v12, s[20:23], 0 offen offset:{cb*2048+16*qq}")
    I("s_waitcnt vmcnt(0)")
    stamp()
    stamp_dump(255 if BIG else N_G1 + 7)
    if BIG: wgt_end(1)
    I("s_endpgm")
    e("M_wdt:")
    I("s_waitcnt lgkmcnt(0)")
    if "wlate" in FLAGS: I("s_barrier")
    if BIG and "pfm" in FLAGS:
        I("s_sub_u32 s26, s3, 6")
        I("s_mul_i32 s27, s26, 176")
        I("s_sub_u32 s27, s24, s27")
        I("s_lshl_b32 s26, s26, 3")
        I("s_add_u32 s26, s26, 56")
        I("s_load_dwordx2 s[28:29], s[0:1], s26")
        I("s_mul_i32 s27, s27, 12800")
        I(f"s_mov_b32 s30, {SZ_W}")
        I("s_mov_b32 s31, 0x00020000")
        I("v_and_b32 v1, 63, v0")
        I("v_lshlrev_b32 v1, 4, v1")
        I("s_waitcnt lgkmcnt(0)")
        for i in range(13):
            I(f"buffer_load_dwordx4 v[{100+4*i}:{103+4*i}], v1, s[28:31], s27 offen")
            I("s_add_u32 s27, s27, 1024")
    if "pfa128" in FLAGS or "pfa64" in FLAGS:
        G = 128 if "pfa128" in FLAGS else 64
        NL = 1792 // G
        I("s_cmp_lg_u32 s3, 3")
        I("s_cbranch_scc1 M_nopf")
        I("s_bfe_u32 s26, s2, 0x50003")
        I("s_lshr_b32 s27, s26, 4")
        I("s_lshl_b32 s27, s27, 3")
        I("s_add_u32 s27, s27, 56")
        I("s_load_dwordx2 s[28:29], s[0:1], s27")
        I("s_and_b32 s26, s26, 15")
        I("s_mul_i32 s26, s26, 138240")
        I("s_bfe_u32 s27, s2, 0x10002")
        I("s_mul_i32 s27, s27, 1792")
        I("s_add_u32 s26, s26, s27")
        I(f"s_mov_b32 s30, {SZ_W}")
        I("s_mov_b32 s31, 0x00020000")
        I("v_and_b32 v1, 63, v0")
        I("s_waitcnt lgkmcnt(0)")
        n = (40*NL + 63)//64
        mul = (65536 + NL - 1)//NL
        for i in range(n):
            I(f"v_add_u32 v2, {64*i}, v1")
            I(f"v_mul_u32_u24 v3, {mul}, v2")
            I("v_lshrrev_b32 v3, 16, v3")
            I(f"v_mul_u32_u24 v4, {NL}, v3")
            I("v_sub_u32 v4, v2, v4")
            I("v_mul_u32_u24 v3, 3456, v3")
            I(f"v_lshl_add_u32 v{100+i}, v4, {7 if G==128 else 6}, v3")
            I(f"buffer_load_dword v{140+i}, v{100+i}, s[28:31], s26 offen")
        e("M_nopf:")
    WBAR = 0
    for f_ in FLAGS:
        if f_.startswith("wbar"): WBAR = int(f_[4:])
    I("s_cmp_ge_u32 s24, 270")
    I(f"s_cbranch_scc1 {'M_exitb' if WBAR else 'M_exitw'}")
    I("s_load_dwordx2 s[4:5], s[0:1], 72")
    I("s_mul_i32 s17, s24, 0xCCCD")
    I("s_lshr_b32 s17, s17, 19")
    I("s_mul_i32 s18, s17, 10")
    I("s_sub_u32 s18, s24, s18")
    I("v_and_b32 v1, 7, v0")
    I("v_bfe_u32 v2, v0, 3, 2")
    I("v_bfe_u32 v6, v0, 5, 1")
    I("s_lshl_b32 s18, s18, 6")
    I("v_lshl_add_u32 v1, v1, 3, s18")
    I("s_lshl_b32 s19, s17, 1")
    I("v_add_u32 v6, s19, v6")
    I("v_lshlrev_b32 v7, 5, v6")
    I("v_lshl_add_u32 v7, v2, 2, v7")
    I("v_mul_u32_u24 v3, 0x500, v7")
    I("v_lshl_add_u32 v3, v1, 1, v3")
    I("v_add_u32 v4, 0x5000, v3")
    I("s_waitcnt lgkmcnt(0)")
    srd(8, 4, SZ_W)
    srd(12, 6, SZ_W, WS_WDT)
    for i in range(8):
        b = 3 if i < 4 else 4
        I(f"buffer_load_dwordx4 v[{8+4*i}:{11+4*i}], v{b}, s[8:11], 0 offen offset:{(i%4)*1280}")
    I("s_mov_b32 s20, 0x05040100")
    I("s_mov_b32 s21, 0x07060302")
    I("v_lshrrev_b32 v5, 4, v1")
    I("v_mul_u32_u24 v5, 54, v5")
    I("v_add_u32 v5, v5, v6")
    I("v_lshlrev_b32 v5, 10, v5")
    I("v_lshl_add_u32 v5, v2, 8, v5")
    I("v_and_b32 v7, 15, v1")
    I("v_lshl_add_u32 v5, v7, 4, v5")
    for _ in range(WBAR): I("s_barrier")
    I("s_waitcnt vmcnt(0)")
    for dd in range(8):
        ob = 40 + 4*dd
        sel = 20 + (dd & 1)
        for q in range(4):
            I(f"v_perm_b32 v{ob+q}, v{8+4*(2*q+1)+dd//2}, v{8+4*(2*q)+dd//2}, s{sel}")
    for dd in range(8):
        ob = 40 + 4*dd
        I(f"buffer_store_dwordx4 v[{ob}:{ob+3}], v5, s[12:15], 0 offen offset:{16*dd}")
    if WBAR:
        I("s_endpgm")
        e("M_exitb:")
        for _ in range(WBAR): I("s_barrier")
    e("M_exitw:")
    I("s_waitcnt vmcnt(0)")
    e("M_exit:")
    I("s_endpgm")
    if FUSE: kernel_desc("mid_kernel", 256, 102)
    else: kernel_desc("mid_kernel", 256 if any(f.startswith("cla") for f in FLAGS) else (240 if BIG else 208), 80)

def gen_k3():
    kernel_header("fin_kernel")
    I(f"s_cmp_ge_u32 s2, {64 if 'fin64' in FLAGS else 256}")
    I("s_cbranch_scc1 F_exit")
    I("s_load_dwordx2 s[6:7], s[0:1], 96")
    I("s_load_dwordx2 s[4:5], s[0:1], 0")
    I("s_load_dwordx2 s[30:31], s[0:1], 80")
    stamp()
    I("v_lshrrev_b32 v1, 6, v0")
    I("s_nop 0")
    I("v_readfirstlane_b32 s3, v1")
    I("s_waitcnt lgkmcnt(0)")
    srd(8, 6, SZ_W, WS_WDT)
    srd(12, 6, SZ_H, WS_H)
    srd(16, 6, SZ_SD, WS_YT)
    if FUSE: srd(20, 6, S*8, WS_ST)
    else: srd(20, 6, SZ_SD, WS_XN)
    srd(24, 4, SZ_SD)
    srd(32, 30, SZ_SD)
    if "fin2d" in FLAGS:
        I("s_and_b32 s36, s2, 1")
        I("s_lshl_b32 s36, s36, 2")
        I("s_bfe_u32 s37, s2, 0x20003")
        I("s_add_u32 s36, s36, s37")
        I("s_mul_i32 s36, s36, 80")
        I("s_bfe_u32 s37, s2, 0x20001")
        I("s_lshl_b32 s37, s37, 3")
        I("s_lshr_b32 s38, s2, 5")
        I("s_add_u32 s37, s37, s38")
        I("s_lshl_b32 s37, s37, 6")
    elif "finswap" in FLAGS:
        I("s_lshr_b32 s36, s2, 5")
        I("s_mul_i32 s36, s36, 80")
        I("s_and_b32 s37, s2, 31")
        I("s_lshl_b32 s37, s37, 6")
    else:
        I("s_and_b32 s36, s2, 7")
        I("s_mul_i32 s36, s36, 80")
        I("s_lshr_b32 s37, s2, 3")
        I("s_lshl_b32 s37, s37, 6")
    I("s_mul_i32 s38, s3, 14")
    I("s_cmp_eq_u32 s3, 3")
    I("s_cselect_b32 s39, 1, 0")
    I("s_sub_u32 s38, s38, s39")
    I("s_cmp_ge_u32 s3, 2")
    I("s_cselect_b32 s39, 13, 14")
    I("s_add_u32 s47, s38, s39")
    I("s_lshl_b32 s45, s38, 10")
    I("s_lshl_b32 s47, s47, 10")
    if "rot" in FLAGS:
        I("s_bfe_u32 s46, s2, 0x20003")
        I("s_lshl_b32 s46, s46, 2")
        I("s_lshr_b32 s44, s2, 5")
        I("s_lshl_b32 s44, s44, 1")
        I("s_add_u32 s46, s46, s44")
        I("s_cmp_ge_u32 s46, 13")
        I("s_cselect_b32 s44, 13, 0")
        I("s_sub_u32 s46, s46, s44")
        I("s_cmp_ge_u32 s46, 13")
        I("s_cselect_b32 s44, 13, 0")
        I("s_sub_u32 s46, s46, s44")
        I("s_lshl_b32 s46, s46, 10")
        I("s_add_u32 s46, s46, s45")
    else:
        I("s_mov_b32 s46, s45")
    I("s_mov_b32 s44, 0")
    I("v_and_b32 v1, 15, v0")
    I("v_bfe_u32 v2, v0, 4, 2")
    I("v_and_b32 v12, 63, v0")
    if "pf" in FLAGS:
        I("s_lshr_b32 s52, s2, 3")
        I("s_lshl_b32 s52, s52, 2")
        I("s_add_u32 s52, s52, s3")
        I("s_and_b32 s53, s2, 1")
        I("s_mul_i32 s53, s53, 1105920")
        I("s_mul_i32 s54, s52, 8640")
        I("s_add_u32 s53, s53, s54")
        I("v_lshlrev_b32 v240, 6, v12")
        I("buffer_load_dword v241, v240, s[8:11], s53 offen")
        I("s_add_u32 s53, s53, 4096")
        I("buffer_load_dword v242, v240, s[8:11], s53 offen")
        I("s_add_u32 s53, s53, 544")
        I("buffer_load_dword v243, v240, s[8:11], s53 offen")
        I("s_bfe_u32 s53, s2, 0x20001")
        I("s_mul_i32 s53, s53, 1769472")
        I("s_mul_i32 s54, s52, 13824")
        I("s_add_u32 s53, s53, s54")
        for i, inc in enumerate((4096, 4096, 1536, 0)):
            I(f"buffer_load_dword v{244+i}, v240, s[12:15], s53 offen")
            if inc: I(f"s_add_u32 s53, s53, {inc}")
    I("s_lshr_b32 s52, s36, 4")
    I("s_mul_i32 s52, s52, 55296")
    I("v_lshl_add_u32 v3, v12, 4, s52")
    for jd in range(1, 5):
        I(f"v_add_u32 v{3+jd}, {jd*55296}, v3")
    I("s_lshr_b32 s52, s37, 4")
    I("s_mul_i32 s52, s52, 55296")
    I("v_lshl_add_u32 v8, v12, 4, s52")
    for js in range(1, 4):
        I(f"v_add_u32 v{8+js}, {js*55296}, v8")
    def acc(jd, js): return (js*5 + jd)*4
    FRB = 16
    NB = 5
    def ld(buf):
        f = FRB + buf*36
        I("s_cmp_lt_u32 s44, s39")
        I("s_cselect_b32 s48, s46, 0x40000000")
        for jd in range(5):
            r = f + 4*jd
            I(f"buffer_load_dwordx4 v[{r}:{r+3}], v{3+jd}, s[8:11], s48 offen{CP}")
        for js in range(4):
            r = f + 20 + 4*js
            I(f"buffer_load_dwordx4 v[{r}:{r+3}], v{8+js}, s[12:15], s48 offen{CP}")
        I("s_add_u32 s46, s46, 1024")
        I("s_cmp_ge_u32 s46, s47")
        I("s_cselect_b32 s46, s45, s46")
        I("s_add_u32 s44, s44, 1")
    def mm(buf):
        f = FRB + buf*36
        for js in range(4):
            for jd in range(5):
                c = acc(jd, js)
                a = f + 4*jd; b = f + 20 + 4*js
                I(f"v_mfma_f32_16x16x32_bf16 a[{c}:{c+3}], v[{a}:{a+3}], v[{b}:{b+3}], a[{c}:{c+3}]")
    I("s_lshr_b32 s41, s3, 1")
    I("s_lshl_b32 s41, s41, 5")
    I("s_add_u32 s41, s41, s37")
    I("s_lshl_b32 s41, s41, 1")
    I("v_add_u32 v14, s36, v1")
    I("v_lshlrev_b32 v14, 12, v14")
    I("v_lshl_add_u32 v14, v2, 4, v14")
    I("v_add_u32 v14, s41, v14")
    YF = 196
    for jd in range(5):
        I(f"v_add_u32 v15, {jd*16*4096}, v14")
        I(f"buffer_load_dwordx4 v[{YF+4*jd}:{YF+4*jd+3}], v15, s[16:19], 0 offen")
    I("s_lshl_b32 s42, s3, 4")
    I("s_add_u32 s42, s42, s37")
    I("v_add_u32 v15, s42, v1")
    I("v_mul_u32_u24 v15, 0x500, v15")
    I("v_lshl_add_u32 v15, v2, 3, v15")
    I("s_lshl_b32 s43, s36, 1")
    I("v_add_u32 v15, s43, v15")
    XX = 216
    I("s_lshr_b32 s50, s42, 4")
    I("s_mul_i32 s50, s50, 20480")
    I("v_lshrrev_b32 v14, 1, v2")
    I("v_lshlrev_b32 v14, 8, v14")
    I("v_lshl_add_u32 v14, v1, 4, v14")
    I("v_and_b32 v13, 1, v2")
    I("v_lshl_add_u32 v14, v13, 3, v14")
    I("v_add_u32 v14, s50, v14")
    if FUSE:
        I("v_add_u32 v14, s42, v1")
        I("v_lshlrev_b32 v14, 3, v14")
        I(f"buffer_load_dwordx2 v[{XX+10}:{XX+11}], v14, s[20:23], 0 offen")
    for jd in range(5):
        I(f"buffer_load_dwordx2 v[{XX+2*jd}:{XX+2*jd+1}], v15, s[24:27], 0 offen offset:{32*jd}")
        if FUSE: continue
        I(f"s_add_u32 s50, s36, {16*jd}")
        I("s_lshr_b32 s51, s50, 5")
        I("s_lshl_b32 s51, s51, 10")
        I("s_and_b32 s50, s50, 16")
        I("s_lshl_b32 s50, s50, 5")
        I("s_add_u32 s51, s51, s50")
        I(f"buffer_load_dwordx2 v[{XX+10+2*jd}:{XX+11+2*jd}], v14, s[20:23], s51 offen")
    NB2 = NB
    for f_ in FLAGS:
        if f_.startswith("nb"): NB2 = int(f_[2:])
    def breg(buf, i):
        if buf < 5: return "v", FRB + buf*36 + 4*i
        return "a", 80 + (buf-5)*36 + 4*i
    def ld2(buf):
        for jd in range(5):
            t, r = breg(buf, jd)
            I(f"buffer_load_dwordx4 {t}[{r}:{r+3}], v{3+jd}, s[8:11], s46 offen{CP}")
        for js in range(4):
            t, r = breg(buf, 5+js)
            I(f"buffer_load_dwordx4 {t}[{r}:{r+3}], v{8+js}, s[12:15], s46 offen{CP}")
        I("s_add_u32 s46, s46, 1024")
    def mm2(buf):
        for js in range(4):
            for jd in range(5):
                c = acc(jd, js)
                t, a = breg(buf, jd); t, b = breg(buf, 5+js)
                I(f"v_mfma_f32_16x16x32_bf16 a[{c}:{c+3}], {t}[{a}:{a+3}], {t}[{b}:{b+3}], a[{c}:{c+3}]")
    for b in range(NB2-1):
        ld2(b)
    for j in range(80):
        I(f"v_accvgpr_write_b32 a{j}, 0")
    HOIST = "hoist" in FLAGS
    if HOIST:
        IDB2, TQ, TYQ = 244, 248, 236
        I("s_and_b32 s44, s3, 1")
        I("s_lshl_b32 s44, s44, 4")
        I(f"v_add_u32 v{TQ}, s44, v1")
        I(f"v_lshrrev_b32 v{TQ+1}, 3, v{TQ}")
        I(f"v_cmp_eq_u32 vcc, v{TQ+1}, v2")
        I(f"v_and_b32 v{TQ+1}, 7, v{TQ}")
        I(f"v_and_b32 v{TQ+2}, 1, v{TQ+1}")
        I(f"v_lshlrev_b32 v{TQ+2}, 4, v{TQ+2}")
        I(f"v_mov_b32 v{TQ+3}, 0x3f80")
        I(f"v_lshlrev_b32 v{TQ+3}, v{TQ+2}, v{TQ+3}")
        I(f"v_lshrrev_b32 v{TQ+1}, 1, v{TQ+1}")
        I(f"v_cndmask_b32 v{TQ+3}, 0, v{TQ+3}, vcc")
        for j in range(4):
            I(f"v_cmp_eq_u32 vcc, {j}, v{TQ+1}")
            I("s_nop 1")
            I(f"v_cndmask_b32 v{IDB2+j}, 0, v{TQ+3}, vcc")
        I(f"s_waitcnt vmcnt({9*(NB2-1)})")
        I("s_nop 1")
        for jd in range(5):
            ty = TYQ + (jd % 2)*4; t = TQ + (jd % 2)*4
            x0 = XX + 2*jd; n0 = XX + 10 + 2*jd
            I(f"v_mfma_f32_16x16x32_bf16 v[{ty}:{ty+3}], v[{YF+4*jd}:{YF+4*jd+3}], v[{IDB2}:{IDB2+3}], 0")
            if FUSE:
                lo16(t, x0); hi16(t+1, x0); lo16(t+2, x0+1); hi16(t+3, x0+1)
                for r in range(4): I(f"v_add_f32 v{t+r}, v{t+r}, v{XX+11}")
                for r in range(4): I(f"v_cvt_pk_bf16_f32 v{t+r}, 0, v{t+r}")
                for r in range(4): I(f"v_mul_f32 v{t+r}, v{t+r}, v{XX+10}")
                for r in range(4): I(f"v_cvt_pk_bf16_f32 v{t+r}, 0, v{t+r}")
            else:
                lo16(t, n0); hi16(t+1, n0); lo16(t+2, n0+1); hi16(t+3, n0+1)
            I("s_nop 7")
            I("s_nop 3")
            for r in range(4):
                I(f"v_mul_f32 v{t+r}, v{t+r}, v{ty+r}")
            I(f"v_cvt_pk_bf16_f32 v{ty}, v{t}, v{t+1}")
            I(f"v_cvt_pk_bf16_f32 v{ty+1}, v{t+2}, v{t+3}")
            lo16(t, ty); hi16(t+1, ty); lo16(t+2, ty+1); hi16(t+3, ty+1)
            lo16(ty, x0); hi16(ty+1, x0); lo16(ty+2, x0+1); hi16(ty+3, x0+1)
            for r in range(4):
                I(f"v_add_f32 v{t+r}, v{t+r}, v{ty+r}")
            I(f"v_cvt_pk_bf16_f32 v{x0}, v{t}, v{t+1}")
            I(f"v_cvt_pk_bf16_f32 v{x0+1}, v{t+2}, v{t+3}")
    stamp()
    for k in range(14):
        nb = k + NB2 - 1
        if nb <= 12:
            ld2(nb % NB2)
        elif nb == 13:
            I("s_cmp_ge_u32 s3, 2")
            I("s_cbranch_scc1 F_skip13")
            ld2(nb % NB2)
            e("F_skip13:")
        if k == 13:
            I("s_cmp_ge_u32 s3, 2")
            I("s_cbranch_scc1 F_done")
        rem = max(0, min(12, nb) - k)
        if k < 13: I(f"s_waitcnt vmcnt({9*rem})")
        mm2(k % NB2)
    e("F_done:")
    stamp()
    I("s_mul_i32 s40, s3, 20480")
    I("v_lshlrev_b32 v13, 4, v12")
    I("v_add_u32 v13, s40, v13")
    I("s_nop 7")
    for js in range(4):
        for jd in range(5):
            c = acc(jd, js)
            I(f"ds_write_b128 v13, a[{c}:{c+3}] offset:{(js*5+jd)*1024}")
    I("s_waitcnt lgkmcnt(0)")
    I("s_barrier")
    I("s_mul_i32 s40, s3, 5120")
    I("v_lshlrev_b32 v12, 4, v12")
    I("v_add_u32 v13, s40, v12")
    I("v_add_u32 v12, 40960, v13")
    R = 96
    for src in range(4):
        for jd in range(5):
            r = R + (src*5 + jd)*4
            I(f"ds_read_b128 v[{r}:{r+3}], v{13 if src < 2 else 12} offset:{(src%2)*20480 + jd*1024}")
    if HOIST:
        I("s_waitcnt lgkmcnt(0)")
        for jd in range(5):
            r0 = R + jd*4
            I(f"v_add_f32 v{r0}, v{r0}, v{R+(5+jd)*4}")
            I(f"v_add_f32 v{r0+1}, v{r0+1}, v{R+(5+jd)*4+1}")
            I(f"v_add_f32 v{r0+2}, v{r0+2}, v{R+(5+jd)*4+2}")
            I(f"v_add_f32 v{r0+3}, v{r0+3}, v{R+(5+jd)*4+3}")
            for src in range(2, 4):
                r = R + (src*5 + jd)*4
                for j in range(4):
                    I(f"v_add_f32 v{r0+j}, v{r0+j}, v{r+j}")
            b = r0; t = 16 + (jd % 2)*16; x0 = XX + 2*jd
            I(f"v_cvt_pk_bf16_f32 v{t+4}, v{b}, v{b+1}")
            I(f"v_cvt_pk_bf16_f32 v{t+5}, v{b+2}, v{b+3}")
            lo16(t, x0); hi16(t+1, x0); lo16(t+2, x0+1); hi16(t+3, x0+1)
            lo16(t+6, t+4); hi16(t+7, t+4); lo16(t+8, t+5); hi16(t+9, t+5)
            for r in range(4):
                I(f"v_add_f32 v{t+r}, v{t+r}, v{t+6+r}")
            I(f"v_cvt_pk_bf16_f32 v{t+10}, v{t}, v{t+1}")
            I(f"v_cvt_pk_bf16_f32 v{t+11}, v{t+2}, v{t+3}")
            I(f"buffer_store_dwordx2 v[{t+10}:{t+11}], v15, s[32:35], 0 offen offset:{32*jd}")
    else:
        IDB = 60
        I("s_and_b32 s44, s3, 1")
        I("s_lshl_b32 s44, s44, 4")
        I("v_add_u32 v64, s44, v1")
        I("v_lshrrev_b32 v65, 3, v64")
        I("v_cmp_eq_u32 vcc, v65, v2")
        I("v_and_b32 v65, 7, v64")
        I("v_and_b32 v66, 1, v65")
        I("v_lshlrev_b32 v66, 4, v66")
        I("v_mov_b32 v67, 0x3f80")
        I("v_lshlrev_b32 v67, v66, v67")
        I("v_lshrrev_b32 v65, 1, v65")
        I("v_cndmask_b32 v67, 0, v67, vcc")
        for j in range(4):
            I(f"v_cmp_eq_u32 vcc, {j}, v65")
            I("s_nop 1")
            I(f"v_cndmask_b32 v{IDB+j}, 0, v67, vcc")
        TY = 64
        I("s_nop 1")
        for jd in range(5):
            I(f"v_mfma_f32_16x16x32_bf16 v[{TY+4*jd}:{TY+4*jd+3}], v[{YF+4*jd}:{YF+4*jd+3}], v[{IDB}:{IDB+3}], 0")
        I("s_waitcnt lgkmcnt(0)")
        for jd in range(5):
            r0 = R + jd*4
            for src in range(1, 4):
                r = R + (src*5 + jd)*4
                for j in range(4):
                    I(f"v_add_f32 v{r0+j}, v{r0+j}, v{r+j}")
        I("s_waitcnt vmcnt(0)")
        for jd in range(5):
            b = R + jd*4
            ty = TY + 4*jd
            t = 180 + (jd % 2)*16
            x0 = XX + 2*jd; n0 = XX + 10 + 2*jd
            lo16(t, n0); hi16(t+1, n0); lo16(t+2, n0+1); hi16(t+3, n0+1)
            for r in range(4):
                I(f"v_mul_f32 v{t+r}, v{t+r}, v{ty+r}")
            I(f"v_cvt_pk_bf16_f32 v{t+4}, v{t}, v{t+1}")
            I(f"v_cvt_pk_bf16_f32 v{t+5}, v{t+2}, v{t+3}")
            lo16(t, t+4); hi16(t+1, t+4); lo16(t+2, t+5); hi16(t+3, t+5)
            lo16(t+6, x0); hi16(t+7, x0); lo16(t+8, x0+1); hi16(t+9, x0+1)
            for r in range(4):
                I(f"v_add_f32 v{t+r}, v{t+r}, v{t+6+r}")
            I(f"v_cvt_pk_bf16_f32 v{t+4}, v{t}, v{t+1}")
            I(f"v_cvt_pk_bf16_f32 v{t+5}, v{t+2}, v{t+3}")
            lo16(t, t+4); hi16(t+1, t+4); lo16(t+2, t+5); hi16(t+3, t+5)
            I(f"v_cvt_pk_bf16_f32 v{t+4}, v{b}, v{b+1}")
            I(f"v_cvt_pk_bf16_f32 v{t+5}, v{b+2}, v{b+3}")
            lo16(t+6, t+4); hi16(t+7, t+4); lo16(t+8, t+5); hi16(t+9, t+5)
            for r in range(4):
                I(f"v_add_f32 v{t+r}, v{t+r}, v{t+6+r}")
            I(f"v_cvt_pk_bf16_f32 v{t+10}, v{t}, v{t+1}")
            I(f"v_cvt_pk_bf16_f32 v{t+11}, v{t+2}, v{t+3}")
            I(f"buffer_store_dwordx2 v[{t+10}:{t+11}], v15, s[32:35], 0 offen offset:{32*jd}")
    I("s_waitcnt vmcnt(0)")
    stamp()
    stamp_dump(9)
    e("F_exit:")
    I("s_endpgm")
    kernel_desc("fin_kernel", 256+80+36*max(0, NB2-5), 80, accum=256)

def main():
    hdr = open("parallel_sum__ssm_conv_h3__glu_gated_bilinear__prompt.s.ref").read().splitlines()
    for line in hdr:
        if line.startswith("; @launch"):
            break
        if line.startswith(";"):
            e(line)
    if not FUSE: e(f"; @launch kernel=prep_kernel grid=({N_LN+N_KV+N_PF},1,1) block=(256,1,1) lds=0")
    if BIG:
        e("; @launch kernel=mid_kernel grid=(256,1,1) block=(512,1,1) lds=163840")
    else:
        e(f"; @launch kernel=mid_kernel grid=({N_G1+N_CV},1,1) block=(256,1,1) lds={LDS2}")
    e(f"; @launch kernel=fin_kernel grid=(256,1,1) block=(256,1,1) lds=81920")
    e('.amdgcn_target "amdgcn-amd-amdhsa--gfx950"')
    if not FUSE: gen_prep()
    gen_k2()
    gen_k3()
    dst = sys.argv[1] if len(sys.argv) > 1 else "parallel_sum__ssm_conv_h3__glu_gated_bilinear__prompt.s"
    open(dst, "w").write("\n".join(out) + "\n")

main()
```

```python
import sys

import os
FLAGS = os.environ.get("GENFLAGS", "").split(",")
CP = " nt" if "cpnt" in FLAGS else (" sc1" if "cpsc1" in FLAGS else (" sc0 sc1" if "cpsc01" in FLAGS else ""))
S, D, F = 2048, 640, 1728
WS_XN  = 0x0
WS_KVR = 0x280000
WS_WDT = 0x500000
WS_H   = 0x800000
WS_YT  = 0x1000000
WS_ST  = 0x1400000
FUSE = "fuse" in FLAGS
SZ_SD = S * D * 2
SZ_W  = D * F * 2
SZ_H  = S * F * 2

out = []
def e(s=""):
    out.append(s)
SP = " nt" if "stnt" in FLAGS else (" sc0 sc1" if "stsc" in FLAGS else (" sc1" if "stsc1" in FLAGS else (" sc0 sc1 nt" if "stall" in FLAGS else "")))
def I(s):
    if s.startswith("buffer_store") and "s[56:59]" not in s: s += SP
    out.append("    " + s)

def srd(base, ptr, size, off=0):
    if off:
        I(f"s_add_u32 s{base}, s{ptr}, {off:#x}")
        I(f"s_addc_u32 s{base+1}, s{ptr+1}, 0")
    else:
        I(f"s_mov_b32 s{base}, s{ptr}")
        I(f"s_mov_b32 s{base+1}, s{ptr+1}")
    I(f"s_mov_b32 s{base+2}, {size:#x}")
    I(f"s_mov_b32 s{base+3}, 0x00020000")

def lo16(dst, src): I(f"v_lshlrev_b32 v{dst}, 16, v{src}")
def hi16(dst, src): I(f"v_and_b32 v{dst}, 0xffff0000, v{src}")

STAMP = "stamp" in FLAGS
nst = [0]
def stamp():
    if STAMP:
        i = nst[0]; nst[0] += 1
        I(f"s_memtime s[{60+2*i}:{61+2*i}]")
def stamp_dump(wg):
    if not STAMP: return
    n = nst[0]; nst[0] = 0
    if "ast" in FLAGS:
        kidx = 1 if wg == 9 else 0
        I("s_waitcnt lgkmcnt(0) vmcnt(0)")
        I("s_load_dwordx2 s[56:57], s[0:1], 96")
        I("s_memrealtime s[58:59]")
        I("s_waitcnt lgkmcnt(0)")
        I("v_mov_b32 v3, s58")
        I(f"s_add_u32 s56, s56, {0x1800000 + kidx*0x40000}")
        I("s_addc_u32 s57, s57, 0")
        I("s_mov_b32 s58, 0x40000")
        I("s_mov_b32 s59, 0x00020000")
        I("s_lshl_b32 s61, s2, 3")
        I("s_add_u32 s61, s61, s3")
        I("s_lshl_b32 s61, s61, 6")
        I("v_mov_b32 v1, s61")
        I("buffer_store_dword v3, v1, s[56:59], 0 offen")
        for i in range(1, n):
            I(f"s_sub_u32 s{61+2*i}, s{60+2*i}, s60")
            I(f"v_mov_b32 v2, s{61+2*i}")
            I(f"buffer_store_dword v2, v1, s[56:59], 0 offen offset:{4*i}")
        I("s_waitcnt vmcnt(0)")
        return
    I("s_waitcnt lgkmcnt(0) vmcnt(0)")
    I(f"s_cmp_lg_u32 s2, {wg}")
    I(f"s_cbranch_scc1 SD_skip{wg}")
    I("s_cmp_lg_u32 s3, 0")
    I(f"s_cbranch_scc1 SD_skip{wg}")
    I("s_load_dwordx2 s[56:57], s[0:1], 88")
    I("s_waitcnt lgkmcnt(0)")
    I("s_mov_b32 s58, 256")
    I("s_mov_b32 s59, 0x00020000")
    I("v_mov_b32 v1, 0")
    for i in range(n):
        I(f"s_sub_u32 s{61+2*i}, s{60+2*i}, s60")
        I(f"v_mov_b32 v2, s{61+2*i}")
        I(f"buffer_store_dword v2, v1, s[56:59], 0 offen offset:{4*i + (64 if wg == 255 else 0)}")
    I("s_waitcnt vmcnt(0)")
    e(f"SD_skip{wg}:")

WGT = "wgt" in FLAGS
def wgt_start():
    if WGT: I("s_memrealtime s[76:77]")
wgtn = [0]
def wgt_end(kidx):
    if not WGT: return
    n = wgtn[0]; wgtn[0] += 1
    I("s_waitcnt vmcnt(0) lgkmcnt(0)")
    I("s_memrealtime s[78:79]")
    I("s_load_dwordx2 s[72:73], s[0:1], 96")
    I("v_lshrrev_b32 v1, 6, v0")
    I("s_nop 0")
    I("v_readfirstlane_b32 s70, v1")
    I("s_lshl_b32 s71, s2, 3")
    I("s_add_u32 s70, s70, s71")
    I("s_lshl_b32 s70, s70, 3")
    I("s_waitcnt lgkmcnt(0)")
    I(f"s_add_u32 s72, s72, {0x1800000 + kidx*0x10000}")
    I("s_addc_u32 s73, s73, 0")
    I("s_mov_b32 s74, 0x10000")
    I("s_mov_b32 s75, 0x00020000")
    I("v_mov_b32 v2, s76")
    I("v_mov_b32 v3, s78")
    I("v_mov_b32 v1, s70")
    I("buffer_store_dwordx2 v[2:3], v1, s[72:75], 0 offen")
    I("s_waitcnt vmcnt(0)")

def kernel_header(name):
    e(".text")
    e(f".globl {name}")
    e(".p2align 8")
    e(f".type {name},@function")
    e(f"{name}:")

def kernel_desc(name, vgpr, sgpr, accum=None):
    if accum is None:
        accum = (vgpr + 3) // 4 * 4
    e('.section .rodata,"a"')
    e(".p2align 6")
    e(f".amdhsa_kernel {name}")
    e(f"  .amdhsa_next_free_vgpr {vgpr}")
    e(f"  .amdhsa_next_free_sgpr {sgpr}")
    e(f"  .amdhsa_accum_offset {accum}")
    e("  .amdhsa_group_segment_fixed_size 0")
    e("  .amdhsa_kernarg_size 104")
    e("  .amdhsa_user_sgpr_count 2")
    e("  .amdhsa_user_sgpr_kernarg_segment_ptr 1")
    e("  .amdhsa_system_sgpr_workgroup_id_x 1")
    e(".end_amdhsa_kernel")

N_LN, N_KV = 128, 160
N_PF = 0
if "pfw" in FLAGS: N_PF = 4*36
if "pfw2" in FLAGS: N_PF = 2*36
def gen_prep():
    kernel_header("prep_kernel")
    I(f"s_cmp_ge_u32 s2, {N_LN+N_KV+N_PF}")
    I("s_cbranch_scc1 P_exit")
    if N_PF:
        I(f"s_cmp_ge_u32 s2, {N_LN+N_KV}")
        I("s_cbranch_scc1 P_pf")
    I("s_load_dwordx2 s[6:7], s[0:1], 96")
    I(f"s_cmp_lt_u32 s2, {N_KV}")
    I("s_cbranch_scc1 P_kv")
    if "noln" in FLAGS: I("s_endpgm")
    I("s_load_dwordx2 s[4:5], s[0:1], 0")
    I("v_lshrrev_b32 v1, 4, v0")
    I(f"s_sub_u32 s3, s2, {N_KV}")
    I("s_lshl_b32 s3, s3, 4")
    I("v_add_u32 v1, s3, v1")
    I("v_mul_u32_u24 v2, 0x500, v1")
    I("v_and_b32 v3, 15, v0")
    I("v_lshl_add_u32 v2, v3, 4, v2")
    I("s_waitcnt lgkmcnt(0)")
    srd(8, 4, SZ_SD)
    srd(12, 6, SZ_SD, WS_XN)
    for j in range(5):
        I(f"buffer_load_dwordx4 v[{4+4*j}:{7+4*j}], v2, s[8:11], 0 offen offset:{256*j}")
    I("v_lshrrev_b32 v2, 4, v1")
    I("v_mul_u32_u24 v2, 20480, v2")
    I("v_lshrrev_b32 v64, 2, v3")
    I("v_lshl_add_u32 v2, v64, 10, v2")
    I("v_and_b32 v64, 3, v3")
    I("v_lshl_add_u32 v2, v64, 8, v2")
    I("v_and_b32 v64, 15, v1")
    I("v_lshl_add_u32 v2, v64, 4, v2")
    I("s_waitcnt vmcnt(0)")
    X = 24
    for j in range(20):
        lo16(X + 2*j, 4 + j)
        hi16(X + 2*j + 1, 4 + j)
    T = 64
    for j in range(20):
        I(f"v_add_f32 v{T+j}, v{X+2*j}, v{X+2*j+1}")
    def tree(base, n):
        while n > 1:
            h = n // 2
            for j in range(h):
                I(f"v_add_f32 v{base+j}, v{base+j}, v{base+n-1-j}")
            n = n - h
    tree(T, 20)
    def dpp_reduce(r, tmp):
        for sh in (8, 4, 2, 1):
            I("s_nop 1")
            I(f"v_add_f32_dpp v{tmp}, v{r}, v{r} row_ror:{sh} row_mask:0xf bank_mask:0xf")
            I(f"v_mov_b32 v{r}, v{tmp}")
    dpp_reduce(T, T+1)
    I(f"v_mul_f32 v{T}, {1.0/640.0!r}, v{T}")
    for j in range(40):
        I(f"v_sub_f32 v{T+2+j}, v{X+j}, v{T}")
    for j in range(40):
        I(f"v_mul_f32 v{T+2+j}, v{T+2+j}, v{T+2+j}")
    tree(T+2, 40)
    dpp_reduce(T+2, T+1)
    I(f"v_mul_f32 v{T+2}, {1.0/640.0!r}, v{T+2}")
    I(f"v_cvt_pk_bf16_f32 v{T}, v{T}, v{T+2}")
    hi16(T+2, T)
    lo16(T, T)
    I(f"v_add_f32 v{T+2}, {1e-5!r}, v{T+2}")
    I(f"v_cvt_pk_bf16_f32 v{T+2}, v{T+2}, v{T+2}")
    lo16(T+2, T+2)
    I(f"v_sqrt_f32 v{T+2}, v{T+2}")
    I("s_nop 0")
    I(f"v_cvt_pk_bf16_f32 v{T+2}, v{T+2}, v{T+2}")
    lo16(T+2, T+2)
    I(f"v_rcp_f32 v{T+3}, v{T+2}")
    I("s_nop 0")
    for j in range(20):
        a, b = X + 2*j, X + 2*j + 1
        I(f"v_sub_f32 v{a}, v{a}, v{T}")
        I(f"v_sub_f32 v{b}, v{b}, v{T}")
        I(f"v_cvt_pk_bf16_f32 v{T+4}, v{a}, v{b}")
        lo16(a, T+4)
        hi16(b, T+4)
        for r in (a, b):
            I(f"v_mul_f32 v{T+5}, v{r}, v{T+3}")
            I(f"v_fma_f32 v{T+6}, -v{T+5}, v{T+2}, v{r}")
            I(f"v_fma_f32 v{r}, v{T+6}, v{T+3}, v{T+5}")
        I(f"v_cvt_pk_bf16_f32 v{4+j}, v{a}, v{b}")
        if j % 4 == 3:
            jj = j // 4
            I(f"s_mov_b32 s16, {4096*jj}")
            I(f"buffer_store_dwordx4 v[{4+4*jj}:{7+4*jj}], v2, s[12:15], s16 offen")
    I("s_endpgm")
    e("P_kv:")
    if "nokv" in FLAGS: I("s_endpgm")
    I("s_load_dwordx4 s[16:19], s[0:1], 8")
    I("s_load_dwordx2 s[4:5], s[0:1], 24")
    I("s_mul_i32 s28, s2, 0xCCCD")
    I("s_lshr_b32 s28, s28, 19")
    I("s_mul_i32 s29, s28, 10")
    I("s_sub_u32 s29, s2, s29")
    I("v_and_b32 v1, 7, v0")
    I("v_lshrrev_b32 v2, 3, v0")
    I("s_lshl_b32 s30, s29, 6")
    I("v_lshl_add_u32 v1, v1, 3, s30")
    I("s_lshl_b32 s31, s28, 7")
    I("v_lshl_add_u32 v2, v2, 2, s31")
    I("v_mul_u32_u24 v3, 0x500, v2")
    I("v_lshl_add_u32 v3, v1, 1, v3")
    for i in range(3):
        I(f"v_subrev_u32 v{5+i}, {(3-i)*1280:#x}, v3")
    I("v_lshlrev_b32 v8, 3, v1")
    I("s_waitcnt lgkmcnt(0)")
    srd(8, 16, SZ_SD)
    srd(12, 18, SZ_SD)
    srd(20, 4, D*4*2)
    srd(24, 6, SZ_SD, WS_KVR)
    KR = 16
    for i in range(3):
        I(f"buffer_load_dwordx4 v[{KR+4*i}:{KR+4*i+3}], v{5+i}, s[8:11], 0 offen")
    for i in range(4):
        I(f"buffer_load_dwordx4 v[{KR+4*(i+3)}:{KR+4*(i+3)+3}], v3, s[8:11], 0 offen offset:{i*1280}")
    VR = KR + 28
    for i in range(4):
        I(f"buffer_load_dwordx4 v[{VR+4*i}:{VR+4*i+3}], v3, s[12:15], 0 offen offset:{i*1280}")
    SK = VR + 16
    for i in range(4):
        I(f"buffer_load_dwordx4 v[{SK+4*i}:{SK+4*i+3}], v8, s[20:23], 0 offen offset:{16*i}")
    I("v_lshlrev_b32 v9, 12, v1")
    I(f"v_sub_u32 v10, {S-4}, v2")
    I("v_lshl_add_u32 v9, v10, 1, v9")
    I("s_waitcnt vmcnt(0)")
    KF = 76
    VF = 83
    SF = 87
    TM = 92
    OB = 104
    for dd in range(8):
        ex = lo16 if dd % 2 == 0 else hi16
        for i in range(7):
            ex(KF + i, KR + 4*i + dd//2)
        for i in range(4):
            ex(VF + i, VR + 4*i + dd//2)
        lo16(SF+0, SK + 2*dd); hi16(SF+1, SK + 2*dd)
        lo16(SF+2, SK + 2*dd + 1); hi16(SF+3, SK + 2*dd + 1)
        ob = OB + 2*(dd % 4)
        for q in range(2):
            sa, sb = 3 - 2*q, 2 - 2*q
            t = TM
            I(f"v_mul_f32 v{t}, v{KF+sa}, v{SF+3}")
            I(f"v_mul_f32 v{t+1}, v{KF+sb}, v{SF+3}")
            I(f"v_mul_f32 v{t+2}, v{KF+sa+1}, v{SF+2}")
            I(f"v_mul_f32 v{t+3}, v{KF+sb+1}, v{SF+2}")
            I(f"v_mul_f32 v{t+4}, v{KF+sa+2}, v{SF+1}")
            I(f"v_mul_f32 v{t+5}, v{KF+sb+2}, v{SF+1}")
            I(f"v_mul_f32 v{t+6}, v{KF+sa+3}, v{SF+0}")
            I(f"v_mul_f32 v{t+7}, v{KF+sb+3}, v{SF+0}")
            for p in range(4):
                I(f"v_cvt_pk_bf16_f32 v{t+8+p}, v{t+2*p}, v{t+2*p+1}")
            for p in range(4):
                lo16(t+2*p, t+8+p); hi16(t+2*p+1, t+8+p)
            for step in (1, 2, 3):
                I(f"v_add_f32 v{t}, v{t}, v{t+2*step}")
                I(f"v_add_f32 v{t+1}, v{t+1}, v{t+2*step+1}")
                I(f"v_cvt_pk_bf16_f32 v{t+8}, v{t}, v{t+1}")
                lo16(t, t+8); hi16(t+1, t+8)
            I(f"v_mul_f32 v{t}, v{t}, v{VF+sa}")
            I(f"v_mul_f32 v{t+1}, v{t+1}, v{VF+sb}")
            I(f"v_cvt_pk_bf16_f32 v{ob+q}, v{t}, v{t+1}")
        I(f"s_mov_b32 s16, {4096*dd}")
        I(f"buffer_store_dwordx2 v[{ob}:{ob+1}], v9, s[24:27], s16 offen")
    if N_PF:
        I("s_endpgm")
        e("P_pf:")
        I(f"s_sub_u32 s3, s2, {N_LN+N_KV}")
        I("s_mul_i32 s4, s3, 1821")
        I("s_lshr_b32 s4, s4, 16")
        I("s_mul_i32 s5, s4, 36")
        I("s_sub_u32 s5, s3, s5")
        I("s_lshl_b32 s6, s4, 3")
        I("s_add_u32 s6, s6, 56")
        I("s_cmp_eq_u32 s4, 3")
        I("s_cselect_b32 s6, 32, s6")
        I("s_load_dwordx2 s[8:9], s[0:1], s6")
        I(f"s_mov_b32 s10, {SZ_W}")
        I(f"s_cselect_b32 s10, {SZ_SD}, s10")
        I("s_mov_b32 s11, 0x00020000")
        I("s_mov_b32 s7, 65536")
        I("s_cselect_b32 s7, 73728, s7")
        I("s_mul_i32 s5, s5, s7")
        I("v_lshlrev_b32 v1, 4, v0")
        I("s_waitcnt lgkmcnt(0)")
        for i in range(18):
            I(f"buffer_load_dwordx4 v[{4+4*i}:{7+4*i}], v1, s[8:11], s5 offen")
            I("s_add_u32 s5, s5, 4096")
        I("s_waitcnt vmcnt(0)")
    e("P_exit:")
    I("s_endpgm")
    kernel_desc("prep_kernel", 112, 40)

BF = 112
NSLOT = 5
SLOT = 16384
LDS2 = NSLOT * SLOT
N_G1, N_CV = 256, 256

class DSQ:
    def __init__(self): self.q = []
    def push(self, tag): self.q.append(tag)
    def wait_for(self, tag):
        if tag not in self.q: return
        idx = max(i for i, t in enumerate(self.q) if t == tag)
        n = len(self.q) - 1 - idx
        I(f"s_waitcnt lgkmcnt({min(n,15)})")
        self.q = self.q[idx+1:] if n <= 15 else self.q[len(self.q)-15:]

BIG = "big" in FLAGS
def gen_g1big():
    NF = 10; RS = 320; MS = 32*RS; SL = 2*MS; NS = 8; DB = 3; LA = 3; NST = 20
    for f_ in FLAGS:
        if f_.startswith("ns"): NS = int(f_[2:])
    DW = NS - 1
    stamp()
    I("s_load_dwordx4 s[16:19], s[0:1], 56")
    I(f"s_mul_i32 s25, s25, {16*NF}")
    I(f"s_min_u32 s25, s25, {F-16*NF}")
    I("v_and_b32 v1, 63, v0")
    PROD = "prod" in FLAGS
    if PROD:
        I("s_cmp_lt_u32 s3, 4")
        I("s_cbranch_scc1 G1_cons")
        DWP = 6
        I("s_lshl_b32 s27, s25, 1")
        for i in range(10):
            I(f"v_add_u32 v20, {64*i}, v1")
            I("v_mul_u32_u24 v21, 3277, v20")
            I("v_lshrrev_b32 v21, 16, v21")
            I("v_mul_u32_u24 v22, 20, v21")
            I("v_sub_u32 v22, v20, v22")
            I("v_bfe_u32 v23, v21, 3, 1")
            I("v_lshlrev_b32 v23, 1, v23")
            I("v_xor_b32 v22, v22, v23")
            I("v_mul_u32_u24 v21, 3456, v21")
            I("v_lshl_add_u32 v21, v22, 4, v21")
            I("v_add_u32 v21, s27, v21")
            I(f"v_subrev_u32 v{2+i}, {1024*(i%4)}, v21")
        I("s_sub_u32 s29, s3, 4")
        I(f"s_mul_i32 s29, s29, {MS}")
        I("s_waitcnt lgkmcnt(0)")
        I("s_cmp_ge_u32 s3, 5")
        I("s_cselect_b32 s4, s18, s16")
        I("s_cselect_b32 s5, s19, s17")
        srd(8, 4, SZ_W)
        pq = []
        def pdma(st):
            I(f"s_mov_b32 s28, {st*32*3456}")
            for i in range(10):
                if i % 4 == 0: I(f"s_add_u32 m0, s29, {(st % NS)*SL + (i//4)*4096}")
                I(f"buffer_load_dwordx4 v{2+i}, s[8:11], s28 offen offset:{1024*(i%4)} lds")
                pq.append(st)
        def pwait(st):
            idx = max(i for i, t in enumerate(pq) if t == st)
            I(f"s_waitcnt vmcnt({len(pq)-1-idx})")
            del pq[:idx+1]
        if "ramp" in FLAGS:
            for st in range(3): pdma(st)
            pwait(0)
            I("s_barrier")
            pdma(3); pdma(4)
            for st in range(NST-1):
                pwait(st+1)
                I("s_barrier")
                if st == 0: pdma(5)
                if st + DWP < NST: pdma(st + DWP)
        else:
            for st in range(DWP): pdma(st)
            pwait(0)
            I("s_barrier")
            for st in range(NST-1):
                pwait(st+1)
                I("s_barrier")
                if st + DWP < NST: pdma(st + DWP)
        I("s_endpgm")
        e("G1_cons:")
    I("s_and_b32 s26, s3, 1")
    I("s_lshl_b32 s26, s26, 4")
    I("s_lshl_b32 s27, s25, 1")
    for i in range(5 if not PROD else 0):
        I(f"v_add_u32 v10, {64*i}, v1")
        I("v_mul_u32_u24 v11, 3277, v10")
        I("v_lshrrev_b32 v11, 16, v11")
        I("v_mul_u32_u24 v12, 20, v11")
        I("v_sub_u32 v12, v10, v12")
        I("v_add_u32 v11, s26, v11")
        I("v_bfe_u32 v13, v11, 3, 1")
        I("v_lshlrev_b32 v13, 1, v13")
        I("v_xor_b32 v12, v12, v13")
        I("v_mul_u32_u24 v11, 3456, v11")
        I("v_lshl_add_u32 v11, v12, 4, v11")
        I("v_add_u32 v11, s27, v11")
        I(f"v_subrev_u32 v{2+i}, {1024*(i%4)}, v11")
    I("s_lshl_b32 s26, s24, 3")
    I("s_lshl_b32 s27, s3, 1")
    I("s_add_u32 s26, s26, s27")
    I("s_mul_i32 s27, s26, 20480")
    I("v_lshl_add_u32 v7, v1, 4, s27")
    I("v_add_u32 v8, 20480, v7")
    I("s_mul_i32 s27, s26, 55296")
    I("v_lshl_add_u32 v9, v1, 4, s27")
    I("v_add_u32 v10, 55296, v9")
    I("v_bfe_u32 v17, v0, 4, 2")
    I("v_bfe_u32 v18, v0, 2, 2")
    I("v_lshl_add_u32 v19, v17, 3, v18")
    I(f"v_mul_u32_u24 v19, {RS}, v19")
    I("v_and_b32 v18, 3, v0")
    I("v_lshl_add_u32 v19, v18, 3, v19")
    I("v_and_b32 v20, 1, v17")
    I("v_lshlrev_b32 v20, 5, v20")
    I("v_add_u32 v11, v19, v20")
    I("v_sub_u32 v12, v19, v20")
    ROLL = "roll" in FLAGS
    if ROLL:
        for k_, offs in ((1, 3*SL), (2, 4*SL), (3, 7*SL)):
            I(f"v_add_u32 v{11+2*k_}, {offs}, v11")
            I(f"v_add_u32 v{12+2*k_}, {offs}, v12")
    else:
        for rg in (1, 2):
            I(f"v_add_u32 v{11+2*rg}, {rg*3*SL}, v11")
            I(f"v_add_u32 v{12+2*rg}, {rg*3*SL}, v12")
    I("s_mul_i32 s29, s3, 5120")
    I("s_waitcnt lgkmcnt(0)")
    I("s_cmp_ge_u32 s3, 2")
    I("s_cselect_b32 s4, s18, s16")
    I("s_cselect_b32 s5, s19, s17")
    srd(8, 4, SZ_W)
    srd(12, 6, SZ_SD, WS_XN)
    srd(20, 6, SZ_H, WS_H)
    BB = 24; AF = 56; ACC = 80
    def acc(m, jf, js): return ACC + ((m*NF + jf)*2 + js)*4
    vq = []
    def vwait(tags):
        if not any(t in tags for t in vq): return
        idx = max(i for i, t in enumerate(vq) if t in tags)
        n = len(vq) - 1 - idx
        I(f"s_waitcnt vmcnt({n})")
        del vq[:idx+1]
    def dma(st):
        if PROD: return
        I(f"s_add_u32 m0, s29, {(st % NS)*SL}")
        I(f"s_mov_b32 s28, {st*32*3456}")
        for i in range(5):
            if i == 4: I(f"s_add_u32 m0, s29, {(st % NS)*SL + 4096}")
            I(f"buffer_load_dwordx4 v{2+i}, s[8:11], s28 offen offset:{1024*(i%4)} lds")
            vq.append(("D", st))
    def bld(st):
        I(f"s_mov_b32 s31, {st*1024}")
        for js in range(2):
            r = BB + (st % (DB+1))*8 + js*4
            I(f"buffer_load_dwordx4 v[{r}:{r+3}], v{7+js}, s[12:15], s31 offen")
            vq.append(("B", st))
    seq = [(m, jf) for m in range(2) for jf in range(NF)]
    NQ = len(seq)
    def rdx(gpos):
        st, idx = divmod(gpos, NQ)
        m, jf = seq[idx]
        slot = st % NS
        a = AF + (gpos % 4)*4
        va = 11 + 2*(slot // 3) + (jf & 1)
        off = (slot % 3)*SL + m*MS + jf*32
        return [f"ds_read_b64_tr_b16 v[{a}:{a+1}], v{va} offset:{off}",
                f"ds_read_b64_tr_b16 v[{a+2}:{a+3}], v{va} offset:{off+4*RS}"]
    for st in range(DW):
        dma(st)
        if ROLL:
            if st >= DW - DB: bld(st - (DW - DB))
        elif st < DB: bld(st)
    for j in range(4*2*2*NF):
        I(f"v_mov_b32 v{ACC+j}, 0")
    stamp()
    vwait([("D", 0)])
    I("s_barrier")
    for i in range(LA):
        for x in rdx(i): I(x)
    if ROLL:
        assert NS == 8
        I("s_mov_b32 s33, 0")
        I("s_mov_b32 s36, s29")
        I(f"s_add_u32 s37, s29, {4*SL}")
        I(f"s_mov_b32 s28, {DW*32*3456}")
        I(f"s_mov_b32 s31, {DB*1024}")
        def rdr(p, idx, ring):
            m, jf = seq[idx]
            a = AF + (ring % 4)*4
            if p < 3: va = 11 + (jf & 1); off = p*SL
            elif p == 3: va = 13 + (jf & 1); off = 0
            else: va = 15 + (jf & 1); off = 0
            off += m*MS + jf*32
            return [f"ds_read_b64_tr_b16 v[{a}:{a+1}], v{va} offset:{off}",
                    f"ds_read_b64_tr_b16 v[{a+2}:{a+3}], v{va} offset:{off+4*RS}"]
        e("G1_loop:")
        for p_ in range(4):
            I("s_waitcnt vmcnt(14)")
            I(f"s_cmp_lt_u32 s33, {4 if p_ < 2 else 3}")
            I(f"s_cbranch_scc1 G1_w{p_}")
            I("s_waitcnt vmcnt(2)")
            if p_ >= 2:
                I("s_cmp_lt_u32 s33, 4")
                I(f"s_cbranch_scc1 G1_w{p_}")
                I("s_waitcnt vmcnt(0)")
            e(f"G1_w{p_}:")
            I("s_barrier")
            I(f"s_cmp_ge_u32 s33, {4 if p_ == 0 else 3}")
            I(f"s_cbranch_scc1 G1_d{p_}")
            base, offs = ("s37", 3*SL) if p_ == 0 else ("s36", (p_-1)*SL)
            I(f"s_add_u32 m0, {base}, {offs}")
            for i in range(5):
                if i == 4: I(f"s_add_u32 m0, {base}, {offs + 4096}")
                I(f"buffer_load_dwordx4 v{2+i}, s[8:11], s28 offen offset:{1024*(i%4)} lds")
            I(f"s_add_u32 s28, s28, {32*3456}")
            e(f"G1_d{p_}:")
            if p_ > 0:
                I("s_cmp_ge_u32 s33, 4")
                I(f"s_cbranch_scc1 G1_b{p_}")
            for js in range(2):
                r = BB + ((p_ + DB) % 4)*8 + js*4
                I(f"buffer_load_dwordx4 v[{r}:{r+3}], v{7+js}, s[12:15], s31 offen")
            I("s_add_u32 s31, s31, 1024")
            if p_ > 0: e(f"G1_b{p_}:")
            for idx in range(NQ):
                if idx + LA < NQ: rr = rdr(p_, idx + LA, idx + LA)
                else: rr = rdr(p_ + 1, idx + LA - NQ, idx + LA)
                I(f"s_waitcnt lgkmcnt({2*LA-2})")
                m, jf = seq[idx]
                a = AF + (idx % 4)*4
                for js in range(2):
                    c = acc(m, jf, js); b = BB + p_*8 + js*4
                    I(f"v_mfma_f32_16x16x32_bf16 v[{c}:{c+3}], v[{a}:{a+3}], v[{b}:{b+3}], v[{c}:{c+3}]")
                    I(rr[js])
        for k_ in range(4):
            I(f"v_swap_b32 v{11+k_}, v{15+k_}")
        I("s_mov_b32 s38, s36")
        I("s_mov_b32 s36, s37")
        I("s_mov_b32 s37, s38")
        I("s_add_u32 s33, s33, 1")
        I("s_cmp_lt_u32 s33, 5")
        I("s_cbranch_scc1 G1_loop")
        I("s_waitcnt lgkmcnt(0)")
    for st in range(NST if not ROLL else 0):
        if st + 1 < NST:
            vwait([("D", st+1), ("B", st)])
            I("s_barrier")
        else:
            vwait([("B", st)])
        if "stamp3" in FLAGS and st in (0, 1, 5, 10, 15): stamp()
        if st + DW < NST and "g1nodma" not in FLAGS: dma(st + DW)
        if st + DB < NST and "g1nob" not in FLAGS: bld(st + DB)
        for idx in range(NQ if "g1nocomp" not in FLAGS else 0):
            gpos = st*NQ + idx
            rr = rdx(gpos + LA) if gpos + LA < NST*NQ else None
            I(f"s_waitcnt lgkmcnt({2*min(LA-1, NST*NQ-1-gpos)})")
            m, jf = seq[idx]
            a = AF + (gpos % 4)*4
            for js in range(2):
                c = acc(m, jf, js); b = BB + (st % (DB+1))*8 + js*4
                I(f"v_mfma_f32_16x16x32_bf16 v[{c}:{c+3}], v[{a}:{a+3}], v[{b}:{b+3}], v[{c}:{c+3}]")
                if rr: I(rr[js])
    stamp()
    I("s_lshr_b32 s34, s25, 5")
    I("s_lshl_b32 s34, s34, 10")
    I("s_add_u32 s35, s34, 4096")
    I("s_nop 7")
    I("s_nop 3")
    for js in range(2):
        for jp in range(NF//2):
            t = 24 + ((js*5 + jp) % 4) * 12
            for hh in range(2):
                jf = 2*jp + hh
                g = acc(0, jf, js); u = acc(1, jf, js)
                I(f"v_cvt_pk_bf16_f32 v{t}, v{g}, v{g+1}")
                I(f"v_cvt_pk_bf16_f32 v{t+1}, v{g+2}, v{g+3}")
                I(f"v_cvt_pk_bf16_f32 v{t+2}, v{u}, v{u+1}")
                I(f"v_cvt_pk_bf16_f32 v{t+3}, v{u+2}, v{u+3}")
                lo16(g, t); hi16(g+1, t); lo16(g+2, t+1); hi16(g+3, t+1)
                lo16(u, t+2); hi16(u+1, t+2); lo16(u+2, t+3); hi16(u+3, t+3)
                for r in range(4):
                    I(f"v_mul_f32 v{g+r}, v{g+r}, v{u+r}")
                I(f"v_cvt_pk_bf16_f32 v{t+4+2*hh}, v{g}, v{g+1}")
                I(f"v_cvt_pk_bf16_f32 v{t+5+2*hh}, v{g+2}, v{g+3}")
            if jp < 4:
                I(f"buffer_store_dwordx4 v[{t+4}:{t+7}], v{9+js}, s[20:23], s34 offen offset:{1024*jp}")
            else:
                I(f"buffer_store_dwordx4 v[{t+4}:{t+7}], v{9+js}, s[20:23], s35 offen")
    if STAMP: I("s_waitcnt vmcnt(0)")
    stamp()
    stamp_dump(5)
    wgt_end(1)
    I("s_endpgm")

def gen_g1fuse():
    NF = 10; RS = 320; MS = 32*RS; SL = 2*MS; NS = 6; LA = 3; NST = 20; DWP = 5
    XB = NS*SL
    XP = 18432; XR = 144
    I(f"s_mul_i32 s25, s25, {16*NF}")
    I(f"s_min_u32 s25, s25, {F-16*NF}")
    I("v_and_b32 v1, 63, v0")
    I("s_and_b32 s26, s3, 3")
    I(f"s_mul_i32 s30, s26, {32*XR}")
    I(f"s_add_u32 s30, s30, {XB}")
    I("s_lshl_b32 s27, s24, 3")
    I("s_lshl_b32 s26, s26, 1")
    I("s_add_u32 s26, s26, s27")
    I("s_cmp_lt_u32 s3, 4")
    I("s_cbranch_scc1 G1_cons")
    if "hprio" in FLAGS: I("s_setprio 3")
    RAW = 64
    def raw(rg, p): return RAW + (p*4 + rg)*4
    I("s_mul_i32 s27, s26, 20480")
    I("v_lshrrev_b32 v12, 3, v1")
    I("v_and_b32 v11, 7, v1")
    I("v_mul_u32_u24 v13, 0x500, v12")
    I("v_lshl_add_u32 v13, v11, 4, v13")
    I("v_add_u32 v13, s27, v13")
    for rg in range(1, 4): I(f"v_add_u32 v{13+rg}, {rg*10240}, v13")
    I("s_lshl_b32 s27, s26, 7")
    I("v_lshl_add_u32 v7, v12, 3, s27")
    I(f"v_mul_u32_u24 v6, {XR}, v12")
    I("v_lshl_add_u32 v6, v11, 4, v6")
    I("v_add_u32 v6, s30, v6")
    I("s_waitcnt lgkmcnt(0)")
    srd(12, 44, SZ_SD)
    srd(20, 6, S*8, WS_ST)
    for p in range(10):
        for rg in range(4):
            r = raw(rg, p)
            I(f"buffer_load_dwordx4 v[{r}:{r+3}], v{13+rg}, s[12:15], 0 offen offset:{128*p}")
    SM = 24; SS = 32; TT = 40; STA = 48
    for j in range(16): I(f"v_mov_b32 v{SM+j}, 0")
    I("s_mov_b32 s49, 0x3f803f80")
    I("s_cmp_ge_u32 s3, 6")
    I("s_cbranch_scc1 G1_hw")
    def helper(kind):
        vq = [("Q", i) for i in range(40)]
        def vwait(pred):
            idxs = [i for i, t in enumerate(vq) if pred(t)]
            if not idxs: return
            idx = max(idxs)
            n = len(vq) - 1 - idx
            assert n <= 63
            I(f"s_waitcnt vmcnt({n})")
            del vq[:idx+1]
        def pdma(st):
            I(f"s_mov_b32 s28, {st*32*3456}")
            for i in range(10):
                if i % 4 == 0: I(f"s_add_u32 m0, s29, {(st % NS)*SL + (i//4)*4096}")
                I(f"buffer_load_dwordx4 v{224+i}, s[8:11], s28 offen offset:{1024*(i%4)} lds")
                vq.append(("D", st))
        if kind == "prod":
            I("s_lshl_b32 s27, s25, 1")
            for i in range(10):
                I(f"v_add_u32 v20, {64*i}, v1")
                I("v_mul_u32_u24 v21, 3277, v20")
                I("v_lshrrev_b32 v21, 16, v21")
                I("v_mul_u32_u24 v22, 20, v21")
                I("v_sub_u32 v22, v20, v22")
                I("v_bfe_u32 v23, v21, 3, 1")
                I("v_lshlrev_b32 v23, 1, v23")
                I("v_xor_b32 v22, v22, v23")
                I("v_mul_u32_u24 v21, 3456, v21")
                I("v_lshl_add_u32 v21, v22, 4, v21")
                I("v_add_u32 v21, s27, v21")
                I(f"v_subrev_u32 v{224+i}, {1024*(i%4)}, v21")
            I("s_sub_u32 s29, s3, 4")
            I(f"s_mul_i32 s29, s29, {MS}")
            I("s_cmp_ge_u32 s3, 5")
            I("s_cselect_b32 s4, s18, s16")
            I("s_cselect_b32 s5, s19, s17")
            srd(8, 4, SZ_W)
            DSCH = {5: [0], 8: [1], 9: [2]}
            for f_ in FLAGS:
                if f_.startswith("dsch"):
                    if f_ == "dsch1": DSCH = {3: [0], 6: [1], 9: [2]}
                    if f_ == "dsch2": DSCH = {7: [0], 9: [1, 2]}
                    if f_ == "dsch3": DSCH = {-1: [0], 5: [1], 9: [2]}
            for st in DSCH.get(-1, []): pdma(st)
        else:
            I("s_cmp_ge_u32 s3, 7")
            I("s_cselect_b32 s28, s18, s16")
            I("s_cselect_b32 s29, s19, s17")
            I("s_mul_i32 s27, s47, 12800")
            I(f"s_mov_b32 s30, {SZ_W}")
            I("s_mov_b32 s31, 0x00020000")
            I("v_lshlrev_b32 v5, 4, v1")
            I("s_load_dwordx2 s[4:5], s[0:1], 72")
            I("s_min_u32 s48, s46, 269")
            I("s_mul_i32 s17, s48, 0xCCCD")
            I("s_lshr_b32 s17, s17, 19")
            I("s_mul_i32 s18, s17, 10")
            I("s_sub_u32 s18, s48, s18")
            I("v_and_b32 v23, 7, v0")
            I("v_bfe_u32 v17, v0, 3, 2")
            I("v_bfe_u32 v18, v0, 5, 1")
            I("s_lshl_b32 s18, s18, 6")
            I("v_lshl_add_u32 v23, v23, 3, s18")
            I("s_lshl_b32 s19, s17, 1")
            I("v_add_u32 v18, s19, v18")
            I("v_lshlrev_b32 v19, 5, v18")
            I("v_lshl_add_u32 v19, v17, 2, v19")
            I("v_mul_u32_u24 v20, 0x500, v19")
            I("v_lshl_add_u32 v20, v23, 1, v20")
            I("v_add_u32 v21, 0x5000, v20")
            I("s_waitcnt lgkmcnt(0)")
            srd(8, 4, SZ_W)
            srd(32, 6, SZ_W, WS_WDT)
            I("s_mov_b32 s36, 0x05040100")
            I("s_mov_b32 s37, 0x07060302")
            I("v_lshrrev_b32 v22, 4, v23")
            I("v_mul_u32_u24 v22, 54, v22")
            I("v_add_u32 v22, v22, v18")
            I("v_lshlrev_b32 v22, 10, v22")
            I("v_lshl_add_u32 v22, v17, 8, v22")
            I("v_and_b32 v19, 15, v23")
            I("v_lshl_add_u32 v22, v19, 4, v22")
        for p in range(10):
            vwait(lambda t: t[0] == "Q" and t[1] <= 4*p + 3)
            for c in range(4):
                for rg in range(4):
                    r = raw(rg, p) + c
                    I(f"v_dot2_f32_bf16 v{SM+2*rg+(c&1)}, v{r}, s49, v{SM+2*rg+(c&1)}")
                    I(f"v_dot2_f32_bf16 v{SS+2*rg+(c&1)}, v{r}, v{r}, v{SS+2*rg+(c&1)}")
            if kind == "prod":
                for st in DSCH.get(p, []): pdma(st)
        I("s_nop 3")
        V8 = [SM+2*rg for rg in range(4)] + [SS+2*rg for rg in range(4)]
        for a in V8: I(f"v_add_f32 v{a}, v{a}, v{a+1}")
        for dpp in ("quad_perm:[1,0,3,2]", "quad_perm:[2,3,0,1]", "row_half_mirror"):
            for a in V8: I(f"v_add_f32_dpp v{a+1}, v{a}, v{a} {dpp} row_mask:0xf bank_mask:0xf")
            for a in V8: I(f"v_mov_b32 v{a}, v{a+1}")
        R4 = range(4)
        for a in V8: I(f"v_mul_f32 v{a}, {1.0/640.0!r}, v{a}")
        for rg in R4: I(f"v_fma_f32 v{SS+2*rg}, -v{SM+2*rg}, v{SM+2*rg}, v{SS+2*rg}")
        for rg in R4:
            I(f"v_cvt_pk_bf16_f32 v{STA+2*rg+1}, 0, -v{SM+2*rg}")
            I(f"v_cvt_pk_bf16_f32 v{SS+2*rg}, 0, v{SS+2*rg}")
        for rg in R4: I(f"v_add_f32 v{SS+2*rg}, {1e-5!r}, v{SS+2*rg}")
        for rg in R4: I(f"v_cvt_pk_bf16_f32 v{SS+2*rg}, 0, v{SS+2*rg}")
        for rg in R4: I(f"v_sqrt_f32 v{SS+2*rg}, v{SS+2*rg}")
        I("s_nop 0")
        for rg in R4: I(f"v_cvt_pk_bf16_f32 v{SS+2*rg}, 0, v{SS+2*rg}")
        for rg in R4: I(f"v_rcp_f32 v{STA+2*rg}, v{SS+2*rg}")
        I("s_nop 0")
        MN = "mnorm" in FLAGS
        SEL = 24; NEG = 32; T2 = 234
        if MN:
            I("v_and_b32 v2, 15, v1")
            I("v_lshrrev_b32 v3, 4, v1")
            I("v_lshrrev_b32 v4, 2, v2")
            I("v_cmp_eq_u32 vcc, v3, v4")
            I("v_and_b32 v4, 1, v2")
            I("v_lshlrev_b32 v4, 4, v4")
            I("v_mov_b32 v3, 0x3f80")
            I("v_lshlrev_b32 v3, v4, v3")
            I("v_cndmask_b32 v3, 0, v3, vcc")
            I("v_bfe_u32 v4, v2, 1, 1")
            I("v_cmp_eq_u32 vcc, 0, v4")
            I("s_nop 1")
            I(f"v_cndmask_b32 v{SEL}, 0, v3, vcc")
            I(f"v_cndmask_b32 v{SEL+1}, v3, 0, vcc")
            I(f"v_mov_b32 v{SEL+2}, 0")
            I(f"v_mov_b32 v{SEL+3}, 0")
            I(f"v_mov_b32 v{SEL+4}, 0")
            I(f"v_mov_b32 v{SEL+5}, 0")
            I(f"v_mov_b32 v{SEL+6}, v{SEL}")
            I(f"v_mov_b32 v{SEL+7}, v{SEL+1}")
            for rg in R4:
                for c in range(4): I(f"v_mov_b32 v{NEG+4*rg+c}, v{STA+2*rg+1}")
            I("s_nop 1")
        def norm(p, rgs):
            if MN:
                TB = [T2, T2+8]
                def mf(i):
                    rg = rgs[i]; r = raw(rg, p); t = TB[i % 2]
                    for h in range(2):
                        I(f"v_mfma_f32_16x16x32_bf16 v[{t+4*h}:{t+4*h+3}], v[{SEL+4*h}:{SEL+4*h+3}], v[{r}:{r+3}], v[{NEG+4*rg}:{NEG+4*rg+3}]")
                mf(0)
                for i, rg in enumerate(rgs):
                    r = raw(rg, p); R_ = STA + 2*rg; t = TB[i % 2]
                    if i + 1 < len(rgs): mf(i+1)
                    else: I("s_nop 7")
                    if i == 0: I("s_nop 7")
                    for c in range(8): I(f"v_cvt_pk_bf16_f32 v{t+c}, 0, v{t+c}")
                    for c in range(8): I(f"v_mul_f32 v{t+c}, v{t+c}, v{R_}")
                    for c in range(4): I(f"v_cvt_pk_bf16_f32 v{r+c}, v{t+2*c}, v{t+2*c+1}")
                    I(f"ds_write_b128 v6, v[{r}:{r+3}] offset:{(p & 1)*XP + rg*8*XR}")
                return
            for rg in rgs:
                r = raw(rg, p); R_, M_ = STA + 2*rg, STA + 2*rg + 1
                if "nonorm" not in FLAGS:
                    for c in range(4):
                        lo16(TT+2*c, r+c); hi16(TT+2*c+1, r+c)
                    for c in range(8): I(f"v_add_f32 v{TT+c}, v{TT+c}, v{M_}")
                    for c in range(8): I(f"v_cvt_pk_bf16_f32 v{TT+c}, 0, v{TT+c}")
                    for c in range(8): I(f"v_mul_f32 v{TT+c}, v{TT+c}, v{R_}")
                    for c in range(4): I(f"v_cvt_pk_bf16_f32 v{r+c}, v{TT+2*c}, v{TT+2*c+1}")
                I(f"ds_write_b128 v6, v[{r}:{r+3}] offset:{(p & 1)*XP + rg*8*XR}")
        WLK = 3; PFK = 0
        for f_ in FLAGS:
            if f_.startswith("wlk"): WLK = int(f_[3:])
            if f_.startswith("pfk"): PFK = int(f_[3:])
        for k in range(NST):
            if k == 0:
                norm(0, (0, 1, 2, 3))
                if kind == "prod": pdma(3); pdma(4)
            else:
                if kind == "prod" and k >= 2 and k - 2 + DWP < NST: pdma(k - 2 + DWP)
                p = (k-1)//2 + 1
                if p < 10: norm(p, (0, 1) if (k-1) % 2 == 0 else (2, 3))
            if kind == "wdt" and k == PFK and "nopfm" not in FLAGS:
                for i in range(13):
                    I(f"buffer_load_dwordx4 v[60:63], v5, s[28:31], s27 offen")
                    I("s_add_u32 s27, s27, 1024")
            if kind == "wdt" and k == WLK:
                for i in range(8):
                    b = 20 if i < 4 else 21
                    I(f"buffer_load_dwordx4 v[{RAW+4*i}:{RAW+3+4*i}], v{b}, s[8:11], 0 offen offset:{(i%4)*1280}")
            if k == 1:
                for rg in R4:
                    I(f"buffer_store_dwordx2 v[{STA+2*rg}:{STA+2*rg+1}], v7, s[20:23], 0 offen offset:{64*rg}")
                    vq.append(("S", rg))
            if kind == "wdt" and k == WLK + 5:
                I("s_cmp_ge_u32 s46, 270")
                I("s_cbranch_scc1 G1_hwskip")
                I("s_waitcnt vmcnt(0)")
                for dd in range(8):
                    ob = RAW + 32 + 4*dd
                    sel = 36 + (dd & 1)
                    for q in range(4):
                        I(f"v_perm_b32 v{ob+q}, v{RAW+4*(2*q+1)+dd//2}, v{RAW+4*(2*q)+dd//2}, s{sel}")
                for dd in range(8):
                    ob = RAW + 32 + 4*dd
                    I(f"buffer_store_dwordx4 v[{ob}:{ob+3}], v22, s[32:35], 0 offen offset:{16*dd}")
                e("G1_hwskip:")
            if kind == "prod": vwait(lambda t: t == ("D", k))
            I("s_waitcnt lgkmcnt(0)")
            I("s_barrier")
        I("s_endpgm")
    helper("prod")
    e("G1_hw:")
    helper("wdt")
    e("G1_cons:")
    if "prio" in FLAGS: I("s_setprio 3")
    I("s_and_b32 s31, s3, 1")
    I("s_lshr_b32 s33, s3, 1")
    I("s_lshl_b32 s27, s24, 3")
    I("s_lshl_b32 s26, s31, 2")
    I("s_add_u32 s26, s26, s27")
    I("s_mul_i32 s27, s26, 55296")
    I("v_lshl_add_u32 v9, v1, 4, s27")
    I("v_bfe_u32 v17, v0, 4, 2")
    I("v_and_b32 v18, 15, v0")
    I(f"v_mul_u32_u24 v6, {XR}, v18")
    I("v_lshl_add_u32 v6, v17, 4, v6")
    I(f"s_mul_i32 s30, s31, {64*XR}")
    I(f"s_add_u32 s30, s30, {XB}")
    I("v_add_u32 v6, s30, v6")
    I("v_bfe_u32 v18, v0, 2, 2")
    I("v_lshl_add_u32 v19, v17, 3, v18")
    I(f"v_mul_u32_u24 v19, {RS}, v19")
    I("v_and_b32 v18, 3, v0")
    I("v_lshl_add_u32 v19, v18, 3, v19")
    I("s_mul_i32 s27, s33, 160")
    I("v_add_u32 v19, s27, v19")
    I("v_and_b32 v20, 1, v17")
    I("v_lshlrev_b32 v20, 5, v20")
    I("s_lshl_b32 s27, s33, 1")
    I("s_sub_u32 s27, 1, s27")
    I("v_mul_lo_u32 v20, v20, s27")
    I("v_add_u32 v11, v19, v20")
    I("v_sub_u32 v12, v19, v20")
    for rg in (1,):
        I(f"v_add_u32 v{11+2*rg}, {rg*3*SL}, v11")
        I(f"v_add_u32 v{12+2*rg}, {rg*3*SL}, v12")
    I("s_waitcnt lgkmcnt(0)")
    srd(20, 6, SZ_H, WS_H)
    BB = 24; AF = 56; ACC = 80; LA = 2
    for f_ in FLAGS:
        if f_.startswith("la"): LA = int(f_[2:])
    def acc(m, j, js): return ACC + ((m*5 + j)*4 + js)*4
    seq = [(m, j) for m in range(2) for j in range(5)]
    NQ = len(seq)
    dq = []
    def dwait(tags):
        idxs = [i for i, t in enumerate(dq) if t in tags]
        if not idxs: return
        idx = max(idxs); n = len(dq) - 1 - idx
        assert n <= 15
        I(f"s_waitcnt lgkmcnt({n})")
        del dq[:idx+1]
    def rdx(gpos):
        st, idx = divmod(gpos, NQ)
        m, j = seq[idx]
        slot = st % NS
        a = AF + (gpos % 4)*4
        va = 11 + 2*(slot // 3) + (j & 1)
        off = (slot % 3)*SL + m*MS + j*32
        return [f"ds_read_b64_tr_b16 v[{a}:{a+1}], v{va} offset:{off}",
                f"ds_read_b64_tr_b16 v[{a+2}:{a+3}], v{va} offset:{off+4*RS}"]
    def xrd(st, js):
        b = BB + (st & 1)*16 + js*4
        I(f"ds_read_b128 v[{b}:{b+3}], v6 offset:{((st >> 1) & 1)*XP + js*16*XR + (st & 1)*64}")
        dq.append(("X", st))
    stamp()
    I("s_barrier")
    stamp()
    for js in range(4): xrd(0, js)
    for i in range(LA):
        for x in rdx(i): I(x); dq.append(("A", i))
    for st in range(NST):
        if st + 1 < NST: I("s_barrier")
        if "stamp3" in FLAGS and st in (1, 5, 10): stamp()
        for idx in range(NQ):
            gpos = st*NQ + idx
            rr = rdx(gpos + LA) if gpos + LA < NST*NQ else None
            dwait([("A", gpos), ("X", st)])
            m, j = seq[idx]
            a = AF + (gpos % 4)*4
            for js in range(4):
                c = acc(m, j, js); b = BB + (st & 1)*16 + js*4
                cc = "0" if st == 0 else f"v[{c}:{c+3}]"
                I(f"v_mfma_f32_16x16x32_bf16 v[{c}:{c+3}], v[{a}:{a+3}], v[{b}:{b+3}], {cc}")
                if rr and js < 2: I(rr[js]); dq.append(("A", gpos + LA))
                if js == 2 and st + 1 < NST and 1 <= idx <= 4: xrd(st + 1, idx - 1)
    stamp()
    I("s_lshr_b32 s34, s25, 5")
    I("s_lshl_b32 s34, s34, 10")
    I("s_nop 7")
    I("s_nop 3")
    cnt = [0]
    def hq(j, js, dst, t):
        g = acc(0, j, js); u = acc(1, j, js)
        I(f"v_cvt_pk_bf16_f32 v{t}, v{g}, v{g+1}")
        I(f"v_cvt_pk_bf16_f32 v{t+1}, v{g+2}, v{g+3}")
        I(f"v_cvt_pk_bf16_f32 v{t+2}, v{u}, v{u+1}")
        I(f"v_cvt_pk_bf16_f32 v{t+3}, v{u+2}, v{u+3}")
        lo16(g, t); hi16(g+1, t); lo16(g+2, t+1); hi16(g+3, t+1)
        lo16(u, t+2); hi16(u+1, t+2); lo16(u+2, t+3); hi16(u+3, t+3)
        for r in range(4):
            I(f"v_mul_f32 v{g+r}, v{g+r}, v{u+r}")
        I(f"v_cvt_pk_bf16_f32 v{dst}, v{g}, v{g+1}")
        I(f"v_cvt_pk_bf16_f32 v{dst+1}, v{g+2}, v{g+3}")
    def epi(fq):
        units = [((0, 1), 0, 0), ((2, 3), 1, 0), ((4,), 2, 0)] if fq == 0 else [((0,), 2, 8), ((1, 2), 3, 0), ((3, 4), 4, 0)]
        for js in range(4):
            I(f"s_add_u32 s35, s34, {js*55296}")
            I(f"s_add_u32 s36, s34, {js*55296 + 4096}")
            for (jl, blk, ho) in units:
                t = 24 + (cnt[0] % 4) * 12; cnt[0] += 1
                for hh, j in enumerate(jl): hq(j, js, t+4+2*hh, t)
                so, off = ("s35", 1024*blk + ho) if blk < 4 else ("s36", ho)
                if len(jl) == 2:
                    I(f"buffer_store_dwordx4 v[{t+4}:{t+7}], v9, s[20:23], {so} offen offset:{off}")
                else:
                    I(f"buffer_store_dwordx2 v[{t+4}:{t+5}], v9, s[20:23], {so} offen offset:{off}")
    I("s_cmp_eq_u32 s33, 0")
    I("s_cbranch_scc0 G1_epi1")
    epi(0)
    I("s_branch G1_epid")
    e("G1_epi1:")
    epi(1)
    e("G1_epid:")
    if STAMP: I("s_waitcnt vmcnt(0)")
    stamp()
    stamp_dump(5)
    wgt_end(1)
    I("s_endpgm")

def gen_g1b():
    NF = 10; RS = 320; MS = 32*RS; SL = 2*MS; NS = 6; NST = 20; NX = 4
    XB = NS*SL
    XS = 8192
    STB = XB + NX*XS
    CSB = STB + 1024
    I(f"s_mul_i32 s25, s25, {16*NF}")
    I(f"s_min_u32 s25, s25, {F-16*NF}")
    I("v_and_b32 v1, 63, v0")
    for f_ in FLAGS:
        if f_.startswith("gdel"): I(f"s_sleep {int(f_[4:])}")
    I("s_cmp_lt_u32 s3, 4")
    I("s_cbranch_scc1 G1_cons")
    I("s_and_b32 s26, s3, 3")
    I("s_lshl_b32 s27, s24, 7")
    I("s_lshl_b32 s28, s26, 5")
    I("s_add_u32 s27, s27, s28")
    I("v_lshrrev_b32 v12, 2, v1")
    I("v_bfe_u32 v11, v1, 3, 2")
    I("v_xor_b32 v11, v11, v1")
    I("v_and_b32 v11, 3, v11")
    I("v_add_u32 v13, s27, v12")
    I("v_lshlrev_b32 v7, 3, v13")
    I("v_mul_u32_u24 v13, 0x500, v13")
    I("v_lshl_add_u32 v13, v11, 4, v13")
    I(f"v_add_u32 v14, {16*1280-1024}, v13")
    I("s_lshl_b32 s30, s26, 11")
    I(f"s_add_u32 s30, s30, {XB}")
    I("v_lshl_add_u32 v6, v1, 4, s30")
    I("s_lshl_b32 s28, s26, 8")
    I(f"s_add_u32 s28, s28, {STB}")
    I("v_lshl_add_u32 v5, v12, 3, s28")
    I("s_lshl_b32 s27, s25, 1")
    I("s_and_b32 s28, s26, 1")
    I("s_mul_i32 s28, s28, 320")
    for i in range(5):
        I(f"v_add_u32 v20, s28, v1")
        if i: I(f"v_add_u32 v20, {64*i}, v20")
        I("v_mul_u32_u24 v21, 3277, v20")
        I("v_lshrrev_b32 v21, 16, v21")
        I("v_mul_u32_u24 v22, 20, v21")
        I("v_sub_u32 v22, v20, v22")
        I("v_bfe_u32 v23, v21, 3, 1")
        I("v_lshlrev_b32 v23, 1, v23")
        I("v_xor_b32 v22, v22, v23")
        I("v_mul_u32_u24 v21, 3456, v21")
        I("v_lshl_add_u32 v21, v22, 4, v21")
        I("v_add_u32 v21, s27, v21")
        I(f"v_subrev_u32 v{24+i}, {1024*(i%4)}, v21")
    I("s_mul_i32 s29, s26, 5120")
    I("s_waitcnt lgkmcnt(0)")
    HST = "zst" in FLAGS
    if HST: stamp()
    I("s_cmp_ge_u32 s26, 2")
    I("s_cselect_b32 s4, s18, s16")
    I("s_cselect_b32 s5, s19, s17")
    srd(8, 4, SZ_W)
    srd(12, 44, SZ_SD)
    vq = []
    def vwait(pred):
        idxs = [i for i, t in enumerate(vq) if pred(t)]
        if not idxs: return
        idx = max(idxs)
        n = len(vq) - 1 - idx
        assert n <= 63
        I(f"s_waitcnt vmcnt({n})")
        del vq[:idx+1]
    ROT = "krot" in FLAGS or "krotq" in FLAGS
    if ROT:
        if "krotq" in FLAGS:
            I("s_lshr_b32 s51, s24, 2")
            I("s_mul_i32 s51, s51, 5")
        else:
            I("s_mul_i32 s51, s24, 5")
            I("s_lshr_b32 s51, s51, 2")
        I(f"s_mul_i32 s50, s51, {32*3456}")
        I("s_lshl_b32 s51, s51, 6")
    def wdma(st):
        ops = []
        for i in range(5):
            pre = []
            if i == 0 and not ROT: pre.append(f"s_mov_b32 s28, {st*32*3456}")
            if i == 0 and ROT: pre += ["s_mov_b32 s28, s50", f"s_add_u32 s50, s50, {32*3456}", f"s_cmp_eq_u32 s50, {640*3456}", "s_cselect_b32 s50, 0, s50"]
            if i % 4 == 0: pre.append(f"s_add_u32 m0, s29, {(st % NS)*SL + (i//4)*4096}")
            ops.append(pre + [(f"buffer_load_dwordx4 v{24+i}, s[8:11], s28 offen offset:{1024*(i%4)} lds", ("W", st))])
        return ops
    def xdma(st):
        ops = []
        for i in range(2):
            pre = []
            if i == 0 and not ROT: pre += [f"s_movk_i32 s31, {st*64}", f"s_add_u32 m0, s30, {(st % NX)*XS}"]
            if i == 0 and ROT: pre += ["s_mov_b32 s31, s51", "s_add_u32 s51, s51, 64", "s_cmpk_eq_u32 s51, 1280", "s_cselect_b32 s51, 0, s51", f"s_add_u32 m0, s30, {(st % NX)*XS}"]
            ops.append(pre + [(f"buffer_load_dwordx4 v{13+i}, s[12:15], s31 offen offset:{1024*i} lds", ("X", st))])
        return ops
    def emit(group):
        for x in group:
            if isinstance(x, tuple): I(x[0]); vq.append(x[1])
            else: I(x)
    P0 = NS
    for f_ in FLAGS:
        if f_.startswith("p0_"): P0 = int(f_[3:])
    nxt = {"W": 0, "X": 0}
    HS = 0
    for f_ in FLAGS:
        if f_.startswith("hs"): HS = int(f_[2:])
    P1 = NS
    for f_ in FLAGS:
        if f_.startswith("p1_"): P1 = int(f_[3:])
    for st in range(P1 if HS else P0):
        if HS and st == P0: I(f"s_sleep {HS}")
        if st < NX:
            for g_ in xdma(st): emit(g_)
            nxt["X"] = st + 1
        for g_ in wdma(st): emit(g_)
        nxt["W"] = st + 1
        if HST and st in (0, 1): stamp()
    if HST: stamp()
    srd(20, 6, S*8, WS_ST)
    I("s_load_dwordx2 s[4:5], s[0:1], 72")
    I("s_min_u32 s48, s46, 269")
    I("s_mul_i32 s17, s48, 0xCCCD")
    I("s_lshr_b32 s17, s17, 19")
    I("s_mul_i32 s18, s17, 10")
    I("s_sub_u32 s18, s48, s18")
    I("v_and_b32 v23, 7, v0")
    I("v_bfe_u32 v17, v0, 3, 2")
    I("v_bfe_u32 v18, v0, 5, 1")
    I("s_lshl_b32 s18, s18, 6")
    I("v_lshl_add_u32 v23, v23, 3, s18")
    I("s_lshl_b32 s19, s17, 1")
    I("v_add_u32 v18, s19, v18")
    I("v_lshlrev_b32 v19, 5, v18")
    I("v_lshl_add_u32 v19, v17, 2, v19")
    I("v_mul_u32_u24 v20, 0x500, v19")
    I("v_lshl_add_u32 v20, v23, 1, v20")
    I("v_add_u32 v21, 0x5000, v20")
    I("s_mov_b32 s36, 0x05040100")
    I("s_mov_b32 s37, 0x07060302")
    I("v_lshrrev_b32 v22, 4, v23")
    I("v_mul_u32_u24 v22, 54, v22")
    I("v_add_u32 v22, v22, v18")
    I("v_lshlrev_b32 v22, 10, v22")
    I("v_lshl_add_u32 v22, v17, 8, v22")
    I("v_and_b32 v19, 15, v23")
    I("v_lshl_add_u32 v22, v19, 4, v22")
    I("s_cmp_lt_u32 s46, 270")
    I(f"s_cselect_b32 s49, {SZ_W}, 0")
    I("s_waitcnt lgkmcnt(0)")
    srd(40, 4, SZ_W)
    srd(32, 6, SZ_W, WS_WDT)
    I("s_mov_b32 s42, s49")
    I("s_mov_b32 s34, s49")
    XA = 32; TT = 40; SM = 48; SQ = 50; STA = 52; RAW = 64
    for j in range(4): I(f"v_mov_b32 v{SM+j}, 0")
    WLK = 6; WPK = 10
    for f_ in FLAGS:
        if f_.startswith("wlk"): WLK = int(f_[3:])
        if f_.startswith("wpk"): WPK = int(f_[3:])
    def statops():
        ops = []
        for rg in range(2):
            for c in range(4):
                r = XA + 4*rg + c; t = TT + 2*(c & 1)
                ops += [f"v_lshlrev_b32 v{t}, 16, v{r}", f"v_and_b32 v{t+1}, 0xffff0000, v{r}",
                        f"v_add_f32 v{SM+rg}, v{SM+rg}, v{t}", f"v_fmac_f32 v{SQ+rg}, v{t}, v{t}",
                        f"v_add_f32 v{SM+rg}, v{SM+rg}, v{t+1}", f"v_fmac_f32 v{SQ+rg}, v{t+1}, v{t+1}"]
        return ops
    for k in range(NST + 1):
        dm = []
        if k >= 1:
            for _ in range(2):
                if nxt["X"] <= min(NST-1, max(NX-1, k+2)): dm += xdma(nxt["X"]); nxt["X"] += 1
                if nxt["W"] <= min(NST-1, max(NS-1, k+3)): dm += wdma(nxt["W"]); nxt["W"] += 1
        if k == WLK:
            for i in range(8):
                b = 20 if i < 4 else 21
                dm.append([(f"buffer_load_dwordx4 v[{RAW+4*i}:{RAW+3+4*i}], v{b}, s[40:43], 0 offen offset:{(i%4)*1280}", ("T", 0))])
        va = []
        if k >= 1:
            for rg in range(2):
                I(f"ds_read_b128 v[{XA+4*rg}:{XA+4*rg+3}], v6 offset:{((k-1) % NX)*XS + 1024*rg}")
            va = statops() if "nostat" not in FLAGS else []
        if WPK <= k < WPK + 4:
            for dd in range(2*(k-WPK), 2*(k-WPK)+2):
                ob = RAW + 32 + 4*dd
                sel = 36 + (dd & 1)
                for q in range(4):
                    va.append(f"v_perm_b32 v{ob+q}, v{RAW+4*(2*q+1)+dd//2}, v{RAW+4*(2*q)+dd//2}, s{sel}")
                va.append((f"buffer_store_dwordx4 v[{ob}:{ob+3}], v22, s[32:35], 0 offen offset:{16*dd}", ("S", 0)))
        nfirst = min(2, len(dm))
        for g_ in dm[:nfirst]: emit(g_)
        rest = dm[nfirst:]
        if k == WPK: vwait(lambda t: t[0] == "T")
        if va: I("s_waitcnt lgkmcnt(0)")
        step = max(1, len(va) // (len(rest) + 1)) if rest else 0
        ri = 0
        for i, o in enumerate(va):
            emit([o])
            if rest and ri < len(rest) and (i + 1) % step == 0:
                emit(rest[ri]); ri += 1
        for g_ in rest[ri:]: emit(g_)
        if k < NST:
            if HST and k in (0, 1, 2): stamp()
            vwait(lambda t: t in (("W", k), ("X", k)))
            if HST and k in (0, 1, 2): stamp()
            I("s_barrier")
    V4 = [SM, SM+1, SQ, SQ+1]
    I("s_nop 1")
    for dpp in ("quad_perm:[1,0,3,2]", "quad_perm:[2,3,0,1]"):
        for i, a in enumerate(V4): I(f"v_add_f32_dpp v{TT+i}, v{a}, v{a} {dpp} row_mask:0xf bank_mask:0xf")
        for i, a in enumerate(V4): I(f"v_mov_b32 v{a}, v{TT+i}")
    R2 = range(2)
    for a in V4: I(f"v_mul_f32 v{a}, {1.0/640.0!r}, v{a}")
    for rg in R2: I(f"v_fma_f32 v{SQ+rg}, -v{SM+rg}, v{SM+rg}, v{SQ+rg}")
    for rg in R2:
        I(f"v_cvt_pk_bf16_f32 v{STA+2*rg+1}, 0, -v{SM+rg}")
        I(f"v_cvt_pk_bf16_f32 v{SQ+rg}, 0, v{SQ+rg}")
    for rg in R2: I(f"v_add_f32 v{SQ+rg}, {1e-5!r}, v{SQ+rg}")
    for rg in R2: I(f"v_cvt_pk_bf16_f32 v{SQ+rg}, 0, v{SQ+rg}")
    for rg in R2: I(f"v_sqrt_f32 v{SQ+rg}, v{SQ+rg}")
    I("s_nop 0")
    for rg in R2: I(f"v_cvt_pk_bf16_f32 v{SQ+rg}, 0, v{SQ+rg}")
    for rg in R2: I(f"v_rcp_f32 v{STA+2*rg}, v{SQ+rg}")
    I("s_nop 0")
    for rg in R2: I(f"ds_write_b64 v5, v[{STA+2*rg}:{STA+2*rg+1}] offset:{128*rg}")
    I("s_waitcnt lgkmcnt(0)")
    I("s_barrier")
    for rg in R2: I(f"buffer_store_dwordx2 v[{STA+2*rg}:{STA+2*rg+1}], v7, s[20:23], 0 offen offset:{128*rg}")
    if HST:
        stamp_dump(5); nst[0] = 1
    I("s_endpgm")
    e("G1_cons:")
    I("s_and_b32 s31, s3, 1")
    I("s_lshr_b32 s33, s3, 1")
    I("s_lshl_b32 s27, s24, 3")
    I("s_lshl_b32 s26, s31, 2")
    I("s_add_u32 s26, s26, s27")
    I("s_mul_i32 s27, s26, 55296")
    I("v_lshl_add_u32 v9, v1, 4, s27")
    I("v_bfe_u32 v17, v0, 4, 2")
    I("v_and_b32 v18, 15, v0")
    I("v_bfe_u32 v19, v0, 1, 2")
    I("v_xor_b32 v19, v19, v17")
    I("v_lshlrev_b32 v6, 6, v18")
    I("v_lshl_add_u32 v6, v19, 4, v6")
    I("s_lshl_b32 s30, s31, 12")
    I(f"s_add_u32 s30, s30, {XB}")
    I("v_add_u32 v6, s30, v6")
    I("s_lshl_b32 s30, s31, 9")
    I(f"s_add_u32 s30, s30, {STB}")
    I("v_lshl_add_u32 v7, v18, 3, s30")
    I("s_mul_i32 s30, s3, 320")
    I(f"s_add_u32 s30, s30, {CSB}")
    I("v_lshl_add_u32 v8, v17, 4, s30")
    I("s_xor_b32 s30, s3, 1")
    I("s_mul_i32 s30, s30, 320")
    I(f"s_add_u32 s30, s30, {CSB}")
    I("v_lshl_add_u32 v10, v17, 4, s30")
    I("v_bfe_u32 v18, v0, 2, 2")
    I("v_lshl_add_u32 v19, v17, 3, v18")
    I(f"v_mul_u32_u24 v19, {RS}, v19")
    I("v_and_b32 v18, 3, v0")
    I("v_lshl_add_u32 v19, v18, 3, v19")
    I("s_mul_i32 s27, s33, 160")
    I("v_add_u32 v19, s27, v19")
    I("v_and_b32 v18, 1, v17")
    I("v_lshlrev_b32 v18, 5, v18")
    I("s_lshl_b32 s27, s33, 1")
    I("s_sub_u32 s27, 1, s27")
    I("v_mul_lo_u32 v18, v18, s27")
    I(f"s_mul_i32 s27, s31, {MS}")
    I(f"s_sub_u32 s28, {MS}, s27")
    I("v_add_u32 v2, v19, v18")
    I("v_sub_u32 v3, v19, v18")
    for mm in range(2):
        for rg in range(2):
            for par in range(2):
                d = 11 + 4*mm + 2*rg + par
                I(f"v_add_u32 v{d}, s{27+mm}, v{2+par}")
                if rg: I(f"v_add_u32 v{d}, {3*SL}, v{d}")
    BB = 20; AF = 52; ONE = 68; CS = 72; ACC = 92; LA = 2
    for f_ in FLAGS:
        if f_.startswith("la"): LA = int(f_[2:])
    for j in range(4): I(f"v_mov_b32 v{ONE+j}, 0x3f803f80")
    I("s_waitcnt lgkmcnt(0)")
    srd(20, 6, SZ_H, WS_H)
    PFD = 0
    for f_ in FLAGS:
        if f_.startswith("pfd"): PFD = int(f_[3:])
    PFW = [None]
    if PFD:
        I("s_cmp_eq_u32 s3, 1")
        I("s_cselect_b32 s8, s18, s16")
        I("s_cselect_b32 s9, s19, s17")
        I("s_cmp_eq_u32 s3, 2")
        I("s_cselect_b32 s8, s44, s8")
        I("s_cselect_b32 s9, s45, s9")
        I(f"s_mov_b32 s10, {SZ_W}")
        I(f"s_cselect_b32 s10, {SZ_SD}, s10")
        I("s_mov_b32 s11, 0x00020000")
        I("s_cselect_b32 s12, 24, 20")
        I(f"s_mov_b32 s13, {128*3456}")
        I(f"s_cselect_b32 s13, 256, s13")
        I("s_cmp_eq_u32 s3, 3")
        I("s_cselect_b32 s12, 0, s12")
        I("s_mul_i32 s14, s47, s12")
        I("v_add_u32 v4, s14, v1")
        I("v_lshlrev_b32 v5, 7, v4")
        I("v_lshrrev_b32 v19, 1, v4")
        I("v_mul_u32_u24 v19, 0x500, v19")
        I("v_and_b32 v4, 1, v4")
        I("v_lshl_add_u32 v4, v4, 7, v19")
        I("v_min_u32 v5, 442240, v5")
        I("s_cmp_eq_u32 s3, 2")
        I("s_cselect_b64 vcc, -1, 0")
        I("v_cndmask_b32 v4, v5, v4, vcc")
        I("v_cmp_gt_u32 s[14:15], s12, v1")
        I("s_mov_b32 s16, 0")
        if "pfs0" in FLAGS: I("s_mov_b32 s16, s13")
        def pf():
            I("s_mov_b64 exec, s[14:15]")
            I("buffer_load_dword v19, v4, s[8:11], s16 offen")
            I("s_mov_b64 exec, -1")
            I("s_add_u32 s16, s16, s13")
        PFW[0] = pf
        PQ = [0]*5
        for f_ in FLAGS:
            if f_.startswith("pq"): PQ = [int(x) for x in f_[2:].split("_")]
        for g_ in range(1 if "pfs0" in FLAGS else 0, min(5, PFD)):
            if PQ[g_]: I(f"s_sleep {PQ[g_]}")
            pf()
    def acc(m, j, js): return ACC + ((m*5 + j)*4 + js)*4
    seq = [(m, j) for m in range(2) for j in range(5)]
    NQ = len(seq)
    dq = []
    def dwait(tags):
        idxs = [i for i, t in enumerate(dq) if t in tags]
        if not idxs: return
        idx = max(idxs); n = len(dq) - 1 - idx
        assert n <= 15
        I(f"s_waitcnt lgkmcnt({n})")
        del dq[:idx+1]
    def rdx(gpos):
        st, idx = divmod(gpos, NQ)
        m, j = seq[idx]
        slot = st % NS
        a = AF + (gpos % 4)*4
        va = 11 + 4*m + 2*(slot // 3) + (j & 1)
        off = (slot % 3)*SL + j*32
        return [f"ds_read_b64_tr_b16 v[{a}:{a+1}], v{va} offset:{off}",
                f"ds_read_b64_tr_b16 v[{a+2}:{a+3}], v{va} offset:{off+4*RS}"]
    def xrd(st, js):
        b = BB + (st & 1)*16 + js*4
        I(f"ds_read_b128 v[{b}:{b+3}], v6 offset:{(st % NX)*XS + js*1024}")
        dq.append(("X", st))
    stamp()
    I("s_barrier")
    stamp()
    for js in range(4): xrd(0, js)
    for i in range(LA):
        for x in rdx(i): I(x); dq.append(("A", i))
    for st in range(NST):
        if st + 1 < NST: I("s_barrier")
        if "stamp3" in FLAGS and st in (1, 5, 10): stamp()
        PFE = 4
        for f_ in FLAGS:
            if f_.startswith("pfe"): PFE = int(f_[3:])
        if PFD and st % PFE == 0 and st//PFE + PFD < 5: PFW[0]()
        for idx in range(NQ):
            gpos = st*NQ + idx
            rr = rdx(gpos + LA) if gpos + LA < NST*NQ else None
            dwait([("A", gpos), ("X", st)])
            m, j = seq[idx]
            a = AF + (gpos % 4)*4
            for js in range(4):
                c = acc(m, j, js); b = BB + (st & 1)*16 + js*4
                cc = "0" if st == 0 else f"v[{c}:{c+3}]"
                I(f"v_mfma_f32_16x16x32_bf16 v[{c}:{c+3}], v[{a}:{a+3}], v[{b}:{b+3}], {cc}")
                if rr and js < 2: I(rr[js]); dq.append(("A", gpos + LA))
                if js == 2 and st + 1 < NST and 1 <= idx <= 4: xrd(st + 1, idx - 1)
            if m == 0 and "nocs" not in FLAGS:
                c = CS + 4*j
                cc = "0" if st == 0 else f"v[{c}:{c+3}]"
                I(f"v_mfma_f32_16x16x32_bf16 v[{c}:{c+3}], v[{a}:{a+3}], v[{ONE}:{ONE+3}], {cc}")
    stamp()
    for j in range(5): I(f"ds_write_b128 v8, v[{CS+4*j}:{CS+4*j+3}] offset:{64*j}")
    I("s_lshr_b32 s34, s25, 5")
    I("s_lshl_b32 s34, s34, 10")
    I("s_waitcnt lgkmcnt(0)")
    I("s_barrier")
    CP2 = 20; STR = 40
    for js in range(4): I(f"ds_read_b64 v[{STR+2*js}:{STR+2*js+1}], v7 offset:{128*js}")
    for j in range(5): I(f"ds_read_b128 v[{CP2+4*j}:{CP2+4*j+3}], v10 offset:{64*j}")
    for m in range(2):
        I(f"s_waitcnt lgkmcnt({5 if m == 0 else 0})")
        for j in range(5):
            cs = (CS if m == 0 else CP2) + 4*j
            for js in range(4):
                c = acc(m, j, js); sr = STR + 2*js
                for hh in range(2):
                    I(f"v_pk_fma_f32 v[{c+2*hh}:{c+2*hh+1}], v[{cs+2*hh}:{cs+2*hh+1}], v[{sr}:{sr+1}], v[{c+2*hh}:{c+2*hh+1}] op_sel:[0,1,0] op_sel_hi:[1,1,1]")
            for js in range(4):
                c = acc(m, j, js); sr = STR + 2*js
                for hh in range(2):
                    I(f"v_pk_mul_f32 v[{c+2*hh}:{c+2*hh+1}], v[{c+2*hh}:{c+2*hh+1}], v[{sr}:{sr+1}] op_sel:[0,0] op_sel_hi:[1,0]")
    cnt = [0]
    def hq(j, js, dst, t):
        g = acc(0, j, js); u = acc(1, j, js)
        I(f"v_cvt_pk_bf16_f32 v{t}, v{g}, v{g+1}")
        I(f"v_cvt_pk_bf16_f32 v{t+1}, v{g+2}, v{g+3}")
        I(f"v_cvt_pk_bf16_f32 v{t+2}, v{u}, v{u+1}")
        I(f"v_cvt_pk_bf16_f32 v{t+3}, v{u+2}, v{u+3}")
        lo16(g, t); hi16(g+1, t); lo16(g+2, t+1); hi16(g+3, t+1)
        lo16(u, t+2); hi16(u+1, t+2); lo16(u+2, t+3); hi16(u+3, t+3)
        for r in range(4):
            I(f"v_mul_f32 v{g+r}, v{g+r}, v{u+r}")
        I(f"v_cvt_pk_bf16_f32 v{dst}, v{g}, v{g+1}")
        I(f"v_cvt_pk_bf16_f32 v{dst+1}, v{g+2}, v{g+3}")
    def epi(fq):
        units = [((0, 1), 0, 0), ((2, 3), 1, 0), ((4,), 2, 0)] if fq == 0 else [((0,), 2, 8), ((1, 2), 3, 0), ((3, 4), 4, 0)]
        for js in range(4):
            I(f"s_add_u32 s35, s34, {js*55296}")
            I(f"s_add_u32 s36, s34, {js*55296 + 4096}")
            for (jl, blk, ho) in units:
                t = 24 + (cnt[0] % 4) * 12; cnt[0] += 1
                for hh, j in enumerate(jl): hq(j, js, t+4+2*hh, t)
                so, off = ("s35", 1024*blk + ho) if blk < 4 else ("s36", ho)
                if len(jl) == 2:
                    I(f"buffer_store_dwordx4 v[{t+4}:{t+7}], v9, s[20:23], {so} offen offset:{off}")
                else:
                    I(f"buffer_store_dwordx2 v[{t+4}:{t+5}], v9, s[20:23], {so} offen offset:{off}")
    I("s_cmp_eq_u32 s33, 0")
    I("s_cbranch_scc0 G1_epi1")
    epi(0)
    I("s_branch G1_epid")
    e("G1_epi1:")
    epi(1)
    e("G1_epid:")
    if STAMP: I("s_waitcnt vmcnt(0)")
    stamp()
    stamp_dump(5)
    wgt_end(1)
    I("s_endpgm")

def gen_g1f2():
    NF = 10; RS = 320; MS = 32*RS; SL = 2*MS; NS = 6; NST = 20; DWP = 5
    XB = NS*SL
    XP = 18432; XR = 144
    STL = XB + 2*XP
    CN = "nocn" not in FLAGS
    I(f"s_mul_i32 s25, s25, {16*NF}")
    I(f"s_min_u32 s25, s25, {F-16*NF}")
    I("v_and_b32 v1, 63, v0")
    I("s_and_b32 s26, s3, 3")
    I(f"s_mul_i32 s30, s26, {32*XR}")
    I(f"s_add_u32 s30, s30, {XB}")
    I("s_lshl_b32 s31, s26, 9")
    I(f"s_add_u32 s31, s31, {STL}")
    I("v_lshl_add_u32 v8, v1, 3, s31")
    I("s_lshl_b32 s27, s24, 3")
    I("s_lshl_b32 s26, s26, 1")
    I("s_add_u32 s26, s26, s27")
    I("s_mul_i32 s27, s26, 20480")
    I("v_lshrrev_b32 v12, 3, v1")
    I("v_and_b32 v11, 7, v1")
    I("v_mul_u32_u24 v13, 0x500, v12")
    I("v_lshl_add_u32 v13, v11, 4, v13")
    I("v_add_u32 v13, s27, v13")
    for rg in range(1, 4): I(f"v_add_u32 v{13+rg}, {rg*10240}, v13")
    I(f"v_mul_u32_u24 v5, {XR}, v12")
    I("v_lshl_add_u32 v5, v11, 4, v5")
    I("v_add_u32 v5, s30, v5")
    I("s_cmp_lt_u32 s3, 4")
    I("s_cbranch_scc1 G1_cons")
    RAW = 64
    def raw(rg, p): return RAW + (p*4 + rg)*4
    I("s_lshl_b32 s27, s26, 7")
    I("v_lshl_add_u32 v7, v12, 3, s27")
    I("s_waitcnt lgkmcnt(0)")
    srd(12, 44, SZ_SD)
    srd(20, 6, S*8, WS_ST)
    for p in range(10):
        for rg in range(4):
            r = raw(rg, p)
            I(f"buffer_load_dwordx4 v[{r}:{r+3}], v{13+rg}, s[12:15], 0 offen offset:{128*p}")
    SM = 24; SS = 32; TT = 40; STA = 48
    for j in range(16): I(f"v_mov_b32 v{SM+j}, 0")
    I("s_mov_b32 s49, 0x3f803f80")
    vq = [("Q", i) for i in range(40)]
    def vwait(pred):
        idxs = [i for i, t in enumerate(vq) if pred(t)]
        if not idxs: return
        idx = max(idxs)
        n = len(vq) - 1 - idx
        assert n <= 63
        I(f"s_waitcnt vmcnt({n})")
        del vq[:idx+1]
    def pdma(st):
        I(f"s_mov_b32 s28, {st*32*3456}")
        for i in range(5):
            if i % 4 == 0: I(f"s_add_u32 m0, s29, {(st % NS)*SL + (i//4)*4096}")
            I(f"buffer_load_dwordx4 v{224+i}, s[8:11], s28 offen offset:{1024*(i%4)} lds")
            vq.append(("D", st))
    I("s_lshl_b32 s27, s25, 1")
    I("s_and_b32 s28, s3, 1")
    I("s_lshl_b32 s28, s28, 4")
    for i in range(5):
        I(f"v_add_u32 v20, {64*i}, v1")
        I("v_mul_u32_u24 v21, 3277, v20")
        I("v_lshrrev_b32 v21, 16, v21")
        I("v_mul_u32_u24 v22, 20, v21")
        I("v_sub_u32 v22, v20, v22")
        I("v_add_u32 v21, s28, v21")
        I("v_bfe_u32 v23, v21, 3, 1")
        I("v_lshlrev_b32 v23, 1, v23")
        I("v_xor_b32 v22, v22, v23")
        I("v_mul_u32_u24 v21, 3456, v21")
        I("v_lshl_add_u32 v21, v22, 4, v21")
        I("v_add_u32 v21, s27, v21")
        I(f"v_subrev_u32 v{224+i}, {1024*(i%4)}, v21")
    I("s_sub_u32 s29, s3, 4")
    I("s_mul_i32 s29, s29, 5120")
    I("s_cmp_ge_u32 s3, 6")
    I("s_cselect_b32 s4, s18, s16")
    I("s_cselect_b32 s5, s19, s17")
    srd(8, 4, SZ_W)
    DSCH = {5: [0], 8: [1], 9: [2]}
    for f_ in FLAGS:
        if f_ == "dsch1": DSCH = {3: [0], 6: [1], 9: [2]}
        if f_ == "dsch2": DSCH = {7: [0], 9: [1, 2]}
        if f_ == "dsch3": DSCH = {-1: [0], 5: [1], 9: [2]}
    for st in DSCH.get(-1, []): pdma(st)
    for p in range(10):
        vwait(lambda t: t[0] == "Q" and t[1] <= 4*p + 3)
        for c in range(4):
            for rg in range(4):
                r = raw(rg, p) + c
                I(f"v_dot2_f32_bf16 v{SM+2*rg+(c&1)}, v{r}, s49, v{SM+2*rg+(c&1)}")
                I(f"v_dot2_f32_bf16 v{SS+2*rg+(c&1)}, v{r}, v{r}, v{SS+2*rg+(c&1)}")
        for st in DSCH.get(p, []): pdma(st)
    I("s_nop 3")
    V8 = [SM+2*rg for rg in range(4)] + [SS+2*rg for rg in range(4)]
    for a in V8: I(f"v_add_f32 v{a}, v{a}, v{a+1}")
    for i_, dpp in enumerate(("quad_perm:[1,0,3,2]", "quad_perm:[2,3,0,1]", "row_half_mirror")):
        sr, ds_ = (0, 1) if i_ % 2 == 0 else (1, 0)
        for a in V8: I(f"v_add_f32_dpp v{a+ds_}, v{a+sr}, v{a+sr} {dpp} row_mask:0xf bank_mask:0xf")
    R4 = range(4)
    for a in V8: I(f"v_mul_f32 v{a}, {1.0/640.0!r}, v{a+1}")
    for rg in R4: I(f"v_fma_f32 v{SS+2*rg}, -v{SM+2*rg}, v{SM+2*rg}, v{SS+2*rg}")
    for rg in R4:
        I(f"v_cvt_pk_bf16_f32 v{STA+2*rg+1}, 0, -v{SM+2*rg}")
        I(f"v_cvt_pk_bf16_f32 v{SS+2*rg}, 0, v{SS+2*rg}")
    for rg in R4: I(f"v_add_f32 v{SS+2*rg}, {1e-5!r}, v{SS+2*rg}")
    for rg in R4: I(f"v_cvt_pk_bf16_f32 v{SS+2*rg}, 0, v{SS+2*rg}")
    for rg in R4: I(f"v_sqrt_f32 v{SS+2*rg}, v{SS+2*rg}")
    I("s_nop 0")
    for rg in R4: I(f"v_cvt_pk_bf16_f32 v{SS+2*rg}, 0, v{SS+2*rg}")
    for rg in R4: I(f"v_rcp_f32 v{STA+2*rg}, v{SS+2*rg}")
    I("s_mov_b32 s50, 0x3f80")
    I("s_mov_b32 s51, 0x3f800000")
    if CN: I(f"ds_write_b64 v8, v[{STA+6}:{STA+7}]")
    def norm_ops(r, R_, M_, tt, wr, fast=False):
        o = []
        if fast:
            for c in range(4):
                o.append(f"v_dot2_f32_bf16 v{tt+2*c}, v{r+c}, s50, v{M_}")
                o.append(f"v_dot2_f32_bf16 v{tt+2*c+1}, v{r+c}, s51, v{M_}")
            for c in range(8): o.append(f"v_cvt_pk_bf16_f32 v{tt+c}, 0, v{tt+c}")
            for c in range(4): o.append(f"v_pk_mul_f32 v[{tt+2*c}:{tt+2*c+1}], v[{tt+2*c}:{tt+2*c+1}], v[{R_}:{R_+1}] op_sel_hi:[1,0]")
        else:
            for c in range(4):
                o.append(f"v_lshlrev_b32 v{tt+2*c}, 16, v{r+c}")
                o.append(f"v_and_b32 v{tt+2*c+1}, 0xffff0000, v{r+c}")
            for c in range(8): o.append(f"v_add_f32 v{tt+c}, v{tt+c}, v{M_}")
            for c in range(8): o.append(f"v_cvt_pk_bf16_f32 v{tt+c}, 0, v{tt+c}")
            for c in range(8): o.append(f"v_mul_f32 v{tt+c}, v{tt+c}, v{R_}")
        for c in range(4): o.append(f"v_cvt_pk_bf16_f32 v{r+c}, v{tt+2*c}, v{tt+2*c+1}")
        o.append(wr)
        return o
    def hnorm(p, rgs, fast=False):
        o = []
        for rg in rgs:
            r = raw(rg, p)
            o += norm_ops(r, STA + 2*rg, STA + 2*rg + 1, TT, f"ds_write_b128 v5, v[{r}:{r+3}] offset:{(p & 1)*XP + rg*8*XR}", fast)
        return o
    HST = "hst" in FLAGS
    hn = [0]
    def hstamp(k):
        if HST and k in (12, 13):
            I(f"s_memtime s[{60+2*hn[0]}:{61+2*hn[0]}]"); hn[0] += 1
    for k in range(NST):
        hstamp(k)
        if k == 0:
            for x in hnorm(0, (0, 1, 2, 3), fast=True): I(x)
            pdma(3); pdma(4)
        else:
            dl = []
            if k >= 2 and k - 2 + DWP < NST:
                st = k - 2 + DWP
                for i in range(5):
                    pre = [f"s_mov_b32 s28, {st*32*3456}"] if i == 0 else []
                    if i % 4 == 0: pre.append(f"s_add_u32 m0, s29, {(st % NS)*SL + (i//4)*4096}")
                    dl.append(pre + [f"buffer_load_dwordx4 v{224+i}, s[8:11], s28 offen offset:{1024*(i%4)} lds"])
                    vq.append(("D", st))
            hstamp(k)
            p = (k-1)//2 + 1
            o = []
            if p < 10:
                o = hnorm(p, (0, 1, 2) if (CN and p >= 2) else (0, 1, 2, 3))
                h = len(o)//2
                o = (o[:h] if (k-1) % 2 == 0 else o[h:])
            stepd = max(1, len(o)//5)
            for i_, x in enumerate(o):
                if i_ % stepd == 0 and dl:
                    for y in dl.pop(0): I(y)
                I(x)
            for d_ in dl:
                for y in d_: I(y)
        if k == 1:
            for rg in R4:
                I(f"buffer_store_dwordx2 v[{STA+2*rg}:{STA+2*rg+1}], v7, s[20:23], 0 offen offset:{64*rg}")
                vq.append(("S", rg))
        hstamp(k)
        vwait(lambda t: t == ("D", k))
        hstamp(k)
        I("s_waitcnt lgkmcnt(0)")
        hstamp(k)
        I("s_barrier")
    if HST:
        I("s_waitcnt lgkmcnt(0) vmcnt(0)")
        I("s_cmp_lg_u32 s2, 5")
        I("s_cbranch_scc1 HS_skip")
        I("s_cmp_lg_u32 s3, 4")
        I("s_cbranch_scc1 HS_skip")
        I("s_load_dwordx2 s[56:57], s[0:1], 88")
        I("s_waitcnt lgkmcnt(0)")
        I("s_mov_b32 s58, 256")
        I("s_mov_b32 s59, 0x00020000")
        I("v_mov_b32 v1, 0")
        for i in range(hn[0]):
            I(f"s_sub_u32 s{61+2*i}, s{60+2*i}, s60")
            I(f"v_mov_b32 v2, s{61+2*i}")
            I(f"buffer_store_dword v2, v1, s[56:59], 0 offen offset:{128+4*i}")
        I("s_waitcnt vmcnt(0)")
        e("HS_skip:")
    I("s_endpgm")
    e("G1_cons:")
    BB = 24; AF = 56; ACC = 80; LA = 2
    CR_ = 72; CT = 240; CS = 248
    I("v_mov_b32 v250, v16")
    I(f"v_add_u32 v251, {24*XR}, v5")
    I("v_mov_b32 v252, v8")
    I("s_load_dwordx2 s[4:5], s[0:1], 72")
    CSL = 48
    for f_ in FLAGS:
        if f_.startswith("csl"): CSL = int(f_[3:])
    if CSL: I(f"s_sleep {CSL}")
    I("s_waitcnt lgkmcnt(0)")
    srd(12, 44, SZ_SD)
    I("s_cmp_ge_u32 s3, 2")
    I("s_cbranch_scc1 G1_cpf")
    I("s_mul_i32 s46, s3, 176")
    I("s_add_u32 s46, s46, s47")
    I("s_cmp_ge_u32 s46, 270")
    I("s_cbranch_scc1 G1_cgo")
    I("s_mul_i32 s36, s46, 0xCCCD")
    I("s_lshr_b32 s36, s36, 19")
    I("s_mul_i32 s37, s36, 10")
    I("s_sub_u32 s37, s46, s37")
    I("v_and_b32 v23, 7, v0")
    I("v_bfe_u32 v17, v0, 3, 2")
    I("v_bfe_u32 v18, v0, 5, 1")
    I("s_lshl_b32 s37, s37, 6")
    I("v_lshl_add_u32 v23, v23, 3, s37")
    I("s_lshl_b32 s36, s36, 1")
    I("v_add_u32 v18, s36, v18")
    I("v_lshlrev_b32 v19, 5, v18")
    I("v_lshl_add_u32 v19, v17, 2, v19")
    I("v_mul_u32_u24 v20, 0x500, v19")
    I("v_lshl_add_u32 v20, v23, 1, v20")
    I("v_add_u32 v21, 0x5000, v20")
    srd(8, 4, SZ_W)
    srd(32, 6, SZ_W, WS_WDT)
    for i in range(8):
        b = 20 if i < 4 else 21
        I(f"buffer_load_dwordx4 v[{ACC+4*i}:{ACC+3+4*i}], v{b}, s[8:11], 0 offen offset:{(i%4)*1280}")
    I("s_mov_b32 s36, 0x05040100")
    I("s_mov_b32 s37, 0x07060302")
    I("v_lshrrev_b32 v22, 4, v23")
    I("v_mul_u32_u24 v22, 54, v22")
    I("v_add_u32 v22, v22, v18")
    I("v_lshlrev_b32 v22, 10, v22")
    I("v_lshl_add_u32 v22, v17, 8, v22")
    I("v_and_b32 v19, 15, v23")
    I("v_lshl_add_u32 v22, v19, 4, v22")
    I("s_waitcnt vmcnt(0)")
    for dd in range(8):
        ob = ACC + 32 + 4*dd
        sel = 36 + (dd & 1)
        for q in range(4):
            I(f"v_perm_b32 v{ob+q}, v{ACC+4*(2*q+1)+dd//2}, v{ACC+4*(2*q)+dd//2}, s{sel}")
    for dd in range(8):
        ob = ACC + 32 + 4*dd
        I(f"buffer_store_dwordx4 v[{ob}:{ob+3}], v22, s[32:35], 0 offen offset:{16*dd}")
    I("s_waitcnt vmcnt(0)")
    I("s_branch G1_cgo")
    e("G1_cpf:")
    if "nopfm" not in FLAGS:
        I("s_cmp_ge_u32 s3, 3")
        I("s_cselect_b32 s8, s18, s16")
        I("s_cselect_b32 s9, s19, s17")
        I("s_mul_i32 s27, s47, 12800")
        I(f"s_mov_b32 s10, {SZ_W}")
        I("s_mov_b32 s11, 0x00020000")
        I("v_lshlrev_b32 v17, 4, v1")
        for i in range(13):
            I(f"buffer_load_dwordx4 v[{ACC+4*i}:{ACC+3+4*i}], v17, s[8:11], s27 offen")
            I("s_add_u32 s27, s27, 1024")
        I("s_waitcnt vmcnt(0)")
    e("G1_cgo:")
    I("s_and_b32 s31, s3, 1")
    I("s_lshr_b32 s33, s3, 1")
    I("s_lshl_b32 s27, s24, 3")
    I("s_lshl_b32 s26, s31, 2")
    I("s_add_u32 s26, s26, s27")
    I("s_mul_i32 s27, s26, 55296")
    I("v_lshl_add_u32 v9, v1, 4, s27")
    I("v_bfe_u32 v17, v0, 4, 2")
    I("v_and_b32 v18, 15, v0")
    I(f"v_mul_u32_u24 v6, {XR}, v18")
    I("v_lshl_add_u32 v6, v17, 4, v6")
    I(f"s_mul_i32 s30, s31, {64*XR}")
    I(f"s_add_u32 s30, s30, {XB}")
    I("v_add_u32 v6, s30, v6")
    I("v_bfe_u32 v18, v0, 2, 2")
    I("v_lshl_add_u32 v19, v17, 3, v18")
    I(f"v_mul_u32_u24 v19, {RS}, v19")
    I("v_and_b32 v18, 3, v0")
    I("v_lshl_add_u32 v19, v18, 3, v19")
    I("s_mul_i32 s27, s33, 160")
    I("v_add_u32 v19, s27, v19")
    I("v_and_b32 v20, 1, v17")
    I("v_lshlrev_b32 v20, 5, v20")
    I("s_lshl_b32 s27, s33, 1")
    I("s_sub_u32 s27, 1, s27")
    I("v_mul_lo_u32 v20, v20, s27")
    I("v_add_u32 v11, v19, v20")
    I("v_sub_u32 v12, v19, v20")
    I(f"v_add_u32 v13, {3*SL}, v11")
    I(f"v_add_u32 v14, {3*SL}, v12")
    srd(20, 6, SZ_H, WS_H)
    for f_ in FLAGS:
        if f_.startswith("la"): LA = int(f_[2:])
    def acc(m, j, js): return ACC + ((m*5 + j)*4 + js)*4
    seq = [(m, j) for m in range(2) for j in range(5)]
    NQ = len(seq)
    dq = []
    def dwait(tags):
        idxs = [i for i, t in enumerate(dq) if t in tags]
        if not idxs: return
        idx = max(idxs); n = len(dq) - 1 - idx
        assert n <= 15
        I(f"s_waitcnt lgkmcnt({n})")
        del dq[:idx+1]
    def rdx(gpos):
        st, idx = divmod(gpos, NQ)
        m, j = seq[idx]
        slot = st % NS
        a = AF + (gpos % 4)*4
        va = 11 + 2*(slot // 3) + (j & 1)
        off = (slot % 3)*SL + m*MS + j*32
        return [f"ds_read_b64_tr_b16 v[{a}:{a+1}], v{va} offset:{off}",
                f"ds_read_b64_tr_b16 v[{a+2}:{a+3}], v{va} offset:{off+4*RS}"]
    def xrd(st, js):
        b = BB + (st & 1)*16 + js*4
        I(f"ds_read_b128 v[{b}:{b+3}], v6 offset:{((st >> 1) & 1)*XP + js*16*XR + (st & 1)*64}")
        dq.append(("X", st))
    def cld(P):
        r = CR_ + (P & 1)*4
        I(f"buffer_load_dwordx4 v[{r}:{r+3}], v250, s[12:15], 0 offen offset:{128*P}")
    if CN: cld(2); cld(3)
    stamp()
    I("s_barrier")
    stamp()
    for js in range(4): xrd(0, js)
    if CN:
        I(f"ds_read_b64 v[{CS}:{CS+1}], v252"); dq.append(("X", 0))
    for i in range(LA):
        for x in rdx(i): I(x); dq.append(("A", i))
    for st in range(NST):
        cw = []
        if CN and st >= 1:
            P = (st + 3)//2
            if 2 <= P <= 9:
                r = CR_ + (P & 1)*4
                o = norm_ops(r, CS, CS+1, CT, f"ds_write_b128 v251, v[{r}:{r+3}] offset:{(P & 1)*XP}")
                h = len(o)//2
                cw = o[:h] if st == 2*P - 3 else o[h:]
                if st == 2*P - 3: cw = [f"s_waitcnt vmcnt({1 if P < 9 else 0})"] + cw
                elif P + 2 <= 9: cw = cw + [("L", P + 2)]
        if st + 1 < NST:
            dwait([("XW", 0)])
            I("s_barrier")
        if "stamp3" in FLAGS and st in (1, 5, 10): stamp()
        nslot = 24
        for idx in range(NQ):
            gpos = st*NQ + idx
            rr = rdx(gpos + LA) if gpos + LA < NST*NQ else None
            dwait([("A", gpos), ("X", st)])
            m, j = seq[idx]
            a = AF + (gpos % 4)*4
            for js in range(4):
                c = acc(m, j, js); b = BB + (st & 1)*16 + js*4
                cc = "0" if st == 0 else f"v[{c}:{c+3}]"
                I(f"v_mfma_f32_16x16x32_bf16 v[{c}:{c+3}], v[{a}:{a+3}], v[{b}:{b+3}], {cc}")
                if rr and js < 2: I(rr[js]); dq.append(("A", gpos + LA))
                if js == 2 and st + 1 < NST and 1 <= idx <= 4: xrd(st + 1, idx - 1)
                if js >= 1 and cw:
                    x = cw.pop(0)
                    if isinstance(x, tuple): cld(x[1])
                    else:
                        I(x)
                        if x.startswith("ds_write"): dq.append(("XW", 0))
                        if x.startswith("s_waitcnt") and cw: I(cw.pop(0))
        assert not cw
    stamp()
    I("s_lshr_b32 s34, s25, 5")
    I("s_lshl_b32 s34, s34, 10")
    I("s_nop 7")
    I("s_nop 3")
    cnt = [0]
    def hq(j, js, dst, t):
        g = acc(0, j, js); u = acc(1, j, js)
        I(f"v_cvt_pk_bf16_f32 v{t}, v{g}, v{g+1}")
        I(f"v_cvt_pk_bf16_f32 v{t+1}, v{g+2}, v{g+3}")
        I(f"v_cvt_pk_bf16_f32 v{t+2}, v{u}, v{u+1}")
        I(f"v_cvt_pk_bf16_f32 v{t+3}, v{u+2}, v{u+3}")
        lo16(g, t); hi16(g+1, t); lo16(g+2, t+1); hi16(g+3, t+1)
        lo16(u, t+2); hi16(u+1, t+2); lo16(u+2, t+3); hi16(u+3, t+3)
        for r in range(4):
            I(f"v_mul_f32 v{g+r}, v{g+r}, v{u+r}")
        I(f"v_cvt_pk_bf16_f32 v{dst}, v{g}, v{g+1}")
        I(f"v_cvt_pk_bf16_f32 v{dst+1}, v{g+2}, v{g+3}")
    def epi(fq):
        units = [((0, 1), 0, 0), ((2, 3), 1, 0), ((4,), 2, 0)] if fq == 0 else [((0,), 2, 8), ((1, 2), 3, 0), ((3, 4), 4, 0)]
        for js in range(4):
            I(f"s_add_u32 s35, s34, {js*55296}")
            I(f"s_add_u32 s36, s34, {js*55296 + 4096}")
            for (jl, blk, ho) in units:
                t = 24 + (cnt[0] % 4) * 12; cnt[0] += 1
                for hh, j in enumerate(jl): hq(j, js, t+4+2*hh, t)
                so, off = ("s35", 1024*blk + ho) if blk < 4 else ("s36", ho)
                if len(jl) == 2:
                    I(f"buffer_store_dwordx4 v[{t+4}:{t+7}], v9, s[20:23], {so} offen offset:{off}")
                else:
                    I(f"buffer_store_dwordx2 v[{t+4}:{t+5}], v9, s[20:23], {so} offen offset:{off}")
    I("s_cmp_eq_u32 s33, 0")
    I("s_cbranch_scc0 G1_epi1")
    epi(0)
    I("s_branch G1_epid")
    e("G1_epi1:")
    epi(1)
    e("G1_epid:")
    if STAMP: I("s_waitcnt vmcnt(0)")
    stamp()
    stamp_dump(5)
    wgt_end(1)
    I("s_endpgm")

def g1_epi(NF, acc):
    I("s_lshr_b32 s34, s25, 5")
    I("s_lshl_b32 s34, s34, 10")
    I("s_add_u32 s35, s34, 4096")
    I("s_nop 7")
    I("s_nop 3")
    for js in range(2):
        for jp in range(NF//2):
            t = 24 + ((js*5 + jp) % 4) * 12
            for hh in range(2):
                jf = 2*jp + hh
                g = acc(0, jf, js); u = acc(1, jf, js)
                I(f"v_cvt_pk_bf16_f32 v{t}, v{g}, v{g+1}")
                I(f"v_cvt_pk_bf16_f32 v{t+1}, v{g+2}, v{g+3}")
                I(f"v_cvt_pk_bf16_f32 v{t+2}, v{u}, v{u+1}")
                I(f"v_cvt_pk_bf16_f32 v{t+3}, v{u+2}, v{u+3}")
                lo16(g, t); hi16(g+1, t); lo16(g+2, t+1); hi16(g+3, t+1)
                lo16(u, t+2); hi16(u+1, t+2); lo16(u+2, t+3); hi16(u+3, t+3)
                for r in range(4):
                    I(f"v_mul_f32 v{g+r}, v{g+r}, v{u+r}")
                I(f"v_cvt_pk_bf16_f32 v{t+4+2*hh}, v{g}, v{g+1}")
                I(f"v_cvt_pk_bf16_f32 v{t+5+2*hh}, v{g+2}, v{g+3}")
            if jp < 4:
                I(f"buffer_store_dwordx4 v[{t+4}:{t+7}], v{9+js}, s[20:23], s34 offen offset:{1024*jp}")
            else:
                I(f"buffer_store_dwordx4 v[{t+4}:{t+7}], v{9+js}, s[20:23], s35 offen")
    if STAMP: I("s_waitcnt vmcnt(0)")
    stamp()
    stamp_dump(5)
    wgt_end(1)
    I("s_endpgm")

def gen_k2():
    kernel_header("mid_kernel")
    if BIG:
        I("s_cmp_ge_u32 s2, 256")
        I("s_cbranch_scc1 M_exit")
        wgt_start()
        I("s_load_dwordx2 s[6:7], s[0:1], 96")
        I("v_lshrrev_b32 v1, 6, v0")
        I("s_nop 0")
        I("v_readfirstlane_b32 s3, v1")
        I("s_lshr_b32 s40, s2, 3")
        I("s_bfe_u32 s41, s2, 0x10002")
        I("s_and_b32 s42, s2, 3")
        I("s_lshl_b32 s43, s41, 2")
        I("s_sub_u32 s43, 24, s43")
        if "kvall" in FLAGS:
            I("s_and_b32 s8, s3, 1")
            I("s_lshl_b32 s8, s8, 3")
            I("s_add_u32 s8, s8, 8")
            I("s_load_dwordx2 s[8:9], s[0:1], s8")
            I("s_lshr_b32 s12, s3, 1")
            I("s_cmp_gt_u32 s12, s41")
            I("s_cbranch_scc1 M_nokvpf")
            I("s_mul_i32 s13, s42, 192")
            I("s_add_u32 s13, s13, 512")
            I("s_and_b32 s13, s13, 0xffffff80")
            I("s_lshl_b32 s14, s42, 7")
            I("s_cmp_eq_u32 s41, 0")
            I("s_cselect_b32 s13, s14, s13")
            I("s_lshl_b32 s12, s12, 7")
            I("s_add_u32 s13, s13, s12")
            I("s_mul_i32 s12, s40, 81920")
            I("s_add_u32 s13, s13, s12")
            I("v_and_b32 v1, 63, v0")
            I("v_mul_u32_u24 v1, 0x500, v1")
            I(f"s_mov_b32 s10, {SZ_SD}")
            I("s_mov_b32 s11, 0x00020000")
            I("s_waitcnt lgkmcnt(0)")
            for f_ in FLAGS:
                if f_.startswith("kvd"): I(f"s_sleep {int(f_[3:])}")
            I("buffer_load_dword v255, v1, s[8:11], s13 offen")
            e("M_nokvpf:")
            I("s_waitcnt lgkmcnt(0)")
        I("s_cmp_ge_u32 s40, s43")
        I("s_cbranch_scc1 M_conv")
        if "nog1" in FLAGS: I("s_endpgm")
        I("s_mul_i32 s24, s42, s43")
        I("s_add_u32 s24, s24, s40")
        I("s_mul_i32 s25, s41, 96")
        I("s_add_u32 s24, s24, s25")
        W0 = 6 if "prod" in FLAGS else 4
        if FUSE:
            stamp()
            I("s_load_dwordx4 s[16:19], s[0:1], 56")
            I("s_load_dwordx2 s[44:45], s[0:1], 0")
            I("s_mov_b32 s47, s24")
        I(f"s_sub_u32 s25, s3, {W0}")
        I("s_mul_i32 s25, s25, 176")
        I("s_add_u32 s24, s24, s25")
        if FUSE:
            I("s_mov_b32 s46, s24")
        else:
            I(f"s_cmp_ge_u32 s3, {W0}")
            I("s_cbranch_scc1 M_wdt")
        I("s_lshl_b32 s24, s42, 2")
        I("s_and_b32 s25, s40, 3")
        I("s_add_u32 s24, s24, s25")
        I("s_mul_i32 s25, s41, 6")
        I("s_lshr_b32 s26, s40, 2")
        I("s_add_u32 s25, s25, s26")
        if FUSE and "g1b" in FLAGS: gen_g1b()
        elif FUSE and "f2" in FLAGS: gen_g1f2()
        elif FUSE: gen_g1fuse()
        else: gen_g1big()
    else:
        gen_g1old()
    gen_aux()

def gen_g1old():
    I(f"s_cmp_ge_u32 s2, {N_G1+N_CV}")
    I("s_cbranch_scc1 M_exit")
    I("s_load_dwordx2 s[6:7], s[0:1], 96")
    I(f"s_cmp_ge_u32 s2, {N_G1}")
    I("s_cbranch_scc1 M_conv")
    if "nog1" in FLAGS: I("s_endpgm")
    stamp()
    if "prio" in FLAGS: I("s_setprio 3")
    I("s_load_dwordx4 s[16:19], s[0:1], 56")
    I("v_lshrrev_b32 v1, 6, v0")
    I("s_nop 0")
    I("v_readfirstlane_b32 s3, v1")
    I("s_waitcnt lgkmcnt(0)")
    if "stamp2" in FLAGS: stamp()
    I("s_cmp_ge_u32 s3, 2")
    I("s_cselect_b32 s4, s18, s16")
    I("s_cselect_b32 s5, s19, s17")
    srd(8, 4, SZ_W)
    srd(12, 6, SZ_SD, WS_XN)
    srd(20, 6, SZ_H, WS_H)
    if "g12d" in FLAGS:
        I("s_and_b32 s24, s2, 3")
        I("s_lshl_b32 s24, s24, 2")
        I("s_bfe_u32 s25, s2, 0x20003")
        I("s_add_u32 s24, s24, s25")
        I("s_bfe_u32 s25, s2, 0x10002")
        I("s_lshl_b32 s25, s25, 3")
        I("s_lshr_b32 s26, s2, 5")
        I("s_add_u32 s25, s25, s26")
    else:
        I("s_and_b32 s24, s2, 15")
        I("s_lshr_b32 s25, s2, 4")
    I(f"s_mul_i32 s25, s25, {BF}")
    I(f"s_min_u32 s25, s25, {F-BF}")
    I("v_and_b32 v1, 63, v0")
    if "pf" in FLAGS:
        I("s_lshr_b32 s26, s2, 3")
        I("s_lshl_b32 s27, s26, 1")
        I("s_and_b32 s28, s3, 1")
        I("s_add_u32 s27, s27, s28")
        I("s_mul_i32 s27, s27, 34560")
        I("s_bfe_u32 s28, s2, 0x10002")
        I("s_mul_i32 s28, s28, 1792")
        I("s_add_u32 s27, s27, s28")
        I("v_lshrrev_b32 v192, 5, v1")
        I("v_mul_u32_u24 v192, 3456, v192")
        I("v_and_b32 v193, 31, v1")
        I("v_lshl_add_u32 v192, v193, 6, v192")
        I("v_add_u32 v192, s27, v192")
        for i in range(5):
            I(f"s_mov_b32 s27, {i*6912}")
            I(f"buffer_load_dword v{194+i}, v192, s[8:11], s27 offen")
        I("s_and_b32 s27, s2, 3")
        I("s_mul_i32 s27, s27, 655360")
        I("s_lshl_b32 s28, s26, 2")
        I("s_add_u32 s28, s28, s3")
        I("s_mul_i32 s28, s28, 5120")
        I("s_add_u32 s27, s27, s28")
        I("v_lshlrev_b32 v193, 6, v1")
        I("buffer_load_dword v199, v193, s[12:15], s27 offen")
        I("buffer_load_dword v200, v193, s[12:15], s27 offen offset:1024")
    I("v_lshrrev_b32 v10, 4, v1")
    I("v_bfe_u32 v11, v1, 1, 3")
    I("v_and_b32 v12, 1, v1")
    I("s_and_b32 s26, s3, 1")
    I("s_lshl_b32 s26, s26, 4")
    I("s_lshl_b32 s27, s25, 1")
    for i in range(4):
        bit = (i >> 1) & 1
        I(f"v_or_b32 v13, {bit<<2}, v10")
        I("v_xor_b32 v13, v13, v11")
        I(f"v_add_u32 v14, {4*i}, v10")
        I("v_add_u32 v14, s26, v14")
        I("v_mul_u32_u24 v14, 3456, v14")
        I("v_lshl_add_u32 v14, v13, 5, v14")
        I("v_lshl_add_u32 v14, v12, 4, v14")
        I("v_add_u32 v14, s27, v14")
        I(f"v_subrev_u32 v14, {1024*i}, v14")
        I("v_cmp_eq_u32 vcc, 7, v13")
        I("v_mov_b32 v15, 0x40000000")
        I("s_nop 0")
        I(f"v_cndmask_b32 v{2+i}, v14, v15, vcc")
    I("v_bfe_u32 v17, v0, 4, 2")
    I("s_lshl_b32 s26, s24, 3")
    I("s_lshl_b32 s27, s3, 1")
    I("s_add_u32 s26, s26, s27")
    I("s_mul_i32 s27, s26, 20480")
    I("v_lshl_add_u32 v6, v1, 4, s27")
    I("v_add_u32 v7, 20480, v6")
    I("s_mul_i32 s27, s26, 55296")
    I("v_lshl_add_u32 v8, v1, 4, s27")
    I("v_add_u32 v9, 55296, v8")
    I("v_bfe_u32 v18, v0, 2, 2")
    I("v_lshl_add_u32 v19, v17, 3, v18")
    I("v_lshlrev_b32 v19, 8, v19")
    I("v_and_b32 v20, 1, v17")
    I("v_lshl_or_b32 v20, v20, 2, v18")
    I("v_lshl_add_u32 v19, v20, 5, v19")
    I("v_and_b32 v18, 3, v0")
    I("v_lshl_add_u32 v19, v18, 3, v19")
    VA = 10
    I("v_mov_b32 v24, v19")
    for jf in range(7):
        I(f"v_xor_b32 v{VA+jf}, {jf<<5}, v24")
        I(f"v_add_u32 v{VA+7+jf}, 0x10000, v{VA+jf}")
    I("s_lshl_b32 s29, s3, 12")
    BB = 24
    AF = 64
    ACC = 80
    def acc(m, jf, js): return ACC + ((m*7 + jf)*2 + js)*4
    def bfr(st, js): return BB + (st % NSLOT)*8 + js*4
    NST = 20
    def issue(slot):
        I(f"s_add_u32 s30, s29, {slot*SLOT}")
        I("s_mov_b32 m0, s30")
        for i in range(4):
            I(f"buffer_load_dwordx4 v{2+i}, s[8:11], s28 offen offset:{1024*i} lds")
        for js in range(2):
            r = BB + slot*8 + js*4
            I(f"buffer_load_dwordx4 v[{r}:{r+3}], v{6+js}, s[12:15], s31 offen")
        I("s_add_u32 s36, s36, 1")
        I("s_cmp_ge_u32 s36, 20")
        I("s_cselect_b32 s36, 0, s36")
        I("s_add_u32 s37, s37, 1")
        I(f"s_mul_i32 s28, s36, {32*3456}")
        I("s_lshl_b32 s31, s36, 10")
        I("s_cmp_ge_u32 s37, 20")
        I("s_cselect_b32 s28, 0x40000000, s28")
        I("s_cselect_b32 s31, 0x40000000, s31")
    if "rot" in FLAGS:
        I("s_and_b32 s36, s24, 3")
        I("s_mul_i32 s36, s36, 5")
        I("s_lshr_b32 s37, s2, 5")
        I("s_mul_i32 s37, s37, 3")
        I("s_add_u32 s36, s36, s37")
        I("s_cmp_ge_u32 s36, 20")
        I("s_cselect_b32 s37, 20, 0")
        I("s_sub_u32 s36, s36, s37")
    else:
        I("s_mov_b32 s36, 0")
    I("s_mov_b32 s37, 0")
    I(f"s_mul_i32 s28, s36, {32*3456}")
    I("s_lshl_b32 s31, s36, 10")
    if "stamp2" in FLAGS: stamp()
    for st in range(NSLOT - 1):
        issue(st)
    if "stamp2" in FLAGS: stamp()
    for j in range(112):
        I(f"v_mov_b32 v{ACC+j}, 0")
    I("s_mov_b32 s33, 0")
    stamp()
    def body(last):
      for slot in range(NSLOT):
        if not last or slot <= 1:
            I(f"s_waitcnt vmcnt({6*(NSLOT-2)})")
        else:
            I(f"s_waitcnt vmcnt({6*(NSLOT-1-slot)})")
        I("s_barrier")
        if not last or slot == 0:
            issue((slot + NSLOT - 1) % NSLOT)
        seq = [(m, jf) for m in range(2) for jf in range(7)]
        def rd(idx):
            m, jf = seq[idx]
            a = AF + (idx % 4)*4
            if slot < 4:
                va = VA + jf; off = slot*SLOT + m*8192
            else:
                va = VA + 7 + jf; off = m*8192
            I(f"ds_read_b64_tr_b16 v[{a}:{a+1}], v{va} offset:{off}")
            I(f"ds_read_b64_tr_b16 v[{a+2}:{a+3}], v{va} offset:{off+1024}")
        for i in range(3):
            rd(i)
        for idx in range(14):
            if idx + 3 < 14:
                rd(idx + 3)
                I("s_waitcnt lgkmcnt(6)")
            else:
                I(f"s_waitcnt lgkmcnt({2*(13-idx)})")
            m, jf = seq[idx]
            a = AF + (idx % 4)*4
            for js in range(2):
                c = acc(m, jf, js); b = BB + slot*8 + js*4
                I(f"v_mfma_f32_16x16x32_bf16 v[{c}:{c+3}], v[{a}:{a+3}], v[{b}:{b+3}], v[{c}:{c+3}]")
    XS = "xs" in FLAGS
    LA = 3
    for f in FLAGS:
        if f.startswith("la"): LA = int(f[2:])
    RING = [64,68,72,76,192,196,200] if LA > 3 else [64,68,72,76,192]
    seq = [(m, jf) for m in range(2) for jf in range(7)]
    ring = [0]
    def rdx(slot, idx, pos):
        m, jf = seq[idx]
        a = RING[pos % len(RING)]
        if slot < 4:
            va = VA + jf; off = slot*SLOT + m*8192
        else:
            va = VA + 7 + jf; off = m*8192
        return [f"ds_read_b64_tr_b16 v[{a}:{a+1}], v{va} offset:{off}",
                f"ds_read_b64_tr_b16 v[{a+2}:{a+3}], v{va} offset:{off+1024}"]
    def body_xs(last):
      for slot in range(NSLOT):
        fin_stage = last and slot == NSLOT-1
        if not fin_stage:
            if not last or slot <= 1:
                I("s_waitcnt vmcnt(12)")
            else:
                I(f"s_waitcnt vmcnt({6*(NSLOT-2-slot)})")
            if "g1nobar" not in FLAGS: I("s_barrier")
        if (not last or slot == 0) and "g1noload" not in FLAGS:
            issue((slot + NSLOT - 1) % NSLOT)
        for idx in range(14 if "g1nocomp" not in FLAGS else 0):
            pos = idx + 14*slot
            if idx + LA < 14:
                rr = rdx(slot, idx + LA, pos + LA)
            elif not fin_stage:
                rr = rdx((slot + 1) % NSLOT, idx + LA - 14, pos + LA)
            else:
                rr = None
            I(f"s_waitcnt lgkmcnt({2*(LA-1) if not fin_stage else 2*min(LA-1, 13-idx)})")
            m, jf = seq[idx]
            a = RING[pos % len(RING)]
            for js in range(2):
                c = acc(m, jf, js); b = BB + slot*8 + js*4
                I(f"v_mfma_f32_16x16x32_bf16 v[{c}:{c+3}], v[{a}:{a+3}], v[{b}:{b+3}], v[{c}:{c+3}]")
                if rr: I(rr[js])
    if XS:
        I("s_waitcnt vmcnt(18)")
        I("s_barrier")
        for i in range(LA):
            for x in rdx(0, i, i): I(x)
    e("G1_loop:")
    (body_xs if XS else body)(False)
    I("s_add_u32 s33, s33, 1")
    I(f"s_cmp_lt_u32 s33, {NST//NSLOT - 1}")
    I("s_cbranch_scc1 G1_loop")
    (body_xs if XS else body)(True)
    stamp()
    I("s_waitcnt vmcnt(0)")
    I("s_nop 7")
    I("s_nop 3")
    T = 24
    for js in range(2):
        for jf in range(7):
            g = acc(0, jf, js); u = acc(1, jf, js)
            t = T + ((js*7 + jf) % 4) * 8
            I(f"v_cvt_pk_bf16_f32 v{t}, v{g}, v{g+1}")
            I(f"v_cvt_pk_bf16_f32 v{t+1}, v{g+2}, v{g+3}")
            I(f"v_cvt_pk_bf16_f32 v{t+2}, v{u}, v{u+1}")
            I(f"v_cvt_pk_bf16_f32 v{t+3}, v{u+2}, v{u+3}")
            lo16(g, t); hi16(g+1, t); lo16(g+2, t+1); hi16(g+3, t+1)
            lo16(u, t+2); hi16(u+1, t+2); lo16(u+2, t+3); hi16(u+3, t+3)
            for r in range(4):
                I(f"v_mul_f32 v{g+r}, v{g+r}, v{u+r}")
            I(f"v_cvt_pk_bf16_f32 v{t+4}, v{g}, v{g+1}")
            I(f"v_cvt_pk_bf16_f32 v{t+5}, v{g+2}, v{g+3}")
            I(f"s_add_u32 s34, s25, {16*jf}")
            I("s_lshr_b32 s35, s34, 5")
            I("s_lshl_b32 s35, s35, 10")
            I("s_and_b32 s34, s34, 16")
            I("s_lshr_b32 s34, s34, 1")
            I("s_add_u32 s35, s35, s34")
            I(f"buffer_store_dwordx2 v[{t+4}:{t+5}], v{8+js}, s[20:23], s35 offen")
    I("s_waitcnt vmcnt(0)")
    stamp()
    stamp_dump(5)
    I("s_endpgm")

def gen_aux():
    e("M_conv:")
    if "noconv" in FLAGS: I("s_endpgm")
    XREG = 7680; CST = 576 if "cst" in FLAGS else 800; HBUF = 8*CST; WREG = 20480
    CMG = "cmg" in FLAGS
    if CMG: CST = 320; HBUF = 16*CST; HHI = 8*CST
    stamp()
    I("s_load_dwordx4 s[16:19], s[0:1], 32")
    if FUSE:
        I("s_load_dwordx4 s[44:47], s[0:1], 8")
        I("s_load_dwordx2 s[48:49], s[0:1], 24")
    if BIG:
        I("s_sub_u32 s24, 32, s43")
        I("s_mul_i32 s24, s24, s42")
        I("s_add_u32 s24, s24, s40")
        I("s_sub_u32 s24, s24, s43")
        I("s_lshl_b32 s25, s41, 5")
        I("s_add_u32 s24, s24, s25")
        I("s_lshl_b32 s24, s24, 3")
        I("s_add_u32 s24, s24, s3")
    else:
        I("v_lshrrev_b32 v1, 6, v0")
        I("s_nop 0")
        I("v_readfirstlane_b32 s3, v1")
        I(f"s_sub_u32 s25, s2, {N_G1}")
        I("s_cmp_ge_u32 s25, 128")
        I("s_cbranch_scc1 M_aux_hi")
        I("s_mov_b32 s24, s25")
        I("s_cmp_eq_u32 s3, 3")
        I("s_cbranch_scc1 M_wdt")
        I("s_mul_i32 s24, s25, 3")
        I("s_add_u32 s24, s24, s3")
        I("s_branch M_conv2")
        e("M_aux_hi:")
        I("s_sub_u32 s25, s25, 128")
        I("s_lshl_b32 s25, s25, 1")
        I("s_add_u32 s24, s25, s3")
        I("s_add_u32 s24, s24, 126")
        I("s_cmp_ge_u32 s3, 2")
        I("s_cbranch_scc1 M_wdt")
        I("s_add_u32 s24, s25, s3")
        I("s_add_u32 s24, s24, 384")
    e("M_conv2:")
    I("s_waitcnt lgkmcnt(0)")
    if "cst2" in FLAGS: stamp()
    srd(8, 16, SZ_SD)
    if FUSE:
        I("s_sub_u32 s25, s24, s3")
        I("s_lshl_b32 s25, s25, 3")
        I("s_load_dwordx16 s[84:99], s[48:49], s25")
        srd(32, 44, SZ_SD)
        srd(36, 46, SZ_SD)
    else:
        srd(12, 6, SZ_SD, WS_KVR)
    srd(20, 6, SZ_SD, WS_YT)
    I("s_lshr_b32 s25, s24, 1")
    I("s_lshl_b32 s25, s25, 2")
    I("s_load_dword s26, s[18:19], s25")
    I("v_and_b32 v1, 63, v0")
    I("s_lshl_b32 s27, s24, 12")
    I("v_lshl_add_u32 v2, v1, 4, s27")
    if CMG:
        I("v_lshrrev_b32 v3, 5, v1")
        I("v_mul_u32_u24 v3, 1536, v3")
        I("v_add_u32 v2, v2, v3")
    XL = 16
    for j in range(4 if not FUSE else 0):
        I(f"buffer_load_dwordx4 v[{XL+4*j}:{XL+4*j+3}], v2, s[12:15], 0 offen offset:{1024*j}")
    HW0, HW1 = 32, 40
    I("v_subrev_u32 v13, 64, v2")
    I("v_mov_b32 v5, 0x40000000")
    I("v_cmp_gt_u32 vcc, 4, v1")
    I("s_nop 1")
    I("v_cndmask_b32 v4, v13, v5, vcc")
    I("v_add_u32 v6, 16, v13")
    I("v_cmp_gt_u32 vcc, 3, v1")
    I("s_nop 1")
    I("v_cndmask_b32 v6, v6, v5, vcc")
    CV2 = "cv2" in FLAGS
    def hwloads():
        I(f"buffer_load_dwordx4 v[{HW0}:{HW0+3}], v4, s[8:11], 0 offen")
        I(f"buffer_load_dwordx4 v[{HW0+4}:{HW0+7}], v6, s[8:11], 0 offen")
        I(f"buffer_load_dwordx4 v[{HW1}:{HW1+3}], v2, s[8:11], 0 offen offset:{192 if CMG else 448}")
        I(f"buffer_load_dwordx4 v[{HW1+4}:{HW1+7}], v2, s[8:11], 0 offen offset:{208 if CMG else 464}")
    if not CV2: hwloads()
    KP, KO, VV, KF, PP, TC, OO = 132, 144, 160, 176, 190, 222, 230
    if FUSE:
        I("s_sub_u32 s25, s24, s3")
        I("s_lshl_b32 s25, s25, 1")
        I("v_mul_u32_u24 v50, 5120, v0")
        I("v_add_u32 v50, s25, v50")
        I("s_cmp_eq_u32 s3, 0")
        I("s_cselect_b32 s25, 0x40000000, -3840")
        I("v_add_u32 v51, s25, v50")
        def kvloads():
            for i in range(4):
                I(f"buffer_load_dwordx4 v[{KO+4*i}:{KO+4*i+3}], v50, s[32:35], 0 offen offset:{1280*i}")
            I("s_mov_b64 exec, 1")
            for i in range(3):
                I(f"buffer_load_dwordx4 v[{KP+4*i}:{KP+4*i+3}], v51, s[32:35], 0 offen offset:{1280*i}")
            I("s_mov_b64 exec, -1")
        def vloads():
            for i in range(4):
                I(f"buffer_load_dwordx4 v[{VV+4*i}:{VV+4*i+3}], v50, s[36:39], 0 offen offset:{1280*i}")
        KPF = True
        if CV2:
            I("s_sub_u32 s50, s40, s43")
            I("s_lshl_b32 s57, s3, 8")
            I("s_cmp_eq_u32 s41, 0")
            I("s_cbranch_scc0 CV_pf1")
            I("s_lshl_b32 s50, s50, 5")
            I("s_add_u32 s50, s50, s57")
            I("s_lshl_b32 s51, s42, 7")
            I("v_add_u32 v54, s50, v1")
            I("v_mul_u32_u24 v54, 0x500, v54")
            I("s_movk_i32 s56, 32")
            I("s_branch CV_pfd")
            e("CV_pf1:")
            I("s_mul_i32 s50, s50, 22")
            I("s_min_u32 s50, s50, 234")
            I("s_add_u32 s50, s50, s57")
            I("s_mul_i32 s51, s42, 192")
            I("s_add_u32 s51, s51, 512")
            I("s_and_b32 s51, s51, 0xffffff80")
            I("v_lshrrev_b32 v54, 1, v1")
            I("v_add_u32 v54, s50, v54")
            I("v_mul_u32_u24 v54, 0x500, v54")
            I("v_and_b32 v56, 1, v1")
            I("v_lshl_add_u32 v54, v56, 7, v54")
            I("s_movk_i32 s56, 44")
            e("CV_pfd:")
            I("v_cmp_gt_u32 s[52:53], s56, v1")
            I("s_mov_b64 exec, s[52:53]")
            I("buffer_load_dword v56, v54, s[32:35], s51 offen")
            I("buffer_load_dword v57, v54, s[36:39], s51 offen")
            I("s_mov_b64 exec, -1")
            hwloads()
            I("v_lshl_add_u32 v55, v1, 6, s27")
            if "nohpf" not in FLAGS: I("buffer_load_dword v58, v55, s[8:11], 0 offen")
            else: I("buffer_load_dword v58, v2, s[8:11], 0 offen")
        elif "kvall" in FLAGS:
            pass
        elif KPF:
            I("s_sub_u32 s50, s40, s43")
            I("v_xor_b32 v57, 256, v0")
            I("s_cmp_eq_u32 s41, 0")
            I("s_cbranch_scc0 CV_pf1")
            I("s_lshl_b32 s50, s50, 8")
            I("s_lshl_b32 s51, s42, 7")
            for (d, src) in ((54, 0), (55, 57)):
                I(f"v_add_u32 v{d}, s50, v{src}")
                I(f"v_mul_u32_u24 v{d}, 0x500, v{d}")
            I("s_movk_i32 s56, 256")
            I("s_branch CV_pfd")
            e("CV_pf1:")
            I("s_mul_i32 s50, s50, 176")
            I("s_mul_i32 s51, s42, 192")
            I("s_add_u32 s51, s51, 512")
            I("s_and_b32 s51, s51, 0xffffff80")
            for (d, src) in ((54, 0), (55, 57)):
                I(f"v_lshrrev_b32 v{d}, 1, v{src}")
                I(f"v_add_u32 v{d}, s50, v{d}")
                I(f"v_mul_u32_u24 v{d}, 0x500, v{d}")
                I(f"v_and_b32 v56, 1, v{src}")
                I(f"v_lshl_add_u32 v{d}, v56, 7, v{d}")
            I("s_movk_i32 s56, 352")
            e("CV_pfd:")
            I("v_cmp_gt_u32 s[52:53], s56, v0")
            I("v_cmp_gt_u32 s[54:55], s56, v57")
            I("s_mov_b64 exec, s[52:53]")
            I("buffer_load_dword v56, v54, s[32:35], s51 offen")
            if "vpf1" not in FLAGS:
                I("s_mov_b64 exec, s[54:55]")
                I("buffer_load_dword v57, v55, s[36:39], s51 offen")
            I("s_mov_b64 exec, -1")
        else:
            kvloads()
        I("v_lshlrev_b32 v52, 2, v0")
        I("v_sub_u32 v52, 2044, v52")
        I("v_lshrrev_b32 v53, 5, v52")
        I("v_mul_u32_u24 v53, 80, v53")
        I("v_and_b32 v52, 31, v52")
        I("v_lshl_add_u32 v52, v52, 1, v53")
        I(f"v_add_u32 v53, {4*WREG}, v52")
    I(f"s_mov_b32 s29, {448 if CMG else 960}")
    I(f"s_mul_i32 s28, s3, {WREG}")
    Z = 96
    for j in range(4):
        I(f"v_mov_b32 v{Z+j}, 0")
    I("v_lshl_add_u32 v3, v1, 4, s28")
    I(f"ds_write_b128 v3, v[{Z}:{Z+3}] offset:5120")
    I(f"ds_write_b128 v3, v[{Z}:{Z+3}] offset:6144")
    I(f"ds_write_b128 v3, v[{Z}:{Z+3}] offset:6656")
    I("v_lshrrev_b32 v4, 2, v1")
    I("v_mul_u32_u24 v4, 80, v4")
    I("v_and_b32 v5, 3, v1")
    I("v_lshl_add_u32 v4, v5, 4, v4")
    I("v_add_u32 v4, s28, v4")
    I("v_and_b32 v5, 31, v1")
    I("v_lshrrev_b32 v6, 5, v1")
    I("v_and_b32 v7, 7, v5")
    I(f"v_mul_u32_u24 v7, {CST}, v7")
    I("v_lshrrev_b32 v8, 3, v5")
    I("v_add_u32 v8, v8, v6")
    I("v_lshl_add_u32 v7, v8, 4, v7")
    I(f"v_add_u32 v7, {XREG}, v7")
    I("v_add_u32 v7, s28, v7")
    I(f"v_add_u32 v14, {HBUF}, v7")
    I("v_sub_u32 v8, 63, v5")
    I("v_mul_u32_u24 v8, 80, v8")
    I("v_lshl_add_u32 v8, v6, 4, v8")
    I("v_add_u32 v8, s28, v8")
    I("v_mov_b32 v15, v8")
    I("v_subrev_u32 v9, 2560, v8")
    I(f"v_add_u32 v10, {XREG}, v3")
    if CMG:
        I(f"v_mul_u32_u24 v11, {HHI-512}, v6")
        I("v_add_u32 v10, v10, v11")
    I(f"v_add_u32 v11, {HBUF}, v10")
    AC0, AC1 = 100, 116
    for j in range(32):
        I(f"v_mov_b32 v{AC0+j}, 0")
    FR = 132
    UE, UO, WO = 180, 189, 197
    CLA, CR = 3, 4
    for f_ in FLAGS:
        if f_.startswith("cla"): CLA = int(f_[3:]); CR = 8; UE, UO, WO = 228, 237, 245
    if CMG:
        UE, UO, WO = 196, 205, 213
        AC2 = 220
        I("s_mov_b32 s30, 0xfffff")
        I("s_mov_b32 s31, 0xfffff")
    else:
        I("s_mov_b32 s30, -1")
        I("s_mov_b32 s31, 0xf")
    q = DSQ()
    def stage_seg(w, addr):
        for t in range(7):
            I(f"v_alignbit_b32 v{UE+t}, v{w+t+1}, v{w+t}, 16")
            I(f"v_alignbit_b32 v{UO+t}, v{w+t+1}, v{w+t}, 16")
        for t in range(1, 7):
            I(f"v_mov_b32 v{WO+t}, v{w+t}")
        I("s_mov_b64 exec, s[30:31]")
        for c in range(8):
            if c % 2 == 0:
                t0 = c // 2
                r = UE + t0 if t0 % 2 == 0 else UO + t0
            else:
                t0 = (1 + c)//2
                r = w + t0 if t0 % 2 == 0 else WO + t0
            assert r % 2 == 0, (c, r)
            I(f"ds_write_b128 v{addr}, v[{r}:{r+3}] offset:{c*CST}")
            q.push(("w", 0))
        I("s_mov_b64 exec, -1")
    if FUSE and CV2:
        if "cvnw" not in FLAGS: I(f"s_waitcnt vmcnt({5 if 'cvw2' in FLAGS else 6})")
        if "cst2" in FLAGS: stamp()
        if "cvbar" in FLAGS: I("s_barrier")
        if "cst2" in FLAGS: stamp()
        kvloads()
        if "cvlv" not in FLAGS: vloads()
        I(f"s_waitcnt vmcnt({(7 if 'cvlv' in FLAGS else 11) + 3})")
        stage_seg(HW0, 10)
        I("s_mov_b32 s49, 0x3f803f80")
        I(f"s_waitcnt vmcnt({0 if 'cvlv' in FLAGS else 4}) lgkmcnt(0)")
        if "cvlv" in FLAGS: vloads()
        stamp()
    if FUSE:
        if CV2: pass
        elif KPF:
            I("s_waitcnt vmcnt(0)")
            if "cst2" in FLAGS: stamp()
            I("s_barrier")
            if "cst2" in FLAGS: stamp()
            kvloads()
            if "vpf1" in FLAGS:
                I("s_mov_b64 exec, s[54:55]")
                I("buffer_load_dword v57, v55, s[36:39], s51 offen")
                I("s_mov_b64 exec, -1")
        else:
            I("s_waitcnt vmcnt(13)")
        if not CV2:
            stage_seg(HW0, 10)
            I("s_mov_b32 s49, 0x3f803f80")
            I(f"s_waitcnt vmcnt({0 if 'vpf1' not in FLAGS else 1}) lgkmcnt(0)")
            vloads()
            if "hpf2" in FLAGS:
                I("v_lshl_add_u32 v55, v1, 6, s27")
                I("buffer_load_dword v58, v55, s[8:11], 0 offen")
            stamp()
        for r in range(3):
            for c in range(4):
                I(f"v_mov_b32_dpp v{KP+4*r+c}, v{KO+4*(r+1)+c} wave_shr:1 row_mask:0xf bank_mask:0xf")
        def krow(r): return (KP + 4*r) if r < 3 else (KO + 4*(r-3))
        chains = [(i, h) for i in range(4) for h in range(2)]
        def T(j, i, h): return TC + 8*j + 2*i + h
        if "kvf" in FLAGS:
            I("s_mov_b32 s50, 0x05040100")
            I("s_mov_b32 s51, 0x07060302")
            for j in range(4):
                for h in range(2):
                    for r in range(6):
                        I(f"v_perm_b32 v{PP+6*h+r}, v{krow(r)+j}, v{krow(r+1)+j}, s{50+h}")
                for (i, h) in chains: I(f"v_dot2_f32_bf16 v{T(j,i,h)}, v{PP+6*h+i}, s{85+4*j+2*h}, 0")
                for (i, h) in chains: I(f"v_dot2_f32_bf16 v{T(j,i,h)}, v{PP+6*h+i+2}, s{84+4*j+2*h}, v{T(j,i,h)}")
        for j in range(4 if "kvf" not in FLAGS else 0):
            for h in range(2):
                I(f"s_lshl_b32 s{50+h}, s{84+4*j+2*h}, 16")
                I(f"s_and_b32 s{52+h}, s{84+4*j+2*h}, 0xffff0000")
                I(f"s_lshl_b32 s{54+h}, s{85+4*j+2*h}, 16")
                I(f"s_and_b32 s{56+h}, s{85+4*j+2*h}, 0xffff0000")
            for r in range(7):
                lo16(KF+2*r, krow(r)+j); hi16(KF+2*r+1, krow(r)+j)
            def P(i, t): return PP + (i*4 + t)*2
            for i in range(4):
                for t in range(4):
                    r = i + 3 - t
                    I(f"v_pk_mul_f32 v[{P(i,t)}:{P(i,t)+1}], v[{KF+2*r}:{KF+2*r+1}], s[{50+2*t}:{51+2*t}]")
            for (i, h) in chains: I(f"v_cvt_pk_bf16_f32 v{T(j,i,h)}, v{P(i,3)+h}, v{P(i,2)+h}")
            for t in (1, 0):
                for (i, h) in chains: I(f"v_dot2_f32_bf16 v{T(j,i,h)}, v{T(j,i,h)}, s49, 0")
                for (i, h) in chains: I(f"v_cvt_pk_bf16_f32 v{T(j,i,h)}, v{T(j,i,h)}, v{P(i,t)+h}")
            for (i, h) in chains: I(f"v_dot2_f32_bf16 v{T(j,i,h)}, v{T(j,i,h)}, s49, 0")
            for (i, h) in chains:
                if h == 0: I(f"v_cvt_pk_bf16_f32 v{T(j,i,h)}, v{T(j,i,h)}, 0")
                else: I(f"v_cvt_pk_bf16_f32 v{T(j,i,h)}, 0, v{T(j,i,h)}")
        if "cst2" in FLAGS: stamp()
        I(f"s_waitcnt vmcnt({1 if 'hpf2' in FLAGS else 0})")
        if "cst2" in FLAGS: stamp()
        for j in range(4 if "kvf" not in FLAGS else 0):
            for (i, h) in chains: I(f"v_dot2_f32_bf16 v{T(j,i,h)}, v{T(j,i,h)}, v{VV+4*i+j}, 0")
        if "kvf" in FLAGS:
            for j in range(4):
                for i in range(4):
                    lo16(KF+2*i, VV+4*i+j); hi16(KF+2*i+1, VV+4*i+j)
                for i in range(4):
                    I(f"v_pk_mul_f32 v[{T(j,i,0)}:{T(j,i,1)}], v[{T(j,i,0)}:{T(j,i,1)}], v[{KF+2*i}:{KF+2*i+1}]")
        I("s_nop 1")
        for j in range(4):
            for h in range(2):
                o = PP + 2*h + 4*j
                I(f"v_cvt_pk_bf16_f32 v{o+1}, v{T(j,1,h)}, v{T(j,0,h)}")
                I(f"v_cvt_pk_bf16_f32 v{o}, v{T(j,3,h)}, v{T(j,2,h)}")
            for h in range(2):
                o = PP + 2*h + 4*j
                ch = 2*j + h
                I(f"ds_write_b64 v{52 + ch//4}, v[{o}:{o+1}] offset:{(ch % 4)*WREG}")
        I("s_waitcnt lgkmcnt(0)")
        I("s_barrier")
        if "hpf3" in FLAGS:
            I("v_lshl_add_u32 v55, v1, 6, s27")
            I("buffer_load_dword v58, v55, s[8:11], 0 offen")
    else:
        I("s_waitcnt vmcnt(2)")
        stamp()
        for j in range(4):
            I(f"ds_write_b128 v4, v[{XL+4*j}:{XL+4*j+3}] offset:{16*80*j}")
        stage_seg(HW0, 10)
    q = DSQ()
    def crd(c, both, part=None):
        f = FR + (c % CR)*12
        boff = (c >> 1)*80 + (c & 1)*32
        if part in (None, 0):
            if c < 16:
                I(f"ds_read_b128 v[{f}:{f+3}], v7 offset:{32*c}")
            else:
                I(f"ds_read_b128 v[{f}:{f+3}], v14 offset:{32*(c-16)}")
            q.push(("r", c))
            I(f"ds_read_b128 v[{f+4}:{f+7}], v9 offset:{boff}")
            q.push(("r", c))
        if both and part in (None, 1):
            I(f"ds_read_b128 v[{f+8}:{f+11}], v8 offset:{boff}")
            q.push(("r", c))
    if CMG:
        def mrd(c, part):
            f = FR + (c % 4)*16
            boff = (c >> 1)*80 + (c & 1)*32
            va, ao = (7, 32*c) if c < 8 else (14, 32*(c-8))
            if "cvnob" in FLAGS and part >= 2: return
            if part == 0: I(f"ds_read_b128 v[{f}:{f+3}], v{va} offset:{ao}")
            if part == 1: I(f"ds_read_b128 v[{f+4}:{f+7}], v{va} offset:{ao+HHI}")
            if part == 2: I(f"ds_read_b128 v[{f+8}:{f+11}], v8 offset:{boff}")
            if part == 3: I(f"ds_read_b128 v[{f+12}:{f+15}], v9 offset:{boff}")
            q.push(("r", c))
        for j in range(16): I(f"v_mov_b32 v{AC2+j}, 0")
        for c in range(CLA):
            for part in range(4): mrd(c, part)
        I("s_mov_b32 s33, 0")
        stamp()
        e("CV_loopm:")
        q.q = [("r", c) for c in range(CLA) for _ in range(2 if "cvnob" in FLAGS else 4)]
        w = HW1
        def AL(dst, t): return f"v_alignbit_b32 v{dst+t}, v{w+t+1}, v{w+t}, 16"
        def MV(t): return f"v_mov_b32 v{WO+t}, v{w+t}"
        def WR(c):
            if c % 2 == 0:
                t0 = c // 2
                r = UE + t0 if t0 % 2 == 0 else UO + t0
            else:
                t0 = (1 + c)//2
                r = w + t0 if t0 % 2 == 0 else WO + t0
            return ("W", f"ds_write_b128 v11, v[{r}:{r+3}] offset:{c*CST}")
        slots = [[WR(3), AL(UE,0), AL(UE,1)], [WR(7), AL(UE,2), AL(UE,3)], [WR(0), AL(UE,4), AL(UE,5)],
                 [WR(4), MV(1), MV(2)], [MV(3), MV(4)], [WR(1), MV(5), MV(6)],
                 [WR(5), AL(UO,1), AL(UO,2)], [AL(UO,3), AL(UO,4)], [WR(2), AL(UO,5), AL(UO,6)],
                 [WR(6)], ["L"], []]
        def slot(i):
            if i < 0 or i >= len(slots): return
            for x in slots[i]:
                if x == "L":
                    I(f"buffer_load_dwordx4 v[{HW1}:{HW1+3}], v2, s[8:11], s29 offen")
                    I(f"buffer_load_dwordx4 v[{HW1+4}:{HW1+7}], v2, s[8:11], s29 offen offset:16")
                    I("s_add_u32 s29, s29, 256")
                elif isinstance(x, tuple):
                    I("s_mov_b64 exec, s[30:31]")
                    I(x[1]); q.push(("w", 0))
                    I("s_mov_b64 exec, -1")
                else: I(x)
        for c in range(8):
            if c == 1: I("s_waitcnt vmcnt(0)")
            f = FR + (c % 4)*16
            q.wait_for(("r", c))
            I(f"v_mfma_f32_32x32x16_bf16 v[{AC0}:{AC0+15}], v[{f}:{f+3}], v[{f+8}:{f+11}], v[{AC0}:{AC0+15}]")
            mrd(c + CLA, 0)
            slot(3*(c-1))
            I(f"v_mfma_f32_32x32x16_bf16 v[{AC1}:{AC1+15}], v[{f}:{f+3}], v[{f+12}:{f+15}], v[{AC1}:{AC1+15}]")
            mrd(c + CLA, 1); mrd(c + CLA, 2)
            slot(3*(c-1)+1 if c >= 1 else -1)
            I(f"v_mfma_f32_32x32x16_bf16 v[{AC2}:{AC2+15}], v[{f+4}:{f+7}], v[{f+8}:{f+11}], v[{AC2}:{AC2+15}]")
            mrd(c + CLA, 3)
            slot(3*(c-1)+2 if c >= 1 else -1)
        I("v_swap_b32 v7, v14")
        I("v_swap_b32 v10, v11")
        I("v_add_u32 v8, 320, v8")
        I("v_add_u32 v9, 320, v9")
        I("s_add_u32 s33, s33, 1")
        I("s_cmp_lt_u32 s33, 8")
        I("s_cbranch_scc1 CV_loopm")
        I("s_nop 7")
        I("s_nop 7")
        I("s_nop 3")
        for j in range(16): I(f"v_add_f32 v{AC1+j}, v{AC1+j}, v{AC2+j}")
    else:
        for c in range(CLA):
            crd(c, True)
        I("s_mov_b32 s33, 0")
        stamp()
    for phase in range(2 if not CMG else 0):
        both = (phase == 0)
        e(f"CV_loop{phase}:")
        q.q = [("r", c) for c in range(CLA) for _ in range(3 if both else 2)]
        for c in range(16):
            if c == 1:
                I("s_waitcnt vmcnt(0)")
                stage_seg(HW1, 11)
                if "cvnoload" not in FLAGS:
                    I(f"buffer_load_dwordx4 v[{HW1}:{HW1+3}], v2, s[8:11], s29 offen")
                    I(f"buffer_load_dwordx4 v[{HW1+4}:{HW1+7}], v2, s[8:11], s29 offen offset:16")
                I("s_add_u32 s29, s29, 512")
            f = FR + (c % CR)*12
            if "cvi" in FLAGS:
                q.wait_for(("r", c))
                I(f"v_mfma_f32_32x32x16_bf16 v[{AC1}:{AC1+15}], v[{f}:{f+3}], v[{f+4}:{f+7}], v[{AC1}:{AC1+15}]")
                crd(c + CLA, both, 0)
                if both:
                    I(f"v_mfma_f32_32x32x16_bf16 v[{AC0}:{AC0+15}], v[{f}:{f+3}], v[{f+8}:{f+11}], v[{AC0}:{AC0+15}]")
                    crd(c + CLA, both, 1)
            else:
                crd(c + CLA, both)
                q.wait_for(("r", c))
                I(f"v_mfma_f32_32x32x16_bf16 v[{AC1}:{AC1+15}], v[{f}:{f+3}], v[{f+4}:{f+7}], v[{AC1}:{AC1+15}]")
                if both:
                    I(f"v_mfma_f32_32x32x16_bf16 v[{AC0}:{AC0+15}], v[{f}:{f+3}], v[{f+8}:{f+11}], v[{AC0}:{AC0+15}]")
        I("v_swap_b32 v7, v14")
        I("v_swap_b32 v10, v11")
        I("v_add_u32 v8, 640, v8")
        I("v_add_u32 v9, 640, v9")
        I("s_add_u32 s33, s33, 1")
        I(f"s_cmp_lt_u32 s33, {4*(phase+1)}")
        I(f"s_cbranch_scc1 CV_loop{phase}")
    I("v_mov_b32 v8, v15")
    I("s_waitcnt vmcnt(0) lgkmcnt(0)")
    stamp()
    I("v_mul_u32_u24 v10, 24, v6")
    I("v_sub_u32 v10, v8, v10")
    I("v_add_u32 v10, 8, v10")
    I("v_subrev_u32 v11, 2560, v10")
    KV = 16
    for cb in range(2):
        for qq in range(4):
            I(f"ds_read_b64 v[{KV+cb*8+2*qq}:{KV+cb*8+2*qq+1}], v{10+cb} offset:{48-16*qq}")
    I("s_and_b32 s25, s24, 1")
    I("s_lshl_b32 s25, s25, 4")
    I("s_lshr_b32 s26, s26, s25")
    I("s_lshl_b32 s26, s26, 16")
    I("v_lshlrev_b32 v12, 6, v5")
    I("v_lshl_add_u32 v12, v6, 3, v12")
    I("v_add_u32 v12, s27, v12")
    I("s_nop 7")
    I("s_waitcnt lgkmcnt(0)")
    for cb in range(2):
        ac = AC0 if cb == 0 else AC1
        for qq in range(4):
            k0 = KV + cb*8 + 2*qq
            t = 40 + (qq % 2)*12
            y = ac + 4*qq
            hi16(t+0, k0+1); lo16(t+1, k0+1); hi16(t+2, k0); lo16(t+3, k0)
            for r in range(4):
                I(f"v_mul_f32 v{t+r}, s26, v{t+r}")
            I(f"v_cvt_pk_bf16_f32 v{t+4}, v{t}, v{t+1}")
            I(f"v_cvt_pk_bf16_f32 v{t+5}, v{t+2}, v{t+3}")
            I(f"v_cvt_pk_bf16_f32 v{t+6}, v{y}, v{y+1}")
            I(f"v_cvt_pk_bf16_f32 v{t+7}, v{y+2}, v{y+3}")
            lo16(t, t+4); hi16(t+1, t+4); lo16(t+2, t+5); hi16(t+3, t+5)
            lo16(y, t+6); hi16(y+1, t+6); lo16(y+2, t+7); hi16(y+3, t+7)
            for r in range(4):
                I(f"v_add_f32 v{t+r}, v{t+r}, v{y+r}")
            I(f"v_cvt_pk_bf16_f32 v{t+8}, v{t}, v{t+1}")
            I(f"v_cvt_pk_bf16_f32 v{t+9}, v{t+2}, v{t+3}")
            I(f"buffer_store_dwordx2 v[{t+8}:{t+9}], v12, s[20:23], 0 offen offset:{cb*2048+16*qq}")
    I("s_waitcnt vmcnt(0)")
    stamp()
    stamp_dump(255 if BIG else N_G1 + 7)
    if BIG: wgt_end(1)
    I("s_endpgm")
    e("M_wdt:")
    I("s_waitcnt lgkmcnt(0)")
    if "wlate" in FLAGS: I("s_barrier")
    if BIG and "pfm" in FLAGS:
        I("s_sub_u32 s26, s3, 6")
        I("s_mul_i32 s27, s26, 176")
        I("s_sub_u32 s27, s24, s27")
        I("s_lshl_b32 s26, s26, 3")
        I("s_add_u32 s26, s26, 56")
        I("s_load_dwordx2 s[28:29], s[0:1], s26")
        I("s_mul_i32 s27, s27, 12800")
        I(f"s_mov_b32 s30, {SZ_W}")
        I("s_mov_b32 s31, 0x00020000")
        I("v_and_b32 v1, 63, v0")
        I("v_lshlrev_b32 v1, 4, v1")
        I("s_waitcnt lgkmcnt(0)")
        for i in range(13):
            I(f"buffer_load_dwordx4 v[{100+4*i}:{103+4*i}], v1, s[28:31], s27 offen")
            I("s_add_u32 s27, s27, 1024")
    if "pfa128" in FLAGS or "pfa64" in FLAGS:
        G = 128 if "pfa128" in FLAGS else 64
        NL = 1792 // G
        I("s_cmp_lg_u32 s3, 3")
        I("s_cbranch_scc1 M_nopf")
        I("s_bfe_u32 s26, s2, 0x50003")
        I("s_lshr_b32 s27, s26, 4")
        I("s_lshl_b32 s27, s27, 3")
        I("s_add_u32 s27, s27, 56")
        I("s_load_dwordx2 s[28:29], s[0:1], s27")
        I("s_and_b32 s26, s26, 15")
        I("s_mul_i32 s26, s26, 138240")
        I("s_bfe_u32 s27, s2, 0x10002")
        I("s_mul_i32 s27, s27, 1792")
        I("s_add_u32 s26, s26, s27")
        I(f"s_mov_b32 s30, {SZ_W}")
        I("s_mov_b32 s31, 0x00020000")
        I("v_and_b32 v1, 63, v0")
        I("s_waitcnt lgkmcnt(0)")
        n = (40*NL + 63)//64
        mul = (65536 + NL - 1)//NL
        for i in range(n):
            I(f"v_add_u32 v2, {64*i}, v1")
            I(f"v_mul_u32_u24 v3, {mul}, v2")
            I("v_lshrrev_b32 v3, 16, v3")
            I(f"v_mul_u32_u24 v4, {NL}, v3")
            I("v_sub_u32 v4, v2, v4")
            I("v_mul_u32_u24 v3, 3456, v3")
            I(f"v_lshl_add_u32 v{100+i}, v4, {7 if G==128 else 6}, v3")
            I(f"buffer_load_dword v{140+i}, v{100+i}, s[28:31], s26 offen")
        e("M_nopf:")
    WBAR = 0
    for f_ in FLAGS:
        if f_.startswith("wbar"): WBAR = int(f_[4:])
    I("s_cmp_ge_u32 s24, 270")
    I(f"s_cbranch_scc1 {'M_exitb' if WBAR else 'M_exitw'}")
    I("s_load_dwordx2 s[4:5], s[0:1], 72")
    I("s_mul_i32 s17, s24, 0xCCCD")
    I("s_lshr_b32 s17, s17, 19")
    I("s_mul_i32 s18, s17, 10")
    I("s_sub_u32 s18, s24, s18")
    I("v_and_b32 v1, 7, v0")
    I("v_bfe_u32 v2, v0, 3, 2")
    I("v_bfe_u32 v6, v0, 5, 1")
    I("s_lshl_b32 s18, s18, 6")
    I("v_lshl_add_u32 v1, v1, 3, s18")
    I("s_lshl_b32 s19, s17, 1")
    I("v_add_u32 v6, s19, v6")
    I("v_lshlrev_b32 v7, 5, v6")
    I("v_lshl_add_u32 v7, v2, 2, v7")
    I("v_mul_u32_u24 v3, 0x500, v7")
    I("v_lshl_add_u32 v3, v1, 1, v3")
    I("v_add_u32 v4, 0x5000, v3")
    I("s_waitcnt lgkmcnt(0)")
    srd(8, 4, SZ_W)
    srd(12, 6, SZ_W, WS_WDT)
    for i in range(8):
        b = 3 if i < 4 else 4
        I(f"buffer_load_dwordx4 v[{8+4*i}:{11+4*i}], v{b}, s[8:11], 0 offen offset:{(i%4)*1280}")
    I("s_mov_b32 s20, 0x05040100")
    I("s_mov_b32 s21, 0x07060302")
    I("v_lshrrev_b32 v5, 4, v1")
    I("v_mul_u32_u24 v5, 54, v5")
    I("v_add_u32 v5, v5, v6")
    I("v_lshlrev_b32 v5, 10, v5")
    I("v_lshl_add_u32 v5, v2, 8, v5")
    I("v_and_b32 v7, 15, v1")
    I("v_lshl_add_u32 v5, v7, 4, v5")
    for _ in range(WBAR): I("s_barrier")
    I("s_waitcnt vmcnt(0)")
    for dd in range(8):
        ob = 40 + 4*dd
        sel = 20 + (dd & 1)
        for q in range(4):
            I(f"v_perm_b32 v{ob+q}, v{8+4*(2*q+1)+dd//2}, v{8+4*(2*q)+dd//2}, s{sel}")
    for dd in range(8):
        ob = 40 + 4*dd
        I(f"buffer_store_dwordx4 v[{ob}:{ob+3}], v5, s[12:15], 0 offen offset:{16*dd}")
    if WBAR:
        I("s_endpgm")
        e("M_exitb:")
        for _ in range(WBAR): I("s_barrier")
    e("M_exitw:")
    I("s_waitcnt vmcnt(0)")
    e("M_exit:")
    I("s_endpgm")
    if FUSE: kernel_desc("mid_kernel", 256, 102)
    else: kernel_desc("mid_kernel", 256 if any(f.startswith("cla") for f in FLAGS) else (240 if BIG else 208), 80)

def gen_k3():
    kernel_header("fin_kernel")
    I(f"s_cmp_ge_u32 s2, {64 if 'fin64' in FLAGS else 256}")
    I("s_cbranch_scc1 F_exit")
    I("s_load_dwordx2 s[6:7], s[0:1], 96")
    I("s_load_dwordx2 s[4:5], s[0:1], 0")
    I("s_load_dwordx2 s[30:31], s[0:1], 80")
    stamp()
    I("v_lshrrev_b32 v1, 6, v0")
    I("s_nop 0")
    I("v_readfirstlane_b32 s3, v1")
    I("s_waitcnt lgkmcnt(0)")
    srd(8, 6, SZ_W, WS_WDT)
    srd(12, 6, SZ_H, WS_H)
    srd(16, 6, SZ_SD, WS_YT)
    if FUSE: srd(20, 6, S*8, WS_ST)
    else: srd(20, 6, SZ_SD, WS_XN)
    srd(24, 4, SZ_SD)
    srd(32, 30, SZ_SD)
    if "fin2d" in FLAGS:
        I("s_and_b32 s36, s2, 1")
        I("s_lshl_b32 s36, s36, 2")
        I("s_bfe_u32 s37, s2, 0x20003")
        I("s_add_u32 s36, s36, s37")
        I("s_mul_i32 s36, s36, 80")
        I("s_bfe_u32 s37, s2, 0x20001")
        I("s_lshl_b32 s37, s37, 3")
        I("s_lshr_b32 s38, s2, 5")
        I("s_add_u32 s37, s37, s38")
        I("s_lshl_b32 s37, s37, 6")
    elif "finswap" in FLAGS:
        I("s_lshr_b32 s36, s2, 5")
        I("s_mul_i32 s36, s36, 80")
        I("s_and_b32 s37, s2, 31")
        I("s_lshl_b32 s37, s37, 6")
    else:
        I("s_and_b32 s36, s2, 7")
        I("s_mul_i32 s36, s36, 80")
        I("s_lshr_b32 s37, s2, 3")
        I("s_lshl_b32 s37, s37, 6")
    I("s_mul_i32 s38, s3, 14")
    I("s_cmp_eq_u32 s3, 3")
    I("s_cselect_b32 s39, 1, 0")
    I("s_sub_u32 s38, s38, s39")
    I("s_cmp_ge_u32 s3, 2")
    I("s_cselect_b32 s39, 13, 14")
    I("s_add_u32 s47, s38, s39")
    I("s_lshl_b32 s45, s38, 10")
    I("s_lshl_b32 s47, s47, 10")
    if "rot" in FLAGS:
        I("s_bfe_u32 s46, s2, 0x20003")
        I("s_lshl_b32 s46, s46, 2")
        I("s_lshr_b32 s44, s2, 5")
        I("s_lshl_b32 s44, s44, 1")
        I("s_add_u32 s46, s46, s44")
        I("s_cmp_ge_u32 s46, 13")
        I("s_cselect_b32 s44, 13, 0")
        I("s_sub_u32 s46, s46, s44")
        I("s_cmp_ge_u32 s46, 13")
        I("s_cselect_b32 s44, 13, 0")
        I("s_sub_u32 s46, s46, s44")
        I("s_lshl_b32 s46, s46, 10")
        I("s_add_u32 s46, s46, s45")
    else:
        I("s_mov_b32 s46, s45")
    I("s_mov_b32 s44, 0")
    I("v_and_b32 v1, 15, v0")
    I("v_bfe_u32 v2, v0, 4, 2")
    I("v_and_b32 v12, 63, v0")
    if "pf" in FLAGS:
        I("s_lshr_b32 s52, s2, 3")
        I("s_lshl_b32 s52, s52, 2")
        I("s_add_u32 s52, s52, s3")
        I("s_and_b32 s53, s2, 1")
        I("s_mul_i32 s53, s53, 1105920")
        I("s_mul_i32 s54, s52, 8640")
        I("s_add_u32 s53, s53, s54")
        I("v_lshlrev_b32 v240, 6, v12")
        I("buffer_load_dword v241, v240, s[8:11], s53 offen")
        I("s_add_u32 s53, s53, 4096")
        I("buffer_load_dword v242, v240, s[8:11], s53 offen")
        I("s_add_u32 s53, s53, 544")
        I("buffer_load_dword v243, v240, s[8:11], s53 offen")
        I("s_bfe_u32 s53, s2, 0x20001")
        I("s_mul_i32 s53, s53, 1769472")
        I("s_mul_i32 s54, s52, 13824")
        I("s_add_u32 s53, s53, s54")
        for i, inc in enumerate((4096, 4096, 1536, 0)):
            I(f"buffer_load_dword v{244+i}, v240, s[12:15], s53 offen")
            if inc: I(f"s_add_u32 s53, s53, {inc}")
    I("s_lshr_b32 s52, s36, 4")
    I("s_mul_i32 s52, s52, 55296")
    I("v_lshl_add_u32 v3, v12, 4, s52")
    for jd in range(1, 5):
        I(f"v_add_u32 v{3+jd}, {jd*55296}, v3")
    I("s_lshr_b32 s52, s37, 4")
    I("s_mul_i32 s52, s52, 55296")
    I("v_lshl_add_u32 v8, v12, 4, s52")
    for js in range(1, 4):
        I(f"v_add_u32 v{8+js}, {js*55296}, v8")
    def acc(jd, js): return (js*5 + jd)*4
    FRB = 16
    NB = 5
    def ld(buf):
        f = FRB + buf*36
        I("s_cmp_lt_u32 s44, s39")
        I("s_cselect_b32 s48, s46, 0x40000000")
        for jd in range(5):
            r = f + 4*jd
            I(f"buffer_load_dwordx4 v[{r}:{r+3}], v{3+jd}, s[8:11], s48 offen{CP}")
        for js in range(4):
            r = f + 20 + 4*js
            I(f"buffer_load_dwordx4 v[{r}:{r+3}], v{8+js}, s[12:15], s48 offen{CP}")
        I("s_add_u32 s46, s46, 1024")
        I("s_cmp_ge_u32 s46, s47")
        I("s_cselect_b32 s46, s45, s46")
        I("s_add_u32 s44, s44, 1")
    def mm(buf):
        f = FRB + buf*36
        for js in range(4):
            for jd in range(5):
                c = acc(jd, js)
                a = f + 4*jd; b = f + 20 + 4*js
                I(f"v_mfma_f32_16x16x32_bf16 a[{c}:{c+3}], v[{a}:{a+3}], v[{b}:{b+3}], a[{c}:{c+3}]")
    I("s_lshr_b32 s41, s3, 1")
    I("s_lshl_b32 s41, s41, 5")
    I("s_add_u32 s41, s41, s37")
    I("s_lshl_b32 s41, s41, 1")
    I("v_add_u32 v14, s36, v1")
    I("v_lshlrev_b32 v14, 12, v14")
    I("v_lshl_add_u32 v14, v2, 4, v14")
    I("v_add_u32 v14, s41, v14")
    YF = 196
    for jd in range(5):
        I(f"v_add_u32 v15, {jd*16*4096}, v14")
        I(f"buffer_load_dwordx4 v[{YF+4*jd}:{YF+4*jd+3}], v15, s[16:19], 0 offen")
    I("s_lshl_b32 s42, s3, 4")
    I("s_add_u32 s42, s42, s37")
    I("v_add_u32 v15, s42, v1")
    I("v_mul_u32_u24 v15, 0x500, v15")
    I("v_lshl_add_u32 v15, v2, 3, v15")
    I("s_lshl_b32 s43, s36, 1")
    I("v_add_u32 v15, s43, v15")
    XX = 216
    I("s_lshr_b32 s50, s42, 4")
    I("s_mul_i32 s50, s50, 20480")
    I("v_lshrrev_b32 v14, 1, v2")
    I("v_lshlrev_b32 v14, 8, v14")
    I("v_lshl_add_u32 v14, v1, 4, v14")
    I("v_and_b32 v13, 1, v2")
    I("v_lshl_add_u32 v14, v13, 3, v14")
    I("v_add_u32 v14, s50, v14")
    if FUSE:
        I("v_add_u32 v14, s42, v1")
        I("v_lshlrev_b32 v14, 3, v14")
        I(f"buffer_load_dwordx2 v[{XX+10}:{XX+11}], v14, s[20:23], 0 offen")
    for jd in range(5):
        I(f"buffer_load_dwordx2 v[{XX+2*jd}:{XX+2*jd+1}], v15, s[24:27], 0 offen offset:{32*jd}")
        if FUSE: continue
        I(f"s_add_u32 s50, s36, {16*jd}")
        I("s_lshr_b32 s51, s50, 5")
        I("s_lshl_b32 s51, s51, 10")
        I("s_and_b32 s50, s50, 16")
        I("s_lshl_b32 s50, s50, 5")
        I("s_add_u32 s51, s51, s50")
        I(f"buffer_load_dwordx2 v[{XX+10+2*jd}:{XX+11+2*jd}], v14, s[20:23], s51 offen")
    NB2 = NB
    for f_ in FLAGS:
        if f_.startswith("nb"): NB2 = int(f_[2:])
    def breg(buf, i):
        if buf < 5: return "v", FRB + buf*36 + 4*i
        return "a", 80 + (buf-5)*36 + 4*i
    def ld2(buf):
        for jd in range(5):
            t, r = breg(buf, jd)
            I(f"buffer_load_dwordx4 {t}[{r}:{r+3}], v{3+jd}, s[8:11], s46 offen{CP}")
        for js in range(4):
            t, r = breg(buf, 5+js)
            I(f"buffer_load_dwordx4 {t}[{r}:{r+3}], v{8+js}, s[12:15], s46 offen{CP}")
        I("s_add_u32 s46, s46, 1024")
    def mm2(buf):
        for js in range(4):
            for jd in range(5):
                c = acc(jd, js)
                t, a = breg(buf, jd); t, b = breg(buf, 5+js)
                I(f"v_mfma_f32_16x16x32_bf16 a[{c}:{c+3}], {t}[{a}:{a+3}], {t}[{b}:{b+3}], a[{c}:{c+3}]")
    for b in range(NB2-1):
        ld2(b)
    for j in range(80):
        I(f"v_accvgpr_write_b32 a{j}, 0")
    HOIST = "hoist" in FLAGS
    if HOIST:
        IDB2, TQ, TYQ = 244, 248, 236
        I("s_and_b32 s44, s3, 1")
        I("s_lshl_b32 s44, s44, 4")
        I(f"v_add_u32 v{TQ}, s44, v1")
        I(f"v_lshrrev_b32 v{TQ+1}, 3, v{TQ}")
        I(f"v_cmp_eq_u32 vcc, v{TQ+1}, v2")
        I(f"v_and_b32 v{TQ+1}, 7, v{TQ}")
        I(f"v_and_b32 v{TQ+2}, 1, v{TQ+1}")
        I(f"v_lshlrev_b32 v{TQ+2}, 4, v{TQ+2}")
        I(f"v_mov_b32 v{TQ+3}, 0x3f80")
        I(f"v_lshlrev_b32 v{TQ+3}, v{TQ+2}, v{TQ+3}")
        I(f"v_lshrrev_b32 v{TQ+1}, 1, v{TQ+1}")
        I(f"v_cndmask_b32 v{TQ+3}, 0, v{TQ+3}, vcc")
        for j in range(4):
            I(f"v_cmp_eq_u32 vcc, {j}, v{TQ+1}")
            I("s_nop 1")
            I(f"v_cndmask_b32 v{IDB2+j}, 0, v{TQ+3}, vcc")
        I(f"s_waitcnt vmcnt({9*(NB2-1)})")
        I("s_nop 1")
        for jd in range(5):
            ty = TYQ + (jd % 2)*4; t = TQ + (jd % 2)*4
            x0 = XX + 2*jd; n0 = XX + 10 + 2*jd
            I(f"v_mfma_f32_16x16x32_bf16 v[{ty}:{ty+3}], v[{YF+4*jd}:{YF+4*jd+3}], v[{IDB2}:{IDB2+3}], 0")
            if FUSE:
                lo16(t, x0); hi16(t+1, x0); lo16(t+2, x0+1); hi16(t+3, x0+1)
                for r in range(4): I(f"v_add_f32 v{t+r}, v{t+r}, v{XX+11}")
                for r in range(4): I(f"v_cvt_pk_bf16_f32 v{t+r}, 0, v{t+r}")
                for r in range(4): I(f"v_mul_f32 v{t+r}, v{t+r}, v{XX+10}")
                for r in range(4): I(f"v_cvt_pk_bf16_f32 v{t+r}, 0, v{t+r}")
            else:
                lo16(t, n0); hi16(t+1, n0); lo16(t+2, n0+1); hi16(t+3, n0+1)
            I("s_nop 7")
            I("s_nop 3")
            for r in range(4):
                I(f"v_mul_f32 v{t+r}, v{t+r}, v{ty+r}")
            I(f"v_cvt_pk_bf16_f32 v{ty}, v{t}, v{t+1}")
            I(f"v_cvt_pk_bf16_f32 v{ty+1}, v{t+2}, v{t+3}")
            lo16(t, ty); hi16(t+1, ty); lo16(t+2, ty+1); hi16(t+3, ty+1)
            lo16(ty, x0); hi16(ty+1, x0); lo16(ty+2, x0+1); hi16(ty+3, x0+1)
            for r in range(4):
                I(f"v_add_f32 v{t+r}, v{t+r}, v{ty+r}")
            I(f"v_cvt_pk_bf16_f32 v{x0}, v{t}, v{t+1}")
            I(f"v_cvt_pk_bf16_f32 v{x0+1}, v{t+2}, v{t+3}")
    stamp()
    for k in range(14):
        nb = k + NB2 - 1
        if nb <= 12:
            ld2(nb % NB2)
        elif nb == 13:
            I("s_cmp_ge_u32 s3, 2")
            I("s_cbranch_scc1 F_skip13")
            ld2(nb % NB2)
            e("F_skip13:")
        if k == 13:
            I("s_cmp_ge_u32 s3, 2")
            I("s_cbranch_scc1 F_done")
        rem = max(0, min(12, nb) - k)
        if k < 13: I(f"s_waitcnt vmcnt({9*rem})")
        mm2(k % NB2)
    e("F_done:")
    stamp()
    I("s_mul_i32 s40, s3, 20480")
    I("v_lshlrev_b32 v13, 4, v12")
    I("v_add_u32 v13, s40, v13")
    I("s_nop 7")
    for js in range(4):
        for jd in range(5):
            c = acc(jd, js)
            I(f"ds_write_b128 v13, a[{c}:{c+3}] offset:{(js*5+jd)*1024}")
    I("s_waitcnt lgkmcnt(0)")
    I("s_barrier")
    I("s_mul_i32 s40, s3, 5120")
    I("v_lshlrev_b32 v12, 4, v12")
    I("v_add_u32 v13, s40, v12")
    I("v_add_u32 v12, 40960, v13")
    R = 96
    for src in range(4):
        for jd in range(5):
            r = R + (src*5 + jd)*4
            I(f"ds_read_b128 v[{r}:{r+3}], v{13 if src < 2 else 12} offset:{(src%2)*20480 + jd*1024}")
    if HOIST:
        I("s_waitcnt lgkmcnt(0)")
        for jd in range(5):
            r0 = R + jd*4
            I(f"v_add_f32 v{r0}, v{r0}, v{R+(5+jd)*4}")
            I(f"v_add_f32 v{r0+1}, v{r0+1}, v{R+(5+jd)*4+1}")
            I(f"v_add_f32 v{r0+2}, v{r0+2}, v{R+(5+jd)*4+2}")
            I(f"v_add_f32 v{r0+3}, v{r0+3}, v{R+(5+jd)*4+3}")
            for src in range(2, 4):
                r = R + (src*5 + jd)*4
                for j in range(4):
                    I(f"v_add_f32 v{r0+j}, v{r0+j}, v{r+j}")
            b = r0; t = 16 + (jd % 2)*16; x0 = XX + 2*jd
            I(f"v_cvt_pk_bf16_f32 v{t+4}, v{b}, v{b+1}")
            I(f"v_cvt_pk_bf16_f32 v{t+5}, v{b+2}, v{b+3}")
            lo16(t, x0); hi16(t+1, x0); lo16(t+2, x0+1); hi16(t+3, x0+1)
            lo16(t+6, t+4); hi16(t+7, t+4); lo16(t+8, t+5); hi16(t+9, t+5)
            for r in range(4):
                I(f"v_add_f32 v{t+r}, v{t+r}, v{t+6+r}")
            I(f"v_cvt_pk_bf16_f32 v{t+10}, v{t}, v{t+1}")
            I(f"v_cvt_pk_bf16_f32 v{t+11}, v{t+2}, v{t+3}")
            I(f"buffer_store_dwordx2 v[{t+10}:{t+11}], v15, s[32:35], 0 offen offset:{32*jd}")
    else:
        IDB = 60
        I("s_and_b32 s44, s3, 1")
        I("s_lshl_b32 s44, s44, 4")
        I("v_add_u32 v64, s44, v1")
        I("v_lshrrev_b32 v65, 3, v64")
        I("v_cmp_eq_u32 vcc, v65, v2")
        I("v_and_b32 v65, 7, v64")
        I("v_and_b32 v66, 1, v65")
        I("v_lshlrev_b32 v66, 4, v66")
        I("v_mov_b32 v67, 0x3f80")
        I("v_lshlrev_b32 v67, v66, v67")
        I("v_lshrrev_b32 v65, 1, v65")
        I("v_cndmask_b32 v67, 0, v67, vcc")
        for j in range(4):
            I(f"v_cmp_eq_u32 vcc, {j}, v65")
            I("s_nop 1")
            I(f"v_cndmask_b32 v{IDB+j}, 0, v67, vcc")
        TY = 64
        I("s_nop 1")
        for jd in range(5):
            I(f"v_mfma_f32_16x16x32_bf16 v[{TY+4*jd}:{TY+4*jd+3}], v[{YF+4*jd}:{YF+4*jd+3}], v[{IDB}:{IDB+3}], 0")
        I("s_waitcnt lgkmcnt(0)")
        for jd in range(5):
            r0 = R + jd*4
            for src in range(1, 4):
                r = R + (src*5 + jd)*4
                for j in range(4):
                    I(f"v_add_f32 v{r0+j}, v{r0+j}, v{r+j}")
        I("s_waitcnt vmcnt(0)")
        for jd in range(5):
            b = R + jd*4
            ty = TY + 4*jd
            t = 180 + (jd % 2)*16
            x0 = XX + 2*jd; n0 = XX + 10 + 2*jd
            lo16(t, n0); hi16(t+1, n0); lo16(t+2, n0+1); hi16(t+3, n0+1)
            for r in range(4):
                I(f"v_mul_f32 v{t+r}, v{t+r}, v{ty+r}")
            I(f"v_cvt_pk_bf16_f32 v{t+4}, v{t}, v{t+1}")
            I(f"v_cvt_pk_bf16_f32 v{t+5}, v{t+2}, v{t+3}")
            lo16(t, t+4); hi16(t+1, t+4); lo16(t+2, t+5); hi16(t+3, t+5)
            lo16(t+6, x0); hi16(t+7, x0); lo16(t+8, x0+1); hi16(t+9, x0+1)
            for r in range(4):
                I(f"v_add_f32 v{t+r}, v{t+r}, v{t+6+r}")
            I(f"v_cvt_pk_bf16_f32 v{t+4}, v{t}, v{t+1}")
            I(f"v_cvt_pk_bf16_f32 v{t+5}, v{t+2}, v{t+3}")
            lo16(t, t+4); hi16(t+1, t+4); lo16(t+2, t+5); hi16(t+3, t+5)
            I(f"v_cvt_pk_bf16_f32 v{t+4}, v{b}, v{b+1}")
            I(f"v_cvt_pk_bf16_f32 v{t+5}, v{b+2}, v{b+3}")
            lo16(t+6, t+4); hi16(t+7, t+4); lo16(t+8, t+5); hi16(t+9, t+5)
            for r in range(4):
                I(f"v_add_f32 v{t+r}, v{t+r}, v{t+6+r}")
            I(f"v_cvt_pk_bf16_f32 v{t+10}, v{t}, v{t+1}")
            I(f"v_cvt_pk_bf16_f32 v{t+11}, v{t+2}, v{t+3}")
            I(f"buffer_store_dwordx2 v[{t+10}:{t+11}], v15, s[32:35], 0 offen offset:{32*jd}")
    I("s_waitcnt vmcnt(0)")
    stamp()
    stamp_dump(9)
    e("F_exit:")
    I("s_endpgm")
    kernel_desc("fin_kernel", 256+80+36*max(0, NB2-5), 80, accum=256)

def main():
    hdr = open("parallel_sum__ssm_conv_h3__glu_gated_bilinear__prompt.s.ref").read().splitlines()
    for line in hdr:
        if line.startswith("; @launch"):
            break
        if line.startswith(";"):
            e(line)
    if not FUSE: e(f"; @launch kernel=prep_kernel grid=({N_LN+N_KV+N_PF},1,1) block=(256,1,1) lds=0")
    if BIG:
        e("; @launch kernel=mid_kernel grid=(256,1,1) block=(512,1,1) lds=163840")
    else:
        e(f"; @launch kernel=mid_kernel grid=({N_G1+N_CV},1,1) block=(256,1,1) lds={LDS2}")
    e(f"; @launch kernel=fin_kernel grid=(256,1,1) block=(256,1,1) lds=81920")
    e('.amdgcn_target "amdgcn-amd-amdhsa--gfx950"')
    if not FUSE: gen_prep()
    gen_k2()
    gen_k3()
    dst = sys.argv[1] if len(sys.argv) > 1 else "parallel_sum__ssm_conv_h3__glu_gated_bilinear__prompt.s"
    open(dst, "w").write("\n".join(out) + "\n")

main()
```

```python
import sys

import os
FLAGS = os.environ.get("GENFLAGS", "").split(",")
CP = " nt" if "cpnt" in FLAGS else (" sc1" if "cpsc1" in FLAGS else (" sc0 sc1" if "cpsc01" in FLAGS else ""))
S, D, F = 2048, 640, 1728
WS_XN  = 0x0
WS_KVR = 0x280000
WS_WDT = 0x500000
WS_H   = 0x800000
WS_YT  = 0x1000000
WS_ST  = 0x1400000
FUSE = "fuse" in FLAGS
SZ_SD = S * D * 2
SZ_W  = D * F * 2
SZ_H  = S * F * 2

out = []
def e(s=""):
    out.append(s)
SP = " nt" if "stnt" in FLAGS else (" sc0 sc1" if "stsc" in FLAGS else (" sc1" if "stsc1" in FLAGS else (" sc0 sc1 nt" if "stall" in FLAGS else "")))
def I(s):
    if s.startswith("buffer_store") and "s[56:59]" not in s: s += SP
    out.append("    " + s)

def srd(base, ptr, size, off=0):
    if off:
        I(f"s_add_u32 s{base}, s{ptr}, {off:#x}")
        I(f"s_addc_u32 s{base+1}, s{ptr+1}, 0")
    else:
        I(f"s_mov_b32 s{base}, s{ptr}")
        I(f"s_mov_b32 s{base+1}, s{ptr+1}")
    I(f"s_mov_b32 s{base+2}, {size:#x}")
    I(f"s_mov_b32 s{base+3}, 0x00020000")

def lo16(dst, src): I(f"v_lshlrev_b32 v{dst}, 16, v{src}")
def hi16(dst, src): I(f"v_and_b32 v{dst}, 0xffff0000, v{src}")

STAMP = "stamp" in FLAGS
nst = [0]
def stamp():
    if STAMP:
        i = nst[0]; nst[0] += 1
        I(f"s_memtime s[{60+2*i}:{61+2*i}]")
def stamp_dump(wg):
    if not STAMP: return
    n = nst[0]; nst[0] = 0
    if "ast" in FLAGS:
        kidx = 1 if wg == 9 else 0
        I("s_waitcnt lgkmcnt(0) vmcnt(0)")
        I("s_load_dwordx2 s[56:57], s[0:1], 96")
        I("s_memrealtime s[58:59]")
        I("s_waitcnt lgkmcnt(0)")
        I("v_mov_b32 v3, s58")
        I(f"s_add_u32 s56, s56, {0x1800000 + kidx*0x40000}")
        I("s_addc_u32 s57, s57, 0")
        I("s_mov_b32 s58, 0x40000")
        I("s_mov_b32 s59, 0x00020000")
        I("s_lshl_b32 s61, s2, 3")
        I("s_add_u32 s61, s61, s3")
        I("s_lshl_b32 s61, s61, 6")
        I("v_mov_b32 v1, s61")
        I("buffer_store_dword v3, v1, s[56:59], 0 offen")
        for i in range(1, n):
            I(f"s_sub_u32 s{61+2*i}, s{60+2*i}, s60")
            I(f"v_mov_b32 v2, s{61+2*i}")
            I(f"buffer_store_dword v2, v1, s[56:59], 0 offen offset:{4*i}")
        I("s_waitcnt vmcnt(0)")
        return
    I("s_waitcnt lgkmcnt(0) vmcnt(0)")
    I(f"s_cmp_lg_u32 s2, {wg}")
    I(f"s_cbranch_scc1 SD_skip{wg}")
    I("s_cmp_lg_u32 s3, 0")
    I(f"s_cbranch_scc1 SD_skip{wg}")
    I("s_load_dwordx2 s[56:57], s[0:1], 88")
    I("s_waitcnt lgkmcnt(0)")
    I("s_mov_b32 s58, 256")
    I("s_mov_b32 s59, 0x00020000")
    I("v_mov_b32 v1, 0")
    for i in range(n):
        I(f"s_sub_u32 s{61+2*i}, s{60+2*i}, s60")
        I(f"v_mov_b32 v2, s{61+2*i}")
        I(f"buffer_store_dword v2, v1, s[56:59], 0 offen offset:{4*i + (64 if wg == 255 else 0)}")
    I("s_waitcnt vmcnt(0)")
    e(f"SD_skip{wg}:")

WGT = "wgt" in FLAGS
def wgt_start():
    if WGT: I("s_memrealtime s[76:77]")
wgtn = [0]
def wgt_end(kidx):
    if not WGT: return
    n = wgtn[0]; wgtn[0] += 1
    I("s_waitcnt vmcnt(0) lgkmcnt(0)")
    I("s_memrealtime s[78:79]")
    I("s_load_dwordx2 s[72:73], s[0:1], 96")
    I("v_lshrrev_b32 v1, 6, v0")
    I("s_nop 0")
    I("v_readfirstlane_b32 s70, v1")
    I("s_lshl_b32 s71, s2, 3")
    I("s_add_u32 s70, s70, s71")
    I("s_lshl_b32 s70, s70, 3")
    I("s_waitcnt lgkmcnt(0)")
    I(f"s_add_u32 s72, s72, {0x1800000 + kidx*0x10000}")
    I("s_addc_u32 s73, s73, 0")
    I("s_mov_b32 s74, 0x10000")
    I("s_mov_b32 s75, 0x00020000")
    I("v_mov_b32 v2, s76")
    I("v_mov_b32 v3, s78")
    I("v_mov_b32 v1, s70")
    I("buffer_store_dwordx2 v[2:3], v1, s[72:75], 0 offen")
    I("s_waitcnt vmcnt(0)")

def kernel_header(name):
    e(".text")
    e(f".globl {name}")
    e(".p2align 8")
    e(f".type {name},@function")
    e(f"{name}:")

def kernel_desc(name, vgpr, sgpr, accum=None):
    if accum is None:
        accum = (vgpr + 3) // 4 * 4
    e('.section .rodata,"a"')
    e(".p2align 6")
    e(f".amdhsa_kernel {name}")
    e(f"  .amdhsa_next_free_vgpr {vgpr}")
    e(f"  .amdhsa_next_free_sgpr {sgpr}")
    e(f"  .amdhsa_accum_offset {accum}")
    e("  .amdhsa_group_segment_fixed_size 0")
    e("  .amdhsa_kernarg_size 104")
    e("  .amdhsa_user_sgpr_count 2")
    e("  .amdhsa_user_sgpr_kernarg_segment_ptr 1")
    e("  .amdhsa_system_sgpr_workgroup_id_x 1")
    e(".end_amdhsa_kernel")

N_LN, N_KV = 128, 160
N_PF = 0
if "pfw" in FLAGS: N_PF = 4*36
if "pfw2" in FLAGS: N_PF = 2*36
def gen_prep():
    kernel_header("prep_kernel")
    I(f"s_cmp_ge_u32 s2, {N_LN+N_KV+N_PF}")
    I("s_cbranch_scc1 P_exit")
    if N_PF:
        I(f"s_cmp_ge_u32 s2, {N_LN+N_KV}")
        I("s_cbranch_scc1 P_pf")
    I("s_load_dwordx2 s[6:7], s[0:1], 96")
    I(f"s_cmp_lt_u32 s2, {N_KV}")
    I("s_cbranch_scc1 P_kv")
    if "noln" in FLAGS: I("s_endpgm")
    I("s_load_dwordx2 s[4:5], s[0:1], 0")
    I("v_lshrrev_b32 v1, 4, v0")
    I(f"s_sub_u32 s3, s2, {N_KV}")
    I("s_lshl_b32 s3, s3, 4")
    I("v_add_u32 v1, s3, v1")
    I("v_mul_u32_u24 v2, 0x500, v1")
    I("v_and_b32 v3, 15, v0")
    I("v_lshl_add_u32 v2, v3, 4, v2")
    I("s_waitcnt lgkmcnt(0)")
    srd(8, 4, SZ_SD)
    srd(12, 6, SZ_SD, WS_XN)
    for j in range(5):
        I(f"buffer_load_dwordx4 v[{4+4*j}:{7+4*j}], v2, s[8:11], 0 offen offset:{256*j}")
    I("v_lshrrev_b32 v2, 4, v1")
    I("v_mul_u32_u24 v2, 20480, v2")
    I("v_lshrrev_b32 v64, 2, v3")
    I("v_lshl_add_u32 v2, v64, 10, v2")
    I("v_and_b32 v64, 3, v3")
    I("v_lshl_add_u32 v2, v64, 8, v2")
    I("v_and_b32 v64, 15, v1")
    I("v_lshl_add_u32 v2, v64, 4, v2")
    I("s_waitcnt vmcnt(0)")
    X = 24
    for j in range(20):
        lo16(X + 2*j, 4 + j)
        hi16(X + 2*j + 1, 4 + j)
    T = 64
    for j in range(20):
        I(f"v_add_f32 v{T+j}, v{X+2*j}, v{X+2*j+1}")
    def tree(base, n):
        while n > 1:
            h = n // 2
            for j in range(h):
                I(f"v_add_f32 v{base+j}, v{base+j}, v{base+n-1-j}")
            n = n - h
    tree(T, 20)
    def dpp_reduce(r, tmp):
        for sh in (8, 4, 2, 1):
            I("s_nop 1")
            I(f"v_add_f32_dpp v{tmp}, v{r}, v{r} row_ror:{sh} row_mask:0xf bank_mask:0xf")
            I(f"v_mov_b32 v{r}, v{tmp}")
    dpp_reduce(T, T+1)
    I(f"v_mul_f32 v{T}, {1.0/640.0!r}, v{T}")
    for j in range(40):
        I(f"v_sub_f32 v{T+2+j}, v{X+j}, v{T}")
    for j in range(40):
        I(f"v_mul_f32 v{T+2+j}, v{T+2+j}, v{T+2+j}")
    tree(T+2, 40)
    dpp_reduce(T+2, T+1)
    I(f"v_mul_f32 v{T+2}, {1.0/640.0!r}, v{T+2}")
    I(f"v_cvt_pk_bf16_f32 v{T}, v{T}, v{T+2}")
    hi16(T+2, T)
    lo16(T, T)
    I(f"v_add_f32 v{T+2}, {1e-5!r}, v{T+2}")
    I(f"v_cvt_pk_bf16_f32 v{T+2}, v{T+2}, v{T+2}")
    lo16(T+2, T+2)
    I(f"v_sqrt_f32 v{T+2}, v{T+2}")
    I("s_nop 0")
    I(f"v_cvt_pk_bf16_f32 v{T+2}, v{T+2}, v{T+2}")
    lo16(T+2, T+2)
    I(f"v_rcp_f32 v{T+3}, v{T+2}")
    I("s_nop 0")
    for j in range(20):
        a, b = X + 2*j, X + 2*j + 1
        I(f"v_sub_f32 v{a}, v{a}, v{T}")
        I(f"v_sub_f32 v{b}, v{b}, v{T}")
        I(f"v_cvt_pk_bf16_f32 v{T+4}, v{a}, v{b}")
        lo16(a, T+4)
        hi16(b, T+4)
        for r in (a, b):
            I(f"v_mul_f32 v{T+5}, v{r}, v{T+3}")
            I(f"v_fma_f32 v{T+6}, -v{T+5}, v{T+2}, v{r}")
            I(f"v_fma_f32 v{r}, v{T+6}, v{T+3}, v{T+5}")
        I(f"v_cvt_pk_bf16_f32 v{4+j}, v{a}, v{b}")
        if j % 4 == 3:
            jj = j // 4
            I(f"s_mov_b32 s16, {4096*jj}")
            I(f"buffer_store_dwordx4 v[{4+4*jj}:{7+4*jj}], v2, s[12:15], s16 offen")
    I("s_endpgm")
    e("P_kv:")
    if "nokv" in FLAGS: I("s_endpgm")
    I("s_load_dwordx4 s[16:19], s[0:1], 8")
    I("s_load_dwordx2 s[4:5], s[0:1], 24")
    I("s_mul_i32 s28, s2, 0xCCCD")
    I("s_lshr_b32 s28, s28, 19")
    I("s_mul_i32 s29, s28, 10")
    I("s_sub_u32 s29, s2, s29")
    I("v_and_b32 v1, 7, v0")
    I("v_lshrrev_b32 v2, 3, v0")
    I("s_lshl_b32 s30, s29, 6")
    I("v_lshl_add_u32 v1, v1, 3, s30")
    I("s_lshl_b32 s31, s28, 7")
    I("v_lshl_add_u32 v2, v2, 2, s31")
    I("v_mul_u32_u24 v3, 0x500, v2")
    I("v_lshl_add_u32 v3, v1, 1, v3")
    for i in range(3):
        I(f"v_subrev_u32 v{5+i}, {(3-i)*1280:#x}, v3")
    I("v_lshlrev_b32 v8, 3, v1")
    I("s_waitcnt lgkmcnt(0)")
    srd(8, 16, SZ_SD)
    srd(12, 18, SZ_SD)
    srd(20, 4, D*4*2)
    srd(24, 6, SZ_SD, WS_KVR)
    KR = 16
    for i in range(3):
        I(f"buffer_load_dwordx4 v[{KR+4*i}:{KR+4*i+3}], v{5+i}, s[8:11], 0 offen")
    for i in range(4):
        I(f"buffer_load_dwordx4 v[{KR+4*(i+3)}:{KR+4*(i+3)+3}], v3, s[8:11], 0 offen offset:{i*1280}")
    VR = KR + 28
    for i in range(4):
        I(f"buffer_load_dwordx4 v[{VR+4*i}:{VR+4*i+3}], v3, s[12:15], 0 offen offset:{i*1280}")
    SK = VR + 16
    for i in range(4):
        I(f"buffer_load_dwordx4 v[{SK+4*i}:{SK+4*i+3}], v8, s[20:23], 0 offen offset:{16*i}")
    I("v_lshlrev_b32 v9, 12, v1")
    I(f"v_sub_u32 v10, {S-4}, v2")
    I("v_lshl_add_u32 v9, v10, 1, v9")
    I("s_waitcnt vmcnt(0)")
    KF = 76
    VF = 83
    SF = 87
    TM = 92
    OB = 104
    for dd in range(8):
        ex = lo16 if dd % 2 == 0 else hi16
        for i in range(7):
            ex(KF + i, KR + 4*i + dd//2)
        for i in range(4):
            ex(VF + i, VR + 4*i + dd//2)
        lo16(SF+0, SK + 2*dd); hi16(SF+1, SK + 2*dd)
        lo16(SF+2, SK + 2*dd + 1); hi16(SF+3, SK + 2*dd + 1)
        ob = OB + 2*(dd % 4)
        for q in range(2):
            sa, sb = 3 - 2*q, 2 - 2*q
            t = TM
            I(f"v_mul_f32 v{t}, v{KF+sa}, v{SF+3}")
            I(f"v_mul_f32 v{t+1}, v{KF+sb}, v{SF+3}")
            I(f"v_mul_f32 v{t+2}, v{KF+sa+1}, v{SF+2}")
            I(f"v_mul_f32 v{t+3}, v{KF+sb+1}, v{SF+2}")
            I(f"v_mul_f32 v{t+4}, v{KF+sa+2}, v{SF+1}")
            I(f"v_mul_f32 v{t+5}, v{KF+sb+2}, v{SF+1}")
            I(f"v_mul_f32 v{t+6}, v{KF+sa+3}, v{SF+0}")
            I(f"v_mul_f32 v{t+7}, v{KF+sb+3}, v{SF+0}")
            for p in range(4):
                I(f"v_cvt_pk_bf16_f32 v{t+8+p}, v{t+2*p}, v{t+2*p+1}")
            for p in range(4):
                lo16(t+2*p, t+8+p); hi16(t+2*p+1, t+8+p)
            for step in (1, 2, 3):
                I(f"v_add_f32 v{t}, v{t}, v{t+2*step}")
                I(f"v_add_f32 v{t+1}, v{t+1}, v{t+2*step+1}")
                I(f"v_cvt_pk_bf16_f32 v{t+8}, v{t}, v{t+1}")
                lo16(t, t+8); hi16(t+1, t+8)
            I(f"v_mul_f32 v{t}, v{t}, v{VF+sa}")
            I(f"v_mul_f32 v{t+1}, v{t+1}, v{VF+sb}")
            I(f"v_cvt_pk_bf16_f32 v{ob+q}, v{t}, v{t+1}")
        I(f"s_mov_b32 s16, {4096*dd}")
        I(f"buffer_store_dwordx2 v[{ob}:{ob+1}], v9, s[24:27], s16 offen")
    if N_PF:
        I("s_endpgm")
        e("P_pf:")
        I(f"s_sub_u32 s3, s2, {N_LN+N_KV}")
        I("s_mul_i32 s4, s3, 1821")
        I("s_lshr_b32 s4, s4, 16")
        I("s_mul_i32 s5, s4, 36")
        I("s_sub_u32 s5, s3, s5")
        I("s_lshl_b32 s6, s4, 3")
        I("s_add_u32 s6, s6, 56")
        I("s_cmp_eq_u32 s4, 3")
        I("s_cselect_b32 s6, 32, s6")
        I("s_load_dwordx2 s[8:9], s[0:1], s6")
        I(f"s_mov_b32 s10, {SZ_W}")
        I(f"s_cselect_b32 s10, {SZ_SD}, s10")
        I("s_mov_b32 s11, 0x00020000")
        I("s_mov_b32 s7, 65536")
        I("s_cselect_b32 s7, 73728, s7")
        I("s_mul_i32 s5, s5, s7")
        I("v_lshlrev_b32 v1, 4, v0")
        I("s_waitcnt lgkmcnt(0)")
        for i in range(18):
            I(f"buffer_load_dwordx4 v[{4+4*i}:{7+4*i}], v1, s[8:11], s5 offen")
            I("s_add_u32 s5, s5, 4096")
        I("s_waitcnt vmcnt(0)")
    e("P_exit:")
    I("s_endpgm")
    kernel_desc("prep_kernel", 112, 40)

BF = 112
NSLOT = 5
SLOT = 16384
LDS2 = NSLOT * SLOT
N_G1, N_CV = 256, 256

class DSQ:
    def __init__(self): self.q = []
    def push(self, tag): self.q.append(tag)
    def wait_for(self, tag):
        if tag not in self.q: return
        idx = max(i for i, t in enumerate(self.q) if t == tag)
        n = len(self.q) - 1 - idx
        I(f"s_waitcnt lgkmcnt({min(n,15)})")
        self.q = self.q[idx+1:] if n <= 15 else self.q[len(self.q)-15:]

BIG = "big" in FLAGS
def gen_g1big():
    NF = 10; RS = 320; MS = 32*RS; SL = 2*MS; NS = 8; DB = 3; LA = 3; NST = 20
    for f_ in FLAGS:
        if f_.startswith("ns"): NS = int(f_[2:])
    DW = NS - 1
    stamp()
    I("s_load_dwordx4 s[16:19], s[0:1], 56")
    I(f"s_mul_i32 s25, s25, {16*NF}")
    I(f"s_min_u32 s25, s25, {F-16*NF}")
    I("v_and_b32 v1, 63, v0")
    PROD = "prod" in FLAGS
    if PROD:
        I("s_cmp_lt_u32 s3, 4")
        I("s_cbranch_scc1 G1_cons")
        DWP = 6
        I("s_lshl_b32 s27, s25, 1")
        for i in range(10):
            I(f"v_add_u32 v20, {64*i}, v1")
            I("v_mul_u32_u24 v21, 3277, v20")
            I("v_lshrrev_b32 v21, 16, v21")
            I("v_mul_u32_u24 v22, 20, v21")
            I("v_sub_u32 v22, v20, v22")
            I("v_bfe_u32 v23, v21, 3, 1")
            I("v_lshlrev_b32 v23, 1, v23")
            I("v_xor_b32 v22, v22, v23")
            I("v_mul_u32_u24 v21, 3456, v21")
            I("v_lshl_add_u32 v21, v22, 4, v21")
            I("v_add_u32 v21, s27, v21")
            I(f"v_subrev_u32 v{2+i}, {1024*(i%4)}, v21")
        I("s_sub_u32 s29, s3, 4")
        I(f"s_mul_i32 s29, s29, {MS}")
        I("s_waitcnt lgkmcnt(0)")
        I("s_cmp_ge_u32 s3, 5")
        I("s_cselect_b32 s4, s18, s16")
        I("s_cselect_b32 s5, s19, s17")
        srd(8, 4, SZ_W)
        pq = []
        def pdma(st):
            I(f"s_mov_b32 s28, {st*32*3456}")
            for i in range(10):
                if i % 4 == 0: I(f"s_add_u32 m0, s29, {(st % NS)*SL + (i//4)*4096}")
                I(f"buffer_load_dwordx4 v{2+i}, s[8:11], s28 offen offset:{1024*(i%4)} lds")
                pq.append(st)
        def pwait(st):
            idx = max(i for i, t in enumerate(pq) if t == st)
            I(f"s_waitcnt vmcnt({len(pq)-1-idx})")
            del pq[:idx+1]
        if "ramp" in FLAGS:
            for st in range(3): pdma(st)
            pwait(0)
            I("s_barrier")
            pdma(3); pdma(4)
            for st in range(NST-1):
                pwait(st+1)
                I("s_barrier")
                if st == 0: pdma(5)
                if st + DWP < NST: pdma(st + DWP)
        else:
            for st in range(DWP): pdma(st)
            pwait(0)
            I("s_barrier")
            for st in range(NST-1):
                pwait(st+1)
                I("s_barrier")
                if st + DWP < NST: pdma(st + DWP)
        I("s_endpgm")
        e("G1_cons:")
    I("s_and_b32 s26, s3, 1")
    I("s_lshl_b32 s26, s26, 4")
    I("s_lshl_b32 s27, s25, 1")
    for i in range(5 if not PROD else 0):
        I(f"v_add_u32 v10, {64*i}, v1")
        I("v_mul_u32_u24 v11, 3277, v10")
        I("v_lshrrev_b32 v11, 16, v11")
        I("v_mul_u32_u24 v12, 20, v11")
        I("v_sub_u32 v12, v10, v12")
        I("v_add_u32 v11, s26, v11")
        I("v_bfe_u32 v13, v11, 3, 1")
        I("v_lshlrev_b32 v13, 1, v13")
        I("v_xor_b32 v12, v12, v13")
        I("v_mul_u32_u24 v11, 3456, v11")
        I("v_lshl_add_u32 v11, v12, 4, v11")
        I("v_add_u32 v11, s27, v11")
        I(f"v_subrev_u32 v{2+i}, {1024*(i%4)}, v11")
    I("s_lshl_b32 s26, s24, 3")
    I("s_lshl_b32 s27, s3, 1")
    I("s_add_u32 s26, s26, s27")
    I("s_mul_i32 s27, s26, 20480")
    I("v_lshl_add_u32 v7, v1, 4, s27")
    I("v_add_u32 v8, 20480, v7")
    I("s_mul_i32 s27, s26, 55296")
    I("v_lshl_add_u32 v9, v1, 4, s27")
    I("v_add_u32 v10, 55296, v9")
    I("v_bfe_u32 v17, v0, 4, 2")
    I("v_bfe_u32 v18, v0, 2, 2")
    I("v_lshl_add_u32 v19, v17, 3, v18")
    I(f"v_mul_u32_u24 v19, {RS}, v19")
    I("v_and_b32 v18, 3, v0")
    I("v_lshl_add_u32 v19, v18, 3, v19")
    I("v_and_b32 v20, 1, v17")
    I("v_lshlrev_b32 v20, 5, v20")
    I("v_add_u32 v11, v19, v20")
    I("v_sub_u32 v12, v19, v20")
    ROLL = "roll" in FLAGS
    if ROLL:
        for k_, offs in ((1, 3*SL), (2, 4*SL), (3, 7*SL)):
            I(f"v_add_u32 v{11+2*k_}, {offs}, v11")
            I(f"v_add_u32 v{12+2*k_}, {offs}, v12")
    else:
        for rg in (1, 2):
            I(f"v_add_u32 v{11+2*rg}, {rg*3*SL}, v11")
            I(f"v_add_u32 v{12+2*rg}, {rg*3*SL}, v12")
    I("s_mul_i32 s29, s3, 5120")
    I("s_waitcnt lgkmcnt(0)")
    I("s_cmp_ge_u32 s3, 2")
    I("s_cselect_b32 s4, s18, s16")
    I("s_cselect_b32 s5, s19, s17")
    srd(8, 4, SZ_W)
    srd(12, 6, SZ_SD, WS_XN)
    srd(20, 6, SZ_H, WS_H)
    BB = 24; AF = 56; ACC = 80
    def acc(m, jf, js): return ACC + ((m*NF + jf)*2 + js)*4
    vq = []
    def vwait(tags):
        if not any(t in tags for t in vq): return
        idx = max(i for i, t in enumerate(vq) if t in tags)
        n = len(vq) - 1 - idx
        I(f"s_waitcnt vmcnt({n})")
        del vq[:idx+1]
    def dma(st):
        if PROD: return
        I(f"s_add_u32 m0, s29, {(st % NS)*SL}")
        I(f"s_mov_b32 s28, {st*32*3456}")
        for i in range(5):
            if i == 4: I(f"s_add_u32 m0, s29, {(st % NS)*SL + 4096}")
            I(f"buffer_load_dwordx4 v{2+i}, s[8:11], s28 offen offset:{1024*(i%4)} lds")
            vq.append(("D", st))
    def bld(st):
        I(f"s_mov_b32 s31, {st*1024}")
        for js in range(2):
            r = BB + (st % (DB+1))*8 + js*4
            I(f"buffer_load_dwordx4 v[{r}:{r+3}], v{7+js}, s[12:15], s31 offen")
            vq.append(("B", st))
    seq = [(m, jf) for m in range(2) for jf in range(NF)]
    NQ = len(seq)
    def rdx(gpos):
        st, idx = divmod(gpos, NQ)
        m, jf = seq[idx]
        slot = st % NS
        a = AF + (gpos % 4)*4
        va = 11 + 2*(slot // 3) + (jf & 1)
        off = (slot % 3)*SL + m*MS + jf*32
        return [f"ds_read_b64_tr_b16 v[{a}:{a+1}], v{va} offset:{off}",
                f"ds_read_b64_tr_b16 v[{a+2}:{a+3}], v{va} offset:{off+4*RS}"]
    for st in range(DW):
        dma(st)
        if ROLL:
            if st >= DW - DB: bld(st - (DW - DB))
        elif st < DB: bld(st)
    for j in range(4*2*2*NF):
        I(f"v_mov_b32 v{ACC+j}, 0")
    stamp()
    vwait([("D", 0)])
    I("s_barrier")
    for i in range(LA):
        for x in rdx(i): I(x)
    if ROLL:
        assert NS == 8
        I("s_mov_b32 s33, 0")
        I("s_mov_b32 s36, s29")
        I(f"s_add_u32 s37, s29, {4*SL}")
        I(f"s_mov_b32 s28, {DW*32*3456}")
        I(f"s_mov_b32 s31, {DB*1024}")
        def rdr(p, idx, ring):
            m, jf = seq[idx]
            a = AF + (ring % 4)*4
            if p < 3: va = 11 + (jf & 1); off = p*SL
            elif p == 3: va = 13 + (jf & 1); off = 0
            else: va = 15 + (jf & 1); off = 0
            off += m*MS + jf*32
            return [f"ds_read_b64_tr_b16 v[{a}:{a+1}], v{va} offset:{off}",
                    f"ds_read_b64_tr_b16 v[{a+2}:{a+3}], v{va} offset:{off+4*RS}"]
        e("G1_loop:")
        for p_ in range(4):
            I("s_waitcnt vmcnt(14)")
            I(f"s_cmp_lt_u32 s33, {4 if p_ < 2 else 3}")
            I(f"s_cbranch_scc1 G1_w{p_}")
            I("s_waitcnt vmcnt(2)")
            if p_ >= 2:
                I("s_cmp_lt_u32 s33, 4")
                I(f"s_cbranch_scc1 G1_w{p_}")
                I("s_waitcnt vmcnt(0)")
            e(f"G1_w{p_}:")
            I("s_barrier")
            I(f"s_cmp_ge_u32 s33, {4 if p_ == 0 else 3}")
            I(f"s_cbranch_scc1 G1_d{p_}")
            base, offs = ("s37", 3*SL) if p_ == 0 else ("s36", (p_-1)*SL)
            I(f"s_add_u32 m0, {base}, {offs}")
            for i in range(5):
                if i == 4: I(f"s_add_u32 m0, {base}, {offs + 4096}")
                I(f"buffer_load_dwordx4 v{2+i}, s[8:11], s28 offen offset:{1024*(i%4)} lds")
            I(f"s_add_u32 s28, s28, {32*3456}")
            e(f"G1_d{p_}:")
            if p_ > 0:
                I("s_cmp_ge_u32 s33, 4")
                I(f"s_cbranch_scc1 G1_b{p_}")
            for js in range(2):
                r = BB + ((p_ + DB) % 4)*8 + js*4
                I(f"buffer_load_dwordx4 v[{r}:{r+3}], v{7+js}, s[12:15], s31 offen")
            I("s_add_u32 s31, s31, 1024")
            if p_ > 0: e(f"G1_b{p_}:")
            for idx in range(NQ):
                if idx + LA < NQ: rr = rdr(p_, idx + LA, idx + LA)
                else: rr = rdr(p_ + 1, idx + LA - NQ, idx + LA)
                I(f"s_waitcnt lgkmcnt({2*LA-2})")
                m, jf = seq[idx]
                a = AF + (idx % 4)*4
                for js in range(2):
                    c = acc(m, jf, js); b = BB + p_*8 + js*4
                    I(f"v_mfma_f32_16x16x32_bf16 v[{c}:{c+3}], v[{a}:{a+3}], v[{b}:{b+3}], v[{c}:{c+3}]")
                    I(rr[js])
        for k_ in range(4):
            I(f"v_swap_b32 v{11+k_}, v{15+k_}")
        I("s_mov_b32 s38, s36")
        I("s_mov_b32 s36, s37")
        I("s_mov_b32 s37, s38")
        I("s_add_u32 s33, s33, 1")
        I("s_cmp_lt_u32 s33, 5")
        I("s_cbranch_scc1 G1_loop")
        I("s_waitcnt lgkmcnt(0)")
    for st in range(NST if not ROLL else 0):
        if st + 1 < NST:
            vwait([("D", st+1), ("B", st)])
            I("s_barrier")
        else:
            vwait([("B", st)])
        if "stamp3" in FLAGS and st in (0, 1, 5, 10, 15): stamp()
        if st + DW < NST and "g1nodma" not in FLAGS: dma(st + DW)
        if st + DB < NST and "g1nob" not in FLAGS: bld(st + DB)
        for idx in range(NQ if "g1nocomp" not in FLAGS else 0):
            gpos = st*NQ + idx
            rr = rdx(gpos + LA) if gpos + LA < NST*NQ else None
            I(f"s_waitcnt lgkmcnt({2*min(LA-1, NST*NQ-1-gpos)})")
            m, jf = seq[idx]
            a = AF + (gpos % 4)*4
            for js in range(2):
                c = acc(m, jf, js); b = BB + (st % (DB+1))*8 + js*4
                I(f"v_mfma_f32_16x16x32_bf16 v[{c}:{c+3}], v[{a}:{a+3}], v[{b}:{b+3}], v[{c}:{c+3}]")
                if rr: I(rr[js])
    stamp()
    I("s_lshr_b32 s34, s25, 5")
    I("s_lshl_b32 s34, s34, 10")
    I("s_add_u32 s35, s34, 4096")
    I("s_nop 7")
    I("s_nop 3")
    for js in range(2):
        for jp in range(NF//2):
            t = 24 + ((js*5 + jp) % 4) * 12
            for hh in range(2):
                jf = 2*jp + hh
                g = acc(0, jf, js); u = acc(1, jf, js)
                I(f"v_cvt_pk_bf16_f32 v{t}, v{g}, v{g+1}")
                I(f"v_cvt_pk_bf16_f32 v{t+1}, v{g+2}, v{g+3}")
                I(f"v_cvt_pk_bf16_f32 v{t+2}, v{u}, v{u+1}")
                I(f"v_cvt_pk_bf16_f32 v{t+3}, v{u+2}, v{u+3}")
                lo16(g, t); hi16(g+1, t); lo16(g+2, t+1); hi16(g+3, t+1)
                lo16(u, t+2); hi16(u+1, t+2); lo16(u+2, t+3); hi16(u+3, t+3)
                for r in range(4):
                    I(f"v_mul_f32 v{g+r}, v{g+r}, v{u+r}")
                I(f"v_cvt_pk_bf16_f32 v{t+4+2*hh}, v{g}, v{g+1}")
                I(f"v_cvt_pk_bf16_f32 v{t+5+2*hh}, v{g+2}, v{g+3}")
            if jp < 4:
                I(f"buffer_store_dwordx4 v[{t+4}:{t+7}], v{9+js}, s[20:23], s34 offen offset:{1024*jp}")
            else:
                I(f"buffer_store_dwordx4 v[{t+4}:{t+7}], v{9+js}, s[20:23], s35 offen")
    if STAMP: I("s_waitcnt vmcnt(0)")
    stamp()
    stamp_dump(5)
    wgt_end(1)
    I("s_endpgm")

def gen_g1fuse():
    NF = 10; RS = 320; MS = 32*RS; SL = 2*MS; NS = 6; LA = 3; NST = 20; DWP = 5
    XB = NS*SL
    XP = 18432; XR = 144
    I(f"s_mul_i32 s25, s25, {16*NF}")
    I(f"s_min_u32 s25, s25, {F-16*NF}")
    I("v_and_b32 v1, 63, v0")
    I("s_and_b32 s26, s3, 3")
    I(f"s_mul_i32 s30, s26, {32*XR}")
    I(f"s_add_u32 s30, s30, {XB}")
    I("s_lshl_b32 s27, s24, 3")
    I("s_lshl_b32 s26, s26, 1")
    I("s_add_u32 s26, s26, s27")
    I("s_cmp_lt_u32 s3, 4")
    I("s_cbranch_scc1 G1_cons")
    if "hprio" in FLAGS: I("s_setprio 3")
    RAW = 64
    def raw(rg, p): return RAW + (p*4 + rg)*4
    I("s_mul_i32 s27, s26, 20480")
    I("v_lshrrev_b32 v12, 3, v1")
    I("v_and_b32 v11, 7, v1")
    I("v_mul_u32_u24 v13, 0x500, v12")
    I("v_lshl_add_u32 v13, v11, 4, v13")
    I("v_add_u32 v13, s27, v13")
    for rg in range(1, 4): I(f"v_add_u32 v{13+rg}, {rg*10240}, v13")
    I("s_lshl_b32 s27, s26, 7")
    I("v_lshl_add_u32 v7, v12, 3, s27")
    I(f"v_mul_u32_u24 v6, {XR}, v12")
    I("v_lshl_add_u32 v6, v11, 4, v6")
    I("v_add_u32 v6, s30, v6")
    I("s_waitcnt lgkmcnt(0)")
    srd(12, 44, SZ_SD)
    srd(20, 6, S*8, WS_ST)
    for p in range(10):
        for rg in range(4):
            r = raw(rg, p)
            I(f"buffer_load_dwordx4 v[{r}:{r+3}], v{13+rg}, s[12:15], 0 offen offset:{128*p}")
    SM = 24; SS = 32; TT = 40; STA = 48
    for j in range(16): I(f"v_mov_b32 v{SM+j}, 0")
    I("s_mov_b32 s49, 0x3f803f80")
    I("s_cmp_ge_u32 s3, 6")
    I("s_cbranch_scc1 G1_hw")
    def helper(kind):
        vq = [("Q", i) for i in range(40)]
        def vwait(pred):
            idxs = [i for i, t in enumerate(vq) if pred(t)]
            if not idxs: return
            idx = max(idxs)
            n = len(vq) - 1 - idx
            assert n <= 63
            I(f"s_waitcnt vmcnt({n})")
            del vq[:idx+1]
        def pdma(st):
            I(f"s_mov_b32 s28, {st*32*3456}")
            for i in range(10):
                if i % 4 == 0: I(f"s_add_u32 m0, s29, {(st % NS)*SL + (i//4)*4096}")
                I(f"buffer_load_dwordx4 v{224+i}, s[8:11], s28 offen offset:{1024*(i%4)} lds")
                vq.append(("D", st))
        if kind == "prod":
            I("s_lshl_b32 s27, s25, 1")
            for i in range(10):
                I(f"v_add_u32 v20, {64*i}, v1")
                I("v_mul_u32_u24 v21, 3277, v20")
                I("v_lshrrev_b32 v21, 16, v21")
                I("v_mul_u32_u24 v22, 20, v21")
                I("v_sub_u32 v22, v20, v22")
                I("v_bfe_u32 v23, v21, 3, 1")
                I("v_lshlrev_b32 v23, 1, v23")
                I("v_xor_b32 v22, v22, v23")
                I("v_mul_u32_u24 v21, 3456, v21")
                I("v_lshl_add_u32 v21, v22, 4, v21")
                I("v_add_u32 v21, s27, v21")
                I(f"v_subrev_u32 v{224+i}, {1024*(i%4)}, v21")
            I("s_sub_u32 s29, s3, 4")
            I(f"s_mul_i32 s29, s29, {MS}")
            I("s_cmp_ge_u32 s3, 5")
            I("s_cselect_b32 s4, s18, s16")
            I("s_cselect_b32 s5, s19, s17")
            srd(8, 4, SZ_W)
            DSCH = {5: [0], 8: [1], 9: [2]}
            for f_ in FLAGS:
                if f_.startswith("dsch"):
                    if f_ == "dsch1": DSCH = {3: [0], 6: [1], 9: [2]}
                    if f_ == "dsch2": DSCH = {7: [0], 9: [1, 2]}
                    if f_ == "dsch3": DSCH = {-1: [0], 5: [1], 9: [2]}
            for st in DSCH.get(-1, []): pdma(st)
        else:
            I("s_cmp_ge_u32 s3, 7")
            I("s_cselect_b32 s28, s18, s16")
            I("s_cselect_b32 s29, s19, s17")
            I("s_mul_i32 s27, s47, 12800")
            I(f"s_mov_b32 s30, {SZ_W}")
            I("s_mov_b32 s31, 0x00020000")
            I("v_lshlrev_b32 v5, 4, v1")
            I("s_load_dwordx2 s[4:5], s[0:1], 72")
            I("s_min_u32 s48, s46, 269")
            I("s_mul_i32 s17, s48, 0xCCCD")
            I("s_lshr_b32 s17, s17, 19")
            I("s_mul_i32 s18, s17, 10")
            I("s_sub_u32 s18, s48, s18")
            I("v_and_b32 v23, 7, v0")
            I("v_bfe_u32 v17, v0, 3, 2")
            I("v_bfe_u32 v18, v0, 5, 1")
            I("s_lshl_b32 s18, s18, 6")
            I("v_lshl_add_u32 v23, v23, 3, s18")
            I("s_lshl_b32 s19, s17, 1")
            I("v_add_u32 v18, s19, v18")
            I("v_lshlrev_b32 v19, 5, v18")
            I("v_lshl_add_u32 v19, v17, 2, v19")
            I("v_mul_u32_u24 v20, 0x500, v19")
            I("v_lshl_add_u32 v20, v23, 1, v20")
            I("v_add_u32 v21, 0x5000, v20")
            I("s_waitcnt lgkmcnt(0)")
            srd(8, 4, SZ_W)
            srd(32, 6, SZ_W, WS_WDT)
            I("s_mov_b32 s36, 0x05040100")
            I("s_mov_b32 s37, 0x07060302")
            I("v_lshrrev_b32 v22, 4, v23")
            I("v_mul_u32_u24 v22, 54, v22")
            I("v_add_u32 v22, v22, v18")
            I("v_lshlrev_b32 v22, 10, v22")
            I("v_lshl_add_u32 v22, v17, 8, v22")
            I("v_and_b32 v19, 15, v23")
            I("v_lshl_add_u32 v22, v19, 4, v22")
        for p in range(10):
            vwait(lambda t: t[0] == "Q" and t[1] <= 4*p + 3)
            for c in range(4):
                for rg in range(4):
                    r = raw(rg, p) + c
                    I(f"v_dot2_f32_bf16 v{SM+2*rg+(c&1)}, v{r}, s49, v{SM+2*rg+(c&1)}")
                    I(f"v_dot2_f32_bf16 v{SS+2*rg+(c&1)}, v{r}, v{r}, v{SS+2*rg+(c&1)}")
            if kind == "prod":
                for st in DSCH.get(p, []): pdma(st)
        I("s_nop 3")
        V8 = [SM+2*rg for rg in range(4)] + [SS+2*rg for rg in range(4)]
        for a in V8: I(f"v_add_f32 v{a}, v{a}, v{a+1}")
        for dpp in ("quad_perm:[1,0,3,2]", "quad_perm:[2,3,0,1]", "row_half_mirror"):
            for a in V8: I(f"v_add_f32_dpp v{a+1}, v{a}, v{a} {dpp} row_mask:0xf bank_mask:0xf")
            for a in V8: I(f"v_mov_b32 v{a}, v{a+1}")
        R4 = range(4)
        for a in V8: I(f"v_mul_f32 v{a}, {1.0/640.0!r}, v{a}")
        for rg in R4: I(f"v_fma_f32 v{SS+2*rg}, -v{SM+2*rg}, v{SM+2*rg}, v{SS+2*rg}")
        for rg in R4:
            I(f"v_cvt_pk_bf16_f32 v{STA+2*rg+1}, 0, -v{SM+2*rg}")
            I(f"v_cvt_pk_bf16_f32 v{SS+2*rg}, 0, v{SS+2*rg}")
        for rg in R4: I(f"v_add_f32 v{SS+2*rg}, {1e-5!r}, v{SS+2*rg}")
        for rg in R4: I(f"v_cvt_pk_bf16_f32 v{SS+2*rg}, 0, v{SS+2*rg}")
        for rg in R4: I(f"v_sqrt_f32 v{SS+2*rg}, v{SS+2*rg}")
        I("s_nop 0")
        for rg in R4: I(f"v_cvt_pk_bf16_f32 v{SS+2*rg}, 0, v{SS+2*rg}")
        for rg in R4: I(f"v_rcp_f32 v{STA+2*rg}, v{SS+2*rg}")
        I("s_nop 0")
        MN = "mnorm" in FLAGS
        SEL = 24; NEG = 32; T2 = 234
        if MN:
            I("v_and_b32 v2, 15, v1")
            I("v_lshrrev_b32 v3, 4, v1")
            I("v_lshrrev_b32 v4, 2, v2")
            I("v_cmp_eq_u32 vcc, v3, v4")
            I("v_and_b32 v4, 1, v2")
            I("v_lshlrev_b32 v4, 4, v4")
            I("v_mov_b32 v3, 0x3f80")
            I("v_lshlrev_b32 v3, v4, v3")
            I("v_cndmask_b32 v3, 0, v3, vcc")
            I("v_bfe_u32 v4, v2, 1, 1")
            I("v_cmp_eq_u32 vcc, 0, v4")
            I("s_nop 1")
            I(f"v_cndmask_b32 v{SEL}, 0, v3, vcc")
            I(f"v_cndmask_b32 v{SEL+1}, v3, 0, vcc")
            I(f"v_mov_b32 v{SEL+2}, 0")
            I(f"v_mov_b32 v{SEL+3}, 0")
            I(f"v_mov_b32 v{SEL+4}, 0")
            I(f"v_mov_b32 v{SEL+5}, 0")
            I(f"v_mov_b32 v{SEL+6}, v{SEL}")
            I(f"v_mov_b32 v{SEL+7}, v{SEL+1}")
            for rg in R4:
                for c in range(4): I(f"v_mov_b32 v{NEG+4*rg+c}, v{STA+2*rg+1}")
            I("s_nop 1")
        def norm(p, rgs):
            if MN:
                TB = [T2, T2+8]
                def mf(i):
                    rg = rgs[i]; r = raw(rg, p); t = TB[i % 2]
                    for h in range(2):
                        I(f"v_mfma_f32_16x16x32_bf16 v[{t+4*h}:{t+4*h+3}], v[{SEL+4*h}:{SEL+4*h+3}], v[{r}:{r+3}], v[{NEG+4*rg}:{NEG+4*rg+3}]")
                mf(0)
                for i, rg in enumerate(rgs):
                    r = raw(rg, p); R_ = STA + 2*rg; t = TB[i % 2]
                    if i + 1 < len(rgs): mf(i+1)
                    else: I("s_nop 7")
                    if i == 0: I("s_nop 7")
                    for c in range(8): I(f"v_cvt_pk_bf16_f32 v{t+c}, 0, v{t+c}")
                    for c in range(8): I(f"v_mul_f32 v{t+c}, v{t+c}, v{R_}")
                    for c in range(4): I(f"v_cvt_pk_bf16_f32 v{r+c}, v{t+2*c}, v{t+2*c+1}")
                    I(f"ds_write_b128 v6, v[{r}:{r+3}] offset:{(p & 1)*XP + rg*8*XR}")
                return
            for rg in rgs:
                r = raw(rg, p); R_, M_ = STA + 2*rg, STA + 2*rg + 1
                if "nonorm" not in FLAGS:
                    for c in range(4):
                        lo16(TT+2*c, r+c); hi16(TT+2*c+1, r+c)
                    for c in range(8): I(f"v_add_f32 v{TT+c}, v{TT+c}, v{M_}")
                    for c in range(8): I(f"v_cvt_pk_bf16_f32 v{TT+c}, 0, v{TT+c}")
                    for c in range(8): I(f"v_mul_f32 v{TT+c}, v{TT+c}, v{R_}")
                    for c in range(4): I(f"v_cvt_pk_bf16_f32 v{r+c}, v{TT+2*c}, v{TT+2*c+1}")
                I(f"ds_write_b128 v6, v[{r}:{r+3}] offset:{(p & 1)*XP + rg*8*XR}")
        WLK = 3; PFK = 0
        for f_ in FLAGS:
            if f_.startswith("wlk"): WLK = int(f_[3:])
            if f_.startswith("pfk"): PFK = int(f_[3:])
        for k in range(NST):
            if k == 0:
                norm(0, (0, 1, 2, 3))
                if kind == "prod": pdma(3); pdma(4)
            else:
                if kind == "prod" and k >= 2 and k - 2 + DWP < NST: pdma(k - 2 + DWP)
                p = (k-1)//2 + 1
                if p < 10: norm(p, (0, 1) if (k-1) % 2 == 0 else (2, 3))
            if kind == "wdt" and k == PFK and "nopfm" not in FLAGS:
                for i in range(13):
                    I(f"buffer_load_dwordx4 v[60:63], v5, s[28:31], s27 offen")
                    I("s_add_u32 s27, s27, 1024")
            if kind == "wdt" and k == WLK:
                for i in range(8):
                    b = 20 if i < 4 else 21
                    I(f"buffer_load_dwordx4 v[{RAW+4*i}:{RAW+3+4*i}], v{b}, s[8:11], 0 offen offset:{(i%4)*1280}")
            if k == 1:
                for rg in R4:
                    I(f"buffer_store_dwordx2 v[{STA+2*rg}:{STA+2*rg+1}], v7, s[20:23], 0 offen offset:{64*rg}")
                    vq.append(("S", rg))
            if kind == "wdt" and k == WLK + 5:
                I("s_cmp_ge_u32 s46, 270")
                I("s_cbranch_scc1 G1_hwskip")
                I("s_waitcnt vmcnt(0)")
                for dd in range(8):
                    ob = RAW + 32 + 4*dd
                    sel = 36 + (dd & 1)
                    for q in range(4):
                        I(f"v_perm_b32 v{ob+q}, v{RAW+4*(2*q+1)+dd//2}, v{RAW+4*(2*q)+dd//2}, s{sel}")
                for dd in range(8):
                    ob = RAW + 32 + 4*dd
                    I(f"buffer_store_dwordx4 v[{ob}:{ob+3}], v22, s[32:35], 0 offen offset:{16*dd}")
                e("G1_hwskip:")
            if kind == "prod": vwait(lambda t: t == ("D", k))
            I("s_waitcnt lgkmcnt(0)")
            I("s_barrier")
        I("s_endpgm")
    helper("prod")
    e("G1_hw:")
    helper("wdt")
    e("G1_cons:")
    if "prio" in FLAGS: I("s_setprio 3")
    I("s_and_b32 s31, s3, 1")
    I("s_lshr_b32 s33, s3, 1")
    I("s_lshl_b32 s27, s24, 3")
    I("s_lshl_b32 s26, s31, 2")
    I("s_add_u32 s26, s26, s27")
    I("s_mul_i32 s27, s26, 55296")
    I("v_lshl_add_u32 v9, v1, 4, s27")
    I("v_bfe_u32 v17, v0, 4, 2")
    I("v_and_b32 v18, 15, v0")
    I(f"v_mul_u32_u24 v6, {XR}, v18")
    I("v_lshl_add_u32 v6, v17, 4, v6")
    I(f"s_mul_i32 s30, s31, {64*XR}")
    I(f"s_add_u32 s30, s30, {XB}")
    I("v_add_u32 v6, s30, v6")
    I("v_bfe_u32 v18, v0, 2, 2")
    I("v_lshl_add_u32 v19, v17, 3, v18")
    I(f"v_mul_u32_u24 v19, {RS}, v19")
    I("v_and_b32 v18, 3, v0")
    I("v_lshl_add_u32 v19, v18, 3, v19")
    I("s_mul_i32 s27, s33, 160")
    I("v_add_u32 v19, s27, v19")
    I("v_and_b32 v20, 1, v17")
    I("v_lshlrev_b32 v20, 5, v20")
    I("s_lshl_b32 s27, s33, 1")
    I("s_sub_u32 s27, 1, s27")
    I("v_mul_lo_u32 v20, v20, s27")
    I("v_add_u32 v11, v19, v20")
    I("v_sub_u32 v12, v19, v20")
    for rg in (1,):
        I(f"v_add_u32 v{11+2*rg}, {rg*3*SL}, v11")
        I(f"v_add_u32 v{12+2*rg}, {rg*3*SL}, v12")
    I("s_waitcnt lgkmcnt(0)")
    srd(20, 6, SZ_H, WS_H)
    BB = 24; AF = 56; ACC = 80; LA = 2
    for f_ in FLAGS:
        if f_.startswith("la"): LA = int(f_[2:])
    def acc(m, j, js): return ACC + ((m*5 + j)*4 + js)*4
    seq = [(m, j) for m in range(2) for j in range(5)]
    NQ = len(seq)
    dq = []
    def dwait(tags):
        idxs = [i for i, t in enumerate(dq) if t in tags]
        if not idxs: return
        idx = max(idxs); n = len(dq) - 1 - idx
        assert n <= 15
        I(f"s_waitcnt lgkmcnt({n})")
        del dq[:idx+1]
    def rdx(gpos):
        st, idx = divmod(gpos, NQ)
        m, j = seq[idx]
        slot = st % NS
        a = AF + (gpos % 4)*4
        va = 11 + 2*(slot // 3) + (j & 1)
        off = (slot % 3)*SL + m*MS + j*32
        return [f"ds_read_b64_tr_b16 v[{a}:{a+1}], v{va} offset:{off}",
                f"ds_read_b64_tr_b16 v[{a+2}:{a+3}], v{va} offset:{off+4*RS}"]
    def xrd(st, js):
        b = BB + (st & 1)*16 + js*4
        I(f"ds_read_b128 v[{b}:{b+3}], v6 offset:{((st >> 1) & 1)*XP + js*16*XR + (st & 1)*64}")
        dq.append(("X", st))
    stamp()
    I("s_barrier")
    stamp()
    for js in range(4): xrd(0, js)
    for i in range(LA):
        for x in rdx(i): I(x); dq.append(("A", i))
    for st in range(NST):
        if st + 1 < NST: I("s_barrier")
        if "stamp3" in FLAGS and st in (1, 5, 10): stamp()
        for idx in range(NQ):
            gpos = st*NQ + idx
            rr = rdx(gpos + LA) if gpos + LA < NST*NQ else None
            dwait([("A", gpos), ("X", st)])
            m, j = seq[idx]
            a = AF + (gpos % 4)*4
            for js in range(4):
                c = acc(m, j, js); b = BB + (st & 1)*16 + js*4
                cc = "0" if st == 0 else f"v[{c}:{c+3}]"
                I(f"v_mfma_f32_16x16x32_bf16 v[{c}:{c+3}], v[{a}:{a+3}], v[{b}:{b+3}], {cc}")
                if rr and js < 2: I(rr[js]); dq.append(("A", gpos + LA))
                if js == 2 and st + 1 < NST and 1 <= idx <= 4: xrd(st + 1, idx - 1)
    stamp()
    I("s_lshr_b32 s34, s25, 5")
    I("s_lshl_b32 s34, s34, 10")
    I("s_nop 7")
    I("s_nop 3")
    cnt = [0]
    def hq(j, js, dst, t):
        g = acc(0, j, js); u = acc(1, j, js)
        I(f"v_cvt_pk_bf16_f32 v{t}, v{g}, v{g+1}")
        I(f"v_cvt_pk_bf16_f32 v{t+1}, v{g+2}, v{g+3}")
        I(f"v_cvt_pk_bf16_f32 v{t+2}, v{u}, v{u+1}")
        I(f"v_cvt_pk_bf16_f32 v{t+3}, v{u+2}, v{u+3}")
        lo16(g, t); hi16(g+1, t); lo16(g+2, t+1); hi16(g+3, t+1)
        lo16(u, t+2); hi16(u+1, t+2); lo16(u+2, t+3); hi16(u+3, t+3)
        for r in range(4):
            I(f"v_mul_f32 v{g+r}, v{g+r}, v{u+r}")
        I(f"v_cvt_pk_bf16_f32 v{dst}, v{g}, v{g+1}")
        I(f"v_cvt_pk_bf16_f32 v{dst+1}, v{g+2}, v{g+3}")
    def epi(fq):
        units = [((0, 1), 0, 0), ((2, 3), 1, 0), ((4,), 2, 0)] if fq == 0 else [((0,), 2, 8), ((1, 2), 3, 0), ((3, 4), 4, 0)]
        for js in range(4):
            I(f"s_add_u32 s35, s34, {js*55296}")
            I(f"s_add_u32 s36, s34, {js*55296 + 4096}")
            for (jl, blk, ho) in units:
                t = 24 + (cnt[0] % 4) * 12; cnt[0] += 1
                for hh, j in enumerate(jl): hq(j, js, t+4+2*hh, t)
                so, off = ("s35", 1024*blk + ho) if blk < 4 else ("s36", ho)
                if len(jl) == 2:
                    I(f"buffer_store_dwordx4 v[{t+4}:{t+7}], v9, s[20:23], {so} offen offset:{off}")
                else:
                    I(f"buffer_store_dwordx2 v[{t+4}:{t+5}], v9, s[20:23], {so} offen offset:{off}")
    I("s_cmp_eq_u32 s33, 0")
    I("s_cbranch_scc0 G1_epi1")
    epi(0)
    I("s_branch G1_epid")
    e("G1_epi1:")
    epi(1)
    e("G1_epid:")
    if STAMP: I("s_waitcnt vmcnt(0)")
    stamp()
    stamp_dump(5)
    wgt_end(1)
    I("s_endpgm")

def gen_g1b():
    NF = 10; RS = 320; MS = 32*RS; SL = 2*MS; NS = 6; NST = 20; NX = 4
    XB = NS*SL
    XS = 8192
    STB = XB + NX*XS
    CSB = STB + 1024
    I(f"s_mul_i32 s25, s25, {16*NF}")
    I(f"s_min_u32 s25, s25, {F-16*NF}")
    I("v_and_b32 v1, 63, v0")
    for f_ in FLAGS:
        if f_.startswith("gdel"): I(f"s_sleep {int(f_[4:])}")
    I("s_cmp_lt_u32 s3, 4")
    I("s_cbranch_scc1 G1_cons")
    I("s_and_b32 s26, s3, 3")
    I("s_lshl_b32 s27, s24, 7")
    I("s_lshl_b32 s28, s26, 5")
    I("s_add_u32 s27, s27, s28")
    I("v_lshrrev_b32 v12, 2, v1")
    I("v_bfe_u32 v11, v1, 3, 2")
    I("v_xor_b32 v11, v11, v1")
    I("v_and_b32 v11, 3, v11")
    I("v_add_u32 v13, s27, v12")
    I("v_lshlrev_b32 v7, 3, v13")
    I("v_mul_u32_u24 v13, 0x500, v13")
    I("v_lshl_add_u32 v13, v11, 4, v13")
    I(f"v_add_u32 v14, {16*1280-1024}, v13")
    I("s_lshl_b32 s30, s26, 11")
    I(f"s_add_u32 s30, s30, {XB}")
    I("v_lshl_add_u32 v6, v1, 4, s30")
    I("s_lshl_b32 s28, s26, 8")
    I(f"s_add_u32 s28, s28, {STB}")
    I("v_lshl_add_u32 v5, v12, 3, s28")
    I("s_lshl_b32 s27, s25, 1")
    I("s_and_b32 s28, s26, 1")
    I("s_mul_i32 s28, s28, 320")
    for i in range(5):
        I(f"v_add_u32 v20, s28, v1")
        if i: I(f"v_add_u32 v20, {64*i}, v20")
        I("v_mul_u32_u24 v21, 3277, v20")
        I("v_lshrrev_b32 v21, 16, v21")
        I("v_mul_u32_u24 v22, 20, v21")
        I("v_sub_u32 v22, v20, v22")
        I("v_bfe_u32 v23, v21, 3, 1")
        I("v_lshlrev_b32 v23, 1, v23")
        I("v_xor_b32 v22, v22, v23")
        I("v_mul_u32_u24 v21, 3456, v21")
        I("v_lshl_add_u32 v21, v22, 4, v21")
        I("v_add_u32 v21, s27, v21")
        I(f"v_subrev_u32 v{24+i}, {1024*(i%4)}, v21")
    I("s_mul_i32 s29, s26, 5120")
    I("s_waitcnt lgkmcnt(0)")
    HST = "zst" in FLAGS
    if HST: stamp()
    I("s_cmp_ge_u32 s26, 2")
    I("s_cselect_b32 s4, s18, s16")
    I("s_cselect_b32 s5, s19, s17")
    srd(8, 4, SZ_W)
    srd(12, 44, SZ_SD)
    vq = []
    def vwait(pred):
        idxs = [i for i, t in enumerate(vq) if pred(t)]
        if not idxs: return
        idx = max(idxs)
        n = len(vq) - 1 - idx
        assert n <= 63
        I(f"s_waitcnt vmcnt({n})")
        del vq[:idx+1]
    ROT = "krot" in FLAGS or "krotq" in FLAGS
    if ROT:
        if "krotq" in FLAGS:
            I("s_lshr_b32 s51, s24, 2")
            I("s_mul_i32 s51, s51, 5")
        else:
            I("s_mul_i32 s51, s24, 5")
            I("s_lshr_b32 s51, s51, 2")
        I(f"s_mul_i32 s50, s51, {32*3456}")
        I("s_lshl_b32 s51, s51, 6")
    def wdma(st):
        ops = []
        for i in range(5):
            pre = []
            if i == 0 and not ROT: pre.append(f"s_mov_b32 s28, {st*32*3456}")
            if i == 0 and ROT: pre += ["s_mov_b32 s28, s50", f"s_add_u32 s50, s50, {32*3456}", f"s_cmp_eq_u32 s50, {640*3456}", "s_cselect_b32 s50, 0, s50"]
            if i % 4 == 0: pre.append(f"s_add_u32 m0, s29, {(st % NS)*SL + (i//4)*4096}")
            ops.append(pre + [(f"buffer_load_dwordx4 v{24+i}, s[8:11], s28 offen offset:{1024*(i%4)} lds", ("W", st))])
        return ops
    def xdma(st):
        ops = []
        for i in range(2):
            pre = []
            if i == 0 and not ROT: pre += [f"s_movk_i32 s31, {st*64}", f"s_add_u32 m0, s30, {(st % NX)*XS}"]
            if i == 0 and ROT: pre += ["s_mov_b32 s31, s51", "s_add_u32 s51, s51, 64", "s_cmpk_eq_u32 s51, 1280", "s_cselect_b32 s51, 0, s51", f"s_add_u32 m0, s30, {(st % NX)*XS}"]
            ops.append(pre + [(f"buffer_load_dwordx4 v{13+i}, s[12:15], s31 offen offset:{1024*i} lds", ("X", st))])
        return ops
    def emit(group):
        for x in group:
            if isinstance(x, tuple): I(x[0]); vq.append(x[1])
            else: I(x)
    P0 = NS
    for f_ in FLAGS:
        if f_.startswith("p0_"): P0 = int(f_[3:])
    nxt = {"W": 0, "X": 0}
    HS = 0
    for f_ in FLAGS:
        if f_.startswith("hs"): HS = int(f_[2:])
    P1 = NS
    for f_ in FLAGS:
        if f_.startswith("p1_"): P1 = int(f_[3:])
    for st in range(P1 if HS else P0):
        if HS and st == P0: I(f"s_sleep {HS}")
        if st < NX:
            for g_ in xdma(st): emit(g_)
            nxt["X"] = st + 1
        for g_ in wdma(st): emit(g_)
        nxt["W"] = st + 1
        if HST and st in (0, 1) and "zk2" not in FLAGS: stamp()
    if HST and "zk2" not in FLAGS: stamp()
    srd(20, 6, S*8, WS_ST)
    I("s_load_dwordx2 s[4:5], s[0:1], 72")
    I("s_min_u32 s48, s46, 269")
    I("s_mul_i32 s17, s48, 0xCCCD")
    I("s_lshr_b32 s17, s17, 19")
    I("s_mul_i32 s18, s17, 10")
    I("s_sub_u32 s18, s48, s18")
    I("v_and_b32 v23, 7, v0")
    I("v_bfe_u32 v17, v0, 3, 2")
    I("v_bfe_u32 v18, v0, 5, 1")
    I("s_lshl_b32 s18, s18, 6")
    I("v_lshl_add_u32 v23, v23, 3, s18")
    I("s_lshl_b32 s19, s17, 1")
    I("v_add_u32 v18, s19, v18")
    I("v_lshlrev_b32 v19, 5, v18")
    I("v_lshl_add_u32 v19, v17, 2, v19")
    I("v_mul_u32_u24 v20, 0x500, v19")
    I("v_lshl_add_u32 v20, v23, 1, v20")
    I("v_add_u32 v21, 0x5000, v20")
    I("s_mov_b32 s36, 0x05040100")
    I("s_mov_b32 s37, 0x07060302")
    I("v_lshrrev_b32 v22, 4, v23")
    I("v_mul_u32_u24 v22, 54, v22")
    I("v_add_u32 v22, v22, v18")
    I("v_lshlrev_b32 v22, 10, v22")
    I("v_lshl_add_u32 v22, v17, 8, v22")
    I("v_and_b32 v19, 15, v23")
    I("v_lshl_add_u32 v22, v19, 4, v22")
    I("s_cmp_lt_u32 s46, 270")
    I(f"s_cselect_b32 s49, {SZ_W}, 0")
    I("s_waitcnt lgkmcnt(0)")
    srd(40, 4, SZ_W)
    srd(32, 6, SZ_W, WS_WDT)
    I("s_mov_b32 s42, s49")
    I("s_mov_b32 s34, s49")
    XA = 32; TT = 40; SM = 48; SQ = 50; STA = 52; RAW = 64
    for j in range(4): I(f"v_mov_b32 v{SM+j}, 0")
    WLK = 6; WPK = 10
    for f_ in FLAGS:
        if f_.startswith("wlk"): WLK = int(f_[3:])
        if f_.startswith("wpk"): WPK = int(f_[3:])
    def statops():
        ops = []
        for rg in range(2):
            for c in range(4):
                r = XA + 4*rg + c; t = TT + 2*(c & 1)
                ops += [f"v_lshlrev_b32 v{t}, 16, v{r}", f"v_and_b32 v{t+1}, 0xffff0000, v{r}",
                        f"v_add_f32 v{SM+rg}, v{SM+rg}, v{t}", f"v_fmac_f32 v{SQ+rg}, v{t}, v{t}",
                        f"v_add_f32 v{SM+rg}, v{SM+rg}, v{t+1}", f"v_fmac_f32 v{SQ+rg}, v{t+1}, v{t+1}"]
        return ops
    for k in range(NST + 1):
        dm = []
        if k >= 1:
            for _ in range(2):
                if nxt["X"] <= min(NST-1, max(NX-1, k+2)): dm += xdma(nxt["X"]); nxt["X"] += 1
                if nxt["W"] <= min(NST-1, max(NS-1, k+3)): dm += wdma(nxt["W"]); nxt["W"] += 1
        if k == WLK:
            for i in range(8):
                b = 20 if i < 4 else 21
                dm.append([(f"buffer_load_dwordx4 v[{RAW+4*i}:{RAW+3+4*i}], v{b}, s[40:43], 0 offen offset:{(i%4)*1280}", ("T", 0))])
        va = []
        if k >= 1:
            for rg in range(2):
                I(f"ds_read_b128 v[{XA+4*rg}:{XA+4*rg+3}], v6 offset:{((k-1) % NX)*XS + 1024*rg}")
            va = statops() if "nostat" not in FLAGS else []
        if WPK <= k < WPK + 4:
            for dd in range(2*(k-WPK), 2*(k-WPK)+2):
                ob = RAW + 32 + 4*dd
                sel = 36 + (dd & 1)
                for q in range(4):
                    va.append(f"v_perm_b32 v{ob+q}, v{RAW+4*(2*q+1)+dd//2}, v{RAW+4*(2*q)+dd//2}, s{sel}")
                va.append((f"buffer_store_dwordx4 v[{ob}:{ob+3}], v22, s[32:35], 0 offen offset:{16*dd}", ("S", 0)))
        nfirst = min(2, len(dm))
        for g_ in dm[:nfirst]: emit(g_)
        rest = dm[nfirst:]
        if k == WPK: vwait(lambda t: t[0] == "T")
        if va: I("s_waitcnt lgkmcnt(0)")
        step = max(1, len(va) // (len(rest) + 1)) if rest else 0
        ri = 0
        for i, o in enumerate(va):
            emit([o])
            if rest and ri < len(rest) and (i + 1) % step == 0:
                emit(rest[ri]); ri += 1
        for g_ in rest[ri:]: emit(g_)
        if k < NST:
            ZK = (0, 1, 2) if "zk2" not in FLAGS else (3, 4, 5)
            if HST and k in ZK: stamp()
            vwait(lambda t: t in (("W", k), ("X", k)))
            if HST and k in ZK: stamp()
            I("s_barrier")
            if HST and k in ZK and "zk2" in FLAGS: stamp()
    V4 = [SM, SM+1, SQ, SQ+1]
    I("s_nop 1")
    for dpp in ("quad_perm:[1,0,3,2]", "quad_perm:[2,3,0,1]"):
        for i, a in enumerate(V4): I(f"v_add_f32_dpp v{TT+i}, v{a}, v{a} {dpp} row_mask:0xf bank_mask:0xf")
        for i, a in enumerate(V4): I(f"v_mov_b32 v{a}, v{TT+i}")
    R2 = range(2)
    for a in V4: I(f"v_mul_f32 v{a}, {1.0/640.0!r}, v{a}")
    for rg in R2: I(f"v_fma_f32 v{SQ+rg}, -v{SM+rg}, v{SM+rg}, v{SQ+rg}")
    for rg in R2:
        I(f"v_cvt_pk_bf16_f32 v{STA+2*rg+1}, 0, -v{SM+rg}")
        I(f"v_cvt_pk_bf16_f32 v{SQ+rg}, 0, v{SQ+rg}")
    for rg in R2: I(f"v_add_f32 v{SQ+rg}, {1e-5!r}, v{SQ+rg}")
    for rg in R2: I(f"v_cvt_pk_bf16_f32 v{SQ+rg}, 0, v{SQ+rg}")
    for rg in R2: I(f"v_sqrt_f32 v{SQ+rg}, v{SQ+rg}")
    I("s_nop 0")
    for rg in R2: I(f"v_cvt_pk_bf16_f32 v{SQ+rg}, 0, v{SQ+rg}")
    for rg in R2: I(f"v_rcp_f32 v{STA+2*rg}, v{SQ+rg}")
    I("s_nop 0")
    for rg in R2: I(f"ds_write_b64 v5, v[{STA+2*rg}:{STA+2*rg+1}] offset:{128*rg}")
    I("s_waitcnt lgkmcnt(0)")
    I("s_barrier")
    for rg in R2: I(f"buffer_store_dwordx2 v[{STA+2*rg}:{STA+2*rg+1}], v7, s[20:23], 0 offen offset:{128*rg}")
    if HST:
        stamp_dump(5); nst[0] = 1
    I("s_endpgm")
    e("G1_cons:")
    I("s_and_b32 s31, s3, 1")
    I("s_lshr_b32 s33, s3, 1")
    I("s_lshl_b32 s27, s24, 3")
    I("s_lshl_b32 s26, s31, 2")
    I("s_add_u32 s26, s26, s27")
    I("s_mul_i32 s27, s26, 55296")
    I("v_lshl_add_u32 v9, v1, 4, s27")
    I("v_bfe_u32 v17, v0, 4, 2")
    I("v_and_b32 v18, 15, v0")
    I("v_bfe_u32 v19, v0, 1, 2")
    I("v_xor_b32 v19, v19, v17")
    I("v_lshlrev_b32 v6, 6, v18")
    I("v_lshl_add_u32 v6, v19, 4, v6")
    I("s_lshl_b32 s30, s31, 12")
    I(f"s_add_u32 s30, s30, {XB}")
    I("v_add_u32 v6, s30, v6")
    I("s_lshl_b32 s30, s31, 9")
    I(f"s_add_u32 s30, s30, {STB}")
    I("v_lshl_add_u32 v7, v18, 3, s30")
    I("s_mul_i32 s30, s3, 320")
    I(f"s_add_u32 s30, s30, {CSB}")
    I("v_lshl_add_u32 v8, v17, 4, s30")
    I("s_xor_b32 s30, s3, 1")
    I("s_mul_i32 s30, s30, 320")
    I(f"s_add_u32 s30, s30, {CSB}")
    I("v_lshl_add_u32 v10, v17, 4, s30")
    I("v_bfe_u32 v18, v0, 2, 2")
    I("v_lshl_add_u32 v19, v17, 3, v18")
    I(f"v_mul_u32_u24 v19, {RS}, v19")
    I("v_and_b32 v18, 3, v0")
    I("v_lshl_add_u32 v19, v18, 3, v19")
    I("s_mul_i32 s27, s33, 160")
    I("v_add_u32 v19, s27, v19")
    I("v_and_b32 v18, 1, v17")
    I("v_lshlrev_b32 v18, 5, v18")
    I("s_lshl_b32 s27, s33, 1")
    I("s_sub_u32 s27, 1, s27")
    I("v_mul_lo_u32 v18, v18, s27")
    I(f"s_mul_i32 s27, s31, {MS}")
    I(f"s_sub_u32 s28, {MS}, s27")
    I("v_add_u32 v2, v19, v18")
    I("v_sub_u32 v3, v19, v18")
    for mm in range(2):
        for rg in range(2):
            for par in range(2):
                d = 11 + 4*mm + 2*rg + par
                I(f"v_add_u32 v{d}, s{27+mm}, v{2+par}")
                if rg: I(f"v_add_u32 v{d}, {3*SL}, v{d}")
    BB = 20; AF = 52; ONE = 68; CS = 72; ACC = 92; LA = 2
    for f_ in FLAGS:
        if f_.startswith("la"): LA = int(f_[2:])
    for j in range(4): I(f"v_mov_b32 v{ONE+j}, 0x3f803f80")
    I("s_waitcnt lgkmcnt(0)")
    srd(20, 6, SZ_H, WS_H)
    PFD = 0
    for f_ in FLAGS:
        if f_.startswith("pfd"): PFD = int(f_[3:])
    PFW = [None]
    if PFD:
        I("s_cmp_eq_u32 s3, 1")
        I("s_cselect_b32 s8, s18, s16")
        I("s_cselect_b32 s9, s19, s17")
        I("s_cmp_eq_u32 s3, 2")
        I("s_cselect_b32 s8, s44, s8")
        I("s_cselect_b32 s9, s45, s9")
        I(f"s_mov_b32 s10, {SZ_W}")
        I(f"s_cselect_b32 s10, {SZ_SD}, s10")
        I("s_mov_b32 s11, 0x00020000")
        I("s_cselect_b32 s12, 24, 20")
        I(f"s_mov_b32 s13, {128*3456}")
        I(f"s_cselect_b32 s13, 256, s13")
        I("s_cmp_eq_u32 s3, 3")
        I("s_cselect_b32 s12, 0, s12")
        I("s_mul_i32 s14, s47, s12")
        I("v_add_u32 v4, s14, v1")
        I("v_lshlrev_b32 v5, 7, v4")
        I("v_lshrrev_b32 v19, 1, v4")
        I("v_mul_u32_u24 v19, 0x500, v19")
        I("v_and_b32 v4, 1, v4")
        I("v_lshl_add_u32 v4, v4, 7, v19")
        I("v_min_u32 v5, 442240, v5")
        I("s_cmp_eq_u32 s3, 2")
        I("s_cselect_b64 vcc, -1, 0")
        I("v_cndmask_b32 v4, v5, v4, vcc")
        I("v_cmp_gt_u32 s[14:15], s12, v1")
        I("s_mov_b32 s16, 0")
        if "pfs0" in FLAGS: I("s_mov_b32 s16, s13")
        def pf():
            I("s_mov_b64 exec, s[14:15]")
            I("buffer_load_dword v19, v4, s[8:11], s16 offen")
            I("s_mov_b64 exec, -1")
            I("s_add_u32 s16, s16, s13")
        PFW[0] = pf
        PQ = [0]*5
        for f_ in FLAGS:
            if f_.startswith("pq"): PQ = [int(x) for x in f_[2:].split("_")]
        for g_ in range(1 if "pfs0" in FLAGS else 0, min(5, PFD)):
            if PQ[g_]: I(f"s_sleep {PQ[g_]}")
            pf()
    WPF = -1
    for f_ in FLAGS:
        if f_.startswith("wpf"): WPF = int(f_[3:])
    if WPF >= 0:
        I("s_load_dwordx2 s[36:37], s[0:1], 72")
        I("s_and_b32 s38, s3, 1")
        I("s_mul_i32 s38, s38, 176")
        I("s_add_u32 s38, s38, s47")
        I("s_min_u32 s38, s38, 269")
        I("s_mul_i32 s39, s38, 0xCCCD")
        I("s_lshr_b32 s39, s39, 19")
        I("s_mul_i32 s40, s39, 10")
        I("s_sub_u32 s40, s38, s40")
        I("s_mul_i32 s41, s39, 81920")
        I("s_lshl_b32 s40, s40, 7")
        I("s_add_u32 s41, s41, s40")
        I("v_mul_u32_u24 v5, 0x500, v1")
        I("s_cmp_ge_u32 s3, 2")
        I(f"s_cselect_b32 s38, {SZ_W}, 0")
        I("s_mov_b32 s39, 0x00020000")
        I("s_waitcnt lgkmcnt(0)")
    def acc(m, j, js): return ACC + ((m*5 + j)*4 + js)*4
    seq = [(m, j) for m in range(2) for j in range(5)]
    NQ = len(seq)
    dq = []
    def dwait(tags):
        idxs = [i for i, t in enumerate(dq) if t in tags]
        if not idxs: return
        idx = max(idxs); n = len(dq) - 1 - idx
        assert n <= 15
        I(f"s_waitcnt lgkmcnt({n})")
        del dq[:idx+1]
    def rdx(gpos):
        st, idx = divmod(gpos, NQ)
        m, j = seq[idx]
        slot = st % NS
        a = AF + (gpos % 4)*4
        va = 11 + 4*m + 2*(slot // 3) + (j & 1)
        off = (slot % 3)*SL + j*32
        return [f"ds_read_b64_tr_b16 v[{a}:{a+1}], v{va} offset:{off}",
                f"ds_read_b64_tr_b16 v[{a+2}:{a+3}], v{va} offset:{off+4*RS}"]
    def xrd(st, js):
        b = BB + (st & 1)*16 + js*4
        I(f"ds_read_b128 v[{b}:{b+3}], v6 offset:{(st % NX)*XS + js*1024}")
        dq.append(("X", st))
    stamp()
    I("s_barrier")
    stamp()
    for js in range(4): xrd(0, js)
    for i in range(LA):
        for x in rdx(i): I(x); dq.append(("A", i))
    for st in range(NST):
        if st + 1 < NST: I("s_barrier")
        if "stamp3" in FLAGS and st in (1, 5, 10): stamp()
        PFE = 4
        for f_ in FLAGS:
            if f_.startswith("pfe"): PFE = int(f_[3:])
        if PFD and st % PFE == 0 and st//PFE + PFD < (3 if ("cpf" in FLAGS or "cpf0" in FLAGS) else 5): PFW[0]()
        if st == WPF: I("buffer_load_dword v254, v5, s[36:39], s41 offen")
        for idx in range(NQ):
            gpos = st*NQ + idx
            rr = rdx(gpos + LA) if gpos + LA < NST*NQ else None
            dwait([("A", gpos), ("X", st)])
            m, j = seq[idx]
            a = AF + (gpos % 4)*4
            for js in range(4):
                c = acc(m, j, js); b = BB + (st & 1)*16 + js*4
                cc = "0" if st == 0 else f"v[{c}:{c+3}]"
                I(f"v_mfma_f32_16x16x32_bf16 v[{c}:{c+3}], v[{a}:{a+3}], v[{b}:{b+3}], {cc}")
                if rr and js < 2: I(rr[js]); dq.append(("A", gpos + LA))
                if js == 2 and st + 1 < NST and 1 <= idx <= 4: xrd(st + 1, idx - 1)
            if m == 0 and "nocs" not in FLAGS:
                c = CS + 4*j
                cc = "0" if st == 0 else f"v[{c}:{c+3}]"
                I(f"v_mfma_f32_16x16x32_bf16 v[{c}:{c+3}], v[{a}:{a+3}], v[{ONE}:{ONE+3}], {cc}")
    stamp()
    for j in range(5): I(f"ds_write_b128 v8, v[{CS+4*j}:{CS+4*j+3}] offset:{64*j}")
    I("s_lshr_b32 s34, s25, 5")
    I("s_lshl_b32 s34, s34, 10")
    I("s_waitcnt lgkmcnt(0)")
    I("s_barrier")
    CP2 = 20; STR = 40
    for js in range(4): I(f"ds_read_b64 v[{STR+2*js}:{STR+2*js+1}], v7 offset:{128*js}")
    for j in range(5): I(f"ds_read_b128 v[{CP2+4*j}:{CP2+4*j+3}], v10 offset:{64*j}")
    for m in range(2):
        I(f"s_waitcnt lgkmcnt({5 if m == 0 else 0})")
        for j in range(5):
            cs = (CS if m == 0 else CP2) + 4*j
            for js in range(4):
                c = acc(m, j, js); sr = STR + 2*js
                for hh in range(2):
                    I(f"v_pk_fma_f32 v[{c+2*hh}:{c+2*hh+1}], v[{cs+2*hh}:{cs+2*hh+1}], v[{sr}:{sr+1}], v[{c+2*hh}:{c+2*hh+1}] op_sel:[0,1,0] op_sel_hi:[1,1,1]")
            for js in range(4):
                c = acc(m, j, js); sr = STR + 2*js
                for hh in range(2):
                    I(f"v_pk_mul_f32 v[{c+2*hh}:{c+2*hh+1}], v[{c+2*hh}:{c+2*hh+1}], v[{sr}:{sr+1}] op_sel:[0,0] op_sel_hi:[1,0]")
    cnt = [0]
    def hq(j, js, dst, t):
        g = acc(0, j, js); u = acc(1, j, js)
        I(f"v_cvt_pk_bf16_f32 v{t}, v{g}, v{g+1}")
        I(f"v_cvt_pk_bf16_f32 v{t+1}, v{g+2}, v{g+3}")
        I(f"v_cvt_pk_bf16_f32 v{t+2}, v{u}, v{u+1}")
        I(f"v_cvt_pk_bf16_f32 v{t+3}, v{u+2}, v{u+3}")
        lo16(g, t); hi16(g+1, t); lo16(g+2, t+1); hi16(g+3, t+1)
        lo16(u, t+2); hi16(u+1, t+2); lo16(u+2, t+3); hi16(u+3, t+3)
        for r in range(4):
            I(f"v_mul_f32 v{g+r}, v{g+r}, v{u+r}")
        I(f"v_cvt_pk_bf16_f32 v{dst}, v{g}, v{g+1}")
        I(f"v_cvt_pk_bf16_f32 v{dst+1}, v{g+2}, v{g+3}")
    def epi(fq):
        units = [((0, 1), 0, 0), ((2, 3), 1, 0), ((4,), 2, 0)] if fq == 0 else [((0,), 2, 8), ((1, 2), 3, 0), ((3, 4), 4, 0)]
        for js in range(4):
            I(f"s_add_u32 s35, s34, {js*55296}")
            I(f"s_add_u32 s36, s34, {js*55296 + 4096}")
            for (jl, blk, ho) in units:
                t = 24 + (cnt[0] % 4) * 12; cnt[0] += 1
                for hh, j in enumerate(jl): hq(j, js, t+4+2*hh, t)
                so, off = ("s35", 1024*blk + ho) if blk < 4 else ("s36", ho)
                if len(jl) == 2:
                    I(f"buffer_store_dwordx4 v[{t+4}:{t+7}], v9, s[20:23], {so} offen offset:{off}")
                else:
                    I(f"buffer_store_dwordx2 v[{t+4}:{t+5}], v9, s[20:23], {so} offen offset:{off}")
    I("s_cmp_eq_u32 s33, 0")
    I("s_cbranch_scc0 G1_epi1")
    epi(0)
    I("s_branch G1_epid")
    e("G1_epi1:")
    epi(1)
    e("G1_epid:")
    if STAMP: I("s_waitcnt vmcnt(0)")
    stamp()
    stamp_dump(5)
    wgt_end(1)
    I("s_endpgm")

def gen_g1f2():
    NF = 10; RS = 320; MS = 32*RS; SL = 2*MS; NS = 6; NST = 20; DWP = 5
    XB = NS*SL
    XP = 18432; XR = 144
    STL = XB + 2*XP
    CN = "nocn" not in FLAGS
    I(f"s_mul_i32 s25, s25, {16*NF}")
    I(f"s_min_u32 s25, s25, {F-16*NF}")
    I("v_and_b32 v1, 63, v0")
    I("s_and_b32 s26, s3, 3")
    I(f"s_mul_i32 s30, s26, {32*XR}")
    I(f"s_add_u32 s30, s30, {XB}")
    I("s_lshl_b32 s31, s26, 9")
    I(f"s_add_u32 s31, s31, {STL}")
    I("v_lshl_add_u32 v8, v1, 3, s31")
    I("s_lshl_b32 s27, s24, 3")
    I("s_lshl_b32 s26, s26, 1")
    I("s_add_u32 s26, s26, s27")
    I("s_mul_i32 s27, s26, 20480")
    I("v_lshrrev_b32 v12, 3, v1")
    I("v_and_b32 v11, 7, v1")
    I("v_mul_u32_u24 v13, 0x500, v12")
    I("v_lshl_add_u32 v13, v11, 4, v13")
    I("v_add_u32 v13, s27, v13")
    for rg in range(1, 4): I(f"v_add_u32 v{13+rg}, {rg*10240}, v13")
    I(f"v_mul_u32_u24 v5, {XR}, v12")
    I("v_lshl_add_u32 v5, v11, 4, v5")
    I("v_add_u32 v5, s30, v5")
    I("s_cmp_lt_u32 s3, 4")
    I("s_cbranch_scc1 G1_cons")
    RAW = 64
    def raw(rg, p): return RAW + (p*4 + rg)*4
    I("s_lshl_b32 s27, s26, 7")
    I("v_lshl_add_u32 v7, v12, 3, s27")
    I("s_waitcnt lgkmcnt(0)")
    srd(12, 44, SZ_SD)
    srd(20, 6, S*8, WS_ST)
    for p in range(10):
        for rg in range(4):
            r = raw(rg, p)
            I(f"buffer_load_dwordx4 v[{r}:{r+3}], v{13+rg}, s[12:15], 0 offen offset:{128*p}")
    SM = 24; SS = 32; TT = 40; STA = 48
    for j in range(16): I(f"v_mov_b32 v{SM+j}, 0")
    I("s_mov_b32 s49, 0x3f803f80")
    vq = [("Q", i) for i in range(40)]
    def vwait(pred):
        idxs = [i for i, t in enumerate(vq) if pred(t)]
        if not idxs: return
        idx = max(idxs)
        n = len(vq) - 1 - idx
        assert n <= 63
        I(f"s_waitcnt vmcnt({n})")
        del vq[:idx+1]
    def pdma(st):
        I(f"s_mov_b32 s28, {st*32*3456}")
        for i in range(5):
            if i % 4 == 0: I(f"s_add_u32 m0, s29, {(st % NS)*SL + (i//4)*4096}")
            I(f"buffer_load_dwordx4 v{224+i}, s[8:11], s28 offen offset:{1024*(i%4)} lds")
            vq.append(("D", st))
    I("s_lshl_b32 s27, s25, 1")
    I("s_and_b32 s28, s3, 1")
    I("s_lshl_b32 s28, s28, 4")
    for i in range(5):
        I(f"v_add_u32 v20, {64*i}, v1")
        I("v_mul_u32_u24 v21, 3277, v20")
        I("v_lshrrev_b32 v21, 16, v21")
        I("v_mul_u32_u24 v22, 20, v21")
        I("v_sub_u32 v22, v20, v22")
        I("v_add_u32 v21, s28, v21")
        I("v_bfe_u32 v23, v21, 3, 1")
        I("v_lshlrev_b32 v23, 1, v23")
        I("v_xor_b32 v22, v22, v23")
        I("v_mul_u32_u24 v21, 3456, v21")
        I("v_lshl_add_u32 v21, v22, 4, v21")
        I("v_add_u32 v21, s27, v21")
        I(f"v_subrev_u32 v{224+i}, {1024*(i%4)}, v21")
    I("s_sub_u32 s29, s3, 4")
    I("s_mul_i32 s29, s29, 5120")
    I("s_cmp_ge_u32 s3, 6")
    I("s_cselect_b32 s4, s18, s16")
    I("s_cselect_b32 s5, s19, s17")
    srd(8, 4, SZ_W)
    DSCH = {5: [0], 8: [1], 9: [2]}
    for f_ in FLAGS:
        if f_ == "dsch1": DSCH = {3: [0], 6: [1], 9: [2]}
        if f_ == "dsch2": DSCH = {7: [0], 9: [1, 2]}
        if f_ == "dsch3": DSCH = {-1: [0], 5: [1], 9: [2]}
    for st in DSCH.get(-1, []): pdma(st)
    for p in range(10):
        vwait(lambda t: t[0] == "Q" and t[1] <= 4*p + 3)
        for c in range(4):
            for rg in range(4):
                r = raw(rg, p) + c
                I(f"v_dot2_f32_bf16 v{SM+2*rg+(c&1)}, v{r}, s49, v{SM+2*rg+(c&1)}")
                I(f"v_dot2_f32_bf16 v{SS+2*rg+(c&1)}, v{r}, v{r}, v{SS+2*rg+(c&1)}")
        for st in DSCH.get(p, []): pdma(st)
    I("s_nop 3")
    V8 = [SM+2*rg for rg in range(4)] + [SS+2*rg for rg in range(4)]
    for a in V8: I(f"v_add_f32 v{a}, v{a}, v{a+1}")
    for i_, dpp in enumerate(("quad_perm:[1,0,3,2]", "quad_perm:[2,3,0,1]", "row_half_mirror")):
        sr, ds_ = (0, 1) if i_ % 2 == 0 else (1, 0)
        for a in V8: I(f"v_add_f32_dpp v{a+ds_}, v{a+sr}, v{a+sr} {dpp} row_mask:0xf bank_mask:0xf")
    R4 = range(4)
    for a in V8: I(f"v_mul_f32 v{a}, {1.0/640.0!r}, v{a+1}")
    for rg in R4: I(f"v_fma_f32 v{SS+2*rg}, -v{SM+2*rg}, v{SM+2*rg}, v{SS+2*rg}")
    for rg in R4:
        I(f"v_cvt_pk_bf16_f32 v{STA+2*rg+1}, 0, -v{SM+2*rg}")
        I(f"v_cvt_pk_bf16_f32 v{SS+2*rg}, 0, v{SS+2*rg}")
    for rg in R4: I(f"v_add_f32 v{SS+2*rg}, {1e-5!r}, v{SS+2*rg}")
    for rg in R4: I(f"v_cvt_pk_bf16_f32 v{SS+2*rg}, 0, v{SS+2*rg}")
    for rg in R4: I(f"v_sqrt_f32 v{SS+2*rg}, v{SS+2*rg}")
    I("s_nop 0")
    for rg in R4: I(f"v_cvt_pk_bf16_f32 v{SS+2*rg}, 0, v{SS+2*rg}")
    for rg in R4: I(f"v_rcp_f32 v{STA+2*rg}, v{SS+2*rg}")
    I("s_mov_b32 s50, 0x3f80")
    I("s_mov_b32 s51, 0x3f800000")
    if CN: I(f"ds_write_b64 v8, v[{STA+6}:{STA+7}]")
    def norm_ops(r, R_, M_, tt, wr, fast=False):
        o = []
        if fast:
            for c in range(4):
                o.append(f"v_dot2_f32_bf16 v{tt+2*c}, v{r+c}, s50, v{M_}")
                o.append(f"v_dot2_f32_bf16 v{tt+2*c+1}, v{r+c}, s51, v{M_}")
            for c in range(8): o.append(f"v_cvt_pk_bf16_f32 v{tt+c}, 0, v{tt+c}")
            for c in range(4): o.append(f"v_pk_mul_f32 v[{tt+2*c}:{tt+2*c+1}], v[{tt+2*c}:{tt+2*c+1}], v[{R_}:{R_+1}] op_sel_hi:[1,0]")
        else:
            for c in range(4):
                o.append(f"v_lshlrev_b32 v{tt+2*c}, 16, v{r+c}")
                o.append(f"v_and_b32 v{tt+2*c+1}, 0xffff0000, v{r+c}")
            for c in range(8): o.append(f"v_add_f32 v{tt+c}, v{tt+c}, v{M_}")
            for c in range(8): o.append(f"v_cvt_pk_bf16_f32 v{tt+c}, 0, v{tt+c}")
            for c in range(8): o.append(f"v_mul_f32 v{tt+c}, v{tt+c}, v{R_}")
        for c in range(4): o.append(f"v_cvt_pk_bf16_f32 v{r+c}, v{tt+2*c}, v{tt+2*c+1}")
        o.append(wr)
        return o
    def hnorm(p, rgs, fast=False):
        o = []
        for rg in rgs:
            r = raw(rg, p)
            o += norm_ops(r, STA + 2*rg, STA + 2*rg + 1, TT, f"ds_write_b128 v5, v[{r}:{r+3}] offset:{(p & 1)*XP + rg*8*XR}", fast)
        return o
    HST = "hst" in FLAGS
    hn = [0]
    def hstamp(k):
        if HST and k in (12, 13):
            I(f"s_memtime s[{60+2*hn[0]}:{61+2*hn[0]}]"); hn[0] += 1
    for k in range(NST):
        hstamp(k)
        if k == 0:
            for x in hnorm(0, (0, 1, 2, 3), fast=True): I(x)
            pdma(3); pdma(4)
        else:
            dl = []
            if k >= 2 and k - 2 + DWP < NST:
                st = k - 2 + DWP
                for i in range(5):
                    pre = [f"s_mov_b32 s28, {st*32*3456}"] if i == 0 else []
                    if i % 4 == 0: pre.append(f"s_add_u32 m0, s29, {(st % NS)*SL + (i//4)*4096}")
                    dl.append(pre + [f"buffer_load_dwordx4 v{224+i}, s[8:11], s28 offen offset:{1024*(i%4)} lds"])
                    vq.append(("D", st))
            hstamp(k)
            p = (k-1)//2 + 1
            o = []
            if p < 10:
                o = hnorm(p, (0, 1, 2) if (CN and p >= 2) else (0, 1, 2, 3))
                h = len(o)//2
                o = (o[:h] if (k-1) % 2 == 0 else o[h:])
            stepd = max(1, len(o)//5)
            for i_, x in enumerate(o):
                if i_ % stepd == 0 and dl:
                    for y in dl.pop(0): I(y)
                I(x)
            for d_ in dl:
                for y in d_: I(y)
        if k == 1:
            for rg in R4:
                I(f"buffer_store_dwordx2 v[{STA+2*rg}:{STA+2*rg+1}], v7, s[20:23], 0 offen offset:{64*rg}")
                vq.append(("S", rg))
        hstamp(k)
        vwait(lambda t: t == ("D", k))
        hstamp(k)
        I("s_waitcnt lgkmcnt(0)")
        hstamp(k)
        I("s_barrier")
    if HST:
        I("s_waitcnt lgkmcnt(0) vmcnt(0)")
        I("s_cmp_lg_u32 s2, 5")
        I("s_cbranch_scc1 HS_skip")
        I("s_cmp_lg_u32 s3, 4")
        I("s_cbranch_scc1 HS_skip")
        I("s_load_dwordx2 s[56:57], s[0:1], 88")
        I("s_waitcnt lgkmcnt(0)")
        I("s_mov_b32 s58, 256")
        I("s_mov_b32 s59, 0x00020000")
        I("v_mov_b32 v1, 0")
        for i in range(hn[0]):
            I(f"s_sub_u32 s{61+2*i}, s{60+2*i}, s60")
            I(f"v_mov_b32 v2, s{61+2*i}")
            I(f"buffer_store_dword v2, v1, s[56:59], 0 offen offset:{128+4*i}")
        I("s_waitcnt vmcnt(0)")
        e("HS_skip:")
    I("s_endpgm")
    e("G1_cons:")
    BB = 24; AF = 56; ACC = 80; LA = 2
    CR_ = 72; CT = 240; CS = 248
    I("v_mov_b32 v250, v16")
    I(f"v_add_u32 v251, {24*XR}, v5")
    I("v_mov_b32 v252, v8")
    I("s_load_dwordx2 s[4:5], s[0:1], 72")
    CSL = 48
    for f_ in FLAGS:
        if f_.startswith("csl"): CSL = int(f_[3:])
    if CSL: I(f"s_sleep {CSL}")
    I("s_waitcnt lgkmcnt(0)")
    srd(12, 44, SZ_SD)
    I("s_cmp_ge_u32 s3, 2")
    I("s_cbranch_scc1 G1_cpf")
    I("s_mul_i32 s46, s3, 176")
    I("s_add_u32 s46, s46, s47")
    I("s_cmp_ge_u32 s46, 270")
    I("s_cbranch_scc1 G1_cgo")
    I("s_mul_i32 s36, s46, 0xCCCD")
    I("s_lshr_b32 s36, s36, 19")
    I("s_mul_i32 s37, s36, 10")
    I("s_sub_u32 s37, s46, s37")
    I("v_and_b32 v23, 7, v0")
    I("v_bfe_u32 v17, v0, 3, 2")
    I("v_bfe_u32 v18, v0, 5, 1")
    I("s_lshl_b32 s37, s37, 6")
    I("v_lshl_add_u32 v23, v23, 3, s37")
    I("s_lshl_b32 s36, s36, 1")
    I("v_add_u32 v18, s36, v18")
    I("v_lshlrev_b32 v19, 5, v18")
    I("v_lshl_add_u32 v19, v17, 2, v19")
    I("v_mul_u32_u24 v20, 0x500, v19")
    I("v_lshl_add_u32 v20, v23, 1, v20")
    I("v_add_u32 v21, 0x5000, v20")
    srd(8, 4, SZ_W)
    srd(32, 6, SZ_W, WS_WDT)
    for i in range(8):
        b = 20 if i < 4 else 21
        I(f"buffer_load_dwordx4 v[{ACC+4*i}:{ACC+3+4*i}], v{b}, s[8:11], 0 offen offset:{(i%4)*1280}")
    I("s_mov_b32 s36, 0x05040100")
    I("s_mov_b32 s37, 0x07060302")
    I("v_lshrrev_b32 v22, 4, v23")
    I("v_mul_u32_u24 v22, 54, v22")
    I("v_add_u32 v22, v22, v18")
    I("v_lshlrev_b32 v22, 10, v22")
    I("v_lshl_add_u32 v22, v17, 8, v22")
    I("v_and_b32 v19, 15, v23")
    I("v_lshl_add_u32 v22, v19, 4, v22")
    I("s_waitcnt vmcnt(0)")
    for dd in range(8):
        ob = ACC + 32 + 4*dd
        sel = 36 + (dd & 1)
        for q in range(4):
            I(f"v_perm_b32 v{ob+q}, v{ACC+4*(2*q+1)+dd//2}, v{ACC+4*(2*q)+dd//2}, s{sel}")
    for dd in range(8):
        ob = ACC + 32 + 4*dd
        I(f"buffer_store_dwordx4 v[{ob}:{ob+3}], v22, s[32:35], 0 offen offset:{16*dd}")
    I("s_waitcnt vmcnt(0)")
    I("s_branch G1_cgo")
    e("G1_cpf:")
    if "nopfm" not in FLAGS:
        I("s_cmp_ge_u32 s3, 3")
        I("s_cselect_b32 s8, s18, s16")
        I("s_cselect_b32 s9, s19, s17")
        I("s_mul_i32 s27, s47, 12800")
        I(f"s_mov_b32 s10, {SZ_W}")
        I("s_mov_b32 s11, 0x00020000")
        I("v_lshlrev_b32 v17, 4, v1")
        for i in range(13):
            I(f"buffer_load_dwordx4 v[{ACC+4*i}:{ACC+3+4*i}], v17, s[8:11], s27 offen")
            I("s_add_u32 s27, s27, 1024")
        I("s_waitcnt vmcnt(0)")
    e("G1_cgo:")
    I("s_and_b32 s31, s3, 1")
    I("s_lshr_b32 s33, s3, 1")
    I("s_lshl_b32 s27, s24, 3")
    I("s_lshl_b32 s26, s31, 2")
    I("s_add_u32 s26, s26, s27")
    I("s_mul_i32 s27, s26, 55296")
    I("v_lshl_add_u32 v9, v1, 4, s27")
    I("v_bfe_u32 v17, v0, 4, 2")
    I("v_and_b32 v18, 15, v0")
    I(f"v_mul_u32_u24 v6, {XR}, v18")
    I("v_lshl_add_u32 v6, v17, 4, v6")
    I(f"s_mul_i32 s30, s31, {64*XR}")
    I(f"s_add_u32 s30, s30, {XB}")
    I("v_add_u32 v6, s30, v6")
    I("v_bfe_u32 v18, v0, 2, 2")
    I("v_lshl_add_u32 v19, v17, 3, v18")
    I(f"v_mul_u32_u24 v19, {RS}, v19")
    I("v_and_b32 v18, 3, v0")
    I("v_lshl_add_u32 v19, v18, 3, v19")
    I("s_mul_i32 s27, s33, 160")
    I("v_add_u32 v19, s27, v19")
    I("v_and_b32 v20, 1, v17")
    I("v_lshlrev_b32 v20, 5, v20")
    I("s_lshl_b32 s27, s33, 1")
    I("s_sub_u32 s27, 1, s27")
    I("v_mul_lo_u32 v20, v20, s27")
    I("v_add_u32 v11, v19, v20")
    I("v_sub_u32 v12, v19, v20")
    I(f"v_add_u32 v13, {3*SL}, v11")
    I(f"v_add_u32 v14, {3*SL}, v12")
    srd(20, 6, SZ_H, WS_H)
    for f_ in FLAGS:
        if f_.startswith("la"): LA = int(f_[2:])
    def acc(m, j, js): return ACC + ((m*5 + j)*4 + js)*4
    seq = [(m, j) for m in range(2) for j in range(5)]
    NQ = len(seq)
    dq = []
    def dwait(tags):
        idxs = [i for i, t in enumerate(dq) if t in tags]
        if not idxs: return
        idx = max(idxs); n = len(dq) - 1 - idx
        assert n <= 15
        I(f"s_waitcnt lgkmcnt({n})")
        del dq[:idx+1]
    def rdx(gpos):
        st, idx = divmod(gpos, NQ)
        m, j = seq[idx]
        slot = st % NS
        a = AF + (gpos % 4)*4
        va = 11 + 2*(slot // 3) + (j & 1)
        off = (slot % 3)*SL + m*MS + j*32
        return [f"ds_read_b64_tr_b16 v[{a}:{a+1}], v{va} offset:{off}",
                f"ds_read_b64_tr_b16 v[{a+2}:{a+3}], v{va} offset:{off+4*RS}"]
    def xrd(st, js):
        b = BB + (st & 1)*16 + js*4
        I(f"ds_read_b128 v[{b}:{b+3}], v6 offset:{((st >> 1) & 1)*XP + js*16*XR + (st & 1)*64}")
        dq.append(("X", st))
    def cld(P):
        r = CR_ + (P & 1)*4
        I(f"buffer_load_dwordx4 v[{r}:{r+3}], v250, s[12:15], 0 offen offset:{128*P}")
    if CN: cld(2); cld(3)
    stamp()
    I("s_barrier")
    stamp()
    for js in range(4): xrd(0, js)
    if CN:
        I(f"ds_read_b64 v[{CS}:{CS+1}], v252"); dq.append(("X", 0))
    for i in range(LA):
        for x in rdx(i): I(x); dq.append(("A", i))
    for st in range(NST):
        cw = []
        if CN and st >= 1:
            P = (st + 3)//2
            if 2 <= P <= 9:
                r = CR_ + (P & 1)*4
                o = norm_ops(r, CS, CS+1, CT, f"ds_write_b128 v251, v[{r}:{r+3}] offset:{(P & 1)*XP}")
                h = len(o)//2
                cw = o[:h] if st == 2*P - 3 else o[h:]
                if st == 2*P - 3: cw = [f"s_waitcnt vmcnt({1 if P < 9 else 0})"] + cw
                elif P + 2 <= 9: cw = cw + [("L", P + 2)]
        if st + 1 < NST:
            dwait([("XW", 0)])
            I("s_barrier")
        if "stamp3" in FLAGS and st in (1, 5, 10): stamp()
        nslot = 24
        for idx in range(NQ):
            gpos = st*NQ + idx
            rr = rdx(gpos + LA) if gpos + LA < NST*NQ else None
            dwait([("A", gpos), ("X", st)])
            m, j = seq[idx]
            a = AF + (gpos % 4)*4
            for js in range(4):
                c = acc(m, j, js); b = BB + (st & 1)*16 + js*4
                cc = "0" if st == 0 else f"v[{c}:{c+3}]"
                I(f"v_mfma_f32_16x16x32_bf16 v[{c}:{c+3}], v[{a}:{a+3}], v[{b}:{b+3}], {cc}")
                if rr and js < 2: I(rr[js]); dq.append(("A", gpos + LA))
                if js == 2 and st + 1 < NST and 1 <= idx <= 4: xrd(st + 1, idx - 1)
                if js >= 1 and cw:
                    x = cw.pop(0)
                    if isinstance(x, tuple): cld(x[1])
                    else:
                        I(x)
                        if x.startswith("ds_write"): dq.append(("XW", 0))
                        if x.startswith("s_waitcnt") and cw: I(cw.pop(0))
        assert not cw
    stamp()
    I("s_lshr_b32 s34, s25, 5")
    I("s_lshl_b32 s34, s34, 10")
    I("s_nop 7")
    I("s_nop 3")
    cnt = [0]
    def hq(j, js, dst, t):
        g = acc(0, j, js); u = acc(1, j, js)
        I(f"v_cvt_pk_bf16_f32 v{t}, v{g}, v{g+1}")
        I(f"v_cvt_pk_bf16_f32 v{t+1}, v{g+2}, v{g+3}")
        I(f"v_cvt_pk_bf16_f32 v{t+2}, v{u}, v{u+1}")
        I(f"v_cvt_pk_bf16_f32 v{t+3}, v{u+2}, v{u+3}")
        lo16(g, t); hi16(g+1, t); lo16(g+2, t+1); hi16(g+3, t+1)
        lo16(u, t+2); hi16(u+1, t+2); lo16(u+2, t+3); hi16(u+3, t+3)
        for r in range(4):
            I(f"v_mul_f32 v{g+r}, v{g+r}, v{u+r}")
        I(f"v_cvt_pk_bf16_f32 v{dst}, v{g}, v{g+1}")
        I(f"v_cvt_pk_bf16_f32 v{dst+1}, v{g+2}, v{g+3}")
    def epi(fq):
        units = [((0, 1), 0, 0), ((2, 3), 1, 0), ((4,), 2, 0)] if fq == 0 else [((0,), 2, 8), ((1, 2), 3, 0), ((3, 4), 4, 0)]
        for js in range(4):
            I(f"s_add_u32 s35, s34, {js*55296}")
            I(f"s_add_u32 s36, s34, {js*55296 + 4096}")
            for (jl, blk, ho) in units:
                t = 24 + (cnt[0] % 4) * 12; cnt[0] += 1
                for hh, j in enumerate(jl): hq(j, js, t+4+2*hh, t)
                so, off = ("s35", 1024*blk + ho) if blk < 4 else ("s36", ho)
                if len(jl) == 2:
                    I(f"buffer_store_dwordx4 v[{t+4}:{t+7}], v9, s[20:23], {so} offen offset:{off}")
                else:
                    I(f"buffer_store_dwordx2 v[{t+4}:{t+5}], v9, s[20:23], {so} offen offset:{off}")
    I("s_cmp_eq_u32 s33, 0")
    I("s_cbranch_scc0 G1_epi1")
    epi(0)
    I("s_branch G1_epid")
    e("G1_epi1:")
    epi(1)
    e("G1_epid:")
    if STAMP: I("s_waitcnt vmcnt(0)")
    stamp()
    stamp_dump(5)
    wgt_end(1)
    I("s_endpgm")

def g1_epi(NF, acc):
    I("s_lshr_b32 s34, s25, 5")
    I("s_lshl_b32 s34, s34, 10")
    I("s_add_u32 s35, s34, 4096")
    I("s_nop 7")
    I("s_nop 3")
    for js in range(2):
        for jp in range(NF//2):
            t = 24 + ((js*5 + jp) % 4) * 12
            for hh in range(2):
                jf = 2*jp + hh
                g = acc(0, jf, js); u = acc(1, jf, js)
                I(f"v_cvt_pk_bf16_f32 v{t}, v{g}, v{g+1}")
                I(f"v_cvt_pk_bf16_f32 v{t+1}, v{g+2}, v{g+3}")
                I(f"v_cvt_pk_bf16_f32 v{t+2}, v{u}, v{u+1}")
                I(f"v_cvt_pk_bf16_f32 v{t+3}, v{u+2}, v{u+3}")
                lo16(g, t); hi16(g+1, t); lo16(g+2, t+1); hi16(g+3, t+1)
                lo16(u, t+2); hi16(u+1, t+2); lo16(u+2, t+3); hi16(u+3, t+3)
                for r in range(4):
                    I(f"v_mul_f32 v{g+r}, v{g+r}, v{u+r}")
                I(f"v_cvt_pk_bf16_f32 v{t+4+2*hh}, v{g}, v{g+1}")
                I(f"v_cvt_pk_bf16_f32 v{t+5+2*hh}, v{g+2}, v{g+3}")
            if jp < 4:
                I(f"buffer_store_dwordx4 v[{t+4}:{t+7}], v{9+js}, s[20:23], s34 offen offset:{1024*jp}")
            else:
                I(f"buffer_store_dwordx4 v[{t+4}:{t+7}], v{9+js}, s[20:23], s35 offen")
    if STAMP: I("s_waitcnt vmcnt(0)")
    stamp()
    stamp_dump(5)
    wgt_end(1)
    I("s_endpgm")

def gen_k2():
    kernel_header("mid_kernel")
    if BIG:
        I("s_cmp_ge_u32 s2, 256")
        I("s_cbranch_scc1 M_exit")
        wgt_start()
        I("s_load_dwordx2 s[6:7], s[0:1], 96")
        I("v_lshrrev_b32 v1, 6, v0")
        I("s_nop 0")
        I("v_readfirstlane_b32 s3, v1")
        I("s_lshr_b32 s40, s2, 3")
        I("s_bfe_u32 s41, s2, 0x10002")
        I("s_and_b32 s42, s2, 3")
        I("s_lshl_b32 s43, s41, 2")
        I("s_sub_u32 s43, 24, s43")
        if "kvall" in FLAGS:
            I("s_and_b32 s8, s3, 1")
            I("s_lshl_b32 s8, s8, 3")
            I("s_add_u32 s8, s8, 8")
            I("s_load_dwordx2 s[8:9], s[0:1], s8")
            I("s_lshr_b32 s12, s3, 1")
            I("s_cmp_gt_u32 s12, s41")
            I("s_cbranch_scc1 M_nokvpf")
            I("s_mul_i32 s13, s42, 192")
            I("s_add_u32 s13, s13, 512")
            I("s_and_b32 s13, s13, 0xffffff80")
            I("s_lshl_b32 s14, s42, 7")
            I("s_cmp_eq_u32 s41, 0")
            I("s_cselect_b32 s13, s14, s13")
            I("s_lshl_b32 s12, s12, 7")
            I("s_add_u32 s13, s13, s12")
            I("s_mul_i32 s12, s40, 81920")
            I("s_add_u32 s13, s13, s12")
            I("v_and_b32 v1, 63, v0")
            I("v_mul_u32_u24 v1, 0x500, v1")
            I(f"s_mov_b32 s10, {SZ_SD}")
            I("s_mov_b32 s11, 0x00020000")
            I("s_waitcnt lgkmcnt(0)")
            for f_ in FLAGS:
                if f_.startswith("kvd"): I(f"s_sleep {int(f_[3:])}")
            I("buffer_load_dword v255, v1, s[8:11], s13 offen")
            e("M_nokvpf:")
            I("s_waitcnt lgkmcnt(0)")
        I("s_cmp_ge_u32 s40, s43")
        I("s_cbranch_scc1 M_conv")
        if "nog1" in FLAGS: I("s_endpgm")
        I("s_mul_i32 s24, s42, s43")
        I("s_add_u32 s24, s24, s40")
        I("s_mul_i32 s25, s41, 96")
        I("s_add_u32 s24, s24, s25")
        W0 = 6 if "prod" in FLAGS else 4
        if FUSE:
            stamp()
            I("s_load_dwordx4 s[16:19], s[0:1], 56")
            I("s_load_dwordx2 s[44:45], s[0:1], 0")
            I("s_mov_b32 s47, s24")
        I(f"s_sub_u32 s25, s3, {W0}")
        I("s_mul_i32 s25, s25, 176")
        I("s_add_u32 s24, s24, s25")
        if FUSE:
            I("s_mov_b32 s46, s24")
        else:
            I(f"s_cmp_ge_u32 s3, {W0}")
            I("s_cbranch_scc1 M_wdt")
        I("s_lshl_b32 s24, s42, 2")
        I("s_and_b32 s25, s40, 3")
        I("s_add_u32 s24, s24, s25")
        I("s_mul_i32 s25, s41, 6")
        I("s_lshr_b32 s26, s40, 2")
        I("s_add_u32 s25, s25, s26")
        if FUSE and "g1b" in FLAGS: gen_g1b()
        elif FUSE and "f2" in FLAGS: gen_g1f2()
        elif FUSE: gen_g1fuse()
        else: gen_g1big()
    else:
        gen_g1old()
    gen_aux()

def gen_g1old():
    I(f"s_cmp_ge_u32 s2, {N_G1+N_CV}")
    I("s_cbranch_scc1 M_exit")
    I("s_load_dwordx2 s[6:7], s[0:1], 96")
    I(f"s_cmp_ge_u32 s2, {N_G1}")
    I("s_cbranch_scc1 M_conv")
    if "nog1" in FLAGS: I("s_endpgm")
    stamp()
    if "prio" in FLAGS: I("s_setprio 3")
    I("s_load_dwordx4 s[16:19], s[0:1], 56")
    I("v_lshrrev_b32 v1, 6, v0")
    I("s_nop 0")
    I("v_readfirstlane_b32 s3, v1")
    I("s_waitcnt lgkmcnt(0)")
    if "stamp2" in FLAGS: stamp()
    I("s_cmp_ge_u32 s3, 2")
    I("s_cselect_b32 s4, s18, s16")
    I("s_cselect_b32 s5, s19, s17")
    srd(8, 4, SZ_W)
    srd(12, 6, SZ_SD, WS_XN)
    srd(20, 6, SZ_H, WS_H)
    if "g12d" in FLAGS:
        I("s_and_b32 s24, s2, 3")
        I("s_lshl_b32 s24, s24, 2")
        I("s_bfe_u32 s25, s2, 0x20003")
        I("s_add_u32 s24, s24, s25")
        I("s_bfe_u32 s25, s2, 0x10002")
        I("s_lshl_b32 s25, s25, 3")
        I("s_lshr_b32 s26, s2, 5")
        I("s_add_u32 s25, s25, s26")
    else:
        I("s_and_b32 s24, s2, 15")
        I("s_lshr_b32 s25, s2, 4")
    I(f"s_mul_i32 s25, s25, {BF}")
    I(f"s_min_u32 s25, s25, {F-BF}")
    I("v_and_b32 v1, 63, v0")
    if "pf" in FLAGS:
        I("s_lshr_b32 s26, s2, 3")
        I("s_lshl_b32 s27, s26, 1")
        I("s_and_b32 s28, s3, 1")
        I("s_add_u32 s27, s27, s28")
        I("s_mul_i32 s27, s27, 34560")
        I("s_bfe_u32 s28, s2, 0x10002")
        I("s_mul_i32 s28, s28, 1792")
        I("s_add_u32 s27, s27, s28")
        I("v_lshrrev_b32 v192, 5, v1")
        I("v_mul_u32_u24 v192, 3456, v192")
        I("v_and_b32 v193, 31, v1")
        I("v_lshl_add_u32 v192, v193, 6, v192")
        I("v_add_u32 v192, s27, v192")
        for i in range(5):
            I(f"s_mov_b32 s27, {i*6912}")
            I(f"buffer_load_dword v{194+i}, v192, s[8:11], s27 offen")
        I("s_and_b32 s27, s2, 3")
        I("s_mul_i32 s27, s27, 655360")
        I("s_lshl_b32 s28, s26, 2")
        I("s_add_u32 s28, s28, s3")
        I("s_mul_i32 s28, s28, 5120")
        I("s_add_u32 s27, s27, s28")
        I("v_lshlrev_b32 v193, 6, v1")
        I("buffer_load_dword v199, v193, s[12:15], s27 offen")
        I("buffer_load_dword v200, v193, s[12:15], s27 offen offset:1024")
    I("v_lshrrev_b32 v10, 4, v1")
    I("v_bfe_u32 v11, v1, 1, 3")
    I("v_and_b32 v12, 1, v1")
    I("s_and_b32 s26, s3, 1")
    I("s_lshl_b32 s26, s26, 4")
    I("s_lshl_b32 s27, s25, 1")
    for i in range(4):
        bit = (i >> 1) & 1
        I(f"v_or_b32 v13, {bit<<2}, v10")
        I("v_xor_b32 v13, v13, v11")
        I(f"v_add_u32 v14, {4*i}, v10")
        I("v_add_u32 v14, s26, v14")
        I("v_mul_u32_u24 v14, 3456, v14")
        I("v_lshl_add_u32 v14, v13, 5, v14")
        I("v_lshl_add_u32 v14, v12, 4, v14")
        I("v_add_u32 v14, s27, v14")
        I(f"v_subrev_u32 v14, {1024*i}, v14")
        I("v_cmp_eq_u32 vcc, 7, v13")
        I("v_mov_b32 v15, 0x40000000")
        I("s_nop 0")
        I(f"v_cndmask_b32 v{2+i}, v14, v15, vcc")
    I("v_bfe_u32 v17, v0, 4, 2")
    I("s_lshl_b32 s26, s24, 3")
    I("s_lshl_b32 s27, s3, 1")
    I("s_add_u32 s26, s26, s27")
    I("s_mul_i32 s27, s26, 20480")
    I("v_lshl_add_u32 v6, v1, 4, s27")
    I("v_add_u32 v7, 20480, v6")
    I("s_mul_i32 s27, s26, 55296")
    I("v_lshl_add_u32 v8, v1, 4, s27")
    I("v_add_u32 v9, 55296, v8")
    I("v_bfe_u32 v18, v0, 2, 2")
    I("v_lshl_add_u32 v19, v17, 3, v18")
    I("v_lshlrev_b32 v19, 8, v19")
    I("v_and_b32 v20, 1, v17")
    I("v_lshl_or_b32 v20, v20, 2, v18")
    I("v_lshl_add_u32 v19, v20, 5, v19")
    I("v_and_b32 v18, 3, v0")
    I("v_lshl_add_u32 v19, v18, 3, v19")
    VA = 10
    I("v_mov_b32 v24, v19")
    for jf in range(7):
        I(f"v_xor_b32 v{VA+jf}, {jf<<5}, v24")
        I(f"v_add_u32 v{VA+7+jf}, 0x10000, v{VA+jf}")
    I("s_lshl_b32 s29, s3, 12")
    BB = 24
    AF = 64
    ACC = 80
    def acc(m, jf, js): return ACC + ((m*7 + jf)*2 + js)*4
    def bfr(st, js): return BB + (st % NSLOT)*8 + js*4
    NST = 20
    def issue(slot):
        I(f"s_add_u32 s30, s29, {slot*SLOT}")
        I("s_mov_b32 m0, s30")
        for i in range(4):
            I(f"buffer_load_dwordx4 v{2+i}, s[8:11], s28 offen offset:{1024*i} lds")
        for js in range(2):
            r = BB + slot*8 + js*4
            I(f"buffer_load_dwordx4 v[{r}:{r+3}], v{6+js}, s[12:15], s31 offen")
        I("s_add_u32 s36, s36, 1")
        I("s_cmp_ge_u32 s36, 20")
        I("s_cselect_b32 s36, 0, s36")
        I("s_add_u32 s37, s37, 1")
        I(f"s_mul_i32 s28, s36, {32*3456}")
        I("s_lshl_b32 s31, s36, 10")
        I("s_cmp_ge_u32 s37, 20")
        I("s_cselect_b32 s28, 0x40000000, s28")
        I("s_cselect_b32 s31, 0x40000000, s31")
    if "rot" in FLAGS:
        I("s_and_b32 s36, s24, 3")
        I("s_mul_i32 s36, s36, 5")
        I("s_lshr_b32 s37, s2, 5")
        I("s_mul_i32 s37, s37, 3")
        I("s_add_u32 s36, s36, s37")
        I("s_cmp_ge_u32 s36, 20")
        I("s_cselect_b32 s37, 20, 0")
        I("s_sub_u32 s36, s36, s37")
    else:
        I("s_mov_b32 s36, 0")
    I("s_mov_b32 s37, 0")
    I(f"s_mul_i32 s28, s36, {32*3456}")
    I("s_lshl_b32 s31, s36, 10")
    if "stamp2" in FLAGS: stamp()
    for st in range(NSLOT - 1):
        issue(st)
    if "stamp2" in FLAGS: stamp()
    for j in range(112):
        I(f"v_mov_b32 v{ACC+j}, 0")
    I("s_mov_b32 s33, 0")
    stamp()
    def body(last):
      for slot in range(NSLOT):
        if not last or slot <= 1:
            I(f"s_waitcnt vmcnt({6*(NSLOT-2)})")
        else:
            I(f"s_waitcnt vmcnt({6*(NSLOT-1-slot)})")
        I("s_barrier")
        if not last or slot == 0:
            issue((slot + NSLOT - 1) % NSLOT)
        seq = [(m, jf) for m in range(2) for jf in range(7)]
        def rd(idx):
            m, jf = seq[idx]
            a = AF + (idx % 4)*4
            if slot < 4:
                va = VA + jf; off = slot*SLOT + m*8192
            else:
                va = VA + 7 + jf; off = m*8192
            I(f"ds_read_b64_tr_b16 v[{a}:{a+1}], v{va} offset:{off}")
            I(f"ds_read_b64_tr_b16 v[{a+2}:{a+3}], v{va} offset:{off+1024}")
        for i in range(3):
            rd(i)
        for idx in range(14):
            if idx + 3 < 14:
                rd(idx + 3)
                I("s_waitcnt lgkmcnt(6)")
            else:
                I(f"s_waitcnt lgkmcnt({2*(13-idx)})")
            m, jf = seq[idx]
            a = AF + (idx % 4)*4
            for js in range(2):
                c = acc(m, jf, js); b = BB + slot*8 + js*4
                I(f"v_mfma_f32_16x16x32_bf16 v[{c}:{c+3}], v[{a}:{a+3}], v[{b}:{b+3}], v[{c}:{c+3}]")
    XS = "xs" in FLAGS
    LA = 3
    for f in FLAGS:
        if f.startswith("la"): LA = int(f[2:])
    RING = [64,68,72,76,192,196,200] if LA > 3 else [64,68,72,76,192]
    seq = [(m, jf) for m in range(2) for jf in range(7)]
    ring = [0]
    def rdx(slot, idx, pos):
        m, jf = seq[idx]
        a = RING[pos % len(RING)]
        if slot < 4:
            va = VA + jf; off = slot*SLOT + m*8192
        else:
            va = VA + 7 + jf; off = m*8192
        return [f"ds_read_b64_tr_b16 v[{a}:{a+1}], v{va} offset:{off}",
                f"ds_read_b64_tr_b16 v[{a+2}:{a+3}], v{va} offset:{off+1024}"]
    def body_xs(last):
      for slot in range(NSLOT):
        fin_stage = last and slot == NSLOT-1
        if not fin_stage:
            if not last or slot <= 1:
                I("s_waitcnt vmcnt(12)")
            else:
                I(f"s_waitcnt vmcnt({6*(NSLOT-2-slot)})")
            if "g1nobar" not in FLAGS: I("s_barrier")
        if (not last or slot == 0) and "g1noload" not in FLAGS:
            issue((slot + NSLOT - 1) % NSLOT)
        for idx in range(14 if "g1nocomp" not in FLAGS else 0):
            pos = idx + 14*slot
            if idx + LA < 14:
                rr = rdx(slot, idx + LA, pos + LA)
            elif not fin_stage:
                rr = rdx((slot + 1) % NSLOT, idx + LA - 14, pos + LA)
            else:
                rr = None
            I(f"s_waitcnt lgkmcnt({2*(LA-1) if not fin_stage else 2*min(LA-1, 13-idx)})")
            m, jf = seq[idx]
            a = RING[pos % len(RING)]
            for js in range(2):
                c = acc(m, jf, js); b = BB + slot*8 + js*4
                I(f"v_mfma_f32_16x16x32_bf16 v[{c}:{c+3}], v[{a}:{a+3}], v[{b}:{b+3}], v[{c}:{c+3}]")
                if rr: I(rr[js])
    if XS:
        I("s_waitcnt vmcnt(18)")
        I("s_barrier")
        for i in range(LA):
            for x in rdx(0, i, i): I(x)
    e("G1_loop:")
    (body_xs if XS else body)(False)
    I("s_add_u32 s33, s33, 1")
    I(f"s_cmp_lt_u32 s33, {NST//NSLOT - 1}")
    I("s_cbranch_scc1 G1_loop")
    (body_xs if XS else body)(True)
    stamp()
    I("s_waitcnt vmcnt(0)")
    I("s_nop 7")
    I("s_nop 3")
    T = 24
    for js in range(2):
        for jf in range(7):
            g = acc(0, jf, js); u = acc(1, jf, js)
            t = T + ((js*7 + jf) % 4) * 8
            I(f"v_cvt_pk_bf16_f32 v{t}, v{g}, v{g+1}")
            I(f"v_cvt_pk_bf16_f32 v{t+1}, v{g+2}, v{g+3}")
            I(f"v_cvt_pk_bf16_f32 v{t+2}, v{u}, v{u+1}")
            I(f"v_cvt_pk_bf16_f32 v{t+3}, v{u+2}, v{u+3}")
            lo16(g, t); hi16(g+1, t); lo16(g+2, t+1); hi16(g+3, t+1)
            lo16(u, t+2); hi16(u+1, t+2); lo16(u+2, t+3); hi16(u+3, t+3)
            for r in range(4):
                I(f"v_mul_f32 v{g+r}, v{g+r}, v{u+r}")
            I(f"v_cvt_pk_bf16_f32 v{t+4}, v{g}, v{g+1}")
            I(f"v_cvt_pk_bf16_f32 v{t+5}, v{g+2}, v{g+3}")
            I(f"s_add_u32 s34, s25, {16*jf}")
            I("s_lshr_b32 s35, s34, 5")
            I("s_lshl_b32 s35, s35, 10")
            I("s_and_b32 s34, s34, 16")
            I("s_lshr_b32 s34, s34, 1")
            I("s_add_u32 s35, s35, s34")
            I(f"buffer_store_dwordx2 v[{t+4}:{t+5}], v{8+js}, s[20:23], s35 offen")
    I("s_waitcnt vmcnt(0)")
    stamp()
    stamp_dump(5)
    I("s_endpgm")

def gen_aux():
    e("M_conv:")
    if "noconv" in FLAGS: I("s_endpgm")
    XREG = 7680; CST = 576 if "cst" in FLAGS else 800; HBUF = 8*CST; WREG = 20480
    CMG = "cmg" in FLAGS
    if CMG: CST = 320; HBUF = 16*CST; HHI = 8*CST
    CM4 = "cm4" in FLAGS
    if CM4: HBUF = 8*CST; HHI = 4*CST
    stamp()
    I("s_load_dwordx4 s[16:19], s[0:1], 32")
    if FUSE:
        I("s_load_dwordx4 s[44:47], s[0:1], 8")
        I("s_load_dwordx2 s[48:49], s[0:1], 24")
    if BIG:
        I("s_sub_u32 s24, 32, s43")
        I("s_mul_i32 s24, s24, s42")
        I("s_add_u32 s24, s24, s40")
        I("s_sub_u32 s24, s24, s43")
        I("s_lshl_b32 s25, s41, 5")
        I("s_add_u32 s24, s24, s25")
        I("s_lshl_b32 s24, s24, 3")
        I("s_add_u32 s24, s24, s3")
    else:
        I("v_lshrrev_b32 v1, 6, v0")
        I("s_nop 0")
        I("v_readfirstlane_b32 s3, v1")
        I(f"s_sub_u32 s25, s2, {N_G1}")
        I("s_cmp_ge_u32 s25, 128")
        I("s_cbranch_scc1 M_aux_hi")
        I("s_mov_b32 s24, s25")
        I("s_cmp_eq_u32 s3, 3")
        I("s_cbranch_scc1 M_wdt")
        I("s_mul_i32 s24, s25, 3")
        I("s_add_u32 s24, s24, s3")
        I("s_branch M_conv2")
        e("M_aux_hi:")
        I("s_sub_u32 s25, s25, 128")
        I("s_lshl_b32 s25, s25, 1")
        I("s_add_u32 s24, s25, s3")
        I("s_add_u32 s24, s24, 126")
        I("s_cmp_ge_u32 s3, 2")
        I("s_cbranch_scc1 M_wdt")
        I("s_add_u32 s24, s25, s3")
        I("s_add_u32 s24, s24, 384")
    e("M_conv2:")
    I("s_waitcnt lgkmcnt(0)")
    if "cst2" in FLAGS: stamp()
    srd(8, 16, SZ_SD)
    if FUSE:
        I("s_sub_u32 s25, s24, s3")
        I("s_lshl_b32 s25, s25, 3")
        I("s_load_dwordx16 s[84:99], s[48:49], s25")
        srd(32, 44, SZ_SD)
        srd(36, 46, SZ_SD)
    else:
        srd(12, 6, SZ_SD, WS_KVR)
    srd(20, 6, SZ_SD, WS_YT)
    I("s_lshr_b32 s25, s24, 1")
    I("s_lshl_b32 s25, s25, 2")
    I("s_load_dword s26, s[18:19], s25")
    I("v_and_b32 v1, 63, v0")
    I("s_lshl_b32 s27, s24, 12")
    I("v_lshl_add_u32 v2, v1, 4, s27")
    if CMG:
        I("v_lshrrev_b32 v3, 5, v1")
        I("v_mul_u32_u24 v3, 1536, v3")
        I("v_add_u32 v2, v2, v3")
    XL = 16
    for j in range(4 if not FUSE else 0):
        I(f"buffer_load_dwordx4 v[{XL+4*j}:{XL+4*j+3}], v2, s[12:15], 0 offen offset:{1024*j}")
    HW0, HW1 = 32, 40
    I("v_subrev_u32 v13, 64, v2")
    I("v_mov_b32 v5, 0x40000000")
    I("v_cmp_gt_u32 vcc, 4, v1")
    I("s_nop 1")
    I("v_cndmask_b32 v4, v13, v5, vcc")
    I("v_add_u32 v6, 16, v13")
    I("v_cmp_gt_u32 vcc, 3, v1")
    I("s_nop 1")
    I("v_cndmask_b32 v6, v6, v5, vcc")
    CV2 = "cv2" in FLAGS
    def hwloads():
        I(f"buffer_load_dwordx4 v[{HW0}:{HW0+3}], v4, s[8:11], 0 offen")
        I(f"buffer_load_dwordx4 v[{HW0+4}:{HW0+7}], v6, s[8:11], 0 offen")
        I(f"buffer_load_dwordx4 v[{HW1}:{HW1+3}], v2, s[8:11], 0 offen offset:{192 if CMG else 448}")
        I(f"buffer_load_dwordx4 v[{HW1+4}:{HW1+7}], v2, s[8:11], 0 offen offset:{208 if CMG else 464}")
    if not CV2: hwloads()
    KP, KO, VV, KF, PP, TC, OO = 132, 144, 160, 176, 190, 222, 230
    if FUSE:
        I("s_sub_u32 s25, s24, s3")
        I("s_lshl_b32 s25, s25, 1")
        I("v_mul_u32_u24 v50, 5120, v0")
        I("v_add_u32 v50, s25, v50")
        I("s_cmp_eq_u32 s3, 0")
        I("s_cselect_b32 s25, 0x40000000, -3840")
        I("v_add_u32 v51, s25, v50")
        def kvloads():
            for i in range(4):
                I(f"buffer_load_dwordx4 v[{KO+4*i}:{KO+4*i+3}], v50, s[32:35], 0 offen offset:{1280*i}")
            I("s_mov_b64 exec, 1")
            for i in range(3):
                I(f"buffer_load_dwordx4 v[{KP+4*i}:{KP+4*i+3}], v51, s[32:35], 0 offen offset:{1280*i}")
            I("s_mov_b64 exec, -1")
        def vloads():
            for i in range(4):
                I(f"buffer_load_dwordx4 v[{VV+4*i}:{VV+4*i+3}], v50, s[36:39], 0 offen offset:{1280*i}")
        KPF = True
        if CV2:
            I("s_sub_u32 s50, s40, s43")
            I("s_lshl_b32 s57, s3, 8")
            I("s_cmp_eq_u32 s41, 0")
            I("s_cbranch_scc0 CV_pf1")
            I("s_lshl_b32 s50, s50, 5")
            I("s_add_u32 s50, s50, s57")
            I("s_lshl_b32 s51, s42, 7")
            I("v_add_u32 v54, s50, v1")
            I("v_mul_u32_u24 v54, 0x500, v54")
            I("s_movk_i32 s56, 32")
            I("s_branch CV_pfd")
            e("CV_pf1:")
            I("s_mul_i32 s50, s50, 22")
            I("s_min_u32 s50, s50, 234")
            I("s_add_u32 s50, s50, s57")
            I("s_mul_i32 s51, s42, 192")
            I("s_add_u32 s51, s51, 512")
            I("s_and_b32 s51, s51, 0xffffff80")
            I("v_lshrrev_b32 v54, 1, v1")
            I("v_add_u32 v54, s50, v54")
            I("v_mul_u32_u24 v54, 0x500, v54")
            I("v_and_b32 v56, 1, v1")
            I("v_lshl_add_u32 v54, v56, 7, v54")
            I("s_movk_i32 s56, 44")
            e("CV_pfd:")
            I("v_cmp_gt_u32 s[52:53], s56, v1")
            I("s_mov_b64 exec, s[52:53]")
            I("buffer_load_dword v56, v54, s[32:35], s51 offen")
            I("buffer_load_dword v57, v54, s[36:39], s51 offen")
            I("s_mov_b64 exec, -1")
            hwloads()
            I("v_lshl_add_u32 v55, v1, 6, s27")
            if "nohpf" not in FLAGS: I("buffer_load_dword v58, v55, s[8:11], 0 offen")
            else: I("buffer_load_dword v58, v2, s[8:11], 0 offen")
        elif "kvall" in FLAGS:
            pass
        elif KPF:
            I("s_sub_u32 s50, s40, s43")
            I("v_xor_b32 v57, 256, v0")
            I("s_cmp_eq_u32 s41, 0")
            I("s_cbranch_scc0 CV_pf1")
            I("s_lshl_b32 s50, s50, 8")
            I("s_lshl_b32 s51, s42, 7")
            for (d, src) in ((54, 0), (55, 57)):
                I(f"v_add_u32 v{d}, s50, v{src}")
                I(f"v_mul_u32_u24 v{d}, 0x500, v{d}")
            I("s_movk_i32 s56, 256")
            I("s_branch CV_pfd")
            e("CV_pf1:")
            I("s_mul_i32 s50, s50, 176")
            I("s_mul_i32 s51, s42, 192")
            I("s_add_u32 s51, s51, 512")
            I("s_and_b32 s51, s51, 0xffffff80")
            for (d, src) in ((54, 0), (55, 57)):
                I(f"v_lshrrev_b32 v{d}, 1, v{src}")
                I(f"v_add_u32 v{d}, s50, v{d}")
                I(f"v_mul_u32_u24 v{d}, 0x500, v{d}")
                I(f"v_and_b32 v56, 1, v{src}")
                I(f"v_lshl_add_u32 v{d}, v56, 7, v{d}")
            I("s_movk_i32 s56, 352")
            e("CV_pfd:")
            I("v_cmp_gt_u32 s[52:53], s56, v0")
            I("v_cmp_gt_u32 s[54:55], s56, v57")
            I("s_mov_b64 exec, s[52:53]")
            I("buffer_load_dword v56, v54, s[32:35], s51 offen")
            if "vpf1" not in FLAGS:
                I("s_mov_b64 exec, s[54:55]")
                I("buffer_load_dword v57, v55, s[36:39], s51 offen")
            I("s_mov_b64 exec, -1")
        else:
            kvloads()
        I("v_lshlrev_b32 v52, 2, v0")
        I("v_sub_u32 v52, 2044, v52")
        I("v_lshrrev_b32 v53, 5, v52")
        I("v_mul_u32_u24 v53, 80, v53")
        I("v_and_b32 v52, 31, v52")
        I("v_lshl_add_u32 v52, v52, 1, v53")
        I(f"v_add_u32 v53, {4*WREG}, v52")
    I(f"s_mov_b32 s29, {448 if CMG else 960}")
    I(f"s_mul_i32 s28, s3, {WREG}")
    Z = 96
    for j in range(4):
        I(f"v_mov_b32 v{Z+j}, 0")
    I("v_lshl_add_u32 v3, v1, 4, s28")
    I(f"ds_write_b128 v3, v[{Z}:{Z+3}] offset:5120")
    I(f"ds_write_b128 v3, v[{Z}:{Z+3}] offset:6144")
    I(f"ds_write_b128 v3, v[{Z}:{Z+3}] offset:6656")
    I("v_lshrrev_b32 v4, 2, v1")
    I("v_mul_u32_u24 v4, 80, v4")
    I("v_and_b32 v5, 3, v1")
    I("v_lshl_add_u32 v4, v5, 4, v4")
    I("v_add_u32 v4, s28, v4")
    I("v_and_b32 v5, 31, v1")
    I("v_lshrrev_b32 v6, 5, v1")
    if CM4:
        I("v_and_b32 v7, 3, v5")
        I(f"v_mul_u32_u24 v7, {CST}, v7")
        I("v_lshrrev_b32 v8, 2, v5")
        I("v_lshl_add_u32 v8, v6, 1, v8")
        I("v_lshl_add_u32 v7, v8, 3, v7")
    else:
        I("v_and_b32 v7, 7, v5")
        I(f"v_mul_u32_u24 v7, {CST}, v7")
        I("v_lshrrev_b32 v8, 3, v5")
        I("v_add_u32 v8, v8, v6")
        I("v_lshl_add_u32 v7, v8, 4, v7")
    I(f"v_add_u32 v7, {XREG}, v7")
    I("v_add_u32 v7, s28, v7")
    I(f"v_add_u32 v14, {HBUF}, v7")
    I("v_sub_u32 v8, 63, v5")
    I("v_mul_u32_u24 v8, 80, v8")
    I("v_lshl_add_u32 v8, v6, 4, v8")
    I("v_add_u32 v8, s28, v8")
    I("v_mov_b32 v15, v8")
    I("v_subrev_u32 v9, 2560, v8")
    I(f"v_add_u32 v10, {XREG}, v3")
    if CMG:
        I(f"v_mul_u32_u24 v11, {HHI-512}, v6")
        I("v_add_u32 v10, v10, v11")
    I(f"v_add_u32 v11, {HBUF}, v10")
    AC0, AC1 = 100, 116
    for j in range(32):
        I(f"v_mov_b32 v{AC0+j}, 0")
    FR = 132
    UE, UO, WO = 180, 189, 197
    CLA, CR = 3, 4
    for f_ in FLAGS:
        if f_.startswith("cla"): CLA = int(f_[3:]); CR = 8; UE, UO, WO = 228, 237, 245
    if CMG:
        UE, UO, WO = 196, 205, 213
        AC2 = 220
        I("s_mov_b32 s30, 0xfffff")
        I("s_mov_b32 s31, 0xfffff")
    else:
        I("s_mov_b32 s30, -1")
        I("s_mov_b32 s31, 0xf")
    q = DSQ()
    def stage_seg(w, addr):
        if CM4:
            for t in range(4):
                I(f"v_alignbit_b32 v{UE+t}, v{w+t+1}, v{w+t}, 16")
                I(f"v_alignbit_b32 v{UO+t+1}, v{w+t+2}, v{w+t+1}, 16")
                I(f"v_mov_b32 v{WO+t+1}, v{w+t+1}")
            I("s_mov_b64 exec, s[30:31]")
            for c, r in enumerate((UE, WO+1, UO+1, w+2)):
                I(f"ds_write_b128 v{addr}, v[{r}:{r+3}] offset:{c*CST}")
                q.push(("w", 0))
            I("s_mov_b64 exec, -1")
            return
        for t in range(7):
            I(f"v_alignbit_b32 v{UE+t}, v{w+t+1}, v{w+t}, 16")
            I(f"v_alignbit_b32 v{UO+t}, v{w+t+1}, v{w+t}, 16")
        for t in range(1, 7):
            I(f"v_mov_b32 v{WO+t}, v{w+t}")
        I("s_mov_b64 exec, s[30:31]")
        for c in range(8):
            if c % 2 == 0:
                t0 = c // 2
                r = UE + t0 if t0 % 2 == 0 else UO + t0
            else:
                t0 = (1 + c)//2
                r = w + t0 if t0 % 2 == 0 else WO + t0
            assert r % 2 == 0, (c, r)
            I(f"ds_write_b128 v{addr}, v[{r}:{r+3}] offset:{c*CST}")
            q.push(("w", 0))
        I("s_mov_b64 exec, -1")
    if FUSE and CV2:
        if "cvnw" not in FLAGS: I(f"s_waitcnt vmcnt({5 if 'cvw2' in FLAGS else 6})")
        if "cst2" in FLAGS: stamp()
        if "cvbar" in FLAGS: I("s_barrier")
        if "cst2" in FLAGS: stamp()
        kvloads()
        if "cvlv" not in FLAGS: vloads()
        I(f"s_waitcnt vmcnt({(7 if 'cvlv' in FLAGS else 11) + 3})")
        stage_seg(HW0, 10)
        I("s_mov_b32 s49, 0x3f803f80")
        I(f"s_waitcnt vmcnt({0 if 'cvlv' in FLAGS else 4}) lgkmcnt(0)")
        if "cvlv" in FLAGS: vloads()
        stamp()
    if FUSE:
        if CV2: pass
        elif KPF:
            I("s_waitcnt vmcnt(0)")
            if "cst2" in FLAGS: stamp()
            I("s_barrier")
            if "cst2" in FLAGS: stamp()
            kvloads()
            if "vpf1" in FLAGS:
                I("s_mov_b64 exec, s[54:55]")
                I("buffer_load_dword v57, v55, s[36:39], s51 offen")
                I("s_mov_b64 exec, -1")
        else:
            I("s_waitcnt vmcnt(13)")
        if not CV2:
            stage_seg(HW0, 10)
            I("s_mov_b32 s49, 0x3f803f80")
            I(f"s_waitcnt vmcnt({0 if 'vpf1' not in FLAGS else 1}) lgkmcnt(0)")
            vloads()
            if "hpf2" in FLAGS:
                I("v_lshl_add_u32 v55, v1, 6, s27")
                I("buffer_load_dword v58, v55, s[8:11], 0 offen")
            stamp()
        for r in range(3):
            for c in range(4):
                I(f"v_mov_b32_dpp v{KP+4*r+c}, v{KO+4*(r+1)+c} wave_shr:1 row_mask:0xf bank_mask:0xf")
        def krow(r): return (KP + 4*r) if r < 3 else (KO + 4*(r-3))
        chains = [(i, h) for i in range(4) for h in range(2)]
        def T(j, i, h): return TC + 8*j + 2*i + h
        if "kvf" in FLAGS:
            I("s_mov_b32 s50, 0x05040100")
            I("s_mov_b32 s51, 0x07060302")
            for j in range(4):
                for h in range(2):
                    for r in range(6):
                        I(f"v_perm_b32 v{PP+6*h+r}, v{krow(r)+j}, v{krow(r+1)+j}, s{50+h}")
                for (i, h) in chains: I(f"v_dot2_f32_bf16 v{T(j,i,h)}, v{PP+6*h+i}, s{85+4*j+2*h}, 0")
                for (i, h) in chains: I(f"v_dot2_f32_bf16 v{T(j,i,h)}, v{PP+6*h+i+2}, s{84+4*j+2*h}, v{T(j,i,h)}")
        for j in range(4 if "kvf" not in FLAGS else 0):
            for h in range(2):
                I(f"s_lshl_b32 s{50+h}, s{84+4*j+2*h}, 16")
                I(f"s_and_b32 s{52+h}, s{84+4*j+2*h}, 0xffff0000")
                I(f"s_lshl_b32 s{54+h}, s{85+4*j+2*h}, 16")
                I(f"s_and_b32 s{56+h}, s{85+4*j+2*h}, 0xffff0000")
            for r in range(7):
                lo16(KF+2*r, krow(r)+j); hi16(KF+2*r+1, krow(r)+j)
            def P(i, t): return PP + (i*4 + t)*2
            for i in range(4):
                for t in range(4):
                    r = i + 3 - t
                    I(f"v_pk_mul_f32 v[{P(i,t)}:{P(i,t)+1}], v[{KF+2*r}:{KF+2*r+1}], s[{50+2*t}:{51+2*t}]")
            for (i, h) in chains: I(f"v_cvt_pk_bf16_f32 v{T(j,i,h)}, v{P(i,3)+h}, v{P(i,2)+h}")
            for t in (1, 0):
                for (i, h) in chains: I(f"v_dot2_f32_bf16 v{T(j,i,h)}, v{T(j,i,h)}, s49, 0")
                for (i, h) in chains: I(f"v_cvt_pk_bf16_f32 v{T(j,i,h)}, v{T(j,i,h)}, v{P(i,t)+h}")
            for (i, h) in chains: I(f"v_dot2_f32_bf16 v{T(j,i,h)}, v{T(j,i,h)}, s49, 0")
            for (i, h) in chains:
                if h == 0: I(f"v_cvt_pk_bf16_f32 v{T(j,i,h)}, v{T(j,i,h)}, 0")
                else: I(f"v_cvt_pk_bf16_f32 v{T(j,i,h)}, 0, v{T(j,i,h)}")
        if "cst2" in FLAGS: stamp()
        I(f"s_waitcnt vmcnt({1 if 'hpf2' in FLAGS else 0})")
        if "cst2" in FLAGS: stamp()
        for j in range(4 if "kvf" not in FLAGS else 0):
            for (i, h) in chains: I(f"v_dot2_f32_bf16 v{T(j,i,h)}, v{T(j,i,h)}, v{VV+4*i+j}, 0")
        if "kvf" in FLAGS:
            for j in range(4):
                for i in range(4):
                    lo16(KF+2*i, VV+4*i+j); hi16(KF+2*i+1, VV+4*i+j)
                for i in range(4):
                    I(f"v_pk_mul_f32 v[{T(j,i,0)}:{T(j,i,1)}], v[{T(j,i,0)}:{T(j,i,1)}], v[{KF+2*i}:{KF+2*i+1}]")
        I("s_nop 1")
        for j in range(4):
            for h in range(2):
                o = PP + 2*h + 4*j
                I(f"v_cvt_pk_bf16_f32 v{o+1}, v{T(j,1,h)}, v{T(j,0,h)}")
                I(f"v_cvt_pk_bf16_f32 v{o}, v{T(j,3,h)}, v{T(j,2,h)}")
            for h in range(2):
                o = PP + 2*h + 4*j
                ch = 2*j + h
                I(f"ds_write_b64 v{52 + ch//4}, v[{o}:{o+1}] offset:{(ch % 4)*WREG}")
        I("s_waitcnt lgkmcnt(0)")
        I("s_barrier")
        if "cpf" in FLAGS or "cpf0" in FLAGS:
            C0 = "cpf0" in FLAGS
            I("s_mov_b32 s54, s24")
            if C0:
                I("s_cmp_ge_u32 s24, 256")
                I("s_cbranch_scc1 CV_cpfd")
                e("CV_cpfl:")
            I("s_movk_i32 s50, 56")
            I(f"s_mov_b32 s51, {384*3456}")
            I("s_mov_b32 s52, s54")
            I("s_cmp_ge_u32 s54, 108")
            I("s_cselect_b32 s50, 64, s50")
            I("s_cselect_b32 s53, 108, 0")
            I("s_cmp_ge_u32 s54, 216")
            I("s_cselect_b32 s50, 0, s50")
            I("s_cselect_b32 s53, 216, s53")
            I("s_cselect_b32 s51, 768, s51")
            I("s_cmp_ge_u32 s54, 344")
            I("s_cselect_b32 s50, 72, s50")
            I("s_cselect_b32 s53, 344, s53")
            I("s_cselect_b32 s51, 0, s51")
            I("s_load_dwordx2 s[56:57], s[0:1], s50")
            I("s_sub_u32 s52, s52, s53")
            I("s_lshl_b32 s52, s52, 6")
            I("v_add_u32 v55, s52, v1")
            I("v_lshlrev_b32 v56, 7, v55")
            I("v_lshrrev_b32 v57, 2, v55")
            I("v_mul_u32_u24 v57, 0x500, v57")
            I("v_and_b32 v55, 3, v55")
            I("v_lshl_add_u32 v57, v55, 7, v57")
            I("s_cmp_eq_u32 s50, 0")
            I("s_cselect_b64 vcc, -1, 0")
            I(f"s_mov_b32 s58, {SZ_W}")
            I(f"s_cselect_b32 s58, {SZ_SD}, s58")
            I("s_mov_b32 s59, 0x00020000")
            I("v_cndmask_b32 v56, v56, v57, vcc")
            I("s_waitcnt lgkmcnt(0)")
            I("buffer_load_dword v254, v56, s[56:59], s51 offen")
            if C0:
                I("s_add_u32 s54, s54, 256")
                I("s_cmp_lt_u32 s54, 614")
                I("s_cbranch_scc1 CV_cpfl")
                e("CV_cpfd:")
        if "hpf3" in FLAGS:
            I("v_lshl_add_u32 v55, v1, 6, s27")
            I("buffer_load_dword v58, v55, s[8:11], 0 offen")
    else:
        I("s_waitcnt vmcnt(2)")
        stamp()
        for j in range(4):
            I(f"ds_write_b128 v4, v[{XL+4*j}:{XL+4*j+3}] offset:{16*80*j}")
        stage_seg(HW0, 10)
    q = DSQ()
    def crd(c, both, part=None):
        f = FR + (c % CR)*12
        boff = (c >> 1)*80 + (c & 1)*32
        if part in (None, 0):
            if c < 16:
                I(f"ds_read_b128 v[{f}:{f+3}], v7 offset:{32*c}")
            else:
                I(f"ds_read_b128 v[{f}:{f+3}], v14 offset:{32*(c-16)}")
            q.push(("r", c))
            I(f"ds_read_b128 v[{f+4}:{f+7}], v9 offset:{boff}")
            q.push(("r", c))
        if both and part in (None, 1):
            I(f"ds_read_b128 v[{f+8}:{f+11}], v8 offset:{boff}")
            q.push(("r", c))
    if CM4:
        CLA = 2
        for f_ in FLAGS:
            if f_.startswith("c4la"): CLA = int(f_[4:])
        B0 = 180; MSK = 218
        def b0(dh, pp): return B0 + (dh*2 + pp)*4
        def mrd(c, part):
            f = FR + (c % 4)*12
            boff = (c >> 1)*80 + (c & 1)*32
            va, ao = (7, 32*c) if c < 8 else (14, 32*(c-8))
            if part == 0:
                I(f"ds_read_b64 v[{f}:{f+1}], v{va} offset:{ao}"); q.push(("r", c))
                I(f"ds_read_b64 v[{f+2}:{f+3}], v{va} offset:{ao+8}")
            if part == 1:
                I(f"ds_read_b64 v[{f+4}:{f+5}], v{va} offset:{ao+HHI}"); q.push(("r", c))
                I(f"ds_read_b64 v[{f+6}:{f+7}], v{va} offset:{ao+HHI+8}")
            if part == 2: I(f"ds_read_b128 v[{f+8}:{f+11}], v9 offset:{boff}")
            q.push(("r", c))
        W2 = "w2" in FLAGS
        if W2:
            I(f"buffer_load_dwordx4 v[{HW0}:{HW0+3}], v2, s[8:11], s29 offen")
            I(f"buffer_load_dwordx2 v[{HW0+4}:{HW0+5}], v2, s[8:11], s29 offen offset:16")
            I("s_add_u32 s29, s29, 256")
        for dh in range(2):
            I(f"ds_read_b128 v[{b0(dh,0)}:{b0(dh,0)+3}], v8 offset:{32*dh}")
        for j in range(16): I(f"v_mov_b32 v{AC2+j}, 0")
        I(f"v_cmp_ne_u32 vcc, 0, v5")
        I("s_nop 1")
        I(f"v_cndmask_b32 v{MSK}, 0, -1, vcc")
        for c in range(CLA):
            for part in range(3): mrd(c, part)
        I("s_mov_b32 s33, 0")
        stamp()
        e("CV_loopm:")
        q.q = [("r", c) for c in range(CLA) for _ in range(5)]
        w = HW1
        def AL(dst, t): return f"v_alignbit_b32 v{dst+t}, v{w+t+1}, v{w+t}, 16"
        def MV(t): return f"v_mov_b32 v{WO+t}, v{w+t}"
        def WR(c): return ("W", f"ds_write_b128 v11, v[{(UE, WO+1, UO+1, w+2)[c]}:{(UE, WO+1, UO+1, w+2)[c]+3}] offset:{c*CST}")
        slots = [[WR(3), AL(UE,0), AL(UE,1)], [AL(UE,2), AL(UE,3)], [],
                 [WR(0), MV(1), MV(2)], [MV(3), MV(4)], [],
                 [WR(1), AL(UO,1), AL(UO,2)], [AL(UO,3), AL(UO,4)], [],
                 [WR(2), "L"], [], []]
        if W2: slots = slots[:9] + [[WR(2)], [], [], [], [], [], [], [], [], ["L"], [], []]
        def slot(i):
            if i < 0 or i >= len(slots): return
            for x in slots[i]:
                if x == "L" and W2:
                    I("s_waitcnt vmcnt(0)")
                    for t in range(6): I(f"v_mov_b32 v{HW1+t}, v{HW0+t}")
                    I(f"buffer_load_dwordx4 v[{HW0}:{HW0+3}], v2, s[8:11], s29 offen")
                    I(f"buffer_load_dwordx2 v[{HW0+4}:{HW0+5}], v2, s[8:11], s29 offen offset:16")
                    I("s_add_u32 s29, s29, 256")
                elif x == "L":
                    I(f"buffer_load_dwordx4 v[{HW1}:{HW1+3}], v2, s[8:11], s29 offen")
                    I(f"buffer_load_dwordx2 v[{HW1+4}:{HW1+5}], v2, s[8:11], s29 offen offset:16")
                    I("s_add_u32 s29, s29, 256")
                elif isinstance(x, tuple):
                    I("s_mov_b64 exec, s[30:31]")
                    I(x[1]); q.push(("w", 0))
                    I("s_mov_b64 exec, -1")
                else: I(x)
        for c in range(8):
            if c == 1 and not W2: I("s_waitcnt vmcnt(0)")
            f = FR + (c % 4)*12
            bz = b0(c & 1, (c >> 1) & 1); bn = b0(c & 1, ((c >> 1) & 1) ^ 1)
            q.wait_for(("r", c))
            I(f"v_mfma_f32_32x32x16_bf16 v[{AC0}:{AC0+15}], v[{f}:{f+3}], v[{bz}:{bz+3}], v[{AC0}:{AC0+15}]")
            mrd(c + CLA, 0)
            slot(3*(c-1))
            I(f"v_mfma_f32_32x32x16_bf16 v[{AC1}:{AC1+15}], v[{f}:{f+3}], v[{f+8}:{f+11}], v[{AC1}:{AC1+15}]")
            mrd(c + CLA, 1)
            slot(3*(c-1)+1 if c >= 1 else -1)
            I(f"v_mfma_f32_32x32x16_bf16 v[{AC2}:{AC2+15}], v[{f+4}:{f+7}], v[{bz}:{bz+3}], v[{AC2}:{AC2+15}]")
            mrd(c + CLA, 2)
            for r in range(4):
                I(f"v_and_b32_dpp v{bn+r}, v{bz+r}, v{MSK} wave_shr:1 row_mask:0xf bank_mask:0xf bound_ctrl:0")
            slot(3*(c-1)+2 if c >= 1 else -1)
        I("v_swap_b32 v7, v14")
        I("v_swap_b32 v10, v11")
        I("v_add_u32 v9, 320, v9")
        I("s_add_u32 s33, s33, 1")
        I("s_cmp_lt_u32 s33, 8")
        I("s_cbranch_scc1 CV_loopm")
        I("s_nop 7")
        I("s_nop 7")
        I("s_nop 3")
        for j in range(16): I(f"v_add_f32 v{AC1+j}, v{AC1+j}, v{AC2+j}")
    elif CMG:
        def mrd(c, part):
            f = FR + (c % 4)*16
            boff = (c >> 1)*80 + (c & 1)*32
            va, ao = (7, 32*c) if c < 8 else (14, 32*(c-8))
            if "cvnob" in FLAGS and part >= 2: return
            if part == 0: I(f"ds_read_b128 v[{f}:{f+3}], v{va} offset:{ao}")
            if part == 1: I(f"ds_read_b128 v[{f+4}:{f+7}], v{va} offset:{ao+HHI}")
            if part == 2: I(f"ds_read_b128 v[{f+8}:{f+11}], v8 offset:{boff}")
            if part == 3: I(f"ds_read_b128 v[{f+12}:{f+15}], v9 offset:{boff}")
            q.push(("r", c))
        for j in range(16): I(f"v_mov_b32 v{AC2+j}, 0")
        for c in range(CLA):
            for part in range(4): mrd(c, part)
        I("s_mov_b32 s33, 0")
        stamp()
        e("CV_loopm:")
        q.q = [("r", c) for c in range(CLA) for _ in range(2 if "cvnob" in FLAGS else 4)]
        w = HW1
        def AL(dst, t): return f"v_alignbit_b32 v{dst+t}, v{w+t+1}, v{w+t}, 16"
        def MV(t): return f"v_mov_b32 v{WO+t}, v{w+t}"
        def WR(c):
            if c % 2 == 0:
                t0 = c // 2
                r = UE + t0 if t0 % 2 == 0 else UO + t0
            else:
                t0 = (1 + c)//2
                r = w + t0 if t0 % 2 == 0 else WO + t0
            return ("W", f"ds_write_b128 v11, v[{r}:{r+3}] offset:{c*CST}")
        slots = [[WR(3), AL(UE,0), AL(UE,1)], [WR(7), AL(UE,2), AL(UE,3)], [WR(0), AL(UE,4), AL(UE,5)],
                 [WR(4), MV(1), MV(2)], [MV(3), MV(4)], [WR(1), MV(5), MV(6)],
                 [WR(5), AL(UO,1), AL(UO,2)], [AL(UO,3), AL(UO,4)], [WR(2), AL(UO,5), AL(UO,6)],
                 [WR(6)], ["L"], []]
        def slot(i):
            if i < 0 or i >= len(slots): return
            for x in slots[i]:
                if x == "L":
                    I(f"buffer_load_dwordx4 v[{HW1}:{HW1+3}], v2, s[8:11], s29 offen")
                    I(f"buffer_load_dwordx4 v[{HW1+4}:{HW1+7}], v2, s[8:11], s29 offen offset:16")
                    I("s_add_u32 s29, s29, 256")
                elif isinstance(x, tuple):
                    I("s_mov_b64 exec, s[30:31]")
                    I(x[1]); q.push(("w", 0))
                    I("s_mov_b64 exec, -1")
                else: I(x)
        for c in range(8):
            if c == 1: I("s_waitcnt vmcnt(0)")
            f = FR + (c % 4)*16
            q.wait_for(("r", c))
            I(f"v_mfma_f32_32x32x16_bf16 v[{AC0}:{AC0+15}], v[{f}:{f+3}], v[{f+8}:{f+11}], v[{AC0}:{AC0+15}]")
            mrd(c + CLA, 0)
            slot(3*(c-1))
            I(f"v_mfma_f32_32x32x16_bf16 v[{AC1}:{AC1+15}], v[{f}:{f+3}], v[{f+12}:{f+15}], v[{AC1}:{AC1+15}]")
            mrd(c + CLA, 1); mrd(c + CLA, 2)
            slot(3*(c-1)+1 if c >= 1 else -1)
            I(f"v_mfma_f32_32x32x16_bf16 v[{AC2}:{AC2+15}], v[{f+4}:{f+7}], v[{f+8}:{f+11}], v[{AC2}:{AC2+15}]")
            mrd(c + CLA, 3)
            slot(3*(c-1)+2 if c >= 1 else -1)
        I("v_swap_b32 v7, v14")
        I("v_swap_b32 v10, v11")
        I("v_add_u32 v8, 320, v8")
        I("v_add_u32 v9, 320, v9")
        I("s_add_u32 s33, s33, 1")
        I("s_cmp_lt_u32 s33, 8")
        I("s_cbranch_scc1 CV_loopm")
        I("s_nop 7")
        I("s_nop 7")
        I("s_nop 3")
        for j in range(16): I(f"v_add_f32 v{AC1+j}, v{AC1+j}, v{AC2+j}")
    else:
        for c in range(CLA):
            crd(c, True)
        I("s_mov_b32 s33, 0")
        stamp()
    for phase in range(2 if not CMG else 0):
        both = (phase == 0)
        e(f"CV_loop{phase}:")
        q.q = [("r", c) for c in range(CLA) for _ in range(3 if both else 2)]
        for c in range(16):
            if c == 1:
                I("s_waitcnt vmcnt(0)")
                stage_seg(HW1, 11)
                if "cvnoload" not in FLAGS:
                    I(f"buffer_load_dwordx4 v[{HW1}:{HW1+3}], v2, s[8:11], s29 offen")
                    I(f"buffer_load_dwordx4 v[{HW1+4}:{HW1+7}], v2, s[8:11], s29 offen offset:16")
                I("s_add_u32 s29, s29, 512")
            f = FR + (c % CR)*12
            if "cvi" in FLAGS:
                q.wait_for(("r", c))
                I(f"v_mfma_f32_32x32x16_bf16 v[{AC1}:{AC1+15}], v[{f}:{f+3}], v[{f+4}:{f+7}], v[{AC1}:{AC1+15}]")
                crd(c + CLA, both, 0)
                if both:
                    I(f"v_mfma_f32_32x32x16_bf16 v[{AC0}:{AC0+15}], v[{f}:{f+3}], v[{f+8}:{f+11}], v[{AC0}:{AC0+15}]")
                    crd(c + CLA, both, 1)
            else:
                crd(c + CLA, both)
                q.wait_for(("r", c))
                I(f"v_mfma_f32_32x32x16_bf16 v[{AC1}:{AC1+15}], v[{f}:{f+3}], v[{f+4}:{f+7}], v[{AC1}:{AC1+15}]")
                if both:
                    I(f"v_mfma_f32_32x32x16_bf16 v[{AC0}:{AC0+15}], v[{f}:{f+3}], v[{f+8}:{f+11}], v[{AC0}:{AC0+15}]")
        I("v_swap_b32 v7, v14")
        I("v_swap_b32 v10, v11")
        I("v_add_u32 v8, 640, v8")
        I("v_add_u32 v9, 640, v9")
        I("s_add_u32 s33, s33, 1")
        I(f"s_cmp_lt_u32 s33, {4*(phase+1)}")
        I(f"s_cbranch_scc1 CV_loop{phase}")
    I("v_mov_b32 v8, v15")
    I("s_waitcnt vmcnt(0) lgkmcnt(0)")
    stamp()
    I("v_mul_u32_u24 v10, 24, v6")
    I("v_sub_u32 v10, v8, v10")
    I("v_add_u32 v10, 8, v10")
    I("v_subrev_u32 v11, 2560, v10")
    KV = 16
    for cb in range(2):
        for qq in range(4):
            I(f"ds_read_b64 v[{KV+cb*8+2*qq}:{KV+cb*8+2*qq+1}], v{10+cb} offset:{48-16*qq}")
    I("s_and_b32 s25, s24, 1")
    I("s_lshl_b32 s25, s25, 4")
    I("s_lshr_b32 s26, s26, s25")
    I("s_lshl_b32 s26, s26, 16")
    I("v_lshlrev_b32 v12, 6, v5")
    I("v_lshl_add_u32 v12, v6, 3, v12")
    I("v_add_u32 v12, s27, v12")
    I("s_nop 7")
    I("s_waitcnt lgkmcnt(0)")
    for cb in range(2):
        ac = AC0 if cb == 0 else AC1
        for qq in range(4):
            k0 = KV + cb*8 + 2*qq
            t = 40 + (qq % 2)*12
            y = ac + 4*qq
            hi16(t+0, k0+1); lo16(t+1, k0+1); hi16(t+2, k0); lo16(t+3, k0)
            for r in range(4):
                I(f"v_mul_f32 v{t+r}, s26, v{t+r}")
            I(f"v_cvt_pk_bf16_f32 v{t+4}, v{t}, v{t+1}")
            I(f"v_cvt_pk_bf16_f32 v{t+5}, v{t+2}, v{t+3}")
            I(f"v_cvt_pk_bf16_f32 v{t+6}, v{y}, v{y+1}")
            I(f"v_cvt_pk_bf16_f32 v{t+7}, v{y+2}, v{y+3}")
            lo16(t, t+4); hi16(t+1, t+4); lo16(t+2, t+5); hi16(t+3, t+5)
            lo16(y, t+6); hi16(y+1, t+6); lo16(y+2, t+7); hi16(y+3, t+7)
            for r in range(4):
                I(f"v_add_f32 v{t+r}, v{t+r}, v{y+r}")
            I(f"v_cvt_pk_bf16_f32 v{t+8}, v{t}, v{t+1}")
            I(f"v_cvt_pk_bf16_f32 v{t+9}, v{t+2}, v{t+3}")
            I(f"buffer_store_dwordx2 v[{t+8}:{t+9}], v12, s[20:23], 0 offen offset:{cb*2048+16*qq}")
    I("s_waitcnt vmcnt(0)")
    stamp()
    stamp_dump(255 if BIG else N_G1 + 7)
    if BIG: wgt_end(1)
    I("s_endpgm")
    e("M_wdt:")
    I("s_waitcnt lgkmcnt(0)")
    if "wlate" in FLAGS: I("s_barrier")
    if BIG and "pfm" in FLAGS:
        I("s_sub_u32 s26, s3, 6")
        I("s_mul_i32 s27, s26, 176")
        I("s_sub_u32 s27, s24, s27")
        I("s_lshl_b32 s26, s26, 3")
        I("s_add_u32 s26, s26, 56")
        I("s_load_dwordx2 s[28:29], s[0:1], s26")
        I("s_mul_i32 s27, s27, 12800")
        I(f"s_mov_b32 s30, {SZ_W}")
        I("s_mov_b32 s31, 0x00020000")
        I("v_and_b32 v1, 63, v0")
        I("v_lshlrev_b32 v1, 4, v1")
        I("s_waitcnt lgkmcnt(0)")
        for i in range(13):
            I(f"buffer_load_dwordx4 v[{100+4*i}:{103+4*i}], v1, s[28:31], s27 offen")
            I("s_add_u32 s27, s27, 1024")
    if "pfa128" in FLAGS or "pfa64" in FLAGS:
        G = 128 if "pfa128" in FLAGS else 64
        NL = 1792 // G
        I("s_cmp_lg_u32 s3, 3")
        I("s_cbranch_scc1 M_nopf")
        I("s_bfe_u32 s26, s2, 0x50003")
        I("s_lshr_b32 s27, s26, 4")
        I("s_lshl_b32 s27, s27, 3")
        I("s_add_u32 s27, s27, 56")
        I("s_load_dwordx2 s[28:29], s[0:1], s27")
        I("s_and_b32 s26, s26, 15")
        I("s_mul_i32 s26, s26, 138240")
        I("s_bfe_u32 s27, s2, 0x10002")
        I("s_mul_i32 s27, s27, 1792")
        I("s_add_u32 s26, s26, s27")
        I(f"s_mov_b32 s30, {SZ_W}")
        I("s_mov_b32 s31, 0x00020000")
        I("v_and_b32 v1, 63, v0")
        I("s_waitcnt lgkmcnt(0)")
        n = (40*NL + 63)//64
        mul = (65536 + NL - 1)//NL
        for i in range(n):
            I(f"v_add_u32 v2, {64*i}, v1")
            I(f"v_mul_u32_u24 v3, {mul}, v2")
            I("v_lshrrev_b32 v3, 16, v3")
            I(f"v_mul_u32_u24 v4, {NL}, v3")
            I("v_sub_u32 v4, v2, v4")
            I("v_mul_u32_u24 v3, 3456, v3")
            I(f"v_lshl_add_u32 v{100+i}, v4, {7 if G==128 else 6}, v3")
            I(f"buffer_load_dword v{140+i}, v{100+i}, s[28:31], s26 offen")
        e("M_nopf:")
    WBAR = 0
    for f_ in FLAGS:
        if f_.startswith("wbar"): WBAR = int(f_[4:])
    I("s_cmp_ge_u32 s24, 270")
    I(f"s_cbranch_scc1 {'M_exitb' if WBAR else 'M_exitw'}")
    I("s_load_dwordx2 s[4:5], s[0:1], 72")
    I("s_mul_i32 s17, s24, 0xCCCD")
    I("s_lshr_b32 s17, s17, 19")
    I("s_mul_i32 s18, s17, 10")
    I("s_sub_u32 s18, s24, s18")
    I("v_and_b32 v1, 7, v0")
    I("v_bfe_u32 v2, v0, 3, 2")
    I("v_bfe_u32 v6, v0, 5, 1")
    I("s_lshl_b32 s18, s18, 6")
    I("v_lshl_add_u32 v1, v1, 3, s18")
    I("s_lshl_b32 s19, s17, 1")
    I("v_add_u32 v6, s19, v6")
    I("v_lshlrev_b32 v7, 5, v6")
    I("v_lshl_add_u32 v7, v2, 2, v7")
    I("v_mul_u32_u24 v3, 0x500, v7")
    I("v_lshl_add_u32 v3, v1, 1, v3")
    I("v_add_u32 v4, 0x5000, v3")
    I("s_waitcnt lgkmcnt(0)")
    srd(8, 4, SZ_W)
    srd(12, 6, SZ_W, WS_WDT)
    for i in range(8):
        b = 3 if i < 4 else 4
        I(f"buffer_load_dwordx4 v[{8+4*i}:{11+4*i}], v{b}, s[8:11], 0 offen offset:{(i%4)*1280}")
    I("s_mov_b32 s20, 0x05040100")
    I("s_mov_b32 s21, 0x07060302")
    I("v_lshrrev_b32 v5, 4, v1")
    I("v_mul_u32_u24 v5, 54, v5")
    I("v_add_u32 v5, v5, v6")
    I("v_lshlrev_b32 v5, 10, v5")
    I("v_lshl_add_u32 v5, v2, 8, v5")
    I("v_and_b32 v7, 15, v1")
    I("v_lshl_add_u32 v5, v7, 4, v5")
    for _ in range(WBAR): I("s_barrier")
    I("s_waitcnt vmcnt(0)")
    for dd in range(8):
        ob = 40 + 4*dd
        sel = 20 + (dd & 1)
        for q in range(4):
            I(f"v_perm_b32 v{ob+q}, v{8+4*(2*q+1)+dd//2}, v{8+4*(2*q)+dd//2}, s{sel}")
    for dd in range(8):
        ob = 40 + 4*dd
        I(f"buffer_store_dwordx4 v[{ob}:{ob+3}], v5, s[12:15], 0 offen offset:{16*dd}")
    if WBAR:
        I("s_endpgm")
        e("M_exitb:")
        for _ in range(WBAR): I("s_barrier")
    e("M_exitw:")
    I("s_waitcnt vmcnt(0)")
    e("M_exit:")
    I("s_endpgm")
    if FUSE: kernel_desc("mid_kernel", 256, 102)
    else: kernel_desc("mid_kernel", 256 if any(f.startswith("cla") for f in FLAGS) else (240 if BIG else 208), 80)

def gen_k3():
    kernel_header("fin_kernel")
    I(f"s_cmp_ge_u32 s2, {64 if 'fin64' in FLAGS else 256}")
    I("s_cbranch_scc1 F_exit")
    I("s_load_dwordx2 s[6:7], s[0:1], 96")
    I("s_load_dwordx2 s[4:5], s[0:1], 0")
    I("s_load_dwordx2 s[30:31], s[0:1], 80")
    stamp()
    I("v_lshrrev_b32 v1, 6, v0")
    I("s_nop 0")
    I("v_readfirstlane_b32 s3, v1")
    I("s_waitcnt lgkmcnt(0)")
    srd(8, 6, SZ_W, WS_WDT)
    srd(12, 6, SZ_H, WS_H)
    srd(16, 6, SZ_SD, WS_YT)
    if FUSE: srd(20, 6, S*8, WS_ST)
    else: srd(20, 6, SZ_SD, WS_XN)
    srd(24, 4, SZ_SD)
    srd(32, 30, SZ_SD)
    if "fin2d" in FLAGS:
        I("s_and_b32 s36, s2, 1")
        I("s_lshl_b32 s36, s36, 2")
        I("s_bfe_u32 s37, s2, 0x20003")
        I("s_add_u32 s36, s36, s37")
        I("s_mul_i32 s36, s36, 80")
        I("s_bfe_u32 s37, s2, 0x20001")
        I("s_lshl_b32 s37, s37, 3")
        I("s_lshr_b32 s38, s2, 5")
        I("s_add_u32 s37, s37, s38")
        I("s_lshl_b32 s37, s37, 6")
    elif "finswap" in FLAGS:
        I("s_lshr_b32 s36, s2, 5")
        I("s_mul_i32 s36, s36, 80")
        I("s_and_b32 s37, s2, 31")
        I("s_lshl_b32 s37, s37, 6")
    else:
        I("s_and_b32 s36, s2, 7")
        I("s_mul_i32 s36, s36, 80")
        I("s_lshr_b32 s37, s2, 3")
        I("s_lshl_b32 s37, s37, 6")
    I("s_mul_i32 s38, s3, 14")
    I("s_cmp_eq_u32 s3, 3")
    I("s_cselect_b32 s39, 1, 0")
    I("s_sub_u32 s38, s38, s39")
    I("s_cmp_ge_u32 s3, 2")
    I("s_cselect_b32 s39, 13, 14")
    I("s_add_u32 s47, s38, s39")
    I("s_lshl_b32 s45, s38, 10")
    I("s_lshl_b32 s47, s47, 10")
    if "rot" in FLAGS:
        I("s_bfe_u32 s46, s2, 0x20003")
        I("s_lshl_b32 s46, s46, 2")
        I("s_lshr_b32 s44, s2, 5")
        I("s_lshl_b32 s44, s44, 1")
        I("s_add_u32 s46, s46, s44")
        I("s_cmp_ge_u32 s46, 13")
        I("s_cselect_b32 s44, 13, 0")
        I("s_sub_u32 s46, s46, s44")
        I("s_cmp_ge_u32 s46, 13")
        I("s_cselect_b32 s44, 13, 0")
        I("s_sub_u32 s46, s46, s44")
        I("s_lshl_b32 s46, s46, 10")
        I("s_add_u32 s46, s46, s45")
    else:
        I("s_mov_b32 s46, s45")
    I("s_mov_b32 s44, 0")
    I("v_and_b32 v1, 15, v0")
    I("v_bfe_u32 v2, v0, 4, 2")
    I("v_and_b32 v12, 63, v0")
    if "pf" in FLAGS:
        I("s_lshr_b32 s52, s2, 3")
        I("s_lshl_b32 s52, s52, 2")
        I("s_add_u32 s52, s52, s3")
        I("s_and_b32 s53, s2, 1")
        I("s_mul_i32 s53, s53, 1105920")
        I("s_mul_i32 s54, s52, 8640")
        I("s_add_u32 s53, s53, s54")
        I("v_lshlrev_b32 v240, 6, v12")
        I("buffer_load_dword v241, v240, s[8:11], s53 offen")
        I("s_add_u32 s53, s53, 4096")
        I("buffer_load_dword v242, v240, s[8:11], s53 offen")
        I("s_add_u32 s53, s53, 544")
        I("buffer_load_dword v243, v240, s[8:11], s53 offen")
        I("s_bfe_u32 s53, s2, 0x20001")
        I("s_mul_i32 s53, s53, 1769472")
        I("s_mul_i32 s54, s52, 13824")
        I("s_add_u32 s53, s53, s54")
        for i, inc in enumerate((4096, 4096, 1536, 0)):
            I(f"buffer_load_dword v{244+i}, v240, s[12:15], s53 offen")
            if inc: I(f"s_add_u32 s53, s53, {inc}")
    I("s_lshr_b32 s52, s36, 4")
    I("s_mul_i32 s52, s52, 55296")
    I("v_lshl_add_u32 v3, v12, 4, s52")
    for jd in range(1, 5):
        I(f"v_add_u32 v{3+jd}, {jd*55296}, v3")
    I("s_lshr_b32 s52, s37, 4")
    I("s_mul_i32 s52, s52, 55296")
    I("v_lshl_add_u32 v8, v12, 4, s52")
    for js in range(1, 4):
        I(f"v_add_u32 v{8+js}, {js*55296}, v8")
    def acc(jd, js): return (js*5 + jd)*4
    FRB = 16
    NB = 5
    def ld(buf):
        f = FRB + buf*36
        I("s_cmp_lt_u32 s44, s39")
        I("s_cselect_b32 s48, s46, 0x40000000")
        for jd in range(5):
            r = f + 4*jd
            I(f"buffer_load_dwordx4 v[{r}:{r+3}], v{3+jd}, s[8:11], s48 offen{CP}")
        for js in range(4):
            r = f + 20 + 4*js
            I(f"buffer_load_dwordx4 v[{r}:{r+3}], v{8+js}, s[12:15], s48 offen{CP}")
        I("s_add_u32 s46, s46, 1024")
        I("s_cmp_ge_u32 s46, s47")
        I("s_cselect_b32 s46, s45, s46")
        I("s_add_u32 s44, s44, 1")
    def mm(buf):
        f = FRB + buf*36
        for js in range(4):
            for jd in range(5):
                c = acc(jd, js)
                a = f + 4*jd; b = f + 20 + 4*js
                I(f"v_mfma_f32_16x16x32_bf16 a[{c}:{c+3}], v[{a}:{a+3}], v[{b}:{b+3}], a[{c}:{c+3}]")
    I("s_lshr_b32 s41, s3, 1")
    I("s_lshl_b32 s41, s41, 5")
    I("s_add_u32 s41, s41, s37")
    I("s_lshl_b32 s41, s41, 1")
    I("v_add_u32 v14, s36, v1")
    I("v_lshlrev_b32 v14, 12, v14")
    I("v_lshl_add_u32 v14, v2, 4, v14")
    I("v_add_u32 v14, s41, v14")
    YF = 196
    for jd in range(5):
        I(f"v_add_u32 v15, {jd*16*4096}, v14")
        I(f"buffer_load_dwordx4 v[{YF+4*jd}:{YF+4*jd+3}], v15, s[16:19], 0 offen")
    I("s_lshl_b32 s42, s3, 4")
    I("s_add_u32 s42, s42, s37")
    I("v_add_u32 v15, s42, v1")
    I("v_mul_u32_u24 v15, 0x500, v15")
    I("v_lshl_add_u32 v15, v2, 3, v15")
    I("s_lshl_b32 s43, s36, 1")
    I("v_add_u32 v15, s43, v15")
    XX = 216
    I("s_lshr_b32 s50, s42, 4")
    I("s_mul_i32 s50, s50, 20480")
    I("v_lshrrev_b32 v14, 1, v2")
    I("v_lshlrev_b32 v14, 8, v14")
    I("v_lshl_add_u32 v14, v1, 4, v14")
    I("v_and_b32 v13, 1, v2")
    I("v_lshl_add_u32 v14, v13, 3, v14")
    I("v_add_u32 v14, s50, v14")
    if FUSE:
        I("v_add_u32 v14, s42, v1")
        I("v_lshlrev_b32 v14, 3, v14")
        I(f"buffer_load_dwordx2 v[{XX+10}:{XX+11}], v14, s[20:23], 0 offen")
    for jd in range(5):
        I(f"buffer_load_dwordx2 v[{XX+2*jd}:{XX+2*jd+1}], v15, s[24:27], 0 offen offset:{32*jd}")
        if FUSE: continue
        I(f"s_add_u32 s50, s36, {16*jd}")
        I("s_lshr_b32 s51, s50, 5")
        I("s_lshl_b32 s51, s51, 10")
        I("s_and_b32 s50, s50, 16")
        I("s_lshl_b32 s50, s50, 5")
        I("s_add_u32 s51, s51, s50")
        I(f"buffer_load_dwordx2 v[{XX+10+2*jd}:{XX+11+2*jd}], v14, s[20:23], s51 offen")
    NB2 = NB
    for f_ in FLAGS:
        if f_.startswith("nb"): NB2 = int(f_[2:])
    def breg(buf, i):
        if buf < 5: return "v", FRB + buf*36 + 4*i
        return "a", 80 + (buf-5)*36 + 4*i
    def ld2(buf):
        for jd in range(5):
            t, r = breg(buf, jd)
            I(f"buffer_load_dwordx4 {t}[{r}:{r+3}], v{3+jd}, s[8:11], s46 offen{CP}")
        for js in range(4):
            t, r = breg(buf, 5+js)
            I(f"buffer_load_dwordx4 {t}[{r}:{r+3}], v{8+js}, s[12:15], s46 offen{CP}")
        I("s_add_u32 s46, s46, 1024")
    def mm2(buf):
        for js in range(4):
            for jd in range(5):
                c = acc(jd, js)
                t, a = breg(buf, jd); t, b = breg(buf, 5+js)
                I(f"v_mfma_f32_16x16x32_bf16 a[{c}:{c+3}], {t}[{a}:{a+3}], {t}[{b}:{b+3}], a[{c}:{c+3}]")
    for b in range(NB2-1):
        ld2(b)
    for j in range(80):
        I(f"v_accvgpr_write_b32 a{j}, 0")
    HOIST = "hoist" in FLAGS
    if HOIST:
        IDB2, TQ, TYQ = 244, 248, 236
        I("s_and_b32 s44, s3, 1")
        I("s_lshl_b32 s44, s44, 4")
        I(f"v_add_u32 v{TQ}, s44, v1")
        I(f"v_lshrrev_b32 v{TQ+1}, 3, v{TQ}")
        I(f"v_cmp_eq_u32 vcc, v{TQ+1}, v2")
        I(f"v_and_b32 v{TQ+1}, 7, v{TQ}")
        I(f"v_and_b32 v{TQ+2}, 1, v{TQ+1}")
        I(f"v_lshlrev_b32 v{TQ+2}, 4, v{TQ+2}")
        I(f"v_mov_b32 v{TQ+3}, 0x3f80")
        I(f"v_lshlrev_b32 v{TQ+3}, v{TQ+2}, v{TQ+3}")
        I(f"v_lshrrev_b32 v{TQ+1}, 1, v{TQ+1}")
        I(f"v_cndmask_b32 v{TQ+3}, 0, v{TQ+3}, vcc")
        for j in range(4):
            I(f"v_cmp_eq_u32 vcc, {j}, v{TQ+1}")
            I("s_nop 1")
            I(f"v_cndmask_b32 v{IDB2+j}, 0, v{TQ+3}, vcc")
        I(f"s_waitcnt vmcnt({9*(NB2-1)})")
        I("s_nop 1")
        for jd in range(5):
            ty = TYQ + (jd % 2)*4; t = TQ + (jd % 2)*4
            x0 = XX + 2*jd; n0 = XX + 10 + 2*jd
            I(f"v_mfma_f32_16x16x32_bf16 v[{ty}:{ty+3}], v[{YF+4*jd}:{YF+4*jd+3}], v[{IDB2}:{IDB2+3}], 0")
            if FUSE:
                lo16(t, x0); hi16(t+1, x0); lo16(t+2, x0+1); hi16(t+3, x0+1)
                for r in range(4): I(f"v_add_f32 v{t+r}, v{t+r}, v{XX+11}")
                for r in range(4): I(f"v_cvt_pk_bf16_f32 v{t+r}, 0, v{t+r}")
                for r in range(4): I(f"v_mul_f32 v{t+r}, v{t+r}, v{XX+10}")
                for r in range(4): I(f"v_cvt_pk_bf16_f32 v{t+r}, 0, v{t+r}")
            else:
                lo16(t, n0); hi16(t+1, n0); lo16(t+2, n0+1); hi16(t+3, n0+1)
            I("s_nop 7")
            I("s_nop 3")
            for r in range(4):
                I(f"v_mul_f32 v{t+r}, v{t+r}, v{ty+r}")
            I(f"v_cvt_pk_bf16_f32 v{ty}, v{t}, v{t+1}")
            I(f"v_cvt_pk_bf16_f32 v{ty+1}, v{t+2}, v{t+3}")
            lo16(t, ty); hi16(t+1, ty); lo16(t+2, ty+1); hi16(t+3, ty+1)
            lo16(ty, x0); hi16(ty+1, x0); lo16(ty+2, x0+1); hi16(ty+3, x0+1)
            for r in range(4):
                I(f"v_add_f32 v{t+r}, v{t+r}, v{ty+r}")
            I(f"v_cvt_pk_bf16_f32 v{x0}, v{t}, v{t+1}")
            I(f"v_cvt_pk_bf16_f32 v{x0+1}, v{t+2}, v{t+3}")
    stamp()
    for k in range(14):
        nb = k + NB2 - 1
        if nb <= 12:
            ld2(nb % NB2)
        elif nb == 13:
            I("s_cmp_ge_u32 s3, 2")
            I("s_cbranch_scc1 F_skip13")
            ld2(nb % NB2)
            e("F_skip13:")
        if k == 13:
            I("s_cmp_ge_u32 s3, 2")
            I("s_cbranch_scc1 F_done")
        rem = max(0, min(12, nb) - k)
        if k < 13: I(f"s_waitcnt vmcnt({9*rem})")
        mm2(k % NB2)
    e("F_done:")
    stamp()
    I("s_mul_i32 s40, s3, 20480")
    I("v_lshlrev_b32 v13, 4, v12")
    I("v_add_u32 v13, s40, v13")
    I("s_nop 7")
    for js in range(4):
        for jd in range(5):
            c = acc(jd, js)
            I(f"ds_write_b128 v13, a[{c}:{c+3}] offset:{(js*5+jd)*1024}")
    I("s_waitcnt lgkmcnt(0)")
    I("s_barrier")
    I("s_mul_i32 s40, s3, 5120")
    I("v_lshlrev_b32 v12, 4, v12")
    I("v_add_u32 v13, s40, v12")
    I("v_add_u32 v12, 40960, v13")
    R = 96
    for src in range(4):
        for jd in range(5):
            r = R + (src*5 + jd)*4
            I(f"ds_read_b128 v[{r}:{r+3}], v{13 if src < 2 else 12} offset:{(src%2)*20480 + jd*1024}")
    if HOIST:
        I("s_waitcnt lgkmcnt(0)")
        for jd in range(5):
            r0 = R + jd*4
            I(f"v_add_f32 v{r0}, v{r0}, v{R+(5+jd)*4}")
            I(f"v_add_f32 v{r0+1}, v{r0+1}, v{R+(5+jd)*4+1}")
            I(f"v_add_f32 v{r0+2}, v{r0+2}, v{R+(5+jd)*4+2}")
            I(f"v_add_f32 v{r0+3}, v{r0+3}, v{R+(5+jd)*4+3}")
            for src in range(2, 4):
                r = R + (src*5 + jd)*4
                for j in range(4):
                    I(f"v_add_f32 v{r0+j}, v{r0+j}, v{r+j}")
            b = r0; t = 16 + (jd % 2)*16; x0 = XX + 2*jd
            I(f"v_cvt_pk_bf16_f32 v{t+4}, v{b}, v{b+1}")
            I(f"v_cvt_pk_bf16_f32 v{t+5}, v{b+2}, v{b+3}")
            lo16(t, x0); hi16(t+1, x0); lo16(t+2, x0+1); hi16(t+3, x0+1)
            lo16(t+6, t+4); hi16(t+7, t+4); lo16(t+8, t+5); hi16(t+9, t+5)
            for r in range(4):
                I(f"v_add_f32 v{t+r}, v{t+r}, v{t+6+r}")
            I(f"v_cvt_pk_bf16_f32 v{t+10}, v{t}, v{t+1}")
            I(f"v_cvt_pk_bf16_f32 v{t+11}, v{t+2}, v{t+3}")
            I(f"buffer_store_dwordx2 v[{t+10}:{t+11}], v15, s[32:35], 0 offen offset:{32*jd}")
    else:
        IDB = 60
        I("s_and_b32 s44, s3, 1")
        I("s_lshl_b32 s44, s44, 4")
        I("v_add_u32 v64, s44, v1")
        I("v_lshrrev_b32 v65, 3, v64")
        I("v_cmp_eq_u32 vcc, v65, v2")
        I("v_and_b32 v65, 7, v64")
        I("v_and_b32 v66, 1, v65")
        I("v_lshlrev_b32 v66, 4, v66")
        I("v_mov_b32 v67, 0x3f80")
        I("v_lshlrev_b32 v67, v66, v67")
        I("v_lshrrev_b32 v65, 1, v65")
        I("v_cndmask_b32 v67, 0, v67, vcc")
        for j in range(4):
            I(f"v_cmp_eq_u32 vcc, {j}, v65")
            I("s_nop 1")
            I(f"v_cndmask_b32 v{IDB+j}, 0, v67, vcc")
        TY = 64
        I("s_nop 1")
        for jd in range(5):
            I(f"v_mfma_f32_16x16x32_bf16 v[{TY+4*jd}:{TY+4*jd+3}], v[{YF+4*jd}:{YF+4*jd+3}], v[{IDB}:{IDB+3}], 0")
        I("s_waitcnt lgkmcnt(0)")
        for jd in range(5):
            r0 = R + jd*4
            for src in range(1, 4):
                r = R + (src*5 + jd)*4
                for j in range(4):
                    I(f"v_add_f32 v{r0+j}, v{r0+j}, v{r+j}")
        I("s_waitcnt vmcnt(0)")
        for jd in range(5):
            b = R + jd*4
            ty = TY + 4*jd
            t = 180 + (jd % 2)*16
            x0 = XX + 2*jd; n0 = XX + 10 + 2*jd
            lo16(t, n0); hi16(t+1, n0); lo16(t+2, n0+1); hi16(t+3, n0+1)
            for r in range(4):
                I(f"v_mul_f32 v{t+r}, v{t+r}, v{ty+r}")
            I(f"v_cvt_pk_bf16_f32 v{t+4}, v{t}, v{t+1}")
            I(f"v_cvt_pk_bf16_f32 v{t+5}, v{t+2}, v{t+3}")
            lo16(t, t+4); hi16(t+1, t+4); lo16(t+2, t+5); hi16(t+3, t+5)
            lo16(t+6, x0); hi16(t+7, x0); lo16(t+8, x0+1); hi16(t+9, x0+1)
            for r in range(4):
                I(f"v_add_f32 v{t+r}, v{t+r}, v{t+6+r}")
            I(f"v_cvt_pk_bf16_f32 v{t+4}, v{t}, v{t+1}")
            I(f"v_cvt_pk_bf16_f32 v{t+5}, v{t+2}, v{t+3}")
            lo16(t, t+4); hi16(t+1, t+4); lo16(t+2, t+5); hi16(t+3, t+5)
            I(f"v_cvt_pk_bf16_f32 v{t+4}, v{b}, v{b+1}")
            I(f"v_cvt_pk_bf16_f32 v{t+5}, v{b+2}, v{b+3}")
            lo16(t+6, t+4); hi16(t+7, t+4); lo16(t+8, t+5); hi16(t+9, t+5)
            for r in range(4):
                I(f"v_add_f32 v{t+r}, v{t+r}, v{t+6+r}")
            I(f"v_cvt_pk_bf16_f32 v{t+10}, v{t}, v{t+1}")
            I(f"v_cvt_pk_bf16_f32 v{t+11}, v{t+2}, v{t+3}")
            I(f"buffer_store_dwordx2 v[{t+10}:{t+11}], v15, s[32:35], 0 offen offset:{32*jd}")
    I("s_waitcnt vmcnt(0)")
    stamp()
    stamp_dump(9)
    e("F_exit:")
    I("s_endpgm")
    kernel_desc("fin_kernel", 256+80+36*max(0, NB2-5), 80, accum=256)

def main():
    hdr = open("parallel_sum__ssm_conv_h3__glu_gated_bilinear__prompt.s.ref").read().splitlines()
    for line in hdr:
        if line.startswith("; @launch"):
            break
        if line.startswith(";"):
            e(line)
    if not FUSE: e(f"; @launch kernel=prep_kernel grid=({N_LN+N_KV+N_PF},1,1) block=(256,1,1) lds=0")
    if BIG:
        e("; @launch kernel=mid_kernel grid=(256,1,1) block=(512,1,1) lds=163840")
    else:
        e(f"; @launch kernel=mid_kernel grid=({N_G1+N_CV},1,1) block=(256,1,1) lds={LDS2}")
    e(f"; @launch kernel=fin_kernel grid=(256,1,1) block=(256,1,1) lds=81920")
    e('.amdgcn_target "amdgcn-amd-amdhsa--gfx950"')
    if not FUSE: gen_prep()
    gen_k2()
    gen_k3()
    dst = sys.argv[1] if len(sys.argv) > 1 else "parallel_sum__ssm_conv_h3__glu_gated_bilinear__prompt.s"
    open(dst, "w").write("\n".join(out) + "\n")

main()
```

```python
import sys

import os
FLAGS = os.environ.get("GENFLAGS", "").split(",")
CP = " nt" if "cpnt" in FLAGS else (" sc1" if "cpsc1" in FLAGS else (" sc0 sc1" if "cpsc01" in FLAGS else ""))
S, D, F = 2048, 640, 1728
WS_XN  = 0x0
WS_KVR = 0x280000
WS_WDT = 0x500000
WS_H   = 0x800000
WS_YT  = 0x1000000
WS_ST  = 0x1400000
FUSE = "fuse" in FLAGS
SZ_SD = S * D * 2
SZ_W  = D * F * 2
SZ_H  = S * F * 2

out = []
def e(s=""):
    out.append(s)
SP = " nt" if "stnt" in FLAGS else (" sc0 sc1" if "stsc" in FLAGS else (" sc1" if "stsc1" in FLAGS else (" sc0 sc1 nt" if "stall" in FLAGS else "")))
def I(s):
    if s.startswith("buffer_store") and "s[56:59]" not in s: s += SP
    out.append("    " + s)

def srd(base, ptr, size, off=0):
    if off:
        I(f"s_add_u32 s{base}, s{ptr}, {off:#x}")
        I(f"s_addc_u32 s{base+1}, s{ptr+1}, 0")
    else:
        I(f"s_mov_b32 s{base}, s{ptr}")
        I(f"s_mov_b32 s{base+1}, s{ptr+1}")
    I(f"s_mov_b32 s{base+2}, {size:#x}")
    I(f"s_mov_b32 s{base+3}, 0x00020000")

def lo16(dst, src): I(f"v_lshlrev_b32 v{dst}, 16, v{src}")
def hi16(dst, src): I(f"v_and_b32 v{dst}, 0xffff0000, v{src}")

STAMP = "stamp" in FLAGS
nst = [0]
def stamp():
    if STAMP:
        i = nst[0]; nst[0] += 1
        I(f"s_memtime s[{60+2*i}:{61+2*i}]")
def stamp_dump(wg):
    if not STAMP: return
    n = nst[0]; nst[0] = 0
    if "ast" in FLAGS:
        kidx = 1 if wg == 9 else 0
        I("s_waitcnt lgkmcnt(0) vmcnt(0)")
        I("s_load_dwordx2 s[56:57], s[0:1], 96")
        I("s_memrealtime s[58:59]")
        I("s_waitcnt lgkmcnt(0)")
        I("v_mov_b32 v3, s58")
        I(f"s_add_u32 s56, s56, {0x1800000 + kidx*0x40000}")
        I("s_addc_u32 s57, s57, 0")
        I("s_mov_b32 s58, 0x40000")
        I("s_mov_b32 s59, 0x00020000")
        I("s_lshl_b32 s61, s2, 3")
        I("s_add_u32 s61, s61, s3")
        I("s_lshl_b32 s61, s61, 6")
        I("v_mov_b32 v1, s61")
        I("buffer_store_dword v3, v1, s[56:59], 0 offen")
        for i in range(1, n):
            I(f"s_sub_u32 s{61+2*i}, s{60+2*i}, s60")
            I(f"v_mov_b32 v2, s{61+2*i}")
            I(f"buffer_store_dword v2, v1, s[56:59], 0 offen offset:{4*i}")
        I("s_waitcnt vmcnt(0)")
        return
    I("s_waitcnt lgkmcnt(0) vmcnt(0)")
    I(f"s_cmp_lg_u32 s2, {wg}")
    I(f"s_cbranch_scc1 SD_skip{wg}")
    I("s_cmp_lg_u32 s3, 0")
    I(f"s_cbranch_scc1 SD_skip{wg}")
    I("s_load_dwordx2 s[56:57], s[0:1], 88")
    I("s_waitcnt lgkmcnt(0)")
    I("s_mov_b32 s58, 256")
    I("s_mov_b32 s59, 0x00020000")
    I("v_mov_b32 v1, 0")
    for i in range(n):
        I(f"s_sub_u32 s{61+2*i}, s{60+2*i}, s60")
        I(f"v_mov_b32 v2, s{61+2*i}")
        I(f"buffer_store_dword v2, v1, s[56:59], 0 offen offset:{4*i + (64 if wg == 255 else 0)}")
    I("s_waitcnt vmcnt(0)")
    e(f"SD_skip{wg}:")

WGT = "wgt" in FLAGS
def wgt_start():
    if WGT: I("s_memrealtime s[76:77]")
wgtn = [0]
def wgt_end(kidx):
    if not WGT: return
    n = wgtn[0]; wgtn[0] += 1
    I("s_waitcnt vmcnt(0) lgkmcnt(0)")
    I("s_memrealtime s[78:79]")
    I("s_load_dwordx2 s[72:73], s[0:1], 96")
    I("v_lshrrev_b32 v1, 6, v0")
    I("s_nop 0")
    I("v_readfirstlane_b32 s70, v1")
    I("s_lshl_b32 s71, s2, 3")
    I("s_add_u32 s70, s70, s71")
    I("s_lshl_b32 s70, s70, 3")
    I("s_waitcnt lgkmcnt(0)")
    I(f"s_add_u32 s72, s72, {0x1800000 + kidx*0x10000}")
    I("s_addc_u32 s73, s73, 0")
    I("s_mov_b32 s74, 0x10000")
    I("s_mov_b32 s75, 0x00020000")
    I("v_mov_b32 v2, s76")
    I("v_mov_b32 v3, s78")
    I("v_mov_b32 v1, s70")
    I("buffer_store_dwordx2 v[2:3], v1, s[72:75], 0 offen")
    I("s_waitcnt vmcnt(0)")

def kernel_header(name):
    e(".text")
    e(f".globl {name}")
    e(".p2align 8")
    e(f".type {name},@function")
    e(f"{name}:")

def kernel_desc(name, vgpr, sgpr, accum=None):
    if accum is None:
        accum = (vgpr + 3) // 4 * 4
    e('.section .rodata,"a"')
    e(".p2align 6")
    e(f".amdhsa_kernel {name}")
    e(f"  .amdhsa_next_free_vgpr {vgpr}")
    e(f"  .amdhsa_next_free_sgpr {sgpr}")
    e(f"  .amdhsa_accum_offset {accum}")
    e("  .amdhsa_group_segment_fixed_size 0")
    e("  .amdhsa_kernarg_size 104")
    e("  .amdhsa_user_sgpr_count 2")
    e("  .amdhsa_user_sgpr_kernarg_segment_ptr 1")
    e("  .amdhsa_system_sgpr_workgroup_id_x 1")
    e(".end_amdhsa_kernel")

N_LN, N_KV = 128, 160
N_PF = 0
if "pfw" in FLAGS: N_PF = 4*36
if "pfw2" in FLAGS: N_PF = 2*36
def gen_prep():
    kernel_header("prep_kernel")
    I(f"s_cmp_ge_u32 s2, {N_LN+N_KV+N_PF}")
    I("s_cbranch_scc1 P_exit")
    if N_PF:
        I(f"s_cmp_ge_u32 s2, {N_LN+N_KV}")
        I("s_cbranch_scc1 P_pf")
    I("s_load_dwordx2 s[6:7], s[0:1], 96")
    I(f"s_cmp_lt_u32 s2, {N_KV}")
    I("s_cbranch_scc1 P_kv")
    if "noln" in FLAGS: I("s_endpgm")
    I("s_load_dwordx2 s[4:5], s[0:1], 0")
    I("v_lshrrev_b32 v1, 4, v0")
    I(f"s_sub_u32 s3, s2, {N_KV}")
    I("s_lshl_b32 s3, s3, 4")
    I("v_add_u32 v1, s3, v1")
    I("v_mul_u32_u24 v2, 0x500, v1")
    I("v_and_b32 v3, 15, v0")
    I("v_lshl_add_u32 v2, v3, 4, v2")
    I("s_waitcnt lgkmcnt(0)")
    srd(8, 4, SZ_SD)
    srd(12, 6, SZ_SD, WS_XN)
    for j in range(5):
        I(f"buffer_load_dwordx4 v[{4+4*j}:{7+4*j}], v2, s[8:11], 0 offen offset:{256*j}")
    I("v_lshrrev_b32 v2, 4, v1")
    I("v_mul_u32_u24 v2, 20480, v2")
    I("v_lshrrev_b32 v64, 2, v3")
    I("v_lshl_add_u32 v2, v64, 10, v2")
    I("v_and_b32 v64, 3, v3")
    I("v_lshl_add_u32 v2, v64, 8, v2")
    I("v_and_b32 v64, 15, v1")
    I("v_lshl_add_u32 v2, v64, 4, v2")
    I("s_waitcnt vmcnt(0)")
    X = 24
    for j in range(20):
        lo16(X + 2*j, 4 + j)
        hi16(X + 2*j + 1, 4 + j)
    T = 64
    for j in range(20):
        I(f"v_add_f32 v{T+j}, v{X+2*j}, v{X+2*j+1}")
    def tree(base, n):
        while n > 1:
            h = n // 2
            for j in range(h):
                I(f"v_add_f32 v{base+j}, v{base+j}, v{base+n-1-j}")
            n = n - h
    tree(T, 20)
    def dpp_reduce(r, tmp):
        for sh in (8, 4, 2, 1):
            I("s_nop 1")
            I(f"v_add_f32_dpp v{tmp}, v{r}, v{r} row_ror:{sh} row_mask:0xf bank_mask:0xf")
            I(f"v_mov_b32 v{r}, v{tmp}")
    dpp_reduce(T, T+1)
    I(f"v_mul_f32 v{T}, {1.0/640.0!r}, v{T}")
    for j in range(40):
        I(f"v_sub_f32 v{T+2+j}, v{X+j}, v{T}")
    for j in range(40):
        I(f"v_mul_f32 v{T+2+j}, v{T+2+j}, v{T+2+j}")
    tree(T+2, 40)
    dpp_reduce(T+2, T+1)
    I(f"v_mul_f32 v{T+2}, {1.0/640.0!r}, v{T+2}")
    I(f"v_cvt_pk_bf16_f32 v{T}, v{T}, v{T+2}")
    hi16(T+2, T)
    lo16(T, T)
    I(f"v_add_f32 v{T+2}, {1e-5!r}, v{T+2}")
    I(f"v_cvt_pk_bf16_f32 v{T+2}, v{T+2}, v{T+2}")
    lo16(T+2, T+2)
    I(f"v_sqrt_f32 v{T+2}, v{T+2}")
    I("s_nop 0")
    I(f"v_cvt_pk_bf16_f32 v{T+2}, v{T+2}, v{T+2}")
    lo16(T+2, T+2)
    I(f"v_rcp_f32 v{T+3}, v{T+2}")
    I("s_nop 0")
    for j in range(20):
        a, b = X + 2*j, X + 2*j + 1
        I(f"v_sub_f32 v{a}, v{a}, v{T}")
        I(f"v_sub_f32 v{b}, v{b}, v{T}")
        I(f"v_cvt_pk_bf16_f32 v{T+4}, v{a}, v{b}")
        lo16(a, T+4)
        hi16(b, T+4)
        for r in (a, b):
            I(f"v_mul_f32 v{T+5}, v{r}, v{T+3}")
            I(f"v_fma_f32 v{T+6}, -v{T+5}, v{T+2}, v{r}")
            I(f"v_fma_f32 v{r}, v{T+6}, v{T+3}, v{T+5}")
        I(f"v_cvt_pk_bf16_f32 v{4+j}, v{a}, v{b}")
        if j % 4 == 3:
            jj = j // 4
            I(f"s_mov_b32 s16, {4096*jj}")
            I(f"buffer_store_dwordx4 v[{4+4*jj}:{7+4*jj}], v2, s[12:15], s16 offen")
    I("s_endpgm")
    e("P_kv:")
    if "nokv" in FLAGS: I("s_endpgm")
    I("s_load_dwordx4 s[16:19], s[0:1], 8")
    I("s_load_dwordx2 s[4:5], s[0:1], 24")
    I("s_mul_i32 s28, s2, 0xCCCD")
    I("s_lshr_b32 s28, s28, 19")
    I("s_mul_i32 s29, s28, 10")
    I("s_sub_u32 s29, s2, s29")
    I("v_and_b32 v1, 7, v0")
    I("v_lshrrev_b32 v2, 3, v0")
    I("s_lshl_b32 s30, s29, 6")
    I("v_lshl_add_u32 v1, v1, 3, s30")
    I("s_lshl_b32 s31, s28, 7")
    I("v_lshl_add_u32 v2, v2, 2, s31")
    I("v_mul_u32_u24 v3, 0x500, v2")
    I("v_lshl_add_u32 v3, v1, 1, v3")
    for i in range(3):
        I(f"v_subrev_u32 v{5+i}, {(3-i)*1280:#x}, v3")
    I("v_lshlrev_b32 v8, 3, v1")
    I("s_waitcnt lgkmcnt(0)")
    srd(8, 16, SZ_SD)
    srd(12, 18, SZ_SD)
    srd(20, 4, D*4*2)
    srd(24, 6, SZ_SD, WS_KVR)
    KR = 16
    for i in range(3):
        I(f"buffer_load_dwordx4 v[{KR+4*i}:{KR+4*i+3}], v{5+i}, s[8:11], 0 offen")
    for i in range(4):
        I(f"buffer_load_dwordx4 v[{KR+4*(i+3)}:{KR+4*(i+3)+3}], v3, s[8:11], 0 offen offset:{i*1280}")
    VR = KR + 28
    for i in range(4):
        I(f"buffer_load_dwordx4 v[{VR+4*i}:{VR+4*i+3}], v3, s[12:15], 0 offen offset:{i*1280}")
    SK = VR + 16
    for i in range(4):
        I(f"buffer_load_dwordx4 v[{SK+4*i}:{SK+4*i+3}], v8, s[20:23], 0 offen offset:{16*i}")
    I("v_lshlrev_b32 v9, 12, v1")
    I(f"v_sub_u32 v10, {S-4}, v2")
    I("v_lshl_add_u32 v9, v10, 1, v9")
    I("s_waitcnt vmcnt(0)")
    KF = 76
    VF = 83
    SF = 87
    TM = 92
    OB = 104
    for dd in range(8):
        ex = lo16 if dd % 2 == 0 else hi16
        for i in range(7):
            ex(KF + i, KR + 4*i + dd//2)
        for i in range(4):
            ex(VF + i, VR + 4*i + dd//2)
        lo16(SF+0, SK + 2*dd); hi16(SF+1, SK + 2*dd)
        lo16(SF+2, SK + 2*dd + 1); hi16(SF+3, SK + 2*dd + 1)
        ob = OB + 2*(dd % 4)
        for q in range(2):
            sa, sb = 3 - 2*q, 2 - 2*q
            t = TM
            I(f"v_mul_f32 v{t}, v{KF+sa}, v{SF+3}")
            I(f"v_mul_f32 v{t+1}, v{KF+sb}, v{SF+3}")
            I(f"v_mul_f32 v{t+2}, v{KF+sa+1}, v{SF+2}")
            I(f"v_mul_f32 v{t+3}, v{KF+sb+1}, v{SF+2}")
            I(f"v_mul_f32 v{t+4}, v{KF+sa+2}, v{SF+1}")
            I(f"v_mul_f32 v{t+5}, v{KF+sb+2}, v{SF+1}")
            I(f"v_mul_f32 v{t+6}, v{KF+sa+3}, v{SF+0}")
            I(f"v_mul_f32 v{t+7}, v{KF+sb+3}, v{SF+0}")
            for p in range(4):
                I(f"v_cvt_pk_bf16_f32 v{t+8+p}, v{t+2*p}, v{t+2*p+1}")
            for p in range(4):
                lo16(t+2*p, t+8+p); hi16(t+2*p+1, t+8+p)
            for step in (1, 2, 3):
                I(f"v_add_f32 v{t}, v{t}, v{t+2*step}")
                I(f"v_add_f32 v{t+1}, v{t+1}, v{t+2*step+1}")
                I(f"v_cvt_pk_bf16_f32 v{t+8}, v{t}, v{t+1}")
                lo16(t, t+8); hi16(t+1, t+8)
            I(f"v_mul_f32 v{t}, v{t}, v{VF+sa}")
            I(f"v_mul_f32 v{t+1}, v{t+1}, v{VF+sb}")
            I(f"v_cvt_pk_bf16_f32 v{ob+q}, v{t}, v{t+1}")
        I(f"s_mov_b32 s16, {4096*dd}")
        I(f"buffer_store_dwordx2 v[{ob}:{ob+1}], v9, s[24:27], s16 offen")
    if N_PF:
        I("s_endpgm")
        e("P_pf:")
        I(f"s_sub_u32 s3, s2, {N_LN+N_KV}")
        I("s_mul_i32 s4, s3, 1821")
        I("s_lshr_b32 s4, s4, 16")
        I("s_mul_i32 s5, s4, 36")
        I("s_sub_u32 s5, s3, s5")
        I("s_lshl_b32 s6, s4, 3")
        I("s_add_u32 s6, s6, 56")
        I("s_cmp_eq_u32 s4, 3")
        I("s_cselect_b32 s6, 32, s6")
        I("s_load_dwordx2 s[8:9], s[0:1], s6")
        I(f"s_mov_b32 s10, {SZ_W}")
        I(f"s_cselect_b32 s10, {SZ_SD}, s10")
        I("s_mov_b32 s11, 0x00020000")
        I("s_mov_b32 s7, 65536")
        I("s_cselect_b32 s7, 73728, s7")
        I("s_mul_i32 s5, s5, s7")
        I("v_lshlrev_b32 v1, 4, v0")
        I("s_waitcnt lgkmcnt(0)")
        for i in range(18):
            I(f"buffer_load_dwordx4 v[{4+4*i}:{7+4*i}], v1, s[8:11], s5 offen")
            I("s_add_u32 s5, s5, 4096")
        I("s_waitcnt vmcnt(0)")
    e("P_exit:")
    I("s_endpgm")
    kernel_desc("prep_kernel", 112, 40)

BF = 112
NSLOT = 5
SLOT = 16384
LDS2 = NSLOT * SLOT
N_G1, N_CV = 256, 256

class DSQ:
    def __init__(self): self.q = []
    def push(self, tag): self.q.append(tag)
    def wait_for(self, tag):
        if tag not in self.q: return
        idx = max(i for i, t in enumerate(self.q) if t == tag)
        n = len(self.q) - 1 - idx
        I(f"s_waitcnt lgkmcnt({min(n,15)})")
        self.q = self.q[idx+1:] if n <= 15 else self.q[len(self.q)-15:]

BIG = "big" in FLAGS
def gen_g1big():
    NF = 10; RS = 320; MS = 32*RS; SL = 2*MS; NS = 8; DB = 3; LA = 3; NST = 20
    for f_ in FLAGS:
        if f_.startswith("ns"): NS = int(f_[2:])
    DW = NS - 1
    stamp()
    I("s_load_dwordx4 s[16:19], s[0:1], 56")
    I(f"s_mul_i32 s25, s25, {16*NF}")
    I(f"s_min_u32 s25, s25, {F-16*NF}")
    I("v_and_b32 v1, 63, v0")
    PROD = "prod" in FLAGS
    if PROD:
        I("s_cmp_lt_u32 s3, 4")
        I("s_cbranch_scc1 G1_cons")
        DWP = 6
        I("s_lshl_b32 s27, s25, 1")
        for i in range(10):
            I(f"v_add_u32 v20, {64*i}, v1")
            I("v_mul_u32_u24 v21, 3277, v20")
            I("v_lshrrev_b32 v21, 16, v21")
            I("v_mul_u32_u24 v22, 20, v21")
            I("v_sub_u32 v22, v20, v22")
            I("v_bfe_u32 v23, v21, 3, 1")
            I("v_lshlrev_b32 v23, 1, v23")
            I("v_xor_b32 v22, v22, v23")
            I("v_mul_u32_u24 v21, 3456, v21")
            I("v_lshl_add_u32 v21, v22, 4, v21")
            I("v_add_u32 v21, s27, v21")
            I(f"v_subrev_u32 v{2+i}, {1024*(i%4)}, v21")
        I("s_sub_u32 s29, s3, 4")
        I(f"s_mul_i32 s29, s29, {MS}")
        I("s_waitcnt lgkmcnt(0)")
        I("s_cmp_ge_u32 s3, 5")
        I("s_cselect_b32 s4, s18, s16")
        I("s_cselect_b32 s5, s19, s17")
        srd(8, 4, SZ_W)
        pq = []
        def pdma(st):
            I(f"s_mov_b32 s28, {st*32*3456}")
            for i in range(10):
                if i % 4 == 0: I(f"s_add_u32 m0, s29, {(st % NS)*SL + (i//4)*4096}")
                I(f"buffer_load_dwordx4 v{2+i}, s[8:11], s28 offen offset:{1024*(i%4)} lds")
                pq.append(st)
        def pwait(st):
            idx = max(i for i, t in enumerate(pq) if t == st)
            I(f"s_waitcnt vmcnt({len(pq)-1-idx})")
            del pq[:idx+1]
        if "ramp" in FLAGS:
            for st in range(3): pdma(st)
            pwait(0)
            I("s_barrier")
            pdma(3); pdma(4)
            for st in range(NST-1):
                pwait(st+1)
                I("s_barrier")
                if st == 0: pdma(5)
                if st + DWP < NST: pdma(st + DWP)
        else:
            for st in range(DWP): pdma(st)
            pwait(0)
            I("s_barrier")
            for st in range(NST-1):
                pwait(st+1)
                I("s_barrier")
                if st + DWP < NST: pdma(st + DWP)
        I("s_endpgm")
        e("G1_cons:")
    I("s_and_b32 s26, s3, 1")
    I("s_lshl_b32 s26, s26, 4")
    I("s_lshl_b32 s27, s25, 1")
    for i in range(5 if not PROD else 0):
        I(f"v_add_u32 v10, {64*i}, v1")
        I("v_mul_u32_u24 v11, 3277, v10")
        I("v_lshrrev_b32 v11, 16, v11")
        I("v_mul_u32_u24 v12, 20, v11")
        I("v_sub_u32 v12, v10, v12")
        I("v_add_u32 v11, s26, v11")
        I("v_bfe_u32 v13, v11, 3, 1")
        I("v_lshlrev_b32 v13, 1, v13")
        I("v_xor_b32 v12, v12, v13")
        I("v_mul_u32_u24 v11, 3456, v11")
        I("v_lshl_add_u32 v11, v12, 4, v11")
        I("v_add_u32 v11, s27, v11")
        I(f"v_subrev_u32 v{2+i}, {1024*(i%4)}, v11")
    I("s_lshl_b32 s26, s24, 3")
    I("s_lshl_b32 s27, s3, 1")
    I("s_add_u32 s26, s26, s27")
    I("s_mul_i32 s27, s26, 20480")
    I("v_lshl_add_u32 v7, v1, 4, s27")
    I("v_add_u32 v8, 20480, v7")
    I("s_mul_i32 s27, s26, 55296")
    I("v_lshl_add_u32 v9, v1, 4, s27")
    I("v_add_u32 v10, 55296, v9")
    I("v_bfe_u32 v17, v0, 4, 2")
    I("v_bfe_u32 v18, v0, 2, 2")
    I("v_lshl_add_u32 v19, v17, 3, v18")
    I(f"v_mul_u32_u24 v19, {RS}, v19")
    I("v_and_b32 v18, 3, v0")
    I("v_lshl_add_u32 v19, v18, 3, v19")
    I("v_and_b32 v20, 1, v17")
    I("v_lshlrev_b32 v20, 5, v20")
    I("v_add_u32 v11, v19, v20")
    I("v_sub_u32 v12, v19, v20")
    ROLL = "roll" in FLAGS
    if ROLL:
        for k_, offs in ((1, 3*SL), (2, 4*SL), (3, 7*SL)):
            I(f"v_add_u32 v{11+2*k_}, {offs}, v11")
            I(f"v_add_u32 v{12+2*k_}, {offs}, v12")
    else:
        for rg in (1, 2):
            I(f"v_add_u32 v{11+2*rg}, {rg*3*SL}, v11")
            I(f"v_add_u32 v{12+2*rg}, {rg*3*SL}, v12")
    I("s_mul_i32 s29, s3, 5120")
    I("s_waitcnt lgkmcnt(0)")
    I("s_cmp_ge_u32 s3, 2")
    I("s_cselect_b32 s4, s18, s16")
    I("s_cselect_b32 s5, s19, s17")
    srd(8, 4, SZ_W)
    srd(12, 6, SZ_SD, WS_XN)
    srd(20, 6, SZ_H, WS_H)
    BB = 24; AF = 56; ACC = 80
    def acc(m, jf, js): return ACC + ((m*NF + jf)*2 + js)*4
    vq = []
    def vwait(tags):
        if not any(t in tags for t in vq): return
        idx = max(i for i, t in enumerate(vq) if t in tags)
        n = len(vq) - 1 - idx
        I(f"s_waitcnt vmcnt({n})")
        del vq[:idx+1]
    def dma(st):
        if PROD: return
        I(f"s_add_u32 m0, s29, {(st % NS)*SL}")
        I(f"s_mov_b32 s28, {st*32*3456}")
        for i in range(5):
            if i == 4: I(f"s_add_u32 m0, s29, {(st % NS)*SL + 4096}")
            I(f"buffer_load_dwordx4 v{2+i}, s[8:11], s28 offen offset:{1024*(i%4)} lds")
            vq.append(("D", st))
    def bld(st):
        I(f"s_mov_b32 s31, {st*1024}")
        for js in range(2):
            r = BB + (st % (DB+1))*8 + js*4
            I(f"buffer_load_dwordx4 v[{r}:{r+3}], v{7+js}, s[12:15], s31 offen")
            vq.append(("B", st))
    seq = [(m, jf) for m in range(2) for jf in range(NF)]
    NQ = len(seq)
    def rdx(gpos):
        st, idx = divmod(gpos, NQ)
        m, jf = seq[idx]
        slot = st % NS
        a = AF + (gpos % 4)*4
        va = 11 + 2*(slot // 3) + (jf & 1)
        off = (slot % 3)*SL + m*MS + jf*32
        return [f"ds_read_b64_tr_b16 v[{a}:{a+1}], v{va} offset:{off}",
                f"ds_read_b64_tr_b16 v[{a+2}:{a+3}], v{va} offset:{off+4*RS}"]
    for st in range(DW):
        dma(st)
        if ROLL:
            if st >= DW - DB: bld(st - (DW - DB))
        elif st < DB: bld(st)
    for j in range(4*2*2*NF):
        I(f"v_mov_b32 v{ACC+j}, 0")
    stamp()
    vwait([("D", 0)])
    I("s_barrier")
    for i in range(LA):
        for x in rdx(i): I(x)
    if ROLL:
        assert NS == 8
        I("s_mov_b32 s33, 0")
        I("s_mov_b32 s36, s29")
        I(f"s_add_u32 s37, s29, {4*SL}")
        I(f"s_mov_b32 s28, {DW*32*3456}")
        I(f"s_mov_b32 s31, {DB*1024}")
        def rdr(p, idx, ring):
            m, jf = seq[idx]
            a = AF + (ring % 4)*4
            if p < 3: va = 11 + (jf & 1); off = p*SL
            elif p == 3: va = 13 + (jf & 1); off = 0
            else: va = 15 + (jf & 1); off = 0
            off += m*MS + jf*32
            return [f"ds_read_b64_tr_b16 v[{a}:{a+1}], v{va} offset:{off}",
                    f"ds_read_b64_tr_b16 v[{a+2}:{a+3}], v{va} offset:{off+4*RS}"]
        e("G1_loop:")
        for p_ in range(4):
            I("s_waitcnt vmcnt(14)")
            I(f"s_cmp_lt_u32 s33, {4 if p_ < 2 else 3}")
            I(f"s_cbranch_scc1 G1_w{p_}")
            I("s_waitcnt vmcnt(2)")
            if p_ >= 2:
                I("s_cmp_lt_u32 s33, 4")
                I(f"s_cbranch_scc1 G1_w{p_}")
                I("s_waitcnt vmcnt(0)")
            e(f"G1_w{p_}:")
            I("s_barrier")
            I(f"s_cmp_ge_u32 s33, {4 if p_ == 0 else 3}")
            I(f"s_cbranch_scc1 G1_d{p_}")
            base, offs = ("s37", 3*SL) if p_ == 0 else ("s36", (p_-1)*SL)
            I(f"s_add_u32 m0, {base}, {offs}")
            for i in range(5):
                if i == 4: I(f"s_add_u32 m0, {base}, {offs + 4096}")
                I(f"buffer_load_dwordx4 v{2+i}, s[8:11], s28 offen offset:{1024*(i%4)} lds")
            I(f"s_add_u32 s28, s28, {32*3456}")
            e(f"G1_d{p_}:")
            if p_ > 0:
                I("s_cmp_ge_u32 s33, 4")
                I(f"s_cbranch_scc1 G1_b{p_}")
            for js in range(2):
                r = BB + ((p_ + DB) % 4)*8 + js*4
                I(f"buffer_load_dwordx4 v[{r}:{r+3}], v{7+js}, s[12:15], s31 offen")
            I("s_add_u32 s31, s31, 1024")
            if p_ > 0: e(f"G1_b{p_}:")
            for idx in range(NQ):
                if idx + LA < NQ: rr = rdr(p_, idx + LA, idx + LA)
                else: rr = rdr(p_ + 1, idx + LA - NQ, idx + LA)
                I(f"s_waitcnt lgkmcnt({2*LA-2})")
                m, jf = seq[idx]
                a = AF + (idx % 4)*4
                for js in range(2):
                    c = acc(m, jf, js); b = BB + p_*8 + js*4
                    I(f"v_mfma_f32_16x16x32_bf16 v[{c}:{c+3}], v[{a}:{a+3}], v[{b}:{b+3}], v[{c}:{c+3}]")
                    I(rr[js])
        for k_ in range(4):
            I(f"v_swap_b32 v{11+k_}, v{15+k_}")
        I("s_mov_b32 s38, s36")
        I("s_mov_b32 s36, s37")
        I("s_mov_b32 s37, s38")
        I("s_add_u32 s33, s33, 1")
        I("s_cmp_lt_u32 s33, 5")
        I("s_cbranch_scc1 G1_loop")
        I("s_waitcnt lgkmcnt(0)")
    for st in range(NST if not ROLL else 0):
        if st + 1 < NST:
            vwait([("D", st+1), ("B", st)])
            I("s_barrier")
        else:
            vwait([("B", st)])
        if "stamp3" in FLAGS and st in (0, 1, 5, 10, 15): stamp()
        if st + DW < NST and "g1nodma" not in FLAGS: dma(st + DW)
        if st + DB < NST and "g1nob" not in FLAGS: bld(st + DB)
        for idx in range(NQ if "g1nocomp" not in FLAGS else 0):
            gpos = st*NQ + idx
            rr = rdx(gpos + LA) if gpos + LA < NST*NQ else None
            I(f"s_waitcnt lgkmcnt({2*min(LA-1, NST*NQ-1-gpos)})")
            m, jf = seq[idx]
            a = AF + (gpos % 4)*4
            for js in range(2):
                c = acc(m, jf, js); b = BB + (st % (DB+1))*8 + js*4
                I(f"v_mfma_f32_16x16x32_bf16 v[{c}:{c+3}], v[{a}:{a+3}], v[{b}:{b+3}], v[{c}:{c+3}]")
                if rr: I(rr[js])
    stamp()
    I("s_lshr_b32 s34, s25, 5")
    I("s_lshl_b32 s34, s34, 10")
    I("s_add_u32 s35, s34, 4096")
    I("s_nop 7")
    I("s_nop 3")
    for js in range(2):
        for jp in range(NF//2):
            t = 24 + ((js*5 + jp) % 4) * 12
            for hh in range(2):
                jf = 2*jp + hh
                g = acc(0, jf, js); u = acc(1, jf, js)
                I(f"v_cvt_pk_bf16_f32 v{t}, v{g}, v{g+1}")
                I(f"v_cvt_pk_bf16_f32 v{t+1}, v{g+2}, v{g+3}")
                I(f"v_cvt_pk_bf16_f32 v{t+2}, v{u}, v{u+1}")
                I(f"v_cvt_pk_bf16_f32 v{t+3}, v{u+2}, v{u+3}")
                lo16(g, t); hi16(g+1, t); lo16(g+2, t+1); hi16(g+3, t+1)
                lo16(u, t+2); hi16(u+1, t+2); lo16(u+2, t+3); hi16(u+3, t+3)
                for r in range(4):
                    I(f"v_mul_f32 v{g+r}, v{g+r}, v{u+r}")
                I(f"v_cvt_pk_bf16_f32 v{t+4+2*hh}, v{g}, v{g+1}")
                I(f"v_cvt_pk_bf16_f32 v{t+5+2*hh}, v{g+2}, v{g+3}")
            if jp < 4:
                I(f"buffer_store_dwordx4 v[{t+4}:{t+7}], v{9+js}, s[20:23], s34 offen offset:{1024*jp}")
            else:
                I(f"buffer_store_dwordx4 v[{t+4}:{t+7}], v{9+js}, s[20:23], s35 offen")
    if STAMP: I("s_waitcnt vmcnt(0)")
    stamp()
    stamp_dump(5)
    wgt_end(1)
    I("s_endpgm")

def gen_g1fuse():
    NF = 10; RS = 320; MS = 32*RS; SL = 2*MS; NS = 6; LA = 3; NST = 20; DWP = 5
    XB = NS*SL
    XP = 18432; XR = 144
    I(f"s_mul_i32 s25, s25, {16*NF}")
    I(f"s_min_u32 s25, s25, {F-16*NF}")
    I("v_and_b32 v1, 63, v0")
    I("s_and_b32 s26, s3, 3")
    I(f"s_mul_i32 s30, s26, {32*XR}")
    I(f"s_add_u32 s30, s30, {XB}")
    I("s_lshl_b32 s27, s24, 3")
    I("s_lshl_b32 s26, s26, 1")
    I("s_add_u32 s26, s26, s27")
    I("s_cmp_lt_u32 s3, 4")
    I("s_cbranch_scc1 G1_cons")
    if "hprio" in FLAGS: I("s_setprio 3")
    RAW = 64
    def raw(rg, p): return RAW + (p*4 + rg)*4
    I("s_mul_i32 s27, s26, 20480")
    I("v_lshrrev_b32 v12, 3, v1")
    I("v_and_b32 v11, 7, v1")
    I("v_mul_u32_u24 v13, 0x500, v12")
    I("v_lshl_add_u32 v13, v11, 4, v13")
    I("v_add_u32 v13, s27, v13")
    for rg in range(1, 4): I(f"v_add_u32 v{13+rg}, {rg*10240}, v13")
    I("s_lshl_b32 s27, s26, 7")
    I("v_lshl_add_u32 v7, v12, 3, s27")
    I(f"v_mul_u32_u24 v6, {XR}, v12")
    I("v_lshl_add_u32 v6, v11, 4, v6")
    I("v_add_u32 v6, s30, v6")
    I("s_waitcnt lgkmcnt(0)")
    srd(12, 44, SZ_SD)
    srd(20, 6, S*8, WS_ST)
    for p in range(10):
        for rg in range(4):
            r = raw(rg, p)
            I(f"buffer_load_dwordx4 v[{r}:{r+3}], v{13+rg}, s[12:15], 0 offen offset:{128*p}")
    SM = 24; SS = 32; TT = 40; STA = 48
    for j in range(16): I(f"v_mov_b32 v{SM+j}, 0")
    I("s_mov_b32 s49, 0x3f803f80")
    I("s_cmp_ge_u32 s3, 6")
    I("s_cbranch_scc1 G1_hw")
    def helper(kind):
        vq = [("Q", i) for i in range(40)]
        def vwait(pred):
            idxs = [i for i, t in enumerate(vq) if pred(t)]
            if not idxs: return
            idx = max(idxs)
            n = len(vq) - 1 - idx
            assert n <= 63
            I(f"s_waitcnt vmcnt({n})")
            del vq[:idx+1]
        def pdma(st):
            I(f"s_mov_b32 s28, {st*32*3456}")
            for i in range(10):
                if i % 4 == 0: I(f"s_add_u32 m0, s29, {(st % NS)*SL + (i//4)*4096}")
                I(f"buffer_load_dwordx4 v{224+i}, s[8:11], s28 offen offset:{1024*(i%4)} lds")
                vq.append(("D", st))
        if kind == "prod":
            I("s_lshl_b32 s27, s25, 1")
            for i in range(10):
                I(f"v_add_u32 v20, {64*i}, v1")
                I("v_mul_u32_u24 v21, 3277, v20")
                I("v_lshrrev_b32 v21, 16, v21")
                I("v_mul_u32_u24 v22, 20, v21")
                I("v_sub_u32 v22, v20, v22")
                I("v_bfe_u32 v23, v21, 3, 1")
                I("v_lshlrev_b32 v23, 1, v23")
                I("v_xor_b32 v22, v22, v23")
                I("v_mul_u32_u24 v21, 3456, v21")
                I("v_lshl_add_u32 v21, v22, 4, v21")
                I("v_add_u32 v21, s27, v21")
                I(f"v_subrev_u32 v{224+i}, {1024*(i%4)}, v21")
            I("s_sub_u32 s29, s3, 4")
            I(f"s_mul_i32 s29, s29, {MS}")
            I("s_cmp_ge_u32 s3, 5")
            I("s_cselect_b32 s4, s18, s16")
            I("s_cselect_b32 s5, s19, s17")
            srd(8, 4, SZ_W)
            DSCH = {5: [0], 8: [1], 9: [2]}
            for f_ in FLAGS:
                if f_.startswith("dsch"):
                    if f_ == "dsch1": DSCH = {3: [0], 6: [1], 9: [2]}
                    if f_ == "dsch2": DSCH = {7: [0], 9: [1, 2]}
                    if f_ == "dsch3": DSCH = {-1: [0], 5: [1], 9: [2]}
            for st in DSCH.get(-1, []): pdma(st)
        else:
            I("s_cmp_ge_u32 s3, 7")
            I("s_cselect_b32 s28, s18, s16")
            I("s_cselect_b32 s29, s19, s17")
            I("s_mul_i32 s27, s47, 12800")
            I(f"s_mov_b32 s30, {SZ_W}")
            I("s_mov_b32 s31, 0x00020000")
            I("v_lshlrev_b32 v5, 4, v1")
            I("s_load_dwordx2 s[4:5], s[0:1], 72")
            I("s_min_u32 s48, s46, 269")
            I("s_mul_i32 s17, s48, 0xCCCD")
            I("s_lshr_b32 s17, s17, 19")
            I("s_mul_i32 s18, s17, 10")
            I("s_sub_u32 s18, s48, s18")
            I("v_and_b32 v23, 7, v0")
            I("v_bfe_u32 v17, v0, 3, 2")
            I("v_bfe_u32 v18, v0, 5, 1")
            I("s_lshl_b32 s18, s18, 6")
            I("v_lshl_add_u32 v23, v23, 3, s18")
            I("s_lshl_b32 s19, s17, 1")
            I("v_add_u32 v18, s19, v18")
            I("v_lshlrev_b32 v19, 5, v18")
            I("v_lshl_add_u32 v19, v17, 2, v19")
            I("v_mul_u32_u24 v20, 0x500, v19")
            I("v_lshl_add_u32 v20, v23, 1, v20")
            I("v_add_u32 v21, 0x5000, v20")
            I("s_waitcnt lgkmcnt(0)")
            srd(8, 4, SZ_W)
            srd(32, 6, SZ_W, WS_WDT)
            I("s_mov_b32 s36, 0x05040100")
            I("s_mov_b32 s37, 0x07060302")
            I("v_lshrrev_b32 v22, 4, v23")
            I("v_mul_u32_u24 v22, 54, v22")
            I("v_add_u32 v22, v22, v18")
            I("v_lshlrev_b32 v22, 10, v22")
            I("v_lshl_add_u32 v22, v17, 8, v22")
            I("v_and_b32 v19, 15, v23")
            I("v_lshl_add_u32 v22, v19, 4, v22")
        for p in range(10):
            vwait(lambda t: t[0] == "Q" and t[1] <= 4*p + 3)
            for c in range(4):
                for rg in range(4):
                    r = raw(rg, p) + c
                    I(f"v_dot2_f32_bf16 v{SM+2*rg+(c&1)}, v{r}, s49, v{SM+2*rg+(c&1)}")
                    I(f"v_dot2_f32_bf16 v{SS+2*rg+(c&1)}, v{r}, v{r}, v{SS+2*rg+(c&1)}")
            if kind == "prod":
                for st in DSCH.get(p, []): pdma(st)
        I("s_nop 3")
        V8 = [SM+2*rg for rg in range(4)] + [SS+2*rg for rg in range(4)]
        for a in V8: I(f"v_add_f32 v{a}, v{a}, v{a+1}")
        for dpp in ("quad_perm:[1,0,3,2]", "quad_perm:[2,3,0,1]", "row_half_mirror"):
            for a in V8: I(f"v_add_f32_dpp v{a+1}, v{a}, v{a} {dpp} row_mask:0xf bank_mask:0xf")
            for a in V8: I(f"v_mov_b32 v{a}, v{a+1}")
        R4 = range(4)
        for a in V8: I(f"v_mul_f32 v{a}, {1.0/640.0!r}, v{a}")
        for rg in R4: I(f"v_fma_f32 v{SS+2*rg}, -v{SM+2*rg}, v{SM+2*rg}, v{SS+2*rg}")
        for rg in R4:
            I(f"v_cvt_pk_bf16_f32 v{STA+2*rg+1}, 0, -v{SM+2*rg}")
            I(f"v_cvt_pk_bf16_f32 v{SS+2*rg}, 0, v{SS+2*rg}")
        for rg in R4: I(f"v_add_f32 v{SS+2*rg}, {1e-5!r}, v{SS+2*rg}")
        for rg in R4: I(f"v_cvt_pk_bf16_f32 v{SS+2*rg}, 0, v{SS+2*rg}")
        for rg in R4: I(f"v_sqrt_f32 v{SS+2*rg}, v{SS+2*rg}")
        I("s_nop 0")
        for rg in R4: I(f"v_cvt_pk_bf16_f32 v{SS+2*rg}, 0, v{SS+2*rg}")
        for rg in R4: I(f"v_rcp_f32 v{STA+2*rg}, v{SS+2*rg}")
        I("s_nop 0")
        MN = "mnorm" in FLAGS
        SEL = 24; NEG = 32; T2 = 234
        if MN:
            I("v_and_b32 v2, 15, v1")
            I("v_lshrrev_b32 v3, 4, v1")
            I("v_lshrrev_b32 v4, 2, v2")
            I("v_cmp_eq_u32 vcc, v3, v4")
            I("v_and_b32 v4, 1, v2")
            I("v_lshlrev_b32 v4, 4, v4")
            I("v_mov_b32 v3, 0x3f80")
            I("v_lshlrev_b32 v3, v4, v3")
            I("v_cndmask_b32 v3, 0, v3, vcc")
            I("v_bfe_u32 v4, v2, 1, 1")
            I("v_cmp_eq_u32 vcc, 0, v4")
            I("s_nop 1")
            I(f"v_cndmask_b32 v{SEL}, 0, v3, vcc")
            I(f"v_cndmask_b32 v{SEL+1}, v3, 0, vcc")
            I(f"v_mov_b32 v{SEL+2}, 0")
            I(f"v_mov_b32 v{SEL+3}, 0")
            I(f"v_mov_b32 v{SEL+4}, 0")
            I(f"v_mov_b32 v{SEL+5}, 0")
            I(f"v_mov_b32 v{SEL+6}, v{SEL}")
            I(f"v_mov_b32 v{SEL+7}, v{SEL+1}")
            for rg in R4:
                for c in range(4): I(f"v_mov_b32 v{NEG+4*rg+c}, v{STA+2*rg+1}")
            I("s_nop 1")
        def norm(p, rgs):
            if MN:
                TB = [T2, T2+8]
                def mf(i):
                    rg = rgs[i]; r = raw(rg, p); t = TB[i % 2]
                    for h in range(2):
                        I(f"v_mfma_f32_16x16x32_bf16 v[{t+4*h}:{t+4*h+3}], v[{SEL+4*h}:{SEL+4*h+3}], v[{r}:{r+3}], v[{NEG+4*rg}:{NEG+4*rg+3}]")
                mf(0)
                for i, rg in enumerate(rgs):
                    r = raw(rg, p); R_ = STA + 2*rg; t = TB[i % 2]
                    if i + 1 < len(rgs): mf(i+1)
                    else: I("s_nop 7")
                    if i == 0: I("s_nop 7")
                    for c in range(8): I(f"v_cvt_pk_bf16_f32 v{t+c}, 0, v{t+c}")
                    for c in range(8): I(f"v_mul_f32 v{t+c}, v{t+c}, v{R_}")
                    for c in range(4): I(f"v_cvt_pk_bf16_f32 v{r+c}, v{t+2*c}, v{t+2*c+1}")
                    I(f"ds_write_b128 v6, v[{r}:{r+3}] offset:{(p & 1)*XP + rg*8*XR}")
                return
            for rg in rgs:
                r = raw(rg, p); R_, M_ = STA + 2*rg, STA + 2*rg + 1
                if "nonorm" not in FLAGS:
                    for c in range(4):
                        lo16(TT+2*c, r+c); hi16(TT+2*c+1, r+c)
                    for c in range(8): I(f"v_add_f32 v{TT+c}, v{TT+c}, v{M_}")
                    for c in range(8): I(f"v_cvt_pk_bf16_f32 v{TT+c}, 0, v{TT+c}")
                    for c in range(8): I(f"v_mul_f32 v{TT+c}, v{TT+c}, v{R_}")
                    for c in range(4): I(f"v_cvt_pk_bf16_f32 v{r+c}, v{TT+2*c}, v{TT+2*c+1}")
                I(f"ds_write_b128 v6, v[{r}:{r+3}] offset:{(p & 1)*XP + rg*8*XR}")
        WLK = 3; PFK = 0
        for f_ in FLAGS:
            if f_.startswith("wlk"): WLK = int(f_[3:])
            if f_.startswith("pfk"): PFK = int(f_[3:])
        for k in range(NST):
            if k == 0:
                norm(0, (0, 1, 2, 3))
                if kind == "prod": pdma(3); pdma(4)
            else:
                if kind == "prod" and k >= 2 and k - 2 + DWP < NST: pdma(k - 2 + DWP)
                p = (k-1)//2 + 1
                if p < 10: norm(p, (0, 1) if (k-1) % 2 == 0 else (2, 3))
            if kind == "wdt" and k == PFK and "nopfm" not in FLAGS:
                for i in range(13):
                    I(f"buffer_load_dwordx4 v[60:63], v5, s[28:31], s27 offen")
                    I("s_add_u32 s27, s27, 1024")
            if kind == "wdt" and k == WLK:
                for i in range(8):
                    b = 20 if i < 4 else 21
                    I(f"buffer_load_dwordx4 v[{RAW+4*i}:{RAW+3+4*i}], v{b}, s[8:11], 0 offen offset:{(i%4)*1280}")
            if k == 1:
                for rg in R4:
                    I(f"buffer_store_dwordx2 v[{STA+2*rg}:{STA+2*rg+1}], v7, s[20:23], 0 offen offset:{64*rg}")
                    vq.append(("S", rg))
            if kind == "wdt" and k == WLK + 5:
                I("s_cmp_ge_u32 s46, 270")
                I("s_cbranch_scc1 G1_hwskip")
                I("s_waitcnt vmcnt(0)")
                for dd in range(8):
                    ob = RAW + 32 + 4*dd
                    sel = 36 + (dd & 1)
                    for q in range(4):
                        I(f"v_perm_b32 v{ob+q}, v{RAW+4*(2*q+1)+dd//2}, v{RAW+4*(2*q)+dd//2}, s{sel}")
                for dd in range(8):
                    ob = RAW + 32 + 4*dd
                    I(f"buffer_store_dwordx4 v[{ob}:{ob+3}], v22, s[32:35], 0 offen offset:{16*dd}")
                e("G1_hwskip:")
            if kind == "prod": vwait(lambda t: t == ("D", k))
            I("s_waitcnt lgkmcnt(0)")
            I("s_barrier")
        I("s_endpgm")
    helper("prod")
    e("G1_hw:")
    helper("wdt")
    e("G1_cons:")
    if "prio" in FLAGS: I("s_setprio 3")
    I("s_and_b32 s31, s3, 1")
    I("s_lshr_b32 s33, s3, 1")
    I("s_lshl_b32 s27, s24, 3")
    I("s_lshl_b32 s26, s31, 2")
    I("s_add_u32 s26, s26, s27")
    I("s_mul_i32 s27, s26, 55296")
    I("v_lshl_add_u32 v9, v1, 4, s27")
    I("v_bfe_u32 v17, v0, 4, 2")
    I("v_and_b32 v18, 15, v0")
    I(f"v_mul_u32_u24 v6, {XR}, v18")
    I("v_lshl_add_u32 v6, v17, 4, v6")
    I(f"s_mul_i32 s30, s31, {64*XR}")
    I(f"s_add_u32 s30, s30, {XB}")
    I("v_add_u32 v6, s30, v6")
    I("v_bfe_u32 v18, v0, 2, 2")
    I("v_lshl_add_u32 v19, v17, 3, v18")
    I(f"v_mul_u32_u24 v19, {RS}, v19")
    I("v_and_b32 v18, 3, v0")
    I("v_lshl_add_u32 v19, v18, 3, v19")
    I("s_mul_i32 s27, s33, 160")
    I("v_add_u32 v19, s27, v19")
    I("v_and_b32 v20, 1, v17")
    I("v_lshlrev_b32 v20, 5, v20")
    I("s_lshl_b32 s27, s33, 1")
    I("s_sub_u32 s27, 1, s27")
    I("v_mul_lo_u32 v20, v20, s27")
    I("v_add_u32 v11, v19, v20")
    I("v_sub_u32 v12, v19, v20")
    for rg in (1,):
        I(f"v_add_u32 v{11+2*rg}, {rg*3*SL}, v11")
        I(f"v_add_u32 v{12+2*rg}, {rg*3*SL}, v12")
    I("s_waitcnt lgkmcnt(0)")
    srd(20, 6, SZ_H, WS_H)
    BB = 24; AF = 56; ACC = 80; LA = 2
    for f_ in FLAGS:
        if f_.startswith("la"): LA = int(f_[2:])
    def acc(m, j, js): return ACC + ((m*5 + j)*4 + js)*4
    seq = [(m, j) for m in range(2) for j in range(5)]
    NQ = len(seq)
    dq = []
    def dwait(tags):
        idxs = [i for i, t in enumerate(dq) if t in tags]
        if not idxs: return
        idx = max(idxs); n = len(dq) - 1 - idx
        assert n <= 15
        I(f"s_waitcnt lgkmcnt({n})")
        del dq[:idx+1]
    def rdx(gpos):
        st, idx = divmod(gpos, NQ)
        m, j = seq[idx]
        slot = st % NS
        a = AF + (gpos % 4)*4
        va = 11 + 2*(slot // 3) + (j & 1)
        off = (slot % 3)*SL + m*MS + j*32
        return [f"ds_read_b64_tr_b16 v[{a}:{a+1}], v{va} offset:{off}",
                f"ds_read_b64_tr_b16 v[{a+2}:{a+3}], v{va} offset:{off+4*RS}"]
    def xrd(st, js):
        b = BB + (st & 1)*16 + js*4
        I(f"ds_read_b128 v[{b}:{b+3}], v6 offset:{((st >> 1) & 1)*XP + js*16*XR + (st & 1)*64}")
        dq.append(("X", st))
    stamp()
    I("s_barrier")
    stamp()
    for js in range(4): xrd(0, js)
    for i in range(LA):
        for x in rdx(i): I(x); dq.append(("A", i))
    for st in range(NST):
        if st + 1 < NST: I("s_barrier")
        if "stamp3" in FLAGS and st in (1, 5, 10): stamp()
        for idx in range(NQ):
            gpos = st*NQ + idx
            rr = rdx(gpos + LA) if gpos + LA < NST*NQ else None
            dwait([("A", gpos), ("X", st)])
            m, j = seq[idx]
            a = AF + (gpos % 4)*4
            for js in range(4):
                c = acc(m, j, js); b = BB + (st & 1)*16 + js*4
                cc = "0" if st == 0 else f"v[{c}:{c+3}]"
                I(f"v_mfma_f32_16x16x32_bf16 v[{c}:{c+3}], v[{a}:{a+3}], v[{b}:{b+3}], {cc}")
                if rr and js < 2: I(rr[js]); dq.append(("A", gpos + LA))
                if js == 2 and st + 1 < NST and 1 <= idx <= 4: xrd(st + 1, idx - 1)
    stamp()
    I("s_lshr_b32 s34, s25, 5")
    I("s_lshl_b32 s34, s34, 10")
    I("s_nop 7")
    I("s_nop 3")
    cnt = [0]
    def hq(j, js, dst, t):
        g = acc(0, j, js); u = acc(1, j, js)
        I(f"v_cvt_pk_bf16_f32 v{t}, v{g}, v{g+1}")
        I(f"v_cvt_pk_bf16_f32 v{t+1}, v{g+2}, v{g+3}")
        I(f"v_cvt_pk_bf16_f32 v{t+2}, v{u}, v{u+1}")
        I(f"v_cvt_pk_bf16_f32 v{t+3}, v{u+2}, v{u+3}")
        lo16(g, t); hi16(g+1, t); lo16(g+2, t+1); hi16(g+3, t+1)
        lo16(u, t+2); hi16(u+1, t+2); lo16(u+2, t+3); hi16(u+3, t+3)
        for r in range(4):
            I(f"v_mul_f32 v{g+r}, v{g+r}, v{u+r}")
        I(f"v_cvt_pk_bf16_f32 v{dst}, v{g}, v{g+1}")
        I(f"v_cvt_pk_bf16_f32 v{dst+1}, v{g+2}, v{g+3}")
    def epi(fq):
        units = [((0, 1), 0, 0), ((2, 3), 1, 0), ((4,), 2, 0)] if fq == 0 else [((0,), 2, 8), ((1, 2), 3, 0), ((3, 4), 4, 0)]
        for js in range(4):
            I(f"s_add_u32 s35, s34, {js*55296}")
            I(f"s_add_u32 s36, s34, {js*55296 + 4096}")
            for (jl, blk, ho) in units:
                t = 24 + (cnt[0] % 4) * 12; cnt[0] += 1
                for hh, j in enumerate(jl): hq(j, js, t+4+2*hh, t)
                so, off = ("s35", 1024*blk + ho) if blk < 4 else ("s36", ho)
                if len(jl) == 2:
                    I(f"buffer_store_dwordx4 v[{t+4}:{t+7}], v9, s[20:23], {so} offen offset:{off}")
                else:
                    I(f"buffer_store_dwordx2 v[{t+4}:{t+5}], v9, s[20:23], {so} offen offset:{off}")
    I("s_cmp_eq_u32 s33, 0")
    I("s_cbranch_scc0 G1_epi1")
    epi(0)
    I("s_branch G1_epid")
    e("G1_epi1:")
    epi(1)
    e("G1_epid:")
    if STAMP: I("s_waitcnt vmcnt(0)")
    stamp()
    stamp_dump(5)
    wgt_end(1)
    I("s_endpgm")

def gen_g1b():
    NF = 10; RS = 320; MS = 32*RS; SL = 2*MS; NS = 6; NST = 20; NX = 4
    XB = NS*SL
    XS = 8192
    STB = XB + NX*XS
    CSB = STB + 1024
    I(f"s_mul_i32 s25, s25, {16*NF}")
    I(f"s_min_u32 s25, s25, {F-16*NF}")
    I("v_and_b32 v1, 63, v0")
    for f_ in FLAGS:
        if f_.startswith("gdel"): I(f"s_sleep {int(f_[4:])}")
    I("s_cmp_lt_u32 s3, 4")
    I("s_cbranch_scc1 G1_cons")
    I("s_and_b32 s26, s3, 3")
    I("s_lshl_b32 s27, s24, 7")
    I("s_lshl_b32 s28, s26, 5")
    I("s_add_u32 s27, s27, s28")
    I("v_lshrrev_b32 v12, 2, v1")
    I("v_bfe_u32 v11, v1, 3, 2")
    I("v_xor_b32 v11, v11, v1")
    I("v_and_b32 v11, 3, v11")
    I("v_add_u32 v13, s27, v12")
    I("v_lshlrev_b32 v7, 3, v13")
    I("v_mul_u32_u24 v13, 0x500, v13")
    I("v_lshl_add_u32 v13, v11, 4, v13")
    I(f"v_add_u32 v14, {16*1280-1024}, v13")
    I("s_lshl_b32 s30, s26, 11")
    I(f"s_add_u32 s30, s30, {XB}")
    I("v_lshl_add_u32 v6, v1, 4, s30")
    I("s_lshl_b32 s28, s26, 8")
    I(f"s_add_u32 s28, s28, {STB}")
    I("v_lshl_add_u32 v5, v12, 3, s28")
    I("s_lshl_b32 s27, s25, 1")
    I("s_and_b32 s28, s26, 1")
    I("s_mul_i32 s28, s28, 320")
    for i in range(5):
        I(f"v_add_u32 v20, s28, v1")
        if i: I(f"v_add_u32 v20, {64*i}, v20")
        I("v_mul_u32_u24 v21, 3277, v20")
        I("v_lshrrev_b32 v21, 16, v21")
        I("v_mul_u32_u24 v22, 20, v21")
        I("v_sub_u32 v22, v20, v22")
        I("v_bfe_u32 v23, v21, 3, 1")
        I("v_lshlrev_b32 v23, 1, v23")
        I("v_xor_b32 v22, v22, v23")
        I("v_mul_u32_u24 v21, 3456, v21")
        I("v_lshl_add_u32 v21, v22, 4, v21")
        I("v_add_u32 v21, s27, v21")
        I(f"v_subrev_u32 v{24+i}, {1024*(i%4)}, v21")
    I("s_mul_i32 s29, s26, 5120")
    I("s_waitcnt lgkmcnt(0)")
    HST = "zst" in FLAGS
    if HST: stamp()
    I("s_cmp_ge_u32 s26, 2")
    I("s_cselect_b32 s4, s18, s16")
    I("s_cselect_b32 s5, s19, s17")
    srd(8, 4, SZ_W)
    srd(12, 44, SZ_SD)
    vq = []
    def vwait(pred):
        idxs = [i for i, t in enumerate(vq) if pred(t)]
        if not idxs: return
        idx = max(idxs)
        n = len(vq) - 1 - idx
        assert n <= 63
        I(f"s_waitcnt vmcnt({n})")
        del vq[:idx+1]
    ROT = "krot" in FLAGS or "krotq" in FLAGS
    if ROT:
        if "krotq" in FLAGS:
            I("s_lshr_b32 s51, s24, 2")
            I("s_mul_i32 s51, s51, 5")
        else:
            I("s_mul_i32 s51, s24, 5")
            I("s_lshr_b32 s51, s51, 2")
        I(f"s_mul_i32 s50, s51, {32*3456}")
        I("s_lshl_b32 s51, s51, 6")
    def wdma(st):
        ops = []
        for i in range(5):
            pre = []
            if i == 0 and not ROT: pre.append(f"s_mov_b32 s28, {st*32*3456}")
            if i == 0 and ROT: pre += ["s_mov_b32 s28, s50", f"s_add_u32 s50, s50, {32*3456}", f"s_cmp_eq_u32 s50, {640*3456}", "s_cselect_b32 s50, 0, s50"]
            if i % 4 == 0: pre.append(f"s_add_u32 m0, s29, {(st % NS)*SL + (i//4)*4096}")
            ops.append(pre + [(f"buffer_load_dwordx4 v{24+i}, s[8:11], s28 offen offset:{1024*(i%4)} lds", ("W", st))])
        return ops
    def xdma(st):
        ops = []
        for i in range(2):
            pre = []
            if i == 0 and not ROT: pre += [f"s_movk_i32 s31, {st*64}", f"s_add_u32 m0, s30, {(st % NX)*XS}"]
            if i == 0 and ROT: pre += ["s_mov_b32 s31, s51", "s_add_u32 s51, s51, 64", "s_cmpk_eq_u32 s51, 1280", "s_cselect_b32 s51, 0, s51", f"s_add_u32 m0, s30, {(st % NX)*XS}"]
            ops.append(pre + [(f"buffer_load_dwordx4 v{13+i}, s[12:15], s31 offen offset:{1024*i} lds", ("X", st))])
        return ops
    def emit(group):
        for x in group:
            if isinstance(x, tuple): I(x[0]); vq.append(x[1])
            else: I(x)
    P0 = NS
    for f_ in FLAGS:
        if f_.startswith("p0_"): P0 = int(f_[3:])
    nxt = {"W": 0, "X": 0}
    HS = 0
    for f_ in FLAGS:
        if f_.startswith("hs"): HS = int(f_[2:])
    P1 = NS
    for f_ in FLAGS:
        if f_.startswith("p1_"): P1 = int(f_[3:])
    for st in range(P1 if HS else P0):
        if HS and st == P0: I(f"s_sleep {HS}")
        if st < NX:
            for g_ in xdma(st): emit(g_)
            nxt["X"] = st + 1
        for g_ in wdma(st): emit(g_)
        nxt["W"] = st + 1
        if HST and st in (0, 1) and "zk2" not in FLAGS: stamp()
    if HST and "zk2" not in FLAGS: stamp()
    srd(20, 6, S*8, WS_ST)
    I("s_load_dwordx2 s[4:5], s[0:1], 72")
    I("s_min_u32 s48, s46, 269")
    I("s_mul_i32 s17, s48, 0xCCCD")
    I("s_lshr_b32 s17, s17, 19")
    I("s_mul_i32 s18, s17, 10")
    I("s_sub_u32 s18, s48, s18")
    I("v_and_b32 v23, 7, v0")
    I("v_bfe_u32 v17, v0, 3, 2")
    I("v_bfe_u32 v18, v0, 5, 1")
    I("s_lshl_b32 s18, s18, 6")
    I("v_lshl_add_u32 v23, v23, 3, s18")
    I("s_lshl_b32 s19, s17, 1")
    I("v_add_u32 v18, s19, v18")
    I("v_lshlrev_b32 v19, 5, v18")
    I("v_lshl_add_u32 v19, v17, 2, v19")
    I("v_mul_u32_u24 v20, 0x500, v19")
    I("v_lshl_add_u32 v20, v23, 1, v20")
    I("v_add_u32 v21, 0x5000, v20")
    I("s_mov_b32 s36, 0x05040100")
    I("s_mov_b32 s37, 0x07060302")
    I("v_lshrrev_b32 v22, 4, v23")
    I("v_mul_u32_u24 v22, 54, v22")
    I("v_add_u32 v22, v22, v18")
    I("v_lshlrev_b32 v22, 10, v22")
    I("v_lshl_add_u32 v22, v17, 8, v22")
    I("v_and_b32 v19, 15, v23")
    I("v_lshl_add_u32 v22, v19, 4, v22")
    I("s_cmp_lt_u32 s46, 270")
    I(f"s_cselect_b32 s49, {SZ_W}, 0")
    I("s_waitcnt lgkmcnt(0)")
    srd(40, 4, SZ_W)
    srd(32, 6, SZ_W, WS_WDT)
    I("s_mov_b32 s42, s49")
    I("s_mov_b32 s34, s49")
    XA = 32; TT = 40; SM = 48; SQ = 50; STA = 52; RAW = 64
    for j in range(4): I(f"v_mov_b32 v{SM+j}, 0")
    WLK = 6; WPK = 10
    for f_ in FLAGS:
        if f_.startswith("wlk"): WLK = int(f_[3:])
        if f_.startswith("wpk"): WPK = int(f_[3:])
    def statops():
        ops = []
        for rg in range(2):
            for c in range(4):
                r = XA + 4*rg + c; t = TT + 2*(c & 1)
                ops += [f"v_lshlrev_b32 v{t}, 16, v{r}", f"v_and_b32 v{t+1}, 0xffff0000, v{r}",
                        f"v_add_f32 v{SM+rg}, v{SM+rg}, v{t}", f"v_fmac_f32 v{SQ+rg}, v{t}, v{t}",
                        f"v_add_f32 v{SM+rg}, v{SM+rg}, v{t+1}", f"v_fmac_f32 v{SQ+rg}, v{t+1}, v{t+1}"]
        return ops
    for k in range(NST + 1):
        dm = []
        if k >= 1:
            for _ in range(2):
                if nxt["X"] <= min(NST-1, max(NX-1, k+2)): dm += xdma(nxt["X"]); nxt["X"] += 1
                if nxt["W"] <= min(NST-1, max(NS-1, k+3)): dm += wdma(nxt["W"]); nxt["W"] += 1
        if k == WLK:
            for i in range(8):
                b = 20 if i < 4 else 21
                dm.append([(f"buffer_load_dwordx4 v[{RAW+4*i}:{RAW+3+4*i}], v{b}, s[40:43], 0 offen offset:{(i%4)*1280}", ("T", 0))])
        va = []
        if k >= 1:
            for rg in range(2):
                I(f"ds_read_b128 v[{XA+4*rg}:{XA+4*rg+3}], v6 offset:{((k-1) % NX)*XS + 1024*rg}")
            va = statops() if "nostat" not in FLAGS else []
        if WPK <= k < WPK + 4:
            for dd in range(2*(k-WPK), 2*(k-WPK)+2):
                ob = RAW + 32 + 4*dd
                sel = 36 + (dd & 1)
                for q in range(4):
                    va.append(f"v_perm_b32 v{ob+q}, v{RAW+4*(2*q+1)+dd//2}, v{RAW+4*(2*q)+dd//2}, s{sel}")
                va.append((f"buffer_store_dwordx4 v[{ob}:{ob+3}], v22, s[32:35], 0 offen offset:{16*dd}", ("S", 0)))
        nfirst = min(2, len(dm))
        for g_ in dm[:nfirst]: emit(g_)
        rest = dm[nfirst:]
        if k == WPK: vwait(lambda t: t[0] == "T")
        if va: I("s_waitcnt lgkmcnt(0)")
        step = max(1, len(va) // (len(rest) + 1)) if rest else 0
        ri = 0
        for i, o in enumerate(va):
            emit([o])
            if rest and ri < len(rest) and (i + 1) % step == 0:
                emit(rest[ri]); ri += 1
        for g_ in rest[ri:]: emit(g_)
        if k < NST:
            ZK = (0, 1, 2) if "zk2" not in FLAGS else (3, 4, 5)
            if HST and k in ZK: stamp()
            vwait(lambda t: t in (("W", k), ("X", k)))
            if HST and k in ZK: stamp()
            I("s_barrier")
            if HST and k in ZK and "zk2" in FLAGS: stamp()
    V4 = [SM, SM+1, SQ, SQ+1]
    I("s_nop 1")
    for dpp in ("quad_perm:[1,0,3,2]", "quad_perm:[2,3,0,1]"):
        for i, a in enumerate(V4): I(f"v_add_f32_dpp v{TT+i}, v{a}, v{a} {dpp} row_mask:0xf bank_mask:0xf")
        for i, a in enumerate(V4): I(f"v_mov_b32 v{a}, v{TT+i}")
    R2 = range(2)
    for a in V4: I(f"v_mul_f32 v{a}, {1.0/640.0!r}, v{a}")
    for rg in R2: I(f"v_fma_f32 v{SQ+rg}, -v{SM+rg}, v{SM+rg}, v{SQ+rg}")
    for rg in R2:
        I(f"v_cvt_pk_bf16_f32 v{STA+2*rg+1}, 0, -v{SM+rg}")
        I(f"v_cvt_pk_bf16_f32 v{SQ+rg}, 0, v{SQ+rg}")
    for rg in R2: I(f"v_add_f32 v{SQ+rg}, {1e-5!r}, v{SQ+rg}")
    for rg in R2: I(f"v_cvt_pk_bf16_f32 v{SQ+rg}, 0, v{SQ+rg}")
    for rg in R2: I(f"v_sqrt_f32 v{SQ+rg}, v{SQ+rg}")
    I("s_nop 0")
    for rg in R2: I(f"v_cvt_pk_bf16_f32 v{SQ+rg}, 0, v{SQ+rg}")
    for rg in R2: I(f"v_rcp_f32 v{STA+2*rg}, v{SQ+rg}")
    I("s_nop 0")
    for rg in R2: I(f"ds_write_b64 v5, v[{STA+2*rg}:{STA+2*rg+1}] offset:{128*rg}")
    I("s_waitcnt lgkmcnt(0)")
    I("s_barrier")
    for rg in R2: I(f"buffer_store_dwordx2 v[{STA+2*rg}:{STA+2*rg+1}], v7, s[20:23], 0 offen offset:{128*rg}")
    if HST:
        stamp_dump(5); nst[0] = 1
    I("s_endpgm")
    e("G1_cons:")
    I("s_and_b32 s31, s3, 1")
    I("s_lshr_b32 s33, s3, 1")
    I("s_lshl_b32 s27, s24, 3")
    I("s_lshl_b32 s26, s31, 2")
    I("s_add_u32 s26, s26, s27")
    I("s_mul_i32 s27, s26, 55296")
    I("v_lshl_add_u32 v9, v1, 4, s27")
    I("v_bfe_u32 v17, v0, 4, 2")
    I("v_and_b32 v18, 15, v0")
    I("v_bfe_u32 v19, v0, 1, 2")
    I("v_xor_b32 v19, v19, v17")
    I("v_lshlrev_b32 v6, 6, v18")
    I("v_lshl_add_u32 v6, v19, 4, v6")
    I("s_lshl_b32 s30, s31, 12")
    I(f"s_add_u32 s30, s30, {XB}")
    I("v_add_u32 v6, s30, v6")
    I("s_lshl_b32 s30, s31, 9")
    I(f"s_add_u32 s30, s30, {STB}")
    I("v_lshl_add_u32 v7, v18, 3, s30")
    I("s_mul_i32 s30, s3, 320")
    I(f"s_add_u32 s30, s30, {CSB}")
    I("v_lshl_add_u32 v8, v17, 4, s30")
    I("s_xor_b32 s30, s3, 1")
    I("s_mul_i32 s30, s30, 320")
    I(f"s_add_u32 s30, s30, {CSB}")
    I("v_lshl_add_u32 v10, v17, 4, s30")
    I("v_bfe_u32 v18, v0, 2, 2")
    I("v_lshl_add_u32 v19, v17, 3, v18")
    I(f"v_mul_u32_u24 v19, {RS}, v19")
    I("v_and_b32 v18, 3, v0")
    I("v_lshl_add_u32 v19, v18, 3, v19")
    I("s_mul_i32 s27, s33, 160")
    I("v_add_u32 v19, s27, v19")
    I("v_and_b32 v18, 1, v17")
    I("v_lshlrev_b32 v18, 5, v18")
    I("s_lshl_b32 s27, s33, 1")
    I("s_sub_u32 s27, 1, s27")
    I("v_mul_lo_u32 v18, v18, s27")
    I(f"s_mul_i32 s27, s31, {MS}")
    I(f"s_sub_u32 s28, {MS}, s27")
    I("v_add_u32 v2, v19, v18")
    I("v_sub_u32 v3, v19, v18")
    for mm in range(2):
        for rg in range(2):
            for par in range(2):
                d = 11 + 4*mm + 2*rg + par
                I(f"v_add_u32 v{d}, s{27+mm}, v{2+par}")
                if rg: I(f"v_add_u32 v{d}, {3*SL}, v{d}")
    BB = 20; AF = 52; ONE = 68; CS = 72; ACC = 92; LA = 2
    for f_ in FLAGS:
        if f_.startswith("la"): LA = int(f_[2:])
    for j in range(4): I(f"v_mov_b32 v{ONE+j}, 0x3f803f80")
    I("s_waitcnt lgkmcnt(0)")
    srd(20, 6, SZ_H, WS_H)
    PFD = 0
    for f_ in FLAGS:
        if f_.startswith("pfd"): PFD = int(f_[3:])
    PFW = [None]
    if PFD:
        I("s_cmp_eq_u32 s3, 1")
        I("s_cselect_b32 s8, s18, s16")
        I("s_cselect_b32 s9, s19, s17")
        I("s_cmp_eq_u32 s3, 2")
        I("s_cselect_b32 s8, s44, s8")
        I("s_cselect_b32 s9, s45, s9")
        I(f"s_mov_b32 s10, {SZ_W}")
        I(f"s_cselect_b32 s10, {SZ_SD}, s10")
        I("s_mov_b32 s11, 0x00020000")
        I("s_cselect_b32 s12, 24, 20")
        I(f"s_mov_b32 s13, {128*3456}")
        I(f"s_cselect_b32 s13, 256, s13")
        I("s_cmp_eq_u32 s3, 3")
        I("s_cselect_b32 s12, 0, s12")
        I("s_mul_i32 s14, s47, s12")
        I("v_add_u32 v4, s14, v1")
        I("v_lshlrev_b32 v5, 7, v4")
        I("v_lshrrev_b32 v19, 1, v4")
        I("v_mul_u32_u24 v19, 0x500, v19")
        I("v_and_b32 v4, 1, v4")
        I("v_lshl_add_u32 v4, v4, 7, v19")
        I("v_min_u32 v5, 442240, v5")
        I("s_cmp_eq_u32 s3, 2")
        I("s_cselect_b64 vcc, -1, 0")
        I("v_cndmask_b32 v4, v5, v4, vcc")
        I("v_cmp_gt_u32 s[14:15], s12, v1")
        I("s_mov_b32 s16, 0")
        if "pfs0" in FLAGS: I("s_mov_b32 s16, s13")
        def pf():
            I("s_mov_b64 exec, s[14:15]")
            I("buffer_load_dword v19, v4, s[8:11], s16 offen")
            I("s_mov_b64 exec, -1")
            I("s_add_u32 s16, s16, s13")
        PFW[0] = pf
        PQ = [0]*5
        for f_ in FLAGS:
            if f_.startswith("pq"): PQ = [int(x) for x in f_[2:].split("_")]
        for g_ in range(1 if "pfs0" in FLAGS else 0, min(5, PFD)):
            if PQ[g_]: I(f"s_sleep {PQ[g_]}")
            pf()
    WPF = -1
    for f_ in FLAGS:
        if f_.startswith("wpf"): WPF = int(f_[3:])
    if WPF >= 0:
        I("s_load_dwordx2 s[36:37], s[0:1], 72")
        I("s_and_b32 s38, s3, 1")
        I("s_mul_i32 s38, s38, 176")
        I("s_add_u32 s38, s38, s47")
        I("s_min_u32 s38, s38, 269")
        I("s_mul_i32 s39, s38, 0xCCCD")
        I("s_lshr_b32 s39, s39, 19")
        I("s_mul_i32 s40, s39, 10")
        I("s_sub_u32 s40, s38, s40")
        I("s_mul_i32 s41, s39, 81920")
        I("s_lshl_b32 s40, s40, 7")
        I("s_add_u32 s41, s41, s40")
        I("v_mul_u32_u24 v5, 0x500, v1")
        I("s_cmp_ge_u32 s3, 2")
        I(f"s_cselect_b32 s38, {SZ_W}, 0")
        I("s_mov_b32 s39, 0x00020000")
        I("s_waitcnt lgkmcnt(0)")
    def acc(m, j, js): return ACC + ((m*5 + j)*4 + js)*4
    seq = [(m, j) for m in range(2) for j in range(5)]
    NQ = len(seq)
    dq = []
    def dwait(tags):
        idxs = [i for i, t in enumerate(dq) if t in tags]
        if not idxs: return
        idx = max(idxs); n = len(dq) - 1 - idx
        assert n <= 15
        I(f"s_waitcnt lgkmcnt({n})")
        del dq[:idx+1]
    def rdx(gpos):
        st, idx = divmod(gpos, NQ)
        m, j = seq[idx]
        slot = st % NS
        a = AF + (gpos % 4)*4
        va = 11 + 4*m + 2*(slot // 3) + (j & 1)
        off = (slot % 3)*SL + j*32
        return [f"ds_read_b64_tr_b16 v[{a}:{a+1}], v{va} offset:{off}",
                f"ds_read_b64_tr_b16 v[{a+2}:{a+3}], v{va} offset:{off+4*RS}"]
    def xrd(st, js):
        b = BB + (st & 1)*16 + js*4
        I(f"ds_read_b128 v[{b}:{b+3}], v6 offset:{(st % NX)*XS + js*1024}")
        dq.append(("X", st))
    stamp()
    I("s_barrier")
    stamp()
    for js in range(4): xrd(0, js)
    for i in range(LA):
        for x in rdx(i): I(x); dq.append(("A", i))
    for st in range(NST):
        if st + 1 < NST: I("s_barrier")
        if "stamp3" in FLAGS and st in (1, 5, 10): stamp()
        PFE = 4
        for f_ in FLAGS:
            if f_.startswith("pfe"): PFE = int(f_[3:])
        if PFD and st % PFE == 0 and st//PFE + PFD < (3 if ("cpf" in FLAGS or "cpf0" in FLAGS) else 5): PFW[0]()
        if st == WPF: I("buffer_load_dword v254, v5, s[36:39], s41 offen")
        for idx in range(NQ):
            gpos = st*NQ + idx
            rr = rdx(gpos + LA) if gpos + LA < NST*NQ else None
            dwait([("A", gpos), ("X", st)])
            m, j = seq[idx]
            a = AF + (gpos % 4)*4
            for js in range(4):
                c = acc(m, j, js); b = BB + (st & 1)*16 + js*4
                cc = "0" if st == 0 else f"v[{c}:{c+3}]"
                I(f"v_mfma_f32_16x16x32_bf16 v[{c}:{c+3}], v[{a}:{a+3}], v[{b}:{b+3}], {cc}")
                if rr and js < 2: I(rr[js]); dq.append(("A", gpos + LA))
                if js == 2 and st + 1 < NST and 1 <= idx <= 4: xrd(st + 1, idx - 1)
            if m == 0 and "nocs" not in FLAGS:
                c = CS + 4*j
                cc = "0" if st == 0 else f"v[{c}:{c+3}]"
                I(f"v_mfma_f32_16x16x32_bf16 v[{c}:{c+3}], v[{a}:{a+3}], v[{ONE}:{ONE+3}], {cc}")
    stamp()
    for j in range(5): I(f"ds_write_b128 v8, v[{CS+4*j}:{CS+4*j+3}] offset:{64*j}")
    I("s_lshr_b32 s34, s25, 5")
    I("s_lshl_b32 s34, s34, 10")
    I("s_waitcnt lgkmcnt(0)")
    I("s_barrier")
    CP2 = 20; STR = 40
    for js in range(4): I(f"ds_read_b64 v[{STR+2*js}:{STR+2*js+1}], v7 offset:{128*js}")
    for j in range(5): I(f"ds_read_b128 v[{CP2+4*j}:{CP2+4*j+3}], v10 offset:{64*j}")
    EP2 = "ep2" in FLAGS
    if EP2: I("s_waitcnt lgkmcnt(0)")
    for m in range(2 if not EP2 else 0):
        I(f"s_waitcnt lgkmcnt({5 if m == 0 else 0})")
        for j in range(5):
            cs = (CS if m == 0 else CP2) + 4*j
            for js in range(4):
                c = acc(m, j, js); sr = STR + 2*js
                for hh in range(2):
                    I(f"v_pk_fma_f32 v[{c+2*hh}:{c+2*hh+1}], v[{cs+2*hh}:{cs+2*hh+1}], v[{sr}:{sr+1}], v[{c+2*hh}:{c+2*hh+1}] op_sel:[0,1,0] op_sel_hi:[1,1,1]")
            for js in range(4):
                c = acc(m, j, js); sr = STR + 2*js
                for hh in range(2):
                    I(f"v_pk_mul_f32 v[{c+2*hh}:{c+2*hh+1}], v[{c+2*hh}:{c+2*hh+1}], v[{sr}:{sr+1}] op_sel:[0,0] op_sel_hi:[1,0]")
    cnt = [0]
    def hq(j, js, dst, t):
        g = acc(0, j, js); u = acc(1, j, js)
        if EP2:
            sr = STR + 2*js
            for (c, cs) in ((g, CS + 4*j), (u, CP2 + 4*j)):
                for hh in range(2):
                    I(f"v_pk_fma_f32 v[{c+2*hh}:{c+2*hh+1}], v[{cs+2*hh}:{cs+2*hh+1}], v[{sr}:{sr+1}], v[{c+2*hh}:{c+2*hh+1}] op_sel:[0,1,0] op_sel_hi:[1,1,1]")
            for c in (g, u):
                for hh in range(2):
                    I(f"v_pk_mul_f32 v[{c+2*hh}:{c+2*hh+1}], v[{c+2*hh}:{c+2*hh+1}], v[{sr}:{sr+1}] op_sel:[0,0] op_sel_hi:[1,0]")
            for c in (g, u):
                for r in range(4): I(f"v_cvt_pk_bf16_f32 v{c+r}, 0, v{c+r}")
            for hh in range(2):
                I(f"v_pk_mul_f32 v[{g+2*hh}:{g+2*hh+1}], v[{g+2*hh}:{g+2*hh+1}], v[{u+2*hh}:{u+2*hh+1}]")
            I(f"v_cvt_pk_bf16_f32 v{dst}, v{g}, v{g+1}")
            I(f"v_cvt_pk_bf16_f32 v{dst+1}, v{g+2}, v{g+3}")
            return
        I(f"v_cvt_pk_bf16_f32 v{t}, v{g}, v{g+1}")
        I(f"v_cvt_pk_bf16_f32 v{t+1}, v{g+2}, v{g+3}")
        I(f"v_cvt_pk_bf16_f32 v{t+2}, v{u}, v{u+1}")
        I(f"v_cvt_pk_bf16_f32 v{t+3}, v{u+2}, v{u+3}")
        lo16(g, t); hi16(g+1, t); lo16(g+2, t+1); hi16(g+3, t+1)
        lo16(u, t+2); hi16(u+1, t+2); lo16(u+2, t+3); hi16(u+3, t+3)
        for r in range(4):
            I(f"v_mul_f32 v{g+r}, v{g+r}, v{u+r}")
        I(f"v_cvt_pk_bf16_f32 v{dst}, v{g}, v{g+1}")
        I(f"v_cvt_pk_bf16_f32 v{dst+1}, v{g+2}, v{g+3}")
    def epi(fq):
        units = [((0, 1), 0, 0), ((2, 3), 1, 0), ((4,), 2, 0)] if fq == 0 else [((0,), 2, 8), ((1, 2), 3, 0), ((3, 4), 4, 0)]
        for js in range(4):
            I(f"s_add_u32 s35, s34, {js*55296}")
            I(f"s_add_u32 s36, s34, {js*55296 + 4096}")
            for (jl, blk, ho) in units:
                t = 24 + (cnt[0] % 4) * 12; cnt[0] += 1
                if EP2: t = 44 + (cnt[0] % 5) * 4
                for hh, j in enumerate(jl): hq(j, js, t+4+2*hh, t)
                so, off = ("s35", 1024*blk + ho) if blk < 4 else ("s36", ho)
                if len(jl) == 2:
                    I(f"buffer_store_dwordx4 v[{t+4}:{t+7}], v9, s[20:23], {so} offen offset:{off}")
                else:
                    I(f"buffer_store_dwordx2 v[{t+4}:{t+5}], v9, s[20:23], {so} offen offset:{off}")
    I("s_cmp_eq_u32 s33, 0")
    I("s_cbranch_scc0 G1_epi1")
    epi(0)
    I("s_branch G1_epid")
    e("G1_epi1:")
    epi(1)
    e("G1_epid:")
    if STAMP: I("s_waitcnt vmcnt(0)")
    stamp()
    stamp_dump(5)
    wgt_end(1)
    I("s_endpgm")

def gen_g1f2():
    NF = 10; RS = 320; MS = 32*RS; SL = 2*MS; NS = 6; NST = 20; DWP = 5
    XB = NS*SL
    XP = 18432; XR = 144
    STL = XB + 2*XP
    CN = "nocn" not in FLAGS
    I(f"s_mul_i32 s25, s25, {16*NF}")
    I(f"s_min_u32 s25, s25, {F-16*NF}")
    I("v_and_b32 v1, 63, v0")
    I("s_and_b32 s26, s3, 3")
    I(f"s_mul_i32 s30, s26, {32*XR}")
    I(f"s_add_u32 s30, s30, {XB}")
    I("s_lshl_b32 s31, s26, 9")
    I(f"s_add_u32 s31, s31, {STL}")
    I("v_lshl_add_u32 v8, v1, 3, s31")
    I("s_lshl_b32 s27, s24, 3")
    I("s_lshl_b32 s26, s26, 1")
    I("s_add_u32 s26, s26, s27")
    I("s_mul_i32 s27, s26, 20480")
    I("v_lshrrev_b32 v12, 3, v1")
    I("v_and_b32 v11, 7, v1")
    I("v_mul_u32_u24 v13, 0x500, v12")
    I("v_lshl_add_u32 v13, v11, 4, v13")
    I("v_add_u32 v13, s27, v13")
    for rg in range(1, 4): I(f"v_add_u32 v{13+rg}, {rg*10240}, v13")
    I(f"v_mul_u32_u24 v5, {XR}, v12")
    I("v_lshl_add_u32 v5, v11, 4, v5")
    I("v_add_u32 v5, s30, v5")
    I("s_cmp_lt_u32 s3, 4")
    I("s_cbranch_scc1 G1_cons")
    RAW = 64
    def raw(rg, p): return RAW + (p*4 + rg)*4
    I("s_lshl_b32 s27, s26, 7")
    I("v_lshl_add_u32 v7, v12, 3, s27")
    I("s_waitcnt lgkmcnt(0)")
    srd(12, 44, SZ_SD)
    srd(20, 6, S*8, WS_ST)
    for p in range(10):
        for rg in range(4):
            r = raw(rg, p)
            I(f"buffer_load_dwordx4 v[{r}:{r+3}], v{13+rg}, s[12:15], 0 offen offset:{128*p}")
    SM = 24; SS = 32; TT = 40; STA = 48
    for j in range(16): I(f"v_mov_b32 v{SM+j}, 0")
    I("s_mov_b32 s49, 0x3f803f80")
    vq = [("Q", i) for i in range(40)]
    def vwait(pred):
        idxs = [i for i, t in enumerate(vq) if pred(t)]
        if not idxs: return
        idx = max(idxs)
        n = len(vq) - 1 - idx
        assert n <= 63
        I(f"s_waitcnt vmcnt({n})")
        del vq[:idx+1]
    def pdma(st):
        I(f"s_mov_b32 s28, {st*32*3456}")
        for i in range(5):
            if i % 4 == 0: I(f"s_add_u32 m0, s29, {(st % NS)*SL + (i//4)*4096}")
            I(f"buffer_load_dwordx4 v{224+i}, s[8:11], s28 offen offset:{1024*(i%4)} lds")
            vq.append(("D", st))
    I("s_lshl_b32 s27, s25, 1")
    I("s_and_b32 s28, s3, 1")
    I("s_lshl_b32 s28, s28, 4")
    for i in range(5):
        I(f"v_add_u32 v20, {64*i}, v1")
        I("v_mul_u32_u24 v21, 3277, v20")
        I("v_lshrrev_b32 v21, 16, v21")
        I("v_mul_u32_u24 v22, 20, v21")
        I("v_sub_u32 v22, v20, v22")
        I("v_add_u32 v21, s28, v21")
        I("v_bfe_u32 v23, v21, 3, 1")
        I("v_lshlrev_b32 v23, 1, v23")
        I("v_xor_b32 v22, v22, v23")
        I("v_mul_u32_u24 v21, 3456, v21")
        I("v_lshl_add_u32 v21, v22, 4, v21")
        I("v_add_u32 v21, s27, v21")
        I(f"v_subrev_u32 v{224+i}, {1024*(i%4)}, v21")
    I("s_sub_u32 s29, s3, 4")
    I("s_mul_i32 s29, s29, 5120")
    I("s_cmp_ge_u32 s3, 6")
    I("s_cselect_b32 s4, s18, s16")
    I("s_cselect_b32 s5, s19, s17")
    srd(8, 4, SZ_W)
    DSCH = {5: [0], 8: [1], 9: [2]}
    for f_ in FLAGS:
        if f_ == "dsch1": DSCH = {3: [0], 6: [1], 9: [2]}
        if f_ == "dsch2": DSCH = {7: [0], 9: [1, 2]}
        if f_ == "dsch3": DSCH = {-1: [0], 5: [1], 9: [2]}
    for st in DSCH.get(-1, []): pdma(st)
    for p in range(10):
        vwait(lambda t: t[0] == "Q" and t[1] <= 4*p + 3)
        for c in range(4):
            for rg in range(4):
                r = raw(rg, p) + c
                I(f"v_dot2_f32_bf16 v{SM+2*rg+(c&1)}, v{r}, s49, v{SM+2*rg+(c&1)}")
                I(f"v_dot2_f32_bf16 v{SS+2*rg+(c&1)}, v{r}, v{r}, v{SS+2*rg+(c&1)}")
        for st in DSCH.get(p, []): pdma(st)
    I("s_nop 3")
    V8 = [SM+2*rg for rg in range(4)] + [SS+2*rg for rg in range(4)]
    for a in V8: I(f"v_add_f32 v{a}, v{a}, v{a+1}")
    for i_, dpp in enumerate(("quad_perm:[1,0,3,2]", "quad_perm:[2,3,0,1]", "row_half_mirror")):
        sr, ds_ = (0, 1) if i_ % 2 == 0 else (1, 0)
        for a in V8: I(f"v_add_f32_dpp v{a+ds_}, v{a+sr}, v{a+sr} {dpp} row_mask:0xf bank_mask:0xf")
    R4 = range(4)
    for a in V8: I(f"v_mul_f32 v{a}, {1.0/640.0!r}, v{a+1}")
    for rg in R4: I(f"v_fma_f32 v{SS+2*rg}, -v{SM+2*rg}, v{SM+2*rg}, v{SS+2*rg}")
    for rg in R4:
        I(f"v_cvt_pk_bf16_f32 v{STA+2*rg+1}, 0, -v{SM+2*rg}")
        I(f"v_cvt_pk_bf16_f32 v{SS+2*rg}, 0, v{SS+2*rg}")
    for rg in R4: I(f"v_add_f32 v{SS+2*rg}, {1e-5!r}, v{SS+2*rg}")
    for rg in R4: I(f"v_cvt_pk_bf16_f32 v{SS+2*rg}, 0, v{SS+2*rg}")
    for rg in R4: I(f"v_sqrt_f32 v{SS+2*rg}, v{SS+2*rg}")
    I("s_nop 0")
    for rg in R4: I(f"v_cvt_pk_bf16_f32 v{SS+2*rg}, 0, v{SS+2*rg}")
    for rg in R4: I(f"v_rcp_f32 v{STA+2*rg}, v{SS+2*rg}")
    I("s_mov_b32 s50, 0x3f80")
    I("s_mov_b32 s51, 0x3f800000")
    if CN: I(f"ds_write_b64 v8, v[{STA+6}:{STA+7}]")
    def norm_ops(r, R_, M_, tt, wr, fast=False):
        o = []
        if fast:
            for c in range(4):
                o.append(f"v_dot2_f32_bf16 v{tt+2*c}, v{r+c}, s50, v{M_}")
                o.append(f"v_dot2_f32_bf16 v{tt+2*c+1}, v{r+c}, s51, v{M_}")
            for c in range(8): o.append(f"v_cvt_pk_bf16_f32 v{tt+c}, 0, v{tt+c}")
            for c in range(4): o.append(f"v_pk_mul_f32 v[{tt+2*c}:{tt+2*c+1}], v[{tt+2*c}:{tt+2*c+1}], v[{R_}:{R_+1}] op_sel_hi:[1,0]")
        else:
            for c in range(4):
                o.append(f"v_lshlrev_b32 v{tt+2*c}, 16, v{r+c}")
                o.append(f"v_and_b32 v{tt+2*c+1}, 0xffff0000, v{r+c}")
            for c in range(8): o.append(f"v_add_f32 v{tt+c}, v{tt+c}, v{M_}")
            for c in range(8): o.append(f"v_cvt_pk_bf16_f32 v{tt+c}, 0, v{tt+c}")
            for c in range(8): o.append(f"v_mul_f32 v{tt+c}, v{tt+c}, v{R_}")
        for c in range(4): o.append(f"v_cvt_pk_bf16_f32 v{r+c}, v{tt+2*c}, v{tt+2*c+1}")
        o.append(wr)
        return o
    def hnorm(p, rgs, fast=False):
        o = []
        for rg in rgs:
            r = raw(rg, p)
            o += norm_ops(r, STA + 2*rg, STA + 2*rg + 1, TT, f"ds_write_b128 v5, v[{r}:{r+3}] offset:{(p & 1)*XP + rg*8*XR}", fast)
        return o
    HST = "hst" in FLAGS
    hn = [0]
    def hstamp(k):
        if HST and k in (12, 13):
            I(f"s_memtime s[{60+2*hn[0]}:{61+2*hn[0]}]"); hn[0] += 1
    for k in range(NST):
        hstamp(k)
        if k == 0:
            for x in hnorm(0, (0, 1, 2, 3), fast=True): I(x)
            pdma(3); pdma(4)
        else:
            dl = []
            if k >= 2 and k - 2 + DWP < NST:
                st = k - 2 + DWP
                for i in range(5):
                    pre = [f"s_mov_b32 s28, {st*32*3456}"] if i == 0 else []
                    if i % 4 == 0: pre.append(f"s_add_u32 m0, s29, {(st % NS)*SL + (i//4)*4096}")
                    dl.append(pre + [f"buffer_load_dwordx4 v{224+i}, s[8:11], s28 offen offset:{1024*(i%4)} lds"])
                    vq.append(("D", st))
            hstamp(k)
            p = (k-1)//2 + 1
            o = []
            if p < 10:
                o = hnorm(p, (0, 1, 2) if (CN and p >= 2) else (0, 1, 2, 3))
                h = len(o)//2
                o = (o[:h] if (k-1) % 2 == 0 else o[h:])
            stepd = max(1, len(o)//5)
            for i_, x in enumerate(o):
                if i_ % stepd == 0 and dl:
                    for y in dl.pop(0): I(y)
                I(x)
            for d_ in dl:
                for y in d_: I(y)
        if k == 1:
            for rg in R4:
                I(f"buffer_store_dwordx2 v[{STA+2*rg}:{STA+2*rg+1}], v7, s[20:23], 0 offen offset:{64*rg}")
                vq.append(("S", rg))
        hstamp(k)
        vwait(lambda t: t == ("D", k))
        hstamp(k)
        I("s_waitcnt lgkmcnt(0)")
        hstamp(k)
        I("s_barrier")
    if HST:
        I("s_waitcnt lgkmcnt(0) vmcnt(0)")
        I("s_cmp_lg_u32 s2, 5")
        I("s_cbranch_scc1 HS_skip")
        I("s_cmp_lg_u32 s3, 4")
        I("s_cbranch_scc1 HS_skip")
        I("s_load_dwordx2 s[56:57], s[0:1], 88")
        I("s_waitcnt lgkmcnt(0)")
        I("s_mov_b32 s58, 256")
        I("s_mov_b32 s59, 0x00020000")
        I("v_mov_b32 v1, 0")
        for i in range(hn[0]):
            I(f"s_sub_u32 s{61+2*i}, s{60+2*i}, s60")
            I(f"v_mov_b32 v2, s{61+2*i}")
            I(f"buffer_store_dword v2, v1, s[56:59], 0 offen offset:{128+4*i}")
        I("s_waitcnt vmcnt(0)")
        e("HS_skip:")
    I("s_endpgm")
    e("G1_cons:")
    BB = 24; AF = 56; ACC = 80; LA = 2
    CR_ = 72; CT = 240; CS = 248
    I("v_mov_b32 v250, v16")
    I(f"v_add_u32 v251, {24*XR}, v5")
    I("v_mov_b32 v252, v8")
    I("s_load_dwordx2 s[4:5], s[0:1], 72")
    CSL = 48
    for f_ in FLAGS:
        if f_.startswith("csl"): CSL = int(f_[3:])
    if CSL: I(f"s_sleep {CSL}")
    I("s_waitcnt lgkmcnt(0)")
    srd(12, 44, SZ_SD)
    I("s_cmp_ge_u32 s3, 2")
    I("s_cbranch_scc1 G1_cpf")
    I("s_mul_i32 s46, s3, 176")
    I("s_add_u32 s46, s46, s47")
    I("s_cmp_ge_u32 s46, 270")
    I("s_cbranch_scc1 G1_cgo")
    I("s_mul_i32 s36, s46, 0xCCCD")
    I("s_lshr_b32 s36, s36, 19")
    I("s_mul_i32 s37, s36, 10")
    I("s_sub_u32 s37, s46, s37")
    I("v_and_b32 v23, 7, v0")
    I("v_bfe_u32 v17, v0, 3, 2")
    I("v_bfe_u32 v18, v0, 5, 1")
    I("s_lshl_b32 s37, s37, 6")
    I("v_lshl_add_u32 v23, v23, 3, s37")
    I("s_lshl_b32 s36, s36, 1")
    I("v_add_u32 v18, s36, v18")
    I("v_lshlrev_b32 v19, 5, v18")
    I("v_lshl_add_u32 v19, v17, 2, v19")
    I("v_mul_u32_u24 v20, 0x500, v19")
    I("v_lshl_add_u32 v20, v23, 1, v20")
    I("v_add_u32 v21, 0x5000, v20")
    srd(8, 4, SZ_W)
    srd(32, 6, SZ_W, WS_WDT)
    for i in range(8):
        b = 20 if i < 4 else 21
        I(f"buffer_load_dwordx4 v[{ACC+4*i}:{ACC+3+4*i}], v{b}, s[8:11], 0 offen offset:{(i%4)*1280}")
    I("s_mov_b32 s36, 0x05040100")
    I("s_mov_b32 s37, 0x07060302")
    I("v_lshrrev_b32 v22, 4, v23")
    I("v_mul_u32_u24 v22, 54, v22")
    I("v_add_u32 v22, v22, v18")
    I("v_lshlrev_b32 v22, 10, v22")
    I("v_lshl_add_u32 v22, v17, 8, v22")
    I("v_and_b32 v19, 15, v23")
    I("v_lshl_add_u32 v22, v19, 4, v22")
    I("s_waitcnt vmcnt(0)")
    for dd in range(8):
        ob = ACC + 32 + 4*dd
        sel = 36 + (dd & 1)
        for q in range(4):
            I(f"v_perm_b32 v{ob+q}, v{ACC+4*(2*q+1)+dd//2}, v{ACC+4*(2*q)+dd//2}, s{sel}")
    for dd in range(8):
        ob = ACC + 32 + 4*dd
        I(f"buffer_store_dwordx4 v[{ob}:{ob+3}], v22, s[32:35], 0 offen offset:{16*dd}")
    I("s_waitcnt vmcnt(0)")
    I("s_branch G1_cgo")
    e("G1_cpf:")
    if "nopfm" not in FLAGS:
        I("s_cmp_ge_u32 s3, 3")
        I("s_cselect_b32 s8, s18, s16")
        I("s_cselect_b32 s9, s19, s17")
        I("s_mul_i32 s27, s47, 12800")
        I(f"s_mov_b32 s10, {SZ_W}")
        I("s_mov_b32 s11, 0x00020000")
        I("v_lshlrev_b32 v17, 4, v1")
        for i in range(13):
            I(f"buffer_load_dwordx4 v[{ACC+4*i}:{ACC+3+4*i}], v17, s[8:11], s27 offen")
            I("s_add_u32 s27, s27, 1024")
        I("s_waitcnt vmcnt(0)")
    e("G1_cgo:")
    I("s_and_b32 s31, s3, 1")
    I("s_lshr_b32 s33, s3, 1")
    I("s_lshl_b32 s27, s24, 3")
    I("s_lshl_b32 s26, s31, 2")
    I("s_add_u32 s26, s26, s27")
    I("s_mul_i32 s27, s26, 55296")
    I("v_lshl_add_u32 v9, v1, 4, s27")
    I("v_bfe_u32 v17, v0, 4, 2")
    I("v_and_b32 v18, 15, v0")
    I(f"v_mul_u32_u24 v6, {XR}, v18")
    I("v_lshl_add_u32 v6, v17, 4, v6")
    I(f"s_mul_i32 s30, s31, {64*XR}")
    I(f"s_add_u32 s30, s30, {XB}")
    I("v_add_u32 v6, s30, v6")
    I("v_bfe_u32 v18, v0, 2, 2")
    I("v_lshl_add_u32 v19, v17, 3, v18")
    I(f"v_mul_u32_u24 v19, {RS}, v19")
    I("v_and_b32 v18, 3, v0")
    I("v_lshl_add_u32 v19, v18, 3, v19")
    I("s_mul_i32 s27, s33, 160")
    I("v_add_u32 v19, s27, v19")
    I("v_and_b32 v20, 1, v17")
    I("v_lshlrev_b32 v20, 5, v20")
    I("s_lshl_b32 s27, s33, 1")
    I("s_sub_u32 s27, 1, s27")
    I("v_mul_lo_u32 v20, v20, s27")
    I("v_add_u32 v11, v19, v20")
    I("v_sub_u32 v12, v19, v20")
    I(f"v_add_u32 v13, {3*SL}, v11")
    I(f"v_add_u32 v14, {3*SL}, v12")
    srd(20, 6, SZ_H, WS_H)
    for f_ in FLAGS:
        if f_.startswith("la"): LA = int(f_[2:])
    def acc(m, j, js): return ACC + ((m*5 + j)*4 + js)*4
    seq = [(m, j) for m in range(2) for j in range(5)]
    NQ = len(seq)
    dq = []
    def dwait(tags):
        idxs = [i for i, t in enumerate(dq) if t in tags]
        if not idxs: return
        idx = max(idxs); n = len(dq) - 1 - idx
        assert n <= 15
        I(f"s_waitcnt lgkmcnt({n})")
        del dq[:idx+1]
    def rdx(gpos):
        st, idx = divmod(gpos, NQ)
        m, j = seq[idx]
        slot = st % NS
        a = AF + (gpos % 4)*4
        va = 11 + 2*(slot // 3) + (j & 1)
        off = (slot % 3)*SL + m*MS + j*32
        return [f"ds_read_b64_tr_b16 v[{a}:{a+1}], v{va} offset:{off}",
                f"ds_read_b64_tr_b16 v[{a+2}:{a+3}], v{va} offset:{off+4*RS}"]
    def xrd(st, js):
        b = BB + (st & 1)*16 + js*4
        I(f"ds_read_b128 v[{b}:{b+3}], v6 offset:{((st >> 1) & 1)*XP + js*16*XR + (st & 1)*64}")
        dq.append(("X", st))
    def cld(P):
        r = CR_ + (P & 1)*4
        I(f"buffer_load_dwordx4 v[{r}:{r+3}], v250, s[12:15], 0 offen offset:{128*P}")
    if CN: cld(2); cld(3)
    stamp()
    I("s_barrier")
    stamp()
    for js in range(4): xrd(0, js)
    if CN:
        I(f"ds_read_b64 v[{CS}:{CS+1}], v252"); dq.append(("X", 0))
    for i in range(LA):
        for x in rdx(i): I(x); dq.append(("A", i))
    for st in range(NST):
        cw = []
        if CN and st >= 1:
            P = (st + 3)//2
            if 2 <= P <= 9:
                r = CR_ + (P & 1)*4
                o = norm_ops(r, CS, CS+1, CT, f"ds_write_b128 v251, v[{r}:{r+3}] offset:{(P & 1)*XP}")
                h = len(o)//2
                cw = o[:h] if st == 2*P - 3 else o[h:]
                if st == 2*P - 3: cw = [f"s_waitcnt vmcnt({1 if P < 9 else 0})"] + cw
                elif P + 2 <= 9: cw = cw + [("L", P + 2)]
        if st + 1 < NST:
            dwait([("XW", 0)])
            I("s_barrier")
        if "stamp3" in FLAGS and st in (1, 5, 10): stamp()
        nslot = 24
        for idx in range(NQ):
            gpos = st*NQ + idx
            rr = rdx(gpos + LA) if gpos + LA < NST*NQ else None
            dwait([("A", gpos), ("X", st)])
            m, j = seq[idx]
            a = AF + (gpos % 4)*4
            for js in range(4):
                c = acc(m, j, js); b = BB + (st & 1)*16 + js*4
                cc = "0" if st == 0 else f"v[{c}:{c+3}]"
                I(f"v_mfma_f32_16x16x32_bf16 v[{c}:{c+3}], v[{a}:{a+3}], v[{b}:{b+3}], {cc}")
                if rr and js < 2: I(rr[js]); dq.append(("A", gpos + LA))
                if js == 2 and st + 1 < NST and 1 <= idx <= 4: xrd(st + 1, idx - 1)
                if js >= 1 and cw:
                    x = cw.pop(0)
                    if isinstance(x, tuple): cld(x[1])
                    else:
                        I(x)
                        if x.startswith("ds_write"): dq.append(("XW", 0))
                        if x.startswith("s_waitcnt") and cw: I(cw.pop(0))
        assert not cw
    stamp()
    I("s_lshr_b32 s34, s25, 5")
    I("s_lshl_b32 s34, s34, 10")
    I("s_nop 7")
    I("s_nop 3")
    cnt = [0]
    def hq(j, js, dst, t):
        g = acc(0, j, js); u = acc(1, j, js)
        I(f"v_cvt_pk_bf16_f32 v{t}, v{g}, v{g+1}")
        I(f"v_cvt_pk_bf16_f32 v{t+1}, v{g+2}, v{g+3}")
        I(f"v_cvt_pk_bf16_f32 v{t+2}, v{u}, v{u+1}")
        I(f"v_cvt_pk_bf16_f32 v{t+3}, v{u+2}, v{u+3}")
        lo16(g, t); hi16(g+1, t); lo16(g+2, t+1); hi16(g+3, t+1)
        lo16(u, t+2); hi16(u+1, t+2); lo16(u+2, t+3); hi16(u+3, t+3)
        for r in range(4):
            I(f"v_mul_f32 v{g+r}, v{g+r}, v{u+r}")
        I(f"v_cvt_pk_bf16_f32 v{dst}, v{g}, v{g+1}")
        I(f"v_cvt_pk_bf16_f32 v{dst+1}, v{g+2}, v{g+3}")
    def epi(fq):
        units = [((0, 1), 0, 0), ((2, 3), 1, 0), ((4,), 2, 0)] if fq == 0 else [((0,), 2, 8), ((1, 2), 3, 0), ((3, 4), 4, 0)]
        for js in range(4):
            I(f"s_add_u32 s35, s34, {js*55296}")
            I(f"s_add_u32 s36, s34, {js*55296 + 4096}")
            for (jl, blk, ho) in units:
                t = 24 + (cnt[0] % 4) * 12; cnt[0] += 1
                for hh, j in enumerate(jl): hq(j, js, t+4+2*hh, t)
                so, off = ("s35", 1024*blk + ho) if blk < 4 else ("s36", ho)
                if len(jl) == 2:
                    I(f"buffer_store_dwordx4 v[{t+4}:{t+7}], v9, s[20:23], {so} offen offset:{off}")
                else:
                    I(f"buffer_store_dwordx2 v[{t+4}:{t+5}], v9, s[20:23], {so} offen offset:{off}")
    I("s_cmp_eq_u32 s33, 0")
    I("s_cbranch_scc0 G1_epi1")
    epi(0)
    I("s_branch G1_epid")
    e("G1_epi1:")
    epi(1)
    e("G1_epid:")
    if STAMP: I("s_waitcnt vmcnt(0)")
    stamp()
    stamp_dump(5)
    wgt_end(1)
    I("s_endpgm")

def g1_epi(NF, acc):
    I("s_lshr_b32 s34, s25, 5")
    I("s_lshl_b32 s34, s34, 10")
    I("s_add_u32 s35, s34, 4096")
    I("s_nop 7")
    I("s_nop 3")
    for js in range(2):
        for jp in range(NF//2):
            t = 24 + ((js*5 + jp) % 4) * 12
            for hh in range(2):
                jf = 2*jp + hh
                g = acc(0, jf, js); u = acc(1, jf, js)
                I(f"v_cvt_pk_bf16_f32 v{t}, v{g}, v{g+1}")
                I(f"v_cvt_pk_bf16_f32 v{t+1}, v{g+2}, v{g+3}")
                I(f"v_cvt_pk_bf16_f32 v{t+2}, v{u}, v{u+1}")
                I(f"v_cvt_pk_bf16_f32 v{t+3}, v{u+2}, v{u+3}")
                lo16(g, t); hi16(g+1, t); lo16(g+2, t+1); hi16(g+3, t+1)
                lo16(u, t+2); hi16(u+1, t+2); lo16(u+2, t+3); hi16(u+3, t+3)
                for r in range(4):
                    I(f"v_mul_f32 v{g+r}, v{g+r}, v{u+r}")
                I(f"v_cvt_pk_bf16_f32 v{t+4+2*hh}, v{g}, v{g+1}")
                I(f"v_cvt_pk_bf16_f32 v{t+5+2*hh}, v{g+2}, v{g+3}")
            if jp < 4:
                I(f"buffer_store_dwordx4 v[{t+4}:{t+7}], v{9+js}, s[20:23], s34 offen offset:{1024*jp}")
            else:
                I(f"buffer_store_dwordx4 v[{t+4}:{t+7}], v{9+js}, s[20:23], s35 offen")
    if STAMP: I("s_waitcnt vmcnt(0)")
    stamp()
    stamp_dump(5)
    wgt_end(1)
    I("s_endpgm")

def gen_k2():
    kernel_header("mid_kernel")
    if BIG:
        I("s_cmp_ge_u32 s2, 256")
        I("s_cbranch_scc1 M_exit")
        wgt_start()
        I("s_load_dwordx2 s[6:7], s[0:1], 96")
        I("v_lshrrev_b32 v1, 6, v0")
        I("s_nop 0")
        I("v_readfirstlane_b32 s3, v1")
        I("s_lshr_b32 s40, s2, 3")
        I("s_bfe_u32 s41, s2, 0x10002")
        I("s_and_b32 s42, s2, 3")
        I("s_lshl_b32 s43, s41, 2")
        I("s_sub_u32 s43, 24, s43")
        if "kvall" in FLAGS:
            I("s_and_b32 s8, s3, 1")
            I("s_lshl_b32 s8, s8, 3")
            I("s_add_u32 s8, s8, 8")
            I("s_load_dwordx2 s[8:9], s[0:1], s8")
            I("s_lshr_b32 s12, s3, 1")
            I("s_cmp_gt_u32 s12, s41")
            I("s_cbranch_scc1 M_nokvpf")
            I("s_mul_i32 s13, s42, 192")
            I("s_add_u32 s13, s13, 512")
            I("s_and_b32 s13, s13, 0xffffff80")
            I("s_lshl_b32 s14, s42, 7")
            I("s_cmp_eq_u32 s41, 0")
            I("s_cselect_b32 s13, s14, s13")
            I("s_lshl_b32 s12, s12, 7")
            I("s_add_u32 s13, s13, s12")
            I("s_mul_i32 s12, s40, 81920")
            I("s_add_u32 s13, s13, s12")
            I("v_and_b32 v1, 63, v0")
            I("v_mul_u32_u24 v1, 0x500, v1")
            I(f"s_mov_b32 s10, {SZ_SD}")
            I("s_mov_b32 s11, 0x00020000")
            I("s_waitcnt lgkmcnt(0)")
            for f_ in FLAGS:
                if f_.startswith("kvd"): I(f"s_sleep {int(f_[3:])}")
            I("buffer_load_dword v255, v1, s[8:11], s13 offen")
            e("M_nokvpf:")
            I("s_waitcnt lgkmcnt(0)")
        I("s_cmp_ge_u32 s40, s43")
        I("s_cbranch_scc1 M_conv")
        if "nog1" in FLAGS: I("s_endpgm")
        I("s_mul_i32 s24, s42, s43")
        I("s_add_u32 s24, s24, s40")
        I("s_mul_i32 s25, s41, 96")
        I("s_add_u32 s24, s24, s25")
        W0 = 6 if "prod" in FLAGS else 4
        if FUSE:
            stamp()
            I("s_load_dwordx4 s[16:19], s[0:1], 56")
            I("s_load_dwordx2 s[44:45], s[0:1], 0")
            I("s_mov_b32 s47, s24")
        I(f"s_sub_u32 s25, s3, {W0}")
        I("s_mul_i32 s25, s25, 176")
        I("s_add_u32 s24, s24, s25")
        if FUSE:
            I("s_mov_b32 s46, s24")
        else:
            I(f"s_cmp_ge_u32 s3, {W0}")
            I("s_cbranch_scc1 M_wdt")
        I("s_lshl_b32 s24, s42, 2")
        I("s_and_b32 s25, s40, 3")
        I("s_add_u32 s24, s24, s25")
        I("s_mul_i32 s25, s41, 6")
        I("s_lshr_b32 s26, s40, 2")
        I("s_add_u32 s25, s25, s26")
        if FUSE and "g1b" in FLAGS: gen_g1b()
        elif FUSE and "f2" in FLAGS: gen_g1f2()
        elif FUSE: gen_g1fuse()
        else: gen_g1big()
    else:
        gen_g1old()
    gen_aux()

def gen_g1old():
    I(f"s_cmp_ge_u32 s2, {N_G1+N_CV}")
    I("s_cbranch_scc1 M_exit")
    I("s_load_dwordx2 s[6:7], s[0:1], 96")
    I(f"s_cmp_ge_u32 s2, {N_G1}")
    I("s_cbranch_scc1 M_conv")
    if "nog1" in FLAGS: I("s_endpgm")
    stamp()
    if "prio" in FLAGS: I("s_setprio 3")
    I("s_load_dwordx4 s[16:19], s[0:1], 56")
    I("v_lshrrev_b32 v1, 6, v0")
    I("s_nop 0")
    I("v_readfirstlane_b32 s3, v1")
    I("s_waitcnt lgkmcnt(0)")
    if "stamp2" in FLAGS: stamp()
    I("s_cmp_ge_u32 s3, 2")
    I("s_cselect_b32 s4, s18, s16")
    I("s_cselect_b32 s5, s19, s17")
    srd(8, 4, SZ_W)
    srd(12, 6, SZ_SD, WS_XN)
    srd(20, 6, SZ_H, WS_H)
    if "g12d" in FLAGS:
        I("s_and_b32 s24, s2, 3")
        I("s_lshl_b32 s24, s24, 2")
        I("s_bfe_u32 s25, s2, 0x20003")
        I("s_add_u32 s24, s24, s25")
        I("s_bfe_u32 s25, s2, 0x10002")
        I("s_lshl_b32 s25, s25, 3")
        I("s_lshr_b32 s26, s2, 5")
        I("s_add_u32 s25, s25, s26")
    else:
        I("s_and_b32 s24, s2, 15")
        I("s_lshr_b32 s25, s2, 4")
    I(f"s_mul_i32 s25, s25, {BF}")
    I(f"s_min_u32 s25, s25, {F-BF}")
    I("v_and_b32 v1, 63, v0")
    if "pf" in FLAGS:
        I("s_lshr_b32 s26, s2, 3")
        I("s_lshl_b32 s27, s26, 1")
        I("s_and_b32 s28, s3, 1")
        I("s_add_u32 s27, s27, s28")
        I("s_mul_i32 s27, s27, 34560")
        I("s_bfe_u32 s28, s2, 0x10002")
        I("s_mul_i32 s28, s28, 1792")
        I("s_add_u32 s27, s27, s28")
        I("v_lshrrev_b32 v192, 5, v1")
        I("v_mul_u32_u24 v192, 3456, v192")
        I("v_and_b32 v193, 31, v1")
        I("v_lshl_add_u32 v192, v193, 6, v192")
        I("v_add_u32 v192, s27, v192")
        for i in range(5):
            I(f"s_mov_b32 s27, {i*6912}")
            I(f"buffer_load_dword v{194+i}, v192, s[8:11], s27 offen")
        I("s_and_b32 s27, s2, 3")
        I("s_mul_i32 s27, s27, 655360")
        I("s_lshl_b32 s28, s26, 2")
        I("s_add_u32 s28, s28, s3")
        I("s_mul_i32 s28, s28, 5120")
        I("s_add_u32 s27, s27, s28")
        I("v_lshlrev_b32 v193, 6, v1")
        I("buffer_load_dword v199, v193, s[12:15], s27 offen")
        I("buffer_load_dword v200, v193, s[12:15], s27 offen offset:1024")
    I("v_lshrrev_b32 v10, 4, v1")
    I("v_bfe_u32 v11, v1, 1, 3")
    I("v_and_b32 v12, 1, v1")
    I("s_and_b32 s26, s3, 1")
    I("s_lshl_b32 s26, s26, 4")
    I("s_lshl_b32 s27, s25, 1")
    for i in range(4):
        bit = (i >> 1) & 1
        I(f"v_or_b32 v13, {bit<<2}, v10")
        I("v_xor_b32 v13, v13, v11")
        I(f"v_add_u32 v14, {4*i}, v10")
        I("v_add_u32 v14, s26, v14")
        I("v_mul_u32_u24 v14, 3456, v14")
        I("v_lshl_add_u32 v14, v13, 5, v14")
        I("v_lshl_add_u32 v14, v12, 4, v14")
        I("v_add_u32 v14, s27, v14")
        I(f"v_subrev_u32 v14, {1024*i}, v14")
        I("v_cmp_eq_u32 vcc, 7, v13")
        I("v_mov_b32 v15, 0x40000000")
        I("s_nop 0")
        I(f"v_cndmask_b32 v{2+i}, v14, v15, vcc")
    I("v_bfe_u32 v17, v0, 4, 2")
    I("s_lshl_b32 s26, s24, 3")
    I("s_lshl_b32 s27, s3, 1")
    I("s_add_u32 s26, s26, s27")
    I("s_mul_i32 s27, s26, 20480")
    I("v_lshl_add_u32 v6, v1, 4, s27")
    I("v_add_u32 v7, 20480, v6")
    I("s_mul_i32 s27, s26, 55296")
    I("v_lshl_add_u32 v8, v1, 4, s27")
    I("v_add_u32 v9, 55296, v8")
    I("v_bfe_u32 v18, v0, 2, 2")
    I("v_lshl_add_u32 v19, v17, 3, v18")
    I("v_lshlrev_b32 v19, 8, v19")
    I("v_and_b32 v20, 1, v17")
    I("v_lshl_or_b32 v20, v20, 2, v18")
    I("v_lshl_add_u32 v19, v20, 5, v19")
    I("v_and_b32 v18, 3, v0")
    I("v_lshl_add_u32 v19, v18, 3, v19")
    VA = 10
    I("v_mov_b32 v24, v19")
    for jf in range(7):
        I(f"v_xor_b32 v{VA+jf}, {jf<<5}, v24")
        I(f"v_add_u32 v{VA+7+jf}, 0x10000, v{VA+jf}")
    I("s_lshl_b32 s29, s3, 12")
    BB = 24
    AF = 64
    ACC = 80
    def acc(m, jf, js): return ACC + ((m*7 + jf)*2 + js)*4
    def bfr(st, js): return BB + (st % NSLOT)*8 + js*4
    NST = 20
    def issue(slot):
        I(f"s_add_u32 s30, s29, {slot*SLOT}")
        I("s_mov_b32 m0, s30")
        for i in range(4):
            I(f"buffer_load_dwordx4 v{2+i}, s[8:11], s28 offen offset:{1024*i} lds")
        for js in range(2):
            r = BB + slot*8 + js*4
            I(f"buffer_load_dwordx4 v[{r}:{r+3}], v{6+js}, s[12:15], s31 offen")
        I("s_add_u32 s36, s36, 1")
        I("s_cmp_ge_u32 s36, 20")
        I("s_cselect_b32 s36, 0, s36")
        I("s_add_u32 s37, s37, 1")
        I(f"s_mul_i32 s28, s36, {32*3456}")
        I("s_lshl_b32 s31, s36, 10")
        I("s_cmp_ge_u32 s37, 20")
        I("s_cselect_b32 s28, 0x40000000, s28")
        I("s_cselect_b32 s31, 0x40000000, s31")
    if "rot" in FLAGS:
        I("s_and_b32 s36, s24, 3")
        I("s_mul_i32 s36, s36, 5")
        I("s_lshr_b32 s37, s2, 5")
        I("s_mul_i32 s37, s37, 3")
        I("s_add_u32 s36, s36, s37")
        I("s_cmp_ge_u32 s36, 20")
        I("s_cselect_b32 s37, 20, 0")
        I("s_sub_u32 s36, s36, s37")
    else:
        I("s_mov_b32 s36, 0")
    I("s_mov_b32 s37, 0")
    I(f"s_mul_i32 s28, s36, {32*3456}")
    I("s_lshl_b32 s31, s36, 10")
    if "stamp2" in FLAGS: stamp()
    for st in range(NSLOT - 1):
        issue(st)
    if "stamp2" in FLAGS: stamp()
    for j in range(112):
        I(f"v_mov_b32 v{ACC+j}, 0")
    I("s_mov_b32 s33, 0")
    stamp()
    def body(last):
      for slot in range(NSLOT):
        if not last or slot <= 1:
            I(f"s_waitcnt vmcnt({6*(NSLOT-2)})")
        else:
            I(f"s_waitcnt vmcnt({6*(NSLOT-1-slot)})")
        I("s_barrier")
        if not last or slot == 0:
            issue((slot + NSLOT - 1) % NSLOT)
        seq = [(m, jf) for m in range(2) for jf in range(7)]
        def rd(idx):
            m, jf = seq[idx]
            a = AF + (idx % 4)*4
            if slot < 4:
                va = VA + jf; off = slot*SLOT + m*8192
            else:
                va = VA + 7 + jf; off = m*8192
            I(f"ds_read_b64_tr_b16 v[{a}:{a+1}], v{va} offset:{off}")
            I(f"ds_read_b64_tr_b16 v[{a+2}:{a+3}], v{va} offset:{off+1024}")
        for i in range(3):
            rd(i)
        for idx in range(14):
            if idx + 3 < 14:
                rd(idx + 3)
                I("s_waitcnt lgkmcnt(6)")
            else:
                I(f"s_waitcnt lgkmcnt({2*(13-idx)})")
            m, jf = seq[idx]
            a = AF + (idx % 4)*4
            for js in range(2):
                c = acc(m, jf, js); b = BB + slot*8 + js*4
                I(f"v_mfma_f32_16x16x32_bf16 v[{c}:{c+3}], v[{a}:{a+3}], v[{b}:{b+3}], v[{c}:{c+3}]")
    XS = "xs" in FLAGS
    LA = 3
    for f in FLAGS:
        if f.startswith("la"): LA = int(f[2:])
    RING = [64,68,72,76,192,196,200] if LA > 3 else [64,68,72,76,192]
    seq = [(m, jf) for m in range(2) for jf in range(7)]
    ring = [0]
    def rdx(slot, idx, pos):
        m, jf = seq[idx]
        a = RING[pos % len(RING)]
        if slot < 4:
            va = VA + jf; off = slot*SLOT + m*8192
        else:
            va = VA + 7 + jf; off = m*8192
        return [f"ds_read_b64_tr_b16 v[{a}:{a+1}], v{va} offset:{off}",
                f"ds_read_b64_tr_b16 v[{a+2}:{a+3}], v{va} offset:{off+1024}"]
    def body_xs(last):
      for slot in range(NSLOT):
        fin_stage = last and slot == NSLOT-1
        if not fin_stage:
            if not last or slot <= 1:
                I("s_waitcnt vmcnt(12)")
            else:
                I(f"s_waitcnt vmcnt({6*(NSLOT-2-slot)})")
            if "g1nobar" not in FLAGS: I("s_barrier")
        if (not last or slot == 0) and "g1noload" not in FLAGS:
            issue((slot + NSLOT - 1) % NSLOT)
        for idx in range(14 if "g1nocomp" not in FLAGS else 0):
            pos = idx + 14*slot
            if idx + LA < 14:
                rr = rdx(slot, idx + LA, pos + LA)
            elif not fin_stage:
                rr = rdx((slot + 1) % NSLOT, idx + LA - 14, pos + LA)
            else:
                rr = None
            I(f"s_waitcnt lgkmcnt({2*(LA-1) if not fin_stage else 2*min(LA-1, 13-idx)})")
            m, jf = seq[idx]
            a = RING[pos % len(RING)]
            for js in range(2):
                c = acc(m, jf, js); b = BB + slot*8 + js*4
                I(f"v_mfma_f32_16x16x32_bf16 v[{c}:{c+3}], v[{a}:{a+3}], v[{b}:{b+3}], v[{c}:{c+3}]")
                if rr: I(rr[js])
    if XS:
        I("s_waitcnt vmcnt(18)")
        I("s_barrier")
        for i in range(LA):
            for x in rdx(0, i, i): I(x)
    e("G1_loop:")
    (body_xs if XS else body)(False)
    I("s_add_u32 s33, s33, 1")
    I(f"s_cmp_lt_u32 s33, {NST//NSLOT - 1}")
    I("s_cbranch_scc1 G1_loop")
    (body_xs if XS else body)(True)
    stamp()
    I("s_waitcnt vmcnt(0)")
    I("s_nop 7")
    I("s_nop 3")
    T = 24
    for js in range(2):
        for jf in range(7):
            g = acc(0, jf, js); u = acc(1, jf, js)
            t = T + ((js*7 + jf) % 4) * 8
            I(f"v_cvt_pk_bf16_f32 v{t}, v{g}, v{g+1}")
            I(f"v_cvt_pk_bf16_f32 v{t+1}, v{g+2}, v{g+3}")
            I(f"v_cvt_pk_bf16_f32 v{t+2}, v{u}, v{u+1}")
            I(f"v_cvt_pk_bf16_f32 v{t+3}, v{u+2}, v{u+3}")
            lo16(g, t); hi16(g+1, t); lo16(g+2, t+1); hi16(g+3, t+1)
            lo16(u, t+2); hi16(u+1, t+2); lo16(u+2, t+3); hi16(u+3, t+3)
            for r in range(4):
                I(f"v_mul_f32 v{g+r}, v{g+r}, v{u+r}")
            I(f"v_cvt_pk_bf16_f32 v{t+4}, v{g}, v{g+1}")
            I(f"v_cvt_pk_bf16_f32 v{t+5}, v{g+2}, v{g+3}")
            I(f"s_add_u32 s34, s25, {16*jf}")
            I("s_lshr_b32 s35, s34, 5")
            I("s_lshl_b32 s35, s35, 10")
            I("s_and_b32 s34, s34, 16")
            I("s_lshr_b32 s34, s34, 1")
            I("s_add_u32 s35, s35, s34")
            I(f"buffer_store_dwordx2 v[{t+4}:{t+5}], v{8+js}, s[20:23], s35 offen")
    I("s_waitcnt vmcnt(0)")
    stamp()
    stamp_dump(5)
    I("s_endpgm")

def gen_aux():
    e("M_conv:")
    if "noconv" in FLAGS: I("s_endpgm")
    XREG = 7680; CST = 576 if "cst" in FLAGS else 800; HBUF = 8*CST; WREG = 20480
    CMG = "cmg" in FLAGS
    if CMG: CST = 320; HBUF = 16*CST; HHI = 8*CST
    CM4 = "cm4" in FLAGS
    if CM4: HBUF = 8*CST; HHI = 4*CST
    stamp()
    I("s_load_dwordx4 s[16:19], s[0:1], 32")
    if FUSE:
        I("s_load_dwordx4 s[44:47], s[0:1], 8")
        I("s_load_dwordx2 s[48:49], s[0:1], 24")
    if BIG:
        I("s_sub_u32 s24, 32, s43")
        I("s_mul_i32 s24, s24, s42")
        I("s_add_u32 s24, s24, s40")
        I("s_sub_u32 s24, s24, s43")
        I("s_lshl_b32 s25, s41, 5")
        I("s_add_u32 s24, s24, s25")
        I("s_lshl_b32 s24, s24, 3")
        I("s_add_u32 s24, s24, s3")
    else:
        I("v_lshrrev_b32 v1, 6, v0")
        I("s_nop 0")
        I("v_readfirstlane_b32 s3, v1")
        I(f"s_sub_u32 s25, s2, {N_G1}")
        I("s_cmp_ge_u32 s25, 128")
        I("s_cbranch_scc1 M_aux_hi")
        I("s_mov_b32 s24, s25")
        I("s_cmp_eq_u32 s3, 3")
        I("s_cbranch_scc1 M_wdt")
        I("s_mul_i32 s24, s25, 3")
        I("s_add_u32 s24, s24, s3")
        I("s_branch M_conv2")
        e("M_aux_hi:")
        I("s_sub_u32 s25, s25, 128")
        I("s_lshl_b32 s25, s25, 1")
        I("s_add_u32 s24, s25, s3")
        I("s_add_u32 s24, s24, 126")
        I("s_cmp_ge_u32 s3, 2")
        I("s_cbranch_scc1 M_wdt")
        I("s_add_u32 s24, s25, s3")
        I("s_add_u32 s24, s24, 384")
    e("M_conv2:")
    I("s_waitcnt lgkmcnt(0)")
    if "cst2" in FLAGS: stamp()
    srd(8, 16, SZ_SD)
    if FUSE:
        I("s_sub_u32 s25, s24, s3")
        I("s_lshl_b32 s25, s25, 3")
        I("s_load_dwordx16 s[84:99], s[48:49], s25")
        srd(32, 44, SZ_SD)
        srd(36, 46, SZ_SD)
    else:
        srd(12, 6, SZ_SD, WS_KVR)
    srd(20, 6, SZ_SD, WS_YT)
    I("s_lshr_b32 s25, s24, 1")
    I("s_lshl_b32 s25, s25, 2")
    I("s_load_dword s26, s[18:19], s25")
    I("v_and_b32 v1, 63, v0")
    I("s_lshl_b32 s27, s24, 12")
    I("v_lshl_add_u32 v2, v1, 4, s27")
    if CMG:
        I("v_lshrrev_b32 v3, 5, v1")
        I("v_mul_u32_u24 v3, 1536, v3")
        I("v_add_u32 v2, v2, v3")
    XL = 16
    for j in range(4 if not FUSE else 0):
        I(f"buffer_load_dwordx4 v[{XL+4*j}:{XL+4*j+3}], v2, s[12:15], 0 offen offset:{1024*j}")
    HW0, HW1 = 32, 40
    I("v_subrev_u32 v13, 64, v2")
    I("v_mov_b32 v5, 0x40000000")
    I("v_cmp_gt_u32 vcc, 4, v1")
    I("s_nop 1")
    I("v_cndmask_b32 v4, v13, v5, vcc")
    I("v_add_u32 v6, 16, v13")
    I("v_cmp_gt_u32 vcc, 3, v1")
    I("s_nop 1")
    I("v_cndmask_b32 v6, v6, v5, vcc")
    CV2 = "cv2" in FLAGS
    def hwloads():
        I(f"buffer_load_dwordx4 v[{HW0}:{HW0+3}], v4, s[8:11], 0 offen")
        I(f"buffer_load_dwordx4 v[{HW0+4}:{HW0+7}], v6, s[8:11], 0 offen")
        I(f"buffer_load_dwordx4 v[{HW1}:{HW1+3}], v2, s[8:11], 0 offen offset:{192 if CMG else 448}")
        I(f"buffer_load_dwordx4 v[{HW1+4}:{HW1+7}], v2, s[8:11], 0 offen offset:{208 if CMG else 464}")
    if not CV2: hwloads()
    KP, KO, VV, KF, PP, TC, OO = 132, 144, 160, 176, 190, 222, 230
    if FUSE:
        I("s_sub_u32 s25, s24, s3")
        I("s_lshl_b32 s25, s25, 1")
        I("v_mul_u32_u24 v50, 5120, v0")
        I("v_add_u32 v50, s25, v50")
        I("s_cmp_eq_u32 s3, 0")
        I("s_cselect_b32 s25, 0x40000000, -3840")
        I("v_add_u32 v51, s25, v50")
        def kvloads():
            for i in range(4):
                I(f"buffer_load_dwordx4 v[{KO+4*i}:{KO+4*i+3}], v50, s[32:35], 0 offen offset:{1280*i}")
            I("s_mov_b64 exec, 1")
            for i in range(3):
                I(f"buffer_load_dwordx4 v[{KP+4*i}:{KP+4*i+3}], v51, s[32:35], 0 offen offset:{1280*i}")
            I("s_mov_b64 exec, -1")
        def vloads():
            for i in range(4):
                I(f"buffer_load_dwordx4 v[{VV+4*i}:{VV+4*i+3}], v50, s[36:39], 0 offen offset:{1280*i}")
        KPF = True
        if CV2:
            I("s_sub_u32 s50, s40, s43")
            I("s_lshl_b32 s57, s3, 8")
            I("s_cmp_eq_u32 s41, 0")
            I("s_cbranch_scc0 CV_pf1")
            I("s_lshl_b32 s50, s50, 5")
            I("s_add_u32 s50, s50, s57")
            I("s_lshl_b32 s51, s42, 7")
            I("v_add_u32 v54, s50, v1")
            I("v_mul_u32_u24 v54, 0x500, v54")
            I("s_movk_i32 s56, 32")
            I("s_branch CV_pfd")
            e("CV_pf1:")
            I("s_mul_i32 s50, s50, 22")
            I("s_min_u32 s50, s50, 234")
            I("s_add_u32 s50, s50, s57")
            I("s_mul_i32 s51, s42, 192")
            I("s_add_u32 s51, s51, 512")
            I("s_and_b32 s51, s51, 0xffffff80")
            I("v_lshrrev_b32 v54, 1, v1")
            I("v_add_u32 v54, s50, v54")
            I("v_mul_u32_u24 v54, 0x500, v54")
            I("v_and_b32 v56, 1, v1")
            I("v_lshl_add_u32 v54, v56, 7, v54")
            I("s_movk_i32 s56, 44")
            e("CV_pfd:")
            I("v_cmp_gt_u32 s[52:53], s56, v1")
            I("s_mov_b64 exec, s[52:53]")
            I("buffer_load_dword v56, v54, s[32:35], s51 offen")
            I("buffer_load_dword v57, v54, s[36:39], s51 offen")
            I("s_mov_b64 exec, -1")
            hwloads()
            I("v_lshl_add_u32 v55, v1, 6, s27")
            if "nohpf" not in FLAGS: I("buffer_load_dword v58, v55, s[8:11], 0 offen")
            else: I("buffer_load_dword v58, v2, s[8:11], 0 offen")
        elif "kvall" in FLAGS:
            pass
        elif KPF:
            I("s_sub_u32 s50, s40, s43")
            I("v_xor_b32 v57, 256, v0")
            I("s_cmp_eq_u32 s41, 0")
            I("s_cbranch_scc0 CV_pf1")
            I("s_lshl_b32 s50, s50, 8")
            I("s_lshl_b32 s51, s42, 7")
            for (d, src) in ((54, 0), (55, 57)):
                I(f"v_add_u32 v{d}, s50, v{src}")
                I(f"v_mul_u32_u24 v{d}, 0x500, v{d}")
            I("s_movk_i32 s56, 256")
            I("s_branch CV_pfd")
            e("CV_pf1:")
            I("s_mul_i32 s50, s50, 176")
            I("s_mul_i32 s51, s42, 192")
            I("s_add_u32 s51, s51, 512")
            I("s_and_b32 s51, s51, 0xffffff80")
            for (d, src) in ((54, 0), (55, 57)):
                I(f"v_lshrrev_b32 v{d}, 1, v{src}")
                I(f"v_add_u32 v{d}, s50, v{d}")
                I(f"v_mul_u32_u24 v{d}, 0x500, v{d}")
                I(f"v_and_b32 v56, 1, v{src}")
                I(f"v_lshl_add_u32 v{d}, v56, 7, v{d}")
            I("s_movk_i32 s56, 352")
            e("CV_pfd:")
            I("v_cmp_gt_u32 s[52:53], s56, v0")
            I("v_cmp_gt_u32 s[54:55], s56, v57")
            I("s_mov_b64 exec, s[52:53]")
            I("buffer_load_dword v56, v54, s[32:35], s51 offen")
            if "vpf1" not in FLAGS:
                I("s_mov_b64 exec, s[54:55]")
                I("buffer_load_dword v57, v55, s[36:39], s51 offen")
            I("s_mov_b64 exec, -1")
        else:
            kvloads()
        I("v_lshlrev_b32 v52, 2, v0")
        I("v_sub_u32 v52, 2044, v52")
        I("v_lshrrev_b32 v53, 5, v52")
        I("v_mul_u32_u24 v53, 80, v53")
        I("v_and_b32 v52, 31, v52")
        I("v_lshl_add_u32 v52, v52, 1, v53")
        I(f"v_add_u32 v53, {4*WREG}, v52")
    I(f"s_mov_b32 s29, {448 if CMG else 960}")
    I(f"s_mul_i32 s28, s3, {WREG}")
    Z = 96
    for j in range(4):
        I(f"v_mov_b32 v{Z+j}, 0")
    I("v_lshl_add_u32 v3, v1, 4, s28")
    I(f"ds_write_b128 v3, v[{Z}:{Z+3}] offset:5120")
    I(f"ds_write_b128 v3, v[{Z}:{Z+3}] offset:6144")
    I(f"ds_write_b128 v3, v[{Z}:{Z+3}] offset:6656")
    I("v_lshrrev_b32 v4, 2, v1")
    I("v_mul_u32_u24 v4, 80, v4")
    I("v_and_b32 v5, 3, v1")
    I("v_lshl_add_u32 v4, v5, 4, v4")
    I("v_add_u32 v4, s28, v4")
    I("v_and_b32 v5, 31, v1")
    I("v_lshrrev_b32 v6, 5, v1")
    if CM4:
        I("v_and_b32 v7, 3, v5")
        I(f"v_mul_u32_u24 v7, {CST}, v7")
        I("v_lshrrev_b32 v8, 2, v5")
        I("v_lshl_add_u32 v8, v6, 1, v8")
        I("v_lshl_add_u32 v7, v8, 3, v7")
    else:
        I("v_and_b32 v7, 7, v5")
        I(f"v_mul_u32_u24 v7, {CST}, v7")
        I("v_lshrrev_b32 v8, 3, v5")
        I("v_add_u32 v8, v8, v6")
        I("v_lshl_add_u32 v7, v8, 4, v7")
    I(f"v_add_u32 v7, {XREG}, v7")
    I("v_add_u32 v7, s28, v7")
    I(f"v_add_u32 v14, {HBUF}, v7")
    I("v_sub_u32 v8, 63, v5")
    I("v_mul_u32_u24 v8, 80, v8")
    I("v_lshl_add_u32 v8, v6, 4, v8")
    I("v_add_u32 v8, s28, v8")
    I("v_mov_b32 v15, v8")
    I("v_subrev_u32 v9, 2560, v8")
    I(f"v_add_u32 v10, {XREG}, v3")
    if CMG:
        I(f"v_mul_u32_u24 v11, {HHI-512}, v6")
        I("v_add_u32 v10, v10, v11")
    I(f"v_add_u32 v11, {HBUF}, v10")
    AC0, AC1 = 100, 116
    for j in range(32):
        I(f"v_mov_b32 v{AC0+j}, 0")
    FR = 132
    UE, UO, WO = 180, 189, 197
    CLA, CR = 3, 4
    for f_ in FLAGS:
        if f_.startswith("cla"): CLA = int(f_[3:]); CR = 8; UE, UO, WO = 228, 237, 245
    if CMG:
        UE, UO, WO = 196, 205, 213
        AC2 = 220
        I("s_mov_b32 s30, 0xfffff")
        I("s_mov_b32 s31, 0xfffff")
    else:
        I("s_mov_b32 s30, -1")
        I("s_mov_b32 s31, 0xf")
    q = DSQ()
    def stage_seg(w, addr):
        if CM4:
            for t in range(4):
                I(f"v_alignbit_b32 v{UE+t}, v{w+t+1}, v{w+t}, 16")
                I(f"v_alignbit_b32 v{UO+t+1}, v{w+t+2}, v{w+t+1}, 16")
                I(f"v_mov_b32 v{WO+t+1}, v{w+t+1}")
            I("s_mov_b64 exec, s[30:31]")
            for c, r in enumerate((UE, WO+1, UO+1, w+2)):
                I(f"ds_write_b128 v{addr}, v[{r}:{r+3}] offset:{c*CST}")
                q.push(("w", 0))
            I("s_mov_b64 exec, -1")
            return
        for t in range(7):
            I(f"v_alignbit_b32 v{UE+t}, v{w+t+1}, v{w+t}, 16")
            I(f"v_alignbit_b32 v{UO+t}, v{w+t+1}, v{w+t}, 16")
        for t in range(1, 7):
            I(f"v_mov_b32 v{WO+t}, v{w+t}")
        I("s_mov_b64 exec, s[30:31]")
        for c in range(8):
            if c % 2 == 0:
                t0 = c // 2
                r = UE + t0 if t0 % 2 == 0 else UO + t0
            else:
                t0 = (1 + c)//2
                r = w + t0 if t0 % 2 == 0 else WO + t0
            assert r % 2 == 0, (c, r)
            I(f"ds_write_b128 v{addr}, v[{r}:{r+3}] offset:{c*CST}")
            q.push(("w", 0))
        I("s_mov_b64 exec, -1")
    if FUSE and CV2:
        if "cvnw" not in FLAGS: I(f"s_waitcnt vmcnt({5 if 'cvw2' in FLAGS else 6})")
        if "cst2" in FLAGS: stamp()
        if "cvbar" in FLAGS: I("s_barrier")
        if "cst2" in FLAGS: stamp()
        kvloads()
        if "cvlv" not in FLAGS: vloads()
        I(f"s_waitcnt vmcnt({(7 if 'cvlv' in FLAGS else 11) + 3})")
        stage_seg(HW0, 10)
        I("s_mov_b32 s49, 0x3f803f80")
        I(f"s_waitcnt vmcnt({0 if 'cvlv' in FLAGS else 4}) lgkmcnt(0)")
        if "cvlv" in FLAGS: vloads()
        stamp()
    if FUSE:
        if CV2: pass
        elif KPF:
            I("s_waitcnt vmcnt(0)")
            if "cst2" in FLAGS: stamp()
            I("s_barrier")
            if "cst2" in FLAGS: stamp()
            kvloads()
            if "vearly" in FLAGS: vloads()
            if "vpf1" in FLAGS:
                I("s_mov_b64 exec, s[54:55]")
                I("buffer_load_dword v57, v55, s[36:39], s51 offen")
                I("s_mov_b64 exec, -1")
        else:
            I("s_waitcnt vmcnt(13)")
        if not CV2:
            stage_seg(HW0, 10)
            I("s_mov_b32 s49, 0x3f803f80")
            if "vearly" in FLAGS:
                I("s_waitcnt vmcnt(4) lgkmcnt(0)")
            else:
                I(f"s_waitcnt vmcnt({0 if 'vpf1' not in FLAGS else 1}) lgkmcnt(0)")
                vloads()
            if "hpf2" in FLAGS:
                I("v_lshl_add_u32 v55, v1, 6, s27")
                I("buffer_load_dword v58, v55, s[8:11], 0 offen")
            stamp()
        for r in range(3):
            for c in range(4):
                I(f"v_mov_b32_dpp v{KP+4*r+c}, v{KO+4*(r+1)+c} wave_shr:1 row_mask:0xf bank_mask:0xf")
        def krow(r): return (KP + 4*r) if r < 3 else (KO + 4*(r-3))
        chains = [(i, h) for i in range(4) for h in range(2)]
        def T(j, i, h): return TC + 8*j + 2*i + h
        if "kvf" in FLAGS:
            I("s_mov_b32 s50, 0x05040100")
            I("s_mov_b32 s51, 0x07060302")
            for j in range(4):
                for h in range(2):
                    for r in range(6):
                        I(f"v_perm_b32 v{PP+6*h+r}, v{krow(r)+j}, v{krow(r+1)+j}, s{50+h}")
                for (i, h) in chains: I(f"v_dot2_f32_bf16 v{T(j,i,h)}, v{PP+6*h+i}, s{85+4*j+2*h}, 0")
                for (i, h) in chains: I(f"v_dot2_f32_bf16 v{T(j,i,h)}, v{PP+6*h+i+2}, s{84+4*j+2*h}, v{T(j,i,h)}")
        for j in range(4 if "kvf" not in FLAGS else 0):
            for h in range(2):
                I(f"s_lshl_b32 s{50+h}, s{84+4*j+2*h}, 16")
                I(f"s_and_b32 s{52+h}, s{84+4*j+2*h}, 0xffff0000")
                I(f"s_lshl_b32 s{54+h}, s{85+4*j+2*h}, 16")
                I(f"s_and_b32 s{56+h}, s{85+4*j+2*h}, 0xffff0000")
            for r in range(7):
                lo16(KF+2*r, krow(r)+j); hi16(KF+2*r+1, krow(r)+j)
            def P(i, t): return PP + (i*4 + t)*2
            for i in range(4):
                for t in range(4):
                    r = i + 3 - t
                    I(f"v_pk_mul_f32 v[{P(i,t)}:{P(i,t)+1}], v[{KF+2*r}:{KF+2*r+1}], s[{50+2*t}:{51+2*t}]")
            for (i, h) in chains: I(f"v_cvt_pk_bf16_f32 v{T(j,i,h)}, v{P(i,3)+h}, v{P(i,2)+h}")
            for t in (1, 0):
                for (i, h) in chains: I(f"v_dot2_f32_bf16 v{T(j,i,h)}, v{T(j,i,h)}, s49, 0")
                for (i, h) in chains: I(f"v_cvt_pk_bf16_f32 v{T(j,i,h)}, v{T(j,i,h)}, v{P(i,t)+h}")
            for (i, h) in chains: I(f"v_dot2_f32_bf16 v{T(j,i,h)}, v{T(j,i,h)}, s49, 0")
            for (i, h) in chains:
                if h == 0: I(f"v_cvt_pk_bf16_f32 v{T(j,i,h)}, v{T(j,i,h)}, 0")
                else: I(f"v_cvt_pk_bf16_f32 v{T(j,i,h)}, 0, v{T(j,i,h)}")
        if "cst2" in FLAGS: stamp()
        I(f"s_waitcnt vmcnt({1 if 'hpf2' in FLAGS else 0})")
        if "cst2" in FLAGS: stamp()
        for j in range(4 if "kvf" not in FLAGS else 0):
            for (i, h) in chains: I(f"v_dot2_f32_bf16 v{T(j,i,h)}, v{T(j,i,h)}, v{VV+4*i+j}, 0")
        if "kvf" in FLAGS:
            for j in range(4):
                for i in range(4):
                    lo16(KF+2*i, VV+4*i+j); hi16(KF+2*i+1, VV+4*i+j)
                for i in range(4):
                    I(f"v_pk_mul_f32 v[{T(j,i,0)}:{T(j,i,1)}], v[{T(j,i,0)}:{T(j,i,1)}], v[{KF+2*i}:{KF+2*i+1}]")
        I("s_nop 1")
        for j in range(4):
            for h in range(2):
                o = PP + 2*h + 4*j
                I(f"v_cvt_pk_bf16_f32 v{o+1}, v{T(j,1,h)}, v{T(j,0,h)}")
                I(f"v_cvt_pk_bf16_f32 v{o}, v{T(j,3,h)}, v{T(j,2,h)}")
            for h in range(2):
                o = PP + 2*h + 4*j
                ch = 2*j + h
                I(f"ds_write_b64 v{52 + ch//4}, v[{o}:{o+1}] offset:{(ch % 4)*WREG}")
        I("s_waitcnt lgkmcnt(0)")
        I("s_barrier")
        if "cpf" in FLAGS or "cpf0" in FLAGS:
            C0 = "cpf0" in FLAGS
            I("s_mov_b32 s54, s24")
            if C0:
                I("s_cmp_ge_u32 s24, 256")
                I("s_cbranch_scc1 CV_cpfd")
                e("CV_cpfl:")
            I("s_movk_i32 s50, 56")
            I(f"s_mov_b32 s51, {384*3456}")
            I("s_mov_b32 s52, s54")
            I("s_cmp_ge_u32 s54, 108")
            I("s_cselect_b32 s50, 64, s50")
            I("s_cselect_b32 s53, 108, 0")
            I("s_cmp_ge_u32 s54, 216")
            I("s_cselect_b32 s50, 0, s50")
            I("s_cselect_b32 s53, 216, s53")
            I("s_cselect_b32 s51, 768, s51")
            I("s_cmp_ge_u32 s54, 344")
            I("s_cselect_b32 s50, 72, s50")
            I("s_cselect_b32 s53, 344, s53")
            I("s_cselect_b32 s51, 0, s51")
            I("s_load_dwordx2 s[56:57], s[0:1], s50")
            I("s_sub_u32 s52, s52, s53")
            I("s_lshl_b32 s52, s52, 6")
            I("v_add_u32 v55, s52, v1")
            I("v_lshlrev_b32 v56, 7, v55")
            I("v_lshrrev_b32 v57, 2, v55")
            I("v_mul_u32_u24 v57, 0x500, v57")
            I("v_and_b32 v55, 3, v55")
            I("v_lshl_add_u32 v57, v55, 7, v57")
            I("s_cmp_eq_u32 s50, 0")
            I("s_cselect_b64 vcc, -1, 0")
            I(f"s_mov_b32 s58, {SZ_W}")
            I(f"s_cselect_b32 s58, {SZ_SD}, s58")
            I("s_mov_b32 s59, 0x00020000")
            I("v_cndmask_b32 v56, v56, v57, vcc")
            I("s_waitcnt lgkmcnt(0)")
            I("buffer_load_dword v254, v56, s[56:59], s51 offen")
            if C0:
                I("s_add_u32 s54, s54, 256")
                I("s_cmp_lt_u32 s54, 614")
                I("s_cbranch_scc1 CV_cpfl")
                e("CV_cpfd:")
        if "hpf3" in FLAGS:
            I("v_lshl_add_u32 v55, v1, 6, s27")
            I("buffer_load_dword v58, v55, s[8:11], 0 offen")
    else:
        I("s_waitcnt vmcnt(2)")
        stamp()
        for j in range(4):
            I(f"ds_write_b128 v4, v[{XL+4*j}:{XL+4*j+3}] offset:{16*80*j}")
        stage_seg(HW0, 10)
    q = DSQ()
    def crd(c, both, part=None):
        f = FR + (c % CR)*12
        boff = (c >> 1)*80 + (c & 1)*32
        if part in (None, 0):
            if c < 16:
                I(f"ds_read_b128 v[{f}:{f+3}], v7 offset:{32*c}")
            else:
                I(f"ds_read_b128 v[{f}:{f+3}], v14 offset:{32*(c-16)}")
            q.push(("r", c))
            I(f"ds_read_b128 v[{f+4}:{f+7}], v9 offset:{boff}")
            q.push(("r", c))
        if both and part in (None, 1):
            I(f"ds_read_b128 v[{f+8}:{f+11}], v8 offset:{boff}")
            q.push(("r", c))
    if CM4:
        CLA = 2
        for f_ in FLAGS:
            if f_.startswith("c4la"): CLA = int(f_[4:])
        B0 = 180; MSK = 218
        def b0(dh, pp): return B0 + (dh*2 + pp)*4
        def mrd(c, part):
            f = FR + (c % 4)*12
            boff = (c >> 1)*80 + (c & 1)*32
            va, ao = (7, 32*c) if c < 8 else (14, 32*(c-8))
            if part == 0:
                I(f"ds_read_b64 v[{f}:{f+1}], v{va} offset:{ao}"); q.push(("r", c))
                I(f"ds_read_b64 v[{f+2}:{f+3}], v{va} offset:{ao+8}")
            if part == 1:
                I(f"ds_read_b64 v[{f+4}:{f+5}], v{va} offset:{ao+HHI}"); q.push(("r", c))
                I(f"ds_read_b64 v[{f+6}:{f+7}], v{va} offset:{ao+HHI+8}")
            if part == 2: I(f"ds_read_b128 v[{f+8}:{f+11}], v9 offset:{boff}")
            q.push(("r", c))
        W2 = "w2" in FLAGS
        if W2:
            I(f"buffer_load_dwordx4 v[{HW0}:{HW0+3}], v2, s[8:11], s29 offen")
            I(f"buffer_load_dwordx2 v[{HW0+4}:{HW0+5}], v2, s[8:11], s29 offen offset:16")
            I("s_add_u32 s29, s29, 256")
        for dh in range(2):
            I(f"ds_read_b128 v[{b0(dh,0)}:{b0(dh,0)+3}], v8 offset:{32*dh}")
        for j in range(16): I(f"v_mov_b32 v{AC2+j}, 0")
        I(f"v_cmp_ne_u32 vcc, 0, v5")
        I("s_nop 1")
        I(f"v_cndmask_b32 v{MSK}, 0, -1, vcc")
        for c in range(CLA):
            for part in range(3): mrd(c, part)
        I("s_mov_b32 s33, 0")
        stamp()
        e("CV_loopm:")
        q.q = [("r", c) for c in range(CLA) for _ in range(5)]
        w = HW1
        def AL(dst, t): return f"v_alignbit_b32 v{dst+t}, v{w+t+1}, v{w+t}, 16"
        def MV(t): return f"v_mov_b32 v{WO+t}, v{w+t}"
        def WR(c): return ("W", f"ds_write_b128 v11, v[{(UE, WO+1, UO+1, w+2)[c]}:{(UE, WO+1, UO+1, w+2)[c]+3}] offset:{c*CST}")
        slots = [[WR(3), AL(UE,0), AL(UE,1)], [AL(UE,2), AL(UE,3)], [],
                 [WR(0), MV(1), MV(2)], [MV(3), MV(4)], [],
                 [WR(1), AL(UO,1), AL(UO,2)], [AL(UO,3), AL(UO,4)], [],
                 [WR(2), "L"], [], []]
        if W2: slots = slots[:9] + [[WR(2)], [], [], [], [], [], [], [], [], ["L"], [], []]
        def slot(i):
            if i < 0 or i >= len(slots): return
            for x in slots[i]:
                if x == "L" and W2:
                    I("s_waitcnt vmcnt(0)")
                    for t in range(6): I(f"v_mov_b32 v{HW1+t}, v{HW0+t}")
                    I(f"buffer_load_dwordx4 v[{HW0}:{HW0+3}], v2, s[8:11], s29 offen")
                    I(f"buffer_load_dwordx2 v[{HW0+4}:{HW0+5}], v2, s[8:11], s29 offen offset:16")
                    I("s_add_u32 s29, s29, 256")
                elif x == "L":
                    I(f"buffer_load_dwordx4 v[{HW1}:{HW1+3}], v2, s[8:11], s29 offen")
                    I(f"buffer_load_dwordx2 v[{HW1+4}:{HW1+5}], v2, s[8:11], s29 offen offset:16")
                    I("s_add_u32 s29, s29, 256")
                elif isinstance(x, tuple):
                    I("s_mov_b64 exec, s[30:31]")
                    I(x[1]); q.push(("w", 0))
                    I("s_mov_b64 exec, -1")
                else: I(x)
        for c in range(8):
            if c == 1 and not W2: I("s_waitcnt vmcnt(0)")
            f = FR + (c % 4)*12
            bz = b0(c & 1, (c >> 1) & 1); bn = b0(c & 1, ((c >> 1) & 1) ^ 1)
            q.wait_for(("r", c))
            I(f"v_mfma_f32_32x32x16_bf16 v[{AC0}:{AC0+15}], v[{f}:{f+3}], v[{bz}:{bz+3}], v[{AC0}:{AC0+15}]")
            mrd(c + CLA, 0)
            slot(3*(c-1))
            I(f"v_mfma_f32_32x32x16_bf16 v[{AC1}:{AC1+15}], v[{f}:{f+3}], v[{f+8}:{f+11}], v[{AC1}:{AC1+15}]")
            mrd(c + CLA, 1)
            slot(3*(c-1)+1 if c >= 1 else -1)
            I(f"v_mfma_f32_32x32x16_bf16 v[{AC2}:{AC2+15}], v[{f+4}:{f+7}], v[{bz}:{bz+3}], v[{AC2}:{AC2+15}]")
            mrd(c + CLA, 2)
            for r in range(4):
                I(f"v_and_b32_dpp v{bn+r}, v{bz+r}, v{MSK} wave_shr:1 row_mask:0xf bank_mask:0xf bound_ctrl:0")
            slot(3*(c-1)+2 if c >= 1 else -1)
        I("v_swap_b32 v7, v14")
        I("v_swap_b32 v10, v11")
        I("v_add_u32 v9, 320, v9")
        I("s_add_u32 s33, s33, 1")
        I("s_cmp_lt_u32 s33, 8")
        I("s_cbranch_scc1 CV_loopm")
        I("s_nop 7")
        I("s_nop 7")
        I("s_nop 3")
        for j in range(16): I(f"v_add_f32 v{AC1+j}, v{AC1+j}, v{AC2+j}")
    elif CMG:
        def mrd(c, part):
            f = FR + (c % 4)*16
            boff = (c >> 1)*80 + (c & 1)*32
            va, ao = (7, 32*c) if c < 8 else (14, 32*(c-8))
            if "cvnob" in FLAGS and part >= 2: return
            if part == 0: I(f"ds_read_b128 v[{f}:{f+3}], v{va} offset:{ao}")
            if part == 1: I(f"ds_read_b128 v[{f+4}:{f+7}], v{va} offset:{ao+HHI}")
            if part == 2: I(f"ds_read_b128 v[{f+8}:{f+11}], v8 offset:{boff}")
            if part == 3: I(f"ds_read_b128 v[{f+12}:{f+15}], v9 offset:{boff}")
            q.push(("r", c))
        for j in range(16): I(f"v_mov_b32 v{AC2+j}, 0")
        for c in range(CLA):
            for part in range(4): mrd(c, part)
        I("s_mov_b32 s33, 0")
        stamp()
        e("CV_loopm:")
        q.q = [("r", c) for c in range(CLA) for _ in range(2 if "cvnob" in FLAGS else 4)]
        w = HW1
        def AL(dst, t): return f"v_alignbit_b32 v{dst+t}, v{w+t+1}, v{w+t}, 16"
        def MV(t): return f"v_mov_b32 v{WO+t}, v{w+t}"
        def WR(c):
            if c % 2 == 0:
                t0 = c // 2
                r = UE + t0 if t0 % 2 == 0 else UO + t0
            else:
                t0 = (1 + c)//2
                r = w + t0 if t0 % 2 == 0 else WO + t0
            return ("W", f"ds_write_b128 v11, v[{r}:{r+3}] offset:{c*CST}")
        slots = [[WR(3), AL(UE,0), AL(UE,1)], [WR(7), AL(UE,2), AL(UE,3)], [WR(0), AL(UE,4), AL(UE,5)],
                 [WR(4), MV(1), MV(2)], [MV(3), MV(4)], [WR(1), MV(5), MV(6)],
                 [WR(5), AL(UO,1), AL(UO,2)], [AL(UO,3), AL(UO,4)], [WR(2), AL(UO,5), AL(UO,6)],
                 [WR(6)], ["L"], []]
        def slot(i):
            if i < 0 or i >= len(slots): return
            for x in slots[i]:
                if x == "L":
                    I(f"buffer_load_dwordx4 v[{HW1}:{HW1+3}], v2, s[8:11], s29 offen")
                    I(f"buffer_load_dwordx4 v[{HW1+4}:{HW1+7}], v2, s[8:11], s29 offen offset:16")
                    I("s_add_u32 s29, s29, 256")
                elif isinstance(x, tuple):
                    I("s_mov_b64 exec, s[30:31]")
                    I(x[1]); q.push(("w", 0))
                    I("s_mov_b64 exec, -1")
                else: I(x)
        for c in range(8):
            if c == 1: I("s_waitcnt vmcnt(0)")
            f = FR + (c % 4)*16
            q.wait_for(("r", c))
            I(f"v_mfma_f32_32x32x16_bf16 v[{AC0}:{AC0+15}], v[{f}:{f+3}], v[{f+8}:{f+11}], v[{AC0}:{AC0+15}]")
            mrd(c + CLA, 0)
            slot(3*(c-1))
            I(f"v_mfma_f32_32x32x16_bf16 v[{AC1}:{AC1+15}], v[{f}:{f+3}], v[{f+12}:{f+15}], v[{AC1}:{AC1+15}]")
            mrd(c + CLA, 1); mrd(c + CLA, 2)
            slot(3*(c-1)+1 if c >= 1 else -1)
            I(f"v_mfma_f32_32x32x16_bf16 v[{AC2}:{AC2+15}], v[{f+4}:{f+7}], v[{f+8}:{f+11}], v[{AC2}:{AC2+15}]")
            mrd(c + CLA, 3)
            slot(3*(c-1)+2 if c >= 1 else -1)
        I("v_swap_b32 v7, v14")
        I("v_swap_b32 v10, v11")
        I("v_add_u32 v8, 320, v8")
        I("v_add_u32 v9, 320, v9")
        I("s_add_u32 s33, s33, 1")
        I("s_cmp_lt_u32 s33, 8")
        I("s_cbranch_scc1 CV_loopm")
        I("s_nop 7")
        I("s_nop 7")
        I("s_nop 3")
        for j in range(16): I(f"v_add_f32 v{AC1+j}, v{AC1+j}, v{AC2+j}")
    else:
        for c in range(CLA):
            crd(c, True)
        I("s_mov_b32 s33, 0")
        stamp()
    for phase in range(2 if not CMG else 0):
        both = (phase == 0)
        e(f"CV_loop{phase}:")
        q.q = [("r", c) for c in range(CLA) for _ in range(3 if both else 2)]
        for c in range(16):
            if c == 1:
                I("s_waitcnt vmcnt(0)")
                stage_seg(HW1, 11)
                if "cvnoload" not in FLAGS:
                    I(f"buffer_load_dwordx4 v[{HW1}:{HW1+3}], v2, s[8:11], s29 offen")
                    I(f"buffer_load_dwordx4 v[{HW1+4}:{HW1+7}], v2, s[8:11], s29 offen offset:16")
                I("s_add_u32 s29, s29, 512")
            f = FR + (c % CR)*12
            if "cvi" in FLAGS:
                q.wait_for(("r", c))
                I(f"v_mfma_f32_32x32x16_bf16 v[{AC1}:{AC1+15}], v[{f}:{f+3}], v[{f+4}:{f+7}], v[{AC1}:{AC1+15}]")
                crd(c + CLA, both, 0)
                if both:
                    I(f"v_mfma_f32_32x32x16_bf16 v[{AC0}:{AC0+15}], v[{f}:{f+3}], v[{f+8}:{f+11}], v[{AC0}:{AC0+15}]")
                    crd(c + CLA, both, 1)
            else:
                crd(c + CLA, both)
                q.wait_for(("r", c))
                I(f"v_mfma_f32_32x32x16_bf16 v[{AC1}:{AC1+15}], v[{f}:{f+3}], v[{f+4}:{f+7}], v[{AC1}:{AC1+15}]")
                if both:
                    I(f"v_mfma_f32_32x32x16_bf16 v[{AC0}:{AC0+15}], v[{f}:{f+3}], v[{f+8}:{f+11}], v[{AC0}:{AC0+15}]")
        I("v_swap_b32 v7, v14")
        I("v_swap_b32 v10, v11")
        I("v_add_u32 v8, 640, v8")
        I("v_add_u32 v9, 640, v9")
        I("s_add_u32 s33, s33, 1")
        I(f"s_cmp_lt_u32 s33, {4*(phase+1)}")
        I(f"s_cbranch_scc1 CV_loop{phase}")
    I("v_mov_b32 v8, v15")
    I("s_waitcnt vmcnt(0) lgkmcnt(0)")
    stamp()
    I("v_mul_u32_u24 v10, 24, v6")
    I("v_sub_u32 v10, v8, v10")
    I("v_add_u32 v10, 8, v10")
    I("v_subrev_u32 v11, 2560, v10")
    KV = 16
    for cb in range(2):
        for qq in range(4):
            I(f"ds_read_b64 v[{KV+cb*8+2*qq}:{KV+cb*8+2*qq+1}], v{10+cb} offset:{48-16*qq}")
    I("s_and_b32 s25, s24, 1")
    I("s_lshl_b32 s25, s25, 4")
    I("s_lshr_b32 s26, s26, s25")
    I("s_lshl_b32 s26, s26, 16")
    I("v_lshlrev_b32 v12, 6, v5")
    I("v_lshl_add_u32 v12, v6, 3, v12")
    I("v_add_u32 v12, s27, v12")
    I("s_nop 7")
    I("s_waitcnt lgkmcnt(0)")
    for cb in range(2):
        ac = AC0 if cb == 0 else AC1
        for qq in range(4):
            k0 = KV + cb*8 + 2*qq
            t = 40 + (qq % 2)*12
            y = ac + 4*qq
            hi16(t+0, k0+1); lo16(t+1, k0+1); hi16(t+2, k0); lo16(t+3, k0)
            for r in range(4):
                I(f"v_mul_f32 v{t+r}, s26, v{t+r}")
            I(f"v_cvt_pk_bf16_f32 v{t+4}, v{t}, v{t+1}")
            I(f"v_cvt_pk_bf16_f32 v{t+5}, v{t+2}, v{t+3}")
            I(f"v_cvt_pk_bf16_f32 v{t+6}, v{y}, v{y+1}")
            I(f"v_cvt_pk_bf16_f32 v{t+7}, v{y+2}, v{y+3}")
            lo16(t, t+4); hi16(t+1, t+4); lo16(t+2, t+5); hi16(t+3, t+5)
            lo16(y, t+6); hi16(y+1, t+6); lo16(y+2, t+7); hi16(y+3, t+7)
            for r in range(4):
                I(f"v_add_f32 v{t+r}, v{t+r}, v{y+r}")
            I(f"v_cvt_pk_bf16_f32 v{t+8}, v{t}, v{t+1}")
            I(f"v_cvt_pk_bf16_f32 v{t+9}, v{t+2}, v{t+3}")
            I(f"buffer_store_dwordx2 v[{t+8}:{t+9}], v12, s[20:23], 0 offen offset:{cb*2048+16*qq}")
    I("s_waitcnt vmcnt(0)")
    stamp()
    stamp_dump(255 if BIG else N_G1 + 7)
    if BIG: wgt_end(1)
    I("s_endpgm")
    e("M_wdt:")
    I("s_waitcnt lgkmcnt(0)")
    if "wlate" in FLAGS: I("s_barrier")
    if BIG and "pfm" in FLAGS:
        I("s_sub_u32 s26, s3, 6")
        I("s_mul_i32 s27, s26, 176")
        I("s_sub_u32 s27, s24, s27")
        I("s_lshl_b32 s26, s26, 3")
        I("s_add_u32 s26, s26, 56")
        I("s_load_dwordx2 s[28:29], s[0:1], s26")
        I("s_mul_i32 s27, s27, 12800")
        I(f"s_mov_b32 s30, {SZ_W}")
        I("s_mov_b32 s31, 0x00020000")
        I("v_and_b32 v1, 63, v0")
        I("v_lshlrev_b32 v1, 4, v1")
        I("s_waitcnt lgkmcnt(0)")
        for i in range(13):
            I(f"buffer_load_dwordx4 v[{100+4*i}:{103+4*i}], v1, s[28:31], s27 offen")
            I("s_add_u32 s27, s27, 1024")
    if "pfa128" in FLAGS or "pfa64" in FLAGS:
        G = 128 if "pfa128" in FLAGS else 64
        NL = 1792 // G
        I("s_cmp_lg_u32 s3, 3")
        I("s_cbranch_scc1 M_nopf")
        I("s_bfe_u32 s26, s2, 0x50003")
        I("s_lshr_b32 s27, s26, 4")
        I("s_lshl_b32 s27, s27, 3")
        I("s_add_u32 s27, s27, 56")
        I("s_load_dwordx2 s[28:29], s[0:1], s27")
        I("s_and_b32 s26, s26, 15")
        I("s_mul_i32 s26, s26, 138240")
        I("s_bfe_u32 s27, s2, 0x10002")
        I("s_mul_i32 s27, s27, 1792")
        I("s_add_u32 s26, s26, s27")
        I(f"s_mov_b32 s30, {SZ_W}")
        I("s_mov_b32 s31, 0x00020000")
        I("v_and_b32 v1, 63, v0")
        I("s_waitcnt lgkmcnt(0)")
        n = (40*NL + 63)//64
        mul = (65536 + NL - 1)//NL
        for i in range(n):
            I(f"v_add_u32 v2, {64*i}, v1")
            I(f"v_mul_u32_u24 v3, {mul}, v2")
            I("v_lshrrev_b32 v3, 16, v3")
            I(f"v_mul_u32_u24 v4, {NL}, v3")
            I("v_sub_u32 v4, v2, v4")
            I("v_mul_u32_u24 v3, 3456, v3")
            I(f"v_lshl_add_u32 v{100+i}, v4, {7 if G==128 else 6}, v3")
            I(f"buffer_load_dword v{140+i}, v{100+i}, s[28:31], s26 offen")
        e("M_nopf:")
    WBAR = 0
    for f_ in FLAGS:
        if f_.startswith("wbar"): WBAR = int(f_[4:])
    I("s_cmp_ge_u32 s24, 270")
    I(f"s_cbranch_scc1 {'M_exitb' if WBAR else 'M_exitw'}")
    I("s_load_dwordx2 s[4:5], s[0:1], 72")
    I("s_mul_i32 s17, s24, 0xCCCD")
    I("s_lshr_b32 s17, s17, 19")
    I("s_mul_i32 s18, s17, 10")
    I("s_sub_u32 s18, s24, s18")
    I("v_and_b32 v1, 7, v0")
    I("v_bfe_u32 v2, v0, 3, 2")
    I("v_bfe_u32 v6, v0, 5, 1")
    I("s_lshl_b32 s18, s18, 6")
    I("v_lshl_add_u32 v1, v1, 3, s18")
    I("s_lshl_b32 s19, s17, 1")
    I("v_add_u32 v6, s19, v6")
    I("v_lshlrev_b32 v7, 5, v6")
    I("v_lshl_add_u32 v7, v2, 2, v7")
    I("v_mul_u32_u24 v3, 0x500, v7")
    I("v_lshl_add_u32 v3, v1, 1, v3")
    I("v_add_u32 v4, 0x5000, v3")
    I("s_waitcnt lgkmcnt(0)")
    srd(8, 4, SZ_W)
    srd(12, 6, SZ_W, WS_WDT)
    for i in range(8):
        b = 3 if i < 4 else 4
        I(f"buffer_load_dwordx4 v[{8+4*i}:{11+4*i}], v{b}, s[8:11], 0 offen offset:{(i%4)*1280}")
    I("s_mov_b32 s20, 0x05040100")
    I("s_mov_b32 s21, 0x07060302")
    I("v_lshrrev_b32 v5, 4, v1")
    I("v_mul_u32_u24 v5, 54, v5")
    I("v_add_u32 v5, v5, v6")
    I("v_lshlrev_b32 v5, 10, v5")
    I("v_lshl_add_u32 v5, v2, 8, v5")
    I("v_and_b32 v7, 15, v1")
    I("v_lshl_add_u32 v5, v7, 4, v5")
    for _ in range(WBAR): I("s_barrier")
    I("s_waitcnt vmcnt(0)")
    for dd in range(8):
        ob = 40 + 4*dd
        sel = 20 + (dd & 1)
        for q in range(4):
            I(f"v_perm_b32 v{ob+q}, v{8+4*(2*q+1)+dd//2}, v{8+4*(2*q)+dd//2}, s{sel}")
    for dd in range(8):
        ob = 40 + 4*dd
        I(f"buffer_store_dwordx4 v[{ob}:{ob+3}], v5, s[12:15], 0 offen offset:{16*dd}")
    if WBAR:
        I("s_endpgm")
        e("M_exitb:")
        for _ in range(WBAR): I("s_barrier")
    e("M_exitw:")
    I("s_waitcnt vmcnt(0)")
    e("M_exit:")
    I("s_endpgm")
    if FUSE: kernel_desc("mid_kernel", 256, 102)
    else: kernel_desc("mid_kernel", 256 if any(f.startswith("cla") for f in FLAGS) else (240 if BIG else 208), 80)

def gen_k3():
    kernel_header("fin_kernel")
    I(f"s_cmp_ge_u32 s2, {64 if 'fin64' in FLAGS else 256}")
    I("s_cbranch_scc1 F_exit")
    I("s_load_dwordx2 s[6:7], s[0:1], 96")
    I("s_load_dwordx2 s[4:5], s[0:1], 0")
    I("s_load_dwordx2 s[30:31], s[0:1], 80")
    stamp()
    I("v_lshrrev_b32 v1, 6, v0")
    I("s_nop 0")
    I("v_readfirstlane_b32 s3, v1")
    I("s_waitcnt lgkmcnt(0)")
    srd(8, 6, SZ_W, WS_WDT)
    srd(12, 6, SZ_H, WS_H)
    srd(16, 6, SZ_SD, WS_YT)
    if FUSE: srd(20, 6, S*8, WS_ST)
    else: srd(20, 6, SZ_SD, WS_XN)
    srd(24, 4, SZ_SD)
    srd(32, 30, SZ_SD)
    if "fin2e" in FLAGS:
        I("s_bfe_u32 s36, s2, 0x10002")
        I("s_lshl_b32 s36, s36, 2")
        I("s_bfe_u32 s37, s2, 0x20003")
        I("s_add_u32 s36, s36, s37")
        I("s_mul_i32 s36, s36, 80")
        I("s_and_b32 s37, s2, 3")
        I("s_lshl_b32 s37, s37, 3")
        I("s_lshr_b32 s38, s2, 5")
        I("s_add_u32 s37, s37, s38")
        I("s_lshl_b32 s37, s37, 6")
    elif "fin2d" in FLAGS:
        I("s_and_b32 s36, s2, 1")
        I("s_lshl_b32 s36, s36, 2")
        I("s_bfe_u32 s37, s2, 0x20003")
        I("s_add_u32 s36, s36, s37")
        I("s_mul_i32 s36, s36, 80")
        I("s_bfe_u32 s37, s2, 0x20001")
        I("s_lshl_b32 s37, s37, 3")
        I("s_lshr_b32 s38, s2, 5")
        I("s_add_u32 s37, s37, s38")
        I("s_lshl_b32 s37, s37, 6")
    elif "finswap" in FLAGS:
        I("s_lshr_b32 s36, s2, 5")
        I("s_mul_i32 s36, s36, 80")
        I("s_and_b32 s37, s2, 31")
        I("s_lshl_b32 s37, s37, 6")
    else:
        I("s_and_b32 s36, s2, 7")
        I("s_mul_i32 s36, s36, 80")
        I("s_lshr_b32 s37, s2, 3")
        I("s_lshl_b32 s37, s37, 6")
    I("s_mul_i32 s38, s3, 14")
    I("s_cmp_eq_u32 s3, 3")
    I("s_cselect_b32 s39, 1, 0")
    I("s_sub_u32 s38, s38, s39")
    I("s_cmp_ge_u32 s3, 2")
    I("s_cselect_b32 s39, 13, 14")
    I("s_add_u32 s47, s38, s39")
    I("s_lshl_b32 s45, s38, 10")
    I("s_lshl_b32 s47, s47, 10")
    if "rot" in FLAGS:
        I("s_bfe_u32 s46, s2, 0x20003")
        I("s_lshl_b32 s46, s46, 2")
        I("s_lshr_b32 s44, s2, 5")
        I("s_lshl_b32 s44, s44, 1")
        I("s_add_u32 s46, s46, s44")
        I("s_cmp_ge_u32 s46, 13")
        I("s_cselect_b32 s44, 13, 0")
        I("s_sub_u32 s46, s46, s44")
        I("s_cmp_ge_u32 s46, 13")
        I("s_cselect_b32 s44, 13, 0")
        I("s_sub_u32 s46, s46, s44")
        I("s_lshl_b32 s46, s46, 10")
        I("s_add_u32 s46, s46, s45")
    else:
        I("s_mov_b32 s46, s45")
    I("s_mov_b32 s44, 0")
    I("v_and_b32 v1, 15, v0")
    I("v_bfe_u32 v2, v0, 4, 2")
    I("v_and_b32 v12, 63, v0")
    if "pf" in FLAGS:
        I("s_lshr_b32 s52, s2, 3")
        I("s_lshl_b32 s52, s52, 2")
        I("s_add_u32 s52, s52, s3")
        I("s_and_b32 s53, s2, 1")
        I("s_mul_i32 s53, s53, 1105920")
        I("s_mul_i32 s54, s52, 8640")
        I("s_add_u32 s53, s53, s54")
        I("v_lshlrev_b32 v240, 6, v12")
        I("buffer_load_dword v241, v240, s[8:11], s53 offen")
        I("s_add_u32 s53, s53, 4096")
        I("buffer_load_dword v242, v240, s[8:11], s53 offen")
        I("s_add_u32 s53, s53, 544")
        I("buffer_load_dword v243, v240, s[8:11], s53 offen")
        I("s_bfe_u32 s53, s2, 0x20001")
        I("s_mul_i32 s53, s53, 1769472")
        I("s_mul_i32 s54, s52, 13824")
        I("s_add_u32 s53, s53, s54")
        for i, inc in enumerate((4096, 4096, 1536, 0)):
            I(f"buffer_load_dword v{244+i}, v240, s[12:15], s53 offen")
            if inc: I(f"s_add_u32 s53, s53, {inc}")
    I("s_lshr_b32 s52, s36, 4")
    I("s_mul_i32 s52, s52, 55296")
    I("v_lshl_add_u32 v3, v12, 4, s52")
    for jd in range(1, 5):
        I(f"v_add_u32 v{3+jd}, {jd*55296}, v3")
    I("s_lshr_b32 s52, s37, 4")
    I("s_mul_i32 s52, s52, 55296")
    I("v_lshl_add_u32 v8, v12, 4, s52")
    for js in range(1, 4):
        I(f"v_add_u32 v{8+js}, {js*55296}, v8")
    def acc(jd, js): return (js*5 + jd)*4
    FRB = 16
    NB = 5
    def ld(buf):
        f = FRB + buf*36
        I("s_cmp_lt_u32 s44, s39")
        I("s_cselect_b32 s48, s46, 0x40000000")
        for jd in range(5):
            r = f + 4*jd
            I(f"buffer_load_dwordx4 v[{r}:{r+3}], v{3+jd}, s[8:11], s48 offen{CP}")
        for js in range(4):
            r = f + 20 + 4*js
            I(f"buffer_load_dwordx4 v[{r}:{r+3}], v{8+js}, s[12:15], s48 offen{CP}")
        I("s_add_u32 s46, s46, 1024")
        I("s_cmp_ge_u32 s46, s47")
        I("s_cselect_b32 s46, s45, s46")
        I("s_add_u32 s44, s44, 1")
    def mm(buf):
        f = FRB + buf*36
        for js in range(4):
            for jd in range(5):
                c = acc(jd, js)
                a = f + 4*jd; b = f + 20 + 4*js
                I(f"v_mfma_f32_16x16x32_bf16 a[{c}:{c+3}], v[{a}:{a+3}], v[{b}:{b+3}], a[{c}:{c+3}]")
    YF = 196; XX = 216
    FINL = -1
    for f_ in FLAGS:
        if f_.startswith('finl'): FINL = int(f_[4:])
    def epi_loads():
        I("s_lshr_b32 s41, s3, 1")
        I("s_lshl_b32 s41, s41, 5")
        I("s_add_u32 s41, s41, s37")
        I("s_lshl_b32 s41, s41, 1")
        I("v_add_u32 v14, s36, v1")
        I("v_lshlrev_b32 v14, 12, v14")
        I("v_lshl_add_u32 v14, v2, 4, v14")
        I("v_add_u32 v14, s41, v14")
        YF = 196
        for jd in range(5):
            I(f"v_add_u32 v15, {jd*16*4096}, v14")
            I(f"buffer_load_dwordx4 v[{YF+4*jd}:{YF+4*jd+3}], v15, s[16:19], 0 offen")
        I("s_lshl_b32 s42, s3, 4")
        I("s_add_u32 s42, s42, s37")
        I("v_add_u32 v15, s42, v1")
        I("v_mul_u32_u24 v15, 0x500, v15")
        I("v_lshl_add_u32 v15, v2, 3, v15")
        I("s_lshl_b32 s43, s36, 1")
        I("v_add_u32 v15, s43, v15")
        XX = 216
        I("s_lshr_b32 s50, s42, 4")
        I("s_mul_i32 s50, s50, 20480")
        I("v_lshrrev_b32 v14, 1, v2")
        I("v_lshlrev_b32 v14, 8, v14")
        I("v_lshl_add_u32 v14, v1, 4, v14")
        I("v_and_b32 v13, 1, v2")
        I("v_lshl_add_u32 v14, v13, 3, v14")
        I("v_add_u32 v14, s50, v14")
        if FUSE:
            I("v_add_u32 v14, s42, v1")
            I("v_lshlrev_b32 v14, 3, v14")
            I(f"buffer_load_dwordx2 v[{XX+10}:{XX+11}], v14, s[20:23], 0 offen")
        for jd in range(5):
            I(f"buffer_load_dwordx2 v[{XX+2*jd}:{XX+2*jd+1}], v15, s[24:27], 0 offen offset:{32*jd}")
            if FUSE: continue
            I(f"s_add_u32 s50, s36, {16*jd}")
            I("s_lshr_b32 s51, s50, 5")
            I("s_lshl_b32 s51, s51, 10")
            I("s_and_b32 s50, s50, 16")
            I("s_lshl_b32 s50, s50, 5")
            I("s_add_u32 s51, s51, s50")
            I(f"buffer_load_dwordx2 v[{XX+10+2*jd}:{XX+11+2*jd}], v14, s[20:23], s51 offen")
    if FINL < 0: epi_loads()
    NB2 = NB
    for f_ in FLAGS:
        if f_.startswith("nb"): NB2 = int(f_[2:])
    def breg(buf, i):
        if buf < 5: return "v", FRB + buf*36 + 4*i
        return "a", 80 + (buf-5)*36 + 4*i
    def ld2(buf):
        for jd in range(5):
            t, r = breg(buf, jd)
            I(f"buffer_load_dwordx4 {t}[{r}:{r+3}], v{3+jd}, s[8:11], s46 offen{CP}")
        for js in range(4):
            t, r = breg(buf, 5+js)
            I(f"buffer_load_dwordx4 {t}[{r}:{r+3}], v{8+js}, s[12:15], s46 offen{CP}")
        I("s_add_u32 s46, s46, 1024")
    def mm2(buf):
        for js in range(4):
            for jd in range(5):
                c = acc(jd, js)
                t, a = breg(buf, jd); t, b = breg(buf, 5+js)
                I(f"v_mfma_f32_16x16x32_bf16 a[{c}:{c+3}], {t}[{a}:{a+3}], {t}[{b}:{b+3}], a[{c}:{c+3}]")
    for b in range(NB2-1):
        ld2(b)
    if FINL >= 0: epi_loads()
    for j in range(80):
        I(f"v_accvgpr_write_b32 a{j}, 0")
    HOIST = "hoist" in FLAGS
    def hoisted():
        IDB2, TQ, TYQ = 244, 248, 236
        I("s_and_b32 s44, s3, 1")
        I("s_lshl_b32 s44, s44, 4")
        I(f"v_add_u32 v{TQ}, s44, v1")
        I(f"v_lshrrev_b32 v{TQ+1}, 3, v{TQ}")
        I(f"v_cmp_eq_u32 vcc, v{TQ+1}, v2")
        I(f"v_and_b32 v{TQ+1}, 7, v{TQ}")
        I(f"v_and_b32 v{TQ+2}, 1, v{TQ+1}")
        I(f"v_lshlrev_b32 v{TQ+2}, 4, v{TQ+2}")
        I(f"v_mov_b32 v{TQ+3}, 0x3f80")
        I(f"v_lshlrev_b32 v{TQ+3}, v{TQ+2}, v{TQ+3}")
        I(f"v_lshrrev_b32 v{TQ+1}, 1, v{TQ+1}")
        I(f"v_cndmask_b32 v{TQ+3}, 0, v{TQ+3}, vcc")
        for j in range(4):
            I(f"v_cmp_eq_u32 vcc, {j}, v{TQ+1}")
            I("s_nop 1")
            I(f"v_cndmask_b32 v{IDB2+j}, 0, v{TQ+3}, vcc")
        if FINL < 0: I(f"s_waitcnt vmcnt({9*(NB2-1)})")
        I("s_nop 1")
        for jd in range(5):
            ty = TYQ + (jd % 2)*4; t = TQ + (jd % 2)*4
            x0 = XX + 2*jd; n0 = XX + 10 + 2*jd
            I(f"v_mfma_f32_16x16x32_bf16 v[{ty}:{ty+3}], v[{YF+4*jd}:{YF+4*jd+3}], v[{IDB2}:{IDB2+3}], 0")
            if FUSE:
                lo16(t, x0); hi16(t+1, x0); lo16(t+2, x0+1); hi16(t+3, x0+1)
                for r in range(4): I(f"v_add_f32 v{t+r}, v{t+r}, v{XX+11}")
                for r in range(4): I(f"v_cvt_pk_bf16_f32 v{t+r}, 0, v{t+r}")
                for r in range(4): I(f"v_mul_f32 v{t+r}, v{t+r}, v{XX+10}")
                for r in range(4): I(f"v_cvt_pk_bf16_f32 v{t+r}, 0, v{t+r}")
            else:
                lo16(t, n0); hi16(t+1, n0); lo16(t+2, n0+1); hi16(t+3, n0+1)
            I("s_nop 7")
            I("s_nop 3")
            for r in range(4):
                I(f"v_mul_f32 v{t+r}, v{t+r}, v{ty+r}")
            I(f"v_cvt_pk_bf16_f32 v{ty}, v{t}, v{t+1}")
            I(f"v_cvt_pk_bf16_f32 v{ty+1}, v{t+2}, v{t+3}")
            lo16(t, ty); hi16(t+1, ty); lo16(t+2, ty+1); hi16(t+3, ty+1)
            lo16(ty, x0); hi16(ty+1, x0); lo16(ty+2, x0+1); hi16(ty+3, x0+1)
            for r in range(4):
                I(f"v_add_f32 v{t+r}, v{t+r}, v{ty+r}")
            I(f"v_cvt_pk_bf16_f32 v{x0}, v{t}, v{t+1}")
            I(f"v_cvt_pk_bf16_f32 v{x0+1}, v{t+2}, v{t+3}")
    if HOIST and FINL < 0: hoisted()
    stamp()
    NEL = 11
    for k in range(14):
        nb = k + NB2 - 1
        if nb <= 12:
            ld2(nb % NB2)
        elif nb == 13:
            I("s_cmp_ge_u32 s3, 2")
            I("s_cbranch_scc1 F_skip13")
            ld2(nb % NB2)
            e("F_skip13:")
        if k == 13:
            I("s_cmp_ge_u32 s3, 2")
            I("s_cbranch_scc1 F_done")
        rem = max(0, min(12, nb) - k)
        extra = NEL if (FINL >= 0 and k < NB2 - 1) else 0
        if k < 13: I(f"s_waitcnt vmcnt({min(63, 9*rem + extra)})")
        mm2(k % NB2)
        if HOIST and FINL >= 0 and k == max(FINL, NB2 - 1): hoisted()
        if "fst" in FLAGS and k in (0, 3, 7): stamp()
    e("F_done:")
    stamp()
    I("s_mul_i32 s40, s3, 20480")
    I("v_lshlrev_b32 v13, 4, v12")
    I("v_add_u32 v13, s40, v13")
    I("s_nop 7")
    for js in range(4):
        for jd in range(5):
            c = acc(jd, js)
            I(f"ds_write_b128 v13, a[{c}:{c+3}] offset:{(js*5+jd)*1024}")
    I("s_waitcnt lgkmcnt(0)")
    I("s_barrier")
    I("s_mul_i32 s40, s3, 5120")
    I("v_lshlrev_b32 v12, 4, v12")
    I("v_add_u32 v13, s40, v12")
    I("v_add_u32 v12, 40960, v13")
    R = 96
    for src in range(4):
        for jd in range(5):
            r = R + (src*5 + jd)*4
            I(f"ds_read_b128 v[{r}:{r+3}], v{13 if src < 2 else 12} offset:{(src%2)*20480 + jd*1024}")
    if HOIST:
        I("s_waitcnt lgkmcnt(0)")
        for jd in range(5):
            r0 = R + jd*4
            I(f"v_add_f32 v{r0}, v{r0}, v{R+(5+jd)*4}")
            I(f"v_add_f32 v{r0+1}, v{r0+1}, v{R+(5+jd)*4+1}")
            I(f"v_add_f32 v{r0+2}, v{r0+2}, v{R+(5+jd)*4+2}")
            I(f"v_add_f32 v{r0+3}, v{r0+3}, v{R+(5+jd)*4+3}")
            for src in range(2, 4):
                r = R + (src*5 + jd)*4
                for j in range(4):
                    I(f"v_add_f32 v{r0+j}, v{r0+j}, v{r+j}")
            b = r0; t = 16 + (jd % 2)*16; x0 = XX + 2*jd
            I(f"v_cvt_pk_bf16_f32 v{t+4}, v{b}, v{b+1}")
            I(f"v_cvt_pk_bf16_f32 v{t+5}, v{b+2}, v{b+3}")
            lo16(t, x0); hi16(t+1, x0); lo16(t+2, x0+1); hi16(t+3, x0+1)
            lo16(t+6, t+4); hi16(t+7, t+4); lo16(t+8, t+5); hi16(t+9, t+5)
            for r in range(4):
                I(f"v_add_f32 v{t+r}, v{t+r}, v{t+6+r}")
            I(f"v_cvt_pk_bf16_f32 v{t+10}, v{t}, v{t+1}")
            I(f"v_cvt_pk_bf16_f32 v{t+11}, v{t+2}, v{t+3}")
            I(f"buffer_store_dwordx2 v[{t+10}:{t+11}], v15, s[32:35], 0 offen offset:{32*jd}")
    else:
        IDB = 60
        I("s_and_b32 s44, s3, 1")
        I("s_lshl_b32 s44, s44, 4")
        I("v_add_u32 v64, s44, v1")
        I("v_lshrrev_b32 v65, 3, v64")
        I("v_cmp_eq_u32 vcc, v65, v2")
        I("v_and_b32 v65, 7, v64")
        I("v_and_b32 v66, 1, v65")
        I("v_lshlrev_b32 v66, 4, v66")
        I("v_mov_b32 v67, 0x3f80")
        I("v_lshlrev_b32 v67, v66, v67")
        I("v_lshrrev_b32 v65, 1, v65")
        I("v_cndmask_b32 v67, 0, v67, vcc")
        for j in range(4):
            I(f"v_cmp_eq_u32 vcc, {j}, v65")
            I("s_nop 1")
            I(f"v_cndmask_b32 v{IDB+j}, 0, v67, vcc")
        TY = 64
        I("s_nop 1")
        for jd in range(5):
            I(f"v_mfma_f32_16x16x32_bf16 v[{TY+4*jd}:{TY+4*jd+3}], v[{YF+4*jd}:{YF+4*jd+3}], v[{IDB}:{IDB+3}], 0")
        I("s_waitcnt lgkmcnt(0)")
        for jd in range(5):
            r0 = R + jd*4
            for src in range(1, 4):
                r = R + (src*5 + jd)*4
                for j in range(4):
                    I(f"v_add_f32 v{r0+j}, v{r0+j}, v{r+j}")
        I("s_waitcnt vmcnt(0)")
        for jd in range(5):
            b = R + jd*4
            ty = TY + 4*jd
            t = 180 + (jd % 2)*16
            x0 = XX + 2*jd; n0 = XX + 10 + 2*jd
            lo16(t, n0); hi16(t+1, n0); lo16(t+2, n0+1); hi16(t+3, n0+1)
            for r in range(4):
                I(f"v_mul_f32 v{t+r}, v{t+r}, v{ty+r}")
            I(f"v_cvt_pk_bf16_f32 v{t+4}, v{t}, v{t+1}")
            I(f"v_cvt_pk_bf16_f32 v{t+5}, v{t+2}, v{t+3}")
            lo16(t, t+4); hi16(t+1, t+4); lo16(t+2, t+5); hi16(t+3, t+5)
            lo16(t+6, x0); hi16(t+7, x0); lo16(t+8, x0+1); hi16(t+9, x0+1)
            for r in range(4):
                I(f"v_add_f32 v{t+r}, v{t+r}, v{t+6+r}")
            I(f"v_cvt_pk_bf16_f32 v{t+4}, v{t}, v{t+1}")
            I(f"v_cvt_pk_bf16_f32 v{t+5}, v{t+2}, v{t+3}")
            lo16(t, t+4); hi16(t+1, t+4); lo16(t+2, t+5); hi16(t+3, t+5)
            I(f"v_cvt_pk_bf16_f32 v{t+4}, v{b}, v{b+1}")
            I(f"v_cvt_pk_bf16_f32 v{t+5}, v{b+2}, v{b+3}")
            lo16(t+6, t+4); hi16(t+7, t+4); lo16(t+8, t+5); hi16(t+9, t+5)
            for r in range(4):
                I(f"v_add_f32 v{t+r}, v{t+r}, v{t+6+r}")
            I(f"v_cvt_pk_bf16_f32 v{t+10}, v{t}, v{t+1}")
            I(f"v_cvt_pk_bf16_f32 v{t+11}, v{t+2}, v{t+3}")
            I(f"buffer_store_dwordx2 v[{t+10}:{t+11}], v15, s[32:35], 0 offen offset:{32*jd}")
    I("s_waitcnt vmcnt(0)")
    stamp()
    stamp_dump(9)
    e("F_exit:")
    I("s_endpgm")
    kernel_desc("fin_kernel", 256+80+36*max(0, NB2-5), 80, accum=256)

def main():
    hdr = open("parallel_sum__ssm_conv_h3__glu_gated_bilinear__prompt.s.ref").read().splitlines()
    for line in hdr:
        if line.startswith("; @launch"):
            break
        if line.startswith(";"):
            e(line)
    if not FUSE: e(f"; @launch kernel=prep_kernel grid=({N_LN+N_KV+N_PF},1,1) block=(256,1,1) lds=0")
    if BIG:
        e("; @launch kernel=mid_kernel grid=(256,1,1) block=(512,1,1) lds=163840")
    else:
        e(f"; @launch kernel=mid_kernel grid=({N_G1+N_CV},1,1) block=(256,1,1) lds={LDS2}")
    e(f"; @launch kernel=fin_kernel grid=(256,1,1) block=(256,1,1) lds=81920")
    e('.amdgcn_target "amdgcn-amd-amdhsa--gfx950"')
    if not FUSE: gen_prep()
    gen_k2()
    gen_k3()
    dst = sys.argv[1] if len(sys.argv) > 1 else "parallel_sum__ssm_conv_h3__glu_gated_bilinear__prompt.s"
    open(dst, "w").write("\n".join(out) + "\n")

main()
```

```python
import sys

import os
FLAGS = os.environ.get("GENFLAGS", "").split(",")
CP = " nt" if "cpnt" in FLAGS else (" sc1" if "cpsc1" in FLAGS else (" sc0 sc1" if "cpsc01" in FLAGS else ""))
S, D, F = 2048, 640, 1728
WS_XN  = 0x0
WS_KVR = 0x280000
WS_WDT = 0x500000
WS_H   = 0x800000
WS_YT  = 0x1000000
WS_ST  = 0x1400000
FUSE = "fuse" in FLAGS
SZ_SD = S * D * 2
SZ_W  = D * F * 2
SZ_H  = S * F * 2

out = []
def e(s=""):
    out.append(s)
SP = " nt" if "stnt" in FLAGS else (" sc0 sc1" if "stsc" in FLAGS else (" sc1" if "stsc1" in FLAGS else (" sc0 sc1 nt" if "stall" in FLAGS else "")))
def I(s):
    if s.startswith("buffer_store") and "s[56:59]" not in s: s += SP
    out.append("    " + s)

def srd(base, ptr, size, off=0):
    if off:
        I(f"s_add_u32 s{base}, s{ptr}, {off:#x}")
        I(f"s_addc_u32 s{base+1}, s{ptr+1}, 0")
    else:
        I(f"s_mov_b32 s{base}, s{ptr}")
        I(f"s_mov_b32 s{base+1}, s{ptr+1}")
    I(f"s_mov_b32 s{base+2}, {size:#x}")
    I(f"s_mov_b32 s{base+3}, 0x00020000")

def lo16(dst, src): I(f"v_lshlrev_b32 v{dst}, 16, v{src}")
def hi16(dst, src): I(f"v_and_b32 v{dst}, 0xffff0000, v{src}")

STAMP = "stamp" in FLAGS
nst = [0]
def stamp():
    if STAMP:
        i = nst[0]; nst[0] += 1
        I(f"s_memtime s[{60+2*i}:{61+2*i}]")
def stamp_dump(wg):
    if not STAMP: return
    n = nst[0]; nst[0] = 0
    if "ast" in FLAGS:
        kidx = 1 if wg == 9 else 0
        I("s_waitcnt lgkmcnt(0) vmcnt(0)")
        I("s_load_dwordx2 s[56:57], s[0:1], 96")
        I("s_memrealtime s[58:59]")
        I("s_waitcnt lgkmcnt(0)")
        I("v_mov_b32 v3, s58")
        I(f"s_add_u32 s56, s56, {0x1800000 + kidx*0x40000}")
        I("s_addc_u32 s57, s57, 0")
        I("s_mov_b32 s58, 0x40000")
        I("s_mov_b32 s59, 0x00020000")
        I("s_lshl_b32 s61, s2, 3")
        I("s_add_u32 s61, s61, s3")
        I("s_lshl_b32 s61, s61, 6")
        I("v_mov_b32 v1, s61")
        I("buffer_store_dword v3, v1, s[56:59], 0 offen")
        for i in range(1, n):
            I(f"s_sub_u32 s{61+2*i}, s{60+2*i}, s60")
            I(f"v_mov_b32 v2, s{61+2*i}")
            I(f"buffer_store_dword v2, v1, s[56:59], 0 offen offset:{4*i}")
        I("s_waitcnt vmcnt(0)")
        return
    I("s_waitcnt lgkmcnt(0) vmcnt(0)")
    I(f"s_cmp_lg_u32 s2, {wg}")
    I(f"s_cbranch_scc1 SD_skip{wg}")
    I("s_cmp_lg_u32 s3, 0")
    I(f"s_cbranch_scc1 SD_skip{wg}")
    I("s_load_dwordx2 s[56:57], s[0:1], 88")
    I("s_waitcnt lgkmcnt(0)")
    I("s_mov_b32 s58, 256")
    I("s_mov_b32 s59, 0x00020000")
    I("v_mov_b32 v1, 0")
    for i in range(n):
        I(f"s_sub_u32 s{61+2*i}, s{60+2*i}, s60")
        I(f"v_mov_b32 v2, s{61+2*i}")
        I(f"buffer_store_dword v2, v1, s[56:59], 0 offen offset:{4*i + (64 if wg == 255 else 0)}")
    I("s_waitcnt vmcnt(0)")
    e(f"SD_skip{wg}:")

WGT = "wgt" in FLAGS
def wgt_start():
    if WGT: I("s_memrealtime s[76:77]")
wgtn = [0]
def wgt_end(kidx):
    if not WGT: return
    n = wgtn[0]; wgtn[0] += 1
    I("s_waitcnt vmcnt(0) lgkmcnt(0)")
    I("s_memrealtime s[78:79]")
    I("s_load_dwordx2 s[72:73], s[0:1], 96")
    I("v_lshrrev_b32 v1, 6, v0")
    I("s_nop 0")
    I("v_readfirstlane_b32 s70, v1")
    I("s_lshl_b32 s71, s2, 3")
    I("s_add_u32 s70, s70, s71")
    I("s_lshl_b32 s70, s70, 3")
    I("s_waitcnt lgkmcnt(0)")
    I(f"s_add_u32 s72, s72, {0x1800000 + kidx*0x10000}")
    I("s_addc_u32 s73, s73, 0")
    I("s_mov_b32 s74, 0x10000")
    I("s_mov_b32 s75, 0x00020000")
    I("v_mov_b32 v2, s76")
    I("v_mov_b32 v3, s78")
    I("v_mov_b32 v1, s70")
    I("buffer_store_dwordx2 v[2:3], v1, s[72:75], 0 offen")
    I("s_waitcnt vmcnt(0)")

def kernel_header(name):
    e(".text")
    e(f".globl {name}")
    e(".p2align 8")
    e(f".type {name},@function")
    e(f"{name}:")

def kernel_desc(name, vgpr, sgpr, accum=None):
    if accum is None:
        accum = (vgpr + 3) // 4 * 4
    e('.section .rodata,"a"')
    e(".p2align 6")
    e(f".amdhsa_kernel {name}")
    e(f"  .amdhsa_next_free_vgpr {vgpr}")
    e(f"  .amdhsa_next_free_sgpr {sgpr}")
    e(f"  .amdhsa_accum_offset {accum}")
    e("  .amdhsa_group_segment_fixed_size 0")
    e("  .amdhsa_kernarg_size 104")
    e("  .amdhsa_user_sgpr_count 2")
    e("  .amdhsa_user_sgpr_kernarg_segment_ptr 1")
    e("  .amdhsa_system_sgpr_workgroup_id_x 1")
    e(".end_amdhsa_kernel")

N_LN, N_KV = 128, 160
N_PF = 0
if "pfw" in FLAGS: N_PF = 4*36
if "pfw2" in FLAGS: N_PF = 2*36
def gen_prep():
    kernel_header("prep_kernel")
    I(f"s_cmp_ge_u32 s2, {N_LN+N_KV+N_PF}")
    I("s_cbranch_scc1 P_exit")
    if N_PF:
        I(f"s_cmp_ge_u32 s2, {N_LN+N_KV}")
        I("s_cbranch_scc1 P_pf")
    I("s_load_dwordx2 s[6:7], s[0:1], 96")
    I(f"s_cmp_lt_u32 s2, {N_KV}")
    I("s_cbranch_scc1 P_kv")
    if "noln" in FLAGS: I("s_endpgm")
    I("s_load_dwordx2 s[4:5], s[0:1], 0")
    I("v_lshrrev_b32 v1, 4, v0")
    I(f"s_sub_u32 s3, s2, {N_KV}")
    I("s_lshl_b32 s3, s3, 4")
    I("v_add_u32 v1, s3, v1")
    I("v_mul_u32_u24 v2, 0x500, v1")
    I("v_and_b32 v3, 15, v0")
    I("v_lshl_add_u32 v2, v3, 4, v2")
    I("s_waitcnt lgkmcnt(0)")
    srd(8, 4, SZ_SD)
    srd(12, 6, SZ_SD, WS_XN)
    for j in range(5):
        I(f"buffer_load_dwordx4 v[{4+4*j}:{7+4*j}], v2, s[8:11], 0 offen offset:{256*j}")
    I("v_lshrrev_b32 v2, 4, v1")
    I("v_mul_u32_u24 v2, 20480, v2")
    I("v_lshrrev_b32 v64, 2, v3")
    I("v_lshl_add_u32 v2, v64, 10, v2")
    I("v_and_b32 v64, 3, v3")
    I("v_lshl_add_u32 v2, v64, 8, v2")
    I("v_and_b32 v64, 15, v1")
    I("v_lshl_add_u32 v2, v64, 4, v2")
    I("s_waitcnt vmcnt(0)")
    X = 24
    for j in range(20):
        lo16(X + 2*j, 4 + j)
        hi16(X + 2*j + 1, 4 + j)
    T = 64
    for j in range(20):
        I(f"v_add_f32 v{T+j}, v{X+2*j}, v{X+2*j+1}")
    def tree(base, n):
        while n > 1:
            h = n // 2
            for j in range(h):
                I(f"v_add_f32 v{base+j}, v{base+j}, v{base+n-1-j}")
            n = n - h
    tree(T, 20)
    def dpp_reduce(r, tmp):
        for sh in (8, 4, 2, 1):
            I("s_nop 1")
            I(f"v_add_f32_dpp v{tmp}, v{r}, v{r} row_ror:{sh} row_mask:0xf bank_mask:0xf")
            I(f"v_mov_b32 v{r}, v{tmp}")
    dpp_reduce(T, T+1)
    I(f"v_mul_f32 v{T}, {1.0/640.0!r}, v{T}")
    for j in range(40):
        I(f"v_sub_f32 v{T+2+j}, v{X+j}, v{T}")
    for j in range(40):
        I(f"v_mul_f32 v{T+2+j}, v{T+2+j}, v{T+2+j}")
    tree(T+2, 40)
    dpp_reduce(T+2, T+1)
    I(f"v_mul_f32 v{T+2}, {1.0/640.0!r}, v{T+2}")
    I(f"v_cvt_pk_bf16_f32 v{T}, v{T}, v{T+2}")
    hi16(T+2, T)
    lo16(T, T)
    I(f"v_add_f32 v{T+2}, {1e-5!r}, v{T+2}")
    I(f"v_cvt_pk_bf16_f32 v{T+2}, v{T+2}, v{T+2}")
    lo16(T+2, T+2)
    I(f"v_sqrt_f32 v{T+2}, v{T+2}")
    I("s_nop 0")
    I(f"v_cvt_pk_bf16_f32 v{T+2}, v{T+2}, v{T+2}")
    lo16(T+2, T+2)
    I(f"v_rcp_f32 v{T+3}, v{T+2}")
    I("s_nop 0")
    for j in range(20):
        a, b = X + 2*j, X + 2*j + 1
        I(f"v_sub_f32 v{a}, v{a}, v{T}")
        I(f"v_sub_f32 v{b}, v{b}, v{T}")
        I(f"v_cvt_pk_bf16_f32 v{T+4}, v{a}, v{b}")
        lo16(a, T+4)
        hi16(b, T+4)
        for r in (a, b):
            I(f"v_mul_f32 v{T+5}, v{r}, v{T+3}")
            I(f"v_fma_f32 v{T+6}, -v{T+5}, v{T+2}, v{r}")
            I(f"v_fma_f32 v{r}, v{T+6}, v{T+3}, v{T+5}")
        I(f"v_cvt_pk_bf16_f32 v{4+j}, v{a}, v{b}")
        if j % 4 == 3:
            jj = j // 4
            I(f"s_mov_b32 s16, {4096*jj}")
            I(f"buffer_store_dwordx4 v[{4+4*jj}:{7+4*jj}], v2, s[12:15], s16 offen")
    I("s_endpgm")
    e("P_kv:")
    if "nokv" in FLAGS: I("s_endpgm")
    I("s_load_dwordx4 s[16:19], s[0:1], 8")
    I("s_load_dwordx2 s[4:5], s[0:1], 24")
    I("s_mul_i32 s28, s2, 0xCCCD")
    I("s_lshr_b32 s28, s28, 19")
    I("s_mul_i32 s29, s28, 10")
    I("s_sub_u32 s29, s2, s29")
    I("v_and_b32 v1, 7, v0")
    I("v_lshrrev_b32 v2, 3, v0")
    I("s_lshl_b32 s30, s29, 6")
    I("v_lshl_add_u32 v1, v1, 3, s30")
    I("s_lshl_b32 s31, s28, 7")
    I("v_lshl_add_u32 v2, v2, 2, s31")
    I("v_mul_u32_u24 v3, 0x500, v2")
    I("v_lshl_add_u32 v3, v1, 1, v3")
    for i in range(3):
        I(f"v_subrev_u32 v{5+i}, {(3-i)*1280:#x}, v3")
    I("v_lshlrev_b32 v8, 3, v1")
    I("s_waitcnt lgkmcnt(0)")
    srd(8, 16, SZ_SD)
    srd(12, 18, SZ_SD)
    srd(20, 4, D*4*2)
    srd(24, 6, SZ_SD, WS_KVR)
    KR = 16
    for i in range(3):
        I(f"buffer_load_dwordx4 v[{KR+4*i}:{KR+4*i+3}], v{5+i}, s[8:11], 0 offen")
    for i in range(4):
        I(f"buffer_load_dwordx4 v[{KR+4*(i+3)}:{KR+4*(i+3)+3}], v3, s[8:11], 0 offen offset:{i*1280}")
    VR = KR + 28
    for i in range(4):
        I(f"buffer_load_dwordx4 v[{VR+4*i}:{VR+4*i+3}], v3, s[12:15], 0 offen offset:{i*1280}")
    SK = VR + 16
    for i in range(4):
        I(f"buffer_load_dwordx4 v[{SK+4*i}:{SK+4*i+3}], v8, s[20:23], 0 offen offset:{16*i}")
    I("v_lshlrev_b32 v9, 12, v1")
    I(f"v_sub_u32 v10, {S-4}, v2")
    I("v_lshl_add_u32 v9, v10, 1, v9")
    I("s_waitcnt vmcnt(0)")
    KF = 76
    VF = 83
    SF = 87
    TM = 92
    OB = 104
    for dd in range(8):
        ex = lo16 if dd % 2 == 0 else hi16
        for i in range(7):
            ex(KF + i, KR + 4*i + dd//2)
        for i in range(4):
            ex(VF + i, VR + 4*i + dd//2)
        lo16(SF+0, SK + 2*dd); hi16(SF+1, SK + 2*dd)
        lo16(SF+2, SK + 2*dd + 1); hi16(SF+3, SK + 2*dd + 1)
        ob = OB + 2*(dd % 4)
        for q in range(2):
            sa, sb = 3 - 2*q, 2 - 2*q
            t = TM
            I(f"v_mul_f32 v{t}, v{KF+sa}, v{SF+3}")
            I(f"v_mul_f32 v{t+1}, v{KF+sb}, v{SF+3}")
            I(f"v_mul_f32 v{t+2}, v{KF+sa+1}, v{SF+2}")
            I(f"v_mul_f32 v{t+3}, v{KF+sb+1}, v{SF+2}")
            I(f"v_mul_f32 v{t+4}, v{KF+sa+2}, v{SF+1}")
            I(f"v_mul_f32 v{t+5}, v{KF+sb+2}, v{SF+1}")
            I(f"v_mul_f32 v{t+6}, v{KF+sa+3}, v{SF+0}")
            I(f"v_mul_f32 v{t+7}, v{KF+sb+3}, v{SF+0}")
            for p in range(4):
                I(f"v_cvt_pk_bf16_f32 v{t+8+p}, v{t+2*p}, v{t+2*p+1}")
            for p in range(4):
                lo16(t+2*p, t+8+p); hi16(t+2*p+1, t+8+p)
            for step in (1, 2, 3):
                I(f"v_add_f32 v{t}, v{t}, v{t+2*step}")
                I(f"v_add_f32 v{t+1}, v{t+1}, v{t+2*step+1}")
                I(f"v_cvt_pk_bf16_f32 v{t+8}, v{t}, v{t+1}")
                lo16(t, t+8); hi16(t+1, t+8)
            I(f"v_mul_f32 v{t}, v{t}, v{VF+sa}")
            I(f"v_mul_f32 v{t+1}, v{t+1}, v{VF+sb}")
            I(f"v_cvt_pk_bf16_f32 v{ob+q}, v{t}, v{t+1}")
        I(f"s_mov_b32 s16, {4096*dd}")
        I(f"buffer_store_dwordx2 v[{ob}:{ob+1}], v9, s[24:27], s16 offen")
    if N_PF:
        I("s_endpgm")
        e("P_pf:")
        I(f"s_sub_u32 s3, s2, {N_LN+N_KV}")
        I("s_mul_i32 s4, s3, 1821")
        I("s_lshr_b32 s4, s4, 16")
        I("s_mul_i32 s5, s4, 36")
        I("s_sub_u32 s5, s3, s5")
        I("s_lshl_b32 s6, s4, 3")
        I("s_add_u32 s6, s6, 56")
        I("s_cmp_eq_u32 s4, 3")
        I("s_cselect_b32 s6, 32, s6")
        I("s_load_dwordx2 s[8:9], s[0:1], s6")
        I(f"s_mov_b32 s10, {SZ_W}")
        I(f"s_cselect_b32 s10, {SZ_SD}, s10")
        I("s_mov_b32 s11, 0x00020000")
        I("s_mov_b32 s7, 65536")
        I("s_cselect_b32 s7, 73728, s7")
        I("s_mul_i32 s5, s5, s7")
        I("v_lshlrev_b32 v1, 4, v0")
        I("s_waitcnt lgkmcnt(0)")
        for i in range(18):
            I(f"buffer_load_dwordx4 v[{4+4*i}:{7+4*i}], v1, s[8:11], s5 offen")
            I("s_add_u32 s5, s5, 4096")
        I("s_waitcnt vmcnt(0)")
    e("P_exit:")
    I("s_endpgm")
    kernel_desc("prep_kernel", 112, 40)

BF = 112
NSLOT = 5
SLOT = 16384
LDS2 = NSLOT * SLOT
N_G1, N_CV = 256, 256

class DSQ:
    def __init__(self): self.q = []
    def push(self, tag): self.q.append(tag)
    def wait_for(self, tag):
        if tag not in self.q: return
        idx = max(i for i, t in enumerate(self.q) if t == tag)
        n = len(self.q) - 1 - idx
        I(f"s_waitcnt lgkmcnt({min(n,15)})")
        self.q = self.q[idx+1:] if n <= 15 else self.q[len(self.q)-15:]

BIG = "big" in FLAGS
def gen_g1big():
    NF = 10; RS = 320; MS = 32*RS; SL = 2*MS; NS = 8; DB = 3; LA = 3; NST = 20
    for f_ in FLAGS:
        if f_.startswith("ns"): NS = int(f_[2:])
    DW = NS - 1
    stamp()
    I("s_load_dwordx4 s[16:19], s[0:1], 56")
    I(f"s_mul_i32 s25, s25, {16*NF}")
    I(f"s_min_u32 s25, s25, {F-16*NF}")
    I("v_and_b32 v1, 63, v0")
    PROD = "prod" in FLAGS
    if PROD:
        I("s_cmp_lt_u32 s3, 4")
        I("s_cbranch_scc1 G1_cons")
        DWP = 6
        I("s_lshl_b32 s27, s25, 1")
        for i in range(10):
            I(f"v_add_u32 v20, {64*i}, v1")
            I("v_mul_u32_u24 v21, 3277, v20")
            I("v_lshrrev_b32 v21, 16, v21")
            I("v_mul_u32_u24 v22, 20, v21")
            I("v_sub_u32 v22, v20, v22")
            I("v_bfe_u32 v23, v21, 3, 1")
            I("v_lshlrev_b32 v23, 1, v23")
            I("v_xor_b32 v22, v22, v23")
            I("v_mul_u32_u24 v21, 3456, v21")
            I("v_lshl_add_u32 v21, v22, 4, v21")
            I("v_add_u32 v21, s27, v21")
            I(f"v_subrev_u32 v{2+i}, {1024*(i%4)}, v21")
        I("s_sub_u32 s29, s3, 4")
        I(f"s_mul_i32 s29, s29, {MS}")
        I("s_waitcnt lgkmcnt(0)")
        I("s_cmp_ge_u32 s3, 5")
        I("s_cselect_b32 s4, s18, s16")
        I("s_cselect_b32 s5, s19, s17")
        srd(8, 4, SZ_W)
        pq = []
        def pdma(st):
            I(f"s_mov_b32 s28, {st*32*3456}")
            for i in range(10):
                if i % 4 == 0: I(f"s_add_u32 m0, s29, {(st % NS)*SL + (i//4)*4096}")
                I(f"buffer_load_dwordx4 v{2+i}, s[8:11], s28 offen offset:{1024*(i%4)} lds")
                pq.append(st)
        def pwait(st):
            idx = max(i for i, t in enumerate(pq) if t == st)
            I(f"s_waitcnt vmcnt({len(pq)-1-idx})")
            del pq[:idx+1]
        if "ramp" in FLAGS:
            for st in range(3): pdma(st)
            pwait(0)
            I("s_barrier")
            pdma(3); pdma(4)
            for st in range(NST-1):
                pwait(st+1)
                I("s_barrier")
                if st == 0: pdma(5)
                if st + DWP < NST: pdma(st + DWP)
        else:
            for st in range(DWP): pdma(st)
            pwait(0)
            I("s_barrier")
            for st in range(NST-1):
                pwait(st+1)
                I("s_barrier")
                if st + DWP < NST: pdma(st + DWP)
        I("s_endpgm")
        e("G1_cons:")
    I("s_and_b32 s26, s3, 1")
    I("s_lshl_b32 s26, s26, 4")
    I("s_lshl_b32 s27, s25, 1")
    for i in range(5 if not PROD else 0):
        I(f"v_add_u32 v10, {64*i}, v1")
        I("v_mul_u32_u24 v11, 3277, v10")
        I("v_lshrrev_b32 v11, 16, v11")
        I("v_mul_u32_u24 v12, 20, v11")
        I("v_sub_u32 v12, v10, v12")
        I("v_add_u32 v11, s26, v11")
        I("v_bfe_u32 v13, v11, 3, 1")
        I("v_lshlrev_b32 v13, 1, v13")
        I("v_xor_b32 v12, v12, v13")
        I("v_mul_u32_u24 v11, 3456, v11")
        I("v_lshl_add_u32 v11, v12, 4, v11")
        I("v_add_u32 v11, s27, v11")
        I(f"v_subrev_u32 v{2+i}, {1024*(i%4)}, v11")
    I("s_lshl_b32 s26, s24, 3")
    I("s_lshl_b32 s27, s3, 1")
    I("s_add_u32 s26, s26, s27")
    I("s_mul_i32 s27, s26, 20480")
    I("v_lshl_add_u32 v7, v1, 4, s27")
    I("v_add_u32 v8, 20480, v7")
    I("s_mul_i32 s27, s26, 55296")
    I("v_lshl_add_u32 v9, v1, 4, s27")
    I("v_add_u32 v10, 55296, v9")
    I("v_bfe_u32 v17, v0, 4, 2")
    I("v_bfe_u32 v18, v0, 2, 2")
    I("v_lshl_add_u32 v19, v17, 3, v18")
    I(f"v_mul_u32_u24 v19, {RS}, v19")
    I("v_and_b32 v18, 3, v0")
    I("v_lshl_add_u32 v19, v18, 3, v19")
    I("v_and_b32 v20, 1, v17")
    I("v_lshlrev_b32 v20, 5, v20")
    I("v_add_u32 v11, v19, v20")
    I("v_sub_u32 v12, v19, v20")
    ROLL = "roll" in FLAGS
    if ROLL:
        for k_, offs in ((1, 3*SL), (2, 4*SL), (3, 7*SL)):
            I(f"v_add_u32 v{11+2*k_}, {offs}, v11")
            I(f"v_add_u32 v{12+2*k_}, {offs}, v12")
    else:
        for rg in (1, 2):
            I(f"v_add_u32 v{11+2*rg}, {rg*3*SL}, v11")
            I(f"v_add_u32 v{12+2*rg}, {rg*3*SL}, v12")
    I("s_mul_i32 s29, s3, 5120")
    I("s_waitcnt lgkmcnt(0)")
    I("s_cmp_ge_u32 s3, 2")
    I("s_cselect_b32 s4, s18, s16")
    I("s_cselect_b32 s5, s19, s17")
    srd(8, 4, SZ_W)
    srd(12, 6, SZ_SD, WS_XN)
    srd(20, 6, SZ_H, WS_H)
    BB = 24; AF = 56; ACC = 80
    def acc(m, jf, js): return ACC + ((m*NF + jf)*2 + js)*4
    vq = []
    def vwait(tags):
        if not any(t in tags for t in vq): return
        idx = max(i for i, t in enumerate(vq) if t in tags)
        n = len(vq) - 1 - idx
        I(f"s_waitcnt vmcnt({n})")
        del vq[:idx+1]
    def dma(st):
        if PROD: return
        I(f"s_add_u32 m0, s29, {(st % NS)*SL}")
        I(f"s_mov_b32 s28, {st*32*3456}")
        for i in range(5):
            if i == 4: I(f"s_add_u32 m0, s29, {(st % NS)*SL + 4096}")
            I(f"buffer_load_dwordx4 v{2+i}, s[8:11], s28 offen offset:{1024*(i%4)} lds")
            vq.append(("D", st))
    def bld(st):
        I(f"s_mov_b32 s31, {st*1024}")
        for js in range(2):
            r = BB + (st % (DB+1))*8 + js*4
            I(f"buffer_load_dwordx4 v[{r}:{r+3}], v{7+js}, s[12:15], s31 offen")
            vq.append(("B", st))
    seq = [(m, jf) for m in range(2) for jf in range(NF)]
    NQ = len(seq)
    def rdx(gpos):
        st, idx = divmod(gpos, NQ)
        m, jf = seq[idx]
        slot = st % NS
        a = AF + (gpos % 4)*4
        va = 11 + 2*(slot // 3) + (jf & 1)
        off = (slot % 3)*SL + m*MS + jf*32
        return [f"ds_read_b64_tr_b16 v[{a}:{a+1}], v{va} offset:{off}",
                f"ds_read_b64_tr_b16 v[{a+2}:{a+3}], v{va} offset:{off+4*RS}"]
    for st in range(DW):
        dma(st)
        if ROLL:
            if st >= DW - DB: bld(st - (DW - DB))
        elif st < DB: bld(st)
    for j in range(4*2*2*NF):
        I(f"v_mov_b32 v{ACC+j}, 0")
    stamp()
    vwait([("D", 0)])
    I("s_barrier")
    for i in range(LA):
        for x in rdx(i): I(x)
    if ROLL:
        assert NS == 8
        I("s_mov_b32 s33, 0")
        I("s_mov_b32 s36, s29")
        I(f"s_add_u32 s37, s29, {4*SL}")
        I(f"s_mov_b32 s28, {DW*32*3456}")
        I(f"s_mov_b32 s31, {DB*1024}")
        def rdr(p, idx, ring):
            m, jf = seq[idx]
            a = AF + (ring % 4)*4
            if p < 3: va = 11 + (jf & 1); off = p*SL
            elif p == 3: va = 13 + (jf & 1); off = 0
            else: va = 15 + (jf & 1); off = 0
            off += m*MS + jf*32
            return [f"ds_read_b64_tr_b16 v[{a}:{a+1}], v{va} offset:{off}",
                    f"ds_read_b64_tr_b16 v[{a+2}:{a+3}], v{va} offset:{off+4*RS}"]
        e("G1_loop:")
        for p_ in range(4):
            I("s_waitcnt vmcnt(14)")
            I(f"s_cmp_lt_u32 s33, {4 if p_ < 2 else 3}")
            I(f"s_cbranch_scc1 G1_w{p_}")
            I("s_waitcnt vmcnt(2)")
            if p_ >= 2:
                I("s_cmp_lt_u32 s33, 4")
                I(f"s_cbranch_scc1 G1_w{p_}")
                I("s_waitcnt vmcnt(0)")
            e(f"G1_w{p_}:")
            I("s_barrier")
            I(f"s_cmp_ge_u32 s33, {4 if p_ == 0 else 3}")
            I(f"s_cbranch_scc1 G1_d{p_}")
            base, offs = ("s37", 3*SL) if p_ == 0 else ("s36", (p_-1)*SL)
            I(f"s_add_u32 m0, {base}, {offs}")
            for i in range(5):
                if i == 4: I(f"s_add_u32 m0, {base}, {offs + 4096}")
                I(f"buffer_load_dwordx4 v{2+i}, s[8:11], s28 offen offset:{1024*(i%4)} lds")
            I(f"s_add_u32 s28, s28, {32*3456}")
            e(f"G1_d{p_}:")
            if p_ > 0:
                I("s_cmp_ge_u32 s33, 4")
                I(f"s_cbranch_scc1 G1_b{p_}")
            for js in range(2):
                r = BB + ((p_ + DB) % 4)*8 + js*4
                I(f"buffer_load_dwordx4 v[{r}:{r+3}], v{7+js}, s[12:15], s31 offen")
            I("s_add_u32 s31, s31, 1024")
            if p_ > 0: e(f"G1_b{p_}:")
            for idx in range(NQ):
                if idx + LA < NQ: rr = rdr(p_, idx + LA, idx + LA)
                else: rr = rdr(p_ + 1, idx + LA - NQ, idx + LA)
                I(f"s_waitcnt lgkmcnt({2*LA-2})")
                m, jf = seq[idx]
                a = AF + (idx % 4)*4
                for js in range(2):
                    c = acc(m, jf, js); b = BB + p_*8 + js*4
                    I(f"v_mfma_f32_16x16x32_bf16 v[{c}:{c+3}], v[{a}:{a+3}], v[{b}:{b+3}], v[{c}:{c+3}]")
                    I(rr[js])
        for k_ in range(4):
            I(f"v_swap_b32 v{11+k_}, v{15+k_}")
        I("s_mov_b32 s38, s36")
        I("s_mov_b32 s36, s37")
        I("s_mov_b32 s37, s38")
        I("s_add_u32 s33, s33, 1")
        I("s_cmp_lt_u32 s33, 5")
        I("s_cbranch_scc1 G1_loop")
        I("s_waitcnt lgkmcnt(0)")
    for st in range(NST if not ROLL else 0):
        if st + 1 < NST:
            vwait([("D", st+1), ("B", st)])
            I("s_barrier")
        else:
            vwait([("B", st)])
        if "stamp3" in FLAGS and st in (0, 1, 5, 10, 15): stamp()
        if st + DW < NST and "g1nodma" not in FLAGS: dma(st + DW)
        if st + DB < NST and "g1nob" not in FLAGS: bld(st + DB)
        for idx in range(NQ if "g1nocomp" not in FLAGS else 0):
            gpos = st*NQ + idx
            rr = rdx(gpos + LA) if gpos + LA < NST*NQ else None
            I(f"s_waitcnt lgkmcnt({2*min(LA-1, NST*NQ-1-gpos)})")
            m, jf = seq[idx]
            a = AF + (gpos % 4)*4
            for js in range(2):
                c = acc(m, jf, js); b = BB + (st % (DB+1))*8 + js*4
                I(f"v_mfma_f32_16x16x32_bf16 v[{c}:{c+3}], v[{a}:{a+3}], v[{b}:{b+3}], v[{c}:{c+3}]")
                if rr: I(rr[js])
    stamp()
    I("s_lshr_b32 s34, s25, 5")
    I("s_lshl_b32 s34, s34, 10")
    I("s_add_u32 s35, s34, 4096")
    I("s_nop 7")
    I("s_nop 3")
    for js in range(2):
        for jp in range(NF//2):
            t = 24 + ((js*5 + jp) % 4) * 12
            for hh in range(2):
                jf = 2*jp + hh
                g = acc(0, jf, js); u = acc(1, jf, js)
                I(f"v_cvt_pk_bf16_f32 v{t}, v{g}, v{g+1}")
                I(f"v_cvt_pk_bf16_f32 v{t+1}, v{g+2}, v{g+3}")
                I(f"v_cvt_pk_bf16_f32 v{t+2}, v{u}, v{u+1}")
                I(f"v_cvt_pk_bf16_f32 v{t+3}, v{u+2}, v{u+3}")
                lo16(g, t); hi16(g+1, t); lo16(g+2, t+1); hi16(g+3, t+1)
                lo16(u, t+2); hi16(u+1, t+2); lo16(u+2, t+3); hi16(u+3, t+3)
                for r in range(4):
                    I(f"v_mul_f32 v{g+r}, v{g+r}, v{u+r}")
                I(f"v_cvt_pk_bf16_f32 v{t+4+2*hh}, v{g}, v{g+1}")
                I(f"v_cvt_pk_bf16_f32 v{t+5+2*hh}, v{g+2}, v{g+3}")
            if jp < 4:
                I(f"buffer_store_dwordx4 v[{t+4}:{t+7}], v{9+js}, s[20:23], s34 offen offset:{1024*jp}")
            else:
                I(f"buffer_store_dwordx4 v[{t+4}:{t+7}], v{9+js}, s[20:23], s35 offen")
    if STAMP: I("s_waitcnt vmcnt(0)")
    stamp()
    stamp_dump(5)
    wgt_end(1)
    I("s_endpgm")

def gen_g1fuse():
    NF = 10; RS = 320; MS = 32*RS; SL = 2*MS; NS = 6; LA = 3; NST = 20; DWP = 5
    XB = NS*SL
    XP = 18432; XR = 144
    I(f"s_mul_i32 s25, s25, {16*NF}")
    I(f"s_min_u32 s25, s25, {F-16*NF}")
    I("v_and_b32 v1, 63, v0")
    I("s_and_b32 s26, s3, 3")
    I(f"s_mul_i32 s30, s26, {32*XR}")
    I(f"s_add_u32 s30, s30, {XB}")
    I("s_lshl_b32 s27, s24, 3")
    I("s_lshl_b32 s26, s26, 1")
    I("s_add_u32 s26, s26, s27")
    I("s_cmp_lt_u32 s3, 4")
    I("s_cbranch_scc1 G1_cons")
    if "hprio" in FLAGS: I("s_setprio 3")
    RAW = 64
    def raw(rg, p): return RAW + (p*4 + rg)*4
    I("s_mul_i32 s27, s26, 20480")
    I("v_lshrrev_b32 v12, 3, v1")
    I("v_and_b32 v11, 7, v1")
    I("v_mul_u32_u24 v13, 0x500, v12")
    I("v_lshl_add_u32 v13, v11, 4, v13")
    I("v_add_u32 v13, s27, v13")
    for rg in range(1, 4): I(f"v_add_u32 v{13+rg}, {rg*10240}, v13")
    I("s_lshl_b32 s27, s26, 7")
    I("v_lshl_add_u32 v7, v12, 3, s27")
    I(f"v_mul_u32_u24 v6, {XR}, v12")
    I("v_lshl_add_u32 v6, v11, 4, v6")
    I("v_add_u32 v6, s30, v6")
    I("s_waitcnt lgkmcnt(0)")
    srd(12, 44, SZ_SD)
    srd(20, 6, S*8, WS_ST)
    for p in range(10):
        for rg in range(4):
            r = raw(rg, p)
            I(f"buffer_load_dwordx4 v[{r}:{r+3}], v{13+rg}, s[12:15], 0 offen offset:{128*p}")
    SM = 24; SS = 32; TT = 40; STA = 48
    for j in range(16): I(f"v_mov_b32 v{SM+j}, 0")
    I("s_mov_b32 s49, 0x3f803f80")
    I("s_cmp_ge_u32 s3, 6")
    I("s_cbranch_scc1 G1_hw")
    def helper(kind):
        vq = [("Q", i) for i in range(40)]
        def vwait(pred):
            idxs = [i for i, t in enumerate(vq) if pred(t)]
            if not idxs: return
            idx = max(idxs)
            n = len(vq) - 1 - idx
            assert n <= 63
            I(f"s_waitcnt vmcnt({n})")
            del vq[:idx+1]
        def pdma(st):
            I(f"s_mov_b32 s28, {st*32*3456}")
            for i in range(10):
                if i % 4 == 0: I(f"s_add_u32 m0, s29, {(st % NS)*SL + (i//4)*4096}")
                I(f"buffer_load_dwordx4 v{224+i}, s[8:11], s28 offen offset:{1024*(i%4)} lds")
                vq.append(("D", st))
        if kind == "prod":
            I("s_lshl_b32 s27, s25, 1")
            for i in range(10):
                I(f"v_add_u32 v20, {64*i}, v1")
                I("v_mul_u32_u24 v21, 3277, v20")
                I("v_lshrrev_b32 v21, 16, v21")
                I("v_mul_u32_u24 v22, 20, v21")
                I("v_sub_u32 v22, v20, v22")
                I("v_bfe_u32 v23, v21, 3, 1")
                I("v_lshlrev_b32 v23, 1, v23")
                I("v_xor_b32 v22, v22, v23")
                I("v_mul_u32_u24 v21, 3456, v21")
                I("v_lshl_add_u32 v21, v22, 4, v21")
                I("v_add_u32 v21, s27, v21")
                I(f"v_subrev_u32 v{224+i}, {1024*(i%4)}, v21")
            I("s_sub_u32 s29, s3, 4")
            I(f"s_mul_i32 s29, s29, {MS}")
            I("s_cmp_ge_u32 s3, 5")
            I("s_cselect_b32 s4, s18, s16")
            I("s_cselect_b32 s5, s19, s17")
            srd(8, 4, SZ_W)
            DSCH = {5: [0], 8: [1], 9: [2]}
            for f_ in FLAGS:
                if f_.startswith("dsch"):
                    if f_ == "dsch1": DSCH = {3: [0], 6: [1], 9: [2]}
                    if f_ == "dsch2": DSCH = {7: [0], 9: [1, 2]}
                    if f_ == "dsch3": DSCH = {-1: [0], 5: [1], 9: [2]}
            for st in DSCH.get(-1, []): pdma(st)
        else:
            I("s_cmp_ge_u32 s3, 7")
            I("s_cselect_b32 s28, s18, s16")
            I("s_cselect_b32 s29, s19, s17")
            I("s_mul_i32 s27, s47, 12800")
            I(f"s_mov_b32 s30, {SZ_W}")
            I("s_mov_b32 s31, 0x00020000")
            I("v_lshlrev_b32 v5, 4, v1")
            I("s_load_dwordx2 s[4:5], s[0:1], 72")
            I("s_min_u32 s48, s46, 269")
            I("s_mul_i32 s17, s48, 0xCCCD")
            I("s_lshr_b32 s17, s17, 19")
            I("s_mul_i32 s18, s17, 10")
            I("s_sub_u32 s18, s48, s18")
            I("v_and_b32 v23, 7, v0")
            I("v_bfe_u32 v17, v0, 3, 2")
            I("v_bfe_u32 v18, v0, 5, 1")
            I("s_lshl_b32 s18, s18, 6")
            I("v_lshl_add_u32 v23, v23, 3, s18")
            I("s_lshl_b32 s19, s17, 1")
            I("v_add_u32 v18, s19, v18")
            I("v_lshlrev_b32 v19, 5, v18")
            I("v_lshl_add_u32 v19, v17, 2, v19")
            I("v_mul_u32_u24 v20, 0x500, v19")
            I("v_lshl_add_u32 v20, v23, 1, v20")
            I("v_add_u32 v21, 0x5000, v20")
            I("s_waitcnt lgkmcnt(0)")
            srd(8, 4, SZ_W)
            srd(32, 6, SZ_W, WS_WDT)
            I("s_mov_b32 s36, 0x05040100")
            I("s_mov_b32 s37, 0x07060302")
            I("v_lshrrev_b32 v22, 4, v23")
            I("v_mul_u32_u24 v22, 54, v22")
            I("v_add_u32 v22, v22, v18")
            I("v_lshlrev_b32 v22, 10, v22")
            I("v_lshl_add_u32 v22, v17, 8, v22")
            I("v_and_b32 v19, 15, v23")
            I("v_lshl_add_u32 v22, v19, 4, v22")
        for p in range(10):
            vwait(lambda t: t[0] == "Q" and t[1] <= 4*p + 3)
            for c in range(4):
                for rg in range(4):
                    r = raw(rg, p) + c
                    I(f"v_dot2_f32_bf16 v{SM+2*rg+(c&1)}, v{r}, s49, v{SM+2*rg+(c&1)}")
                    I(f"v_dot2_f32_bf16 v{SS+2*rg+(c&1)}, v{r}, v{r}, v{SS+2*rg+(c&1)}")
            if kind == "prod":
                for st in DSCH.get(p, []): pdma(st)
        I("s_nop 3")
        V8 = [SM+2*rg for rg in range(4)] + [SS+2*rg for rg in range(4)]
        for a in V8: I(f"v_add_f32 v{a}, v{a}, v{a+1}")
        for dpp in ("quad_perm:[1,0,3,2]", "quad_perm:[2,3,0,1]", "row_half_mirror"):
            for a in V8: I(f"v_add_f32_dpp v{a+1}, v{a}, v{a} {dpp} row_mask:0xf bank_mask:0xf")
            for a in V8: I(f"v_mov_b32 v{a}, v{a+1}")
        R4 = range(4)
        for a in V8: I(f"v_mul_f32 v{a}, {1.0/640.0!r}, v{a}")
        for rg in R4: I(f"v_fma_f32 v{SS+2*rg}, -v{SM+2*rg}, v{SM+2*rg}, v{SS+2*rg}")
        for rg in R4:
            I(f"v_cvt_pk_bf16_f32 v{STA+2*rg+1}, 0, -v{SM+2*rg}")
            I(f"v_cvt_pk_bf16_f32 v{SS+2*rg}, 0, v{SS+2*rg}")
        for rg in R4: I(f"v_add_f32 v{SS+2*rg}, {1e-5!r}, v{SS+2*rg}")
        for rg in R4: I(f"v_cvt_pk_bf16_f32 v{SS+2*rg}, 0, v{SS+2*rg}")
        for rg in R4: I(f"v_sqrt_f32 v{SS+2*rg}, v{SS+2*rg}")
        I("s_nop 0")
        for rg in R4: I(f"v_cvt_pk_bf16_f32 v{SS+2*rg}, 0, v{SS+2*rg}")
        for rg in R4: I(f"v_rcp_f32 v{STA+2*rg}, v{SS+2*rg}")
        I("s_nop 0")
        MN = "mnorm" in FLAGS
        SEL = 24; NEG = 32; T2 = 234
        if MN:
            I("v_and_b32 v2, 15, v1")
            I("v_lshrrev_b32 v3, 4, v1")
            I("v_lshrrev_b32 v4, 2, v2")
            I("v_cmp_eq_u32 vcc, v3, v4")
            I("v_and_b32 v4, 1, v2")
            I("v_lshlrev_b32 v4, 4, v4")
            I("v_mov_b32 v3, 0x3f80")
            I("v_lshlrev_b32 v3, v4, v3")
            I("v_cndmask_b32 v3, 0, v3, vcc")
            I("v_bfe_u32 v4, v2, 1, 1")
            I("v_cmp_eq_u32 vcc, 0, v4")
            I("s_nop 1")
            I(f"v_cndmask_b32 v{SEL}, 0, v3, vcc")
            I(f"v_cndmask_b32 v{SEL+1}, v3, 0, vcc")
            I(f"v_mov_b32 v{SEL+2}, 0")
            I(f"v_mov_b32 v{SEL+3}, 0")
            I(f"v_mov_b32 v{SEL+4}, 0")
            I(f"v_mov_b32 v{SEL+5}, 0")
            I(f"v_mov_b32 v{SEL+6}, v{SEL}")
            I(f"v_mov_b32 v{SEL+7}, v{SEL+1}")
            for rg in R4:
                for c in range(4): I(f"v_mov_b32 v{NEG+4*rg+c}, v{STA+2*rg+1}")
            I("s_nop 1")
        def norm(p, rgs):
            if MN:
                TB = [T2, T2+8]
                def mf(i):
                    rg = rgs[i]; r = raw(rg, p); t = TB[i % 2]
                    for h in range(2):
                        I(f"v_mfma_f32_16x16x32_bf16 v[{t+4*h}:{t+4*h+3}], v[{SEL+4*h}:{SEL+4*h+3}], v[{r}:{r+3}], v[{NEG+4*rg}:{NEG+4*rg+3}]")
                mf(0)
                for i, rg in enumerate(rgs):
                    r = raw(rg, p); R_ = STA + 2*rg; t = TB[i % 2]
                    if i + 1 < len(rgs): mf(i+1)
                    else: I("s_nop 7")
                    if i == 0: I("s_nop 7")
                    for c in range(8): I(f"v_cvt_pk_bf16_f32 v{t+c}, 0, v{t+c}")
                    for c in range(8): I(f"v_mul_f32 v{t+c}, v{t+c}, v{R_}")
                    for c in range(4): I(f"v_cvt_pk_bf16_f32 v{r+c}, v{t+2*c}, v{t+2*c+1}")
                    I(f"ds_write_b128 v6, v[{r}:{r+3}] offset:{(p & 1)*XP + rg*8*XR}")
                return
            for rg in rgs:
                r = raw(rg, p); R_, M_ = STA + 2*rg, STA + 2*rg + 1
                if "nonorm" not in FLAGS:
                    for c in range(4):
                        lo16(TT+2*c, r+c); hi16(TT+2*c+1, r+c)
                    for c in range(8): I(f"v_add_f32 v{TT+c}, v{TT+c}, v{M_}")
                    for c in range(8): I(f"v_cvt_pk_bf16_f32 v{TT+c}, 0, v{TT+c}")
                    for c in range(8): I(f"v_mul_f32 v{TT+c}, v{TT+c}, v{R_}")
                    for c in range(4): I(f"v_cvt_pk_bf16_f32 v{r+c}, v{TT+2*c}, v{TT+2*c+1}")
                I(f"ds_write_b128 v6, v[{r}:{r+3}] offset:{(p & 1)*XP + rg*8*XR}")
        WLK = 3; PFK = 0
        for f_ in FLAGS:
            if f_.startswith("wlk"): WLK = int(f_[3:])
            if f_.startswith("pfk"): PFK = int(f_[3:])
        for k in range(NST):
            if k == 0:
                norm(0, (0, 1, 2, 3))
                if kind == "prod": pdma(3); pdma(4)
            else:
                if kind == "prod" and k >= 2 and k - 2 + DWP < NST: pdma(k - 2 + DWP)
                p = (k-1)//2 + 1
                if p < 10: norm(p, (0, 1) if (k-1) % 2 == 0 else (2, 3))
            if kind == "wdt" and k == PFK and "nopfm" not in FLAGS:
                for i in range(13):
                    I(f"buffer_load_dwordx4 v[60:63], v5, s[28:31], s27 offen")
                    I("s_add_u32 s27, s27, 1024")
            if kind == "wdt" and k == WLK:
                for i in range(8):
                    b = 20 if i < 4 else 21
                    I(f"buffer_load_dwordx4 v[{RAW+4*i}:{RAW+3+4*i}], v{b}, s[8:11], 0 offen offset:{(i%4)*1280}")
            if k == 1:
                for rg in R4:
                    I(f"buffer_store_dwordx2 v[{STA+2*rg}:{STA+2*rg+1}], v7, s[20:23], 0 offen offset:{64*rg}")
                    vq.append(("S", rg))
            if kind == "wdt" and k == WLK + 5:
                I("s_cmp_ge_u32 s46, 270")
                I("s_cbranch_scc1 G1_hwskip")
                I("s_waitcnt vmcnt(0)")
                for dd in range(8):
                    ob = RAW + 32 + 4*dd
                    sel = 36 + (dd & 1)
                    for q in range(4):
                        I(f"v_perm_b32 v{ob+q}, v{RAW+4*(2*q+1)+dd//2}, v{RAW+4*(2*q)+dd//2}, s{sel}")
                for dd in range(8):
                    ob = RAW + 32 + 4*dd
                    I(f"buffer_store_dwordx4 v[{ob}:{ob+3}], v22, s[32:35], 0 offen offset:{16*dd}")
                e("G1_hwskip:")
            if kind == "prod": vwait(lambda t: t == ("D", k))
            I("s_waitcnt lgkmcnt(0)")
            I("s_barrier")
        I("s_endpgm")
    helper("prod")
    e("G1_hw:")
    helper("wdt")
    e("G1_cons:")
    if "prio" in FLAGS: I("s_setprio 3")
    I("s_and_b32 s31, s3, 1")
    I("s_lshr_b32 s33, s3, 1")
    I("s_lshl_b32 s27, s24, 3")
    I("s_lshl_b32 s26, s31, 2")
    I("s_add_u32 s26, s26, s27")
    I("s_mul_i32 s27, s26, 55296")
    I("v_lshl_add_u32 v9, v1, 4, s27")
    I("v_bfe_u32 v17, v0, 4, 2")
    I("v_and_b32 v18, 15, v0")
    I(f"v_mul_u32_u24 v6, {XR}, v18")
    I("v_lshl_add_u32 v6, v17, 4, v6")
    I(f"s_mul_i32 s30, s31, {64*XR}")
    I(f"s_add_u32 s30, s30, {XB}")
    I("v_add_u32 v6, s30, v6")
    I("v_bfe_u32 v18, v0, 2, 2")
    I("v_lshl_add_u32 v19, v17, 3, v18")
    I(f"v_mul_u32_u24 v19, {RS}, v19")
    I("v_and_b32 v18, 3, v0")
    I("v_lshl_add_u32 v19, v18, 3, v19")
    I("s_mul_i32 s27, s33, 160")
    I("v_add_u32 v19, s27, v19")
    I("v_and_b32 v20, 1, v17")
    I("v_lshlrev_b32 v20, 5, v20")
    I("s_lshl_b32 s27, s33, 1")
    I("s_sub_u32 s27, 1, s27")
    I("v_mul_lo_u32 v20, v20, s27")
    I("v_add_u32 v11, v19, v20")
    I("v_sub_u32 v12, v19, v20")
    for rg in (1,):
        I(f"v_add_u32 v{11+2*rg}, {rg*3*SL}, v11")
        I(f"v_add_u32 v{12+2*rg}, {rg*3*SL}, v12")
    I("s_waitcnt lgkmcnt(0)")
    srd(20, 6, SZ_H, WS_H)
    BB = 24; AF = 56; ACC = 80; LA = 2
    for f_ in FLAGS:
        if f_.startswith("la"): LA = int(f_[2:])
    def acc(m, j, js): return ACC + ((m*5 + j)*4 + js)*4
    seq = [(m, j) for m in range(2) for j in range(5)]
    NQ = len(seq)
    dq = []
    def dwait(tags):
        idxs = [i for i, t in enumerate(dq) if t in tags]
        if not idxs: return
        idx = max(idxs); n = len(dq) - 1 - idx
        assert n <= 15
        I(f"s_waitcnt lgkmcnt({n})")
        del dq[:idx+1]
    def rdx(gpos):
        st, idx = divmod(gpos, NQ)
        m, j = seq[idx]
        slot = st % NS
        a = AF + (gpos % 4)*4
        va = 11 + 2*(slot // 3) + (j & 1)
        off = (slot % 3)*SL + m*MS + j*32
        return [f"ds_read_b64_tr_b16 v[{a}:{a+1}], v{va} offset:{off}",
                f"ds_read_b64_tr_b16 v[{a+2}:{a+3}], v{va} offset:{off+4*RS}"]
    def xrd(st, js):
        b = BB + (st & 1)*16 + js*4
        I(f"ds_read_b128 v[{b}:{b+3}], v6 offset:{((st >> 1) & 1)*XP + js*16*XR + (st & 1)*64}")
        dq.append(("X", st))
    stamp()
    I("s_barrier")
    stamp()
    for js in range(4): xrd(0, js)
    for i in range(LA):
        for x in rdx(i): I(x); dq.append(("A", i))
    for st in range(NST):
        if st + 1 < NST: I("s_barrier")
        if "stamp3" in FLAGS and st in (1, 5, 10): stamp()
        for idx in range(NQ):
            gpos = st*NQ + idx
            rr = rdx(gpos + LA) if gpos + LA < NST*NQ else None
            dwait([("A", gpos), ("X", st)])
            m, j = seq[idx]
            a = AF + (gpos % 4)*4
            for js in range(4):
                c = acc(m, j, js); b = BB + (st & 1)*16 + js*4
                cc = "0" if st == 0 else f"v[{c}:{c+3}]"
                I(f"v_mfma_f32_16x16x32_bf16 v[{c}:{c+3}], v[{a}:{a+3}], v[{b}:{b+3}], {cc}")
                if rr and js < 2: I(rr[js]); dq.append(("A", gpos + LA))
                if js == 2 and st + 1 < NST and 1 <= idx <= 4: xrd(st + 1, idx - 1)
    stamp()
    I("s_lshr_b32 s34, s25, 5")
    I("s_lshl_b32 s34, s34, 10")
    I("s_nop 7")
    I("s_nop 3")
    cnt = [0]
    def hq(j, js, dst, t):
        g = acc(0, j, js); u = acc(1, j, js)
        I(f"v_cvt_pk_bf16_f32 v{t}, v{g}, v{g+1}")
        I(f"v_cvt_pk_bf16_f32 v{t+1}, v{g+2}, v{g+3}")
        I(f"v_cvt_pk_bf16_f32 v{t+2}, v{u}, v{u+1}")
        I(f"v_cvt_pk_bf16_f32 v{t+3}, v{u+2}, v{u+3}")
        lo16(g, t); hi16(g+1, t); lo16(g+2, t+1); hi16(g+3, t+1)
        lo16(u, t+2); hi16(u+1, t+2); lo16(u+2, t+3); hi16(u+3, t+3)
        for r in range(4):
            I(f"v_mul_f32 v{g+r}, v{g+r}, v{u+r}")
        I(f"v_cvt_pk_bf16_f32 v{dst}, v{g}, v{g+1}")
        I(f"v_cvt_pk_bf16_f32 v{dst+1}, v{g+2}, v{g+3}")
    def epi(fq):
        units = [((0, 1), 0, 0), ((2, 3), 1, 0), ((4,), 2, 0)] if fq == 0 else [((0,), 2, 8), ((1, 2), 3, 0), ((3, 4), 4, 0)]
        for js in range(4):
            I(f"s_add_u32 s35, s34, {js*55296}")
            I(f"s_add_u32 s36, s34, {js*55296 + 4096}")
            for (jl, blk, ho) in units:
                t = 24 + (cnt[0] % 4) * 12; cnt[0] += 1
                for hh, j in enumerate(jl): hq(j, js, t+4+2*hh, t)
                so, off = ("s35", 1024*blk + ho) if blk < 4 else ("s36", ho)
                if len(jl) == 2:
                    I(f"buffer_store_dwordx4 v[{t+4}:{t+7}], v9, s[20:23], {so} offen offset:{off}")
                else:
                    I(f"buffer_store_dwordx2 v[{t+4}:{t+5}], v9, s[20:23], {so} offen offset:{off}")
    I("s_cmp_eq_u32 s33, 0")
    I("s_cbranch_scc0 G1_epi1")
    epi(0)
    I("s_branch G1_epid")
    e("G1_epi1:")
    epi(1)
    e("G1_epid:")
    if STAMP: I("s_waitcnt vmcnt(0)")
    stamp()
    stamp_dump(5)
    wgt_end(1)
    I("s_endpgm")

G2F = "g2f" in FLAGS
WS_FL = 0x1500000
FL_SZ = 32768
LMB = 7*20480 + 19456
PLIM = 100000
SCD = " sc1" if (G2F and "nosc" not in FLAGS) else ""
PSL = 4; PSL2 = 1
XL = "xl" in FLAGS
SCH = "" if "hloc" in FLAGS else SCD
if "gsc" in FLAGS: SCH = " sc1"
YST = G2F or "yst" in FLAGS or "ysc" in FLAGS
SCY = " sc1" if "ysc" in FLAGS else SCD
SCW = " sc1" if "wsc" in FLAGS else SCD
for f_ in FLAGS:
    if f_.startswith("psl"): PSL = int(f_[3:])
    if f_.startswith("psm"): PSL2 = int(f_[3:])
def g2_setup(pw):
    if XL:
        I("s_bfe_u32 s54, s2, 0x30003")
        I("s_and_b32 s55, s2, 7")
        I("s_lshl_b32 s55, s55, 2")
        I("s_lshr_b32 s56, s2, 6")
        I("s_add_u32 s55, s55, s56")
    else:
        I("s_bfe_u32 s54, s2, 0x10002")
        I("s_lshl_b32 s54, s54, 2")
        I("s_bfe_u32 s55, s2, 0x20003")
        I("s_add_u32 s54, s54, s55")
        I("s_and_b32 s55, s2, 3")
        I("s_lshl_b32 s55, s55, 3")
        I("s_lshr_b32 s56, s2, 5")
        I("s_add_u32 s55, s55, s56")
    I("s_mul_i32 s56, s3, 7")
    I("s_cmp_eq_u32 s3, 7")
    I("s_subb_u32 s56, s56, 0")
    I("s_lshl_b32 s56, s56, 10")
    I(f"s_mul_i32 s52, s54, {5*55296}")
    I("s_add_u32 s52, s52, s56")
    I(f"s_mul_i32 s53, s55, {4*55296}")
    I("s_add_u32 s53, s53, s56")
    I("s_mul_i32 s56, s3, 20480")
    srd(48, 6, SZ_W, WS_WDT)
    srd(44, 6, FL_SZ, WS_FL)
    I(f"s_mov_b32 s57, {pw}")
def g2_wdma(vl, mid=None):
    for jd in range(5):
        if mid and jd == FFN: mid(4*FFN)
        I(f"s_add_u32 m0, s56, {jd*4096}")
        I(f"s_add_u32 s58, s52, {jd*55296}")
        for b in range(4 if jd < 4 else 3):
            I(f"buffer_load_dwordx4 v{vl}, s[48:51], s58 offen offset:{1024*b} lds")
def g2_gpoll():
    I("s_mov_b64 exec, 0xffffffff")
    I("buffer_load_dword v4, v3, s[44:47], s14 offen sc1")
    I("s_mov_b64 exec, -1")
def g2_publish():
    I("v_cmp_ne_u32 vcc, 0, v4")
    I("s_mov_b32 s58, vcc_lo")
    I("v_mov_b32 v4, s58")
    I("s_mov_b64 exec, 1")
    I("ds_write_b32 v6, v4")
    I("s_mov_b64 exec, -1")
def g2_lread():
    I("ds_read_b32 v4, v6")
    I("s_waitcnt lgkmcnt(0)")
    I("v_readfirstlane_b32 s58, v4")
def g2_wait(name, need):
    I("s_mov_b32 s59, 0")
    I("s_cmp_eq_u32 s3, s57")
    I(f"s_cbranch_scc1 {name}_p")
    e(f"{name}_l:")
    g2_lread()
    I(f"s_and_b32 s58, s58, {need}")
    I(f"s_cmp_eq_u32 s58, {need}")
    I(f"s_cbranch_scc1 {name}_ok")
    I("s_add_u32 s59, s59, 1")
    I(f"s_cmp_gt_u32 s59, {PLIM*20}")
    I(f"s_cbranch_scc1 {name}_ok")
    I(f"s_sleep {PSL2}")
    I(f"s_branch {name}_l")
    e(f"{name}_p:")
    g2_gpoll()
    I("s_waitcnt vmcnt(0)")
    g2_publish()
    I(f"s_and_b32 s58, s58, {need}")
    I(f"s_cmp_eq_u32 s58, {need}")
    I(f"s_cbranch_scc1 {name}_ok")
    I("s_add_u32 s59, s59, 1")
    I(f"s_cmp_gt_u32 s59, {PLIM}")
    I(f"s_cbranch_scc1 {name}_ok")
    I(f"s_sleep {PSL}")
    I(f"s_branch {name}_p")
    e(f"{name}_ok:")
G2_HB, G2_RG, G2_WR, G2_ACC = 12, 92, 112, 176
HPW = -1; CLATE = "xlate" in FLAGS; HTK = -1; FF = False; FFN = 2; HPN = 5
for f_ in FLAGS:
    if f_.startswith("ff"): FF = True; FFN = int(f_[2:])
    if f_.startswith("hpn"): HPN = int(f_[3:])
CWP = False; CWI = 1; CHT = -1; HALL = "hall" in FLAGS
CW4 = False
for f_ in FLAGS:
    if f_.startswith("cw4"):
        CW4 = True
        a_, b_ = f_[3:].split("_")
        CW4W = [[k for k, c in enumerate(a_) if int(c) == it] for it in range(8)]
        CW4H = [[k for k, c in enumerate(b_) if int(c) == it] for it in range(8)]
for f_ in FLAGS:
    if f_.startswith("cht"): CHT = int(f_[3:])
WNT = " nt" if "wnt" in FLAGS else ""
for f_ in FLAGS:
    if f_.startswith("cwp"): CWP = True; CWI = int(f_[3:])
for f_ in FLAGS:
    if f_.startswith("hpw"): HPW = int(f_[3:])
    if f_.startswith("htk"): HTK = int(f_[3:])
def g2_head(path):
    if "hdst" in FLAGS:
        nst[0] = 1; stamp()
    I("s_load_dwordx2 s[36:37], s[0:1], 0")
    I("s_load_dwordx2 s[38:39], s[0:1], 80")
    I("v_and_b32 v3, 63, v0")
    I("v_lshlrev_b32 v1, 4, v3")
    I(f"v_lshlrev_b32 v7, {7 if path == 'cons' else 10}, v3")
    I("v_lshlrev_b32 v3, 2, v3")
    I(f"v_mov_b32 v6, {LMB}")
    I("v_mov_b32 v5, 1")
    I("s_cmp_ge_u32 s3, 6")
    I("s_cselect_b32 s15, 0x40000000, 0")
    def yflag(n):
        I(f"s_waitcnt vmcnt({n})")
        if "hdst" in FLAGS: stamp()
        I("s_mov_b64 exec, 1")
        I("ds_add_rtn_u32 v4, v6, v5 offset:4")
        I("s_waitcnt lgkmcnt(0)")
        I("v_readfirstlane_b32 s12, v4")
        I("s_cmp_eq_u32 s12, 7")
        I("s_cselect_b32 exec_lo, -1, 0")
        I("buffer_store_dword v5, v7, s[44:47], s43 offen sc1")
        I("s_mov_b64 exec, -1")
    if path == "help" and HPW >= 0:
        I("v_add_u32 v2, s56, v1")
        I("s_waitcnt vmcnt(0)")
        for t in range(19):
            b, jd = divmod(t, 5)
            I(f"ds_write_b128 v2, v[{G2_ACC+4*t}:{G2_ACC+4*t+3}] offset:{jd*4096 + b*1024}")
    else:
        if FF and path == "cons":
            I("s_waitcnt vmcnt(0)")
            if "hdst" in FLAGS: stamp()
            I("s_mov_b64 exec, 0xff")
            I("buffer_store_dword v5, v7, s[44:47], s43 offen sc1")
            I("s_mov_b64 exec, -1")
        if FF and path == "conv": g2_wdma(1, yflag)
        elif HALL and path == "cons": pass
        elif path != "cons" or CLATE: g2_wdma(1)
        if HALL and path == "help":
            I("s_sub_u32 s12, s3, 4")
            I("s_mul_i32 s13, s12, 7168")
            I(f"s_mul_i32 s17, s54, {5*55296}")
            I("s_add_u32 s17, s17, s13")
            I("s_mul_i32 s18, s12, 20480")
            for jd in range(5):
                I(f"s_add_u32 m0, s18, {jd*4096}")
                I(f"s_add_u32 s58, s17, {jd*55296}")
                for b in range(4 if jd < 4 else 3):
                    I(f"buffer_load_dwordx4 v1, s[48:51], s58 offen offset:{1024*b} lds")
            I("v_lshrrev_b32 v8, 5, v3")
            I("v_mul_u32_u24 v8, 55296, v8")
            I("v_bfe_u32 v9, v3, 2, 3")
            I("v_lshl_add_u32 v8, v9, 7, v8")
            I("s_add_u32 s17, s17, 3072")
            I("s_mov_b32 exec_hi, 0xff")
            for i in range(4):
                I(f"buffer_load_dword v{G2_ACC+i}, v8, s[48:51], s17 offen offset:{1024*i}")
            I("s_mov_b64 exec, -1")
        I(f"s_add_u32 s12, s52, {4*55296}")
        I(f"buffer_load_dwordx4 v[{G2_WR}:{G2_WR+3}], v1, s[48:51], s12 offen offset:3072")
        for jd in range(5):
            I(f"s_add_u32 s12, s52, {jd*55296 + 4096}")
            I("s_add_u32 s13, s12, s15")
            for b in range(3):
                r = G2_WR + 4 + (b*5 + jd)*4
                I(f"buffer_load_dwordx4 v[{r}:{r+3}], v1, s[48:51], s{13 if b == 2 else 12} offen offset:{1024*b}")
    if path == "cons" and not FF:
        I(f"s_waitcnt vmcnt({35 if CLATE else 16})")
        I("s_mov_b64 exec, 0xff")
        I("buffer_store_dword v5, v7, s[44:47], s43 offen sc1")
        I("s_mov_b64 exec, -1")
    if path == "conv" and not FF: yflag(35)
    if HALL and path == "help": I("s_waitcnt vmcnt(0)")
    if HALL and path != "conv": I("s_barrier")
    if "hdst" in FLAGS:
        while STAMP and nst[0] < 3: stamp()
        stamp()
        I("s_waitcnt vmcnt(0)")
        stamp()
    while STAMP and nst[0] < 9: stamp()
    if "g2st" in FLAGS: nst[0] = 1
    stamp()
    G2ST[0] = nst[0]; nst[0] = 1 if path == "help" else 0
    if path != "conv": I("s_branch G2M")

def gen_g2():
    HB, RG, WR, ACC = G2_HB, G2_RG, G2_WR, G2_ACC
    e("G2M:")
    nst[0] = G2ST[0]
    I("s_lshl_b32 s14, s55, 3")
    I("s_add_u32 s14, s14, s54")
    I("s_lshl_b32 s14, s14, 7")
    masks = []
    for w in range(8):
        fb0 = 7*w - (1 if w == 7 else 0); n = 6 if w >= 6 else 7
        m = 0
        for f in range(32*fb0, 32*(fb0+n)):
            m |= 1 << (f//80 if f < 1600 else 20 + (f-1568)//80)
        masks.append(m)
    I(f"s_mov_b32 s16, {masks[0]:#x}")
    for w in range(1, 8):
        I(f"s_cmp_eq_u32 s3, {w}")
        I(f"s_cselect_b32 s16, {masks[w]:#x}, s16")
    I("s_cmp_eq_u32 s3, s57")
    I("s_cselect_b32 s16, 0x3fffff, s16")
    srd(8, 6, SZ_H, WS_H)
    I("v_add_u32 v2, s56, v1")
    if "xt" in FLAGS:
        I("s_waitcnt lgkmcnt(0)")
        srd(20, 36, SZ_SD)
        I("s_lshl_b32 s12, s55, 6")
        I("s_lshl_b32 s13, s3, 3")
        I("s_add_u32 s12, s12, s13")
        I("v_bfe_u32 v8, v0, 1, 3")
        I("v_add_u32 v8, s12, v8")
        I("v_mul_u32_u24 v8, 0x500, v8")
        I("v_and_b32 v9, 1, v0")
        I("v_mul_u32_u24 v9, 156, v9")
        I("v_add_u32 v8, v8, v9")
        I("s_mul_i32 s12, s54, 160")
        I("s_mov_b64 exec, 0xffff")
        I(f"buffer_load_dword v{HB}, v8, s[20:23], s12 offen")
        I("s_mov_b64 exec, -1")
    g2_wait("G2H", "s16")
    stamp()
    for js in range(4):
        I(f"s_add_u32 s{16+js}, s53, {js*55296}")
        I(f"s_add_u32 s{40+js}, s53, {js*55296 + 4096}")
    vq = []
    def vwait(tag):
        idxs = [i for i, t in enumerate(vq) if t == tag]
        if not idxs: return
        idx = max(idxs); n = len(vq) - 1 - idx
        I(f"s_waitcnt vmcnt({n})")
        del vq[:idx+1]
    def hld(b):
        for js in range(4):
            r = HB + (b % 5)*16 + js*4
            I(f"buffer_load_dwordx4 v[{r}:{r+3}], v1, s[8:11], s{(16 if b < 4 else 40)+js} offen offset:{1024*(b % 4)}")
            vq.append(("h", b))
    for b in range(5): hld(b)
    I("s_waitcnt vmcnt(20) lgkmcnt(0)")
    q = DSQ()
    NR = 5
    def wrd(t):
        b, jd = divmod(t, 5)
        r = RG + (t % NR)*4
        I(f"ds_read_b128 v[{r}:{r+3}], v2 offset:{jd*4096 + b*1024}")
        q.push(("w", t))
    for t in range(NR-1): wrd(t)
    srd(20, 36, SZ_SD)
    srd(24, 6, S*8, WS_ST)
    srd(28, 6, SZ_SD, WS_YT)
    srd(32, 38, SZ_SD)
    I("s_lshr_b32 s36, s3, 1")
    I("s_and_b32 s37, s3, 1")
    I("s_mov_b32 s13, 0xfc000000")
    I("s_cmp_eq_u32 s37, 0")
    I("s_cselect_b32 s13, 0x0fc00000, s13")
    I("s_cmp_eq_u32 s3, s57")
    I("s_cselect_b32 s13, 0xffc00000, s13")
    I("s_lshl_b32 s37, s37, 5")
    I("s_mul_i32 s38, s54, 80")
    I("s_add_u32 s38, s38, s37")
    I("s_lshl_b32 s39, s55, 6")
    I("v_and_b32 v7, 15, v0")
    I("v_bfe_u32 v8, v0, 4, 2")
    I("s_lshl_b32 s12, s36, 4")
    I("s_add_u32 s12, s12, s39")
    I("v_add_u32 v9, s12, v7")
    I("v_lshlrev_b32 v10, 3, v9")
    I("v_mul_u32_u24 v9, 0x500, v9")
    I("v_lshl_add_u32 v9, v8, 3, v9")
    I("s_lshl_b32 s12, s38, 1")
    I("v_add_u32 v9, s12, v9")
    I("s_lshr_b32 s12, s36, 1")
    I("s_lshl_b32 s12, s12, 5")
    I("s_add_u32 s12, s12, s39")
    I("s_lshl_b32 s12, s12, 1")
    I("v_add_u32 v11, s38, v7")
    I("v_lshlrev_b32 v11, 12, v11")
    I("v_lshl_add_u32 v11, v8, 4, v11")
    I("v_add_u32 v11, s12, v11")
    def acc(jd, js): return ACC + (js*5 + jd)*4
    XX = HB + 32; YF = HB + 48; TQ = HB + 64
    for b in range(7):
        if b == 6:
            I("s_cmp_ge_u32 s3, 6")
            I("s_cbranch_scc1 G2_skip6")
        vwait(("h", b))
        if "g2st" in FLAGS and b < 6: stamp()
        if b == 6:
            I("s_cmp_eq_u32 s3, s57")
            I("s_cbranch_scc0 G2_np")
            g2_gpoll()
            e("G2_np:")
        for jd in range(5):
            t = b*5 + jd
            if t < 19:
                q.wait_for(("w", t)); a = RG + (t % NR)*4
            else: a = WR + (t - 19)*4
            for js in range(4):
                c = acc(jd, js); bb = HB + (b % 5)*16 + js*4
                cc = "0" if b == 0 else f"v[{c}:{c+3}]"
                I(f"v_mfma_f32_16x16x32_bf16 v[{c}:{c+3}], v[{a}:{a+3}], v[{bb}:{bb+3}], {cc}")
                if js == 0 and t + NR - 1 < 19: wrd(t + NR - 1)
        if b == 0: hld(5)
        if b == 1:
            for js in range(4): I(f"s_add_u32 s{40+js}, s{40+js}, s15")
            hld(6)
        if b == 2:
            I(f"buffer_load_dwordx2 v[{XX+6}:{XX+7}], v10, s[24:27], 0 offen"); vq.append(("x", 0))
            for j in range(3):
                I(f"buffer_load_dwordx2 v[{XX+2*j}:{XX+2*j+1}], v9, s[20:23], 0 offen offset:{32*j}"); vq.append(("x", 0))
    e("G2_skip6:")
    stamp()
    I("s_cmp_eq_u32 s3, 7")
    I("s_cselect_b32 s40, 0, -1")
    I("s_mov_b32 s41, s40")
    I("s_nop 7")
    for js in range(4):
        for jd in range(5):
            c = acc(jd, js)
            if (js, jd) == (3, 4): I("s_mov_b64 exec, s[40:41]")
            I(f"ds_write_b128 v2, v[{c}:{c+3}] offset:{(js*5+jd)*1024}")
    I("s_mov_b64 exec, -1")
    def yld():
        for j in range(3):
            I(f"s_mov_b32 s12, {j*65536}")
            I(f"buffer_load_dwordx4 v[{YF+4*j}:{YF+4*j+3}], v11, s[28:31], s12 offen")
    I("s_waitcnt vmcnt(0)")
    I("s_cmp_eq_u32 s3, s57")
    I("s_cbranch_scc0 G2_yl")
    g2_publish()
    I("s_branch G2_yc")
    e("G2_yl:")
    g2_lread()
    e("G2_yc:")
    I("s_and_b32 s58, s58, s13")
    I("s_cmp_eq_u32 s58, s13")
    I("s_cselect_b32 s42, 1, 0")
    I("s_cbranch_scc0 G2_noy")
    yld()
    e("G2_noy:")
    IDB = RG
    I("s_and_b32 s12, s36, 1")
    I("s_lshl_b32 s12, s12, 4")
    I(f"v_add_u32 v{TQ}, s12, v7")
    I(f"v_lshrrev_b32 v{TQ+1}, 3, v{TQ}")
    I(f"v_cmp_eq_u32 vcc, v{TQ+1}, v8")
    I(f"v_and_b32 v{TQ+1}, 7, v{TQ}")
    I(f"v_and_b32 v{TQ+2}, 1, v{TQ+1}")
    I(f"v_lshlrev_b32 v{TQ+2}, 4, v{TQ+2}")
    I(f"v_mov_b32 v{TQ+3}, 0x3f80")
    I(f"v_lshlrev_b32 v{TQ+3}, v{TQ+2}, v{TQ+3}")
    I(f"v_lshrrev_b32 v{TQ+1}, 1, v{TQ+1}")
    I(f"v_cndmask_b32 v{TQ+3}, 0, v{TQ+3}, vcc")
    for j in range(4):
        I(f"v_cmp_eq_u32 vcc, {j}, v{TQ+1}")
        I("s_nop 1")
        I(f"v_cndmask_b32 v{IDB+j}, 0, v{TQ+3}, vcc")
    XN = RG + 4
    for j in range(3):
        t = XN + 4*j; x0 = XX + 2*j
        lo16(t, x0); hi16(t+1, x0); lo16(t+2, x0+1); hi16(t+3, x0+1)
        for r in range(4): I(f"v_add_f32 v{t+r}, v{t+r}, v{XX+7}")
        for r in range(4): I(f"v_cvt_pk_bf16_f32 v{t+r}, 0, v{t+r}")
        for r in range(4): I(f"v_mul_f32 v{t+r}, v{t+r}, v{XX+6}")
        for r in range(4): I(f"v_cvt_pk_bf16_f32 v{t+r}, 0, v{t+r}")
    I("s_mul_i32 s12, s36, 5120")
    I("s_lshl_b32 s37, s37, 6")
    I("s_add_u32 s12, s12, s37")
    I("v_add_u32 v5, s12, v1")
    I(f"v_add_u32 v10, {3*20480}, v5")
    I(f"v_add_u32 v2, {6*20480}, v5")
    I("s_waitcnt lgkmcnt(0)")
    I("s_barrier")
    stamp()
    R = WR
    for j in range(3):
        for src in range(8):
            r = R + (j*8 + src)*4
            if (j, src) == (2, 7):
                for i in range(4): I(f"v_mov_b32 v{r+i}, v{acc(4,3)+i}")
                I("s_mov_b64 exec, s[40:41]")
            I(f"ds_read_b128 v[{r}:{r+3}], v{(5, 10, 2)[src//3]} offset:{(src % 3)*20480 + j*1024}")
    I("s_mov_b64 exec, -1")
    for j in range(3):
        I(f"s_waitcnt lgkmcnt({(15, 7, 0)[j]})")
        r0 = R + j*32
        for st_ in (16, 8, 4):
            for o in range(0, st_, 2):
                I(f"v_pk_add_f32 v[{r0+o}:{r0+o+1}], v[{r0+o}:{r0+o+1}], v[{r0+st_+o}:{r0+st_+o+1}]")
        for r in range(4): I(f"v_cvt_pk_bf16_f32 v{r0+r}, 0, v{r0+r}")
    I("s_cmp_eq_u32 s42, 1")
    I("s_cbranch_scc1 G2_ydone")
    g2_wait("G2Y", "s13")
    yld()
    e("G2_ydone:")
    I("s_waitcnt vmcnt(0)")
    stamp()
    TY = HB
    for j in range(3):
        I(f"v_mfma_f32_16x16x32_bf16 v[{TY+4*j}:{TY+4*j+3}], v[{YF+4*j}:{YF+4*j+3}], v[{IDB}:{IDB+3}], 0")
    for j in range(3):
        t = TQ + 4*j; x0 = XX + 2*j
        lo16(t, x0); hi16(t+1, x0); lo16(t+2, x0+1); hi16(t+3, x0+1)
    I("s_nop 3")
    for j in range(3):
        t = TQ + 4*j; ty = TY + 4*j; xn = XN + 4*j; r0 = R + j*32
        for r in range(4): I(f"v_mul_f32 v{ty+r}, v{ty+r}, v{xn+r}")
        for r in range(4): I(f"v_cvt_pk_bf16_f32 v{ty+r}, 0, v{ty+r}")
        for r in range(4): I(f"v_add_f32 v{t+r}, v{t+r}, v{ty+r}")
        for r in range(4): I(f"v_cvt_pk_bf16_f32 v{t+r}, 0, v{t+r}")
        for r in range(4): I(f"v_add_f32 v{t+r}, v{t+r}, v{r0+r}")
        I(f"v_cvt_pk_bf16_f32 v{ty}, v{t}, v{t+1}")
        I(f"v_cvt_pk_bf16_f32 v{ty+1}, v{t+2}, v{t+3}")
        I(f"buffer_store_dwordx2 v[{ty}:{ty+1}], v9, s[32:35], 0 offen offset:{32*j}")
    if STAMP: I("s_waitcnt vmcnt(0)")
    stamp()
    stamp_dump(5)
    I("s_endpgm")
G2ST = [0]

def gen_g1b():
    NF = 10; RS = 320; MS = 32*RS; SL = 2*MS; NS = 6; NST = 20; NX = 4
    XB = NS*SL
    XS = 8192
    STB = XB + NX*XS
    CSB = STB + 1024
    I(f"s_mul_i32 s25, s25, {16*NF}")
    I(f"s_min_u32 s25, s25, {F-16*NF}")
    I("v_and_b32 v1, 63, v0")
    for f_ in FLAGS:
        if f_.startswith("gdel"): I(f"s_sleep {int(f_[4:])}")
    I("s_cmp_lt_u32 s3, 4")
    I("s_cbranch_scc1 G1_cons")
    I("s_and_b32 s26, s3, 3")
    I("s_lshl_b32 s27, s24, 7")
    I("s_lshl_b32 s28, s26, 5")
    I("s_add_u32 s27, s27, s28")
    I("v_lshrrev_b32 v12, 2, v1")
    I("v_bfe_u32 v11, v1, 3, 2")
    I("v_xor_b32 v11, v11, v1")
    I("v_and_b32 v11, 3, v11")
    I("v_add_u32 v13, s27, v12")
    I("v_lshlrev_b32 v7, 3, v13")
    I("v_mul_u32_u24 v13, 0x500, v13")
    I("v_lshl_add_u32 v13, v11, 4, v13")
    I(f"v_add_u32 v14, {16*1280-1024}, v13")
    I("s_lshl_b32 s30, s26, 11")
    I(f"s_add_u32 s30, s30, {XB}")
    I("v_lshl_add_u32 v6, v1, 4, s30")
    I("s_lshl_b32 s28, s26, 8")
    I(f"s_add_u32 s28, s28, {STB}")
    I("v_lshl_add_u32 v5, v12, 3, s28")
    I("s_lshl_b32 s27, s25, 1")
    I("s_and_b32 s28, s26, 1")
    I("s_mul_i32 s28, s28, 320")
    for i in range(5):
        I(f"v_add_u32 v20, s28, v1")
        if i: I(f"v_add_u32 v20, {64*i}, v20")
        I("v_mul_u32_u24 v21, 3277, v20")
        I("v_lshrrev_b32 v21, 16, v21")
        I("v_mul_u32_u24 v22, 20, v21")
        I("v_sub_u32 v22, v20, v22")
        I("v_bfe_u32 v23, v21, 3, 1")
        I("v_lshlrev_b32 v23, 1, v23")
        I("v_xor_b32 v22, v22, v23")
        I("v_mul_u32_u24 v21, 3456, v21")
        I("v_lshl_add_u32 v21, v22, 4, v21")
        I("v_add_u32 v21, s27, v21")
        I(f"v_subrev_u32 v{24+i}, {1024*(i%4)}, v21")
    I("s_mul_i32 s29, s26, 5120")
    I("s_waitcnt lgkmcnt(0)")
    HST = "zst" in FLAGS
    if HST: stamp()
    I("s_cmp_ge_u32 s26, 2")
    I("s_cselect_b32 s4, s18, s16")
    I("s_cselect_b32 s5, s19, s17")
    srd(8, 4, SZ_W)
    srd(12, 44, SZ_SD)
    vq = []
    def vwait(pred):
        idxs = [i for i, t in enumerate(vq) if pred(t)]
        if not idxs: return
        idx = max(idxs)
        n = len(vq) - 1 - idx
        assert n <= 63
        I(f"s_waitcnt vmcnt({n})")
        del vq[:idx+1]
    ROT = "krot" in FLAGS or "krotq" in FLAGS
    if ROT:
        if "krotq" in FLAGS:
            I("s_lshr_b32 s51, s24, 2")
            I("s_mul_i32 s51, s51, 5")
        else:
            I("s_mul_i32 s51, s24, 5")
            I("s_lshr_b32 s51, s51, 2")
        I(f"s_mul_i32 s50, s51, {32*3456}")
        I("s_lshl_b32 s51, s51, 6")
    def wdma(st):
        ops = []
        for i in range(5):
            pre = []
            if i == 0 and not ROT: pre.append(f"s_mov_b32 s28, {st*32*3456}")
            if i == 0 and ROT: pre += ["s_mov_b32 s28, s50", f"s_add_u32 s50, s50, {32*3456}", f"s_cmp_eq_u32 s50, {640*3456}", "s_cselect_b32 s50, 0, s50"]
            if i % 4 == 0: pre.append(f"s_add_u32 m0, s29, {(st % NS)*SL + (i//4)*4096}")
            ops.append(pre + [(f"buffer_load_dwordx4 v{24+i}, s[8:11], s28 offen offset:{1024*(i%4)}{WNT} lds", ("W", st))])
        return ops
    def xdma(st):
        ops = []
        for i in range(2):
            pre = []
            if i == 0 and not ROT: pre += [f"s_movk_i32 s31, {st*64}", f"s_add_u32 m0, s30, {(st % NX)*XS}"]
            if i == 0 and ROT: pre += ["s_mov_b32 s31, s51", "s_add_u32 s51, s51, 64", "s_cmpk_eq_u32 s51, 1280", "s_cselect_b32 s51, 0, s51", f"s_add_u32 m0, s30, {(st % NX)*XS}"]
            ops.append(pre + [(f"buffer_load_dwordx4 v{13+i}, s[12:15], s31 offen offset:{1024*i} lds", ("X", st))])
        return ops
    def emit(group):
        for x in group:
            if isinstance(x, tuple): I(x[0]); vq.append(x[1])
            else: I(x)
    P0 = NS
    for f_ in FLAGS:
        if f_.startswith("p0_"): P0 = int(f_[3:])
    nxt = {"W": 0, "X": 0}
    HS = 0
    for f_ in FLAGS:
        if f_.startswith("hs"): HS = int(f_[2:])
    P1 = NS
    for f_ in FLAGS:
        if f_.startswith("p1_"): P1 = int(f_[3:])
    for st in range(P1 if HS else P0):
        if HS and st == P0: I(f"s_sleep {HS}")
        if st < NX:
            for g_ in xdma(st): emit(g_)
            nxt["X"] = st + 1
        for g_ in wdma(st): emit(g_)
        nxt["W"] = st + 1
        if HST and st in (0, 1) and "zk2" not in FLAGS: stamp()
    if HST and "zk2" not in FLAGS: stamp()
    srd(20, 6, S*8, WS_ST)
    I("s_load_dwordx2 s[4:5], s[0:1], 72")
    I("s_min_u32 s48, s46, 269")
    I("s_mul_i32 s17, s48, 0xCCCD")
    I("s_lshr_b32 s17, s17, 19")
    I("s_mul_i32 s18, s17, 10")
    I("s_sub_u32 s18, s48, s18")
    I("v_and_b32 v23, 7, v0")
    I("v_bfe_u32 v17, v0, 3, 2")
    I("v_bfe_u32 v18, v0, 5, 1")
    I("s_lshl_b32 s18, s18, 6")
    I("v_lshl_add_u32 v23, v23, 3, s18")
    I("s_lshl_b32 s19, s17, 1")
    I("v_add_u32 v18, s19, v18")
    I("v_lshlrev_b32 v19, 5, v18")
    I("v_lshl_add_u32 v19, v17, 2, v19")
    I("v_mul_u32_u24 v20, 0x500, v19")
    I("v_lshl_add_u32 v20, v23, 1, v20")
    I("v_add_u32 v21, 0x5000, v20")
    I("s_mov_b32 s36, 0x05040100")
    I("s_mov_b32 s37, 0x07060302")
    I("v_lshrrev_b32 v22, 4, v23")
    I("v_mul_u32_u24 v22, 54, v22")
    I("v_add_u32 v22, v22, v18")
    I("v_lshlrev_b32 v22, 10, v22")
    I("v_lshl_add_u32 v22, v17, 8, v22")
    I("v_and_b32 v19, 15, v23")
    I("v_lshl_add_u32 v22, v19, 4, v22")
    I("s_cmp_lt_u32 s46, 270")
    I(f"s_cselect_b32 s49, {SZ_W}, 0")
    I("s_waitcnt lgkmcnt(0)")
    srd(40, 4, SZ_W)
    srd(32, 6, SZ_W, WS_WDT)
    I("s_mov_b32 s42, s49")
    I("s_mov_b32 s34, s49")
    if G2F:
        g2_setup(4)
        I(f"v_mov_b32 v140, {LMB}")
        I("v_mov_b32 v142, 0")
        I("v_mov_b32 v143, 0")
        I("ds_write_b64 v140, v[142:143]")
        I("v_lshlrev_b32 v100, 4, v1")
        I("s_cmp_ge_u32 s3, 6")
        I("s_cselect_b32 s39, 0x40000000, 0")
        I("s_bfe_u32 s38, s2, 0x20005")
        I("s_mul_i32 s38, s38, 280")
        I("s_mul_i32 s58, s26, 70")
        I("s_add_u32 s38, s38, s58")
        for i in range(2):
            I(f"v_add_u32 v101, s38, v1")
            if i: I("v_add_u32 v101, 6, v101")
            I("v_mul_u32_u24 v102, 4682, v101")
            I("v_lshrrev_b32 v102, 20, v102")
            I("v_mul_u32_u24 v103, 224, v102")
            I("v_sub_u32 v101, v101, v103")
            I("v_lshlrev_b32 v101, 7, v101")
            I("v_mul_u32_u24 v102, 55296, v102")
            I(f"v_add_u32 v{104+i}, v101, v102")
        I(f"s_mul_i32 s38, s54, {5*55296}")
    XA = 32; TT = 40; SM = 48; SQ = 50; STA = 52; RAW = 64
    for j in range(4): I(f"v_mov_b32 v{SM+j}, 0")
    WLK = 6; WPK = 10
    for f_ in FLAGS:
        if f_.startswith("wlk"): WLK = int(f_[3:])
        if f_.startswith("wpk"): WPK = int(f_[3:])
    if G2F: WLK = WPK = 99
    def statops():
        ops = []
        for rg in range(2):
            for c in range(4):
                r = XA + 4*rg + c; t = TT + 2*(c & 1)
                ops += [f"v_lshlrev_b32 v{t}, 16, v{r}", f"v_and_b32 v{t+1}, 0xffff0000, v{r}",
                        f"v_add_f32 v{SM+rg}, v{SM+rg}, v{t}", f"v_fmac_f32 v{SQ+rg}, v{t}, v{t}",
                        f"v_add_f32 v{SM+rg}, v{SM+rg}, v{t+1}", f"v_fmac_f32 v{SQ+rg}, v{t+1}, v{t+1}"]
        return ops
    for k in range(NST + 1):
        dm = []
        if k >= 1:
            for _ in range(2):
                if nxt["X"] <= min(NST-1, max(NX-1, k+2)): dm += xdma(nxt["X"]); nxt["X"] += 1
                if nxt["W"] <= min(NST-1, max(NS-1, k+3)): dm += wdma(nxt["W"]); nxt["W"] += 1
        if k == WLK:
            for i in range(8):
                b = 20 if i < 4 else 21
                dm.append([(f"buffer_load_dwordx4 v[{RAW+4*i}:{RAW+3+4*i}], v{b}, s[40:43], 0 offen offset:{(i%4)*1280}", ("T", 0))])
        if G2F and HPW >= 0 and HPW <= k:
            for t in range((k - HPW)*HPN, min(35, (k - HPW + 1)*HPN if k < NST else 35)):
                b, jd = divmod(t, 5)
                r = G2_ACC + 4*t if t < 19 else G2_WR + 4*(t - 19)
                pre = [f"s_add_u32 s58, s52, {jd*55296 + (b//4)*4096}"]
                if b == 6: pre.append("s_add_u32 s58, s58, s39")
                dm.append(pre + [(f"buffer_load_dwordx4 v[{r}:{r+3}], v100, s[48:51], s58 offen offset:{1024*(b % 4)}", ("G", 0))])
        if G2F and k == HTK:
            for i in range(2):
                dm.append([(f"buffer_load_dword v{101+i}, v{104+i}, s[48:51], s38 offen", ("G", 0))])
        va = []
        if k >= 1:
            for rg in range(2):
                I(f"ds_read_b128 v[{XA+4*rg}:{XA+4*rg+3}], v6 offset:{((k-1) % NX)*XS + 1024*rg}")
            va = statops() if "nostat" not in FLAGS else []
        if WPK <= k < WPK + 4:
            for dd in range(2*(k-WPK), 2*(k-WPK)+2):
                ob = RAW + 32 + 4*dd
                sel = 36 + (dd & 1)
                for q in range(4):
                    va.append(f"v_perm_b32 v{ob+q}, v{RAW+4*(2*q+1)+dd//2}, v{RAW+4*(2*q)+dd//2}, s{sel}")
                va.append((f"buffer_store_dwordx4 v[{ob}:{ob+3}], v22, s[32:35], 0 offen offset:{16*dd}{SCW}", ("S", 0)))
        nfirst = min(2, len(dm))
        for g_ in dm[:nfirst]: emit(g_)
        rest = dm[nfirst:]
        if k == WPK: vwait(lambda t: t[0] == "T")
        if va: I("s_waitcnt lgkmcnt(0)")
        step = max(1, len(va) // (len(rest) + 1)) if rest else 0
        ri = 0
        for i, o in enumerate(va):
            emit([o])
            if rest and ri < len(rest) and (i + 1) % step == 0:
                emit(rest[ri]); ri += 1
        for g_ in rest[ri:]: emit(g_)
        if k < NST:
            ZK = (0, 1, 2) if "zk2" not in FLAGS else (3, 4, 5)
            if HST and k in ZK: stamp()
            vwait(lambda t: t in (("W", k), ("X", k)))
            if HST and k in ZK: stamp()
            I("s_barrier")
            if HST and k in ZK and "zk2" in FLAGS: stamp()
    V4 = [SM, SM+1, SQ, SQ+1]
    I("s_nop 1")
    for dpp in ("quad_perm:[1,0,3,2]", "quad_perm:[2,3,0,1]"):
        for i, a in enumerate(V4): I(f"v_add_f32_dpp v{TT+i}, v{a}, v{a} {dpp} row_mask:0xf bank_mask:0xf")
        for i, a in enumerate(V4): I(f"v_mov_b32 v{a}, v{TT+i}")
    R2 = range(2)
    for a in V4: I(f"v_mul_f32 v{a}, {1.0/640.0!r}, v{a}")
    for rg in R2: I(f"v_fma_f32 v{SQ+rg}, -v{SM+rg}, v{SM+rg}, v{SQ+rg}")
    for rg in R2:
        I(f"v_cvt_pk_bf16_f32 v{STA+2*rg+1}, 0, -v{SM+rg}")
        I(f"v_cvt_pk_bf16_f32 v{SQ+rg}, 0, v{SQ+rg}")
    for rg in R2: I(f"v_add_f32 v{SQ+rg}, {1e-5!r}, v{SQ+rg}")
    for rg in R2: I(f"v_cvt_pk_bf16_f32 v{SQ+rg}, 0, v{SQ+rg}")
    for rg in R2: I(f"v_sqrt_f32 v{SQ+rg}, v{SQ+rg}")
    I("s_nop 0")
    for rg in R2: I(f"v_cvt_pk_bf16_f32 v{SQ+rg}, 0, v{SQ+rg}")
    for rg in R2: I(f"v_rcp_f32 v{STA+2*rg}, v{SQ+rg}")
    I("s_nop 0")
    for rg in R2: I(f"ds_write_b64 v5, v[{STA+2*rg}:{STA+2*rg+1}] offset:{128*rg}")
    I("s_waitcnt lgkmcnt(0)")
    I("s_barrier")
    if G2F:
        I("s_barrier")
        g2_head("help")
    else:
        for rg in R2: I(f"buffer_store_dwordx2 v[{STA+2*rg}:{STA+2*rg+1}], v7, s[20:23], 0 offen offset:{128*rg}")
        if HST:
            stamp_dump(5); nst[0] = 1
        I("s_endpgm")
    e("G1_cons:")
    I("s_and_b32 s31, s3, 1")
    I("s_lshr_b32 s33, s3, 1")
    I("s_lshl_b32 s27, s24, 3")
    I("s_lshl_b32 s26, s31, 2")
    I("s_add_u32 s26, s26, s27")
    I("s_mul_i32 s27, s26, 55296")
    I("v_lshl_add_u32 v9, v1, 4, s27")
    I("v_bfe_u32 v17, v0, 4, 2")
    I("v_and_b32 v18, 15, v0")
    I("v_bfe_u32 v19, v0, 1, 2")
    I("v_xor_b32 v19, v19, v17")
    I("v_lshlrev_b32 v6, 6, v18")
    I("v_lshl_add_u32 v6, v19, 4, v6")
    I("s_lshl_b32 s30, s31, 12")
    I(f"s_add_u32 s30, s30, {XB}")
    I("v_add_u32 v6, s30, v6")
    I("s_lshl_b32 s30, s31, 9")
    I(f"s_add_u32 s30, s30, {STB}")
    I("v_lshl_add_u32 v7, v18, 3, s30")
    I("s_mul_i32 s30, s3, 320")
    I(f"s_add_u32 s30, s30, {CSB}")
    I("v_lshl_add_u32 v8, v17, 4, s30")
    I("s_xor_b32 s30, s3, 1")
    I("s_mul_i32 s30, s30, 320")
    I(f"s_add_u32 s30, s30, {CSB}")
    I("v_lshl_add_u32 v10, v17, 4, s30")
    I("v_bfe_u32 v18, v0, 2, 2")
    I("v_lshl_add_u32 v19, v17, 3, v18")
    I(f"v_mul_u32_u24 v19, {RS}, v19")
    I("v_and_b32 v18, 3, v0")
    I("v_lshl_add_u32 v19, v18, 3, v19")
    I("s_mul_i32 s27, s33, 160")
    I("v_add_u32 v19, s27, v19")
    I("v_and_b32 v18, 1, v17")
    I("v_lshlrev_b32 v18, 5, v18")
    I("s_lshl_b32 s27, s33, 1")
    I("s_sub_u32 s27, 1, s27")
    I("v_mul_lo_u32 v18, v18, s27")
    I(f"s_mul_i32 s27, s31, {MS}")
    I(f"s_sub_u32 s28, {MS}, s27")
    I("v_add_u32 v2, v19, v18")
    I("v_sub_u32 v3, v19, v18")
    for mm in range(2):
        for rg in range(2):
            for par in range(2):
                d = 11 + 4*mm + 2*rg + par
                I(f"v_add_u32 v{d}, s{27+mm}, v{2+par}")
                if rg: I(f"v_add_u32 v{d}, {3*SL}, v{d}")
    BB = 20; AF = 52; ONE = 68; CS = 72; ACC = 92; LA = 2
    for f_ in FLAGS:
        if f_.startswith("la"): LA = int(f_[2:])
    for j in range(4): I(f"v_mov_b32 v{ONE+j}, 0x3f803f80")
    I("s_waitcnt lgkmcnt(0)")
    srd(20, 6, SZ_H, WS_H)
    PFD = 0
    for f_ in FLAGS:
        if f_.startswith("pfd"): PFD = int(f_[3:])
    PFW = [None]
    if PFD:
        I("s_cmp_eq_u32 s3, 1")
        I("s_cselect_b32 s8, s18, s16")
        I("s_cselect_b32 s9, s19, s17")
        I("s_cmp_eq_u32 s3, 2")
        I("s_cselect_b32 s8, s44, s8")
        I("s_cselect_b32 s9, s45, s9")
        I(f"s_mov_b32 s10, {SZ_W}")
        I(f"s_cselect_b32 s10, {SZ_SD}, s10")
        I("s_mov_b32 s11, 0x00020000")
        I("s_cselect_b32 s12, 24, 20")
        I(f"s_mov_b32 s13, {128*3456}")
        I(f"s_cselect_b32 s13, 256, s13")
        I("s_cmp_eq_u32 s3, 3")
        I("s_cselect_b32 s12, 0, s12")
        I("s_mul_i32 s14, s47, s12")
        I("v_add_u32 v4, s14, v1")
        I("v_lshlrev_b32 v5, 7, v4")
        I("v_lshrrev_b32 v19, 1, v4")
        I("v_mul_u32_u24 v19, 0x500, v19")
        I("v_and_b32 v4, 1, v4")
        I("v_lshl_add_u32 v4, v4, 7, v19")
        I("v_min_u32 v5, 442240, v5")
        I("s_cmp_eq_u32 s3, 2")
        I("s_cselect_b64 vcc, -1, 0")
        I("v_cndmask_b32 v4, v5, v4, vcc")
        I("v_cmp_gt_u32 s[14:15], s12, v1")
        I("s_mov_b32 s16, 0")
        if "pfs0" in FLAGS: I("s_mov_b32 s16, s13")
        def pf():
            I("s_mov_b64 exec, s[14:15]")
            I("buffer_load_dword v19, v4, s[8:11], s16 offen")
            I("s_mov_b64 exec, -1")
            I("s_add_u32 s16, s16, s13")
        PFW[0] = pf
        PQ = [0]*5
        for f_ in FLAGS:
            if f_.startswith("pq"): PQ = [int(x) for x in f_[2:].split("_")]
        for g_ in range(1 if "pfs0" in FLAGS else 0, min(5, PFD)):
            if PQ[g_]: I(f"s_sleep {PQ[g_]}")
            pf()
    WPF = -1
    for f_ in FLAGS:
        if f_.startswith("wpf"): WPF = int(f_[3:])
    if WPF >= 0:
        I("s_load_dwordx2 s[36:37], s[0:1], 72")
        I("s_and_b32 s38, s3, 1")
        I("s_mul_i32 s38, s38, 176")
        I("s_add_u32 s38, s38, s47")
        I("s_min_u32 s38, s38, 269")
        I("s_mul_i32 s39, s38, 0xCCCD")
        I("s_lshr_b32 s39, s39, 19")
        I("s_mul_i32 s40, s39, 10")
        I("s_sub_u32 s40, s38, s40")
        I("s_mul_i32 s41, s39, 81920")
        I("s_lshl_b32 s40, s40, 7")
        I("s_add_u32 s41, s41, s40")
        I("v_mul_u32_u24 v5, 0x500, v1")
        I("s_cmp_ge_u32 s3, 2")
        I(f"s_cselect_b32 s38, {SZ_W}, 0")
        I("s_mov_b32 s39, 0x00020000")
        I("s_waitcnt lgkmcnt(0)")
    def acc(m, j, js): return ACC + ((m*5 + j)*4 + js)*4
    seq = [(m, j) for m in range(2) for j in range(5)]
    NQ = len(seq)
    dq = []
    def dwait(tags):
        idxs = [i for i, t in enumerate(dq) if t in tags]
        if not idxs: return
        idx = max(idxs); n = len(dq) - 1 - idx
        assert n <= 15
        I(f"s_waitcnt lgkmcnt({n})")
        del dq[:idx+1]
    def rdx(gpos):
        st, idx = divmod(gpos, NQ)
        m, j = seq[idx]
        slot = st % NS
        a = AF + (gpos % 4)*4
        va = 11 + 4*m + 2*(slot // 3) + (j & 1)
        off = (slot % 3)*SL + j*32
        return [f"ds_read_b64_tr_b16 v[{a}:{a+1}], v{va} offset:{off}",
                f"ds_read_b64_tr_b16 v[{a+2}:{a+3}], v{va} offset:{off+4*RS}"]
    def xrd(st, js):
        b = BB + (st & 1)*16 + js*4
        I(f"ds_read_b128 v[{b}:{b+3}], v6 offset:{(st % NX)*XS + js*1024}")
        dq.append(("X", st))
    stamp()
    I("s_barrier")
    stamp()
    for js in range(4): xrd(0, js)
    for i in range(LA):
        for x in rdx(i): I(x); dq.append(("A", i))
    for st in range(NST):
        if st + 1 < NST: I("s_barrier")
        if "stamp3" in FLAGS and st in (1, 5, 10): stamp()
        PFE = 4
        for f_ in FLAGS:
            if f_.startswith("pfe"): PFE = int(f_[3:])
        if PFD and st % PFE == 0 and st//PFE + PFD < (3 if ("cpf" in FLAGS or "cpf0" in FLAGS) else 5): PFW[0]()
        if st == WPF: I("buffer_load_dword v254, v5, s[36:39], s41 offen")
        for idx in range(NQ):
            gpos = st*NQ + idx
            rr = rdx(gpos + LA) if gpos + LA < NST*NQ else None
            dwait([("A", gpos), ("X", st)])
            m, j = seq[idx]
            a = AF + (gpos % 4)*4
            for js in range(4):
                c = acc(m, j, js); b = BB + (st & 1)*16 + js*4
                cc = "0" if st == 0 else f"v[{c}:{c+3}]"
                I(f"v_mfma_f32_16x16x32_bf16 v[{c}:{c+3}], v[{a}:{a+3}], v[{b}:{b+3}], {cc}")
                if rr and js < 2: I(rr[js]); dq.append(("A", gpos + LA))
                if js == 2 and st + 1 < NST and 1 <= idx <= 4: xrd(st + 1, idx - 1)
            if m == 0 and "nocs" not in FLAGS:
                c = CS + 4*j
                cc = "0" if st == 0 else f"v[{c}:{c+3}]"
                I(f"v_mfma_f32_16x16x32_bf16 v[{c}:{c+3}], v[{a}:{a+3}], v[{ONE}:{ONE+3}], {cc}")
    stamp()
    for j in range(5): I(f"ds_write_b128 v8, v[{CS+4*j}:{CS+4*j+3}] offset:{64*j}")
    I("s_lshr_b32 s34, s25, 5")
    I("s_lshl_b32 s34, s34, 10")
    if G2F:
        if XL: I("s_lshr_b32 s43, s40, 1")
        else:
            I("s_mul_i32 s43, s41, 6")
            I("s_lshr_b32 s42, s40, 2")
            I("s_add_u32 s43, s43, s42")
        I("s_lshl_b32 s43, s43, 1")
        I("s_add_u32 s43, s43, s33")
        I("s_lshl_b32 s43, s43, 2")
        I("s_lshl_b32 s42, s24, 1")
        I("s_add_u32 s42, s42, s31")
        I("s_lshl_b32 s42, s42, 10")
        I("s_add_u32 s43, s43, s42")
        g2_setup(4)
        srd(8, 6, S*8, WS_ST)
        I("v_lshlrev_b32 v5, 4, v1")
        I("s_lshl_b32 s42, s26, 7")
        I("v_lshl_add_u32 v4, v1, 3, s42")
        I("s_cmp_eq_u32 s33, 0")
        I("s_cselect_b32 s12, 0xffff, 0")
        I("s_mov_b32 s13, 0")
    I("s_waitcnt lgkmcnt(0)")
    I("s_barrier")
    CP2 = 20; STR = 40
    for js in range(4): I(f"ds_read_b64 v[{STR+2*js}:{STR+2*js+1}], v7 offset:{128*js}")
    for j in range(5): I(f"ds_read_b128 v[{CP2+4*j}:{CP2+4*j+3}], v10 offset:{64*j}")
    EP2 = "ep2" in FLAGS
    if EP2: I("s_waitcnt lgkmcnt(0)")
    if G2F:
        assert EP2
        I("s_barrier")
        if not CLATE: g2_wdma(5)
        I("s_mov_b64 exec, s[12:13]")
        for js in range(4): I(f"buffer_store_dwordx2 v[{STR+2*js}:{STR+2*js+1}], v4, s[8:11], 0 offen offset:{128*js}{SCH}")
        I("s_mov_b64 exec, -1")
    for m in range(2 if not EP2 else 0):
        I(f"s_waitcnt lgkmcnt({5 if m == 0 else 0})")
        for j in range(5):
            cs = (CS if m == 0 else CP2) + 4*j
            for js in range(4):
                c = acc(m, j, js); sr = STR + 2*js
                for hh in range(2):
                    I(f"v_pk_fma_f32 v[{c+2*hh}:{c+2*hh+1}], v[{cs+2*hh}:{cs+2*hh+1}], v[{sr}:{sr+1}], v[{c+2*hh}:{c+2*hh+1}] op_sel:[0,1,0] op_sel_hi:[1,1,1]")
            for js in range(4):
                c = acc(m, j, js); sr = STR + 2*js
                for hh in range(2):
                    I(f"v_pk_mul_f32 v[{c+2*hh}:{c+2*hh+1}], v[{c+2*hh}:{c+2*hh+1}], v[{sr}:{sr+1}] op_sel:[0,0] op_sel_hi:[1,0]")
    cnt = [0]
    def hq(j, js, dst, t):
        g = acc(0, j, js); u = acc(1, j, js)
        if EP2:
            sr = STR + 2*js
            for (c, cs) in ((g, CS + 4*j), (u, CP2 + 4*j)):
                for hh in range(2):
                    I(f"v_pk_fma_f32 v[{c+2*hh}:{c+2*hh+1}], v[{cs+2*hh}:{cs+2*hh+1}], v[{sr}:{sr+1}], v[{c+2*hh}:{c+2*hh+1}] op_sel:[0,1,0] op_sel_hi:[1,1,1]")
            for c in (g, u):
                for hh in range(2):
                    I(f"v_pk_mul_f32 v[{c+2*hh}:{c+2*hh+1}], v[{c+2*hh}:{c+2*hh+1}], v[{sr}:{sr+1}] op_sel:[0,0] op_sel_hi:[1,0]")
            for c in (g, u):
                for r in range(4): I(f"v_cvt_pk_bf16_f32 v{c+r}, 0, v{c+r}")
            for hh in range(2):
                I(f"v_pk_mul_f32 v[{g+2*hh}:{g+2*hh+1}], v[{g+2*hh}:{g+2*hh+1}], v[{u+2*hh}:{u+2*hh+1}]")
            I(f"v_cvt_pk_bf16_f32 v{dst}, v{g}, v{g+1}")
            I(f"v_cvt_pk_bf16_f32 v{dst+1}, v{g+2}, v{g+3}")
            return
        I(f"v_cvt_pk_bf16_f32 v{t}, v{g}, v{g+1}")
        I(f"v_cvt_pk_bf16_f32 v{t+1}, v{g+2}, v{g+3}")
        I(f"v_cvt_pk_bf16_f32 v{t+2}, v{u}, v{u+1}")
        I(f"v_cvt_pk_bf16_f32 v{t+3}, v{u+2}, v{u+3}")
        lo16(g, t); hi16(g+1, t); lo16(g+2, t+1); hi16(g+3, t+1)
        lo16(u, t+2); hi16(u+1, t+2); lo16(u+2, t+3); hi16(u+3, t+3)
        for r in range(4):
            I(f"v_mul_f32 v{g+r}, v{g+r}, v{u+r}")
        I(f"v_cvt_pk_bf16_f32 v{dst}, v{g}, v{g+1}")
        I(f"v_cvt_pk_bf16_f32 v{dst+1}, v{g+2}, v{g+3}")
    def epi(fq):
        units = [((0, 1), 0, 0), ((2, 3), 1, 0), ((4,), 2, 0)] if fq == 0 else [((0,), 2, 8), ((1, 2), 3, 0), ((3, 4), 4, 0)]
        for js in range(4):
            I(f"s_add_u32 s35, s34, {js*55296}")
            I(f"s_add_u32 s36, s34, {js*55296 + 4096}")
            for (jl, blk, ho) in units:
                t = 24 + (cnt[0] % 4) * 12; cnt[0] += 1
                if EP2: t = 44 + (cnt[0] % 5) * 4
                for hh, j in enumerate(jl): hq(j, js, t+4+2*hh, t)
                so, off = ("s35", 1024*blk + ho) if blk < 4 else ("s36", ho)
                if len(jl) == 2:
                    I(f"buffer_store_dwordx4 v[{t+4}:{t+7}], v9, s[20:23], {so} offen offset:{off}{SCH}")
                else:
                    I(f"buffer_store_dwordx2 v[{t+4}:{t+5}], v9, s[20:23], {so} offen offset:{off}{SCH}")
    I("s_cmp_eq_u32 s33, 0")
    I("s_cbranch_scc0 G1_epi1")
    epi(0)
    I("s_branch G1_epid")
    e("G1_epi1:")
    epi(1)
    e("G1_epid:")
    if G2F:
        stamp()
        g2_head("cons")
        return
    if STAMP: I("s_waitcnt vmcnt(0)")
    stamp()
    stamp_dump(5)
    wgt_end(1)
    I("s_endpgm")

def gen_g1f2():
    NF = 10; RS = 320; MS = 32*RS; SL = 2*MS; NS = 6; NST = 20; DWP = 5
    XB = NS*SL
    XP = 18432; XR = 144
    STL = XB + 2*XP
    CN = "nocn" not in FLAGS
    I(f"s_mul_i32 s25, s25, {16*NF}")
    I(f"s_min_u32 s25, s25, {F-16*NF}")
    I("v_and_b32 v1, 63, v0")
    I("s_and_b32 s26, s3, 3")
    I(f"s_mul_i32 s30, s26, {32*XR}")
    I(f"s_add_u32 s30, s30, {XB}")
    I("s_lshl_b32 s31, s26, 9")
    I(f"s_add_u32 s31, s31, {STL}")
    I("v_lshl_add_u32 v8, v1, 3, s31")
    I("s_lshl_b32 s27, s24, 3")
    I("s_lshl_b32 s26, s26, 1")
    I("s_add_u32 s26, s26, s27")
    I("s_mul_i32 s27, s26, 20480")
    I("v_lshrrev_b32 v12, 3, v1")
    I("v_and_b32 v11, 7, v1")
    I("v_mul_u32_u24 v13, 0x500, v12")
    I("v_lshl_add_u32 v13, v11, 4, v13")
    I("v_add_u32 v13, s27, v13")
    for rg in range(1, 4): I(f"v_add_u32 v{13+rg}, {rg*10240}, v13")
    I(f"v_mul_u32_u24 v5, {XR}, v12")
    I("v_lshl_add_u32 v5, v11, 4, v5")
    I("v_add_u32 v5, s30, v5")
    I("s_cmp_lt_u32 s3, 4")
    I("s_cbranch_scc1 G1_cons")
    RAW = 64
    def raw(rg, p): return RAW + (p*4 + rg)*4
    I("s_lshl_b32 s27, s26, 7")
    I("v_lshl_add_u32 v7, v12, 3, s27")
    I("s_waitcnt lgkmcnt(0)")
    srd(12, 44, SZ_SD)
    srd(20, 6, S*8, WS_ST)
    for p in range(10):
        for rg in range(4):
            r = raw(rg, p)
            I(f"buffer_load_dwordx4 v[{r}:{r+3}], v{13+rg}, s[12:15], 0 offen offset:{128*p}")
    SM = 24; SS = 32; TT = 40; STA = 48
    for j in range(16): I(f"v_mov_b32 v{SM+j}, 0")
    I("s_mov_b32 s49, 0x3f803f80")
    vq = [("Q", i) for i in range(40)]
    def vwait(pred):
        idxs = [i for i, t in enumerate(vq) if pred(t)]
        if not idxs: return
        idx = max(idxs)
        n = len(vq) - 1 - idx
        assert n <= 63
        I(f"s_waitcnt vmcnt({n})")
        del vq[:idx+1]
    def pdma(st):
        I(f"s_mov_b32 s28, {st*32*3456}")
        for i in range(5):
            if i % 4 == 0: I(f"s_add_u32 m0, s29, {(st % NS)*SL + (i//4)*4096}")
            I(f"buffer_load_dwordx4 v{224+i}, s[8:11], s28 offen offset:{1024*(i%4)} lds")
            vq.append(("D", st))
    I("s_lshl_b32 s27, s25, 1")
    I("s_and_b32 s28, s3, 1")
    I("s_lshl_b32 s28, s28, 4")
    for i in range(5):
        I(f"v_add_u32 v20, {64*i}, v1")
        I("v_mul_u32_u24 v21, 3277, v20")
        I("v_lshrrev_b32 v21, 16, v21")
        I("v_mul_u32_u24 v22, 20, v21")
        I("v_sub_u32 v22, v20, v22")
        I("v_add_u32 v21, s28, v21")
        I("v_bfe_u32 v23, v21, 3, 1")
        I("v_lshlrev_b32 v23, 1, v23")
        I("v_xor_b32 v22, v22, v23")
        I("v_mul_u32_u24 v21, 3456, v21")
        I("v_lshl_add_u32 v21, v22, 4, v21")
        I("v_add_u32 v21, s27, v21")
        I(f"v_subrev_u32 v{224+i}, {1024*(i%4)}, v21")
    I("s_sub_u32 s29, s3, 4")
    I("s_mul_i32 s29, s29, 5120")
    I("s_cmp_ge_u32 s3, 6")
    I("s_cselect_b32 s4, s18, s16")
    I("s_cselect_b32 s5, s19, s17")
    srd(8, 4, SZ_W)
    DSCH = {5: [0], 8: [1], 9: [2]}
    for f_ in FLAGS:
        if f_ == "dsch1": DSCH = {3: [0], 6: [1], 9: [2]}
        if f_ == "dsch2": DSCH = {7: [0], 9: [1, 2]}
        if f_ == "dsch3": DSCH = {-1: [0], 5: [1], 9: [2]}
    for st in DSCH.get(-1, []): pdma(st)
    for p in range(10):
        vwait(lambda t: t[0] == "Q" and t[1] <= 4*p + 3)
        for c in range(4):
            for rg in range(4):
                r = raw(rg, p) + c
                I(f"v_dot2_f32_bf16 v{SM+2*rg+(c&1)}, v{r}, s49, v{SM+2*rg+(c&1)}")
                I(f"v_dot2_f32_bf16 v{SS+2*rg+(c&1)}, v{r}, v{r}, v{SS+2*rg+(c&1)}")
        for st in DSCH.get(p, []): pdma(st)
    I("s_nop 3")
    V8 = [SM+2*rg for rg in range(4)] + [SS+2*rg for rg in range(4)]
    for a in V8: I(f"v_add_f32 v{a}, v{a}, v{a+1}")
    for i_, dpp in enumerate(("quad_perm:[1,0,3,2]", "quad_perm:[2,3,0,1]", "row_half_mirror")):
        sr, ds_ = (0, 1) if i_ % 2 == 0 else (1, 0)
        for a in V8: I(f"v_add_f32_dpp v{a+ds_}, v{a+sr}, v{a+sr} {dpp} row_mask:0xf bank_mask:0xf")
    R4 = range(4)
    for a in V8: I(f"v_mul_f32 v{a}, {1.0/640.0!r}, v{a+1}")
    for rg in R4: I(f"v_fma_f32 v{SS+2*rg}, -v{SM+2*rg}, v{SM+2*rg}, v{SS+2*rg}")
    for rg in R4:
        I(f"v_cvt_pk_bf16_f32 v{STA+2*rg+1}, 0, -v{SM+2*rg}")
        I(f"v_cvt_pk_bf16_f32 v{SS+2*rg}, 0, v{SS+2*rg}")
    for rg in R4: I(f"v_add_f32 v{SS+2*rg}, {1e-5!r}, v{SS+2*rg}")
    for rg in R4: I(f"v_cvt_pk_bf16_f32 v{SS+2*rg}, 0, v{SS+2*rg}")
    for rg in R4: I(f"v_sqrt_f32 v{SS+2*rg}, v{SS+2*rg}")
    I("s_nop 0")
    for rg in R4: I(f"v_cvt_pk_bf16_f32 v{SS+2*rg}, 0, v{SS+2*rg}")
    for rg in R4: I(f"v_rcp_f32 v{STA+2*rg}, v{SS+2*rg}")
    I("s_mov_b32 s50, 0x3f80")
    I("s_mov_b32 s51, 0x3f800000")
    if CN: I(f"ds_write_b64 v8, v[{STA+6}:{STA+7}]")
    def norm_ops(r, R_, M_, tt, wr, fast=False):
        o = []
        if fast:
            for c in range(4):
                o.append(f"v_dot2_f32_bf16 v{tt+2*c}, v{r+c}, s50, v{M_}")
                o.append(f"v_dot2_f32_bf16 v{tt+2*c+1}, v{r+c}, s51, v{M_}")
            for c in range(8): o.append(f"v_cvt_pk_bf16_f32 v{tt+c}, 0, v{tt+c}")
            for c in range(4): o.append(f"v_pk_mul_f32 v[{tt+2*c}:{tt+2*c+1}], v[{tt+2*c}:{tt+2*c+1}], v[{R_}:{R_+1}] op_sel_hi:[1,0]")
        else:
            for c in range(4):
                o.append(f"v_lshlrev_b32 v{tt+2*c}, 16, v{r+c}")
                o.append(f"v_and_b32 v{tt+2*c+1}, 0xffff0000, v{r+c}")
            for c in range(8): o.append(f"v_add_f32 v{tt+c}, v{tt+c}, v{M_}")
            for c in range(8): o.append(f"v_cvt_pk_bf16_f32 v{tt+c}, 0, v{tt+c}")
            for c in range(8): o.append(f"v_mul_f32 v{tt+c}, v{tt+c}, v{R_}")
        for c in range(4): o.append(f"v_cvt_pk_bf16_f32 v{r+c}, v{tt+2*c}, v{tt+2*c+1}")
        o.append(wr)
        return o
    def hnorm(p, rgs, fast=False):
        o = []
        for rg in rgs:
            r = raw(rg, p)
            o += norm_ops(r, STA + 2*rg, STA + 2*rg + 1, TT, f"ds_write_b128 v5, v[{r}:{r+3}] offset:{(p & 1)*XP + rg*8*XR}", fast)
        return o
    HST = "hst" in FLAGS
    hn = [0]
    def hstamp(k):
        if HST and k in (12, 13):
            I(f"s_memtime s[{60+2*hn[0]}:{61+2*hn[0]}]"); hn[0] += 1
    for k in range(NST):
        hstamp(k)
        if k == 0:
            for x in hnorm(0, (0, 1, 2, 3), fast=True): I(x)
            pdma(3); pdma(4)
        else:
            dl = []
            if k >= 2 and k - 2 + DWP < NST:
                st = k - 2 + DWP
                for i in range(5):
                    pre = [f"s_mov_b32 s28, {st*32*3456}"] if i == 0 else []
                    if i % 4 == 0: pre.append(f"s_add_u32 m0, s29, {(st % NS)*SL + (i//4)*4096}")
                    dl.append(pre + [f"buffer_load_dwordx4 v{224+i}, s[8:11], s28 offen offset:{1024*(i%4)} lds"])
                    vq.append(("D", st))
            hstamp(k)
            p = (k-1)//2 + 1
            o = []
            if p < 10:
                o = hnorm(p, (0, 1, 2) if (CN and p >= 2) else (0, 1, 2, 3))
                h = len(o)//2
                o = (o[:h] if (k-1) % 2 == 0 else o[h:])
            stepd = max(1, len(o)//5)
            for i_, x in enumerate(o):
                if i_ % stepd == 0 and dl:
                    for y in dl.pop(0): I(y)
                I(x)
            for d_ in dl:
                for y in d_: I(y)
        if k == 1:
            for rg in R4:
                I(f"buffer_store_dwordx2 v[{STA+2*rg}:{STA+2*rg+1}], v7, s[20:23], 0 offen offset:{64*rg}")
                vq.append(("S", rg))
        hstamp(k)
        vwait(lambda t: t == ("D", k))
        hstamp(k)
        I("s_waitcnt lgkmcnt(0)")
        hstamp(k)
        I("s_barrier")
    if HST:
        I("s_waitcnt lgkmcnt(0) vmcnt(0)")
        I("s_cmp_lg_u32 s2, 5")
        I("s_cbranch_scc1 HS_skip")
        I("s_cmp_lg_u32 s3, 4")
        I("s_cbranch_scc1 HS_skip")
        I("s_load_dwordx2 s[56:57], s[0:1], 88")
        I("s_waitcnt lgkmcnt(0)")
        I("s_mov_b32 s58, 256")
        I("s_mov_b32 s59, 0x00020000")
        I("v_mov_b32 v1, 0")
        for i in range(hn[0]):
            I(f"s_sub_u32 s{61+2*i}, s{60+2*i}, s60")
            I(f"v_mov_b32 v2, s{61+2*i}")
            I(f"buffer_store_dword v2, v1, s[56:59], 0 offen offset:{128+4*i}")
        I("s_waitcnt vmcnt(0)")
        e("HS_skip:")
    I("s_endpgm")
    e("G1_cons:")
    BB = 24; AF = 56; ACC = 80; LA = 2
    CR_ = 72; CT = 240; CS = 248
    I("v_mov_b32 v250, v16")
    I(f"v_add_u32 v251, {24*XR}, v5")
    I("v_mov_b32 v252, v8")
    I("s_load_dwordx2 s[4:5], s[0:1], 72")
    CSL = 48
    for f_ in FLAGS:
        if f_.startswith("csl"): CSL = int(f_[3:])
    if CSL: I(f"s_sleep {CSL}")
    I("s_waitcnt lgkmcnt(0)")
    srd(12, 44, SZ_SD)
    I("s_cmp_ge_u32 s3, 2")
    I("s_cbranch_scc1 G1_cpf")
    I("s_mul_i32 s46, s3, 176")
    I("s_add_u32 s46, s46, s47")
    I("s_cmp_ge_u32 s46, 270")
    I("s_cbranch_scc1 G1_cgo")
    I("s_mul_i32 s36, s46, 0xCCCD")
    I("s_lshr_b32 s36, s36, 19")
    I("s_mul_i32 s37, s36, 10")
    I("s_sub_u32 s37, s46, s37")
    I("v_and_b32 v23, 7, v0")
    I("v_bfe_u32 v17, v0, 3, 2")
    I("v_bfe_u32 v18, v0, 5, 1")
    I("s_lshl_b32 s37, s37, 6")
    I("v_lshl_add_u32 v23, v23, 3, s37")
    I("s_lshl_b32 s36, s36, 1")
    I("v_add_u32 v18, s36, v18")
    I("v_lshlrev_b32 v19, 5, v18")
    I("v_lshl_add_u32 v19, v17, 2, v19")
    I("v_mul_u32_u24 v20, 0x500, v19")
    I("v_lshl_add_u32 v20, v23, 1, v20")
    I("v_add_u32 v21, 0x5000, v20")
    srd(8, 4, SZ_W)
    srd(32, 6, SZ_W, WS_WDT)
    for i in range(8):
        b = 20 if i < 4 else 21
        I(f"buffer_load_dwordx4 v[{ACC+4*i}:{ACC+3+4*i}], v{b}, s[8:11], 0 offen offset:{(i%4)*1280}")
    I("s_mov_b32 s36, 0x05040100")
    I("s_mov_b32 s37, 0x07060302")
    I("v_lshrrev_b32 v22, 4, v23")
    I("v_mul_u32_u24 v22, 54, v22")
    I("v_add_u32 v22, v22, v18")
    I("v_lshlrev_b32 v22, 10, v22")
    I("v_lshl_add_u32 v22, v17, 8, v22")
    I("v_and_b32 v19, 15, v23")
    I("v_lshl_add_u32 v22, v19, 4, v22")
    I("s_waitcnt vmcnt(0)")
    for dd in range(8):
        ob = ACC + 32 + 4*dd
        sel = 36 + (dd & 1)
        for q in range(4):
            I(f"v_perm_b32 v{ob+q}, v{ACC+4*(2*q+1)+dd//2}, v{ACC+4*(2*q)+dd//2}, s{sel}")
    for dd in range(8):
        ob = ACC + 32 + 4*dd
        I(f"buffer_store_dwordx4 v[{ob}:{ob+3}], v22, s[32:35], 0 offen offset:{16*dd}")
    I("s_waitcnt vmcnt(0)")
    I("s_branch G1_cgo")
    e("G1_cpf:")
    if "nopfm" not in FLAGS:
        I("s_cmp_ge_u32 s3, 3")
        I("s_cselect_b32 s8, s18, s16")
        I("s_cselect_b32 s9, s19, s17")
        I("s_mul_i32 s27, s47, 12800")
        I(f"s_mov_b32 s10, {SZ_W}")
        I("s_mov_b32 s11, 0x00020000")
        I("v_lshlrev_b32 v17, 4, v1")
        for i in range(13):
            I(f"buffer_load_dwordx4 v[{ACC+4*i}:{ACC+3+4*i}], v17, s[8:11], s27 offen")
            I("s_add_u32 s27, s27, 1024")
        I("s_waitcnt vmcnt(0)")
    e("G1_cgo:")
    I("s_and_b32 s31, s3, 1")
    I("s_lshr_b32 s33, s3, 1")
    I("s_lshl_b32 s27, s24, 3")
    I("s_lshl_b32 s26, s31, 2")
    I("s_add_u32 s26, s26, s27")
    I("s_mul_i32 s27, s26, 55296")
    I("v_lshl_add_u32 v9, v1, 4, s27")
    I("v_bfe_u32 v17, v0, 4, 2")
    I("v_and_b32 v18, 15, v0")
    I(f"v_mul_u32_u24 v6, {XR}, v18")
    I("v_lshl_add_u32 v6, v17, 4, v6")
    I(f"s_mul_i32 s30, s31, {64*XR}")
    I(f"s_add_u32 s30, s30, {XB}")
    I("v_add_u32 v6, s30, v6")
    I("v_bfe_u32 v18, v0, 2, 2")
    I("v_lshl_add_u32 v19, v17, 3, v18")
    I(f"v_mul_u32_u24 v19, {RS}, v19")
    I("v_and_b32 v18, 3, v0")
    I("v_lshl_add_u32 v19, v18, 3, v19")
    I("s_mul_i32 s27, s33, 160")
    I("v_add_u32 v19, s27, v19")
    I("v_and_b32 v20, 1, v17")
    I("v_lshlrev_b32 v20, 5, v20")
    I("s_lshl_b32 s27, s33, 1")
    I("s_sub_u32 s27, 1, s27")
    I("v_mul_lo_u32 v20, v20, s27")
    I("v_add_u32 v11, v19, v20")
    I("v_sub_u32 v12, v19, v20")
    I(f"v_add_u32 v13, {3*SL}, v11")
    I(f"v_add_u32 v14, {3*SL}, v12")
    srd(20, 6, SZ_H, WS_H)
    for f_ in FLAGS:
        if f_.startswith("la"): LA = int(f_[2:])
    def acc(m, j, js): return ACC + ((m*5 + j)*4 + js)*4
    seq = [(m, j) for m in range(2) for j in range(5)]
    NQ = len(seq)
    dq = []
    def dwait(tags):
        idxs = [i for i, t in enumerate(dq) if t in tags]
        if not idxs: return
        idx = max(idxs); n = len(dq) - 1 - idx
        assert n <= 15
        I(f"s_waitcnt lgkmcnt({n})")
        del dq[:idx+1]
    def rdx(gpos):
        st, idx = divmod(gpos, NQ)
        m, j = seq[idx]
        slot = st % NS
        a = AF + (gpos % 4)*4
        va = 11 + 2*(slot // 3) + (j & 1)
        off = (slot % 3)*SL + m*MS + j*32
        return [f"ds_read_b64_tr_b16 v[{a}:{a+1}], v{va} offset:{off}",
                f"ds_read_b64_tr_b16 v[{a+2}:{a+3}], v{va} offset:{off+4*RS}"]
    def xrd(st, js):
        b = BB + (st & 1)*16 + js*4
        I(f"ds_read_b128 v[{b}:{b+3}], v6 offset:{((st >> 1) & 1)*XP + js*16*XR + (st & 1)*64}")
        dq.append(("X", st))
    def cld(P):
        r = CR_ + (P & 1)*4
        I(f"buffer_load_dwordx4 v[{r}:{r+3}], v250, s[12:15], 0 offen offset:{128*P}")
    if CN: cld(2); cld(3)
    stamp()
    I("s_barrier")
    stamp()
    for js in range(4): xrd(0, js)
    if CN:
        I(f"ds_read_b64 v[{CS}:{CS+1}], v252"); dq.append(("X", 0))
    for i in range(LA):
        for x in rdx(i): I(x); dq.append(("A", i))
    for st in range(NST):
        cw = []
        if CN and st >= 1:
            P = (st + 3)//2
            if 2 <= P <= 9:
                r = CR_ + (P & 1)*4
                o = norm_ops(r, CS, CS+1, CT, f"ds_write_b128 v251, v[{r}:{r+3}] offset:{(P & 1)*XP}")
                h = len(o)//2
                cw = o[:h] if st == 2*P - 3 else o[h:]
                if st == 2*P - 3: cw = [f"s_waitcnt vmcnt({1 if P < 9 else 0})"] + cw
                elif P + 2 <= 9: cw = cw + [("L", P + 2)]
        if st + 1 < NST:
            dwait([("XW", 0)])
            I("s_barrier")
        if "stamp3" in FLAGS and st in (1, 5, 10): stamp()
        nslot = 24
        for idx in range(NQ):
            gpos = st*NQ + idx
            rr = rdx(gpos + LA) if gpos + LA < NST*NQ else None
            dwait([("A", gpos), ("X", st)])
            m, j = seq[idx]
            a = AF + (gpos % 4)*4
            for js in range(4):
                c = acc(m, j, js); b = BB + (st & 1)*16 + js*4
                cc = "0" if st == 0 else f"v[{c}:{c+3}]"
                I(f"v_mfma_f32_16x16x32_bf16 v[{c}:{c+3}], v[{a}:{a+3}], v[{b}:{b+3}], {cc}")
                if rr and js < 2: I(rr[js]); dq.append(("A", gpos + LA))
                if js == 2 and st + 1 < NST and 1 <= idx <= 4: xrd(st + 1, idx - 1)
                if js >= 1 and cw:
                    x = cw.pop(0)
                    if isinstance(x, tuple): cld(x[1])
                    else:
                        I(x)
                        if x.startswith("ds_write"): dq.append(("XW", 0))
                        if x.startswith("s_waitcnt") and cw: I(cw.pop(0))
        assert not cw
    stamp()
    I("s_lshr_b32 s34, s25, 5")
    I("s_lshl_b32 s34, s34, 10")
    I("s_nop 7")
    I("s_nop 3")
    cnt = [0]
    def hq(j, js, dst, t):
        g = acc(0, j, js); u = acc(1, j, js)
        I(f"v_cvt_pk_bf16_f32 v{t}, v{g}, v{g+1}")
        I(f"v_cvt_pk_bf16_f32 v{t+1}, v{g+2}, v{g+3}")
        I(f"v_cvt_pk_bf16_f32 v{t+2}, v{u}, v{u+1}")
        I(f"v_cvt_pk_bf16_f32 v{t+3}, v{u+2}, v{u+3}")
        lo16(g, t); hi16(g+1, t); lo16(g+2, t+1); hi16(g+3, t+1)
        lo16(u, t+2); hi16(u+1, t+2); lo16(u+2, t+3); hi16(u+3, t+3)
        for r in range(4):
            I(f"v_mul_f32 v{g+r}, v{g+r}, v{u+r}")
        I(f"v_cvt_pk_bf16_f32 v{dst}, v{g}, v{g+1}")
        I(f"v_cvt_pk_bf16_f32 v{dst+1}, v{g+2}, v{g+3}")
    def epi(fq):
        units = [((0, 1), 0, 0), ((2, 3), 1, 0), ((4,), 2, 0)] if fq == 0 else [((0,), 2, 8), ((1, 2), 3, 0), ((3, 4), 4, 0)]
        for js in range(4):
            I(f"s_add_u32 s35, s34, {js*55296}")
            I(f"s_add_u32 s36, s34, {js*55296 + 4096}")
            for (jl, blk, ho) in units:
                t = 24 + (cnt[0] % 4) * 12; cnt[0] += 1
                for hh, j in enumerate(jl): hq(j, js, t+4+2*hh, t)
                so, off = ("s35", 1024*blk + ho) if blk < 4 else ("s36", ho)
                if len(jl) == 2:
                    I(f"buffer_store_dwordx4 v[{t+4}:{t+7}], v9, s[20:23], {so} offen offset:{off}")
                else:
                    I(f"buffer_store_dwordx2 v[{t+4}:{t+5}], v9, s[20:23], {so} offen offset:{off}")
    I("s_cmp_eq_u32 s33, 0")
    I("s_cbranch_scc0 G1_epi1")
    epi(0)
    I("s_branch G1_epid")
    e("G1_epi1:")
    epi(1)
    e("G1_epid:")
    if STAMP: I("s_waitcnt vmcnt(0)")
    stamp()
    stamp_dump(5)
    wgt_end(1)
    I("s_endpgm")

def g1_epi(NF, acc):
    I("s_lshr_b32 s34, s25, 5")
    I("s_lshl_b32 s34, s34, 10")
    I("s_add_u32 s35, s34, 4096")
    I("s_nop 7")
    I("s_nop 3")
    for js in range(2):
        for jp in range(NF//2):
            t = 24 + ((js*5 + jp) % 4) * 12
            for hh in range(2):
                jf = 2*jp + hh
                g = acc(0, jf, js); u = acc(1, jf, js)
                I(f"v_cvt_pk_bf16_f32 v{t}, v{g}, v{g+1}")
                I(f"v_cvt_pk_bf16_f32 v{t+1}, v{g+2}, v{g+3}")
                I(f"v_cvt_pk_bf16_f32 v{t+2}, v{u}, v{u+1}")
                I(f"v_cvt_pk_bf16_f32 v{t+3}, v{u+2}, v{u+3}")
                lo16(g, t); hi16(g+1, t); lo16(g+2, t+1); hi16(g+3, t+1)
                lo16(u, t+2); hi16(u+1, t+2); lo16(u+2, t+3); hi16(u+3, t+3)
                for r in range(4):
                    I(f"v_mul_f32 v{g+r}, v{g+r}, v{u+r}")
                I(f"v_cvt_pk_bf16_f32 v{t+4+2*hh}, v{g}, v{g+1}")
                I(f"v_cvt_pk_bf16_f32 v{t+5+2*hh}, v{g+2}, v{g+3}")
            if jp < 4:
                I(f"buffer_store_dwordx4 v[{t+4}:{t+7}], v{9+js}, s[20:23], s34 offen offset:{1024*jp}")
            else:
                I(f"buffer_store_dwordx4 v[{t+4}:{t+7}], v{9+js}, s[20:23], s35 offen")
    if STAMP: I("s_waitcnt vmcnt(0)")
    stamp()
    stamp_dump(5)
    wgt_end(1)
    I("s_endpgm")

def gen_k2():
    kernel_header("mid_kernel")
    if BIG:
        I("s_cmp_ge_u32 s2, 256")
        I("s_cbranch_scc1 M_exit")
        wgt_start()
        I("s_load_dwordx2 s[6:7], s[0:1], 96")
        I("v_lshrrev_b32 v1, 6, v0")
        I("s_nop 0")
        I("v_readfirstlane_b32 s3, v1")
        I("s_lshr_b32 s40, s2, 3")
        I("s_bfe_u32 s41, s2, 0x10002")
        I("s_and_b32 s42, s2, 3")
        I("s_lshl_b32 s43, s41, 2")
        I("s_sub_u32 s43, 24, s43")
        if XL:
            I("s_and_b32 s42, s2, 7")
            I("s_mov_b32 s43, 22")
            I("s_mov_b32 s41, 1")
        if "kvall" in FLAGS:
            I("s_and_b32 s8, s3, 1")
            I("s_lshl_b32 s8, s8, 3")
            I("s_add_u32 s8, s8, 8")
            I("s_load_dwordx2 s[8:9], s[0:1], s8")
            I("s_lshr_b32 s12, s3, 1")
            I("s_cmp_gt_u32 s12, s41")
            I("s_cbranch_scc1 M_nokvpf")
            if XL:
                I("s_mul_i32 s13, s42, 160")
                I("s_and_b32 s13, s13, 0xffffff80")
            else:
                I("s_mul_i32 s13, s42, 192")
                I("s_add_u32 s13, s13, 512")
                I("s_and_b32 s13, s13, 0xffffff80")
                I("s_lshl_b32 s14, s42, 7")
                I("s_cmp_eq_u32 s41, 0")
                I("s_cselect_b32 s13, s14, s13")
            I("s_lshl_b32 s12, s12, 7")
            I("s_add_u32 s13, s13, s12")
            I("s_mul_i32 s12, s40, 81920")
            I("s_add_u32 s13, s13, s12")
            I("v_and_b32 v1, 63, v0")
            I("v_mul_u32_u24 v1, 0x500, v1")
            I(f"s_mov_b32 s10, {SZ_SD}")
            I("s_mov_b32 s11, 0x00020000")
            I("s_waitcnt lgkmcnt(0)")
            for f_ in FLAGS:
                if f_.startswith("kvd"): I(f"s_sleep {int(f_[3:])}")
            I("buffer_load_dword v255, v1, s[8:11], s13 offen")
            e("M_nokvpf:")
            I("s_waitcnt lgkmcnt(0)")
        I("s_cmp_ge_u32 s40, s43")
        I("s_cbranch_scc1 M_conv")
        if "nog1" in FLAGS: I("s_endpgm")
        I("s_mul_i32 s24, s42, s43")
        I("s_add_u32 s24, s24, s40")
        if not XL:
            I("s_mul_i32 s25, s41, 96")
            I("s_add_u32 s24, s24, s25")
        W0 = 6 if "prod" in FLAGS else 4
        if FUSE:
            stamp()
            I("s_load_dwordx4 s[16:19], s[0:1], 56")
            I("s_load_dwordx2 s[44:45], s[0:1], 0")
            I("s_mov_b32 s47, s24")
        I(f"s_sub_u32 s25, s3, {W0}")
        I("s_mul_i32 s25, s25, 176")
        I("s_add_u32 s24, s24, s25")
        if FUSE:
            I("s_mov_b32 s46, s24")
        else:
            I(f"s_cmp_ge_u32 s3, {W0}")
            I("s_cbranch_scc1 M_wdt")
        I("s_lshl_b32 s24, s42, 2")
        I("s_and_b32 s25, s40, 3")
        I("s_add_u32 s24, s24, s25")
        I("s_mul_i32 s25, s41, 6")
        I("s_lshr_b32 s26, s40, 2")
        I("s_add_u32 s25, s25, s26")
        if XL:
            I("s_lshl_b32 s24, s42, 1")
            I("s_and_b32 s25, s40, 1")
            I("s_add_u32 s24, s24, s25")
            I("s_lshr_b32 s25, s40, 1")
        if FUSE and "g1b" in FLAGS: gen_g1b()
        elif FUSE and "f2" in FLAGS: gen_g1f2()
        elif FUSE: gen_g1fuse()
        else: gen_g1big()
    else:
        gen_g1old()
    gen_aux()

def gen_g1old():
    I(f"s_cmp_ge_u32 s2, {N_G1+N_CV}")
    I("s_cbranch_scc1 M_exit")
    I("s_load_dwordx2 s[6:7], s[0:1], 96")
    I(f"s_cmp_ge_u32 s2, {N_G1}")
    I("s_cbranch_scc1 M_conv")
    if "nog1" in FLAGS: I("s_endpgm")
    stamp()
    if "prio" in FLAGS: I("s_setprio 3")
    I("s_load_dwordx4 s[16:19], s[0:1], 56")
    I("v_lshrrev_b32 v1, 6, v0")
    I("s_nop 0")
    I("v_readfirstlane_b32 s3, v1")
    I("s_waitcnt lgkmcnt(0)")
    if "stamp2" in FLAGS: stamp()
    I("s_cmp_ge_u32 s3, 2")
    I("s_cselect_b32 s4, s18, s16")
    I("s_cselect_b32 s5, s19, s17")
    srd(8, 4, SZ_W)
    srd(12, 6, SZ_SD, WS_XN)
    srd(20, 6, SZ_H, WS_H)
    if "g12d" in FLAGS:
        I("s_and_b32 s24, s2, 3")
        I("s_lshl_b32 s24, s24, 2")
        I("s_bfe_u32 s25, s2, 0x20003")
        I("s_add_u32 s24, s24, s25")
        I("s_bfe_u32 s25, s2, 0x10002")
        I("s_lshl_b32 s25, s25, 3")
        I("s_lshr_b32 s26, s2, 5")
        I("s_add_u32 s25, s25, s26")
    else:
        I("s_and_b32 s24, s2, 15")
        I("s_lshr_b32 s25, s2, 4")
    I(f"s_mul_i32 s25, s25, {BF}")
    I(f"s_min_u32 s25, s25, {F-BF}")
    I("v_and_b32 v1, 63, v0")
    if "pf" in FLAGS:
        I("s_lshr_b32 s26, s2, 3")
        I("s_lshl_b32 s27, s26, 1")
        I("s_and_b32 s28, s3, 1")
        I("s_add_u32 s27, s27, s28")
        I("s_mul_i32 s27, s27, 34560")
        I("s_bfe_u32 s28, s2, 0x10002")
        I("s_mul_i32 s28, s28, 1792")
        I("s_add_u32 s27, s27, s28")
        I("v_lshrrev_b32 v192, 5, v1")
        I("v_mul_u32_u24 v192, 3456, v192")
        I("v_and_b32 v193, 31, v1")
        I("v_lshl_add_u32 v192, v193, 6, v192")
        I("v_add_u32 v192, s27, v192")
        for i in range(5):
            I(f"s_mov_b32 s27, {i*6912}")
            I(f"buffer_load_dword v{194+i}, v192, s[8:11], s27 offen")
        I("s_and_b32 s27, s2, 3")
        I("s_mul_i32 s27, s27, 655360")
        I("s_lshl_b32 s28, s26, 2")
        I("s_add_u32 s28, s28, s3")
        I("s_mul_i32 s28, s28, 5120")
        I("s_add_u32 s27, s27, s28")
        I("v_lshlrev_b32 v193, 6, v1")
        I("buffer_load_dword v199, v193, s[12:15], s27 offen")
        I("buffer_load_dword v200, v193, s[12:15], s27 offen offset:1024")
    I("v_lshrrev_b32 v10, 4, v1")
    I("v_bfe_u32 v11, v1, 1, 3")
    I("v_and_b32 v12, 1, v1")
    I("s_and_b32 s26, s3, 1")
    I("s_lshl_b32 s26, s26, 4")
    I("s_lshl_b32 s27, s25, 1")
    for i in range(4):
        bit = (i >> 1) & 1
        I(f"v_or_b32 v13, {bit<<2}, v10")
        I("v_xor_b32 v13, v13, v11")
        I(f"v_add_u32 v14, {4*i}, v10")
        I("v_add_u32 v14, s26, v14")
        I("v_mul_u32_u24 v14, 3456, v14")
        I("v_lshl_add_u32 v14, v13, 5, v14")
        I("v_lshl_add_u32 v14, v12, 4, v14")
        I("v_add_u32 v14, s27, v14")
        I(f"v_subrev_u32 v14, {1024*i}, v14")
        I("v_cmp_eq_u32 vcc, 7, v13")
        I("v_mov_b32 v15, 0x40000000")
        I("s_nop 0")
        I(f"v_cndmask_b32 v{2+i}, v14, v15, vcc")
    I("v_bfe_u32 v17, v0, 4, 2")
    I("s_lshl_b32 s26, s24, 3")
    I("s_lshl_b32 s27, s3, 1")
    I("s_add_u32 s26, s26, s27")
    I("s_mul_i32 s27, s26, 20480")
    I("v_lshl_add_u32 v6, v1, 4, s27")
    I("v_add_u32 v7, 20480, v6")
    I("s_mul_i32 s27, s26, 55296")
    I("v_lshl_add_u32 v8, v1, 4, s27")
    I("v_add_u32 v9, 55296, v8")
    I("v_bfe_u32 v18, v0, 2, 2")
    I("v_lshl_add_u32 v19, v17, 3, v18")
    I("v_lshlrev_b32 v19, 8, v19")
    I("v_and_b32 v20, 1, v17")
    I("v_lshl_or_b32 v20, v20, 2, v18")
    I("v_lshl_add_u32 v19, v20, 5, v19")
    I("v_and_b32 v18, 3, v0")
    I("v_lshl_add_u32 v19, v18, 3, v19")
    VA = 10
    I("v_mov_b32 v24, v19")
    for jf in range(7):
        I(f"v_xor_b32 v{VA+jf}, {jf<<5}, v24")
        I(f"v_add_u32 v{VA+7+jf}, 0x10000, v{VA+jf}")
    I("s_lshl_b32 s29, s3, 12")
    BB = 24
    AF = 64
    ACC = 80
    def acc(m, jf, js): return ACC + ((m*7 + jf)*2 + js)*4
    def bfr(st, js): return BB + (st % NSLOT)*8 + js*4
    NST = 20
    def issue(slot):
        I(f"s_add_u32 s30, s29, {slot*SLOT}")
        I("s_mov_b32 m0, s30")
        for i in range(4):
            I(f"buffer_load_dwordx4 v{2+i}, s[8:11], s28 offen offset:{1024*i} lds")
        for js in range(2):
            r = BB + slot*8 + js*4
            I(f"buffer_load_dwordx4 v[{r}:{r+3}], v{6+js}, s[12:15], s31 offen")
        I("s_add_u32 s36, s36, 1")
        I("s_cmp_ge_u32 s36, 20")
        I("s_cselect_b32 s36, 0, s36")
        I("s_add_u32 s37, s37, 1")
        I(f"s_mul_i32 s28, s36, {32*3456}")
        I("s_lshl_b32 s31, s36, 10")
        I("s_cmp_ge_u32 s37, 20")
        I("s_cselect_b32 s28, 0x40000000, s28")
        I("s_cselect_b32 s31, 0x40000000, s31")
    if "rot" in FLAGS:
        I("s_and_b32 s36, s24, 3")
        I("s_mul_i32 s36, s36, 5")
        I("s_lshr_b32 s37, s2, 5")
        I("s_mul_i32 s37, s37, 3")
        I("s_add_u32 s36, s36, s37")
        I("s_cmp_ge_u32 s36, 20")
        I("s_cselect_b32 s37, 20, 0")
        I("s_sub_u32 s36, s36, s37")
    else:
        I("s_mov_b32 s36, 0")
    I("s_mov_b32 s37, 0")
    I(f"s_mul_i32 s28, s36, {32*3456}")
    I("s_lshl_b32 s31, s36, 10")
    if "stamp2" in FLAGS: stamp()
    for st in range(NSLOT - 1):
        issue(st)
    if "stamp2" in FLAGS: stamp()
    for j in range(112):
        I(f"v_mov_b32 v{ACC+j}, 0")
    I("s_mov_b32 s33, 0")
    stamp()
    def body(last):
      for slot in range(NSLOT):
        if not last or slot <= 1:
            I(f"s_waitcnt vmcnt({6*(NSLOT-2)})")
        else:
            I(f"s_waitcnt vmcnt({6*(NSLOT-1-slot)})")
        I("s_barrier")
        if not last or slot == 0:
            issue((slot + NSLOT - 1) % NSLOT)
        seq = [(m, jf) for m in range(2) for jf in range(7)]
        def rd(idx):
            m, jf = seq[idx]
            a = AF + (idx % 4)*4
            if slot < 4:
                va = VA + jf; off = slot*SLOT + m*8192
            else:
                va = VA + 7 + jf; off = m*8192
            I(f"ds_read_b64_tr_b16 v[{a}:{a+1}], v{va} offset:{off}")
            I(f"ds_read_b64_tr_b16 v[{a+2}:{a+3}], v{va} offset:{off+1024}")
        for i in range(3):
            rd(i)
        for idx in range(14):
            if idx + 3 < 14:
                rd(idx + 3)
                I("s_waitcnt lgkmcnt(6)")
            else:
                I(f"s_waitcnt lgkmcnt({2*(13-idx)})")
            m, jf = seq[idx]
            a = AF + (idx % 4)*4
            for js in range(2):
                c = acc(m, jf, js); b = BB + slot*8 + js*4
                I(f"v_mfma_f32_16x16x32_bf16 v[{c}:{c+3}], v[{a}:{a+3}], v[{b}:{b+3}], v[{c}:{c+3}]")
    XS = "xs" in FLAGS
    LA = 3
    for f in FLAGS:
        if f.startswith("la"): LA = int(f[2:])
    RING = [64,68,72,76,192,196,200] if LA > 3 else [64,68,72,76,192]
    seq = [(m, jf) for m in range(2) for jf in range(7)]
    ring = [0]
    def rdx(slot, idx, pos):
        m, jf = seq[idx]
        a = RING[pos % len(RING)]
        if slot < 4:
            va = VA + jf; off = slot*SLOT + m*8192
        else:
            va = VA + 7 + jf; off = m*8192
        return [f"ds_read_b64_tr_b16 v[{a}:{a+1}], v{va} offset:{off}",
                f"ds_read_b64_tr_b16 v[{a+2}:{a+3}], v{va} offset:{off+1024}"]
    def body_xs(last):
      for slot in range(NSLOT):
        fin_stage = last and slot == NSLOT-1
        if not fin_stage:
            if not last or slot <= 1:
                I("s_waitcnt vmcnt(12)")
            else:
                I(f"s_waitcnt vmcnt({6*(NSLOT-2-slot)})")
            if "g1nobar" not in FLAGS: I("s_barrier")
        if (not last or slot == 0) and "g1noload" not in FLAGS:
            issue((slot + NSLOT - 1) % NSLOT)
        for idx in range(14 if "g1nocomp" not in FLAGS else 0):
            pos = idx + 14*slot
            if idx + LA < 14:
                rr = rdx(slot, idx + LA, pos + LA)
            elif not fin_stage:
                rr = rdx((slot + 1) % NSLOT, idx + LA - 14, pos + LA)
            else:
                rr = None
            I(f"s_waitcnt lgkmcnt({2*(LA-1) if not fin_stage else 2*min(LA-1, 13-idx)})")
            m, jf = seq[idx]
            a = RING[pos % len(RING)]
            for js in range(2):
                c = acc(m, jf, js); b = BB + slot*8 + js*4
                I(f"v_mfma_f32_16x16x32_bf16 v[{c}:{c+3}], v[{a}:{a+3}], v[{b}:{b+3}], v[{c}:{c+3}]")
                if rr: I(rr[js])
    if XS:
        I("s_waitcnt vmcnt(18)")
        I("s_barrier")
        for i in range(LA):
            for x in rdx(0, i, i): I(x)
    e("G1_loop:")
    (body_xs if XS else body)(False)
    I("s_add_u32 s33, s33, 1")
    I(f"s_cmp_lt_u32 s33, {NST//NSLOT - 1}")
    I("s_cbranch_scc1 G1_loop")
    (body_xs if XS else body)(True)
    stamp()
    I("s_waitcnt vmcnt(0)")
    I("s_nop 7")
    I("s_nop 3")
    T = 24
    for js in range(2):
        for jf in range(7):
            g = acc(0, jf, js); u = acc(1, jf, js)
            t = T + ((js*7 + jf) % 4) * 8
            I(f"v_cvt_pk_bf16_f32 v{t}, v{g}, v{g+1}")
            I(f"v_cvt_pk_bf16_f32 v{t+1}, v{g+2}, v{g+3}")
            I(f"v_cvt_pk_bf16_f32 v{t+2}, v{u}, v{u+1}")
            I(f"v_cvt_pk_bf16_f32 v{t+3}, v{u+2}, v{u+3}")
            lo16(g, t); hi16(g+1, t); lo16(g+2, t+1); hi16(g+3, t+1)
            lo16(u, t+2); hi16(u+1, t+2); lo16(u+2, t+3); hi16(u+3, t+3)
            for r in range(4):
                I(f"v_mul_f32 v{g+r}, v{g+r}, v{u+r}")
            I(f"v_cvt_pk_bf16_f32 v{t+4}, v{g}, v{g+1}")
            I(f"v_cvt_pk_bf16_f32 v{t+5}, v{g+2}, v{g+3}")
            I(f"s_add_u32 s34, s25, {16*jf}")
            I("s_lshr_b32 s35, s34, 5")
            I("s_lshl_b32 s35, s35, 10")
            I("s_and_b32 s34, s34, 16")
            I("s_lshr_b32 s34, s34, 1")
            I("s_add_u32 s35, s35, s34")
            I(f"buffer_store_dwordx2 v[{t+4}:{t+5}], v{8+js}, s[20:23], s35 offen")
    I("s_waitcnt vmcnt(0)")
    stamp()
    stamp_dump(5)
    I("s_endpgm")

def gen_aux():
    e("M_conv:")
    if "noconv" in FLAGS: I("s_endpgm")
    XREG = 7680; CST = 576 if "cst" in FLAGS else 800; HBUF = 8*CST; WREG = 20480
    CMG = "cmg" in FLAGS
    if CMG: CST = 320; HBUF = 16*CST; HHI = 8*CST
    CM4 = "cm4" in FLAGS
    if CM4: HBUF = 8*CST; HHI = 4*CST
    stamp()
    I("s_load_dwordx4 s[16:19], s[0:1], 32")
    if FUSE:
        I("s_load_dwordx4 s[44:47], s[0:1], 8")
        I("s_load_dwordx2 s[48:49], s[0:1], 24")
    if BIG:
        I("s_sub_u32 s24, 32, s43")
        I("s_mul_i32 s24, s24, s42")
        I("s_add_u32 s24, s24, s40")
        I("s_sub_u32 s24, s24, s43")
        if not XL:
            I("s_lshl_b32 s25, s41, 5")
            I("s_add_u32 s24, s24, s25")
        I("s_lshl_b32 s24, s24, 3")
        I("s_add_u32 s24, s24, s3")
    else:
        I("v_lshrrev_b32 v1, 6, v0")
        I("s_nop 0")
        I("v_readfirstlane_b32 s3, v1")
        I(f"s_sub_u32 s25, s2, {N_G1}")
        I("s_cmp_ge_u32 s25, 128")
        I("s_cbranch_scc1 M_aux_hi")
        I("s_mov_b32 s24, s25")
        I("s_cmp_eq_u32 s3, 3")
        I("s_cbranch_scc1 M_wdt")
        I("s_mul_i32 s24, s25, 3")
        I("s_add_u32 s24, s24, s3")
        I("s_branch M_conv2")
        e("M_aux_hi:")
        I("s_sub_u32 s25, s25, 128")
        I("s_lshl_b32 s25, s25, 1")
        I("s_add_u32 s24, s25, s3")
        I("s_add_u32 s24, s24, 126")
        I("s_cmp_ge_u32 s3, 2")
        I("s_cbranch_scc1 M_wdt")
        I("s_add_u32 s24, s25, s3")
        I("s_add_u32 s24, s24, 384")
    e("M_conv2:")
    I("s_waitcnt lgkmcnt(0)")
    if "cst2" in FLAGS: stamp()
    srd(8, 16, SZ_SD)
    if FUSE:
        I("s_sub_u32 s25, s24, s3")
        I("s_lshl_b32 s25, s25, 3")
        I("s_load_dwordx16 s[84:99], s[48:49], s25")
        srd(32, 44, SZ_SD)
        srd(36, 46, SZ_SD)
    else:
        srd(12, 6, SZ_SD, WS_KVR)
    srd(20, 6, SZ_SD, WS_YT)
    I("s_lshr_b32 s25, s24, 1")
    I("s_lshl_b32 s25, s25, 2")
    I("s_load_dword s26, s[18:19], s25")
    I("v_and_b32 v1, 63, v0")
    I("s_lshl_b32 s27, s24, 12")
    I("v_lshl_add_u32 v2, v1, 4, s27")
    if CMG:
        I("v_lshrrev_b32 v3, 5, v1")
        I("v_mul_u32_u24 v3, 1536, v3")
        I("v_add_u32 v2, v2, v3")
    XLD = 16
    for j in range(4 if not FUSE else 0):
        I(f"buffer_load_dwordx4 v[{XLD+4*j}:{XLD+4*j+3}], v2, s[12:15], 0 offen offset:{1024*j}")
    HW0, HW1 = 32, 40
    I("v_subrev_u32 v13, 64, v2")
    I("v_mov_b32 v5, 0x40000000")
    I("v_cmp_gt_u32 vcc, 4, v1")
    I("s_nop 1")
    I("v_cndmask_b32 v4, v13, v5, vcc")
    I("v_add_u32 v6, 16, v13")
    I("v_cmp_gt_u32 vcc, 3, v1")
    I("s_nop 1")
    I("v_cndmask_b32 v6, v6, v5, vcc")
    CV2 = "cv2" in FLAGS
    def hwloads():
        I(f"buffer_load_dwordx4 v[{HW0}:{HW0+3}], v4, s[8:11], 0 offen")
        I(f"buffer_load_dwordx4 v[{HW0+4}:{HW0+7}], v6, s[8:11], 0 offen")
        I(f"buffer_load_dwordx4 v[{HW1}:{HW1+3}], v2, s[8:11], 0 offen offset:{192 if CMG else 448}")
        I(f"buffer_load_dwordx4 v[{HW1+4}:{HW1+7}], v2, s[8:11], 0 offen offset:{208 if CMG else 464}")
    if not CV2: hwloads()
    KP, KO, VV, KF, PP, TC, OO = 132, 144, 160, 176, 190, 222, 230
    if FUSE:
        I("s_sub_u32 s25, s24, s3")
        I("s_lshl_b32 s25, s25, 1")
        I("v_mul_u32_u24 v50, 5120, v0")
        I("v_add_u32 v50, s25, v50")
        I("s_cmp_eq_u32 s3, 0")
        I("s_cselect_b32 s25, 0x40000000, -3840")
        I("v_add_u32 v51, s25, v50")
        def kvloads():
            for i in range(4):
                I(f"buffer_load_dwordx4 v[{KO+4*i}:{KO+4*i+3}], v50, s[32:35], 0 offen offset:{1280*i}")
            I("s_mov_b64 exec, 1")
            for i in range(3):
                I(f"buffer_load_dwordx4 v[{KP+4*i}:{KP+4*i+3}], v51, s[32:35], 0 offen offset:{1280*i}")
            I("s_mov_b64 exec, -1")
        def vloads():
            for i in range(4):
                I(f"buffer_load_dwordx4 v[{VV+4*i}:{VV+4*i+3}], v50, s[36:39], 0 offen offset:{1280*i}")
        KPF = True
        if CV2:
            I("s_sub_u32 s50, s40, s43")
            I("s_lshl_b32 s57, s3, 8")
            I("s_cmp_eq_u32 s41, 0")
            I("s_cbranch_scc0 CV_pf1")
            I("s_lshl_b32 s50, s50, 5")
            I("s_add_u32 s50, s50, s57")
            I("s_lshl_b32 s51, s42, 7")
            I("v_add_u32 v54, s50, v1")
            I("v_mul_u32_u24 v54, 0x500, v54")
            I("s_movk_i32 s56, 32")
            I("s_branch CV_pfd")
            e("CV_pf1:")
            I("s_mul_i32 s50, s50, 22")
            I("s_min_u32 s50, s50, 234")
            I("s_add_u32 s50, s50, s57")
            I("s_mul_i32 s51, s42, 192")
            I("s_add_u32 s51, s51, 512")
            I("s_and_b32 s51, s51, 0xffffff80")
            I("v_lshrrev_b32 v54, 1, v1")
            I("v_add_u32 v54, s50, v54")
            I("v_mul_u32_u24 v54, 0x500, v54")
            I("v_and_b32 v56, 1, v1")
            I("v_lshl_add_u32 v54, v56, 7, v54")
            I("s_movk_i32 s56, 44")
            e("CV_pfd:")
            I("v_cmp_gt_u32 s[52:53], s56, v1")
            I("s_mov_b64 exec, s[52:53]")
            I("buffer_load_dword v56, v54, s[32:35], s51 offen")
            I("buffer_load_dword v57, v54, s[36:39], s51 offen")
            I("s_mov_b64 exec, -1")
            hwloads()
            I("v_lshl_add_u32 v55, v1, 6, s27")
            if "nohpf" not in FLAGS: I("buffer_load_dword v58, v55, s[8:11], 0 offen")
            else: I("buffer_load_dword v58, v2, s[8:11], 0 offen")
        elif "kvall" in FLAGS:
            pass
        elif KPF:
            I("s_sub_u32 s50, s40, s43")
            I("v_xor_b32 v57, 256, v0")
            I("s_cmp_eq_u32 s41, 0")
            I("s_cbranch_scc0 CV_pf1")
            I("s_lshl_b32 s50, s50, 8")
            I("s_lshl_b32 s51, s42, 7")
            for (d, src) in ((54, 0), (55, 57)):
                I(f"v_add_u32 v{d}, s50, v{src}")
                I(f"v_mul_u32_u24 v{d}, 0x500, v{d}")
            I("s_movk_i32 s56, 256")
            I("s_branch CV_pfd")
            e("CV_pf1:")
            I("s_mul_i32 s50, s50, 176")
            I("s_mul_i32 s51, s42, 192")
            I("s_add_u32 s51, s51, 512")
            I("s_and_b32 s51, s51, 0xffffff80")
            for (d, src) in ((54, 0), (55, 57)):
                I(f"v_lshrrev_b32 v{d}, 1, v{src}")
                I(f"v_add_u32 v{d}, s50, v{d}")
                I(f"v_mul_u32_u24 v{d}, 0x500, v{d}")
                I(f"v_and_b32 v56, 1, v{src}")
                I(f"v_lshl_add_u32 v{d}, v56, 7, v{d}")
            I("s_movk_i32 s56, 352")
            e("CV_pfd:")
            I("v_cmp_gt_u32 s[52:53], s56, v0")
            I("v_cmp_gt_u32 s[54:55], s56, v57")
            I("s_mov_b64 exec, s[52:53]")
            I("buffer_load_dword v56, v54, s[32:35], s51 offen")
            if "vpf1" not in FLAGS:
                I("s_mov_b64 exec, s[54:55]")
                I("buffer_load_dword v57, v55, s[36:39], s51 offen")
            I("s_mov_b64 exec, -1")
        else:
            kvloads()
        I("v_lshlrev_b32 v52, 2, v0")
        I("v_sub_u32 v52, 2044, v52")
        I("v_lshrrev_b32 v53, 5, v52")
        I("v_mul_u32_u24 v53, 80, v53")
        I("v_and_b32 v52, 31, v52")
        I("v_lshl_add_u32 v52, v52, 1, v53")
        I(f"v_add_u32 v53, {4*WREG}, v52")
    I(f"s_mov_b32 s29, {448 if CMG else 960}")
    I(f"s_mul_i32 s28, s3, {WREG}")
    Z = 96
    for j in range(4):
        I(f"v_mov_b32 v{Z+j}, 0")
    I("v_lshl_add_u32 v3, v1, 4, s28")
    I(f"ds_write_b128 v3, v[{Z}:{Z+3}] offset:5120")
    I(f"ds_write_b128 v3, v[{Z}:{Z+3}] offset:6144")
    I(f"ds_write_b128 v3, v[{Z}:{Z+3}] offset:6656")
    if G2F:
        I(f"v_mov_b32 v4, {LMB}")
        I(f"ds_write_b64 v4, v[{Z}:{Z+1}]")
    I("v_lshrrev_b32 v4, 2, v1")
    I("v_mul_u32_u24 v4, 80, v4")
    I("v_and_b32 v5, 3, v1")
    I("v_lshl_add_u32 v4, v5, 4, v4")
    I("v_add_u32 v4, s28, v4")
    I("v_and_b32 v5, 31, v1")
    I("v_lshrrev_b32 v6, 5, v1")
    if CM4:
        I("v_and_b32 v7, 3, v5")
        I(f"v_mul_u32_u24 v7, {CST}, v7")
        I("v_lshrrev_b32 v8, 2, v5")
        I("v_lshl_add_u32 v8, v6, 1, v8")
        I("v_lshl_add_u32 v7, v8, 3, v7")
    else:
        I("v_and_b32 v7, 7, v5")
        I(f"v_mul_u32_u24 v7, {CST}, v7")
        I("v_lshrrev_b32 v8, 3, v5")
        I("v_add_u32 v8, v8, v6")
        I("v_lshl_add_u32 v7, v8, 4, v7")
    I(f"v_add_u32 v7, {XREG}, v7")
    I("v_add_u32 v7, s28, v7")
    I(f"v_add_u32 v14, {HBUF}, v7")
    I("v_sub_u32 v8, 63, v5")
    I("v_mul_u32_u24 v8, 80, v8")
    I("v_lshl_add_u32 v8, v6, 4, v8")
    I("v_add_u32 v8, s28, v8")
    I("v_mov_b32 v15, v8")
    I("v_subrev_u32 v9, 2560, v8")
    I(f"v_add_u32 v10, {XREG}, v3")
    if CMG:
        I(f"v_mul_u32_u24 v11, {HHI-512}, v6")
        I("v_add_u32 v10, v10, v11")
    I(f"v_add_u32 v11, {HBUF}, v10")
    AC0, AC1 = 100, 116
    for j in range(32):
        I(f"v_mov_b32 v{AC0+j}, 0")
    FR = 132
    UE, UO, WO = 180, 189, 197
    CLA, CR = 3, 4
    for f_ in FLAGS:
        if f_.startswith("cla"): CLA = int(f_[3:]); CR = 8; UE, UO, WO = 228, 237, 245
    if CMG:
        UE, UO, WO = 196, 205, 213
        AC2 = 220
        I("s_mov_b32 s30, 0xfffff")
        I("s_mov_b32 s31, 0xfffff")
    else:
        I("s_mov_b32 s30, -1")
        I("s_mov_b32 s31, 0xf")
    q = DSQ()
    def stage_seg(w, addr):
        if CM4:
            for t in range(4):
                I(f"v_alignbit_b32 v{UE+t}, v{w+t+1}, v{w+t}, 16")
                I(f"v_alignbit_b32 v{UO+t+1}, v{w+t+2}, v{w+t+1}, 16")
                I(f"v_mov_b32 v{WO+t+1}, v{w+t+1}")
            I("s_mov_b64 exec, s[30:31]")
            for c, r in enumerate((UE, WO+1, UO+1, w+2)):
                I(f"ds_write_b128 v{addr}, v[{r}:{r+3}] offset:{c*CST}")
                q.push(("w", 0))
            I("s_mov_b64 exec, -1")
            return
        for t in range(7):
            I(f"v_alignbit_b32 v{UE+t}, v{w+t+1}, v{w+t}, 16")
            I(f"v_alignbit_b32 v{UO+t}, v{w+t+1}, v{w+t}, 16")
        for t in range(1, 7):
            I(f"v_mov_b32 v{WO+t}, v{w+t}")
        I("s_mov_b64 exec, s[30:31]")
        for c in range(8):
            if c % 2 == 0:
                t0 = c // 2
                r = UE + t0 if t0 % 2 == 0 else UO + t0
            else:
                t0 = (1 + c)//2
                r = w + t0 if t0 % 2 == 0 else WO + t0
            assert r % 2 == 0, (c, r)
            I(f"ds_write_b128 v{addr}, v[{r}:{r+3}] offset:{c*CST}")
            q.push(("w", 0))
        I("s_mov_b64 exec, -1")
    if FUSE and CV2:
        if "cvnw" not in FLAGS: I(f"s_waitcnt vmcnt({5 if 'cvw2' in FLAGS else 6})")
        if "cst2" in FLAGS: stamp()
        if "cvbar" in FLAGS: I("s_barrier")
        if "cst2" in FLAGS: stamp()
        kvloads()
        if "cvlv" not in FLAGS: vloads()
        I(f"s_waitcnt vmcnt({(7 if 'cvlv' in FLAGS else 11) + 3})")
        stage_seg(HW0, 10)
        I("s_mov_b32 s49, 0x3f803f80")
        I(f"s_waitcnt vmcnt({0 if 'cvlv' in FLAGS else 4}) lgkmcnt(0)")
        if "cvlv" in FLAGS: vloads()
        stamp()
    if FUSE:
        if CV2: pass
        elif KPF:
            I("s_waitcnt vmcnt(0)")
            if "cst2" in FLAGS: stamp()
            I("s_barrier")
            if "cst2" in FLAGS: stamp()
            kvloads()
            if "vearly" in FLAGS: vloads()
            if "vpf1" in FLAGS:
                I("s_mov_b64 exec, s[54:55]")
                I("buffer_load_dword v57, v55, s[36:39], s51 offen")
                I("s_mov_b64 exec, -1")
        else:
            I("s_waitcnt vmcnt(13)")
        if not CV2:
            stage_seg(HW0, 10)
            I("s_mov_b32 s49, 0x3f803f80")
            if "vearly" in FLAGS:
                I("s_waitcnt vmcnt(4) lgkmcnt(0)")
            else:
                I(f"s_waitcnt vmcnt({0 if 'vpf1' not in FLAGS else 1}) lgkmcnt(0)")
                vloads()
            if "hpf2" in FLAGS:
                I("v_lshl_add_u32 v55, v1, 6, s27")
                I("buffer_load_dword v58, v55, s[8:11], 0 offen")
            stamp()
        for r in range(3):
            for c in range(4):
                I(f"v_mov_b32_dpp v{KP+4*r+c}, v{KO+4*(r+1)+c} wave_shr:1 row_mask:0xf bank_mask:0xf")
        def krow(r): return (KP + 4*r) if r < 3 else (KO + 4*(r-3))
        chains = [(i, h) for i in range(4) for h in range(2)]
        def T(j, i, h): return TC + 8*j + 2*i + h
        if "kvf" in FLAGS:
            I("s_mov_b32 s50, 0x05040100")
            I("s_mov_b32 s51, 0x07060302")
            for j in range(4):
                for h in range(2):
                    for r in range(6):
                        I(f"v_perm_b32 v{PP+6*h+r}, v{krow(r)+j}, v{krow(r+1)+j}, s{50+h}")
                for (i, h) in chains: I(f"v_dot2_f32_bf16 v{T(j,i,h)}, v{PP+6*h+i}, s{85+4*j+2*h}, 0")
                for (i, h) in chains: I(f"v_dot2_f32_bf16 v{T(j,i,h)}, v{PP+6*h+i+2}, s{84+4*j+2*h}, v{T(j,i,h)}")
        for j in range(4 if "kvf" not in FLAGS else 0):
            for h in range(2):
                I(f"s_lshl_b32 s{50+h}, s{84+4*j+2*h}, 16")
                I(f"s_and_b32 s{52+h}, s{84+4*j+2*h}, 0xffff0000")
                I(f"s_lshl_b32 s{54+h}, s{85+4*j+2*h}, 16")
                I(f"s_and_b32 s{56+h}, s{85+4*j+2*h}, 0xffff0000")
            for r in range(7):
                lo16(KF+2*r, krow(r)+j); hi16(KF+2*r+1, krow(r)+j)
            def P(i, t): return PP + (i*4 + t)*2
            for i in range(4):
                for t in range(4):
                    r = i + 3 - t
                    I(f"v_pk_mul_f32 v[{P(i,t)}:{P(i,t)+1}], v[{KF+2*r}:{KF+2*r+1}], s[{50+2*t}:{51+2*t}]")
            for (i, h) in chains: I(f"v_cvt_pk_bf16_f32 v{T(j,i,h)}, v{P(i,3)+h}, v{P(i,2)+h}")
            for t in (1, 0):
                for (i, h) in chains: I(f"v_dot2_f32_bf16 v{T(j,i,h)}, v{T(j,i,h)}, s49, 0")
                for (i, h) in chains: I(f"v_cvt_pk_bf16_f32 v{T(j,i,h)}, v{T(j,i,h)}, v{P(i,t)+h}")
            for (i, h) in chains: I(f"v_dot2_f32_bf16 v{T(j,i,h)}, v{T(j,i,h)}, s49, 0")
            for (i, h) in chains:
                if h == 0: I(f"v_cvt_pk_bf16_f32 v{T(j,i,h)}, v{T(j,i,h)}, 0")
                else: I(f"v_cvt_pk_bf16_f32 v{T(j,i,h)}, 0, v{T(j,i,h)}")
        if "cst2" in FLAGS: stamp()
        I(f"s_waitcnt vmcnt({1 if 'hpf2' in FLAGS else 0})")
        if "cst2" in FLAGS: stamp()
        for j in range(4 if "kvf" not in FLAGS else 0):
            for (i, h) in chains: I(f"v_dot2_f32_bf16 v{T(j,i,h)}, v{T(j,i,h)}, v{VV+4*i+j}, 0")
        if "kvf" in FLAGS:
            for j in range(4):
                for i in range(4):
                    lo16(KF+2*i, VV+4*i+j); hi16(KF+2*i+1, VV+4*i+j)
                for i in range(4):
                    I(f"v_pk_mul_f32 v[{T(j,i,0)}:{T(j,i,1)}], v[{T(j,i,0)}:{T(j,i,1)}], v[{KF+2*i}:{KF+2*i+1}]")
        I("s_nop 1")
        for j in range(4):
            for h in range(2):
                o = PP + 2*h + 4*j
                I(f"v_cvt_pk_bf16_f32 v{o+1}, v{T(j,1,h)}, v{T(j,0,h)}")
                I(f"v_cvt_pk_bf16_f32 v{o}, v{T(j,3,h)}, v{T(j,2,h)}")
            for h in range(2):
                o = PP + 2*h + 4*j
                ch = 2*j + h
                I(f"ds_write_b64 v{52 + ch//4}, v[{o}:{o+1}] offset:{(ch % 4)*WREG}")
        I("s_waitcnt lgkmcnt(0)")
        I("s_barrier")
        if "cpf" in FLAGS or "cpf0" in FLAGS:
            C0 = "cpf0" in FLAGS
            I("s_mov_b32 s54, s24")
            if C0:
                I("s_cmp_ge_u32 s24, 256")
                I("s_cbranch_scc1 CV_cpfd")
                e("CV_cpfl:")
            I("s_movk_i32 s50, 56")
            I(f"s_mov_b32 s51, {384*3456}")
            I("s_mov_b32 s52, s54")
            I("s_cmp_ge_u32 s54, 108")
            I("s_cselect_b32 s50, 64, s50")
            I("s_cselect_b32 s53, 108, 0")
            I("s_cmp_ge_u32 s54, 216")
            I("s_cselect_b32 s50, 0, s50")
            I("s_cselect_b32 s53, 216, s53")
            I("s_cselect_b32 s51, 768, s51")
            I("s_cmp_ge_u32 s54, 344")
            I("s_cselect_b32 s50, 72, s50")
            I("s_cselect_b32 s53, 344, s53")
            I("s_cselect_b32 s51, 0, s51")
            I("s_load_dwordx2 s[56:57], s[0:1], s50")
            I("s_sub_u32 s52, s52, s53")
            I("s_lshl_b32 s52, s52, 6")
            I("v_add_u32 v55, s52, v1")
            I("v_lshlrev_b32 v56, 7, v55")
            I("v_lshrrev_b32 v57, 2, v55")
            I("v_mul_u32_u24 v57, 0x500, v57")
            I("v_and_b32 v55, 3, v55")
            I("v_lshl_add_u32 v57, v55, 7, v57")
            I("s_cmp_eq_u32 s50, 0")
            I("s_cselect_b64 vcc, -1, 0")
            I(f"s_mov_b32 s58, {SZ_W}")
            I(f"s_cselect_b32 s58, {SZ_SD}, s58")
            I("s_mov_b32 s59, 0x00020000")
            I("v_cndmask_b32 v56, v56, v57, vcc")
            I("s_waitcnt lgkmcnt(0)")
            I("buffer_load_dword v254, v56, s[56:59], s51 offen")
            if C0:
                I("s_add_u32 s54, s54, 256")
                I("s_cmp_lt_u32 s54, 614")
                I("s_cbranch_scc1 CV_cpfl")
                e("CV_cpfd:")
        if "hpf3" in FLAGS:
            I("v_lshl_add_u32 v55, v1, 6, s27")
            I("buffer_load_dword v58, v55, s[8:11], 0 offen")
    else:
        I("s_waitcnt vmcnt(2)")
        stamp()
        for j in range(4):
            I(f"ds_write_b128 v4, v[{XLD+4*j}:{XLD+4*j+3}] offset:{16*80*j}")
        stage_seg(HW0, 10)
    q = DSQ()
    def crd(c, both, part=None):
        f = FR + (c % CR)*12
        boff = (c >> 1)*80 + (c & 1)*32
        if part in (None, 0):
            if c < 16:
                I(f"ds_read_b128 v[{f}:{f+3}], v7 offset:{32*c}")
            else:
                I(f"ds_read_b128 v[{f}:{f+3}], v14 offset:{32*(c-16)}")
            q.push(("r", c))
            I(f"ds_read_b128 v[{f+4}:{f+7}], v9 offset:{boff}")
            q.push(("r", c))
        if both and part in (None, 1):
            I(f"ds_read_b128 v[{f+8}:{f+11}], v8 offset:{boff}")
            q.push(("r", c))
    if CM4:
        CLA = 2
        for f_ in FLAGS:
            if f_.startswith("c4la"): CLA = int(f_[4:])
        B0 = 180; MSK = 218
        def b0(dh, pp): return B0 + (dh*2 + pp)*4
        def mrd(c, part):
            f = FR + (c % 4)*12
            boff = (c >> 1)*80 + (c & 1)*32
            va, ao = (7, 32*c) if c < 8 else (14, 32*(c-8))
            if part == 0:
                I(f"ds_read_b64 v[{f}:{f+1}], v{va} offset:{ao}"); q.push(("r", c))
                I(f"ds_read_b64 v[{f+2}:{f+3}], v{va} offset:{ao+8}")
            if part == 1:
                I(f"ds_read_b64 v[{f+4}:{f+5}], v{va} offset:{ao+HHI}"); q.push(("r", c))
                I(f"ds_read_b64 v[{f+6}:{f+7}], v{va} offset:{ao+HHI+8}")
            if part == 2: I(f"ds_read_b128 v[{f+8}:{f+11}], v9 offset:{boff}")
            q.push(("r", c))
        W2 = "w2" in FLAGS
        if G2F and CWP:
            g2_setup(0)
            I("s_sub_u32 s34, s40, 22")
            I("s_lshl_b32 s34, s34, 3")
            I("s_add_u32 s34, s34, s3")
            I(f"s_mul_i32 s34, s34, {216*128}")
            I("v_lshl_add_u32 v60, v1, 7, s34")
            I(f"s_mov_b32 s34, {-54*128*CWI}")
            I("s_mov_b32 s36, -1")
            I("s_mov_b32 s37, 0x3fffff")
            if CW4:
                I("s_sub_u32 s34, s40, 22")
                I("s_lshl_b32 s34, s34, 2")
                I("s_add_u32 s34, s34, s3")
                I("s_mul_i32 s35, s34, 434")
                I("s_min_u32 s35, s35, 16846")
                I("s_lshl_b32 s35, s35, 7")
                I("v_lshl_add_u32 v60, v1, 7, s35")
                I("s_cmp_lt_u32 s3, 4")
                I("s_cselect_b32 s36, -1, 0")
                I("s_cselect_b32 s37, 0x3fffffff, 0")
                srd(12, 6, SZ_H, WS_H)
                I("s_mul_i32 s35, s34, 177")
                I("s_min_u32 s35, s35, 6735")
                I("s_lshl_b32 s35, s35, 7")
                I("s_mul_i32 s38, s42, 884736")
                I("s_add_u32 s35, s35, s38")
                I("v_lshl_add_u32 v62, v1, 7, s35")
                I("s_cmp_lt_u32 s3, 4")
                I("s_cselect_b32 s38, -1, 0")
                I("s_cselect_b32 s39, 0x7ffffff, 0")
            elif CHT >= 0:
                srd(12, 6, SZ_H, WS_H)
                I("s_sub_u32 s35, s40, 22")
                I("s_lshl_b32 s35, s35, 3")
                I("s_add_u32 s35, s35, s3")
                I("s_mul_i32 s35, s35, 88")
                I("s_min_u32 s35, s35, 6824")
                I("s_lshl_b32 s35, s35, 7")
                I("s_mul_i32 s38, s42, 884736")
                I("s_add_u32 s35, s35, s38")
                I("v_lshl_add_u32 v62, v1, 7, s35")
                I(f"s_mov_b32 s35, {-44*128*CHT}")
                I("s_mov_b32 s38, -1")
                I("s_mov_b32 s39, 0xfff")
        UNR = "unr" in FLAGS
        if UNR:
            WB_ = 64 - 6*2
            def wreg(n): return HW1 if n == 1 else (64 + 6*(n-2) if n <= 6 else 16)
            cvq = []
            for n in range(2, 8):
                I(f"buffer_load_dwordx4 v[{wreg(n)}:{wreg(n)+3}], v2, s[8:11], 0 offen offset:{192+256*(n-1)}"); cvq.append(n)
                I(f"buffer_load_dwordx2 v[{wreg(n)+4}:{wreg(n)+5}], v2, s[8:11], 0 offen offset:{208+256*(n-1)}"); cvq.append(n)
            for dh in range(2):
                I(f"ds_read_b128 v[{b0(dh,0)}:{b0(dh,0)+3}], v8 offset:{32*dh}")
            for j in range(16): I(f"v_mov_b32 v{AC2+j}, 0")
            I(f"v_cmp_ne_u32 vcc, 0, v5")
            I("s_nop 1")
            I(f"v_cndmask_b32 v{MSK}, 0, -1, vcc")
            for c in range(CLA):
                for part in range(3): mrd(c, part)
            stamp()
            for it in range(8):
                q.q = [("r", c) for c in range(CLA) for _ in range(5)]
                w = wreg(it + 1) if it < 7 else None
                def AL(dst, t): return f"v_alignbit_b32 v{dst+t}, v{w+t+1}, v{w+t}, 16"
                def MV(t): return f"v_mov_b32 v{WO+t}, v{w+t}"
                def WR(c): return ("W", f"ds_write_b128 v11, v[{(UE, WO+1, UO+1, w+2)[c]}:{(UE, WO+1, UO+1, w+2)[c]+3}] offset:{c*CST}")
                slots = []
                if it < 7:
                    slots = [["V", WR(3), AL(UE,0), AL(UE,1)], [AL(UE,2), AL(UE,3)], [],
                             [WR(0), MV(1), MV(2)], [MV(3), MV(4)], [],
                             [WR(1), AL(UO,1), AL(UO,2)], [AL(UO,3), AL(UO,4)], [],
                             [WR(2)], [], [], ["P"]]
                def slot(i):
                    if i < 0 or i >= len(slots): return
                    for x in slots[i]:
                        if x == "V":
                            idxs = [k_ for k_, t_ in enumerate(cvq) if t_ == it + 1]
                            if idxs:
                                I(f"s_waitcnt vmcnt({len(cvq) - 1 - max(idxs)})")
                                del cvq[:max(idxs)+1]
                        elif x == "P" and CW4:
                            for k_ in CW4W[it]:
                                I(f"s_mov_b32 s34, {62*128*k_}")
                                I("s_mov_b64 exec, s[36:37]")
                                I("buffer_load_dword v97, v60, s[48:51], s34 offen")
                                I("s_mov_b64 exec, -1")
                            for k_ in CW4H[it]:
                                I(f"s_mov_b32 s35, {59*128*k_}")
                                I("s_mov_b64 exec, s[38:39]")
                                I("buffer_load_dword v98, v62, s[12:15], s35 offen")
                                I("s_mov_b64 exec, -1")
                        elif x == "P":
                            if G2F and CWP and 0 <= it - CWI < 4:
                                I(f"s_mov_b32 s34, {54*128*(it - CWI)}")
                                I("s_mov_b64 exec, s[36:37]")
                                I("buffer_load_dword v97, v60, s[48:51], s34 offen"); cvq.append(-1)
                                I("s_mov_b64 exec, -1")
                            if G2F and CWP and CHT >= 0 and 0 <= it - CHT < 2:
                                I(f"s_mov_b32 s35, {44*128*(it - CHT)}")
                                I("s_mov_b64 exec, s[38:39]")
                                I("buffer_load_dword v98, v62, s[12:15], s35 offen"); cvq.append(-1)
                                I("s_mov_b64 exec, -1")
                        elif isinstance(x, tuple):
                            I("s_mov_b64 exec, s[30:31]")
                            I(x[1]); q.push(("w", 0))
                            I("s_mov_b64 exec, -1")
                        else: I(x)
                for c in range(8):
                    f = FR + (c % 4)*12
                    bz = b0(c & 1, (c >> 1) & 1); bn = b0(c & 1, ((c >> 1) & 1) ^ 1)
                    last = it == 7 and c + CLA >= 8
                    q.wait_for(("r", c))
                    I(f"v_mfma_f32_32x32x16_bf16 v[{AC0}:{AC0+15}], v[{f}:{f+3}], v[{bz}:{bz+3}], v[{AC0}:{AC0+15}]")
                    if not last: mrd(c + CLA, 0)
                    slot(3*(c-1))
                    I(f"v_mfma_f32_32x32x16_bf16 v[{AC1}:{AC1+15}], v[{f}:{f+3}], v[{f+8}:{f+11}], v[{AC1}:{AC1+15}]")
                    if not last: mrd(c + CLA, 1)
                    slot(3*(c-1)+1 if c >= 1 else -1)
                    I(f"v_mfma_f32_32x32x16_bf16 v[{AC2}:{AC2+15}], v[{f+4}:{f+7}], v[{bz}:{bz+3}], v[{AC2}:{AC2+15}]")
                    if not last: mrd(c + CLA, 2)
                    if not (it == 7 and c >= 6):
                        for r in range(4):
                            I(f"v_and_b32_dpp v{bn+r}, v{bz+r}, v{MSK} wave_shr:1 row_mask:0xf bank_mask:0xf bound_ctrl:0")
                    slot(3*(c-1)+2 if c >= 1 else -1)
                if it < 7:
                    I("v_swap_b32 v7, v14")
                    I("v_swap_b32 v10, v11")
                    I("v_add_u32 v9, 320, v9")
        if not UNR:
            if W2:
                I(f"buffer_load_dwordx4 v[{HW0}:{HW0+3}], v2, s[8:11], s29 offen")
                I(f"buffer_load_dwordx2 v[{HW0+4}:{HW0+5}], v2, s[8:11], s29 offen offset:16")
                I("s_add_u32 s29, s29, 256")
            for dh in range(2):
                I(f"ds_read_b128 v[{b0(dh,0)}:{b0(dh,0)+3}], v8 offset:{32*dh}")
            for j in range(16): I(f"v_mov_b32 v{AC2+j}, 0")
            I(f"v_cmp_ne_u32 vcc, 0, v5")
            I("s_nop 1")
            I(f"v_cndmask_b32 v{MSK}, 0, -1, vcc")
            for c in range(CLA):
                for part in range(3): mrd(c, part)
            I("s_mov_b32 s33, 0")
            stamp()
            e("CV_loopm:")
            q.q = [("r", c) for c in range(CLA) for _ in range(5)]
            w = HW1
            def AL(dst, t): return f"v_alignbit_b32 v{dst+t}, v{w+t+1}, v{w+t}, 16"
            def MV(t): return f"v_mov_b32 v{WO+t}, v{w+t}"
            def WR(c): return ("W", f"ds_write_b128 v11, v[{(UE, WO+1, UO+1, w+2)[c]}:{(UE, WO+1, UO+1, w+2)[c]+3}] offset:{c*CST}")
            slots = [[WR(3), AL(UE,0), AL(UE,1)], [AL(UE,2), AL(UE,3)], [],
                     [WR(0), MV(1), MV(2)], [MV(3), MV(4)], [],
                     [WR(1), AL(UO,1), AL(UO,2)], [AL(UO,3), AL(UO,4)], [],
                     [WR(2), "L"], [], []]
            if W2: slots = slots[:9] + [[WR(2)], [], [], [], [], [], [], [], [], ["L"], [], []]
            def slot(i):
                if i < 0 or i >= len(slots): return
                for x in slots[i]:
                    if x == "L" and W2:
                        I("s_waitcnt vmcnt(0)")
                        for t in range(6): I(f"v_mov_b32 v{HW1+t}, v{HW0+t}")
                        I(f"buffer_load_dwordx4 v[{HW0}:{HW0+3}], v2, s[8:11], s29 offen")
                        I(f"buffer_load_dwordx2 v[{HW0+4}:{HW0+5}], v2, s[8:11], s29 offen offset:16")
                        I("s_add_u32 s29, s29, 256")
                        if G2F and CWP:
                            I(f"s_cmp_lt_u32 s34, {4*54*128}")
                            I("s_cbranch_scc0 CV_nwp")
                            I("s_mov_b64 exec, s[36:37]")
                            I("buffer_load_dword v61, v60, s[48:51], s34 offen")
                            I("s_mov_b64 exec, -1")
                            e("CV_nwp:")
                            I(f"s_add_u32 s34, s34, {54*128}")
                            if CHT >= 0:
                                I(f"s_cmp_lt_u32 s35, {2*44*128}")
                                I("s_cbranch_scc0 CV_nht")
                                I("s_mov_b64 exec, s[38:39]")
                                I("buffer_load_dword v63, v62, s[12:15], s35 offen")
                                I("s_mov_b64 exec, -1")
                                e("CV_nht:")
                                I(f"s_add_u32 s35, s35, {44*128}")
                    elif x == "L":
                        I(f"buffer_load_dwordx4 v[{HW1}:{HW1+3}], v2, s[8:11], s29 offen")
                        I(f"buffer_load_dwordx2 v[{HW1+4}:{HW1+5}], v2, s[8:11], s29 offen offset:16")
                        I("s_add_u32 s29, s29, 256")
                    elif isinstance(x, tuple):
                        I("s_mov_b64 exec, s[30:31]")
                        I(x[1]); q.push(("w", 0))
                        I("s_mov_b64 exec, -1")
                    else: I(x)
            for c in range(8):
                if c == 1 and not W2: I("s_waitcnt vmcnt(0)")
                f = FR + (c % 4)*12
                bz = b0(c & 1, (c >> 1) & 1); bn = b0(c & 1, ((c >> 1) & 1) ^ 1)
                q.wait_for(("r", c))
                I(f"v_mfma_f32_32x32x16_bf16 v[{AC0}:{AC0+15}], v[{f}:{f+3}], v[{bz}:{bz+3}], v[{AC0}:{AC0+15}]")
                mrd(c + CLA, 0)
                slot(3*(c-1))
                I(f"v_mfma_f32_32x32x16_bf16 v[{AC1}:{AC1+15}], v[{f}:{f+3}], v[{f+8}:{f+11}], v[{AC1}:{AC1+15}]")
                mrd(c + CLA, 1)
                slot(3*(c-1)+1 if c >= 1 else -1)
                I(f"v_mfma_f32_32x32x16_bf16 v[{AC2}:{AC2+15}], v[{f+4}:{f+7}], v[{bz}:{bz+3}], v[{AC2}:{AC2+15}]")
                mrd(c + CLA, 2)
                for r in range(4):
                    I(f"v_and_b32_dpp v{bn+r}, v{bz+r}, v{MSK} wave_shr:1 row_mask:0xf bank_mask:0xf bound_ctrl:0")
                slot(3*(c-1)+2 if c >= 1 else -1)
            I("v_swap_b32 v7, v14")
            I("v_swap_b32 v10, v11")
            I("v_add_u32 v9, 320, v9")
            I("s_add_u32 s33, s33, 1")
            I("s_cmp_lt_u32 s33, 8")
            I("s_cbranch_scc1 CV_loopm")
        I("s_nop 7")
        I("s_nop 7")
        I("s_nop 3")
        for j in range(16): I(f"v_add_f32 v{AC1+j}, v{AC1+j}, v{AC2+j}")
    elif CMG:
        def mrd(c, part):
            f = FR + (c % 4)*16
            boff = (c >> 1)*80 + (c & 1)*32
            va, ao = (7, 32*c) if c < 8 else (14, 32*(c-8))
            if "cvnob" in FLAGS and part >= 2: return
            if part == 0: I(f"ds_read_b128 v[{f}:{f+3}], v{va} offset:{ao}")
            if part == 1: I(f"ds_read_b128 v[{f+4}:{f+7}], v{va} offset:{ao+HHI}")
            if part == 2: I(f"ds_read_b128 v[{f+8}:{f+11}], v8 offset:{boff}")
            if part == 3: I(f"ds_read_b128 v[{f+12}:{f+15}], v9 offset:{boff}")
            q.push(("r", c))
        for j in range(16): I(f"v_mov_b32 v{AC2+j}, 0")
        for c in range(CLA):
            for part in range(4): mrd(c, part)
        I("s_mov_b32 s33, 0")
        stamp()
        e("CV_loopm:")
        q.q = [("r", c) for c in range(CLA) for _ in range(2 if "cvnob" in FLAGS else 4)]
        w = HW1
        def AL(dst, t): return f"v_alignbit_b32 v{dst+t}, v{w+t+1}, v{w+t}, 16"
        def MV(t): return f"v_mov_b32 v{WO+t}, v{w+t}"
        def WR(c):
            if c % 2 == 0:
                t0 = c // 2
                r = UE + t0 if t0 % 2 == 0 else UO + t0
            else:
                t0 = (1 + c)//2
                r = w + t0 if t0 % 2 == 0 else WO + t0
            return ("W", f"ds_write_b128 v11, v[{r}:{r+3}] offset:{c*CST}")
        slots = [[WR(3), AL(UE,0), AL(UE,1)], [WR(7), AL(UE,2), AL(UE,3)], [WR(0), AL(UE,4), AL(UE,5)],
                 [WR(4), MV(1), MV(2)], [MV(3), MV(4)], [WR(1), MV(5), MV(6)],
                 [WR(5), AL(UO,1), AL(UO,2)], [AL(UO,3), AL(UO,4)], [WR(2), AL(UO,5), AL(UO,6)],
                 [WR(6)], ["L"], []]
        def slot(i):
            if i < 0 or i >= len(slots): return
            for x in slots[i]:
                if x == "L":
                    I(f"buffer_load_dwordx4 v[{HW1}:{HW1+3}], v2, s[8:11], s29 offen")
                    I(f"buffer_load_dwordx4 v[{HW1+4}:{HW1+7}], v2, s[8:11], s29 offen offset:16")
                    I("s_add_u32 s29, s29, 256")
                elif isinstance(x, tuple):
                    I("s_mov_b64 exec, s[30:31]")
                    I(x[1]); q.push(("w", 0))
                    I("s_mov_b64 exec, -1")
                else: I(x)
        for c in range(8):
            if c == 1: I("s_waitcnt vmcnt(0)")
            f = FR + (c % 4)*16
            q.wait_for(("r", c))
            I(f"v_mfma_f32_32x32x16_bf16 v[{AC0}:{AC0+15}], v[{f}:{f+3}], v[{f+8}:{f+11}], v[{AC0}:{AC0+15}]")
            mrd(c + CLA, 0)
            slot(3*(c-1))
            I(f"v_mfma_f32_32x32x16_bf16 v[{AC1}:{AC1+15}], v[{f}:{f+3}], v[{f+12}:{f+15}], v[{AC1}:{AC1+15}]")
            mrd(c + CLA, 1); mrd(c + CLA, 2)
            slot(3*(c-1)+1 if c >= 1 else -1)
            I(f"v_mfma_f32_32x32x16_bf16 v[{AC2}:{AC2+15}], v[{f+4}:{f+7}], v[{f+8}:{f+11}], v[{AC2}:{AC2+15}]")
            mrd(c + CLA, 3)
            slot(3*(c-1)+2 if c >= 1 else -1)
        I("v_swap_b32 v7, v14")
        I("v_swap_b32 v10, v11")
        I("v_add_u32 v8, 320, v8")
        I("v_add_u32 v9, 320, v9")
        I("s_add_u32 s33, s33, 1")
        I("s_cmp_lt_u32 s33, 8")
        I("s_cbranch_scc1 CV_loopm")
        I("s_nop 7")
        I("s_nop 7")
        I("s_nop 3")
        for j in range(16): I(f"v_add_f32 v{AC1+j}, v{AC1+j}, v{AC2+j}")
    else:
        for c in range(CLA):
            crd(c, True)
        I("s_mov_b32 s33, 0")
        stamp()
    for phase in range(2 if not CMG else 0):
        both = (phase == 0)
        e(f"CV_loop{phase}:")
        q.q = [("r", c) for c in range(CLA) for _ in range(3 if both else 2)]
        for c in range(16):
            if c == 1:
                I("s_waitcnt vmcnt(0)")
                stage_seg(HW1, 11)
                if "cvnoload" not in FLAGS:
                    I(f"buffer_load_dwordx4 v[{HW1}:{HW1+3}], v2, s[8:11], s29 offen")
                    I(f"buffer_load_dwordx4 v[{HW1+4}:{HW1+7}], v2, s[8:11], s29 offen offset:16")
                I("s_add_u32 s29, s29, 512")
            f = FR + (c % CR)*12
            if "cvi" in FLAGS:
                q.wait_for(("r", c))
                I(f"v_mfma_f32_32x32x16_bf16 v[{AC1}:{AC1+15}], v[{f}:{f+3}], v[{f+4}:{f+7}], v[{AC1}:{AC1+15}]")
                crd(c + CLA, both, 0)
                if both:
                    I(f"v_mfma_f32_32x32x16_bf16 v[{AC0}:{AC0+15}], v[{f}:{f+3}], v[{f+8}:{f+11}], v[{AC0}:{AC0+15}]")
                    crd(c + CLA, both, 1)
            else:
                crd(c + CLA, both)
                q.wait_for(("r", c))
                I(f"v_mfma_f32_32x32x16_bf16 v[{AC1}:{AC1+15}], v[{f}:{f+3}], v[{f+4}:{f+7}], v[{AC1}:{AC1+15}]")
                if both:
                    I(f"v_mfma_f32_32x32x16_bf16 v[{AC0}:{AC0+15}], v[{f}:{f+3}], v[{f+8}:{f+11}], v[{AC0}:{AC0+15}]")
        I("v_swap_b32 v7, v14")
        I("v_swap_b32 v10, v11")
        I("v_add_u32 v8, 640, v8")
        I("v_add_u32 v9, 640, v9")
        I("s_add_u32 s33, s33, 1")
        I(f"s_cmp_lt_u32 s33, {4*(phase+1)}")
        I(f"s_cbranch_scc1 CV_loop{phase}")
    I("v_mov_b32 v8, v15")
    I("s_waitcnt vmcnt(0) lgkmcnt(0)" if "unr" not in FLAGS else "s_waitcnt lgkmcnt(0)")
    stamp()
    if G2F:
        if not CWP: g2_setup(0)
        I("s_lshr_b32 s42, s24, 3")
        I("s_mul_i32 s43, s42, 0xCCCD")
        I("s_lshr_b32 s43, s43, 19")
        I("s_mul_i32 s41, s43, 10")
        I("s_sub_u32 s42, s42, s41")
        I("s_lshl_b32 s42, s42, 2")
        I("s_lshl_b32 s43, s43, 7")
        I("s_add_u32 s43, s43, s42")
        I("s_add_u32 s43, s43, 88")
    if YST:
        I("v_mul_u32_u24 v140, 80, v5")
        I("v_lshl_add_u32 v140, v6, 3, v140")
        I("s_add_u32 s42, s28, 12800")
        I("v_add_u32 v140, s42, v140")
        I("v_lshrrev_b32 v141, 2, v1")
        I("v_mul_u32_u24 v141, 80, v141")
        I("v_and_b32 v142, 3, v1")
        I("v_lshl_add_u32 v141, v142, 4, v141")
        I("v_add_u32 v141, s42, v141")
        I("v_lshl_add_u32 v142, v1, 4, s27")
    I("v_mul_u32_u24 v10, 24, v6")
    I("v_sub_u32 v10, v8, v10")
    I("v_add_u32 v10, 8, v10")
    I("v_subrev_u32 v11, 2560, v10")
    KV = 16
    for cb in range(2):
        for qq in range(4):
            I(f"ds_read_b64 v[{KV+cb*8+2*qq}:{KV+cb*8+2*qq+1}], v{10+cb} offset:{48-16*qq}")
    I("s_and_b32 s25, s24, 1")
    I("s_lshl_b32 s25, s25, 4")
    I("s_lshr_b32 s26, s26, s25")
    I("s_lshl_b32 s26, s26, 16")
    I("v_lshlrev_b32 v12, 6, v5")
    I("v_lshl_add_u32 v12, v6, 3, v12")
    I("v_add_u32 v12, s27, v12")
    I("s_nop 7")
    I("s_waitcnt lgkmcnt(0)")
    for cb in range(2):
        ac = AC0 if cb == 0 else AC1
        for qq in range(4):
            k0 = KV + cb*8 + 2*qq
            t = 40 + (qq % 2)*12
            y = ac + 4*qq
            hi16(t+0, k0+1); lo16(t+1, k0+1); hi16(t+2, k0); lo16(t+3, k0)
            for r in range(4):
                I(f"v_mul_f32 v{t+r}, s26, v{t+r}")
            I(f"v_cvt_pk_bf16_f32 v{t+4}, v{t}, v{t+1}")
            I(f"v_cvt_pk_bf16_f32 v{t+5}, v{t+2}, v{t+3}")
            I(f"v_cvt_pk_bf16_f32 v{t+6}, v{y}, v{y+1}")
            I(f"v_cvt_pk_bf16_f32 v{t+7}, v{y+2}, v{y+3}")
            lo16(t, t+4); hi16(t+1, t+4); lo16(t+2, t+5); hi16(t+3, t+5)
            lo16(y, t+6); hi16(y+1, t+6); lo16(y+2, t+7); hi16(y+3, t+7)
            for r in range(4):
                I(f"v_add_f32 v{t+r}, v{t+r}, v{y+r}")
            I(f"v_cvt_pk_bf16_f32 v{t+8}, v{t}, v{t+1}")
            I(f"v_cvt_pk_bf16_f32 v{t+9}, v{t+2}, v{t+3}")
            if YST: I(f"ds_write_b64 v140, v[{t+8}:{t+9}] offset:{cb*2560+16*qq}")
            else: I(f"buffer_store_dwordx2 v[{t+8}:{t+9}], v12, s[20:23], 0 offen offset:{cb*2048+16*qq}")
    if YST:
        I("s_waitcnt lgkmcnt(0)")
        for i in range(4): I(f"ds_read_b128 v[{16+4*i}:{19+4*i}], v141 offset:{1280*i}")
        for i in range(4):
            I(f"s_waitcnt lgkmcnt({3-i})")
            I(f"buffer_store_dwordx4 v[{16+4*i}:{19+4*i}], v142, s[20:23], 0 offen offset:{1024*i}{SCY}")
    if G2F:
        g2_head("conv")
        gen_g2()
    I("s_waitcnt vmcnt(0)")
    stamp()
    stamp_dump(255 if BIG else N_G1 + 7)
    if BIG: wgt_end(1)
    I("s_endpgm")
    e("M_wdt:")
    I("s_waitcnt lgkmcnt(0)")
    if "wlate" in FLAGS: I("s_barrier")
    if BIG and "pfm" in FLAGS:
        I("s_sub_u32 s26, s3, 6")
        I("s_mul_i32 s27, s26, 176")
        I("s_sub_u32 s27, s24, s27")
        I("s_lshl_b32 s26, s26, 3")
        I("s_add_u32 s26, s26, 56")
        I("s_load_dwordx2 s[28:29], s[0:1], s26")
        I("s_mul_i32 s27, s27, 12800")
        I(f"s_mov_b32 s30, {SZ_W}")
        I("s_mov_b32 s31, 0x00020000")
        I("v_and_b32 v1, 63, v0")
        I("v_lshlrev_b32 v1, 4, v1")
        I("s_waitcnt lgkmcnt(0)")
        for i in range(13):
            I(f"buffer_load_dwordx4 v[{100+4*i}:{103+4*i}], v1, s[28:31], s27 offen")
            I("s_add_u32 s27, s27, 1024")
    if "pfa128" in FLAGS or "pfa64" in FLAGS:
        G = 128 if "pfa128" in FLAGS else 64
        NL = 1792 // G
        I("s_cmp_lg_u32 s3, 3")
        I("s_cbranch_scc1 M_nopf")
        I("s_bfe_u32 s26, s2, 0x50003")
        I("s_lshr_b32 s27, s26, 4")
        I("s_lshl_b32 s27, s27, 3")
        I("s_add_u32 s27, s27, 56")
        I("s_load_dwordx2 s[28:29], s[0:1], s27")
        I("s_and_b32 s26, s26, 15")
        I("s_mul_i32 s26, s26, 138240")
        I("s_bfe_u32 s27, s2, 0x10002")
        I("s_mul_i32 s27, s27, 1792")
        I("s_add_u32 s26, s26, s27")
        I(f"s_mov_b32 s30, {SZ_W}")
        I("s_mov_b32 s31, 0x00020000")
        I("v_and_b32 v1, 63, v0")
        I("s_waitcnt lgkmcnt(0)")
        n = (40*NL + 63)//64
        mul = (65536 + NL - 1)//NL
        for i in range(n):
            I(f"v_add_u32 v2, {64*i}, v1")
            I(f"v_mul_u32_u24 v3, {mul}, v2")
            I("v_lshrrev_b32 v3, 16, v3")
            I(f"v_mul_u32_u24 v4, {NL}, v3")
            I("v_sub_u32 v4, v2, v4")
            I("v_mul_u32_u24 v3, 3456, v3")
            I(f"v_lshl_add_u32 v{100+i}, v4, {7 if G==128 else 6}, v3")
            I(f"buffer_load_dword v{140+i}, v{100+i}, s[28:31], s26 offen")
        e("M_nopf:")
    WBAR = 0
    for f_ in FLAGS:
        if f_.startswith("wbar"): WBAR = int(f_[4:])
    I("s_cmp_ge_u32 s24, 270")
    I(f"s_cbranch_scc1 {'M_exitb' if WBAR else 'M_exitw'}")
    I("s_load_dwordx2 s[4:5], s[0:1], 72")
    I("s_mul_i32 s17, s24, 0xCCCD")
    I("s_lshr_b32 s17, s17, 19")
    I("s_mul_i32 s18, s17, 10")
    I("s_sub_u32 s18, s24, s18")
    I("v_and_b32 v1, 7, v0")
    I("v_bfe_u32 v2, v0, 3, 2")
    I("v_bfe_u32 v6, v0, 5, 1")
    I("s_lshl_b32 s18, s18, 6")
    I("v_lshl_add_u32 v1, v1, 3, s18")
    I("s_lshl_b32 s19, s17, 1")
    I("v_add_u32 v6, s19, v6")
    I("v_lshlrev_b32 v7, 5, v6")
    I("v_lshl_add_u32 v7, v2, 2, v7")
    I("v_mul_u32_u24 v3, 0x500, v7")
    I("v_lshl_add_u32 v3, v1, 1, v3")
    I("v_add_u32 v4, 0x5000, v3")
    I("s_waitcnt lgkmcnt(0)")
    srd(8, 4, SZ_W)
    srd(12, 6, SZ_W, WS_WDT)
    for i in range(8):
        b = 3 if i < 4 else 4
        I(f"buffer_load_dwordx4 v[{8+4*i}:{11+4*i}], v{b}, s[8:11], 0 offen offset:{(i%4)*1280}")
    I("s_mov_b32 s20, 0x05040100")
    I("s_mov_b32 s21, 0x07060302")
    I("v_lshrrev_b32 v5, 4, v1")
    I("v_mul_u32_u24 v5, 54, v5")
    I("v_add_u32 v5, v5, v6")
    I("v_lshlrev_b32 v5, 10, v5")
    I("v_lshl_add_u32 v5, v2, 8, v5")
    I("v_and_b32 v7, 15, v1")
    I("v_lshl_add_u32 v5, v7, 4, v5")
    for _ in range(WBAR): I("s_barrier")
    I("s_waitcnt vmcnt(0)")
    for dd in range(8):
        ob = 40 + 4*dd
        sel = 20 + (dd & 1)
        for q in range(4):
            I(f"v_perm_b32 v{ob+q}, v{8+4*(2*q+1)+dd//2}, v{8+4*(2*q)+dd//2}, s{sel}")
    for dd in range(8):
        ob = 40 + 4*dd
        I(f"buffer_store_dwordx4 v[{ob}:{ob+3}], v5, s[12:15], 0 offen offset:{16*dd}")
    if WBAR:
        I("s_endpgm")
        e("M_exitb:")
        for _ in range(WBAR): I("s_barrier")
    e("M_exitw:")
    I("s_waitcnt vmcnt(0)")
    e("M_exit:")
    I("s_endpgm")
    if FUSE: kernel_desc("mid_kernel", 256, 102)
    else: kernel_desc("mid_kernel", 256 if any(f.startswith("cla") for f in FLAGS) else (240 if BIG else 208), 80)

def gen_k3():
    kernel_header("fin_kernel")
    I(f"s_cmp_ge_u32 s2, {64 if 'fin64' in FLAGS else 256}")
    I("s_cbranch_scc1 F_exit")
    I("s_load_dwordx2 s[6:7], s[0:1], 96")
    I("s_load_dwordx2 s[4:5], s[0:1], 0")
    I("s_load_dwordx2 s[30:31], s[0:1], 80")
    stamp()
    I("v_lshrrev_b32 v1, 6, v0")
    I("s_nop 0")
    I("v_readfirstlane_b32 s3, v1")
    I("s_waitcnt lgkmcnt(0)")
    srd(8, 6, SZ_W, WS_WDT)
    srd(12, 6, SZ_H, WS_H)
    srd(16, 6, SZ_SD, WS_YT)
    if FUSE: srd(20, 6, S*8, WS_ST)
    else: srd(20, 6, SZ_SD, WS_XN)
    srd(24, 4, SZ_SD)
    srd(32, 30, SZ_SD)
    if "fin2e" in FLAGS:
        I("s_bfe_u32 s36, s2, 0x10002")
        I("s_lshl_b32 s36, s36, 2")
        I("s_bfe_u32 s37, s2, 0x20003")
        I("s_add_u32 s36, s36, s37")
        I("s_mul_i32 s36, s36, 80")
        I("s_and_b32 s37, s2, 3")
        I("s_lshl_b32 s37, s37, 3")
        I("s_lshr_b32 s38, s2, 5")
        I("s_add_u32 s37, s37, s38")
        I("s_lshl_b32 s37, s37, 6")
    elif "fin2d" in FLAGS:
        I("s_and_b32 s36, s2, 1")
        I("s_lshl_b32 s36, s36, 2")
        I("s_bfe_u32 s37, s2, 0x20003")
        I("s_add_u32 s36, s36, s37")
        I("s_mul_i32 s36, s36, 80")
        I("s_bfe_u32 s37, s2, 0x20001")
        I("s_lshl_b32 s37, s37, 3")
        I("s_lshr_b32 s38, s2, 5")
        I("s_add_u32 s37, s37, s38")
        I("s_lshl_b32 s37, s37, 6")
    elif "finswap" in FLAGS:
        I("s_lshr_b32 s36, s2, 5")
        I("s_mul_i32 s36, s36, 80")
        I("s_and_b32 s37, s2, 31")
        I("s_lshl_b32 s37, s37, 6")
    else:
        I("s_and_b32 s36, s2, 7")
        I("s_mul_i32 s36, s36, 80")
        I("s_lshr_b32 s37, s2, 3")
        I("s_lshl_b32 s37, s37, 6")
    I("s_mul_i32 s38, s3, 14")
    I("s_cmp_eq_u32 s3, 3")
    I("s_cselect_b32 s39, 1, 0")
    I("s_sub_u32 s38, s38, s39")
    I("s_cmp_ge_u32 s3, 2")
    I("s_cselect_b32 s39, 13, 14")
    I("s_add_u32 s47, s38, s39")
    I("s_lshl_b32 s45, s38, 10")
    I("s_lshl_b32 s47, s47, 10")
    if "rot" in FLAGS:
        I("s_bfe_u32 s46, s2, 0x20003")
        I("s_lshl_b32 s46, s46, 2")
        I("s_lshr_b32 s44, s2, 5")
        I("s_lshl_b32 s44, s44, 1")
        I("s_add_u32 s46, s46, s44")
        I("s_cmp_ge_u32 s46, 13")
        I("s_cselect_b32 s44, 13, 0")
        I("s_sub_u32 s46, s46, s44")
        I("s_cmp_ge_u32 s46, 13")
        I("s_cselect_b32 s44, 13, 0")
        I("s_sub_u32 s46, s46, s44")
        I("s_lshl_b32 s46, s46, 10")
        I("s_add_u32 s46, s46, s45")
    else:
        I("s_mov_b32 s46, s45")
    I("s_mov_b32 s44, 0")
    I("v_and_b32 v1, 15, v0")
    I("v_bfe_u32 v2, v0, 4, 2")
    I("v_and_b32 v12, 63, v0")
    if "pf" in FLAGS:
        I("s_lshr_b32 s52, s2, 3")
        I("s_lshl_b32 s52, s52, 2")
        I("s_add_u32 s52, s52, s3")
        I("s_and_b32 s53, s2, 1")
        I("s_mul_i32 s53, s53, 1105920")
        I("s_mul_i32 s54, s52, 8640")
        I("s_add_u32 s53, s53, s54")
        I("v_lshlrev_b32 v240, 6, v12")
        I("buffer_load_dword v241, v240, s[8:11], s53 offen")
        I("s_add_u32 s53, s53, 4096")
        I("buffer_load_dword v242, v240, s[8:11], s53 offen")
        I("s_add_u32 s53, s53, 544")
        I("buffer_load_dword v243, v240, s[8:11], s53 offen")
        I("s_bfe_u32 s53, s2, 0x20001")
        I("s_mul_i32 s53, s53, 1769472")
        I("s_mul_i32 s54, s52, 13824")
        I("s_add_u32 s53, s53, s54")
        for i, inc in enumerate((4096, 4096, 1536, 0)):
            I(f"buffer_load_dword v{244+i}, v240, s[12:15], s53 offen")
            if inc: I(f"s_add_u32 s53, s53, {inc}")
    I("s_lshr_b32 s52, s36, 4")
    I("s_mul_i32 s52, s52, 55296")
    I("v_lshl_add_u32 v3, v12, 4, s52")
    for jd in range(1, 5):
        I(f"v_add_u32 v{3+jd}, {jd*55296}, v3")
    I("s_lshr_b32 s52, s37, 4")
    I("s_mul_i32 s52, s52, 55296")
    I("v_lshl_add_u32 v8, v12, 4, s52")
    for js in range(1, 4):
        I(f"v_add_u32 v{8+js}, {js*55296}, v8")
    def acc(jd, js): return (js*5 + jd)*4
    FRB = 16
    NB = 5
    def ld(buf):
        f = FRB + buf*36
        I("s_cmp_lt_u32 s44, s39")
        I("s_cselect_b32 s48, s46, 0x40000000")
        for jd in range(5):
            r = f + 4*jd
            I(f"buffer_load_dwordx4 v[{r}:{r+3}], v{3+jd}, s[8:11], s48 offen{CP}")
        for js in range(4):
            r = f + 20 + 4*js
            I(f"buffer_load_dwordx4 v[{r}:{r+3}], v{8+js}, s[12:15], s48 offen{CP}")
        I("s_add_u32 s46, s46, 1024")
        I("s_cmp_ge_u32 s46, s47")
        I("s_cselect_b32 s46, s45, s46")
        I("s_add_u32 s44, s44, 1")
    def mm(buf):
        f = FRB + buf*36
        for js in range(4):
            for jd in range(5):
                c = acc(jd, js)
                a = f + 4*jd; b = f + 20 + 4*js
                I(f"v_mfma_f32_16x16x32_bf16 a[{c}:{c+3}], v[{a}:{a+3}], v[{b}:{b+3}], a[{c}:{c+3}]")
    YF = 196; XX = 216
    FINL = -1
    for f_ in FLAGS:
        if f_.startswith('finl'): FINL = int(f_[4:])
    def epi_loads():
        I("s_lshr_b32 s41, s3, 1")
        I("s_lshl_b32 s41, s41, 5")
        I("s_add_u32 s41, s41, s37")
        I("s_lshl_b32 s41, s41, 1")
        I("v_add_u32 v14, s36, v1")
        I("v_lshlrev_b32 v14, 12, v14")
        I("v_lshl_add_u32 v14, v2, 4, v14")
        I("v_add_u32 v14, s41, v14")
        YF = 196
        for jd in range(5):
            I(f"v_add_u32 v15, {jd*16*4096}, v14")
            I(f"buffer_load_dwordx4 v[{YF+4*jd}:{YF+4*jd+3}], v15, s[16:19], 0 offen")
        I("s_lshl_b32 s42, s3, 4")
        I("s_add_u32 s42, s42, s37")
        I("v_add_u32 v15, s42, v1")
        I("v_mul_u32_u24 v15, 0x500, v15")
        I("v_lshl_add_u32 v15, v2, 3, v15")
        I("s_lshl_b32 s43, s36, 1")
        I("v_add_u32 v15, s43, v15")
        XX = 216
        I("s_lshr_b32 s50, s42, 4")
        I("s_mul_i32 s50, s50, 20480")
        I("v_lshrrev_b32 v14, 1, v2")
        I("v_lshlrev_b32 v14, 8, v14")
        I("v_lshl_add_u32 v14, v1, 4, v14")
        I("v_and_b32 v13, 1, v2")
        I("v_lshl_add_u32 v14, v13, 3, v14")
        I("v_add_u32 v14, s50, v14")
        if FUSE:
            I("v_add_u32 v14, s42, v1")
            I("v_lshlrev_b32 v14, 3, v14")
            I(f"buffer_load_dwordx2 v[{XX+10}:{XX+11}], v14, s[20:23], 0 offen")
        for jd in range(5):
            I(f"buffer_load_dwordx2 v[{XX+2*jd}:{XX+2*jd+1}], v15, s[24:27], 0 offen offset:{32*jd}")
            if FUSE: continue
            I(f"s_add_u32 s50, s36, {16*jd}")
            I("s_lshr_b32 s51, s50, 5")
            I("s_lshl_b32 s51, s51, 10")
            I("s_and_b32 s50, s50, 16")
            I("s_lshl_b32 s50, s50, 5")
            I("s_add_u32 s51, s51, s50")
            I(f"buffer_load_dwordx2 v[{XX+10+2*jd}:{XX+11+2*jd}], v14, s[20:23], s51 offen")
    if FINL < 0: epi_loads()
    NB2 = NB
    for f_ in FLAGS:
        if f_.startswith("nb"): NB2 = int(f_[2:])
    def breg(buf, i):
        if buf < 5: return "v", FRB + buf*36 + 4*i
        return "a", 80 + (buf-5)*36 + 4*i
    def ld2(buf):
        for jd in range(5):
            t, r = breg(buf, jd)
            I(f"buffer_load_dwordx4 {t}[{r}:{r+3}], v{3+jd}, s[8:11], s46 offen{CP}")
        for js in range(4):
            t, r = breg(buf, 5+js)
            I(f"buffer_load_dwordx4 {t}[{r}:{r+3}], v{8+js}, s[12:15], s46 offen{CP}")
        I("s_add_u32 s46, s46, 1024")
    def mm2(buf):
        for js in range(4):
            for jd in range(5):
                c = acc(jd, js)
                t, a = breg(buf, jd); t, b = breg(buf, 5+js)
                I(f"v_mfma_f32_16x16x32_bf16 a[{c}:{c+3}], {t}[{a}:{a+3}], {t}[{b}:{b+3}], a[{c}:{c+3}]")
    for b in range(NB2-1):
        ld2(b)
    if FINL >= 0: epi_loads()
    for j in range(80):
        I(f"v_accvgpr_write_b32 a{j}, 0")
    HOIST = "hoist" in FLAGS
    def hoisted():
        IDB2, TQ, TYQ = 244, 248, 236
        I("s_and_b32 s44, s3, 1")
        I("s_lshl_b32 s44, s44, 4")
        I(f"v_add_u32 v{TQ}, s44, v1")
        I(f"v_lshrrev_b32 v{TQ+1}, 3, v{TQ}")
        I(f"v_cmp_eq_u32 vcc, v{TQ+1}, v2")
        I(f"v_and_b32 v{TQ+1}, 7, v{TQ}")
        I(f"v_and_b32 v{TQ+2}, 1, v{TQ+1}")
        I(f"v_lshlrev_b32 v{TQ+2}, 4, v{TQ+2}")
        I(f"v_mov_b32 v{TQ+3}, 0x3f80")
        I(f"v_lshlrev_b32 v{TQ+3}, v{TQ+2}, v{TQ+3}")
        I(f"v_lshrrev_b32 v{TQ+1}, 1, v{TQ+1}")
        I(f"v_cndmask_b32 v{TQ+3}, 0, v{TQ+3}, vcc")
        for j in range(4):
            I(f"v_cmp_eq_u32 vcc, {j}, v{TQ+1}")
            I("s_nop 1")
            I(f"v_cndmask_b32 v{IDB2+j}, 0, v{TQ+3}, vcc")
        if FINL < 0: I(f"s_waitcnt vmcnt({9*(NB2-1)})")
        I("s_nop 1")
        for jd in range(5):
            ty = TYQ + (jd % 2)*4; t = TQ + (jd % 2)*4
            x0 = XX + 2*jd; n0 = XX + 10 + 2*jd
            I(f"v_mfma_f32_16x16x32_bf16 v[{ty}:{ty+3}], v[{YF+4*jd}:{YF+4*jd+3}], v[{IDB2}:{IDB2+3}], 0")
            if FUSE:
                lo16(t, x0); hi16(t+1, x0); lo16(t+2, x0+1); hi16(t+3, x0+1)
                for r in range(4): I(f"v_add_f32 v{t+r}, v{t+r}, v{XX+11}")
                for r in range(4): I(f"v_cvt_pk_bf16_f32 v{t+r}, 0, v{t+r}")
                for r in range(4): I(f"v_mul_f32 v{t+r}, v{t+r}, v{XX+10}")
                for r in range(4): I(f"v_cvt_pk_bf16_f32 v{t+r}, 0, v{t+r}")
            else:
                lo16(t, n0); hi16(t+1, n0); lo16(t+2, n0+1); hi16(t+3, n0+1)
            I("s_nop 7")
            I("s_nop 3")
            for r in range(4):
                I(f"v_mul_f32 v{t+r}, v{t+r}, v{ty+r}")
            I(f"v_cvt_pk_bf16_f32 v{ty}, v{t}, v{t+1}")
            I(f"v_cvt_pk_bf16_f32 v{ty+1}, v{t+2}, v{t+3}")
            lo16(t, ty); hi16(t+1, ty); lo16(t+2, ty+1); hi16(t+3, ty+1)
            lo16(ty, x0); hi16(ty+1, x0); lo16(ty+2, x0+1); hi16(ty+3, x0+1)
            for r in range(4):
                I(f"v_add_f32 v{t+r}, v{t+r}, v{ty+r}")
            I(f"v_cvt_pk_bf16_f32 v{x0}, v{t}, v{t+1}")
            I(f"v_cvt_pk_bf16_f32 v{x0+1}, v{t+2}, v{t+3}")
    if HOIST and FINL < 0: hoisted()
    stamp()
    NEL = 11
    for k in range(14):
        nb = k + NB2 - 1
        if nb <= 12:
            ld2(nb % NB2)
        elif nb == 13:
            I("s_cmp_ge_u32 s3, 2")
            I("s_cbranch_scc1 F_skip13")
            ld2(nb % NB2)
            e("F_skip13:")
        if k == 13:
            I("s_cmp_ge_u32 s3, 2")
            I("s_cbranch_scc1 F_done")
        rem = max(0, min(12, nb) - k)
        extra = NEL if (FINL >= 0 and k < NB2 - 1) else 0
        if k < 13: I(f"s_waitcnt vmcnt({min(63, 9*rem + extra)})")
        mm2(k % NB2)
        if HOIST and FINL >= 0 and k == max(FINL, NB2 - 1): hoisted()
        if "fst" in FLAGS and k in (0, 3, 7): stamp()
    e("F_done:")
    stamp()
    I("s_mul_i32 s40, s3, 20480")
    I("v_lshlrev_b32 v13, 4, v12")
    I("v_add_u32 v13, s40, v13")
    I("s_nop 7")
    for js in range(4):
        for jd in range(5):
            c = acc(jd, js)
            I(f"ds_write_b128 v13, a[{c}:{c+3}] offset:{(js*5+jd)*1024}")
    I("s_waitcnt lgkmcnt(0)")
    I("s_barrier")
    I("s_mul_i32 s40, s3, 5120")
    I("v_lshlrev_b32 v12, 4, v12")
    I("v_add_u32 v13, s40, v12")
    I("v_add_u32 v12, 40960, v13")
    R = 96
    for src in range(4):
        for jd in range(5):
            r = R + (src*5 + jd)*4
            I(f"ds_read_b128 v[{r}:{r+3}], v{13 if src < 2 else 12} offset:{(src%2)*20480 + jd*1024}")
    if HOIST:
        I("s_waitcnt lgkmcnt(0)")
        for jd in range(5):
            r0 = R + jd*4
            I(f"v_add_f32 v{r0}, v{r0}, v{R+(5+jd)*4}")
            I(f"v_add_f32 v{r0+1}, v{r0+1}, v{R+(5+jd)*4+1}")
            I(f"v_add_f32 v{r0+2}, v{r0+2}, v{R+(5+jd)*4+2}")
            I(f"v_add_f32 v{r0+3}, v{r0+3}, v{R+(5+jd)*4+3}")
            for src in range(2, 4):
                r = R + (src*5 + jd)*4
                for j in range(4):
                    I(f"v_add_f32 v{r0+j}, v{r0+j}, v{r+j}")
            b = r0; t = 16 + (jd % 2)*16; x0 = XX + 2*jd
            I(f"v_cvt_pk_bf16_f32 v{t+4}, v{b}, v{b+1}")
            I(f"v_cvt_pk_bf16_f32 v{t+5}, v{b+2}, v{b+3}")
            lo16(t, x0); hi16(t+1, x0); lo16(t+2, x0+1); hi16(t+3, x0+1)
            lo16(t+6, t+4); hi16(t+7, t+4); lo16(t+8, t+5); hi16(t+9, t+5)
            for r in range(4):
                I(f"v_add_f32 v{t+r}, v{t+r}, v{t+6+r}")
            I(f"v_cvt_pk_bf16_f32 v{t+10}, v{t}, v{t+1}")
            I(f"v_cvt_pk_bf16_f32 v{t+11}, v{t+2}, v{t+3}")
            I(f"buffer_store_dwordx2 v[{t+10}:{t+11}], v15, s[32:35], 0 offen offset:{32*jd}")
    else:
        IDB = 60
        I("s_and_b32 s44, s3, 1")
        I("s_lshl_b32 s44, s44, 4")
        I("v_add_u32 v64, s44, v1")
        I("v_lshrrev_b32 v65, 3, v64")
        I("v_cmp_eq_u32 vcc, v65, v2")
        I("v_and_b32 v65, 7, v64")
        I("v_and_b32 v66, 1, v65")
        I("v_lshlrev_b32 v66, 4, v66")
        I("v_mov_b32 v67, 0x3f80")
        I("v_lshlrev_b32 v67, v66, v67")
        I("v_lshrrev_b32 v65, 1, v65")
        I("v_cndmask_b32 v67, 0, v67, vcc")
        for j in range(4):
            I(f"v_cmp_eq_u32 vcc, {j}, v65")
            I("s_nop 1")
            I(f"v_cndmask_b32 v{IDB+j}, 0, v67, vcc")
        TY = 64
        I("s_nop 1")
        for jd in range(5):
            I(f"v_mfma_f32_16x16x32_bf16 v[{TY+4*jd}:{TY+4*jd+3}], v[{YF+4*jd}:{YF+4*jd+3}], v[{IDB}:{IDB+3}], 0")
        I("s_waitcnt lgkmcnt(0)")
        for jd in range(5):
            r0 = R + jd*4
            for src in range(1, 4):
                r = R + (src*5 + jd)*4
                for j in range(4):
                    I(f"v_add_f32 v{r0+j}, v{r0+j}, v{r+j}")
        I("s_waitcnt vmcnt(0)")
        for jd in range(5):
            b = R + jd*4
            ty = TY + 4*jd
            t = 180 + (jd % 2)*16
            x0 = XX + 2*jd; n0 = XX + 10 + 2*jd
            lo16(t, n0); hi16(t+1, n0); lo16(t+2, n0+1); hi16(t+3, n0+1)
            for r in range(4):
                I(f"v_mul_f32 v{t+r}, v{t+r}, v{ty+r}")
            I(f"v_cvt_pk_bf16_f32 v{t+4}, v{t}, v{t+1}")
            I(f"v_cvt_pk_bf16_f32 v{t+5}, v{t+2}, v{t+3}")
            lo16(t, t+4); hi16(t+1, t+4); lo16(t+2, t+5); hi16(t+3, t+5)
            lo16(t+6, x0); hi16(t+7, x0); lo16(t+8, x0+1); hi16(t+9, x0+1)
            for r in range(4):
                I(f"v_add_f32 v{t+r}, v{t+r}, v{t+6+r}")
            I(f"v_cvt_pk_bf16_f32 v{t+4}, v{t}, v{t+1}")
            I(f"v_cvt_pk_bf16_f32 v{t+5}, v{t+2}, v{t+3}")
            lo16(t, t+4); hi16(t+1, t+4); lo16(t+2, t+5); hi16(t+3, t+5)
            I(f"v_cvt_pk_bf16_f32 v{t+4}, v{b}, v{b+1}")
            I(f"v_cvt_pk_bf16_f32 v{t+5}, v{b+2}, v{b+3}")
            lo16(t+6, t+4); hi16(t+7, t+4); lo16(t+8, t+5); hi16(t+9, t+5)
            for r in range(4):
                I(f"v_add_f32 v{t+r}, v{t+r}, v{t+6+r}")
            I(f"v_cvt_pk_bf16_f32 v{t+10}, v{t}, v{t+1}")
            I(f"v_cvt_pk_bf16_f32 v{t+11}, v{t+2}, v{t+3}")
            I(f"buffer_store_dwordx2 v[{t+10}:{t+11}], v15, s[32:35], 0 offen offset:{32*jd}")
    I("s_waitcnt vmcnt(0)")
    stamp()
    stamp_dump(9)
    e("F_exit:")
    I("s_endpgm")
    kernel_desc("fin_kernel", 256+80+36*max(0, NB2-5), 80, accum=256)

def gen_k0():
    kernel_header("init_kernel")
    I(f"s_cmp_ge_u32 s2, {NK0}")
    I("s_cbranch_scc1 I_exit")
    I("s_load_dwordx2 s[6:7], s[0:1], 96")
    I("s_load_dwordx2 s[4:5], s[0:1], 72")
    I("v_lshrrev_b32 v1, 6, v0")
    I("s_nop 0")
    I("v_readfirstlane_b32 s3, v1")
    I("s_lshl_b32 s24, s2, 2")
    I("s_add_u32 s24, s24, s3")
    I("s_min_u32 s24, s24, 269")
    I("s_mul_i32 s17, s24, 0xCCCD")
    I("s_lshr_b32 s17, s17, 19")
    I("s_mul_i32 s18, s17, 10")
    I("s_sub_u32 s18, s24, s18")
    I("v_and_b32 v1, 7, v0")
    I("v_bfe_u32 v2, v0, 3, 2")
    I("v_bfe_u32 v6, v0, 5, 1")
    I("s_lshl_b32 s18, s18, 6")
    I("v_lshl_add_u32 v1, v1, 3, s18")
    I("s_lshl_b32 s19, s17, 1")
    I("v_add_u32 v6, s19, v6")
    I("v_lshlrev_b32 v7, 5, v6")
    I("v_lshl_add_u32 v7, v2, 2, v7")
    I("v_mul_u32_u24 v3, 0x500, v7")
    I("v_lshl_add_u32 v3, v1, 1, v3")
    I("v_add_u32 v4, 0x5000, v3")
    I("s_waitcnt lgkmcnt(0)")
    srd(8, 4, SZ_W)
    srd(12, 6, SZ_W, WS_WDT)
    for i in range(8):
        b = 3 if i < 4 else 4
        I(f"buffer_load_dwordx4 v[{8+4*i}:{11+4*i}], v{b}, s[8:11], 0 offen offset:{(i%4)*1280}")
    srd(28, 6, FL_SZ, WS_FL)
    I("s_lshl_b32 s25, s2, 12")
    I("v_lshlrev_b32 v72, 4, v0")
    for j in range(4): I(f"v_mov_b32 v{76+j}, 0")
    I("s_cmp_ge_u32 s2, 8")
    I("s_cbranch_scc1 I_noz")
    I("buffer_store_dwordx4 v[76:79], v72, s[28:31], s25 offen")
    e("I_noz:")
    I("s_mov_b32 s20, 0x05040100")
    I("s_mov_b32 s21, 0x07060302")
    I("v_lshrrev_b32 v5, 4, v1")
    I("v_mul_u32_u24 v5, 54, v5")
    I("v_add_u32 v5, v5, v6")
    I("v_lshlrev_b32 v5, 10, v5")
    I("v_lshl_add_u32 v5, v2, 8, v5")
    I("v_and_b32 v7, 15, v1")
    I("v_lshl_add_u32 v5, v7, 4, v5")
    I("s_waitcnt vmcnt(0)")
    for dd in range(8):
        ob = 40 + 4*dd
        sel = 20 + (dd & 1)
        for q in range(4):
            I(f"v_perm_b32 v{ob+q}, v{8+4*(2*q+1)+dd//2}, v{8+4*(2*q)+dd//2}, s{sel}")
        I(f"buffer_store_dwordx4 v[{ob}:{ob+3}], v5, s[12:15], 0 offen offset:{16*dd}")
    e("I_exit:")
    I("s_endpgm")
    kernel_desc("init_kernel", 80, 40)
NK0 = 68

def main():
    hdr = open("parallel_sum__ssm_conv_h3__glu_gated_bilinear__prompt.s.ref").read().splitlines()
    for line in hdr:
        if line.startswith("; @launch"):
            break
        if line.startswith(";"):
            e(line)
    if "k0" in FLAGS: e(f"; @launch kernel=init_kernel grid=({NK0},1,1) block=(256,1,1) lds=0")
    if not FUSE: e(f"; @launch kernel=prep_kernel grid=({N_LN+N_KV+N_PF},1,1) block=(256,1,1) lds=0")
    if BIG:
        e("; @launch kernel=mid_kernel grid=(256,1,1) block=(512,1,1) lds=163840")
    else:
        e(f"; @launch kernel=mid_kernel grid=({N_G1+N_CV},1,1) block=(256,1,1) lds={LDS2}")
    if not G2F: e(f"; @launch kernel=fin_kernel grid=(256,1,1) block=(256,1,1) lds=81920")
    e('.amdgcn_target "amdgcn-amd-amdhsa--gfx950"')
    if not FUSE: gen_prep()
    if "k0" in FLAGS: gen_k0()
    gen_k2()
    if not G2F: gen_k3()
    dst = sys.argv[1] if len(sys.argv) > 1 else "parallel_sum__ssm_conv_h3__glu_gated_bilinear__prompt.s"
    open(dst, "w").write("\n".join(out) + "\n")

main()
```

```python
import sys

import os
FLAGS = os.environ.get("GENFLAGS", "").split(",")
CP = " nt" if "cpnt" in FLAGS else (" sc1" if "cpsc1" in FLAGS else (" sc0 sc1" if "cpsc01" in FLAGS else ""))
S, D, F = 2048, 640, 1728
WS_XN  = 0x0
WS_KVR = 0x280000
WS_WDT = 0x500000
WS_H   = 0x800000
WS_YT  = 0x1000000
WS_ST  = 0x1400000
FUSE = "fuse" in FLAGS
SZ_SD = S * D * 2
SZ_W  = D * F * 2
SZ_H  = S * F * 2

out = []
def e(s=""):
    out.append(s)
SP = " nt" if "stnt" in FLAGS else (" sc0 sc1" if "stsc" in FLAGS else (" sc1" if "stsc1" in FLAGS else (" sc0 sc1 nt" if "stall" in FLAGS else "")))
def I(s):
    if s.startswith("buffer_store") and "s[56:59]" not in s: s += SP
    out.append("    " + s)

def srd(base, ptr, size, off=0):
    if off:
        I(f"s_add_u32 s{base}, s{ptr}, {off:#x}")
        I(f"s_addc_u32 s{base+1}, s{ptr+1}, 0")
    else:
        I(f"s_mov_b32 s{base}, s{ptr}")
        I(f"s_mov_b32 s{base+1}, s{ptr+1}")
    I(f"s_mov_b32 s{base+2}, {size:#x}")
    I(f"s_mov_b32 s{base+3}, 0x00020000")

def lo16(dst, src): I(f"v_lshlrev_b32 v{dst}, 16, v{src}")
def hi16(dst, src): I(f"v_and_b32 v{dst}, 0xffff0000, v{src}")

STAMP = "stamp" in FLAGS
nst = [0]
def stamp():
    if STAMP:
        i = nst[0]; nst[0] += 1
        I(f"s_memtime s[{60+2*i}:{61+2*i}]")
def stamp_dump(wg):
    if not STAMP: return
    n = nst[0]; nst[0] = 0
    if "ast" in FLAGS:
        kidx = 1 if wg == 9 else 0
        I("s_waitcnt lgkmcnt(0) vmcnt(0)")
        I("s_load_dwordx2 s[56:57], s[0:1], 96")
        I("s_memrealtime s[58:59]")
        I("s_waitcnt lgkmcnt(0)")
        I("v_mov_b32 v3, s58")
        I(f"s_add_u32 s56, s56, {0x1800000 + kidx*0x40000}")
        I("s_addc_u32 s57, s57, 0")
        I("s_mov_b32 s58, 0x40000")
        I("s_mov_b32 s59, 0x00020000")
        I("s_lshl_b32 s61, s2, 3")
        I("s_add_u32 s61, s61, s3")
        I("s_lshl_b32 s61, s61, 6")
        I("v_mov_b32 v1, s61")
        I("buffer_store_dword v3, v1, s[56:59], 0 offen")
        for i in range(1, n):
            I(f"s_sub_u32 s{61+2*i}, s{60+2*i}, s60")
            I(f"v_mov_b32 v2, s{61+2*i}")
            I(f"buffer_store_dword v2, v1, s[56:59], 0 offen offset:{4*i}")
        I("s_waitcnt vmcnt(0)")
        return
    I("s_waitcnt lgkmcnt(0) vmcnt(0)")
    I(f"s_cmp_lg_u32 s2, {wg}")
    I(f"s_cbranch_scc1 SD_skip{wg}")
    I("s_cmp_lg_u32 s3, 0")
    I(f"s_cbranch_scc1 SD_skip{wg}")
    I("s_load_dwordx2 s[56:57], s[0:1], 88")
    I("s_waitcnt lgkmcnt(0)")
    I("s_mov_b32 s58, 256")
    I("s_mov_b32 s59, 0x00020000")
    I("v_mov_b32 v1, 0")
    for i in range(n):
        I(f"s_sub_u32 s{61+2*i}, s{60+2*i}, s60")
        I(f"v_mov_b32 v2, s{61+2*i}")
        I(f"buffer_store_dword v2, v1, s[56:59], 0 offen offset:{4*i + (64 if wg == 255 else 0)}")
    I("s_waitcnt vmcnt(0)")
    e(f"SD_skip{wg}:")

WGT = "wgt" in FLAGS
def wgt_start():
    if WGT: I("s_memrealtime s[76:77]")
wgtn = [0]
def wgt_end(kidx):
    if not WGT: return
    n = wgtn[0]; wgtn[0] += 1
    I("s_waitcnt vmcnt(0) lgkmcnt(0)")
    I("s_memrealtime s[78:79]")
    I("s_load_dwordx2 s[72:73], s[0:1], 96")
    I("v_lshrrev_b32 v1, 6, v0")
    I("s_nop 0")
    I("v_readfirstlane_b32 s70, v1")
    I("s_lshl_b32 s71, s2, 3")
    I("s_add_u32 s70, s70, s71")
    I("s_lshl_b32 s70, s70, 3")
    I("s_waitcnt lgkmcnt(0)")
    I(f"s_add_u32 s72, s72, {0x1800000 + kidx*0x10000}")
    I("s_addc_u32 s73, s73, 0")
    I("s_mov_b32 s74, 0x10000")
    I("s_mov_b32 s75, 0x00020000")
    I("v_mov_b32 v2, s76")
    I("v_mov_b32 v3, s78")
    I("v_mov_b32 v1, s70")
    I("buffer_store_dwordx2 v[2:3], v1, s[72:75], 0 offen")
    I("s_waitcnt vmcnt(0)")

def kernel_header(name):
    e(".text")
    e(f".globl {name}")
    e(".p2align 8")
    e(f".type {name},@function")
    e(f"{name}:")

def kernel_desc(name, vgpr, sgpr, accum=None):
    if accum is None:
        accum = (vgpr + 3) // 4 * 4
    e('.section .rodata,"a"')
    e(".p2align 6")
    e(f".amdhsa_kernel {name}")
    e(f"  .amdhsa_next_free_vgpr {vgpr}")
    e(f"  .amdhsa_next_free_sgpr {sgpr}")
    e(f"  .amdhsa_accum_offset {accum}")
    e("  .amdhsa_group_segment_fixed_size 0")
    e("  .amdhsa_kernarg_size 104")
    e("  .amdhsa_user_sgpr_count 2")
    e("  .amdhsa_user_sgpr_kernarg_segment_ptr 1")
    e("  .amdhsa_system_sgpr_workgroup_id_x 1")
    e(".end_amdhsa_kernel")

N_LN, N_KV = 128, 160
N_PF = 0
if "pfw" in FLAGS: N_PF = 4*36
if "pfw2" in FLAGS: N_PF = 2*36
def gen_prep():
    kernel_header("prep_kernel")
    I(f"s_cmp_ge_u32 s2, {N_LN+N_KV+N_PF}")
    I("s_cbranch_scc1 P_exit")
    if N_PF:
        I(f"s_cmp_ge_u32 s2, {N_LN+N_KV}")
        I("s_cbranch_scc1 P_pf")
    I("s_load_dwordx2 s[6:7], s[0:1], 96")
    I(f"s_cmp_lt_u32 s2, {N_KV}")
    I("s_cbranch_scc1 P_kv")
    if "noln" in FLAGS: I("s_endpgm")
    I("s_load_dwordx2 s[4:5], s[0:1], 0")
    I("v_lshrrev_b32 v1, 4, v0")
    I(f"s_sub_u32 s3, s2, {N_KV}")
    I("s_lshl_b32 s3, s3, 4")
    I("v_add_u32 v1, s3, v1")
    I("v_mul_u32_u24 v2, 0x500, v1")
    I("v_and_b32 v3, 15, v0")
    I("v_lshl_add_u32 v2, v3, 4, v2")
    I("s_waitcnt lgkmcnt(0)")
    srd(8, 4, SZ_SD)
    srd(12, 6, SZ_SD, WS_XN)
    for j in range(5):
        I(f"buffer_load_dwordx4 v[{4+4*j}:{7+4*j}], v2, s[8:11], 0 offen offset:{256*j}")
    I("v_lshrrev_b32 v2, 4, v1")
    I("v_mul_u32_u24 v2, 20480, v2")
    I("v_lshrrev_b32 v64, 2, v3")
    I("v_lshl_add_u32 v2, v64, 10, v2")
    I("v_and_b32 v64, 3, v3")
    I("v_lshl_add_u32 v2, v64, 8, v2")
    I("v_and_b32 v64, 15, v1")
    I("v_lshl_add_u32 v2, v64, 4, v2")
    I("s_waitcnt vmcnt(0)")
    X = 24
    for j in range(20):
        lo16(X + 2*j, 4 + j)
        hi16(X + 2*j + 1, 4 + j)
    T = 64
    for j in range(20):
        I(f"v_add_f32 v{T+j}, v{X+2*j}, v{X+2*j+1}")
    def tree(base, n):
        while n > 1:
            h = n // 2
            for j in range(h):
                I(f"v_add_f32 v{base+j}, v{base+j}, v{base+n-1-j}")
            n = n - h
    tree(T, 20)
    def dpp_reduce(r, tmp):
        for sh in (8, 4, 2, 1):
            I("s_nop 1")
            I(f"v_add_f32_dpp v{tmp}, v{r}, v{r} row_ror:{sh} row_mask:0xf bank_mask:0xf")
            I(f"v_mov_b32 v{r}, v{tmp}")
    dpp_reduce(T, T+1)
    I(f"v_mul_f32 v{T}, {1.0/640.0!r}, v{T}")
    for j in range(40):
        I(f"v_sub_f32 v{T+2+j}, v{X+j}, v{T}")
    for j in range(40):
        I(f"v_mul_f32 v{T+2+j}, v{T+2+j}, v{T+2+j}")
    tree(T+2, 40)
    dpp_reduce(T+2, T+1)
    I(f"v_mul_f32 v{T+2}, {1.0/640.0!r}, v{T+2}")
    I(f"v_cvt_pk_bf16_f32 v{T}, v{T}, v{T+2}")
    hi16(T+2, T)
    lo16(T, T)
    I(f"v_add_f32 v{T+2}, {1e-5!r}, v{T+2}")
    I(f"v_cvt_pk_bf16_f32 v{T+2}, v{T+2}, v{T+2}")
    lo16(T+2, T+2)
    I(f"v_sqrt_f32 v{T+2}, v{T+2}")
    I("s_nop 0")
    I(f"v_cvt_pk_bf16_f32 v{T+2}, v{T+2}, v{T+2}")
    lo16(T+2, T+2)
    I(f"v_rcp_f32 v{T+3}, v{T+2}")
    I("s_nop 0")
    for j in range(20):
        a, b = X + 2*j, X + 2*j + 1
        I(f"v_sub_f32 v{a}, v{a}, v{T}")
        I(f"v_sub_f32 v{b}, v{b}, v{T}")
        I(f"v_cvt_pk_bf16_f32 v{T+4}, v{a}, v{b}")
        lo16(a, T+4)
        hi16(b, T+4)
        for r in (a, b):
            I(f"v_mul_f32 v{T+5}, v{r}, v{T+3}")
            I(f"v_fma_f32 v{T+6}, -v{T+5}, v{T+2}, v{r}")
            I(f"v_fma_f32 v{r}, v{T+6}, v{T+3}, v{T+5}")
        I(f"v_cvt_pk_bf16_f32 v{4+j}, v{a}, v{b}")
        if j % 4 == 3:
            jj = j // 4
            I(f"s_mov_b32 s16, {4096*jj}")
            I(f"buffer_store_dwordx4 v[{4+4*jj}:{7+4*jj}], v2, s[12:15], s16 offen")
    I("s_endpgm")
    e("P_kv:")
    if "nokv" in FLAGS: I("s_endpgm")
    I("s_load_dwordx4 s[16:19], s[0:1], 8")
    I("s_load_dwordx2 s[4:5], s[0:1], 24")
    I("s_mul_i32 s28, s2, 0xCCCD")
    I("s_lshr_b32 s28, s28, 19")
    I("s_mul_i32 s29, s28, 10")
    I("s_sub_u32 s29, s2, s29")
    I("v_and_b32 v1, 7, v0")
    I("v_lshrrev_b32 v2, 3, v0")
    I("s_lshl_b32 s30, s29, 6")
    I("v_lshl_add_u32 v1, v1, 3, s30")
    I("s_lshl_b32 s31, s28, 7")
    I("v_lshl_add_u32 v2, v2, 2, s31")
    I("v_mul_u32_u24 v3, 0x500, v2")
    I("v_lshl_add_u32 v3, v1, 1, v3")
    for i in range(3):
        I(f"v_subrev_u32 v{5+i}, {(3-i)*1280:#x}, v3")
    I("v_lshlrev_b32 v8, 3, v1")
    I("s_waitcnt lgkmcnt(0)")
    srd(8, 16, SZ_SD)
    srd(12, 18, SZ_SD)
    srd(20, 4, D*4*2)
    srd(24, 6, SZ_SD, WS_KVR)
    KR = 16
    for i in range(3):
        I(f"buffer_load_dwordx4 v[{KR+4*i}:{KR+4*i+3}], v{5+i}, s[8:11], 0 offen")
    for i in range(4):
        I(f"buffer_load_dwordx4 v[{KR+4*(i+3)}:{KR+4*(i+3)+3}], v3, s[8:11], 0 offen offset:{i*1280}")
    VR = KR + 28
    for i in range(4):
        I(f"buffer_load_dwordx4 v[{VR+4*i}:{VR+4*i+3}], v3, s[12:15], 0 offen offset:{i*1280}")
    SK = VR + 16
    for i in range(4):
        I(f"buffer_load_dwordx4 v[{SK+4*i}:{SK+4*i+3}], v8, s[20:23], 0 offen offset:{16*i}")
    I("v_lshlrev_b32 v9, 12, v1")
    I(f"v_sub_u32 v10, {S-4}, v2")
    I("v_lshl_add_u32 v9, v10, 1, v9")
    I("s_waitcnt vmcnt(0)")
    KF = 76
    VF = 83
    SF = 87
    TM = 92
    OB = 104
    for dd in range(8):
        ex = lo16 if dd % 2 == 0 else hi16
        for i in range(7):
            ex(KF + i, KR + 4*i + dd//2)
        for i in range(4):
            ex(VF + i, VR + 4*i + dd//2)
        lo16(SF+0, SK + 2*dd); hi16(SF+1, SK + 2*dd)
        lo16(SF+2, SK + 2*dd + 1); hi16(SF+3, SK + 2*dd + 1)
        ob = OB + 2*(dd % 4)
        for q in range(2):
            sa, sb = 3 - 2*q, 2 - 2*q
            t = TM
            I(f"v_mul_f32 v{t}, v{KF+sa}, v{SF+3}")
            I(f"v_mul_f32 v{t+1}, v{KF+sb}, v{SF+3}")
            I(f"v_mul_f32 v{t+2}, v{KF+sa+1}, v{SF+2}")
            I(f"v_mul_f32 v{t+3}, v{KF+sb+1}, v{SF+2}")
            I(f"v_mul_f32 v{t+4}, v{KF+sa+2}, v{SF+1}")
            I(f"v_mul_f32 v{t+5}, v{KF+sb+2}, v{SF+1}")
            I(f"v_mul_f32 v{t+6}, v{KF+sa+3}, v{SF+0}")
            I(f"v_mul_f32 v{t+7}, v{KF+sb+3}, v{SF+0}")
            for p in range(4):
                I(f"v_cvt_pk_bf16_f32 v{t+8+p}, v{t+2*p}, v{t+2*p+1}")
            for p in range(4):
                lo16(t+2*p, t+8+p); hi16(t+2*p+1, t+8+p)
            for step in (1, 2, 3):
                I(f"v_add_f32 v{t}, v{t}, v{t+2*step}")
                I(f"v_add_f32 v{t+1}, v{t+1}, v{t+2*step+1}")
                I(f"v_cvt_pk_bf16_f32 v{t+8}, v{t}, v{t+1}")
                lo16(t, t+8); hi16(t+1, t+8)
            I(f"v_mul_f32 v{t}, v{t}, v{VF+sa}")
            I(f"v_mul_f32 v{t+1}, v{t+1}, v{VF+sb}")
            I(f"v_cvt_pk_bf16_f32 v{ob+q}, v{t}, v{t+1}")
        I(f"s_mov_b32 s16, {4096*dd}")
        I(f"buffer_store_dwordx2 v[{ob}:{ob+1}], v9, s[24:27], s16 offen")
    if N_PF:
        I("s_endpgm")
        e("P_pf:")
        I(f"s_sub_u32 s3, s2, {N_LN+N_KV}")
        I("s_mul_i32 s4, s3, 1821")
        I("s_lshr_b32 s4, s4, 16")
        I("s_mul_i32 s5, s4, 36")
        I("s_sub_u32 s5, s3, s5")
        I("s_lshl_b32 s6, s4, 3")
        I("s_add_u32 s6, s6, 56")
        I("s_cmp_eq_u32 s4, 3")
        I("s_cselect_b32 s6, 32, s6")
        I("s_load_dwordx2 s[8:9], s[0:1], s6")
        I(f"s_mov_b32 s10, {SZ_W}")
        I(f"s_cselect_b32 s10, {SZ_SD}, s10")
        I("s_mov_b32 s11, 0x00020000")
        I("s_mov_b32 s7, 65536")
        I("s_cselect_b32 s7, 73728, s7")
        I("s_mul_i32 s5, s5, s7")
        I("v_lshlrev_b32 v1, 4, v0")
        I("s_waitcnt lgkmcnt(0)")
        for i in range(18):
            I(f"buffer_load_dwordx4 v[{4+4*i}:{7+4*i}], v1, s[8:11], s5 offen")
            I("s_add_u32 s5, s5, 4096")
        I("s_waitcnt vmcnt(0)")
    e("P_exit:")
    I("s_endpgm")
    kernel_desc("prep_kernel", 112, 40)

BF = 112
NSLOT = 5
SLOT = 16384
LDS2 = NSLOT * SLOT
N_G1, N_CV = 256, 256

class DSQ:
    def __init__(self): self.q = []
    def push(self, tag): self.q.append(tag)
    def wait_for(self, tag):
        if tag not in self.q: return
        idx = max(i for i, t in enumerate(self.q) if t == tag)
        n = len(self.q) - 1 - idx
        I(f"s_waitcnt lgkmcnt({min(n,15)})")
        self.q = self.q[idx+1:] if n <= 15 else self.q[len(self.q)-15:]

BIG = "big" in FLAGS
def gen_g1big():
    NF = 10; RS = 320; MS = 32*RS; SL = 2*MS; NS = 8; DB = 3; LA = 3; NST = 20
    for f_ in FLAGS:
        if f_.startswith("ns"): NS = int(f_[2:])
    DW = NS - 1
    stamp()
    I("s_load_dwordx4 s[16:19], s[0:1], 56")
    I(f"s_mul_i32 s25, s25, {16*NF}")
    I(f"s_min_u32 s25, s25, {F-16*NF}")
    I("v_and_b32 v1, 63, v0")
    PROD = "prod" in FLAGS
    if PROD:
        I("s_cmp_lt_u32 s3, 4")
        I("s_cbranch_scc1 G1_cons")
        DWP = 6
        I("s_lshl_b32 s27, s25, 1")
        for i in range(10):
            I(f"v_add_u32 v20, {64*i}, v1")
            I("v_mul_u32_u24 v21, 3277, v20")
            I("v_lshrrev_b32 v21, 16, v21")
            I("v_mul_u32_u24 v22, 20, v21")
            I("v_sub_u32 v22, v20, v22")
            I("v_bfe_u32 v23, v21, 3, 1")
            I("v_lshlrev_b32 v23, 1, v23")
            I("v_xor_b32 v22, v22, v23")
            I("v_mul_u32_u24 v21, 3456, v21")
            I("v_lshl_add_u32 v21, v22, 4, v21")
            I("v_add_u32 v21, s27, v21")
            I(f"v_subrev_u32 v{2+i}, {1024*(i%4)}, v21")
        I("s_sub_u32 s29, s3, 4")
        I(f"s_mul_i32 s29, s29, {MS}")
        I("s_waitcnt lgkmcnt(0)")
        I("s_cmp_ge_u32 s3, 5")
        I("s_cselect_b32 s4, s18, s16")
        I("s_cselect_b32 s5, s19, s17")
        srd(8, 4, SZ_W)
        pq = []
        def pdma(st):
            I(f"s_mov_b32 s28, {st*32*3456}")
            for i in range(10):
                if i % 4 == 0: I(f"s_add_u32 m0, s29, {(st % NS)*SL + (i//4)*4096}")
                I(f"buffer_load_dwordx4 v{2+i}, s[8:11], s28 offen offset:{1024*(i%4)} lds")
                pq.append(st)
        def pwait(st):
            idx = max(i for i, t in enumerate(pq) if t == st)
            I(f"s_waitcnt vmcnt({len(pq)-1-idx})")
            del pq[:idx+1]
        if "ramp" in FLAGS:
            for st in range(3): pdma(st)
            pwait(0)
            I("s_barrier")
            pdma(3); pdma(4)
            for st in range(NST-1):
                pwait(st+1)
                I("s_barrier")
                if st == 0: pdma(5)
                if st + DWP < NST: pdma(st + DWP)
        else:
            for st in range(DWP): pdma(st)
            pwait(0)
            I("s_barrier")
            for st in range(NST-1):
                pwait(st+1)
                I("s_barrier")
                if st + DWP < NST: pdma(st + DWP)
        I("s_endpgm")
        e("G1_cons:")
    I("s_and_b32 s26, s3, 1")
    I("s_lshl_b32 s26, s26, 4")
    I("s_lshl_b32 s27, s25, 1")
    for i in range(5 if not PROD else 0):
        I(f"v_add_u32 v10, {64*i}, v1")
        I("v_mul_u32_u24 v11, 3277, v10")
        I("v_lshrrev_b32 v11, 16, v11")
        I("v_mul_u32_u24 v12, 20, v11")
        I("v_sub_u32 v12, v10, v12")
        I("v_add_u32 v11, s26, v11")
        I("v_bfe_u32 v13, v11, 3, 1")
        I("v_lshlrev_b32 v13, 1, v13")
        I("v_xor_b32 v12, v12, v13")
        I("v_mul_u32_u24 v11, 3456, v11")
        I("v_lshl_add_u32 v11, v12, 4, v11")
        I("v_add_u32 v11, s27, v11")
        I(f"v_subrev_u32 v{2+i}, {1024*(i%4)}, v11")
    I("s_lshl_b32 s26, s24, 3")
    I("s_lshl_b32 s27, s3, 1")
    I("s_add_u32 s26, s26, s27")
    I("s_mul_i32 s27, s26, 20480")
    I("v_lshl_add_u32 v7, v1, 4, s27")
    I("v_add_u32 v8, 20480, v7")
    I("s_mul_i32 s27, s26, 55296")
    I("v_lshl_add_u32 v9, v1, 4, s27")
    I("v_add_u32 v10, 55296, v9")
    I("v_bfe_u32 v17, v0, 4, 2")
    I("v_bfe_u32 v18, v0, 2, 2")
    I("v_lshl_add_u32 v19, v17, 3, v18")
    I(f"v_mul_u32_u24 v19, {RS}, v19")
    I("v_and_b32 v18, 3, v0")
    I("v_lshl_add_u32 v19, v18, 3, v19")
    I("v_and_b32 v20, 1, v17")
    I("v_lshlrev_b32 v20, 5, v20")
    I("v_add_u32 v11, v19, v20")
    I("v_sub_u32 v12, v19, v20")
    ROLL = "roll" in FLAGS
    if ROLL:
        for k_, offs in ((1, 3*SL), (2, 4*SL), (3, 7*SL)):
            I(f"v_add_u32 v{11+2*k_}, {offs}, v11")
            I(f"v_add_u32 v{12+2*k_}, {offs}, v12")
    else:
        for rg in (1, 2):
            I(f"v_add_u32 v{11+2*rg}, {rg*3*SL}, v11")
            I(f"v_add_u32 v{12+2*rg}, {rg*3*SL}, v12")
    I("s_mul_i32 s29, s3, 5120")
    I("s_waitcnt lgkmcnt(0)")
    I("s_cmp_ge_u32 s3, 2")
    I("s_cselect_b32 s4, s18, s16")
    I("s_cselect_b32 s5, s19, s17")
    srd(8, 4, SZ_W)
    srd(12, 6, SZ_SD, WS_XN)
    srd(20, 6, SZ_H, WS_H)
    BB = 24; AF = 56; ACC = 80
    def acc(m, jf, js): return ACC + ((m*NF + jf)*2 + js)*4
    vq = []
    def vwait(tags):
        if not any(t in tags for t in vq): return
        idx = max(i for i, t in enumerate(vq) if t in tags)
        n = len(vq) - 1 - idx
        I(f"s_waitcnt vmcnt({n})")
        del vq[:idx+1]
    def dma(st):
        if PROD: return
        I(f"s_add_u32 m0, s29, {(st % NS)*SL}")
        I(f"s_mov_b32 s28, {st*32*3456}")
        for i in range(5):
            if i == 4: I(f"s_add_u32 m0, s29, {(st % NS)*SL + 4096}")
            I(f"buffer_load_dwordx4 v{2+i}, s[8:11], s28 offen offset:{1024*(i%4)} lds")
            vq.append(("D", st))
    def bld(st):
        I(f"s_mov_b32 s31, {st*1024}")
        for js in range(2):
            r = BB + (st % (DB+1))*8 + js*4
            I(f"buffer_load_dwordx4 v[{r}:{r+3}], v{7+js}, s[12:15], s31 offen")
            vq.append(("B", st))
    seq = [(m, jf) for m in range(2) for jf in range(NF)]
    NQ = len(seq)
    def rdx(gpos):
        st, idx = divmod(gpos, NQ)
        m, jf = seq[idx]
        slot = st % NS
        a = AF + (gpos % 4)*4
        va = 11 + 2*(slot // 3) + (jf & 1)
        off = (slot % 3)*SL + m*MS + jf*32
        return [f"ds_read_b64_tr_b16 v[{a}:{a+1}], v{va} offset:{off}",
                f"ds_read_b64_tr_b16 v[{a+2}:{a+3}], v{va} offset:{off+4*RS}"]
    for st in range(DW):
        dma(st)
        if ROLL:
            if st >= DW - DB: bld(st - (DW - DB))
        elif st < DB: bld(st)
    for j in range(4*2*2*NF):
        I(f"v_mov_b32 v{ACC+j}, 0")
    stamp()
    vwait([("D", 0)])
    I("s_barrier")
    for i in range(LA):
        for x in rdx(i): I(x)
    if ROLL:
        assert NS == 8
        I("s_mov_b32 s33, 0")
        I("s_mov_b32 s36, s29")
        I(f"s_add_u32 s37, s29, {4*SL}")
        I(f"s_mov_b32 s28, {DW*32*3456}")
        I(f"s_mov_b32 s31, {DB*1024}")
        def rdr(p, idx, ring):
            m, jf = seq[idx]
            a = AF + (ring % 4)*4
            if p < 3: va = 11 + (jf & 1); off = p*SL
            elif p == 3: va = 13 + (jf & 1); off = 0
            else: va = 15 + (jf & 1); off = 0
            off += m*MS + jf*32
            return [f"ds_read_b64_tr_b16 v[{a}:{a+1}], v{va} offset:{off}",
                    f"ds_read_b64_tr_b16 v[{a+2}:{a+3}], v{va} offset:{off+4*RS}"]
        e("G1_loop:")
        for p_ in range(4):
            I("s_waitcnt vmcnt(14)")
            I(f"s_cmp_lt_u32 s33, {4 if p_ < 2 else 3}")
            I(f"s_cbranch_scc1 G1_w{p_}")
            I("s_waitcnt vmcnt(2)")
            if p_ >= 2:
                I("s_cmp_lt_u32 s33, 4")
                I(f"s_cbranch_scc1 G1_w{p_}")
                I("s_waitcnt vmcnt(0)")
            e(f"G1_w{p_}:")
            I("s_barrier")
            I(f"s_cmp_ge_u32 s33, {4 if p_ == 0 else 3}")
            I(f"s_cbranch_scc1 G1_d{p_}")
            base, offs = ("s37", 3*SL) if p_ == 0 else ("s36", (p_-1)*SL)
            I(f"s_add_u32 m0, {base}, {offs}")
            for i in range(5):
                if i == 4: I(f"s_add_u32 m0, {base}, {offs + 4096}")
                I(f"buffer_load_dwordx4 v{2+i}, s[8:11], s28 offen offset:{1024*(i%4)} lds")
            I(f"s_add_u32 s28, s28, {32*3456}")
            e(f"G1_d{p_}:")
            if p_ > 0:
                I("s_cmp_ge_u32 s33, 4")
                I(f"s_cbranch_scc1 G1_b{p_}")
            for js in range(2):
                r = BB + ((p_ + DB) % 4)*8 + js*4
                I(f"buffer_load_dwordx4 v[{r}:{r+3}], v{7+js}, s[12:15], s31 offen")
            I("s_add_u32 s31, s31, 1024")
            if p_ > 0: e(f"G1_b{p_}:")
            for idx in range(NQ):
                if idx + LA < NQ: rr = rdr(p_, idx + LA, idx + LA)
                else: rr = rdr(p_ + 1, idx + LA - NQ, idx + LA)
                I(f"s_waitcnt lgkmcnt({2*LA-2})")
                m, jf = seq[idx]
                a = AF + (idx % 4)*4
                for js in range(2):
                    c = acc(m, jf, js); b = BB + p_*8 + js*4
                    I(f"v_mfma_f32_16x16x32_bf16 v[{c}:{c+3}], v[{a}:{a+3}], v[{b}:{b+3}], v[{c}:{c+3}]")
                    I(rr[js])
        for k_ in range(4):
            I(f"v_swap_b32 v{11+k_}, v{15+k_}")
        I("s_mov_b32 s38, s36")
        I("s_mov_b32 s36, s37")
        I("s_mov_b32 s37, s38")
        I("s_add_u32 s33, s33, 1")
        I("s_cmp_lt_u32 s33, 5")
        I("s_cbranch_scc1 G1_loop")
        I("s_waitcnt lgkmcnt(0)")
    for st in range(NST if not ROLL else 0):
        if st + 1 < NST:
            vwait([("D", st+1), ("B", st)])
            I("s_barrier")
        else:
            vwait([("B", st)])
        if "stamp3" in FLAGS and st in (0, 1, 5, 10, 15): stamp()
        if st + DW < NST and "g1nodma" not in FLAGS: dma(st + DW)
        if st + DB < NST and "g1nob" not in FLAGS: bld(st + DB)
        for idx in range(NQ if "g1nocomp" not in FLAGS else 0):
            gpos = st*NQ + idx
            rr = rdx(gpos + LA) if gpos + LA < NST*NQ else None
            I(f"s_waitcnt lgkmcnt({2*min(LA-1, NST*NQ-1-gpos)})")
            m, jf = seq[idx]
            a = AF + (gpos % 4)*4
            for js in range(2):
                c = acc(m, jf, js); b = BB + (st % (DB+1))*8 + js*4
                I(f"v_mfma_f32_16x16x32_bf16 v[{c}:{c+3}], v[{a}:{a+3}], v[{b}:{b+3}], v[{c}:{c+3}]")
                if rr: I(rr[js])
    stamp()
    I("s_lshr_b32 s34, s25, 5")
    I("s_lshl_b32 s34, s34, 10")
    I("s_add_u32 s35, s34, 4096")
    I("s_nop 7")
    I("s_nop 3")
    for js in range(2):
        for jp in range(NF//2):
            t = 24 + ((js*5 + jp) % 4) * 12
            for hh in range(2):
                jf = 2*jp + hh
                g = acc(0, jf, js); u = acc(1, jf, js)
                I(f"v_cvt_pk_bf16_f32 v{t}, v{g}, v{g+1}")
                I(f"v_cvt_pk_bf16_f32 v{t+1}, v{g+2}, v{g+3}")
                I(f"v_cvt_pk_bf16_f32 v{t+2}, v{u}, v{u+1}")
                I(f"v_cvt_pk_bf16_f32 v{t+3}, v{u+2}, v{u+3}")
                lo16(g, t); hi16(g+1, t); lo16(g+2, t+1); hi16(g+3, t+1)
                lo16(u, t+2); hi16(u+1, t+2); lo16(u+2, t+3); hi16(u+3, t+3)
                for r in range(4):
                    I(f"v_mul_f32 v{g+r}, v{g+r}, v{u+r}")
                I(f"v_cvt_pk_bf16_f32 v{t+4+2*hh}, v{g}, v{g+1}")
                I(f"v_cvt_pk_bf16_f32 v{t+5+2*hh}, v{g+2}, v{g+3}")
            if jp < 4:
                I(f"buffer_store_dwordx4 v[{t+4}:{t+7}], v{9+js}, s[20:23], s34 offen offset:{1024*jp}")
            else:
                I(f"buffer_store_dwordx4 v[{t+4}:{t+7}], v{9+js}, s[20:23], s35 offen")
    if STAMP: I("s_waitcnt vmcnt(0)")
    stamp()
    stamp_dump(5)
    wgt_end(1)
    I("s_endpgm")

def gen_g1fuse():
    NF = 10; RS = 320; MS = 32*RS; SL = 2*MS; NS = 6; LA = 3; NST = 20; DWP = 5
    XB = NS*SL
    XP = 18432; XR = 144
    I(f"s_mul_i32 s25, s25, {16*NF}")
    I(f"s_min_u32 s25, s25, {F-16*NF}")
    I("v_and_b32 v1, 63, v0")
    I("s_and_b32 s26, s3, 3")
    I(f"s_mul_i32 s30, s26, {32*XR}")
    I(f"s_add_u32 s30, s30, {XB}")
    I("s_lshl_b32 s27, s24, 3")
    I("s_lshl_b32 s26, s26, 1")
    I("s_add_u32 s26, s26, s27")
    I("s_cmp_lt_u32 s3, 4")
    I("s_cbranch_scc1 G1_cons")
    if "hprio" in FLAGS: I("s_setprio 3")
    RAW = 64
    def raw(rg, p): return RAW + (p*4 + rg)*4
    I("s_mul_i32 s27, s26, 20480")
    I("v_lshrrev_b32 v12, 3, v1")
    I("v_and_b32 v11, 7, v1")
    I("v_mul_u32_u24 v13, 0x500, v12")
    I("v_lshl_add_u32 v13, v11, 4, v13")
    I("v_add_u32 v13, s27, v13")
    for rg in range(1, 4): I(f"v_add_u32 v{13+rg}, {rg*10240}, v13")
    I("s_lshl_b32 s27, s26, 7")
    I("v_lshl_add_u32 v7, v12, 3, s27")
    I(f"v_mul_u32_u24 v6, {XR}, v12")
    I("v_lshl_add_u32 v6, v11, 4, v6")
    I("v_add_u32 v6, s30, v6")
    I("s_waitcnt lgkmcnt(0)")
    srd(12, 44, SZ_SD)
    srd(20, 6, S*8, WS_ST)
    for p in range(10):
        for rg in range(4):
            r = raw(rg, p)
            I(f"buffer_load_dwordx4 v[{r}:{r+3}], v{13+rg}, s[12:15], 0 offen offset:{128*p}")
    SM = 24; SS = 32; TT = 40; STA = 48
    for j in range(16): I(f"v_mov_b32 v{SM+j}, 0")
    I("s_mov_b32 s49, 0x3f803f80")
    I("s_cmp_ge_u32 s3, 6")
    I("s_cbranch_scc1 G1_hw")
    def helper(kind):
        vq = [("Q", i) for i in range(40)]
        def vwait(pred):
            idxs = [i for i, t in enumerate(vq) if pred(t)]
            if not idxs: return
            idx = max(idxs)
            n = len(vq) - 1 - idx
            assert n <= 63
            I(f"s_waitcnt vmcnt({n})")
            del vq[:idx+1]
        def pdma(st):
            I(f"s_mov_b32 s28, {st*32*3456}")
            for i in range(10):
                if i % 4 == 0: I(f"s_add_u32 m0, s29, {(st % NS)*SL + (i//4)*4096}")
                I(f"buffer_load_dwordx4 v{224+i}, s[8:11], s28 offen offset:{1024*(i%4)} lds")
                vq.append(("D", st))
        if kind == "prod":
            I("s_lshl_b32 s27, s25, 1")
            for i in range(10):
                I(f"v_add_u32 v20, {64*i}, v1")
                I("v_mul_u32_u24 v21, 3277, v20")
                I("v_lshrrev_b32 v21, 16, v21")
                I("v_mul_u32_u24 v22, 20, v21")
                I("v_sub_u32 v22, v20, v22")
                I("v_bfe_u32 v23, v21, 3, 1")
                I("v_lshlrev_b32 v23, 1, v23")
                I("v_xor_b32 v22, v22, v23")
                I("v_mul_u32_u24 v21, 3456, v21")
                I("v_lshl_add_u32 v21, v22, 4, v21")
                I("v_add_u32 v21, s27, v21")
                I(f"v_subrev_u32 v{224+i}, {1024*(i%4)}, v21")
            I("s_sub_u32 s29, s3, 4")
            I(f"s_mul_i32 s29, s29, {MS}")
            I("s_cmp_ge_u32 s3, 5")
            I("s_cselect_b32 s4, s18, s16")
            I("s_cselect_b32 s5, s19, s17")
            srd(8, 4, SZ_W)
            DSCH = {5: [0], 8: [1], 9: [2]}
            for f_ in FLAGS:
                if f_.startswith("dsch"):
                    if f_ == "dsch1": DSCH = {3: [0], 6: [1], 9: [2]}
                    if f_ == "dsch2": DSCH = {7: [0], 9: [1, 2]}
                    if f_ == "dsch3": DSCH = {-1: [0], 5: [1], 9: [2]}
            for st in DSCH.get(-1, []): pdma(st)
        else:
            I("s_cmp_ge_u32 s3, 7")
            I("s_cselect_b32 s28, s18, s16")
            I("s_cselect_b32 s29, s19, s17")
            I("s_mul_i32 s27, s47, 12800")
            I(f"s_mov_b32 s30, {SZ_W}")
            I("s_mov_b32 s31, 0x00020000")
            I("v_lshlrev_b32 v5, 4, v1")
            I("s_load_dwordx2 s[4:5], s[0:1], 72")
            I("s_min_u32 s48, s46, 269")
            I("s_mul_i32 s17, s48, 0xCCCD")
            I("s_lshr_b32 s17, s17, 19")
            I("s_mul_i32 s18, s17, 10")
            I("s_sub_u32 s18, s48, s18")
            I("v_and_b32 v23, 7, v0")
            I("v_bfe_u32 v17, v0, 3, 2")
            I("v_bfe_u32 v18, v0, 5, 1")
            I("s_lshl_b32 s18, s18, 6")
            I("v_lshl_add_u32 v23, v23, 3, s18")
            I("s_lshl_b32 s19, s17, 1")
            I("v_add_u32 v18, s19, v18")
            I("v_lshlrev_b32 v19, 5, v18")
            I("v_lshl_add_u32 v19, v17, 2, v19")
            I("v_mul_u32_u24 v20, 0x500, v19")
            I("v_lshl_add_u32 v20, v23, 1, v20")
            I("v_add_u32 v21, 0x5000, v20")
            I("s_waitcnt lgkmcnt(0)")
            srd(8, 4, SZ_W)
            srd(32, 6, SZ_W, WS_WDT)
            I("s_mov_b32 s36, 0x05040100")
            I("s_mov_b32 s37, 0x07060302")
            I("v_lshrrev_b32 v22, 4, v23")
            I("v_mul_u32_u24 v22, 54, v22")
            I("v_add_u32 v22, v22, v18")
            I("v_lshlrev_b32 v22, 10, v22")
            I("v_lshl_add_u32 v22, v17, 8, v22")
            I("v_and_b32 v19, 15, v23")
            I("v_lshl_add_u32 v22, v19, 4, v22")
        for p in range(10):
            vwait(lambda t: t[0] == "Q" and t[1] <= 4*p + 3)
            for c in range(4):
                for rg in range(4):
                    r = raw(rg, p) + c
                    I(f"v_dot2_f32_bf16 v{SM+2*rg+(c&1)}, v{r}, s49, v{SM+2*rg+(c&1)}")
                    I(f"v_dot2_f32_bf16 v{SS+2*rg+(c&1)}, v{r}, v{r}, v{SS+2*rg+(c&1)}")
            if kind == "prod":
                for st in DSCH.get(p, []): pdma(st)
        I("s_nop 3")
        V8 = [SM+2*rg for rg in range(4)] + [SS+2*rg for rg in range(4)]
        for a in V8: I(f"v_add_f32 v{a}, v{a}, v{a+1}")
        for dpp in ("quad_perm:[1,0,3,2]", "quad_perm:[2,3,0,1]", "row_half_mirror"):
            for a in V8: I(f"v_add_f32_dpp v{a+1}, v{a}, v{a} {dpp} row_mask:0xf bank_mask:0xf")
            for a in V8: I(f"v_mov_b32 v{a}, v{a+1}")
        R4 = range(4)
        for a in V8: I(f"v_mul_f32 v{a}, {1.0/640.0!r}, v{a}")
        for rg in R4: I(f"v_fma_f32 v{SS+2*rg}, -v{SM+2*rg}, v{SM+2*rg}, v{SS+2*rg}")
        for rg in R4:
            I(f"v_cvt_pk_bf16_f32 v{STA+2*rg+1}, 0, -v{SM+2*rg}")
            I(f"v_cvt_pk_bf16_f32 v{SS+2*rg}, 0, v{SS+2*rg}")
        for rg in R4: I(f"v_add_f32 v{SS+2*rg}, {1e-5!r}, v{SS+2*rg}")
        for rg in R4: I(f"v_cvt_pk_bf16_f32 v{SS+2*rg}, 0, v{SS+2*rg}")
        for rg in R4: I(f"v_sqrt_f32 v{SS+2*rg}, v{SS+2*rg}")
        I("s_nop 0")
        for rg in R4: I(f"v_cvt_pk_bf16_f32 v{SS+2*rg}, 0, v{SS+2*rg}")
        for rg in R4: I(f"v_rcp_f32 v{STA+2*rg}, v{SS+2*rg}")
        I("s_nop 0")
        MN = "mnorm" in FLAGS
        SEL = 24; NEG = 32; T2 = 234
        if MN:
            I("v_and_b32 v2, 15, v1")
            I("v_lshrrev_b32 v3, 4, v1")
            I("v_lshrrev_b32 v4, 2, v2")
            I("v_cmp_eq_u32 vcc, v3, v4")
            I("v_and_b32 v4, 1, v2")
            I("v_lshlrev_b32 v4, 4, v4")
            I("v_mov_b32 v3, 0x3f80")
            I("v_lshlrev_b32 v3, v4, v3")
            I("v_cndmask_b32 v3, 0, v3, vcc")
            I("v_bfe_u32 v4, v2, 1, 1")
            I("v_cmp_eq_u32 vcc, 0, v4")
            I("s_nop 1")
            I(f"v_cndmask_b32 v{SEL}, 0, v3, vcc")
            I(f"v_cndmask_b32 v{SEL+1}, v3, 0, vcc")
            I(f"v_mov_b32 v{SEL+2}, 0")
            I(f"v_mov_b32 v{SEL+3}, 0")
            I(f"v_mov_b32 v{SEL+4}, 0")
            I(f"v_mov_b32 v{SEL+5}, 0")
            I(f"v_mov_b32 v{SEL+6}, v{SEL}")
            I(f"v_mov_b32 v{SEL+7}, v{SEL+1}")
            for rg in R4:
                for c in range(4): I(f"v_mov_b32 v{NEG+4*rg+c}, v{STA+2*rg+1}")
            I("s_nop 1")
        def norm(p, rgs):
            if MN:
                TB = [T2, T2+8]
                def mf(i):
                    rg = rgs[i]; r = raw(rg, p); t = TB[i % 2]
                    for h in range(2):
                        I(f"v_mfma_f32_16x16x32_bf16 v[{t+4*h}:{t+4*h+3}], v[{SEL+4*h}:{SEL+4*h+3}], v[{r}:{r+3}], v[{NEG+4*rg}:{NEG+4*rg+3}]")
                mf(0)
                for i, rg in enumerate(rgs):
                    r = raw(rg, p); R_ = STA + 2*rg; t = TB[i % 2]
                    if i + 1 < len(rgs): mf(i+1)
                    else: I("s_nop 7")
                    if i == 0: I("s_nop 7")
                    for c in range(8): I(f"v_cvt_pk_bf16_f32 v{t+c}, 0, v{t+c}")
                    for c in range(8): I(f"v_mul_f32 v{t+c}, v{t+c}, v{R_}")
                    for c in range(4): I(f"v_cvt_pk_bf16_f32 v{r+c}, v{t+2*c}, v{t+2*c+1}")
                    I(f"ds_write_b128 v6, v[{r}:{r+3}] offset:{(p & 1)*XP + rg*8*XR}")
                return
            for rg in rgs:
                r = raw(rg, p); R_, M_ = STA + 2*rg, STA + 2*rg + 1
                if "nonorm" not in FLAGS:
                    for c in range(4):
                        lo16(TT+2*c, r+c); hi16(TT+2*c+1, r+c)
                    for c in range(8): I(f"v_add_f32 v{TT+c}, v{TT+c}, v{M_}")
                    for c in range(8): I(f"v_cvt_pk_bf16_f32 v{TT+c}, 0, v{TT+c}")
                    for c in range(8): I(f"v_mul_f32 v{TT+c}, v{TT+c}, v{R_}")
                    for c in range(4): I(f"v_cvt_pk_bf16_f32 v{r+c}, v{TT+2*c}, v{TT+2*c+1}")
                I(f"ds_write_b128 v6, v[{r}:{r+3}] offset:{(p & 1)*XP + rg*8*XR}")
        WLK = 3; PFK = 0
        for f_ in FLAGS:
            if f_.startswith("wlk"): WLK = int(f_[3:])
            if f_.startswith("pfk"): PFK = int(f_[3:])
        for k in range(NST):
            if k == 0:
                norm(0, (0, 1, 2, 3))
                if kind == "prod": pdma(3); pdma(4)
            else:
                if kind == "prod" and k >= 2 and k - 2 + DWP < NST: pdma(k - 2 + DWP)
                p = (k-1)//2 + 1
                if p < 10: norm(p, (0, 1) if (k-1) % 2 == 0 else (2, 3))
            if kind == "wdt" and k == PFK and "nopfm" not in FLAGS:
                for i in range(13):
                    I(f"buffer_load_dwordx4 v[60:63], v5, s[28:31], s27 offen")
                    I("s_add_u32 s27, s27, 1024")
            if kind == "wdt" and k == WLK:
                for i in range(8):
                    b = 20 if i < 4 else 21
                    I(f"buffer_load_dwordx4 v[{RAW+4*i}:{RAW+3+4*i}], v{b}, s[8:11], 0 offen offset:{(i%4)*1280}")
            if k == 1:
                for rg in R4:
                    I(f"buffer_store_dwordx2 v[{STA+2*rg}:{STA+2*rg+1}], v7, s[20:23], 0 offen offset:{64*rg}")
                    vq.append(("S", rg))
            if kind == "wdt" and k == WLK + 5:
                I("s_cmp_ge_u32 s46, 270")
                I("s_cbranch_scc1 G1_hwskip")
                I("s_waitcnt vmcnt(0)")
                for dd in range(8):
                    ob = RAW + 32 + 4*dd
                    sel = 36 + (dd & 1)
                    for q in range(4):
                        I(f"v_perm_b32 v{ob+q}, v{RAW+4*(2*q+1)+dd//2}, v{RAW+4*(2*q)+dd//2}, s{sel}")
                for dd in range(8):
                    ob = RAW + 32 + 4*dd
                    I(f"buffer_store_dwordx4 v[{ob}:{ob+3}], v22, s[32:35], 0 offen offset:{16*dd}")
                e("G1_hwskip:")
            if kind == "prod": vwait(lambda t: t == ("D", k))
            I("s_waitcnt lgkmcnt(0)")
            I("s_barrier")
        I("s_endpgm")
    helper("prod")
    e("G1_hw:")
    helper("wdt")
    e("G1_cons:")
    if "prio" in FLAGS: I("s_setprio 3")
    I("s_and_b32 s31, s3, 1")
    I("s_lshr_b32 s33, s3, 1")
    I("s_lshl_b32 s27, s24, 3")
    I("s_lshl_b32 s26, s31, 2")
    I("s_add_u32 s26, s26, s27")
    I("s_mul_i32 s27, s26, 55296")
    I("v_lshl_add_u32 v9, v1, 4, s27")
    I("v_bfe_u32 v17, v0, 4, 2")
    I("v_and_b32 v18, 15, v0")
    I(f"v_mul_u32_u24 v6, {XR}, v18")
    I("v_lshl_add_u32 v6, v17, 4, v6")
    I(f"s_mul_i32 s30, s31, {64*XR}")
    I(f"s_add_u32 s30, s30, {XB}")
    I("v_add_u32 v6, s30, v6")
    I("v_bfe_u32 v18, v0, 2, 2")
    I("v_lshl_add_u32 v19, v17, 3, v18")
    I(f"v_mul_u32_u24 v19, {RS}, v19")
    I("v_and_b32 v18, 3, v0")
    I("v_lshl_add_u32 v19, v18, 3, v19")
    I("s_mul_i32 s27, s33, 160")
    I("v_add_u32 v19, s27, v19")
    I("v_and_b32 v20, 1, v17")
    I("v_lshlrev_b32 v20, 5, v20")
    I("s_lshl_b32 s27, s33, 1")
    I("s_sub_u32 s27, 1, s27")
    I("v_mul_lo_u32 v20, v20, s27")
    I("v_add_u32 v11, v19, v20")
    I("v_sub_u32 v12, v19, v20")
    for rg in (1,):
        I(f"v_add_u32 v{11+2*rg}, {rg*3*SL}, v11")
        I(f"v_add_u32 v{12+2*rg}, {rg*3*SL}, v12")
    I("s_waitcnt lgkmcnt(0)")
    srd(20, 6, SZ_H, WS_H)
    BB = 24; AF = 56; ACC = 80; LA = 2
    for f_ in FLAGS:
        if f_.startswith("la"): LA = int(f_[2:])
    def acc(m, j, js): return ACC + ((m*5 + j)*4 + js)*4
    seq = [(m, j) for m in range(2) for j in range(5)]
    NQ = len(seq)
    dq = []
    def dwait(tags):
        idxs = [i for i, t in enumerate(dq) if t in tags]
        if not idxs: return
        idx = max(idxs); n = len(dq) - 1 - idx
        assert n <= 15
        I(f"s_waitcnt lgkmcnt({n})")
        del dq[:idx+1]
    def rdx(gpos):
        st, idx = divmod(gpos, NQ)
        m, j = seq[idx]
        slot = st % NS
        a = AF + (gpos % 4)*4
        va = 11 + 2*(slot // 3) + (j & 1)
        off = (slot % 3)*SL + m*MS + j*32
        return [f"ds_read_b64_tr_b16 v[{a}:{a+1}], v{va} offset:{off}",
                f"ds_read_b64_tr_b16 v[{a+2}:{a+3}], v{va} offset:{off+4*RS}"]
    def xrd(st, js):
        b = BB + (st & 1)*16 + js*4
        I(f"ds_read_b128 v[{b}:{b+3}], v6 offset:{((st >> 1) & 1)*XP + js*16*XR + (st & 1)*64}")
        dq.append(("X", st))
    stamp()
    I("s_barrier")
    stamp()
    for js in range(4): xrd(0, js)
    for i in range(LA):
        for x in rdx(i): I(x); dq.append(("A", i))
    for st in range(NST):
        if st + 1 < NST: I("s_barrier")
        if "stamp3" in FLAGS and st in (1, 5, 10): stamp()
        for idx in range(NQ):
            gpos = st*NQ + idx
            rr = rdx(gpos + LA) if gpos + LA < NST*NQ else None
            dwait([("A", gpos), ("X", st)])
            m, j = seq[idx]
            a = AF + (gpos % 4)*4
            for js in range(4):
                c = acc(m, j, js); b = BB + (st & 1)*16 + js*4
                cc = "0" if st == 0 else f"v[{c}:{c+3}]"
                I(f"v_mfma_f32_16x16x32_bf16 v[{c}:{c+3}], v[{a}:{a+3}], v[{b}:{b+3}], {cc}")
                if rr and js < 2: I(rr[js]); dq.append(("A", gpos + LA))
                if js == 2 and st + 1 < NST and 1 <= idx <= 4: xrd(st + 1, idx - 1)
    stamp()
    I("s_lshr_b32 s34, s25, 5")
    I("s_lshl_b32 s34, s34, 10")
    I("s_nop 7")
    I("s_nop 3")
    cnt = [0]
    def hq(j, js, dst, t):
        g = acc(0, j, js); u = acc(1, j, js)
        I(f"v_cvt_pk_bf16_f32 v{t}, v{g}, v{g+1}")
        I(f"v_cvt_pk_bf16_f32 v{t+1}, v{g+2}, v{g+3}")
        I(f"v_cvt_pk_bf16_f32 v{t+2}, v{u}, v{u+1}")
        I(f"v_cvt_pk_bf16_f32 v{t+3}, v{u+2}, v{u+3}")
        lo16(g, t); hi16(g+1, t); lo16(g+2, t+1); hi16(g+3, t+1)
        lo16(u, t+2); hi16(u+1, t+2); lo16(u+2, t+3); hi16(u+3, t+3)
        for r in range(4):
            I(f"v_mul_f32 v{g+r}, v{g+r}, v{u+r}")
        I(f"v_cvt_pk_bf16_f32 v{dst}, v{g}, v{g+1}")
        I(f"v_cvt_pk_bf16_f32 v{dst+1}, v{g+2}, v{g+3}")
    def epi(fq):
        units = [((0, 1), 0, 0), ((2, 3), 1, 0), ((4,), 2, 0)] if fq == 0 else [((0,), 2, 8), ((1, 2), 3, 0), ((3, 4), 4, 0)]
        for js in range(4):
            I(f"s_add_u32 s35, s34, {js*55296}")
            I(f"s_add_u32 s36, s34, {js*55296 + 4096}")
            for (jl, blk, ho) in units:
                t = 24 + (cnt[0] % 4) * 12; cnt[0] += 1
                for hh, j in enumerate(jl): hq(j, js, t+4+2*hh, t)
                so, off = ("s35", 1024*blk + ho) if blk < 4 else ("s36", ho)
                if len(jl) == 2:
                    I(f"buffer_store_dwordx4 v[{t+4}:{t+7}], v9, s[20:23], {so} offen offset:{off}")
                else:
                    I(f"buffer_store_dwordx2 v[{t+4}:{t+5}], v9, s[20:23], {so} offen offset:{off}")
    I("s_cmp_eq_u32 s33, 0")
    I("s_cbranch_scc0 G1_epi1")
    epi(0)
    I("s_branch G1_epid")
    e("G1_epi1:")
    epi(1)
    e("G1_epid:")
    if STAMP: I("s_waitcnt vmcnt(0)")
    stamp()
    stamp_dump(5)
    wgt_end(1)
    I("s_endpgm")

G2F = "g2f" in FLAGS
WS_FL = 0x1500000
FL_SZ = 32768
LMB = 7*20480 + 19456
PLIM = 100000
SCD = " sc1" if (G2F and "nosc" not in FLAGS) else ""
PSL = 4; PSL2 = 1
XL = "xl" in FLAGS
SCH = "" if "hloc" in FLAGS else SCD
if "gsc" in FLAGS: SCH = " sc1"
YST = G2F or "yst" in FLAGS or "ysc" in FLAGS
SCY = " sc1" if "ysc" in FLAGS else SCD
SCW = " sc1" if "wsc" in FLAGS else SCD
for f_ in FLAGS:
    if f_.startswith("psl"): PSL = int(f_[3:])
    if f_.startswith("psm"): PSL2 = int(f_[3:])
def g2_setup(pw):
    if XL:
        I("s_bfe_u32 s54, s2, 0x30003")
        I("s_and_b32 s55, s2, 7")
        I("s_lshl_b32 s55, s55, 2")
        I("s_lshr_b32 s56, s2, 6")
        I("s_add_u32 s55, s55, s56")
    else:
        I("s_bfe_u32 s54, s2, 0x10002")
        I("s_lshl_b32 s54, s54, 2")
        I("s_bfe_u32 s55, s2, 0x20003")
        I("s_add_u32 s54, s54, s55")
        I("s_and_b32 s55, s2, 3")
        I("s_lshl_b32 s55, s55, 3")
        I("s_lshr_b32 s56, s2, 5")
        I("s_add_u32 s55, s55, s56")
    I("s_mul_i32 s56, s3, 7")
    I("s_cmp_eq_u32 s3, 7")
    I("s_subb_u32 s56, s56, 0")
    I("s_lshl_b32 s56, s56, 10")
    I(f"s_mul_i32 s52, s54, {5*55296}")
    I("s_add_u32 s52, s52, s56")
    I(f"s_mul_i32 s53, s55, {4*55296}")
    I("s_add_u32 s53, s53, s56")
    I("s_mul_i32 s56, s3, 20480")
    srd(48, 6, SZ_W, WS_WDT)
    srd(44, 6, FL_SZ, WS_FL)
    I(f"s_mov_b32 s57, {pw}")
def g2_wdma(vl, mid=None):
    for jd in range(5):
        if mid and jd == FFN: mid(4*FFN)
        I(f"s_add_u32 m0, s56, {jd*4096}")
        I(f"s_add_u32 s58, s52, {jd*55296}")
        for b in range(4 if jd < 4 else 3):
            I(f"buffer_load_dwordx4 v{vl}, s[48:51], s58 offen offset:{1024*b} lds")
def g2_gpoll():
    I("s_mov_b64 exec, 0xffffffff")
    I("buffer_load_dword v4, v3, s[44:47], s14 offen sc1")
    I("s_mov_b64 exec, -1")
def g2_publish():
    I("v_cmp_ne_u32 vcc, 0, v4")
    I("s_mov_b32 s58, vcc_lo")
    I("v_mov_b32 v4, s58")
    I("s_mov_b64 exec, 1")
    I("ds_write_b32 v6, v4")
    I("s_mov_b64 exec, -1")
def g2_lread():
    I("ds_read_b32 v4, v6")
    I("s_waitcnt lgkmcnt(0)")
    I("v_readfirstlane_b32 s58, v4")
def g2_wait(name, need):
    I("s_mov_b32 s59, 0")
    I("s_cmp_eq_u32 s3, s57")
    I(f"s_cbranch_scc1 {name}_p")
    e(f"{name}_l:")
    g2_lread()
    I(f"s_and_b32 s58, s58, {need}")
    I(f"s_cmp_eq_u32 s58, {need}")
    I(f"s_cbranch_scc1 {name}_ok")
    I("s_add_u32 s59, s59, 1")
    I(f"s_cmp_gt_u32 s59, {PLIM*20}")
    I(f"s_cbranch_scc1 {name}_ok")
    I(f"s_sleep {PSL2}")
    I(f"s_branch {name}_l")
    e(f"{name}_p:")
    g2_gpoll()
    I("s_waitcnt vmcnt(0)")
    g2_publish()
    I(f"s_and_b32 s58, s58, {need}")
    I(f"s_cmp_eq_u32 s58, {need}")
    I(f"s_cbranch_scc1 {name}_ok")
    I("s_add_u32 s59, s59, 1")
    I(f"s_cmp_gt_u32 s59, {PLIM}")
    I(f"s_cbranch_scc1 {name}_ok")
    I(f"s_sleep {PSL}")
    I(f"s_branch {name}_p")
    e(f"{name}_ok:")
G2_HB, G2_RG, G2_WR, G2_ACC = 12, 92, 112, 176
HPW = -1; CLATE = "xlate" in FLAGS; HTK = -1; FF = False; FFN = 2; HPN = 5
for f_ in FLAGS:
    if f_.startswith("ff"): FF = True; FFN = int(f_[2:])
    if f_.startswith("hpn"): HPN = int(f_[3:])
CWP = False; CWI = 1; CHT = -1; HALL = "hall" in FLAGS
CW4 = False
for f_ in FLAGS:
    if f_.startswith("cw4"):
        CW4 = True
        a_, b_ = f_[3:].split("_")
        CW4W = [[k for k, c in enumerate(a_) if int(c) == it] for it in range(8)]
        CW4H = [[k for k, c in enumerate(b_) if int(c) == it] for it in range(8)]
for f_ in FLAGS:
    if f_.startswith("cht"): CHT = int(f_[3:])
WNT = " nt" if "wnt" in FLAGS else ""
for f_ in FLAGS:
    if f_.startswith("cwp"): CWP = True; CWI = int(f_[3:])
for f_ in FLAGS:
    if f_.startswith("hpw"): HPW = int(f_[3:])
    if f_.startswith("htk"): HTK = int(f_[3:])
def g2_head(path):
    if "hdst" in FLAGS:
        nst[0] = 1; stamp()
    I("s_load_dwordx2 s[36:37], s[0:1], 0")
    I("s_load_dwordx2 s[38:39], s[0:1], 80")
    I("v_and_b32 v3, 63, v0")
    I("v_lshlrev_b32 v1, 4, v3")
    I(f"v_lshlrev_b32 v7, {7 if path == 'cons' else 10}, v3")
    I("v_lshlrev_b32 v3, 2, v3")
    I(f"v_mov_b32 v6, {LMB}")
    I("v_mov_b32 v5, 1")
    I("s_cmp_ge_u32 s3, 6")
    I("s_cselect_b32 s15, 0x40000000, 0")
    def yflag(n):
        I(f"s_waitcnt vmcnt({n})")
        if "hdst" in FLAGS: stamp()
        I("s_mov_b64 exec, 1")
        I("ds_add_rtn_u32 v4, v6, v5 offset:4")
        I("s_waitcnt lgkmcnt(0)")
        I("v_readfirstlane_b32 s12, v4")
        I("s_cmp_eq_u32 s12, 7")
        I("s_cselect_b32 exec_lo, -1, 0")
        I("buffer_store_dword v5, v7, s[44:47], s43 offen sc1")
        I("s_mov_b64 exec, -1")
    if path == "help" and HPW >= 0:
        I("v_add_u32 v2, s56, v1")
        I("s_waitcnt vmcnt(0)")
        for t in range(19):
            b, jd = divmod(t, 5)
            I(f"ds_write_b128 v2, v[{G2_ACC+4*t}:{G2_ACC+4*t+3}] offset:{jd*4096 + b*1024}")
    else:
        if FF and path == "cons":
            I("s_waitcnt vmcnt(0)")
            if "hdst" in FLAGS: stamp()
            I("s_mov_b64 exec, 0xff")
            I("buffer_store_dword v5, v7, s[44:47], s43 offen sc1")
            I("s_mov_b64 exec, -1")
        if FF and path == "conv": g2_wdma(1, yflag)
        elif HALL and path == "cons": pass
        elif path != "cons" or CLATE: g2_wdma(1)
        if HALL and path == "help":
            I("s_sub_u32 s12, s3, 4")
            I("s_mul_i32 s13, s12, 7168")
            I(f"s_mul_i32 s17, s54, {5*55296}")
            I("s_add_u32 s17, s17, s13")
            I("s_mul_i32 s18, s12, 20480")
            for jd in range(5):
                I(f"s_add_u32 m0, s18, {jd*4096}")
                I(f"s_add_u32 s58, s17, {jd*55296}")
                for b in range(4 if jd < 4 else 3):
                    I(f"buffer_load_dwordx4 v1, s[48:51], s58 offen offset:{1024*b} lds")
            I("v_lshrrev_b32 v8, 5, v3")
            I("v_mul_u32_u24 v8, 55296, v8")
            I("v_bfe_u32 v9, v3, 2, 3")
            I("v_lshl_add_u32 v8, v9, 7, v8")
            I("s_add_u32 s17, s17, 3072")
            I("s_mov_b32 exec_hi, 0xff")
            for i in range(4):
                I(f"buffer_load_dword v{G2_ACC+i}, v8, s[48:51], s17 offen offset:{1024*i}")
            I("s_mov_b64 exec, -1")
        I(f"s_add_u32 s12, s52, {4*55296}")
        I(f"buffer_load_dwordx4 v[{G2_WR}:{G2_WR+3}], v1, s[48:51], s12 offen offset:3072")
        for jd in range(5):
            I(f"s_add_u32 s12, s52, {jd*55296 + 4096}")
            I("s_add_u32 s13, s12, s15")
            for b in range(3):
                r = G2_WR + 4 + (b*5 + jd)*4
                I(f"buffer_load_dwordx4 v[{r}:{r+3}], v1, s[48:51], s{13 if b == 2 else 12} offen offset:{1024*b}")
    if path == "cons" and not FF:
        I(f"s_waitcnt vmcnt({35 if CLATE else 16})")
        I("s_mov_b64 exec, 0xff")
        I("buffer_store_dword v5, v7, s[44:47], s43 offen sc1")
        I("s_mov_b64 exec, -1")
    if path == "conv" and not FF: yflag(35)
    if HALL and path == "help": I("s_waitcnt vmcnt(0)")
    if HALL and path != "conv": I("s_barrier")
    if "hdst" in FLAGS:
        while STAMP and nst[0] < 3: stamp()
        stamp()
        I("s_waitcnt vmcnt(0)")
        stamp()
    while STAMP and nst[0] < 9: stamp()
    if "g2st" in FLAGS: nst[0] = 1
    stamp()
    G2ST[0] = nst[0]; nst[0] = 1 if path == "help" else 0
    if path != "conv": I("s_branch G2M")

def gen_g2():
    HB, RG, WR, ACC = G2_HB, G2_RG, G2_WR, G2_ACC
    e("G2M:")
    nst[0] = G2ST[0]
    I("s_lshl_b32 s14, s55, 3")
    I("s_add_u32 s14, s14, s54")
    I("s_lshl_b32 s14, s14, 7")
    masks = []
    for w in range(8):
        fb0 = 7*w - (1 if w == 7 else 0); n = 6 if w >= 6 else 7
        m = 0
        for f in range(32*fb0, 32*(fb0+n)):
            m |= 1 << (f//80 if f < 1600 else 20 + (f-1568)//80)
        masks.append(m)
    I(f"s_mov_b32 s16, {masks[0]:#x}")
    for w in range(1, 8):
        I(f"s_cmp_eq_u32 s3, {w}")
        I(f"s_cselect_b32 s16, {masks[w]:#x}, s16")
    I("s_cmp_eq_u32 s3, s57")
    I("s_cselect_b32 s16, 0x3fffff, s16")
    srd(8, 6, SZ_H, WS_H)
    I("v_add_u32 v2, s56, v1")
    if "xt" in FLAGS:
        I("s_waitcnt lgkmcnt(0)")
        srd(20, 36, SZ_SD)
        I("s_lshl_b32 s12, s55, 6")
        I("s_lshl_b32 s13, s3, 3")
        I("s_add_u32 s12, s12, s13")
        I("v_bfe_u32 v8, v0, 1, 3")
        I("v_add_u32 v8, s12, v8")
        I("v_mul_u32_u24 v8, 0x500, v8")
        I("v_and_b32 v9, 1, v0")
        I("v_mul_u32_u24 v9, 156, v9")
        I("v_add_u32 v8, v8, v9")
        I("s_mul_i32 s12, s54, 160")
        I("s_mov_b64 exec, 0xffff")
        I(f"buffer_load_dword v{HB}, v8, s[20:23], s12 offen")
        I("s_mov_b64 exec, -1")
    g2_wait("G2H", "s16")
    stamp()
    for js in range(4):
        I(f"s_add_u32 s{16+js}, s53, {js*55296}")
        I(f"s_add_u32 s{40+js}, s53, {js*55296 + 4096}")
    vq = []
    def vwait(tag):
        idxs = [i for i, t in enumerate(vq) if t == tag]
        if not idxs: return
        idx = max(idxs); n = len(vq) - 1 - idx
        I(f"s_waitcnt vmcnt({n})")
        del vq[:idx+1]
    def hld(b):
        for js in range(4):
            r = HB + (b % 5)*16 + js*4
            I(f"buffer_load_dwordx4 v[{r}:{r+3}], v1, s[8:11], s{(16 if b < 4 else 40)+js} offen offset:{1024*(b % 4)}")
            vq.append(("h", b))
    for b in range(5): hld(b)
    I("s_waitcnt vmcnt(20) lgkmcnt(0)")
    q = DSQ()
    NR = 5
    def wrd(t):
        b, jd = divmod(t, 5)
        r = RG + (t % NR)*4
        I(f"ds_read_b128 v[{r}:{r+3}], v2 offset:{jd*4096 + b*1024}")
        q.push(("w", t))
    for t in range(NR-1): wrd(t)
    srd(20, 36, SZ_SD)
    srd(24, 6, S*8, WS_ST)
    srd(28, 6, SZ_SD, WS_YT)
    srd(32, 38, SZ_SD)
    I("s_lshr_b32 s36, s3, 1")
    I("s_and_b32 s37, s3, 1")
    I("s_mov_b32 s13, 0xfc000000")
    I("s_cmp_eq_u32 s37, 0")
    I("s_cselect_b32 s13, 0x0fc00000, s13")
    I("s_cmp_eq_u32 s3, s57")
    I("s_cselect_b32 s13, 0xffc00000, s13")
    I("s_lshl_b32 s37, s37, 5")
    I("s_mul_i32 s38, s54, 80")
    I("s_add_u32 s38, s38, s37")
    I("s_lshl_b32 s39, s55, 6")
    I("v_and_b32 v7, 15, v0")
    I("v_bfe_u32 v8, v0, 4, 2")
    I("s_lshl_b32 s12, s36, 4")
    I("s_add_u32 s12, s12, s39")
    I("v_add_u32 v9, s12, v7")
    I("v_lshlrev_b32 v10, 3, v9")
    I("v_mul_u32_u24 v9, 0x500, v9")
    I("v_lshl_add_u32 v9, v8, 3, v9")
    I("s_lshl_b32 s12, s38, 1")
    I("v_add_u32 v9, s12, v9")
    I("s_lshr_b32 s12, s36, 1")
    I("s_lshl_b32 s12, s12, 5")
    I("s_add_u32 s12, s12, s39")
    I("s_lshl_b32 s12, s12, 1")
    I("v_add_u32 v11, s38, v7")
    I("v_lshlrev_b32 v11, 12, v11")
    I("v_lshl_add_u32 v11, v8, 4, v11")
    I("v_add_u32 v11, s12, v11")
    def acc(jd, js): return ACC + (js*5 + jd)*4
    XX = HB + 32; YF = HB + 48; TQ = HB + 64
    for b in range(7):
        if b == 6:
            I("s_cmp_ge_u32 s3, 6")
            I("s_cbranch_scc1 G2_skip6")
        vwait(("h", b))
        if "g2st" in FLAGS and b < 6: stamp()
        if b == 6:
            I("s_cmp_eq_u32 s3, s57")
            I("s_cbranch_scc0 G2_np")
            g2_gpoll()
            e("G2_np:")
        for jd in range(5):
            t = b*5 + jd
            if t < 19:
                q.wait_for(("w", t)); a = RG + (t % NR)*4
            else: a = WR + (t - 19)*4
            for js in range(4):
                c = acc(jd, js); bb = HB + (b % 5)*16 + js*4
                cc = "0" if b == 0 else f"v[{c}:{c+3}]"
                I(f"v_mfma_f32_16x16x32_bf16 v[{c}:{c+3}], v[{a}:{a+3}], v[{bb}:{bb+3}], {cc}")
                if js == 0 and t + NR - 1 < 19: wrd(t + NR - 1)
        if b == 0: hld(5)
        if b == 1:
            for js in range(4): I(f"s_add_u32 s{40+js}, s{40+js}, s15")
            hld(6)
        if b == 2:
            I(f"buffer_load_dwordx2 v[{XX+6}:{XX+7}], v10, s[24:27], 0 offen"); vq.append(("x", 0))
            for j in range(3):
                I(f"buffer_load_dwordx2 v[{XX+2*j}:{XX+2*j+1}], v9, s[20:23], 0 offen offset:{32*j}"); vq.append(("x", 0))
    e("G2_skip6:")
    stamp()
    I("s_cmp_eq_u32 s3, 7")
    I("s_cselect_b32 s40, 0, -1")
    I("s_mov_b32 s41, s40")
    I("s_nop 7")
    for js in range(4):
        for jd in range(5):
            c = acc(jd, js)
            if (js, jd) == (3, 4): I("s_mov_b64 exec, s[40:41]")
            I(f"ds_write_b128 v2, v[{c}:{c+3}] offset:{(js*5+jd)*1024}")
    I("s_mov_b64 exec, -1")
    def yld():
        for j in range(3):
            I(f"s_mov_b32 s12, {j*65536}")
            I(f"buffer_load_dwordx4 v[{YF+4*j}:{YF+4*j+3}], v11, s[28:31], s12 offen")
    I("s_waitcnt vmcnt(0)")
    I("s_cmp_eq_u32 s3, s57")
    I("s_cbranch_scc0 G2_yl")
    g2_publish()
    I("s_branch G2_yc")
    e("G2_yl:")
    g2_lread()
    e("G2_yc:")
    I("s_and_b32 s58, s58, s13")
    I("s_cmp_eq_u32 s58, s13")
    I("s_cselect_b32 s42, 1, 0")
    I("s_cbranch_scc0 G2_noy")
    yld()
    e("G2_noy:")
    IDB = RG
    I("s_and_b32 s12, s36, 1")
    I("s_lshl_b32 s12, s12, 4")
    I(f"v_add_u32 v{TQ}, s12, v7")
    I(f"v_lshrrev_b32 v{TQ+1}, 3, v{TQ}")
    I(f"v_cmp_eq_u32 vcc, v{TQ+1}, v8")
    I(f"v_and_b32 v{TQ+1}, 7, v{TQ}")
    I(f"v_and_b32 v{TQ+2}, 1, v{TQ+1}")
    I(f"v_lshlrev_b32 v{TQ+2}, 4, v{TQ+2}")
    I(f"v_mov_b32 v{TQ+3}, 0x3f80")
    I(f"v_lshlrev_b32 v{TQ+3}, v{TQ+2}, v{TQ+3}")
    I(f"v_lshrrev_b32 v{TQ+1}, 1, v{TQ+1}")
    I(f"v_cndmask_b32 v{TQ+3}, 0, v{TQ+3}, vcc")
    for j in range(4):
        I(f"v_cmp_eq_u32 vcc, {j}, v{TQ+1}")
        I("s_nop 1")
        I(f"v_cndmask_b32 v{IDB+j}, 0, v{TQ+3}, vcc")
    XN = RG + 4
    for j in range(3):
        t = XN + 4*j; x0 = XX + 2*j
        lo16(t, x0); hi16(t+1, x0); lo16(t+2, x0+1); hi16(t+3, x0+1)
        for r in range(4): I(f"v_add_f32 v{t+r}, v{t+r}, v{XX+7}")
        for r in range(4): I(f"v_cvt_pk_bf16_f32 v{t+r}, 0, v{t+r}")
        for r in range(4): I(f"v_mul_f32 v{t+r}, v{t+r}, v{XX+6}")
        for r in range(4): I(f"v_cvt_pk_bf16_f32 v{t+r}, 0, v{t+r}")
    I("s_mul_i32 s12, s36, 5120")
    I("s_lshl_b32 s37, s37, 6")
    I("s_add_u32 s12, s12, s37")
    I("v_add_u32 v5, s12, v1")
    I(f"v_add_u32 v10, {3*20480}, v5")
    I(f"v_add_u32 v2, {6*20480}, v5")
    I("s_waitcnt lgkmcnt(0)")
    I("s_barrier")
    stamp()
    R = WR
    for j in range(3):
        for src in range(8):
            r = R + (j*8 + src)*4
            if (j, src) == (2, 7):
                for i in range(4): I(f"v_mov_b32 v{r+i}, v{acc(4,3)+i}")
                I("s_mov_b64 exec, s[40:41]")
            I(f"ds_read_b128 v[{r}:{r+3}], v{(5, 10, 2)[src//3]} offset:{(src % 3)*20480 + j*1024}")
    I("s_mov_b64 exec, -1")
    for j in range(3):
        I(f"s_waitcnt lgkmcnt({(15, 7, 0)[j]})")
        r0 = R + j*32
        for st_ in (16, 8, 4):
            for o in range(0, st_, 2):
                I(f"v_pk_add_f32 v[{r0+o}:{r0+o+1}], v[{r0+o}:{r0+o+1}], v[{r0+st_+o}:{r0+st_+o+1}]")
        for r in range(4): I(f"v_cvt_pk_bf16_f32 v{r0+r}, 0, v{r0+r}")
    I("s_cmp_eq_u32 s42, 1")
    I("s_cbranch_scc1 G2_ydone")
    g2_wait("G2Y", "s13")
    yld()
    e("G2_ydone:")
    I("s_waitcnt vmcnt(0)")
    stamp()
    TY = HB
    for j in range(3):
        I(f"v_mfma_f32_16x16x32_bf16 v[{TY+4*j}:{TY+4*j+3}], v[{YF+4*j}:{YF+4*j+3}], v[{IDB}:{IDB+3}], 0")
    for j in range(3):
        t = TQ + 4*j; x0 = XX + 2*j
        lo16(t, x0); hi16(t+1, x0); lo16(t+2, x0+1); hi16(t+3, x0+1)
    I("s_nop 3")
    for j in range(3):
        t = TQ + 4*j; ty = TY + 4*j; xn = XN + 4*j; r0 = R + j*32
        for r in range(4): I(f"v_mul_f32 v{ty+r}, v{ty+r}, v{xn+r}")
        for r in range(4): I(f"v_cvt_pk_bf16_f32 v{ty+r}, 0, v{ty+r}")
        for r in range(4): I(f"v_add_f32 v{t+r}, v{t+r}, v{ty+r}")
        for r in range(4): I(f"v_cvt_pk_bf16_f32 v{t+r}, 0, v{t+r}")
        for r in range(4): I(f"v_add_f32 v{t+r}, v{t+r}, v{r0+r}")
        I(f"v_cvt_pk_bf16_f32 v{ty}, v{t}, v{t+1}")
        I(f"v_cvt_pk_bf16_f32 v{ty+1}, v{t+2}, v{t+3}")
        I(f"buffer_store_dwordx2 v[{ty}:{ty+1}], v9, s[32:35], 0 offen offset:{32*j}")
    if STAMP: I("s_waitcnt vmcnt(0)")
    stamp()
    stamp_dump(5)
    I("s_endpgm")
G2ST = [0]

def gen_g1b():
    NF = 10; RS = 320; MS = 32*RS; SL = 2*MS; NS = 6; NST = 20; NX = 4
    XB = NS*SL
    XS = 8192
    STB = XB + NX*XS
    CSB = STB + 1024
    I(f"s_mul_i32 s25, s25, {16*NF}")
    I(f"s_min_u32 s25, s25, {F-16*NF}")
    I("v_and_b32 v1, 63, v0")
    for f_ in FLAGS:
        if f_.startswith("gdel"): I(f"s_sleep {int(f_[4:])}")
    I("s_cmp_lt_u32 s3, 4")
    I("s_cbranch_scc1 G1_cons")
    I("s_and_b32 s26, s3, 3")
    I("s_lshl_b32 s27, s24, 7")
    I("s_lshl_b32 s28, s26, 5")
    I("s_add_u32 s27, s27, s28")
    I("v_lshrrev_b32 v12, 2, v1")
    I("v_bfe_u32 v11, v1, 3, 2")
    I("v_xor_b32 v11, v11, v1")
    I("v_and_b32 v11, 3, v11")
    I("v_add_u32 v13, s27, v12")
    I("v_lshlrev_b32 v7, 3, v13")
    I("v_mul_u32_u24 v13, 0x500, v13")
    I("v_lshl_add_u32 v13, v11, 4, v13")
    I(f"v_add_u32 v14, {16*1280-1024}, v13")
    I("s_lshl_b32 s30, s26, 11")
    I(f"s_add_u32 s30, s30, {XB}")
    I("v_lshl_add_u32 v6, v1, 4, s30")
    I("s_lshl_b32 s28, s26, 8")
    I(f"s_add_u32 s28, s28, {STB}")
    I("v_lshl_add_u32 v5, v12, 3, s28")
    I("s_lshl_b32 s27, s25, 1")
    I("s_and_b32 s28, s26, 1")
    I("s_mul_i32 s28, s28, 320")
    for i in range(5):
        I(f"v_add_u32 v20, s28, v1")
        if i: I(f"v_add_u32 v20, {64*i}, v20")
        I("v_mul_u32_u24 v21, 3277, v20")
        I("v_lshrrev_b32 v21, 16, v21")
        I("v_mul_u32_u24 v22, 20, v21")
        I("v_sub_u32 v22, v20, v22")
        I("v_bfe_u32 v23, v21, 3, 1")
        I("v_lshlrev_b32 v23, 1, v23")
        I("v_xor_b32 v22, v22, v23")
        I("v_mul_u32_u24 v21, 3456, v21")
        I("v_lshl_add_u32 v21, v22, 4, v21")
        I("v_add_u32 v21, s27, v21")
        I(f"v_subrev_u32 v{24+i}, {1024*(i%4)}, v21")
    I("s_mul_i32 s29, s26, 5120")
    I("s_waitcnt lgkmcnt(0)")
    HST = "zst" in FLAGS
    if HST: stamp()
    I("s_cmp_ge_u32 s26, 2")
    I("s_cselect_b32 s4, s18, s16")
    I("s_cselect_b32 s5, s19, s17")
    srd(8, 4, SZ_W)
    srd(12, 44, SZ_SD)
    vq = []
    def vwait(pred):
        idxs = [i for i, t in enumerate(vq) if pred(t)]
        if not idxs: return
        idx = max(idxs)
        n = len(vq) - 1 - idx
        assert n <= 63
        I(f"s_waitcnt vmcnt({n})")
        del vq[:idx+1]
    ROT = "krot" in FLAGS or "krotq" in FLAGS
    if ROT:
        if "krotq" in FLAGS:
            I("s_lshr_b32 s51, s24, 2")
            I("s_mul_i32 s51, s51, 5")
        else:
            I("s_mul_i32 s51, s24, 5")
            I("s_lshr_b32 s51, s51, 2")
        I(f"s_mul_i32 s50, s51, {32*3456}")
        I("s_lshl_b32 s51, s51, 6")
    def wdma(st):
        ops = []
        for i in range(5):
            pre = []
            if i == 0 and not ROT: pre.append(f"s_mov_b32 s28, {st*32*3456}")
            if i == 0 and ROT: pre += ["s_mov_b32 s28, s50", f"s_add_u32 s50, s50, {32*3456}", f"s_cmp_eq_u32 s50, {640*3456}", "s_cselect_b32 s50, 0, s50"]
            if i % 4 == 0: pre.append(f"s_add_u32 m0, s29, {(st % NS)*SL + (i//4)*4096}")
            ops.append(pre + [(f"buffer_load_dwordx4 v{24+i}, s[8:11], s28 offen offset:{1024*(i%4)}{WNT} lds", ("W", st))])
        return ops
    def xdma(st):
        ops = []
        for i in range(2):
            pre = []
            if i == 0 and not ROT: pre += [f"s_movk_i32 s31, {st*64}", f"s_add_u32 m0, s30, {(st % NX)*XS}"]
            if i == 0 and ROT: pre += ["s_mov_b32 s31, s51", "s_add_u32 s51, s51, 64", "s_cmpk_eq_u32 s51, 1280", "s_cselect_b32 s51, 0, s51", f"s_add_u32 m0, s30, {(st % NX)*XS}"]
            ops.append(pre + [(f"buffer_load_dwordx4 v{13+i}, s[12:15], s31 offen offset:{1024*i} lds", ("X", st))])
        return ops
    def emit(group):
        for x in group:
            if isinstance(x, tuple): I(x[0]); vq.append(x[1])
            else: I(x)
    P0 = NS
    for f_ in FLAGS:
        if f_.startswith("p0_"): P0 = int(f_[3:])
    nxt = {"W": 0, "X": 0}
    HS = 0
    for f_ in FLAGS:
        if f_.startswith("hs"): HS = int(f_[2:])
    P1 = NS
    for f_ in FLAGS:
        if f_.startswith("p1_"): P1 = int(f_[3:])
    for st in range(P1 if HS else P0):
        if HS and st == P0: I(f"s_sleep {HS}")
        if st < NX:
            for g_ in xdma(st): emit(g_)
            nxt["X"] = st + 1
        for g_ in wdma(st): emit(g_)
        nxt["W"] = st + 1
        if HST and st in (0, 1) and "zk2" not in FLAGS: stamp()
    if HST and "zk2" not in FLAGS: stamp()
    srd(20, 6, S*8, WS_ST)
    I("s_load_dwordx2 s[4:5], s[0:1], 72")
    I("s_min_u32 s48, s46, 269")
    I("s_mul_i32 s17, s48, 0xCCCD")
    I("s_lshr_b32 s17, s17, 19")
    I("s_mul_i32 s18, s17, 10")
    I("s_sub_u32 s18, s48, s18")
    I("v_and_b32 v23, 7, v0")
    I("v_bfe_u32 v17, v0, 3, 2")
    I("v_bfe_u32 v18, v0, 5, 1")
    I("s_lshl_b32 s18, s18, 6")
    I("v_lshl_add_u32 v23, v23, 3, s18")
    I("s_lshl_b32 s19, s17, 1")
    I("v_add_u32 v18, s19, v18")
    I("v_lshlrev_b32 v19, 5, v18")
    I("v_lshl_add_u32 v19, v17, 2, v19")
    I("v_mul_u32_u24 v20, 0x500, v19")
    I("v_lshl_add_u32 v20, v23, 1, v20")
    I("v_add_u32 v21, 0x5000, v20")
    I("s_mov_b32 s36, 0x05040100")
    I("s_mov_b32 s37, 0x07060302")
    I("v_lshrrev_b32 v22, 4, v23")
    I("v_mul_u32_u24 v22, 54, v22")
    I("v_add_u32 v22, v22, v18")
    I("v_lshlrev_b32 v22, 10, v22")
    I("v_lshl_add_u32 v22, v17, 8, v22")
    I("v_and_b32 v19, 15, v23")
    I("v_lshl_add_u32 v22, v19, 4, v22")
    I("s_cmp_lt_u32 s46, 270")
    I(f"s_cselect_b32 s49, {SZ_W}, 0")
    I("s_waitcnt lgkmcnt(0)")
    srd(40, 4, SZ_W)
    srd(32, 6, SZ_W, WS_WDT)
    I("s_mov_b32 s42, s49")
    I("s_mov_b32 s34, s49")
    if G2F:
        g2_setup(4)
        I(f"v_mov_b32 v140, {LMB}")
        I("v_mov_b32 v142, 0")
        I("v_mov_b32 v143, 0")
        I("ds_write_b64 v140, v[142:143]")
        I("v_lshlrev_b32 v100, 4, v1")
        I("s_cmp_ge_u32 s3, 6")
        I("s_cselect_b32 s39, 0x40000000, 0")
        I("s_bfe_u32 s38, s2, 0x20005")
        I("s_mul_i32 s38, s38, 280")
        I("s_mul_i32 s58, s26, 70")
        I("s_add_u32 s38, s38, s58")
        for i in range(2):
            I(f"v_add_u32 v101, s38, v1")
            if i: I("v_add_u32 v101, 6, v101")
            I("v_mul_u32_u24 v102, 4682, v101")
            I("v_lshrrev_b32 v102, 20, v102")
            I("v_mul_u32_u24 v103, 224, v102")
            I("v_sub_u32 v101, v101, v103")
            I("v_lshlrev_b32 v101, 7, v101")
            I("v_mul_u32_u24 v102, 55296, v102")
            I(f"v_add_u32 v{104+i}, v101, v102")
        I(f"s_mul_i32 s38, s54, {5*55296}")
    XA = 32; TT = 40; SM = 48; SQ = 50; STA = 52; RAW = 64
    for j in range(4): I(f"v_mov_b32 v{SM+j}, 0")
    WLK = 6; WPK = 10
    for f_ in FLAGS:
        if f_.startswith("wlk"): WLK = int(f_[3:])
        if f_.startswith("wpk"): WPK = int(f_[3:])
    if G2F: WLK = WPK = 99
    def statops():
        ops = []
        for rg in range(2):
            for c in range(4):
                r = XA + 4*rg + c; t = TT + 2*(c & 1)
                ops += [f"v_lshlrev_b32 v{t}, 16, v{r}", f"v_and_b32 v{t+1}, 0xffff0000, v{r}",
                        f"v_add_f32 v{SM+rg}, v{SM+rg}, v{t}", f"v_fmac_f32 v{SQ+rg}, v{t}, v{t}",
                        f"v_add_f32 v{SM+rg}, v{SM+rg}, v{t+1}", f"v_fmac_f32 v{SQ+rg}, v{t+1}, v{t+1}"]
        return ops
    for k in range(NST + 1):
        dm = []
        if k >= 1:
            for _ in range(2):
                if nxt["X"] <= min(NST-1, max(NX-1, k+2)): dm += xdma(nxt["X"]); nxt["X"] += 1
                if nxt["W"] <= min(NST-1, max(NS-1, k+3)): dm += wdma(nxt["W"]); nxt["W"] += 1
        if k == WLK:
            for i in range(8):
                b = 20 if i < 4 else 21
                dm.append([(f"buffer_load_dwordx4 v[{RAW+4*i}:{RAW+3+4*i}], v{b}, s[40:43], 0 offen offset:{(i%4)*1280}", ("T", 0))])
        if G2F and HPW >= 0 and HPW <= k:
            for t in range((k - HPW)*HPN, min(35, (k - HPW + 1)*HPN if k < NST else 35)):
                b, jd = divmod(t, 5)
                r = G2_ACC + 4*t if t < 19 else G2_WR + 4*(t - 19)
                pre = [f"s_add_u32 s58, s52, {jd*55296 + (b//4)*4096}"]
                if b == 6: pre.append("s_add_u32 s58, s58, s39")
                dm.append(pre + [(f"buffer_load_dwordx4 v[{r}:{r+3}], v100, s[48:51], s58 offen offset:{1024*(b % 4)}", ("G", 0))])
        if G2F and k == HTK:
            for i in range(2):
                dm.append([(f"buffer_load_dword v{101+i}, v{104+i}, s[48:51], s38 offen", ("G", 0))])
        va = []
        if k >= 1:
            for rg in range(2):
                I(f"ds_read_b128 v[{XA+4*rg}:{XA+4*rg+3}], v6 offset:{((k-1) % NX)*XS + 1024*rg}")
            va = statops() if "nostat" not in FLAGS else []
        if WPK <= k < WPK + 4:
            for dd in range(2*(k-WPK), 2*(k-WPK)+2):
                ob = RAW + 32 + 4*dd
                sel = 36 + (dd & 1)
                for q in range(4):
                    va.append(f"v_perm_b32 v{ob+q}, v{RAW+4*(2*q+1)+dd//2}, v{RAW+4*(2*q)+dd//2}, s{sel}")
                va.append((f"buffer_store_dwordx4 v[{ob}:{ob+3}], v22, s[32:35], 0 offen offset:{16*dd}{SCW}", ("S", 0)))
        nfirst = min(2, len(dm))
        for g_ in dm[:nfirst]: emit(g_)
        rest = dm[nfirst:]
        if k == WPK: vwait(lambda t: t[0] == "T")
        if va: I("s_waitcnt lgkmcnt(0)")
        step = max(1, len(va) // (len(rest) + 1)) if rest else 0
        ri = 0
        for i, o in enumerate(va):
            emit([o])
            if rest and ri < len(rest) and (i + 1) % step == 0:
                emit(rest[ri]); ri += 1
        for g_ in rest[ri:]: emit(g_)
        if k < NST:
            ZK = (0, 1, 2) if "zk2" not in FLAGS else (3, 4, 5)
            if HST and k in ZK: stamp()
            vwait(lambda t: t in (("W", k), ("X", k)))
            if HST and k in ZK: stamp()
            I("s_barrier")
            if HST and k in ZK and "zk2" in FLAGS: stamp()
    V4 = [SM, SM+1, SQ, SQ+1]
    I("s_nop 1")
    for dpp in ("quad_perm:[1,0,3,2]", "quad_perm:[2,3,0,1]"):
        for i, a in enumerate(V4): I(f"v_add_f32_dpp v{TT+i}, v{a}, v{a} {dpp} row_mask:0xf bank_mask:0xf")
        for i, a in enumerate(V4): I(f"v_mov_b32 v{a}, v{TT+i}")
    R2 = range(2)
    for a in V4: I(f"v_mul_f32 v{a}, {1.0/640.0!r}, v{a}")
    for rg in R2: I(f"v_fma_f32 v{SQ+rg}, -v{SM+rg}, v{SM+rg}, v{SQ+rg}")
    for rg in R2:
        I(f"v_cvt_pk_bf16_f32 v{STA+2*rg+1}, 0, -v{SM+rg}")
        I(f"v_cvt_pk_bf16_f32 v{SQ+rg}, 0, v{SQ+rg}")
    for rg in R2: I(f"v_add_f32 v{SQ+rg}, {1e-5!r}, v{SQ+rg}")
    for rg in R2: I(f"v_cvt_pk_bf16_f32 v{SQ+rg}, 0, v{SQ+rg}")
    for rg in R2: I(f"v_sqrt_f32 v{SQ+rg}, v{SQ+rg}")
    I("s_nop 0")
    for rg in R2: I(f"v_cvt_pk_bf16_f32 v{SQ+rg}, 0, v{SQ+rg}")
    for rg in R2: I(f"v_rcp_f32 v{STA+2*rg}, v{SQ+rg}")
    I("s_nop 0")
    for rg in R2: I(f"ds_write_b64 v5, v[{STA+2*rg}:{STA+2*rg+1}] offset:{128*rg}")
    I("s_waitcnt lgkmcnt(0)")
    I("s_barrier")
    if G2F:
        I("s_barrier")
        g2_head("help")
    else:
        for rg in R2: I(f"buffer_store_dwordx2 v[{STA+2*rg}:{STA+2*rg+1}], v7, s[20:23], 0 offen offset:{128*rg}")
        if HST:
            stamp_dump(5); nst[0] = 1
        I("s_endpgm")
    e("G1_cons:")
    I("s_and_b32 s31, s3, 1")
    I("s_lshr_b32 s33, s3, 1")
    I("s_lshl_b32 s27, s24, 3")
    I("s_lshl_b32 s26, s31, 2")
    I("s_add_u32 s26, s26, s27")
    I("s_mul_i32 s27, s26, 55296")
    I("v_lshl_add_u32 v9, v1, 4, s27")
    I("v_bfe_u32 v17, v0, 4, 2")
    I("v_and_b32 v18, 15, v0")
    I("v_bfe_u32 v19, v0, 1, 2")
    I("v_xor_b32 v19, v19, v17")
    I("v_lshlrev_b32 v6, 6, v18")
    I("v_lshl_add_u32 v6, v19, 4, v6")
    I("s_lshl_b32 s30, s31, 12")
    I(f"s_add_u32 s30, s30, {XB}")
    I("v_add_u32 v6, s30, v6")
    I("s_lshl_b32 s30, s31, 9")
    I(f"s_add_u32 s30, s30, {STB}")
    I("v_lshl_add_u32 v7, v18, 3, s30")
    I("s_mul_i32 s30, s3, 320")
    I(f"s_add_u32 s30, s30, {CSB}")
    I("v_lshl_add_u32 v8, v17, 4, s30")
    I("s_xor_b32 s30, s3, 1")
    I("s_mul_i32 s30, s30, 320")
    I(f"s_add_u32 s30, s30, {CSB}")
    I("v_lshl_add_u32 v10, v17, 4, s30")
    I("v_bfe_u32 v18, v0, 2, 2")
    I("v_lshl_add_u32 v19, v17, 3, v18")
    I(f"v_mul_u32_u24 v19, {RS}, v19")
    I("v_and_b32 v18, 3, v0")
    I("v_lshl_add_u32 v19, v18, 3, v19")
    I("s_mul_i32 s27, s33, 160")
    I("v_add_u32 v19, s27, v19")
    I("v_and_b32 v18, 1, v17")
    I("v_lshlrev_b32 v18, 5, v18")
    I("s_lshl_b32 s27, s33, 1")
    I("s_sub_u32 s27, 1, s27")
    I("v_mul_lo_u32 v18, v18, s27")
    I(f"s_mul_i32 s27, s31, {MS}")
    I(f"s_sub_u32 s28, {MS}, s27")
    I("v_add_u32 v2, v19, v18")
    I("v_sub_u32 v3, v19, v18")
    for mm in range(2):
        for rg in range(2):
            for par in range(2):
                d = 11 + 4*mm + 2*rg + par
                I(f"v_add_u32 v{d}, s{27+mm}, v{2+par}")
                if rg: I(f"v_add_u32 v{d}, {3*SL}, v{d}")
    BB = 20; AF = 52; ONE = 68; CS = 72; ACC = 92; LA = 2
    for f_ in FLAGS:
        if f_.startswith("la"): LA = int(f_[2:])
    for j in range(4): I(f"v_mov_b32 v{ONE+j}, 0x3f803f80")
    I("s_waitcnt lgkmcnt(0)")
    srd(20, 6, SZ_H, WS_H)
    PFD = 0
    for f_ in FLAGS:
        if f_.startswith("pfd"): PFD = int(f_[3:])
    PFW = [None]
    if PFD:
        I("s_cmp_eq_u32 s3, 1")
        I("s_cselect_b32 s8, s18, s16")
        I("s_cselect_b32 s9, s19, s17")
        I("s_cmp_eq_u32 s3, 2")
        I("s_cselect_b32 s8, s44, s8")
        I("s_cselect_b32 s9, s45, s9")
        I(f"s_mov_b32 s10, {SZ_W}")
        I(f"s_cselect_b32 s10, {SZ_SD}, s10")
        I("s_mov_b32 s11, 0x00020000")
        I("s_cselect_b32 s12, 24, 20")
        I(f"s_mov_b32 s13, {128*3456}")
        I(f"s_cselect_b32 s13, 256, s13")
        I("s_cmp_eq_u32 s3, 3")
        I("s_cselect_b32 s12, 0, s12")
        I("s_mul_i32 s14, s47, s12")
        I("v_add_u32 v4, s14, v1")
        I("v_lshlrev_b32 v5, 7, v4")
        I("v_lshrrev_b32 v19, 1, v4")
        I("v_mul_u32_u24 v19, 0x500, v19")
        I("v_and_b32 v4, 1, v4")
        I("v_lshl_add_u32 v4, v4, 7, v19")
        I("v_min_u32 v5, 442240, v5")
        I("s_cmp_eq_u32 s3, 2")
        I("s_cselect_b64 vcc, -1, 0")
        I("v_cndmask_b32 v4, v5, v4, vcc")
        I("v_cmp_gt_u32 s[14:15], s12, v1")
        I("s_mov_b32 s16, 0")
        if "pfs0" in FLAGS: I("s_mov_b32 s16, s13")
        def pf():
            I("s_mov_b64 exec, s[14:15]")
            I("buffer_load_dword v19, v4, s[8:11], s16 offen")
            I("s_mov_b64 exec, -1")
            I("s_add_u32 s16, s16, s13")
        PFW[0] = pf
        PQ = [0]*5
        for f_ in FLAGS:
            if f_.startswith("pq"): PQ = [int(x) for x in f_[2:].split("_")]
        for g_ in range(1 if "pfs0" in FLAGS else 0, min(5, PFD)):
            if PQ[g_]: I(f"s_sleep {PQ[g_]}")
            pf()
    WPF = -1
    for f_ in FLAGS:
        if f_.startswith("wpf"): WPF = int(f_[3:])
    if WPF >= 0:
        I("s_load_dwordx2 s[36:37], s[0:1], 72")
        I("s_and_b32 s38, s3, 1")
        I("s_mul_i32 s38, s38, 176")
        I("s_add_u32 s38, s38, s47")
        I("s_min_u32 s38, s38, 269")
        I("s_mul_i32 s39, s38, 0xCCCD")
        I("s_lshr_b32 s39, s39, 19")
        I("s_mul_i32 s40, s39, 10")
        I("s_sub_u32 s40, s38, s40")
        I("s_mul_i32 s41, s39, 81920")
        I("s_lshl_b32 s40, s40, 7")
        I("s_add_u32 s41, s41, s40")
        I("v_mul_u32_u24 v5, 0x500, v1")
        I("s_cmp_ge_u32 s3, 2")
        I(f"s_cselect_b32 s38, {SZ_W}, 0")
        I("s_mov_b32 s39, 0x00020000")
        I("s_waitcnt lgkmcnt(0)")
    def acc(m, j, js): return ACC + ((m*5 + j)*4 + js)*4
    seq = [(m, j) for m in range(2) for j in range(5)]
    NQ = len(seq)
    dq = []
    def dwait(tags):
        idxs = [i for i, t in enumerate(dq) if t in tags]
        if not idxs: return
        idx = max(idxs); n = len(dq) - 1 - idx
        assert n <= 15
        I(f"s_waitcnt lgkmcnt({n})")
        del dq[:idx+1]
    def rdx(gpos):
        st, idx = divmod(gpos, NQ)
        m, j = seq[idx]
        slot = st % NS
        a = AF + (gpos % 4)*4
        va = 11 + 4*m + 2*(slot // 3) + (j & 1)
        off = (slot % 3)*SL + j*32
        return [f"ds_read_b64_tr_b16 v[{a}:{a+1}], v{va} offset:{off}",
                f"ds_read_b64_tr_b16 v[{a+2}:{a+3}], v{va} offset:{off+4*RS}"]
    def xrd(st, js):
        b = BB + (st & 1)*16 + js*4
        I(f"ds_read_b128 v[{b}:{b+3}], v6 offset:{(st % NX)*XS + js*1024}")
        dq.append(("X", st))
    stamp()
    I("s_barrier")
    stamp()
    for js in range(4): xrd(0, js)
    for i in range(LA):
        for x in rdx(i): I(x); dq.append(("A", i))
    for st in range(NST):
        if st + 1 < NST: I("s_barrier")
        if "stamp3" in FLAGS and st in (1, 5, 10): stamp()
        PFE = 4
        for f_ in FLAGS:
            if f_.startswith("pfe"): PFE = int(f_[3:])
        if PFD and st % PFE == 0 and st//PFE + PFD < (3 if ("cpf" in FLAGS or "cpf0" in FLAGS) else 5): PFW[0]()
        if st == WPF: I("buffer_load_dword v254, v5, s[36:39], s41 offen")
        for idx in range(NQ):
            gpos = st*NQ + idx
            rr = rdx(gpos + LA) if gpos + LA < NST*NQ else None
            dwait([("A", gpos), ("X", st)])
            m, j = seq[idx]
            a = AF + (gpos % 4)*4
            for js in range(4):
                c = acc(m, j, js); b = BB + (st & 1)*16 + js*4
                cc = "0" if st == 0 else f"v[{c}:{c+3}]"
                I(f"v_mfma_f32_16x16x32_bf16 v[{c}:{c+3}], v[{a}:{a+3}], v[{b}:{b+3}], {cc}")
                if rr and js < 2: I(rr[js]); dq.append(("A", gpos + LA))
                if js == 2 and st + 1 < NST and 1 <= idx <= 4: xrd(st + 1, idx - 1)
            if m == 0 and "nocs" not in FLAGS:
                c = CS + 4*j
                cc = "0" if st == 0 else f"v[{c}:{c+3}]"
                I(f"v_mfma_f32_16x16x32_bf16 v[{c}:{c+3}], v[{a}:{a+3}], v[{ONE}:{ONE+3}], {cc}")
    stamp()
    for j in range(5): I(f"ds_write_b128 v8, v[{CS+4*j}:{CS+4*j+3}] offset:{64*j}")
    I("s_lshr_b32 s34, s25, 5")
    I("s_lshl_b32 s34, s34, 10")
    if G2F:
        if XL: I("s_lshr_b32 s43, s40, 1")
        else:
            I("s_mul_i32 s43, s41, 6")
            I("s_lshr_b32 s42, s40, 2")
            I("s_add_u32 s43, s43, s42")
        I("s_lshl_b32 s43, s43, 1")
        I("s_add_u32 s43, s43, s33")
        I("s_lshl_b32 s43, s43, 2")
        I("s_lshl_b32 s42, s24, 1")
        I("s_add_u32 s42, s42, s31")
        I("s_lshl_b32 s42, s42, 10")
        I("s_add_u32 s43, s43, s42")
        g2_setup(4)
        srd(8, 6, S*8, WS_ST)
        I("v_lshlrev_b32 v5, 4, v1")
        I("s_lshl_b32 s42, s26, 7")
        I("v_lshl_add_u32 v4, v1, 3, s42")
        I("s_cmp_eq_u32 s33, 0")
        I("s_cselect_b32 s12, 0xffff, 0")
        I("s_mov_b32 s13, 0")
    I("s_waitcnt lgkmcnt(0)")
    I("s_barrier")
    CP2 = 20; STR = 40
    for js in range(4): I(f"ds_read_b64 v[{STR+2*js}:{STR+2*js+1}], v7 offset:{128*js}")
    for j in range(5): I(f"ds_read_b128 v[{CP2+4*j}:{CP2+4*j+3}], v10 offset:{64*j}")
    EP2 = "ep2" in FLAGS
    if EP2: I("s_waitcnt lgkmcnt(0)")
    if G2F:
        assert EP2
        I("s_barrier")
        if not CLATE: g2_wdma(5)
        I("s_mov_b64 exec, s[12:13]")
        for js in range(4): I(f"buffer_store_dwordx2 v[{STR+2*js}:{STR+2*js+1}], v4, s[8:11], 0 offen offset:{128*js}{SCH}")
        I("s_mov_b64 exec, -1")
    for m in range(2 if not EP2 else 0):
        I(f"s_waitcnt lgkmcnt({5 if m == 0 else 0})")
        for j in range(5):
            cs = (CS if m == 0 else CP2) + 4*j
            for js in range(4):
                c = acc(m, j, js); sr = STR + 2*js
                for hh in range(2):
                    I(f"v_pk_fma_f32 v[{c+2*hh}:{c+2*hh+1}], v[{cs+2*hh}:{cs+2*hh+1}], v[{sr}:{sr+1}], v[{c+2*hh}:{c+2*hh+1}] op_sel:[0,1,0] op_sel_hi:[1,1,1]")
            for js in range(4):
                c = acc(m, j, js); sr = STR + 2*js
                for hh in range(2):
                    I(f"v_pk_mul_f32 v[{c+2*hh}:{c+2*hh+1}], v[{c+2*hh}:{c+2*hh+1}], v[{sr}:{sr+1}] op_sel:[0,0] op_sel_hi:[1,0]")
    cnt = [0]
    def hq(j, js, dst, t):
        g = acc(0, j, js); u = acc(1, j, js)
        if EP2:
            sr = STR + 2*js
            for (c, cs) in ((g, CS + 4*j), (u, CP2 + 4*j)):
                for hh in range(2):
                    I(f"v_pk_fma_f32 v[{c+2*hh}:{c+2*hh+1}], v[{cs+2*hh}:{cs+2*hh+1}], v[{sr}:{sr+1}], v[{c+2*hh}:{c+2*hh+1}] op_sel:[0,1,0] op_sel_hi:[1,1,1]")
            for c in (g, u):
                for hh in range(2):
                    I(f"v_pk_mul_f32 v[{c+2*hh}:{c+2*hh+1}], v[{c+2*hh}:{c+2*hh+1}], v[{sr}:{sr+1}] op_sel:[0,0] op_sel_hi:[1,0]")
            for c in (g, u):
                for r in range(4): I(f"v_cvt_pk_bf16_f32 v{c+r}, 0, v{c+r}")
            for hh in range(2):
                I(f"v_pk_mul_f32 v[{g+2*hh}:{g+2*hh+1}], v[{g+2*hh}:{g+2*hh+1}], v[{u+2*hh}:{u+2*hh+1}]")
            I(f"v_cvt_pk_bf16_f32 v{dst}, v{g}, v{g+1}")
            I(f"v_cvt_pk_bf16_f32 v{dst+1}, v{g+2}, v{g+3}")
            return
        I(f"v_cvt_pk_bf16_f32 v{t}, v{g}, v{g+1}")
        I(f"v_cvt_pk_bf16_f32 v{t+1}, v{g+2}, v{g+3}")
        I(f"v_cvt_pk_bf16_f32 v{t+2}, v{u}, v{u+1}")
        I(f"v_cvt_pk_bf16_f32 v{t+3}, v{u+2}, v{u+3}")
        lo16(g, t); hi16(g+1, t); lo16(g+2, t+1); hi16(g+3, t+1)
        lo16(u, t+2); hi16(u+1, t+2); lo16(u+2, t+3); hi16(u+3, t+3)
        for r in range(4):
            I(f"v_mul_f32 v{g+r}, v{g+r}, v{u+r}")
        I(f"v_cvt_pk_bf16_f32 v{dst}, v{g}, v{g+1}")
        I(f"v_cvt_pk_bf16_f32 v{dst+1}, v{g+2}, v{g+3}")
    def epi(fq):
        units = [((0, 1), 0, 0), ((2, 3), 1, 0), ((4,), 2, 0)] if fq == 0 else [((0,), 2, 8), ((1, 2), 3, 0), ((3, 4), 4, 0)]
        for js in range(4):
            I(f"s_add_u32 s35, s34, {js*55296}")
            I(f"s_add_u32 s36, s34, {js*55296 + 4096}")
            for (jl, blk, ho) in units:
                t = 24 + (cnt[0] % 4) * 12; cnt[0] += 1
                if EP2: t = 44 + (cnt[0] % 5) * 4
                for hh, j in enumerate(jl): hq(j, js, t+4+2*hh, t)
                so, off = ("s35", 1024*blk + ho) if blk < 4 else ("s36", ho)
                if len(jl) == 2:
                    I(f"buffer_store_dwordx4 v[{t+4}:{t+7}], v9, s[20:23], {so} offen offset:{off}{SCH}")
                else:
                    I(f"buffer_store_dwordx2 v[{t+4}:{t+5}], v9, s[20:23], {so} offen offset:{off}{SCH}")
    I("s_cmp_eq_u32 s33, 0")
    I("s_cbranch_scc0 G1_epi1")
    epi(0)
    I("s_branch G1_epid")
    e("G1_epi1:")
    epi(1)
    e("G1_epid:")
    if G2F:
        stamp()
        g2_head("cons")
        return
    if STAMP: I("s_waitcnt vmcnt(0)")
    stamp()
    stamp_dump(5)
    wgt_end(1)
    I("s_endpgm")

def gen_g1f2():
    NF = 10; RS = 320; MS = 32*RS; SL = 2*MS; NS = 6; NST = 20; DWP = 5
    XB = NS*SL
    XP = 18432; XR = 144
    STL = XB + 2*XP
    CN = "nocn" not in FLAGS
    I(f"s_mul_i32 s25, s25, {16*NF}")
    I(f"s_min_u32 s25, s25, {F-16*NF}")
    I("v_and_b32 v1, 63, v0")
    I("s_and_b32 s26, s3, 3")
    I(f"s_mul_i32 s30, s26, {32*XR}")
    I(f"s_add_u32 s30, s30, {XB}")
    I("s_lshl_b32 s31, s26, 9")
    I(f"s_add_u32 s31, s31, {STL}")
    I("v_lshl_add_u32 v8, v1, 3, s31")
    I("s_lshl_b32 s27, s24, 3")
    I("s_lshl_b32 s26, s26, 1")
    I("s_add_u32 s26, s26, s27")
    I("s_mul_i32 s27, s26, 20480")
    I("v_lshrrev_b32 v12, 3, v1")
    I("v_and_b32 v11, 7, v1")
    I("v_mul_u32_u24 v13, 0x500, v12")
    I("v_lshl_add_u32 v13, v11, 4, v13")
    I("v_add_u32 v13, s27, v13")
    for rg in range(1, 4): I(f"v_add_u32 v{13+rg}, {rg*10240}, v13")
    I(f"v_mul_u32_u24 v5, {XR}, v12")
    I("v_lshl_add_u32 v5, v11, 4, v5")
    I("v_add_u32 v5, s30, v5")
    I("s_cmp_lt_u32 s3, 4")
    I("s_cbranch_scc1 G1_cons")
    RAW = 64
    def raw(rg, p): return RAW + (p*4 + rg)*4
    I("s_lshl_b32 s27, s26, 7")
    I("v_lshl_add_u32 v7, v12, 3, s27")
    I("s_waitcnt lgkmcnt(0)")
    srd(12, 44, SZ_SD)
    srd(20, 6, S*8, WS_ST)
    for p in range(10):
        for rg in range(4):
            r = raw(rg, p)
            I(f"buffer_load_dwordx4 v[{r}:{r+3}], v{13+rg}, s[12:15], 0 offen offset:{128*p}")
    SM = 24; SS = 32; TT = 40; STA = 48
    for j in range(16): I(f"v_mov_b32 v{SM+j}, 0")
    I("s_mov_b32 s49, 0x3f803f80")
    vq = [("Q", i) for i in range(40)]
    def vwait(pred):
        idxs = [i for i, t in enumerate(vq) if pred(t)]
        if not idxs: return
        idx = max(idxs)
        n = len(vq) - 1 - idx
        assert n <= 63
        I(f"s_waitcnt vmcnt({n})")
        del vq[:idx+1]
    def pdma(st):
        I(f"s_mov_b32 s28, {st*32*3456}")
        for i in range(5):
            if i % 4 == 0: I(f"s_add_u32 m0, s29, {(st % NS)*SL + (i//4)*4096}")
            I(f"buffer_load_dwordx4 v{224+i}, s[8:11], s28 offen offset:{1024*(i%4)} lds")
            vq.append(("D", st))
    I("s_lshl_b32 s27, s25, 1")
    I("s_and_b32 s28, s3, 1")
    I("s_lshl_b32 s28, s28, 4")
    for i in range(5):
        I(f"v_add_u32 v20, {64*i}, v1")
        I("v_mul_u32_u24 v21, 3277, v20")
        I("v_lshrrev_b32 v21, 16, v21")
        I("v_mul_u32_u24 v22, 20, v21")
        I("v_sub_u32 v22, v20, v22")
        I("v_add_u32 v21, s28, v21")
        I("v_bfe_u32 v23, v21, 3, 1")
        I("v_lshlrev_b32 v23, 1, v23")
        I("v_xor_b32 v22, v22, v23")
        I("v_mul_u32_u24 v21, 3456, v21")
        I("v_lshl_add_u32 v21, v22, 4, v21")
        I("v_add_u32 v21, s27, v21")
        I(f"v_subrev_u32 v{224+i}, {1024*(i%4)}, v21")
    I("s_sub_u32 s29, s3, 4")
    I("s_mul_i32 s29, s29, 5120")
    I("s_cmp_ge_u32 s3, 6")
    I("s_cselect_b32 s4, s18, s16")
    I("s_cselect_b32 s5, s19, s17")
    srd(8, 4, SZ_W)
    DSCH = {5: [0], 8: [1], 9: [2]}
    for f_ in FLAGS:
        if f_ == "dsch1": DSCH = {3: [0], 6: [1], 9: [2]}
        if f_ == "dsch2": DSCH = {7: [0], 9: [1, 2]}
        if f_ == "dsch3": DSCH = {-1: [0], 5: [1], 9: [2]}
    for st in DSCH.get(-1, []): pdma(st)
    for p in range(10):
        vwait(lambda t: t[0] == "Q" and t[1] <= 4*p + 3)
        for c in range(4):
            for rg in range(4):
                r = raw(rg, p) + c
                I(f"v_dot2_f32_bf16 v{SM+2*rg+(c&1)}, v{r}, s49, v{SM+2*rg+(c&1)}")
                I(f"v_dot2_f32_bf16 v{SS+2*rg+(c&1)}, v{r}, v{r}, v{SS+2*rg+(c&1)}")
        for st in DSCH.get(p, []): pdma(st)
    I("s_nop 3")
    V8 = [SM+2*rg for rg in range(4)] + [SS+2*rg for rg in range(4)]
    for a in V8: I(f"v_add_f32 v{a}, v{a}, v{a+1}")
    for i_, dpp in enumerate(("quad_perm:[1,0,3,2]", "quad_perm:[2,3,0,1]", "row_half_mirror")):
        sr, ds_ = (0, 1) if i_ % 2 == 0 else (1, 0)
        for a in V8: I(f"v_add_f32_dpp v{a+ds_}, v{a+sr}, v{a+sr} {dpp} row_mask:0xf bank_mask:0xf")
    R4 = range(4)
    for a in V8: I(f"v_mul_f32 v{a}, {1.0/640.0!r}, v{a+1}")
    for rg in R4: I(f"v_fma_f32 v{SS+2*rg}, -v{SM+2*rg}, v{SM+2*rg}, v{SS+2*rg}")
    for rg in R4:
        I(f"v_cvt_pk_bf16_f32 v{STA+2*rg+1}, 0, -v{SM+2*rg}")
        I(f"v_cvt_pk_bf16_f32 v{SS+2*rg}, 0, v{SS+2*rg}")
    for rg in R4: I(f"v_add_f32 v{SS+2*rg}, {1e-5!r}, v{SS+2*rg}")
    for rg in R4: I(f"v_cvt_pk_bf16_f32 v{SS+2*rg}, 0, v{SS+2*rg}")
    for rg in R4: I(f"v_sqrt_f32 v{SS+2*rg}, v{SS+2*rg}")
    I("s_nop 0")
    for rg in R4: I(f"v_cvt_pk_bf16_f32 v{SS+2*rg}, 0, v{SS+2*rg}")
    for rg in R4: I(f"v_rcp_f32 v{STA+2*rg}, v{SS+2*rg}")
    I("s_mov_b32 s50, 0x3f80")
    I("s_mov_b32 s51, 0x3f800000")
    if CN: I(f"ds_write_b64 v8, v[{STA+6}:{STA+7}]")
    def norm_ops(r, R_, M_, tt, wr, fast=False):
        o = []
        if fast:
            for c in range(4):
                o.append(f"v_dot2_f32_bf16 v{tt+2*c}, v{r+c}, s50, v{M_}")
                o.append(f"v_dot2_f32_bf16 v{tt+2*c+1}, v{r+c}, s51, v{M_}")
            for c in range(8): o.append(f"v_cvt_pk_bf16_f32 v{tt+c}, 0, v{tt+c}")
            for c in range(4): o.append(f"v_pk_mul_f32 v[{tt+2*c}:{tt+2*c+1}], v[{tt+2*c}:{tt+2*c+1}], v[{R_}:{R_+1}] op_sel_hi:[1,0]")
        else:
            for c in range(4):
                o.append(f"v_lshlrev_b32 v{tt+2*c}, 16, v{r+c}")
                o.append(f"v_and_b32 v{tt+2*c+1}, 0xffff0000, v{r+c}")
            for c in range(8): o.append(f"v_add_f32 v{tt+c}, v{tt+c}, v{M_}")
            for c in range(8): o.append(f"v_cvt_pk_bf16_f32 v{tt+c}, 0, v{tt+c}")
            for c in range(8): o.append(f"v_mul_f32 v{tt+c}, v{tt+c}, v{R_}")
        for c in range(4): o.append(f"v_cvt_pk_bf16_f32 v{r+c}, v{tt+2*c}, v{tt+2*c+1}")
        o.append(wr)
        return o
    def hnorm(p, rgs, fast=False):
        o = []
        for rg in rgs:
            r = raw(rg, p)
            o += norm_ops(r, STA + 2*rg, STA + 2*rg + 1, TT, f"ds_write_b128 v5, v[{r}:{r+3}] offset:{(p & 1)*XP + rg*8*XR}", fast)
        return o
    HST = "hst" in FLAGS
    hn = [0]
    def hstamp(k):
        if HST and k in (12, 13):
            I(f"s_memtime s[{60+2*hn[0]}:{61+2*hn[0]}]"); hn[0] += 1
    for k in range(NST):
        hstamp(k)
        if k == 0:
            for x in hnorm(0, (0, 1, 2, 3), fast=True): I(x)
            pdma(3); pdma(4)
        else:
            dl = []
            if k >= 2 and k - 2 + DWP < NST:
                st = k - 2 + DWP
                for i in range(5):
                    pre = [f"s_mov_b32 s28, {st*32*3456}"] if i == 0 else []
                    if i % 4 == 0: pre.append(f"s_add_u32 m0, s29, {(st % NS)*SL + (i//4)*4096}")
                    dl.append(pre + [f"buffer_load_dwordx4 v{224+i}, s[8:11], s28 offen offset:{1024*(i%4)} lds"])
                    vq.append(("D", st))
            hstamp(k)
            p = (k-1)//2 + 1
            o = []
            if p < 10:
                o = hnorm(p, (0, 1, 2) if (CN and p >= 2) else (0, 1, 2, 3))
                h = len(o)//2
                o = (o[:h] if (k-1) % 2 == 0 else o[h:])
            stepd = max(1, len(o)//5)
            for i_, x in enumerate(o):
                if i_ % stepd == 0 and dl:
                    for y in dl.pop(0): I(y)
                I(x)
            for d_ in dl:
                for y in d_: I(y)
        if k == 1:
            for rg in R4:
                I(f"buffer_store_dwordx2 v[{STA+2*rg}:{STA+2*rg+1}], v7, s[20:23], 0 offen offset:{64*rg}")
                vq.append(("S", rg))
        hstamp(k)
        vwait(lambda t: t == ("D", k))
        hstamp(k)
        I("s_waitcnt lgkmcnt(0)")
        hstamp(k)
        I("s_barrier")
    if HST:
        I("s_waitcnt lgkmcnt(0) vmcnt(0)")
        I("s_cmp_lg_u32 s2, 5")
        I("s_cbranch_scc1 HS_skip")
        I("s_cmp_lg_u32 s3, 4")
        I("s_cbranch_scc1 HS_skip")
        I("s_load_dwordx2 s[56:57], s[0:1], 88")
        I("s_waitcnt lgkmcnt(0)")
        I("s_mov_b32 s58, 256")
        I("s_mov_b32 s59, 0x00020000")
        I("v_mov_b32 v1, 0")
        for i in range(hn[0]):
            I(f"s_sub_u32 s{61+2*i}, s{60+2*i}, s60")
            I(f"v_mov_b32 v2, s{61+2*i}")
            I(f"buffer_store_dword v2, v1, s[56:59], 0 offen offset:{128+4*i}")
        I("s_waitcnt vmcnt(0)")
        e("HS_skip:")
    I("s_endpgm")
    e("G1_cons:")
    BB = 24; AF = 56; ACC = 80; LA = 2
    CR_ = 72; CT = 240; CS = 248
    I("v_mov_b32 v250, v16")
    I(f"v_add_u32 v251, {24*XR}, v5")
    I("v_mov_b32 v252, v8")
    I("s_load_dwordx2 s[4:5], s[0:1], 72")
    CSL = 48
    for f_ in FLAGS:
        if f_.startswith("csl"): CSL = int(f_[3:])
    if CSL: I(f"s_sleep {CSL}")
    I("s_waitcnt lgkmcnt(0)")
    srd(12, 44, SZ_SD)
    I("s_cmp_ge_u32 s3, 2")
    I("s_cbranch_scc1 G1_cpf")
    I("s_mul_i32 s46, s3, 176")
    I("s_add_u32 s46, s46, s47")
    I("s_cmp_ge_u32 s46, 270")
    I("s_cbranch_scc1 G1_cgo")
    I("s_mul_i32 s36, s46, 0xCCCD")
    I("s_lshr_b32 s36, s36, 19")
    I("s_mul_i32 s37, s36, 10")
    I("s_sub_u32 s37, s46, s37")
    I("v_and_b32 v23, 7, v0")
    I("v_bfe_u32 v17, v0, 3, 2")
    I("v_bfe_u32 v18, v0, 5, 1")
    I("s_lshl_b32 s37, s37, 6")
    I("v_lshl_add_u32 v23, v23, 3, s37")
    I("s_lshl_b32 s36, s36, 1")
    I("v_add_u32 v18, s36, v18")
    I("v_lshlrev_b32 v19, 5, v18")
    I("v_lshl_add_u32 v19, v17, 2, v19")
    I("v_mul_u32_u24 v20, 0x500, v19")
    I("v_lshl_add_u32 v20, v23, 1, v20")
    I("v_add_u32 v21, 0x5000, v20")
    srd(8, 4, SZ_W)
    srd(32, 6, SZ_W, WS_WDT)
    for i in range(8):
        b = 20 if i < 4 else 21
        I(f"buffer_load_dwordx4 v[{ACC+4*i}:{ACC+3+4*i}], v{b}, s[8:11], 0 offen offset:{(i%4)*1280}")
    I("s_mov_b32 s36, 0x05040100")
    I("s_mov_b32 s37, 0x07060302")
    I("v_lshrrev_b32 v22, 4, v23")
    I("v_mul_u32_u24 v22, 54, v22")
    I("v_add_u32 v22, v22, v18")
    I("v_lshlrev_b32 v22, 10, v22")
    I("v_lshl_add_u32 v22, v17, 8, v22")
    I("v_and_b32 v19, 15, v23")
    I("v_lshl_add_u32 v22, v19, 4, v22")
    I("s_waitcnt vmcnt(0)")
    for dd in range(8):
        ob = ACC + 32 + 4*dd
        sel = 36 + (dd & 1)
        for q in range(4):
            I(f"v_perm_b32 v{ob+q}, v{ACC+4*(2*q+1)+dd//2}, v{ACC+4*(2*q)+dd//2}, s{sel}")
    for dd in range(8):
        ob = ACC + 32 + 4*dd
        I(f"buffer_store_dwordx4 v[{ob}:{ob+3}], v22, s[32:35], 0 offen offset:{16*dd}")
    I("s_waitcnt vmcnt(0)")
    I("s_branch G1_cgo")
    e("G1_cpf:")
    if "nopfm" not in FLAGS:
        I("s_cmp_ge_u32 s3, 3")
        I("s_cselect_b32 s8, s18, s16")
        I("s_cselect_b32 s9, s19, s17")
        I("s_mul_i32 s27, s47, 12800")
        I(f"s_mov_b32 s10, {SZ_W}")
        I("s_mov_b32 s11, 0x00020000")
        I("v_lshlrev_b32 v17, 4, v1")
        for i in range(13):
            I(f"buffer_load_dwordx4 v[{ACC+4*i}:{ACC+3+4*i}], v17, s[8:11], s27 offen")
            I("s_add_u32 s27, s27, 1024")
        I("s_waitcnt vmcnt(0)")
    e("G1_cgo:")
    I("s_and_b32 s31, s3, 1")
    I("s_lshr_b32 s33, s3, 1")
    I("s_lshl_b32 s27, s24, 3")
    I("s_lshl_b32 s26, s31, 2")
    I("s_add_u32 s26, s26, s27")
    I("s_mul_i32 s27, s26, 55296")
    I("v_lshl_add_u32 v9, v1, 4, s27")
    I("v_bfe_u32 v17, v0, 4, 2")
    I("v_and_b32 v18, 15, v0")
    I(f"v_mul_u32_u24 v6, {XR}, v18")
    I("v_lshl_add_u32 v6, v17, 4, v6")
    I(f"s_mul_i32 s30, s31, {64*XR}")
    I(f"s_add_u32 s30, s30, {XB}")
    I("v_add_u32 v6, s30, v6")
    I("v_bfe_u32 v18, v0, 2, 2")
    I("v_lshl_add_u32 v19, v17, 3, v18")
    I(f"v_mul_u32_u24 v19, {RS}, v19")
    I("v_and_b32 v18, 3, v0")
    I("v_lshl_add_u32 v19, v18, 3, v19")
    I("s_mul_i32 s27, s33, 160")
    I("v_add_u32 v19, s27, v19")
    I("v_and_b32 v20, 1, v17")
    I("v_lshlrev_b32 v20, 5, v20")
    I("s_lshl_b32 s27, s33, 1")
    I("s_sub_u32 s27, 1, s27")
    I("v_mul_lo_u32 v20, v20, s27")
    I("v_add_u32 v11, v19, v20")
    I("v_sub_u32 v12, v19, v20")
    I(f"v_add_u32 v13, {3*SL}, v11")
    I(f"v_add_u32 v14, {3*SL}, v12")
    srd(20, 6, SZ_H, WS_H)
    for f_ in FLAGS:
        if f_.startswith("la"): LA = int(f_[2:])
    def acc(m, j, js): return ACC + ((m*5 + j)*4 + js)*4
    seq = [(m, j) for m in range(2) for j in range(5)]
    NQ = len(seq)
    dq = []
    def dwait(tags):
        idxs = [i for i, t in enumerate(dq) if t in tags]
        if not idxs: return
        idx = max(idxs); n = len(dq) - 1 - idx
        assert n <= 15
        I(f"s_waitcnt lgkmcnt({n})")
        del dq[:idx+1]
    def rdx(gpos):
        st, idx = divmod(gpos, NQ)
        m, j = seq[idx]
        slot = st % NS
        a = AF + (gpos % 4)*4
        va = 11 + 2*(slot // 3) + (j & 1)
        off = (slot % 3)*SL + m*MS + j*32
        return [f"ds_read_b64_tr_b16 v[{a}:{a+1}], v{va} offset:{off}",
                f"ds_read_b64_tr_b16 v[{a+2}:{a+3}], v{va} offset:{off+4*RS}"]
    def xrd(st, js):
        b = BB + (st & 1)*16 + js*4
        I(f"ds_read_b128 v[{b}:{b+3}], v6 offset:{((st >> 1) & 1)*XP + js*16*XR + (st & 1)*64}")
        dq.append(("X", st))
    def cld(P):
        r = CR_ + (P & 1)*4
        I(f"buffer_load_dwordx4 v[{r}:{r+3}], v250, s[12:15], 0 offen offset:{128*P}")
    if CN: cld(2); cld(3)
    stamp()
    I("s_barrier")
    stamp()
    for js in range(4): xrd(0, js)
    if CN:
        I(f"ds_read_b64 v[{CS}:{CS+1}], v252"); dq.append(("X", 0))
    for i in range(LA):
        for x in rdx(i): I(x); dq.append(("A", i))
    for st in range(NST):
        cw = []
        if CN and st >= 1:
            P = (st + 3)//2
            if 2 <= P <= 9:
                r = CR_ + (P & 1)*4
                o = norm_ops(r, CS, CS+1, CT, f"ds_write_b128 v251, v[{r}:{r+3}] offset:{(P & 1)*XP}")
                h = len(o)//2
                cw = o[:h] if st == 2*P - 3 else o[h:]
                if st == 2*P - 3: cw = [f"s_waitcnt vmcnt({1 if P < 9 else 0})"] + cw
                elif P + 2 <= 9: cw = cw + [("L", P + 2)]
        if st + 1 < NST:
            dwait([("XW", 0)])
            I("s_barrier")
        if "stamp3" in FLAGS and st in (1, 5, 10): stamp()
        nslot = 24
        for idx in range(NQ):
            gpos = st*NQ + idx
            rr = rdx(gpos + LA) if gpos + LA < NST*NQ else None
            dwait([("A", gpos), ("X", st)])
            m, j = seq[idx]
            a = AF + (gpos % 4)*4
            for js in range(4):
                c = acc(m, j, js); b = BB + (st & 1)*16 + js*4
                cc = "0" if st == 0 else f"v[{c}:{c+3}]"
                I(f"v_mfma_f32_16x16x32_bf16 v[{c}:{c+3}], v[{a}:{a+3}], v[{b}:{b+3}], {cc}")
                if rr and js < 2: I(rr[js]); dq.append(("A", gpos + LA))
                if js == 2 and st + 1 < NST and 1 <= idx <= 4: xrd(st + 1, idx - 1)
                if js >= 1 and cw:
                    x = cw.pop(0)
                    if isinstance(x, tuple): cld(x[1])
                    else:
                        I(x)
                        if x.startswith("ds_write"): dq.append(("XW", 0))
                        if x.startswith("s_waitcnt") and cw: I(cw.pop(0))
        assert not cw
    stamp()
    I("s_lshr_b32 s34, s25, 5")
    I("s_lshl_b32 s34, s34, 10")
    I("s_nop 7")
    I("s_nop 3")
    cnt = [0]
    def hq(j, js, dst, t):
        g = acc(0, j, js); u = acc(1, j, js)
        I(f"v_cvt_pk_bf16_f32 v{t}, v{g}, v{g+1}")
        I(f"v_cvt_pk_bf16_f32 v{t+1}, v{g+2}, v{g+3}")
        I(f"v_cvt_pk_bf16_f32 v{t+2}, v{u}, v{u+1}")
        I(f"v_cvt_pk_bf16_f32 v{t+3}, v{u+2}, v{u+3}")
        lo16(g, t); hi16(g+1, t); lo16(g+2, t+1); hi16(g+3, t+1)
        lo16(u, t+2); hi16(u+1, t+2); lo16(u+2, t+3); hi16(u+3, t+3)
        for r in range(4):
            I(f"v_mul_f32 v{g+r}, v{g+r}, v{u+r}")
        I(f"v_cvt_pk_bf16_f32 v{dst}, v{g}, v{g+1}")
        I(f"v_cvt_pk_bf16_f32 v{dst+1}, v{g+2}, v{g+3}")
    def epi(fq):
        units = [((0, 1), 0, 0), ((2, 3), 1, 0), ((4,), 2, 0)] if fq == 0 else [((0,), 2, 8), ((1, 2), 3, 0), ((3, 4), 4, 0)]
        for js in range(4):
            I(f"s_add_u32 s35, s34, {js*55296}")
            I(f"s_add_u32 s36, s34, {js*55296 + 4096}")
            for (jl, blk, ho) in units:
                t = 24 + (cnt[0] % 4) * 12; cnt[0] += 1
                for hh, j in enumerate(jl): hq(j, js, t+4+2*hh, t)
                so, off = ("s35", 1024*blk + ho) if blk < 4 else ("s36", ho)
                if len(jl) == 2:
                    I(f"buffer_store_dwordx4 v[{t+4}:{t+7}], v9, s[20:23], {so} offen offset:{off}")
                else:
                    I(f"buffer_store_dwordx2 v[{t+4}:{t+5}], v9, s[20:23], {so} offen offset:{off}")
    I("s_cmp_eq_u32 s33, 0")
    I("s_cbranch_scc0 G1_epi1")
    epi(0)
    I("s_branch G1_epid")
    e("G1_epi1:")
    epi(1)
    e("G1_epid:")
    if STAMP: I("s_waitcnt vmcnt(0)")
    stamp()
    stamp_dump(5)
    wgt_end(1)
    I("s_endpgm")

def g1_epi(NF, acc):
    I("s_lshr_b32 s34, s25, 5")
    I("s_lshl_b32 s34, s34, 10")
    I("s_add_u32 s35, s34, 4096")
    I("s_nop 7")
    I("s_nop 3")
    for js in range(2):
        for jp in range(NF//2):
            t = 24 + ((js*5 + jp) % 4) * 12
            for hh in range(2):
                jf = 2*jp + hh
                g = acc(0, jf, js); u = acc(1, jf, js)
                I(f"v_cvt_pk_bf16_f32 v{t}, v{g}, v{g+1}")
                I(f"v_cvt_pk_bf16_f32 v{t+1}, v{g+2}, v{g+3}")
                I(f"v_cvt_pk_bf16_f32 v{t+2}, v{u}, v{u+1}")
                I(f"v_cvt_pk_bf16_f32 v{t+3}, v{u+2}, v{u+3}")
                lo16(g, t); hi16(g+1, t); lo16(g+2, t+1); hi16(g+3, t+1)
                lo16(u, t+2); hi16(u+1, t+2); lo16(u+2, t+3); hi16(u+3, t+3)
                for r in range(4):
                    I(f"v_mul_f32 v{g+r}, v{g+r}, v{u+r}")
                I(f"v_cvt_pk_bf16_f32 v{t+4+2*hh}, v{g}, v{g+1}")
                I(f"v_cvt_pk_bf16_f32 v{t+5+2*hh}, v{g+2}, v{g+3}")
            if jp < 4:
                I(f"buffer_store_dwordx4 v[{t+4}:{t+7}], v{9+js}, s[20:23], s34 offen offset:{1024*jp}")
            else:
                I(f"buffer_store_dwordx4 v[{t+4}:{t+7}], v{9+js}, s[20:23], s35 offen")
    if STAMP: I("s_waitcnt vmcnt(0)")
    stamp()
    stamp_dump(5)
    wgt_end(1)
    I("s_endpgm")

def gen_k2():
    kernel_header("mid_kernel")
    if BIG:
        I("s_cmp_ge_u32 s2, 256")
        I("s_cbranch_scc1 M_exit")
        wgt_start()
        I("s_load_dwordx2 s[6:7], s[0:1], 96")
        I("v_lshrrev_b32 v1, 6, v0")
        I("s_nop 0")
        I("v_readfirstlane_b32 s3, v1")
        I("s_lshr_b32 s40, s2, 3")
        I("s_bfe_u32 s41, s2, 0x10002")
        I("s_and_b32 s42, s2, 3")
        I("s_lshl_b32 s43, s41, 2")
        I("s_sub_u32 s43, 24, s43")
        if XL:
            I("s_and_b32 s42, s2, 7")
            I("s_mov_b32 s43, 22")
            I("s_mov_b32 s41, 1")
        if "kvall" in FLAGS:
            I("s_and_b32 s8, s3, 1")
            I("s_lshl_b32 s8, s8, 3")
            I("s_add_u32 s8, s8, 8")
            I("s_load_dwordx2 s[8:9], s[0:1], s8")
            I("s_lshr_b32 s12, s3, 1")
            I("s_cmp_gt_u32 s12, s41")
            I("s_cbranch_scc1 M_nokvpf")
            if XL:
                I("s_mul_i32 s13, s42, 160")
                I("s_and_b32 s13, s13, 0xffffff80")
            else:
                I("s_mul_i32 s13, s42, 192")
                I("s_add_u32 s13, s13, 512")
                I("s_and_b32 s13, s13, 0xffffff80")
                I("s_lshl_b32 s14, s42, 7")
                I("s_cmp_eq_u32 s41, 0")
                I("s_cselect_b32 s13, s14, s13")
            I("s_lshl_b32 s12, s12, 7")
            I("s_add_u32 s13, s13, s12")
            I("s_mul_i32 s12, s40, 81920")
            I("s_add_u32 s13, s13, s12")
            I("v_and_b32 v1, 63, v0")
            I("v_mul_u32_u24 v1, 0x500, v1")
            I(f"s_mov_b32 s10, {SZ_SD}")
            I("s_mov_b32 s11, 0x00020000")
            I("s_waitcnt lgkmcnt(0)")
            for f_ in FLAGS:
                if f_.startswith("kvd"): I(f"s_sleep {int(f_[3:])}")
            I("buffer_load_dword v255, v1, s[8:11], s13 offen")
            e("M_nokvpf:")
            I("s_waitcnt lgkmcnt(0)")
        I("s_cmp_ge_u32 s40, s43")
        I("s_cbranch_scc1 M_conv")
        if "nog1" in FLAGS: I("s_endpgm")
        I("s_mul_i32 s24, s42, s43")
        I("s_add_u32 s24, s24, s40")
        if not XL:
            I("s_mul_i32 s25, s41, 96")
            I("s_add_u32 s24, s24, s25")
        W0 = 6 if "prod" in FLAGS else 4
        if FUSE:
            stamp()
            I("s_load_dwordx4 s[16:19], s[0:1], 56")
            I("s_load_dwordx2 s[44:45], s[0:1], 0")
            I("s_mov_b32 s47, s24")
        I(f"s_sub_u32 s25, s3, {W0}")
        I("s_mul_i32 s25, s25, 176")
        I("s_add_u32 s24, s24, s25")
        if FUSE:
            I("s_mov_b32 s46, s24")
        else:
            I(f"s_cmp_ge_u32 s3, {W0}")
            I("s_cbranch_scc1 M_wdt")
        I("s_lshl_b32 s24, s42, 2")
        I("s_and_b32 s25, s40, 3")
        I("s_add_u32 s24, s24, s25")
        I("s_mul_i32 s25, s41, 6")
        I("s_lshr_b32 s26, s40, 2")
        I("s_add_u32 s25, s25, s26")
        if XL:
            I("s_lshl_b32 s24, s42, 1")
            I("s_and_b32 s25, s40, 1")
            I("s_add_u32 s24, s24, s25")
            I("s_lshr_b32 s25, s40, 1")
        if FUSE and "g1b" in FLAGS: gen_g1b()
        elif FUSE and "f2" in FLAGS: gen_g1f2()
        elif FUSE: gen_g1fuse()
        else: gen_g1big()
    else:
        gen_g1old()
    gen_aux()

def gen_g1old():
    I(f"s_cmp_ge_u32 s2, {N_G1+N_CV}")
    I("s_cbranch_scc1 M_exit")
    I("s_load_dwordx2 s[6:7], s[0:1], 96")
    I(f"s_cmp_ge_u32 s2, {N_G1}")
    I("s_cbranch_scc1 M_conv")
    if "nog1" in FLAGS: I("s_endpgm")
    stamp()
    if "prio" in FLAGS: I("s_setprio 3")
    I("s_load_dwordx4 s[16:19], s[0:1], 56")
    I("v_lshrrev_b32 v1, 6, v0")
    I("s_nop 0")
    I("v_readfirstlane_b32 s3, v1")
    I("s_waitcnt lgkmcnt(0)")
    if "stamp2" in FLAGS: stamp()
    I("s_cmp_ge_u32 s3, 2")
    I("s_cselect_b32 s4, s18, s16")
    I("s_cselect_b32 s5, s19, s17")
    srd(8, 4, SZ_W)
    srd(12, 6, SZ_SD, WS_XN)
    srd(20, 6, SZ_H, WS_H)
    if "g12d" in FLAGS:
        I("s_and_b32 s24, s2, 3")
        I("s_lshl_b32 s24, s24, 2")
        I("s_bfe_u32 s25, s2, 0x20003")
        I("s_add_u32 s24, s24, s25")
        I("s_bfe_u32 s25, s2, 0x10002")
        I("s_lshl_b32 s25, s25, 3")
        I("s_lshr_b32 s26, s2, 5")
        I("s_add_u32 s25, s25, s26")
    else:
        I("s_and_b32 s24, s2, 15")
        I("s_lshr_b32 s25, s2, 4")
    I(f"s_mul_i32 s25, s25, {BF}")
    I(f"s_min_u32 s25, s25, {F-BF}")
    I("v_and_b32 v1, 63, v0")
    if "pf" in FLAGS:
        I("s_lshr_b32 s26, s2, 3")
        I("s_lshl_b32 s27, s26, 1")
        I("s_and_b32 s28, s3, 1")
        I("s_add_u32 s27, s27, s28")
        I("s_mul_i32 s27, s27, 34560")
        I("s_bfe_u32 s28, s2, 0x10002")
        I("s_mul_i32 s28, s28, 1792")
        I("s_add_u32 s27, s27, s28")
        I("v_lshrrev_b32 v192, 5, v1")
        I("v_mul_u32_u24 v192, 3456, v192")
        I("v_and_b32 v193, 31, v1")
        I("v_lshl_add_u32 v192, v193, 6, v192")
        I("v_add_u32 v192, s27, v192")
        for i in range(5):
            I(f"s_mov_b32 s27, {i*6912}")
            I(f"buffer_load_dword v{194+i}, v192, s[8:11], s27 offen")
        I("s_and_b32 s27, s2, 3")
        I("s_mul_i32 s27, s27, 655360")
        I("s_lshl_b32 s28, s26, 2")
        I("s_add_u32 s28, s28, s3")
        I("s_mul_i32 s28, s28, 5120")
        I("s_add_u32 s27, s27, s28")
        I("v_lshlrev_b32 v193, 6, v1")
        I("buffer_load_dword v199, v193, s[12:15], s27 offen")
        I("buffer_load_dword v200, v193, s[12:15], s27 offen offset:1024")
    I("v_lshrrev_b32 v10, 4, v1")
    I("v_bfe_u32 v11, v1, 1, 3")
    I("v_and_b32 v12, 1, v1")
    I("s_and_b32 s26, s3, 1")
    I("s_lshl_b32 s26, s26, 4")
    I("s_lshl_b32 s27, s25, 1")
    for i in range(4):
        bit = (i >> 1) & 1
        I(f"v_or_b32 v13, {bit<<2}, v10")
        I("v_xor_b32 v13, v13, v11")
        I(f"v_add_u32 v14, {4*i}, v10")
        I("v_add_u32 v14, s26, v14")
        I("v_mul_u32_u24 v14, 3456, v14")
        I("v_lshl_add_u32 v14, v13, 5, v14")
        I("v_lshl_add_u32 v14, v12, 4, v14")
        I("v_add_u32 v14, s27, v14")
        I(f"v_subrev_u32 v14, {1024*i}, v14")
        I("v_cmp_eq_u32 vcc, 7, v13")
        I("v_mov_b32 v15, 0x40000000")
        I("s_nop 0")
        I(f"v_cndmask_b32 v{2+i}, v14, v15, vcc")
    I("v_bfe_u32 v17, v0, 4, 2")
    I("s_lshl_b32 s26, s24, 3")
    I("s_lshl_b32 s27, s3, 1")
    I("s_add_u32 s26, s26, s27")
    I("s_mul_i32 s27, s26, 20480")
    I("v_lshl_add_u32 v6, v1, 4, s27")
    I("v_add_u32 v7, 20480, v6")
    I("s_mul_i32 s27, s26, 55296")
    I("v_lshl_add_u32 v8, v1, 4, s27")
    I("v_add_u32 v9, 55296, v8")
    I("v_bfe_u32 v18, v0, 2, 2")
    I("v_lshl_add_u32 v19, v17, 3, v18")
    I("v_lshlrev_b32 v19, 8, v19")
    I("v_and_b32 v20, 1, v17")
    I("v_lshl_or_b32 v20, v20, 2, v18")
    I("v_lshl_add_u32 v19, v20, 5, v19")
    I("v_and_b32 v18, 3, v0")
    I("v_lshl_add_u32 v19, v18, 3, v19")
    VA = 10
    I("v_mov_b32 v24, v19")
    for jf in range(7):
        I(f"v_xor_b32 v{VA+jf}, {jf<<5}, v24")
        I(f"v_add_u32 v{VA+7+jf}, 0x10000, v{VA+jf}")
    I("s_lshl_b32 s29, s3, 12")
    BB = 24
    AF = 64
    ACC = 80
    def acc(m, jf, js): return ACC + ((m*7 + jf)*2 + js)*4
    def bfr(st, js): return BB + (st % NSLOT)*8 + js*4
    NST = 20
    def issue(slot):
        I(f"s_add_u32 s30, s29, {slot*SLOT}")
        I("s_mov_b32 m0, s30")
        for i in range(4):
            I(f"buffer_load_dwordx4 v{2+i}, s[8:11], s28 offen offset:{1024*i} lds")
        for js in range(2):
            r = BB + slot*8 + js*4
            I(f"buffer_load_dwordx4 v[{r}:{r+3}], v{6+js}, s[12:15], s31 offen")
        I("s_add_u32 s36, s36, 1")
        I("s_cmp_ge_u32 s36, 20")
        I("s_cselect_b32 s36, 0, s36")
        I("s_add_u32 s37, s37, 1")
        I(f"s_mul_i32 s28, s36, {32*3456}")
        I("s_lshl_b32 s31, s36, 10")
        I("s_cmp_ge_u32 s37, 20")
        I("s_cselect_b32 s28, 0x40000000, s28")
        I("s_cselect_b32 s31, 0x40000000, s31")
    if "rot" in FLAGS:
        I("s_and_b32 s36, s24, 3")
        I("s_mul_i32 s36, s36, 5")
        I("s_lshr_b32 s37, s2, 5")
        I("s_mul_i32 s37, s37, 3")
        I("s_add_u32 s36, s36, s37")
        I("s_cmp_ge_u32 s36, 20")
        I("s_cselect_b32 s37, 20, 0")
        I("s_sub_u32 s36, s36, s37")
    else:
        I("s_mov_b32 s36, 0")
    I("s_mov_b32 s37, 0")
    I(f"s_mul_i32 s28, s36, {32*3456}")
    I("s_lshl_b32 s31, s36, 10")
    if "stamp2" in FLAGS: stamp()
    for st in range(NSLOT - 1):
        issue(st)
    if "stamp2" in FLAGS: stamp()
    for j in range(112):
        I(f"v_mov_b32 v{ACC+j}, 0")
    I("s_mov_b32 s33, 0")
    stamp()
    def body(last):
      for slot in range(NSLOT):
        if not last or slot <= 1:
            I(f"s_waitcnt vmcnt({6*(NSLOT-2)})")
        else:
            I(f"s_waitcnt vmcnt({6*(NSLOT-1-slot)})")
        I("s_barrier")
        if not last or slot == 0:
            issue((slot + NSLOT - 1) % NSLOT)
        seq = [(m, jf) for m in range(2) for jf in range(7)]
        def rd(idx):
            m, jf = seq[idx]
            a = AF + (idx % 4)*4
            if slot < 4:
                va = VA + jf; off = slot*SLOT + m*8192
            else:
                va = VA + 7 + jf; off = m*8192
            I(f"ds_read_b64_tr_b16 v[{a}:{a+1}], v{va} offset:{off}")
            I(f"ds_read_b64_tr_b16 v[{a+2}:{a+3}], v{va} offset:{off+1024}")
        for i in range(3):
            rd(i)
        for idx in range(14):
            if idx + 3 < 14:
                rd(idx + 3)
                I("s_waitcnt lgkmcnt(6)")
            else:
                I(f"s_waitcnt lgkmcnt({2*(13-idx)})")
            m, jf = seq[idx]
            a = AF + (idx % 4)*4
            for js in range(2):
                c = acc(m, jf, js); b = BB + slot*8 + js*4
                I(f"v_mfma_f32_16x16x32_bf16 v[{c}:{c+3}], v[{a}:{a+3}], v[{b}:{b+3}], v[{c}:{c+3}]")
    XS = "xs" in FLAGS
    LA = 3
    for f in FLAGS:
        if f.startswith("la"): LA = int(f[2:])
    RING = [64,68,72,76,192,196,200] if LA > 3 else [64,68,72,76,192]
    seq = [(m, jf) for m in range(2) for jf in range(7)]
    ring = [0]
    def rdx(slot, idx, pos):
        m, jf = seq[idx]
        a = RING[pos % len(RING)]
        if slot < 4:
            va = VA + jf; off = slot*SLOT + m*8192
        else:
            va = VA + 7 + jf; off = m*8192
        return [f"ds_read_b64_tr_b16 v[{a}:{a+1}], v{va} offset:{off}",
                f"ds_read_b64_tr_b16 v[{a+2}:{a+3}], v{va} offset:{off+1024}"]
    def body_xs(last):
      for slot in range(NSLOT):
        fin_stage = last and slot == NSLOT-1
        if not fin_stage:
            if not last or slot <= 1:
                I("s_waitcnt vmcnt(12)")
            else:
                I(f"s_waitcnt vmcnt({6*(NSLOT-2-slot)})")
            if "g1nobar" not in FLAGS: I("s_barrier")
        if (not last or slot == 0) and "g1noload" not in FLAGS:
            issue((slot + NSLOT - 1) % NSLOT)
        for idx in range(14 if "g1nocomp" not in FLAGS else 0):
            pos = idx + 14*slot
            if idx + LA < 14:
                rr = rdx(slot, idx + LA, pos + LA)
            elif not fin_stage:
                rr = rdx((slot + 1) % NSLOT, idx + LA - 14, pos + LA)
            else:
                rr = None
            I(f"s_waitcnt lgkmcnt({2*(LA-1) if not fin_stage else 2*min(LA-1, 13-idx)})")
            m, jf = seq[idx]
            a = RING[pos % len(RING)]
            for js in range(2):
                c = acc(m, jf, js); b = BB + slot*8 + js*4
                I(f"v_mfma_f32_16x16x32_bf16 v[{c}:{c+3}], v[{a}:{a+3}], v[{b}:{b+3}], v[{c}:{c+3}]")
                if rr: I(rr[js])
    if XS:
        I("s_waitcnt vmcnt(18)")
        I("s_barrier")
        for i in range(LA):
            for x in rdx(0, i, i): I(x)
    e("G1_loop:")
    (body_xs if XS else body)(False)
    I("s_add_u32 s33, s33, 1")
    I(f"s_cmp_lt_u32 s33, {NST//NSLOT - 1}")
    I("s_cbranch_scc1 G1_loop")
    (body_xs if XS else body)(True)
    stamp()
    I("s_waitcnt vmcnt(0)")
    I("s_nop 7")
    I("s_nop 3")
    T = 24
    for js in range(2):
        for jf in range(7):
            g = acc(0, jf, js); u = acc(1, jf, js)
            t = T + ((js*7 + jf) % 4) * 8
            I(f"v_cvt_pk_bf16_f32 v{t}, v{g}, v{g+1}")
            I(f"v_cvt_pk_bf16_f32 v{t+1}, v{g+2}, v{g+3}")
            I(f"v_cvt_pk_bf16_f32 v{t+2}, v{u}, v{u+1}")
            I(f"v_cvt_pk_bf16_f32 v{t+3}, v{u+2}, v{u+3}")
            lo16(g, t); hi16(g+1, t); lo16(g+2, t+1); hi16(g+3, t+1)
            lo16(u, t+2); hi16(u+1, t+2); lo16(u+2, t+3); hi16(u+3, t+3)
            for r in range(4):
                I(f"v_mul_f32 v{g+r}, v{g+r}, v{u+r}")
            I(f"v_cvt_pk_bf16_f32 v{t+4}, v{g}, v{g+1}")
            I(f"v_cvt_pk_bf16_f32 v{t+5}, v{g+2}, v{g+3}")
            I(f"s_add_u32 s34, s25, {16*jf}")
            I("s_lshr_b32 s35, s34, 5")
            I("s_lshl_b32 s35, s35, 10")
            I("s_and_b32 s34, s34, 16")
            I("s_lshr_b32 s34, s34, 1")
            I("s_add_u32 s35, s35, s34")
            I(f"buffer_store_dwordx2 v[{t+4}:{t+5}], v{8+js}, s[20:23], s35 offen")
    I("s_waitcnt vmcnt(0)")
    stamp()
    stamp_dump(5)
    I("s_endpgm")

def gen_aux():
    e("M_conv:")
    if "noconv" in FLAGS: I("s_endpgm")
    XREG = 7680; CST = 576 if "cst" in FLAGS else 800; HBUF = 8*CST; WREG = 20480
    CMG = "cmg" in FLAGS
    if CMG: CST = 320; HBUF = 16*CST; HHI = 8*CST
    CM4 = "cm4" in FLAGS
    if CM4: HBUF = 8*CST; HHI = 4*CST
    stamp()
    I("s_load_dwordx4 s[16:19], s[0:1], 32")
    if FUSE:
        I("s_load_dwordx4 s[44:47], s[0:1], 8")
        I("s_load_dwordx2 s[48:49], s[0:1], 24")
    if BIG:
        I("s_sub_u32 s24, 32, s43")
        I("s_mul_i32 s24, s24, s42")
        I("s_add_u32 s24, s24, s40")
        I("s_sub_u32 s24, s24, s43")
        if not XL:
            I("s_lshl_b32 s25, s41, 5")
            I("s_add_u32 s24, s24, s25")
        I("s_lshl_b32 s24, s24, 3")
        I("s_add_u32 s24, s24, s3")
    else:
        I("v_lshrrev_b32 v1, 6, v0")
        I("s_nop 0")
        I("v_readfirstlane_b32 s3, v1")
        I(f"s_sub_u32 s25, s2, {N_G1}")
        I("s_cmp_ge_u32 s25, 128")
        I("s_cbranch_scc1 M_aux_hi")
        I("s_mov_b32 s24, s25")
        I("s_cmp_eq_u32 s3, 3")
        I("s_cbranch_scc1 M_wdt")
        I("s_mul_i32 s24, s25, 3")
        I("s_add_u32 s24, s24, s3")
        I("s_branch M_conv2")
        e("M_aux_hi:")
        I("s_sub_u32 s25, s25, 128")
        I("s_lshl_b32 s25, s25, 1")
        I("s_add_u32 s24, s25, s3")
        I("s_add_u32 s24, s24, 126")
        I("s_cmp_ge_u32 s3, 2")
        I("s_cbranch_scc1 M_wdt")
        I("s_add_u32 s24, s25, s3")
        I("s_add_u32 s24, s24, 384")
    e("M_conv2:")
    I("s_waitcnt lgkmcnt(0)")
    if "cst2" in FLAGS: stamp()
    srd(8, 16, SZ_SD)
    if FUSE:
        I("s_sub_u32 s25, s24, s3")
        I("s_lshl_b32 s25, s25, 3")
        I("s_load_dwordx16 s[84:99], s[48:49], s25")
        srd(32, 44, SZ_SD)
        srd(36, 46, SZ_SD)
    else:
        srd(12, 6, SZ_SD, WS_KVR)
    srd(20, 6, SZ_SD, WS_YT)
    I("s_lshr_b32 s25, s24, 1")
    I("s_lshl_b32 s25, s25, 2")
    I("s_load_dword s26, s[18:19], s25")
    I("v_and_b32 v1, 63, v0")
    I("s_lshl_b32 s27, s24, 12")
    I("v_lshl_add_u32 v2, v1, 4, s27")
    if CMG:
        I("v_lshrrev_b32 v3, 5, v1")
        I("v_mul_u32_u24 v3, 1536, v3")
        I("v_add_u32 v2, v2, v3")
    XLD = 16
    for j in range(4 if not FUSE else 0):
        I(f"buffer_load_dwordx4 v[{XLD+4*j}:{XLD+4*j+3}], v2, s[12:15], 0 offen offset:{1024*j}")
    HW0, HW1 = 32, 40
    I("v_subrev_u32 v13, 64, v2")
    I("v_mov_b32 v5, 0x40000000")
    I("v_cmp_gt_u32 vcc, 4, v1")
    I("s_nop 1")
    I("v_cndmask_b32 v4, v13, v5, vcc")
    I("v_add_u32 v6, 16, v13")
    I("v_cmp_gt_u32 vcc, 3, v1")
    I("s_nop 1")
    I("v_cndmask_b32 v6, v6, v5, vcc")
    CV2 = "cv2" in FLAGS
    def hwloads():
        I(f"buffer_load_dwordx4 v[{HW0}:{HW0+3}], v4, s[8:11], 0 offen")
        I(f"buffer_load_dwordx4 v[{HW0+4}:{HW0+7}], v6, s[8:11], 0 offen")
        I(f"buffer_load_dwordx4 v[{HW1}:{HW1+3}], v2, s[8:11], 0 offen offset:{192 if CMG else 448}")
        I(f"buffer_load_dwordx4 v[{HW1+4}:{HW1+7}], v2, s[8:11], 0 offen offset:{208 if CMG else 464}")
    if not CV2: hwloads()
    KP, KO, VV, KF, PP, TC, OO = 132, 144, 160, 176, 190, 222, 230
    if FUSE:
        I("s_sub_u32 s25, s24, s3")
        I("s_lshl_b32 s25, s25, 1")
        I("v_mul_u32_u24 v50, 5120, v0")
        I("v_add_u32 v50, s25, v50")
        I("s_cmp_eq_u32 s3, 0")
        I("s_cselect_b32 s25, 0x40000000, -3840")
        I("v_add_u32 v51, s25, v50")
        def kvloads():
            for i in range(4):
                I(f"buffer_load_dwordx4 v[{KO+4*i}:{KO+4*i+3}], v50, s[32:35], 0 offen offset:{1280*i}")
            I("s_mov_b64 exec, 1")
            for i in range(3):
                I(f"buffer_load_dwordx4 v[{KP+4*i}:{KP+4*i+3}], v51, s[32:35], 0 offen offset:{1280*i}")
            I("s_mov_b64 exec, -1")
        def vloads():
            for i in range(4):
                I(f"buffer_load_dwordx4 v[{VV+4*i}:{VV+4*i+3}], v50, s[36:39], 0 offen offset:{1280*i}")
        KPF = True
        if CV2:
            I("s_sub_u32 s50, s40, s43")
            I("s_lshl_b32 s57, s3, 8")
            I("s_cmp_eq_u32 s41, 0")
            I("s_cbranch_scc0 CV_pf1")
            I("s_lshl_b32 s50, s50, 5")
            I("s_add_u32 s50, s50, s57")
            I("s_lshl_b32 s51, s42, 7")
            I("v_add_u32 v54, s50, v1")
            I("v_mul_u32_u24 v54, 0x500, v54")
            I("s_movk_i32 s56, 32")
            I("s_branch CV_pfd")
            e("CV_pf1:")
            I("s_mul_i32 s50, s50, 22")
            I("s_min_u32 s50, s50, 234")
            I("s_add_u32 s50, s50, s57")
            I("s_mul_i32 s51, s42, 192")
            I("s_add_u32 s51, s51, 512")
            I("s_and_b32 s51, s51, 0xffffff80")
            I("v_lshrrev_b32 v54, 1, v1")
            I("v_add_u32 v54, s50, v54")
            I("v_mul_u32_u24 v54, 0x500, v54")
            I("v_and_b32 v56, 1, v1")
            I("v_lshl_add_u32 v54, v56, 7, v54")
            I("s_movk_i32 s56, 44")
            e("CV_pfd:")
            I("v_cmp_gt_u32 s[52:53], s56, v1")
            I("s_mov_b64 exec, s[52:53]")
            I("buffer_load_dword v56, v54, s[32:35], s51 offen")
            I("buffer_load_dword v57, v54, s[36:39], s51 offen")
            I("s_mov_b64 exec, -1")
            hwloads()
            I("v_lshl_add_u32 v55, v1, 6, s27")
            if "nohpf" not in FLAGS: I("buffer_load_dword v58, v55, s[8:11], 0 offen")
            else: I("buffer_load_dword v58, v2, s[8:11], 0 offen")
        elif "kvall" in FLAGS:
            pass
        elif KPF:
            I("s_sub_u32 s50, s40, s43")
            I("v_xor_b32 v57, 256, v0")
            I("s_cmp_eq_u32 s41, 0")
            I("s_cbranch_scc0 CV_pf1")
            I("s_lshl_b32 s50, s50, 8")
            I("s_lshl_b32 s51, s42, 7")
            for (d, src) in ((54, 0), (55, 57)):
                I(f"v_add_u32 v{d}, s50, v{src}")
                I(f"v_mul_u32_u24 v{d}, 0x500, v{d}")
            I("s_movk_i32 s56, 256")
            I("s_branch CV_pfd")
            e("CV_pf1:")
            I("s_mul_i32 s50, s50, 176")
            I("s_mul_i32 s51, s42, 192")
            I("s_add_u32 s51, s51, 512")
            I("s_and_b32 s51, s51, 0xffffff80")
            for (d, src) in ((54, 0), (55, 57)):
                I(f"v_lshrrev_b32 v{d}, 1, v{src}")
                I(f"v_add_u32 v{d}, s50, v{d}")
                I(f"v_mul_u32_u24 v{d}, 0x500, v{d}")
                I(f"v_and_b32 v56, 1, v{src}")
                I(f"v_lshl_add_u32 v{d}, v56, 7, v{d}")
            I("s_movk_i32 s56, 352")
            e("CV_pfd:")
            I("v_cmp_gt_u32 s[52:53], s56, v0")
            I("v_cmp_gt_u32 s[54:55], s56, v57")
            I("s_mov_b64 exec, s[52:53]")
            I("buffer_load_dword v56, v54, s[32:35], s51 offen")
            if "vpf1" not in FLAGS:
                I("s_mov_b64 exec, s[54:55]")
                I("buffer_load_dword v57, v55, s[36:39], s51 offen")
            I("s_mov_b64 exec, -1")
        else:
            kvloads()
        I("v_lshlrev_b32 v52, 2, v0")
        I("v_sub_u32 v52, 2044, v52")
        I("v_lshrrev_b32 v53, 5, v52")
        I("v_mul_u32_u24 v53, 80, v53")
        I("v_and_b32 v52, 31, v52")
        I("v_lshl_add_u32 v52, v52, 1, v53")
        I(f"v_add_u32 v53, {4*WREG}, v52")
    I(f"s_mov_b32 s29, {448 if CMG else 960}")
    I(f"s_mul_i32 s28, s3, {WREG}")
    Z = 96
    for j in range(4):
        I(f"v_mov_b32 v{Z+j}, 0")
    I("v_lshl_add_u32 v3, v1, 4, s28")
    I(f"ds_write_b128 v3, v[{Z}:{Z+3}] offset:5120")
    I(f"ds_write_b128 v3, v[{Z}:{Z+3}] offset:6144")
    I(f"ds_write_b128 v3, v[{Z}:{Z+3}] offset:6656")
    if G2F:
        I(f"v_mov_b32 v4, {LMB}")
        I(f"ds_write_b64 v4, v[{Z}:{Z+1}]")
    I("v_lshrrev_b32 v4, 2, v1")
    I("v_mul_u32_u24 v4, 80, v4")
    I("v_and_b32 v5, 3, v1")
    I("v_lshl_add_u32 v4, v5, 4, v4")
    I("v_add_u32 v4, s28, v4")
    I("v_and_b32 v5, 31, v1")
    I("v_lshrrev_b32 v6, 5, v1")
    if CM4:
        I("v_and_b32 v7, 3, v5")
        I(f"v_mul_u32_u24 v7, {CST}, v7")
        I("v_lshrrev_b32 v8, 2, v5")
        I("v_lshl_add_u32 v8, v6, 1, v8")
        I("v_lshl_add_u32 v7, v8, 3, v7")
    else:
        I("v_and_b32 v7, 7, v5")
        I(f"v_mul_u32_u24 v7, {CST}, v7")
        I("v_lshrrev_b32 v8, 3, v5")
        I("v_add_u32 v8, v8, v6")
        I("v_lshl_add_u32 v7, v8, 4, v7")
    I(f"v_add_u32 v7, {XREG}, v7")
    I("v_add_u32 v7, s28, v7")
    I(f"v_add_u32 v14, {HBUF}, v7")
    I("v_sub_u32 v8, 63, v5")
    I("v_mul_u32_u24 v8, 80, v8")
    I("v_lshl_add_u32 v8, v6, 4, v8")
    I("v_add_u32 v8, s28, v8")
    I("v_mov_b32 v15, v8")
    I("v_subrev_u32 v9, 2560, v8")
    I(f"v_add_u32 v10, {XREG}, v3")
    if CMG:
        I(f"v_mul_u32_u24 v11, {HHI-512}, v6")
        I("v_add_u32 v10, v10, v11")
    I(f"v_add_u32 v11, {HBUF}, v10")
    AC0, AC1 = 100, 116
    for j in range(32):
        I(f"v_mov_b32 v{AC0+j}, 0")
    FR = 132
    UE, UO, WO = 180, 189, 197
    CLA, CR = 3, 4
    for f_ in FLAGS:
        if f_.startswith("cla"): CLA = int(f_[3:]); CR = 8; UE, UO, WO = 228, 237, 245
    if CMG:
        UE, UO, WO = 196, 205, 213
        AC2 = 220
        I("s_mov_b32 s30, 0xfffff")
        I("s_mov_b32 s31, 0xfffff")
    else:
        I("s_mov_b32 s30, -1")
        I("s_mov_b32 s31, 0xf")
    q = DSQ()
    def stage_seg(w, addr):
        if CM4:
            for t in range(4):
                I(f"v_alignbit_b32 v{UE+t}, v{w+t+1}, v{w+t}, 16")
                I(f"v_alignbit_b32 v{UO+t+1}, v{w+t+2}, v{w+t+1}, 16")
                I(f"v_mov_b32 v{WO+t+1}, v{w+t+1}")
            I("s_mov_b64 exec, s[30:31]")
            for c, r in enumerate((UE, WO+1, UO+1, w+2)):
                I(f"ds_write_b128 v{addr}, v[{r}:{r+3}] offset:{c*CST}")
                q.push(("w", 0))
            I("s_mov_b64 exec, -1")
            return
        for t in range(7):
            I(f"v_alignbit_b32 v{UE+t}, v{w+t+1}, v{w+t}, 16")
            I(f"v_alignbit_b32 v{UO+t}, v{w+t+1}, v{w+t}, 16")
        for t in range(1, 7):
            I(f"v_mov_b32 v{WO+t}, v{w+t}")
        I("s_mov_b64 exec, s[30:31]")
        for c in range(8):
            if c % 2 == 0:
                t0 = c // 2
                r = UE + t0 if t0 % 2 == 0 else UO + t0
            else:
                t0 = (1 + c)//2
                r = w + t0 if t0 % 2 == 0 else WO + t0
            assert r % 2 == 0, (c, r)
            I(f"ds_write_b128 v{addr}, v[{r}:{r+3}] offset:{c*CST}")
            q.push(("w", 0))
        I("s_mov_b64 exec, -1")
    if FUSE and CV2:
        if "cvnw" not in FLAGS: I(f"s_waitcnt vmcnt({5 if 'cvw2' in FLAGS else 6})")
        if "cst2" in FLAGS: stamp()
        if "cvbar" in FLAGS: I("s_barrier")
        if "cst2" in FLAGS: stamp()
        kvloads()
        if "cvlv" not in FLAGS: vloads()
        I(f"s_waitcnt vmcnt({(7 if 'cvlv' in FLAGS else 11) + 3})")
        stage_seg(HW0, 10)
        I("s_mov_b32 s49, 0x3f803f80")
        I(f"s_waitcnt vmcnt({0 if 'cvlv' in FLAGS else 4}) lgkmcnt(0)")
        if "cvlv" in FLAGS: vloads()
        stamp()
    if FUSE:
        if CV2: pass
        elif KPF:
            I("s_waitcnt vmcnt(0)")
            if "cst2" in FLAGS: stamp()
            I("s_barrier")
            if "cst2" in FLAGS: stamp()
            kvloads()
            if "vearly" in FLAGS: vloads()
            if "vpf1" in FLAGS:
                I("s_mov_b64 exec, s[54:55]")
                I("buffer_load_dword v57, v55, s[36:39], s51 offen")
                I("s_mov_b64 exec, -1")
        else:
            I("s_waitcnt vmcnt(13)")
        if not CV2:
            stage_seg(HW0, 10)
            I("s_mov_b32 s49, 0x3f803f80")
            if "vearly" in FLAGS:
                I("s_waitcnt vmcnt(4) lgkmcnt(0)")
            else:
                I(f"s_waitcnt vmcnt({0 if 'vpf1' not in FLAGS else 1}) lgkmcnt(0)")
                vloads()
            if "hpf2" in FLAGS:
                I("v_lshl_add_u32 v55, v1, 6, s27")
                I("buffer_load_dword v58, v55, s[8:11], 0 offen")
            stamp()
        for r in range(3):
            for c in range(4):
                I(f"v_mov_b32_dpp v{KP+4*r+c}, v{KO+4*(r+1)+c} wave_shr:1 row_mask:0xf bank_mask:0xf")
        def krow(r): return (KP + 4*r) if r < 3 else (KO + 4*(r-3))
        chains = [(i, h) for i in range(4) for h in range(2)]
        def T(j, i, h): return TC + 8*j + 2*i + h
        if "kvf" in FLAGS:
            I("s_mov_b32 s50, 0x05040100")
            I("s_mov_b32 s51, 0x07060302")
            for j in range(4):
                for h in range(2):
                    for r in range(6):
                        I(f"v_perm_b32 v{PP+6*h+r}, v{krow(r)+j}, v{krow(r+1)+j}, s{50+h}")
                for (i, h) in chains: I(f"v_dot2_f32_bf16 v{T(j,i,h)}, v{PP+6*h+i}, s{85+4*j+2*h}, 0")
                for (i, h) in chains: I(f"v_dot2_f32_bf16 v{T(j,i,h)}, v{PP+6*h+i+2}, s{84+4*j+2*h}, v{T(j,i,h)}")
        for j in range(4 if "kvf" not in FLAGS else 0):
            for h in range(2):
                I(f"s_lshl_b32 s{50+h}, s{84+4*j+2*h}, 16")
                I(f"s_and_b32 s{52+h}, s{84+4*j+2*h}, 0xffff0000")
                I(f"s_lshl_b32 s{54+h}, s{85+4*j+2*h}, 16")
                I(f"s_and_b32 s{56+h}, s{85+4*j+2*h}, 0xffff0000")
            for r in range(7):
                lo16(KF+2*r, krow(r)+j); hi16(KF+2*r+1, krow(r)+j)
            def P(i, t): return PP + (i*4 + t)*2
            for i in range(4):
                for t in range(4):
                    r = i + 3 - t
                    I(f"v_pk_mul_f32 v[{P(i,t)}:{P(i,t)+1}], v[{KF+2*r}:{KF+2*r+1}], s[{50+2*t}:{51+2*t}]")
            for (i, h) in chains: I(f"v_cvt_pk_bf16_f32 v{T(j,i,h)}, v{P(i,3)+h}, v{P(i,2)+h}")
            for t in (1, 0):
                for (i, h) in chains: I(f"v_dot2_f32_bf16 v{T(j,i,h)}, v{T(j,i,h)}, s49, 0")
                for (i, h) in chains: I(f"v_cvt_pk_bf16_f32 v{T(j,i,h)}, v{T(j,i,h)}, v{P(i,t)+h}")
            for (i, h) in chains: I(f"v_dot2_f32_bf16 v{T(j,i,h)}, v{T(j,i,h)}, s49, 0")
            for (i, h) in chains:
                if h == 0: I(f"v_cvt_pk_bf16_f32 v{T(j,i,h)}, v{T(j,i,h)}, 0")
                else: I(f"v_cvt_pk_bf16_f32 v{T(j,i,h)}, 0, v{T(j,i,h)}")
        if "cst2" in FLAGS: stamp()
        I(f"s_waitcnt vmcnt({1 if 'hpf2' in FLAGS else 0})")
        if "cst2" in FLAGS: stamp()
        for j in range(4 if "kvf" not in FLAGS else 0):
            for (i, h) in chains: I(f"v_dot2_f32_bf16 v{T(j,i,h)}, v{T(j,i,h)}, v{VV+4*i+j}, 0")
        if "kvf" in FLAGS:
            for j in range(4):
                for i in range(4):
                    lo16(KF+2*i, VV+4*i+j); hi16(KF+2*i+1, VV+4*i+j)
                for i in range(4):
                    I(f"v_pk_mul_f32 v[{T(j,i,0)}:{T(j,i,1)}], v[{T(j,i,0)}:{T(j,i,1)}], v[{KF+2*i}:{KF+2*i+1}]")
        I("s_nop 1")
        for j in range(4):
            for h in range(2):
                o = PP + 2*h + 4*j
                I(f"v_cvt_pk_bf16_f32 v{o+1}, v{T(j,1,h)}, v{T(j,0,h)}")
                I(f"v_cvt_pk_bf16_f32 v{o}, v{T(j,3,h)}, v{T(j,2,h)}")
            for h in range(2):
                o = PP + 2*h + 4*j
                ch = 2*j + h
                I(f"ds_write_b64 v{52 + ch//4}, v[{o}:{o+1}] offset:{(ch % 4)*WREG}")
        I("s_waitcnt lgkmcnt(0)")
        I("s_barrier")
        if "cpf" in FLAGS or "cpf0" in FLAGS:
            C0 = "cpf0" in FLAGS
            I("s_mov_b32 s54, s24")
            if C0:
                I("s_cmp_ge_u32 s24, 256")
                I("s_cbranch_scc1 CV_cpfd")
                e("CV_cpfl:")
            I("s_movk_i32 s50, 56")
            I(f"s_mov_b32 s51, {384*3456}")
            I("s_mov_b32 s52, s54")
            I("s_cmp_ge_u32 s54, 108")
            I("s_cselect_b32 s50, 64, s50")
            I("s_cselect_b32 s53, 108, 0")
            I("s_cmp_ge_u32 s54, 216")
            I("s_cselect_b32 s50, 0, s50")
            I("s_cselect_b32 s53, 216, s53")
            I("s_cselect_b32 s51, 768, s51")
            I("s_cmp_ge_u32 s54, 344")
            I("s_cselect_b32 s50, 72, s50")
            I("s_cselect_b32 s53, 344, s53")
            I("s_cselect_b32 s51, 0, s51")
            I("s_load_dwordx2 s[56:57], s[0:1], s50")
            I("s_sub_u32 s52, s52, s53")
            I("s_lshl_b32 s52, s52, 6")
            I("v_add_u32 v55, s52, v1")
            I("v_lshlrev_b32 v56, 7, v55")
            I("v_lshrrev_b32 v57, 2, v55")
            I("v_mul_u32_u24 v57, 0x500, v57")
            I("v_and_b32 v55, 3, v55")
            I("v_lshl_add_u32 v57, v55, 7, v57")
            I("s_cmp_eq_u32 s50, 0")
            I("s_cselect_b64 vcc, -1, 0")
            I(f"s_mov_b32 s58, {SZ_W}")
            I(f"s_cselect_b32 s58, {SZ_SD}, s58")
            I("s_mov_b32 s59, 0x00020000")
            I("v_cndmask_b32 v56, v56, v57, vcc")
            I("s_waitcnt lgkmcnt(0)")
            I("buffer_load_dword v254, v56, s[56:59], s51 offen")
            if C0:
                I("s_add_u32 s54, s54, 256")
                I("s_cmp_lt_u32 s54, 614")
                I("s_cbranch_scc1 CV_cpfl")
                e("CV_cpfd:")
        if "hpf3" in FLAGS:
            I("v_lshl_add_u32 v55, v1, 6, s27")
            I("buffer_load_dword v58, v55, s[8:11], 0 offen")
    else:
        I("s_waitcnt vmcnt(2)")
        stamp()
        for j in range(4):
            I(f"ds_write_b128 v4, v[{XLD+4*j}:{XLD+4*j+3}] offset:{16*80*j}")
        stage_seg(HW0, 10)
    q = DSQ()
    def crd(c, both, part=None):
        f = FR + (c % CR)*12
        boff = (c >> 1)*80 + (c & 1)*32
        if part in (None, 0):
            if c < 16:
                I(f"ds_read_b128 v[{f}:{f+3}], v7 offset:{32*c}")
            else:
                I(f"ds_read_b128 v[{f}:{f+3}], v14 offset:{32*(c-16)}")
            q.push(("r", c))
            I(f"ds_read_b128 v[{f+4}:{f+7}], v9 offset:{boff}")
            q.push(("r", c))
        if both and part in (None, 1):
            I(f"ds_read_b128 v[{f+8}:{f+11}], v8 offset:{boff}")
            q.push(("r", c))
    if CM4:
        CLA = 2
        for f_ in FLAGS:
            if f_.startswith("c4la"): CLA = int(f_[4:])
        B0 = 180; MSK = 218
        def b0(dh, pp): return B0 + (dh*2 + pp)*4
        def mrd(c, part):
            f = FR + (c % 4)*12
            boff = (c >> 1)*80 + (c & 1)*32
            va, ao = (7, 32*c) if c < 8 else (14, 32*(c-8))
            if part == 0:
                I(f"ds_read_b64 v[{f}:{f+1}], v{va} offset:{ao}"); q.push(("r", c))
                I(f"ds_read_b64 v[{f+2}:{f+3}], v{va} offset:{ao+8}")
            if part == 1:
                I(f"ds_read_b64 v[{f+4}:{f+5}], v{va} offset:{ao+HHI}"); q.push(("r", c))
                I(f"ds_read_b64 v[{f+6}:{f+7}], v{va} offset:{ao+HHI+8}")
            if part == 2: I(f"ds_read_b128 v[{f+8}:{f+11}], v9 offset:{boff}")
            q.push(("r", c))
        W2 = "w2" in FLAGS
        if G2F and CWP:
            g2_setup(0)
            I("s_sub_u32 s34, s40, 22")
            I("s_lshl_b32 s34, s34, 3")
            I("s_add_u32 s34, s34, s3")
            I(f"s_mul_i32 s34, s34, {216*128}")
            I("v_lshl_add_u32 v60, v1, 7, s34")
            I(f"s_mov_b32 s34, {-54*128*CWI}")
            I("s_mov_b32 s36, -1")
            I("s_mov_b32 s37, 0x3fffff")
            if CW4:
                I("s_sub_u32 s34, s40, 22")
                I("s_lshl_b32 s34, s34, 2")
                I("s_add_u32 s34, s34, s3")
                I("s_mul_i32 s35, s34, 434")
                I("s_min_u32 s35, s35, 16846")
                I("s_lshl_b32 s35, s35, 7")
                I("v_lshl_add_u32 v60, v1, 7, s35")
                I("s_cmp_lt_u32 s3, 4")
                I("s_cselect_b32 s36, -1, 0")
                I("s_cselect_b32 s37, 0x3fffffff, 0")
                srd(12, 6, SZ_H, WS_H)
                I("s_mul_i32 s35, s34, 177")
                I("s_min_u32 s35, s35, 6735")
                I("s_lshl_b32 s35, s35, 7")
                I("s_mul_i32 s38, s42, 884736")
                I("s_add_u32 s35, s35, s38")
                I("v_lshl_add_u32 v62, v1, 7, s35")
                I("s_cmp_lt_u32 s3, 4")
                I("s_cselect_b32 s38, -1, 0")
                I("s_cselect_b32 s39, 0x7ffffff, 0")
            elif CHT >= 0:
                srd(12, 6, SZ_H, WS_H)
                I("s_sub_u32 s35, s40, 22")
                I("s_lshl_b32 s35, s35, 3")
                I("s_add_u32 s35, s35, s3")
                I("s_mul_i32 s35, s35, 88")
                I("s_min_u32 s35, s35, 6824")
                I("s_lshl_b32 s35, s35, 7")
                I("s_mul_i32 s38, s42, 884736")
                I("s_add_u32 s35, s35, s38")
                I("v_lshl_add_u32 v62, v1, 7, s35")
                I(f"s_mov_b32 s35, {-44*128*CHT}")
                I("s_mov_b32 s38, -1")
                I("s_mov_b32 s39, 0xfff")
        UNR = "unr" in FLAGS
        if UNR:
            WB_ = 64 - 6*2
            def wreg(n): return HW1 if n == 1 else (64 + 6*(n-2) if n <= 6 else 16)
            cvq = []
            for n in range(2, 8):
                I(f"buffer_load_dwordx4 v[{wreg(n)}:{wreg(n)+3}], v2, s[8:11], 0 offen offset:{192+256*(n-1)}"); cvq.append(n)
                I(f"buffer_load_dwordx2 v[{wreg(n)+4}:{wreg(n)+5}], v2, s[8:11], 0 offen offset:{208+256*(n-1)}"); cvq.append(n)
            for dh in range(2):
                I(f"ds_read_b128 v[{b0(dh,0)}:{b0(dh,0)+3}], v8 offset:{32*dh}")
            for j in range(16): I(f"v_mov_b32 v{AC2+j}, 0")
            I(f"v_cmp_ne_u32 vcc, 0, v5")
            I("s_nop 1")
            I(f"v_cndmask_b32 v{MSK}, 0, -1, vcc")
            for c in range(CLA):
                for part in range(3): mrd(c, part)
            stamp()
            for it in range(8):
                q.q = [("r", c) for c in range(CLA) for _ in range(5)]
                w = wreg(it + 1) if it < 7 else None
                def AL(dst, t): return f"v_alignbit_b32 v{dst+t}, v{w+t+1}, v{w+t}, 16"
                def MV(t): return f"v_mov_b32 v{WO+t}, v{w+t}"
                def WR(c): return ("W", f"ds_write_b128 v11, v[{(UE, WO+1, UO+1, w+2)[c]}:{(UE, WO+1, UO+1, w+2)[c]+3}] offset:{c*CST}")
                slots = []
                if it < 7:
                    slots = [["V", WR(3), AL(UE,0), AL(UE,1)], [AL(UE,2), AL(UE,3)], [],
                             [WR(0), MV(1), MV(2)], [MV(3), MV(4)], [],
                             [WR(1), AL(UO,1), AL(UO,2)], [AL(UO,3), AL(UO,4)], [],
                             [WR(2)], [], [], ["P"]]
                def slot(i):
                    if i < 0 or i >= len(slots): return
                    for x in slots[i]:
                        if x == "V":
                            idxs = [k_ for k_, t_ in enumerate(cvq) if t_ == it + 1]
                            if idxs:
                                I(f"s_waitcnt vmcnt({len(cvq) - 1 - max(idxs)})")
                                del cvq[:max(idxs)+1]
                        elif x == "P" and CW4:
                            for k_ in CW4W[it]:
                                I(f"s_mov_b32 s34, {62*128*k_}")
                                I("s_mov_b64 exec, s[36:37]")
                                I("buffer_load_dword v97, v60, s[48:51], s34 offen")
                                I("s_mov_b64 exec, -1")
                            for k_ in CW4H[it]:
                                I(f"s_mov_b32 s35, {59*128*k_}")
                                I("s_mov_b64 exec, s[38:39]")
                                I("buffer_load_dword v98, v62, s[12:15], s35 offen")
                                I("s_mov_b64 exec, -1")
                        elif x == "P":
                            if G2F and CWP and 0 <= it - CWI < 4:
                                I(f"s_mov_b32 s34, {54*128*(it - CWI)}")
                                I("s_mov_b64 exec, s[36:37]")
                                I("buffer_load_dword v97, v60, s[48:51], s34 offen"); cvq.append(-1)
                                I("s_mov_b64 exec, -1")
                            if G2F and CWP and CHT >= 0 and 0 <= it - CHT < 2:
                                I(f"s_mov_b32 s35, {44*128*(it - CHT)}")
                                I("s_mov_b64 exec, s[38:39]")
                                I("buffer_load_dword v98, v62, s[12:15], s35 offen"); cvq.append(-1)
                                I("s_mov_b64 exec, -1")
                        elif isinstance(x, tuple):
                            I("s_mov_b64 exec, s[30:31]")
                            I(x[1]); q.push(("w", 0))
                            I("s_mov_b64 exec, -1")
                        else: I(x)
                for c in range(8):
                    f = FR + (c % 4)*12
                    bz = b0(c & 1, (c >> 1) & 1); bn = b0(c & 1, ((c >> 1) & 1) ^ 1)
                    last = it == 7 and c + CLA >= 8
                    q.wait_for(("r", c))
                    I(f"v_mfma_f32_32x32x16_bf16 v[{AC0}:{AC0+15}], v[{f}:{f+3}], v[{bz}:{bz+3}], v[{AC0}:{AC0+15}]")
                    if not last: mrd(c + CLA, 0)
                    slot(3*(c-1))
                    I(f"v_mfma_f32_32x32x16_bf16 v[{AC1}:{AC1+15}], v[{f}:{f+3}], v[{f+8}:{f+11}], v[{AC1}:{AC1+15}]")
                    if not last: mrd(c + CLA, 1)
                    slot(3*(c-1)+1 if c >= 1 else -1)
                    I(f"v_mfma_f32_32x32x16_bf16 v[{AC2}:{AC2+15}], v[{f+4}:{f+7}], v[{bz}:{bz+3}], v[{AC2}:{AC2+15}]")
                    if not last: mrd(c + CLA, 2)
                    if not (it == 7 and c >= 6):
                        for r in range(4):
                            I(f"v_and_b32_dpp v{bn+r}, v{bz+r}, v{MSK} wave_shr:1 row_mask:0xf bank_mask:0xf bound_ctrl:0")
                    slot(3*(c-1)+2 if c >= 1 else -1)
                if it < 7:
                    I("v_swap_b32 v7, v14")
                    I("v_swap_b32 v10, v11")
                    I("v_add_u32 v9, 320, v9")
        if not UNR:
            if W2:
                I(f"buffer_load_dwordx4 v[{HW0}:{HW0+3}], v2, s[8:11], s29 offen")
                I(f"buffer_load_dwordx2 v[{HW0+4}:{HW0+5}], v2, s[8:11], s29 offen offset:16")
                I("s_add_u32 s29, s29, 256")
            for dh in range(2):
                I(f"ds_read_b128 v[{b0(dh,0)}:{b0(dh,0)+3}], v8 offset:{32*dh}")
            for j in range(16): I(f"v_mov_b32 v{AC2+j}, 0")
            I(f"v_cmp_ne_u32 vcc, 0, v5")
            I("s_nop 1")
            I(f"v_cndmask_b32 v{MSK}, 0, -1, vcc")
            for c in range(CLA):
                for part in range(3): mrd(c, part)
            I("s_mov_b32 s33, 0")
            stamp()
            e("CV_loopm:")
            q.q = [("r", c) for c in range(CLA) for _ in range(5)]
            w = HW1
            def AL(dst, t): return f"v_alignbit_b32 v{dst+t}, v{w+t+1}, v{w+t}, 16"
            def MV(t): return f"v_mov_b32 v{WO+t}, v{w+t}"
            def WR(c): return ("W", f"ds_write_b128 v11, v[{(UE, WO+1, UO+1, w+2)[c]}:{(UE, WO+1, UO+1, w+2)[c]+3}] offset:{c*CST}")
            slots = [[WR(3), AL(UE,0), AL(UE,1)], [AL(UE,2), AL(UE,3)], [],
                     [WR(0), MV(1), MV(2)], [MV(3), MV(4)], [],
                     [WR(1), AL(UO,1), AL(UO,2)], [AL(UO,3), AL(UO,4)], [],
                     [WR(2), "L"], [], []]
            if W2: slots = slots[:9] + [[WR(2)], [], [], [], [], [], [], [], [], ["L"], [], []]
            def slot(i):
                if i < 0 or i >= len(slots): return
                for x in slots[i]:
                    if x == "L" and W2:
                        I("s_waitcnt vmcnt(0)")
                        for t in range(6): I(f"v_mov_b32 v{HW1+t}, v{HW0+t}")
                        I(f"buffer_load_dwordx4 v[{HW0}:{HW0+3}], v2, s[8:11], s29 offen")
                        I(f"buffer_load_dwordx2 v[{HW0+4}:{HW0+5}], v2, s[8:11], s29 offen offset:16")
                        I("s_add_u32 s29, s29, 256")
                        if G2F and CWP:
                            I(f"s_cmp_lt_u32 s34, {4*54*128}")
                            I("s_cbranch_scc0 CV_nwp")
                            I("s_mov_b64 exec, s[36:37]")
                            I("buffer_load_dword v61, v60, s[48:51], s34 offen")
                            I("s_mov_b64 exec, -1")
                            e("CV_nwp:")
                            I(f"s_add_u32 s34, s34, {54*128}")
                            if CHT >= 0:
                                I(f"s_cmp_lt_u32 s35, {2*44*128}")
                                I("s_cbranch_scc0 CV_nht")
                                I("s_mov_b64 exec, s[38:39]")
                                I("buffer_load_dword v63, v62, s[12:15], s35 offen")
                                I("s_mov_b64 exec, -1")
                                e("CV_nht:")
                                I(f"s_add_u32 s35, s35, {44*128}")
                    elif x == "L":
                        I(f"buffer_load_dwordx4 v[{HW1}:{HW1+3}], v2, s[8:11], s29 offen")
                        I(f"buffer_load_dwordx2 v[{HW1+4}:{HW1+5}], v2, s[8:11], s29 offen offset:16")
                        I("s_add_u32 s29, s29, 256")
                    elif isinstance(x, tuple):
                        I("s_mov_b64 exec, s[30:31]")
                        I(x[1]); q.push(("w", 0))
                        I("s_mov_b64 exec, -1")
                    else: I(x)
            for c in range(8):
                if c == 1 and not W2: I("s_waitcnt vmcnt(0)")
                f = FR + (c % 4)*12
                bz = b0(c & 1, (c >> 1) & 1); bn = b0(c & 1, ((c >> 1) & 1) ^ 1)
                q.wait_for(("r", c))
                I(f"v_mfma_f32_32x32x16_bf16 v[{AC0}:{AC0+15}], v[{f}:{f+3}], v[{bz}:{bz+3}], v[{AC0}:{AC0+15}]")
                mrd(c + CLA, 0)
                slot(3*(c-1))
                I(f"v_mfma_f32_32x32x16_bf16 v[{AC1}:{AC1+15}], v[{f}:{f+3}], v[{f+8}:{f+11}], v[{AC1}:{AC1+15}]")
                mrd(c + CLA, 1)
                slot(3*(c-1)+1 if c >= 1 else -1)
                I(f"v_mfma_f32_32x32x16_bf16 v[{AC2}:{AC2+15}], v[{f+4}:{f+7}], v[{bz}:{bz+3}], v[{AC2}:{AC2+15}]")
                mrd(c + CLA, 2)
                for r in range(4):
                    I(f"v_and_b32_dpp v{bn+r}, v{bz+r}, v{MSK} wave_shr:1 row_mask:0xf bank_mask:0xf bound_ctrl:0")
                slot(3*(c-1)+2 if c >= 1 else -1)
            I("v_swap_b32 v7, v14")
            I("v_swap_b32 v10, v11")
            I("v_add_u32 v9, 320, v9")
            I("s_add_u32 s33, s33, 1")
            I("s_cmp_lt_u32 s33, 8")
            I("s_cbranch_scc1 CV_loopm")
        I("s_nop 7")
        I("s_nop 7")
        I("s_nop 3")
        for j in range(16): I(f"v_add_f32 v{AC1+j}, v{AC1+j}, v{AC2+j}")
    elif CMG:
        def mrd(c, part):
            f = FR + (c % 4)*16
            boff = (c >> 1)*80 + (c & 1)*32
            va, ao = (7, 32*c) if c < 8 else (14, 32*(c-8))
            if "cvnob" in FLAGS and part >= 2: return
            if part == 0: I(f"ds_read_b128 v[{f}:{f+3}], v{va} offset:{ao}")
            if part == 1: I(f"ds_read_b128 v[{f+4}:{f+7}], v{va} offset:{ao+HHI}")
            if part == 2: I(f"ds_read_b128 v[{f+8}:{f+11}], v8 offset:{boff}")
            if part == 3: I(f"ds_read_b128 v[{f+12}:{f+15}], v9 offset:{boff}")
            q.push(("r", c))
        for j in range(16): I(f"v_mov_b32 v{AC2+j}, 0")
        for c in range(CLA):
            for part in range(4): mrd(c, part)
        I("s_mov_b32 s33, 0")
        stamp()
        e("CV_loopm:")
        q.q = [("r", c) for c in range(CLA) for _ in range(2 if "cvnob" in FLAGS else 4)]
        w = HW1
        def AL(dst, t): return f"v_alignbit_b32 v{dst+t}, v{w+t+1}, v{w+t}, 16"
        def MV(t): return f"v_mov_b32 v{WO+t}, v{w+t}"
        def WR(c):
            if c % 2 == 0:
                t0 = c // 2
                r = UE + t0 if t0 % 2 == 0 else UO + t0
            else:
                t0 = (1 + c)//2
                r = w + t0 if t0 % 2 == 0 else WO + t0
            return ("W", f"ds_write_b128 v11, v[{r}:{r+3}] offset:{c*CST}")
        slots = [[WR(3), AL(UE,0), AL(UE,1)], [WR(7), AL(UE,2), AL(UE,3)], [WR(0), AL(UE,4), AL(UE,5)],
                 [WR(4), MV(1), MV(2)], [MV(3), MV(4)], [WR(1), MV(5), MV(6)],
                 [WR(5), AL(UO,1), AL(UO,2)], [AL(UO,3), AL(UO,4)], [WR(2), AL(UO,5), AL(UO,6)],
                 [WR(6)], ["L"], []]
        def slot(i):
            if i < 0 or i >= len(slots): return
            for x in slots[i]:
                if x == "L":
                    I(f"buffer_load_dwordx4 v[{HW1}:{HW1+3}], v2, s[8:11], s29 offen")
                    I(f"buffer_load_dwordx4 v[{HW1+4}:{HW1+7}], v2, s[8:11], s29 offen offset:16")
                    I("s_add_u32 s29, s29, 256")
                elif isinstance(x, tuple):
                    I("s_mov_b64 exec, s[30:31]")
                    I(x[1]); q.push(("w", 0))
                    I("s_mov_b64 exec, -1")
                else: I(x)
        for c in range(8):
            if c == 1: I("s_waitcnt vmcnt(0)")
            f = FR + (c % 4)*16
            q.wait_for(("r", c))
            I(f"v_mfma_f32_32x32x16_bf16 v[{AC0}:{AC0+15}], v[{f}:{f+3}], v[{f+8}:{f+11}], v[{AC0}:{AC0+15}]")
            mrd(c + CLA, 0)
            slot(3*(c-1))
            I(f"v_mfma_f32_32x32x16_bf16 v[{AC1}:{AC1+15}], v[{f}:{f+3}], v[{f+12}:{f+15}], v[{AC1}:{AC1+15}]")
            mrd(c + CLA, 1); mrd(c + CLA, 2)
            slot(3*(c-1)+1 if c >= 1 else -1)
            I(f"v_mfma_f32_32x32x16_bf16 v[{AC2}:{AC2+15}], v[{f+4}:{f+7}], v[{f+8}:{f+11}], v[{AC2}:{AC2+15}]")
            mrd(c + CLA, 3)
            slot(3*(c-1)+2 if c >= 1 else -1)
        I("v_swap_b32 v7, v14")
        I("v_swap_b32 v10, v11")
        I("v_add_u32 v8, 320, v8")
        I("v_add_u32 v9, 320, v9")
        I("s_add_u32 s33, s33, 1")
        I("s_cmp_lt_u32 s33, 8")
        I("s_cbranch_scc1 CV_loopm")
        I("s_nop 7")
        I("s_nop 7")
        I("s_nop 3")
        for j in range(16): I(f"v_add_f32 v{AC1+j}, v{AC1+j}, v{AC2+j}")
    else:
        for c in range(CLA):
            crd(c, True)
        I("s_mov_b32 s33, 0")
        stamp()
    for phase in range(2 if not CMG else 0):
        both = (phase == 0)
        e(f"CV_loop{phase}:")
        q.q = [("r", c) for c in range(CLA) for _ in range(3 if both else 2)]
        for c in range(16):
            if c == 1:
                I("s_waitcnt vmcnt(0)")
                stage_seg(HW1, 11)
                if "cvnoload" not in FLAGS:
                    I(f"buffer_load_dwordx4 v[{HW1}:{HW1+3}], v2, s[8:11], s29 offen")
                    I(f"buffer_load_dwordx4 v[{HW1+4}:{HW1+7}], v2, s[8:11], s29 offen offset:16")
                I("s_add_u32 s29, s29, 512")
            f = FR + (c % CR)*12
            if "cvi" in FLAGS:
                q.wait_for(("r", c))
                I(f"v_mfma_f32_32x32x16_bf16 v[{AC1}:{AC1+15}], v[{f}:{f+3}], v[{f+4}:{f+7}], v[{AC1}:{AC1+15}]")
                crd(c + CLA, both, 0)
                if both:
                    I(f"v_mfma_f32_32x32x16_bf16 v[{AC0}:{AC0+15}], v[{f}:{f+3}], v[{f+8}:{f+11}], v[{AC0}:{AC0+15}]")
                    crd(c + CLA, both, 1)
            else:
                crd(c + CLA, both)
                q.wait_for(("r", c))
                I(f"v_mfma_f32_32x32x16_bf16 v[{AC1}:{AC1+15}], v[{f}:{f+3}], v[{f+4}:{f+7}], v[{AC1}:{AC1+15}]")
                if both:
                    I(f"v_mfma_f32_32x32x16_bf16 v[{AC0}:{AC0+15}], v[{f}:{f+3}], v[{f+8}:{f+11}], v[{AC0}:{AC0+15}]")
        I("v_swap_b32 v7, v14")
        I("v_swap_b32 v10, v11")
        I("v_add_u32 v8, 640, v8")
        I("v_add_u32 v9, 640, v9")
        I("s_add_u32 s33, s33, 1")
        I(f"s_cmp_lt_u32 s33, {4*(phase+1)}")
        I(f"s_cbranch_scc1 CV_loop{phase}")
    I("v_mov_b32 v8, v15")
    I("s_waitcnt vmcnt(0) lgkmcnt(0)" if "unr" not in FLAGS else "s_waitcnt lgkmcnt(0)")
    stamp()
    if G2F:
        if not CWP: g2_setup(0)
        I("s_lshr_b32 s42, s24, 3")
        I("s_mul_i32 s43, s42, 0xCCCD")
        I("s_lshr_b32 s43, s43, 19")
        I("s_mul_i32 s41, s43, 10")
        I("s_sub_u32 s42, s42, s41")
        I("s_lshl_b32 s42, s42, 2")
        I("s_lshl_b32 s43, s43, 7")
        I("s_add_u32 s43, s43, s42")
        I("s_add_u32 s43, s43, 88")
    if YST:
        I("v_mul_u32_u24 v140, 80, v5")
        I("v_lshl_add_u32 v140, v6, 3, v140")
        I("s_add_u32 s42, s28, 12800")
        I("v_add_u32 v140, s42, v140")
        I("v_lshrrev_b32 v141, 2, v1")
        I("v_mul_u32_u24 v141, 80, v141")
        I("v_and_b32 v142, 3, v1")
        I("v_lshl_add_u32 v141, v142, 4, v141")
        I("v_add_u32 v141, s42, v141")
        I("v_lshl_add_u32 v142, v1, 4, s27")
    I("v_mul_u32_u24 v10, 24, v6")
    I("v_sub_u32 v10, v8, v10")
    I("v_add_u32 v10, 8, v10")
    I("v_subrev_u32 v11, 2560, v10")
    KV = 16
    for cb in range(2):
        for qq in range(4):
            I(f"ds_read_b64 v[{KV+cb*8+2*qq}:{KV+cb*8+2*qq+1}], v{10+cb} offset:{48-16*qq}")
    I("s_and_b32 s25, s24, 1")
    I("s_lshl_b32 s25, s25, 4")
    I("s_lshr_b32 s26, s26, s25")
    I("s_lshl_b32 s26, s26, 16")
    I("v_lshlrev_b32 v12, 6, v5")
    I("v_lshl_add_u32 v12, v6, 3, v12")
    I("v_add_u32 v12, s27, v12")
    I("s_nop 7")
    I("s_waitcnt lgkmcnt(0)")
    for cb in range(2):
        ac = AC0 if cb == 0 else AC1
        for qq in range(4):
            k0 = KV + cb*8 + 2*qq
            t = 40 + (qq % 2)*12
            y = ac + 4*qq
            hi16(t+0, k0+1); lo16(t+1, k0+1); hi16(t+2, k0); lo16(t+3, k0)
            for r in range(4):
                I(f"v_mul_f32 v{t+r}, s26, v{t+r}")
            I(f"v_cvt_pk_bf16_f32 v{t+4}, v{t}, v{t+1}")
            I(f"v_cvt_pk_bf16_f32 v{t+5}, v{t+2}, v{t+3}")
            I(f"v_cvt_pk_bf16_f32 v{t+6}, v{y}, v{y+1}")
            I(f"v_cvt_pk_bf16_f32 v{t+7}, v{y+2}, v{y+3}")
            lo16(t, t+4); hi16(t+1, t+4); lo16(t+2, t+5); hi16(t+3, t+5)
            lo16(y, t+6); hi16(y+1, t+6); lo16(y+2, t+7); hi16(y+3, t+7)
            for r in range(4):
                I(f"v_add_f32 v{t+r}, v{t+r}, v{y+r}")
            I(f"v_cvt_pk_bf16_f32 v{t+8}, v{t}, v{t+1}")
            I(f"v_cvt_pk_bf16_f32 v{t+9}, v{t+2}, v{t+3}")
            if YST: I(f"ds_write_b64 v140, v[{t+8}:{t+9}] offset:{cb*2560+16*qq}")
            else: I(f"buffer_store_dwordx2 v[{t+8}:{t+9}], v12, s[20:23], 0 offen offset:{cb*2048+16*qq}")
    if YST:
        I("s_waitcnt lgkmcnt(0)")
        for i in range(4): I(f"ds_read_b128 v[{16+4*i}:{19+4*i}], v141 offset:{1280*i}")
        for i in range(4):
            I(f"s_waitcnt lgkmcnt({3-i})")
            I(f"buffer_store_dwordx4 v[{16+4*i}:{19+4*i}], v142, s[20:23], 0 offen offset:{1024*i}{SCY}")
    if G2F:
        g2_head("conv")
        gen_g2()
    I("s_waitcnt vmcnt(0)")
    stamp()
    stamp_dump(255 if BIG else N_G1 + 7)
    if BIG: wgt_end(1)
    I("s_endpgm")
    e("M_wdt:")
    I("s_waitcnt lgkmcnt(0)")
    if "wlate" in FLAGS: I("s_barrier")
    if BIG and "pfm" in FLAGS:
        I("s_sub_u32 s26, s3, 6")
        I("s_mul_i32 s27, s26, 176")
        I("s_sub_u32 s27, s24, s27")
        I("s_lshl_b32 s26, s26, 3")
        I("s_add_u32 s26, s26, 56")
        I("s_load_dwordx2 s[28:29], s[0:1], s26")
        I("s_mul_i32 s27, s27, 12800")
        I(f"s_mov_b32 s30, {SZ_W}")
        I("s_mov_b32 s31, 0x00020000")
        I("v_and_b32 v1, 63, v0")
        I("v_lshlrev_b32 v1, 4, v1")
        I("s_waitcnt lgkmcnt(0)")
        for i in range(13):
            I(f"buffer_load_dwordx4 v[{100+4*i}:{103+4*i}], v1, s[28:31], s27 offen")
            I("s_add_u32 s27, s27, 1024")
    if "pfa128" in FLAGS or "pfa64" in FLAGS:
        G = 128 if "pfa128" in FLAGS else 64
        NL = 1792 // G
        I("s_cmp_lg_u32 s3, 3")
        I("s_cbranch_scc1 M_nopf")
        I("s_bfe_u32 s26, s2, 0x50003")
        I("s_lshr_b32 s27, s26, 4")
        I("s_lshl_b32 s27, s27, 3")
        I("s_add_u32 s27, s27, 56")
        I("s_load_dwordx2 s[28:29], s[0:1], s27")
        I("s_and_b32 s26, s26, 15")
        I("s_mul_i32 s26, s26, 138240")
        I("s_bfe_u32 s27, s2, 0x10002")
        I("s_mul_i32 s27, s27, 1792")
        I("s_add_u32 s26, s26, s27")
        I(f"s_mov_b32 s30, {SZ_W}")
        I("s_mov_b32 s31, 0x00020000")
        I("v_and_b32 v1, 63, v0")
        I("s_waitcnt lgkmcnt(0)")
        n = (40*NL + 63)//64
        mul = (65536 + NL - 1)//NL
        for i in range(n):
            I(f"v_add_u32 v2, {64*i}, v1")
            I(f"v_mul_u32_u24 v3, {mul}, v2")
            I("v_lshrrev_b32 v3, 16, v3")
            I(f"v_mul_u32_u24 v4, {NL}, v3")
            I("v_sub_u32 v4, v2, v4")
            I("v_mul_u32_u24 v3, 3456, v3")
            I(f"v_lshl_add_u32 v{100+i}, v4, {7 if G==128 else 6}, v3")
            I(f"buffer_load_dword v{140+i}, v{100+i}, s[28:31], s26 offen")
        e("M_nopf:")
    WBAR = 0
    for f_ in FLAGS:
        if f_.startswith("wbar"): WBAR = int(f_[4:])
    I("s_cmp_ge_u32 s24, 270")
    I(f"s_cbranch_scc1 {'M_exitb' if WBAR else 'M_exitw'}")
    I("s_load_dwordx2 s[4:5], s[0:1], 72")
    I("s_mul_i32 s17, s24, 0xCCCD")
    I("s_lshr_b32 s17, s17, 19")
    I("s_mul_i32 s18, s17, 10")
    I("s_sub_u32 s18, s24, s18")
    I("v_and_b32 v1, 7, v0")
    I("v_bfe_u32 v2, v0, 3, 2")
    I("v_bfe_u32 v6, v0, 5, 1")
    I("s_lshl_b32 s18, s18, 6")
    I("v_lshl_add_u32 v1, v1, 3, s18")
    I("s_lshl_b32 s19, s17, 1")
    I("v_add_u32 v6, s19, v6")
    I("v_lshlrev_b32 v7, 5, v6")
    I("v_lshl_add_u32 v7, v2, 2, v7")
    I("v_mul_u32_u24 v3, 0x500, v7")
    I("v_lshl_add_u32 v3, v1, 1, v3")
    I("v_add_u32 v4, 0x5000, v3")
    I("s_waitcnt lgkmcnt(0)")
    srd(8, 4, SZ_W)
    srd(12, 6, SZ_W, WS_WDT)
    for i in range(8):
        b = 3 if i < 4 else 4
        I(f"buffer_load_dwordx4 v[{8+4*i}:{11+4*i}], v{b}, s[8:11], 0 offen offset:{(i%4)*1280}")
    I("s_mov_b32 s20, 0x05040100")
    I("s_mov_b32 s21, 0x07060302")
    I("v_lshrrev_b32 v5, 4, v1")
    I("v_mul_u32_u24 v5, 54, v5")
    I("v_add_u32 v5, v5, v6")
    I("v_lshlrev_b32 v5, 10, v5")
    I("v_lshl_add_u32 v5, v2, 8, v5")
    I("v_and_b32 v7, 15, v1")
    I("v_lshl_add_u32 v5, v7, 4, v5")
    for _ in range(WBAR): I("s_barrier")
    I("s_waitcnt vmcnt(0)")
    for dd in range(8):
        ob = 40 + 4*dd
        sel = 20 + (dd & 1)
        for q in range(4):
            I(f"v_perm_b32 v{ob+q}, v{8+4*(2*q+1)+dd//2}, v{8+4*(2*q)+dd//2}, s{sel}")
    for dd in range(8):
        ob = 40 + 4*dd
        I(f"buffer_store_dwordx4 v[{ob}:{ob+3}], v5, s[12:15], 0 offen offset:{16*dd}")
    if WBAR:
        I("s_endpgm")
        e("M_exitb:")
        for _ in range(WBAR): I("s_barrier")
    e("M_exitw:")
    I("s_waitcnt vmcnt(0)")
    e("M_exit:")
    I("s_endpgm")
    if FUSE: kernel_desc("mid_kernel", 256, 102)
    else: kernel_desc("mid_kernel", 256 if any(f.startswith("cla") for f in FLAGS) else (240 if BIG else 208), 80)

def gen_k3():
    kernel_header("fin_kernel")
    I(f"s_cmp_ge_u32 s2, {64 if 'fin64' in FLAGS else 256}")
    I("s_cbranch_scc1 F_exit")
    I("s_load_dwordx2 s[6:7], s[0:1], 96")
    I("s_load_dwordx2 s[4:5], s[0:1], 0")
    I("s_load_dwordx2 s[30:31], s[0:1], 80")
    stamp()
    I("v_lshrrev_b32 v1, 6, v0")
    I("s_nop 0")
    I("v_readfirstlane_b32 s3, v1")
    I("s_waitcnt lgkmcnt(0)")
    if "fsb" in FLAGS: stamp()
    srd(8, 6, SZ_W, WS_WDT)
    srd(12, 6, SZ_H, WS_H)
    srd(16, 6, SZ_SD, WS_YT)
    if FUSE: srd(20, 6, S*8, WS_ST)
    else: srd(20, 6, SZ_SD, WS_XN)
    srd(24, 4, SZ_SD)
    srd(32, 30, SZ_SD)
    if "fin2e" in FLAGS:
        I("s_bfe_u32 s36, s2, 0x10002")
        I("s_lshl_b32 s36, s36, 2")
        I("s_bfe_u32 s37, s2, 0x20003")
        I("s_add_u32 s36, s36, s37")
        I("s_mul_i32 s36, s36, 80")
        I("s_and_b32 s37, s2, 3")
        I("s_lshl_b32 s37, s37, 3")
        I("s_lshr_b32 s38, s2, 5")
        I("s_add_u32 s37, s37, s38")
        I("s_lshl_b32 s37, s37, 6")
    elif "fin2d" in FLAGS:
        I("s_and_b32 s36, s2, 1")
        I("s_lshl_b32 s36, s36, 2")
        I("s_bfe_u32 s37, s2, 0x20003")
        I("s_add_u32 s36, s36, s37")
        I("s_mul_i32 s36, s36, 80")
        I("s_bfe_u32 s37, s2, 0x20001")
        I("s_lshl_b32 s37, s37, 3")
        I("s_lshr_b32 s38, s2, 5")
        I("s_add_u32 s37, s37, s38")
        I("s_lshl_b32 s37, s37, 6")
    elif "finswap" in FLAGS:
        I("s_lshr_b32 s36, s2, 5")
        I("s_mul_i32 s36, s36, 80")
        I("s_and_b32 s37, s2, 31")
        I("s_lshl_b32 s37, s37, 6")
    else:
        I("s_and_b32 s36, s2, 7")
        I("s_mul_i32 s36, s36, 80")
        I("s_lshr_b32 s37, s2, 3")
        I("s_lshl_b32 s37, s37, 6")
    I("s_mul_i32 s38, s3, 14")
    I("s_cmp_eq_u32 s3, 3")
    I("s_cselect_b32 s39, 1, 0")
    I("s_sub_u32 s38, s38, s39")
    I("s_cmp_ge_u32 s3, 2")
    I("s_cselect_b32 s39, 13, 14")
    I("s_add_u32 s47, s38, s39")
    I("s_lshl_b32 s45, s38, 10")
    I("s_lshl_b32 s47, s47, 10")
    if "rot" in FLAGS:
        I("s_bfe_u32 s46, s2, 0x20003")
        I("s_lshl_b32 s46, s46, 2")
        I("s_lshr_b32 s44, s2, 5")
        I("s_lshl_b32 s44, s44, 1")
        I("s_add_u32 s46, s46, s44")
        I("s_cmp_ge_u32 s46, 13")
        I("s_cselect_b32 s44, 13, 0")
        I("s_sub_u32 s46, s46, s44")
        I("s_cmp_ge_u32 s46, 13")
        I("s_cselect_b32 s44, 13, 0")
        I("s_sub_u32 s46, s46, s44")
        I("s_lshl_b32 s46, s46, 10")
        I("s_add_u32 s46, s46, s45")
    else:
        I("s_mov_b32 s46, s45")
    I("s_mov_b32 s44, 0")
    I("v_and_b32 v1, 15, v0")
    I("v_bfe_u32 v2, v0, 4, 2")
    I("v_and_b32 v12, 63, v0")
    if "pf" in FLAGS:
        I("s_lshr_b32 s52, s2, 3")
        I("s_lshl_b32 s52, s52, 2")
        I("s_add_u32 s52, s52, s3")
        I("s_and_b32 s53, s2, 1")
        I("s_mul_i32 s53, s53, 1105920")
        I("s_mul_i32 s54, s52, 8640")
        I("s_add_u32 s53, s53, s54")
        I("v_lshlrev_b32 v240, 6, v12")
        I("buffer_load_dword v241, v240, s[8:11], s53 offen")
        I("s_add_u32 s53, s53, 4096")
        I("buffer_load_dword v242, v240, s[8:11], s53 offen")
        I("s_add_u32 s53, s53, 544")
        I("buffer_load_dword v243, v240, s[8:11], s53 offen")
        I("s_bfe_u32 s53, s2, 0x20001")
        I("s_mul_i32 s53, s53, 1769472")
        I("s_mul_i32 s54, s52, 13824")
        I("s_add_u32 s53, s53, s54")
        for i, inc in enumerate((4096, 4096, 1536, 0)):
            I(f"buffer_load_dword v{244+i}, v240, s[12:15], s53 offen")
            if inc: I(f"s_add_u32 s53, s53, {inc}")
    I("s_lshr_b32 s52, s36, 4")
    I("s_mul_i32 s52, s52, 55296")
    I("v_lshl_add_u32 v3, v12, 4, s52")
    for jd in range(1, 5):
        I(f"v_add_u32 v{3+jd}, {jd*55296}, v3")
    I("s_lshr_b32 s52, s37, 4")
    I("s_mul_i32 s52, s52, 55296")
    I("v_lshl_add_u32 v8, v12, 4, s52")
    for js in range(1, 4):
        I(f"v_add_u32 v{8+js}, {js*55296}, v8")
    def acc(jd, js): return (js*5 + jd)*4
    FRB = 16
    NB = 5
    def ld(buf):
        f = FRB + buf*36
        I("s_cmp_lt_u32 s44, s39")
        I("s_cselect_b32 s48, s46, 0x40000000")
        for jd in range(5):
            r = f + 4*jd
            I(f"buffer_load_dwordx4 v[{r}:{r+3}], v{3+jd}, s[8:11], s48 offen{CP}")
        for js in range(4):
            r = f + 20 + 4*js
            I(f"buffer_load_dwordx4 v[{r}:{r+3}], v{8+js}, s[12:15], s48 offen{CP}")
        I("s_add_u32 s46, s46, 1024")
        I("s_cmp_ge_u32 s46, s47")
        I("s_cselect_b32 s46, s45, s46")
        I("s_add_u32 s44, s44, 1")
    def mm(buf):
        f = FRB + buf*36
        for js in range(4):
            for jd in range(5):
                c = acc(jd, js)
                a = f + 4*jd; b = f + 20 + 4*js
                I(f"v_mfma_f32_16x16x32_bf16 a[{c}:{c+3}], v[{a}:{a+3}], v[{b}:{b+3}], a[{c}:{c+3}]")
    YF = 196; XX = 216
    FINL = -1
    for f_ in FLAGS:
        if f_.startswith('finl'): FINL = int(f_[4:])
    def epi_loads():
        I0 = globals()["I"]
        def I(x):
            if "xne" in FLAGS and x.startswith("buffer_load"): return
            I0(x)
        I("s_lshr_b32 s41, s3, 1")
        I("s_lshl_b32 s41, s41, 5")
        I("s_add_u32 s41, s41, s37")
        I("s_lshl_b32 s41, s41, 1")
        I("v_add_u32 v14, s36, v1")
        I("v_lshlrev_b32 v14, 12, v14")
        I("v_lshl_add_u32 v14, v2, 4, v14")
        I("v_add_u32 v14, s41, v14")
        YF = 196
        for jd in range(5):
            I(f"v_add_u32 v15, {jd*16*4096}, v14")
            I(f"buffer_load_dwordx4 v[{YF+4*jd}:{YF+4*jd+3}], v15, s[16:19], 0 offen")
        I("s_lshl_b32 s42, s3, 4")
        I("s_add_u32 s42, s42, s37")
        I("v_add_u32 v15, s42, v1")
        I("v_mul_u32_u24 v15, 0x500, v15")
        I("v_lshl_add_u32 v15, v2, 3, v15")
        I("s_lshl_b32 s43, s36, 1")
        I("v_add_u32 v15, s43, v15")
        XX = 216
        I("s_lshr_b32 s50, s42, 4")
        I("s_mul_i32 s50, s50, 20480")
        I("v_lshrrev_b32 v14, 1, v2")
        I("v_lshlrev_b32 v14, 8, v14")
        I("v_lshl_add_u32 v14, v1, 4, v14")
        I("v_and_b32 v13, 1, v2")
        I("v_lshl_add_u32 v14, v13, 3, v14")
        I("v_add_u32 v14, s50, v14")
        if FUSE:
            I("v_add_u32 v14, s42, v1")
            I("v_lshlrev_b32 v14, 3, v14")
            I(f"buffer_load_dwordx2 v[{XX+10}:{XX+11}], v14, s[20:23], 0 offen")
        for jd in range(5):
            I(f"buffer_load_dwordx2 v[{XX+2*jd}:{XX+2*jd+1}], v15, s[24:27], 0 offen offset:{32*jd}")
            if FUSE: continue
            I(f"s_add_u32 s50, s36, {16*jd}")
            I("s_lshr_b32 s51, s50, 5")
            I("s_lshl_b32 s51, s51, 10")
            I("s_and_b32 s50, s50, 16")
            I("s_lshl_b32 s50, s50, 5")
            I("s_add_u32 s51, s51, s50")
            I(f"buffer_load_dwordx2 v[{XX+10+2*jd}:{XX+11+2*jd}], v14, s[20:23], s51 offen")
    if "fsb" in FLAGS: stamp()
    if FINL < 0 and not ("nf" in FLAGS and any(f_.startswith("el") for f_ in FLAGS)): epi_loads()
    if "fsb" in FLAGS: stamp()
    NB2 = NB
    for f_ in FLAGS:
        if f_.startswith("nb"): NB2 = int(f_[2:])
    def breg(buf, i):
        if buf < 5: return "v", FRB + buf*36 + 4*i
        return "a", 80 + (buf-5)*36 + 4*i
    def ld2(buf):
        for jd in range(5):
            t, r = breg(buf, jd)
            I(f"buffer_load_dwordx4 {t}[{r}:{r+3}], v{3+jd}, s[8:11], s46 offen{CP}")
        for js in range(4):
            t, r = breg(buf, 5+js)
            I(f"buffer_load_dwordx4 {t}[{r}:{r+3}], v{8+js}, s[12:15], s46 offen{CP}")
        I("s_add_u32 s46, s46, 1024")
    def mm2(buf, zero=False):
        for js in range(4):
            for jd in range(5):
                c = acc(jd, js)
                t, a = breg(buf, jd); t, b = breg(buf, 5+js)
                cin = "0" if zero else f"a[{c}:{c+3}]"
                I(f"v_mfma_f32_16x16x32_bf16 a[{c}:{c+3}], {t}[{a}:{a+3}], {t}[{b}:{b+3}], {cin}")
    NEWF = "nf" in FLAGS
    ELP = -1; SPK = 4
    for f_ in FLAGS:
        if f_.startswith("el"): ELP = int(f_[2:])
        if f_.startswith("spk"): SPK = int(f_[3:])
    for b in range(NB2-1):
        ld2(b)
        if NEWF and ELP == b and "xne" not in FLAGS: epi_loads()
        if "fsb" in FLAGS: stamp()
    if FINL >= 0: epi_loads()
    if not NEWF:
        for j in range(80):
            I(f"v_accvgpr_write_b32 a{j}, 0")
    HOIST = "hoist" in FLAGS
    def hoisted(part=None):
        IDB2, TQ, TYQ = 244, 248, 236
        if part is None or part == 0:
            I("s_and_b32 s44, s3, 1")
            I("s_lshl_b32 s44, s44, 4")
            I(f"v_add_u32 v{TQ}, s44, v1")
            I(f"v_lshrrev_b32 v{TQ+1}, 3, v{TQ}")
            I(f"v_cmp_eq_u32 vcc, v{TQ+1}, v2")
            I(f"v_and_b32 v{TQ+1}, 7, v{TQ}")
            I(f"v_and_b32 v{TQ+2}, 1, v{TQ+1}")
            I(f"v_lshlrev_b32 v{TQ+2}, 4, v{TQ+2}")
            I(f"v_mov_b32 v{TQ+3}, 0x3f80")
            I(f"v_lshlrev_b32 v{TQ+3}, v{TQ+2}, v{TQ+3}")
            I(f"v_lshrrev_b32 v{TQ+1}, 1, v{TQ+1}")
            I(f"v_cndmask_b32 v{TQ+3}, 0, v{TQ+3}, vcc")
            for j in range(4):
                I(f"v_cmp_eq_u32 vcc, {j}, v{TQ+1}")
                I("s_nop 1")
                I(f"v_cndmask_b32 v{IDB2+j}, 0, v{TQ+3}, vcc")
        if part is None:
            if "fsb" in FLAGS: stamp()
            if FINL < 0: I(f"s_waitcnt vmcnt({9*(NB2-1)})")
            if "fsb" in FLAGS: stamp()
        I("s_nop 1")
        for jd in range(5):
            if part is not None and jd != part: continue
            ty = TYQ + (jd % 2)*4; t = TQ + (jd % 2)*4
            x0 = XX + 2*jd; n0 = XX + 10 + 2*jd
            I(f"v_mfma_f32_16x16x32_bf16 v[{ty}:{ty+3}], v[{YF+4*jd}:{YF+4*jd+3}], v[{IDB2}:{IDB2+3}], 0")
            if FUSE:
                lo16(t, x0); hi16(t+1, x0); lo16(t+2, x0+1); hi16(t+3, x0+1)
                for r in range(4): I(f"v_add_f32 v{t+r}, v{t+r}, v{XX+11}")
                for r in range(4): I(f"v_cvt_pk_bf16_f32 v{t+r}, 0, v{t+r}")
                for r in range(4): I(f"v_mul_f32 v{t+r}, v{t+r}, v{XX+10}")
                for r in range(4): I(f"v_cvt_pk_bf16_f32 v{t+r}, 0, v{t+r}")
            else:
                lo16(t, n0); hi16(t+1, n0); lo16(t+2, n0+1); hi16(t+3, n0+1)
            I("s_nop 7")
            I("s_nop 3")
            for r in range(4):
                I(f"v_mul_f32 v{t+r}, v{t+r}, v{ty+r}")
            I(f"v_cvt_pk_bf16_f32 v{ty}, v{t}, v{t+1}")
            I(f"v_cvt_pk_bf16_f32 v{ty+1}, v{t+2}, v{t+3}")
            lo16(t, ty); hi16(t+1, ty); lo16(t+2, ty+1); hi16(t+3, ty+1)
            lo16(ty, x0); hi16(ty+1, x0); lo16(ty+2, x0+1); hi16(ty+3, x0+1)
            for r in range(4):
                I(f"v_add_f32 v{t+r}, v{t+r}, v{ty+r}")
            I(f"v_cvt_pk_bf16_f32 v{x0}, v{t}, v{t+1}")
            I(f"v_cvt_pk_bf16_f32 v{x0+1}, v{t+2}, v{t+3}")
    if HOIST and FINL < 0 and not NEWF: hoisted()
    stamp()
    NEL = 0 if "xne" in FLAGS else 11
    for k in range(14):
        nb = k + NB2 - 1
        if nb <= 12:
            ld2(nb % NB2)
            if NEWF and ELP == nb and "xne" not in FLAGS: epi_loads()
        elif nb == 13:
            I("s_cmp_ge_u32 s3, 2")
            I("s_cbranch_scc1 F_skip13")
            ld2(nb % NB2)
            e("F_skip13:")
        if k == 13:
            I("s_cmp_ge_u32 s3, 2")
            I("s_cbranch_scc1 F_done")
        rem = max(0, min(12, nb) - k)
        extra = NEL if (FINL >= 0 and k < NB2 - 1) else 0
        if NEWF: extra = NEL if (k <= ELP <= nb) else 0
        if k < 13: I(f"s_waitcnt vmcnt({min(63, 9*rem + extra)})")
        mm2(k % NB2, NEWF and k == 0)
        if HOIST and FINL >= 0 and k == max(FINL, NB2 - 1): hoisted()
        if NEWF and "xnh" not in FLAGS and SPK <= k < SPK + 5:
            assert k > ELP
            hoisted(k - SPK)
        if "fst" in FLAGS and k in (0, 3, 7): stamp()
        if "fsa" in FLAGS and k in (0, 1, 2, 3, 4, 5, 6, 8, 10, 12): stamp()
        if "fsb" in FLAGS and k in ((0, 3, 5, 7, 10) if NEWF else (0, 3, 7)): stamp()
    e("F_done:")
    stamp()
    I("s_mul_i32 s40, s3, 20480")
    I("v_lshlrev_b32 v13, 4, v12")
    I("v_add_u32 v13, s40, v13")
    I("s_nop 7")
    for js in range(4):
        for jd in range(5):
            c = acc(jd, js)
            I(f"ds_write_b128 v13, a[{c}:{c+3}] offset:{(js*5+jd)*1024}")
    I("s_waitcnt lgkmcnt(0)")
    I("s_barrier")
    I("s_mul_i32 s40, s3, 5120")
    I("v_lshlrev_b32 v12, 4, v12")
    I("v_add_u32 v13, s40, v12")
    I("v_add_u32 v12, 40960, v13")
    R = 96
    for src in range(4):
        for jd in range(5):
            r = R + (src*5 + jd)*4
            I(f"ds_read_b128 v[{r}:{r+3}], v{13 if src < 2 else 12} offset:{(src%2)*20480 + jd*1024}")
    if HOIST:
        I("s_waitcnt lgkmcnt(0)")
        for jd in range(5):
            r0 = R + jd*4
            I(f"v_add_f32 v{r0}, v{r0}, v{R+(5+jd)*4}")
            I(f"v_add_f32 v{r0+1}, v{r0+1}, v{R+(5+jd)*4+1}")
            I(f"v_add_f32 v{r0+2}, v{r0+2}, v{R+(5+jd)*4+2}")
            I(f"v_add_f32 v{r0+3}, v{r0+3}, v{R+(5+jd)*4+3}")
            for src in range(2, 4):
                r = R + (src*5 + jd)*4
                for j in range(4):
                    I(f"v_add_f32 v{r0+j}, v{r0+j}, v{r+j}")
            b = r0; t = 16 + (jd % 2)*16; x0 = XX + 2*jd
            I(f"v_cvt_pk_bf16_f32 v{t+4}, v{b}, v{b+1}")
            I(f"v_cvt_pk_bf16_f32 v{t+5}, v{b+2}, v{b+3}")
            lo16(t, x0); hi16(t+1, x0); lo16(t+2, x0+1); hi16(t+3, x0+1)
            lo16(t+6, t+4); hi16(t+7, t+4); lo16(t+8, t+5); hi16(t+9, t+5)
            for r in range(4):
                I(f"v_add_f32 v{t+r}, v{t+r}, v{t+6+r}")
            I(f"v_cvt_pk_bf16_f32 v{t+10}, v{t}, v{t+1}")
            I(f"v_cvt_pk_bf16_f32 v{t+11}, v{t+2}, v{t+3}")
            I(f"buffer_store_dwordx2 v[{t+10}:{t+11}], v15, s[32:35], 0 offen offset:{32*jd}")
    else:
        IDB = 60
        I("s_and_b32 s44, s3, 1")
        I("s_lshl_b32 s44, s44, 4")
        I("v_add_u32 v64, s44, v1")
        I("v_lshrrev_b32 v65, 3, v64")
        I("v_cmp_eq_u32 vcc, v65, v2")
        I("v_and_b32 v65, 7, v64")
        I("v_and_b32 v66, 1, v65")
        I("v_lshlrev_b32 v66, 4, v66")
        I("v_mov_b32 v67, 0x3f80")
        I("v_lshlrev_b32 v67, v66, v67")
        I("v_lshrrev_b32 v65, 1, v65")
        I("v_cndmask_b32 v67, 0, v67, vcc")
        for j in range(4):
            I(f"v_cmp_eq_u32 vcc, {j}, v65")
            I("s_nop 1")
            I(f"v_cndmask_b32 v{IDB+j}, 0, v67, vcc")
        TY = 64
        I("s_nop 1")
        for jd in range(5):
            I(f"v_mfma_f32_16x16x32_bf16 v[{TY+4*jd}:{TY+4*jd+3}], v[{YF+4*jd}:{YF+4*jd+3}], v[{IDB}:{IDB+3}], 0")
        I("s_waitcnt lgkmcnt(0)")
        for jd in range(5):
            r0 = R + jd*4
            for src in range(1, 4):
                r = R + (src*5 + jd)*4
                for j in range(4):
                    I(f"v_add_f32 v{r0+j}, v{r0+j}, v{r+j}")
        I("s_waitcnt vmcnt(0)")
        for jd in range(5):
            b = R + jd*4
            ty = TY + 4*jd
            t = 180 + (jd % 2)*16
            x0 = XX + 2*jd; n0 = XX + 10 + 2*jd
            lo16(t, n0); hi16(t+1, n0); lo16(t+2, n0+1); hi16(t+3, n0+1)
            for r in range(4):
                I(f"v_mul_f32 v{t+r}, v{t+r}, v{ty+r}")
            I(f"v_cvt_pk_bf16_f32 v{t+4}, v{t}, v{t+1}")
            I(f"v_cvt_pk_bf16_f32 v{t+5}, v{t+2}, v{t+3}")
            lo16(t, t+4); hi16(t+1, t+4); lo16(t+2, t+5); hi16(t+3, t+5)
            lo16(t+6, x0); hi16(t+7, x0); lo16(t+8, x0+1); hi16(t+9, x0+1)
            for r in range(4):
                I(f"v_add_f32 v{t+r}, v{t+r}, v{t+6+r}")
            I(f"v_cvt_pk_bf16_f32 v{t+4}, v{t}, v{t+1}")
            I(f"v_cvt_pk_bf16_f32 v{t+5}, v{t+2}, v{t+3}")
            lo16(t, t+4); hi16(t+1, t+4); lo16(t+2, t+5); hi16(t+3, t+5)
            I(f"v_cvt_pk_bf16_f32 v{t+4}, v{b}, v{b+1}")
            I(f"v_cvt_pk_bf16_f32 v{t+5}, v{b+2}, v{b+3}")
            lo16(t+6, t+4); hi16(t+7, t+4); lo16(t+8, t+5); hi16(t+9, t+5)
            for r in range(4):
                I(f"v_add_f32 v{t+r}, v{t+r}, v{t+6+r}")
            I(f"v_cvt_pk_bf16_f32 v{t+10}, v{t}, v{t+1}")
            I(f"v_cvt_pk_bf16_f32 v{t+11}, v{t+2}, v{t+3}")
            I(f"buffer_store_dwordx2 v[{t+10}:{t+11}], v15, s[32:35], 0 offen offset:{32*jd}")
    I("s_waitcnt vmcnt(0)")
    stamp()
    stamp_dump(9)
    e("F_exit:")
    I("s_endpgm")
    kernel_desc("fin_kernel", 256+80+36*max(0, NB2-5), 102 if STAMP else 80, accum=256)

def gen_k3b():
    NSL = 7; ELS = 2; NSTG = 27
    for f_ in FLAGS:
        if f_.startswith("f3n"): NSL = int(f_[3:])
        if f_.startswith("f3e"): ELS = int(f_[3:])
    SLOT = 18432; YB = NSL*SLOT; XB = YB + 10240
    F3LDS[0] = XB + 10240
    kernel_header("fin_kernel")
    I("s_cmp_ge_u32 s2, 256")
    I("s_cbranch_scc1 F_exit")
    I("s_load_dwordx2 s[6:7], s[0:1], 96")
    I("s_load_dwordx2 s[4:5], s[0:1], 0")
    I("s_load_dwordx2 s[30:31], s[0:1], 80")
    stamp()
    I("v_lshrrev_b32 v1, 6, v0")
    I("v_and_b32 v12, 63, v0")
    I("v_readfirstlane_b32 s3, v1")
    I("s_and_b32 s36, s2, 1")
    I("s_lshl_b32 s36, s36, 2")
    I("s_bfe_u32 s37, s2, 0x20003")
    I("s_add_u32 s36, s36, s37")
    I("s_bfe_u32 s37, s2, 0x20001")
    I("s_lshl_b32 s37, s37, 3")
    I("s_lshr_b32 s38, s2, 5")
    I("s_add_u32 s37, s37, s38")
    I("s_cmp_lt_u32 s3, 4")
    I("s_cbranch_scc1 F_cons")
    I("s_mul_i32 s52, s36, %d" % (5*55296))
    I("s_mul_i32 s53, s37, %d" % (4*55296))
    I("s_bfe_u32 s41, s3, 0x10001")
    I("s_lshl_b32 s46, s41, 10")
    I("s_mul_i32 s40, s41, 9216")
    I("s_and_b32 s42, s3, 1")
    I("s_cselect_b32 s52, s53, s52")
    I(f"s_cselect_b32 s44, {WS_H:#x}, {WS_WDT:#x}") if False else None
    I("v_lshl_add_u32 v3, v12, 4, s52")
    for i in range(1, 5):
        I(f"v_add_u32 v{3+i}, {i*55296 - 1024*(i % 4)}, v3")
    I("s_cbranch_scc1 F_ph")
    for t in range(2):
        if t == 1: e("F_ph:")
        n = 5 - t
        if t: I("s_add_u32 s40, s40, 5120")
        I("s_waitcnt lgkmcnt(0)")
        srd(8, 6, SZ_H if t else SZ_W, WS_H if t else WS_WDT)
        vq = []
        def issue(st):
            for i in range(n):
                if i % 4 == 0: I(f"s_add_u32 m0, s40, {(st % NSL)*SLOT + (i//4)*4096}")
                I(f"buffer_load_dwordx4 v{3+i}, s[8:11], s46 offen offset:{1024*(i % 4)} lds"); vq.append(st)
            I("s_add_u32 s46, s46, 2048")
        def xy():
            srd(16, 6, SZ_SD, WS_YT)
            srd(24, 4, SZ_SD)
            I("s_and_b32 s47, s3, 3")
            I("v_lshrrev_b32 v13, 3, v12")
            I("v_and_b32 v14, 7, v12")
            I("v_xor_b32 v14, v14, v13")
            I("v_lshlrev_b32 v13, 12, v13")
            I("v_lshl_add_u32 v13, v14, 4, v13")
            I("s_mul_i32 s48, s36, %d" % (80*4096))
            I("s_lshl_b32 s49, s37, 7")
            I("s_add_u32 s48, s48, s49")
            I("s_lshl_b32 s49, s47, 15")
            I("s_add_u32 s48, s48, s49")
            I("s_lshl_b32 s50, s47, 10")
            I("s_mul_i32 s51, s37, %d" % (64*1280))
            I("s_mul_i32 s49, s36, 160")
            I("s_add_u32 s51, s51, s49")
            I("s_lshl_b32 s49, s47, 6")
            def xoff(dst, add):
                I(f"v_add_u32 v{dst}, s49, v12")
                if add: I(f"v_add_u32 v{dst}, {add}, v{dst}")
                I(f"v_mul_u32_u24 v15, 6554, v{dst}")
                I("v_lshrrev_b32 v15, 16, v15")
                I("v_mul_u32_u24 v15, 1120, v15")
                I(f"v_lshl_add_u32 v{dst}, v{dst}, 4, v15")
            xoff(16, 0); xoff(17, 256); xoff(18, 384)
            for i in range(2):
                I(f"s_add_u32 m0, s50, {YB + 4096*i}")
                I("buffer_load_dwordx4 v13, s[16:19], s48 offen lds"); vq.append(-1)
                I(f"s_add_u32 s48, s48, {4*8*4096}")
                I(f"s_add_u32 m0, s50, {XB + 4096*i}")
                I(f"buffer_load_dwordx4 v{16+i}, s[24:27], s51 offen lds"); vq.append(-1)
            I("s_cmp_eq_u32 s41, 0")
            I(f"s_cbranch_scc0 F_x5_{t}")
            I(f"s_add_u32 m0, s50, {YB + 8192}")
            I("buffer_load_dwordx4 v13, s[16:19], s48 offen lds")
            I(f"s_branch F_x5d_{t}")
            e(f"F_x5_{t}:")
            I(f"s_add_u32 m0, s50, {XB + 6144}")
            I("buffer_load_dwordx4 v18, s[24:27], s51 offen lds")
            e(f"F_x5d_{t}:")
            vq.append(-1)
        for st in range(NSL):
            issue(st)
            if st == ELS: xy()
        for k in range(NSTG):
            idx = max(i for i, tg in enumerate(vq) if tg == k)
            nrem = len(vq) - 1 - idx
            assert nrem <= 63
            I(f"s_waitcnt vmcnt({nrem})")
            del vq[:idx+1]
            I("s_barrier")
            if k >= 1 and k - 1 + NSL < NSTG:
                issue(k - 1 + NSL)
                if k - 1 + NSL == ELS: xy()
        I("s_endpgm")
    e("F_cons:")
    I("v_and_b32 v1, 15, v0")
    I("v_bfe_u32 v2, v0, 4, 2")
    I("s_lshl_b32 s42, s37, 6")
    I("s_lshl_b32 s43, s3, 4")
    I("s_add_u32 s42, s42, s43")
    I("v_add_u32 v14, s42, v1")
    I("v_lshlrev_b32 v14, 3, v14")
    FR = 24; AC = 120; YF = 140; XX = 160; IDB2 = 172; TQ = 176; TYQ = 184; OT = 192
    I("s_waitcnt lgkmcnt(0)")
    srd(20, 6, S*8, WS_ST)
    I(f"buffer_load_dwordx2 v[{XX+10}:{XX+11}], v14, s[20:23], 0 offen")
    srd(32, 30, SZ_SD)
    I("v_lshlrev_b32 v3, 4, v12")
    I(f"v_add_u32 v4, {3*SLOT}, v3")
    I(f"v_add_u32 v5, {6*SLOT}, v3")
    I("s_lshl_b32 s43, s3, 10")
    for i in range(3): I(f"v_add_u32 v{6+i}, s43, v{3+i}")
    I("s_lshr_b32 s43, s3, 1")
    I("s_lshl_b32 s43, s43, 2")
    I("v_add_u32 v13, s43, v2")
    I("v_and_b32 v14, 7, v1")
    I("v_xor_b32 v13, v13, v14")
    I("v_lshlrev_b32 v9, 7, v1")
    I("v_lshl_add_u32 v9, v13, 4, v9")
    I(f"v_add_u32 v9, {YB}, v9")
    I("s_mul_i32 s43, s3, 2560")
    I(f"s_add_u32 s43, s43, {XB}")
    I("v_mul_u32_u24 v10, 160, v1")
    I("v_lshl_add_u32 v10, v2, 3, v10")
    I("v_add_u32 v10, s43, v10")
    I("v_lshl_add_u32 v11, v12, 4, s43")
    for u in range(3):
        I(f"v_add_u32 v{16+u}, {64*u}, v12")
        I(f"v_mul_u32_u24 v15, 6554, v{16+u}")
        I("v_lshrrev_b32 v15, 16, v15")
        I("v_mul_u32_u24 v15, 1120, v15")
        I(f"v_lshl_add_u32 v{16+u}, v{16+u}, 4, v15")
    I("s_mul_i32 s42, s42, 1280")
    I("s_mul_i32 s43, s36, 160")
    I("s_add_u32 s42, s42, s43")
    I("s_and_b32 s44, s3, 1")
    I("s_lshl_b32 s44, s44, 4")
    I(f"v_add_u32 v{TQ}, s44, v1")
    I(f"v_lshrrev_b32 v{TQ+1}, 3, v{TQ}")
    I(f"v_cmp_eq_u32 vcc, v{TQ+1}, v2")
    I(f"v_and_b32 v{TQ+1}, 7, v{TQ}")
    I(f"v_and_b32 v{TQ+2}, 1, v{TQ+1}")
    I(f"v_lshlrev_b32 v{TQ+2}, 4, v{TQ+2}")
    I(f"v_mov_b32 v{TQ+3}, 0x3f80")
    I(f"v_lshlrev_b32 v{TQ+3}, v{TQ+2}, v{TQ+3}")
    I(f"v_lshrrev_b32 v{TQ+1}, 1, v{TQ+1}")
    I(f"v_cndmask_b32 v{TQ+3}, 0, v{TQ+3}, vcc")
    for j in range(4):
        I(f"v_cmp_eq_u32 vcc, {j}, v{TQ+1}")
        I("s_nop 1")
        I(f"v_cndmask_b32 v{IDB2+j}, 0, v{TQ+3}, vcc")
    def piece(jd):
        ty = TYQ + (jd % 2)*4; t = TQ + (jd % 2)*4
        x0 = XX + 2*jd
        I(f"v_mfma_f32_16x16x32_bf16 v[{ty}:{ty+3}], v[{YF+4*jd}:{YF+4*jd+3}], v[{IDB2}:{IDB2+3}], 0")
        lo16(t, x0); hi16(t+1, x0); lo16(t+2, x0+1); hi16(t+3, x0+1)
        for r in range(4): I(f"v_add_f32 v{t+r}, v{t+r}, v{XX+11}")
        for r in range(4): I(f"v_cvt_pk_bf16_f32 v{t+r}, 0, v{t+r}")
        for r in range(4): I(f"v_mul_f32 v{t+r}, v{t+r}, v{XX+10}")
        for r in range(4): I(f"v_cvt_pk_bf16_f32 v{t+r}, 0, v{t+r}")
        I("s_nop 7")
        I("s_nop 3")
        for r in range(4):
            I(f"v_mul_f32 v{t+r}, v{t+r}, v{ty+r}")
        I(f"v_cvt_pk_bf16_f32 v{ty}, v{t}, v{t+1}")
        I(f"v_cvt_pk_bf16_f32 v{ty+1}, v{t+2}, v{t+3}")
        lo16(t, ty); hi16(t+1, ty); lo16(t+2, ty+1); hi16(t+3, ty+1)
        lo16(ty, x0); hi16(ty+1, x0); lo16(ty+2, x0+1); hi16(ty+3, x0+1)
        for r in range(4):
            I(f"v_add_f32 v{YF+4*jd+r}, v{t+r}, v{ty+r}")
        for r in range(4): I(f"v_cvt_pk_bf16_f32 v{YF+4*jd+r}, 0, v{YF+4*jd+r}")
    def rds(k):
        sl = k % NSL; bi = sl // 3; o = (sl % 3)*SLOT; f = FR + (k & 1)*48
        r = []
        for b in range(2):
            r.append(f"ds_read_b128 v[{f+24*b}:{f+24*b+3}], v{6+bi} offset:{o + b*9216 + 5120}")
            for jd in range(5):
                r.append(f"ds_read_b128 v[{f+24*b+4+4*jd}:{f+24*b+7+4*jd}], v{3+bi} offset:{o + b*9216 + 1024*jd}")
        return r
    def mms(k):
        f = FR + (k & 1)*48
        r = []
        for b in range(2):
            for jd in range(5):
                c = AC + 4*jd
                cin = "0" if (k == 0 and b == 0) else f"v[{c}:{c+3}]"
                r.append(f"v_mfma_f32_16x16x32_bf16 v[{c}:{c+3}], v[{f+24*b+4+4*jd}:{f+24*b+7+4*jd}], v[{f+24*b}:{f+24*b+3}], {cin}")
        return r
    K0 = ELS + 1
    assert K0 + 6 < NSTG
    for k in range(NSTG):
        I("s_barrier")
        if k in (0, 1, 3, 6, 10, 14, 18, 22, 26): stamp()
        rr = rds(k); mm_ = mms(k-1) if k else []
        I(rr[0]); I(rr[1]); rr = rr[2:]
        for i in range(10):
            if mm_: I(mm_[i])
            I(rr[i])
        if k == K0:
            for jd in range(5):
                I(f"ds_read_b128 v[{YF+4*jd}:{YF+4*jd+3}], v9 offset:{2048*jd}")
                I(f"ds_read_b64 v[{XX+2*jd}:{XX+2*jd+1}], v10 offset:{32*jd}")
        if K0 < k <= K0 + 5:
            if k == K0 + 1: I("s_waitcnt vmcnt(0)")
            piece(k - K0 - 1)
        if k < NSTG - 1: I("s_waitcnt lgkmcnt(0)")
    mm_ = mms(NSTG - 1)
    I("s_waitcnt lgkmcnt(6)")
    for x in mm_[:5]: I(x)
    I("s_waitcnt lgkmcnt(0)")
    for x in mm_[5:]: I(x)
    stamp()
    I("s_nop 7")
    for jd in range(5):
        b = AC + 4*jd; xa = YF + 4*jd; t = OT + 2*jd
        if jd == 4: I("s_nop 3")
        for r in range(4): I(f"v_cvt_pk_bf16_f32 v{b+r}, 0, v{b+r}")
        for r in range(4): I(f"v_add_f32 v{b+r}, v{b+r}, v{xa+r}")
        I(f"v_cvt_pk_bf16_f32 v{t}, v{b}, v{b+1}")
        I(f"v_cvt_pk_bf16_f32 v{t+1}, v{b+2}, v{b+3}")
        I(f"ds_write_b64 v10, v[{t}:{t+1}] offset:{32*jd}")
    I("s_waitcnt lgkmcnt(0)")
    for u in range(3):
        I(f"ds_read_b128 v[{FR+4*u}:{FR+4*u+3}], v11 offset:{1024*u}")
    for u in range(3):
        I(f"s_waitcnt lgkmcnt({2-u})")
        if u == 2: I("s_mov_b64 exec, 0xffffffff")
        I(f"buffer_store_dwordx4 v[{FR+4*u}:{FR+4*u+3}], v{16+u}, s[32:35], s42 offen{OSC}")
    I("s_mov_b64 exec, -1")
    stamp()
    if STAMP: I("s_waitcnt vmcnt(0)")
    stamp()
    stamp_dump(9)
    e("F_exit:")
    I("s_endpgm")
    kernel_desc("fin_kernel", 208, 102 if STAMP else 80)
F3LDS = [0]
OSC = " sc1" if "osc" in FLAGS else (" nt" if "ont" in FLAGS else "")

def gen_k0():
    kernel_header("init_kernel")
    I(f"s_cmp_ge_u32 s2, {NK0}")
    I("s_cbranch_scc1 I_exit")
    I("s_load_dwordx2 s[6:7], s[0:1], 96")
    I("s_load_dwordx2 s[4:5], s[0:1], 72")
    I("v_lshrrev_b32 v1, 6, v0")
    I("s_nop 0")
    I("v_readfirstlane_b32 s3, v1")
    I("s_lshl_b32 s24, s2, 2")
    I("s_add_u32 s24, s24, s3")
    I("s_min_u32 s24, s24, 269")
    I("s_mul_i32 s17, s24, 0xCCCD")
    I("s_lshr_b32 s17, s17, 19")
    I("s_mul_i32 s18, s17, 10")
    I("s_sub_u32 s18, s24, s18")
    I("v_and_b32 v1, 7, v0")
    I("v_bfe_u32 v2, v0, 3, 2")
    I("v_bfe_u32 v6, v0, 5, 1")
    I("s_lshl_b32 s18, s18, 6")
    I("v_lshl_add_u32 v1, v1, 3, s18")
    I("s_lshl_b32 s19, s17, 1")
    I("v_add_u32 v6, s19, v6")
    I("v_lshlrev_b32 v7, 5, v6")
    I("v_lshl_add_u32 v7, v2, 2, v7")
    I("v_mul_u32_u24 v3, 0x500, v7")
    I("v_lshl_add_u32 v3, v1, 1, v3")
    I("v_add_u32 v4, 0x5000, v3")
    I("s_waitcnt lgkmcnt(0)")
    srd(8, 4, SZ_W)
    srd(12, 6, SZ_W, WS_WDT)
    for i in range(8):
        b = 3 if i < 4 else 4
        I(f"buffer_load_dwordx4 v[{8+4*i}:{11+4*i}], v{b}, s[8:11], 0 offen offset:{(i%4)*1280}")
    srd(28, 6, FL_SZ, WS_FL)
    I("s_lshl_b32 s25, s2, 12")
    I("v_lshlrev_b32 v72, 4, v0")
    for j in range(4): I(f"v_mov_b32 v{76+j}, 0")
    I("s_cmp_ge_u32 s2, 8")
    I("s_cbranch_scc1 I_noz")
    I("buffer_store_dwordx4 v[76:79], v72, s[28:31], s25 offen")
    e("I_noz:")
    I("s_mov_b32 s20, 0x05040100")
    I("s_mov_b32 s21, 0x07060302")
    I("v_lshrrev_b32 v5, 4, v1")
    I("v_mul_u32_u24 v5, 54, v5")
    I("v_add_u32 v5, v5, v6")
    I("v_lshlrev_b32 v5, 10, v5")
    I("v_lshl_add_u32 v5, v2, 8, v5")
    I("v_and_b32 v7, 15, v1")
    I("v_lshl_add_u32 v5, v7, 4, v5")
    I("s_waitcnt vmcnt(0)")
    for dd in range(8):
        ob = 40 + 4*dd
        sel = 20 + (dd & 1)
        for q in range(4):
            I(f"v_perm_b32 v{ob+q}, v{8+4*(2*q+1)+dd//2}, v{8+4*(2*q)+dd//2}, s{sel}")
        I(f"buffer_store_dwordx4 v[{ob}:{ob+3}], v5, s[12:15], 0 offen offset:{16*dd}")
    e("I_exit:")
    I("s_endpgm")
    kernel_desc("init_kernel", 80, 40)
NK0 = 68

def main():
    hdr = open("parallel_sum__ssm_conv_h3__glu_gated_bilinear__prompt.s.ref").read().splitlines()
    for line in hdr:
        if line.startswith("; @launch"):
            break
        if line.startswith(";"):
            e(line)
    if "k0" in FLAGS: e(f"; @launch kernel=init_kernel grid=({NK0},1,1) block=(256,1,1) lds=0")
    if not FUSE: e(f"; @launch kernel=prep_kernel grid=({N_LN+N_KV+N_PF},1,1) block=(256,1,1) lds=0")
    if BIG:
        e("; @launch kernel=mid_kernel grid=(256,1,1) block=(512,1,1) lds=163840")
    else:
        e(f"; @launch kernel=mid_kernel grid=({N_G1+N_CV},1,1) block=(256,1,1) lds={LDS2}")
    if "f3" in FLAGS: e("; @launch kernel=fin_kernel grid=(256,1,1) block=(512,1,1) lds=F3LDS")
    elif not G2F: e(f"; @launch kernel=fin_kernel grid=(256,1,1) block=(256,1,1) lds=81920")
    e('.amdgcn_target "amdgcn-amd-amdhsa--gfx950"')
    if not FUSE: gen_prep()
    if "k0" in FLAGS: gen_k0()
    gen_k2()
    if "f3" in FLAGS: gen_k3b()
    elif not G2F: gen_k3()
    dst = sys.argv[1] if len(sys.argv) > 1 else "parallel_sum__ssm_conv_h3__glu_gated_bilinear__prompt.s"
    o2 = []
    for i, ln in enumerate(out):
        o2.append(ln)
        if " m0," in ln and i + 1 < len(out) and out[i+1].rstrip().endswith(" lds"): o2.append("    s_nop 0")
    out[:] = o2
    open(dst, "w").write(("\n".join(out) + "\n").replace("lds=F3LDS", f"lds={F3LDS[0]}"))

main()
```

```python
import sys

import os
FLAGS = os.environ.get("GENFLAGS", "").split(",")
CP = " nt" if "cpnt" in FLAGS else (" sc1" if "cpsc1" in FLAGS else (" sc0 sc1" if "cpsc01" in FLAGS else ""))
S, D, F = 2048, 640, 1728
WS_XN  = 0x0
WS_KVR = 0x280000
WS_WDT = 0x500000
WS_H   = 0x800000
WS_YT  = 0x1000000
WS_ST  = 0x1400000
FUSE = "fuse" in FLAGS
SZ_SD = S * D * 2
SZ_W  = D * F * 2
SZ_H  = S * F * 2

out = []
def e(s=""):
    out.append(s)
SP = " nt" if "stnt" in FLAGS else (" sc0 sc1" if "stsc" in FLAGS else (" sc1" if "stsc1" in FLAGS else (" sc0 sc1 nt" if "stall" in FLAGS else "")))
def I(s):
    if s.startswith("buffer_store") and "s[56:59]" not in s: s += SP
    out.append("    " + s)

def srd(base, ptr, size, off=0):
    if off:
        I(f"s_add_u32 s{base}, s{ptr}, {off:#x}")
        I(f"s_addc_u32 s{base+1}, s{ptr+1}, 0")
    else:
        I(f"s_mov_b32 s{base}, s{ptr}")
        I(f"s_mov_b32 s{base+1}, s{ptr+1}")
    I(f"s_mov_b32 s{base+2}, {size:#x}")
    I(f"s_mov_b32 s{base+3}, 0x00020000")

def lo16(dst, src): I(f"v_lshlrev_b32 v{dst}, 16, v{src}")
def hi16(dst, src): I(f"v_and_b32 v{dst}, 0xffff0000, v{src}")

STAMP = "stamp" in FLAGS
nst = [0]
def stamp():
    if STAMP:
        i = nst[0]; nst[0] += 1
        I(f"s_memtime s[{60+2*i}:{61+2*i}]")
def stamp_dump(wg):
    if not STAMP: return
    n = nst[0]; nst[0] = 0
    if "ast" in FLAGS:
        kidx = 1 if wg == 9 else 0
        I("s_waitcnt lgkmcnt(0) vmcnt(0)")
        I("s_load_dwordx2 s[56:57], s[0:1], 96")
        I("s_memrealtime s[58:59]")
        I("s_waitcnt lgkmcnt(0)")
        I("v_mov_b32 v3, s58")
        I(f"s_add_u32 s56, s56, {0x1800000 + kidx*0x40000}")
        I("s_addc_u32 s57, s57, 0")
        I("s_mov_b32 s58, 0x40000")
        I("s_mov_b32 s59, 0x00020000")
        I("s_lshl_b32 s61, s2, 3")
        I("s_add_u32 s61, s61, s3")
        I("s_lshl_b32 s61, s61, 6")
        I("v_mov_b32 v1, s61")
        I("buffer_store_dword v3, v1, s[56:59], 0 offen")
        for i in range(1, n):
            I(f"s_sub_u32 s{61+2*i}, s{60+2*i}, s60")
            I(f"v_mov_b32 v2, s{61+2*i}")
            I(f"buffer_store_dword v2, v1, s[56:59], 0 offen offset:{4*i}")
        I("s_waitcnt vmcnt(0)")
        return
    I("s_waitcnt lgkmcnt(0) vmcnt(0)")
    I(f"s_cmp_lg_u32 s2, {wg}")
    I(f"s_cbranch_scc1 SD_skip{wg}")
    I("s_cmp_lg_u32 s3, 0")
    I(f"s_cbranch_scc1 SD_skip{wg}")
    I("s_load_dwordx2 s[56:57], s[0:1], 88")
    I("s_waitcnt lgkmcnt(0)")
    I("s_mov_b32 s58, 256")
    I("s_mov_b32 s59, 0x00020000")
    I("v_mov_b32 v1, 0")
    for i in range(n):
        I(f"s_sub_u32 s{61+2*i}, s{60+2*i}, s60")
        I(f"v_mov_b32 v2, s{61+2*i}")
        I(f"buffer_store_dword v2, v1, s[56:59], 0 offen offset:{4*i + (64 if wg == 255 else 0)}")
    I("s_waitcnt vmcnt(0)")
    e(f"SD_skip{wg}:")

WGT = "wgt" in FLAGS
def wgt_start():
    if WGT: I("s_memrealtime s[76:77]")
wgtn = [0]
def wgt_end(kidx):
    if not WGT: return
    n = wgtn[0]; wgtn[0] += 1
    I("s_waitcnt vmcnt(0) lgkmcnt(0)")
    I("s_memrealtime s[78:79]")
    I("s_load_dwordx2 s[72:73], s[0:1], 96")
    I("v_lshrrev_b32 v1, 6, v0")
    I("s_nop 0")
    I("v_readfirstlane_b32 s70, v1")
    I("s_lshl_b32 s71, s2, 3")
    I("s_add_u32 s70, s70, s71")
    I("s_lshl_b32 s70, s70, 3")
    I("s_waitcnt lgkmcnt(0)")
    I(f"s_add_u32 s72, s72, {0x1800000 + kidx*0x10000}")
    I("s_addc_u32 s73, s73, 0")
    I("s_mov_b32 s74, 0x10000")
    I("s_mov_b32 s75, 0x00020000")
    I("v_mov_b32 v2, s76")
    I("v_mov_b32 v3, s78")
    I("v_mov_b32 v1, s70")
    I("buffer_store_dwordx2 v[2:3], v1, s[72:75], 0 offen")
    I("s_waitcnt vmcnt(0)")

def kernel_header(name):
    e(".text")
    e(f".globl {name}")
    e(".p2align 8")
    e(f".type {name},@function")
    e(f"{name}:")

def kernel_desc(name, vgpr, sgpr, accum=None):
    if accum is None:
        accum = (vgpr + 3) // 4 * 4
    e('.section .rodata,"a"')
    e(".p2align 6")
    e(f".amdhsa_kernel {name}")
    e(f"  .amdhsa_next_free_vgpr {vgpr}")
    e(f"  .amdhsa_next_free_sgpr {sgpr}")
    e(f"  .amdhsa_accum_offset {accum}")
    e("  .amdhsa_group_segment_fixed_size 0")
    e("  .amdhsa_kernarg_size 104")
    e("  .amdhsa_user_sgpr_count 2")
    e("  .amdhsa_user_sgpr_kernarg_segment_ptr 1")
    e("  .amdhsa_system_sgpr_workgroup_id_x 1")
    e(".end_amdhsa_kernel")

N_LN, N_KV = 128, 160
N_PF = 0
if "pfw" in FLAGS: N_PF = 4*36
if "pfw2" in FLAGS: N_PF = 2*36
def gen_prep():
    kernel_header("prep_kernel")
    I(f"s_cmp_ge_u32 s2, {N_LN+N_KV+N_PF}")
    I("s_cbranch_scc1 P_exit")
    if N_PF:
        I(f"s_cmp_ge_u32 s2, {N_LN+N_KV}")
        I("s_cbranch_scc1 P_pf")
    I("s_load_dwordx2 s[6:7], s[0:1], 96")
    I(f"s_cmp_lt_u32 s2, {N_KV}")
    I("s_cbranch_scc1 P_kv")
    if "noln" in FLAGS: I("s_endpgm")
    I("s_load_dwordx2 s[4:5], s[0:1], 0")
    I("v_lshrrev_b32 v1, 4, v0")
    I(f"s_sub_u32 s3, s2, {N_KV}")
    I("s_lshl_b32 s3, s3, 4")
    I("v_add_u32 v1, s3, v1")
    I("v_mul_u32_u24 v2, 0x500, v1")
    I("v_and_b32 v3, 15, v0")
    I("v_lshl_add_u32 v2, v3, 4, v2")
    I("s_waitcnt lgkmcnt(0)")
    srd(8, 4, SZ_SD)
    srd(12, 6, SZ_SD, WS_XN)
    for j in range(5):
        I(f"buffer_load_dwordx4 v[{4+4*j}:{7+4*j}], v2, s[8:11], 0 offen offset:{256*j}")
    I("v_lshrrev_b32 v2, 4, v1")
    I("v_mul_u32_u24 v2, 20480, v2")
    I("v_lshrrev_b32 v64, 2, v3")
    I("v_lshl_add_u32 v2, v64, 10, v2")
    I("v_and_b32 v64, 3, v3")
    I("v_lshl_add_u32 v2, v64, 8, v2")
    I("v_and_b32 v64, 15, v1")
    I("v_lshl_add_u32 v2, v64, 4, v2")
    I("s_waitcnt vmcnt(0)")
    X = 24
    for j in range(20):
        lo16(X + 2*j, 4 + j)
        hi16(X + 2*j + 1, 4 + j)
    T = 64
    for j in range(20):
        I(f"v_add_f32 v{T+j}, v{X+2*j}, v{X+2*j+1}")
    def tree(base, n):
        while n > 1:
            h = n // 2
            for j in range(h):
                I(f"v_add_f32 v{base+j}, v{base+j}, v{base+n-1-j}")
            n = n - h
    tree(T, 20)
    def dpp_reduce(r, tmp):
        for sh in (8, 4, 2, 1):
            I("s_nop 1")
            I(f"v_add_f32_dpp v{tmp}, v{r}, v{r} row_ror:{sh} row_mask:0xf bank_mask:0xf")
            I(f"v_mov_b32 v{r}, v{tmp}")
    dpp_reduce(T, T+1)
    I(f"v_mul_f32 v{T}, {1.0/640.0!r}, v{T}")
    for j in range(40):
        I(f"v_sub_f32 v{T+2+j}, v{X+j}, v{T}")
    for j in range(40):
        I(f"v_mul_f32 v{T+2+j}, v{T+2+j}, v{T+2+j}")
    tree(T+2, 40)
    dpp_reduce(T+2, T+1)
    I(f"v_mul_f32 v{T+2}, {1.0/640.0!r}, v{T+2}")
    I(f"v_cvt_pk_bf16_f32 v{T}, v{T}, v{T+2}")
    hi16(T+2, T)
    lo16(T, T)
    I(f"v_add_f32 v{T+2}, {1e-5!r}, v{T+2}")
    I(f"v_cvt_pk_bf16_f32 v{T+2}, v{T+2}, v{T+2}")
    lo16(T+2, T+2)
    I(f"v_sqrt_f32 v{T+2}, v{T+2}")
    I("s_nop 0")
    I(f"v_cvt_pk_bf16_f32 v{T+2}, v{T+2}, v{T+2}")
    lo16(T+2, T+2)
    I(f"v_rcp_f32 v{T+3}, v{T+2}")
    I("s_nop 0")
    for j in range(20):
        a, b = X + 2*j, X + 2*j + 1
        I(f"v_sub_f32 v{a}, v{a}, v{T}")
        I(f"v_sub_f32 v{b}, v{b}, v{T}")
        I(f"v_cvt_pk_bf16_f32 v{T+4}, v{a}, v{b}")
        lo16(a, T+4)
        hi16(b, T+4)
        for r in (a, b):
            I(f"v_mul_f32 v{T+5}, v{r}, v{T+3}")
            I(f"v_fma_f32 v{T+6}, -v{T+5}, v{T+2}, v{r}")
            I(f"v_fma_f32 v{r}, v{T+6}, v{T+3}, v{T+5}")
        I(f"v_cvt_pk_bf16_f32 v{4+j}, v{a}, v{b}")
        if j % 4 == 3:
            jj = j // 4
            I(f"s_mov_b32 s16, {4096*jj}")
            I(f"buffer_store_dwordx4 v[{4+4*jj}:{7+4*jj}], v2, s[12:15], s16 offen")
    I("s_endpgm")
    e("P_kv:")
    if "nokv" in FLAGS: I("s_endpgm")
    I("s_load_dwordx4 s[16:19], s[0:1], 8")
    I("s_load_dwordx2 s[4:5], s[0:1], 24")
    I("s_mul_i32 s28, s2, 0xCCCD")
    I("s_lshr_b32 s28, s28, 19")
    I("s_mul_i32 s29, s28, 10")
    I("s_sub_u32 s29, s2, s29")
    I("v_and_b32 v1, 7, v0")
    I("v_lshrrev_b32 v2, 3, v0")
    I("s_lshl_b32 s30, s29, 6")
    I("v_lshl_add_u32 v1, v1, 3, s30")
    I("s_lshl_b32 s31, s28, 7")
    I("v_lshl_add_u32 v2, v2, 2, s31")
    I("v_mul_u32_u24 v3, 0x500, v2")
    I("v_lshl_add_u32 v3, v1, 1, v3")
    for i in range(3):
        I(f"v_subrev_u32 v{5+i}, {(3-i)*1280:#x}, v3")
    I("v_lshlrev_b32 v8, 3, v1")
    I("s_waitcnt lgkmcnt(0)")
    srd(8, 16, SZ_SD)
    srd(12, 18, SZ_SD)
    srd(20, 4, D*4*2)
    srd(24, 6, SZ_SD, WS_KVR)
    KR = 16
    for i in range(3):
        I(f"buffer_load_dwordx4 v[{KR+4*i}:{KR+4*i+3}], v{5+i}, s[8:11], 0 offen")
    for i in range(4):
        I(f"buffer_load_dwordx4 v[{KR+4*(i+3)}:{KR+4*(i+3)+3}], v3, s[8:11], 0 offen offset:{i*1280}")
    VR = KR + 28
    for i in range(4):
        I(f"buffer_load_dwordx4 v[{VR+4*i}:{VR+4*i+3}], v3, s[12:15], 0 offen offset:{i*1280}")
    SK = VR + 16
    for i in range(4):
        I(f"buffer_load_dwordx4 v[{SK+4*i}:{SK+4*i+3}], v8, s[20:23], 0 offen offset:{16*i}")
    I("v_lshlrev_b32 v9, 12, v1")
    I(f"v_sub_u32 v10, {S-4}, v2")
    I("v_lshl_add_u32 v9, v10, 1, v9")
    I("s_waitcnt vmcnt(0)")
    KF = 76
    VF = 83
    SF = 87
    TM = 92
    OB = 104
    for dd in range(8):
        ex = lo16 if dd % 2 == 0 else hi16
        for i in range(7):
            ex(KF + i, KR + 4*i + dd//2)
        for i in range(4):
            ex(VF + i, VR + 4*i + dd//2)
        lo16(SF+0, SK + 2*dd); hi16(SF+1, SK + 2*dd)
        lo16(SF+2, SK + 2*dd + 1); hi16(SF+3, SK + 2*dd + 1)
        ob = OB + 2*(dd % 4)
        for q in range(2):
            sa, sb = 3 - 2*q, 2 - 2*q
            t = TM
            I(f"v_mul_f32 v{t}, v{KF+sa}, v{SF+3}")
            I(f"v_mul_f32 v{t+1}, v{KF+sb}, v{SF+3}")
            I(f"v_mul_f32 v{t+2}, v{KF+sa+1}, v{SF+2}")
            I(f"v_mul_f32 v{t+3}, v{KF+sb+1}, v{SF+2}")
            I(f"v_mul_f32 v{t+4}, v{KF+sa+2}, v{SF+1}")
            I(f"v_mul_f32 v{t+5}, v{KF+sb+2}, v{SF+1}")
            I(f"v_mul_f32 v{t+6}, v{KF+sa+3}, v{SF+0}")
            I(f"v_mul_f32 v{t+7}, v{KF+sb+3}, v{SF+0}")
            for p in range(4):
                I(f"v_cvt_pk_bf16_f32 v{t+8+p}, v{t+2*p}, v{t+2*p+1}")
            for p in range(4):
                lo16(t+2*p, t+8+p); hi16(t+2*p+1, t+8+p)
            for step in (1, 2, 3):
                I(f"v_add_f32 v{t}, v{t}, v{t+2*step}")
                I(f"v_add_f32 v{t+1}, v{t+1}, v{t+2*step+1}")
                I(f"v_cvt_pk_bf16_f32 v{t+8}, v{t}, v{t+1}")
                lo16(t, t+8); hi16(t+1, t+8)
            I(f"v_mul_f32 v{t}, v{t}, v{VF+sa}")
            I(f"v_mul_f32 v{t+1}, v{t+1}, v{VF+sb}")
            I(f"v_cvt_pk_bf16_f32 v{ob+q}, v{t}, v{t+1}")
        I(f"s_mov_b32 s16, {4096*dd}")
        I(f"buffer_store_dwordx2 v[{ob}:{ob+1}], v9, s[24:27], s16 offen")
    if N_PF:
        I("s_endpgm")
        e("P_pf:")
        I(f"s_sub_u32 s3, s2, {N_LN+N_KV}")
        I("s_mul_i32 s4, s3, 1821")
        I("s_lshr_b32 s4, s4, 16")
        I("s_mul_i32 s5, s4, 36")
        I("s_sub_u32 s5, s3, s5")
        I("s_lshl_b32 s6, s4, 3")
        I("s_add_u32 s6, s6, 56")
        I("s_cmp_eq_u32 s4, 3")
        I("s_cselect_b32 s6, 32, s6")
        I("s_load_dwordx2 s[8:9], s[0:1], s6")
        I(f"s_mov_b32 s10, {SZ_W}")
        I(f"s_cselect_b32 s10, {SZ_SD}, s10")
        I("s_mov_b32 s11, 0x00020000")
        I("s_mov_b32 s7, 65536")
        I("s_cselect_b32 s7, 73728, s7")
        I("s_mul_i32 s5, s5, s7")
        I("v_lshlrev_b32 v1, 4, v0")
        I("s_waitcnt lgkmcnt(0)")
        for i in range(18):
            I(f"buffer_load_dwordx4 v[{4+4*i}:{7+4*i}], v1, s[8:11], s5 offen")
            I("s_add_u32 s5, s5, 4096")
        I("s_waitcnt vmcnt(0)")
    e("P_exit:")
    I("s_endpgm")
    kernel_desc("prep_kernel", 112, 40)

BF = 112
NSLOT = 5
SLOT = 16384
LDS2 = NSLOT * SLOT
N_G1, N_CV = 256, 256

class DSQ:
    def __init__(self): self.q = []
    def push(self, tag): self.q.append(tag)
    def wait_for(self, tag):
        if tag not in self.q: return
        idx = max(i for i, t in enumerate(self.q) if t == tag)
        n = len(self.q) - 1 - idx
        I(f"s_waitcnt lgkmcnt({min(n,15)})")
        self.q = self.q[idx+1:] if n <= 15 else self.q[len(self.q)-15:]

BIG = "big" in FLAGS
def gen_g1big():
    NF = 10; RS = 320; MS = 32*RS; SL = 2*MS; NS = 8; DB = 3; LA = 3; NST = 20
    for f_ in FLAGS:
        if f_.startswith("ns"): NS = int(f_[2:])
    DW = NS - 1
    stamp()
    I("s_load_dwordx4 s[16:19], s[0:1], 56")
    I(f"s_mul_i32 s25, s25, {16*NF}")
    I(f"s_min_u32 s25, s25, {F-16*NF}")
    I("v_and_b32 v1, 63, v0")
    PROD = "prod" in FLAGS
    if PROD:
        I("s_cmp_lt_u32 s3, 4")
        I("s_cbranch_scc1 G1_cons")
        DWP = 6
        I("s_lshl_b32 s27, s25, 1")
        for i in range(10):
            I(f"v_add_u32 v20, {64*i}, v1")
            I("v_mul_u32_u24 v21, 3277, v20")
            I("v_lshrrev_b32 v21, 16, v21")
            I("v_mul_u32_u24 v22, 20, v21")
            I("v_sub_u32 v22, v20, v22")
            I("v_bfe_u32 v23, v21, 3, 1")
            I("v_lshlrev_b32 v23, 1, v23")
            I("v_xor_b32 v22, v22, v23")
            I("v_mul_u32_u24 v21, 3456, v21")
            I("v_lshl_add_u32 v21, v22, 4, v21")
            I("v_add_u32 v21, s27, v21")
            I(f"v_subrev_u32 v{2+i}, {1024*(i%4)}, v21")
        I("s_sub_u32 s29, s3, 4")
        I(f"s_mul_i32 s29, s29, {MS}")
        I("s_waitcnt lgkmcnt(0)")
        I("s_cmp_ge_u32 s3, 5")
        I("s_cselect_b32 s4, s18, s16")
        I("s_cselect_b32 s5, s19, s17")
        srd(8, 4, SZ_W)
        pq = []
        def pdma(st):
            I(f"s_mov_b32 s28, {st*32*3456}")
            for i in range(10):
                if i % 4 == 0: I(f"s_add_u32 m0, s29, {(st % NS)*SL + (i//4)*4096}")
                I(f"buffer_load_dwordx4 v{2+i}, s[8:11], s28 offen offset:{1024*(i%4)} lds")
                pq.append(st)
        def pwait(st):
            idx = max(i for i, t in enumerate(pq) if t == st)
            I(f"s_waitcnt vmcnt({len(pq)-1-idx})")
            del pq[:idx+1]
        if "ramp" in FLAGS:
            for st in range(3): pdma(st)
            pwait(0)
            I("s_barrier")
            pdma(3); pdma(4)
            for st in range(NST-1):
                pwait(st+1)
                I("s_barrier")
                if st == 0: pdma(5)
                if st + DWP < NST: pdma(st + DWP)
        else:
            for st in range(DWP): pdma(st)
            pwait(0)
            I("s_barrier")
            for st in range(NST-1):
                pwait(st+1)
                I("s_barrier")
                if st + DWP < NST: pdma(st + DWP)
        I("s_endpgm")
        e("G1_cons:")
    I("s_and_b32 s26, s3, 1")
    I("s_lshl_b32 s26, s26, 4")
    I("s_lshl_b32 s27, s25, 1")
    for i in range(5 if not PROD else 0):
        I(f"v_add_u32 v10, {64*i}, v1")
        I("v_mul_u32_u24 v11, 3277, v10")
        I("v_lshrrev_b32 v11, 16, v11")
        I("v_mul_u32_u24 v12, 20, v11")
        I("v_sub_u32 v12, v10, v12")
        I("v_add_u32 v11, s26, v11")
        I("v_bfe_u32 v13, v11, 3, 1")
        I("v_lshlrev_b32 v13, 1, v13")
        I("v_xor_b32 v12, v12, v13")
        I("v_mul_u32_u24 v11, 3456, v11")
        I("v_lshl_add_u32 v11, v12, 4, v11")
        I("v_add_u32 v11, s27, v11")
        I(f"v_subrev_u32 v{2+i}, {1024*(i%4)}, v11")
    I("s_lshl_b32 s26, s24, 3")
    I("s_lshl_b32 s27, s3, 1")
    I("s_add_u32 s26, s26, s27")
    I("s_mul_i32 s27, s26, 20480")
    I("v_lshl_add_u32 v7, v1, 4, s27")
    I("v_add_u32 v8, 20480, v7")
    I("s_mul_i32 s27, s26, 55296")
    I("v_lshl_add_u32 v9, v1, 4, s27")
    I("v_add_u32 v10, 55296, v9")
    I("v_bfe_u32 v17, v0, 4, 2")
    I("v_bfe_u32 v18, v0, 2, 2")
    I("v_lshl_add_u32 v19, v17, 3, v18")
    I(f"v_mul_u32_u24 v19, {RS}, v19")
    I("v_and_b32 v18, 3, v0")
    I("v_lshl_add_u32 v19, v18, 3, v19")
    I("v_and_b32 v20, 1, v17")
    I("v_lshlrev_b32 v20, 5, v20")
    I("v_add_u32 v11, v19, v20")
    I("v_sub_u32 v12, v19, v20")
    ROLL = "roll" in FLAGS
    if ROLL:
        for k_, offs in ((1, 3*SL), (2, 4*SL), (3, 7*SL)):
            I(f"v_add_u32 v{11+2*k_}, {offs}, v11")
            I(f"v_add_u32 v{12+2*k_}, {offs}, v12")
    else:
        for rg in (1, 2):
            I(f"v_add_u32 v{11+2*rg}, {rg*3*SL}, v11")
            I(f"v_add_u32 v{12+2*rg}, {rg*3*SL}, v12")
    I("s_mul_i32 s29, s3, 5120")
    I("s_waitcnt lgkmcnt(0)")
    I("s_cmp_ge_u32 s3, 2")
    I("s_cselect_b32 s4, s18, s16")
    I("s_cselect_b32 s5, s19, s17")
    srd(8, 4, SZ_W)
    srd(12, 6, SZ_SD, WS_XN)
    srd(20, 6, SZ_H, WS_H)
    BB = 24; AF = 56; ACC = 80
    def acc(m, jf, js): return ACC + ((m*NF + jf)*2 + js)*4
    vq = []
    def vwait(tags):
        if not any(t in tags for t in vq): return
        idx = max(i for i, t in enumerate(vq) if t in tags)
        n = len(vq) - 1 - idx
        I(f"s_waitcnt vmcnt({n})")
        del vq[:idx+1]
    def dma(st):
        if PROD: return
        I(f"s_add_u32 m0, s29, {(st % NS)*SL}")
        I(f"s_mov_b32 s28, {st*32*3456}")
        for i in range(5):
            if i == 4: I(f"s_add_u32 m0, s29, {(st % NS)*SL + 4096}")
            I(f"buffer_load_dwordx4 v{2+i}, s[8:11], s28 offen offset:{1024*(i%4)} lds")
            vq.append(("D", st))
    def bld(st):
        I(f"s_mov_b32 s31, {st*1024}")
        for js in range(2):
            r = BB + (st % (DB+1))*8 + js*4
            I(f"buffer_load_dwordx4 v[{r}:{r+3}], v{7+js}, s[12:15], s31 offen")
            vq.append(("B", st))
    seq = [(m, jf) for m in range(2) for jf in range(NF)]
    NQ = len(seq)
    def rdx(gpos):
        st, idx = divmod(gpos, NQ)
        m, jf = seq[idx]
        slot = st % NS
        a = AF + (gpos % 4)*4
        va = 11 + 2*(slot // 3) + (jf & 1)
        off = (slot % 3)*SL + m*MS + jf*32
        return [f"ds_read_b64_tr_b16 v[{a}:{a+1}], v{va} offset:{off}",
                f"ds_read_b64_tr_b16 v[{a+2}:{a+3}], v{va} offset:{off+4*RS}"]
    for st in range(DW):
        dma(st)
        if ROLL:
            if st >= DW - DB: bld(st - (DW - DB))
        elif st < DB: bld(st)
    for j in range(4*2*2*NF):
        I(f"v_mov_b32 v{ACC+j}, 0")
    stamp()
    vwait([("D", 0)])
    I("s_barrier")
    for i in range(LA):
        for x in rdx(i): I(x)
    if ROLL:
        assert NS == 8
        I("s_mov_b32 s33, 0")
        I("s_mov_b32 s36, s29")
        I(f"s_add_u32 s37, s29, {4*SL}")
        I(f"s_mov_b32 s28, {DW*32*3456}")
        I(f"s_mov_b32 s31, {DB*1024}")
        def rdr(p, idx, ring):
            m, jf = seq[idx]
            a = AF + (ring % 4)*4
            if p < 3: va = 11 + (jf & 1); off = p*SL
            elif p == 3: va = 13 + (jf & 1); off = 0
            else: va = 15 + (jf & 1); off = 0
            off += m*MS + jf*32
            return [f"ds_read_b64_tr_b16 v[{a}:{a+1}], v{va} offset:{off}",
                    f"ds_read_b64_tr_b16 v[{a+2}:{a+3}], v{va} offset:{off+4*RS}"]
        e("G1_loop:")
        for p_ in range(4):
            I("s_waitcnt vmcnt(14)")
            I(f"s_cmp_lt_u32 s33, {4 if p_ < 2 else 3}")
            I(f"s_cbranch_scc1 G1_w{p_}")
            I("s_waitcnt vmcnt(2)")
            if p_ >= 2:
                I("s_cmp_lt_u32 s33, 4")
                I(f"s_cbranch_scc1 G1_w{p_}")
                I("s_waitcnt vmcnt(0)")
            e(f"G1_w{p_}:")
            I("s_barrier")
            I(f"s_cmp_ge_u32 s33, {4 if p_ == 0 else 3}")
            I(f"s_cbranch_scc1 G1_d{p_}")
            base, offs = ("s37", 3*SL) if p_ == 0 else ("s36", (p_-1)*SL)
            I(f"s_add_u32 m0, {base}, {offs}")
            for i in range(5):
                if i == 4: I(f"s_add_u32 m0, {base}, {offs + 4096}")
                I(f"buffer_load_dwordx4 v{2+i}, s[8:11], s28 offen offset:{1024*(i%4)} lds")
            I(f"s_add_u32 s28, s28, {32*3456}")
            e(f"G1_d{p_}:")
            if p_ > 0:
                I("s_cmp_ge_u32 s33, 4")
                I(f"s_cbranch_scc1 G1_b{p_}")
            for js in range(2):
                r = BB + ((p_ + DB) % 4)*8 + js*4
                I(f"buffer_load_dwordx4 v[{r}:{r+3}], v{7+js}, s[12:15], s31 offen")
            I("s_add_u32 s31, s31, 1024")
            if p_ > 0: e(f"G1_b{p_}:")
            for idx in range(NQ):
                if idx + LA < NQ: rr = rdr(p_, idx + LA, idx + LA)
                else: rr = rdr(p_ + 1, idx + LA - NQ, idx + LA)
                I(f"s_waitcnt lgkmcnt({2*LA-2})")
                m, jf = seq[idx]
                a = AF + (idx % 4)*4
                for js in range(2):
                    c = acc(m, jf, js); b = BB + p_*8 + js*4
                    I(f"v_mfma_f32_16x16x32_bf16 v[{c}:{c+3}], v[{a}:{a+3}], v[{b}:{b+3}], v[{c}:{c+3}]")
                    I(rr[js])
        for k_ in range(4):
            I(f"v_swap_b32 v{11+k_}, v{15+k_}")
        I("s_mov_b32 s38, s36")
        I("s_mov_b32 s36, s37")
        I("s_mov_b32 s37, s38")
        I("s_add_u32 s33, s33, 1")
        I("s_cmp_lt_u32 s33, 5")
        I("s_cbranch_scc1 G1_loop")
        I("s_waitcnt lgkmcnt(0)")
    for st in range(NST if not ROLL else 0):
        if st + 1 < NST:
            vwait([("D", st+1), ("B", st)])
            I("s_barrier")
        else:
            vwait([("B", st)])
        if "stamp3" in FLAGS and st in (0, 1, 5, 10, 15): stamp()
        if st + DW < NST and "g1nodma" not in FLAGS: dma(st + DW)
        if st + DB < NST and "g1nob" not in FLAGS: bld(st + DB)
        for idx in range(NQ if "g1nocomp" not in FLAGS else 0):
            gpos = st*NQ + idx
            rr = rdx(gpos + LA) if gpos + LA < NST*NQ else None
            I(f"s_waitcnt lgkmcnt({2*min(LA-1, NST*NQ-1-gpos)})")
            m, jf = seq[idx]
            a = AF + (gpos % 4)*4
            for js in range(2):
                c = acc(m, jf, js); b = BB + (st % (DB+1))*8 + js*4
                I(f"v_mfma_f32_16x16x32_bf16 v[{c}:{c+3}], v[{a}:{a+3}], v[{b}:{b+3}], v[{c}:{c+3}]")
                if rr: I(rr[js])
    stamp()
    I("s_lshr_b32 s34, s25, 5")
    I("s_lshl_b32 s34, s34, 10")
    I("s_add_u32 s35, s34, 4096")
    I("s_nop 7")
    I("s_nop 3")
    for js in range(2):
        for jp in range(NF//2):
            t = 24 + ((js*5 + jp) % 4) * 12
            for hh in range(2):
                jf = 2*jp + hh
                g = acc(0, jf, js); u = acc(1, jf, js)
                I(f"v_cvt_pk_bf16_f32 v{t}, v{g}, v{g+1}")
                I(f"v_cvt_pk_bf16_f32 v{t+1}, v{g+2}, v{g+3}")
                I(f"v_cvt_pk_bf16_f32 v{t+2}, v{u}, v{u+1}")
                I(f"v_cvt_pk_bf16_f32 v{t+3}, v{u+2}, v{u+3}")
                lo16(g, t); hi16(g+1, t); lo16(g+2, t+1); hi16(g+3, t+1)
                lo16(u, t+2); hi16(u+1, t+2); lo16(u+2, t+3); hi16(u+3, t+3)
                for r in range(4):
                    I(f"v_mul_f32 v{g+r}, v{g+r}, v{u+r}")
                I(f"v_cvt_pk_bf16_f32 v{t+4+2*hh}, v{g}, v{g+1}")
                I(f"v_cvt_pk_bf16_f32 v{t+5+2*hh}, v{g+2}, v{g+3}")
            if jp < 4:
                I(f"buffer_store_dwordx4 v[{t+4}:{t+7}], v{9+js}, s[20:23], s34 offen offset:{1024*jp}")
            else:
                I(f"buffer_store_dwordx4 v[{t+4}:{t+7}], v{9+js}, s[20:23], s35 offen")
    if STAMP: I("s_waitcnt vmcnt(0)")
    stamp()
    stamp_dump(5)
    wgt_end(1)
    I("s_endpgm")

def gen_g1fuse():
    NF = 10; RS = 320; MS = 32*RS; SL = 2*MS; NS = 6; LA = 3; NST = 20; DWP = 5
    XB = NS*SL
    XP = 18432; XR = 144
    I(f"s_mul_i32 s25, s25, {16*NF}")
    I(f"s_min_u32 s25, s25, {F-16*NF}")
    I("v_and_b32 v1, 63, v0")
    I("s_and_b32 s26, s3, 3")
    I(f"s_mul_i32 s30, s26, {32*XR}")
    I(f"s_add_u32 s30, s30, {XB}")
    I("s_lshl_b32 s27, s24, 3")
    I("s_lshl_b32 s26, s26, 1")
    I("s_add_u32 s26, s26, s27")
    I("s_cmp_lt_u32 s3, 4")
    I("s_cbranch_scc1 G1_cons")
    if "hprio" in FLAGS: I("s_setprio 3")
    RAW = 64
    def raw(rg, p): return RAW + (p*4 + rg)*4
    I("s_mul_i32 s27, s26, 20480")
    I("v_lshrrev_b32 v12, 3, v1")
    I("v_and_b32 v11, 7, v1")
    I("v_mul_u32_u24 v13, 0x500, v12")
    I("v_lshl_add_u32 v13, v11, 4, v13")
    I("v_add_u32 v13, s27, v13")
    for rg in range(1, 4): I(f"v_add_u32 v{13+rg}, {rg*10240}, v13")
    I("s_lshl_b32 s27, s26, 7")
    I("v_lshl_add_u32 v7, v12, 3, s27")
    I(f"v_mul_u32_u24 v6, {XR}, v12")
    I("v_lshl_add_u32 v6, v11, 4, v6")
    I("v_add_u32 v6, s30, v6")
    I("s_waitcnt lgkmcnt(0)")
    srd(12, 44, SZ_SD)
    srd(20, 6, S*8, WS_ST)
    for p in range(10):
        for rg in range(4):
            r = raw(rg, p)
            I(f"buffer_load_dwordx4 v[{r}:{r+3}], v{13+rg}, s[12:15], 0 offen offset:{128*p}")
    SM = 24; SS = 32; TT = 40; STA = 48
    for j in range(16): I(f"v_mov_b32 v{SM+j}, 0")
    I("s_mov_b32 s49, 0x3f803f80")
    I("s_cmp_ge_u32 s3, 6")
    I("s_cbranch_scc1 G1_hw")
    def helper(kind):
        vq = [("Q", i) for i in range(40)]
        def vwait(pred):
            idxs = [i for i, t in enumerate(vq) if pred(t)]
            if not idxs: return
            idx = max(idxs)
            n = len(vq) - 1 - idx
            assert n <= 63
            I(f"s_waitcnt vmcnt({n})")
            del vq[:idx+1]
        def pdma(st):
            I(f"s_mov_b32 s28, {st*32*3456}")
            for i in range(10):
                if i % 4 == 0: I(f"s_add_u32 m0, s29, {(st % NS)*SL + (i//4)*4096}")
                I(f"buffer_load_dwordx4 v{224+i}, s[8:11], s28 offen offset:{1024*(i%4)} lds")
                vq.append(("D", st))
        if kind == "prod":
            I("s_lshl_b32 s27, s25, 1")
            for i in range(10):
                I(f"v_add_u32 v20, {64*i}, v1")
                I("v_mul_u32_u24 v21, 3277, v20")
                I("v_lshrrev_b32 v21, 16, v21")
                I("v_mul_u32_u24 v22, 20, v21")
                I("v_sub_u32 v22, v20, v22")
                I("v_bfe_u32 v23, v21, 3, 1")
                I("v_lshlrev_b32 v23, 1, v23")
                I("v_xor_b32 v22, v22, v23")
                I("v_mul_u32_u24 v21, 3456, v21")
                I("v_lshl_add_u32 v21, v22, 4, v21")
                I("v_add_u32 v21, s27, v21")
                I(f"v_subrev_u32 v{224+i}, {1024*(i%4)}, v21")
            I("s_sub_u32 s29, s3, 4")
            I(f"s_mul_i32 s29, s29, {MS}")
            I("s_cmp_ge_u32 s3, 5")
            I("s_cselect_b32 s4, s18, s16")
            I("s_cselect_b32 s5, s19, s17")
            srd(8, 4, SZ_W)
            DSCH = {5: [0], 8: [1], 9: [2]}
            for f_ in FLAGS:
                if f_.startswith("dsch"):
                    if f_ == "dsch1": DSCH = {3: [0], 6: [1], 9: [2]}
                    if f_ == "dsch2": DSCH = {7: [0], 9: [1, 2]}
                    if f_ == "dsch3": DSCH = {-1: [0], 5: [1], 9: [2]}
            for st in DSCH.get(-1, []): pdma(st)
        else:
            I("s_cmp_ge_u32 s3, 7")
            I("s_cselect_b32 s28, s18, s16")
            I("s_cselect_b32 s29, s19, s17")
            I("s_mul_i32 s27, s47, 12800")
            I(f"s_mov_b32 s30, {SZ_W}")
            I("s_mov_b32 s31, 0x00020000")
            I("v_lshlrev_b32 v5, 4, v1")
            I("s_load_dwordx2 s[4:5], s[0:1], 72")
            I("s_min_u32 s48, s46, 269")
            I("s_mul_i32 s17, s48, 0xCCCD")
            I("s_lshr_b32 s17, s17, 19")
            I("s_mul_i32 s18, s17, 10")
            I("s_sub_u32 s18, s48, s18")
            I("v_and_b32 v23, 7, v0")
            I("v_bfe_u32 v17, v0, 3, 2")
            I("v_bfe_u32 v18, v0, 5, 1")
            I("s_lshl_b32 s18, s18, 6")
            I("v_lshl_add_u32 v23, v23, 3, s18")
            I("s_lshl_b32 s19, s17, 1")
            I("v_add_u32 v18, s19, v18")
            I("v_lshlrev_b32 v19, 5, v18")
            I("v_lshl_add_u32 v19, v17, 2, v19")
            I("v_mul_u32_u24 v20, 0x500, v19")
            I("v_lshl_add_u32 v20, v23, 1, v20")
            I("v_add_u32 v21, 0x5000, v20")
            I("s_waitcnt lgkmcnt(0)")
            srd(8, 4, SZ_W)
            srd(32, 6, SZ_W, WS_WDT)
            I("s_mov_b32 s36, 0x05040100")
            I("s_mov_b32 s37, 0x07060302")
            I("v_lshrrev_b32 v22, 4, v23")
            I("v_mul_u32_u24 v22, 54, v22")
            I("v_add_u32 v22, v22, v18")
            I("v_lshlrev_b32 v22, 10, v22")
            I("v_lshl_add_u32 v22, v17, 8, v22")
            I("v_and_b32 v19, 15, v23")
            I("v_lshl_add_u32 v22, v19, 4, v22")
        for p in range(10):
            vwait(lambda t: t[0] == "Q" and t[1] <= 4*p + 3)
            for c in range(4):
                for rg in range(4):
                    r = raw(rg, p) + c
                    I(f"v_dot2_f32_bf16 v{SM+2*rg+(c&1)}, v{r}, s49, v{SM+2*rg+(c&1)}")
                    I(f"v_dot2_f32_bf16 v{SS+2*rg+(c&1)}, v{r}, v{r}, v{SS+2*rg+(c&1)}")
            if kind == "prod":
                for st in DSCH.get(p, []): pdma(st)
        I("s_nop 3")
        V8 = [SM+2*rg for rg in range(4)] + [SS+2*rg for rg in range(4)]
        for a in V8: I(f"v_add_f32 v{a}, v{a}, v{a+1}")
        for dpp in ("quad_perm:[1,0,3,2]", "quad_perm:[2,3,0,1]", "row_half_mirror"):
            for a in V8: I(f"v_add_f32_dpp v{a+1}, v{a}, v{a} {dpp} row_mask:0xf bank_mask:0xf")
            for a in V8: I(f"v_mov_b32 v{a}, v{a+1}")
        R4 = range(4)
        for a in V8: I(f"v_mul_f32 v{a}, {1.0/640.0!r}, v{a}")
        for rg in R4: I(f"v_fma_f32 v{SS+2*rg}, -v{SM+2*rg}, v{SM+2*rg}, v{SS+2*rg}")
        for rg in R4:
            I(f"v_cvt_pk_bf16_f32 v{STA+2*rg+1}, 0, -v{SM+2*rg}")
            I(f"v_cvt_pk_bf16_f32 v{SS+2*rg}, 0, v{SS+2*rg}")
        for rg in R4: I(f"v_add_f32 v{SS+2*rg}, {1e-5!r}, v{SS+2*rg}")
        for rg in R4: I(f"v_cvt_pk_bf16_f32 v{SS+2*rg}, 0, v{SS+2*rg}")
        for rg in R4: I(f"v_sqrt_f32 v{SS+2*rg}, v{SS+2*rg}")
        I("s_nop 0")
        for rg in R4: I(f"v_cvt_pk_bf16_f32 v{SS+2*rg}, 0, v{SS+2*rg}")
        for rg in R4: I(f"v_rcp_f32 v{STA+2*rg}, v{SS+2*rg}")
        I("s_nop 0")
        MN = "mnorm" in FLAGS
        SEL = 24; NEG = 32; T2 = 234
        if MN:
            I("v_and_b32 v2, 15, v1")
            I("v_lshrrev_b32 v3, 4, v1")
            I("v_lshrrev_b32 v4, 2, v2")
            I("v_cmp_eq_u32 vcc, v3, v4")
            I("v_and_b32 v4, 1, v2")
            I("v_lshlrev_b32 v4, 4, v4")
            I("v_mov_b32 v3, 0x3f80")
            I("v_lshlrev_b32 v3, v4, v3")
            I("v_cndmask_b32 v3, 0, v3, vcc")
            I("v_bfe_u32 v4, v2, 1, 1")
            I("v_cmp_eq_u32 vcc, 0, v4")
            I("s_nop 1")
            I(f"v_cndmask_b32 v{SEL}, 0, v3, vcc")
            I(f"v_cndmask_b32 v{SEL+1}, v3, 0, vcc")
            I(f"v_mov_b32 v{SEL+2}, 0")
            I(f"v_mov_b32 v{SEL+3}, 0")
            I(f"v_mov_b32 v{SEL+4}, 0")
            I(f"v_mov_b32 v{SEL+5}, 0")
            I(f"v_mov_b32 v{SEL+6}, v{SEL}")
            I(f"v_mov_b32 v{SEL+7}, v{SEL+1}")
            for rg in R4:
                for c in range(4): I(f"v_mov_b32 v{NEG+4*rg+c}, v{STA+2*rg+1}")
            I("s_nop 1")
        def norm(p, rgs):
            if MN:
                TB = [T2, T2+8]
                def mf(i):
                    rg = rgs[i]; r = raw(rg, p); t = TB[i % 2]
                    for h in range(2):
                        I(f"v_mfma_f32_16x16x32_bf16 v[{t+4*h}:{t+4*h+3}], v[{SEL+4*h}:{SEL+4*h+3}], v[{r}:{r+3}], v[{NEG+4*rg}:{NEG+4*rg+3}]")
                mf(0)
                for i, rg in enumerate(rgs):
                    r = raw(rg, p); R_ = STA + 2*rg; t = TB[i % 2]
                    if i + 1 < len(rgs): mf(i+1)
                    else: I("s_nop 7")
                    if i == 0: I("s_nop 7")
                    for c in range(8): I(f"v_cvt_pk_bf16_f32 v{t+c}, 0, v{t+c}")
                    for c in range(8): I(f"v_mul_f32 v{t+c}, v{t+c}, v{R_}")
                    for c in range(4): I(f"v_cvt_pk_bf16_f32 v{r+c}, v{t+2*c}, v{t+2*c+1}")
                    I(f"ds_write_b128 v6, v[{r}:{r+3}] offset:{(p & 1)*XP + rg*8*XR}")
                return
            for rg in rgs:
                r = raw(rg, p); R_, M_ = STA + 2*rg, STA + 2*rg + 1
                if "nonorm" not in FLAGS:
                    for c in range(4):
                        lo16(TT+2*c, r+c); hi16(TT+2*c+1, r+c)
                    for c in range(8): I(f"v_add_f32 v{TT+c}, v{TT+c}, v{M_}")
                    for c in range(8): I(f"v_cvt_pk_bf16_f32 v{TT+c}, 0, v{TT+c}")
                    for c in range(8): I(f"v_mul_f32 v{TT+c}, v{TT+c}, v{R_}")
                    for c in range(4): I(f"v_cvt_pk_bf16_f32 v{r+c}, v{TT+2*c}, v{TT+2*c+1}")
                I(f"ds_write_b128 v6, v[{r}:{r+3}] offset:{(p & 1)*XP + rg*8*XR}")
        WLK = 3; PFK = 0
        for f_ in FLAGS:
            if f_.startswith("wlk"): WLK = int(f_[3:])
            if f_.startswith("pfk"): PFK = int(f_[3:])
        for k in range(NST):
            if k == 0:
                norm(0, (0, 1, 2, 3))
                if kind == "prod": pdma(3); pdma(4)
            else:
                if kind == "prod" and k >= 2 and k - 2 + DWP < NST: pdma(k - 2 + DWP)
                p = (k-1)//2 + 1
                if p < 10: norm(p, (0, 1) if (k-1) % 2 == 0 else (2, 3))
            if kind == "wdt" and k == PFK and "nopfm" not in FLAGS:
                for i in range(13):
                    I(f"buffer_load_dwordx4 v[60:63], v5, s[28:31], s27 offen")
                    I("s_add_u32 s27, s27, 1024")
            if kind == "wdt" and k == WLK:
                for i in range(8):
                    b = 20 if i < 4 else 21
                    I(f"buffer_load_dwordx4 v[{RAW+4*i}:{RAW+3+4*i}], v{b}, s[8:11], 0 offen offset:{(i%4)*1280}")
            if k == 1:
                for rg in R4:
                    I(f"buffer_store_dwordx2 v[{STA+2*rg}:{STA+2*rg+1}], v7, s[20:23], 0 offen offset:{64*rg}")
                    vq.append(("S", rg))
            if kind == "wdt" and k == WLK + 5:
                I("s_cmp_ge_u32 s46, 270")
                I("s_cbranch_scc1 G1_hwskip")
                I("s_waitcnt vmcnt(0)")
                for dd in range(8):
                    ob = RAW + 32 + 4*dd
                    sel = 36 + (dd & 1)
                    for q in range(4):
                        I(f"v_perm_b32 v{ob+q}, v{RAW+4*(2*q+1)+dd//2}, v{RAW+4*(2*q)+dd//2}, s{sel}")
                for dd in range(8):
                    ob = RAW + 32 + 4*dd
                    I(f"buffer_store_dwordx4 v[{ob}:{ob+3}], v22, s[32:35], 0 offen offset:{16*dd}")
                e("G1_hwskip:")
            if kind == "prod": vwait(lambda t: t == ("D", k))
            I("s_waitcnt lgkmcnt(0)")
            I("s_barrier")
        I("s_endpgm")
    helper("prod")
    e("G1_hw:")
    helper("wdt")
    e("G1_cons:")
    if "prio" in FLAGS: I("s_setprio 3")
    I("s_and_b32 s31, s3, 1")
    I("s_lshr_b32 s33, s3, 1")
    I("s_lshl_b32 s27, s24, 3")
    I("s_lshl_b32 s26, s31, 2")
    I("s_add_u32 s26, s26, s27")
    I("s_mul_i32 s27, s26, 55296")
    I("v_lshl_add_u32 v9, v1, 4, s27")
    I("v_bfe_u32 v17, v0, 4, 2")
    I("v_and_b32 v18, 15, v0")
    I(f"v_mul_u32_u24 v6, {XR}, v18")
    I("v_lshl_add_u32 v6, v17, 4, v6")
    I(f"s_mul_i32 s30, s31, {64*XR}")
    I(f"s_add_u32 s30, s30, {XB}")
    I("v_add_u32 v6, s30, v6")
    I("v_bfe_u32 v18, v0, 2, 2")
    I("v_lshl_add_u32 v19, v17, 3, v18")
    I(f"v_mul_u32_u24 v19, {RS}, v19")
    I("v_and_b32 v18, 3, v0")
    I("v_lshl_add_u32 v19, v18, 3, v19")
    I("s_mul_i32 s27, s33, 160")
    I("v_add_u32 v19, s27, v19")
    I("v_and_b32 v20, 1, v17")
    I("v_lshlrev_b32 v20, 5, v20")
    I("s_lshl_b32 s27, s33, 1")
    I("s_sub_u32 s27, 1, s27")
    I("v_mul_lo_u32 v20, v20, s27")
    I("v_add_u32 v11, v19, v20")
    I("v_sub_u32 v12, v19, v20")
    for rg in (1,):
        I(f"v_add_u32 v{11+2*rg}, {rg*3*SL}, v11")
        I(f"v_add_u32 v{12+2*rg}, {rg*3*SL}, v12")
    I("s_waitcnt lgkmcnt(0)")
    srd(20, 6, SZ_H, WS_H)
    BB = 24; AF = 56; ACC = 80; LA = 2
    for f_ in FLAGS:
        if f_.startswith("la"): LA = int(f_[2:])
    def acc(m, j, js): return ACC + ((m*5 + j)*4 + js)*4
    seq = [(m, j) for m in range(2) for j in range(5)]
    NQ = len(seq)
    dq = []
    def dwait(tags):
        idxs = [i for i, t in enumerate(dq) if t in tags]
        if not idxs: return
        idx = max(idxs); n = len(dq) - 1 - idx
        assert n <= 15
        I(f"s_waitcnt lgkmcnt({n})")
        del dq[:idx+1]
    def rdx(gpos):
        st, idx = divmod(gpos, NQ)
        m, j = seq[idx]
        slot = st % NS
        a = AF + (gpos % 4)*4
        va = 11 + 2*(slot // 3) + (j & 1)
        off = (slot % 3)*SL + m*MS + j*32
        return [f"ds_read_b64_tr_b16 v[{a}:{a+1}], v{va} offset:{off}",
                f"ds_read_b64_tr_b16 v[{a+2}:{a+3}], v{va} offset:{off+4*RS}"]
    def xrd(st, js):
        b = BB + (st & 1)*16 + js*4
        I(f"ds_read_b128 v[{b}:{b+3}], v6 offset:{((st >> 1) & 1)*XP + js*16*XR + (st & 1)*64}")
        dq.append(("X", st))
    stamp()
    I("s_barrier")
    stamp()
    for js in range(4): xrd(0, js)
    for i in range(LA):
        for x in rdx(i): I(x); dq.append(("A", i))
    for st in range(NST):
        if st + 1 < NST: I("s_barrier")
        if "stamp3" in FLAGS and st in (1, 5, 10): stamp()
        for idx in range(NQ):
            gpos = st*NQ + idx
            rr = rdx(gpos + LA) if gpos + LA < NST*NQ else None
            dwait([("A", gpos), ("X", st)])
            m, j = seq[idx]
            a = AF + (gpos % 4)*4
            for js in range(4):
                c = acc(m, j, js); b = BB + (st & 1)*16 + js*4
                cc = "0" if st == 0 else f"v[{c}:{c+3}]"
                I(f"v_mfma_f32_16x16x32_bf16 v[{c}:{c+3}], v[{a}:{a+3}], v[{b}:{b+3}], {cc}")
                if rr and js < 2: I(rr[js]); dq.append(("A", gpos + LA))
                if js == 2 and st + 1 < NST and 1 <= idx <= 4: xrd(st + 1, idx - 1)
    stamp()
    I("s_lshr_b32 s34, s25, 5")
    I("s_lshl_b32 s34, s34, 10")
    I("s_nop 7")
    I("s_nop 3")
    cnt = [0]
    def hq(j, js, dst, t):
        g = acc(0, j, js); u = acc(1, j, js)
        I(f"v_cvt_pk_bf16_f32 v{t}, v{g}, v{g+1}")
        I(f"v_cvt_pk_bf16_f32 v{t+1}, v{g+2}, v{g+3}")
        I(f"v_cvt_pk_bf16_f32 v{t+2}, v{u}, v{u+1}")
        I(f"v_cvt_pk_bf16_f32 v{t+3}, v{u+2}, v{u+3}")
        lo16(g, t); hi16(g+1, t); lo16(g+2, t+1); hi16(g+3, t+1)
        lo16(u, t+2); hi16(u+1, t+2); lo16(u+2, t+3); hi16(u+3, t+3)
        for r in range(4):
            I(f"v_mul_f32 v{g+r}, v{g+r}, v{u+r}")
        I(f"v_cvt_pk_bf16_f32 v{dst}, v{g}, v{g+1}")
        I(f"v_cvt_pk_bf16_f32 v{dst+1}, v{g+2}, v{g+3}")
    def epi(fq):
        units = [((0, 1), 0, 0), ((2, 3), 1, 0), ((4,), 2, 0)] if fq == 0 else [((0,), 2, 8), ((1, 2), 3, 0), ((3, 4), 4, 0)]
        for js in range(4):
            I(f"s_add_u32 s35, s34, {js*55296}")
            I(f"s_add_u32 s36, s34, {js*55296 + 4096}")
            for (jl, blk, ho) in units:
                t = 24 + (cnt[0] % 4) * 12; cnt[0] += 1
                for hh, j in enumerate(jl): hq(j, js, t+4+2*hh, t)
                so, off = ("s35", 1024*blk + ho) if blk < 4 else ("s36", ho)
                if len(jl) == 2:
                    I(f"buffer_store_dwordx4 v[{t+4}:{t+7}], v9, s[20:23], {so} offen offset:{off}")
                else:
                    I(f"buffer_store_dwordx2 v[{t+4}:{t+5}], v9, s[20:23], {so} offen offset:{off}")
    I("s_cmp_eq_u32 s33, 0")
    I("s_cbranch_scc0 G1_epi1")
    epi(0)
    I("s_branch G1_epid")
    e("G1_epi1:")
    epi(1)
    e("G1_epid:")
    if STAMP: I("s_waitcnt vmcnt(0)")
    stamp()
    stamp_dump(5)
    wgt_end(1)
    I("s_endpgm")

G2F = "g2f" in FLAGS
WS_FL = 0x1500000
FL_SZ = 32768
LMB = 7*20480 + 19456
PLIM = 100000
SCD = " sc1" if (G2F and "nosc" not in FLAGS) else ""
PSL = 4; PSL2 = 1
XL = "xl" in FLAGS
SCH = "" if "hloc" in FLAGS else SCD
if "gsc" in FLAGS: SCH = " sc1"
YST = G2F or "yst" in FLAGS or "ysc" in FLAGS
SCY = " sc1" if "ysc" in FLAGS else SCD
SCW = " sc1" if "wsc" in FLAGS else SCD
for f_ in FLAGS:
    if f_.startswith("psl"): PSL = int(f_[3:])
    if f_.startswith("psm"): PSL2 = int(f_[3:])
def g2_setup(pw):
    if XL:
        I("s_bfe_u32 s54, s2, 0x30003")
        I("s_and_b32 s55, s2, 7")
        I("s_lshl_b32 s55, s55, 2")
        I("s_lshr_b32 s56, s2, 6")
        I("s_add_u32 s55, s55, s56")
    else:
        I("s_bfe_u32 s54, s2, 0x10002")
        I("s_lshl_b32 s54, s54, 2")
        I("s_bfe_u32 s55, s2, 0x20003")
        I("s_add_u32 s54, s54, s55")
        I("s_and_b32 s55, s2, 3")
        I("s_lshl_b32 s55, s55, 3")
        I("s_lshr_b32 s56, s2, 5")
        I("s_add_u32 s55, s55, s56")
    I("s_mul_i32 s56, s3, 7")
    I("s_cmp_eq_u32 s3, 7")
    I("s_subb_u32 s56, s56, 0")
    I("s_lshl_b32 s56, s56, 10")
    I(f"s_mul_i32 s52, s54, {5*55296}")
    I("s_add_u32 s52, s52, s56")
    I(f"s_mul_i32 s53, s55, {4*55296}")
    I("s_add_u32 s53, s53, s56")
    I("s_mul_i32 s56, s3, 20480")
    srd(48, 6, SZ_W, WS_WDT)
    srd(44, 6, FL_SZ, WS_FL)
    I(f"s_mov_b32 s57, {pw}")
def g2_wdma(vl, mid=None):
    for jd in range(5):
        if mid and jd == FFN: mid(4*FFN)
        I(f"s_add_u32 m0, s56, {jd*4096}")
        I(f"s_add_u32 s58, s52, {jd*55296}")
        for b in range(4 if jd < 4 else 3):
            I(f"buffer_load_dwordx4 v{vl}, s[48:51], s58 offen offset:{1024*b} lds")
def g2_gpoll():
    I("s_mov_b64 exec, 0xffffffff")
    I("buffer_load_dword v4, v3, s[44:47], s14 offen sc1")
    I("s_mov_b64 exec, -1")
def g2_publish():
    I("v_cmp_ne_u32 vcc, 0, v4")
    I("s_mov_b32 s58, vcc_lo")
    I("v_mov_b32 v4, s58")
    I("s_mov_b64 exec, 1")
    I("ds_write_b32 v6, v4")
    I("s_mov_b64 exec, -1")
def g2_lread():
    I("ds_read_b32 v4, v6")
    I("s_waitcnt lgkmcnt(0)")
    I("v_readfirstlane_b32 s58, v4")
def g2_wait(name, need):
    I("s_mov_b32 s59, 0")
    I("s_cmp_eq_u32 s3, s57")
    I(f"s_cbranch_scc1 {name}_p")
    e(f"{name}_l:")
    g2_lread()
    I(f"s_and_b32 s58, s58, {need}")
    I(f"s_cmp_eq_u32 s58, {need}")
    I(f"s_cbranch_scc1 {name}_ok")
    I("s_add_u32 s59, s59, 1")
    I(f"s_cmp_gt_u32 s59, {PLIM*20}")
    I(f"s_cbranch_scc1 {name}_ok")
    I(f"s_sleep {PSL2}")
    I(f"s_branch {name}_l")
    e(f"{name}_p:")
    g2_gpoll()
    I("s_waitcnt vmcnt(0)")
    g2_publish()
    I(f"s_and_b32 s58, s58, {need}")
    I(f"s_cmp_eq_u32 s58, {need}")
    I(f"s_cbranch_scc1 {name}_ok")
    I("s_add_u32 s59, s59, 1")
    I(f"s_cmp_gt_u32 s59, {PLIM}")
    I(f"s_cbranch_scc1 {name}_ok")
    I(f"s_sleep {PSL}")
    I(f"s_branch {name}_p")
    e(f"{name}_ok:")
G2_HB, G2_RG, G2_WR, G2_ACC = 12, 92, 112, 176
HPW = -1; CLATE = "xlate" in FLAGS; HTK = -1; FF = False; FFN = 2; HPN = 5
for f_ in FLAGS:
    if f_.startswith("ff"): FF = True; FFN = int(f_[2:])
    if f_.startswith("hpn"): HPN = int(f_[3:])
CWP = False; CWI = 1; CHT = -1; HALL = "hall" in FLAGS
CW4 = False
for f_ in FLAGS:
    if f_.startswith("cw4"):
        CW4 = True
        a_, b_ = f_[3:].split("_")
        CW4W = [[k for k, c in enumerate(a_) if int(c) == it] for it in range(8)]
        CW4H = [[k for k, c in enumerate(b_) if int(c) == it] for it in range(8)]
for f_ in FLAGS:
    if f_.startswith("cht"): CHT = int(f_[3:])
WNT = " nt" if "wnt" in FLAGS else ""
for f_ in FLAGS:
    if f_.startswith("cwp"): CWP = True; CWI = int(f_[3:])
for f_ in FLAGS:
    if f_.startswith("hpw"): HPW = int(f_[3:])
    if f_.startswith("htk"): HTK = int(f_[3:])
def g2_head(path):
    if "hdst" in FLAGS:
        nst[0] = 1; stamp()
    I("s_load_dwordx2 s[36:37], s[0:1], 0")
    I("s_load_dwordx2 s[38:39], s[0:1], 80")
    I("v_and_b32 v3, 63, v0")
    I("v_lshlrev_b32 v1, 4, v3")
    I(f"v_lshlrev_b32 v7, {7 if path == 'cons' else 10}, v3")
    I("v_lshlrev_b32 v3, 2, v3")
    I(f"v_mov_b32 v6, {LMB}")
    I("v_mov_b32 v5, 1")
    I("s_cmp_ge_u32 s3, 6")
    I("s_cselect_b32 s15, 0x40000000, 0")
    def yflag(n):
        I(f"s_waitcnt vmcnt({n})")
        if "hdst" in FLAGS: stamp()
        I("s_mov_b64 exec, 1")
        I("ds_add_rtn_u32 v4, v6, v5 offset:4")
        I("s_waitcnt lgkmcnt(0)")
        I("v_readfirstlane_b32 s12, v4")
        I("s_cmp_eq_u32 s12, 7")
        I("s_cselect_b32 exec_lo, -1, 0")
        I("buffer_store_dword v5, v7, s[44:47], s43 offen sc1")
        I("s_mov_b64 exec, -1")
    if path == "help" and HPW >= 0:
        I("v_add_u32 v2, s56, v1")
        I("s_waitcnt vmcnt(0)")
        for t in range(19):
            b, jd = divmod(t, 5)
            I(f"ds_write_b128 v2, v[{G2_ACC+4*t}:{G2_ACC+4*t+3}] offset:{jd*4096 + b*1024}")
    else:
        if FF and path == "cons":
            I("s_waitcnt vmcnt(0)")
            if "hdst" in FLAGS: stamp()
            I("s_mov_b64 exec, 0xff")
            I("buffer_store_dword v5, v7, s[44:47], s43 offen sc1")
            I("s_mov_b64 exec, -1")
        if FF and path == "conv": g2_wdma(1, yflag)
        elif HALL and path == "cons": pass
        elif path != "cons" or CLATE: g2_wdma(1)
        if HALL and path == "help":
            I("s_sub_u32 s12, s3, 4")
            I("s_mul_i32 s13, s12, 7168")
            I(f"s_mul_i32 s17, s54, {5*55296}")
            I("s_add_u32 s17, s17, s13")
            I("s_mul_i32 s18, s12, 20480")
            for jd in range(5):
                I(f"s_add_u32 m0, s18, {jd*4096}")
                I(f"s_add_u32 s58, s17, {jd*55296}")
                for b in range(4 if jd < 4 else 3):
                    I(f"buffer_load_dwordx4 v1, s[48:51], s58 offen offset:{1024*b} lds")
            I("v_lshrrev_b32 v8, 5, v3")
            I("v_mul_u32_u24 v8, 55296, v8")
            I("v_bfe_u32 v9, v3, 2, 3")
            I("v_lshl_add_u32 v8, v9, 7, v8")
            I("s_add_u32 s17, s17, 3072")
            I("s_mov_b32 exec_hi, 0xff")
            for i in range(4):
                I(f"buffer_load_dword v{G2_ACC+i}, v8, s[48:51], s17 offen offset:{1024*i}")
            I("s_mov_b64 exec, -1")
        I(f"s_add_u32 s12, s52, {4*55296}")
        I(f"buffer_load_dwordx4 v[{G2_WR}:{G2_WR+3}], v1, s[48:51], s12 offen offset:3072")
        for jd in range(5):
            I(f"s_add_u32 s12, s52, {jd*55296 + 4096}")
            I("s_add_u32 s13, s12, s15")
            for b in range(3):
                r = G2_WR + 4 + (b*5 + jd)*4
                I(f"buffer_load_dwordx4 v[{r}:{r+3}], v1, s[48:51], s{13 if b == 2 else 12} offen offset:{1024*b}")
    if path == "cons" and not FF:
        I(f"s_waitcnt vmcnt({35 if CLATE else 16})")
        I("s_mov_b64 exec, 0xff")
        I("buffer_store_dword v5, v7, s[44:47], s43 offen sc1")
        I("s_mov_b64 exec, -1")
    if path == "conv" and not FF: yflag(35)
    if HALL and path == "help": I("s_waitcnt vmcnt(0)")
    if HALL and path != "conv": I("s_barrier")
    if "hdst" in FLAGS:
        while STAMP and nst[0] < 3: stamp()
        stamp()
        I("s_waitcnt vmcnt(0)")
        stamp()
    while STAMP and nst[0] < 9: stamp()
    if "g2st" in FLAGS: nst[0] = 1
    stamp()
    G2ST[0] = nst[0]; nst[0] = 1 if path == "help" else 0
    if path != "conv": I("s_branch G2M")

def gen_g2():
    HB, RG, WR, ACC = G2_HB, G2_RG, G2_WR, G2_ACC
    e("G2M:")
    nst[0] = G2ST[0]
    I("s_lshl_b32 s14, s55, 3")
    I("s_add_u32 s14, s14, s54")
    I("s_lshl_b32 s14, s14, 7")
    masks = []
    for w in range(8):
        fb0 = 7*w - (1 if w == 7 else 0); n = 6 if w >= 6 else 7
        m = 0
        for f in range(32*fb0, 32*(fb0+n)):
            m |= 1 << (f//80 if f < 1600 else 20 + (f-1568)//80)
        masks.append(m)
    I(f"s_mov_b32 s16, {masks[0]:#x}")
    for w in range(1, 8):
        I(f"s_cmp_eq_u32 s3, {w}")
        I(f"s_cselect_b32 s16, {masks[w]:#x}, s16")
    I("s_cmp_eq_u32 s3, s57")
    I("s_cselect_b32 s16, 0x3fffff, s16")
    srd(8, 6, SZ_H, WS_H)
    I("v_add_u32 v2, s56, v1")
    if "xt" in FLAGS:
        I("s_waitcnt lgkmcnt(0)")
        srd(20, 36, SZ_SD)
        I("s_lshl_b32 s12, s55, 6")
        I("s_lshl_b32 s13, s3, 3")
        I("s_add_u32 s12, s12, s13")
        I("v_bfe_u32 v8, v0, 1, 3")
        I("v_add_u32 v8, s12, v8")
        I("v_mul_u32_u24 v8, 0x500, v8")
        I("v_and_b32 v9, 1, v0")
        I("v_mul_u32_u24 v9, 156, v9")
        I("v_add_u32 v8, v8, v9")
        I("s_mul_i32 s12, s54, 160")
        I("s_mov_b64 exec, 0xffff")
        I(f"buffer_load_dword v{HB}, v8, s[20:23], s12 offen")
        I("s_mov_b64 exec, -1")
    g2_wait("G2H", "s16")
    stamp()
    for js in range(4):
        I(f"s_add_u32 s{16+js}, s53, {js*55296}")
        I(f"s_add_u32 s{40+js}, s53, {js*55296 + 4096}")
    vq = []
    def vwait(tag):
        idxs = [i for i, t in enumerate(vq) if t == tag]
        if not idxs: return
        idx = max(idxs); n = len(vq) - 1 - idx
        I(f"s_waitcnt vmcnt({n})")
        del vq[:idx+1]
    def hld(b):
        for js in range(4):
            r = HB + (b % 5)*16 + js*4
            I(f"buffer_load_dwordx4 v[{r}:{r+3}], v1, s[8:11], s{(16 if b < 4 else 40)+js} offen offset:{1024*(b % 4)}")
            vq.append(("h", b))
    for b in range(5): hld(b)
    I("s_waitcnt vmcnt(20) lgkmcnt(0)")
    q = DSQ()
    NR = 5
    def wrd(t):
        b, jd = divmod(t, 5)
        r = RG + (t % NR)*4
        I(f"ds_read_b128 v[{r}:{r+3}], v2 offset:{jd*4096 + b*1024}")
        q.push(("w", t))
    for t in range(NR-1): wrd(t)
    srd(20, 36, SZ_SD)
    srd(24, 6, S*8, WS_ST)
    srd(28, 6, SZ_SD, WS_YT)
    srd(32, 38, SZ_SD)
    I("s_lshr_b32 s36, s3, 1")
    I("s_and_b32 s37, s3, 1")
    I("s_mov_b32 s13, 0xfc000000")
    I("s_cmp_eq_u32 s37, 0")
    I("s_cselect_b32 s13, 0x0fc00000, s13")
    I("s_cmp_eq_u32 s3, s57")
    I("s_cselect_b32 s13, 0xffc00000, s13")
    I("s_lshl_b32 s37, s37, 5")
    I("s_mul_i32 s38, s54, 80")
    I("s_add_u32 s38, s38, s37")
    I("s_lshl_b32 s39, s55, 6")
    I("v_and_b32 v7, 15, v0")
    I("v_bfe_u32 v8, v0, 4, 2")
    I("s_lshl_b32 s12, s36, 4")
    I("s_add_u32 s12, s12, s39")
    I("v_add_u32 v9, s12, v7")
    I("v_lshlrev_b32 v10, 3, v9")
    I("v_mul_u32_u24 v9, 0x500, v9")
    I("v_lshl_add_u32 v9, v8, 3, v9")
    I("s_lshl_b32 s12, s38, 1")
    I("v_add_u32 v9, s12, v9")
    I("s_lshr_b32 s12, s36, 1")
    I("s_lshl_b32 s12, s12, 5")
    I("s_add_u32 s12, s12, s39")
    I("s_lshl_b32 s12, s12, 1")
    I("v_add_u32 v11, s38, v7")
    I("v_lshlrev_b32 v11, 12, v11")
    I("v_lshl_add_u32 v11, v8, 4, v11")
    I("v_add_u32 v11, s12, v11")
    def acc(jd, js): return ACC + (js*5 + jd)*4
    XX = HB + 32; YF = HB + 48; TQ = HB + 64
    for b in range(7):
        if b == 6:
            I("s_cmp_ge_u32 s3, 6")
            I("s_cbranch_scc1 G2_skip6")
        vwait(("h", b))
        if "g2st" in FLAGS and b < 6: stamp()
        if b == 6:
            I("s_cmp_eq_u32 s3, s57")
            I("s_cbranch_scc0 G2_np")
            g2_gpoll()
            e("G2_np:")
        for jd in range(5):
            t = b*5 + jd
            if t < 19:
                q.wait_for(("w", t)); a = RG + (t % NR)*4
            else: a = WR + (t - 19)*4
            for js in range(4):
                c = acc(jd, js); bb = HB + (b % 5)*16 + js*4
                cc = "0" if b == 0 else f"v[{c}:{c+3}]"
                I(f"v_mfma_f32_16x16x32_bf16 v[{c}:{c+3}], v[{a}:{a+3}], v[{bb}:{bb+3}], {cc}")
                if js == 0 and t + NR - 1 < 19: wrd(t + NR - 1)
        if b == 0: hld(5)
        if b == 1:
            for js in range(4): I(f"s_add_u32 s{40+js}, s{40+js}, s15")
            hld(6)
        if b == 2:
            I(f"buffer_load_dwordx2 v[{XX+6}:{XX+7}], v10, s[24:27], 0 offen"); vq.append(("x", 0))
            for j in range(3):
                I(f"buffer_load_dwordx2 v[{XX+2*j}:{XX+2*j+1}], v9, s[20:23], 0 offen offset:{32*j}"); vq.append(("x", 0))
    e("G2_skip6:")
    stamp()
    I("s_cmp_eq_u32 s3, 7")
    I("s_cselect_b32 s40, 0, -1")
    I("s_mov_b32 s41, s40")
    I("s_nop 7")
    for js in range(4):
        for jd in range(5):
            c = acc(jd, js)
            if (js, jd) == (3, 4): I("s_mov_b64 exec, s[40:41]")
            I(f"ds_write_b128 v2, v[{c}:{c+3}] offset:{(js*5+jd)*1024}")
    I("s_mov_b64 exec, -1")
    def yld():
        for j in range(3):
            I(f"s_mov_b32 s12, {j*65536}")
            I(f"buffer_load_dwordx4 v[{YF+4*j}:{YF+4*j+3}], v11, s[28:31], s12 offen")
    I("s_waitcnt vmcnt(0)")
    I("s_cmp_eq_u32 s3, s57")
    I("s_cbranch_scc0 G2_yl")
    g2_publish()
    I("s_branch G2_yc")
    e("G2_yl:")
    g2_lread()
    e("G2_yc:")
    I("s_and_b32 s58, s58, s13")
    I("s_cmp_eq_u32 s58, s13")
    I("s_cselect_b32 s42, 1, 0")
    I("s_cbranch_scc0 G2_noy")
    yld()
    e("G2_noy:")
    IDB = RG
    I("s_and_b32 s12, s36, 1")
    I("s_lshl_b32 s12, s12, 4")
    I(f"v_add_u32 v{TQ}, s12, v7")
    I(f"v_lshrrev_b32 v{TQ+1}, 3, v{TQ}")
    I(f"v_cmp_eq_u32 vcc, v{TQ+1}, v8")
    I(f"v_and_b32 v{TQ+1}, 7, v{TQ}")
    I(f"v_and_b32 v{TQ+2}, 1, v{TQ+1}")
    I(f"v_lshlrev_b32 v{TQ+2}, 4, v{TQ+2}")
    I(f"v_mov_b32 v{TQ+3}, 0x3f80")
    I(f"v_lshlrev_b32 v{TQ+3}, v{TQ+2}, v{TQ+3}")
    I(f"v_lshrrev_b32 v{TQ+1}, 1, v{TQ+1}")
    I(f"v_cndmask_b32 v{TQ+3}, 0, v{TQ+3}, vcc")
    for j in range(4):
        I(f"v_cmp_eq_u32 vcc, {j}, v{TQ+1}")
        I("s_nop 1")
        I(f"v_cndmask_b32 v{IDB+j}, 0, v{TQ+3}, vcc")
    XN = RG + 4
    for j in range(3):
        t = XN + 4*j; x0 = XX + 2*j
        lo16(t, x0); hi16(t+1, x0); lo16(t+2, x0+1); hi16(t+3, x0+1)
        for r in range(4): I(f"v_add_f32 v{t+r}, v{t+r}, v{XX+7}")
        for r in range(4): I(f"v_cvt_pk_bf16_f32 v{t+r}, 0, v{t+r}")
        for r in range(4): I(f"v_mul_f32 v{t+r}, v{t+r}, v{XX+6}")
        for r in range(4): I(f"v_cvt_pk_bf16_f32 v{t+r}, 0, v{t+r}")
    I("s_mul_i32 s12, s36, 5120")
    I("s_lshl_b32 s37, s37, 6")
    I("s_add_u32 s12, s12, s37")
    I("v_add_u32 v5, s12, v1")
    I(f"v_add_u32 v10, {3*20480}, v5")
    I(f"v_add_u32 v2, {6*20480}, v5")
    I("s_waitcnt lgkmcnt(0)")
    I("s_barrier")
    stamp()
    R = WR
    for j in range(3):
        for src in range(8):
            r = R + (j*8 + src)*4
            if (j, src) == (2, 7):
                for i in range(4): I(f"v_mov_b32 v{r+i}, v{acc(4,3)+i}")
                I("s_mov_b64 exec, s[40:41]")
            I(f"ds_read_b128 v[{r}:{r+3}], v{(5, 10, 2)[src//3]} offset:{(src % 3)*20480 + j*1024}")
    I("s_mov_b64 exec, -1")
    for j in range(3):
        I(f"s_waitcnt lgkmcnt({(15, 7, 0)[j]})")
        r0 = R + j*32
        for st_ in (16, 8, 4):
            for o in range(0, st_, 2):
                I(f"v_pk_add_f32 v[{r0+o}:{r0+o+1}], v[{r0+o}:{r0+o+1}], v[{r0+st_+o}:{r0+st_+o+1}]")
        for r in range(4): I(f"v_cvt_pk_bf16_f32 v{r0+r}, 0, v{r0+r}")
    I("s_cmp_eq_u32 s42, 1")
    I("s_cbranch_scc1 G2_ydone")
    g2_wait("G2Y", "s13")
    yld()
    e("G2_ydone:")
    I("s_waitcnt vmcnt(0)")
    stamp()
    TY = HB
    for j in range(3):
        I(f"v_mfma_f32_16x16x32_bf16 v[{TY+4*j}:{TY+4*j+3}], v[{YF+4*j}:{YF+4*j+3}], v[{IDB}:{IDB+3}], 0")
    for j in range(3):
        t = TQ + 4*j; x0 = XX + 2*j
        lo16(t, x0); hi16(t+1, x0); lo16(t+2, x0+1); hi16(t+3, x0+1)
    I("s_nop 3")
    for j in range(3):
        t = TQ + 4*j; ty = TY + 4*j; xn = XN + 4*j; r0 = R + j*32
        for r in range(4): I(f"v_mul_f32 v{ty+r}, v{ty+r}, v{xn+r}")
        for r in range(4): I(f"v_cvt_pk_bf16_f32 v{ty+r}, 0, v{ty+r}")
        for r in range(4): I(f"v_add_f32 v{t+r}, v{t+r}, v{ty+r}")
        for r in range(4): I(f"v_cvt_pk_bf16_f32 v{t+r}, 0, v{t+r}")
        for r in range(4): I(f"v_add_f32 v{t+r}, v{t+r}, v{r0+r}")
        I(f"v_cvt_pk_bf16_f32 v{ty}, v{t}, v{t+1}")
        I(f"v_cvt_pk_bf16_f32 v{ty+1}, v{t+2}, v{t+3}")
        I(f"buffer_store_dwordx2 v[{ty}:{ty+1}], v9, s[32:35], 0 offen offset:{32*j}")
    if STAMP: I("s_waitcnt vmcnt(0)")
    stamp()
    stamp_dump(5)
    I("s_endpgm")
G2ST = [0]

def gen_g1b():
    NF = 10; RS = 320; MS = 32*RS; SL = 2*MS; NS = 6; NST = 20; NX = 4
    XB = NS*SL
    XS = 8192
    STB = XB + NX*XS
    CSB = STB + 1024
    I(f"s_mul_i32 s25, s25, {16*NF}")
    I(f"s_min_u32 s25, s25, {F-16*NF}")
    I("v_and_b32 v1, 63, v0")
    for f_ in FLAGS:
        if f_.startswith("gdel"): I(f"s_sleep {int(f_[4:])}")
    I("s_cmp_lt_u32 s3, 4")
    I("s_cbranch_scc1 G1_cons")
    I("s_and_b32 s26, s3, 3")
    I("s_lshl_b32 s27, s24, 7")
    I("s_lshl_b32 s28, s26, 5")
    I("s_add_u32 s27, s27, s28")
    I("v_lshrrev_b32 v12, 2, v1")
    I("v_bfe_u32 v11, v1, 3, 2")
    I("v_xor_b32 v11, v11, v1")
    I("v_and_b32 v11, 3, v11")
    I("v_add_u32 v13, s27, v12")
    I("v_lshlrev_b32 v7, 3, v13")
    I("v_mul_u32_u24 v13, 0x500, v13")
    I("v_lshl_add_u32 v13, v11, 4, v13")
    I(f"v_add_u32 v14, {16*1280-1024}, v13")
    I("s_lshl_b32 s30, s26, 11")
    I(f"s_add_u32 s30, s30, {XB}")
    I("v_lshl_add_u32 v6, v1, 4, s30")
    I("s_lshl_b32 s28, s26, 8")
    I(f"s_add_u32 s28, s28, {STB}")
    I("v_lshl_add_u32 v5, v12, 3, s28")
    I("s_lshl_b32 s27, s25, 1")
    I("s_and_b32 s28, s26, 1")
    I("s_mul_i32 s28, s28, 320")
    for i in range(5):
        I(f"v_add_u32 v20, s28, v1")
        if i: I(f"v_add_u32 v20, {64*i}, v20")
        I("v_mul_u32_u24 v21, 3277, v20")
        I("v_lshrrev_b32 v21, 16, v21")
        I("v_mul_u32_u24 v22, 20, v21")
        I("v_sub_u32 v22, v20, v22")
        I("v_bfe_u32 v23, v21, 3, 1")
        I("v_lshlrev_b32 v23, 1, v23")
        I("v_xor_b32 v22, v22, v23")
        I("v_mul_u32_u24 v21, 3456, v21")
        I("v_lshl_add_u32 v21, v22, 4, v21")
        I("v_add_u32 v21, s27, v21")
        I(f"v_subrev_u32 v{24+i}, {1024*(i%4)}, v21")
    I("s_mul_i32 s29, s26, 5120")
    I("s_waitcnt lgkmcnt(0)")
    HST = "zst" in FLAGS
    if HST: stamp()
    I("s_cmp_ge_u32 s26, 2")
    I("s_cselect_b32 s4, s18, s16")
    I("s_cselect_b32 s5, s19, s17")
    srd(8, 4, SZ_W)
    srd(12, 44, SZ_SD)
    vq = []
    def vwait(pred):
        idxs = [i for i, t in enumerate(vq) if pred(t)]
        if not idxs: return
        idx = max(idxs)
        n = len(vq) - 1 - idx
        assert n <= 63
        I(f"s_waitcnt vmcnt({n})")
        del vq[:idx+1]
    ROT = "krot" in FLAGS or "krotq" in FLAGS
    if ROT:
        if "krotq" in FLAGS:
            I("s_lshr_b32 s51, s24, 2")
            I("s_mul_i32 s51, s51, 5")
        else:
            I("s_mul_i32 s51, s24, 5")
            I("s_lshr_b32 s51, s51, 2")
        I(f"s_mul_i32 s50, s51, {32*3456}")
        I("s_lshl_b32 s51, s51, 6")
    def wdma(st):
        ops = []
        for i in range(5):
            pre = []
            if i == 0 and not ROT: pre.append(f"s_mov_b32 s28, {st*32*3456}")
            if i == 0 and ROT: pre += ["s_mov_b32 s28, s50", f"s_add_u32 s50, s50, {32*3456}", f"s_cmp_eq_u32 s50, {640*3456}", "s_cselect_b32 s50, 0, s50"]
            if i % 4 == 0: pre.append(f"s_add_u32 m0, s29, {(st % NS)*SL + (i//4)*4096}")
            ops.append(pre + [(f"buffer_load_dwordx4 v{24+i}, s[8:11], s28 offen offset:{1024*(i%4)}{WNT} lds", ("W", st))])
        return ops
    def xdma(st):
        ops = []
        for i in range(2):
            pre = []
            if i == 0 and not ROT: pre += [f"s_movk_i32 s31, {st*64}", f"s_add_u32 m0, s30, {(st % NX)*XS}"]
            if i == 0 and ROT: pre += ["s_mov_b32 s31, s51", "s_add_u32 s51, s51, 64", "s_cmpk_eq_u32 s51, 1280", "s_cselect_b32 s51, 0, s51", f"s_add_u32 m0, s30, {(st % NX)*XS}"]
            ops.append(pre + [(f"buffer_load_dwordx4 v{13+i}, s[12:15], s31 offen offset:{1024*i} lds", ("X", st))])
        return ops
    def emit(group):
        for x in group:
            if isinstance(x, tuple): I(x[0]); vq.append(x[1])
            else: I(x)
    P0 = NS
    for f_ in FLAGS:
        if f_.startswith("p0_"): P0 = int(f_[3:])
    nxt = {"W": 0, "X": 0}
    HS = 0
    for f_ in FLAGS:
        if f_.startswith("hs"): HS = int(f_[2:])
    P1 = NS
    for f_ in FLAGS:
        if f_.startswith("p1_"): P1 = int(f_[3:])
    for st in range(P1 if HS else P0):
        if HS and st == P0: I(f"s_sleep {HS}")
        if st < NX:
            for g_ in xdma(st): emit(g_)
            nxt["X"] = st + 1
        for g_ in wdma(st): emit(g_)
        nxt["W"] = st + 1
        if HST and st in (0, 1) and "zk2" not in FLAGS: stamp()
    if HST and "zk2" not in FLAGS: stamp()
    srd(20, 6, S*8, WS_ST)
    I("s_load_dwordx2 s[4:5], s[0:1], 72")
    I("s_min_u32 s48, s46, 269")
    I("s_mul_i32 s17, s48, 0xCCCD")
    I("s_lshr_b32 s17, s17, 19")
    I("s_mul_i32 s18, s17, 10")
    I("s_sub_u32 s18, s48, s18")
    I("v_and_b32 v23, 7, v0")
    I("v_bfe_u32 v17, v0, 3, 2")
    I("v_bfe_u32 v18, v0, 5, 1")
    I("s_lshl_b32 s18, s18, 6")
    I("v_lshl_add_u32 v23, v23, 3, s18")
    I("s_lshl_b32 s19, s17, 1")
    I("v_add_u32 v18, s19, v18")
    I("v_lshlrev_b32 v19, 5, v18")
    I("v_lshl_add_u32 v19, v17, 2, v19")
    I("v_mul_u32_u24 v20, 0x500, v19")
    I("v_lshl_add_u32 v20, v23, 1, v20")
    I("v_add_u32 v21, 0x5000, v20")
    I("s_mov_b32 s36, 0x05040100")
    I("s_mov_b32 s37, 0x07060302")
    I("v_lshrrev_b32 v22, 4, v23")
    I("v_mul_u32_u24 v22, 54, v22")
    I("v_add_u32 v22, v22, v18")
    I("v_lshlrev_b32 v22, 10, v22")
    I("v_lshl_add_u32 v22, v17, 8, v22")
    I("v_and_b32 v19, 15, v23")
    I("v_lshl_add_u32 v22, v19, 4, v22")
    I("s_cmp_lt_u32 s46, 270")
    I(f"s_cselect_b32 s49, {SZ_W}, 0")
    I("s_waitcnt lgkmcnt(0)")
    srd(40, 4, SZ_W)
    srd(32, 6, SZ_W, WS_WDT)
    I("s_mov_b32 s42, s49")
    I("s_mov_b32 s34, s49")
    if G2F:
        g2_setup(4)
        I(f"v_mov_b32 v140, {LMB}")
        I("v_mov_b32 v142, 0")
        I("v_mov_b32 v143, 0")
        I("ds_write_b64 v140, v[142:143]")
        I("v_lshlrev_b32 v100, 4, v1")
        I("s_cmp_ge_u32 s3, 6")
        I("s_cselect_b32 s39, 0x40000000, 0")
        I("s_bfe_u32 s38, s2, 0x20005")
        I("s_mul_i32 s38, s38, 280")
        I("s_mul_i32 s58, s26, 70")
        I("s_add_u32 s38, s38, s58")
        for i in range(2):
            I(f"v_add_u32 v101, s38, v1")
            if i: I("v_add_u32 v101, 6, v101")
            I("v_mul_u32_u24 v102, 4682, v101")
            I("v_lshrrev_b32 v102, 20, v102")
            I("v_mul_u32_u24 v103, 224, v102")
            I("v_sub_u32 v101, v101, v103")
            I("v_lshlrev_b32 v101, 7, v101")
            I("v_mul_u32_u24 v102, 55296, v102")
            I(f"v_add_u32 v{104+i}, v101, v102")
        I(f"s_mul_i32 s38, s54, {5*55296}")
    XA = 32; TT = 40; SM = 48; SQ = 50; STA = 52; RAW = 64
    for j in range(4): I(f"v_mov_b32 v{SM+j}, 0")
    WLK = 6; WPK = 10
    for f_ in FLAGS:
        if f_.startswith("wlk"): WLK = int(f_[3:])
        if f_.startswith("wpk"): WPK = int(f_[3:])
    if G2F: WLK = WPK = 99
    def statops():
        ops = []
        for rg in range(2):
            for c in range(4):
                r = XA + 4*rg + c; t = TT + 2*(c & 1)
                ops += [f"v_lshlrev_b32 v{t}, 16, v{r}", f"v_and_b32 v{t+1}, 0xffff0000, v{r}",
                        f"v_add_f32 v{SM+rg}, v{SM+rg}, v{t}", f"v_fmac_f32 v{SQ+rg}, v{t}, v{t}",
                        f"v_add_f32 v{SM+rg}, v{SM+rg}, v{t+1}", f"v_fmac_f32 v{SQ+rg}, v{t+1}, v{t+1}"]
        return ops
    for k in range(NST + 1):
        dm = []
        if k >= 1:
            for _ in range(2):
                if nxt["X"] <= min(NST-1, max(NX-1, k+2)): dm += xdma(nxt["X"]); nxt["X"] += 1
                if nxt["W"] <= min(NST-1, max(NS-1, k+3)): dm += wdma(nxt["W"]); nxt["W"] += 1
        if k == WLK:
            for i in range(8):
                b = 20 if i < 4 else 21
                dm.append([(f"buffer_load_dwordx4 v[{RAW+4*i}:{RAW+3+4*i}], v{b}, s[40:43], 0 offen offset:{(i%4)*1280}", ("T", 0))])
        if G2F and HPW >= 0 and HPW <= k:
            for t in range((k - HPW)*HPN, min(35, (k - HPW + 1)*HPN if k < NST else 35)):
                b, jd = divmod(t, 5)
                r = G2_ACC + 4*t if t < 19 else G2_WR + 4*(t - 19)
                pre = [f"s_add_u32 s58, s52, {jd*55296 + (b//4)*4096}"]
                if b == 6: pre.append("s_add_u32 s58, s58, s39")
                dm.append(pre + [(f"buffer_load_dwordx4 v[{r}:{r+3}], v100, s[48:51], s58 offen offset:{1024*(b % 4)}", ("G", 0))])
        if G2F and k == HTK:
            for i in range(2):
                dm.append([(f"buffer_load_dword v{101+i}, v{104+i}, s[48:51], s38 offen", ("G", 0))])
        va = []
        if k >= 1:
            for rg in range(2):
                I(f"ds_read_b128 v[{XA+4*rg}:{XA+4*rg+3}], v6 offset:{((k-1) % NX)*XS + 1024*rg}")
            va = statops() if "nostat" not in FLAGS else []
        if WPK <= k < WPK + 4:
            for dd in range(2*(k-WPK), 2*(k-WPK)+2):
                ob = RAW + 32 + 4*dd
                sel = 36 + (dd & 1)
                for q in range(4):
                    va.append(f"v_perm_b32 v{ob+q}, v{RAW+4*(2*q+1)+dd//2}, v{RAW+4*(2*q)+dd//2}, s{sel}")
                va.append((f"buffer_store_dwordx4 v[{ob}:{ob+3}], v22, s[32:35], 0 offen offset:{16*dd}{SCW}", ("S", 0)))
        nfirst = min(2, len(dm))
        for g_ in dm[:nfirst]: emit(g_)
        rest = dm[nfirst:]
        if k == WPK: vwait(lambda t: t[0] == "T")
        if va: I("s_waitcnt lgkmcnt(0)")
        step = max(1, len(va) // (len(rest) + 1)) if rest else 0
        ri = 0
        for i, o in enumerate(va):
            emit([o])
            if rest and ri < len(rest) and (i + 1) % step == 0:
                emit(rest[ri]); ri += 1
        for g_ in rest[ri:]: emit(g_)
        if k < NST:
            ZK = (0, 1, 2) if "zk2" not in FLAGS else (3, 4, 5)
            if HST and k in ZK: stamp()
            vwait(lambda t: t in (("W", k), ("X", k)))
            if HST and k in ZK: stamp()
            I("s_barrier")
            if HST and k in ZK and "zk2" in FLAGS: stamp()
    V4 = [SM, SM+1, SQ, SQ+1]
    I("s_nop 1")
    for dpp in ("quad_perm:[1,0,3,2]", "quad_perm:[2,3,0,1]"):
        for i, a in enumerate(V4): I(f"v_add_f32_dpp v{TT+i}, v{a}, v{a} {dpp} row_mask:0xf bank_mask:0xf")
        for i, a in enumerate(V4): I(f"v_mov_b32 v{a}, v{TT+i}")
    R2 = range(2)
    for a in V4: I(f"v_mul_f32 v{a}, {1.0/640.0!r}, v{a}")
    for rg in R2: I(f"v_fma_f32 v{SQ+rg}, -v{SM+rg}, v{SM+rg}, v{SQ+rg}")
    for rg in R2:
        I(f"v_cvt_pk_bf16_f32 v{STA+2*rg+1}, 0, -v{SM+rg}")
        I(f"v_cvt_pk_bf16_f32 v{SQ+rg}, 0, v{SQ+rg}")
    for rg in R2: I(f"v_add_f32 v{SQ+rg}, {1e-5!r}, v{SQ+rg}")
    for rg in R2: I(f"v_cvt_pk_bf16_f32 v{SQ+rg}, 0, v{SQ+rg}")
    for rg in R2: I(f"v_sqrt_f32 v{SQ+rg}, v{SQ+rg}")
    I("s_nop 0")
    for rg in R2: I(f"v_cvt_pk_bf16_f32 v{SQ+rg}, 0, v{SQ+rg}")
    for rg in R2: I(f"v_rcp_f32 v{STA+2*rg}, v{SQ+rg}")
    I("s_nop 0")
    for rg in R2: I(f"ds_write_b64 v5, v[{STA+2*rg}:{STA+2*rg+1}] offset:{128*rg}")
    I("s_waitcnt lgkmcnt(0)")
    I("s_barrier")
    if G2F:
        I("s_barrier")
        g2_head("help")
    else:
        for rg in R2: I(f"buffer_store_dwordx2 v[{STA+2*rg}:{STA+2*rg+1}], v7, s[20:23], 0 offen offset:{128*rg}")
        if HST:
            stamp_dump(5); nst[0] = 1
        I("s_endpgm")
    e("G1_cons:")
    I("s_and_b32 s31, s3, 1")
    I("s_lshr_b32 s33, s3, 1")
    I("s_lshl_b32 s27, s24, 3")
    I("s_lshl_b32 s26, s31, 2")
    I("s_add_u32 s26, s26, s27")
    I("s_mul_i32 s27, s26, 55296")
    I("v_lshl_add_u32 v9, v1, 4, s27")
    I("v_bfe_u32 v17, v0, 4, 2")
    I("v_and_b32 v18, 15, v0")
    I("v_bfe_u32 v19, v0, 1, 2")
    I("v_xor_b32 v19, v19, v17")
    I("v_lshlrev_b32 v6, 6, v18")
    I("v_lshl_add_u32 v6, v19, 4, v6")
    I("s_lshl_b32 s30, s31, 12")
    I(f"s_add_u32 s30, s30, {XB}")
    I("v_add_u32 v6, s30, v6")
    I("s_lshl_b32 s30, s31, 9")
    I(f"s_add_u32 s30, s30, {STB}")
    I("v_lshl_add_u32 v7, v18, 3, s30")
    I("s_mul_i32 s30, s3, 320")
    I(f"s_add_u32 s30, s30, {CSB}")
    I("v_lshl_add_u32 v8, v17, 4, s30")
    I("s_xor_b32 s30, s3, 1")
    I("s_mul_i32 s30, s30, 320")
    I(f"s_add_u32 s30, s30, {CSB}")
    I("v_lshl_add_u32 v10, v17, 4, s30")
    I("v_bfe_u32 v18, v0, 2, 2")
    I("v_lshl_add_u32 v19, v17, 3, v18")
    I(f"v_mul_u32_u24 v19, {RS}, v19")
    I("v_and_b32 v18, 3, v0")
    I("v_lshl_add_u32 v19, v18, 3, v19")
    I("s_mul_i32 s27, s33, 160")
    I("v_add_u32 v19, s27, v19")
    I("v_and_b32 v18, 1, v17")
    I("v_lshlrev_b32 v18, 5, v18")
    I("s_lshl_b32 s27, s33, 1")
    I("s_sub_u32 s27, 1, s27")
    I("v_mul_lo_u32 v18, v18, s27")
    I(f"s_mul_i32 s27, s31, {MS}")
    I(f"s_sub_u32 s28, {MS}, s27")
    I("v_add_u32 v2, v19, v18")
    I("v_sub_u32 v3, v19, v18")
    for mm in range(2):
        for rg in range(2):
            for par in range(2):
                d = 11 + 4*mm + 2*rg + par
                I(f"v_add_u32 v{d}, s{27+mm}, v{2+par}")
                if rg: I(f"v_add_u32 v{d}, {3*SL}, v{d}")
    BB = 20; AF = 52; ONE = 68; CS = 72; ACC = 92; LA = 2
    for f_ in FLAGS:
        if f_.startswith("la"): LA = int(f_[2:])
    for j in range(4): I(f"v_mov_b32 v{ONE+j}, 0x3f803f80")
    I("s_waitcnt lgkmcnt(0)")
    srd(20, 6, SZ_H, WS_H)
    PFD = 0
    for f_ in FLAGS:
        if f_.startswith("pfd"): PFD = int(f_[3:])
    PFW = [None]
    if PFD:
        I("s_cmp_eq_u32 s3, 1")
        I("s_cselect_b32 s8, s18, s16")
        I("s_cselect_b32 s9, s19, s17")
        I("s_cmp_eq_u32 s3, 2")
        I("s_cselect_b32 s8, s44, s8")
        I("s_cselect_b32 s9, s45, s9")
        I(f"s_mov_b32 s10, {SZ_W}")
        I(f"s_cselect_b32 s10, {SZ_SD}, s10")
        I("s_mov_b32 s11, 0x00020000")
        I("s_cselect_b32 s12, 24, 20")
        I(f"s_mov_b32 s13, {128*3456}")
        I(f"s_cselect_b32 s13, 256, s13")
        I("s_cmp_eq_u32 s3, 3")
        I("s_cselect_b32 s12, 0, s12")
        I("s_mul_i32 s14, s47, s12")
        I("v_add_u32 v4, s14, v1")
        I("v_lshlrev_b32 v5, 7, v4")
        I("v_lshrrev_b32 v19, 1, v4")
        I("v_mul_u32_u24 v19, 0x500, v19")
        I("v_and_b32 v4, 1, v4")
        I("v_lshl_add_u32 v4, v4, 7, v19")
        I("v_min_u32 v5, 442240, v5")
        I("s_cmp_eq_u32 s3, 2")
        I("s_cselect_b64 vcc, -1, 0")
        I("v_cndmask_b32 v4, v5, v4, vcc")
        I("v_cmp_gt_u32 s[14:15], s12, v1")
        I("s_mov_b32 s16, 0")
        if "pfs0" in FLAGS: I("s_mov_b32 s16, s13")
        def pf():
            I("s_mov_b64 exec, s[14:15]")
            I("buffer_load_dword v19, v4, s[8:11], s16 offen")
            I("s_mov_b64 exec, -1")
            I("s_add_u32 s16, s16, s13")
        PFW[0] = pf
        PQ = [0]*5
        for f_ in FLAGS:
            if f_.startswith("pq"): PQ = [int(x) for x in f_[2:].split("_")]
        for g_ in range(1 if "pfs0" in FLAGS else 0, min(5, PFD)):
            if PQ[g_]: I(f"s_sleep {PQ[g_]}")
            pf()
    WPF = -1
    for f_ in FLAGS:
        if f_.startswith("wpf"): WPF = int(f_[3:])
    if WPF >= 0:
        I("s_load_dwordx2 s[36:37], s[0:1], 72")
        I("s_and_b32 s38, s3, 1")
        I("s_mul_i32 s38, s38, 176")
        I("s_add_u32 s38, s38, s47")
        I("s_min_u32 s38, s38, 269")
        I("s_mul_i32 s39, s38, 0xCCCD")
        I("s_lshr_b32 s39, s39, 19")
        I("s_mul_i32 s40, s39, 10")
        I("s_sub_u32 s40, s38, s40")
        I("s_mul_i32 s41, s39, 81920")
        I("s_lshl_b32 s40, s40, 7")
        I("s_add_u32 s41, s41, s40")
        I("v_mul_u32_u24 v5, 0x500, v1")
        I("s_cmp_ge_u32 s3, 2")
        I(f"s_cselect_b32 s38, {SZ_W}, 0")
        I("s_mov_b32 s39, 0x00020000")
        I("s_waitcnt lgkmcnt(0)")
    def acc(m, j, js): return ACC + ((m*5 + j)*4 + js)*4
    seq = [(m, j) for m in range(2) for j in range(5)]
    NQ = len(seq)
    dq = []
    def dwait(tags):
        idxs = [i for i, t in enumerate(dq) if t in tags]
        if not idxs: return
        idx = max(idxs); n = len(dq) - 1 - idx
        assert n <= 15
        I(f"s_waitcnt lgkmcnt({n})")
        del dq[:idx+1]
    def rdx(gpos):
        st, idx = divmod(gpos, NQ)
        m, j = seq[idx]
        slot = st % NS
        a = AF + (gpos % 4)*4
        va = 11 + 4*m + 2*(slot // 3) + (j & 1)
        off = (slot % 3)*SL + j*32
        return [f"ds_read_b64_tr_b16 v[{a}:{a+1}], v{va} offset:{off}",
                f"ds_read_b64_tr_b16 v[{a+2}:{a+3}], v{va} offset:{off+4*RS}"]
    def xrd(st, js):
        b = BB + (st & 1)*16 + js*4
        I(f"ds_read_b128 v[{b}:{b+3}], v6 offset:{(st % NX)*XS + js*1024}")
        dq.append(("X", st))
    stamp()
    I("s_barrier")
    stamp()
    for js in range(4): xrd(0, js)
    for i in range(LA):
        for x in rdx(i): I(x); dq.append(("A", i))
    for st in range(NST):
        if st + 1 < NST: I("s_barrier")
        if "stamp3" in FLAGS and st in (1, 5, 10): stamp()
        PFE = 4
        for f_ in FLAGS:
            if f_.startswith("pfe"): PFE = int(f_[3:])
        if PFD and st % PFE == 0 and st//PFE + PFD < (3 if ("cpf" in FLAGS or "cpf0" in FLAGS) else 5): PFW[0]()
        if st == WPF: I("buffer_load_dword v254, v5, s[36:39], s41 offen")
        for idx in range(NQ):
            gpos = st*NQ + idx
            rr = rdx(gpos + LA) if gpos + LA < NST*NQ else None
            dwait([("A", gpos), ("X", st)])
            m, j = seq[idx]
            a = AF + (gpos % 4)*4
            for js in range(4):
                c = acc(m, j, js); b = BB + (st & 1)*16 + js*4
                cc = "0" if st == 0 else f"v[{c}:{c+3}]"
                I(f"v_mfma_f32_16x16x32_bf16 v[{c}:{c+3}], v[{a}:{a+3}], v[{b}:{b+3}], {cc}")
                if rr and js < 2: I(rr[js]); dq.append(("A", gpos + LA))
                if js == 2 and st + 1 < NST and 1 <= idx <= 4: xrd(st + 1, idx - 1)
            if m == 0 and "nocs" not in FLAGS:
                c = CS + 4*j
                cc = "0" if st == 0 else f"v[{c}:{c+3}]"
                I(f"v_mfma_f32_16x16x32_bf16 v[{c}:{c+3}], v[{a}:{a+3}], v[{ONE}:{ONE+3}], {cc}")
    stamp()
    for j in range(5): I(f"ds_write_b128 v8, v[{CS+4*j}:{CS+4*j+3}] offset:{64*j}")
    I("s_lshr_b32 s34, s25, 5")
    I("s_lshl_b32 s34, s34, 10")
    if G2F:
        if XL: I("s_lshr_b32 s43, s40, 1")
        else:
            I("s_mul_i32 s43, s41, 6")
            I("s_lshr_b32 s42, s40, 2")
            I("s_add_u32 s43, s43, s42")
        I("s_lshl_b32 s43, s43, 1")
        I("s_add_u32 s43, s43, s33")
        I("s_lshl_b32 s43, s43, 2")
        I("s_lshl_b32 s42, s24, 1")
        I("s_add_u32 s42, s42, s31")
        I("s_lshl_b32 s42, s42, 10")
        I("s_add_u32 s43, s43, s42")
        g2_setup(4)
        srd(8, 6, S*8, WS_ST)
        I("v_lshlrev_b32 v5, 4, v1")
        I("s_lshl_b32 s42, s26, 7")
        I("v_lshl_add_u32 v4, v1, 3, s42")
        I("s_cmp_eq_u32 s33, 0")
        I("s_cselect_b32 s12, 0xffff, 0")
        I("s_mov_b32 s13, 0")
    I("s_waitcnt lgkmcnt(0)")
    I("s_barrier")
    CP2 = 20; STR = 40
    for js in range(4): I(f"ds_read_b64 v[{STR+2*js}:{STR+2*js+1}], v7 offset:{128*js}")
    for j in range(5): I(f"ds_read_b128 v[{CP2+4*j}:{CP2+4*j+3}], v10 offset:{64*j}")
    EP2 = "ep2" in FLAGS
    if EP2: I("s_waitcnt lgkmcnt(0)")
    if "est" in FLAGS: stamp()
    if G2F:
        assert EP2
        I("s_barrier")
        if not CLATE: g2_wdma(5)
        I("s_mov_b64 exec, s[12:13]")
        for js in range(4): I(f"buffer_store_dwordx2 v[{STR+2*js}:{STR+2*js+1}], v4, s[8:11], 0 offen offset:{128*js}{SCH}")
        I("s_mov_b64 exec, -1")
    for m in range(2 if not EP2 else 0):
        I(f"s_waitcnt lgkmcnt({5 if m == 0 else 0})")
        for j in range(5):
            cs = (CS if m == 0 else CP2) + 4*j
            for js in range(4):
                c = acc(m, j, js); sr = STR + 2*js
                for hh in range(2):
                    I(f"v_pk_fma_f32 v[{c+2*hh}:{c+2*hh+1}], v[{cs+2*hh}:{cs+2*hh+1}], v[{sr}:{sr+1}], v[{c+2*hh}:{c+2*hh+1}] op_sel:[0,1,0] op_sel_hi:[1,1,1]")
            for js in range(4):
                c = acc(m, j, js); sr = STR + 2*js
                for hh in range(2):
                    I(f"v_pk_mul_f32 v[{c+2*hh}:{c+2*hh+1}], v[{c+2*hh}:{c+2*hh+1}], v[{sr}:{sr+1}] op_sel:[0,0] op_sel_hi:[1,0]")
    cnt = [0]
    def hq(j, js, dst, t):
        g = acc(0, j, js); u = acc(1, j, js)
        if EP2:
            sr = STR + 2*js
            for (c, cs) in ((g, CS + 4*j), (u, CP2 + 4*j)):
                for hh in range(2):
                    I(f"v_pk_fma_f32 v[{c+2*hh}:{c+2*hh+1}], v[{cs+2*hh}:{cs+2*hh+1}], v[{sr}:{sr+1}], v[{c+2*hh}:{c+2*hh+1}] op_sel:[0,1,0] op_sel_hi:[1,1,1]")
            for c in (g, u):
                for hh in range(2):
                    I(f"v_pk_mul_f32 v[{c+2*hh}:{c+2*hh+1}], v[{c+2*hh}:{c+2*hh+1}], v[{sr}:{sr+1}] op_sel:[0,0] op_sel_hi:[1,0]")
            for c in (g, u):
                for r in range(4): I(f"v_cvt_pk_bf16_f32 v{c+r}, 0, v{c+r}")
            for hh in range(2):
                I(f"v_pk_mul_f32 v[{g+2*hh}:{g+2*hh+1}], v[{g+2*hh}:{g+2*hh+1}], v[{u+2*hh}:{u+2*hh+1}]")
            I(f"v_cvt_pk_bf16_f32 v{dst}, v{g}, v{g+1}")
            I(f"v_cvt_pk_bf16_f32 v{dst+1}, v{g+2}, v{g+3}")
            return
        I(f"v_cvt_pk_bf16_f32 v{t}, v{g}, v{g+1}")
        I(f"v_cvt_pk_bf16_f32 v{t+1}, v{g+2}, v{g+3}")
        I(f"v_cvt_pk_bf16_f32 v{t+2}, v{u}, v{u+1}")
        I(f"v_cvt_pk_bf16_f32 v{t+3}, v{u+2}, v{u+3}")
        lo16(g, t); hi16(g+1, t); lo16(g+2, t+1); hi16(g+3, t+1)
        lo16(u, t+2); hi16(u+1, t+2); lo16(u+2, t+3); hi16(u+3, t+3)
        for r in range(4):
            I(f"v_mul_f32 v{g+r}, v{g+r}, v{u+r}")
        I(f"v_cvt_pk_bf16_f32 v{dst}, v{g}, v{g+1}")
        I(f"v_cvt_pk_bf16_f32 v{dst+1}, v{g+2}, v{g+3}")
    def epi(fq):
        units = [((0, 1), 0, 0), ((2, 3), 1, 0), ((4,), 2, 0)] if fq == 0 else [((0,), 2, 8), ((1, 2), 3, 0), ((3, 4), 4, 0)]
        for js in range(4):
            I(f"s_add_u32 s35, s34, {js*55296}")
            I(f"s_add_u32 s36, s34, {js*55296 + 4096}")
            for (jl, blk, ho) in units:
                t = 24 + (cnt[0] % 4) * 12; cnt[0] += 1
                if EP2: t = 44 + (cnt[0] % 5) * 4
                for hh, j in enumerate(jl): hq(j, js, t+4+2*hh, t)
                so, off = ("s35", 1024*blk + ho) if blk < 4 else ("s36", ho)
                if len(jl) == 2:
                    I(f"buffer_store_dwordx4 v[{t+4}:{t+7}], v9, s[20:23], {so} offen offset:{off}{SCH}")
                else:
                    I(f"buffer_store_dwordx2 v[{t+4}:{t+5}], v9, s[20:23], {so} offen offset:{off}{SCH}")
    I("s_cmp_eq_u32 s33, 0")
    I("s_cbranch_scc0 G1_epi1")
    epi(0)
    I("s_branch G1_epid")
    e("G1_epi1:")
    epi(1)
    e("G1_epid:")
    if G2F:
        stamp()
        g2_head("cons")
        return
    if "est" in FLAGS:
        stamp()
        I("s_waitcnt vmcnt(9)")
        stamp()
        I("s_waitcnt vmcnt(3)")
        stamp()
    if STAMP: I("s_waitcnt vmcnt(0)")
    stamp()
    stamp_dump(5)
    wgt_end(1)
    I("s_endpgm")

def gen_g1f2():
    NF = 10; RS = 320; MS = 32*RS; SL = 2*MS; NS = 6; NST = 20; DWP = 5
    XB = NS*SL
    XP = 18432; XR = 144
    STL = XB + 2*XP
    CN = "nocn" not in FLAGS
    I(f"s_mul_i32 s25, s25, {16*NF}")
    I(f"s_min_u32 s25, s25, {F-16*NF}")
    I("v_and_b32 v1, 63, v0")
    I("s_and_b32 s26, s3, 3")
    I(f"s_mul_i32 s30, s26, {32*XR}")
    I(f"s_add_u32 s30, s30, {XB}")
    I("s_lshl_b32 s31, s26, 9")
    I(f"s_add_u32 s31, s31, {STL}")
    I("v_lshl_add_u32 v8, v1, 3, s31")
    I("s_lshl_b32 s27, s24, 3")
    I("s_lshl_b32 s26, s26, 1")
    I("s_add_u32 s26, s26, s27")
    I("s_mul_i32 s27, s26, 20480")
    I("v_lshrrev_b32 v12, 3, v1")
    I("v_and_b32 v11, 7, v1")
    I("v_mul_u32_u24 v13, 0x500, v12")
    I("v_lshl_add_u32 v13, v11, 4, v13")
    I("v_add_u32 v13, s27, v13")
    for rg in range(1, 4): I(f"v_add_u32 v{13+rg}, {rg*10240}, v13")
    I(f"v_mul_u32_u24 v5, {XR}, v12")
    I("v_lshl_add_u32 v5, v11, 4, v5")
    I("v_add_u32 v5, s30, v5")
    I("s_cmp_lt_u32 s3, 4")
    I("s_cbranch_scc1 G1_cons")
    RAW = 64
    def raw(rg, p): return RAW + (p*4 + rg)*4
    I("s_lshl_b32 s27, s26, 7")
    I("v_lshl_add_u32 v7, v12, 3, s27")
    I("s_waitcnt lgkmcnt(0)")
    srd(12, 44, SZ_SD)
    srd(20, 6, S*8, WS_ST)
    for p in range(10):
        for rg in range(4):
            r = raw(rg, p)
            I(f"buffer_load_dwordx4 v[{r}:{r+3}], v{13+rg}, s[12:15], 0 offen offset:{128*p}")
    SM = 24; SS = 32; TT = 40; STA = 48
    for j in range(16): I(f"v_mov_b32 v{SM+j}, 0")
    I("s_mov_b32 s49, 0x3f803f80")
    vq = [("Q", i) for i in range(40)]
    def vwait(pred):
        idxs = [i for i, t in enumerate(vq) if pred(t)]
        if not idxs: return
        idx = max(idxs)
        n = len(vq) - 1 - idx
        assert n <= 63
        I(f"s_waitcnt vmcnt({n})")
        del vq[:idx+1]
    def pdma(st):
        I(f"s_mov_b32 s28, {st*32*3456}")
        for i in range(5):
            if i % 4 == 0: I(f"s_add_u32 m0, s29, {(st % NS)*SL + (i//4)*4096}")
            I(f"buffer_load_dwordx4 v{224+i}, s[8:11], s28 offen offset:{1024*(i%4)} lds")
            vq.append(("D", st))
    I("s_lshl_b32 s27, s25, 1")
    I("s_and_b32 s28, s3, 1")
    I("s_lshl_b32 s28, s28, 4")
    for i in range(5):
        I(f"v_add_u32 v20, {64*i}, v1")
        I("v_mul_u32_u24 v21, 3277, v20")
        I("v_lshrrev_b32 v21, 16, v21")
        I("v_mul_u32_u24 v22, 20, v21")
        I("v_sub_u32 v22, v20, v22")
        I("v_add_u32 v21, s28, v21")
        I("v_bfe_u32 v23, v21, 3, 1")
        I("v_lshlrev_b32 v23, 1, v23")
        I("v_xor_b32 v22, v22, v23")
        I("v_mul_u32_u24 v21, 3456, v21")
        I("v_lshl_add_u32 v21, v22, 4, v21")
        I("v_add_u32 v21, s27, v21")
        I(f"v_subrev_u32 v{224+i}, {1024*(i%4)}, v21")
    I("s_sub_u32 s29, s3, 4")
    I("s_mul_i32 s29, s29, 5120")
    I("s_cmp_ge_u32 s3, 6")
    I("s_cselect_b32 s4, s18, s16")
    I("s_cselect_b32 s5, s19, s17")
    srd(8, 4, SZ_W)
    DSCH = {5: [0], 8: [1], 9: [2]}
    for f_ in FLAGS:
        if f_ == "dsch1": DSCH = {3: [0], 6: [1], 9: [2]}
        if f_ == "dsch2": DSCH = {7: [0], 9: [1, 2]}
        if f_ == "dsch3": DSCH = {-1: [0], 5: [1], 9: [2]}
    for st in DSCH.get(-1, []): pdma(st)
    for p in range(10):
        vwait(lambda t: t[0] == "Q" and t[1] <= 4*p + 3)
        for c in range(4):
            for rg in range(4):
                r = raw(rg, p) + c
                I(f"v_dot2_f32_bf16 v{SM+2*rg+(c&1)}, v{r}, s49, v{SM+2*rg+(c&1)}")
                I(f"v_dot2_f32_bf16 v{SS+2*rg+(c&1)}, v{r}, v{r}, v{SS+2*rg+(c&1)}")
        for st in DSCH.get(p, []): pdma(st)
    I("s_nop 3")
    V8 = [SM+2*rg for rg in range(4)] + [SS+2*rg for rg in range(4)]
    for a in V8: I(f"v_add_f32 v{a}, v{a}, v{a+1}")
    for i_, dpp in enumerate(("quad_perm:[1,0,3,2]", "quad_perm:[2,3,0,1]", "row_half_mirror")):
        sr, ds_ = (0, 1) if i_ % 2 == 0 else (1, 0)
        for a in V8: I(f"v_add_f32_dpp v{a+ds_}, v{a+sr}, v{a+sr} {dpp} row_mask:0xf bank_mask:0xf")
    R4 = range(4)
    for a in V8: I(f"v_mul_f32 v{a}, {1.0/640.0!r}, v{a+1}")
    for rg in R4: I(f"v_fma_f32 v{SS+2*rg}, -v{SM+2*rg}, v{SM+2*rg}, v{SS+2*rg}")
    for rg in R4:
        I(f"v_cvt_pk_bf16_f32 v{STA+2*rg+1}, 0, -v{SM+2*rg}")
        I(f"v_cvt_pk_bf16_f32 v{SS+2*rg}, 0, v{SS+2*rg}")
    for rg in R4: I(f"v_add_f32 v{SS+2*rg}, {1e-5!r}, v{SS+2*rg}")
    for rg in R4: I(f"v_cvt_pk_bf16_f32 v{SS+2*rg}, 0, v{SS+2*rg}")
    for rg in R4: I(f"v_sqrt_f32 v{SS+2*rg}, v{SS+2*rg}")
    I("s_nop 0")
    for rg in R4: I(f"v_cvt_pk_bf16_f32 v{SS+2*rg}, 0, v{SS+2*rg}")
    for rg in R4: I(f"v_rcp_f32 v{STA+2*rg}, v{SS+2*rg}")
    I("s_mov_b32 s50, 0x3f80")
    I("s_mov_b32 s51, 0x3f800000")
    if CN: I(f"ds_write_b64 v8, v[{STA+6}:{STA+7}]")
    def norm_ops(r, R_, M_, tt, wr, fast=False):
        o = []
        if fast:
            for c in range(4):
                o.append(f"v_dot2_f32_bf16 v{tt+2*c}, v{r+c}, s50, v{M_}")
                o.append(f"v_dot2_f32_bf16 v{tt+2*c+1}, v{r+c}, s51, v{M_}")
            for c in range(8): o.append(f"v_cvt_pk_bf16_f32 v{tt+c}, 0, v{tt+c}")
            for c in range(4): o.append(f"v_pk_mul_f32 v[{tt+2*c}:{tt+2*c+1}], v[{tt+2*c}:{tt+2*c+1}], v[{R_}:{R_+1}] op_sel_hi:[1,0]")
        else:
            for c in range(4):
                o.append(f"v_lshlrev_b32 v{tt+2*c}, 16, v{r+c}")
                o.append(f"v_and_b32 v{tt+2*c+1}, 0xffff0000, v{r+c}")
            for c in range(8): o.append(f"v_add_f32 v{tt+c}, v{tt+c}, v{M_}")
            for c in range(8): o.append(f"v_cvt_pk_bf16_f32 v{tt+c}, 0, v{tt+c}")
            for c in range(8): o.append(f"v_mul_f32 v{tt+c}, v{tt+c}, v{R_}")
        for c in range(4): o.append(f"v_cvt_pk_bf16_f32 v{r+c}, v{tt+2*c}, v{tt+2*c+1}")
        o.append(wr)
        return o
    def hnorm(p, rgs, fast=False):
        o = []
        for rg in rgs:
            r = raw(rg, p)
            o += norm_ops(r, STA + 2*rg, STA + 2*rg + 1, TT, f"ds_write_b128 v5, v[{r}:{r+3}] offset:{(p & 1)*XP + rg*8*XR}", fast)
        return o
    HST = "hst" in FLAGS
    hn = [0]
    def hstamp(k):
        if HST and k in (12, 13):
            I(f"s_memtime s[{60+2*hn[0]}:{61+2*hn[0]}]"); hn[0] += 1
    for k in range(NST):
        hstamp(k)
        if k == 0:
            for x in hnorm(0, (0, 1, 2, 3), fast=True): I(x)
            pdma(3); pdma(4)
        else:
            dl = []
            if k >= 2 and k - 2 + DWP < NST:
                st = k - 2 + DWP
                for i in range(5):
                    pre = [f"s_mov_b32 s28, {st*32*3456}"] if i == 0 else []
                    if i % 4 == 0: pre.append(f"s_add_u32 m0, s29, {(st % NS)*SL + (i//4)*4096}")
                    dl.append(pre + [f"buffer_load_dwordx4 v{224+i}, s[8:11], s28 offen offset:{1024*(i%4)} lds"])
                    vq.append(("D", st))
            hstamp(k)
            p = (k-1)//2 + 1
            o = []
            if p < 10:
                o = hnorm(p, (0, 1, 2) if (CN and p >= 2) else (0, 1, 2, 3))
                h = len(o)//2
                o = (o[:h] if (k-1) % 2 == 0 else o[h:])
            stepd = max(1, len(o)//5)
            for i_, x in enumerate(o):
                if i_ % stepd == 0 and dl:
                    for y in dl.pop(0): I(y)
                I(x)
            for d_ in dl:
                for y in d_: I(y)
        if k == 1:
            for rg in R4:
                I(f"buffer_store_dwordx2 v[{STA+2*rg}:{STA+2*rg+1}], v7, s[20:23], 0 offen offset:{64*rg}")
                vq.append(("S", rg))
        hstamp(k)
        vwait(lambda t: t == ("D", k))
        hstamp(k)
        I("s_waitcnt lgkmcnt(0)")
        hstamp(k)
        I("s_barrier")
    if HST:
        I("s_waitcnt lgkmcnt(0) vmcnt(0)")
        I("s_cmp_lg_u32 s2, 5")
        I("s_cbranch_scc1 HS_skip")
        I("s_cmp_lg_u32 s3, 4")
        I("s_cbranch_scc1 HS_skip")
        I("s_load_dwordx2 s[56:57], s[0:1], 88")
        I("s_waitcnt lgkmcnt(0)")
        I("s_mov_b32 s58, 256")
        I("s_mov_b32 s59, 0x00020000")
        I("v_mov_b32 v1, 0")
        for i in range(hn[0]):
            I(f"s_sub_u32 s{61+2*i}, s{60+2*i}, s60")
            I(f"v_mov_b32 v2, s{61+2*i}")
            I(f"buffer_store_dword v2, v1, s[56:59], 0 offen offset:{128+4*i}")
        I("s_waitcnt vmcnt(0)")
        e("HS_skip:")
    I("s_endpgm")
    e("G1_cons:")
    BB = 24; AF = 56; ACC = 80; LA = 2
    CR_ = 72; CT = 240; CS = 248
    I("v_mov_b32 v250, v16")
    I(f"v_add_u32 v251, {24*XR}, v5")
    I("v_mov_b32 v252, v8")
    I("s_load_dwordx2 s[4:5], s[0:1], 72")
    CSL = 48
    for f_ in FLAGS:
        if f_.startswith("csl"): CSL = int(f_[3:])
    if CSL: I(f"s_sleep {CSL}")
    I("s_waitcnt lgkmcnt(0)")
    srd(12, 44, SZ_SD)
    I("s_cmp_ge_u32 s3, 2")
    I("s_cbranch_scc1 G1_cpf")
    I("s_mul_i32 s46, s3, 176")
    I("s_add_u32 s46, s46, s47")
    I("s_cmp_ge_u32 s46, 270")
    I("s_cbranch_scc1 G1_cgo")
    I("s_mul_i32 s36, s46, 0xCCCD")
    I("s_lshr_b32 s36, s36, 19")
    I("s_mul_i32 s37, s36, 10")
    I("s_sub_u32 s37, s46, s37")
    I("v_and_b32 v23, 7, v0")
    I("v_bfe_u32 v17, v0, 3, 2")
    I("v_bfe_u32 v18, v0, 5, 1")
    I("s_lshl_b32 s37, s37, 6")
    I("v_lshl_add_u32 v23, v23, 3, s37")
    I("s_lshl_b32 s36, s36, 1")
    I("v_add_u32 v18, s36, v18")
    I("v_lshlrev_b32 v19, 5, v18")
    I("v_lshl_add_u32 v19, v17, 2, v19")
    I("v_mul_u32_u24 v20, 0x500, v19")
    I("v_lshl_add_u32 v20, v23, 1, v20")
    I("v_add_u32 v21, 0x5000, v20")
    srd(8, 4, SZ_W)
    srd(32, 6, SZ_W, WS_WDT)
    for i in range(8):
        b = 20 if i < 4 else 21
        I(f"buffer_load_dwordx4 v[{ACC+4*i}:{ACC+3+4*i}], v{b}, s[8:11], 0 offen offset:{(i%4)*1280}")
    I("s_mov_b32 s36, 0x05040100")
    I("s_mov_b32 s37, 0x07060302")
    I("v_lshrrev_b32 v22, 4, v23")
    I("v_mul_u32_u24 v22, 54, v22")
    I("v_add_u32 v22, v22, v18")
    I("v_lshlrev_b32 v22, 10, v22")
    I("v_lshl_add_u32 v22, v17, 8, v22")
    I("v_and_b32 v19, 15, v23")
    I("v_lshl_add_u32 v22, v19, 4, v22")
    I("s_waitcnt vmcnt(0)")
    for dd in range(8):
        ob = ACC + 32 + 4*dd
        sel = 36 + (dd & 1)
        for q in range(4):
            I(f"v_perm_b32 v{ob+q}, v{ACC+4*(2*q+1)+dd//2}, v{ACC+4*(2*q)+dd//2}, s{sel}")
    for dd in range(8):
        ob = ACC + 32 + 4*dd
        I(f"buffer_store_dwordx4 v[{ob}:{ob+3}], v22, s[32:35], 0 offen offset:{16*dd}")
    I("s_waitcnt vmcnt(0)")
    I("s_branch G1_cgo")
    e("G1_cpf:")
    if "nopfm" not in FLAGS:
        I("s_cmp_ge_u32 s3, 3")
        I("s_cselect_b32 s8, s18, s16")
        I("s_cselect_b32 s9, s19, s17")
        I("s_mul_i32 s27, s47, 12800")
        I(f"s_mov_b32 s10, {SZ_W}")
        I("s_mov_b32 s11, 0x00020000")
        I("v_lshlrev_b32 v17, 4, v1")
        for i in range(13):
            I(f"buffer_load_dwordx4 v[{ACC+4*i}:{ACC+3+4*i}], v17, s[8:11], s27 offen")
            I("s_add_u32 s27, s27, 1024")
        I("s_waitcnt vmcnt(0)")
    e("G1_cgo:")
    I("s_and_b32 s31, s3, 1")
    I("s_lshr_b32 s33, s3, 1")
    I("s_lshl_b32 s27, s24, 3")
    I("s_lshl_b32 s26, s31, 2")
    I("s_add_u32 s26, s26, s27")
    I("s_mul_i32 s27, s26, 55296")
    I("v_lshl_add_u32 v9, v1, 4, s27")
    I("v_bfe_u32 v17, v0, 4, 2")
    I("v_and_b32 v18, 15, v0")
    I(f"v_mul_u32_u24 v6, {XR}, v18")
    I("v_lshl_add_u32 v6, v17, 4, v6")
    I(f"s_mul_i32 s30, s31, {64*XR}")
    I(f"s_add_u32 s30, s30, {XB}")
    I("v_add_u32 v6, s30, v6")
    I("v_bfe_u32 v18, v0, 2, 2")
    I("v_lshl_add_u32 v19, v17, 3, v18")
    I(f"v_mul_u32_u24 v19, {RS}, v19")
    I("v_and_b32 v18, 3, v0")
    I("v_lshl_add_u32 v19, v18, 3, v19")
    I("s_mul_i32 s27, s33, 160")
    I("v_add_u32 v19, s27, v19")
    I("v_and_b32 v20, 1, v17")
    I("v_lshlrev_b32 v20, 5, v20")
    I("s_lshl_b32 s27, s33, 1")
    I("s_sub_u32 s27, 1, s27")
    I("v_mul_lo_u32 v20, v20, s27")
    I("v_add_u32 v11, v19, v20")
    I("v_sub_u32 v12, v19, v20")
    I(f"v_add_u32 v13, {3*SL}, v11")
    I(f"v_add_u32 v14, {3*SL}, v12")
    srd(20, 6, SZ_H, WS_H)
    for f_ in FLAGS:
        if f_.startswith("la"): LA = int(f_[2:])
    def acc(m, j, js): return ACC + ((m*5 + j)*4 + js)*4
    seq = [(m, j) for m in range(2) for j in range(5)]
    NQ = len(seq)
    dq = []
    def dwait(tags):
        idxs = [i for i, t in enumerate(dq) if t in tags]
        if not idxs: return
        idx = max(idxs); n = len(dq) - 1 - idx
        assert n <= 15
        I(f"s_waitcnt lgkmcnt({n})")
        del dq[:idx+1]
    def rdx(gpos):
        st, idx = divmod(gpos, NQ)
        m, j = seq[idx]
        slot = st % NS
        a = AF + (gpos % 4)*4
        va = 11 + 2*(slot // 3) + (j & 1)
        off = (slot % 3)*SL + m*MS + j*32
        return [f"ds_read_b64_tr_b16 v[{a}:{a+1}], v{va} offset:{off}",
                f"ds_read_b64_tr_b16 v[{a+2}:{a+3}], v{va} offset:{off+4*RS}"]
    def xrd(st, js):
        b = BB + (st & 1)*16 + js*4
        I(f"ds_read_b128 v[{b}:{b+3}], v6 offset:{((st >> 1) & 1)*XP + js*16*XR + (st & 1)*64}")
        dq.append(("X", st))
    def cld(P):
        r = CR_ + (P & 1)*4
        I(f"buffer_load_dwordx4 v[{r}:{r+3}], v250, s[12:15], 0 offen offset:{128*P}")
    if CN: cld(2); cld(3)
    stamp()
    I("s_barrier")
    stamp()
    for js in range(4): xrd(0, js)
    if CN:
        I(f"ds_read_b64 v[{CS}:{CS+1}], v252"); dq.append(("X", 0))
    for i in range(LA):
        for x in rdx(i): I(x); dq.append(("A", i))
    for st in range(NST):
        cw = []
        if CN and st >= 1:
            P = (st + 3)//2
            if 2 <= P <= 9:
                r = CR_ + (P & 1)*4
                o = norm_ops(r, CS, CS+1, CT, f"ds_write_b128 v251, v[{r}:{r+3}] offset:{(P & 1)*XP}")
                h = len(o)//2
                cw = o[:h] if st == 2*P - 3 else o[h:]
                if st == 2*P - 3: cw = [f"s_waitcnt vmcnt({1 if P < 9 else 0})"] + cw
                elif P + 2 <= 9: cw = cw + [("L", P + 2)]
        if st + 1 < NST:
            dwait([("XW", 0)])
            I("s_barrier")
        if "stamp3" in FLAGS and st in (1, 5, 10): stamp()
        nslot = 24
        for idx in range(NQ):
            gpos = st*NQ + idx
            rr = rdx(gpos + LA) if gpos + LA < NST*NQ else None
            dwait([("A", gpos), ("X", st)])
            m, j = seq[idx]
            a = AF + (gpos % 4)*4
            for js in range(4):
                c = acc(m, j, js); b = BB + (st & 1)*16 + js*4
                cc = "0" if st == 0 else f"v[{c}:{c+3}]"
                I(f"v_mfma_f32_16x16x32_bf16 v[{c}:{c+3}], v[{a}:{a+3}], v[{b}:{b+3}], {cc}")
                if rr and js < 2: I(rr[js]); dq.append(("A", gpos + LA))
                if js == 2 and st + 1 < NST and 1 <= idx <= 4: xrd(st + 1, idx - 1)
                if js >= 1 and cw:
                    x = cw.pop(0)
                    if isinstance(x, tuple): cld(x[1])
                    else:
                        I(x)
                        if x.startswith("ds_write"): dq.append(("XW", 0))
                        if x.startswith("s_waitcnt") and cw: I(cw.pop(0))
        assert not cw
    stamp()
    I("s_lshr_b32 s34, s25, 5")
    I("s_lshl_b32 s34, s34, 10")
    I("s_nop 7")
    I("s_nop 3")
    cnt = [0]
    def hq(j, js, dst, t):
        g = acc(0, j, js); u = acc(1, j, js)
        I(f"v_cvt_pk_bf16_f32 v{t}, v{g}, v{g+1}")
        I(f"v_cvt_pk_bf16_f32 v{t+1}, v{g+2}, v{g+3}")
        I(f"v_cvt_pk_bf16_f32 v{t+2}, v{u}, v{u+1}")
        I(f"v_cvt_pk_bf16_f32 v{t+3}, v{u+2}, v{u+3}")
        lo16(g, t); hi16(g+1, t); lo16(g+2, t+1); hi16(g+3, t+1)
        lo16(u, t+2); hi16(u+1, t+2); lo16(u+2, t+3); hi16(u+3, t+3)
        for r in range(4):
            I(f"v_mul_f32 v{g+r}, v{g+r}, v{u+r}")
        I(f"v_cvt_pk_bf16_f32 v{dst}, v{g}, v{g+1}")
        I(f"v_cvt_pk_bf16_f32 v{dst+1}, v{g+2}, v{g+3}")
    def epi(fq):
        units = [((0, 1), 0, 0), ((2, 3), 1, 0), ((4,), 2, 0)] if fq == 0 else [((0,), 2, 8), ((1, 2), 3, 0), ((3, 4), 4, 0)]
        for js in range(4):
            I(f"s_add_u32 s35, s34, {js*55296}")
            I(f"s_add_u32 s36, s34, {js*55296 + 4096}")
            for (jl, blk, ho) in units:
                t = 24 + (cnt[0] % 4) * 12; cnt[0] += 1
                for hh, j in enumerate(jl): hq(j, js, t+4+2*hh, t)
                so, off = ("s35", 1024*blk + ho) if blk < 4 else ("s36", ho)
                if len(jl) == 2:
                    I(f"buffer_store_dwordx4 v[{t+4}:{t+7}], v9, s[20:23], {so} offen offset:{off}")
                else:
                    I(f"buffer_store_dwordx2 v[{t+4}:{t+5}], v9, s[20:23], {so} offen offset:{off}")
    I("s_cmp_eq_u32 s33, 0")
    I("s_cbranch_scc0 G1_epi1")
    epi(0)
    I("s_branch G1_epid")
    e("G1_epi1:")
    epi(1)
    e("G1_epid:")
    if STAMP: I("s_waitcnt vmcnt(0)")
    stamp()
    stamp_dump(5)
    wgt_end(1)
    I("s_endpgm")

def g1_epi(NF, acc):
    I("s_lshr_b32 s34, s25, 5")
    I("s_lshl_b32 s34, s34, 10")
    I("s_add_u32 s35, s34, 4096")
    I("s_nop 7")
    I("s_nop 3")
    for js in range(2):
        for jp in range(NF//2):
            t = 24 + ((js*5 + jp) % 4) * 12
            for hh in range(2):
                jf = 2*jp + hh
                g = acc(0, jf, js); u = acc(1, jf, js)
                I(f"v_cvt_pk_bf16_f32 v{t}, v{g}, v{g+1}")
                I(f"v_cvt_pk_bf16_f32 v{t+1}, v{g+2}, v{g+3}")
                I(f"v_cvt_pk_bf16_f32 v{t+2}, v{u}, v{u+1}")
                I(f"v_cvt_pk_bf16_f32 v{t+3}, v{u+2}, v{u+3}")
                lo16(g, t); hi16(g+1, t); lo16(g+2, t+1); hi16(g+3, t+1)
                lo16(u, t+2); hi16(u+1, t+2); lo16(u+2, t+3); hi16(u+3, t+3)
                for r in range(4):
                    I(f"v_mul_f32 v{g+r}, v{g+r}, v{u+r}")
                I(f"v_cvt_pk_bf16_f32 v{t+4+2*hh}, v{g}, v{g+1}")
                I(f"v_cvt_pk_bf16_f32 v{t+5+2*hh}, v{g+2}, v{g+3}")
            if jp < 4:
                I(f"buffer_store_dwordx4 v[{t+4}:{t+7}], v{9+js}, s[20:23], s34 offen offset:{1024*jp}")
            else:
                I(f"buffer_store_dwordx4 v[{t+4}:{t+7}], v{9+js}, s[20:23], s35 offen")
    if STAMP: I("s_waitcnt vmcnt(0)")
    stamp()
    stamp_dump(5)
    wgt_end(1)
    I("s_endpgm")

def gen_k2():
    kernel_header("mid_kernel")
    if BIG:
        I("s_cmp_ge_u32 s2, 256")
        I("s_cbranch_scc1 M_exit")
        wgt_start()
        I("s_load_dwordx2 s[6:7], s[0:1], 96")
        I("v_lshrrev_b32 v1, 6, v0")
        I("s_nop 0")
        I("v_readfirstlane_b32 s3, v1")
        I("s_lshr_b32 s40, s2, 3")
        I("s_bfe_u32 s41, s2, 0x10002")
        I("s_and_b32 s42, s2, 3")
        I("s_lshl_b32 s43, s41, 2")
        I("s_sub_u32 s43, 24, s43")
        if XL:
            I("s_and_b32 s42, s2, 7")
            I("s_mov_b32 s43, 22")
            I("s_mov_b32 s41, 1")
        if "kvall" in FLAGS:
            I("s_and_b32 s8, s3, 1")
            I("s_lshl_b32 s8, s8, 3")
            I("s_add_u32 s8, s8, 8")
            I("s_load_dwordx2 s[8:9], s[0:1], s8")
            I("s_lshr_b32 s12, s3, 1")
            I("s_cmp_gt_u32 s12, s41")
            I("s_cbranch_scc1 M_nokvpf")
            if XL:
                I("s_mul_i32 s13, s42, 160")
                I("s_and_b32 s13, s13, 0xffffff80")
            else:
                I("s_mul_i32 s13, s42, 192")
                I("s_add_u32 s13, s13, 512")
                I("s_and_b32 s13, s13, 0xffffff80")
                I("s_lshl_b32 s14, s42, 7")
                I("s_cmp_eq_u32 s41, 0")
                I("s_cselect_b32 s13, s14, s13")
            I("s_lshl_b32 s12, s12, 7")
            I("s_add_u32 s13, s13, s12")
            I("s_mul_i32 s12, s40, 81920")
            I("s_add_u32 s13, s13, s12")
            I("v_and_b32 v1, 63, v0")
            I("v_mul_u32_u24 v1, 0x500, v1")
            I(f"s_mov_b32 s10, {SZ_SD}")
            I("s_mov_b32 s11, 0x00020000")
            I("s_waitcnt lgkmcnt(0)")
            for f_ in FLAGS:
                if f_.startswith("kvd"): I(f"s_sleep {int(f_[3:])}")
            I("buffer_load_dword v255, v1, s[8:11], s13 offen")
            e("M_nokvpf:")
            I("s_waitcnt lgkmcnt(0)")
        I("s_cmp_ge_u32 s40, s43")
        I("s_cbranch_scc1 M_conv")
        if "nog1" in FLAGS: I("s_endpgm")
        I("s_mul_i32 s24, s42, s43")
        I("s_add_u32 s24, s24, s40")
        if not XL:
            I("s_mul_i32 s25, s41, 96")
            I("s_add_u32 s24, s24, s25")
        W0 = 6 if "prod" in FLAGS else 4
        if FUSE:
            stamp()
            I("s_load_dwordx4 s[16:19], s[0:1], 56")
            I("s_load_dwordx2 s[44:45], s[0:1], 0")
            I("s_mov_b32 s47, s24")
        I(f"s_sub_u32 s25, s3, {W0}")
        I("s_mul_i32 s25, s25, 176")
        I("s_add_u32 s24, s24, s25")
        if FUSE:
            I("s_mov_b32 s46, s24")
        else:
            I(f"s_cmp_ge_u32 s3, {W0}")
            I("s_cbranch_scc1 M_wdt")
        I("s_lshl_b32 s24, s42, 2")
        I("s_and_b32 s25, s40, 3")
        I("s_add_u32 s24, s24, s25")
        I("s_mul_i32 s25, s41, 6")
        I("s_lshr_b32 s26, s40, 2")
        I("s_add_u32 s25, s25, s26")
        if XL:
            I("s_lshl_b32 s24, s42, 1")
            I("s_and_b32 s25, s40, 1")
            I("s_add_u32 s24, s24, s25")
            I("s_lshr_b32 s25, s40, 1")
        if FUSE and "g1b" in FLAGS: gen_g1b()
        elif FUSE and "f2" in FLAGS: gen_g1f2()
        elif FUSE: gen_g1fuse()
        else: gen_g1big()
    else:
        gen_g1old()
    gen_aux()

def gen_g1old():
    I(f"s_cmp_ge_u32 s2, {N_G1+N_CV}")
    I("s_cbranch_scc1 M_exit")
    I("s_load_dwordx2 s[6:7], s[0:1], 96")
    I(f"s_cmp_ge_u32 s2, {N_G1}")
    I("s_cbranch_scc1 M_conv")
    if "nog1" in FLAGS: I("s_endpgm")
    stamp()
    if "prio" in FLAGS: I("s_setprio 3")
    I("s_load_dwordx4 s[16:19], s[0:1], 56")
    I("v_lshrrev_b32 v1, 6, v0")
    I("s_nop 0")
    I("v_readfirstlane_b32 s3, v1")
    I("s_waitcnt lgkmcnt(0)")
    if "stamp2" in FLAGS: stamp()
    I("s_cmp_ge_u32 s3, 2")
    I("s_cselect_b32 s4, s18, s16")
    I("s_cselect_b32 s5, s19, s17")
    srd(8, 4, SZ_W)
    srd(12, 6, SZ_SD, WS_XN)
    srd(20, 6, SZ_H, WS_H)
    if "g12d" in FLAGS:
        I("s_and_b32 s24, s2, 3")
        I("s_lshl_b32 s24, s24, 2")
        I("s_bfe_u32 s25, s2, 0x20003")
        I("s_add_u32 s24, s24, s25")
        I("s_bfe_u32 s25, s2, 0x10002")
        I("s_lshl_b32 s25, s25, 3")
        I("s_lshr_b32 s26, s2, 5")
        I("s_add_u32 s25, s25, s26")
    else:
        I("s_and_b32 s24, s2, 15")
        I("s_lshr_b32 s25, s2, 4")
    I(f"s_mul_i32 s25, s25, {BF}")
    I(f"s_min_u32 s25, s25, {F-BF}")
    I("v_and_b32 v1, 63, v0")
    if "pf" in FLAGS:
        I("s_lshr_b32 s26, s2, 3")
        I("s_lshl_b32 s27, s26, 1")
        I("s_and_b32 s28, s3, 1")
        I("s_add_u32 s27, s27, s28")
        I("s_mul_i32 s27, s27, 34560")
        I("s_bfe_u32 s28, s2, 0x10002")
        I("s_mul_i32 s28, s28, 1792")
        I("s_add_u32 s27, s27, s28")
        I("v_lshrrev_b32 v192, 5, v1")
        I("v_mul_u32_u24 v192, 3456, v192")
        I("v_and_b32 v193, 31, v1")
        I("v_lshl_add_u32 v192, v193, 6, v192")
        I("v_add_u32 v192, s27, v192")
        for i in range(5):
            I(f"s_mov_b32 s27, {i*6912}")
            I(f"buffer_load_dword v{194+i}, v192, s[8:11], s27 offen")
        I("s_and_b32 s27, s2, 3")
        I("s_mul_i32 s27, s27, 655360")
        I("s_lshl_b32 s28, s26, 2")
        I("s_add_u32 s28, s28, s3")
        I("s_mul_i32 s28, s28, 5120")
        I("s_add_u32 s27, s27, s28")
        I("v_lshlrev_b32 v193, 6, v1")
        I("buffer_load_dword v199, v193, s[12:15], s27 offen")
        I("buffer_load_dword v200, v193, s[12:15], s27 offen offset:1024")
    I("v_lshrrev_b32 v10, 4, v1")
    I("v_bfe_u32 v11, v1, 1, 3")
    I("v_and_b32 v12, 1, v1")
    I("s_and_b32 s26, s3, 1")
    I("s_lshl_b32 s26, s26, 4")
    I("s_lshl_b32 s27, s25, 1")
    for i in range(4):
        bit = (i >> 1) & 1
        I(f"v_or_b32 v13, {bit<<2}, v10")
        I("v_xor_b32 v13, v13, v11")
        I(f"v_add_u32 v14, {4*i}, v10")
        I("v_add_u32 v14, s26, v14")
        I("v_mul_u32_u24 v14, 3456, v14")
        I("v_lshl_add_u32 v14, v13, 5, v14")
        I("v_lshl_add_u32 v14, v12, 4, v14")
        I("v_add_u32 v14, s27, v14")
        I(f"v_subrev_u32 v14, {1024*i}, v14")
        I("v_cmp_eq_u32 vcc, 7, v13")
        I("v_mov_b32 v15, 0x40000000")
        I("s_nop 0")
        I(f"v_cndmask_b32 v{2+i}, v14, v15, vcc")
    I("v_bfe_u32 v17, v0, 4, 2")
    I("s_lshl_b32 s26, s24, 3")
    I("s_lshl_b32 s27, s3, 1")
    I("s_add_u32 s26, s26, s27")
    I("s_mul_i32 s27, s26, 20480")
    I("v_lshl_add_u32 v6, v1, 4, s27")
    I("v_add_u32 v7, 20480, v6")
    I("s_mul_i32 s27, s26, 55296")
    I("v_lshl_add_u32 v8, v1, 4, s27")
    I("v_add_u32 v9, 55296, v8")
    I("v_bfe_u32 v18, v0, 2, 2")
    I("v_lshl_add_u32 v19, v17, 3, v18")
    I("v_lshlrev_b32 v19, 8, v19")
    I("v_and_b32 v20, 1, v17")
    I("v_lshl_or_b32 v20, v20, 2, v18")
    I("v_lshl_add_u32 v19, v20, 5, v19")
    I("v_and_b32 v18, 3, v0")
    I("v_lshl_add_u32 v19, v18, 3, v19")
    VA = 10
    I("v_mov_b32 v24, v19")
    for jf in range(7):
        I(f"v_xor_b32 v{VA+jf}, {jf<<5}, v24")
        I(f"v_add_u32 v{VA+7+jf}, 0x10000, v{VA+jf}")
    I("s_lshl_b32 s29, s3, 12")
    BB = 24
    AF = 64
    ACC = 80
    def acc(m, jf, js): return ACC + ((m*7 + jf)*2 + js)*4
    def bfr(st, js): return BB + (st % NSLOT)*8 + js*4
    NST = 20
    def issue(slot):
        I(f"s_add_u32 s30, s29, {slot*SLOT}")
        I("s_mov_b32 m0, s30")
        for i in range(4):
            I(f"buffer_load_dwordx4 v{2+i}, s[8:11], s28 offen offset:{1024*i} lds")
        for js in range(2):
            r = BB + slot*8 + js*4
            I(f"buffer_load_dwordx4 v[{r}:{r+3}], v{6+js}, s[12:15], s31 offen")
        I("s_add_u32 s36, s36, 1")
        I("s_cmp_ge_u32 s36, 20")
        I("s_cselect_b32 s36, 0, s36")
        I("s_add_u32 s37, s37, 1")
        I(f"s_mul_i32 s28, s36, {32*3456}")
        I("s_lshl_b32 s31, s36, 10")
        I("s_cmp_ge_u32 s37, 20")
        I("s_cselect_b32 s28, 0x40000000, s28")
        I("s_cselect_b32 s31, 0x40000000, s31")
    if "rot" in FLAGS:
        I("s_and_b32 s36, s24, 3")
        I("s_mul_i32 s36, s36, 5")
        I("s_lshr_b32 s37, s2, 5")
        I("s_mul_i32 s37, s37, 3")
        I("s_add_u32 s36, s36, s37")
        I("s_cmp_ge_u32 s36, 20")
        I("s_cselect_b32 s37, 20, 0")
        I("s_sub_u32 s36, s36, s37")
    else:
        I("s_mov_b32 s36, 0")
    I("s_mov_b32 s37, 0")
    I(f"s_mul_i32 s28, s36, {32*3456}")
    I("s_lshl_b32 s31, s36, 10")
    if "stamp2" in FLAGS: stamp()
    for st in range(NSLOT - 1):
        issue(st)
    if "stamp2" in FLAGS: stamp()
    for j in range(112):
        I(f"v_mov_b32 v{ACC+j}, 0")
    I("s_mov_b32 s33, 0")
    stamp()
    def body(last):
      for slot in range(NSLOT):
        if not last or slot <= 1:
            I(f"s_waitcnt vmcnt({6*(NSLOT-2)})")
        else:
            I(f"s_waitcnt vmcnt({6*(NSLOT-1-slot)})")
        I("s_barrier")
        if not last or slot == 0:
            issue((slot + NSLOT - 1) % NSLOT)
        seq = [(m, jf) for m in range(2) for jf in range(7)]
        def rd(idx):
            m, jf = seq[idx]
            a = AF + (idx % 4)*4
            if slot < 4:
                va = VA + jf; off = slot*SLOT + m*8192
            else:
                va = VA + 7 + jf; off = m*8192
            I(f"ds_read_b64_tr_b16 v[{a}:{a+1}], v{va} offset:{off}")
            I(f"ds_read_b64_tr_b16 v[{a+2}:{a+3}], v{va} offset:{off+1024}")
        for i in range(3):
            rd(i)
        for idx in range(14):
            if idx + 3 < 14:
                rd(idx + 3)
                I("s_waitcnt lgkmcnt(6)")
            else:
                I(f"s_waitcnt lgkmcnt({2*(13-idx)})")
            m, jf = seq[idx]
            a = AF + (idx % 4)*4
            for js in range(2):
                c = acc(m, jf, js); b = BB + slot*8 + js*4
                I(f"v_mfma_f32_16x16x32_bf16 v[{c}:{c+3}], v[{a}:{a+3}], v[{b}:{b+3}], v[{c}:{c+3}]")
    XS = "xs" in FLAGS
    LA = 3
    for f in FLAGS:
        if f.startswith("la"): LA = int(f[2:])
    RING = [64,68,72,76,192,196,200] if LA > 3 else [64,68,72,76,192]
    seq = [(m, jf) for m in range(2) for jf in range(7)]
    ring = [0]
    def rdx(slot, idx, pos):
        m, jf = seq[idx]
        a = RING[pos % len(RING)]
        if slot < 4:
            va = VA + jf; off = slot*SLOT + m*8192
        else:
            va = VA + 7 + jf; off = m*8192
        return [f"ds_read_b64_tr_b16 v[{a}:{a+1}], v{va} offset:{off}",
                f"ds_read_b64_tr_b16 v[{a+2}:{a+3}], v{va} offset:{off+1024}"]
    def body_xs(last):
      for slot in range(NSLOT):
        fin_stage = last and slot == NSLOT-1
        if not fin_stage:
            if not last or slot <= 1:
                I("s_waitcnt vmcnt(12)")
            else:
                I(f"s_waitcnt vmcnt({6*(NSLOT-2-slot)})")
            if "g1nobar" not in FLAGS: I("s_barrier")
        if (not last or slot == 0) and "g1noload" not in FLAGS:
            issue((slot + NSLOT - 1) % NSLOT)
        for idx in range(14 if "g1nocomp" not in FLAGS else 0):
            pos = idx + 14*slot
            if idx + LA < 14:
                rr = rdx(slot, idx + LA, pos + LA)
            elif not fin_stage:
                rr = rdx((slot + 1) % NSLOT, idx + LA - 14, pos + LA)
            else:
                rr = None
            I(f"s_waitcnt lgkmcnt({2*(LA-1) if not fin_stage else 2*min(LA-1, 13-idx)})")
            m, jf = seq[idx]
            a = RING[pos % len(RING)]
            for js in range(2):
                c = acc(m, jf, js); b = BB + slot*8 + js*4
                I(f"v_mfma_f32_16x16x32_bf16 v[{c}:{c+3}], v[{a}:{a+3}], v[{b}:{b+3}], v[{c}:{c+3}]")
                if rr: I(rr[js])
    if XS:
        I("s_waitcnt vmcnt(18)")
        I("s_barrier")
        for i in range(LA):
            for x in rdx(0, i, i): I(x)
    e("G1_loop:")
    (body_xs if XS else body)(False)
    I("s_add_u32 s33, s33, 1")
    I(f"s_cmp_lt_u32 s33, {NST//NSLOT - 1}")
    I("s_cbranch_scc1 G1_loop")
    (body_xs if XS else body)(True)
    stamp()
    I("s_waitcnt vmcnt(0)")
    I("s_nop 7")
    I("s_nop 3")
    T = 24
    for js in range(2):
        for jf in range(7):
            g = acc(0, jf, js); u = acc(1, jf, js)
            t = T + ((js*7 + jf) % 4) * 8
            I(f"v_cvt_pk_bf16_f32 v{t}, v{g}, v{g+1}")
            I(f"v_cvt_pk_bf16_f32 v{t+1}, v{g+2}, v{g+3}")
            I(f"v_cvt_pk_bf16_f32 v{t+2}, v{u}, v{u+1}")
            I(f"v_cvt_pk_bf16_f32 v{t+3}, v{u+2}, v{u+3}")
            lo16(g, t); hi16(g+1, t); lo16(g+2, t+1); hi16(g+3, t+1)
            lo16(u, t+2); hi16(u+1, t+2); lo16(u+2, t+3); hi16(u+3, t+3)
            for r in range(4):
                I(f"v_mul_f32 v{g+r}, v{g+r}, v{u+r}")
            I(f"v_cvt_pk_bf16_f32 v{t+4}, v{g}, v{g+1}")
            I(f"v_cvt_pk_bf16_f32 v{t+5}, v{g+2}, v{g+3}")
            I(f"s_add_u32 s34, s25, {16*jf}")
            I("s_lshr_b32 s35, s34, 5")
            I("s_lshl_b32 s35, s35, 10")
            I("s_and_b32 s34, s34, 16")
            I("s_lshr_b32 s34, s34, 1")
            I("s_add_u32 s35, s35, s34")
            I(f"buffer_store_dwordx2 v[{t+4}:{t+5}], v{8+js}, s[20:23], s35 offen")
    I("s_waitcnt vmcnt(0)")
    stamp()
    stamp_dump(5)
    I("s_endpgm")

def gen_aux():
    e("M_conv:")
    if "noconv" in FLAGS: I("s_endpgm")
    XREG = 7680; CST = 576 if "cst" in FLAGS else 800; HBUF = 8*CST; WREG = 20480
    CMG = "cmg" in FLAGS
    if CMG: CST = 320; HBUF = 16*CST; HHI = 8*CST
    CM4 = "cm4" in FLAGS
    if CM4: HBUF = 8*CST; HHI = 4*CST
    stamp()
    I("s_load_dwordx4 s[16:19], s[0:1], 32")
    if FUSE:
        I("s_load_dwordx4 s[44:47], s[0:1], 8")
        I("s_load_dwordx2 s[48:49], s[0:1], 24")
    if BIG:
        I("s_sub_u32 s24, 32, s43")
        I("s_mul_i32 s24, s24, s42")
        I("s_add_u32 s24, s24, s40")
        I("s_sub_u32 s24, s24, s43")
        if not XL:
            I("s_lshl_b32 s25, s41, 5")
            I("s_add_u32 s24, s24, s25")
        I("s_lshl_b32 s24, s24, 3")
        I("s_add_u32 s24, s24, s3")
    else:
        I("v_lshrrev_b32 v1, 6, v0")
        I("s_nop 0")
        I("v_readfirstlane_b32 s3, v1")
        I(f"s_sub_u32 s25, s2, {N_G1}")
        I("s_cmp_ge_u32 s25, 128")
        I("s_cbranch_scc1 M_aux_hi")
        I("s_mov_b32 s24, s25")
        I("s_cmp_eq_u32 s3, 3")
        I("s_cbranch_scc1 M_wdt")
        I("s_mul_i32 s24, s25, 3")
        I("s_add_u32 s24, s24, s3")
        I("s_branch M_conv2")
        e("M_aux_hi:")
        I("s_sub_u32 s25, s25, 128")
        I("s_lshl_b32 s25, s25, 1")
        I("s_add_u32 s24, s25, s3")
        I("s_add_u32 s24, s24, 126")
        I("s_cmp_ge_u32 s3, 2")
        I("s_cbranch_scc1 M_wdt")
        I("s_add_u32 s24, s25, s3")
        I("s_add_u32 s24, s24, 384")
    e("M_conv2:")
    I("s_waitcnt lgkmcnt(0)")
    if "cst2" in FLAGS: stamp()
    srd(8, 16, SZ_SD)
    if FUSE:
        I("s_sub_u32 s25, s24, s3")
        I("s_lshl_b32 s25, s25, 3")
        I("s_load_dwordx16 s[84:99], s[48:49], s25")
        srd(32, 44, SZ_SD)
        srd(36, 46, SZ_SD)
    else:
        srd(12, 6, SZ_SD, WS_KVR)
    srd(20, 6, SZ_SD, WS_YT)
    I("s_lshr_b32 s25, s24, 1")
    I("s_lshl_b32 s25, s25, 2")
    I("s_load_dword s26, s[18:19], s25")
    I("v_and_b32 v1, 63, v0")
    I("s_lshl_b32 s27, s24, 12")
    I("v_lshl_add_u32 v2, v1, 4, s27")
    if CMG:
        I("v_lshrrev_b32 v3, 5, v1")
        I("v_mul_u32_u24 v3, 1536, v3")
        I("v_add_u32 v2, v2, v3")
    XLD = 16
    for j in range(4 if not FUSE else 0):
        I(f"buffer_load_dwordx4 v[{XLD+4*j}:{XLD+4*j+3}], v2, s[12:15], 0 offen offset:{1024*j}")
    HW0, HW1 = 32, 40
    I("v_subrev_u32 v13, 64, v2")
    I("v_mov_b32 v5, 0x40000000")
    I("v_cmp_gt_u32 vcc, 4, v1")
    I("s_nop 1")
    I("v_cndmask_b32 v4, v13, v5, vcc")
    I("v_add_u32 v6, 16, v13")
    I("v_cmp_gt_u32 vcc, 3, v1")
    I("s_nop 1")
    I("v_cndmask_b32 v6, v6, v5, vcc")
    CV2 = "cv2" in FLAGS
    def hwloads():
        I(f"buffer_load_dwordx4 v[{HW0}:{HW0+3}], v4, s[8:11], 0 offen")
        I(f"buffer_load_dwordx4 v[{HW0+4}:{HW0+7}], v6, s[8:11], 0 offen")
        I(f"buffer_load_dwordx4 v[{HW1}:{HW1+3}], v2, s[8:11], 0 offen offset:{192 if CMG else 448}")
        I(f"buffer_load_dwordx4 v[{HW1+4}:{HW1+7}], v2, s[8:11], 0 offen offset:{208 if CMG else 464}")
    if not CV2: hwloads()
    def wreg(n): return HW1 if n == 1 else (64 + 6*(n-2) if n <= 6 else 16)
    WLE = 1
    for f_ in FLAGS:
        if f_.startswith("wle"): WLE = int(f_[3:])
    WLM = WLE; CVQ0 = []
    for f_ in FLAGS:
        if f_.startswith("wlm"): WLM = int(f_[3:])
    WLD = 0
    for f_ in FLAGS:
        if f_.startswith("wld"): WLD = int(f_[3:])
    def wload(n):
        return [f"buffer_load_dwordx4 v[{wreg(n)}:{wreg(n)+3}], v2, s[8:11], 0 offen offset:{192+256*(n-1)}",
                f"buffer_load_dwordx2 v[{wreg(n)+4}:{wreg(n)+5}], v2, s[8:11], 0 offen offset:{208+256*(n-1)}"]
    for n in range(2, WLE + 1):
        for x in wload(n): I(x)
    CPL = -1
    for f_ in FLAGS:
        if f_.startswith("cpl"): CPL = int(f_[3:])
    if CPL >= 0:
        I("s_movk_i32 s50, 56")
        I(f"s_mov_b32 s51, {384*3456}")
        I("s_cmp_ge_u32 s24, 108")
        I("s_cselect_b32 s50, 64, s50")
        I("s_cselect_b32 s53, 108, 0")
        I("s_cmp_ge_u32 s24, 216")
        I("s_cselect_b32 s50, 0, s50")
        I("s_cselect_b32 s53, 216, s53")
        I("s_cselect_b32 s51, 768, s51")
        I("s_cmp_ge_u32 s24, 344")
        I("s_cselect_b32 s50, 72, s50")
        I("s_cselect_b32 s53, 344, s53")
        I("s_cselect_b32 s51, 0, s51")
        I("s_load_dwordx2 s[12:13], s[0:1], s50")
        I("s_sub_u32 s52, s24, s53")
        I("s_lshl_b32 s52, s52, 6")
        I("v_add_u32 v55, s52, v1")
        I("v_lshlrev_b32 v56, 7, v55")
        I("v_lshrrev_b32 v57, 2, v55")
        I("v_mul_u32_u24 v57, 0x500, v57")
        I("v_and_b32 v55, 3, v55")
        I("v_lshl_add_u32 v57, v55, 7, v57")
        I("s_cmp_eq_u32 s50, 0")
        I("s_cselect_b64 vcc, -1, 0")
        I(f"s_mov_b32 s14, {SZ_W}")
        I(f"s_cselect_b32 s14, {SZ_SD}, s14")
        I("s_mov_b32 s15, 0x00020000")
        I("v_cndmask_b32 v56, v56, v57, vcc")
        I("v_add_u32 v56, s51, v56")
    KP, KO, VV, KF, PP, TC, OO = 132, 144, 160, 176, 190, 222, 230
    if FUSE:
        I("s_sub_u32 s25, s24, s3")
        I("s_lshl_b32 s25, s25, 1")
        I("v_mul_u32_u24 v50, 5120, v0")
        I("v_add_u32 v50, s25, v50")
        I("s_cmp_eq_u32 s3, 0")
        I("s_cselect_b32 s25, 0x40000000, -3840")
        I("v_add_u32 v51, s25, v50")
        def kvloads():
            for i in range(4):
                I(f"buffer_load_dwordx4 v[{KO+4*i}:{KO+4*i+3}], v50, s[32:35], 0 offen offset:{1280*i}")
            I("s_mov_b64 exec, 1")
            for i in range(3):
                I(f"buffer_load_dwordx4 v[{KP+4*i}:{KP+4*i+3}], v51, s[32:35], 0 offen offset:{1280*i}")
            I("s_mov_b64 exec, -1")
        def vloads():
            for i in range(4):
                I(f"buffer_load_dwordx4 v[{VV+4*i}:{VV+4*i+3}], v50, s[36:39], 0 offen offset:{1280*i}")
        KPF = True
        if CV2:
            I("s_sub_u32 s50, s40, s43")
            I("s_lshl_b32 s57, s3, 8")
            I("s_cmp_eq_u32 s41, 0")
            I("s_cbranch_scc0 CV_pf1")
            I("s_lshl_b32 s50, s50, 5")
            I("s_add_u32 s50, s50, s57")
            I("s_lshl_b32 s51, s42, 7")
            I("v_add_u32 v54, s50, v1")
            I("v_mul_u32_u24 v54, 0x500, v54")
            I("s_movk_i32 s56, 32")
            I("s_branch CV_pfd")
            e("CV_pf1:")
            I("s_mul_i32 s50, s50, 22")
            I("s_min_u32 s50, s50, 234")
            I("s_add_u32 s50, s50, s57")
            I("s_mul_i32 s51, s42, 192")
            I("s_add_u32 s51, s51, 512")
            I("s_and_b32 s51, s51, 0xffffff80")
            I("v_lshrrev_b32 v54, 1, v1")
            I("v_add_u32 v54, s50, v54")
            I("v_mul_u32_u24 v54, 0x500, v54")
            I("v_and_b32 v56, 1, v1")
            I("v_lshl_add_u32 v54, v56, 7, v54")
            I("s_movk_i32 s56, 44")
            e("CV_pfd:")
            I("v_cmp_gt_u32 s[52:53], s56, v1")
            I("s_mov_b64 exec, s[52:53]")
            I("buffer_load_dword v56, v54, s[32:35], s51 offen")
            I("buffer_load_dword v57, v54, s[36:39], s51 offen")
            I("s_mov_b64 exec, -1")
            hwloads()
            I("v_lshl_add_u32 v55, v1, 6, s27")
            if "nohpf" not in FLAGS: I("buffer_load_dword v58, v55, s[8:11], 0 offen")
            else: I("buffer_load_dword v58, v2, s[8:11], 0 offen")
        elif "kvall" in FLAGS:
            pass
        elif KPF:
            I("s_sub_u32 s50, s40, s43")
            I("v_xor_b32 v57, 256, v0")
            I("s_cmp_eq_u32 s41, 0")
            I("s_cbranch_scc0 CV_pf1")
            I("s_lshl_b32 s50, s50, 8")
            I("s_lshl_b32 s51, s42, 7")
            for (d, src) in ((54, 0), (55, 57)):
                I(f"v_add_u32 v{d}, s50, v{src}")
                I(f"v_mul_u32_u24 v{d}, 0x500, v{d}")
            I("s_movk_i32 s56, 256")
            I("s_branch CV_pfd")
            e("CV_pf1:")
            I("s_mul_i32 s50, s50, 176")
            I("s_mul_i32 s51, s42, 192")
            I("s_add_u32 s51, s51, 512")
            I("s_and_b32 s51, s51, 0xffffff80")
            for (d, src) in ((54, 0), (55, 57)):
                I(f"v_lshrrev_b32 v{d}, 1, v{src}")
                I(f"v_add_u32 v{d}, s50, v{d}")
                I(f"v_mul_u32_u24 v{d}, 0x500, v{d}")
                I(f"v_and_b32 v56, 1, v{src}")
                I(f"v_lshl_add_u32 v{d}, v56, 7, v{d}")
            I("s_movk_i32 s56, 352")
            e("CV_pfd:")
            I("v_cmp_gt_u32 s[52:53], s56, v0")
            I("v_cmp_gt_u32 s[54:55], s56, v57")
            I("s_mov_b64 exec, s[52:53]")
            I("buffer_load_dword v56, v54, s[32:35], s51 offen")
            if "vpf1" not in FLAGS:
                I("s_mov_b64 exec, s[54:55]")
                I("buffer_load_dword v57, v55, s[36:39], s51 offen")
            I("s_mov_b64 exec, -1")
        else:
            kvloads()
        I("v_lshlrev_b32 v52, 2, v0")
        I("v_sub_u32 v52, 2044, v52")
        I("v_lshrrev_b32 v53, 5, v52")
        I("v_mul_u32_u24 v53, 80, v53")
        I("v_and_b32 v52, 31, v52")
        I("v_lshl_add_u32 v52, v52, 1, v53")
        I(f"v_add_u32 v53, {4*WREG}, v52")
    I(f"s_mov_b32 s29, {448 if CMG else 960}")
    I(f"s_mul_i32 s28, s3, {WREG}")
    Z = 96
    for j in range(4):
        I(f"v_mov_b32 v{Z+j}, 0")
    I("v_lshl_add_u32 v3, v1, 4, s28")
    I(f"ds_write_b128 v3, v[{Z}:{Z+3}] offset:5120")
    I(f"ds_write_b128 v3, v[{Z}:{Z+3}] offset:6144")
    I(f"ds_write_b128 v3, v[{Z}:{Z+3}] offset:6656")
    if G2F:
        I(f"v_mov_b32 v4, {LMB}")
        I(f"ds_write_b64 v4, v[{Z}:{Z+1}]")
    I("v_lshrrev_b32 v4, 2, v1")
    I("v_mul_u32_u24 v4, 80, v4")
    I("v_and_b32 v5, 3, v1")
    I("v_lshl_add_u32 v4, v5, 4, v4")
    I("v_add_u32 v4, s28, v4")
    I("v_and_b32 v5, 31, v1")
    I("v_lshrrev_b32 v6, 5, v1")
    if CM4:
        I("v_and_b32 v7, 3, v5")
        I(f"v_mul_u32_u24 v7, {CST}, v7")
        I("v_lshrrev_b32 v8, 2, v5")
        I("v_lshl_add_u32 v8, v6, 1, v8")
        I("v_lshl_add_u32 v7, v8, 3, v7")
    else:
        I("v_and_b32 v7, 7, v5")
        I(f"v_mul_u32_u24 v7, {CST}, v7")
        I("v_lshrrev_b32 v8, 3, v5")
        I("v_add_u32 v8, v8, v6")
        I("v_lshl_add_u32 v7, v8, 4, v7")
    I(f"v_add_u32 v7, {XREG}, v7")
    I("v_add_u32 v7, s28, v7")
    I(f"v_add_u32 v14, {HBUF}, v7")
    I("v_sub_u32 v8, 63, v5")
    I("v_mul_u32_u24 v8, 80, v8")
    I("v_lshl_add_u32 v8, v6, 4, v8")
    I("v_add_u32 v8, s28, v8")
    I("v_mov_b32 v15, v8")
    I("v_subrev_u32 v9, 2560, v8")
    I(f"v_add_u32 v10, {XREG}, v3")
    if CMG:
        I(f"v_mul_u32_u24 v11, {HHI-512}, v6")
        I("v_add_u32 v10, v10, v11")
    I(f"v_add_u32 v11, {HBUF}, v10")
    AC0, AC1 = 100, 116
    for j in range(32):
        I(f"v_mov_b32 v{AC0+j}, 0")
    FR = 132
    UE, UO, WO = 180, 189, 197
    CLA, CR = 3, 4
    for f_ in FLAGS:
        if f_.startswith("cla"): CLA = int(f_[3:]); CR = 8; UE, UO, WO = 228, 237, 245
    if CMG:
        UE, UO, WO = 196, 205, 213
        AC2 = 220
        I("s_mov_b32 s30, 0xfffff")
        I("s_mov_b32 s31, 0xfffff")
    else:
        I("s_mov_b32 s30, -1")
        I("s_mov_b32 s31, 0xf")
    q = DSQ()
    def stage_seg(w, addr):
        if CM4:
            for t in range(4):
                I(f"v_alignbit_b32 v{UE+t}, v{w+t+1}, v{w+t}, 16")
                I(f"v_alignbit_b32 v{UO+t+1}, v{w+t+2}, v{w+t+1}, 16")
                I(f"v_mov_b32 v{WO+t+1}, v{w+t+1}")
            I("s_mov_b64 exec, s[30:31]")
            for c, r in enumerate((UE, WO+1, UO+1, w+2)):
                I(f"ds_write_b128 v{addr}, v[{r}:{r+3}] offset:{c*CST}")
                q.push(("w", 0))
            I("s_mov_b64 exec, -1")
            return
        for t in range(7):
            I(f"v_alignbit_b32 v{UE+t}, v{w+t+1}, v{w+t}, 16")
            I(f"v_alignbit_b32 v{UO+t}, v{w+t+1}, v{w+t}, 16")
        for t in range(1, 7):
            I(f"v_mov_b32 v{WO+t}, v{w+t}")
        I("s_mov_b64 exec, s[30:31]")
        for c in range(8):
            if c % 2 == 0:
                t0 = c // 2
                r = UE + t0 if t0 % 2 == 0 else UO + t0
            else:
                t0 = (1 + c)//2
                r = w + t0 if t0 % 2 == 0 else WO + t0
            assert r % 2 == 0, (c, r)
            I(f"ds_write_b128 v{addr}, v[{r}:{r+3}] offset:{c*CST}")
            q.push(("w", 0))
        I("s_mov_b64 exec, -1")
    if FUSE and CV2:
        if "cvnw" not in FLAGS: I(f"s_waitcnt vmcnt({5 if 'cvw2' in FLAGS else 6})")
        if "cst2" in FLAGS: stamp()
        if "cvbar" in FLAGS: I("s_barrier")
        if "cst2" in FLAGS: stamp()
        kvloads()
        if "cvlv" not in FLAGS: vloads()
        I(f"s_waitcnt vmcnt({(7 if 'cvlv' in FLAGS else 11) + 3})")
        stage_seg(HW0, 10)
        I("s_mov_b32 s49, 0x3f803f80")
        I(f"s_waitcnt vmcnt({0 if 'cvlv' in FLAGS else 4}) lgkmcnt(0)")
        if "cvlv" in FLAGS: vloads()
        stamp()
    if FUSE:
        if CV2: pass
        elif KPF:
            I(f"s_waitcnt vmcnt({4 + 2*(WLE-1) if 'nw0' in FLAGS else 0})")
            if "cst2" in FLAGS: stamp()
            I("s_barrier")
            if "cst2" in FLAGS: stamp()
            kvloads()
            if "vearly" in FLAGS: vloads()
            if "vpf1" in FLAGS:
                I("s_mov_b64 exec, s[54:55]")
                I("buffer_load_dword v57, v55, s[36:39], s51 offen")
                I("s_mov_b64 exec, -1")
        else:
            I("s_waitcnt vmcnt(13)")
        if not CV2:
            if "nw0" not in FLAGS: stage_seg(HW0, 10)
            I("s_mov_b32 s49, 0x3f803f80")
            if "vearly" in FLAGS:
                I("s_waitcnt vmcnt(4) lgkmcnt(0)")
                for n in range(WLE + 1, WLM + 1):
                    for x in wload(n): I(x); CVQ0.append(n)
            else:
                I(f"s_waitcnt vmcnt({0 if 'vpf1' not in FLAGS else 1}) lgkmcnt(0)")
                vloads()
            if "hpf2" in FLAGS:
                I("v_lshl_add_u32 v55, v1, 6, s27")
                I("buffer_load_dword v58, v55, s[8:11], 0 offen")
            stamp()
        for r in range(3):
            for c in range(4):
                I(f"v_mov_b32_dpp v{KP+4*r+c}, v{KO+4*(r+1)+c} wave_shr:1 row_mask:0xf bank_mask:0xf")
        def krow(r): return (KP + 4*r) if r < 3 else (KO + 4*(r-3))
        chains = [(i, h) for i in range(4) for h in range(2)]
        def T(j, i, h): return TC + 8*j + 2*i + h
        if "kvf" in FLAGS:
            I("s_mov_b32 s50, 0x05040100")
            I("s_mov_b32 s51, 0x07060302")
            for j in range(4):
                for h in range(2):
                    for r in range(6):
                        I(f"v_perm_b32 v{PP+6*h+r}, v{krow(r)+j}, v{krow(r+1)+j}, s{50+h}")
                for (i, h) in chains: I(f"v_dot2_f32_bf16 v{T(j,i,h)}, v{PP+6*h+i}, s{85+4*j+2*h}, 0")
                for (i, h) in chains: I(f"v_dot2_f32_bf16 v{T(j,i,h)}, v{PP+6*h+i+2}, s{84+4*j+2*h}, v{T(j,i,h)}")
        for j in range(4 if "kvf" not in FLAGS else 0):
            for h in range(2):
                I(f"s_lshl_b32 s{50+h}, s{84+4*j+2*h}, 16")
                I(f"s_and_b32 s{52+h}, s{84+4*j+2*h}, 0xffff0000")
                I(f"s_lshl_b32 s{54+h}, s{85+4*j+2*h}, 16")
                I(f"s_and_b32 s{56+h}, s{85+4*j+2*h}, 0xffff0000")
            for r in range(7):
                lo16(KF+2*r, krow(r)+j); hi16(KF+2*r+1, krow(r)+j)
            def P(i, t): return PP + (i*4 + t)*2
            for i in range(4):
                for t in range(4):
                    r = i + 3 - t
                    I(f"v_pk_mul_f32 v[{P(i,t)}:{P(i,t)+1}], v[{KF+2*r}:{KF+2*r+1}], s[{50+2*t}:{51+2*t}]")
            for (i, h) in chains: I(f"v_cvt_pk_bf16_f32 v{T(j,i,h)}, v{P(i,3)+h}, v{P(i,2)+h}")
            for t in (1, 0):
                for (i, h) in chains: I(f"v_dot2_f32_bf16 v{T(j,i,h)}, v{T(j,i,h)}, s49, 0")
                for (i, h) in chains: I(f"v_cvt_pk_bf16_f32 v{T(j,i,h)}, v{T(j,i,h)}, v{P(i,t)+h}")
            for (i, h) in chains: I(f"v_dot2_f32_bf16 v{T(j,i,h)}, v{T(j,i,h)}, s49, 0")
            for (i, h) in chains:
                if h == 0: I(f"v_cvt_pk_bf16_f32 v{T(j,i,h)}, v{T(j,i,h)}, 0")
                else: I(f"v_cvt_pk_bf16_f32 v{T(j,i,h)}, 0, v{T(j,i,h)}")
        if "nw0" in FLAGS: stage_seg(HW0, 10)
        if "cst2" in FLAGS: stamp()
        I(f"s_waitcnt vmcnt({1 if 'hpf2' in FLAGS else len(CVQ0)})")
        if "cst2" in FLAGS: stamp()
        for j in range(4 if "kvf" not in FLAGS else 0):
            for (i, h) in chains: I(f"v_dot2_f32_bf16 v{T(j,i,h)}, v{T(j,i,h)}, v{VV+4*i+j}, 0")
        if "kvf" in FLAGS:
            for j in range(4):
                for i in range(4):
                    lo16(KF+2*i, VV+4*i+j); hi16(KF+2*i+1, VV+4*i+j)
                for i in range(4):
                    I(f"v_pk_mul_f32 v[{T(j,i,0)}:{T(j,i,1)}], v[{T(j,i,0)}:{T(j,i,1)}], v[{KF+2*i}:{KF+2*i+1}]")
        I("s_nop 1")
        for j in range(4):
            for h in range(2):
                o = PP + 2*h + 4*j
                I(f"v_cvt_pk_bf16_f32 v{o+1}, v{T(j,1,h)}, v{T(j,0,h)}")
                I(f"v_cvt_pk_bf16_f32 v{o}, v{T(j,3,h)}, v{T(j,2,h)}")
            for h in range(2):
                o = PP + 2*h + 4*j
                ch = 2*j + h
                I(f"ds_write_b64 v{52 + ch//4}, v[{o}:{o+1}] offset:{(ch % 4)*WREG}")
        I("s_waitcnt lgkmcnt(0)")
        I("s_barrier")
        if ("cpf" in FLAGS or "cpf0" in FLAGS) and CPL < 0:
            C0 = "cpf0" in FLAGS
            I("s_mov_b32 s54, s24")
            if C0:
                I("s_cmp_ge_u32 s24, 256")
                I("s_cbranch_scc1 CV_cpfd")
                e("CV_cpfl:")
            I("s_movk_i32 s50, 56")
            I(f"s_mov_b32 s51, {384*3456}")
            I("s_mov_b32 s52, s54")
            I("s_cmp_ge_u32 s54, 108")
            I("s_cselect_b32 s50, 64, s50")
            I("s_cselect_b32 s53, 108, 0")
            I("s_cmp_ge_u32 s54, 216")
            I("s_cselect_b32 s50, 0, s50")
            I("s_cselect_b32 s53, 216, s53")
            I("s_cselect_b32 s51, 768, s51")
            I("s_cmp_ge_u32 s54, 344")
            I("s_cselect_b32 s50, 72, s50")
            I("s_cselect_b32 s53, 344, s53")
            I("s_cselect_b32 s51, 0, s51")
            I("s_load_dwordx2 s[56:57], s[0:1], s50")
            I("s_sub_u32 s52, s52, s53")
            I("s_lshl_b32 s52, s52, 6")
            I("v_add_u32 v55, s52, v1")
            I("v_lshlrev_b32 v56, 7, v55")
            I("v_lshrrev_b32 v57, 2, v55")
            I("v_mul_u32_u24 v57, 0x500, v57")
            I("v_and_b32 v55, 3, v55")
            I("v_lshl_add_u32 v57, v55, 7, v57")
            I("s_cmp_eq_u32 s50, 0")
            I("s_cselect_b64 vcc, -1, 0")
            I(f"s_mov_b32 s58, {SZ_W}")
            I(f"s_cselect_b32 s58, {SZ_SD}, s58")
            I("s_mov_b32 s59, 0x00020000")
            I("v_cndmask_b32 v56, v56, v57, vcc")
            I("s_waitcnt lgkmcnt(0)")
            I("buffer_load_dword v254, v56, s[56:59], s51 offen")
            if C0:
                I("s_add_u32 s54, s54, 256")
                I("s_cmp_lt_u32 s54, 614")
                I("s_cbranch_scc1 CV_cpfl")
                e("CV_cpfd:")
        if "hpf3" in FLAGS:
            I("v_lshl_add_u32 v55, v1, 6, s27")
            I("buffer_load_dword v58, v55, s[8:11], 0 offen")
    else:
        I("s_waitcnt vmcnt(2)")
        stamp()
        for j in range(4):
            I(f"ds_write_b128 v4, v[{XLD+4*j}:{XLD+4*j+3}] offset:{16*80*j}")
        stage_seg(HW0, 10)
    q = DSQ()
    def crd(c, both, part=None):
        f = FR + (c % CR)*12
        boff = (c >> 1)*80 + (c & 1)*32
        if part in (None, 0):
            if c < 16:
                I(f"ds_read_b128 v[{f}:{f+3}], v7 offset:{32*c}")
            else:
                I(f"ds_read_b128 v[{f}:{f+3}], v14 offset:{32*(c-16)}")
            q.push(("r", c))
            I(f"ds_read_b128 v[{f+4}:{f+7}], v9 offset:{boff}")
            q.push(("r", c))
        if both and part in (None, 1):
            I(f"ds_read_b128 v[{f+8}:{f+11}], v8 offset:{boff}")
            q.push(("r", c))
    if CM4:
        CLA = 2
        for f_ in FLAGS:
            if f_.startswith("c4la"): CLA = int(f_[4:])
        B0 = 180; MSK = 218
        def b0(dh, pp): return B0 + (dh*2 + pp)*4
        def mrd(c, part):
            f = FR + (c % 4)*12
            boff = (c >> 1)*80 + (c & 1)*32
            va, ao = (7, 32*c) if c < 8 else (14, 32*(c-8))
            if part == 0:
                I(f"ds_read_b64 v[{f}:{f+1}], v{va} offset:{ao}"); q.push(("r", c))
                I(f"ds_read_b64 v[{f+2}:{f+3}], v{va} offset:{ao+8}")
            if part == 1:
                I(f"ds_read_b64 v[{f+4}:{f+5}], v{va} offset:{ao+HHI}"); q.push(("r", c))
                I(f"ds_read_b64 v[{f+6}:{f+7}], v{va} offset:{ao+HHI+8}")
            if part == 2: I(f"ds_read_b128 v[{f+8}:{f+11}], v9 offset:{boff}")
            q.push(("r", c))
        W2 = "w2" in FLAGS
        if G2F and CWP:
            g2_setup(0)
            I("s_sub_u32 s34, s40, 22")
            I("s_lshl_b32 s34, s34, 3")
            I("s_add_u32 s34, s34, s3")
            I(f"s_mul_i32 s34, s34, {216*128}")
            I("v_lshl_add_u32 v60, v1, 7, s34")
            I(f"s_mov_b32 s34, {-54*128*CWI}")
            I("s_mov_b32 s36, -1")
            I("s_mov_b32 s37, 0x3fffff")
            if CW4:
                I("s_sub_u32 s34, s40, 22")
                I("s_lshl_b32 s34, s34, 2")
                I("s_add_u32 s34, s34, s3")
                I("s_mul_i32 s35, s34, 434")
                I("s_min_u32 s35, s35, 16846")
                I("s_lshl_b32 s35, s35, 7")
                I("v_lshl_add_u32 v60, v1, 7, s35")
                I("s_cmp_lt_u32 s3, 4")
                I("s_cselect_b32 s36, -1, 0")
                I("s_cselect_b32 s37, 0x3fffffff, 0")
                srd(12, 6, SZ_H, WS_H)
                I("s_mul_i32 s35, s34, 177")
                I("s_min_u32 s35, s35, 6735")
                I("s_lshl_b32 s35, s35, 7")
                I("s_mul_i32 s38, s42, 884736")
                I("s_add_u32 s35, s35, s38")
                I("v_lshl_add_u32 v62, v1, 7, s35")
                I("s_cmp_lt_u32 s3, 4")
                I("s_cselect_b32 s38, -1, 0")
                I("s_cselect_b32 s39, 0x7ffffff, 0")
            elif CHT >= 0:
                srd(12, 6, SZ_H, WS_H)
                I("s_sub_u32 s35, s40, 22")
                I("s_lshl_b32 s35, s35, 3")
                I("s_add_u32 s35, s35, s3")
                I("s_mul_i32 s35, s35, 88")
                I("s_min_u32 s35, s35, 6824")
                I("s_lshl_b32 s35, s35, 7")
                I("s_mul_i32 s38, s42, 884736")
                I("s_add_u32 s35, s35, s38")
                I("v_lshl_add_u32 v62, v1, 7, s35")
                I(f"s_mov_b32 s35, {-44*128*CHT}")
                I("s_mov_b32 s38, -1")
                I("s_mov_b32 s39, 0xfff")
        UNR = "unr" in FLAGS
        if UNR:
            WB_ = 64 - 6*2
            cvq = list(CVQ0)
            for n in range(WLM + 1, 8):
                if WLD and n - WLD >= 0: continue
                for x in wload(n): I(x); cvq.append(n)
            for dh in range(2):
                I(f"ds_read_b128 v[{b0(dh,0)}:{b0(dh,0)+3}], v8 offset:{32*dh}")
            for j in range(16): I(f"v_mov_b32 v{AC2+j}, 0")
            I(f"v_cmp_ne_u32 vcc, 0, v5")
            I("s_nop 1")
            I(f"v_cndmask_b32 v{MSK}, 0, -1, vcc")
            for c in range(CLA):
                for part in range(3): mrd(c, part)
            stamp()
            for it in range(8):
                q.q = [("r", c) for c in range(CLA) for _ in range(5)]
                w = wreg(it + 1) if it < 7 else None
                def AL(dst, t): return f"v_alignbit_b32 v{dst+t}, v{w+t+1}, v{w+t}, 16"
                def MV(t): return f"v_mov_b32 v{WO+t}, v{w+t}"
                def WR(c): return ("W", f"ds_write_b128 v11, v[{(UE, WO+1, UO+1, w+2)[c]}:{(UE, WO+1, UO+1, w+2)[c]+3}] offset:{c*CST}")
                slots = []
                if it < 7:
                    slots = [["V", WR(3), AL(UE,0), AL(UE,1)], [AL(UE,2), AL(UE,3)], [],
                             [WR(0), MV(1), MV(2)], [MV(3), MV(4)], [],
                             [WR(1), AL(UO,1), AL(UO,2)], [AL(UO,3), AL(UO,4)], [],
                             [WR(2)], [], [], ["P"]]
                    slots[2].append("L")
                def slot(i):
                    if i < 0 or i >= len(slots): return
                    for x in slots[i]:
                        if x == "L":
                            for n in range(WLM + 1, 8):
                                if WLD and n - WLD == it:
                                    for y_ in wload(n): I(y_); cvq.append(n)
                            if CPL == it:
                                I("buffer_load_dword v254, v56, s[12:15], 0 offen"); cvq.append(-1)
                        elif x == "V":
                            idxs = [k_ for k_, t_ in enumerate(cvq) if t_ == it + 1]
                            if idxs:
                                I(f"s_waitcnt vmcnt({len(cvq) - 1 - max(idxs)})")
                                del cvq[:max(idxs)+1]
                        elif x == "P" and CW4:
                            for k_ in CW4W[it]:
                                I(f"s_mov_b32 s34, {62*128*k_}")
                                I("s_mov_b64 exec, s[36:37]")
                                I("buffer_load_dword v97, v60, s[48:51], s34 offen")
                                I("s_mov_b64 exec, -1")
                            for k_ in CW4H[it]:
                                I(f"s_mov_b32 s35, {59*128*k_}")
                                I("s_mov_b64 exec, s[38:39]")
                                I("buffer_load_dword v98, v62, s[12:15], s35 offen")
                                I("s_mov_b64 exec, -1")
                        elif x == "P":
                            if G2F and CWP and 0 <= it - CWI < 4:
                                I(f"s_mov_b32 s34, {54*128*(it - CWI)}")
                                I("s_mov_b64 exec, s[36:37]")
                                I("buffer_load_dword v97, v60, s[48:51], s34 offen"); cvq.append(-1)
                                I("s_mov_b64 exec, -1")
                            if G2F and CWP and CHT >= 0 and 0 <= it - CHT < 2:
                                I(f"s_mov_b32 s35, {44*128*(it - CHT)}")
                                I("s_mov_b64 exec, s[38:39]")
                                I("buffer_load_dword v98, v62, s[12:15], s35 offen"); cvq.append(-1)
                                I("s_mov_b64 exec, -1")
                        elif isinstance(x, tuple):
                            I("s_mov_b64 exec, s[30:31]")
                            I(x[1]); q.push(("w", 0))
                            I("s_mov_b64 exec, -1")
                        else: I(x)
                for c in range(8):
                    f = FR + (c % 4)*12
                    bz = b0(c & 1, (c >> 1) & 1); bn = b0(c & 1, ((c >> 1) & 1) ^ 1)
                    last = it == 7 and c + CLA >= 8
                    q.wait_for(("r", c))
                    I(f"v_mfma_f32_32x32x16_bf16 v[{AC0}:{AC0+15}], v[{f}:{f+3}], v[{bz}:{bz+3}], v[{AC0}:{AC0+15}]")
                    if not last: mrd(c + CLA, 0)
                    slot(3*(c-1))
                    I(f"v_mfma_f32_32x32x16_bf16 v[{AC1}:{AC1+15}], v[{f}:{f+3}], v[{f+8}:{f+11}], v[{AC1}:{AC1+15}]")
                    if not last: mrd(c + CLA, 1)
                    slot(3*(c-1)+1 if c >= 1 else -1)
                    I(f"v_mfma_f32_32x32x16_bf16 v[{AC2}:{AC2+15}], v[{f+4}:{f+7}], v[{bz}:{bz+3}], v[{AC2}:{AC2+15}]")
                    if not last: mrd(c + CLA, 2)
                    if not (it == 7 and c >= 6):
                        for r in range(4):
                            I(f"v_and_b32_dpp v{bn+r}, v{bz+r}, v{MSK} wave_shr:1 row_mask:0xf bank_mask:0xf bound_ctrl:0")
                    slot(3*(c-1)+2 if c >= 1 else -1)
                if it < 7:
                    I("v_swap_b32 v7, v14")
                    I("v_swap_b32 v10, v11")
                    I("v_add_u32 v9, 320, v9")
        if not UNR:
            if W2:
                I(f"buffer_load_dwordx4 v[{HW0}:{HW0+3}], v2, s[8:11], s29 offen")
                I(f"buffer_load_dwordx2 v[{HW0+4}:{HW0+5}], v2, s[8:11], s29 offen offset:16")
                I("s_add_u32 s29, s29, 256")
            for dh in range(2):
                I(f"ds_read_b128 v[{b0(dh,0)}:{b0(dh,0)+3}], v8 offset:{32*dh}")
            for j in range(16): I(f"v_mov_b32 v{AC2+j}, 0")
            I(f"v_cmp_ne_u32 vcc, 0, v5")
            I("s_nop 1")
            I(f"v_cndmask_b32 v{MSK}, 0, -1, vcc")
            for c in range(CLA):
                for part in range(3): mrd(c, part)
            I("s_mov_b32 s33, 0")
            stamp()
            e("CV_loopm:")
            q.q = [("r", c) for c in range(CLA) for _ in range(5)]
            w = HW1
            def AL(dst, t): return f"v_alignbit_b32 v{dst+t}, v{w+t+1}, v{w+t}, 16"
            def MV(t): return f"v_mov_b32 v{WO+t}, v{w+t}"
            def WR(c): return ("W", f"ds_write_b128 v11, v[{(UE, WO+1, UO+1, w+2)[c]}:{(UE, WO+1, UO+1, w+2)[c]+3}] offset:{c*CST}")
            slots = [[WR(3), AL(UE,0), AL(UE,1)], [AL(UE,2), AL(UE,3)], [],
                     [WR(0), MV(1), MV(2)], [MV(3), MV(4)], [],
                     [WR(1), AL(UO,1), AL(UO,2)], [AL(UO,3), AL(UO,4)], [],
                     [WR(2), "L"], [], []]
            if W2: slots = slots[:9] + [[WR(2)], [], [], [], [], [], [], [], [], ["L"], [], []]
            def slot(i):
                if i < 0 or i >= len(slots): return
                for x in slots[i]:
                    if x == "L" and W2:
                        I("s_waitcnt vmcnt(0)")
                        for t in range(6): I(f"v_mov_b32 v{HW1+t}, v{HW0+t}")
                        I(f"buffer_load_dwordx4 v[{HW0}:{HW0+3}], v2, s[8:11], s29 offen")
                        I(f"buffer_load_dwordx2 v[{HW0+4}:{HW0+5}], v2, s[8:11], s29 offen offset:16")
                        I("s_add_u32 s29, s29, 256")
                        if G2F and CWP:
                            I(f"s_cmp_lt_u32 s34, {4*54*128}")
                            I("s_cbranch_scc0 CV_nwp")
                            I("s_mov_b64 exec, s[36:37]")
                            I("buffer_load_dword v61, v60, s[48:51], s34 offen")
                            I("s_mov_b64 exec, -1")
                            e("CV_nwp:")
                            I(f"s_add_u32 s34, s34, {54*128}")
                            if CHT >= 0:
                                I(f"s_cmp_lt_u32 s35, {2*44*128}")
                                I("s_cbranch_scc0 CV_nht")
                                I("s_mov_b64 exec, s[38:39]")
                                I("buffer_load_dword v63, v62, s[12:15], s35 offen")
                                I("s_mov_b64 exec, -1")
                                e("CV_nht:")
                                I(f"s_add_u32 s35, s35, {44*128}")
                    elif x == "L":
                        I(f"buffer_load_dwordx4 v[{HW1}:{HW1+3}], v2, s[8:11], s29 offen")
                        I(f"buffer_load_dwordx2 v[{HW1+4}:{HW1+5}], v2, s[8:11], s29 offen offset:16")
                        I("s_add_u32 s29, s29, 256")
                    elif isinstance(x, tuple):
                        I("s_mov_b64 exec, s[30:31]")
                        I(x[1]); q.push(("w", 0))
                        I("s_mov_b64 exec, -1")
                    else: I(x)
            for c in range(8):
                if c == 1 and not W2: I("s_waitcnt vmcnt(0)")
                f = FR + (c % 4)*12
                bz = b0(c & 1, (c >> 1) & 1); bn = b0(c & 1, ((c >> 1) & 1) ^ 1)
                q.wait_for(("r", c))
                I(f"v_mfma_f32_32x32x16_bf16 v[{AC0}:{AC0+15}], v[{f}:{f+3}], v[{bz}:{bz+3}], v[{AC0}:{AC0+15}]")
                mrd(c + CLA, 0)
                slot(3*(c-1))
                I(f"v_mfma_f32_32x32x16_bf16 v[{AC1}:{AC1+15}], v[{f}:{f+3}], v[{f+8}:{f+11}], v[{AC1}:{AC1+15}]")
                mrd(c + CLA, 1)
                slot(3*(c-1)+1 if c >= 1 else -1)
                I(f"v_mfma_f32_32x32x16_bf16 v[{AC2}:{AC2+15}], v[{f+4}:{f+7}], v[{bz}:{bz+3}], v[{AC2}:{AC2+15}]")
                mrd(c + CLA, 2)
                for r in range(4):
                    I(f"v_and_b32_dpp v{bn+r}, v{bz+r}, v{MSK} wave_shr:1 row_mask:0xf bank_mask:0xf bound_ctrl:0")
                slot(3*(c-1)+2 if c >= 1 else -1)
            I("v_swap_b32 v7, v14")
            I("v_swap_b32 v10, v11")
            I("v_add_u32 v9, 320, v9")
            I("s_add_u32 s33, s33, 1")
            I("s_cmp_lt_u32 s33, 8")
            I("s_cbranch_scc1 CV_loopm")
        I("s_nop 7")
        I("s_nop 7")
        I("s_nop 3")
        for j in range(16): I(f"v_add_f32 v{AC1+j}, v{AC1+j}, v{AC2+j}")
    elif CMG:
        def mrd(c, part):
            f = FR + (c % 4)*16
            boff = (c >> 1)*80 + (c & 1)*32
            va, ao = (7, 32*c) if c < 8 else (14, 32*(c-8))
            if "cvnob" in FLAGS and part >= 2: return
            if part == 0: I(f"ds_read_b128 v[{f}:{f+3}], v{va} offset:{ao}")
            if part == 1: I(f"ds_read_b128 v[{f+4}:{f+7}], v{va} offset:{ao+HHI}")
            if part == 2: I(f"ds_read_b128 v[{f+8}:{f+11}], v8 offset:{boff}")
            if part == 3: I(f"ds_read_b128 v[{f+12}:{f+15}], v9 offset:{boff}")
            q.push(("r", c))
        for j in range(16): I(f"v_mov_b32 v{AC2+j}, 0")
        for c in range(CLA):
            for part in range(4): mrd(c, part)
        I("s_mov_b32 s33, 0")
        stamp()
        e("CV_loopm:")
        q.q = [("r", c) for c in range(CLA) for _ in range(2 if "cvnob" in FLAGS else 4)]
        w = HW1
        def AL(dst, t): return f"v_alignbit_b32 v{dst+t}, v{w+t+1}, v{w+t}, 16"
        def MV(t): return f"v_mov_b32 v{WO+t}, v{w+t}"
        def WR(c):
            if c % 2 == 0:
                t0 = c // 2
                r = UE + t0 if t0 % 2 == 0 else UO + t0
            else:
                t0 = (1 + c)//2
                r = w + t0 if t0 % 2 == 0 else WO + t0
            return ("W", f"ds_write_b128 v11, v[{r}:{r+3}] offset:{c*CST}")
        slots = [[WR(3), AL(UE,0), AL(UE,1)], [WR(7), AL(UE,2), AL(UE,3)], [WR(0), AL(UE,4), AL(UE,5)],
                 [WR(4), MV(1), MV(2)], [MV(3), MV(4)], [WR(1), MV(5), MV(6)],
                 [WR(5), AL(UO,1), AL(UO,2)], [AL(UO,3), AL(UO,4)], [WR(2), AL(UO,5), AL(UO,6)],
                 [WR(6)], ["L"], []]
        def slot(i):
            if i < 0 or i >= len(slots): return
            for x in slots[i]:
                if x == "L":
                    I(f"buffer_load_dwordx4 v[{HW1}:{HW1+3}], v2, s[8:11], s29 offen")
                    I(f"buffer_load_dwordx4 v[{HW1+4}:{HW1+7}], v2, s[8:11], s29 offen offset:16")
                    I("s_add_u32 s29, s29, 256")
                elif isinstance(x, tuple):
                    I("s_mov_b64 exec, s[30:31]")
                    I(x[1]); q.push(("w", 0))
                    I("s_mov_b64 exec, -1")
                else: I(x)
        for c in range(8):
            if c == 1: I("s_waitcnt vmcnt(0)")
            f = FR + (c % 4)*16
            q.wait_for(("r", c))
            I(f"v_mfma_f32_32x32x16_bf16 v[{AC0}:{AC0+15}], v[{f}:{f+3}], v[{f+8}:{f+11}], v[{AC0}:{AC0+15}]")
            mrd(c + CLA, 0)
            slot(3*(c-1))
            I(f"v_mfma_f32_32x32x16_bf16 v[{AC1}:{AC1+15}], v[{f}:{f+3}], v[{f+12}:{f+15}], v[{AC1}:{AC1+15}]")
            mrd(c + CLA, 1); mrd(c + CLA, 2)
            slot(3*(c-1)+1 if c >= 1 else -1)
            I(f"v_mfma_f32_32x32x16_bf16 v[{AC2}:{AC2+15}], v[{f+4}:{f+7}], v[{f+8}:{f+11}], v[{AC2}:{AC2+15}]")
            mrd(c + CLA, 3)
            slot(3*(c-1)+2 if c >= 1 else -1)
        I("v_swap_b32 v7, v14")
        I("v_swap_b32 v10, v11")
        I("v_add_u32 v8, 320, v8")
        I("v_add_u32 v9, 320, v9")
        I("s_add_u32 s33, s33, 1")
        I("s_cmp_lt_u32 s33, 8")
        I("s_cbranch_scc1 CV_loopm")
        I("s_nop 7")
        I("s_nop 7")
        I("s_nop 3")
        for j in range(16): I(f"v_add_f32 v{AC1+j}, v{AC1+j}, v{AC2+j}")
    else:
        for c in range(CLA):
            crd(c, True)
        I("s_mov_b32 s33, 0")
        stamp()
    for phase in range(2 if not CMG else 0):
        both = (phase == 0)
        e(f"CV_loop{phase}:")
        q.q = [("r", c) for c in range(CLA) for _ in range(3 if both else 2)]
        for c in range(16):
            if c == 1:
                I("s_waitcnt vmcnt(0)")
                stage_seg(HW1, 11)
                if "cvnoload" not in FLAGS:
                    I(f"buffer_load_dwordx4 v[{HW1}:{HW1+3}], v2, s[8:11], s29 offen")
                    I(f"buffer_load_dwordx4 v[{HW1+4}:{HW1+7}], v2, s[8:11], s29 offen offset:16")
                I("s_add_u32 s29, s29, 512")
            f = FR + (c % CR)*12
            if "cvi" in FLAGS:
                q.wait_for(("r", c))
                I(f"v_mfma_f32_32x32x16_bf16 v[{AC1}:{AC1+15}], v[{f}:{f+3}], v[{f+4}:{f+7}], v[{AC1}:{AC1+15}]")
                crd(c + CLA, both, 0)
                if both:
                    I(f"v_mfma_f32_32x32x16_bf16 v[{AC0}:{AC0+15}], v[{f}:{f+3}], v[{f+8}:{f+11}], v[{AC0}:{AC0+15}]")
                    crd(c + CLA, both, 1)
            else:
                crd(c + CLA, both)
                q.wait_for(("r", c))
                I(f"v_mfma_f32_32x32x16_bf16 v[{AC1}:{AC1+15}], v[{f}:{f+3}], v[{f+4}:{f+7}], v[{AC1}:{AC1+15}]")
                if both:
                    I(f"v_mfma_f32_32x32x16_bf16 v[{AC0}:{AC0+15}], v[{f}:{f+3}], v[{f+8}:{f+11}], v[{AC0}:{AC0+15}]")
        I("v_swap_b32 v7, v14")
        I("v_swap_b32 v10, v11")
        I("v_add_u32 v8, 640, v8")
        I("v_add_u32 v9, 640, v9")
        I("s_add_u32 s33, s33, 1")
        I(f"s_cmp_lt_u32 s33, {4*(phase+1)}")
        I(f"s_cbranch_scc1 CV_loop{phase}")
    I("v_mov_b32 v8, v15")
    I("s_waitcnt vmcnt(0) lgkmcnt(0)" if "unr" not in FLAGS else "s_waitcnt lgkmcnt(0)")
    stamp()
    if G2F:
        if not CWP: g2_setup(0)
        I("s_lshr_b32 s42, s24, 3")
        I("s_mul_i32 s43, s42, 0xCCCD")
        I("s_lshr_b32 s43, s43, 19")
        I("s_mul_i32 s41, s43, 10")
        I("s_sub_u32 s42, s42, s41")
        I("s_lshl_b32 s42, s42, 2")
        I("s_lshl_b32 s43, s43, 7")
        I("s_add_u32 s43, s43, s42")
        I("s_add_u32 s43, s43, 88")
    if YST:
        I("v_mul_u32_u24 v140, 80, v5")
        I("v_lshl_add_u32 v140, v6, 3, v140")
        I("s_add_u32 s42, s28, 12800")
        I("v_add_u32 v140, s42, v140")
        I("v_lshrrev_b32 v141, 2, v1")
        I("v_mul_u32_u24 v141, 80, v141")
        I("v_and_b32 v142, 3, v1")
        I("v_lshl_add_u32 v141, v142, 4, v141")
        I("v_add_u32 v141, s42, v141")
        I("v_lshl_add_u32 v142, v1, 4, s27")
        if "yt2" in FLAGS:
            I("v_lshrrev_b32 v142, 3, v1")
            I("v_mul_u32_u24 v142, 81920, v142")
            I("v_and_b32 v143, 7, v1")
            I("v_lshl_add_u32 v142, v143, 4, v142")
            I("s_lshl_b32 s42, s24, 7")
    I("v_mul_u32_u24 v10, 24, v6")
    I("v_sub_u32 v10, v8, v10")
    I("v_add_u32 v10, 8, v10")
    I("v_subrev_u32 v11, 2560, v10")
    KV = 16
    for cb in range(2):
        for qq in range(4):
            I(f"ds_read_b64 v[{KV+cb*8+2*qq}:{KV+cb*8+2*qq+1}], v{10+cb} offset:{48-16*qq}")
    I("s_and_b32 s25, s24, 1")
    I("s_lshl_b32 s25, s25, 4")
    I("s_lshr_b32 s26, s26, s25")
    I("s_lshl_b32 s26, s26, 16")
    I("v_lshlrev_b32 v12, 6, v5")
    I("v_lshl_add_u32 v12, v6, 3, v12")
    I("v_add_u32 v12, s27, v12")
    I("s_nop 7")
    I("s_waitcnt lgkmcnt(0)")
    for cb in range(2):
        ac = AC0 if cb == 0 else AC1
        for qq in range(4):
            k0 = KV + cb*8 + 2*qq
            t = 40 + (qq % 2)*12
            y = ac + 4*qq
            hi16(t+0, k0+1); lo16(t+1, k0+1); hi16(t+2, k0); lo16(t+3, k0)
            for r in range(4):
                I(f"v_mul_f32 v{t+r}, s26, v{t+r}")
            I(f"v_cvt_pk_bf16_f32 v{t+4}, v{t}, v{t+1}")
            I(f"v_cvt_pk_bf16_f32 v{t+5}, v{t+2}, v{t+3}")
            I(f"v_cvt_pk_bf16_f32 v{t+6}, v{y}, v{y+1}")
            I(f"v_cvt_pk_bf16_f32 v{t+7}, v{y+2}, v{y+3}")
            lo16(t, t+4); hi16(t+1, t+4); lo16(t+2, t+5); hi16(t+3, t+5)
            lo16(y, t+6); hi16(y+1, t+6); lo16(y+2, t+7); hi16(y+3, t+7)
            for r in range(4):
                I(f"v_add_f32 v{t+r}, v{t+r}, v{y+r}")
            I(f"v_cvt_pk_bf16_f32 v{t+8}, v{t}, v{t+1}")
            I(f"v_cvt_pk_bf16_f32 v{t+9}, v{t+2}, v{t+3}")
            if YST: I(f"ds_write_b64 v140, v[{t+8}:{t+9}] offset:{cb*2560+16*qq}")
            else: I(f"buffer_store_dwordx2 v[{t+8}:{t+9}], v12, s[20:23], 0 offen offset:{cb*2048+16*qq}")
    if YST:
        I("s_waitcnt lgkmcnt(0)")
        for i in range(4): I(f"ds_read_b128 v[{16+4*i}:{19+4*i}], v141 offset:{1280*i}")
        for i in range(4):
            I(f"s_waitcnt lgkmcnt({3-i})")
            if "yt2" in FLAGS:
                I(f"buffer_store_dwordx4 v[{16+4*i}:{19+4*i}], v142, s[20:23], s42 offen{SCY}")
                if i < 3: I(f"s_add_u32 s42, s42, {8*81920}")
            else: I(f"buffer_store_dwordx4 v[{16+4*i}:{19+4*i}], v142, s[20:23], 0 offen offset:{1024*i}{SCY}")
    if G2F:
        g2_head("conv")
        gen_g2()
    I("s_waitcnt vmcnt(0)")
    stamp()
    stamp_dump(255 if BIG else N_G1 + 7)
    if BIG: wgt_end(1)
    I("s_endpgm")
    e("M_wdt:")
    I("s_waitcnt lgkmcnt(0)")
    if "wlate" in FLAGS: I("s_barrier")
    if BIG and "pfm" in FLAGS:
        I("s_sub_u32 s26, s3, 6")
        I("s_mul_i32 s27, s26, 176")
        I("s_sub_u32 s27, s24, s27")
        I("s_lshl_b32 s26, s26, 3")
        I("s_add_u32 s26, s26, 56")
        I("s_load_dwordx2 s[28:29], s[0:1], s26")
        I("s_mul_i32 s27, s27, 12800")
        I(f"s_mov_b32 s30, {SZ_W}")
        I("s_mov_b32 s31, 0x00020000")
        I("v_and_b32 v1, 63, v0")
        I("v_lshlrev_b32 v1, 4, v1")
        I("s_waitcnt lgkmcnt(0)")
        for i in range(13):
            I(f"buffer_load_dwordx4 v[{100+4*i}:{103+4*i}], v1, s[28:31], s27 offen")
            I("s_add_u32 s27, s27, 1024")
    if "pfa128" in FLAGS or "pfa64" in FLAGS:
        G = 128 if "pfa128" in FLAGS else 64
        NL = 1792 // G
        I("s_cmp_lg_u32 s3, 3")
        I("s_cbranch_scc1 M_nopf")
        I("s_bfe_u32 s26, s2, 0x50003")
        I("s_lshr_b32 s27, s26, 4")
        I("s_lshl_b32 s27, s27, 3")
        I("s_add_u32 s27, s27, 56")
        I("s_load_dwordx2 s[28:29], s[0:1], s27")
        I("s_and_b32 s26, s26, 15")
        I("s_mul_i32 s26, s26, 138240")
        I("s_bfe_u32 s27, s2, 0x10002")
        I("s_mul_i32 s27, s27, 1792")
        I("s_add_u32 s26, s26, s27")
        I(f"s_mov_b32 s30, {SZ_W}")
        I("s_mov_b32 s31, 0x00020000")
        I("v_and_b32 v1, 63, v0")
        I("s_waitcnt lgkmcnt(0)")
        n = (40*NL + 63)//64
        mul = (65536 + NL - 1)//NL
        for i in range(n):
            I(f"v_add_u32 v2, {64*i}, v1")
            I(f"v_mul_u32_u24 v3, {mul}, v2")
            I("v_lshrrev_b32 v3, 16, v3")
            I(f"v_mul_u32_u24 v4, {NL}, v3")
            I("v_sub_u32 v4, v2, v4")
            I("v_mul_u32_u24 v3, 3456, v3")
            I(f"v_lshl_add_u32 v{100+i}, v4, {7 if G==128 else 6}, v3")
            I(f"buffer_load_dword v{140+i}, v{100+i}, s[28:31], s26 offen")
        e("M_nopf:")
    WBAR = 0
    for f_ in FLAGS:
        if f_.startswith("wbar"): WBAR = int(f_[4:])
    I("s_cmp_ge_u32 s24, 270")
    I(f"s_cbranch_scc1 {'M_exitb' if WBAR else 'M_exitw'}")
    I("s_load_dwordx2 s[4:5], s[0:1], 72")
    I("s_mul_i32 s17, s24, 0xCCCD")
    I("s_lshr_b32 s17, s17, 19")
    I("s_mul_i32 s18, s17, 10")
    I("s_sub_u32 s18, s24, s18")
    I("v_and_b32 v1, 7, v0")
    I("v_bfe_u32 v2, v0, 3, 2")
    I("v_bfe_u32 v6, v0, 5, 1")
    I("s_lshl_b32 s18, s18, 6")
    I("v_lshl_add_u32 v1, v1, 3, s18")
    I("s_lshl_b32 s19, s17, 1")
    I("v_add_u32 v6, s19, v6")
    I("v_lshlrev_b32 v7, 5, v6")
    I("v_lshl_add_u32 v7, v2, 2, v7")
    I("v_mul_u32_u24 v3, 0x500, v7")
    I("v_lshl_add_u32 v3, v1, 1, v3")
    I("v_add_u32 v4, 0x5000, v3")
    I("s_waitcnt lgkmcnt(0)")
    srd(8, 4, SZ_W)
    srd(12, 6, SZ_W, WS_WDT)
    for i in range(8):
        b = 3 if i < 4 else 4
        I(f"buffer_load_dwordx4 v[{8+4*i}:{11+4*i}], v{b}, s[8:11], 0 offen offset:{(i%4)*1280}")
    I("s_mov_b32 s20, 0x05040100")
    I("s_mov_b32 s21, 0x07060302")
    I("v_lshrrev_b32 v5, 4, v1")
    I("v_mul_u32_u24 v5, 54, v5")
    I("v_add_u32 v5, v5, v6")
    I("v_lshlrev_b32 v5, 10, v5")
    I("v_lshl_add_u32 v5, v2, 8, v5")
    I("v_and_b32 v7, 15, v1")
    I("v_lshl_add_u32 v5, v7, 4, v5")
    for _ in range(WBAR): I("s_barrier")
    I("s_waitcnt vmcnt(0)")
    for dd in range(8):
        ob = 40 + 4*dd
        sel = 20 + (dd & 1)
        for q in range(4):
            I(f"v_perm_b32 v{ob+q}, v{8+4*(2*q+1)+dd//2}, v{8+4*(2*q)+dd//2}, s{sel}")
    for dd in range(8):
        ob = 40 + 4*dd
        I(f"buffer_store_dwordx4 v[{ob}:{ob+3}], v5, s[12:15], 0 offen offset:{16*dd}")
    if WBAR:
        I("s_endpgm")
        e("M_exitb:")
        for _ in range(WBAR): I("s_barrier")
    e("M_exitw:")
    I("s_waitcnt vmcnt(0)")
    e("M_exit:")
    I("s_endpgm")
    if FUSE: kernel_desc("mid_kernel", 256, 102)
    else: kernel_desc("mid_kernel", 256 if any(f.startswith("cla") for f in FLAGS) else (240 if BIG else 208), 80)

def gen_k3():
    kernel_header("fin_kernel")
    I(f"s_cmp_ge_u32 s2, {64 if 'fin64' in FLAGS else 256}")
    I("s_cbranch_scc1 F_exit")
    I("s_load_dwordx2 s[6:7], s[0:1], 96")
    I("s_load_dwordx2 s[4:5], s[0:1], 0")
    I("s_load_dwordx2 s[30:31], s[0:1], 80")
    stamp()
    I("v_lshrrev_b32 v1, 6, v0")
    I("s_nop 0")
    I("v_readfirstlane_b32 s3, v1")
    I("s_waitcnt lgkmcnt(0)")
    if "fsb" in FLAGS: stamp()
    srd(8, 6, SZ_W, WS_WDT)
    srd(12, 6, SZ_H, WS_H)
    srd(16, 6, SZ_SD, WS_YT)
    if FUSE: srd(20, 6, S*8, WS_ST)
    else: srd(20, 6, SZ_SD, WS_XN)
    srd(24, 4, SZ_SD)
    srd(32, 30, SZ_SD)
    if "fin2e" in FLAGS:
        I("s_bfe_u32 s36, s2, 0x10002")
        I("s_lshl_b32 s36, s36, 2")
        I("s_bfe_u32 s37, s2, 0x20003")
        I("s_add_u32 s36, s36, s37")
        I("s_mul_i32 s36, s36, 80")
        I("s_and_b32 s37, s2, 3")
        I("s_lshl_b32 s37, s37, 3")
        I("s_lshr_b32 s38, s2, 5")
        I("s_add_u32 s37, s37, s38")
        I("s_lshl_b32 s37, s37, 6")
    elif "fin2d" in FLAGS:
        I("s_and_b32 s36, s2, 1")
        I("s_lshl_b32 s36, s36, 2")
        I("s_bfe_u32 s37, s2, 0x20003")
        I("s_add_u32 s36, s36, s37")
        I("s_mul_i32 s36, s36, 80")
        I("s_bfe_u32 s37, s2, 0x20001")
        I("s_lshl_b32 s37, s37, 3")
        I("s_lshr_b32 s38, s2, 5")
        I("s_add_u32 s37, s37, s38")
        I("s_lshl_b32 s37, s37, 6")
    elif "finswap" in FLAGS:
        I("s_lshr_b32 s36, s2, 5")
        I("s_mul_i32 s36, s36, 80")
        I("s_and_b32 s37, s2, 31")
        I("s_lshl_b32 s37, s37, 6")
    else:
        I("s_and_b32 s36, s2, 7")
        I("s_mul_i32 s36, s36, 80")
        I("s_lshr_b32 s37, s2, 3")
        I("s_lshl_b32 s37, s37, 6")
    I("s_mul_i32 s38, s3, 14")
    I("s_cmp_eq_u32 s3, 3")
    I("s_cselect_b32 s39, 1, 0")
    I("s_sub_u32 s38, s38, s39")
    I("s_cmp_ge_u32 s3, 2")
    I("s_cselect_b32 s39, 13, 14")
    I("s_add_u32 s47, s38, s39")
    I("s_lshl_b32 s45, s38, 10")
    I("s_lshl_b32 s47, s47, 10")
    if "rot" in FLAGS:
        I("s_bfe_u32 s46, s2, 0x20003")
        I("s_lshl_b32 s46, s46, 2")
        I("s_lshr_b32 s44, s2, 5")
        I("s_lshl_b32 s44, s44, 1")
        I("s_add_u32 s46, s46, s44")
        I("s_cmp_ge_u32 s46, 13")
        I("s_cselect_b32 s44, 13, 0")
        I("s_sub_u32 s46, s46, s44")
        I("s_cmp_ge_u32 s46, 13")
        I("s_cselect_b32 s44, 13, 0")
        I("s_sub_u32 s46, s46, s44")
        I("s_lshl_b32 s46, s46, 10")
        I("s_add_u32 s46, s46, s45")
    else:
        I("s_mov_b32 s46, s45")
    I("s_mov_b32 s44, 0")
    I("v_and_b32 v1, 15, v0")
    I("v_bfe_u32 v2, v0, 4, 2")
    I("v_and_b32 v12, 63, v0")
    if "pf" in FLAGS:
        I("s_lshr_b32 s52, s2, 3")
        I("s_lshl_b32 s52, s52, 2")
        I("s_add_u32 s52, s52, s3")
        I("s_and_b32 s53, s2, 1")
        I("s_mul_i32 s53, s53, 1105920")
        I("s_mul_i32 s54, s52, 8640")
        I("s_add_u32 s53, s53, s54")
        I("v_lshlrev_b32 v240, 6, v12")
        I("buffer_load_dword v241, v240, s[8:11], s53 offen")
        I("s_add_u32 s53, s53, 4096")
        I("buffer_load_dword v242, v240, s[8:11], s53 offen")
        I("s_add_u32 s53, s53, 544")
        I("buffer_load_dword v243, v240, s[8:11], s53 offen")
        I("s_bfe_u32 s53, s2, 0x20001")
        I("s_mul_i32 s53, s53, 1769472")
        I("s_mul_i32 s54, s52, 13824")
        I("s_add_u32 s53, s53, s54")
        for i, inc in enumerate((4096, 4096, 1536, 0)):
            I(f"buffer_load_dword v{244+i}, v240, s[12:15], s53 offen")
            if inc: I(f"s_add_u32 s53, s53, {inc}")
    I("s_lshr_b32 s52, s36, 4")
    I("s_mul_i32 s52, s52, 55296")
    I("v_lshl_add_u32 v3, v12, 4, s52")
    for jd in range(1, 5):
        I(f"v_add_u32 v{3+jd}, {jd*55296}, v3")
    I("s_lshr_b32 s52, s37, 4")
    I("s_mul_i32 s52, s52, 55296")
    I("v_lshl_add_u32 v8, v12, 4, s52")
    for js in range(1, 4):
        I(f"v_add_u32 v{8+js}, {js*55296}, v8")
    def acc(jd, js): return (js*5 + jd)*4
    FRB = 16
    NB = 5
    def ld(buf):
        f = FRB + buf*36
        I("s_cmp_lt_u32 s44, s39")
        I("s_cselect_b32 s48, s46, 0x40000000")
        for jd in range(5):
            r = f + 4*jd
            I(f"buffer_load_dwordx4 v[{r}:{r+3}], v{3+jd}, s[8:11], s48 offen{CP}")
        for js in range(4):
            r = f + 20 + 4*js
            I(f"buffer_load_dwordx4 v[{r}:{r+3}], v{8+js}, s[12:15], s48 offen{CP}")
        I("s_add_u32 s46, s46, 1024")
        I("s_cmp_ge_u32 s46, s47")
        I("s_cselect_b32 s46, s45, s46")
        I("s_add_u32 s44, s44, 1")
    def mm(buf):
        f = FRB + buf*36
        for js in range(4):
            for jd in range(5):
                c = acc(jd, js)
                a = f + 4*jd; b = f + 20 + 4*js
                I(f"v_mfma_f32_16x16x32_bf16 a[{c}:{c+3}], v[{a}:{a+3}], v[{b}:{b+3}], a[{c}:{c+3}]")
    YF = 196; XX = 216
    FINL = -1
    for f_ in FLAGS:
        if f_.startswith('finl'): FINL = int(f_[4:])
    def epi_loads():
        I0 = globals()["I"]
        def I(x):
            if "xne" in FLAGS and x.startswith("buffer_load"): return
            I0(x)
        I("s_lshr_b32 s41, s3, 1")
        I("s_lshl_b32 s41, s41, 5")
        I("s_add_u32 s41, s41, s37")
        I("s_lshl_b32 s41, s41, 1")
        I("v_add_u32 v14, s36, v1")
        I("v_lshlrev_b32 v14, 12, v14")
        I("v_lshl_add_u32 v14, v2, 4, v14")
        I("v_add_u32 v14, s41, v14")
        YF = 196
        for jd in range(5):
            I(f"v_add_u32 v15, {jd*16*4096}, v14")
            I(f"buffer_load_dwordx4 v[{YF+4*jd}:{YF+4*jd+3}], v15, s[16:19], 0 offen")
        I("s_lshl_b32 s42, s3, 4")
        I("s_add_u32 s42, s42, s37")
        I("v_add_u32 v15, s42, v1")
        I("v_mul_u32_u24 v15, 0x500, v15")
        I("v_lshl_add_u32 v15, v2, 3, v15")
        I("s_lshl_b32 s43, s36, 1")
        I("v_add_u32 v15, s43, v15")
        XX = 216
        I("s_lshr_b32 s50, s42, 4")
        I("s_mul_i32 s50, s50, 20480")
        I("v_lshrrev_b32 v14, 1, v2")
        I("v_lshlrev_b32 v14, 8, v14")
        I("v_lshl_add_u32 v14, v1, 4, v14")
        I("v_and_b32 v13, 1, v2")
        I("v_lshl_add_u32 v14, v13, 3, v14")
        I("v_add_u32 v14, s50, v14")
        if FUSE:
            I("v_add_u32 v14, s42, v1")
            I("v_lshlrev_b32 v14, 3, v14")
            I(f"buffer_load_dwordx2 v[{XX+10}:{XX+11}], v14, s[20:23], 0 offen")
        for jd in range(5):
            I(f"buffer_load_dwordx2 v[{XX+2*jd}:{XX+2*jd+1}], v15, s[24:27], 0 offen offset:{32*jd}")
            if FUSE: continue
            I(f"s_add_u32 s50, s36, {16*jd}")
            I("s_lshr_b32 s51, s50, 5")
            I("s_lshl_b32 s51, s51, 10")
            I("s_and_b32 s50, s50, 16")
            I("s_lshl_b32 s50, s50, 5")
            I("s_add_u32 s51, s51, s50")
            I(f"buffer_load_dwordx2 v[{XX+10+2*jd}:{XX+11+2*jd}], v14, s[20:23], s51 offen")
    if "fsb" in FLAGS: stamp()
    if FINL < 0 and not ("nf" in FLAGS and any(f_.startswith("el") for f_ in FLAGS)): epi_loads()
    if "fsb" in FLAGS: stamp()
    NB2 = NB
    for f_ in FLAGS:
        if f_.startswith("nb"): NB2 = int(f_[2:])
    def breg(buf, i):
        if buf < 5: return "v", FRB + buf*36 + 4*i
        return "a", 80 + (buf-5)*36 + 4*i
    def ld2(buf):
        for jd in range(5):
            t, r = breg(buf, jd)
            I(f"buffer_load_dwordx4 {t}[{r}:{r+3}], v{3+jd}, s[8:11], s46 offen{CP}")
        for js in range(4):
            t, r = breg(buf, 5+js)
            I(f"buffer_load_dwordx4 {t}[{r}:{r+3}], v{8+js}, s[12:15], s46 offen{CP}")
        I("s_add_u32 s46, s46, 1024")
    def mm2(buf, zero=False):
        for js in range(4):
            for jd in range(5):
                c = acc(jd, js)
                t, a = breg(buf, jd); t, b = breg(buf, 5+js)
                cin = "0" if zero else f"a[{c}:{c+3}]"
                I(f"v_mfma_f32_16x16x32_bf16 a[{c}:{c+3}], {t}[{a}:{a+3}], {t}[{b}:{b+3}], {cin}")
    NEWF = "nf" in FLAGS
    ELP = -1; SPK = 4
    for f_ in FLAGS:
        if f_.startswith("el"): ELP = int(f_[2:])
        if f_.startswith("spk"): SPK = int(f_[3:])
    for b in range(NB2-1):
        ld2(b)
        if NEWF and ELP == b and "xne" not in FLAGS: epi_loads()
        if "fsb" in FLAGS: stamp()
    if FINL >= 0: epi_loads()
    if not NEWF:
        for j in range(80):
            I(f"v_accvgpr_write_b32 a{j}, 0")
    HOIST = "hoist" in FLAGS
    def hoisted(part=None):
        IDB2, TQ, TYQ = 244, 248, 236
        if part is None or part == 0:
            I("s_and_b32 s44, s3, 1")
            I("s_lshl_b32 s44, s44, 4")
            I(f"v_add_u32 v{TQ}, s44, v1")
            I(f"v_lshrrev_b32 v{TQ+1}, 3, v{TQ}")
            I(f"v_cmp_eq_u32 vcc, v{TQ+1}, v2")
            I(f"v_and_b32 v{TQ+1}, 7, v{TQ}")
            I(f"v_and_b32 v{TQ+2}, 1, v{TQ+1}")
            I(f"v_lshlrev_b32 v{TQ+2}, 4, v{TQ+2}")
            I(f"v_mov_b32 v{TQ+3}, 0x3f80")
            I(f"v_lshlrev_b32 v{TQ+3}, v{TQ+2}, v{TQ+3}")
            I(f"v_lshrrev_b32 v{TQ+1}, 1, v{TQ+1}")
            I(f"v_cndmask_b32 v{TQ+3}, 0, v{TQ+3}, vcc")
            for j in range(4):
                I(f"v_cmp_eq_u32 vcc, {j}, v{TQ+1}")
                I("s_nop 1")
                I(f"v_cndmask_b32 v{IDB2+j}, 0, v{TQ+3}, vcc")
        if part is None:
            if "fsb" in FLAGS: stamp()
            if FINL < 0: I(f"s_waitcnt vmcnt({9*(NB2-1)})")
            if "fsb" in FLAGS: stamp()
        I("s_nop 1")
        for jd in range(5):
            if part is not None and jd != part: continue
            ty = TYQ + (jd % 2)*4; t = TQ + (jd % 2)*4
            x0 = XX + 2*jd; n0 = XX + 10 + 2*jd
            I(f"v_mfma_f32_16x16x32_bf16 v[{ty}:{ty+3}], v[{YF+4*jd}:{YF+4*jd+3}], v[{IDB2}:{IDB2+3}], 0")
            if FUSE:
                lo16(t, x0); hi16(t+1, x0); lo16(t+2, x0+1); hi16(t+3, x0+1)
                for r in range(4): I(f"v_add_f32 v{t+r}, v{t+r}, v{XX+11}")
                for r in range(4): I(f"v_cvt_pk_bf16_f32 v{t+r}, 0, v{t+r}")
                for r in range(4): I(f"v_mul_f32 v{t+r}, v{t+r}, v{XX+10}")
                for r in range(4): I(f"v_cvt_pk_bf16_f32 v{t+r}, 0, v{t+r}")
            else:
                lo16(t, n0); hi16(t+1, n0); lo16(t+2, n0+1); hi16(t+3, n0+1)
            I("s_nop 7")
            I("s_nop 3")
            for r in range(4):
                I(f"v_mul_f32 v{t+r}, v{t+r}, v{ty+r}")
            I(f"v_cvt_pk_bf16_f32 v{ty}, v{t}, v{t+1}")
            I(f"v_cvt_pk_bf16_f32 v{ty+1}, v{t+2}, v{t+3}")
            lo16(t, ty); hi16(t+1, ty); lo16(t+2, ty+1); hi16(t+3, ty+1)
            lo16(ty, x0); hi16(ty+1, x0); lo16(ty+2, x0+1); hi16(ty+3, x0+1)
            for r in range(4):
                I(f"v_add_f32 v{t+r}, v{t+r}, v{ty+r}")
            I(f"v_cvt_pk_bf16_f32 v{x0}, v{t}, v{t+1}")
            I(f"v_cvt_pk_bf16_f32 v{x0+1}, v{t+2}, v{t+3}")
    if HOIST and FINL < 0 and not NEWF: hoisted()
    stamp()
    NEL = 0 if "xne" in FLAGS else 11
    for k in range(14):
        nb = k + NB2 - 1
        if nb <= 12:
            ld2(nb % NB2)
            if NEWF and ELP == nb and "xne" not in FLAGS: epi_loads()
        elif nb == 13:
            I("s_cmp_ge_u32 s3, 2")
            I("s_cbranch_scc1 F_skip13")
            ld2(nb % NB2)
            e("F_skip13:")
        if k == 13:
            I("s_cmp_ge_u32 s3, 2")
            I("s_cbranch_scc1 F_done")
        rem = max(0, min(12, nb) - k)
        extra = NEL if (FINL >= 0 and k < NB2 - 1) else 0
        if NEWF: extra = NEL if (k <= ELP <= nb) else 0
        if k < 13: I(f"s_waitcnt vmcnt({min(63, 9*rem + extra)})")
        mm2(k % NB2, NEWF and k == 0)
        if HOIST and FINL >= 0 and k == max(FINL, NB2 - 1): hoisted()
        if NEWF and "xnh" not in FLAGS and SPK <= k < SPK + 5:
            assert k > ELP
            hoisted(k - SPK)
        if "fst" in FLAGS and k in (0, 3, 7): stamp()
        if "fsa" in FLAGS and k in (0, 1, 2, 3, 4, 5, 6, 8, 10, 12): stamp()
        if "fsb" in FLAGS and k in ((0, 3, 5, 7, 10) if NEWF else (0, 3, 7)): stamp()
    e("F_done:")
    stamp()
    I("s_mul_i32 s40, s3, 20480")
    I("v_lshlrev_b32 v13, 4, v12")
    I("v_add_u32 v13, s40, v13")
    I("s_nop 7")
    for js in range(4):
        for jd in range(5):
            c = acc(jd, js)
            I(f"ds_write_b128 v13, a[{c}:{c+3}] offset:{(js*5+jd)*1024}")
    I("s_waitcnt lgkmcnt(0)")
    I("s_barrier")
    I("s_mul_i32 s40, s3, 5120")
    I("v_lshlrev_b32 v12, 4, v12")
    I("v_add_u32 v13, s40, v12")
    I("v_add_u32 v12, 40960, v13")
    R = 96
    for src in range(4):
        for jd in range(5):
            r = R + (src*5 + jd)*4
            I(f"ds_read_b128 v[{r}:{r+3}], v{13 if src < 2 else 12} offset:{(src%2)*20480 + jd*1024}")
    if HOIST:
        I("s_waitcnt lgkmcnt(0)")
        for jd in range(5):
            r0 = R + jd*4
            I(f"v_add_f32 v{r0}, v{r0}, v{R+(5+jd)*4}")
            I(f"v_add_f32 v{r0+1}, v{r0+1}, v{R+(5+jd)*4+1}")
            I(f"v_add_f32 v{r0+2}, v{r0+2}, v{R+(5+jd)*4+2}")
            I(f"v_add_f32 v{r0+3}, v{r0+3}, v{R+(5+jd)*4+3}")
            for src in range(2, 4):
                r = R + (src*5 + jd)*4
                for j in range(4):
                    I(f"v_add_f32 v{r0+j}, v{r0+j}, v{r+j}")
            b = r0; t = 16 + (jd % 2)*16; x0 = XX + 2*jd
            I(f"v_cvt_pk_bf16_f32 v{t+4}, v{b}, v{b+1}")
            I(f"v_cvt_pk_bf16_f32 v{t+5}, v{b+2}, v{b+3}")
            lo16(t, x0); hi16(t+1, x0); lo16(t+2, x0+1); hi16(t+3, x0+1)
            lo16(t+6, t+4); hi16(t+7, t+4); lo16(t+8, t+5); hi16(t+9, t+5)
            for r in range(4):
                I(f"v_add_f32 v{t+r}, v{t+r}, v{t+6+r}")
            I(f"v_cvt_pk_bf16_f32 v{t+10}, v{t}, v{t+1}")
            I(f"v_cvt_pk_bf16_f32 v{t+11}, v{t+2}, v{t+3}")
            I(f"buffer_store_dwordx2 v[{t+10}:{t+11}], v15, s[32:35], 0 offen offset:{32*jd}")
    else:
        IDB = 60
        I("s_and_b32 s44, s3, 1")
        I("s_lshl_b32 s44, s44, 4")
        I("v_add_u32 v64, s44, v1")
        I("v_lshrrev_b32 v65, 3, v64")
        I("v_cmp_eq_u32 vcc, v65, v2")
        I("v_and_b32 v65, 7, v64")
        I("v_and_b32 v66, 1, v65")
        I("v_lshlrev_b32 v66, 4, v66")
        I("v_mov_b32 v67, 0x3f80")
        I("v_lshlrev_b32 v67, v66, v67")
        I("v_lshrrev_b32 v65, 1, v65")
        I("v_cndmask_b32 v67, 0, v67, vcc")
        for j in range(4):
            I(f"v_cmp_eq_u32 vcc, {j}, v65")
            I("s_nop 1")
            I(f"v_cndmask_b32 v{IDB+j}, 0, v67, vcc")
        TY = 64
        I("s_nop 1")
        for jd in range(5):
            I(f"v_mfma_f32_16x16x32_bf16 v[{TY+4*jd}:{TY+4*jd+3}], v[{YF+4*jd}:{YF+4*jd+3}], v[{IDB}:{IDB+3}], 0")
        I("s_waitcnt lgkmcnt(0)")
        for jd in range(5):
            r0 = R + jd*4
            for src in range(1, 4):
                r = R + (src*5 + jd)*4
                for j in range(4):
                    I(f"v_add_f32 v{r0+j}, v{r0+j}, v{r+j}")
        I("s_waitcnt vmcnt(0)")
        for jd in range(5):
            b = R + jd*4
            ty = TY + 4*jd
            t = 180 + (jd % 2)*16
            x0 = XX + 2*jd; n0 = XX + 10 + 2*jd
            lo16(t, n0); hi16(t+1, n0); lo16(t+2, n0+1); hi16(t+3, n0+1)
            for r in range(4):
                I(f"v_mul_f32 v{t+r}, v{t+r}, v{ty+r}")
            I(f"v_cvt_pk_bf16_f32 v{t+4}, v{t}, v{t+1}")
            I(f"v_cvt_pk_bf16_f32 v{t+5}, v{t+2}, v{t+3}")
            lo16(t, t+4); hi16(t+1, t+4); lo16(t+2, t+5); hi16(t+3, t+5)
            lo16(t+6, x0); hi16(t+7, x0); lo16(t+8, x0+1); hi16(t+9, x0+1)
            for r in range(4):
                I(f"v_add_f32 v{t+r}, v{t+r}, v{t+6+r}")
            I(f"v_cvt_pk_bf16_f32 v{t+4}, v{t}, v{t+1}")
            I(f"v_cvt_pk_bf16_f32 v{t+5}, v{t+2}, v{t+3}")
            lo16(t, t+4); hi16(t+1, t+4); lo16(t+2, t+5); hi16(t+3, t+5)
            I(f"v_cvt_pk_bf16_f32 v{t+4}, v{b}, v{b+1}")
            I(f"v_cvt_pk_bf16_f32 v{t+5}, v{b+2}, v{b+3}")
            lo16(t+6, t+4); hi16(t+7, t+4); lo16(t+8, t+5); hi16(t+9, t+5)
            for r in range(4):
                I(f"v_add_f32 v{t+r}, v{t+r}, v{t+6+r}")
            I(f"v_cvt_pk_bf16_f32 v{t+10}, v{t}, v{t+1}")
            I(f"v_cvt_pk_bf16_f32 v{t+11}, v{t+2}, v{t+3}")
            I(f"buffer_store_dwordx2 v[{t+10}:{t+11}], v15, s[32:35], 0 offen offset:{32*jd}")
    I("s_waitcnt vmcnt(0)")
    stamp()
    stamp_dump(9)
    e("F_exit:")
    I("s_endpgm")
    kernel_desc("fin_kernel", 256+80+36*max(0, NB2-5), 102 if STAMP else 80, accum=256)

def gen_k3b():
    NSL = 7; ELS = 2; NSTG = 27
    for f_ in FLAGS:
        if f_.startswith("f3n"): NSL = int(f_[3:])
        if f_.startswith("f3e"): ELS = int(f_[3:])
    XST = 0
    for f_ in FLAGS:
        if f_.startswith("f3s"): XST = int(f_[3:])
    XYS = [ELS + q*XST for q in range(5)]
    SLOT = 18432; YB = NSL*SLOT; XB = YB + 10240
    F3LDS[0] = XB + 10240
    kernel_header("fin_kernel")
    I("s_cmp_ge_u32 s2, 256")
    I("s_cbranch_scc1 F_exit")
    I("s_load_dwordx2 s[6:7], s[0:1], 96")
    I("s_load_dwordx2 s[4:5], s[0:1], 0")
    I("s_load_dwordx2 s[30:31], s[0:1], 80")
    stamp()
    I("v_lshrrev_b32 v1, 6, v0")
    I("v_and_b32 v12, 63, v0")
    I("v_readfirstlane_b32 s3, v1")
    I("s_and_b32 s36, s2, 1")
    I("s_lshl_b32 s36, s36, 2")
    I("s_bfe_u32 s37, s2, 0x20003")
    I("s_add_u32 s36, s36, s37")
    I("s_bfe_u32 s37, s2, 0x20001")
    I("s_lshl_b32 s37, s37, 3")
    I("s_lshr_b32 s38, s2, 5")
    I("s_add_u32 s37, s37, s38")
    I("s_cmp_lt_u32 s3, 4")
    I("s_cbranch_scc1 F_cons")
    I("s_mul_i32 s52, s36, %d" % (5*55296))
    I("s_mul_i32 s53, s37, %d" % (4*55296))
    I("s_bfe_u32 s41, s3, 0x10001")
    I("s_lshl_b32 s46, s41, 10")
    I("s_mul_i32 s40, s41, 9216")
    I("s_and_b32 s42, s3, 1")
    I("s_cselect_b32 s52, s53, s52")
    I(f"s_cselect_b32 s44, {WS_H:#x}, {WS_WDT:#x}") if False else None
    I("v_lshl_add_u32 v3, v12, 4, s52")
    for i in range(1, 5):
        I(f"v_add_u32 v{3+i}, {i*55296 - 1024*(i % 4)}, v3")
    I("s_cbranch_scc1 F_ph")
    for t in range(2):
        if t == 1: e("F_ph:")
        n = 5 - t
        if t: I("s_add_u32 s40, s40, 5120")
        I("s_waitcnt lgkmcnt(0)")
        srd(8, 6, SZ_H if t else SZ_W, WS_H if t else WS_WDT)
        vq = []
        def issue(st):
            for i in range(n):
                if i % 4 == 0: I(f"s_add_u32 m0, s40, {(st % NSL)*SLOT + (i//4)*4096}")
                I(f"buffer_load_dwordx4 v{3+i}, s[8:11], s46 offen offset:{1024*(i % 4)} lds"); vq.append(st)
            I("s_add_u32 s46, s46, 2048")
        def xy():
            srd(16, 6, SZ_SD, WS_YT)
            srd(24, 4, SZ_SD)
            I("s_and_b32 s47, s3, 3")
            I("v_lshrrev_b32 v13, 3, v12")
            I("v_and_b32 v14, 7, v12")
            I("v_xor_b32 v14, v14, v13")
            YT2 = "yt2" in FLAGS
            CS_ = 128 if YT2 else 4096
            I(f"v_lshlrev_b32 v13, {7 if YT2 else 12}, v13")
            I("v_lshl_add_u32 v13, v14, 4, v13")
            I("s_mul_i32 s48, s36, %d" % (80*CS_))
            I("s_mul_i32 s49, s37, %d" % (81920 if YT2 else 128))
            I("s_add_u32 s48, s48, s49")
            I(f"s_lshl_b32 s49, s47, {10 if YT2 else 15}")
            I("s_add_u32 s48, s48, s49")
            I("s_lshl_b32 s50, s47, 10")
            I("s_mul_i32 s51, s37, %d" % (64*1280))
            I("s_mul_i32 s49, s36, 160")
            I("s_add_u32 s51, s51, s49")
            I("s_lshl_b32 s49, s47, 6")
            def xoff(dst, add):
                I(f"v_add_u32 v{dst}, s49, v12")
                if add: I(f"v_add_u32 v{dst}, {add}, v{dst}")
                I(f"v_mul_u32_u24 v15, 6554, v{dst}")
                I("v_lshrrev_b32 v15, 16, v15")
                I("v_mul_u32_u24 v15, 1120, v15")
                I(f"v_lshl_add_u32 v{dst}, v{dst}, 4, v15")
            xoff(16, 0); xoff(17, 256); xoff(18, 384)
        def xyi(q):
            if q == 0: xy()
            if q < 4:
                i = q // 2
                if q % 2 == 0:
                    I(f"s_add_u32 m0, s50, {YB + 4096*i}")
                    I("buffer_load_dwordx4 v13, s[16:19], s48 offen lds"); vq.append(-1)
                    I(f"s_add_u32 s48, s48, {4*8*(128 if 'yt2' in FLAGS else 4096)}")
                else:
                    I(f"s_add_u32 m0, s50, {XB + 4096*i}")
                    I(f"buffer_load_dwordx4 v{16+i}, s[24:27], s51 offen lds"); vq.append(-1)
                return
            I("s_cmp_eq_u32 s41, 0")
            I(f"s_cbranch_scc0 F_x5_{t}")
            I(f"s_add_u32 m0, s50, {YB + 8192}")
            I("buffer_load_dwordx4 v13, s[16:19], s48 offen lds")
            I(f"s_branch F_x5d_{t}")
            e(f"F_x5_{t}:")
            I(f"s_add_u32 m0, s50, {XB + 6144}")
            I("buffer_load_dwordx4 v18, s[24:27], s51 offen lds")
            e(f"F_x5d_{t}:")
            vq.append(-1)
        def xya(st):
            for q in range(5):
                if XYS[q] == st: xyi(q)
        PST = "pst" in FLAGS
        nst[0] = 1
        PP_ = NSL; LL = NSL - 1
        for f_ in FLAGS:
            if f_.startswith("f3p"): PP_ = int(f_[3:])
            if f_.startswith("f3l"): LL = int(f_[3:])
        nxt = 0
        for st in range(PP_):
            issue(st); nxt += 1
            xya(st)
            if PST and st in (0, 1, 2): stamp()
        for k in range(NSTG):
            idx = max(i for i, tg in enumerate(vq) if tg == k)
            nrem = len(vq) - 1 - idx
            assert nrem <= 63
            I(f"s_waitcnt vmcnt({nrem})")
            del vq[:idx+1]
            if PST and k in (0, 2, 6, 14): stamp()
            I("s_barrier")
            if PST and k in (2, 6, 14): stamp()
            cnt = 0
            while nxt <= min(k + LL, k - 1 + NSL, NSTG - 1) and cnt < 2:
                issue(nxt)
                xya(nxt)
                if nxt == ELS and XST == 0: cnt += 1
                nxt += 1; cnt += 1
            if PST and k in (2, 6, 14, 20): stamp()
        if PST: stamp_dump(9)
        nst[0] = 1
        I("s_endpgm")
    e("F_cons:")
    I("v_and_b32 v1, 15, v0")
    I("v_bfe_u32 v2, v0, 4, 2")
    I("s_lshl_b32 s42, s37, 6")
    I("s_lshl_b32 s43, s3, 4")
    I("s_add_u32 s42, s42, s43")
    I("v_add_u32 v14, s42, v1")
    I("v_lshlrev_b32 v14, 3, v14")
    FR = 24; AC = 120; YF = 140; XX = 160; IDB2 = 172; TQ = 176; TYQ = 184; OT = 192
    I("s_waitcnt lgkmcnt(0)")
    srd(20, 6, S*8, WS_ST)
    I(f"buffer_load_dwordx2 v[{XX+10}:{XX+11}], v14, s[20:23], 0 offen")
    srd(32, 30, SZ_SD)
    I("v_lshlrev_b32 v3, 4, v12")
    I(f"v_add_u32 v4, {3*SLOT}, v3")
    I(f"v_add_u32 v5, {6*SLOT}, v3")
    I("s_lshl_b32 s43, s3, 10")
    for i in range(3): I(f"v_add_u32 v{6+i}, s43, v{3+i}")
    I("s_lshr_b32 s43, s3, 1")
    I("s_lshl_b32 s43, s43, 2")
    I("v_add_u32 v13, s43, v2")
    I("v_and_b32 v14, 7, v1")
    I("v_xor_b32 v13, v13, v14")
    I("v_lshlrev_b32 v9, 7, v1")
    I("v_lshl_add_u32 v9, v13, 4, v9")
    I(f"v_add_u32 v9, {YB}, v9")
    I("s_mul_i32 s43, s3, 2560")
    I(f"s_add_u32 s43, s43, {XB}")
    I("v_mul_u32_u24 v10, 160, v1")
    I("v_lshl_add_u32 v10, v2, 3, v10")
    I("v_add_u32 v10, s43, v10")
    I("v_lshl_add_u32 v11, v12, 4, s43")
    for u in range(3):
        I(f"v_add_u32 v{16+u}, {64*u}, v12")
        I(f"v_mul_u32_u24 v15, 6554, v{16+u}")
        I("v_lshrrev_b32 v15, 16, v15")
        I("v_mul_u32_u24 v15, 1120, v15")
        I(f"v_lshl_add_u32 v{16+u}, v{16+u}, 4, v15")
    I("s_mul_i32 s42, s42, 1280")
    I("s_mul_i32 s43, s36, 160")
    I("s_add_u32 s42, s42, s43")
    I("s_and_b32 s44, s3, 1")
    I("s_lshl_b32 s44, s44, 4")
    I(f"v_add_u32 v{TQ}, s44, v1")
    I(f"v_lshrrev_b32 v{TQ+1}, 3, v{TQ}")
    I(f"v_cmp_eq_u32 vcc, v{TQ+1}, v2")
    I(f"v_and_b32 v{TQ+1}, 7, v{TQ}")
    I(f"v_and_b32 v{TQ+2}, 1, v{TQ+1}")
    I(f"v_lshlrev_b32 v{TQ+2}, 4, v{TQ+2}")
    I(f"v_mov_b32 v{TQ+3}, 0x3f80")
    I(f"v_lshlrev_b32 v{TQ+3}, v{TQ+2}, v{TQ+3}")
    I(f"v_lshrrev_b32 v{TQ+1}, 1, v{TQ+1}")
    I(f"v_cndmask_b32 v{TQ+3}, 0, v{TQ+3}, vcc")
    for j in range(4):
        I(f"v_cmp_eq_u32 vcc, {j}, v{TQ+1}")
        I("s_nop 1")
        I(f"v_cndmask_b32 v{IDB2+j}, 0, v{TQ+3}, vcc")
    def piece(jd):
        global out
        save = out; out = []
        ty = TYQ + (jd % 2)*4; t = TQ + (jd % 2)*4
        x0 = XX + 2*jd
        I(f"v_mfma_f32_16x16x32_bf16 v[{ty}:{ty+3}], v[{YF+4*jd}:{YF+4*jd+3}], v[{IDB2}:{IDB2+3}], 0")
        lo16(t, x0); hi16(t+1, x0); lo16(t+2, x0+1); hi16(t+3, x0+1)
        for r in range(4): I(f"v_add_f32 v{t+r}, v{t+r}, v{XX+11}")
        for r in range(4): I(f"v_cvt_pk_bf16_f32 v{t+r}, 0, v{t+r}")
        for r in range(4): I(f"v_mul_f32 v{t+r}, v{t+r}, v{XX+10}")
        for r in range(4): I(f"v_cvt_pk_bf16_f32 v{t+r}, 0, v{t+r}")
        if "f3i" not in FLAGS:
            I("s_nop 7")
            I("s_nop 3")
        for r in range(4):
            I(f"v_mul_f32 v{t+r}, v{t+r}, v{ty+r}")
        for r in range(4): I(f"v_cvt_pk_bf16_f32 v{t+r}, 0, v{t+r}")
        lo16(ty, x0); hi16(ty+1, x0); lo16(ty+2, x0+1); hi16(ty+3, x0+1)
        for r in range(4):
            I(f"v_add_f32 v{YF+4*jd+r}, v{t+r}, v{ty+r}")
        for r in range(4): I(f"v_cvt_pk_bf16_f32 v{YF+4*jd+r}, 0, v{YF+4*jd+r}")
        r_ = out; out = save
        return r_
    def rds(k):
        sl = k % NSL; bi = sl // 3; o = (sl % 3)*SLOT; f = FR + (k & 1)*48
        r = []
        for b in range(2):
            r.append(f"ds_read_b128 v[{f+24*b}:{f+24*b+3}], v{6+bi} offset:{o + b*9216 + 5120}")
            for jd in range(5):
                r.append(f"ds_read_b128 v[{f+24*b+4+4*jd}:{f+24*b+7+4*jd}], v{3+bi} offset:{o + b*9216 + 1024*jd}")
        return r
    def mms(k):
        f = FR + (k & 1)*48
        r = []
        for b in range(2):
            for jd in range(5):
                c = AC + 4*jd
                cin = "0" if (k == 0 and b == 0) else f"v[{c}:{c+3}]"
                r.append(f"v_mfma_f32_16x16x32_bf16 v[{c}:{c+3}], v[{f+24*b+4+4*jd}:{f+24*b+7+4*jd}], v[{f+24*b}:{f+24*b+3}], {cin}")
        return r
    K0 = XYS[4] + 1
    assert K0 + 5 < NSTG - 1
    for k in range(NSTG):
        I("s_barrier")
        if k in (0, 1, 3, 6, 10, 14, 18, 22, 26): stamp()
        rr = rds(k); mm_ = mms(k-1) if k else []
        pc = []
        PSTEP = 2 if "f3h" in FLAGS else 1
        if K0 < k <= K0 + 5*PSTEP and (k - K0 - 1) % PSTEP == 0:
            if k == K0 + 1: I("s_waitcnt vmcnt(0)")
            pc = piece((k - K0 - 1)//PSTEP)
        I(rr[0]); I(rr[1]); rr = rr[2:]
        if "f3i" in FLAGS and pc: out.append(pc.pop(0))
        for i in range(10):
            if mm_: I(mm_[i])
            I(rr[i])
            if "f3i" in FLAGS:
                for _ in range(4):
                    if pc: out.append(pc.pop(0))
        if k == K0:
            for jd in range(5):
                I(f"ds_read_b128 v[{YF+4*jd}:{YF+4*jd+3}], v9 offset:{2048*jd}")
                I(f"ds_read_b64 v[{XX+2*jd}:{XX+2*jd+1}], v10 offset:{32*jd}")
        out.extend(pc)
        if k < NSTG - 1: I("s_waitcnt lgkmcnt(0)")
    mm_ = mms(NSTG - 1)
    I("s_waitcnt lgkmcnt(6)")
    for x in mm_[:5]: I(x)
    I("s_waitcnt lgkmcnt(0)")
    for x in mm_[5:]: I(x)
    stamp()
    I("s_nop 7")
    for jd in range(5):
        b = AC + 4*jd; xa = YF + 4*jd; t = OT + 2*jd
        if jd == 4: I("s_nop 3")
        for r in range(4): I(f"v_cvt_pk_bf16_f32 v{b+r}, 0, v{b+r}")
        for r in range(4): I(f"v_add_f32 v{b+r}, v{b+r}, v{xa+r}")
        I(f"v_cvt_pk_bf16_f32 v{t}, v{b}, v{b+1}")
        I(f"v_cvt_pk_bf16_f32 v{t+1}, v{b+2}, v{b+3}")
        I(f"ds_write_b64 v10, v[{t}:{t+1}] offset:{32*jd}")
    I("s_waitcnt lgkmcnt(0)")
    for u in range(3):
        I(f"ds_read_b128 v[{FR+4*u}:{FR+4*u+3}], v11 offset:{1024*u}")
    for u in range(3):
        I(f"s_waitcnt lgkmcnt({2-u})")
        if u == 2: I("s_mov_b64 exec, 0xffffffff")
        I(f"buffer_store_dwordx4 v[{FR+4*u}:{FR+4*u+3}], v{16+u}, s[32:35], s42 offen{OSC}")
    I("s_mov_b64 exec, -1")
    stamp()
    if STAMP: I("s_waitcnt vmcnt(0)")
    stamp()
    stamp_dump(9)
    e("F_exit:")
    I("s_endpgm")
    kernel_desc("fin_kernel", 208, 102 if STAMP else 80)
F3LDS = [0]
OSC = " sc1" if "osc" in FLAGS else (" nt" if "ont" in FLAGS else "")

def gen_k0():
    kernel_header("init_kernel")
    I(f"s_cmp_ge_u32 s2, {NK0}")
    I("s_cbranch_scc1 I_exit")
    I("s_load_dwordx2 s[6:7], s[0:1], 96")
    I("s_load_dwordx2 s[4:5], s[0:1], 72")
    I("v_lshrrev_b32 v1, 6, v0")
    I("s_nop 0")
    I("v_readfirstlane_b32 s3, v1")
    I("s_lshl_b32 s24, s2, 2")
    I("s_add_u32 s24, s24, s3")
    I("s_min_u32 s24, s24, 269")
    I("s_mul_i32 s17, s24, 0xCCCD")
    I("s_lshr_b32 s17, s17, 19")
    I("s_mul_i32 s18, s17, 10")
    I("s_sub_u32 s18, s24, s18")
    I("v_and_b32 v1, 7, v0")
    I("v_bfe_u32 v2, v0, 3, 2")
    I("v_bfe_u32 v6, v0, 5, 1")
    I("s_lshl_b32 s18, s18, 6")
    I("v_lshl_add_u32 v1, v1, 3, s18")
    I("s_lshl_b32 s19, s17, 1")
    I("v_add_u32 v6, s19, v6")
    I("v_lshlrev_b32 v7, 5, v6")
    I("v_lshl_add_u32 v7, v2, 2, v7")
    I("v_mul_u32_u24 v3, 0x500, v7")
    I("v_lshl_add_u32 v3, v1, 1, v3")
    I("v_add_u32 v4, 0x5000, v3")
    I("s_waitcnt lgkmcnt(0)")
    srd(8, 4, SZ_W)
    srd(12, 6, SZ_W, WS_WDT)
    for i in range(8):
        b = 3 if i < 4 else 4
        I(f"buffer_load_dwordx4 v[{8+4*i}:{11+4*i}], v{b}, s[8:11], 0 offen offset:{(i%4)*1280}")
    srd(28, 6, FL_SZ, WS_FL)
    I("s_lshl_b32 s25, s2, 12")
    I("v_lshlrev_b32 v72, 4, v0")
    for j in range(4): I(f"v_mov_b32 v{76+j}, 0")
    I("s_cmp_ge_u32 s2, 8")
    I("s_cbranch_scc1 I_noz")
    I("buffer_store_dwordx4 v[76:79], v72, s[28:31], s25 offen")
    e("I_noz:")
    I("s_mov_b32 s20, 0x05040100")
    I("s_mov_b32 s21, 0x07060302")
    I("v_lshrrev_b32 v5, 4, v1")
    I("v_mul_u32_u24 v5, 54, v5")
    I("v_add_u32 v5, v5, v6")
    I("v_lshlrev_b32 v5, 10, v5")
    I("v_lshl_add_u32 v5, v2, 8, v5")
    I("v_and_b32 v7, 15, v1")
    I("v_lshl_add_u32 v5, v7, 4, v5")
    I("s_waitcnt vmcnt(0)")
    for dd in range(8):
        ob = 40 + 4*dd
        sel = 20 + (dd & 1)
        for q in range(4):
            I(f"v_perm_b32 v{ob+q}, v{8+4*(2*q+1)+dd//2}, v{8+4*(2*q)+dd//2}, s{sel}")
        I(f"buffer_store_dwordx4 v[{ob}:{ob+3}], v5, s[12:15], 0 offen offset:{16*dd}")
    e("I_exit:")
    I("s_endpgm")
    kernel_desc("init_kernel", 80, 40)
NK0 = 68

def main():
    hdr = open("parallel_sum__ssm_conv_h3__glu_gated_bilinear__prompt.s.ref").read().splitlines()
    for line in hdr:
        if line.startswith("; @launch"):
            break
        if line.startswith(";"):
            e(line)
    if "k0" in FLAGS: e(f"; @launch kernel=init_kernel grid=({NK0},1,1) block=(256,1,1) lds=0")
    if not FUSE: e(f"; @launch kernel=prep_kernel grid=({N_LN+N_KV+N_PF},1,1) block=(256,1,1) lds=0")
    if BIG:
        e("; @launch kernel=mid_kernel grid=(256,1,1) block=(512,1,1) lds=163840")
    else:
        e(f"; @launch kernel=mid_kernel grid=({N_G1+N_CV},1,1) block=(256,1,1) lds={LDS2}")
    if "f3" in FLAGS: e("; @launch kernel=fin_kernel grid=(256,1,1) block=(512,1,1) lds=F3LDS")
    elif not G2F: e(f"; @launch kernel=fin_kernel grid=(256,1,1) block=(256,1,1) lds=81920")
    e('.amdgcn_target "amdgcn-amd-amdhsa--gfx950"')
    if not FUSE: gen_prep()
    if "k0" in FLAGS: gen_k0()
    gen_k2()
    if "f3" in FLAGS: gen_k3b()
    elif not G2F: gen_k3()
    dst = sys.argv[1] if len(sys.argv) > 1 else "parallel_sum__ssm_conv_h3__glu_gated_bilinear__prompt.s"
    o2 = []
    for i, ln in enumerate(out):
        o2.append(ln)
        if " m0," in ln and i + 1 < len(out) and out[i+1].rstrip().endswith(" lds"): o2.append("    s_nop 0")
    out[:] = o2
    open(dst, "w").write(("\n".join(out) + "\n").replace("lds=F3LDS", f"lds={F3LDS[0]}"))

main()
```

```python
import sys

import os
FLAGS = os.environ.get("GENFLAGS", "").split(",")
CP = " nt" if "cpnt" in FLAGS else (" sc1" if "cpsc1" in FLAGS else (" sc0 sc1" if "cpsc01" in FLAGS else ""))
S, D, F = 2048, 640, 1728
WS_XN  = 0x0
WS_KVR = 0x280000
WS_WDT = 0x500000
WS_H   = 0x800000
WS_YT  = 0x1000000
WS_ST  = 0x1400000
FUSE = "fuse" in FLAGS
SZ_SD = S * D * 2
SZ_W  = D * F * 2
SZ_H  = S * F * 2

out = []
def e(s=""):
    out.append(s)
SP = " nt" if "stnt" in FLAGS else (" sc0 sc1" if "stsc" in FLAGS else (" sc1" if "stsc1" in FLAGS else (" sc0 sc1 nt" if "stall" in FLAGS else "")))
def I(s):
    if s.startswith("buffer_store") and "s[56:59]" not in s: s += SP
    out.append("    " + s)

def srd(base, ptr, size, off=0):
    if off:
        I(f"s_add_u32 s{base}, s{ptr}, {off:#x}")
        I(f"s_addc_u32 s{base+1}, s{ptr+1}, 0")
    else:
        I(f"s_mov_b32 s{base}, s{ptr}")
        I(f"s_mov_b32 s{base+1}, s{ptr+1}")
    I(f"s_mov_b32 s{base+2}, {size:#x}")
    I(f"s_mov_b32 s{base+3}, 0x00020000")

def lo16(dst, src): I(f"v_lshlrev_b32 v{dst}, 16, v{src}")
def hi16(dst, src): I(f"v_and_b32 v{dst}, 0xffff0000, v{src}")

STAMP = "stamp" in FLAGS
nst = [0]
def stamp():
    if STAMP:
        i = nst[0]; nst[0] += 1
        I(f"s_memtime s[{60+2*i}:{61+2*i}]")
def stamp_dump(wg):
    if not STAMP: return
    n = nst[0]; nst[0] = 0
    if "ast" in FLAGS:
        kidx = 1 if wg == 9 else 0
        I("s_waitcnt lgkmcnt(0) vmcnt(0)")
        I("s_load_dwordx2 s[56:57], s[0:1], 96")
        I("s_memrealtime s[58:59]")
        I("s_waitcnt lgkmcnt(0)")
        I("v_mov_b32 v3, s58")
        I(f"s_add_u32 s56, s56, {0x1800000 + kidx*0x40000}")
        I("s_addc_u32 s57, s57, 0")
        I("s_mov_b32 s58, 0x40000")
        I("s_mov_b32 s59, 0x00020000")
        I("s_lshl_b32 s61, s2, 3")
        I("s_add_u32 s61, s61, s3")
        I("s_lshl_b32 s61, s61, 6")
        I("v_mov_b32 v1, s61")
        I("buffer_store_dword v3, v1, s[56:59], 0 offen")
        for i in range(1, n):
            I(f"s_sub_u32 s{61+2*i}, s{60+2*i}, s60")
            I(f"v_mov_b32 v2, s{61+2*i}")
            I(f"buffer_store_dword v2, v1, s[56:59], 0 offen offset:{4*i}")
        I("s_waitcnt vmcnt(0)")
        return
    I("s_waitcnt lgkmcnt(0) vmcnt(0)")
    I(f"s_cmp_lg_u32 s2, {wg}")
    I(f"s_cbranch_scc1 SD_skip{wg}")
    I("s_cmp_lg_u32 s3, 0")
    I(f"s_cbranch_scc1 SD_skip{wg}")
    I("s_load_dwordx2 s[56:57], s[0:1], 88")
    I("s_waitcnt lgkmcnt(0)")
    I("s_mov_b32 s58, 256")
    I("s_mov_b32 s59, 0x00020000")
    I("v_mov_b32 v1, 0")
    for i in range(n):
        I(f"s_sub_u32 s{61+2*i}, s{60+2*i}, s60")
        I(f"v_mov_b32 v2, s{61+2*i}")
        I(f"buffer_store_dword v2, v1, s[56:59], 0 offen offset:{4*i + (64 if wg == 255 else 0)}")
    I("s_waitcnt vmcnt(0)")
    e(f"SD_skip{wg}:")

WGT = "wgt" in FLAGS
def wgt_start():
    if WGT: I("s_memrealtime s[76:77]")
wgtn = [0]
def wgt_end(kidx):
    if not WGT: return
    n = wgtn[0]; wgtn[0] += 1
    I("s_waitcnt vmcnt(0) lgkmcnt(0)")
    I("s_memrealtime s[78:79]")
    I("s_load_dwordx2 s[72:73], s[0:1], 96")
    I("v_lshrrev_b32 v1, 6, v0")
    I("s_nop 0")
    I("v_readfirstlane_b32 s70, v1")
    I("s_lshl_b32 s71, s2, 3")
    I("s_add_u32 s70, s70, s71")
    I("s_lshl_b32 s70, s70, 3")
    I("s_waitcnt lgkmcnt(0)")
    I(f"s_add_u32 s72, s72, {0x1800000 + kidx*0x10000}")
    I("s_addc_u32 s73, s73, 0")
    I("s_mov_b32 s74, 0x10000")
    I("s_mov_b32 s75, 0x00020000")
    I("v_mov_b32 v2, s76")
    I("v_mov_b32 v3, s78")
    I("v_mov_b32 v1, s70")
    I("buffer_store_dwordx2 v[2:3], v1, s[72:75], 0 offen")
    I("s_waitcnt vmcnt(0)")

def kernel_header(name):
    e(".text")
    e(f".globl {name}")
    e(".p2align 8")
    e(f".type {name},@function")
    e(f"{name}:")

def kernel_desc(name, vgpr, sgpr, accum=None):
    if accum is None:
        accum = (vgpr + 3) // 4 * 4
    e('.section .rodata,"a"')
    e(".p2align 6")
    e(f".amdhsa_kernel {name}")
    e(f"  .amdhsa_next_free_vgpr {vgpr}")
    e(f"  .amdhsa_next_free_sgpr {sgpr}")
    e(f"  .amdhsa_accum_offset {accum}")
    e("  .amdhsa_group_segment_fixed_size 0")
    e("  .amdhsa_kernarg_size 104")
    e("  .amdhsa_user_sgpr_count 2")
    e("  .amdhsa_user_sgpr_kernarg_segment_ptr 1")
    e("  .amdhsa_system_sgpr_workgroup_id_x 1")
    e(".end_amdhsa_kernel")

N_LN, N_KV = 128, 160
N_PF = 0
if "pfw" in FLAGS: N_PF = 4*36
if "pfw2" in FLAGS: N_PF = 2*36
def gen_prep():
    kernel_header("prep_kernel")
    I(f"s_cmp_ge_u32 s2, {N_LN+N_KV+N_PF}")
    I("s_cbranch_scc1 P_exit")
    if N_PF:
        I(f"s_cmp_ge_u32 s2, {N_LN+N_KV}")
        I("s_cbranch_scc1 P_pf")
    I("s_load_dwordx2 s[6:7], s[0:1], 96")
    I(f"s_cmp_lt_u32 s2, {N_KV}")
    I("s_cbranch_scc1 P_kv")
    if "noln" in FLAGS: I("s_endpgm")
    I("s_load_dwordx2 s[4:5], s[0:1], 0")
    I("v_lshrrev_b32 v1, 4, v0")
    I(f"s_sub_u32 s3, s2, {N_KV}")
    I("s_lshl_b32 s3, s3, 4")
    I("v_add_u32 v1, s3, v1")
    I("v_mul_u32_u24 v2, 0x500, v1")
    I("v_and_b32 v3, 15, v0")
    I("v_lshl_add_u32 v2, v3, 4, v2")
    I("s_waitcnt lgkmcnt(0)")
    srd(8, 4, SZ_SD)
    srd(12, 6, SZ_SD, WS_XN)
    for j in range(5):
        I(f"buffer_load_dwordx4 v[{4+4*j}:{7+4*j}], v2, s[8:11], 0 offen offset:{256*j}")
    I("v_lshrrev_b32 v2, 4, v1")
    I("v_mul_u32_u24 v2, 20480, v2")
    I("v_lshrrev_b32 v64, 2, v3")
    I("v_lshl_add_u32 v2, v64, 10, v2")
    I("v_and_b32 v64, 3, v3")
    I("v_lshl_add_u32 v2, v64, 8, v2")
    I("v_and_b32 v64, 15, v1")
    I("v_lshl_add_u32 v2, v64, 4, v2")
    I("s_waitcnt vmcnt(0)")
    X = 24
    for j in range(20):
        lo16(X + 2*j, 4 + j)
        hi16(X + 2*j + 1, 4 + j)
    T = 64
    for j in range(20):
        I(f"v_add_f32 v{T+j}, v{X+2*j}, v{X+2*j+1}")
    def tree(base, n):
        while n > 1:
            h = n // 2
            for j in range(h):
                I(f"v_add_f32 v{base+j}, v{base+j}, v{base+n-1-j}")
            n = n - h
    tree(T, 20)
    def dpp_reduce(r, tmp):
        for sh in (8, 4, 2, 1):
            I("s_nop 1")
            I(f"v_add_f32_dpp v{tmp}, v{r}, v{r} row_ror:{sh} row_mask:0xf bank_mask:0xf")
            I(f"v_mov_b32 v{r}, v{tmp}")
    dpp_reduce(T, T+1)
    I(f"v_mul_f32 v{T}, {1.0/640.0!r}, v{T}")
    for j in range(40):
        I(f"v_sub_f32 v{T+2+j}, v{X+j}, v{T}")
    for j in range(40):
        I(f"v_mul_f32 v{T+2+j}, v{T+2+j}, v{T+2+j}")
    tree(T+2, 40)
    dpp_reduce(T+2, T+1)
    I(f"v_mul_f32 v{T+2}, {1.0/640.0!r}, v{T+2}")
    I(f"v_cvt_pk_bf16_f32 v{T}, v{T}, v{T+2}")
    hi16(T+2, T)
    lo16(T, T)
    I(f"v_add_f32 v{T+2}, {1e-5!r}, v{T+2}")
    I(f"v_cvt_pk_bf16_f32 v{T+2}, v{T+2}, v{T+2}")
    lo16(T+2, T+2)
    I(f"v_sqrt_f32 v{T+2}, v{T+2}")
    I("s_nop 0")
    I(f"v_cvt_pk_bf16_f32 v{T+2}, v{T+2}, v{T+2}")
    lo16(T+2, T+2)
    I(f"v_rcp_f32 v{T+3}, v{T+2}")
    I("s_nop 0")
    for j in range(20):
        a, b = X + 2*j, X + 2*j + 1
        I(f"v_sub_f32 v{a}, v{a}, v{T}")
        I(f"v_sub_f32 v{b}, v{b}, v{T}")
        I(f"v_cvt_pk_bf16_f32 v{T+4}, v{a}, v{b}")
        lo16(a, T+4)
        hi16(b, T+4)
        for r in (a, b):
            I(f"v_mul_f32 v{T+5}, v{r}, v{T+3}")
            I(f"v_fma_f32 v{T+6}, -v{T+5}, v{T+2}, v{r}")
            I(f"v_fma_f32 v{r}, v{T+6}, v{T+3}, v{T+5}")
        I(f"v_cvt_pk_bf16_f32 v{4+j}, v{a}, v{b}")
        if j % 4 == 3:
            jj = j // 4
            I(f"s_mov_b32 s16, {4096*jj}")
            I(f"buffer_store_dwordx4 v[{4+4*jj}:{7+4*jj}], v2, s[12:15], s16 offen")
    I("s_endpgm")
    e("P_kv:")
    if "nokv" in FLAGS: I("s_endpgm")
    I("s_load_dwordx4 s[16:19], s[0:1], 8")
    I("s_load_dwordx2 s[4:5], s[0:1], 24")
    I("s_mul_i32 s28, s2, 0xCCCD")
    I("s_lshr_b32 s28, s28, 19")
    I("s_mul_i32 s29, s28, 10")
    I("s_sub_u32 s29, s2, s29")
    I("v_and_b32 v1, 7, v0")
    I("v_lshrrev_b32 v2, 3, v0")
    I("s_lshl_b32 s30, s29, 6")
    I("v_lshl_add_u32 v1, v1, 3, s30")
    I("s_lshl_b32 s31, s28, 7")
    I("v_lshl_add_u32 v2, v2, 2, s31")
    I("v_mul_u32_u24 v3, 0x500, v2")
    I("v_lshl_add_u32 v3, v1, 1, v3")
    for i in range(3):
        I(f"v_subrev_u32 v{5+i}, {(3-i)*1280:#x}, v3")
    I("v_lshlrev_b32 v8, 3, v1")
    I("s_waitcnt lgkmcnt(0)")
    srd(8, 16, SZ_SD)
    srd(12, 18, SZ_SD)
    srd(20, 4, D*4*2)
    srd(24, 6, SZ_SD, WS_KVR)
    KR = 16
    for i in range(3):
        I(f"buffer_load_dwordx4 v[{KR+4*i}:{KR+4*i+3}], v{5+i}, s[8:11], 0 offen")
    for i in range(4):
        I(f"buffer_load_dwordx4 v[{KR+4*(i+3)}:{KR+4*(i+3)+3}], v3, s[8:11], 0 offen offset:{i*1280}")
    VR = KR + 28
    for i in range(4):
        I(f"buffer_load_dwordx4 v[{VR+4*i}:{VR+4*i+3}], v3, s[12:15], 0 offen offset:{i*1280}")
    SK = VR + 16
    for i in range(4):
        I(f"buffer_load_dwordx4 v[{SK+4*i}:{SK+4*i+3}], v8, s[20:23], 0 offen offset:{16*i}")
    I("v_lshlrev_b32 v9, 12, v1")
    I(f"v_sub_u32 v10, {S-4}, v2")
    I("v_lshl_add_u32 v9, v10, 1, v9")
    I("s_waitcnt vmcnt(0)")
    KF = 76
    VF = 83
    SF = 87
    TM = 92
    OB = 104
    for dd in range(8):
        ex = lo16 if dd % 2 == 0 else hi16
        for i in range(7):
            ex(KF + i, KR + 4*i + dd//2)
        for i in range(4):
            ex(VF + i, VR + 4*i + dd//2)
        lo16(SF+0, SK + 2*dd); hi16(SF+1, SK + 2*dd)
        lo16(SF+2, SK + 2*dd + 1); hi16(SF+3, SK + 2*dd + 1)
        ob = OB + 2*(dd % 4)
        for q in range(2):
            sa, sb = 3 - 2*q, 2 - 2*q
            t = TM
            I(f"v_mul_f32 v{t}, v{KF+sa}, v{SF+3}")
            I(f"v_mul_f32 v{t+1}, v{KF+sb}, v{SF+3}")
            I(f"v_mul_f32 v{t+2}, v{KF+sa+1}, v{SF+2}")
            I(f"v_mul_f32 v{t+3}, v{KF+sb+1}, v{SF+2}")
            I(f"v_mul_f32 v{t+4}, v{KF+sa+2}, v{SF+1}")
            I(f"v_mul_f32 v{t+5}, v{KF+sb+2}, v{SF+1}")
            I(f"v_mul_f32 v{t+6}, v{KF+sa+3}, v{SF+0}")
            I(f"v_mul_f32 v{t+7}, v{KF+sb+3}, v{SF+0}")
            for p in range(4):
                I(f"v_cvt_pk_bf16_f32 v{t+8+p}, v{t+2*p}, v{t+2*p+1}")
            for p in range(4):
                lo16(t+2*p, t+8+p); hi16(t+2*p+1, t+8+p)
            for step in (1, 2, 3):
                I(f"v_add_f32 v{t}, v{t}, v{t+2*step}")
                I(f"v_add_f32 v{t+1}, v{t+1}, v{t+2*step+1}")
                I(f"v_cvt_pk_bf16_f32 v{t+8}, v{t}, v{t+1}")
                lo16(t, t+8); hi16(t+1, t+8)
            I(f"v_mul_f32 v{t}, v{t}, v{VF+sa}")
            I(f"v_mul_f32 v{t+1}, v{t+1}, v{VF+sb}")
            I(f"v_cvt_pk_bf16_f32 v{ob+q}, v{t}, v{t+1}")
        I(f"s_mov_b32 s16, {4096*dd}")
        I(f"buffer_store_dwordx2 v[{ob}:{ob+1}], v9, s[24:27], s16 offen")
    if N_PF:
        I("s_endpgm")
        e("P_pf:")
        I(f"s_sub_u32 s3, s2, {N_LN+N_KV}")
        I("s_mul_i32 s4, s3, 1821")
        I("s_lshr_b32 s4, s4, 16")
        I("s_mul_i32 s5, s4, 36")
        I("s_sub_u32 s5, s3, s5")
        I("s_lshl_b32 s6, s4, 3")
        I("s_add_u32 s6, s6, 56")
        I("s_cmp_eq_u32 s4, 3")
        I("s_cselect_b32 s6, 32, s6")
        I("s_load_dwordx2 s[8:9], s[0:1], s6")
        I(f"s_mov_b32 s10, {SZ_W}")
        I(f"s_cselect_b32 s10, {SZ_SD}, s10")
        I("s_mov_b32 s11, 0x00020000")
        I("s_mov_b32 s7, 65536")
        I("s_cselect_b32 s7, 73728, s7")
        I("s_mul_i32 s5, s5, s7")
        I("v_lshlrev_b32 v1, 4, v0")
        I("s_waitcnt lgkmcnt(0)")
        for i in range(18):
            I(f"buffer_load_dwordx4 v[{4+4*i}:{7+4*i}], v1, s[8:11], s5 offen")
            I("s_add_u32 s5, s5, 4096")
        I("s_waitcnt vmcnt(0)")
    e("P_exit:")
    I("s_endpgm")
    kernel_desc("prep_kernel", 112, 40)

BF = 112
NSLOT = 5
SLOT = 16384
LDS2 = NSLOT * SLOT
N_G1, N_CV = 256, 256

class DSQ:
    def __init__(self): self.q = []
    def push(self, tag): self.q.append(tag)
    def wait_for(self, tag):
        if tag not in self.q: return
        idx = max(i for i, t in enumerate(self.q) if t == tag)
        n = len(self.q) - 1 - idx
        I(f"s_waitcnt lgkmcnt({min(n,15)})")
        self.q = self.q[idx+1:] if n <= 15 else self.q[len(self.q)-15:]

BIG = "big" in FLAGS
def gen_g1big():
    NF = 10; RS = 320; MS = 32*RS; SL = 2*MS; NS = 8; DB = 3; LA = 3; NST = 20
    for f_ in FLAGS:
        if f_.startswith("ns"): NS = int(f_[2:])
    DW = NS - 1
    stamp()
    I("s_load_dwordx4 s[16:19], s[0:1], 56")
    I(f"s_mul_i32 s25, s25, {16*NF}")
    I(f"s_min_u32 s25, s25, {F-16*NF}")
    I("v_and_b32 v1, 63, v0")
    PROD = "prod" in FLAGS
    if PROD:
        I("s_cmp_lt_u32 s3, 4")
        I("s_cbranch_scc1 G1_cons")
        DWP = 6
        I("s_lshl_b32 s27, s25, 1")
        for i in range(10):
            I(f"v_add_u32 v20, {64*i}, v1")
            I("v_mul_u32_u24 v21, 3277, v20")
            I("v_lshrrev_b32 v21, 16, v21")
            I("v_mul_u32_u24 v22, 20, v21")
            I("v_sub_u32 v22, v20, v22")
            I("v_bfe_u32 v23, v21, 3, 1")
            I("v_lshlrev_b32 v23, 1, v23")
            I("v_xor_b32 v22, v22, v23")
            I("v_mul_u32_u24 v21, 3456, v21")
            I("v_lshl_add_u32 v21, v22, 4, v21")
            I("v_add_u32 v21, s27, v21")
            I(f"v_subrev_u32 v{2+i}, {1024*(i%4)}, v21")
        I("s_sub_u32 s29, s3, 4")
        I(f"s_mul_i32 s29, s29, {MS}")
        I("s_waitcnt lgkmcnt(0)")
        I("s_cmp_ge_u32 s3, 5")
        I("s_cselect_b32 s4, s18, s16")
        I("s_cselect_b32 s5, s19, s17")
        srd(8, 4, SZ_W)
        pq = []
        def pdma(st):
            I(f"s_mov_b32 s28, {st*32*3456}")
            for i in range(10):
                if i % 4 == 0: I(f"s_add_u32 m0, s29, {(st % NS)*SL + (i//4)*4096}")
                I(f"buffer_load_dwordx4 v{2+i}, s[8:11], s28 offen offset:{1024*(i%4)} lds")
                pq.append(st)
        def pwait(st):
            idx = max(i for i, t in enumerate(pq) if t == st)
            I(f"s_waitcnt vmcnt({len(pq)-1-idx})")
            del pq[:idx+1]
        if "ramp" in FLAGS:
            for st in range(3): pdma(st)
            pwait(0)
            I("s_barrier")
            pdma(3); pdma(4)
            for st in range(NST-1):
                pwait(st+1)
                I("s_barrier")
                if st == 0: pdma(5)
                if st + DWP < NST: pdma(st + DWP)
        else:
            for st in range(DWP): pdma(st)
            pwait(0)
            I("s_barrier")
            for st in range(NST-1):
                pwait(st+1)
                I("s_barrier")
                if st + DWP < NST: pdma(st + DWP)
        I("s_endpgm")
        e("G1_cons:")
    I("s_and_b32 s26, s3, 1")
    I("s_lshl_b32 s26, s26, 4")
    I("s_lshl_b32 s27, s25, 1")
    for i in range(5 if not PROD else 0):
        I(f"v_add_u32 v10, {64*i}, v1")
        I("v_mul_u32_u24 v11, 3277, v10")
        I("v_lshrrev_b32 v11, 16, v11")
        I("v_mul_u32_u24 v12, 20, v11")
        I("v_sub_u32 v12, v10, v12")
        I("v_add_u32 v11, s26, v11")
        I("v_bfe_u32 v13, v11, 3, 1")
        I("v_lshlrev_b32 v13, 1, v13")
        I("v_xor_b32 v12, v12, v13")
        I("v_mul_u32_u24 v11, 3456, v11")
        I("v_lshl_add_u32 v11, v12, 4, v11")
        I("v_add_u32 v11, s27, v11")
        I(f"v_subrev_u32 v{2+i}, {1024*(i%4)}, v11")
    I("s_lshl_b32 s26, s24, 3")
    I("s_lshl_b32 s27, s3, 1")
    I("s_add_u32 s26, s26, s27")
    I("s_mul_i32 s27, s26, 20480")
    I("v_lshl_add_u32 v7, v1, 4, s27")
    I("v_add_u32 v8, 20480, v7")
    I("s_mul_i32 s27, s26, 55296")
    I("v_lshl_add_u32 v9, v1, 4, s27")
    I("v_add_u32 v10, 55296, v9")
    I("v_bfe_u32 v17, v0, 4, 2")
    I("v_bfe_u32 v18, v0, 2, 2")
    I("v_lshl_add_u32 v19, v17, 3, v18")
    I(f"v_mul_u32_u24 v19, {RS}, v19")
    I("v_and_b32 v18, 3, v0")
    I("v_lshl_add_u32 v19, v18, 3, v19")
    I("v_and_b32 v20, 1, v17")
    I("v_lshlrev_b32 v20, 5, v20")
    I("v_add_u32 v11, v19, v20")
    I("v_sub_u32 v12, v19, v20")
    ROLL = "roll" in FLAGS
    if ROLL:
        for k_, offs in ((1, 3*SL), (2, 4*SL), (3, 7*SL)):
            I(f"v_add_u32 v{11+2*k_}, {offs}, v11")
            I(f"v_add_u32 v{12+2*k_}, {offs}, v12")
    else:
        for rg in (1, 2):
            I(f"v_add_u32 v{11+2*rg}, {rg*3*SL}, v11")
            I(f"v_add_u32 v{12+2*rg}, {rg*3*SL}, v12")
    I("s_mul_i32 s29, s3, 5120")
    I("s_waitcnt lgkmcnt(0)")
    I("s_cmp_ge_u32 s3, 2")
    I("s_cselect_b32 s4, s18, s16")
    I("s_cselect_b32 s5, s19, s17")
    srd(8, 4, SZ_W)
    srd(12, 6, SZ_SD, WS_XN)
    srd(20, 6, SZ_H, WS_H)
    BB = 24; AF = 56; ACC = 80
    def acc(m, jf, js): return ACC + ((m*NF + jf)*2 + js)*4
    vq = []
    def vwait(tags):
        if not any(t in tags for t in vq): return
        idx = max(i for i, t in enumerate(vq) if t in tags)
        n = len(vq) - 1 - idx
        I(f"s_waitcnt vmcnt({n})")
        del vq[:idx+1]
    def dma(st):
        if PROD: return
        I(f"s_add_u32 m0, s29, {(st % NS)*SL}")
        I(f"s_mov_b32 s28, {st*32*3456}")
        for i in range(5):
            if i == 4: I(f"s_add_u32 m0, s29, {(st % NS)*SL + 4096}")
            I(f"buffer_load_dwordx4 v{2+i}, s[8:11], s28 offen offset:{1024*(i%4)} lds")
            vq.append(("D", st))
    def bld(st):
        I(f"s_mov_b32 s31, {st*1024}")
        for js in range(2):
            r = BB + (st % (DB+1))*8 + js*4
            I(f"buffer_load_dwordx4 v[{r}:{r+3}], v{7+js}, s[12:15], s31 offen")
            vq.append(("B", st))
    seq = [(m, jf) for m in range(2) for jf in range(NF)]
    NQ = len(seq)
    def rdx(gpos):
        st, idx = divmod(gpos, NQ)
        m, jf = seq[idx]
        slot = st % NS
        a = AF + (gpos % 4)*4
        va = 11 + 2*(slot // 3) + (jf & 1)
        off = (slot % 3)*SL + m*MS + jf*32
        return [f"ds_read_b64_tr_b16 v[{a}:{a+1}], v{va} offset:{off}",
                f"ds_read_b64_tr_b16 v[{a+2}:{a+3}], v{va} offset:{off+4*RS}"]
    for st in range(DW):
        dma(st)
        if ROLL:
            if st >= DW - DB: bld(st - (DW - DB))
        elif st < DB: bld(st)
    for j in range(4*2*2*NF):
        I(f"v_mov_b32 v{ACC+j}, 0")
    stamp()
    vwait([("D", 0)])
    I("s_barrier")
    for i in range(LA):
        for x in rdx(i): I(x)
    if ROLL:
        assert NS == 8
        I("s_mov_b32 s33, 0")
        I("s_mov_b32 s36, s29")
        I(f"s_add_u32 s37, s29, {4*SL}")
        I(f"s_mov_b32 s28, {DW*32*3456}")
        I(f"s_mov_b32 s31, {DB*1024}")
        def rdr(p, idx, ring):
            m, jf = seq[idx]
            a = AF + (ring % 4)*4
            if p < 3: va = 11 + (jf & 1); off = p*SL
            elif p == 3: va = 13 + (jf & 1); off = 0
            else: va = 15 + (jf & 1); off = 0
            off += m*MS + jf*32
            return [f"ds_read_b64_tr_b16 v[{a}:{a+1}], v{va} offset:{off}",
                    f"ds_read_b64_tr_b16 v[{a+2}:{a+3}], v{va} offset:{off+4*RS}"]
        e("G1_loop:")
        for p_ in range(4):
            I("s_waitcnt vmcnt(14)")
            I(f"s_cmp_lt_u32 s33, {4 if p_ < 2 else 3}")
            I(f"s_cbranch_scc1 G1_w{p_}")
            I("s_waitcnt vmcnt(2)")
            if p_ >= 2:
                I("s_cmp_lt_u32 s33, 4")
                I(f"s_cbranch_scc1 G1_w{p_}")
                I("s_waitcnt vmcnt(0)")
            e(f"G1_w{p_}:")
            I("s_barrier")
            I(f"s_cmp_ge_u32 s33, {4 if p_ == 0 else 3}")
            I(f"s_cbranch_scc1 G1_d{p_}")
            base, offs = ("s37", 3*SL) if p_ == 0 else ("s36", (p_-1)*SL)
            I(f"s_add_u32 m0, {base}, {offs}")
            for i in range(5):
                if i == 4: I(f"s_add_u32 m0, {base}, {offs + 4096}")
                I(f"buffer_load_dwordx4 v{2+i}, s[8:11], s28 offen offset:{1024*(i%4)} lds")
            I(f"s_add_u32 s28, s28, {32*3456}")
            e(f"G1_d{p_}:")
            if p_ > 0:
                I("s_cmp_ge_u32 s33, 4")
                I(f"s_cbranch_scc1 G1_b{p_}")
            for js in range(2):
                r = BB + ((p_ + DB) % 4)*8 + js*4
                I(f"buffer_load_dwordx4 v[{r}:{r+3}], v{7+js}, s[12:15], s31 offen")
            I("s_add_u32 s31, s31, 1024")
            if p_ > 0: e(f"G1_b{p_}:")
            for idx in range(NQ):
                if idx + LA < NQ: rr = rdr(p_, idx + LA, idx + LA)
                else: rr = rdr(p_ + 1, idx + LA - NQ, idx + LA)
                I(f"s_waitcnt lgkmcnt({2*LA-2})")
                m, jf = seq[idx]
                a = AF + (idx % 4)*4
                for js in range(2):
                    c = acc(m, jf, js); b = BB + p_*8 + js*4
                    I(f"v_mfma_f32_16x16x32_bf16 v[{c}:{c+3}], v[{a}:{a+3}], v[{b}:{b+3}], v[{c}:{c+3}]")
                    I(rr[js])
        for k_ in range(4):
            I(f"v_swap_b32 v{11+k_}, v{15+k_}")
        I("s_mov_b32 s38, s36")
        I("s_mov_b32 s36, s37")
        I("s_mov_b32 s37, s38")
        I("s_add_u32 s33, s33, 1")
        I("s_cmp_lt_u32 s33, 5")
        I("s_cbranch_scc1 G1_loop")
        I("s_waitcnt lgkmcnt(0)")
    for st in range(NST if not ROLL else 0):
        if st + 1 < NST:
            vwait([("D", st+1), ("B", st)])
            I("s_barrier")
        else:
            vwait([("B", st)])
        if "stamp3" in FLAGS and st in (0, 1, 5, 10, 15): stamp()
        if st + DW < NST and "g1nodma" not in FLAGS: dma(st + DW)
        if st + DB < NST and "g1nob" not in FLAGS: bld(st + DB)
        for idx in range(NQ if "g1nocomp" not in FLAGS else 0):
            gpos = st*NQ + idx
            rr = rdx(gpos + LA) if gpos + LA < NST*NQ else None
            I(f"s_waitcnt lgkmcnt({2*min(LA-1, NST*NQ-1-gpos)})")
            m, jf = seq[idx]
            a = AF + (gpos % 4)*4
            for js in range(2):
                c = acc(m, jf, js); b = BB + (st % (DB+1))*8 + js*4
                I(f"v_mfma_f32_16x16x32_bf16 v[{c}:{c+3}], v[{a}:{a+3}], v[{b}:{b+3}], v[{c}:{c+3}]")
                if rr: I(rr[js])
    stamp()
    I("s_lshr_b32 s34, s25, 5")
    I("s_lshl_b32 s34, s34, 10")
    I("s_add_u32 s35, s34, 4096")
    I("s_nop 7")
    I("s_nop 3")
    for js in range(2):
        for jp in range(NF//2):
            t = 24 + ((js*5 + jp) % 4) * 12
            for hh in range(2):
                jf = 2*jp + hh
                g = acc(0, jf, js); u = acc(1, jf, js)
                I(f"v_cvt_pk_bf16_f32 v{t}, v{g}, v{g+1}")
                I(f"v_cvt_pk_bf16_f32 v{t+1}, v{g+2}, v{g+3}")
                I(f"v_cvt_pk_bf16_f32 v{t+2}, v{u}, v{u+1}")
                I(f"v_cvt_pk_bf16_f32 v{t+3}, v{u+2}, v{u+3}")
                lo16(g, t); hi16(g+1, t); lo16(g+2, t+1); hi16(g+3, t+1)
                lo16(u, t+2); hi16(u+1, t+2); lo16(u+2, t+3); hi16(u+3, t+3)
                for r in range(4):
                    I(f"v_mul_f32 v{g+r}, v{g+r}, v{u+r}")
                I(f"v_cvt_pk_bf16_f32 v{t+4+2*hh}, v{g}, v{g+1}")
                I(f"v_cvt_pk_bf16_f32 v{t+5+2*hh}, v{g+2}, v{g+3}")
            if jp < 4:
                I(f"buffer_store_dwordx4 v[{t+4}:{t+7}], v{9+js}, s[20:23], s34 offen offset:{1024*jp}")
            else:
                I(f"buffer_store_dwordx4 v[{t+4}:{t+7}], v{9+js}, s[20:23], s35 offen")
    if STAMP: I("s_waitcnt vmcnt(0)")
    stamp()
    stamp_dump(5)
    wgt_end(1)
    I("s_endpgm")

def gen_g1fuse():
    NF = 10; RS = 320; MS = 32*RS; SL = 2*MS; NS = 6; LA = 3; NST = 20; DWP = 5
    XB = NS*SL
    XP = 18432; XR = 144
    I(f"s_mul_i32 s25, s25, {16*NF}")
    I(f"s_min_u32 s25, s25, {F-16*NF}")
    I("v_and_b32 v1, 63, v0")
    I("s_and_b32 s26, s3, 3")
    I(f"s_mul_i32 s30, s26, {32*XR}")
    I(f"s_add_u32 s30, s30, {XB}")
    I("s_lshl_b32 s27, s24, 3")
    I("s_lshl_b32 s26, s26, 1")
    I("s_add_u32 s26, s26, s27")
    I("s_cmp_lt_u32 s3, 4")
    I("s_cbranch_scc1 G1_cons")
    if "hprio" in FLAGS: I("s_setprio 3")
    RAW = 64
    def raw(rg, p): return RAW + (p*4 + rg)*4
    I("s_mul_i32 s27, s26, 20480")
    I("v_lshrrev_b32 v12, 3, v1")
    I("v_and_b32 v11, 7, v1")
    I("v_mul_u32_u24 v13, 0x500, v12")
    I("v_lshl_add_u32 v13, v11, 4, v13")
    I("v_add_u32 v13, s27, v13")
    for rg in range(1, 4): I(f"v_add_u32 v{13+rg}, {rg*10240}, v13")
    I("s_lshl_b32 s27, s26, 7")
    I("v_lshl_add_u32 v7, v12, 3, s27")
    I(f"v_mul_u32_u24 v6, {XR}, v12")
    I("v_lshl_add_u32 v6, v11, 4, v6")
    I("v_add_u32 v6, s30, v6")
    I("s_waitcnt lgkmcnt(0)")
    srd(12, 44, SZ_SD)
    srd(20, 6, S*8, WS_ST)
    for p in range(10):
        for rg in range(4):
            r = raw(rg, p)
            I(f"buffer_load_dwordx4 v[{r}:{r+3}], v{13+rg}, s[12:15], 0 offen offset:{128*p}")
    SM = 24; SS = 32; TT = 40; STA = 48
    for j in range(16): I(f"v_mov_b32 v{SM+j}, 0")
    I("s_mov_b32 s49, 0x3f803f80")
    I("s_cmp_ge_u32 s3, 6")
    I("s_cbranch_scc1 G1_hw")
    def helper(kind):
        vq = [("Q", i) for i in range(40)]
        def vwait(pred):
            idxs = [i for i, t in enumerate(vq) if pred(t)]
            if not idxs: return
            idx = max(idxs)
            n = len(vq) - 1 - idx
            assert n <= 63
            I(f"s_waitcnt vmcnt({n})")
            del vq[:idx+1]
        def pdma(st):
            I(f"s_mov_b32 s28, {st*32*3456}")
            for i in range(10):
                if i % 4 == 0: I(f"s_add_u32 m0, s29, {(st % NS)*SL + (i//4)*4096}")
                I(f"buffer_load_dwordx4 v{224+i}, s[8:11], s28 offen offset:{1024*(i%4)} lds")
                vq.append(("D", st))
        if kind == "prod":
            I("s_lshl_b32 s27, s25, 1")
            for i in range(10):
                I(f"v_add_u32 v20, {64*i}, v1")
                I("v_mul_u32_u24 v21, 3277, v20")
                I("v_lshrrev_b32 v21, 16, v21")
                I("v_mul_u32_u24 v22, 20, v21")
                I("v_sub_u32 v22, v20, v22")
                I("v_bfe_u32 v23, v21, 3, 1")
                I("v_lshlrev_b32 v23, 1, v23")
                I("v_xor_b32 v22, v22, v23")
                I("v_mul_u32_u24 v21, 3456, v21")
                I("v_lshl_add_u32 v21, v22, 4, v21")
                I("v_add_u32 v21, s27, v21")
                I(f"v_subrev_u32 v{224+i}, {1024*(i%4)}, v21")
            I("s_sub_u32 s29, s3, 4")
            I(f"s_mul_i32 s29, s29, {MS}")
            I("s_cmp_ge_u32 s3, 5")
            I("s_cselect_b32 s4, s18, s16")
            I("s_cselect_b32 s5, s19, s17")
            srd(8, 4, SZ_W)
            DSCH = {5: [0], 8: [1], 9: [2]}
            for f_ in FLAGS:
                if f_.startswith("dsch"):
                    if f_ == "dsch1": DSCH = {3: [0], 6: [1], 9: [2]}
                    if f_ == "dsch2": DSCH = {7: [0], 9: [1, 2]}
                    if f_ == "dsch3": DSCH = {-1: [0], 5: [1], 9: [2]}
            for st in DSCH.get(-1, []): pdma(st)
        else:
            I("s_cmp_ge_u32 s3, 7")
            I("s_cselect_b32 s28, s18, s16")
            I("s_cselect_b32 s29, s19, s17")
            I("s_mul_i32 s27, s47, 12800")
            I(f"s_mov_b32 s30, {SZ_W}")
            I("s_mov_b32 s31, 0x00020000")
            I("v_lshlrev_b32 v5, 4, v1")
            I("s_load_dwordx2 s[4:5], s[0:1], 72")
            I("s_min_u32 s48, s46, 269")
            I("s_mul_i32 s17, s48, 0xCCCD")
            I("s_lshr_b32 s17, s17, 19")
            I("s_mul_i32 s18, s17, 10")
            I("s_sub_u32 s18, s48, s18")
            I("v_and_b32 v23, 7, v0")
            I("v_bfe_u32 v17, v0, 3, 2")
            I("v_bfe_u32 v18, v0, 5, 1")
            I("s_lshl_b32 s18, s18, 6")
            I("v_lshl_add_u32 v23, v23, 3, s18")
            I("s_lshl_b32 s19, s17, 1")
            I("v_add_u32 v18, s19, v18")
            I("v_lshlrev_b32 v19, 5, v18")
            I("v_lshl_add_u32 v19, v17, 2, v19")
            I("v_mul_u32_u24 v20, 0x500, v19")
            I("v_lshl_add_u32 v20, v23, 1, v20")
            I("v_add_u32 v21, 0x5000, v20")
            I("s_waitcnt lgkmcnt(0)")
            srd(8, 4, SZ_W)
            srd(32, 6, SZ_W, WS_WDT)
            I("s_mov_b32 s36, 0x05040100")
            I("s_mov_b32 s37, 0x07060302")
            I("v_lshrrev_b32 v22, 4, v23")
            I("v_mul_u32_u24 v22, 54, v22")
            I("v_add_u32 v22, v22, v18")
            I("v_lshlrev_b32 v22, 10, v22")
            I("v_lshl_add_u32 v22, v17, 8, v22")
            I("v_and_b32 v19, 15, v23")
            I("v_lshl_add_u32 v22, v19, 4, v22")
        for p in range(10):
            vwait(lambda t: t[0] == "Q" and t[1] <= 4*p + 3)
            for c in range(4):
                for rg in range(4):
                    r = raw(rg, p) + c
                    I(f"v_dot2_f32_bf16 v{SM+2*rg+(c&1)}, v{r}, s49, v{SM+2*rg+(c&1)}")
                    I(f"v_dot2_f32_bf16 v{SS+2*rg+(c&1)}, v{r}, v{r}, v{SS+2*rg+(c&1)}")
            if kind == "prod":
                for st in DSCH.get(p, []): pdma(st)
        I("s_nop 3")
        V8 = [SM+2*rg for rg in range(4)] + [SS+2*rg for rg in range(4)]
        for a in V8: I(f"v_add_f32 v{a}, v{a}, v{a+1}")
        for dpp in ("quad_perm:[1,0,3,2]", "quad_perm:[2,3,0,1]", "row_half_mirror"):
            for a in V8: I(f"v_add_f32_dpp v{a+1}, v{a}, v{a} {dpp} row_mask:0xf bank_mask:0xf")
            for a in V8: I(f"v_mov_b32 v{a}, v{a+1}")
        R4 = range(4)
        for a in V8: I(f"v_mul_f32 v{a}, {1.0/640.0!r}, v{a}")
        for rg in R4: I(f"v_fma_f32 v{SS+2*rg}, -v{SM+2*rg}, v{SM+2*rg}, v{SS+2*rg}")
        for rg in R4:
            I(f"v_cvt_pk_bf16_f32 v{STA+2*rg+1}, 0, -v{SM+2*rg}")
            I(f"v_cvt_pk_bf16_f32 v{SS+2*rg}, 0, v{SS+2*rg}")
        for rg in R4: I(f"v_add_f32 v{SS+2*rg}, {1e-5!r}, v{SS+2*rg}")
        for rg in R4: I(f"v_cvt_pk_bf16_f32 v{SS+2*rg}, 0, v{SS+2*rg}")
        for rg in R4: I(f"v_sqrt_f32 v{SS+2*rg}, v{SS+2*rg}")
        I("s_nop 0")
        for rg in R4: I(f"v_cvt_pk_bf16_f32 v{SS+2*rg}, 0, v{SS+2*rg}")
        for rg in R4: I(f"v_rcp_f32 v{STA+2*rg}, v{SS+2*rg}")
        I("s_nop 0")
        MN = "mnorm" in FLAGS
        SEL = 24; NEG = 32; T2 = 234
        if MN:
            I("v_and_b32 v2, 15, v1")
            I("v_lshrrev_b32 v3, 4, v1")
            I("v_lshrrev_b32 v4, 2, v2")
            I("v_cmp_eq_u32 vcc, v3, v4")
            I("v_and_b32 v4, 1, v2")
            I("v_lshlrev_b32 v4, 4, v4")
            I("v_mov_b32 v3, 0x3f80")
            I("v_lshlrev_b32 v3, v4, v3")
            I("v_cndmask_b32 v3, 0, v3, vcc")
            I("v_bfe_u32 v4, v2, 1, 1")
            I("v_cmp_eq_u32 vcc, 0, v4")
            I("s_nop 1")
            I(f"v_cndmask_b32 v{SEL}, 0, v3, vcc")
            I(f"v_cndmask_b32 v{SEL+1}, v3, 0, vcc")
            I(f"v_mov_b32 v{SEL+2}, 0")
            I(f"v_mov_b32 v{SEL+3}, 0")
            I(f"v_mov_b32 v{SEL+4}, 0")
            I(f"v_mov_b32 v{SEL+5}, 0")
            I(f"v_mov_b32 v{SEL+6}, v{SEL}")
            I(f"v_mov_b32 v{SEL+7}, v{SEL+1}")
            for rg in R4:
                for c in range(4): I(f"v_mov_b32 v{NEG+4*rg+c}, v{STA+2*rg+1}")
            I("s_nop 1")
        def norm(p, rgs):
            if MN:
                TB = [T2, T2+8]
                def mf(i):
                    rg = rgs[i]; r = raw(rg, p); t = TB[i % 2]
                    for h in range(2):
                        I(f"v_mfma_f32_16x16x32_bf16 v[{t+4*h}:{t+4*h+3}], v[{SEL+4*h}:{SEL+4*h+3}], v[{r}:{r+3}], v[{NEG+4*rg}:{NEG+4*rg+3}]")
                mf(0)
                for i, rg in enumerate(rgs):
                    r = raw(rg, p); R_ = STA + 2*rg; t = TB[i % 2]
                    if i + 1 < len(rgs): mf(i+1)
                    else: I("s_nop 7")
                    if i == 0: I("s_nop 7")
                    for c in range(8): I(f"v_cvt_pk_bf16_f32 v{t+c}, 0, v{t+c}")
                    for c in range(8): I(f"v_mul_f32 v{t+c}, v{t+c}, v{R_}")
                    for c in range(4): I(f"v_cvt_pk_bf16_f32 v{r+c}, v{t+2*c}, v{t+2*c+1}")
                    I(f"ds_write_b128 v6, v[{r}:{r+3}] offset:{(p & 1)*XP + rg*8*XR}")
                return
            for rg in rgs:
                r = raw(rg, p); R_, M_ = STA + 2*rg, STA + 2*rg + 1
                if "nonorm" not in FLAGS:
                    for c in range(4):
                        lo16(TT+2*c, r+c); hi16(TT+2*c+1, r+c)
                    for c in range(8): I(f"v_add_f32 v{TT+c}, v{TT+c}, v{M_}")
                    for c in range(8): I(f"v_cvt_pk_bf16_f32 v{TT+c}, 0, v{TT+c}")
                    for c in range(8): I(f"v_mul_f32 v{TT+c}, v{TT+c}, v{R_}")
                    for c in range(4): I(f"v_cvt_pk_bf16_f32 v{r+c}, v{TT+2*c}, v{TT+2*c+1}")
                I(f"ds_write_b128 v6, v[{r}:{r+3}] offset:{(p & 1)*XP + rg*8*XR}")
        WLK = 3; PFK = 0
        for f_ in FLAGS:
            if f_.startswith("wlk"): WLK = int(f_[3:])
            if f_.startswith("pfk"): PFK = int(f_[3:])
        for k in range(NST):
            if k == 0:
                norm(0, (0, 1, 2, 3))
                if kind == "prod": pdma(3); pdma(4)
            else:
                if kind == "prod" and k >= 2 and k - 2 + DWP < NST: pdma(k - 2 + DWP)
                p = (k-1)//2 + 1
                if p < 10: norm(p, (0, 1) if (k-1) % 2 == 0 else (2, 3))
            if kind == "wdt" and k == PFK and "nopfm" not in FLAGS:
                for i in range(13):
                    I(f"buffer_load_dwordx4 v[60:63], v5, s[28:31], s27 offen")
                    I("s_add_u32 s27, s27, 1024")
            if kind == "wdt" and k == WLK:
                for i in range(8):
                    b = 20 if i < 4 else 21
                    I(f"buffer_load_dwordx4 v[{RAW+4*i}:{RAW+3+4*i}], v{b}, s[8:11], 0 offen offset:{(i%4)*1280}")
            if k == 1:
                for rg in R4:
                    I(f"buffer_store_dwordx2 v[{STA+2*rg}:{STA+2*rg+1}], v7, s[20:23], 0 offen offset:{64*rg}")
                    vq.append(("S", rg))
            if kind == "wdt" and k == WLK + 5:
                I("s_cmp_ge_u32 s46, 270")
                I("s_cbranch_scc1 G1_hwskip")
                I("s_waitcnt vmcnt(0)")
                for dd in range(8):
                    ob = RAW + 32 + 4*dd
                    sel = 36 + (dd & 1)
                    for q in range(4):
                        I(f"v_perm_b32 v{ob+q}, v{RAW+4*(2*q+1)+dd//2}, v{RAW+4*(2*q)+dd//2}, s{sel}")
                for dd in range(8):
                    ob = RAW + 32 + 4*dd
                    I(f"buffer_store_dwordx4 v[{ob}:{ob+3}], v22, s[32:35], 0 offen offset:{16*dd}")
                e("G1_hwskip:")
            if kind == "prod": vwait(lambda t: t == ("D", k))
            I("s_waitcnt lgkmcnt(0)")
            I("s_barrier")
        I("s_endpgm")
    helper("prod")
    e("G1_hw:")
    helper("wdt")
    e("G1_cons:")
    if "prio" in FLAGS: I("s_setprio 3")
    I("s_and_b32 s31, s3, 1")
    I("s_lshr_b32 s33, s3, 1")
    I("s_lshl_b32 s27, s24, 3")
    I("s_lshl_b32 s26, s31, 2")
    I("s_add_u32 s26, s26, s27")
    I("s_mul_i32 s27, s26, 55296")
    I("v_lshl_add_u32 v9, v1, 4, s27")
    I("v_bfe_u32 v17, v0, 4, 2")
    I("v_and_b32 v18, 15, v0")
    I(f"v_mul_u32_u24 v6, {XR}, v18")
    I("v_lshl_add_u32 v6, v17, 4, v6")
    I(f"s_mul_i32 s30, s31, {64*XR}")
    I(f"s_add_u32 s30, s30, {XB}")
    I("v_add_u32 v6, s30, v6")
    I("v_bfe_u32 v18, v0, 2, 2")
    I("v_lshl_add_u32 v19, v17, 3, v18")
    I(f"v_mul_u32_u24 v19, {RS}, v19")
    I("v_and_b32 v18, 3, v0")
    I("v_lshl_add_u32 v19, v18, 3, v19")
    I("s_mul_i32 s27, s33, 160")
    I("v_add_u32 v19, s27, v19")
    I("v_and_b32 v20, 1, v17")
    I("v_lshlrev_b32 v20, 5, v20")
    I("s_lshl_b32 s27, s33, 1")
    I("s_sub_u32 s27, 1, s27")
    I("v_mul_lo_u32 v20, v20, s27")
    I("v_add_u32 v11, v19, v20")
    I("v_sub_u32 v12, v19, v20")
    for rg in (1,):
        I(f"v_add_u32 v{11+2*rg}, {rg*3*SL}, v11")
        I(f"v_add_u32 v{12+2*rg}, {rg*3*SL}, v12")
    I("s_waitcnt lgkmcnt(0)")
    srd(20, 6, SZ_H, WS_H)
    BB = 24; AF = 56; ACC = 80; LA = 2
    for f_ in FLAGS:
        if f_.startswith("la"): LA = int(f_[2:])
    def acc(m, j, js): return ACC + ((m*5 + j)*4 + js)*4
    seq = [(m, j) for m in range(2) for j in range(5)]
    NQ = len(seq)
    dq = []
    def dwait(tags):
        idxs = [i for i, t in enumerate(dq) if t in tags]
        if not idxs: return
        idx = max(idxs); n = len(dq) - 1 - idx
        assert n <= 15
        I(f"s_waitcnt lgkmcnt({n})")
        del dq[:idx+1]
    def rdx(gpos):
        st, idx = divmod(gpos, NQ)
        m, j = seq[idx]
        slot = st % NS
        a = AF + (gpos % 4)*4
        va = 11 + 2*(slot // 3) + (j & 1)
        off = (slot % 3)*SL + m*MS + j*32
        return [f"ds_read_b64_tr_b16 v[{a}:{a+1}], v{va} offset:{off}",
                f"ds_read_b64_tr_b16 v[{a+2}:{a+3}], v{va} offset:{off+4*RS}"]
    def xrd(st, js):
        b = BB + (st & 1)*16 + js*4
        I(f"ds_read_b128 v[{b}:{b+3}], v6 offset:{((st >> 1) & 1)*XP + js*16*XR + (st & 1)*64}")
        dq.append(("X", st))
    stamp()
    I("s_barrier")
    stamp()
    for js in range(4): xrd(0, js)
    for i in range(LA):
        for x in rdx(i): I(x); dq.append(("A", i))
    for st in range(NST):
        if st + 1 < NST: I("s_barrier")
        if "stamp3" in FLAGS and st in (1, 5, 10): stamp()
        for idx in range(NQ):
            gpos = st*NQ + idx
            rr = rdx(gpos + LA) if gpos + LA < NST*NQ else None
            dwait([("A", gpos), ("X", st)])
            m, j = seq[idx]
            a = AF + (gpos % 4)*4
            for js in range(4):
                c = acc(m, j, js); b = BB + (st & 1)*16 + js*4
                cc = "0" if st == 0 else f"v[{c}:{c+3}]"
                I(f"v_mfma_f32_16x16x32_bf16 v[{c}:{c+3}], v[{a}:{a+3}], v[{b}:{b+3}], {cc}")
                if rr and js < 2: I(rr[js]); dq.append(("A", gpos + LA))
                if js == 2 and st + 1 < NST and 1 <= idx <= 4: xrd(st + 1, idx - 1)
    stamp()
    I("s_lshr_b32 s34, s25, 5")
    I("s_lshl_b32 s34, s34, 10")
    I("s_nop 7")
    I("s_nop 3")
    cnt = [0]
    def hq(j, js, dst, t):
        g = acc(0, j, js); u = acc(1, j, js)
        I(f"v_cvt_pk_bf16_f32 v{t}, v{g}, v{g+1}")
        I(f"v_cvt_pk_bf16_f32 v{t+1}, v{g+2}, v{g+3}")
        I(f"v_cvt_pk_bf16_f32 v{t+2}, v{u}, v{u+1}")
        I(f"v_cvt_pk_bf16_f32 v{t+3}, v{u+2}, v{u+3}")
        lo16(g, t); hi16(g+1, t); lo16(g+2, t+1); hi16(g+3, t+1)
        lo16(u, t+2); hi16(u+1, t+2); lo16(u+2, t+3); hi16(u+3, t+3)
        for r in range(4):
            I(f"v_mul_f32 v{g+r}, v{g+r}, v{u+r}")
        I(f"v_cvt_pk_bf16_f32 v{dst}, v{g}, v{g+1}")
        I(f"v_cvt_pk_bf16_f32 v{dst+1}, v{g+2}, v{g+3}")
    def epi(fq):
        units = [((0, 1), 0, 0), ((2, 3), 1, 0), ((4,), 2, 0)] if fq == 0 else [((0,), 2, 8), ((1, 2), 3, 0), ((3, 4), 4, 0)]
        for js in range(4):
            I(f"s_add_u32 s35, s34, {js*55296}")
            I(f"s_add_u32 s36, s34, {js*55296 + 4096}")
            for (jl, blk, ho) in units:
                t = 24 + (cnt[0] % 4) * 12; cnt[0] += 1
                for hh, j in enumerate(jl): hq(j, js, t+4+2*hh, t)
                so, off = ("s35", 1024*blk + ho) if blk < 4 else ("s36", ho)
                if len(jl) == 2:
                    I(f"buffer_store_dwordx4 v[{t+4}:{t+7}], v9, s[20:23], {so} offen offset:{off}")
                else:
                    I(f"buffer_store_dwordx2 v[{t+4}:{t+5}], v9, s[20:23], {so} offen offset:{off}")
    I("s_cmp_eq_u32 s33, 0")
    I("s_cbranch_scc0 G1_epi1")
    epi(0)
    I("s_branch G1_epid")
    e("G1_epi1:")
    epi(1)
    e("G1_epid:")
    if STAMP: I("s_waitcnt vmcnt(0)")
    stamp()
    stamp_dump(5)
    wgt_end(1)
    I("s_endpgm")

G2F = "g2f" in FLAGS
WS_FL = 0x1500000
FL_SZ = 32768
LMB = 7*20480 + 19456
PLIM = 100000
SCD = " sc1" if (G2F and "nosc" not in FLAGS) else ""
PSL = 4; PSL2 = 1
XL = "xl" in FLAGS
SCH = "" if "hloc" in FLAGS else SCD
if "gsc" in FLAGS: SCH = " sc1"
YST = G2F or "yst" in FLAGS or "ysc" in FLAGS
SCY = " sc1" if "ysc" in FLAGS else SCD
SCW = " sc1" if "wsc" in FLAGS else SCD
for f_ in FLAGS:
    if f_.startswith("psl"): PSL = int(f_[3:])
    if f_.startswith("psm"): PSL2 = int(f_[3:])
def g2_setup(pw):
    if XL:
        I("s_bfe_u32 s54, s2, 0x30003")
        I("s_and_b32 s55, s2, 7")
        I("s_lshl_b32 s55, s55, 2")
        I("s_lshr_b32 s56, s2, 6")
        I("s_add_u32 s55, s55, s56")
    else:
        I("s_bfe_u32 s54, s2, 0x10002")
        I("s_lshl_b32 s54, s54, 2")
        I("s_bfe_u32 s55, s2, 0x20003")
        I("s_add_u32 s54, s54, s55")
        I("s_and_b32 s55, s2, 3")
        I("s_lshl_b32 s55, s55, 3")
        I("s_lshr_b32 s56, s2, 5")
        I("s_add_u32 s55, s55, s56")
    I("s_mul_i32 s56, s3, 7")
    I("s_cmp_eq_u32 s3, 7")
    I("s_subb_u32 s56, s56, 0")
    I("s_lshl_b32 s56, s56, 10")
    I(f"s_mul_i32 s52, s54, {5*55296}")
    I("s_add_u32 s52, s52, s56")
    I(f"s_mul_i32 s53, s55, {4*55296}")
    I("s_add_u32 s53, s53, s56")
    I("s_mul_i32 s56, s3, 20480")
    srd(48, 6, SZ_W, WS_WDT)
    srd(44, 6, FL_SZ, WS_FL)
    I(f"s_mov_b32 s57, {pw}")
def g2_wdma(vl, mid=None):
    for jd in range(5):
        if mid and jd == FFN: mid(4*FFN)
        I(f"s_add_u32 m0, s56, {jd*4096}")
        I(f"s_add_u32 s58, s52, {jd*55296}")
        for b in range(4 if jd < 4 else 3):
            I(f"buffer_load_dwordx4 v{vl}, s[48:51], s58 offen offset:{1024*b} lds")
def g2_gpoll():
    I("s_mov_b64 exec, 0xffffffff")
    I("buffer_load_dword v4, v3, s[44:47], s14 offen sc1")
    I("s_mov_b64 exec, -1")
def g2_publish():
    I("v_cmp_ne_u32 vcc, 0, v4")
    I("s_mov_b32 s58, vcc_lo")
    I("v_mov_b32 v4, s58")
    I("s_mov_b64 exec, 1")
    I("ds_write_b32 v6, v4")
    I("s_mov_b64 exec, -1")
def g2_lread():
    I("ds_read_b32 v4, v6")
    I("s_waitcnt lgkmcnt(0)")
    I("v_readfirstlane_b32 s58, v4")
def g2_wait(name, need):
    I("s_mov_b32 s59, 0")
    I("s_cmp_eq_u32 s3, s57")
    I(f"s_cbranch_scc1 {name}_p")
    e(f"{name}_l:")
    g2_lread()
    I(f"s_and_b32 s58, s58, {need}")
    I(f"s_cmp_eq_u32 s58, {need}")
    I(f"s_cbranch_scc1 {name}_ok")
    I("s_add_u32 s59, s59, 1")
    I(f"s_cmp_gt_u32 s59, {PLIM*20}")
    I(f"s_cbranch_scc1 {name}_ok")
    I(f"s_sleep {PSL2}")
    I(f"s_branch {name}_l")
    e(f"{name}_p:")
    g2_gpoll()
    I("s_waitcnt vmcnt(0)")
    g2_publish()
    I(f"s_and_b32 s58, s58, {need}")
    I(f"s_cmp_eq_u32 s58, {need}")
    I(f"s_cbranch_scc1 {name}_ok")
    I("s_add_u32 s59, s59, 1")
    I(f"s_cmp_gt_u32 s59, {PLIM}")
    I(f"s_cbranch_scc1 {name}_ok")
    I(f"s_sleep {PSL}")
    I(f"s_branch {name}_p")
    e(f"{name}_ok:")
G2_HB, G2_RG, G2_WR, G2_ACC = 12, 92, 112, 176
HPW = -1; CLATE = "xlate" in FLAGS; HTK = -1; FF = False; FFN = 2; HPN = 5
for f_ in FLAGS:
    if f_.startswith("ff"): FF = True; FFN = int(f_[2:])
    if f_.startswith("hpn"): HPN = int(f_[3:])
CWP = False; CWI = 1; CHT = -1; HALL = "hall" in FLAGS
CW4 = False
for f_ in FLAGS:
    if f_.startswith("cw4"):
        CW4 = True
        a_, b_ = f_[3:].split("_")
        CW4W = [[k for k, c in enumerate(a_) if int(c) == it] for it in range(8)]
        CW4H = [[k for k, c in enumerate(b_) if int(c) == it] for it in range(8)]
for f_ in FLAGS:
    if f_.startswith("cht"): CHT = int(f_[3:])
WNT = " nt" if "wnt" in FLAGS else ""
for f_ in FLAGS:
    if f_.startswith("cwp"): CWP = True; CWI = int(f_[3:])
for f_ in FLAGS:
    if f_.startswith("hpw"): HPW = int(f_[3:])
    if f_.startswith("htk"): HTK = int(f_[3:])
def g2_head(path):
    if "hdst" in FLAGS:
        nst[0] = 1; stamp()
    I("s_load_dwordx2 s[36:37], s[0:1], 0")
    I("s_load_dwordx2 s[38:39], s[0:1], 80")
    I("v_and_b32 v3, 63, v0")
    I("v_lshlrev_b32 v1, 4, v3")
    I(f"v_lshlrev_b32 v7, {7 if path == 'cons' else 10}, v3")
    I("v_lshlrev_b32 v3, 2, v3")
    I(f"v_mov_b32 v6, {LMB}")
    I("v_mov_b32 v5, 1")
    I("s_cmp_ge_u32 s3, 6")
    I("s_cselect_b32 s15, 0x40000000, 0")
    def yflag(n):
        I(f"s_waitcnt vmcnt({n})")
        if "hdst" in FLAGS: stamp()
        I("s_mov_b64 exec, 1")
        I("ds_add_rtn_u32 v4, v6, v5 offset:4")
        I("s_waitcnt lgkmcnt(0)")
        I("v_readfirstlane_b32 s12, v4")
        I("s_cmp_eq_u32 s12, 7")
        I("s_cselect_b32 exec_lo, -1, 0")
        I("buffer_store_dword v5, v7, s[44:47], s43 offen sc1")
        I("s_mov_b64 exec, -1")
    if path == "help" and HPW >= 0:
        I("v_add_u32 v2, s56, v1")
        I("s_waitcnt vmcnt(0)")
        for t in range(19):
            b, jd = divmod(t, 5)
            I(f"ds_write_b128 v2, v[{G2_ACC+4*t}:{G2_ACC+4*t+3}] offset:{jd*4096 + b*1024}")
    else:
        if FF and path == "cons":
            I("s_waitcnt vmcnt(0)")
            if "hdst" in FLAGS: stamp()
            I("s_mov_b64 exec, 0xff")
            I("buffer_store_dword v5, v7, s[44:47], s43 offen sc1")
            I("s_mov_b64 exec, -1")
        if FF and path == "conv": g2_wdma(1, yflag)
        elif HALL and path == "cons": pass
        elif path != "cons" or CLATE: g2_wdma(1)
        if HALL and path == "help":
            I("s_sub_u32 s12, s3, 4")
            I("s_mul_i32 s13, s12, 7168")
            I(f"s_mul_i32 s17, s54, {5*55296}")
            I("s_add_u32 s17, s17, s13")
            I("s_mul_i32 s18, s12, 20480")
            for jd in range(5):
                I(f"s_add_u32 m0, s18, {jd*4096}")
                I(f"s_add_u32 s58, s17, {jd*55296}")
                for b in range(4 if jd < 4 else 3):
                    I(f"buffer_load_dwordx4 v1, s[48:51], s58 offen offset:{1024*b} lds")
            I("v_lshrrev_b32 v8, 5, v3")
            I("v_mul_u32_u24 v8, 55296, v8")
            I("v_bfe_u32 v9, v3, 2, 3")
            I("v_lshl_add_u32 v8, v9, 7, v8")
            I("s_add_u32 s17, s17, 3072")
            I("s_mov_b32 exec_hi, 0xff")
            for i in range(4):
                I(f"buffer_load_dword v{G2_ACC+i}, v8, s[48:51], s17 offen offset:{1024*i}")
            I("s_mov_b64 exec, -1")
        I(f"s_add_u32 s12, s52, {4*55296}")
        I(f"buffer_load_dwordx4 v[{G2_WR}:{G2_WR+3}], v1, s[48:51], s12 offen offset:3072")
        for jd in range(5):
            I(f"s_add_u32 s12, s52, {jd*55296 + 4096}")
            I("s_add_u32 s13, s12, s15")
            for b in range(3):
                r = G2_WR + 4 + (b*5 + jd)*4
                I(f"buffer_load_dwordx4 v[{r}:{r+3}], v1, s[48:51], s{13 if b == 2 else 12} offen offset:{1024*b}")
    if path == "cons" and not FF:
        I(f"s_waitcnt vmcnt({35 if CLATE else 16})")
        I("s_mov_b64 exec, 0xff")
        I("buffer_store_dword v5, v7, s[44:47], s43 offen sc1")
        I("s_mov_b64 exec, -1")
    if path == "conv" and not FF: yflag(35)
    if HALL and path == "help": I("s_waitcnt vmcnt(0)")
    if HALL and path != "conv": I("s_barrier")
    if "hdst" in FLAGS:
        while STAMP and nst[0] < 3: stamp()
        stamp()
        I("s_waitcnt vmcnt(0)")
        stamp()
    while STAMP and nst[0] < 9: stamp()
    if "g2st" in FLAGS: nst[0] = 1
    stamp()
    G2ST[0] = nst[0]; nst[0] = 1 if path == "help" else 0
    if path != "conv": I("s_branch G2M")

def gen_g2():
    HB, RG, WR, ACC = G2_HB, G2_RG, G2_WR, G2_ACC
    e("G2M:")
    nst[0] = G2ST[0]
    I("s_lshl_b32 s14, s55, 3")
    I("s_add_u32 s14, s14, s54")
    I("s_lshl_b32 s14, s14, 7")
    masks = []
    for w in range(8):
        fb0 = 7*w - (1 if w == 7 else 0); n = 6 if w >= 6 else 7
        m = 0
        for f in range(32*fb0, 32*(fb0+n)):
            m |= 1 << (f//80 if f < 1600 else 20 + (f-1568)//80)
        masks.append(m)
    I(f"s_mov_b32 s16, {masks[0]:#x}")
    for w in range(1, 8):
        I(f"s_cmp_eq_u32 s3, {w}")
        I(f"s_cselect_b32 s16, {masks[w]:#x}, s16")
    I("s_cmp_eq_u32 s3, s57")
    I("s_cselect_b32 s16, 0x3fffff, s16")
    srd(8, 6, SZ_H, WS_H)
    I("v_add_u32 v2, s56, v1")
    if "xt" in FLAGS:
        I("s_waitcnt lgkmcnt(0)")
        srd(20, 36, SZ_SD)
        I("s_lshl_b32 s12, s55, 6")
        I("s_lshl_b32 s13, s3, 3")
        I("s_add_u32 s12, s12, s13")
        I("v_bfe_u32 v8, v0, 1, 3")
        I("v_add_u32 v8, s12, v8")
        I("v_mul_u32_u24 v8, 0x500, v8")
        I("v_and_b32 v9, 1, v0")
        I("v_mul_u32_u24 v9, 156, v9")
        I("v_add_u32 v8, v8, v9")
        I("s_mul_i32 s12, s54, 160")
        I("s_mov_b64 exec, 0xffff")
        I(f"buffer_load_dword v{HB}, v8, s[20:23], s12 offen")
        I("s_mov_b64 exec, -1")
    g2_wait("G2H", "s16")
    stamp()
    for js in range(4):
        I(f"s_add_u32 s{16+js}, s53, {js*55296}")
        I(f"s_add_u32 s{40+js}, s53, {js*55296 + 4096}")
    vq = []
    def vwait(tag):
        idxs = [i for i, t in enumerate(vq) if t == tag]
        if not idxs: return
        idx = max(idxs); n = len(vq) - 1 - idx
        I(f"s_waitcnt vmcnt({n})")
        del vq[:idx+1]
    def hld(b):
        for js in range(4):
            r = HB + (b % 5)*16 + js*4
            I(f"buffer_load_dwordx4 v[{r}:{r+3}], v1, s[8:11], s{(16 if b < 4 else 40)+js} offen offset:{1024*(b % 4)}")
            vq.append(("h", b))
    for b in range(5): hld(b)
    I("s_waitcnt vmcnt(20) lgkmcnt(0)")
    q = DSQ()
    NR = 5
    def wrd(t):
        b, jd = divmod(t, 5)
        r = RG + (t % NR)*4
        I(f"ds_read_b128 v[{r}:{r+3}], v2 offset:{jd*4096 + b*1024}")
        q.push(("w", t))
    for t in range(NR-1): wrd(t)
    srd(20, 36, SZ_SD)
    srd(24, 6, S*8, WS_ST)
    srd(28, 6, SZ_SD, WS_YT)
    srd(32, 38, SZ_SD)
    I("s_lshr_b32 s36, s3, 1")
    I("s_and_b32 s37, s3, 1")
    I("s_mov_b32 s13, 0xfc000000")
    I("s_cmp_eq_u32 s37, 0")
    I("s_cselect_b32 s13, 0x0fc00000, s13")
    I("s_cmp_eq_u32 s3, s57")
    I("s_cselect_b32 s13, 0xffc00000, s13")
    I("s_lshl_b32 s37, s37, 5")
    I("s_mul_i32 s38, s54, 80")
    I("s_add_u32 s38, s38, s37")
    I("s_lshl_b32 s39, s55, 6")
    I("v_and_b32 v7, 15, v0")
    I("v_bfe_u32 v8, v0, 4, 2")
    I("s_lshl_b32 s12, s36, 4")
    I("s_add_u32 s12, s12, s39")
    I("v_add_u32 v9, s12, v7")
    I("v_lshlrev_b32 v10, 3, v9")
    I("v_mul_u32_u24 v9, 0x500, v9")
    I("v_lshl_add_u32 v9, v8, 3, v9")
    I("s_lshl_b32 s12, s38, 1")
    I("v_add_u32 v9, s12, v9")
    I("s_lshr_b32 s12, s36, 1")
    I("s_lshl_b32 s12, s12, 5")
    I("s_add_u32 s12, s12, s39")
    I("s_lshl_b32 s12, s12, 1")
    I("v_add_u32 v11, s38, v7")
    I("v_lshlrev_b32 v11, 12, v11")
    I("v_lshl_add_u32 v11, v8, 4, v11")
    I("v_add_u32 v11, s12, v11")
    def acc(jd, js): return ACC + (js*5 + jd)*4
    XX = HB + 32; YF = HB + 48; TQ = HB + 64
    for b in range(7):
        if b == 6:
            I("s_cmp_ge_u32 s3, 6")
            I("s_cbranch_scc1 G2_skip6")
        vwait(("h", b))
        if "g2st" in FLAGS and b < 6: stamp()
        if b == 6:
            I("s_cmp_eq_u32 s3, s57")
            I("s_cbranch_scc0 G2_np")
            g2_gpoll()
            e("G2_np:")
        for jd in range(5):
            t = b*5 + jd
            if t < 19:
                q.wait_for(("w", t)); a = RG + (t % NR)*4
            else: a = WR + (t - 19)*4
            for js in range(4):
                c = acc(jd, js); bb = HB + (b % 5)*16 + js*4
                cc = "0" if b == 0 else f"v[{c}:{c+3}]"
                I(f"v_mfma_f32_16x16x32_bf16 v[{c}:{c+3}], v[{a}:{a+3}], v[{bb}:{bb+3}], {cc}")
                if js == 0 and t + NR - 1 < 19: wrd(t + NR - 1)
        if b == 0: hld(5)
        if b == 1:
            for js in range(4): I(f"s_add_u32 s{40+js}, s{40+js}, s15")
            hld(6)
        if b == 2:
            I(f"buffer_load_dwordx2 v[{XX+6}:{XX+7}], v10, s[24:27], 0 offen"); vq.append(("x", 0))
            for j in range(3):
                I(f"buffer_load_dwordx2 v[{XX+2*j}:{XX+2*j+1}], v9, s[20:23], 0 offen offset:{32*j}"); vq.append(("x", 0))
    e("G2_skip6:")
    stamp()
    I("s_cmp_eq_u32 s3, 7")
    I("s_cselect_b32 s40, 0, -1")
    I("s_mov_b32 s41, s40")
    I("s_nop 7")
    for js in range(4):
        for jd in range(5):
            c = acc(jd, js)
            if (js, jd) == (3, 4): I("s_mov_b64 exec, s[40:41]")
            I(f"ds_write_b128 v2, v[{c}:{c+3}] offset:{(js*5+jd)*1024}")
    I("s_mov_b64 exec, -1")
    def yld():
        for j in range(3):
            I(f"s_mov_b32 s12, {j*65536}")
            I(f"buffer_load_dwordx4 v[{YF+4*j}:{YF+4*j+3}], v11, s[28:31], s12 offen")
    I("s_waitcnt vmcnt(0)")
    I("s_cmp_eq_u32 s3, s57")
    I("s_cbranch_scc0 G2_yl")
    g2_publish()
    I("s_branch G2_yc")
    e("G2_yl:")
    g2_lread()
    e("G2_yc:")
    I("s_and_b32 s58, s58, s13")
    I("s_cmp_eq_u32 s58, s13")
    I("s_cselect_b32 s42, 1, 0")
    I("s_cbranch_scc0 G2_noy")
    yld()
    e("G2_noy:")
    IDB = RG
    I("s_and_b32 s12, s36, 1")
    I("s_lshl_b32 s12, s12, 4")
    I(f"v_add_u32 v{TQ}, s12, v7")
    I(f"v_lshrrev_b32 v{TQ+1}, 3, v{TQ}")
    I(f"v_cmp_eq_u32 vcc, v{TQ+1}, v8")
    I(f"v_and_b32 v{TQ+1}, 7, v{TQ}")
    I(f"v_and_b32 v{TQ+2}, 1, v{TQ+1}")
    I(f"v_lshlrev_b32 v{TQ+2}, 4, v{TQ+2}")
    I(f"v_mov_b32 v{TQ+3}, 0x3f80")
    I(f"v_lshlrev_b32 v{TQ+3}, v{TQ+2}, v{TQ+3}")
    I(f"v_lshrrev_b32 v{TQ+1}, 1, v{TQ+1}")
    I(f"v_cndmask_b32 v{TQ+3}, 0, v{TQ+3}, vcc")
    for j in range(4):
        I(f"v_cmp_eq_u32 vcc, {j}, v{TQ+1}")
        I("s_nop 1")
        I(f"v_cndmask_b32 v{IDB+j}, 0, v{TQ+3}, vcc")
    XN = RG + 4
    for j in range(3):
        t = XN + 4*j; x0 = XX + 2*j
        lo16(t, x0); hi16(t+1, x0); lo16(t+2, x0+1); hi16(t+3, x0+1)
        for r in range(4): I(f"v_add_f32 v{t+r}, v{t+r}, v{XX+7}")
        for r in range(4): I(f"v_cvt_pk_bf16_f32 v{t+r}, 0, v{t+r}")
        for r in range(4): I(f"v_mul_f32 v{t+r}, v{t+r}, v{XX+6}")
        for r in range(4): I(f"v_cvt_pk_bf16_f32 v{t+r}, 0, v{t+r}")
    I("s_mul_i32 s12, s36, 5120")
    I("s_lshl_b32 s37, s37, 6")
    I("s_add_u32 s12, s12, s37")
    I("v_add_u32 v5, s12, v1")
    I(f"v_add_u32 v10, {3*20480}, v5")
    I(f"v_add_u32 v2, {6*20480}, v5")
    I("s_waitcnt lgkmcnt(0)")
    I("s_barrier")
    stamp()
    R = WR
    for j in range(3):
        for src in range(8):
            r = R + (j*8 + src)*4
            if (j, src) == (2, 7):
                for i in range(4): I(f"v_mov_b32 v{r+i}, v{acc(4,3)+i}")
                I("s_mov_b64 exec, s[40:41]")
            I(f"ds_read_b128 v[{r}:{r+3}], v{(5, 10, 2)[src//3]} offset:{(src % 3)*20480 + j*1024}")
    I("s_mov_b64 exec, -1")
    for j in range(3):
        I(f"s_waitcnt lgkmcnt({(15, 7, 0)[j]})")
        r0 = R + j*32
        for st_ in (16, 8, 4):
            for o in range(0, st_, 2):
                I(f"v_pk_add_f32 v[{r0+o}:{r0+o+1}], v[{r0+o}:{r0+o+1}], v[{r0+st_+o}:{r0+st_+o+1}]")
        for r in range(4): I(f"v_cvt_pk_bf16_f32 v{r0+r}, 0, v{r0+r}")
    I("s_cmp_eq_u32 s42, 1")
    I("s_cbranch_scc1 G2_ydone")
    g2_wait("G2Y", "s13")
    yld()
    e("G2_ydone:")
    I("s_waitcnt vmcnt(0)")
    stamp()
    TY = HB
    for j in range(3):
        I(f"v_mfma_f32_16x16x32_bf16 v[{TY+4*j}:{TY+4*j+3}], v[{YF+4*j}:{YF+4*j+3}], v[{IDB}:{IDB+3}], 0")
    for j in range(3):
        t = TQ + 4*j; x0 = XX + 2*j
        lo16(t, x0); hi16(t+1, x0); lo16(t+2, x0+1); hi16(t+3, x0+1)
    I("s_nop 3")
    for j in range(3):
        t = TQ + 4*j; ty = TY + 4*j; xn = XN + 4*j; r0 = R + j*32
        for r in range(4): I(f"v_mul_f32 v{ty+r}, v{ty+r}, v{xn+r}")
        for r in range(4): I(f"v_cvt_pk_bf16_f32 v{ty+r}, 0, v{ty+r}")
        for r in range(4): I(f"v_add_f32 v{t+r}, v{t+r}, v{ty+r}")
        for r in range(4): I(f"v_cvt_pk_bf16_f32 v{t+r}, 0, v{t+r}")
        for r in range(4): I(f"v_add_f32 v{t+r}, v{t+r}, v{r0+r}")
        I(f"v_cvt_pk_bf16_f32 v{ty}, v{t}, v{t+1}")
        I(f"v_cvt_pk_bf16_f32 v{ty+1}, v{t+2}, v{t+3}")
        I(f"buffer_store_dwordx2 v[{ty}:{ty+1}], v9, s[32:35], 0 offen offset:{32*j}")
    if STAMP: I("s_waitcnt vmcnt(0)")
    stamp()
    stamp_dump(5)
    I("s_endpgm")
G2ST = [0]

def gen_g1b():
    NF = 10; RS = 320; MS = 32*RS; SL = 2*MS; NS = 6; NST = 20; NX = 4
    XB = NS*SL
    XS = 8192
    STB = XB + NX*XS
    CSB = STB + 1024
    I(f"s_mul_i32 s25, s25, {16*NF}")
    I(f"s_min_u32 s25, s25, {F-16*NF}")
    I("v_and_b32 v1, 63, v0")
    for f_ in FLAGS:
        if f_.startswith("gdel"): I(f"s_sleep {int(f_[4:])}")
    I("s_cmp_lt_u32 s3, 4")
    I("s_cbranch_scc1 G1_cons")
    I("s_and_b32 s26, s3, 3")
    I("s_lshl_b32 s27, s24, 7")
    I("s_lshl_b32 s28, s26, 5")
    I("s_add_u32 s27, s27, s28")
    I("v_lshrrev_b32 v12, 2, v1")
    I("v_bfe_u32 v11, v1, 3, 2")
    I("v_xor_b32 v11, v11, v1")
    I("v_and_b32 v11, 3, v11")
    I("v_add_u32 v13, s27, v12")
    I("v_lshlrev_b32 v7, 3, v13")
    I("v_mul_u32_u24 v13, 0x500, v13")
    I("v_lshl_add_u32 v13, v11, 4, v13")
    I(f"v_add_u32 v14, {16*1280-1024}, v13")
    I("s_lshl_b32 s30, s26, 11")
    I(f"s_add_u32 s30, s30, {XB}")
    I("v_lshl_add_u32 v6, v1, 4, s30")
    I("s_lshl_b32 s28, s26, 8")
    I(f"s_add_u32 s28, s28, {STB}")
    I("v_lshl_add_u32 v5, v12, 3, s28")
    I("s_lshl_b32 s27, s25, 1")
    I("s_and_b32 s28, s26, 1")
    I("s_mul_i32 s28, s28, 320")
    for i in range(5):
        I(f"v_add_u32 v20, s28, v1")
        if i: I(f"v_add_u32 v20, {64*i}, v20")
        I("v_mul_u32_u24 v21, 3277, v20")
        I("v_lshrrev_b32 v21, 16, v21")
        I("v_mul_u32_u24 v22, 20, v21")
        I("v_sub_u32 v22, v20, v22")
        I("v_bfe_u32 v23, v21, 3, 1")
        I("v_lshlrev_b32 v23, 1, v23")
        I("v_xor_b32 v22, v22, v23")
        I("v_mul_u32_u24 v21, 3456, v21")
        I("v_lshl_add_u32 v21, v22, 4, v21")
        I("v_add_u32 v21, s27, v21")
        I(f"v_subrev_u32 v{24+i}, {1024*(i%4)}, v21")
    I("s_mul_i32 s29, s26, 5120")
    I("s_waitcnt lgkmcnt(0)")
    HST = "zst" in FLAGS
    if HST: stamp()
    I("s_cmp_ge_u32 s26, 2")
    I("s_cselect_b32 s4, s18, s16")
    I("s_cselect_b32 s5, s19, s17")
    srd(8, 4, SZ_W)
    srd(12, 44, SZ_SD)
    vq = []
    def vwait(pred):
        idxs = [i for i, t in enumerate(vq) if pred(t)]
        if not idxs: return
        idx = max(idxs)
        n = len(vq) - 1 - idx
        assert n <= 63
        I(f"s_waitcnt vmcnt({n})")
        del vq[:idx+1]
    ROT = "krot" in FLAGS or "krotq" in FLAGS
    if ROT:
        if "krotq" in FLAGS:
            I("s_lshr_b32 s51, s24, 2")
            I("s_mul_i32 s51, s51, 5")
        else:
            I("s_mul_i32 s51, s24, 5")
            I("s_lshr_b32 s51, s51, 2")
        I(f"s_mul_i32 s50, s51, {32*3456}")
        I("s_lshl_b32 s51, s51, 6")
    def wdma(st):
        ops = []
        for i in range(5):
            pre = []
            if i == 0 and not ROT: pre.append(f"s_mov_b32 s28, {st*32*3456}")
            if i == 0 and ROT: pre += ["s_mov_b32 s28, s50", f"s_add_u32 s50, s50, {32*3456}", f"s_cmp_eq_u32 s50, {640*3456}", "s_cselect_b32 s50, 0, s50"]
            if i % 4 == 0: pre.append(f"s_add_u32 m0, s29, {(st % NS)*SL + (i//4)*4096}")
            ops.append(pre + [(f"buffer_load_dwordx4 v{24+i}, s[8:11], s28 offen offset:{1024*(i%4)}{WNT} lds", ("W", st))])
        return ops
    def xdma(st):
        ops = []
        for i in range(2):
            pre = []
            if i == 0 and not ROT: pre += [f"s_movk_i32 s31, {st*64}", f"s_add_u32 m0, s30, {(st % NX)*XS}"]
            if i == 0 and ROT: pre += ["s_mov_b32 s31, s51", "s_add_u32 s51, s51, 64", "s_cmpk_eq_u32 s51, 1280", "s_cselect_b32 s51, 0, s51", f"s_add_u32 m0, s30, {(st % NX)*XS}"]
            ops.append(pre + [(f"buffer_load_dwordx4 v{13+i}, s[12:15], s31 offen offset:{1024*i} lds", ("X", st))])
        return ops
    def emit(group):
        for x in group:
            if isinstance(x, tuple): I(x[0]); vq.append(x[1])
            else: I(x)
    P0 = NS
    for f_ in FLAGS:
        if f_.startswith("p0_"): P0 = int(f_[3:])
    nxt = {"W": 0, "X": 0}
    HS = 0
    for f_ in FLAGS:
        if f_.startswith("hs"): HS = int(f_[2:])
    P1 = NS
    for f_ in FLAGS:
        if f_.startswith("p1_"): P1 = int(f_[3:])
    for st in range(P1 if HS else P0):
        if HS and st == P0: I(f"s_sleep {HS}")
        if st < NX:
            for g_ in xdma(st): emit(g_)
            nxt["X"] = st + 1
        for g_ in wdma(st): emit(g_)
        nxt["W"] = st + 1
        if HST and st in (0, 1) and "zk2" not in FLAGS: stamp()
    if HST and "zk2" not in FLAGS: stamp()
    srd(20, 6, S*8, WS_ST)
    I("s_load_dwordx2 s[4:5], s[0:1], 72")
    I("s_min_u32 s48, s46, 269")
    I("s_mul_i32 s17, s48, 0xCCCD")
    I("s_lshr_b32 s17, s17, 19")
    I("s_mul_i32 s18, s17, 10")
    I("s_sub_u32 s18, s48, s18")
    I("v_and_b32 v23, 7, v0")
    I("v_bfe_u32 v17, v0, 3, 2")
    I("v_bfe_u32 v18, v0, 5, 1")
    I("s_lshl_b32 s18, s18, 6")
    I("v_lshl_add_u32 v23, v23, 3, s18")
    I("s_lshl_b32 s19, s17, 1")
    I("v_add_u32 v18, s19, v18")
    I("v_lshlrev_b32 v19, 5, v18")
    I("v_lshl_add_u32 v19, v17, 2, v19")
    I("v_mul_u32_u24 v20, 0x500, v19")
    I("v_lshl_add_u32 v20, v23, 1, v20")
    I("v_add_u32 v21, 0x5000, v20")
    I("s_mov_b32 s36, 0x05040100")
    I("s_mov_b32 s37, 0x07060302")
    I("v_lshrrev_b32 v22, 4, v23")
    I("v_mul_u32_u24 v22, 54, v22")
    I("v_add_u32 v22, v22, v18")
    I("v_lshlrev_b32 v22, 10, v22")
    I("v_lshl_add_u32 v22, v17, 8, v22")
    I("v_and_b32 v19, 15, v23")
    I("v_lshl_add_u32 v22, v19, 4, v22")
    I("s_cmp_lt_u32 s46, 270")
    I(f"s_cselect_b32 s49, {SZ_W}, 0")
    I("s_waitcnt lgkmcnt(0)")
    srd(40, 4, SZ_W)
    srd(32, 6, SZ_W, WS_WDT)
    I("s_mov_b32 s42, s49")
    I("s_mov_b32 s34, s49")
    if G2F:
        g2_setup(4)
        I(f"v_mov_b32 v140, {LMB}")
        I("v_mov_b32 v142, 0")
        I("v_mov_b32 v143, 0")
        I("ds_write_b64 v140, v[142:143]")
        I("v_lshlrev_b32 v100, 4, v1")
        I("s_cmp_ge_u32 s3, 6")
        I("s_cselect_b32 s39, 0x40000000, 0")
        I("s_bfe_u32 s38, s2, 0x20005")
        I("s_mul_i32 s38, s38, 280")
        I("s_mul_i32 s58, s26, 70")
        I("s_add_u32 s38, s38, s58")
        for i in range(2):
            I(f"v_add_u32 v101, s38, v1")
            if i: I("v_add_u32 v101, 6, v101")
            I("v_mul_u32_u24 v102, 4682, v101")
            I("v_lshrrev_b32 v102, 20, v102")
            I("v_mul_u32_u24 v103, 224, v102")
            I("v_sub_u32 v101, v101, v103")
            I("v_lshlrev_b32 v101, 7, v101")
            I("v_mul_u32_u24 v102, 55296, v102")
            I(f"v_add_u32 v{104+i}, v101, v102")
        I(f"s_mul_i32 s38, s54, {5*55296}")
    XA = 32; TT = 40; SM = 48; SQ = 50; STA = 52; RAW = 64
    for j in range(4): I(f"v_mov_b32 v{SM+j}, 0")
    WLK = 6; WPK = 10
    for f_ in FLAGS:
        if f_.startswith("wlk"): WLK = int(f_[3:])
        if f_.startswith("wpk"): WPK = int(f_[3:])
    if G2F: WLK = WPK = 99
    def statops():
        ops = []
        for rg in range(2):
            for c in range(4):
                r = XA + 4*rg + c; t = TT + 2*(c & 1)
                ops += [f"v_lshlrev_b32 v{t}, 16, v{r}", f"v_and_b32 v{t+1}, 0xffff0000, v{r}",
                        f"v_add_f32 v{SM+rg}, v{SM+rg}, v{t}", f"v_fmac_f32 v{SQ+rg}, v{t}, v{t}",
                        f"v_add_f32 v{SM+rg}, v{SM+rg}, v{t+1}", f"v_fmac_f32 v{SQ+rg}, v{t+1}, v{t+1}"]
        return ops
    for k in range(NST + 1):
        dm = []
        if k >= 1:
            for _ in range(2):
                if nxt["X"] <= min(NST-1, max(NX-1, k+2)): dm += xdma(nxt["X"]); nxt["X"] += 1
                if nxt["W"] <= min(NST-1, max(NS-1, k+3)): dm += wdma(nxt["W"]); nxt["W"] += 1
        if k == WLK:
            for i in range(8):
                b = 20 if i < 4 else 21
                dm.append([(f"buffer_load_dwordx4 v[{RAW+4*i}:{RAW+3+4*i}], v{b}, s[40:43], 0 offen offset:{(i%4)*1280}", ("T", 0))])
        if G2F and HPW >= 0 and HPW <= k:
            for t in range((k - HPW)*HPN, min(35, (k - HPW + 1)*HPN if k < NST else 35)):
                b, jd = divmod(t, 5)
                r = G2_ACC + 4*t if t < 19 else G2_WR + 4*(t - 19)
                pre = [f"s_add_u32 s58, s52, {jd*55296 + (b//4)*4096}"]
                if b == 6: pre.append("s_add_u32 s58, s58, s39")
                dm.append(pre + [(f"buffer_load_dwordx4 v[{r}:{r+3}], v100, s[48:51], s58 offen offset:{1024*(b % 4)}", ("G", 0))])
        if G2F and k == HTK:
            for i in range(2):
                dm.append([(f"buffer_load_dword v{101+i}, v{104+i}, s[48:51], s38 offen", ("G", 0))])
        va = []
        if k >= 1:
            for rg in range(2):
                I(f"ds_read_b128 v[{XA+4*rg}:{XA+4*rg+3}], v6 offset:{((k-1) % NX)*XS + 1024*rg}")
            va = statops() if "nostat" not in FLAGS else []
        if WPK <= k < WPK + 4:
            for dd in range(2*(k-WPK), 2*(k-WPK)+2):
                ob = RAW + 32 + 4*dd
                sel = 36 + (dd & 1)
                for q in range(4):
                    va.append(f"v_perm_b32 v{ob+q}, v{RAW+4*(2*q+1)+dd//2}, v{RAW+4*(2*q)+dd//2}, s{sel}")
                va.append((f"buffer_store_dwordx4 v[{ob}:{ob+3}], v22, s[32:35], 0 offen offset:{16*dd}{SCW}", ("S", 0)))
        nfirst = min(2, len(dm))
        for g_ in dm[:nfirst]: emit(g_)
        rest = dm[nfirst:]
        if k == WPK: vwait(lambda t: t[0] == "T")
        if va: I("s_waitcnt lgkmcnt(0)")
        step = max(1, len(va) // (len(rest) + 1)) if rest else 0
        ri = 0
        for i, o in enumerate(va):
            emit([o])
            if rest and ri < len(rest) and (i + 1) % step == 0:
                emit(rest[ri]); ri += 1
        for g_ in rest[ri:]: emit(g_)
        if k < NST:
            ZK = (0, 1, 2) if "zk2" not in FLAGS else (3, 4, 5)
            for f_ in FLAGS:
                if f_.startswith("zkk"): ZK = tuple(int(x) for x in f_[3:].split("_"))
            if HST and k in ZK: stamp()
            vwait(lambda t: t in (("W", k), ("X", k)))
            if HST and k in ZK: stamp()
            I("s_barrier")
            if HST and k in ZK and "zk2" in FLAGS: stamp()
    V4 = [SM, SM+1, SQ, SQ+1]
    I("s_nop 1")
    for dpp in ("quad_perm:[1,0,3,2]", "quad_perm:[2,3,0,1]"):
        for i, a in enumerate(V4): I(f"v_add_f32_dpp v{TT+i}, v{a}, v{a} {dpp} row_mask:0xf bank_mask:0xf")
        for i, a in enumerate(V4): I(f"v_mov_b32 v{a}, v{TT+i}")
    R2 = range(2)
    for a in V4: I(f"v_mul_f32 v{a}, {1.0/640.0!r}, v{a}")
    for rg in R2: I(f"v_fma_f32 v{SQ+rg}, -v{SM+rg}, v{SM+rg}, v{SQ+rg}")
    for rg in R2:
        I(f"v_cvt_pk_bf16_f32 v{STA+2*rg+1}, 0, -v{SM+rg}")
        I(f"v_cvt_pk_bf16_f32 v{SQ+rg}, 0, v{SQ+rg}")
    for rg in R2: I(f"v_add_f32 v{SQ+rg}, {1e-5!r}, v{SQ+rg}")
    for rg in R2: I(f"v_cvt_pk_bf16_f32 v{SQ+rg}, 0, v{SQ+rg}")
    for rg in R2: I(f"v_sqrt_f32 v{SQ+rg}, v{SQ+rg}")
    I("s_nop 0")
    for rg in R2: I(f"v_cvt_pk_bf16_f32 v{SQ+rg}, 0, v{SQ+rg}")
    for rg in R2: I(f"v_rcp_f32 v{STA+2*rg}, v{SQ+rg}")
    I("s_nop 0")
    for rg in R2: I(f"ds_write_b64 v5, v[{STA+2*rg}:{STA+2*rg+1}] offset:{128*rg}")
    I("s_waitcnt lgkmcnt(0)")
    I("s_barrier")
    if G2F:
        I("s_barrier")
        g2_head("help")
    else:
        for rg in R2: I(f"buffer_store_dwordx2 v[{STA+2*rg}:{STA+2*rg+1}], v7, s[20:23], 0 offen offset:{128*rg}")
        if HST:
            stamp_dump(5); nst[0] = 1
        I("s_endpgm")
    e("G1_cons:")
    I("s_and_b32 s31, s3, 1")
    I("s_lshr_b32 s33, s3, 1")
    I("s_lshl_b32 s27, s24, 3")
    I("s_lshl_b32 s26, s31, 2")
    I("s_add_u32 s26, s26, s27")
    I("s_mul_i32 s27, s26, 55296")
    I("v_lshl_add_u32 v9, v1, 4, s27")
    I("v_bfe_u32 v17, v0, 4, 2")
    I("v_and_b32 v18, 15, v0")
    I("v_bfe_u32 v19, v0, 1, 2")
    I("v_xor_b32 v19, v19, v17")
    I("v_lshlrev_b32 v6, 6, v18")
    I("v_lshl_add_u32 v6, v19, 4, v6")
    I("s_lshl_b32 s30, s31, 12")
    I(f"s_add_u32 s30, s30, {XB}")
    I("v_add_u32 v6, s30, v6")
    I("s_lshl_b32 s30, s31, 9")
    I(f"s_add_u32 s30, s30, {STB}")
    I("v_lshl_add_u32 v7, v18, 3, s30")
    I("s_mul_i32 s30, s3, 320")
    I(f"s_add_u32 s30, s30, {CSB}")
    I("v_lshl_add_u32 v8, v17, 4, s30")
    I("s_xor_b32 s30, s3, 1")
    I("s_mul_i32 s30, s30, 320")
    I(f"s_add_u32 s30, s30, {CSB}")
    I("v_lshl_add_u32 v10, v17, 4, s30")
    I("v_bfe_u32 v18, v0, 2, 2")
    I("v_lshl_add_u32 v19, v17, 3, v18")
    I(f"v_mul_u32_u24 v19, {RS}, v19")
    I("v_and_b32 v18, 3, v0")
    I("v_lshl_add_u32 v19, v18, 3, v19")
    I("s_mul_i32 s27, s33, 160")
    I("v_add_u32 v19, s27, v19")
    I("v_and_b32 v18, 1, v17")
    I("v_lshlrev_b32 v18, 5, v18")
    I("s_lshl_b32 s27, s33, 1")
    I("s_sub_u32 s27, 1, s27")
    I("v_mul_lo_u32 v18, v18, s27")
    I(f"s_mul_i32 s27, s31, {MS}")
    I(f"s_sub_u32 s28, {MS}, s27")
    I("v_add_u32 v2, v19, v18")
    I("v_sub_u32 v3, v19, v18")
    for mm in range(2):
        for rg in range(2):
            for par in range(2):
                d = 11 + 4*mm + 2*rg + par
                I(f"v_add_u32 v{d}, s{27+mm}, v{2+par}")
                if rg: I(f"v_add_u32 v{d}, {3*SL}, v{d}")
    BB = 20; AF = 52; ONE = 68; CS = 72; ACC = 92; LA = 2
    for f_ in FLAGS:
        if f_.startswith("la"): LA = int(f_[2:])
    for j in range(4): I(f"v_mov_b32 v{ONE+j}, 0x3f803f80")
    I("s_waitcnt lgkmcnt(0)")
    srd(20, 6, SZ_H, WS_H)
    PFD = 0
    for f_ in FLAGS:
        if f_.startswith("pfd"): PFD = int(f_[3:])
    PFW = [None]
    if PFD:
        I("s_cmp_eq_u32 s3, 1")
        I("s_cselect_b32 s8, s18, s16")
        I("s_cselect_b32 s9, s19, s17")
        I("s_cmp_eq_u32 s3, 2")
        I("s_cselect_b32 s8, s44, s8")
        I("s_cselect_b32 s9, s45, s9")
        I(f"s_mov_b32 s10, {SZ_W}")
        I(f"s_cselect_b32 s10, {SZ_SD}, s10")
        I("s_mov_b32 s11, 0x00020000")
        I("s_cselect_b32 s12, 24, 20")
        I(f"s_mov_b32 s13, {128*3456}")
        I(f"s_cselect_b32 s13, 256, s13")
        I("s_cmp_eq_u32 s3, 3")
        I("s_cselect_b32 s12, 0, s12")
        I("s_mul_i32 s14, s47, s12")
        I("v_add_u32 v4, s14, v1")
        I("v_lshlrev_b32 v5, 7, v4")
        I("v_lshrrev_b32 v19, 1, v4")
        I("v_mul_u32_u24 v19, 0x500, v19")
        I("v_and_b32 v4, 1, v4")
        I("v_lshl_add_u32 v4, v4, 7, v19")
        I("v_min_u32 v5, 442240, v5")
        I("s_cmp_eq_u32 s3, 2")
        I("s_cselect_b64 vcc, -1, 0")
        I("v_cndmask_b32 v4, v5, v4, vcc")
        I("v_cmp_gt_u32 s[14:15], s12, v1")
        I("s_mov_b32 s16, 0")
        if "pfs0" in FLAGS: I("s_mov_b32 s16, s13")
        def pf():
            I("s_mov_b64 exec, s[14:15]")
            I("buffer_load_dword v19, v4, s[8:11], s16 offen")
            I("s_mov_b64 exec, -1")
            I("s_add_u32 s16, s16, s13")
        PFW[0] = pf
        PQ = [0]*5
        for f_ in FLAGS:
            if f_.startswith("pq"): PQ = [int(x) for x in f_[2:].split("_")]
        for g_ in range(1 if "pfs0" in FLAGS else 0, min(5, PFD)):
            if PQ[g_]: I(f"s_sleep {PQ[g_]}")
            pf()
    LPF = 0; LG0 = 3
    for f_ in FLAGS:
        if f_.startswith("lpf"): LPF = int(f_[3:])
        if f_.startswith("lg0"): LG0 = int(f_[3:])
    if LPF:
        assert PFD
        I("s_cmp_eq_u32 s41, 0")
        I("s_movk_i32 s36, 5462")
        I("s_cselect_b32 s36, 4370, s36")
        I("s_cselect_b32 s37, 15, 12")
        I("s_cselect_b32 s38, 0, 1920")
        I("s_cselect_b32 s39, 22, 26")
        I("s_mul_i32 s28, s40, 40")
        I("v_add_u32 v5, s28, v1")
        I("s_lshl_b32 s28, s37, 6")
        I("s_sub_u32 s28, s28, 1")
        I("v_min_u32 v5, s28, v5")
        I("v_mul_u32_u24 v20, s36, v5")
        I("v_lshrrev_b32 v20, 16, v20")
        I("v_mul_u32_u24 v21, s37, v20")
        I("v_sub_u32 v5, v5, v21")
        I("v_mul_u32_u24 v20, 3456, v20")
        I("v_lshl_add_u32 v5, v5, 7, v20")
        I("v_add_u32 v5, s38, v5")
        I("s_mul_i32 s28, s40, s39")
        I("v_add_u32 v20, s28, v1")
        I("v_min_u32 v20, 511, v20")
        I("s_lshl_b32 s28, s42, 9")
        I("v_add_u32 v20, s28, v20")
        I("v_mul_u32_u24 v20, 0x500, v20")
        I("s_cmp_eq_u32 s3, 2")
        I("s_cselect_b64 vcc, -1, 0")
        I("v_cndmask_b32 v5, v5, v20, vcc")
        I("s_cselect_b32 s28, s39, 40")
        I(f"s_mov_b32 s39, {64*3456}")
        I("s_cselect_b32 s39, 128, s39")
        I("s_cmp_eq_u32 s3, 3")
        I("s_cselect_b32 s28, 0, s28")
        I("v_cmp_gt_u32 s[36:37], s28, v1")
        I(f"s_mul_i32 s38, s39, {LG0}")
        def lpf():
            I("s_mov_b64 exec, s[36:37]")
            I("buffer_load_dword v19, v5, s[8:11], s38 offen")
            I("s_mov_b64 exec, -1")
            I("s_add_u32 s38, s38, s39")
        for g_ in range(LG0, LPF//2): lpf()
    WPF = -1
    for f_ in FLAGS:
        if f_.startswith("wpf"): WPF = int(f_[3:])
    if WPF >= 0:
        I("s_load_dwordx2 s[36:37], s[0:1], 72")
        I("s_and_b32 s38, s3, 1")
        I("s_mul_i32 s38, s38, 176")
        I("s_add_u32 s38, s38, s47")
        I("s_min_u32 s38, s38, 269")
        I("s_mul_i32 s39, s38, 0xCCCD")
        I("s_lshr_b32 s39, s39, 19")
        I("s_mul_i32 s40, s39, 10")
        I("s_sub_u32 s40, s38, s40")
        I("s_mul_i32 s41, s39, 81920")
        I("s_lshl_b32 s40, s40, 7")
        I("s_add_u32 s41, s41, s40")
        I("v_mul_u32_u24 v5, 0x500, v1")
        I("s_cmp_ge_u32 s3, 2")
        I(f"s_cselect_b32 s38, {SZ_W}, 0")
        I("s_mov_b32 s39, 0x00020000")
        I("s_waitcnt lgkmcnt(0)")
    def acc(m, j, js): return ACC + ((m*5 + j)*4 + js)*4
    seq = [(m, j) for m in range(2) for j in range(5)]
    NQ = len(seq)
    dq = []
    def dwait(tags):
        idxs = [i for i, t in enumerate(dq) if t in tags]
        if not idxs: return
        idx = max(idxs); n = len(dq) - 1 - idx
        assert n <= 15
        I(f"s_waitcnt lgkmcnt({n})")
        del dq[:idx+1]
    def rdx(gpos):
        st, idx = divmod(gpos, NQ)
        m, j = seq[idx]
        slot = st % NS
        a = AF + (gpos % 4)*4
        va = 11 + 4*m + 2*(slot // 3) + (j & 1)
        off = (slot % 3)*SL + j*32
        return [f"ds_read_b64_tr_b16 v[{a}:{a+1}], v{va} offset:{off}",
                f"ds_read_b64_tr_b16 v[{a+2}:{a+3}], v{va} offset:{off+4*RS}"]
    def xrd(st, js):
        b = BB + (st & 1)*16 + js*4
        I(f"ds_read_b128 v[{b}:{b+3}], v6 offset:{(st % NX)*XS + js*1024}")
        dq.append(("X", st))
    stamp()
    I("s_barrier")
    stamp()
    for js in range(4): xrd(0, js)
    for i in range(LA):
        for x in rdx(i): I(x); dq.append(("A", i))
    for st in range(NST):
        if "cbs" in FLAGS and st in (3, 8, 13, 17): stamp()
        if st + 1 < NST: I("s_barrier")
        if "cbs" in FLAGS and st in (3, 8, 13, 17): stamp()
        if "stamp3" in FLAGS and st in (1, 5, 10) and "cbs" not in FLAGS: stamp()
        PFE = 4
        for f_ in FLAGS:
            if f_.startswith("pfe"): PFE = int(f_[3:])
        if PFD and st % PFE == 0 and st//PFE + PFD < (3 if ("cpf" in FLAGS or "cpf0" in FLAGS) else 5): PFW[0]()
        if st == WPF: I("buffer_load_dword v254, v5, s[36:39], s41 offen")
        if LPF and st % 2 == 0 and LG0 <= (st + LPF)//2 <= 9: lpf()
        for idx in range(NQ):
            gpos = st*NQ + idx
            rr = rdx(gpos + LA) if gpos + LA < NST*NQ else None
            dwait([("A", gpos), ("X", st)])
            m, j = seq[idx]
            a = AF + (gpos % 4)*4
            for js in range(4):
                c = acc(m, j, js); b = BB + (st & 1)*16 + js*4
                cc = "0" if st == 0 else f"v[{c}:{c+3}]"
                I(f"v_mfma_f32_16x16x32_bf16 v[{c}:{c+3}], v[{a}:{a+3}], v[{b}:{b+3}], {cc}")
                if rr and js < 2: I(rr[js]); dq.append(("A", gpos + LA))
                if js == 2 and st + 1 < NST and 1 <= idx <= 4: xrd(st + 1, idx - 1)
            if m == 0 and "nocs" not in FLAGS:
                c = CS + 4*j
                cc = "0" if st == 0 else f"v[{c}:{c+3}]"
                I(f"v_mfma_f32_16x16x32_bf16 v[{c}:{c+3}], v[{a}:{a+3}], v[{ONE}:{ONE+3}], {cc}")
    stamp()
    for j in range(5): I(f"ds_write_b128 v8, v[{CS+4*j}:{CS+4*j+3}] offset:{64*j}")
    I("s_lshr_b32 s34, s25, 5")
    I("s_lshl_b32 s34, s34, 10")
    if G2F:
        if XL: I("s_lshr_b32 s43, s40, 1")
        else:
            I("s_mul_i32 s43, s41, 6")
            I("s_lshr_b32 s42, s40, 2")
            I("s_add_u32 s43, s43, s42")
        I("s_lshl_b32 s43, s43, 1")
        I("s_add_u32 s43, s43, s33")
        I("s_lshl_b32 s43, s43, 2")
        I("s_lshl_b32 s42, s24, 1")
        I("s_add_u32 s42, s42, s31")
        I("s_lshl_b32 s42, s42, 10")
        I("s_add_u32 s43, s43, s42")
        g2_setup(4)
        srd(8, 6, S*8, WS_ST)
        I("v_lshlrev_b32 v5, 4, v1")
        I("s_lshl_b32 s42, s26, 7")
        I("v_lshl_add_u32 v4, v1, 3, s42")
        I("s_cmp_eq_u32 s33, 0")
        I("s_cselect_b32 s12, 0xffff, 0")
        I("s_mov_b32 s13, 0")
    I("s_waitcnt lgkmcnt(0)")
    I("s_barrier")
    CP2 = 20; STR = 40
    for js in range(4): I(f"ds_read_b64 v[{STR+2*js}:{STR+2*js+1}], v7 offset:{128*js}")
    for j in range(5): I(f"ds_read_b128 v[{CP2+4*j}:{CP2+4*j+3}], v10 offset:{64*j}")
    EP2 = "ep2" in FLAGS
    if EP2: I("s_waitcnt lgkmcnt(0)")
    if "est" in FLAGS: stamp()
    if G2F:
        assert EP2
        I("s_barrier")
        if not CLATE: g2_wdma(5)
        I("s_mov_b64 exec, s[12:13]")
        for js in range(4): I(f"buffer_store_dwordx2 v[{STR+2*js}:{STR+2*js+1}], v4, s[8:11], 0 offen offset:{128*js}{SCH}")
        I("s_mov_b64 exec, -1")
    for m in range(2 if not EP2 else 0):
        I(f"s_waitcnt lgkmcnt({5 if m == 0 else 0})")
        for j in range(5):
            cs = (CS if m == 0 else CP2) + 4*j
            for js in range(4):
                c = acc(m, j, js); sr = STR + 2*js
                for hh in range(2):
                    I(f"v_pk_fma_f32 v[{c+2*hh}:{c+2*hh+1}], v[{cs+2*hh}:{cs+2*hh+1}], v[{sr}:{sr+1}], v[{c+2*hh}:{c+2*hh+1}] op_sel:[0,1,0] op_sel_hi:[1,1,1]")
            for js in range(4):
                c = acc(m, j, js); sr = STR + 2*js
                for hh in range(2):
                    I(f"v_pk_mul_f32 v[{c+2*hh}:{c+2*hh+1}], v[{c+2*hh}:{c+2*hh+1}], v[{sr}:{sr+1}] op_sel:[0,0] op_sel_hi:[1,0]")
    cnt = [0]
    def hq(j, js, dst, t):
        g = acc(0, j, js); u = acc(1, j, js)
        if EP2:
            sr = STR + 2*js
            for (c, cs) in ((g, CS + 4*j), (u, CP2 + 4*j)):
                for hh in range(2):
                    I(f"v_pk_fma_f32 v[{c+2*hh}:{c+2*hh+1}], v[{cs+2*hh}:{cs+2*hh+1}], v[{sr}:{sr+1}], v[{c+2*hh}:{c+2*hh+1}] op_sel:[0,1,0] op_sel_hi:[1,1,1]")
            for c in (g, u):
                for hh in range(2):
                    I(f"v_pk_mul_f32 v[{c+2*hh}:{c+2*hh+1}], v[{c+2*hh}:{c+2*hh+1}], v[{sr}:{sr+1}] op_sel:[0,0] op_sel_hi:[1,0]")
            for c in (g, u):
                for r in range(4): I(f"v_cvt_pk_bf16_f32 v{c+r}, 0, v{c+r}")
            for hh in range(2):
                I(f"v_pk_mul_f32 v[{g+2*hh}:{g+2*hh+1}], v[{g+2*hh}:{g+2*hh+1}], v[{u+2*hh}:{u+2*hh+1}]")
            I(f"v_cvt_pk_bf16_f32 v{dst}, v{g}, v{g+1}")
            I(f"v_cvt_pk_bf16_f32 v{dst+1}, v{g+2}, v{g+3}")
            return
        I(f"v_cvt_pk_bf16_f32 v{t}, v{g}, v{g+1}")
        I(f"v_cvt_pk_bf16_f32 v{t+1}, v{g+2}, v{g+3}")
        I(f"v_cvt_pk_bf16_f32 v{t+2}, v{u}, v{u+1}")
        I(f"v_cvt_pk_bf16_f32 v{t+3}, v{u+2}, v{u+3}")
        lo16(g, t); hi16(g+1, t); lo16(g+2, t+1); hi16(g+3, t+1)
        lo16(u, t+2); hi16(u+1, t+2); lo16(u+2, t+3); hi16(u+3, t+3)
        for r in range(4):
            I(f"v_mul_f32 v{g+r}, v{g+r}, v{u+r}")
        I(f"v_cvt_pk_bf16_f32 v{dst}, v{g}, v{g+1}")
        I(f"v_cvt_pk_bf16_f32 v{dst+1}, v{g+2}, v{g+3}")
    def epi(fq):
        units = [((0, 1), 0, 0), ((2, 3), 1, 0), ((4,), 2, 0)] if fq == 0 else [((0,), 2, 8), ((1, 2), 3, 0), ((3, 4), 4, 0)]
        for js in range(4):
            I(f"s_add_u32 s35, s34, {js*55296}")
            I(f"s_add_u32 s36, s34, {js*55296 + 4096}")
            for (jl, blk, ho) in units:
                t = 24 + (cnt[0] % 4) * 12; cnt[0] += 1
                if EP2: t = 44 + (cnt[0] % 5) * 4
                for hh, j in enumerate(jl): hq(j, js, t+4+2*hh, t)
                so, off = ("s35", 1024*blk + ho) if blk < 4 else ("s36", ho)
                if len(jl) == 2:
                    I(f"buffer_store_dwordx4 v[{t+4}:{t+7}], v9, s[20:23], {so} offen offset:{off}{SCH}")
                else:
                    I(f"buffer_store_dwordx2 v[{t+4}:{t+5}], v9, s[20:23], {so} offen offset:{off}{SCH}")
    I("s_cmp_eq_u32 s33, 0")
    I("s_cbranch_scc0 G1_epi1")
    epi(0)
    I("s_branch G1_epid")
    e("G1_epi1:")
    epi(1)
    e("G1_epid:")
    if G2F:
        stamp()
        g2_head("cons")
        return
    if "est" in FLAGS:
        stamp()
        I("s_waitcnt vmcnt(9)")
        stamp()
        I("s_waitcnt vmcnt(3)")
        stamp()
    if STAMP: I("s_waitcnt vmcnt(0)")
    stamp()
    stamp_dump(5)
    wgt_end(1)
    I("s_endpgm")

def gen_g1f2():
    NF = 10; RS = 320; MS = 32*RS; SL = 2*MS; NS = 6; NST = 20; DWP = 5
    XB = NS*SL
    XP = 18432; XR = 144
    STL = XB + 2*XP
    CN = "nocn" not in FLAGS
    I(f"s_mul_i32 s25, s25, {16*NF}")
    I(f"s_min_u32 s25, s25, {F-16*NF}")
    I("v_and_b32 v1, 63, v0")
    I("s_and_b32 s26, s3, 3")
    I(f"s_mul_i32 s30, s26, {32*XR}")
    I(f"s_add_u32 s30, s30, {XB}")
    I("s_lshl_b32 s31, s26, 9")
    I(f"s_add_u32 s31, s31, {STL}")
    I("v_lshl_add_u32 v8, v1, 3, s31")
    I("s_lshl_b32 s27, s24, 3")
    I("s_lshl_b32 s26, s26, 1")
    I("s_add_u32 s26, s26, s27")
    I("s_mul_i32 s27, s26, 20480")
    I("v_lshrrev_b32 v12, 3, v1")
    I("v_and_b32 v11, 7, v1")
    I("v_mul_u32_u24 v13, 0x500, v12")
    I("v_lshl_add_u32 v13, v11, 4, v13")
    I("v_add_u32 v13, s27, v13")
    for rg in range(1, 4): I(f"v_add_u32 v{13+rg}, {rg*10240}, v13")
    I(f"v_mul_u32_u24 v5, {XR}, v12")
    I("v_lshl_add_u32 v5, v11, 4, v5")
    I("v_add_u32 v5, s30, v5")
    I("s_cmp_lt_u32 s3, 4")
    I("s_cbranch_scc1 G1_cons")
    RAW = 64
    def raw(rg, p): return RAW + (p*4 + rg)*4
    I("s_lshl_b32 s27, s26, 7")
    I("v_lshl_add_u32 v7, v12, 3, s27")
    I("s_waitcnt lgkmcnt(0)")
    srd(12, 44, SZ_SD)
    srd(20, 6, S*8, WS_ST)
    for p in range(10):
        for rg in range(4):
            r = raw(rg, p)
            I(f"buffer_load_dwordx4 v[{r}:{r+3}], v{13+rg}, s[12:15], 0 offen offset:{128*p}")
    SM = 24; SS = 32; TT = 40; STA = 48
    for j in range(16): I(f"v_mov_b32 v{SM+j}, 0")
    I("s_mov_b32 s49, 0x3f803f80")
    vq = [("Q", i) for i in range(40)]
    def vwait(pred):
        idxs = [i for i, t in enumerate(vq) if pred(t)]
        if not idxs: return
        idx = max(idxs)
        n = len(vq) - 1 - idx
        assert n <= 63
        I(f"s_waitcnt vmcnt({n})")
        del vq[:idx+1]
    def pdma(st):
        I(f"s_mov_b32 s28, {st*32*3456}")
        for i in range(5):
            if i % 4 == 0: I(f"s_add_u32 m0, s29, {(st % NS)*SL + (i//4)*4096}")
            I(f"buffer_load_dwordx4 v{224+i}, s[8:11], s28 offen offset:{1024*(i%4)} lds")
            vq.append(("D", st))
    I("s_lshl_b32 s27, s25, 1")
    I("s_and_b32 s28, s3, 1")
    I("s_lshl_b32 s28, s28, 4")
    for i in range(5):
        I(f"v_add_u32 v20, {64*i}, v1")
        I("v_mul_u32_u24 v21, 3277, v20")
        I("v_lshrrev_b32 v21, 16, v21")
        I("v_mul_u32_u24 v22, 20, v21")
        I("v_sub_u32 v22, v20, v22")
        I("v_add_u32 v21, s28, v21")
        I("v_bfe_u32 v23, v21, 3, 1")
        I("v_lshlrev_b32 v23, 1, v23")
        I("v_xor_b32 v22, v22, v23")
        I("v_mul_u32_u24 v21, 3456, v21")
        I("v_lshl_add_u32 v21, v22, 4, v21")
        I("v_add_u32 v21, s27, v21")
        I(f"v_subrev_u32 v{224+i}, {1024*(i%4)}, v21")
    I("s_sub_u32 s29, s3, 4")
    I("s_mul_i32 s29, s29, 5120")
    I("s_cmp_ge_u32 s3, 6")
    I("s_cselect_b32 s4, s18, s16")
    I("s_cselect_b32 s5, s19, s17")
    srd(8, 4, SZ_W)
    DSCH = {5: [0], 8: [1], 9: [2]}
    for f_ in FLAGS:
        if f_ == "dsch1": DSCH = {3: [0], 6: [1], 9: [2]}
        if f_ == "dsch2": DSCH = {7: [0], 9: [1, 2]}
        if f_ == "dsch3": DSCH = {-1: [0], 5: [1], 9: [2]}
    for st in DSCH.get(-1, []): pdma(st)
    for p in range(10):
        vwait(lambda t: t[0] == "Q" and t[1] <= 4*p + 3)
        for c in range(4):
            for rg in range(4):
                r = raw(rg, p) + c
                I(f"v_dot2_f32_bf16 v{SM+2*rg+(c&1)}, v{r}, s49, v{SM+2*rg+(c&1)}")
                I(f"v_dot2_f32_bf16 v{SS+2*rg+(c&1)}, v{r}, v{r}, v{SS+2*rg+(c&1)}")
        for st in DSCH.get(p, []): pdma(st)
    I("s_nop 3")
    V8 = [SM+2*rg for rg in range(4)] + [SS+2*rg for rg in range(4)]
    for a in V8: I(f"v_add_f32 v{a}, v{a}, v{a+1}")
    for i_, dpp in enumerate(("quad_perm:[1,0,3,2]", "quad_perm:[2,3,0,1]", "row_half_mirror")):
        sr, ds_ = (0, 1) if i_ % 2 == 0 else (1, 0)
        for a in V8: I(f"v_add_f32_dpp v{a+ds_}, v{a+sr}, v{a+sr} {dpp} row_mask:0xf bank_mask:0xf")
    R4 = range(4)
    for a in V8: I(f"v_mul_f32 v{a}, {1.0/640.0!r}, v{a+1}")
    for rg in R4: I(f"v_fma_f32 v{SS+2*rg}, -v{SM+2*rg}, v{SM+2*rg}, v{SS+2*rg}")
    for rg in R4:
        I(f"v_cvt_pk_bf16_f32 v{STA+2*rg+1}, 0, -v{SM+2*rg}")
        I(f"v_cvt_pk_bf16_f32 v{SS+2*rg}, 0, v{SS+2*rg}")
    for rg in R4: I(f"v_add_f32 v{SS+2*rg}, {1e-5!r}, v{SS+2*rg}")
    for rg in R4: I(f"v_cvt_pk_bf16_f32 v{SS+2*rg}, 0, v{SS+2*rg}")
    for rg in R4: I(f"v_sqrt_f32 v{SS+2*rg}, v{SS+2*rg}")
    I("s_nop 0")
    for rg in R4: I(f"v_cvt_pk_bf16_f32 v{SS+2*rg}, 0, v{SS+2*rg}")
    for rg in R4: I(f"v_rcp_f32 v{STA+2*rg}, v{SS+2*rg}")
    I("s_mov_b32 s50, 0x3f80")
    I("s_mov_b32 s51, 0x3f800000")
    if CN: I(f"ds_write_b64 v8, v[{STA+6}:{STA+7}]")
    def norm_ops(r, R_, M_, tt, wr, fast=False):
        o = []
        if fast:
            for c in range(4):
                o.append(f"v_dot2_f32_bf16 v{tt+2*c}, v{r+c}, s50, v{M_}")
                o.append(f"v_dot2_f32_bf16 v{tt+2*c+1}, v{r+c}, s51, v{M_}")
            for c in range(8): o.append(f"v_cvt_pk_bf16_f32 v{tt+c}, 0, v{tt+c}")
            for c in range(4): o.append(f"v_pk_mul_f32 v[{tt+2*c}:{tt+2*c+1}], v[{tt+2*c}:{tt+2*c+1}], v[{R_}:{R_+1}] op_sel_hi:[1,0]")
        else:
            for c in range(4):
                o.append(f"v_lshlrev_b32 v{tt+2*c}, 16, v{r+c}")
                o.append(f"v_and_b32 v{tt+2*c+1}, 0xffff0000, v{r+c}")
            for c in range(8): o.append(f"v_add_f32 v{tt+c}, v{tt+c}, v{M_}")
            for c in range(8): o.append(f"v_cvt_pk_bf16_f32 v{tt+c}, 0, v{tt+c}")
            for c in range(8): o.append(f"v_mul_f32 v{tt+c}, v{tt+c}, v{R_}")
        for c in range(4): o.append(f"v_cvt_pk_bf16_f32 v{r+c}, v{tt+2*c}, v{tt+2*c+1}")
        o.append(wr)
        return o
    def hnorm(p, rgs, fast=False):
        o = []
        for rg in rgs:
            r = raw(rg, p)
            o += norm_ops(r, STA + 2*rg, STA + 2*rg + 1, TT, f"ds_write_b128 v5, v[{r}:{r+3}] offset:{(p & 1)*XP + rg*8*XR}", fast)
        return o
    HST = "hst" in FLAGS
    hn = [0]
    def hstamp(k):
        if HST and k in (12, 13):
            I(f"s_memtime s[{60+2*hn[0]}:{61+2*hn[0]}]"); hn[0] += 1
    for k in range(NST):
        hstamp(k)
        if k == 0:
            for x in hnorm(0, (0, 1, 2, 3), fast=True): I(x)
            pdma(3); pdma(4)
        else:
            dl = []
            if k >= 2 and k - 2 + DWP < NST:
                st = k - 2 + DWP
                for i in range(5):
                    pre = [f"s_mov_b32 s28, {st*32*3456}"] if i == 0 else []
                    if i % 4 == 0: pre.append(f"s_add_u32 m0, s29, {(st % NS)*SL + (i//4)*4096}")
                    dl.append(pre + [f"buffer_load_dwordx4 v{224+i}, s[8:11], s28 offen offset:{1024*(i%4)} lds"])
                    vq.append(("D", st))
            hstamp(k)
            p = (k-1)//2 + 1
            o = []
            if p < 10:
                o = hnorm(p, (0, 1, 2) if (CN and p >= 2) else (0, 1, 2, 3))
                h = len(o)//2
                o = (o[:h] if (k-1) % 2 == 0 else o[h:])
            stepd = max(1, len(o)//5)
            for i_, x in enumerate(o):
                if i_ % stepd == 0 and dl:
                    for y in dl.pop(0): I(y)
                I(x)
            for d_ in dl:
                for y in d_: I(y)
        if k == 1:
            for rg in R4:
                I(f"buffer_store_dwordx2 v[{STA+2*rg}:{STA+2*rg+1}], v7, s[20:23], 0 offen offset:{64*rg}")
                vq.append(("S", rg))
        hstamp(k)
        vwait(lambda t: t == ("D", k))
        hstamp(k)
        I("s_waitcnt lgkmcnt(0)")
        hstamp(k)
        I("s_barrier")
    if HST:
        I("s_waitcnt lgkmcnt(0) vmcnt(0)")
        I("s_cmp_lg_u32 s2, 5")
        I("s_cbranch_scc1 HS_skip")
        I("s_cmp_lg_u32 s3, 4")
        I("s_cbranch_scc1 HS_skip")
        I("s_load_dwordx2 s[56:57], s[0:1], 88")
        I("s_waitcnt lgkmcnt(0)")
        I("s_mov_b32 s58, 256")
        I("s_mov_b32 s59, 0x00020000")
        I("v_mov_b32 v1, 0")
        for i in range(hn[0]):
            I(f"s_sub_u32 s{61+2*i}, s{60+2*i}, s60")
            I(f"v_mov_b32 v2, s{61+2*i}")
            I(f"buffer_store_dword v2, v1, s[56:59], 0 offen offset:{128+4*i}")
        I("s_waitcnt vmcnt(0)")
        e("HS_skip:")
    I("s_endpgm")
    e("G1_cons:")
    BB = 24; AF = 56; ACC = 80; LA = 2
    CR_ = 72; CT = 240; CS = 248
    I("v_mov_b32 v250, v16")
    I(f"v_add_u32 v251, {24*XR}, v5")
    I("v_mov_b32 v252, v8")
    I("s_load_dwordx2 s[4:5], s[0:1], 72")
    CSL = 48
    for f_ in FLAGS:
        if f_.startswith("csl"): CSL = int(f_[3:])
    if CSL: I(f"s_sleep {CSL}")
    I("s_waitcnt lgkmcnt(0)")
    srd(12, 44, SZ_SD)
    I("s_cmp_ge_u32 s3, 2")
    I("s_cbranch_scc1 G1_cpf")
    I("s_mul_i32 s46, s3, 176")
    I("s_add_u32 s46, s46, s47")
    I("s_cmp_ge_u32 s46, 270")
    I("s_cbranch_scc1 G1_cgo")
    I("s_mul_i32 s36, s46, 0xCCCD")
    I("s_lshr_b32 s36, s36, 19")
    I("s_mul_i32 s37, s36, 10")
    I("s_sub_u32 s37, s46, s37")
    I("v_and_b32 v23, 7, v0")
    I("v_bfe_u32 v17, v0, 3, 2")
    I("v_bfe_u32 v18, v0, 5, 1")
    I("s_lshl_b32 s37, s37, 6")
    I("v_lshl_add_u32 v23, v23, 3, s37")
    I("s_lshl_b32 s36, s36, 1")
    I("v_add_u32 v18, s36, v18")
    I("v_lshlrev_b32 v19, 5, v18")
    I("v_lshl_add_u32 v19, v17, 2, v19")
    I("v_mul_u32_u24 v20, 0x500, v19")
    I("v_lshl_add_u32 v20, v23, 1, v20")
    I("v_add_u32 v21, 0x5000, v20")
    srd(8, 4, SZ_W)
    srd(32, 6, SZ_W, WS_WDT)
    for i in range(8):
        b = 20 if i < 4 else 21
        I(f"buffer_load_dwordx4 v[{ACC+4*i}:{ACC+3+4*i}], v{b}, s[8:11], 0 offen offset:{(i%4)*1280}")
    I("s_mov_b32 s36, 0x05040100")
    I("s_mov_b32 s37, 0x07060302")
    I("v_lshrrev_b32 v22, 4, v23")
    I("v_mul_u32_u24 v22, 54, v22")
    I("v_add_u32 v22, v22, v18")
    I("v_lshlrev_b32 v22, 10, v22")
    I("v_lshl_add_u32 v22, v17, 8, v22")
    I("v_and_b32 v19, 15, v23")
    I("v_lshl_add_u32 v22, v19, 4, v22")
    I("s_waitcnt vmcnt(0)")
    for dd in range(8):
        ob = ACC + 32 + 4*dd
        sel = 36 + (dd & 1)
        for q in range(4):
            I(f"v_perm_b32 v{ob+q}, v{ACC+4*(2*q+1)+dd//2}, v{ACC+4*(2*q)+dd//2}, s{sel}")
    for dd in range(8):
        ob = ACC + 32 + 4*dd
        I(f"buffer_store_dwordx4 v[{ob}:{ob+3}], v22, s[32:35], 0 offen offset:{16*dd}")
    I("s_waitcnt vmcnt(0)")
    I("s_branch G1_cgo")
    e("G1_cpf:")
    if "nopfm" not in FLAGS:
        I("s_cmp_ge_u32 s3, 3")
        I("s_cselect_b32 s8, s18, s16")
        I("s_cselect_b32 s9, s19, s17")
        I("s_mul_i32 s27, s47, 12800")
        I(f"s_mov_b32 s10, {SZ_W}")
        I("s_mov_b32 s11, 0x00020000")
        I("v_lshlrev_b32 v17, 4, v1")
        for i in range(13):
            I(f"buffer_load_dwordx4 v[{ACC+4*i}:{ACC+3+4*i}], v17, s[8:11], s27 offen")
            I("s_add_u32 s27, s27, 1024")
        I("s_waitcnt vmcnt(0)")
    e("G1_cgo:")
    I("s_and_b32 s31, s3, 1")
    I("s_lshr_b32 s33, s3, 1")
    I("s_lshl_b32 s27, s24, 3")
    I("s_lshl_b32 s26, s31, 2")
    I("s_add_u32 s26, s26, s27")
    I("s_mul_i32 s27, s26, 55296")
    I("v_lshl_add_u32 v9, v1, 4, s27")
    I("v_bfe_u32 v17, v0, 4, 2")
    I("v_and_b32 v18, 15, v0")
    I(f"v_mul_u32_u24 v6, {XR}, v18")
    I("v_lshl_add_u32 v6, v17, 4, v6")
    I(f"s_mul_i32 s30, s31, {64*XR}")
    I(f"s_add_u32 s30, s30, {XB}")
    I("v_add_u32 v6, s30, v6")
    I("v_bfe_u32 v18, v0, 2, 2")
    I("v_lshl_add_u32 v19, v17, 3, v18")
    I(f"v_mul_u32_u24 v19, {RS}, v19")
    I("v_and_b32 v18, 3, v0")
    I("v_lshl_add_u32 v19, v18, 3, v19")
    I("s_mul_i32 s27, s33, 160")
    I("v_add_u32 v19, s27, v19")
    I("v_and_b32 v20, 1, v17")
    I("v_lshlrev_b32 v20, 5, v20")
    I("s_lshl_b32 s27, s33, 1")
    I("s_sub_u32 s27, 1, s27")
    I("v_mul_lo_u32 v20, v20, s27")
    I("v_add_u32 v11, v19, v20")
    I("v_sub_u32 v12, v19, v20")
    I(f"v_add_u32 v13, {3*SL}, v11")
    I(f"v_add_u32 v14, {3*SL}, v12")
    srd(20, 6, SZ_H, WS_H)
    for f_ in FLAGS:
        if f_.startswith("la"): LA = int(f_[2:])
    def acc(m, j, js): return ACC + ((m*5 + j)*4 + js)*4
    seq = [(m, j) for m in range(2) for j in range(5)]
    NQ = len(seq)
    dq = []
    def dwait(tags):
        idxs = [i for i, t in enumerate(dq) if t in tags]
        if not idxs: return
        idx = max(idxs); n = len(dq) - 1 - idx
        assert n <= 15
        I(f"s_waitcnt lgkmcnt({n})")
        del dq[:idx+1]
    def rdx(gpos):
        st, idx = divmod(gpos, NQ)
        m, j = seq[idx]
        slot = st % NS
        a = AF + (gpos % 4)*4
        va = 11 + 2*(slot // 3) + (j & 1)
        off = (slot % 3)*SL + m*MS + j*32
        return [f"ds_read_b64_tr_b16 v[{a}:{a+1}], v{va} offset:{off}",
                f"ds_read_b64_tr_b16 v[{a+2}:{a+3}], v{va} offset:{off+4*RS}"]
    def xrd(st, js):
        b = BB + (st & 1)*16 + js*4
        I(f"ds_read_b128 v[{b}:{b+3}], v6 offset:{((st >> 1) & 1)*XP + js*16*XR + (st & 1)*64}")
        dq.append(("X", st))
    def cld(P):
        r = CR_ + (P & 1)*4
        I(f"buffer_load_dwordx4 v[{r}:{r+3}], v250, s[12:15], 0 offen offset:{128*P}")
    if CN: cld(2); cld(3)
    stamp()
    I("s_barrier")
    stamp()
    for js in range(4): xrd(0, js)
    if CN:
        I(f"ds_read_b64 v[{CS}:{CS+1}], v252"); dq.append(("X", 0))
    for i in range(LA):
        for x in rdx(i): I(x); dq.append(("A", i))
    for st in range(NST):
        cw = []
        if CN and st >= 1:
            P = (st + 3)//2
            if 2 <= P <= 9:
                r = CR_ + (P & 1)*4
                o = norm_ops(r, CS, CS+1, CT, f"ds_write_b128 v251, v[{r}:{r+3}] offset:{(P & 1)*XP}")
                h = len(o)//2
                cw = o[:h] if st == 2*P - 3 else o[h:]
                if st == 2*P - 3: cw = [f"s_waitcnt vmcnt({1 if P < 9 else 0})"] + cw
                elif P + 2 <= 9: cw = cw + [("L", P + 2)]
        if st + 1 < NST:
            dwait([("XW", 0)])
            I("s_barrier")
        if "stamp3" in FLAGS and st in (1, 5, 10): stamp()
        nslot = 24
        for idx in range(NQ):
            gpos = st*NQ + idx
            rr = rdx(gpos + LA) if gpos + LA < NST*NQ else None
            dwait([("A", gpos), ("X", st)])
            m, j = seq[idx]
            a = AF + (gpos % 4)*4
            for js in range(4):
                c = acc(m, j, js); b = BB + (st & 1)*16 + js*4
                cc = "0" if st == 0 else f"v[{c}:{c+3}]"
                I(f"v_mfma_f32_16x16x32_bf16 v[{c}:{c+3}], v[{a}:{a+3}], v[{b}:{b+3}], {cc}")
                if rr and js < 2: I(rr[js]); dq.append(("A", gpos + LA))
                if js == 2 and st + 1 < NST and 1 <= idx <= 4: xrd(st + 1, idx - 1)
                if js >= 1 and cw:
                    x = cw.pop(0)
                    if isinstance(x, tuple): cld(x[1])
                    else:
                        I(x)
                        if x.startswith("ds_write"): dq.append(("XW", 0))
                        if x.startswith("s_waitcnt") and cw: I(cw.pop(0))
        assert not cw
    stamp()
    I("s_lshr_b32 s34, s25, 5")
    I("s_lshl_b32 s34, s34, 10")
    I("s_nop 7")
    I("s_nop 3")
    cnt = [0]
    def hq(j, js, dst, t):
        g = acc(0, j, js); u = acc(1, j, js)
        I(f"v_cvt_pk_bf16_f32 v{t}, v{g}, v{g+1}")
        I(f"v_cvt_pk_bf16_f32 v{t+1}, v{g+2}, v{g+3}")
        I(f"v_cvt_pk_bf16_f32 v{t+2}, v{u}, v{u+1}")
        I(f"v_cvt_pk_bf16_f32 v{t+3}, v{u+2}, v{u+3}")
        lo16(g, t); hi16(g+1, t); lo16(g+2, t+1); hi16(g+3, t+1)
        lo16(u, t+2); hi16(u+1, t+2); lo16(u+2, t+3); hi16(u+3, t+3)
        for r in range(4):
            I(f"v_mul_f32 v{g+r}, v{g+r}, v{u+r}")
        I(f"v_cvt_pk_bf16_f32 v{dst}, v{g}, v{g+1}")
        I(f"v_cvt_pk_bf16_f32 v{dst+1}, v{g+2}, v{g+3}")
    def epi(fq):
        units = [((0, 1), 0, 0), ((2, 3), 1, 0), ((4,), 2, 0)] if fq == 0 else [((0,), 2, 8), ((1, 2), 3, 0), ((3, 4), 4, 0)]
        for js in range(4):
            I(f"s_add_u32 s35, s34, {js*55296}")
            I(f"s_add_u32 s36, s34, {js*55296 + 4096}")
            for (jl, blk, ho) in units:
                t = 24 + (cnt[0] % 4) * 12; cnt[0] += 1
                for hh, j in enumerate(jl): hq(j, js, t+4+2*hh, t)
                so, off = ("s35", 1024*blk + ho) if blk < 4 else ("s36", ho)
                if len(jl) == 2:
                    I(f"buffer_store_dwordx4 v[{t+4}:{t+7}], v9, s[20:23], {so} offen offset:{off}")
                else:
                    I(f"buffer_store_dwordx2 v[{t+4}:{t+5}], v9, s[20:23], {so} offen offset:{off}")
    I("s_cmp_eq_u32 s33, 0")
    I("s_cbranch_scc0 G1_epi1")
    epi(0)
    I("s_branch G1_epid")
    e("G1_epi1:")
    epi(1)
    e("G1_epid:")
    if STAMP: I("s_waitcnt vmcnt(0)")
    stamp()
    stamp_dump(5)
    wgt_end(1)
    I("s_endpgm")

def g1_epi(NF, acc):
    I("s_lshr_b32 s34, s25, 5")
    I("s_lshl_b32 s34, s34, 10")
    I("s_add_u32 s35, s34, 4096")
    I("s_nop 7")
    I("s_nop 3")
    for js in range(2):
        for jp in range(NF//2):
            t = 24 + ((js*5 + jp) % 4) * 12
            for hh in range(2):
                jf = 2*jp + hh
                g = acc(0, jf, js); u = acc(1, jf, js)
                I(f"v_cvt_pk_bf16_f32 v{t}, v{g}, v{g+1}")
                I(f"v_cvt_pk_bf16_f32 v{t+1}, v{g+2}, v{g+3}")
                I(f"v_cvt_pk_bf16_f32 v{t+2}, v{u}, v{u+1}")
                I(f"v_cvt_pk_bf16_f32 v{t+3}, v{u+2}, v{u+3}")
                lo16(g, t); hi16(g+1, t); lo16(g+2, t+1); hi16(g+3, t+1)
                lo16(u, t+2); hi16(u+1, t+2); lo16(u+2, t+3); hi16(u+3, t+3)
                for r in range(4):
                    I(f"v_mul_f32 v{g+r}, v{g+r}, v{u+r}")
                I(f"v_cvt_pk_bf16_f32 v{t+4+2*hh}, v{g}, v{g+1}")
                I(f"v_cvt_pk_bf16_f32 v{t+5+2*hh}, v{g+2}, v{g+3}")
            if jp < 4:
                I(f"buffer_store_dwordx4 v[{t+4}:{t+7}], v{9+js}, s[20:23], s34 offen offset:{1024*jp}")
            else:
                I(f"buffer_store_dwordx4 v[{t+4}:{t+7}], v{9+js}, s[20:23], s35 offen")
    if STAMP: I("s_waitcnt vmcnt(0)")
    stamp()
    stamp_dump(5)
    wgt_end(1)
    I("s_endpgm")

def gen_k2():
    kernel_header("mid_kernel")
    if BIG:
        I("s_cmp_ge_u32 s2, 256")
        I("s_cbranch_scc1 M_exit")
        wgt_start()
        I("s_load_dwordx2 s[6:7], s[0:1], 96")
        I("v_lshrrev_b32 v1, 6, v0")
        I("s_nop 0")
        I("v_readfirstlane_b32 s3, v1")
        I("s_lshr_b32 s40, s2, 3")
        I("s_bfe_u32 s41, s2, 0x10002")
        if "swp" in FLAGS: I("s_xor_b32 s41, s41, 1")
        I("s_and_b32 s42, s2, 3")
        I("s_lshl_b32 s43, s41, 2")
        I("s_sub_u32 s43, 24, s43")
        if XL:
            I("s_and_b32 s42, s2, 7")
            I("s_mov_b32 s43, 22")
            I("s_mov_b32 s41, 1")
        if "kvall" in FLAGS:
            I("s_and_b32 s8, s3, 1")
            I("s_lshl_b32 s8, s8, 3")
            I("s_add_u32 s8, s8, 8")
            I("s_load_dwordx2 s[8:9], s[0:1], s8")
            I("s_lshr_b32 s12, s3, 1")
            I("s_cmp_gt_u32 s12, s41")
            I("s_cbranch_scc1 M_nokvpf")
            if XL:
                I("s_mul_i32 s13, s42, 160")
                I("s_and_b32 s13, s13, 0xffffff80")
            else:
                I("s_mul_i32 s13, s42, 192")
                I("s_add_u32 s13, s13, 512")
                I("s_and_b32 s13, s13, 0xffffff80")
                I("s_lshl_b32 s14, s42, 7")
                I("s_cmp_eq_u32 s41, 0")
                I("s_cselect_b32 s13, s14, s13")
            I("s_lshl_b32 s12, s12, 7")
            I("s_add_u32 s13, s13, s12")
            I("s_mul_i32 s12, s40, 81920")
            I("s_add_u32 s13, s13, s12")
            I("v_and_b32 v1, 63, v0")
            I("v_mul_u32_u24 v1, 0x500, v1")
            I(f"s_mov_b32 s10, {SZ_SD}")
            I("s_mov_b32 s11, 0x00020000")
            I("s_waitcnt lgkmcnt(0)")
            for f_ in FLAGS:
                if f_.startswith("kvd"): I(f"s_sleep {int(f_[3:])}")
                if f_.startswith("vdl"):
                    I("s_bitcmp1_b32 s3, 0")
                    I("s_cbranch_scc0 M_novd")
                    I(f"s_sleep {int(f_[3:])}")
                    e("M_novd:")
            I("buffer_load_dword v255, v1, s[8:11], s13 offen")
            e("M_nokvpf:")
            I("s_waitcnt lgkmcnt(0)")
        I("s_cmp_ge_u32 s40, s43")
        I("s_cbranch_scc1 M_conv")
        if "nog1" in FLAGS: I("s_endpgm")
        I("s_mul_i32 s24, s42, s43")
        I("s_add_u32 s24, s24, s40")
        if not XL:
            I("s_mul_i32 s25, s41, 96")
            I("s_add_u32 s24, s24, s25")
        W0 = 6 if "prod" in FLAGS else 4
        if FUSE:
            stamp()
            I("s_load_dwordx4 s[16:19], s[0:1], 56")
            I("s_load_dwordx2 s[44:45], s[0:1], 0")
            I("s_mov_b32 s47, s24")
        I(f"s_sub_u32 s25, s3, {W0}")
        I("s_mul_i32 s25, s25, 176")
        I("s_add_u32 s24, s24, s25")
        if FUSE:
            I("s_mov_b32 s46, s24")
        else:
            I(f"s_cmp_ge_u32 s3, {W0}")
            I("s_cbranch_scc1 M_wdt")
        I("s_lshl_b32 s24, s42, 2")
        I("s_and_b32 s25, s40, 3")
        I("s_add_u32 s24, s24, s25")
        I("s_mul_i32 s25, s41, 6")
        I("s_lshr_b32 s26, s40, 2")
        I("s_add_u32 s25, s25, s26")
        if XL:
            I("s_lshl_b32 s24, s42, 1")
            I("s_and_b32 s25, s40, 1")
            I("s_add_u32 s24, s24, s25")
            I("s_lshr_b32 s25, s40, 1")
        if FUSE and "g1b" in FLAGS: gen_g1b()
        elif FUSE and "f2" in FLAGS: gen_g1f2()
        elif FUSE: gen_g1fuse()
        else: gen_g1big()
    else:
        gen_g1old()
    gen_aux()

def gen_g1old():
    I(f"s_cmp_ge_u32 s2, {N_G1+N_CV}")
    I("s_cbranch_scc1 M_exit")
    I("s_load_dwordx2 s[6:7], s[0:1], 96")
    I(f"s_cmp_ge_u32 s2, {N_G1}")
    I("s_cbranch_scc1 M_conv")
    if "nog1" in FLAGS: I("s_endpgm")
    stamp()
    if "prio" in FLAGS: I("s_setprio 3")
    I("s_load_dwordx4 s[16:19], s[0:1], 56")
    I("v_lshrrev_b32 v1, 6, v0")
    I("s_nop 0")
    I("v_readfirstlane_b32 s3, v1")
    I("s_waitcnt lgkmcnt(0)")
    if "stamp2" in FLAGS: stamp()
    I("s_cmp_ge_u32 s3, 2")
    I("s_cselect_b32 s4, s18, s16")
    I("s_cselect_b32 s5, s19, s17")
    srd(8, 4, SZ_W)
    srd(12, 6, SZ_SD, WS_XN)
    srd(20, 6, SZ_H, WS_H)
    if "g12d" in FLAGS:
        I("s_and_b32 s24, s2, 3")
        I("s_lshl_b32 s24, s24, 2")
        I("s_bfe_u32 s25, s2, 0x20003")
        I("s_add_u32 s24, s24, s25")
        I("s_bfe_u32 s25, s2, 0x10002")
        I("s_lshl_b32 s25, s25, 3")
        I("s_lshr_b32 s26, s2, 5")
        I("s_add_u32 s25, s25, s26")
    else:
        I("s_and_b32 s24, s2, 15")
        I("s_lshr_b32 s25, s2, 4")
    I(f"s_mul_i32 s25, s25, {BF}")
    I(f"s_min_u32 s25, s25, {F-BF}")
    I("v_and_b32 v1, 63, v0")
    if "pf" in FLAGS:
        I("s_lshr_b32 s26, s2, 3")
        I("s_lshl_b32 s27, s26, 1")
        I("s_and_b32 s28, s3, 1")
        I("s_add_u32 s27, s27, s28")
        I("s_mul_i32 s27, s27, 34560")
        I("s_bfe_u32 s28, s2, 0x10002")
        I("s_mul_i32 s28, s28, 1792")
        I("s_add_u32 s27, s27, s28")
        I("v_lshrrev_b32 v192, 5, v1")
        I("v_mul_u32_u24 v192, 3456, v192")
        I("v_and_b32 v193, 31, v1")
        I("v_lshl_add_u32 v192, v193, 6, v192")
        I("v_add_u32 v192, s27, v192")
        for i in range(5):
            I(f"s_mov_b32 s27, {i*6912}")
            I(f"buffer_load_dword v{194+i}, v192, s[8:11], s27 offen")
        I("s_and_b32 s27, s2, 3")
        I("s_mul_i32 s27, s27, 655360")
        I("s_lshl_b32 s28, s26, 2")
        I("s_add_u32 s28, s28, s3")
        I("s_mul_i32 s28, s28, 5120")
        I("s_add_u32 s27, s27, s28")
        I("v_lshlrev_b32 v193, 6, v1")
        I("buffer_load_dword v199, v193, s[12:15], s27 offen")
        I("buffer_load_dword v200, v193, s[12:15], s27 offen offset:1024")
    I("v_lshrrev_b32 v10, 4, v1")
    I("v_bfe_u32 v11, v1, 1, 3")
    I("v_and_b32 v12, 1, v1")
    I("s_and_b32 s26, s3, 1")
    I("s_lshl_b32 s26, s26, 4")
    I("s_lshl_b32 s27, s25, 1")
    for i in range(4):
        bit = (i >> 1) & 1
        I(f"v_or_b32 v13, {bit<<2}, v10")
        I("v_xor_b32 v13, v13, v11")
        I(f"v_add_u32 v14, {4*i}, v10")
        I("v_add_u32 v14, s26, v14")
        I("v_mul_u32_u24 v14, 3456, v14")
        I("v_lshl_add_u32 v14, v13, 5, v14")
        I("v_lshl_add_u32 v14, v12, 4, v14")
        I("v_add_u32 v14, s27, v14")
        I(f"v_subrev_u32 v14, {1024*i}, v14")
        I("v_cmp_eq_u32 vcc, 7, v13")
        I("v_mov_b32 v15, 0x40000000")
        I("s_nop 0")
        I(f"v_cndmask_b32 v{2+i}, v14, v15, vcc")
    I("v_bfe_u32 v17, v0, 4, 2")
    I("s_lshl_b32 s26, s24, 3")
    I("s_lshl_b32 s27, s3, 1")
    I("s_add_u32 s26, s26, s27")
    I("s_mul_i32 s27, s26, 20480")
    I("v_lshl_add_u32 v6, v1, 4, s27")
    I("v_add_u32 v7, 20480, v6")
    I("s_mul_i32 s27, s26, 55296")
    I("v_lshl_add_u32 v8, v1, 4, s27")
    I("v_add_u32 v9, 55296, v8")
    I("v_bfe_u32 v18, v0, 2, 2")
    I("v_lshl_add_u32 v19, v17, 3, v18")
    I("v_lshlrev_b32 v19, 8, v19")
    I("v_and_b32 v20, 1, v17")
    I("v_lshl_or_b32 v20, v20, 2, v18")
    I("v_lshl_add_u32 v19, v20, 5, v19")
    I("v_and_b32 v18, 3, v0")
    I("v_lshl_add_u32 v19, v18, 3, v19")
    VA = 10
    I("v_mov_b32 v24, v19")
    for jf in range(7):
        I(f"v_xor_b32 v{VA+jf}, {jf<<5}, v24")
        I(f"v_add_u32 v{VA+7+jf}, 0x10000, v{VA+jf}")
    I("s_lshl_b32 s29, s3, 12")
    BB = 24
    AF = 64
    ACC = 80
    def acc(m, jf, js): return ACC + ((m*7 + jf)*2 + js)*4
    def bfr(st, js): return BB + (st % NSLOT)*8 + js*4
    NST = 20
    def issue(slot):
        I(f"s_add_u32 s30, s29, {slot*SLOT}")
        I("s_mov_b32 m0, s30")
        for i in range(4):
            I(f"buffer_load_dwordx4 v{2+i}, s[8:11], s28 offen offset:{1024*i} lds")
        for js in range(2):
            r = BB + slot*8 + js*4
            I(f"buffer_load_dwordx4 v[{r}:{r+3}], v{6+js}, s[12:15], s31 offen")
        I("s_add_u32 s36, s36, 1")
        I("s_cmp_ge_u32 s36, 20")
        I("s_cselect_b32 s36, 0, s36")
        I("s_add_u32 s37, s37, 1")
        I(f"s_mul_i32 s28, s36, {32*3456}")
        I("s_lshl_b32 s31, s36, 10")
        I("s_cmp_ge_u32 s37, 20")
        I("s_cselect_b32 s28, 0x40000000, s28")
        I("s_cselect_b32 s31, 0x40000000, s31")
    if "rot" in FLAGS:
        I("s_and_b32 s36, s24, 3")
        I("s_mul_i32 s36, s36, 5")
        I("s_lshr_b32 s37, s2, 5")
        I("s_mul_i32 s37, s37, 3")
        I("s_add_u32 s36, s36, s37")
        I("s_cmp_ge_u32 s36, 20")
        I("s_cselect_b32 s37, 20, 0")
        I("s_sub_u32 s36, s36, s37")
    else:
        I("s_mov_b32 s36, 0")
    I("s_mov_b32 s37, 0")
    I(f"s_mul_i32 s28, s36, {32*3456}")
    I("s_lshl_b32 s31, s36, 10")
    if "stamp2" in FLAGS: stamp()
    for st in range(NSLOT - 1):
        issue(st)
    if "stamp2" in FLAGS: stamp()
    for j in range(112):
        I(f"v_mov_b32 v{ACC+j}, 0")
    I("s_mov_b32 s33, 0")
    stamp()
    def body(last):
      for slot in range(NSLOT):
        if not last or slot <= 1:
            I(f"s_waitcnt vmcnt({6*(NSLOT-2)})")
        else:
            I(f"s_waitcnt vmcnt({6*(NSLOT-1-slot)})")
        I("s_barrier")
        if not last or slot == 0:
            issue((slot + NSLOT - 1) % NSLOT)
        seq = [(m, jf) for m in range(2) for jf in range(7)]
        def rd(idx):
            m, jf = seq[idx]
            a = AF + (idx % 4)*4
            if slot < 4:
                va = VA + jf; off = slot*SLOT + m*8192
            else:
                va = VA + 7 + jf; off = m*8192
            I(f"ds_read_b64_tr_b16 v[{a}:{a+1}], v{va} offset:{off}")
            I(f"ds_read_b64_tr_b16 v[{a+2}:{a+3}], v{va} offset:{off+1024}")
        for i in range(3):
            rd(i)
        for idx in range(14):
            if idx + 3 < 14:
                rd(idx + 3)
                I("s_waitcnt lgkmcnt(6)")
            else:
                I(f"s_waitcnt lgkmcnt({2*(13-idx)})")
            m, jf = seq[idx]
            a = AF + (idx % 4)*4
            for js in range(2):
                c = acc(m, jf, js); b = BB + slot*8 + js*4
                I(f"v_mfma_f32_16x16x32_bf16 v[{c}:{c+3}], v[{a}:{a+3}], v[{b}:{b+3}], v[{c}:{c+3}]")
    XS = "xs" in FLAGS
    LA = 3
    for f in FLAGS:
        if f.startswith("la"): LA = int(f[2:])
    RING = [64,68,72,76,192,196,200] if LA > 3 else [64,68,72,76,192]
    seq = [(m, jf) for m in range(2) for jf in range(7)]
    ring = [0]
    def rdx(slot, idx, pos):
        m, jf = seq[idx]
        a = RING[pos % len(RING)]
        if slot < 4:
            va = VA + jf; off = slot*SLOT + m*8192
        else:
            va = VA + 7 + jf; off = m*8192
        return [f"ds_read_b64_tr_b16 v[{a}:{a+1}], v{va} offset:{off}",
                f"ds_read_b64_tr_b16 v[{a+2}:{a+3}], v{va} offset:{off+1024}"]
    def body_xs(last):
      for slot in range(NSLOT):
        fin_stage = last and slot == NSLOT-1
        if not fin_stage:
            if not last or slot <= 1:
                I("s_waitcnt vmcnt(12)")
            else:
                I(f"s_waitcnt vmcnt({6*(NSLOT-2-slot)})")
            if "g1nobar" not in FLAGS: I("s_barrier")
        if (not last or slot == 0) and "g1noload" not in FLAGS:
            issue((slot + NSLOT - 1) % NSLOT)
        for idx in range(14 if "g1nocomp" not in FLAGS else 0):
            pos = idx + 14*slot
            if idx + LA < 14:
                rr = rdx(slot, idx + LA, pos + LA)
            elif not fin_stage:
                rr = rdx((slot + 1) % NSLOT, idx + LA - 14, pos + LA)
            else:
                rr = None
            I(f"s_waitcnt lgkmcnt({2*(LA-1) if not fin_stage else 2*min(LA-1, 13-idx)})")
            m, jf = seq[idx]
            a = RING[pos % len(RING)]
            for js in range(2):
                c = acc(m, jf, js); b = BB + slot*8 + js*4
                I(f"v_mfma_f32_16x16x32_bf16 v[{c}:{c+3}], v[{a}:{a+3}], v[{b}:{b+3}], v[{c}:{c+3}]")
                if rr: I(rr[js])
    if XS:
        I("s_waitcnt vmcnt(18)")
        I("s_barrier")
        for i in range(LA):
            for x in rdx(0, i, i): I(x)
    e("G1_loop:")
    (body_xs if XS else body)(False)
    I("s_add_u32 s33, s33, 1")
    I(f"s_cmp_lt_u32 s33, {NST//NSLOT - 1}")
    I("s_cbranch_scc1 G1_loop")
    (body_xs if XS else body)(True)
    stamp()
    I("s_waitcnt vmcnt(0)")
    I("s_nop 7")
    I("s_nop 3")
    T = 24
    for js in range(2):
        for jf in range(7):
            g = acc(0, jf, js); u = acc(1, jf, js)
            t = T + ((js*7 + jf) % 4) * 8
            I(f"v_cvt_pk_bf16_f32 v{t}, v{g}, v{g+1}")
            I(f"v_cvt_pk_bf16_f32 v{t+1}, v{g+2}, v{g+3}")
            I(f"v_cvt_pk_bf16_f32 v{t+2}, v{u}, v{u+1}")
            I(f"v_cvt_pk_bf16_f32 v{t+3}, v{u+2}, v{u+3}")
            lo16(g, t); hi16(g+1, t); lo16(g+2, t+1); hi16(g+3, t+1)
            lo16(u, t+2); hi16(u+1, t+2); lo16(u+2, t+3); hi16(u+3, t+3)
            for r in range(4):
                I(f"v_mul_f32 v{g+r}, v{g+r}, v{u+r}")
            I(f"v_cvt_pk_bf16_f32 v{t+4}, v{g}, v{g+1}")
            I(f"v_cvt_pk_bf16_f32 v{t+5}, v{g+2}, v{g+3}")
            I(f"s_add_u32 s34, s25, {16*jf}")
            I("s_lshr_b32 s35, s34, 5")
            I("s_lshl_b32 s35, s35, 10")
            I("s_and_b32 s34, s34, 16")
            I("s_lshr_b32 s34, s34, 1")
            I("s_add_u32 s35, s35, s34")
            I(f"buffer_store_dwordx2 v[{t+4}:{t+5}], v{8+js}, s[20:23], s35 offen")
    I("s_waitcnt vmcnt(0)")
    stamp()
    stamp_dump(5)
    I("s_endpgm")

def gen_aux():
    e("M_conv:")
    if "noconv" in FLAGS: I("s_endpgm")
    XREG = 7680; CST = 576 if "cst" in FLAGS else 800; HBUF = 8*CST; WREG = 20480
    CMG = "cmg" in FLAGS
    if CMG: CST = 320; HBUF = 16*CST; HHI = 8*CST
    CM4 = "cm4" in FLAGS
    if CM4: HBUF = 8*CST; HHI = 4*CST
    stamp()
    I("s_load_dwordx4 s[16:19], s[0:1], 32")
    if FUSE:
        I("s_load_dwordx4 s[44:47], s[0:1], 8")
        I("s_load_dwordx2 s[48:49], s[0:1], 24")
    if BIG:
        I("s_sub_u32 s24, 32, s43")
        I("s_mul_i32 s24, s24, s42")
        I("s_add_u32 s24, s24, s40")
        I("s_sub_u32 s24, s24, s43")
        if not XL:
            I("s_lshl_b32 s25, s41, 5")
            I("s_add_u32 s24, s24, s25")
        I("s_lshl_b32 s24, s24, 3")
        I("s_add_u32 s24, s24, s3")
    else:
        I("v_lshrrev_b32 v1, 6, v0")
        I("s_nop 0")
        I("v_readfirstlane_b32 s3, v1")
        I(f"s_sub_u32 s25, s2, {N_G1}")
        I("s_cmp_ge_u32 s25, 128")
        I("s_cbranch_scc1 M_aux_hi")
        I("s_mov_b32 s24, s25")
        I("s_cmp_eq_u32 s3, 3")
        I("s_cbranch_scc1 M_wdt")
        I("s_mul_i32 s24, s25, 3")
        I("s_add_u32 s24, s24, s3")
        I("s_branch M_conv2")
        e("M_aux_hi:")
        I("s_sub_u32 s25, s25, 128")
        I("s_lshl_b32 s25, s25, 1")
        I("s_add_u32 s24, s25, s3")
        I("s_add_u32 s24, s24, 126")
        I("s_cmp_ge_u32 s3, 2")
        I("s_cbranch_scc1 M_wdt")
        I("s_add_u32 s24, s25, s3")
        I("s_add_u32 s24, s24, 384")
    e("M_conv2:")
    I("s_waitcnt lgkmcnt(0)")
    if "cst2" in FLAGS: stamp()
    srd(8, 16, SZ_SD)
    if FUSE:
        I("s_sub_u32 s25, s24, s3")
        I("s_lshl_b32 s25, s25, 3")
        I("s_load_dwordx16 s[84:99], s[48:49], s25")
        srd(32, 44, SZ_SD)
        srd(36, 46, SZ_SD)
    else:
        srd(12, 6, SZ_SD, WS_KVR)
    srd(20, 6, SZ_SD, WS_YT)
    I("s_lshr_b32 s25, s24, 1")
    I("s_lshl_b32 s25, s25, 2")
    I("s_load_dword s26, s[18:19], s25")
    I("v_and_b32 v1, 63, v0")
    I("s_lshl_b32 s27, s24, 12")
    I("v_lshl_add_u32 v2, v1, 4, s27")
    if CMG:
        I("v_lshrrev_b32 v3, 5, v1")
        I("v_mul_u32_u24 v3, 1536, v3")
        I("v_add_u32 v2, v2, v3")
    XLD = 16
    for j in range(4 if not FUSE else 0):
        I(f"buffer_load_dwordx4 v[{XLD+4*j}:{XLD+4*j+3}], v2, s[12:15], 0 offen offset:{1024*j}")
    HW0, HW1 = 32, 40
    I("v_subrev_u32 v13, 64, v2")
    I("v_mov_b32 v5, 0x40000000")
    I("v_cmp_gt_u32 vcc, 4, v1")
    I("s_nop 1")
    I("v_cndmask_b32 v4, v13, v5, vcc")
    I("v_add_u32 v6, 16, v13")
    I("v_cmp_gt_u32 vcc, 3, v1")
    I("s_nop 1")
    I("v_cndmask_b32 v6, v6, v5, vcc")
    CV2 = "cv2" in FLAGS
    def hwloads():
        I(f"buffer_load_dwordx4 v[{HW0}:{HW0+3}], v4, s[8:11], 0 offen")
        I(f"buffer_load_dwordx4 v[{HW0+4}:{HW0+7}], v6, s[8:11], 0 offen")
        I(f"buffer_load_dwordx4 v[{HW1}:{HW1+3}], v2, s[8:11], 0 offen offset:{192 if CMG else 448}")
        I(f"buffer_load_dwordx4 v[{HW1+4}:{HW1+7}], v2, s[8:11], 0 offen offset:{208 if CMG else 464}")
    if not CV2: hwloads()
    def wreg(n): return HW1 if n == 1 else (64 + 6*(n-2) if n <= 6 else 16)
    WLE = 1
    for f_ in FLAGS:
        if f_.startswith("wle"): WLE = int(f_[3:])
    WLM = WLE; CVQ0 = []
    for f_ in FLAGS:
        if f_.startswith("wlm"): WLM = int(f_[3:])
    WLD = 0
    for f_ in FLAGS:
        if f_.startswith("wld"): WLD = int(f_[3:])
    def wload(n):
        return [f"buffer_load_dwordx4 v[{wreg(n)}:{wreg(n)+3}], v2, s[8:11], 0 offen offset:{192+256*(n-1)}",
                f"buffer_load_dwordx2 v[{wreg(n)+4}:{wreg(n)+5}], v2, s[8:11], 0 offen offset:{208+256*(n-1)}"]
    for n in range(2, WLE + 1):
        for x in wload(n): I(x)
    CPL = -1
    for f_ in FLAGS:
        if f_.startswith("cpl"): CPL = int(f_[3:])
    if CPL >= 0:
        I("s_movk_i32 s50, 56")
        I(f"s_mov_b32 s51, {384*3456}")
        I("s_cmp_ge_u32 s24, 108")
        I("s_cselect_b32 s50, 64, s50")
        I("s_cselect_b32 s53, 108, 0")
        I("s_cmp_ge_u32 s24, 216")
        I("s_cselect_b32 s50, 0, s50")
        I("s_cselect_b32 s53, 216, s53")
        I("s_cselect_b32 s51, 768, s51")
        I("s_cmp_ge_u32 s24, 344")
        I("s_cselect_b32 s50, 72, s50")
        I("s_cselect_b32 s53, 344, s53")
        I("s_cselect_b32 s51, 0, s51")
        I("s_load_dwordx2 s[12:13], s[0:1], s50")
        I("s_sub_u32 s52, s24, s53")
        I("s_lshl_b32 s52, s52, 6")
        I("v_add_u32 v55, s52, v1")
        I("v_lshlrev_b32 v56, 7, v55")
        I("v_lshrrev_b32 v57, 2, v55")
        I("v_mul_u32_u24 v57, 0x500, v57")
        I("v_and_b32 v55, 3, v55")
        I("v_lshl_add_u32 v57, v55, 7, v57")
        I("s_cmp_eq_u32 s50, 0")
        I("s_cselect_b64 vcc, -1, 0")
        I(f"s_mov_b32 s14, {SZ_W}")
        I(f"s_cselect_b32 s14, {SZ_SD}, s14")
        I("s_mov_b32 s15, 0x00020000")
        I("v_cndmask_b32 v56, v56, v57, vcc")
        I("v_add_u32 v56, s51, v56")
    KP, KO, VV, KF, PP, TC, OO = 132, 144, 160, 176, 190, 222, 230
    if FUSE:
        I("s_sub_u32 s25, s24, s3")
        I("s_lshl_b32 s25, s25, 1")
        I("v_mul_u32_u24 v50, 5120, v0")
        I("v_add_u32 v50, s25, v50")
        I("s_cmp_eq_u32 s3, 0")
        I("s_cselect_b32 s25, 0x40000000, -3840")
        I("v_add_u32 v51, s25, v50")
        def kvloads():
            for i in range(4):
                I(f"buffer_load_dwordx4 v[{KO+4*i}:{KO+4*i+3}], v50, s[32:35], 0 offen offset:{1280*i}")
            I("s_mov_b64 exec, 1")
            for i in range(3):
                I(f"buffer_load_dwordx4 v[{KP+4*i}:{KP+4*i+3}], v51, s[32:35], 0 offen offset:{1280*i}")
            I("s_mov_b64 exec, -1")
        def vloads():
            for i in range(4):
                I(f"buffer_load_dwordx4 v[{VV+4*i}:{VV+4*i+3}], v50, s[36:39], 0 offen offset:{1280*i}")
        KPF = True
        if CV2:
            I("s_sub_u32 s50, s40, s43")
            I("s_lshl_b32 s57, s3, 8")
            I("s_cmp_eq_u32 s41, 0")
            I("s_cbranch_scc0 CV_pf1")
            I("s_lshl_b32 s50, s50, 5")
            I("s_add_u32 s50, s50, s57")
            I("s_lshl_b32 s51, s42, 7")
            I("v_add_u32 v54, s50, v1")
            I("v_mul_u32_u24 v54, 0x500, v54")
            I("s_movk_i32 s56, 32")
            I("s_branch CV_pfd")
            e("CV_pf1:")
            I("s_mul_i32 s50, s50, 22")
            I("s_min_u32 s50, s50, 234")
            I("s_add_u32 s50, s50, s57")
            I("s_mul_i32 s51, s42, 192")
            I("s_add_u32 s51, s51, 512")
            I("s_and_b32 s51, s51, 0xffffff80")
            I("v_lshrrev_b32 v54, 1, v1")
            I("v_add_u32 v54, s50, v54")
            I("v_mul_u32_u24 v54, 0x500, v54")
            I("v_and_b32 v56, 1, v1")
            I("v_lshl_add_u32 v54, v56, 7, v54")
            I("s_movk_i32 s56, 44")
            e("CV_pfd:")
            I("v_cmp_gt_u32 s[52:53], s56, v1")
            I("s_mov_b64 exec, s[52:53]")
            I("buffer_load_dword v56, v54, s[32:35], s51 offen")
            I("buffer_load_dword v57, v54, s[36:39], s51 offen")
            I("s_mov_b64 exec, -1")
            hwloads()
            I("v_lshl_add_u32 v55, v1, 6, s27")
            if "nohpf" not in FLAGS: I("buffer_load_dword v58, v55, s[8:11], 0 offen")
            else: I("buffer_load_dword v58, v2, s[8:11], 0 offen")
        elif "kvall" in FLAGS:
            pass
        elif KPF:
            I("s_sub_u32 s50, s40, s43")
            I("v_xor_b32 v57, 256, v0")
            I("s_cmp_eq_u32 s41, 0")
            I("s_cbranch_scc0 CV_pf1")
            I("s_lshl_b32 s50, s50, 8")
            I("s_lshl_b32 s51, s42, 7")
            for (d, src) in ((54, 0), (55, 57)):
                I(f"v_add_u32 v{d}, s50, v{src}")
                I(f"v_mul_u32_u24 v{d}, 0x500, v{d}")
            I("s_movk_i32 s56, 256")
            I("s_branch CV_pfd")
            e("CV_pf1:")
            I("s_mul_i32 s50, s50, 176")
            I("s_mul_i32 s51, s42, 192")
            I("s_add_u32 s51, s51, 512")
            I("s_and_b32 s51, s51, 0xffffff80")
            for (d, src) in ((54, 0), (55, 57)):
                I(f"v_lshrrev_b32 v{d}, 1, v{src}")
                I(f"v_add_u32 v{d}, s50, v{d}")
                I(f"v_mul_u32_u24 v{d}, 0x500, v{d}")
                I(f"v_and_b32 v56, 1, v{src}")
                I(f"v_lshl_add_u32 v{d}, v56, 7, v{d}")
            I("s_movk_i32 s56, 352")
            e("CV_pfd:")
            I("v_cmp_gt_u32 s[52:53], s56, v0")
            I("v_cmp_gt_u32 s[54:55], s56, v57")
            I("s_mov_b64 exec, s[52:53]")
            I("buffer_load_dword v56, v54, s[32:35], s51 offen")
            if "vpf1" not in FLAGS:
                I("s_mov_b64 exec, s[54:55]")
                I("buffer_load_dword v57, v55, s[36:39], s51 offen")
            I("s_mov_b64 exec, -1")
        else:
            kvloads()
        I("v_lshlrev_b32 v52, 2, v0")
        I("v_sub_u32 v52, 2044, v52")
        I("v_lshrrev_b32 v53, 5, v52")
        I("v_mul_u32_u24 v53, 80, v53")
        I("v_and_b32 v52, 31, v52")
        I("v_lshl_add_u32 v52, v52, 1, v53")
        I(f"v_add_u32 v53, {4*WREG}, v52")
    I(f"s_mov_b32 s29, {448 if CMG else 960}")
    I(f"s_mul_i32 s28, s3, {WREG}")
    Z = 96
    for j in range(4):
        I(f"v_mov_b32 v{Z+j}, 0")
    I("v_lshl_add_u32 v3, v1, 4, s28")
    I(f"ds_write_b128 v3, v[{Z}:{Z+3}] offset:5120")
    I(f"ds_write_b128 v3, v[{Z}:{Z+3}] offset:6144")
    I(f"ds_write_b128 v3, v[{Z}:{Z+3}] offset:6656")
    if G2F:
        I(f"v_mov_b32 v4, {LMB}")
        I(f"ds_write_b64 v4, v[{Z}:{Z+1}]")
    I("v_lshrrev_b32 v4, 2, v1")
    I("v_mul_u32_u24 v4, 80, v4")
    I("v_and_b32 v5, 3, v1")
    I("v_lshl_add_u32 v4, v5, 4, v4")
    I("v_add_u32 v4, s28, v4")
    I("v_and_b32 v5, 31, v1")
    I("v_lshrrev_b32 v6, 5, v1")
    if CM4:
        I("v_and_b32 v7, 3, v5")
        I(f"v_mul_u32_u24 v7, {CST}, v7")
        I("v_lshrrev_b32 v8, 2, v5")
        I("v_lshl_add_u32 v8, v6, 1, v8")
        I("v_lshl_add_u32 v7, v8, 3, v7")
    else:
        I("v_and_b32 v7, 7, v5")
        I(f"v_mul_u32_u24 v7, {CST}, v7")
        I("v_lshrrev_b32 v8, 3, v5")
        I("v_add_u32 v8, v8, v6")
        I("v_lshl_add_u32 v7, v8, 4, v7")
    I(f"v_add_u32 v7, {XREG}, v7")
    I("v_add_u32 v7, s28, v7")
    I(f"v_add_u32 v14, {HBUF}, v7")
    I("v_sub_u32 v8, 63, v5")
    I("v_mul_u32_u24 v8, 80, v8")
    I("v_lshl_add_u32 v8, v6, 4, v8")
    I("v_add_u32 v8, s28, v8")
    I("v_mov_b32 v15, v8")
    I("v_subrev_u32 v9, 2560, v8")
    I(f"v_add_u32 v10, {XREG}, v3")
    if CMG:
        I(f"v_mul_u32_u24 v11, {HHI-512}, v6")
        I("v_add_u32 v10, v10, v11")
    I(f"v_add_u32 v11, {HBUF}, v10")
    AC0, AC1 = 100, 116
    for j in range(32):
        I(f"v_mov_b32 v{AC0+j}, 0")
    FR = 132
    UE, UO, WO = 180, 189, 197
    CLA, CR = 3, 4
    for f_ in FLAGS:
        if f_.startswith("cla"): CLA = int(f_[3:]); CR = 8; UE, UO, WO = 228, 237, 245
    if CMG:
        UE, UO, WO = 196, 205, 213
        AC2 = 220
        I("s_mov_b32 s30, 0xfffff")
        I("s_mov_b32 s31, 0xfffff")
    else:
        I("s_mov_b32 s30, -1")
        I("s_mov_b32 s31, 0xf")
    q = DSQ()
    def stage_seg(w, addr):
        if CM4:
            for t in range(4):
                I(f"v_alignbit_b32 v{UE+t}, v{w+t+1}, v{w+t}, 16")
                I(f"v_alignbit_b32 v{UO+t+1}, v{w+t+2}, v{w+t+1}, 16")
                I(f"v_mov_b32 v{WO+t+1}, v{w+t+1}")
            I("s_mov_b64 exec, s[30:31]")
            for c, r in enumerate((UE, WO+1, UO+1, w+2)):
                I(f"ds_write_b128 v{addr}, v[{r}:{r+3}] offset:{c*CST}")
                q.push(("w", 0))
            I("s_mov_b64 exec, -1")
            return
        for t in range(7):
            I(f"v_alignbit_b32 v{UE+t}, v{w+t+1}, v{w+t}, 16")
            I(f"v_alignbit_b32 v{UO+t}, v{w+t+1}, v{w+t}, 16")
        for t in range(1, 7):
            I(f"v_mov_b32 v{WO+t}, v{w+t}")
        I("s_mov_b64 exec, s[30:31]")
        for c in range(8):
            if c % 2 == 0:
                t0 = c // 2
                r = UE + t0 if t0 % 2 == 0 else UO + t0
            else:
                t0 = (1 + c)//2
                r = w + t0 if t0 % 2 == 0 else WO + t0
            assert r % 2 == 0, (c, r)
            I(f"ds_write_b128 v{addr}, v[{r}:{r+3}] offset:{c*CST}")
            q.push(("w", 0))
        I("s_mov_b64 exec, -1")
    if FUSE and CV2:
        if "cvnw" not in FLAGS: I(f"s_waitcnt vmcnt({5 if 'cvw2' in FLAGS else 6})")
        if "cst2" in FLAGS: stamp()
        if "cvbar" in FLAGS: I("s_barrier")
        if "cst2" in FLAGS: stamp()
        kvloads()
        if "cvlv" not in FLAGS: vloads()
        I(f"s_waitcnt vmcnt({(7 if 'cvlv' in FLAGS else 11) + 3})")
        stage_seg(HW0, 10)
        I("s_mov_b32 s49, 0x3f803f80")
        I(f"s_waitcnt vmcnt({0 if 'cvlv' in FLAGS else 4}) lgkmcnt(0)")
        if "cvlv" in FLAGS: vloads()
        stamp()
    if FUSE:
        if CV2: pass
        elif KPF:
            if "kvb" in FLAGS:
                I("s_bitcmp1_b32 s3, 0")
                I("s_cbranch_scc1 CV_nw0")
            I(f"s_waitcnt vmcnt({4 + 2*(WLE-1) if 'nw0' in FLAGS else 0})")
            if "kvb" in FLAGS: e("CV_nw0:")
            if "cst2" in FLAGS: stamp()
            I("s_barrier")
            if "cst2" in FLAGS: stamp()
            kvloads()
            if "kvb" in FLAGS:
                if "kvbw" in FLAGS: I(f"s_waitcnt vmcnt({7 + 4 + 2*(WLE-1)})")
                I("s_barrier")
            if "vearly" in FLAGS: vloads()
            if "vpf1" in FLAGS:
                I("s_mov_b64 exec, s[54:55]")
                I("buffer_load_dword v57, v55, s[36:39], s51 offen")
                I("s_mov_b64 exec, -1")
        else:
            I("s_waitcnt vmcnt(13)")
        if not CV2:
            if "nw0" not in FLAGS: stage_seg(HW0, 10)
            I("s_mov_b32 s49, 0x3f803f80")
            if "vearly" in FLAGS:
                I("s_waitcnt vmcnt(4) lgkmcnt(0)")
                for n in range(WLE + 1, WLM + 1):
                    for x in wload(n): I(x); CVQ0.append(n)
            else:
                I(f"s_waitcnt vmcnt({0 if 'vpf1' not in FLAGS else 1}) lgkmcnt(0)")
                vloads()
            if "hpf2" in FLAGS:
                I("v_lshl_add_u32 v55, v1, 6, s27")
                I("buffer_load_dword v58, v55, s[8:11], 0 offen")
            stamp()
        for r in range(3):
            for c in range(4):
                I(f"v_mov_b32_dpp v{KP+4*r+c}, v{KO+4*(r+1)+c} wave_shr:1 row_mask:0xf bank_mask:0xf")
        def krow(r): return (KP + 4*r) if r < 3 else (KO + 4*(r-3))
        chains = [(i, h) for i in range(4) for h in range(2)]
        def T(j, i, h): return TC + 8*j + 2*i + h
        if "kvf" in FLAGS:
            I("s_mov_b32 s50, 0x05040100")
            I("s_mov_b32 s51, 0x07060302")
            for j in range(4):
                for h in range(2):
                    for r in range(6):
                        I(f"v_perm_b32 v{PP+6*h+r}, v{krow(r)+j}, v{krow(r+1)+j}, s{50+h}")
                for (i, h) in chains: I(f"v_dot2_f32_bf16 v{T(j,i,h)}, v{PP+6*h+i}, s{85+4*j+2*h}, 0")
                for (i, h) in chains: I(f"v_dot2_f32_bf16 v{T(j,i,h)}, v{PP+6*h+i+2}, s{84+4*j+2*h}, v{T(j,i,h)}")
        for j in range(4 if "kvf" not in FLAGS else 0):
            for h in range(2):
                I(f"s_lshl_b32 s{50+h}, s{84+4*j+2*h}, 16")
                I(f"s_and_b32 s{52+h}, s{84+4*j+2*h}, 0xffff0000")
                I(f"s_lshl_b32 s{54+h}, s{85+4*j+2*h}, 16")
                I(f"s_and_b32 s{56+h}, s{85+4*j+2*h}, 0xffff0000")
            for r in range(7):
                lo16(KF+2*r, krow(r)+j); hi16(KF+2*r+1, krow(r)+j)
            def P(i, t): return PP + (i*4 + t)*2
            for i in range(4):
                for t in range(4):
                    r = i + 3 - t
                    I(f"v_pk_mul_f32 v[{P(i,t)}:{P(i,t)+1}], v[{KF+2*r}:{KF+2*r+1}], s[{50+2*t}:{51+2*t}]")
            for (i, h) in chains: I(f"v_cvt_pk_bf16_f32 v{T(j,i,h)}, v{P(i,3)+h}, v{P(i,2)+h}")
            for t in (1, 0):
                for (i, h) in chains: I(f"v_dot2_f32_bf16 v{T(j,i,h)}, v{T(j,i,h)}, s49, 0")
                for (i, h) in chains: I(f"v_cvt_pk_bf16_f32 v{T(j,i,h)}, v{T(j,i,h)}, v{P(i,t)+h}")
            for (i, h) in chains: I(f"v_dot2_f32_bf16 v{T(j,i,h)}, v{T(j,i,h)}, s49, 0")
            for (i, h) in chains:
                if h == 0: I(f"v_cvt_pk_bf16_f32 v{T(j,i,h)}, v{T(j,i,h)}, 0")
                else: I(f"v_cvt_pk_bf16_f32 v{T(j,i,h)}, 0, v{T(j,i,h)}")
        if "nw0" in FLAGS: stage_seg(HW0, 10)
        if "cst2" in FLAGS: stamp()
        I(f"s_waitcnt vmcnt({1 if 'hpf2' in FLAGS else len(CVQ0)})")
        if "cst2" in FLAGS: stamp()
        for j in range(4 if "kvf" not in FLAGS else 0):
            for (i, h) in chains: I(f"v_dot2_f32_bf16 v{T(j,i,h)}, v{T(j,i,h)}, v{VV+4*i+j}, 0")
        if "kvf" in FLAGS:
            for j in range(4):
                for i in range(4):
                    lo16(KF+2*i, VV+4*i+j); hi16(KF+2*i+1, VV+4*i+j)
                for i in range(4):
                    I(f"v_pk_mul_f32 v[{T(j,i,0)}:{T(j,i,1)}], v[{T(j,i,0)}:{T(j,i,1)}], v[{KF+2*i}:{KF+2*i+1}]")
        I("s_nop 1")
        for j in range(4):
            for h in range(2):
                o = PP + 2*h + 4*j
                I(f"v_cvt_pk_bf16_f32 v{o+1}, v{T(j,1,h)}, v{T(j,0,h)}")
                I(f"v_cvt_pk_bf16_f32 v{o}, v{T(j,3,h)}, v{T(j,2,h)}")
            for h in range(2):
                o = PP + 2*h + 4*j
                ch = 2*j + h
                I(f"ds_write_b64 v{52 + ch//4}, v[{o}:{o+1}] offset:{(ch % 4)*WREG}")
        I("s_waitcnt lgkmcnt(0)")
        I("s_barrier")
        if ("cpf" in FLAGS or "cpf0" in FLAGS) and CPL < 0:
            C0 = "cpf0" in FLAGS
            I("s_mov_b32 s54, s24")
            if C0:
                I("s_cmp_ge_u32 s24, 256")
                I("s_cbranch_scc1 CV_cpfd")
                e("CV_cpfl:")
            I("s_movk_i32 s50, 56")
            I(f"s_mov_b32 s51, {384*3456}")
            I("s_mov_b32 s52, s54")
            I("s_cmp_ge_u32 s54, 108")
            I("s_cselect_b32 s50, 64, s50")
            I("s_cselect_b32 s53, 108, 0")
            I("s_cmp_ge_u32 s54, 216")
            I("s_cselect_b32 s50, 0, s50")
            I("s_cselect_b32 s53, 216, s53")
            I("s_cselect_b32 s51, 768, s51")
            I("s_cmp_ge_u32 s54, 344")
            I("s_cselect_b32 s50, 72, s50")
            I("s_cselect_b32 s53, 344, s53")
            I("s_cselect_b32 s51, 0, s51")
            I("s_load_dwordx2 s[56:57], s[0:1], s50")
            I("s_sub_u32 s52, s52, s53")
            I("s_lshl_b32 s52, s52, 6")
            I("v_add_u32 v55, s52, v1")
            I("v_lshlrev_b32 v56, 7, v55")
            I("v_lshrrev_b32 v57, 2, v55")
            I("v_mul_u32_u24 v57, 0x500, v57")
            I("v_and_b32 v55, 3, v55")
            I("v_lshl_add_u32 v57, v55, 7, v57")
            I("s_cmp_eq_u32 s50, 0")
            I("s_cselect_b64 vcc, -1, 0")
            I(f"s_mov_b32 s58, {SZ_W}")
            I(f"s_cselect_b32 s58, {SZ_SD}, s58")
            I("s_mov_b32 s59, 0x00020000")
            I("v_cndmask_b32 v56, v56, v57, vcc")
            I("s_waitcnt lgkmcnt(0)")
            I("buffer_load_dword v254, v56, s[56:59], s51 offen")
            if C0:
                I("s_add_u32 s54, s54, 256")
                I("s_cmp_lt_u32 s54, 614")
                I("s_cbranch_scc1 CV_cpfl")
                e("CV_cpfd:")
        if "hpf3" in FLAGS:
            I("v_lshl_add_u32 v55, v1, 6, s27")
            I("buffer_load_dword v58, v55, s[8:11], 0 offen")
    else:
        I("s_waitcnt vmcnt(2)")
        stamp()
        for j in range(4):
            I(f"ds_write_b128 v4, v[{XLD+4*j}:{XLD+4*j+3}] offset:{16*80*j}")
        stage_seg(HW0, 10)
    q = DSQ()
    def crd(c, both, part=None):
        f = FR + (c % CR)*12
        boff = (c >> 1)*80 + (c & 1)*32
        if part in (None, 0):
            if c < 16:
                I(f"ds_read_b128 v[{f}:{f+3}], v7 offset:{32*c}")
            else:
                I(f"ds_read_b128 v[{f}:{f+3}], v14 offset:{32*(c-16)}")
            q.push(("r", c))
            I(f"ds_read_b128 v[{f+4}:{f+7}], v9 offset:{boff}")
            q.push(("r", c))
        if both and part in (None, 1):
            I(f"ds_read_b128 v[{f+8}:{f+11}], v8 offset:{boff}")
            q.push(("r", c))
    if CM4:
        CLA = 2
        for f_ in FLAGS:
            if f_.startswith("c4la"): CLA = int(f_[4:])
        B0 = 180; MSK = 218
        def b0(dh, pp): return B0 + (dh*2 + pp)*4
        def mrd(c, part):
            f = FR + (c % 4)*12
            boff = (c >> 1)*80 + (c & 1)*32
            va, ao = (7, 32*c) if c < 8 else (14, 32*(c-8))
            if part == 0:
                I(f"ds_read_b64 v[{f}:{f+1}], v{va} offset:{ao}"); q.push(("r", c))
                I(f"ds_read_b64 v[{f+2}:{f+3}], v{va} offset:{ao+8}")
            if part == 1:
                I(f"ds_read_b64 v[{f+4}:{f+5}], v{va} offset:{ao+HHI}"); q.push(("r", c))
                I(f"ds_read_b64 v[{f+6}:{f+7}], v{va} offset:{ao+HHI+8}")
            if part == 2: I(f"ds_read_b128 v[{f+8}:{f+11}], v9 offset:{boff}")
            q.push(("r", c))
        W2 = "w2" in FLAGS
        if G2F and CWP:
            g2_setup(0)
            I("s_sub_u32 s34, s40, 22")
            I("s_lshl_b32 s34, s34, 3")
            I("s_add_u32 s34, s34, s3")
            I(f"s_mul_i32 s34, s34, {216*128}")
            I("v_lshl_add_u32 v60, v1, 7, s34")
            I(f"s_mov_b32 s34, {-54*128*CWI}")
            I("s_mov_b32 s36, -1")
            I("s_mov_b32 s37, 0x3fffff")
            if CW4:
                I("s_sub_u32 s34, s40, 22")
                I("s_lshl_b32 s34, s34, 2")
                I("s_add_u32 s34, s34, s3")
                I("s_mul_i32 s35, s34, 434")
                I("s_min_u32 s35, s35, 16846")
                I("s_lshl_b32 s35, s35, 7")
                I("v_lshl_add_u32 v60, v1, 7, s35")
                I("s_cmp_lt_u32 s3, 4")
                I("s_cselect_b32 s36, -1, 0")
                I("s_cselect_b32 s37, 0x3fffffff, 0")
                srd(12, 6, SZ_H, WS_H)
                I("s_mul_i32 s35, s34, 177")
                I("s_min_u32 s35, s35, 6735")
                I("s_lshl_b32 s35, s35, 7")
                I("s_mul_i32 s38, s42, 884736")
                I("s_add_u32 s35, s35, s38")
                I("v_lshl_add_u32 v62, v1, 7, s35")
                I("s_cmp_lt_u32 s3, 4")
                I("s_cselect_b32 s38, -1, 0")
                I("s_cselect_b32 s39, 0x7ffffff, 0")
            elif CHT >= 0:
                srd(12, 6, SZ_H, WS_H)
                I("s_sub_u32 s35, s40, 22")
                I("s_lshl_b32 s35, s35, 3")
                I("s_add_u32 s35, s35, s3")
                I("s_mul_i32 s35, s35, 88")
                I("s_min_u32 s35, s35, 6824")
                I("s_lshl_b32 s35, s35, 7")
                I("s_mul_i32 s38, s42, 884736")
                I("s_add_u32 s35, s35, s38")
                I("v_lshl_add_u32 v62, v1, 7, s35")
                I(f"s_mov_b32 s35, {-44*128*CHT}")
                I("s_mov_b32 s38, -1")
                I("s_mov_b32 s39, 0xfff")
        UNR = "unr" in FLAGS
        if UNR:
            WB_ = 64 - 6*2
            cvq = list(CVQ0)
            for n in range(WLM + 1, 8):
                if WLD and n - WLD >= 0: continue
                for x in wload(n): I(x); cvq.append(n)
            for dh in range(2):
                I(f"ds_read_b128 v[{b0(dh,0)}:{b0(dh,0)+3}], v8 offset:{32*dh}")
            for j in range(16): I(f"v_mov_b32 v{AC2+j}, 0")
            I(f"v_cmp_ne_u32 vcc, 0, v5")
            I("s_nop 1")
            I(f"v_cndmask_b32 v{MSK}, 0, -1, vcc")
            for c in range(CLA):
                for part in range(3): mrd(c, part)
            stamp()
            for it in range(8):
                q.q = [("r", c) for c in range(CLA) for _ in range(5)]
                w = wreg(it + 1) if it < 7 else None
                def AL(dst, t): return f"v_alignbit_b32 v{dst+t}, v{w+t+1}, v{w+t}, 16"
                def MV(t): return f"v_mov_b32 v{WO+t}, v{w+t}"
                def WR(c): return ("W", f"ds_write_b128 v11, v[{(UE, WO+1, UO+1, w+2)[c]}:{(UE, WO+1, UO+1, w+2)[c]+3}] offset:{c*CST}")
                slots = []
                if it < 7:
                    slots = [["V", WR(3), AL(UE,0), AL(UE,1)], [AL(UE,2), AL(UE,3)], [],
                             [WR(0), MV(1), MV(2)], [MV(3), MV(4)], [],
                             [WR(1), AL(UO,1), AL(UO,2)], [AL(UO,3), AL(UO,4)], [],
                             [WR(2)], [], [], ["P"]]
                    slots[2].append("L")
                def slot(i):
                    if i < 0 or i >= len(slots): return
                    for x in slots[i]:
                        if x == "L":
                            for n in range(WLM + 1, 8):
                                if WLD and n - WLD == it:
                                    for y_ in wload(n): I(y_); cvq.append(n)
                            if CPL == it:
                                I("buffer_load_dword v254, v56, s[12:15], 0 offen"); cvq.append(-1)
                        elif x == "V":
                            idxs = [k_ for k_, t_ in enumerate(cvq) if t_ == it + 1]
                            if idxs:
                                I(f"s_waitcnt vmcnt({len(cvq) - 1 - max(idxs)})")
                                del cvq[:max(idxs)+1]
                        elif x == "P" and CW4:
                            for k_ in CW4W[it]:
                                I(f"s_mov_b32 s34, {62*128*k_}")
                                I("s_mov_b64 exec, s[36:37]")
                                I("buffer_load_dword v97, v60, s[48:51], s34 offen")
                                I("s_mov_b64 exec, -1")
                            for k_ in CW4H[it]:
                                I(f"s_mov_b32 s35, {59*128*k_}")
                                I("s_mov_b64 exec, s[38:39]")
                                I("buffer_load_dword v98, v62, s[12:15], s35 offen")
                                I("s_mov_b64 exec, -1")
                        elif x == "P":
                            if G2F and CWP and 0 <= it - CWI < 4:
                                I(f"s_mov_b32 s34, {54*128*(it - CWI)}")
                                I("s_mov_b64 exec, s[36:37]")
                                I("buffer_load_dword v97, v60, s[48:51], s34 offen"); cvq.append(-1)
                                I("s_mov_b64 exec, -1")
                            if G2F and CWP and CHT >= 0 and 0 <= it - CHT < 2:
                                I(f"s_mov_b32 s35, {44*128*(it - CHT)}")
                                I("s_mov_b64 exec, s[38:39]")
                                I("buffer_load_dword v98, v62, s[12:15], s35 offen"); cvq.append(-1)
                                I("s_mov_b64 exec, -1")
                        elif isinstance(x, tuple):
                            I("s_mov_b64 exec, s[30:31]")
                            I(x[1]); q.push(("w", 0))
                            I("s_mov_b64 exec, -1")
                        else: I(x)
                for c in range(8):
                    f = FR + (c % 4)*12
                    bz = b0(c & 1, (c >> 1) & 1); bn = b0(c & 1, ((c >> 1) & 1) ^ 1)
                    last = it == 7 and c + CLA >= 8
                    q.wait_for(("r", c))
                    I(f"v_mfma_f32_32x32x16_bf16 v[{AC0}:{AC0+15}], v[{f}:{f+3}], v[{bz}:{bz+3}], v[{AC0}:{AC0+15}]")
                    if not last: mrd(c + CLA, 0)
                    slot(3*(c-1))
                    I(f"v_mfma_f32_32x32x16_bf16 v[{AC1}:{AC1+15}], v[{f}:{f+3}], v[{f+8}:{f+11}], v[{AC1}:{AC1+15}]")
                    if not last: mrd(c + CLA, 1)
                    slot(3*(c-1)+1 if c >= 1 else -1)
                    I(f"v_mfma_f32_32x32x16_bf16 v[{AC2}:{AC2+15}], v[{f+4}:{f+7}], v[{bz}:{bz+3}], v[{AC2}:{AC2+15}]")
                    if not last: mrd(c + CLA, 2)
                    if not (it == 7 and c >= 6):
                        for r in range(4):
                            I(f"v_and_b32_dpp v{bn+r}, v{bz+r}, v{MSK} wave_shr:1 row_mask:0xf bank_mask:0xf bound_ctrl:0")
                    slot(3*(c-1)+2 if c >= 1 else -1)
                if it < 7:
                    I("v_swap_b32 v7, v14")
                    I("v_swap_b32 v10, v11")
                    I("v_add_u32 v9, 320, v9")
        if not UNR:
            if W2:
                I(f"buffer_load_dwordx4 v[{HW0}:{HW0+3}], v2, s[8:11], s29 offen")
                I(f"buffer_load_dwordx2 v[{HW0+4}:{HW0+5}], v2, s[8:11], s29 offen offset:16")
                I("s_add_u32 s29, s29, 256")
            for dh in range(2):
                I(f"ds_read_b128 v[{b0(dh,0)}:{b0(dh,0)+3}], v8 offset:{32*dh}")
            for j in range(16): I(f"v_mov_b32 v{AC2+j}, 0")
            I(f"v_cmp_ne_u32 vcc, 0, v5")
            I("s_nop 1")
            I(f"v_cndmask_b32 v{MSK}, 0, -1, vcc")
            for c in range(CLA):
                for part in range(3): mrd(c, part)
            I("s_mov_b32 s33, 0")
            stamp()
            e("CV_loopm:")
            q.q = [("r", c) for c in range(CLA) for _ in range(5)]
            w = HW1
            def AL(dst, t): return f"v_alignbit_b32 v{dst+t}, v{w+t+1}, v{w+t}, 16"
            def MV(t): return f"v_mov_b32 v{WO+t}, v{w+t}"
            def WR(c): return ("W", f"ds_write_b128 v11, v[{(UE, WO+1, UO+1, w+2)[c]}:{(UE, WO+1, UO+1, w+2)[c]+3}] offset:{c*CST}")
            slots = [[WR(3), AL(UE,0), AL(UE,1)], [AL(UE,2), AL(UE,3)], [],
                     [WR(0), MV(1), MV(2)], [MV(3), MV(4)], [],
                     [WR(1), AL(UO,1), AL(UO,2)], [AL(UO,3), AL(UO,4)], [],
                     [WR(2), "L"], [], []]
            if W2: slots = slots[:9] + [[WR(2)], [], [], [], [], [], [], [], [], ["L"], [], []]
            def slot(i):
                if i < 0 or i >= len(slots): return
                for x in slots[i]:
                    if x == "L" and W2:
                        I("s_waitcnt vmcnt(0)")
                        for t in range(6): I(f"v_mov_b32 v{HW1+t}, v{HW0+t}")
                        I(f"buffer_load_dwordx4 v[{HW0}:{HW0+3}], v2, s[8:11], s29 offen")
                        I(f"buffer_load_dwordx2 v[{HW0+4}:{HW0+5}], v2, s[8:11], s29 offen offset:16")
                        I("s_add_u32 s29, s29, 256")
                        if G2F and CWP:
                            I(f"s_cmp_lt_u32 s34, {4*54*128}")
                            I("s_cbranch_scc0 CV_nwp")
                            I("s_mov_b64 exec, s[36:37]")
                            I("buffer_load_dword v61, v60, s[48:51], s34 offen")
                            I("s_mov_b64 exec, -1")
                            e("CV_nwp:")
                            I(f"s_add_u32 s34, s34, {54*128}")
                            if CHT >= 0:
                                I(f"s_cmp_lt_u32 s35, {2*44*128}")
                                I("s_cbranch_scc0 CV_nht")
                                I("s_mov_b64 exec, s[38:39]")
                                I("buffer_load_dword v63, v62, s[12:15], s35 offen")
                                I("s_mov_b64 exec, -1")
                                e("CV_nht:")
                                I(f"s_add_u32 s35, s35, {44*128}")
                    elif x == "L":
                        I(f"buffer_load_dwordx4 v[{HW1}:{HW1+3}], v2, s[8:11], s29 offen")
                        I(f"buffer_load_dwordx2 v[{HW1+4}:{HW1+5}], v2, s[8:11], s29 offen offset:16")
                        I("s_add_u32 s29, s29, 256")
                    elif isinstance(x, tuple):
                        I("s_mov_b64 exec, s[30:31]")
                        I(x[1]); q.push(("w", 0))
                        I("s_mov_b64 exec, -1")
                    else: I(x)
            for c in range(8):
                if c == 1 and not W2: I("s_waitcnt vmcnt(0)")
                f = FR + (c % 4)*12
                bz = b0(c & 1, (c >> 1) & 1); bn = b0(c & 1, ((c >> 1) & 1) ^ 1)
                q.wait_for(("r", c))
                I(f"v_mfma_f32_32x32x16_bf16 v[{AC0}:{AC0+15}], v[{f}:{f+3}], v[{bz}:{bz+3}], v[{AC0}:{AC0+15}]")
                mrd(c + CLA, 0)
                slot(3*(c-1))
                I(f"v_mfma_f32_32x32x16_bf16 v[{AC1}:{AC1+15}], v[{f}:{f+3}], v[{f+8}:{f+11}], v[{AC1}:{AC1+15}]")
                mrd(c + CLA, 1)
                slot(3*(c-1)+1 if c >= 1 else -1)
                I(f"v_mfma_f32_32x32x16_bf16 v[{AC2}:{AC2+15}], v[{f+4}:{f+7}], v[{bz}:{bz+3}], v[{AC2}:{AC2+15}]")
                mrd(c + CLA, 2)
                for r in range(4):
                    I(f"v_and_b32_dpp v{bn+r}, v{bz+r}, v{MSK} wave_shr:1 row_mask:0xf bank_mask:0xf bound_ctrl:0")
                slot(3*(c-1)+2 if c >= 1 else -1)
            I("v_swap_b32 v7, v14")
            I("v_swap_b32 v10, v11")
            I("v_add_u32 v9, 320, v9")
            I("s_add_u32 s33, s33, 1")
            I("s_cmp_lt_u32 s33, 8")
            I("s_cbranch_scc1 CV_loopm")
        I("s_nop 7")
        I("s_nop 7")
        I("s_nop 3")
        for j in range(16): I(f"v_add_f32 v{AC1+j}, v{AC1+j}, v{AC2+j}")
    elif CMG:
        def mrd(c, part):
            f = FR + (c % 4)*16
            boff = (c >> 1)*80 + (c & 1)*32
            va, ao = (7, 32*c) if c < 8 else (14, 32*(c-8))
            if "cvnob" in FLAGS and part >= 2: return
            if part == 0: I(f"ds_read_b128 v[{f}:{f+3}], v{va} offset:{ao}")
            if part == 1: I(f"ds_read_b128 v[{f+4}:{f+7}], v{va} offset:{ao+HHI}")
            if part == 2: I(f"ds_read_b128 v[{f+8}:{f+11}], v8 offset:{boff}")
            if part == 3: I(f"ds_read_b128 v[{f+12}:{f+15}], v9 offset:{boff}")
            q.push(("r", c))
        for j in range(16): I(f"v_mov_b32 v{AC2+j}, 0")
        for c in range(CLA):
            for part in range(4): mrd(c, part)
        I("s_mov_b32 s33, 0")
        stamp()
        e("CV_loopm:")
        q.q = [("r", c) for c in range(CLA) for _ in range(2 if "cvnob" in FLAGS else 4)]
        w = HW1
        def AL(dst, t): return f"v_alignbit_b32 v{dst+t}, v{w+t+1}, v{w+t}, 16"
        def MV(t): return f"v_mov_b32 v{WO+t}, v{w+t}"
        def WR(c):
            if c % 2 == 0:
                t0 = c // 2
                r = UE + t0 if t0 % 2 == 0 else UO + t0
            else:
                t0 = (1 + c)//2
                r = w + t0 if t0 % 2 == 0 else WO + t0
            return ("W", f"ds_write_b128 v11, v[{r}:{r+3}] offset:{c*CST}")
        slots = [[WR(3), AL(UE,0), AL(UE,1)], [WR(7), AL(UE,2), AL(UE,3)], [WR(0), AL(UE,4), AL(UE,5)],
                 [WR(4), MV(1), MV(2)], [MV(3), MV(4)], [WR(1), MV(5), MV(6)],
                 [WR(5), AL(UO,1), AL(UO,2)], [AL(UO,3), AL(UO,4)], [WR(2), AL(UO,5), AL(UO,6)],
                 [WR(6)], ["L"], []]
        def slot(i):
            if i < 0 or i >= len(slots): return
            for x in slots[i]:
                if x == "L":
                    I(f"buffer_load_dwordx4 v[{HW1}:{HW1+3}], v2, s[8:11], s29 offen")
                    I(f"buffer_load_dwordx4 v[{HW1+4}:{HW1+7}], v2, s[8:11], s29 offen offset:16")
                    I("s_add_u32 s29, s29, 256")
                elif isinstance(x, tuple):
                    I("s_mov_b64 exec, s[30:31]")
                    I(x[1]); q.push(("w", 0))
                    I("s_mov_b64 exec, -1")
                else: I(x)
        for c in range(8):
            if c == 1: I("s_waitcnt vmcnt(0)")
            f = FR + (c % 4)*16
            q.wait_for(("r", c))
            I(f"v_mfma_f32_32x32x16_bf16 v[{AC0}:{AC0+15}], v[{f}:{f+3}], v[{f+8}:{f+11}], v[{AC0}:{AC0+15}]")
            mrd(c + CLA, 0)
            slot(3*(c-1))
            I(f"v_mfma_f32_32x32x16_bf16 v[{AC1}:{AC1+15}], v[{f}:{f+3}], v[{f+12}:{f+15}], v[{AC1}:{AC1+15}]")
            mrd(c + CLA, 1); mrd(c + CLA, 2)
            slot(3*(c-1)+1 if c >= 1 else -1)
            I(f"v_mfma_f32_32x32x16_bf16 v[{AC2}:{AC2+15}], v[{f+4}:{f+7}], v[{f+8}:{f+11}], v[{AC2}:{AC2+15}]")
            mrd(c + CLA, 3)
            slot(3*(c-1)+2 if c >= 1 else -1)
        I("v_swap_b32 v7, v14")
        I("v_swap_b32 v10, v11")
        I("v_add_u32 v8, 320, v8")
        I("v_add_u32 v9, 320, v9")
        I("s_add_u32 s33, s33, 1")
        I("s_cmp_lt_u32 s33, 8")
        I("s_cbranch_scc1 CV_loopm")
        I("s_nop 7")
        I("s_nop 7")
        I("s_nop 3")
        for j in range(16): I(f"v_add_f32 v{AC1+j}, v{AC1+j}, v{AC2+j}")
    else:
        for c in range(CLA):
            crd(c, True)
        I("s_mov_b32 s33, 0")
        stamp()
    for phase in range(2 if not CMG else 0):
        both = (phase == 0)
        e(f"CV_loop{phase}:")
        q.q = [("r", c) for c in range(CLA) for _ in range(3 if both else 2)]
        for c in range(16):
            if c == 1:
                I("s_waitcnt vmcnt(0)")
                stage_seg(HW1, 11)
                if "cvnoload" not in FLAGS:
                    I(f"buffer_load_dwordx4 v[{HW1}:{HW1+3}], v2, s[8:11], s29 offen")
                    I(f"buffer_load_dwordx4 v[{HW1+4}:{HW1+7}], v2, s[8:11], s29 offen offset:16")
                I("s_add_u32 s29, s29, 512")
            f = FR + (c % CR)*12
            if "cvi" in FLAGS:
                q.wait_for(("r", c))
                I(f"v_mfma_f32_32x32x16_bf16 v[{AC1}:{AC1+15}], v[{f}:{f+3}], v[{f+4}:{f+7}], v[{AC1}:{AC1+15}]")
                crd(c + CLA, both, 0)
                if both:
                    I(f"v_mfma_f32_32x32x16_bf16 v[{AC0}:{AC0+15}], v[{f}:{f+3}], v[{f+8}:{f+11}], v[{AC0}:{AC0+15}]")
                    crd(c + CLA, both, 1)
            else:
                crd(c + CLA, both)
                q.wait_for(("r", c))
                I(f"v_mfma_f32_32x32x16_bf16 v[{AC1}:{AC1+15}], v[{f}:{f+3}], v[{f+4}:{f+7}], v[{AC1}:{AC1+15}]")
                if both:
                    I(f"v_mfma_f32_32x32x16_bf16 v[{AC0}:{AC0+15}], v[{f}:{f+3}], v[{f+8}:{f+11}], v[{AC0}:{AC0+15}]")
        I("v_swap_b32 v7, v14")
        I("v_swap_b32 v10, v11")
        I("v_add_u32 v8, 640, v8")
        I("v_add_u32 v9, 640, v9")
        I("s_add_u32 s33, s33, 1")
        I(f"s_cmp_lt_u32 s33, {4*(phase+1)}")
        I(f"s_cbranch_scc1 CV_loop{phase}")
    I("v_mov_b32 v8, v15")
    I("s_waitcnt vmcnt(0) lgkmcnt(0)" if "unr" not in FLAGS else "s_waitcnt lgkmcnt(0)")
    stamp()
    if G2F:
        if not CWP: g2_setup(0)
        I("s_lshr_b32 s42, s24, 3")
        I("s_mul_i32 s43, s42, 0xCCCD")
        I("s_lshr_b32 s43, s43, 19")
        I("s_mul_i32 s41, s43, 10")
        I("s_sub_u32 s42, s42, s41")
        I("s_lshl_b32 s42, s42, 2")
        I("s_lshl_b32 s43, s43, 7")
        I("s_add_u32 s43, s43, s42")
        I("s_add_u32 s43, s43, 88")
    if YST:
        I("v_mul_u32_u24 v140, 80, v5")
        I("v_lshl_add_u32 v140, v6, 3, v140")
        I("s_add_u32 s42, s28, 12800")
        I("v_add_u32 v140, s42, v140")
        I("v_lshrrev_b32 v141, 2, v1")
        I("v_mul_u32_u24 v141, 80, v141")
        I("v_and_b32 v142, 3, v1")
        I("v_lshl_add_u32 v141, v142, 4, v141")
        I("v_add_u32 v141, s42, v141")
        I("v_lshl_add_u32 v142, v1, 4, s27")
        if "yt2" in FLAGS:
            I("v_lshrrev_b32 v142, 3, v1")
            I("v_mul_u32_u24 v142, 81920, v142")
            I("v_and_b32 v143, 7, v1")
            I("v_lshl_add_u32 v142, v143, 4, v142")
            I("s_lshl_b32 s42, s24, 7")
    I("v_mul_u32_u24 v10, 24, v6")
    I("v_sub_u32 v10, v8, v10")
    I("v_add_u32 v10, 8, v10")
    I("v_subrev_u32 v11, 2560, v10")
    KV = 16
    for cb in range(2):
        for qq in range(4):
            I(f"ds_read_b64 v[{KV+cb*8+2*qq}:{KV+cb*8+2*qq+1}], v{10+cb} offset:{48-16*qq}")
    I("s_and_b32 s25, s24, 1")
    I("s_lshl_b32 s25, s25, 4")
    I("s_lshr_b32 s26, s26, s25")
    I("s_lshl_b32 s26, s26, 16")
    I("v_lshlrev_b32 v12, 6, v5")
    I("v_lshl_add_u32 v12, v6, 3, v12")
    I("v_add_u32 v12, s27, v12")
    I("s_nop 7")
    I("s_waitcnt lgkmcnt(0)")
    for cb in range(2):
        ac = AC0 if cb == 0 else AC1
        for qq in range(4):
            k0 = KV + cb*8 + 2*qq
            t = 40 + (qq % 2)*12
            y = ac + 4*qq
            hi16(t+0, k0+1); lo16(t+1, k0+1); hi16(t+2, k0); lo16(t+3, k0)
            for r in range(4):
                I(f"v_mul_f32 v{t+r}, s26, v{t+r}")
            I(f"v_cvt_pk_bf16_f32 v{t+4}, v{t}, v{t+1}")
            I(f"v_cvt_pk_bf16_f32 v{t+5}, v{t+2}, v{t+3}")
            I(f"v_cvt_pk_bf16_f32 v{t+6}, v{y}, v{y+1}")
            I(f"v_cvt_pk_bf16_f32 v{t+7}, v{y+2}, v{y+3}")
            lo16(t, t+4); hi16(t+1, t+4); lo16(t+2, t+5); hi16(t+3, t+5)
            lo16(y, t+6); hi16(y+1, t+6); lo16(y+2, t+7); hi16(y+3, t+7)
            for r in range(4):
                I(f"v_add_f32 v{t+r}, v{t+r}, v{y+r}")
            I(f"v_cvt_pk_bf16_f32 v{t+8}, v{t}, v{t+1}")
            I(f"v_cvt_pk_bf16_f32 v{t+9}, v{t+2}, v{t+3}")
            if YST: I(f"ds_write_b64 v140, v[{t+8}:{t+9}] offset:{cb*2560+16*qq}")
            else: I(f"buffer_store_dwordx2 v[{t+8}:{t+9}], v12, s[20:23], 0 offen offset:{cb*2048+16*qq}")
    if YST:
        I("s_waitcnt lgkmcnt(0)")
        for i in range(4): I(f"ds_read_b128 v[{16+4*i}:{19+4*i}], v141 offset:{1280*i}")
        for i in range(4):
            I(f"s_waitcnt lgkmcnt({3-i})")
            if "yt2" in FLAGS:
                I(f"buffer_store_dwordx4 v[{16+4*i}:{19+4*i}], v142, s[20:23], s42 offen{SCY}")
                if i < 3: I(f"s_add_u32 s42, s42, {8*81920}")
            else: I(f"buffer_store_dwordx4 v[{16+4*i}:{19+4*i}], v142, s[20:23], 0 offen offset:{1024*i}{SCY}")
    if G2F:
        g2_head("conv")
        gen_g2()
    I("s_waitcnt vmcnt(0)")
    stamp()
    stamp_dump(255 if BIG else N_G1 + 7)
    if BIG: wgt_end(1)
    I("s_endpgm")
    e("M_wdt:")
    I("s_waitcnt lgkmcnt(0)")
    if "wlate" in FLAGS: I("s_barrier")
    if BIG and "pfm" in FLAGS:
        I("s_sub_u32 s26, s3, 6")
        I("s_mul_i32 s27, s26, 176")
        I("s_sub_u32 s27, s24, s27")
        I("s_lshl_b32 s26, s26, 3")
        I("s_add_u32 s26, s26, 56")
        I("s_load_dwordx2 s[28:29], s[0:1], s26")
        I("s_mul_i32 s27, s27, 12800")
        I(f"s_mov_b32 s30, {SZ_W}")
        I("s_mov_b32 s31, 0x00020000")
        I("v_and_b32 v1, 63, v0")
        I("v_lshlrev_b32 v1, 4, v1")
        I("s_waitcnt lgkmcnt(0)")
        for i in range(13):
            I(f"buffer_load_dwordx4 v[{100+4*i}:{103+4*i}], v1, s[28:31], s27 offen")
            I("s_add_u32 s27, s27, 1024")
    if "pfa128" in FLAGS or "pfa64" in FLAGS:
        G = 128 if "pfa128" in FLAGS else 64
        NL = 1792 // G
        I("s_cmp_lg_u32 s3, 3")
        I("s_cbranch_scc1 M_nopf")
        I("s_bfe_u32 s26, s2, 0x50003")
        I("s_lshr_b32 s27, s26, 4")
        I("s_lshl_b32 s27, s27, 3")
        I("s_add_u32 s27, s27, 56")
        I("s_load_dwordx2 s[28:29], s[0:1], s27")
        I("s_and_b32 s26, s26, 15")
        I("s_mul_i32 s26, s26, 138240")
        I("s_bfe_u32 s27, s2, 0x10002")
        I("s_mul_i32 s27, s27, 1792")
        I("s_add_u32 s26, s26, s27")
        I(f"s_mov_b32 s30, {SZ_W}")
        I("s_mov_b32 s31, 0x00020000")
        I("v_and_b32 v1, 63, v0")
        I("s_waitcnt lgkmcnt(0)")
        n = (40*NL + 63)//64
        mul = (65536 + NL - 1)//NL
        for i in range(n):
            I(f"v_add_u32 v2, {64*i}, v1")
            I(f"v_mul_u32_u24 v3, {mul}, v2")
            I("v_lshrrev_b32 v3, 16, v3")
            I(f"v_mul_u32_u24 v4, {NL}, v3")
            I("v_sub_u32 v4, v2, v4")
            I("v_mul_u32_u24 v3, 3456, v3")
            I(f"v_lshl_add_u32 v{100+i}, v4, {7 if G==128 else 6}, v3")
            I(f"buffer_load_dword v{140+i}, v{100+i}, s[28:31], s26 offen")
        e("M_nopf:")
    WBAR = 0
    for f_ in FLAGS:
        if f_.startswith("wbar"): WBAR = int(f_[4:])
    I("s_cmp_ge_u32 s24, 270")
    I(f"s_cbranch_scc1 {'M_exitb' if WBAR else 'M_exitw'}")
    I("s_load_dwordx2 s[4:5], s[0:1], 72")
    I("s_mul_i32 s17, s24, 0xCCCD")
    I("s_lshr_b32 s17, s17, 19")
    I("s_mul_i32 s18, s17, 10")
    I("s_sub_u32 s18, s24, s18")
    I("v_and_b32 v1, 7, v0")
    I("v_bfe_u32 v2, v0, 3, 2")
    I("v_bfe_u32 v6, v0, 5, 1")
    I("s_lshl_b32 s18, s18, 6")
    I("v_lshl_add_u32 v1, v1, 3, s18")
    I("s_lshl_b32 s19, s17, 1")
    I("v_add_u32 v6, s19, v6")
    I("v_lshlrev_b32 v7, 5, v6")
    I("v_lshl_add_u32 v7, v2, 2, v7")
    I("v_mul_u32_u24 v3, 0x500, v7")
    I("v_lshl_add_u32 v3, v1, 1, v3")
    I("v_add_u32 v4, 0x5000, v3")
    I("s_waitcnt lgkmcnt(0)")
    srd(8, 4, SZ_W)
    srd(12, 6, SZ_W, WS_WDT)
    for i in range(8):
        b = 3 if i < 4 else 4
        I(f"buffer_load_dwordx4 v[{8+4*i}:{11+4*i}], v{b}, s[8:11], 0 offen offset:{(i%4)*1280}")
    I("s_mov_b32 s20, 0x05040100")
    I("s_mov_b32 s21, 0x07060302")
    I("v_lshrrev_b32 v5, 4, v1")
    I("v_mul_u32_u24 v5, 54, v5")
    I("v_add_u32 v5, v5, v6")
    I("v_lshlrev_b32 v5, 10, v5")
    I("v_lshl_add_u32 v5, v2, 8, v5")
    I("v_and_b32 v7, 15, v1")
    I("v_lshl_add_u32 v5, v7, 4, v5")
    for _ in range(WBAR): I("s_barrier")
    I("s_waitcnt vmcnt(0)")
    for dd in range(8):
        ob = 40 + 4*dd
        sel = 20 + (dd & 1)
        for q in range(4):
            I(f"v_perm_b32 v{ob+q}, v{8+4*(2*q+1)+dd//2}, v{8+4*(2*q)+dd//2}, s{sel}")
    for dd in range(8):
        ob = 40 + 4*dd
        I(f"buffer_store_dwordx4 v[{ob}:{ob+3}], v5, s[12:15], 0 offen offset:{16*dd}")
    if WBAR:
        I("s_endpgm")
        e("M_exitb:")
        for _ in range(WBAR): I("s_barrier")
    e("M_exitw:")
    I("s_waitcnt vmcnt(0)")
    e("M_exit:")
    I("s_endpgm")
    if FUSE: kernel_desc("mid_kernel", 256, 102)
    else: kernel_desc("mid_kernel", 256 if any(f.startswith("cla") for f in FLAGS) else (240 if BIG else 208), 80)

def gen_k3():
    kernel_header("fin_kernel")
    I(f"s_cmp_ge_u32 s2, {64 if 'fin64' in FLAGS else 256}")
    I("s_cbranch_scc1 F_exit")
    I("s_load_dwordx2 s[6:7], s[0:1], 96")
    I("s_load_dwordx2 s[4:5], s[0:1], 0")
    I("s_load_dwordx2 s[30:31], s[0:1], 80")
    stamp()
    I("v_lshrrev_b32 v1, 6, v0")
    I("s_nop 0")
    I("v_readfirstlane_b32 s3, v1")
    I("s_waitcnt lgkmcnt(0)")
    if "fsb" in FLAGS: stamp()
    srd(8, 6, SZ_W, WS_WDT)
    srd(12, 6, SZ_H, WS_H)
    srd(16, 6, SZ_SD, WS_YT)
    if FUSE: srd(20, 6, S*8, WS_ST)
    else: srd(20, 6, SZ_SD, WS_XN)
    srd(24, 4, SZ_SD)
    srd(32, 30, SZ_SD)
    if "fin2e" in FLAGS:
        I("s_bfe_u32 s36, s2, 0x10002")
        I("s_lshl_b32 s36, s36, 2")
        I("s_bfe_u32 s37, s2, 0x20003")
        I("s_add_u32 s36, s36, s37")
        I("s_mul_i32 s36, s36, 80")
        I("s_and_b32 s37, s2, 3")
        I("s_lshl_b32 s37, s37, 3")
        I("s_lshr_b32 s38, s2, 5")
        I("s_add_u32 s37, s37, s38")
        I("s_lshl_b32 s37, s37, 6")
    elif "fin2d" in FLAGS:
        I("s_and_b32 s36, s2, 1")
        I("s_lshl_b32 s36, s36, 2")
        I("s_bfe_u32 s37, s2, 0x20003")
        I("s_add_u32 s36, s36, s37")
        I("s_mul_i32 s36, s36, 80")
        I("s_bfe_u32 s37, s2, 0x20001")
        I("s_lshl_b32 s37, s37, 3")
        I("s_lshr_b32 s38, s2, 5")
        I("s_add_u32 s37, s37, s38")
        I("s_lshl_b32 s37, s37, 6")
    elif "finswap" in FLAGS:
        I("s_lshr_b32 s36, s2, 5")
        I("s_mul_i32 s36, s36, 80")
        I("s_and_b32 s37, s2, 31")
        I("s_lshl_b32 s37, s37, 6")
    else:
        I("s_and_b32 s36, s2, 7")
        I("s_mul_i32 s36, s36, 80")
        I("s_lshr_b32 s37, s2, 3")
        I("s_lshl_b32 s37, s37, 6")
    I("s_mul_i32 s38, s3, 14")
    I("s_cmp_eq_u32 s3, 3")
    I("s_cselect_b32 s39, 1, 0")
    I("s_sub_u32 s38, s38, s39")
    I("s_cmp_ge_u32 s3, 2")
    I("s_cselect_b32 s39, 13, 14")
    I("s_add_u32 s47, s38, s39")
    I("s_lshl_b32 s45, s38, 10")
    I("s_lshl_b32 s47, s47, 10")
    if "rot" in FLAGS:
        I("s_bfe_u32 s46, s2, 0x20003")
        I("s_lshl_b32 s46, s46, 2")
        I("s_lshr_b32 s44, s2, 5")
        I("s_lshl_b32 s44, s44, 1")
        I("s_add_u32 s46, s46, s44")
        I("s_cmp_ge_u32 s46, 13")
        I("s_cselect_b32 s44, 13, 0")
        I("s_sub_u32 s46, s46, s44")
        I("s_cmp_ge_u32 s46, 13")
        I("s_cselect_b32 s44, 13, 0")
        I("s_sub_u32 s46, s46, s44")
        I("s_lshl_b32 s46, s46, 10")
        I("s_add_u32 s46, s46, s45")
    else:
        I("s_mov_b32 s46, s45")
    I("s_mov_b32 s44, 0")
    I("v_and_b32 v1, 15, v0")
    I("v_bfe_u32 v2, v0, 4, 2")
    I("v_and_b32 v12, 63, v0")
    if "pf" in FLAGS:
        I("s_lshr_b32 s52, s2, 3")
        I("s_lshl_b32 s52, s52, 2")
        I("s_add_u32 s52, s52, s3")
        I("s_and_b32 s53, s2, 1")
        I("s_mul_i32 s53, s53, 1105920")
        I("s_mul_i32 s54, s52, 8640")
        I("s_add_u32 s53, s53, s54")
        I("v_lshlrev_b32 v240, 6, v12")
        I("buffer_load_dword v241, v240, s[8:11], s53 offen")
        I("s_add_u32 s53, s53, 4096")
        I("buffer_load_dword v242, v240, s[8:11], s53 offen")
        I("s_add_u32 s53, s53, 544")
        I("buffer_load_dword v243, v240, s[8:11], s53 offen")
        I("s_bfe_u32 s53, s2, 0x20001")
        I("s_mul_i32 s53, s53, 1769472")
        I("s_mul_i32 s54, s52, 13824")
        I("s_add_u32 s53, s53, s54")
        for i, inc in enumerate((4096, 4096, 1536, 0)):
            I(f"buffer_load_dword v{244+i}, v240, s[12:15], s53 offen")
            if inc: I(f"s_add_u32 s53, s53, {inc}")
    I("s_lshr_b32 s52, s36, 4")
    I("s_mul_i32 s52, s52, 55296")
    I("v_lshl_add_u32 v3, v12, 4, s52")
    for jd in range(1, 5):
        I(f"v_add_u32 v{3+jd}, {jd*55296}, v3")
    I("s_lshr_b32 s52, s37, 4")
    I("s_mul_i32 s52, s52, 55296")
    I("v_lshl_add_u32 v8, v12, 4, s52")
    for js in range(1, 4):
        I(f"v_add_u32 v{8+js}, {js*55296}, v8")
    def acc(jd, js): return (js*5 + jd)*4
    FRB = 16
    NB = 5
    def ld(buf):
        f = FRB + buf*36
        I("s_cmp_lt_u32 s44, s39")
        I("s_cselect_b32 s48, s46, 0x40000000")
        for jd in range(5):
            r = f + 4*jd
            I(f"buffer_load_dwordx4 v[{r}:{r+3}], v{3+jd}, s[8:11], s48 offen{CP}")
        for js in range(4):
            r = f + 20 + 4*js
            I(f"buffer_load_dwordx4 v[{r}:{r+3}], v{8+js}, s[12:15], s48 offen{CP}")
        I("s_add_u32 s46, s46, 1024")
        I("s_cmp_ge_u32 s46, s47")
        I("s_cselect_b32 s46, s45, s46")
        I("s_add_u32 s44, s44, 1")
    def mm(buf):
        f = FRB + buf*36
        for js in range(4):
            for jd in range(5):
                c = acc(jd, js)
                a = f + 4*jd; b = f + 20 + 4*js
                I(f"v_mfma_f32_16x16x32_bf16 a[{c}:{c+3}], v[{a}:{a+3}], v[{b}:{b+3}], a[{c}:{c+3}]")
    YF = 196; XX = 216
    FINL = -1
    for f_ in FLAGS:
        if f_.startswith('finl'): FINL = int(f_[4:])
    def epi_loads():
        I0 = globals()["I"]
        def I(x):
            if "xne" in FLAGS and x.startswith("buffer_load"): return
            I0(x)
        I("s_lshr_b32 s41, s3, 1")
        I("s_lshl_b32 s41, s41, 5")
        I("s_add_u32 s41, s41, s37")
        I("s_lshl_b32 s41, s41, 1")
        I("v_add_u32 v14, s36, v1")
        I("v_lshlrev_b32 v14, 12, v14")
        I("v_lshl_add_u32 v14, v2, 4, v14")
        I("v_add_u32 v14, s41, v14")
        YF = 196
        for jd in range(5):
            I(f"v_add_u32 v15, {jd*16*4096}, v14")
            I(f"buffer_load_dwordx4 v[{YF+4*jd}:{YF+4*jd+3}], v15, s[16:19], 0 offen")
        I("s_lshl_b32 s42, s3, 4")
        I("s_add_u32 s42, s42, s37")
        I("v_add_u32 v15, s42, v1")
        I("v_mul_u32_u24 v15, 0x500, v15")
        I("v_lshl_add_u32 v15, v2, 3, v15")
        I("s_lshl_b32 s43, s36, 1")
        I("v_add_u32 v15, s43, v15")
        XX = 216
        I("s_lshr_b32 s50, s42, 4")
        I("s_mul_i32 s50, s50, 20480")
        I("v_lshrrev_b32 v14, 1, v2")
        I("v_lshlrev_b32 v14, 8, v14")
        I("v_lshl_add_u32 v14, v1, 4, v14")
        I("v_and_b32 v13, 1, v2")
        I("v_lshl_add_u32 v14, v13, 3, v14")
        I("v_add_u32 v14, s50, v14")
        if FUSE:
            I("v_add_u32 v14, s42, v1")
            I("v_lshlrev_b32 v14, 3, v14")
            I(f"buffer_load_dwordx2 v[{XX+10}:{XX+11}], v14, s[20:23], 0 offen")
        for jd in range(5):
            I(f"buffer_load_dwordx2 v[{XX+2*jd}:{XX+2*jd+1}], v15, s[24:27], 0 offen offset:{32*jd}")
            if FUSE: continue
            I(f"s_add_u32 s50, s36, {16*jd}")
            I("s_lshr_b32 s51, s50, 5")
            I("s_lshl_b32 s51, s51, 10")
            I("s_and_b32 s50, s50, 16")
            I("s_lshl_b32 s50, s50, 5")
            I("s_add_u32 s51, s51, s50")
            I(f"buffer_load_dwordx2 v[{XX+10+2*jd}:{XX+11+2*jd}], v14, s[20:23], s51 offen")
    if "fsb" in FLAGS: stamp()
    if FINL < 0 and not ("nf" in FLAGS and any(f_.startswith("el") for f_ in FLAGS)): epi_loads()
    if "fsb" in FLAGS: stamp()
    NB2 = NB
    for f_ in FLAGS:
        if f_.startswith("nb"): NB2 = int(f_[2:])
    def breg(buf, i):
        if buf < 5: return "v", FRB + buf*36 + 4*i
        return "a", 80 + (buf-5)*36 + 4*i
    def ld2(buf):
        for jd in range(5):
            t, r = breg(buf, jd)
            I(f"buffer_load_dwordx4 {t}[{r}:{r+3}], v{3+jd}, s[8:11], s46 offen{CP}")
        for js in range(4):
            t, r = breg(buf, 5+js)
            I(f"buffer_load_dwordx4 {t}[{r}:{r+3}], v{8+js}, s[12:15], s46 offen{CP}")
        I("s_add_u32 s46, s46, 1024")
    def mm2(buf, zero=False):
        for js in range(4):
            for jd in range(5):
                c = acc(jd, js)
                t, a = breg(buf, jd); t, b = breg(buf, 5+js)
                cin = "0" if zero else f"a[{c}:{c+3}]"
                I(f"v_mfma_f32_16x16x32_bf16 a[{c}:{c+3}], {t}[{a}:{a+3}], {t}[{b}:{b+3}], {cin}")
    NEWF = "nf" in FLAGS
    ELP = -1; SPK = 4
    for f_ in FLAGS:
        if f_.startswith("el"): ELP = int(f_[2:])
        if f_.startswith("spk"): SPK = int(f_[3:])
    for b in range(NB2-1):
        ld2(b)
        if NEWF and ELP == b and "xne" not in FLAGS: epi_loads()
        if "fsb" in FLAGS: stamp()
    if FINL >= 0: epi_loads()
    if not NEWF:
        for j in range(80):
            I(f"v_accvgpr_write_b32 a{j}, 0")
    HOIST = "hoist" in FLAGS
    def hoisted(part=None):
        IDB2, TQ, TYQ = 244, 248, 236
        if part is None or part == 0:
            I("s_and_b32 s44, s3, 1")
            I("s_lshl_b32 s44, s44, 4")
            I(f"v_add_u32 v{TQ}, s44, v1")
            I(f"v_lshrrev_b32 v{TQ+1}, 3, v{TQ}")
            I(f"v_cmp_eq_u32 vcc, v{TQ+1}, v2")
            I(f"v_and_b32 v{TQ+1}, 7, v{TQ}")
            I(f"v_and_b32 v{TQ+2}, 1, v{TQ+1}")
            I(f"v_lshlrev_b32 v{TQ+2}, 4, v{TQ+2}")
            I(f"v_mov_b32 v{TQ+3}, 0x3f80")
            I(f"v_lshlrev_b32 v{TQ+3}, v{TQ+2}, v{TQ+3}")
            I(f"v_lshrrev_b32 v{TQ+1}, 1, v{TQ+1}")
            I(f"v_cndmask_b32 v{TQ+3}, 0, v{TQ+3}, vcc")
            for j in range(4):
                I(f"v_cmp_eq_u32 vcc, {j}, v{TQ+1}")
                I("s_nop 1")
                I(f"v_cndmask_b32 v{IDB2+j}, 0, v{TQ+3}, vcc")
        if part is None:
            if "fsb" in FLAGS: stamp()
            if FINL < 0: I(f"s_waitcnt vmcnt({9*(NB2-1)})")
            if "fsb" in FLAGS: stamp()
        I("s_nop 1")
        for jd in range(5):
            if part is not None and jd != part: continue
            ty = TYQ + (jd % 2)*4; t = TQ + (jd % 2)*4
            x0 = XX + 2*jd; n0 = XX + 10 + 2*jd
            I(f"v_mfma_f32_16x16x32_bf16 v[{ty}:{ty+3}], v[{YF+4*jd}:{YF+4*jd+3}], v[{IDB2}:{IDB2+3}], 0")
            if FUSE:
                lo16(t, x0); hi16(t+1, x0); lo16(t+2, x0+1); hi16(t+3, x0+1)
                for r in range(4): I(f"v_add_f32 v{t+r}, v{t+r}, v{XX+11}")
                for r in range(4): I(f"v_cvt_pk_bf16_f32 v{t+r}, 0, v{t+r}")
                for r in range(4): I(f"v_mul_f32 v{t+r}, v{t+r}, v{XX+10}")
                for r in range(4): I(f"v_cvt_pk_bf16_f32 v{t+r}, 0, v{t+r}")
            else:
                lo16(t, n0); hi16(t+1, n0); lo16(t+2, n0+1); hi16(t+3, n0+1)
            I("s_nop 7")
            I("s_nop 3")
            for r in range(4):
                I(f"v_mul_f32 v{t+r}, v{t+r}, v{ty+r}")
            I(f"v_cvt_pk_bf16_f32 v{ty}, v{t}, v{t+1}")
            I(f"v_cvt_pk_bf16_f32 v{ty+1}, v{t+2}, v{t+3}")
            lo16(t, ty); hi16(t+1, ty); lo16(t+2, ty+1); hi16(t+3, ty+1)
            lo16(ty, x0); hi16(ty+1, x0); lo16(ty+2, x0+1); hi16(ty+3, x0+1)
            for r in range(4):
                I(f"v_add_f32 v{t+r}, v{t+r}, v{ty+r}")
            I(f"v_cvt_pk_bf16_f32 v{x0}, v{t}, v{t+1}")
            I(f"v_cvt_pk_bf16_f32 v{x0+1}, v{t+2}, v{t+3}")
    if HOIST and FINL < 0 and not NEWF: hoisted()
    stamp()
    NEL = 0 if "xne" in FLAGS else 11
    for k in range(14):
        nb = k + NB2 - 1
        if nb <= 12:
            ld2(nb % NB2)
            if NEWF and ELP == nb and "xne" not in FLAGS: epi_loads()
        elif nb == 13:
            I("s_cmp_ge_u32 s3, 2")
            I("s_cbranch_scc1 F_skip13")
            ld2(nb % NB2)
            e("F_skip13:")
        if k == 13:
            I("s_cmp_ge_u32 s3, 2")
            I("s_cbranch_scc1 F_done")
        rem = max(0, min(12, nb) - k)
        extra = NEL if (FINL >= 0 and k < NB2 - 1) else 0
        if NEWF: extra = NEL if (k <= ELP <= nb) else 0
        if k < 13: I(f"s_waitcnt vmcnt({min(63, 9*rem + extra)})")
        mm2(k % NB2, NEWF and k == 0)
        if HOIST and FINL >= 0 and k == max(FINL, NB2 - 1): hoisted()
        if NEWF and "xnh" not in FLAGS and SPK <= k < SPK + 5:
            assert k > ELP
            hoisted(k - SPK)
        if "fst" in FLAGS and k in (0, 3, 7): stamp()
        if "fsa" in FLAGS and k in (0, 1, 2, 3, 4, 5, 6, 8, 10, 12): stamp()
        if "fsb" in FLAGS and k in ((0, 3, 5, 7, 10) if NEWF else (0, 3, 7)): stamp()
    e("F_done:")
    stamp()
    I("s_mul_i32 s40, s3, 20480")
    I("v_lshlrev_b32 v13, 4, v12")
    I("v_add_u32 v13, s40, v13")
    I("s_nop 7")
    for js in range(4):
        for jd in range(5):
            c = acc(jd, js)
            I(f"ds_write_b128 v13, a[{c}:{c+3}] offset:{(js*5+jd)*1024}")
    I("s_waitcnt lgkmcnt(0)")
    I("s_barrier")
    I("s_mul_i32 s40, s3, 5120")
    I("v_lshlrev_b32 v12, 4, v12")
    I("v_add_u32 v13, s40, v12")
    I("v_add_u32 v12, 40960, v13")
    R = 96
    for src in range(4):
        for jd in range(5):
            r = R + (src*5 + jd)*4
            I(f"ds_read_b128 v[{r}:{r+3}], v{13 if src < 2 else 12} offset:{(src%2)*20480 + jd*1024}")
    if HOIST:
        I("s_waitcnt lgkmcnt(0)")
        for jd in range(5):
            r0 = R + jd*4
            I(f"v_add_f32 v{r0}, v{r0}, v{R+(5+jd)*4}")
            I(f"v_add_f32 v{r0+1}, v{r0+1}, v{R+(5+jd)*4+1}")
            I(f"v_add_f32 v{r0+2}, v{r0+2}, v{R+(5+jd)*4+2}")
            I(f"v_add_f32 v{r0+3}, v{r0+3}, v{R+(5+jd)*4+3}")
            for src in range(2, 4):
                r = R + (src*5 + jd)*4
                for j in range(4):
                    I(f"v_add_f32 v{r0+j}, v{r0+j}, v{r+j}")
            b = r0; t = 16 + (jd % 2)*16; x0 = XX + 2*jd
            I(f"v_cvt_pk_bf16_f32 v{t+4}, v{b}, v{b+1}")
            I(f"v_cvt_pk_bf16_f32 v{t+5}, v{b+2}, v{b+3}")
            lo16(t, x0); hi16(t+1, x0); lo16(t+2, x0+1); hi16(t+3, x0+1)
            lo16(t+6, t+4); hi16(t+7, t+4); lo16(t+8, t+5); hi16(t+9, t+5)
            for r in range(4):
                I(f"v_add_f32 v{t+r}, v{t+r}, v{t+6+r}")
            I(f"v_cvt_pk_bf16_f32 v{t+10}, v{t}, v{t+1}")
            I(f"v_cvt_pk_bf16_f32 v{t+11}, v{t+2}, v{t+3}")
            I(f"buffer_store_dwordx2 v[{t+10}:{t+11}], v15, s[32:35], 0 offen offset:{32*jd}")
    else:
        IDB = 60
        I("s_and_b32 s44, s3, 1")
        I("s_lshl_b32 s44, s44, 4")
        I("v_add_u32 v64, s44, v1")
        I("v_lshrrev_b32 v65, 3, v64")
        I("v_cmp_eq_u32 vcc, v65, v2")
        I("v_and_b32 v65, 7, v64")
        I("v_and_b32 v66, 1, v65")
        I("v_lshlrev_b32 v66, 4, v66")
        I("v_mov_b32 v67, 0x3f80")
        I("v_lshlrev_b32 v67, v66, v67")
        I("v_lshrrev_b32 v65, 1, v65")
        I("v_cndmask_b32 v67, 0, v67, vcc")
        for j in range(4):
            I(f"v_cmp_eq_u32 vcc, {j}, v65")
            I("s_nop 1")
            I(f"v_cndmask_b32 v{IDB+j}, 0, v67, vcc")
        TY = 64
        I("s_nop 1")
        for jd in range(5):
            I(f"v_mfma_f32_16x16x32_bf16 v[{TY+4*jd}:{TY+4*jd+3}], v[{YF+4*jd}:{YF+4*jd+3}], v[{IDB}:{IDB+3}], 0")
        I("s_waitcnt lgkmcnt(0)")
        for jd in range(5):
            r0 = R + jd*4
            for src in range(1, 4):
                r = R + (src*5 + jd)*4
                for j in range(4):
                    I(f"v_add_f32 v{r0+j}, v{r0+j}, v{r+j}")
        I("s_waitcnt vmcnt(0)")
        for jd in range(5):
            b = R + jd*4
            ty = TY + 4*jd
            t = 180 + (jd % 2)*16
            x0 = XX + 2*jd; n0 = XX + 10 + 2*jd
            lo16(t, n0); hi16(t+1, n0); lo16(t+2, n0+1); hi16(t+3, n0+1)
            for r in range(4):
                I(f"v_mul_f32 v{t+r}, v{t+r}, v{ty+r}")
            I(f"v_cvt_pk_bf16_f32 v{t+4}, v{t}, v{t+1}")
            I(f"v_cvt_pk_bf16_f32 v{t+5}, v{t+2}, v{t+3}")
            lo16(t, t+4); hi16(t+1, t+4); lo16(t+2, t+5); hi16(t+3, t+5)
            lo16(t+6, x0); hi16(t+7, x0); lo16(t+8, x0+1); hi16(t+9, x0+1)
            for r in range(4):
                I(f"v_add_f32 v{t+r}, v{t+r}, v{t+6+r}")
            I(f"v_cvt_pk_bf16_f32 v{t+4}, v{t}, v{t+1}")
            I(f"v_cvt_pk_bf16_f32 v{t+5}, v{t+2}, v{t+3}")
            lo16(t, t+4); hi16(t+1, t+4); lo16(t+2, t+5); hi16(t+3, t+5)
            I(f"v_cvt_pk_bf16_f32 v{t+4}, v{b}, v{b+1}")
            I(f"v_cvt_pk_bf16_f32 v{t+5}, v{b+2}, v{b+3}")
            lo16(t+6, t+4); hi16(t+7, t+4); lo16(t+8, t+5); hi16(t+9, t+5)
            for r in range(4):
                I(f"v_add_f32 v{t+r}, v{t+r}, v{t+6+r}")
            I(f"v_cvt_pk_bf16_f32 v{t+10}, v{t}, v{t+1}")
            I(f"v_cvt_pk_bf16_f32 v{t+11}, v{t+2}, v{t+3}")
            I(f"buffer_store_dwordx2 v[{t+10}:{t+11}], v15, s[32:35], 0 offen offset:{32*jd}")
    I("s_waitcnt vmcnt(0)")
    stamp()
    stamp_dump(9)
    e("F_exit:")
    I("s_endpgm")
    kernel_desc("fin_kernel", 256+80+36*max(0, NB2-5), 102 if STAMP else 80, accum=256)

def gen_k3b():
    NSL = 7; ELS = 2; NSTG = 27
    for f_ in FLAGS:
        if f_.startswith("f3n"): NSL = int(f_[3:])
        if f_.startswith("f3e"): ELS = int(f_[3:])
    XST = 0
    for f_ in FLAGS:
        if f_.startswith("f3s"): XST = int(f_[3:])
    XYS = [ELS + q*XST for q in range(5)]
    SLOT = 18432; YB = NSL*SLOT; XB = YB + 10240
    F3LDS[0] = XB + 10240
    kernel_header("fin_kernel")
    I("s_cmp_ge_u32 s2, 256")
    I("s_cbranch_scc1 F_exit")
    I("s_load_dwordx2 s[6:7], s[0:1], 96")
    I("s_load_dwordx2 s[4:5], s[0:1], 0")
    I("s_load_dwordx2 s[30:31], s[0:1], 80")
    stamp()
    I("v_lshrrev_b32 v1, 6, v0")
    I("v_and_b32 v12, 63, v0")
    I("v_readfirstlane_b32 s3, v1")
    I("s_and_b32 s36, s2, 1")
    I("s_lshl_b32 s36, s36, 2")
    I("s_bfe_u32 s37, s2, 0x20003")
    I("s_add_u32 s36, s36, s37")
    I("s_bfe_u32 s37, s2, 0x20001")
    I("s_lshl_b32 s37, s37, 3")
    I("s_lshr_b32 s38, s2, 5")
    I("s_add_u32 s37, s37, s38")
    I("s_cmp_lt_u32 s3, 4")
    I("s_cbranch_scc1 F_cons")
    I("s_mul_i32 s52, s36, %d" % (5*55296))
    I("s_mul_i32 s53, s37, %d" % (4*55296))
    I("s_bfe_u32 s41, s3, 0x10001")
    I("s_lshl_b32 s46, s41, 10")
    I("s_mul_i32 s40, s41, 9216")
    I("s_and_b32 s42, s3, 1")
    I("s_cselect_b32 s52, s53, s52")
    I(f"s_cselect_b32 s44, {WS_H:#x}, {WS_WDT:#x}") if False else None
    I("v_lshl_add_u32 v3, v12, 4, s52")
    for i in range(1, 5):
        I(f"v_add_u32 v{3+i}, {i*55296 - 1024*(i % 4)}, v3")
    I("s_cbranch_scc1 F_ph")
    for t in range(2):
        if t == 1: e("F_ph:")
        n = 5 - t
        if t: I("s_add_u32 s40, s40, 5120")
        I("s_waitcnt lgkmcnt(0)")
        srd(8, 6, SZ_H if t else SZ_W, WS_H if t else WS_WDT)
        vq = []
        def issue(st):
            for i in range(n):
                if i % 4 == 0: I(f"s_add_u32 m0, s40, {(st % NSL)*SLOT + (i//4)*4096}")
                I(f"buffer_load_dwordx4 v{3+i}, s[8:11], s46 offen offset:{1024*(i % 4)} lds"); vq.append(st)
            I("s_add_u32 s46, s46, 2048")
        def xy():
            srd(16, 6, SZ_SD, WS_YT)
            srd(24, 4, SZ_SD)
            I("s_and_b32 s47, s3, 3")
            I("v_lshrrev_b32 v13, 3, v12")
            I("v_and_b32 v14, 7, v12")
            I("v_xor_b32 v14, v14, v13")
            YT2 = "yt2" in FLAGS
            CS_ = 128 if YT2 else 4096
            I(f"v_lshlrev_b32 v13, {7 if YT2 else 12}, v13")
            I("v_lshl_add_u32 v13, v14, 4, v13")
            I("s_mul_i32 s48, s36, %d" % (80*CS_))
            I("s_mul_i32 s49, s37, %d" % (81920 if YT2 else 128))
            I("s_add_u32 s48, s48, s49")
            I(f"s_lshl_b32 s49, s47, {10 if YT2 else 15}")
            I("s_add_u32 s48, s48, s49")
            I("s_lshl_b32 s50, s47, 10")
            I("s_mul_i32 s51, s37, %d" % (64*1280))
            I("s_mul_i32 s49, s36, 160")
            I("s_add_u32 s51, s51, s49")
            I("s_lshl_b32 s49, s47, 6")
            def xoff(dst, add):
                I(f"v_add_u32 v{dst}, s49, v12")
                if add: I(f"v_add_u32 v{dst}, {add}, v{dst}")
                I(f"v_mul_u32_u24 v15, 6554, v{dst}")
                I("v_lshrrev_b32 v15, 16, v15")
                I("v_mul_u32_u24 v15, 1120, v15")
                I(f"v_lshl_add_u32 v{dst}, v{dst}, 4, v15")
            xoff(16, 0); xoff(17, 256); xoff(18, 384)
        def xyi(q):
            if q == 0: xy()
            if q < 4:
                i = q // 2
                if q % 2 == 0:
                    I(f"s_add_u32 m0, s50, {YB + 4096*i}")
                    I("buffer_load_dwordx4 v13, s[16:19], s48 offen lds"); vq.append(-1)
                    I(f"s_add_u32 s48, s48, {4*8*(128 if 'yt2' in FLAGS else 4096)}")
                else:
                    I(f"s_add_u32 m0, s50, {XB + 4096*i}")
                    I(f"buffer_load_dwordx4 v{16+i}, s[24:27], s51 offen lds"); vq.append(-1)
                return
            I("s_cmp_eq_u32 s41, 0")
            I(f"s_cbranch_scc0 F_x5_{t}")
            I(f"s_add_u32 m0, s50, {YB + 8192}")
            I("buffer_load_dwordx4 v13, s[16:19], s48 offen lds")
            I(f"s_branch F_x5d_{t}")
            e(f"F_x5_{t}:")
            I(f"s_add_u32 m0, s50, {XB + 6144}")
            I("buffer_load_dwordx4 v18, s[24:27], s51 offen lds")
            e(f"F_x5d_{t}:")
            vq.append(-1)
        def xya(st):
            for q in range(5):
                if XYS[q] == st: xyi(q)
        PST = "pst" in FLAGS
        nst[0] = 1
        PP_ = NSL; LL = NSL - 1
        for f_ in FLAGS:
            if f_.startswith("f3p"): PP_ = int(f_[3:])
            if f_.startswith("f3l"): LL = int(f_[3:])
        nxt = 0
        for st in range(PP_):
            issue(st); nxt += 1
            xya(st)
            if PST and st in (0, 1, 2): stamp()
        for k in range(NSTG):
            idx = max(i for i, tg in enumerate(vq) if tg == k)
            nrem = len(vq) - 1 - idx
            assert nrem <= 63
            I(f"s_waitcnt vmcnt({nrem})")
            del vq[:idx+1]
            if PST and k in (0, 2, 6, 14): stamp()
            I("s_barrier")
            if PST and k in (2, 6, 14): stamp()
            cnt = 0
            while nxt <= min(k + LL, k - 1 + NSL, NSTG - 1) and cnt < 2:
                issue(nxt)
                xya(nxt)
                if nxt == ELS and XST == 0: cnt += 1
                nxt += 1; cnt += 1
            if PST and k in (2, 6, 14, 20): stamp()
        if PST: stamp_dump(9)
        nst[0] = 1
        I("s_endpgm")
    e("F_cons:")
    I("v_and_b32 v1, 15, v0")
    I("v_bfe_u32 v2, v0, 4, 2")
    I("s_lshl_b32 s42, s37, 6")
    I("s_lshl_b32 s43, s3, 4")
    I("s_add_u32 s42, s42, s43")
    I("v_add_u32 v14, s42, v1")
    I("v_lshlrev_b32 v14, 3, v14")
    FR = 24; AC = 120; YF = 140; XX = 160; IDB2 = 172; TQ = 176; TYQ = 184; OT = 192
    I("s_waitcnt lgkmcnt(0)")
    srd(20, 6, S*8, WS_ST)
    I(f"buffer_load_dwordx2 v[{XX+10}:{XX+11}], v14, s[20:23], 0 offen")
    srd(32, 30, SZ_SD)
    I("v_lshlrev_b32 v3, 4, v12")
    I(f"v_add_u32 v4, {3*SLOT}, v3")
    I(f"v_add_u32 v5, {6*SLOT}, v3")
    I("s_lshl_b32 s43, s3, 10")
    for i in range(3): I(f"v_add_u32 v{6+i}, s43, v{3+i}")
    I("s_lshr_b32 s43, s3, 1")
    I("s_lshl_b32 s43, s43, 2")
    I("v_add_u32 v13, s43, v2")
    I("v_and_b32 v14, 7, v1")
    I("v_xor_b32 v13, v13, v14")
    I("v_lshlrev_b32 v9, 7, v1")
    I("v_lshl_add_u32 v9, v13, 4, v9")
    I(f"v_add_u32 v9, {YB}, v9")
    I("s_mul_i32 s43, s3, 2560")
    I(f"s_add_u32 s43, s43, {XB}")
    I("v_mul_u32_u24 v10, 160, v1")
    I("v_lshl_add_u32 v10, v2, 3, v10")
    I("v_add_u32 v10, s43, v10")
    I("v_lshl_add_u32 v11, v12, 4, s43")
    for u in range(3):
        I(f"v_add_u32 v{16+u}, {64*u}, v12")
        I(f"v_mul_u32_u24 v15, 6554, v{16+u}")
        I("v_lshrrev_b32 v15, 16, v15")
        I("v_mul_u32_u24 v15, 1120, v15")
        I(f"v_lshl_add_u32 v{16+u}, v{16+u}, 4, v15")
    I("s_mul_i32 s42, s42, 1280")
    I("s_mul_i32 s43, s36, 160")
    I("s_add_u32 s42, s42, s43")
    I("s_and_b32 s44, s3, 1")
    I("s_lshl_b32 s44, s44, 4")
    I(f"v_add_u32 v{TQ}, s44, v1")
    I(f"v_lshrrev_b32 v{TQ+1}, 3, v{TQ}")
    I(f"v_cmp_eq_u32 vcc, v{TQ+1}, v2")
    I(f"v_and_b32 v{TQ+1}, 7, v{TQ}")
    I(f"v_and_b32 v{TQ+2}, 1, v{TQ+1}")
    I(f"v_lshlrev_b32 v{TQ+2}, 4, v{TQ+2}")
    I(f"v_mov_b32 v{TQ+3}, 0x3f80")
    I(f"v_lshlrev_b32 v{TQ+3}, v{TQ+2}, v{TQ+3}")
    I(f"v_lshrrev_b32 v{TQ+1}, 1, v{TQ+1}")
    I(f"v_cndmask_b32 v{TQ+3}, 0, v{TQ+3}, vcc")
    for j in range(4):
        I(f"v_cmp_eq_u32 vcc, {j}, v{TQ+1}")
        I("s_nop 1")
        I(f"v_cndmask_b32 v{IDB2+j}, 0, v{TQ+3}, vcc")
    def piece(jd):
        global out
        save = out; out = []
        ty = TYQ + (jd % 2)*4; t = TQ + (jd % 2)*4
        x0 = XX + 2*jd
        I(f"v_mfma_f32_16x16x32_bf16 v[{ty}:{ty+3}], v[{YF+4*jd}:{YF+4*jd+3}], v[{IDB2}:{IDB2+3}], 0")
        lo16(t, x0); hi16(t+1, x0); lo16(t+2, x0+1); hi16(t+3, x0+1)
        for r in range(4): I(f"v_add_f32 v{t+r}, v{t+r}, v{XX+11}")
        for r in range(4): I(f"v_cvt_pk_bf16_f32 v{t+r}, 0, v{t+r}")
        for r in range(4): I(f"v_mul_f32 v{t+r}, v{t+r}, v{XX+10}")
        for r in range(4): I(f"v_cvt_pk_bf16_f32 v{t+r}, 0, v{t+r}")
        if "f3i" not in FLAGS:
            I("s_nop 7")
            I("s_nop 3")
        for r in range(4):
            I(f"v_mul_f32 v{t+r}, v{t+r}, v{ty+r}")
        for r in range(4): I(f"v_cvt_pk_bf16_f32 v{t+r}, 0, v{t+r}")
        lo16(ty, x0); hi16(ty+1, x0); lo16(ty+2, x0+1); hi16(ty+3, x0+1)
        for r in range(4):
            I(f"v_add_f32 v{YF+4*jd+r}, v{t+r}, v{ty+r}")
        for r in range(4): I(f"v_cvt_pk_bf16_f32 v{YF+4*jd+r}, 0, v{YF+4*jd+r}")
        r_ = out; out = save
        return r_
    def rds(k):
        sl = k % NSL; bi = sl // 3; o = (sl % 3)*SLOT; f = FR + (k & 1)*48
        r = []
        for b in range(2):
            r.append(f"ds_read_b128 v[{f+24*b}:{f+24*b+3}], v{6+bi} offset:{o + b*9216 + 5120}")
            for jd in range(5):
                r.append(f"ds_read_b128 v[{f+24*b+4+4*jd}:{f+24*b+7+4*jd}], v{3+bi} offset:{o + b*9216 + 1024*jd}")
        return r
    def mms(k):
        f = FR + (k & 1)*48
        r = []
        for b in range(2):
            for jd in range(5):
                c = AC + 4*jd
                cin = "0" if (k == 0 and b == 0) else f"v[{c}:{c+3}]"
                r.append(f"v_mfma_f32_16x16x32_bf16 v[{c}:{c+3}], v[{f+24*b+4+4*jd}:{f+24*b+7+4*jd}], v[{f+24*b}:{f+24*b+3}], {cin}")
        return r
    K0 = XYS[4] + 1
    assert K0 + 5 < NSTG - 1
    for k in range(NSTG):
        I("s_barrier")
        if k in (0, 1, 3, 6, 10, 14, 18, 22, 26): stamp()
        rr = rds(k); mm_ = mms(k-1) if k else []
        pc = []
        PSTEP = 2 if "f3h" in FLAGS else 1
        if K0 < k <= K0 + 5*PSTEP and (k - K0 - 1) % PSTEP == 0:
            if k == K0 + 1: I("s_waitcnt vmcnt(0)")
            pc = piece((k - K0 - 1)//PSTEP)
        I(rr[0]); I(rr[1]); rr = rr[2:]
        if "f3i" in FLAGS and pc: out.append(pc.pop(0))
        for i in range(10):
            if mm_: I(mm_[i])
            I(rr[i])
            if "f3i" in FLAGS:
                for _ in range(4):
                    if pc: out.append(pc.pop(0))
        if k == K0:
            for jd in range(5):
                I(f"ds_read_b128 v[{YF+4*jd}:{YF+4*jd+3}], v9 offset:{2048*jd}")
                I(f"ds_read_b64 v[{XX+2*jd}:{XX+2*jd+1}], v10 offset:{32*jd}")
        out.extend(pc)
        if k < NSTG - 1: I("s_waitcnt lgkmcnt(0)")
    mm_ = mms(NSTG - 1)
    I("s_waitcnt lgkmcnt(6)")
    for x in mm_[:5]: I(x)
    I("s_waitcnt lgkmcnt(0)")
    for x in mm_[5:]: I(x)
    stamp()
    I("s_nop 7")
    for jd in range(5):
        b = AC + 4*jd; xa = YF + 4*jd; t = OT + 2*jd
        if jd == 4: I("s_nop 3")
        for r in range(4): I(f"v_cvt_pk_bf16_f32 v{b+r}, 0, v{b+r}")
        for r in range(4): I(f"v_add_f32 v{b+r}, v{b+r}, v{xa+r}")
        I(f"v_cvt_pk_bf16_f32 v{t}, v{b}, v{b+1}")
        I(f"v_cvt_pk_bf16_f32 v{t+1}, v{b+2}, v{b+3}")
        I(f"ds_write_b64 v10, v[{t}:{t+1}] offset:{32*jd}")
    I("s_waitcnt lgkmcnt(0)")
    for u in range(3):
        I(f"ds_read_b128 v[{FR+4*u}:{FR+4*u+3}], v11 offset:{1024*u}")
    for u in range(3):
        I(f"s_waitcnt lgkmcnt({2-u})")
        if u == 2: I("s_mov_b64 exec, 0xffffffff")
        I(f"buffer_store_dwordx4 v[{FR+4*u}:{FR+4*u+3}], v{16+u}, s[32:35], s42 offen{OSC}")
    I("s_mov_b64 exec, -1")
    stamp()
    if STAMP: I("s_waitcnt vmcnt(0)")
    stamp()
    stamp_dump(9)
    e("F_exit:")
    I("s_endpgm")
    kernel_desc("fin_kernel", 208, 102 if STAMP else 80)
F3LDS = [0]
OSC = " sc1" if "osc" in FLAGS else (" nt" if "ont" in FLAGS else "")

def gen_k0():
    kernel_header("init_kernel")
    I(f"s_cmp_ge_u32 s2, {NK0}")
    I("s_cbranch_scc1 I_exit")
    I("s_load_dwordx2 s[6:7], s[0:1], 96")
    I("s_load_dwordx2 s[4:5], s[0:1], 72")
    I("v_lshrrev_b32 v1, 6, v0")
    I("s_nop 0")
    I("v_readfirstlane_b32 s3, v1")
    I("s_lshl_b32 s24, s2, 2")
    I("s_add_u32 s24, s24, s3")
    I("s_min_u32 s24, s24, 269")
    I("s_mul_i32 s17, s24, 0xCCCD")
    I("s_lshr_b32 s17, s17, 19")
    I("s_mul_i32 s18, s17, 10")
    I("s_sub_u32 s18, s24, s18")
    I("v_and_b32 v1, 7, v0")
    I("v_bfe_u32 v2, v0, 3, 2")
    I("v_bfe_u32 v6, v0, 5, 1")
    I("s_lshl_b32 s18, s18, 6")
    I("v_lshl_add_u32 v1, v1, 3, s18")
    I("s_lshl_b32 s19, s17, 1")
    I("v_add_u32 v6, s19, v6")
    I("v_lshlrev_b32 v7, 5, v6")
    I("v_lshl_add_u32 v7, v2, 2, v7")
    I("v_mul_u32_u24 v3, 0x500, v7")
    I("v_lshl_add_u32 v3, v1, 1, v3")
    I("v_add_u32 v4, 0x5000, v3")
    I("s_waitcnt lgkmcnt(0)")
    srd(8, 4, SZ_W)
    srd(12, 6, SZ_W, WS_WDT)
    for i in range(8):
        b = 3 if i < 4 else 4
        I(f"buffer_load_dwordx4 v[{8+4*i}:{11+4*i}], v{b}, s[8:11], 0 offen offset:{(i%4)*1280}")
    srd(28, 6, FL_SZ, WS_FL)
    I("s_lshl_b32 s25, s2, 12")
    I("v_lshlrev_b32 v72, 4, v0")
    for j in range(4): I(f"v_mov_b32 v{76+j}, 0")
    I("s_cmp_ge_u32 s2, 8")
    I("s_cbranch_scc1 I_noz")
    I("buffer_store_dwordx4 v[76:79], v72, s[28:31], s25 offen")
    e("I_noz:")
    I("s_mov_b32 s20, 0x05040100")
    I("s_mov_b32 s21, 0x07060302")
    I("v_lshrrev_b32 v5, 4, v1")
    I("v_mul_u32_u24 v5, 54, v5")
    I("v_add_u32 v5, v5, v6")
    I("v_lshlrev_b32 v5, 10, v5")
    I("v_lshl_add_u32 v5, v2, 8, v5")
    I("v_and_b32 v7, 15, v1")
    I("v_lshl_add_u32 v5, v7, 4, v5")
    I("s_waitcnt vmcnt(0)")
    for dd in range(8):
        ob = 40 + 4*dd
        sel = 20 + (dd & 1)
        for q in range(4):
            I(f"v_perm_b32 v{ob+q}, v{8+4*(2*q+1)+dd//2}, v{8+4*(2*q)+dd//2}, s{sel}")
        I(f"buffer_store_dwordx4 v[{ob}:{ob+3}], v5, s[12:15], 0 offen offset:{16*dd}")
    e("I_exit:")
    I("s_endpgm")
    kernel_desc("init_kernel", 80, 40)
NK0 = 68

def main():
    hdr = open("parallel_sum__ssm_conv_h3__glu_gated_bilinear__prompt.s.ref").read().splitlines()
    for line in hdr:
        if line.startswith("; @launch"):
            break
        if line.startswith(";"):
            e(line)
    if "k0" in FLAGS: e(f"; @launch kernel=init_kernel grid=({NK0},1,1) block=(256,1,1) lds=0")
    if not FUSE: e(f"; @launch kernel=prep_kernel grid=({N_LN+N_KV+N_PF},1,1) block=(256,1,1) lds=0")
    if BIG:
        e("; @launch kernel=mid_kernel grid=(256,1,1) block=(512,1,1) lds=163840")
    else:
        e(f"; @launch kernel=mid_kernel grid=({N_G1+N_CV},1,1) block=(256,1,1) lds={LDS2}")
    if "f3" in FLAGS: e("; @launch kernel=fin_kernel grid=(256,1,1) block=(512,1,1) lds=F3LDS")
    elif not G2F: e(f"; @launch kernel=fin_kernel grid=(256,1,1) block=(256,1,1) lds=81920")
    e('.amdgcn_target "amdgcn-amd-amdhsa--gfx950"')
    if not FUSE: gen_prep()
    if "k0" in FLAGS: gen_k0()
    gen_k2()
    if "f3" in FLAGS: gen_k3b()
    elif not G2F: gen_k3()
    dst = sys.argv[1] if len(sys.argv) > 1 else "parallel_sum__ssm_conv_h3__glu_gated_bilinear__prompt.s"
    o2 = []
    for i, ln in enumerate(out):
        o2.append(ln)
        if " m0," in ln and i + 1 < len(out) and out[i+1].rstrip().endswith(" lds"): o2.append("    s_nop 0")
    out[:] = o2
    open(dst, "w").write(("\n".join(out) + "\n").replace("lds=F3LDS", f"lds={F3LDS[0]}"))

main()
```

```python
import sys

import os
FLAGS = os.environ.get("GENFLAGS", "").split(",")
CP = " nt" if "cpnt" in FLAGS else (" sc1" if "cpsc1" in FLAGS else (" sc0 sc1" if "cpsc01" in FLAGS else ""))
S, D, F = 2048, 640, 1728
WS_XN  = 0x0
WS_KVR = 0x280000
WS_WDT = 0x500000
WS_H   = 0x800000
WS_YT  = 0x1000000
WS_ST  = 0x1400000
FUSE = "fuse" in FLAGS
SZ_SD = S * D * 2
SZ_W  = D * F * 2
SZ_H  = S * F * 2

out = []
def e(s=""):
    out.append(s)
SP = " nt" if "stnt" in FLAGS else (" sc0 sc1" if "stsc" in FLAGS else (" sc1" if "stsc1" in FLAGS else (" sc0 sc1 nt" if "stall" in FLAGS else "")))
def I(s):
    if s.startswith("buffer_store") and "s[56:59]" not in s: s += SP
    out.append("    " + s)

def srd(base, ptr, size, off=0):
    if off:
        I(f"s_add_u32 s{base}, s{ptr}, {off:#x}")
        I(f"s_addc_u32 s{base+1}, s{ptr+1}, 0")
    else:
        I(f"s_mov_b32 s{base}, s{ptr}")
        I(f"s_mov_b32 s{base+1}, s{ptr+1}")
    I(f"s_mov_b32 s{base+2}, {size:#x}")
    I(f"s_mov_b32 s{base+3}, 0x00020000")

def lo16(dst, src): I(f"v_lshlrev_b32 v{dst}, 16, v{src}")
def hi16(dst, src): I(f"v_and_b32 v{dst}, 0xffff0000, v{src}")

STAMP = "stamp" in FLAGS
nst = [0]
def stamp():
    if STAMP:
        i = nst[0]; nst[0] += 1
        I(f"s_memtime s[{60+2*i}:{61+2*i}]")
def stamp_dump(wg):
    if not STAMP: return
    n = nst[0]; nst[0] = 0
    if "ast" in FLAGS:
        kidx = 1 if wg == 9 else 0
        I("s_waitcnt lgkmcnt(0) vmcnt(0)")
        I("s_load_dwordx2 s[56:57], s[0:1], 96")
        I("s_memrealtime s[58:59]")
        I("s_waitcnt lgkmcnt(0)")
        I("v_mov_b32 v3, s58")
        I(f"s_add_u32 s56, s56, {0x1800000 + kidx*0x40000}")
        I("s_addc_u32 s57, s57, 0")
        I("s_mov_b32 s58, 0x40000")
        I("s_mov_b32 s59, 0x00020000")
        I("s_lshl_b32 s61, s2, 3")
        I("s_add_u32 s61, s61, s3")
        I("s_lshl_b32 s61, s61, 6")
        I("v_mov_b32 v1, s61")
        I("buffer_store_dword v3, v1, s[56:59], 0 offen")
        for i in range(1, n):
            I(f"s_sub_u32 s{61+2*i}, s{60+2*i}, s60")
            I(f"v_mov_b32 v2, s{61+2*i}")
            I(f"buffer_store_dword v2, v1, s[56:59], 0 offen offset:{4*i}")
        I("s_waitcnt vmcnt(0)")
        return
    I("s_waitcnt lgkmcnt(0) vmcnt(0)")
    I(f"s_cmp_lg_u32 s2, {wg}")
    I(f"s_cbranch_scc1 SD_skip{wg}")
    I("s_cmp_lg_u32 s3, 0")
    I(f"s_cbranch_scc1 SD_skip{wg}")
    I("s_load_dwordx2 s[56:57], s[0:1], 88")
    I("s_waitcnt lgkmcnt(0)")
    I("s_mov_b32 s58, 256")
    I("s_mov_b32 s59, 0x00020000")
    I("v_mov_b32 v1, 0")
    for i in range(n):
        I(f"s_sub_u32 s{61+2*i}, s{60+2*i}, s60")
        I(f"v_mov_b32 v2, s{61+2*i}")
        I(f"buffer_store_dword v2, v1, s[56:59], 0 offen offset:{4*i + (64 if wg == 255 else 0)}")
    I("s_waitcnt vmcnt(0)")
    e(f"SD_skip{wg}:")

WGT = "wgt" in FLAGS
def wgt_start():
    if WGT: I("s_memrealtime s[76:77]")
wgtn = [0]
def wgt_end(kidx):
    if not WGT: return
    n = wgtn[0]; wgtn[0] += 1
    I("s_waitcnt vmcnt(0) lgkmcnt(0)")
    I("s_memrealtime s[78:79]")
    I("s_load_dwordx2 s[72:73], s[0:1], 96")
    I("v_lshrrev_b32 v1, 6, v0")
    I("s_nop 0")
    I("v_readfirstlane_b32 s70, v1")
    I("s_lshl_b32 s71, s2, 3")
    I("s_add_u32 s70, s70, s71")
    I("s_lshl_b32 s70, s70, 3")
    I("s_waitcnt lgkmcnt(0)")
    I(f"s_add_u32 s72, s72, {0x1800000 + kidx*0x10000}")
    I("s_addc_u32 s73, s73, 0")
    I("s_mov_b32 s74, 0x10000")
    I("s_mov_b32 s75, 0x00020000")
    I("v_mov_b32 v2, s76")
    I("v_mov_b32 v3, s78")
    I("v_mov_b32 v1, s70")
    I("buffer_store_dwordx2 v[2:3], v1, s[72:75], 0 offen")
    I("s_waitcnt vmcnt(0)")

def kernel_header(name):
    e(".text")
    e(f".globl {name}")
    e(".p2align 8")
    e(f".type {name},@function")
    e(f"{name}:")

def kernel_desc(name, vgpr, sgpr, accum=None):
    if accum is None:
        accum = (vgpr + 3) // 4 * 4
    e('.section .rodata,"a"')
    e(".p2align 6")
    e(f".amdhsa_kernel {name}")
    e(f"  .amdhsa_next_free_vgpr {vgpr}")
    e(f"  .amdhsa_next_free_sgpr {sgpr}")
    e(f"  .amdhsa_accum_offset {accum}")
    e("  .amdhsa_group_segment_fixed_size 0")
    e("  .amdhsa_kernarg_size 104")
    e("  .amdhsa_user_sgpr_count 2")
    e("  .amdhsa_user_sgpr_kernarg_segment_ptr 1")
    e("  .amdhsa_system_sgpr_workgroup_id_x 1")
    e(".end_amdhsa_kernel")

N_LN, N_KV = 128, 160
N_PF = 0
if "pfw" in FLAGS: N_PF = 4*36
if "pfw2" in FLAGS: N_PF = 2*36
def gen_prep():
    kernel_header("prep_kernel")
    I(f"s_cmp_ge_u32 s2, {N_LN+N_KV+N_PF}")
    I("s_cbranch_scc1 P_exit")
    if N_PF:
        I(f"s_cmp_ge_u32 s2, {N_LN+N_KV}")
        I("s_cbranch_scc1 P_pf")
    I("s_load_dwordx2 s[6:7], s[0:1], 96")
    I(f"s_cmp_lt_u32 s2, {N_KV}")
    I("s_cbranch_scc1 P_kv")
    if "noln" in FLAGS: I("s_endpgm")
    I("s_load_dwordx2 s[4:5], s[0:1], 0")
    I("v_lshrrev_b32 v1, 4, v0")
    I(f"s_sub_u32 s3, s2, {N_KV}")
    I("s_lshl_b32 s3, s3, 4")
    I("v_add_u32 v1, s3, v1")
    I("v_mul_u32_u24 v2, 0x500, v1")
    I("v_and_b32 v3, 15, v0")
    I("v_lshl_add_u32 v2, v3, 4, v2")
    I("s_waitcnt lgkmcnt(0)")
    srd(8, 4, SZ_SD)
    srd(12, 6, SZ_SD, WS_XN)
    for j in range(5):
        I(f"buffer_load_dwordx4 v[{4+4*j}:{7+4*j}], v2, s[8:11], 0 offen offset:{256*j}")
    I("v_lshrrev_b32 v2, 4, v1")
    I("v_mul_u32_u24 v2, 20480, v2")
    I("v_lshrrev_b32 v64, 2, v3")
    I("v_lshl_add_u32 v2, v64, 10, v2")
    I("v_and_b32 v64, 3, v3")
    I("v_lshl_add_u32 v2, v64, 8, v2")
    I("v_and_b32 v64, 15, v1")
    I("v_lshl_add_u32 v2, v64, 4, v2")
    I("s_waitcnt vmcnt(0)")
    X = 24
    for j in range(20):
        lo16(X + 2*j, 4 + j)
        hi16(X + 2*j + 1, 4 + j)
    T = 64
    for j in range(20):
        I(f"v_add_f32 v{T+j}, v{X+2*j}, v{X+2*j+1}")
    def tree(base, n):
        while n > 1:
            h = n // 2
            for j in range(h):
                I(f"v_add_f32 v{base+j}, v{base+j}, v{base+n-1-j}")
            n = n - h
    tree(T, 20)
    def dpp_reduce(r, tmp):
        for sh in (8, 4, 2, 1):
            I("s_nop 1")
            I(f"v_add_f32_dpp v{tmp}, v{r}, v{r} row_ror:{sh} row_mask:0xf bank_mask:0xf")
            I(f"v_mov_b32 v{r}, v{tmp}")
    dpp_reduce(T, T+1)
    I(f"v_mul_f32 v{T}, {1.0/640.0!r}, v{T}")
    for j in range(40):
        I(f"v_sub_f32 v{T+2+j}, v{X+j}, v{T}")
    for j in range(40):
        I(f"v_mul_f32 v{T+2+j}, v{T+2+j}, v{T+2+j}")
    tree(T+2, 40)
    dpp_reduce(T+2, T+1)
    I(f"v_mul_f32 v{T+2}, {1.0/640.0!r}, v{T+2}")
    I(f"v_cvt_pk_bf16_f32 v{T}, v{T}, v{T+2}")
    hi16(T+2, T)
    lo16(T, T)
    I(f"v_add_f32 v{T+2}, {1e-5!r}, v{T+2}")
    I(f"v_cvt_pk_bf16_f32 v{T+2}, v{T+2}, v{T+2}")
    lo16(T+2, T+2)
    I(f"v_sqrt_f32 v{T+2}, v{T+2}")
    I("s_nop 0")
    I(f"v_cvt_pk_bf16_f32 v{T+2}, v{T+2}, v{T+2}")
    lo16(T+2, T+2)
    I(f"v_rcp_f32 v{T+3}, v{T+2}")
    I("s_nop 0")
    for j in range(20):
        a, b = X + 2*j, X + 2*j + 1
        I(f"v_sub_f32 v{a}, v{a}, v{T}")
        I(f"v_sub_f32 v{b}, v{b}, v{T}")
        I(f"v_cvt_pk_bf16_f32 v{T+4}, v{a}, v{b}")
        lo16(a, T+4)
        hi16(b, T+4)
        for r in (a, b):
            I(f"v_mul_f32 v{T+5}, v{r}, v{T+3}")
            I(f"v_fma_f32 v{T+6}, -v{T+5}, v{T+2}, v{r}")
            I(f"v_fma_f32 v{r}, v{T+6}, v{T+3}, v{T+5}")
        I(f"v_cvt_pk_bf16_f32 v{4+j}, v{a}, v{b}")
        if j % 4 == 3:
            jj = j // 4
            I(f"s_mov_b32 s16, {4096*jj}")
            I(f"buffer_store_dwordx4 v[{4+4*jj}:{7+4*jj}], v2, s[12:15], s16 offen")
    I("s_endpgm")
    e("P_kv:")
    if "nokv" in FLAGS: I("s_endpgm")
    I("s_load_dwordx4 s[16:19], s[0:1], 8")
    I("s_load_dwordx2 s[4:5], s[0:1], 24")
    I("s_mul_i32 s28, s2, 0xCCCD")
    I("s_lshr_b32 s28, s28, 19")
    I("s_mul_i32 s29, s28, 10")
    I("s_sub_u32 s29, s2, s29")
    I("v_and_b32 v1, 7, v0")
    I("v_lshrrev_b32 v2, 3, v0")
    I("s_lshl_b32 s30, s29, 6")
    I("v_lshl_add_u32 v1, v1, 3, s30")
    I("s_lshl_b32 s31, s28, 7")
    I("v_lshl_add_u32 v2, v2, 2, s31")
    I("v_mul_u32_u24 v3, 0x500, v2")
    I("v_lshl_add_u32 v3, v1, 1, v3")
    for i in range(3):
        I(f"v_subrev_u32 v{5+i}, {(3-i)*1280:#x}, v3")
    I("v_lshlrev_b32 v8, 3, v1")
    I("s_waitcnt lgkmcnt(0)")
    srd(8, 16, SZ_SD)
    srd(12, 18, SZ_SD)
    srd(20, 4, D*4*2)
    srd(24, 6, SZ_SD, WS_KVR)
    KR = 16
    for i in range(3):
        I(f"buffer_load_dwordx4 v[{KR+4*i}:{KR+4*i+3}], v{5+i}, s[8:11], 0 offen")
    for i in range(4):
        I(f"buffer_load_dwordx4 v[{KR+4*(i+3)}:{KR+4*(i+3)+3}], v3, s[8:11], 0 offen offset:{i*1280}")
    VR = KR + 28
    for i in range(4):
        I(f"buffer_load_dwordx4 v[{VR+4*i}:{VR+4*i+3}], v3, s[12:15], 0 offen offset:{i*1280}")
    SK = VR + 16
    for i in range(4):
        I(f"buffer_load_dwordx4 v[{SK+4*i}:{SK+4*i+3}], v8, s[20:23], 0 offen offset:{16*i}")
    I("v_lshlrev_b32 v9, 12, v1")
    I(f"v_sub_u32 v10, {S-4}, v2")
    I("v_lshl_add_u32 v9, v10, 1, v9")
    I("s_waitcnt vmcnt(0)")
    KF = 76
    VF = 83
    SF = 87
    TM = 92
    OB = 104
    for dd in range(8):
        ex = lo16 if dd % 2 == 0 else hi16
        for i in range(7):
            ex(KF + i, KR + 4*i + dd//2)
        for i in range(4):
            ex(VF + i, VR + 4*i + dd//2)
        lo16(SF+0, SK + 2*dd); hi16(SF+1, SK + 2*dd)
        lo16(SF+2, SK + 2*dd + 1); hi16(SF+3, SK + 2*dd + 1)
        ob = OB + 2*(dd % 4)
        for q in range(2):
            sa, sb = 3 - 2*q, 2 - 2*q
            t = TM
            I(f"v_mul_f32 v{t}, v{KF+sa}, v{SF+3}")
            I(f"v_mul_f32 v{t+1}, v{KF+sb}, v{SF+3}")
            I(f"v_mul_f32 v{t+2}, v{KF+sa+1}, v{SF+2}")
            I(f"v_mul_f32 v{t+3}, v{KF+sb+1}, v{SF+2}")
            I(f"v_mul_f32 v{t+4}, v{KF+sa+2}, v{SF+1}")
            I(f"v_mul_f32 v{t+5}, v{KF+sb+2}, v{SF+1}")
            I(f"v_mul_f32 v{t+6}, v{KF+sa+3}, v{SF+0}")
            I(f"v_mul_f32 v{t+7}, v{KF+sb+3}, v{SF+0}")
            for p in range(4):
                I(f"v_cvt_pk_bf16_f32 v{t+8+p}, v{t+2*p}, v{t+2*p+1}")
            for p in range(4):
                lo16(t+2*p, t+8+p); hi16(t+2*p+1, t+8+p)
            for step in (1, 2, 3):
                I(f"v_add_f32 v{t}, v{t}, v{t+2*step}")
                I(f"v_add_f32 v{t+1}, v{t+1}, v{t+2*step+1}")
                I(f"v_cvt_pk_bf16_f32 v{t+8}, v{t}, v{t+1}")
                lo16(t, t+8); hi16(t+1, t+8)
            I(f"v_mul_f32 v{t}, v{t}, v{VF+sa}")
            I(f"v_mul_f32 v{t+1}, v{t+1}, v{VF+sb}")
            I(f"v_cvt_pk_bf16_f32 v{ob+q}, v{t}, v{t+1}")
        I(f"s_mov_b32 s16, {4096*dd}")
        I(f"buffer_store_dwordx2 v[{ob}:{ob+1}], v9, s[24:27], s16 offen")
    if N_PF:
        I("s_endpgm")
        e("P_pf:")
        I(f"s_sub_u32 s3, s2, {N_LN+N_KV}")
        I("s_mul_i32 s4, s3, 1821")
        I("s_lshr_b32 s4, s4, 16")
        I("s_mul_i32 s5, s4, 36")
        I("s_sub_u32 s5, s3, s5")
        I("s_lshl_b32 s6, s4, 3")
        I("s_add_u32 s6, s6, 56")
        I("s_cmp_eq_u32 s4, 3")
        I("s_cselect_b32 s6, 32, s6")
        I("s_load_dwordx2 s[8:9], s[0:1], s6")
        I(f"s_mov_b32 s10, {SZ_W}")
        I(f"s_cselect_b32 s10, {SZ_SD}, s10")
        I("s_mov_b32 s11, 0x00020000")
        I("s_mov_b32 s7, 65536")
        I("s_cselect_b32 s7, 73728, s7")
        I("s_mul_i32 s5, s5, s7")
        I("v_lshlrev_b32 v1, 4, v0")
        I("s_waitcnt lgkmcnt(0)")
        for i in range(18):
            I(f"buffer_load_dwordx4 v[{4+4*i}:{7+4*i}], v1, s[8:11], s5 offen")
            I("s_add_u32 s5, s5, 4096")
        I("s_waitcnt vmcnt(0)")
    e("P_exit:")
    I("s_endpgm")
    kernel_desc("prep_kernel", 112, 40)

BF = 112
NSLOT = 5
SLOT = 16384
LDS2 = NSLOT * SLOT
N_G1, N_CV = 256, 256

class DSQ:
    def __init__(self): self.q = []
    def push(self, tag): self.q.append(tag)
    def wait_for(self, tag):
        if tag not in self.q: return
        idx = max(i for i, t in enumerate(self.q) if t == tag)
        n = len(self.q) - 1 - idx
        I(f"s_waitcnt lgkmcnt({min(n,15)})")
        self.q = self.q[idx+1:] if n <= 15 else self.q[len(self.q)-15:]

BIG = "big" in FLAGS
def gen_g1big():
    NF = 10; RS = 320; MS = 32*RS; SL = 2*MS; NS = 8; DB = 3; LA = 3; NST = 20
    for f_ in FLAGS:
        if f_.startswith("ns"): NS = int(f_[2:])
    DW = NS - 1
    stamp()
    I("s_load_dwordx4 s[16:19], s[0:1], 56")
    I(f"s_mul_i32 s25, s25, {16*NF}")
    I(f"s_min_u32 s25, s25, {F-16*NF}")
    I("v_and_b32 v1, 63, v0")
    PROD = "prod" in FLAGS
    if PROD:
        I("s_cmp_lt_u32 s3, 4")
        I("s_cbranch_scc1 G1_cons")
        DWP = 6
        I("s_lshl_b32 s27, s25, 1")
        for i in range(10):
            I(f"v_add_u32 v20, {64*i}, v1")
            I("v_mul_u32_u24 v21, 3277, v20")
            I("v_lshrrev_b32 v21, 16, v21")
            I("v_mul_u32_u24 v22, 20, v21")
            I("v_sub_u32 v22, v20, v22")
            I("v_bfe_u32 v23, v21, 3, 1")
            I("v_lshlrev_b32 v23, 1, v23")
            I("v_xor_b32 v22, v22, v23")
            I("v_mul_u32_u24 v21, 3456, v21")
            I("v_lshl_add_u32 v21, v22, 4, v21")
            I("v_add_u32 v21, s27, v21")
            I(f"v_subrev_u32 v{2+i}, {1024*(i%4)}, v21")
        I("s_sub_u32 s29, s3, 4")
        I(f"s_mul_i32 s29, s29, {MS}")
        I("s_waitcnt lgkmcnt(0)")
        I("s_cmp_ge_u32 s3, 5")
        I("s_cselect_b32 s4, s18, s16")
        I("s_cselect_b32 s5, s19, s17")
        srd(8, 4, SZ_W)
        pq = []
        def pdma(st):
            I(f"s_mov_b32 s28, {st*32*3456}")
            for i in range(10):
                if i % 4 == 0: I(f"s_add_u32 m0, s29, {(st % NS)*SL + (i//4)*4096}")
                I(f"buffer_load_dwordx4 v{2+i}, s[8:11], s28 offen offset:{1024*(i%4)} lds")
                pq.append(st)
        def pwait(st):
            idx = max(i for i, t in enumerate(pq) if t == st)
            I(f"s_waitcnt vmcnt({len(pq)-1-idx})")
            del pq[:idx+1]
        if "ramp" in FLAGS:
            for st in range(3): pdma(st)
            pwait(0)
            I("s_barrier")
            pdma(3); pdma(4)
            for st in range(NST-1):
                pwait(st+1)
                I("s_barrier")
                if st == 0: pdma(5)
                if st + DWP < NST: pdma(st + DWP)
        else:
            for st in range(DWP): pdma(st)
            pwait(0)
            I("s_barrier")
            for st in range(NST-1):
                pwait(st+1)
                I("s_barrier")
                if st + DWP < NST: pdma(st + DWP)
        I("s_endpgm")
        e("G1_cons:")
    I("s_and_b32 s26, s3, 1")
    I("s_lshl_b32 s26, s26, 4")
    I("s_lshl_b32 s27, s25, 1")
    for i in range(5 if not PROD else 0):
        I(f"v_add_u32 v10, {64*i}, v1")
        I("v_mul_u32_u24 v11, 3277, v10")
        I("v_lshrrev_b32 v11, 16, v11")
        I("v_mul_u32_u24 v12, 20, v11")
        I("v_sub_u32 v12, v10, v12")
        I("v_add_u32 v11, s26, v11")
        I("v_bfe_u32 v13, v11, 3, 1")
        I("v_lshlrev_b32 v13, 1, v13")
        I("v_xor_b32 v12, v12, v13")
        I("v_mul_u32_u24 v11, 3456, v11")
        I("v_lshl_add_u32 v11, v12, 4, v11")
        I("v_add_u32 v11, s27, v11")
        I(f"v_subrev_u32 v{2+i}, {1024*(i%4)}, v11")
    I("s_lshl_b32 s26, s24, 3")
    I("s_lshl_b32 s27, s3, 1")
    I("s_add_u32 s26, s26, s27")
    I("s_mul_i32 s27, s26, 20480")
    I("v_lshl_add_u32 v7, v1, 4, s27")
    I("v_add_u32 v8, 20480, v7")
    I("s_mul_i32 s27, s26, 55296")
    I("v_lshl_add_u32 v9, v1, 4, s27")
    I("v_add_u32 v10, 55296, v9")
    I("v_bfe_u32 v17, v0, 4, 2")
    I("v_bfe_u32 v18, v0, 2, 2")
    I("v_lshl_add_u32 v19, v17, 3, v18")
    I(f"v_mul_u32_u24 v19, {RS}, v19")
    I("v_and_b32 v18, 3, v0")
    I("v_lshl_add_u32 v19, v18, 3, v19")
    I("v_and_b32 v20, 1, v17")
    I("v_lshlrev_b32 v20, 5, v20")
    I("v_add_u32 v11, v19, v20")
    I("v_sub_u32 v12, v19, v20")
    ROLL = "roll" in FLAGS
    if ROLL:
        for k_, offs in ((1, 3*SL), (2, 4*SL), (3, 7*SL)):
            I(f"v_add_u32 v{11+2*k_}, {offs}, v11")
            I(f"v_add_u32 v{12+2*k_}, {offs}, v12")
    else:
        for rg in (1, 2):
            I(f"v_add_u32 v{11+2*rg}, {rg*3*SL}, v11")
            I(f"v_add_u32 v{12+2*rg}, {rg*3*SL}, v12")
    I("s_mul_i32 s29, s3, 5120")
    I("s_waitcnt lgkmcnt(0)")
    I("s_cmp_ge_u32 s3, 2")
    I("s_cselect_b32 s4, s18, s16")
    I("s_cselect_b32 s5, s19, s17")
    srd(8, 4, SZ_W)
    srd(12, 6, SZ_SD, WS_XN)
    srd(20, 6, SZ_H, WS_H)
    BB = 24; AF = 56; ACC = 80
    def acc(m, jf, js): return ACC + ((m*NF + jf)*2 + js)*4
    vq = []
    def vwait(tags):
        if not any(t in tags for t in vq): return
        idx = max(i for i, t in enumerate(vq) if t in tags)
        n = len(vq) - 1 - idx
        I(f"s_waitcnt vmcnt({n})")
        del vq[:idx+1]
    def dma(st):
        if PROD: return
        I(f"s_add_u32 m0, s29, {(st % NS)*SL}")
        I(f"s_mov_b32 s28, {st*32*3456}")
        for i in range(5):
            if i == 4: I(f"s_add_u32 m0, s29, {(st % NS)*SL + 4096}")
            I(f"buffer_load_dwordx4 v{2+i}, s[8:11], s28 offen offset:{1024*(i%4)} lds")
            vq.append(("D", st))
    def bld(st):
        I(f"s_mov_b32 s31, {st*1024}")
        for js in range(2):
            r = BB + (st % (DB+1))*8 + js*4
            I(f"buffer_load_dwordx4 v[{r}:{r+3}], v{7+js}, s[12:15], s31 offen")
            vq.append(("B", st))
    seq = [(m, jf) for m in range(2) for jf in range(NF)]
    NQ = len(seq)
    def rdx(gpos):
        st, idx = divmod(gpos, NQ)
        m, jf = seq[idx]
        slot = st % NS
        a = AF + (gpos % 4)*4
        va = 11 + 2*(slot // 3) + (jf & 1)
        off = (slot % 3)*SL + m*MS + jf*32
        return [f"ds_read_b64_tr_b16 v[{a}:{a+1}], v{va} offset:{off}",
                f"ds_read_b64_tr_b16 v[{a+2}:{a+3}], v{va} offset:{off+4*RS}"]
    for st in range(DW):
        dma(st)
        if ROLL:
            if st >= DW - DB: bld(st - (DW - DB))
        elif st < DB: bld(st)
    for j in range(4*2*2*NF):
        I(f"v_mov_b32 v{ACC+j}, 0")
    stamp()
    vwait([("D", 0)])
    I("s_barrier")
    for i in range(LA):
        for x in rdx(i): I(x)
    if ROLL:
        assert NS == 8
        I("s_mov_b32 s33, 0")
        I("s_mov_b32 s36, s29")
        I(f"s_add_u32 s37, s29, {4*SL}")
        I(f"s_mov_b32 s28, {DW*32*3456}")
        I(f"s_mov_b32 s31, {DB*1024}")
        def rdr(p, idx, ring):
            m, jf = seq[idx]
            a = AF + (ring % 4)*4
            if p < 3: va = 11 + (jf & 1); off = p*SL
            elif p == 3: va = 13 + (jf & 1); off = 0
            else: va = 15 + (jf & 1); off = 0
            off += m*MS + jf*32
            return [f"ds_read_b64_tr_b16 v[{a}:{a+1}], v{va} offset:{off}",
                    f"ds_read_b64_tr_b16 v[{a+2}:{a+3}], v{va} offset:{off+4*RS}"]
        e("G1_loop:")
        for p_ in range(4):
            I("s_waitcnt vmcnt(14)")
            I(f"s_cmp_lt_u32 s33, {4 if p_ < 2 else 3}")
            I(f"s_cbranch_scc1 G1_w{p_}")
            I("s_waitcnt vmcnt(2)")
            if p_ >= 2:
                I("s_cmp_lt_u32 s33, 4")
                I(f"s_cbranch_scc1 G1_w{p_}")
                I("s_waitcnt vmcnt(0)")
            e(f"G1_w{p_}:")
            I("s_barrier")
            I(f"s_cmp_ge_u32 s33, {4 if p_ == 0 else 3}")
            I(f"s_cbranch_scc1 G1_d{p_}")
            base, offs = ("s37", 3*SL) if p_ == 0 else ("s36", (p_-1)*SL)
            I(f"s_add_u32 m0, {base}, {offs}")
            for i in range(5):
                if i == 4: I(f"s_add_u32 m0, {base}, {offs + 4096}")
                I(f"buffer_load_dwordx4 v{2+i}, s[8:11], s28 offen offset:{1024*(i%4)} lds")
            I(f"s_add_u32 s28, s28, {32*3456}")
            e(f"G1_d{p_}:")
            if p_ > 0:
                I("s_cmp_ge_u32 s33, 4")
                I(f"s_cbranch_scc1 G1_b{p_}")
            for js in range(2):
                r = BB + ((p_ + DB) % 4)*8 + js*4
                I(f"buffer_load_dwordx4 v[{r}:{r+3}], v{7+js}, s[12:15], s31 offen")
            I("s_add_u32 s31, s31, 1024")
            if p_ > 0: e(f"G1_b{p_}:")
            for idx in range(NQ):
                if idx + LA < NQ: rr = rdr(p_, idx + LA, idx + LA)
                else: rr = rdr(p_ + 1, idx + LA - NQ, idx + LA)
                I(f"s_waitcnt lgkmcnt({2*LA-2})")
                m, jf = seq[idx]
                a = AF + (idx % 4)*4
                for js in range(2):
                    c = acc(m, jf, js); b = BB + p_*8 + js*4
                    I(f"v_mfma_f32_16x16x32_bf16 v[{c}:{c+3}], v[{a}:{a+3}], v[{b}:{b+3}], v[{c}:{c+3}]")
                    I(rr[js])
        for k_ in range(4):
            I(f"v_swap_b32 v{11+k_}, v{15+k_}")
        I("s_mov_b32 s38, s36")
        I("s_mov_b32 s36, s37")
        I("s_mov_b32 s37, s38")
        I("s_add_u32 s33, s33, 1")
        I("s_cmp_lt_u32 s33, 5")
        I("s_cbranch_scc1 G1_loop")
        I("s_waitcnt lgkmcnt(0)")
    for st in range(NST if not ROLL else 0):
        if st + 1 < NST:
            vwait([("D", st+1), ("B", st)])
            I("s_barrier")
        else:
            vwait([("B", st)])
        if "stamp3" in FLAGS and st in (0, 1, 5, 10, 15): stamp()
        if st + DW < NST and "g1nodma" not in FLAGS: dma(st + DW)
        if st + DB < NST and "g1nob" not in FLAGS: bld(st + DB)
        for idx in range(NQ if "g1nocomp" not in FLAGS else 0):
            gpos = st*NQ + idx
            rr = rdx(gpos + LA) if gpos + LA < NST*NQ else None
            I(f"s_waitcnt lgkmcnt({2*min(LA-1, NST*NQ-1-gpos)})")
            m, jf = seq[idx]
            a = AF + (gpos % 4)*4
            for js in range(2):
                c = acc(m, jf, js); b = BB + (st % (DB+1))*8 + js*4
                I(f"v_mfma_f32_16x16x32_bf16 v[{c}:{c+3}], v[{a}:{a+3}], v[{b}:{b+3}], v[{c}:{c+3}]")
                if rr: I(rr[js])
    stamp()
    I("s_lshr_b32 s34, s25, 5")
    I("s_lshl_b32 s34, s34, 10")
    I("s_add_u32 s35, s34, 4096")
    I("s_nop 7")
    I("s_nop 3")
    for js in range(2):
        for jp in range(NF//2):
            t = 24 + ((js*5 + jp) % 4) * 12
            for hh in range(2):
                jf = 2*jp + hh
                g = acc(0, jf, js); u = acc(1, jf, js)
                I(f"v_cvt_pk_bf16_f32 v{t}, v{g}, v{g+1}")
                I(f"v_cvt_pk_bf16_f32 v{t+1}, v{g+2}, v{g+3}")
                I(f"v_cvt_pk_bf16_f32 v{t+2}, v{u}, v{u+1}")
                I(f"v_cvt_pk_bf16_f32 v{t+3}, v{u+2}, v{u+3}")
                lo16(g, t); hi16(g+1, t); lo16(g+2, t+1); hi16(g+3, t+1)
                lo16(u, t+2); hi16(u+1, t+2); lo16(u+2, t+3); hi16(u+3, t+3)
                for r in range(4):
                    I(f"v_mul_f32 v{g+r}, v{g+r}, v{u+r}")
                I(f"v_cvt_pk_bf16_f32 v{t+4+2*hh}, v{g}, v{g+1}")
                I(f"v_cvt_pk_bf16_f32 v{t+5+2*hh}, v{g+2}, v{g+3}")
            if jp < 4:
                I(f"buffer_store_dwordx4 v[{t+4}:{t+7}], v{9+js}, s[20:23], s34 offen offset:{1024*jp}")
            else:
                I(f"buffer_store_dwordx4 v[{t+4}:{t+7}], v{9+js}, s[20:23], s35 offen")
    if STAMP: I("s_waitcnt vmcnt(0)")
    stamp()
    stamp_dump(5)
    wgt_end(1)
    I("s_endpgm")

def gen_g1fuse():
    NF = 10; RS = 320; MS = 32*RS; SL = 2*MS; NS = 6; LA = 3; NST = 20; DWP = 5
    XB = NS*SL
    XP = 18432; XR = 144
    I(f"s_mul_i32 s25, s25, {16*NF}")
    I(f"s_min_u32 s25, s25, {F-16*NF}")
    I("v_and_b32 v1, 63, v0")
    I("s_and_b32 s26, s3, 3")
    I(f"s_mul_i32 s30, s26, {32*XR}")
    I(f"s_add_u32 s30, s30, {XB}")
    I("s_lshl_b32 s27, s24, 3")
    I("s_lshl_b32 s26, s26, 1")
    I("s_add_u32 s26, s26, s27")
    I("s_cmp_lt_u32 s3, 4")
    I("s_cbranch_scc1 G1_cons")
    if "hprio" in FLAGS: I("s_setprio 3")
    RAW = 64
    def raw(rg, p): return RAW + (p*4 + rg)*4
    I("s_mul_i32 s27, s26, 20480")
    I("v_lshrrev_b32 v12, 3, v1")
    I("v_and_b32 v11, 7, v1")
    I("v_mul_u32_u24 v13, 0x500, v12")
    I("v_lshl_add_u32 v13, v11, 4, v13")
    I("v_add_u32 v13, s27, v13")
    for rg in range(1, 4): I(f"v_add_u32 v{13+rg}, {rg*10240}, v13")
    I("s_lshl_b32 s27, s26, 7")
    I("v_lshl_add_u32 v7, v12, 3, s27")
    I(f"v_mul_u32_u24 v6, {XR}, v12")
    I("v_lshl_add_u32 v6, v11, 4, v6")
    I("v_add_u32 v6, s30, v6")
    I("s_waitcnt lgkmcnt(0)")
    srd(12, 44, SZ_SD)
    srd(20, 6, S*8, WS_ST)
    for p in range(10):
        for rg in range(4):
            r = raw(rg, p)
            I(f"buffer_load_dwordx4 v[{r}:{r+3}], v{13+rg}, s[12:15], 0 offen offset:{128*p}")
    SM = 24; SS = 32; TT = 40; STA = 48
    for j in range(16): I(f"v_mov_b32 v{SM+j}, 0")
    I("s_mov_b32 s49, 0x3f803f80")
    I("s_cmp_ge_u32 s3, 6")
    I("s_cbranch_scc1 G1_hw")
    def helper(kind):
        vq = [("Q", i) for i in range(40)]
        def vwait(pred):
            idxs = [i for i, t in enumerate(vq) if pred(t)]
            if not idxs: return
            idx = max(idxs)
            n = len(vq) - 1 - idx
            assert n <= 63
            I(f"s_waitcnt vmcnt({n})")
            del vq[:idx+1]
        def pdma(st):
            I(f"s_mov_b32 s28, {st*32*3456}")
            for i in range(10):
                if i % 4 == 0: I(f"s_add_u32 m0, s29, {(st % NS)*SL + (i//4)*4096}")
                I(f"buffer_load_dwordx4 v{224+i}, s[8:11], s28 offen offset:{1024*(i%4)} lds")
                vq.append(("D", st))
        if kind == "prod":
            I("s_lshl_b32 s27, s25, 1")
            for i in range(10):
                I(f"v_add_u32 v20, {64*i}, v1")
                I("v_mul_u32_u24 v21, 3277, v20")
                I("v_lshrrev_b32 v21, 16, v21")
                I("v_mul_u32_u24 v22, 20, v21")
                I("v_sub_u32 v22, v20, v22")
                I("v_bfe_u32 v23, v21, 3, 1")
                I("v_lshlrev_b32 v23, 1, v23")
                I("v_xor_b32 v22, v22, v23")
                I("v_mul_u32_u24 v21, 3456, v21")
                I("v_lshl_add_u32 v21, v22, 4, v21")
                I("v_add_u32 v21, s27, v21")
                I(f"v_subrev_u32 v{224+i}, {1024*(i%4)}, v21")
            I("s_sub_u32 s29, s3, 4")
            I(f"s_mul_i32 s29, s29, {MS}")
            I("s_cmp_ge_u32 s3, 5")
            I("s_cselect_b32 s4, s18, s16")
            I("s_cselect_b32 s5, s19, s17")
            srd(8, 4, SZ_W)
            DSCH = {5: [0], 8: [1], 9: [2]}
            for f_ in FLAGS:
                if f_.startswith("dsch"):
                    if f_ == "dsch1": DSCH = {3: [0], 6: [1], 9: [2]}
                    if f_ == "dsch2": DSCH = {7: [0], 9: [1, 2]}
                    if f_ == "dsch3": DSCH = {-1: [0], 5: [1], 9: [2]}
            for st in DSCH.get(-1, []): pdma(st)
        else:
            I("s_cmp_ge_u32 s3, 7")
            I("s_cselect_b32 s28, s18, s16")
            I("s_cselect_b32 s29, s19, s17")
            I("s_mul_i32 s27, s47, 12800")
            I(f"s_mov_b32 s30, {SZ_W}")
            I("s_mov_b32 s31, 0x00020000")
            I("v_lshlrev_b32 v5, 4, v1")
            I("s_load_dwordx2 s[4:5], s[0:1], 72")
            I("s_min_u32 s48, s46, 269")
            I("s_mul_i32 s17, s48, 0xCCCD")
            I("s_lshr_b32 s17, s17, 19")
            I("s_mul_i32 s18, s17, 10")
            I("s_sub_u32 s18, s48, s18")
            I("v_and_b32 v23, 7, v0")
            I("v_bfe_u32 v17, v0, 3, 2")
            I("v_bfe_u32 v18, v0, 5, 1")
            I("s_lshl_b32 s18, s18, 6")
            I("v_lshl_add_u32 v23, v23, 3, s18")
            I("s_lshl_b32 s19, s17, 1")
            I("v_add_u32 v18, s19, v18")
            I("v_lshlrev_b32 v19, 5, v18")
            I("v_lshl_add_u32 v19, v17, 2, v19")
            I("v_mul_u32_u24 v20, 0x500, v19")
            I("v_lshl_add_u32 v20, v23, 1, v20")
            I("v_add_u32 v21, 0x5000, v20")
            I("s_waitcnt lgkmcnt(0)")
            srd(8, 4, SZ_W)
            srd(32, 6, SZ_W, WS_WDT)
            I("s_mov_b32 s36, 0x05040100")
            I("s_mov_b32 s37, 0x07060302")
            I("v_lshrrev_b32 v22, 4, v23")
            I("v_mul_u32_u24 v22, 54, v22")
            I("v_add_u32 v22, v22, v18")
            I("v_lshlrev_b32 v22, 10, v22")
            I("v_lshl_add_u32 v22, v17, 8, v22")
            I("v_and_b32 v19, 15, v23")
            I("v_lshl_add_u32 v22, v19, 4, v22")
        for p in range(10):
            vwait(lambda t: t[0] == "Q" and t[1] <= 4*p + 3)
            for c in range(4):
                for rg in range(4):
                    r = raw(rg, p) + c
                    I(f"v_dot2_f32_bf16 v{SM+2*rg+(c&1)}, v{r}, s49, v{SM+2*rg+(c&1)}")
                    I(f"v_dot2_f32_bf16 v{SS+2*rg+(c&1)}, v{r}, v{r}, v{SS+2*rg+(c&1)}")
            if kind == "prod":
                for st in DSCH.get(p, []): pdma(st)
        I("s_nop 3")
        V8 = [SM+2*rg for rg in range(4)] + [SS+2*rg for rg in range(4)]
        for a in V8: I(f"v_add_f32 v{a}, v{a}, v{a+1}")
        for dpp in ("quad_perm:[1,0,3,2]", "quad_perm:[2,3,0,1]", "row_half_mirror"):
            for a in V8: I(f"v_add_f32_dpp v{a+1}, v{a}, v{a} {dpp} row_mask:0xf bank_mask:0xf")
            for a in V8: I(f"v_mov_b32 v{a}, v{a+1}")
        R4 = range(4)
        for a in V8: I(f"v_mul_f32 v{a}, {1.0/640.0!r}, v{a}")
        for rg in R4: I(f"v_fma_f32 v{SS+2*rg}, -v{SM+2*rg}, v{SM+2*rg}, v{SS+2*rg}")
        for rg in R4:
            I(f"v_cvt_pk_bf16_f32 v{STA+2*rg+1}, 0, -v{SM+2*rg}")
            I(f"v_cvt_pk_bf16_f32 v{SS+2*rg}, 0, v{SS+2*rg}")
        for rg in R4: I(f"v_add_f32 v{SS+2*rg}, {1e-5!r}, v{SS+2*rg}")
        for rg in R4: I(f"v_cvt_pk_bf16_f32 v{SS+2*rg}, 0, v{SS+2*rg}")
        for rg in R4: I(f"v_sqrt_f32 v{SS+2*rg}, v{SS+2*rg}")
        I("s_nop 0")
        for rg in R4: I(f"v_cvt_pk_bf16_f32 v{SS+2*rg}, 0, v{SS+2*rg}")
        for rg in R4: I(f"v_rcp_f32 v{STA+2*rg}, v{SS+2*rg}")
        I("s_nop 0")
        MN = "mnorm" in FLAGS
        SEL = 24; NEG = 32; T2 = 234
        if MN:
            I("v_and_b32 v2, 15, v1")
            I("v_lshrrev_b32 v3, 4, v1")
            I("v_lshrrev_b32 v4, 2, v2")
            I("v_cmp_eq_u32 vcc, v3, v4")
            I("v_and_b32 v4, 1, v2")
            I("v_lshlrev_b32 v4, 4, v4")
            I("v_mov_b32 v3, 0x3f80")
            I("v_lshlrev_b32 v3, v4, v3")
            I("v_cndmask_b32 v3, 0, v3, vcc")
            I("v_bfe_u32 v4, v2, 1, 1")
            I("v_cmp_eq_u32 vcc, 0, v4")
            I("s_nop 1")
            I(f"v_cndmask_b32 v{SEL}, 0, v3, vcc")
            I(f"v_cndmask_b32 v{SEL+1}, v3, 0, vcc")
            I(f"v_mov_b32 v{SEL+2}, 0")
            I(f"v_mov_b32 v{SEL+3}, 0")
            I(f"v_mov_b32 v{SEL+4}, 0")
            I(f"v_mov_b32 v{SEL+5}, 0")
            I(f"v_mov_b32 v{SEL+6}, v{SEL}")
            I(f"v_mov_b32 v{SEL+7}, v{SEL+1}")
            for rg in R4:
                for c in range(4): I(f"v_mov_b32 v{NEG+4*rg+c}, v{STA+2*rg+1}")
            I("s_nop 1")
        def norm(p, rgs):
            if MN:
                TB = [T2, T2+8]
                def mf(i):
                    rg = rgs[i]; r = raw(rg, p); t = TB[i % 2]
                    for h in range(2):
                        I(f"v_mfma_f32_16x16x32_bf16 v[{t+4*h}:{t+4*h+3}], v[{SEL+4*h}:{SEL+4*h+3}], v[{r}:{r+3}], v[{NEG+4*rg}:{NEG+4*rg+3}]")
                mf(0)
                for i, rg in enumerate(rgs):
                    r = raw(rg, p); R_ = STA + 2*rg; t = TB[i % 2]
                    if i + 1 < len(rgs): mf(i+1)
                    else: I("s_nop 7")
                    if i == 0: I("s_nop 7")
                    for c in range(8): I(f"v_cvt_pk_bf16_f32 v{t+c}, 0, v{t+c}")
                    for c in range(8): I(f"v_mul_f32 v{t+c}, v{t+c}, v{R_}")
                    for c in range(4): I(f"v_cvt_pk_bf16_f32 v{r+c}, v{t+2*c}, v{t+2*c+1}")
                    I(f"ds_write_b128 v6, v[{r}:{r+3}] offset:{(p & 1)*XP + rg*8*XR}")
                return
            for rg in rgs:
                r = raw(rg, p); R_, M_ = STA + 2*rg, STA + 2*rg + 1
                if "nonorm" not in FLAGS:
                    for c in range(4):
                        lo16(TT+2*c, r+c); hi16(TT+2*c+1, r+c)
                    for c in range(8): I(f"v_add_f32 v{TT+c}, v{TT+c}, v{M_}")
                    for c in range(8): I(f"v_cvt_pk_bf16_f32 v{TT+c}, 0, v{TT+c}")
                    for c in range(8): I(f"v_mul_f32 v{TT+c}, v{TT+c}, v{R_}")
                    for c in range(4): I(f"v_cvt_pk_bf16_f32 v{r+c}, v{TT+2*c}, v{TT+2*c+1}")
                I(f"ds_write_b128 v6, v[{r}:{r+3}] offset:{(p & 1)*XP + rg*8*XR}")
        WLK = 3; PFK = 0
        for f_ in FLAGS:
            if f_.startswith("wlk"): WLK = int(f_[3:])
            if f_.startswith("pfk"): PFK = int(f_[3:])
        for k in range(NST):
            if k == 0:
                norm(0, (0, 1, 2, 3))
                if kind == "prod": pdma(3); pdma(4)
            else:
                if kind == "prod" and k >= 2 and k - 2 + DWP < NST: pdma(k - 2 + DWP)
                p = (k-1)//2 + 1
                if p < 10: norm(p, (0, 1) if (k-1) % 2 == 0 else (2, 3))
            if kind == "wdt" and k == PFK and "nopfm" not in FLAGS:
                for i in range(13):
                    I(f"buffer_load_dwordx4 v[60:63], v5, s[28:31], s27 offen")
                    I("s_add_u32 s27, s27, 1024")
            if kind == "wdt" and k == WLK:
                for i in range(8):
                    b = 20 if i < 4 else 21
                    I(f"buffer_load_dwordx4 v[{RAW+4*i}:{RAW+3+4*i}], v{b}, s[8:11], 0 offen offset:{(i%4)*1280}")
            if k == 1:
                for rg in R4:
                    I(f"buffer_store_dwordx2 v[{STA+2*rg}:{STA+2*rg+1}], v7, s[20:23], 0 offen offset:{64*rg}")
                    vq.append(("S", rg))
            if kind == "wdt" and k == WLK + 5:
                I("s_cmp_ge_u32 s46, 270")
                I("s_cbranch_scc1 G1_hwskip")
                I("s_waitcnt vmcnt(0)")
                for dd in range(8):
                    ob = RAW + 32 + 4*dd
                    sel = 36 + (dd & 1)
                    for q in range(4):
                        I(f"v_perm_b32 v{ob+q}, v{RAW+4*(2*q+1)+dd//2}, v{RAW+4*(2*q)+dd//2}, s{sel}")
                for dd in range(8):
                    ob = RAW + 32 + 4*dd
                    I(f"buffer_store_dwordx4 v[{ob}:{ob+3}], v22, s[32:35], 0 offen offset:{16*dd}")
                e("G1_hwskip:")
            if kind == "prod": vwait(lambda t: t == ("D", k))
            I("s_waitcnt lgkmcnt(0)")
            I("s_barrier")
        I("s_endpgm")
    helper("prod")
    e("G1_hw:")
    helper("wdt")
    e("G1_cons:")
    if "prio" in FLAGS: I("s_setprio 3")
    I("s_and_b32 s31, s3, 1")
    I("s_lshr_b32 s33, s3, 1")
    I("s_lshl_b32 s27, s24, 3")
    I("s_lshl_b32 s26, s31, 2")
    I("s_add_u32 s26, s26, s27")
    I("s_mul_i32 s27, s26, 55296")
    I("v_lshl_add_u32 v9, v1, 4, s27")
    I("v_bfe_u32 v17, v0, 4, 2")
    I("v_and_b32 v18, 15, v0")
    I(f"v_mul_u32_u24 v6, {XR}, v18")
    I("v_lshl_add_u32 v6, v17, 4, v6")
    I(f"s_mul_i32 s30, s31, {64*XR}")
    I(f"s_add_u32 s30, s30, {XB}")
    I("v_add_u32 v6, s30, v6")
    I("v_bfe_u32 v18, v0, 2, 2")
    I("v_lshl_add_u32 v19, v17, 3, v18")
    I(f"v_mul_u32_u24 v19, {RS}, v19")
    I("v_and_b32 v18, 3, v0")
    I("v_lshl_add_u32 v19, v18, 3, v19")
    I("s_mul_i32 s27, s33, 160")
    I("v_add_u32 v19, s27, v19")
    I("v_and_b32 v20, 1, v17")
    I("v_lshlrev_b32 v20, 5, v20")
    I("s_lshl_b32 s27, s33, 1")
    I("s_sub_u32 s27, 1, s27")
    I("v_mul_lo_u32 v20, v20, s27")
    I("v_add_u32 v11, v19, v20")
    I("v_sub_u32 v12, v19, v20")
    for rg in (1,):
        I(f"v_add_u32 v{11+2*rg}, {rg*3*SL}, v11")
        I(f"v_add_u32 v{12+2*rg}, {rg*3*SL}, v12")
    I("s_waitcnt lgkmcnt(0)")
    srd(20, 6, SZ_H, WS_H)
    BB = 24; AF = 56; ACC = 80; LA = 2
    for f_ in FLAGS:
        if f_.startswith("la"): LA = int(f_[2:])
    def acc(m, j, js): return ACC + ((m*5 + j)*4 + js)*4
    seq = [(m, j) for m in range(2) for j in range(5)]
    NQ = len(seq)
    dq = []
    def dwait(tags):
        idxs = [i for i, t in enumerate(dq) if t in tags]
        if not idxs: return
        idx = max(idxs); n = len(dq) - 1 - idx
        assert n <= 15
        I(f"s_waitcnt lgkmcnt({n})")
        del dq[:idx+1]
    def rdx(gpos):
        st, idx = divmod(gpos, NQ)
        m, j = seq[idx]
        slot = st % NS
        a = AF + (gpos % 4)*4
        va = 11 + 2*(slot // 3) + (j & 1)
        off = (slot % 3)*SL + m*MS + j*32
        return [f"ds_read_b64_tr_b16 v[{a}:{a+1}], v{va} offset:{off}",
                f"ds_read_b64_tr_b16 v[{a+2}:{a+3}], v{va} offset:{off+4*RS}"]
    def xrd(st, js):
        b = BB + (st & 1)*16 + js*4
        I(f"ds_read_b128 v[{b}:{b+3}], v6 offset:{((st >> 1) & 1)*XP + js*16*XR + (st & 1)*64}")
        dq.append(("X", st))
    stamp()
    I("s_barrier")
    stamp()
    for js in range(4): xrd(0, js)
    for i in range(LA):
        for x in rdx(i): I(x); dq.append(("A", i))
    for st in range(NST):
        if st + 1 < NST: I("s_barrier")
        if "stamp3" in FLAGS and st in (1, 5, 10): stamp()
        for idx in range(NQ):
            gpos = st*NQ + idx
            rr = rdx(gpos + LA) if gpos + LA < NST*NQ else None
            dwait([("A", gpos), ("X", st)])
            m, j = seq[idx]
            a = AF + (gpos % 4)*4
            for js in range(4):
                c = acc(m, j, js); b = BB + (st & 1)*16 + js*4
                cc = "0" if st == 0 else f"v[{c}:{c+3}]"
                I(f"v_mfma_f32_16x16x32_bf16 v[{c}:{c+3}], v[{a}:{a+3}], v[{b}:{b+3}], {cc}")
                if rr and js < 2: I(rr[js]); dq.append(("A", gpos + LA))
                if js == 2 and st + 1 < NST and 1 <= idx <= 4: xrd(st + 1, idx - 1)
    stamp()
    I("s_lshr_b32 s34, s25, 5")
    I("s_lshl_b32 s34, s34, 10")
    I("s_nop 7")
    I("s_nop 3")
    cnt = [0]
    def hq(j, js, dst, t):
        g = acc(0, j, js); u = acc(1, j, js)
        I(f"v_cvt_pk_bf16_f32 v{t}, v{g}, v{g+1}")
        I(f"v_cvt_pk_bf16_f32 v{t+1}, v{g+2}, v{g+3}")
        I(f"v_cvt_pk_bf16_f32 v{t+2}, v{u}, v{u+1}")
        I(f"v_cvt_pk_bf16_f32 v{t+3}, v{u+2}, v{u+3}")
        lo16(g, t); hi16(g+1, t); lo16(g+2, t+1); hi16(g+3, t+1)
        lo16(u, t+2); hi16(u+1, t+2); lo16(u+2, t+3); hi16(u+3, t+3)
        for r in range(4):
            I(f"v_mul_f32 v{g+r}, v{g+r}, v{u+r}")
        I(f"v_cvt_pk_bf16_f32 v{dst}, v{g}, v{g+1}")
        I(f"v_cvt_pk_bf16_f32 v{dst+1}, v{g+2}, v{g+3}")
    def epi(fq):
        units = [((0, 1), 0, 0), ((2, 3), 1, 0), ((4,), 2, 0)] if fq == 0 else [((0,), 2, 8), ((1, 2), 3, 0), ((3, 4), 4, 0)]
        for js in range(4):
            I(f"s_add_u32 s35, s34, {js*55296}")
            I(f"s_add_u32 s36, s34, {js*55296 + 4096}")
            for (jl, blk, ho) in units:
                t = 24 + (cnt[0] % 4) * 12; cnt[0] += 1
                for hh, j in enumerate(jl): hq(j, js, t+4+2*hh, t)
                so, off = ("s35", 1024*blk + ho) if blk < 4 else ("s36", ho)
                if len(jl) == 2:
                    I(f"buffer_store_dwordx4 v[{t+4}:{t+7}], v9, s[20:23], {so} offen offset:{off}")
                else:
                    I(f"buffer_store_dwordx2 v[{t+4}:{t+5}], v9, s[20:23], {so} offen offset:{off}")
    I("s_cmp_eq_u32 s33, 0")
    I("s_cbranch_scc0 G1_epi1")
    epi(0)
    I("s_branch G1_epid")
    e("G1_epi1:")
    epi(1)
    e("G1_epid:")
    if STAMP: I("s_waitcnt vmcnt(0)")
    stamp()
    stamp_dump(5)
    wgt_end(1)
    I("s_endpgm")

G2F = "g2f" in FLAGS
WS_FL = 0x1500000
FL_SZ = 32768
LMB = 7*20480 + 19456
PLIM = 100000
SCD = " sc1" if (G2F and "nosc" not in FLAGS) else ""
PSL = 4; PSL2 = 1
XL = "xl" in FLAGS
SCH = "" if "hloc" in FLAGS else SCD
if "gsc" in FLAGS: SCH = " sc1"
YST = G2F or "yst" in FLAGS or "ysc" in FLAGS
SCY = " sc1" if "ysc" in FLAGS else SCD
SCW = " sc1" if "wsc" in FLAGS else SCD
for f_ in FLAGS:
    if f_.startswith("psl"): PSL = int(f_[3:])
    if f_.startswith("psm"): PSL2 = int(f_[3:])
def g2_setup(pw):
    if XL:
        I("s_bfe_u32 s54, s2, 0x30003")
        I("s_and_b32 s55, s2, 7")
        I("s_lshl_b32 s55, s55, 2")
        I("s_lshr_b32 s56, s2, 6")
        I("s_add_u32 s55, s55, s56")
    else:
        I("s_bfe_u32 s54, s2, 0x10002")
        I("s_lshl_b32 s54, s54, 2")
        I("s_bfe_u32 s55, s2, 0x20003")
        I("s_add_u32 s54, s54, s55")
        I("s_and_b32 s55, s2, 3")
        I("s_lshl_b32 s55, s55, 3")
        I("s_lshr_b32 s56, s2, 5")
        I("s_add_u32 s55, s55, s56")
    I("s_mul_i32 s56, s3, 7")
    I("s_cmp_eq_u32 s3, 7")
    I("s_subb_u32 s56, s56, 0")
    I("s_lshl_b32 s56, s56, 10")
    I(f"s_mul_i32 s52, s54, {5*55296}")
    I("s_add_u32 s52, s52, s56")
    I(f"s_mul_i32 s53, s55, {4*55296}")
    I("s_add_u32 s53, s53, s56")
    I("s_mul_i32 s56, s3, 20480")
    srd(48, 6, SZ_W, WS_WDT)
    srd(44, 6, FL_SZ, WS_FL)
    I(f"s_mov_b32 s57, {pw}")
def g2_wdma(vl, mid=None):
    for jd in range(5):
        if mid and jd == FFN: mid(4*FFN)
        I(f"s_add_u32 m0, s56, {jd*4096}")
        I(f"s_add_u32 s58, s52, {jd*55296}")
        for b in range(4 if jd < 4 else 3):
            I(f"buffer_load_dwordx4 v{vl}, s[48:51], s58 offen offset:{1024*b} lds")
def g2_gpoll():
    I("s_mov_b64 exec, 0xffffffff")
    I("buffer_load_dword v4, v3, s[44:47], s14 offen sc1")
    I("s_mov_b64 exec, -1")
def g2_publish():
    I("v_cmp_ne_u32 vcc, 0, v4")
    I("s_mov_b32 s58, vcc_lo")
    I("v_mov_b32 v4, s58")
    I("s_mov_b64 exec, 1")
    I("ds_write_b32 v6, v4")
    I("s_mov_b64 exec, -1")
def g2_lread():
    I("ds_read_b32 v4, v6")
    I("s_waitcnt lgkmcnt(0)")
    I("v_readfirstlane_b32 s58, v4")
def g2_wait(name, need):
    I("s_mov_b32 s59, 0")
    I("s_cmp_eq_u32 s3, s57")
    I(f"s_cbranch_scc1 {name}_p")
    e(f"{name}_l:")
    g2_lread()
    I(f"s_and_b32 s58, s58, {need}")
    I(f"s_cmp_eq_u32 s58, {need}")
    I(f"s_cbranch_scc1 {name}_ok")
    I("s_add_u32 s59, s59, 1")
    I(f"s_cmp_gt_u32 s59, {PLIM*20}")
    I(f"s_cbranch_scc1 {name}_ok")
    I(f"s_sleep {PSL2}")
    I(f"s_branch {name}_l")
    e(f"{name}_p:")
    g2_gpoll()
    I("s_waitcnt vmcnt(0)")
    g2_publish()
    I(f"s_and_b32 s58, s58, {need}")
    I(f"s_cmp_eq_u32 s58, {need}")
    I(f"s_cbranch_scc1 {name}_ok")
    I("s_add_u32 s59, s59, 1")
    I(f"s_cmp_gt_u32 s59, {PLIM}")
    I(f"s_cbranch_scc1 {name}_ok")
    I(f"s_sleep {PSL}")
    I(f"s_branch {name}_p")
    e(f"{name}_ok:")
G2_HB, G2_RG, G2_WR, G2_ACC = 12, 92, 112, 176
HPW = -1; CLATE = "xlate" in FLAGS; HTK = -1; FF = False; FFN = 2; HPN = 5
for f_ in FLAGS:
    if f_.startswith("ff"): FF = True; FFN = int(f_[2:])
    if f_.startswith("hpn"): HPN = int(f_[3:])
CWP = False; CWI = 1; CHT = -1; HALL = "hall" in FLAGS
CW4 = False
for f_ in FLAGS:
    if f_.startswith("cw4"):
        CW4 = True
        a_, b_ = f_[3:].split("_")
        CW4W = [[k for k, c in enumerate(a_) if int(c) == it] for it in range(8)]
        CW4H = [[k for k, c in enumerate(b_) if int(c) == it] for it in range(8)]
for f_ in FLAGS:
    if f_.startswith("cht"): CHT = int(f_[3:])
WNT = " nt" if "wnt" in FLAGS else ""
for f_ in FLAGS:
    if f_.startswith("cwp"): CWP = True; CWI = int(f_[3:])
for f_ in FLAGS:
    if f_.startswith("hpw"): HPW = int(f_[3:])
    if f_.startswith("htk"): HTK = int(f_[3:])
def g2_head(path):
    if "hdst" in FLAGS:
        nst[0] = 1; stamp()
    I("s_load_dwordx2 s[36:37], s[0:1], 0")
    I("s_load_dwordx2 s[38:39], s[0:1], 80")
    I("v_and_b32 v3, 63, v0")
    I("v_lshlrev_b32 v1, 4, v3")
    I(f"v_lshlrev_b32 v7, {7 if path == 'cons' else 10}, v3")
    I("v_lshlrev_b32 v3, 2, v3")
    I(f"v_mov_b32 v6, {LMB}")
    I("v_mov_b32 v5, 1")
    I("s_cmp_ge_u32 s3, 6")
    I("s_cselect_b32 s15, 0x40000000, 0")
    def yflag(n):
        I(f"s_waitcnt vmcnt({n})")
        if "hdst" in FLAGS: stamp()
        I("s_mov_b64 exec, 1")
        I("ds_add_rtn_u32 v4, v6, v5 offset:4")
        I("s_waitcnt lgkmcnt(0)")
        I("v_readfirstlane_b32 s12, v4")
        I("s_cmp_eq_u32 s12, 7")
        I("s_cselect_b32 exec_lo, -1, 0")
        I("buffer_store_dword v5, v7, s[44:47], s43 offen sc1")
        I("s_mov_b64 exec, -1")
    if path == "help" and HPW >= 0:
        I("v_add_u32 v2, s56, v1")
        I("s_waitcnt vmcnt(0)")
        for t in range(19):
            b, jd = divmod(t, 5)
            I(f"ds_write_b128 v2, v[{G2_ACC+4*t}:{G2_ACC+4*t+3}] offset:{jd*4096 + b*1024}")
    else:
        if FF and path == "cons":
            I("s_waitcnt vmcnt(0)")
            if "hdst" in FLAGS: stamp()
            I("s_mov_b64 exec, 0xff")
            I("buffer_store_dword v5, v7, s[44:47], s43 offen sc1")
            I("s_mov_b64 exec, -1")
        if FF and path == "conv": g2_wdma(1, yflag)
        elif HALL and path == "cons": pass
        elif path != "cons" or CLATE: g2_wdma(1)
        if HALL and path == "help":
            I("s_sub_u32 s12, s3, 4")
            I("s_mul_i32 s13, s12, 7168")
            I(f"s_mul_i32 s17, s54, {5*55296}")
            I("s_add_u32 s17, s17, s13")
            I("s_mul_i32 s18, s12, 20480")
            for jd in range(5):
                I(f"s_add_u32 m0, s18, {jd*4096}")
                I(f"s_add_u32 s58, s17, {jd*55296}")
                for b in range(4 if jd < 4 else 3):
                    I(f"buffer_load_dwordx4 v1, s[48:51], s58 offen offset:{1024*b} lds")
            I("v_lshrrev_b32 v8, 5, v3")
            I("v_mul_u32_u24 v8, 55296, v8")
            I("v_bfe_u32 v9, v3, 2, 3")
            I("v_lshl_add_u32 v8, v9, 7, v8")
            I("s_add_u32 s17, s17, 3072")
            I("s_mov_b32 exec_hi, 0xff")
            for i in range(4):
                I(f"buffer_load_dword v{G2_ACC+i}, v8, s[48:51], s17 offen offset:{1024*i}")
            I("s_mov_b64 exec, -1")
        I(f"s_add_u32 s12, s52, {4*55296}")
        I(f"buffer_load_dwordx4 v[{G2_WR}:{G2_WR+3}], v1, s[48:51], s12 offen offset:3072")
        for jd in range(5):
            I(f"s_add_u32 s12, s52, {jd*55296 + 4096}")
            I("s_add_u32 s13, s12, s15")
            for b in range(3):
                r = G2_WR + 4 + (b*5 + jd)*4
                I(f"buffer_load_dwordx4 v[{r}:{r+3}], v1, s[48:51], s{13 if b == 2 else 12} offen offset:{1024*b}")
    if path == "cons" and not FF:
        I(f"s_waitcnt vmcnt({35 if CLATE else 16})")
        I("s_mov_b64 exec, 0xff")
        I("buffer_store_dword v5, v7, s[44:47], s43 offen sc1")
        I("s_mov_b64 exec, -1")
    if path == "conv" and not FF: yflag(35)
    if HALL and path == "help": I("s_waitcnt vmcnt(0)")
    if HALL and path != "conv": I("s_barrier")
    if "hdst" in FLAGS:
        while STAMP and nst[0] < 3: stamp()
        stamp()
        I("s_waitcnt vmcnt(0)")
        stamp()
    while STAMP and nst[0] < 9: stamp()
    if "g2st" in FLAGS: nst[0] = 1
    stamp()
    G2ST[0] = nst[0]; nst[0] = 1 if path == "help" else 0
    if path != "conv": I("s_branch G2M")

def gen_g2():
    HB, RG, WR, ACC = G2_HB, G2_RG, G2_WR, G2_ACC
    e("G2M:")
    nst[0] = G2ST[0]
    I("s_lshl_b32 s14, s55, 3")
    I("s_add_u32 s14, s14, s54")
    I("s_lshl_b32 s14, s14, 7")
    masks = []
    for w in range(8):
        fb0 = 7*w - (1 if w == 7 else 0); n = 6 if w >= 6 else 7
        m = 0
        for f in range(32*fb0, 32*(fb0+n)):
            m |= 1 << (f//80 if f < 1600 else 20 + (f-1568)//80)
        masks.append(m)
    I(f"s_mov_b32 s16, {masks[0]:#x}")
    for w in range(1, 8):
        I(f"s_cmp_eq_u32 s3, {w}")
        I(f"s_cselect_b32 s16, {masks[w]:#x}, s16")
    I("s_cmp_eq_u32 s3, s57")
    I("s_cselect_b32 s16, 0x3fffff, s16")
    srd(8, 6, SZ_H, WS_H)
    I("v_add_u32 v2, s56, v1")
    if "xt" in FLAGS:
        I("s_waitcnt lgkmcnt(0)")
        srd(20, 36, SZ_SD)
        I("s_lshl_b32 s12, s55, 6")
        I("s_lshl_b32 s13, s3, 3")
        I("s_add_u32 s12, s12, s13")
        I("v_bfe_u32 v8, v0, 1, 3")
        I("v_add_u32 v8, s12, v8")
        I("v_mul_u32_u24 v8, 0x500, v8")
        I("v_and_b32 v9, 1, v0")
        I("v_mul_u32_u24 v9, 156, v9")
        I("v_add_u32 v8, v8, v9")
        I("s_mul_i32 s12, s54, 160")
        I("s_mov_b64 exec, 0xffff")
        I(f"buffer_load_dword v{HB}, v8, s[20:23], s12 offen")
        I("s_mov_b64 exec, -1")
    g2_wait("G2H", "s16")
    stamp()
    for js in range(4):
        I(f"s_add_u32 s{16+js}, s53, {js*55296}")
        I(f"s_add_u32 s{40+js}, s53, {js*55296 + 4096}")
    vq = []
    def vwait(tag):
        idxs = [i for i, t in enumerate(vq) if t == tag]
        if not idxs: return
        idx = max(idxs); n = len(vq) - 1 - idx
        I(f"s_waitcnt vmcnt({n})")
        del vq[:idx+1]
    def hld(b):
        for js in range(4):
            r = HB + (b % 5)*16 + js*4
            I(f"buffer_load_dwordx4 v[{r}:{r+3}], v1, s[8:11], s{(16 if b < 4 else 40)+js} offen offset:{1024*(b % 4)}")
            vq.append(("h", b))
    for b in range(5): hld(b)
    I("s_waitcnt vmcnt(20) lgkmcnt(0)")
    q = DSQ()
    NR = 5
    def wrd(t):
        b, jd = divmod(t, 5)
        r = RG + (t % NR)*4
        I(f"ds_read_b128 v[{r}:{r+3}], v2 offset:{jd*4096 + b*1024}")
        q.push(("w", t))
    for t in range(NR-1): wrd(t)
    srd(20, 36, SZ_SD)
    srd(24, 6, S*8, WS_ST)
    srd(28, 6, SZ_SD, WS_YT)
    srd(32, 38, SZ_SD)
    I("s_lshr_b32 s36, s3, 1")
    I("s_and_b32 s37, s3, 1")
    I("s_mov_b32 s13, 0xfc000000")
    I("s_cmp_eq_u32 s37, 0")
    I("s_cselect_b32 s13, 0x0fc00000, s13")
    I("s_cmp_eq_u32 s3, s57")
    I("s_cselect_b32 s13, 0xffc00000, s13")
    I("s_lshl_b32 s37, s37, 5")
    I("s_mul_i32 s38, s54, 80")
    I("s_add_u32 s38, s38, s37")
    I("s_lshl_b32 s39, s55, 6")
    I("v_and_b32 v7, 15, v0")
    I("v_bfe_u32 v8, v0, 4, 2")
    I("s_lshl_b32 s12, s36, 4")
    I("s_add_u32 s12, s12, s39")
    I("v_add_u32 v9, s12, v7")
    I("v_lshlrev_b32 v10, 3, v9")
    I("v_mul_u32_u24 v9, 0x500, v9")
    I("v_lshl_add_u32 v9, v8, 3, v9")
    I("s_lshl_b32 s12, s38, 1")
    I("v_add_u32 v9, s12, v9")
    I("s_lshr_b32 s12, s36, 1")
    I("s_lshl_b32 s12, s12, 5")
    I("s_add_u32 s12, s12, s39")
    I("s_lshl_b32 s12, s12, 1")
    I("v_add_u32 v11, s38, v7")
    I("v_lshlrev_b32 v11, 12, v11")
    I("v_lshl_add_u32 v11, v8, 4, v11")
    I("v_add_u32 v11, s12, v11")
    def acc(jd, js): return ACC + (js*5 + jd)*4
    XX = HB + 32; YF = HB + 48; TQ = HB + 64
    for b in range(7):
        if b == 6:
            I("s_cmp_ge_u32 s3, 6")
            I("s_cbranch_scc1 G2_skip6")
        vwait(("h", b))
        if "g2st" in FLAGS and b < 6: stamp()
        if b == 6:
            I("s_cmp_eq_u32 s3, s57")
            I("s_cbranch_scc0 G2_np")
            g2_gpoll()
            e("G2_np:")
        for jd in range(5):
            t = b*5 + jd
            if t < 19:
                q.wait_for(("w", t)); a = RG + (t % NR)*4
            else: a = WR + (t - 19)*4
            for js in range(4):
                c = acc(jd, js); bb = HB + (b % 5)*16 + js*4
                cc = "0" if b == 0 else f"v[{c}:{c+3}]"
                I(f"v_mfma_f32_16x16x32_bf16 v[{c}:{c+3}], v[{a}:{a+3}], v[{bb}:{bb+3}], {cc}")
                if js == 0 and t + NR - 1 < 19: wrd(t + NR - 1)
        if b == 0: hld(5)
        if b == 1:
            for js in range(4): I(f"s_add_u32 s{40+js}, s{40+js}, s15")
            hld(6)
        if b == 2:
            I(f"buffer_load_dwordx2 v[{XX+6}:{XX+7}], v10, s[24:27], 0 offen"); vq.append(("x", 0))
            for j in range(3):
                I(f"buffer_load_dwordx2 v[{XX+2*j}:{XX+2*j+1}], v9, s[20:23], 0 offen offset:{32*j}"); vq.append(("x", 0))
    e("G2_skip6:")
    stamp()
    I("s_cmp_eq_u32 s3, 7")
    I("s_cselect_b32 s40, 0, -1")
    I("s_mov_b32 s41, s40")
    I("s_nop 7")
    for js in range(4):
        for jd in range(5):
            c = acc(jd, js)
            if (js, jd) == (3, 4): I("s_mov_b64 exec, s[40:41]")
            I(f"ds_write_b128 v2, v[{c}:{c+3}] offset:{(js*5+jd)*1024}")
    I("s_mov_b64 exec, -1")
    def yld():
        for j in range(3):
            I(f"s_mov_b32 s12, {j*65536}")
            I(f"buffer_load_dwordx4 v[{YF+4*j}:{YF+4*j+3}], v11, s[28:31], s12 offen")
    I("s_waitcnt vmcnt(0)")
    I("s_cmp_eq_u32 s3, s57")
    I("s_cbranch_scc0 G2_yl")
    g2_publish()
    I("s_branch G2_yc")
    e("G2_yl:")
    g2_lread()
    e("G2_yc:")
    I("s_and_b32 s58, s58, s13")
    I("s_cmp_eq_u32 s58, s13")
    I("s_cselect_b32 s42, 1, 0")
    I("s_cbranch_scc0 G2_noy")
    yld()
    e("G2_noy:")
    IDB = RG
    I("s_and_b32 s12, s36, 1")
    I("s_lshl_b32 s12, s12, 4")
    I(f"v_add_u32 v{TQ}, s12, v7")
    I(f"v_lshrrev_b32 v{TQ+1}, 3, v{TQ}")
    I(f"v_cmp_eq_u32 vcc, v{TQ+1}, v8")
    I(f"v_and_b32 v{TQ+1}, 7, v{TQ}")
    I(f"v_and_b32 v{TQ+2}, 1, v{TQ+1}")
    I(f"v_lshlrev_b32 v{TQ+2}, 4, v{TQ+2}")
    I(f"v_mov_b32 v{TQ+3}, 0x3f80")
    I(f"v_lshlrev_b32 v{TQ+3}, v{TQ+2}, v{TQ+3}")
    I(f"v_lshrrev_b32 v{TQ+1}, 1, v{TQ+1}")
    I(f"v_cndmask_b32 v{TQ+3}, 0, v{TQ+3}, vcc")
    for j in range(4):
        I(f"v_cmp_eq_u32 vcc, {j}, v{TQ+1}")
        I("s_nop 1")
        I(f"v_cndmask_b32 v{IDB+j}, 0, v{TQ+3}, vcc")
    XN = RG + 4
    for j in range(3):
        t = XN + 4*j; x0 = XX + 2*j
        lo16(t, x0); hi16(t+1, x0); lo16(t+2, x0+1); hi16(t+3, x0+1)
        for r in range(4): I(f"v_add_f32 v{t+r}, v{t+r}, v{XX+7}")
        for r in range(4): I(f"v_cvt_pk_bf16_f32 v{t+r}, 0, v{t+r}")
        for r in range(4): I(f"v_mul_f32 v{t+r}, v{t+r}, v{XX+6}")
        for r in range(4): I(f"v_cvt_pk_bf16_f32 v{t+r}, 0, v{t+r}")
    I("s_mul_i32 s12, s36, 5120")
    I("s_lshl_b32 s37, s37, 6")
    I("s_add_u32 s12, s12, s37")
    I("v_add_u32 v5, s12, v1")
    I(f"v_add_u32 v10, {3*20480}, v5")
    I(f"v_add_u32 v2, {6*20480}, v5")
    I("s_waitcnt lgkmcnt(0)")
    I("s_barrier")
    stamp()
    R = WR
    for j in range(3):
        for src in range(8):
            r = R + (j*8 + src)*4
            if (j, src) == (2, 7):
                for i in range(4): I(f"v_mov_b32 v{r+i}, v{acc(4,3)+i}")
                I("s_mov_b64 exec, s[40:41]")
            I(f"ds_read_b128 v[{r}:{r+3}], v{(5, 10, 2)[src//3]} offset:{(src % 3)*20480 + j*1024}")
    I("s_mov_b64 exec, -1")
    for j in range(3):
        I(f"s_waitcnt lgkmcnt({(15, 7, 0)[j]})")
        r0 = R + j*32
        for st_ in (16, 8, 4):
            for o in range(0, st_, 2):
                I(f"v_pk_add_f32 v[{r0+o}:{r0+o+1}], v[{r0+o}:{r0+o+1}], v[{r0+st_+o}:{r0+st_+o+1}]")
        for r in range(4): I(f"v_cvt_pk_bf16_f32 v{r0+r}, 0, v{r0+r}")
    I("s_cmp_eq_u32 s42, 1")
    I("s_cbranch_scc1 G2_ydone")
    g2_wait("G2Y", "s13")
    yld()
    e("G2_ydone:")
    I("s_waitcnt vmcnt(0)")
    stamp()
    TY = HB
    for j in range(3):
        I(f"v_mfma_f32_16x16x32_bf16 v[{TY+4*j}:{TY+4*j+3}], v[{YF+4*j}:{YF+4*j+3}], v[{IDB}:{IDB+3}], 0")
    for j in range(3):
        t = TQ + 4*j; x0 = XX + 2*j
        lo16(t, x0); hi16(t+1, x0); lo16(t+2, x0+1); hi16(t+3, x0+1)
    I("s_nop 3")
    for j in range(3):
        t = TQ + 4*j; ty = TY + 4*j; xn = XN + 4*j; r0 = R + j*32
        for r in range(4): I(f"v_mul_f32 v{ty+r}, v{ty+r}, v{xn+r}")
        for r in range(4): I(f"v_cvt_pk_bf16_f32 v{ty+r}, 0, v{ty+r}")
        for r in range(4): I(f"v_add_f32 v{t+r}, v{t+r}, v{ty+r}")
        for r in range(4): I(f"v_cvt_pk_bf16_f32 v{t+r}, 0, v{t+r}")
        for r in range(4): I(f"v_add_f32 v{t+r}, v{t+r}, v{r0+r}")
        I(f"v_cvt_pk_bf16_f32 v{ty}, v{t}, v{t+1}")
        I(f"v_cvt_pk_bf16_f32 v{ty+1}, v{t+2}, v{t+3}")
        I(f"buffer_store_dwordx2 v[{ty}:{ty+1}], v9, s[32:35], 0 offen offset:{32*j}")
    if STAMP: I("s_waitcnt vmcnt(0)")
    stamp()
    stamp_dump(5)
    I("s_endpgm")
G2ST = [0]

def gen_g1b():
    NF = 10; RS = 320; MS = 32*RS; SL = 2*MS; NS = 6; NST = 20; NX = 4
    XB = NS*SL
    XS = 8192
    STB = XB + NX*XS
    CSB = STB + 1024
    I(f"s_mul_i32 s25, s25, {16*NF}")
    I(f"s_min_u32 s25, s25, {F-16*NF}")
    I("v_and_b32 v1, 63, v0")
    for f_ in FLAGS:
        if f_.startswith("gdel"): I(f"s_sleep {int(f_[4:])}")
    I("s_cmp_lt_u32 s3, 4")
    I("s_cbranch_scc1 G1_cons")
    I("s_and_b32 s26, s3, 3")
    I("s_lshl_b32 s27, s24, 7")
    I("s_lshl_b32 s28, s26, 5")
    I("s_add_u32 s27, s27, s28")
    I("v_lshrrev_b32 v12, 2, v1")
    I("v_bfe_u32 v11, v1, 3, 2")
    I("v_xor_b32 v11, v11, v1")
    I("v_and_b32 v11, 3, v11")
    I("v_add_u32 v13, s27, v12")
    I("v_lshlrev_b32 v7, 3, v13")
    I("v_mul_u32_u24 v13, 0x500, v13")
    I("v_lshl_add_u32 v13, v11, 4, v13")
    I(f"v_add_u32 v14, {16*1280-1024}, v13")
    I("s_lshl_b32 s30, s26, 11")
    I(f"s_add_u32 s30, s30, {XB}")
    I("v_lshl_add_u32 v6, v1, 4, s30")
    I("s_lshl_b32 s28, s26, 8")
    I(f"s_add_u32 s28, s28, {STB}")
    I("v_lshl_add_u32 v5, v12, 3, s28")
    I("s_lshl_b32 s27, s25, 1")
    I("s_and_b32 s28, s26, 1")
    I("s_mul_i32 s28, s28, 320")
    for i in range(5):
        I(f"v_add_u32 v20, s28, v1")
        if i: I(f"v_add_u32 v20, {64*i}, v20")
        I("v_mul_u32_u24 v21, 3277, v20")
        I("v_lshrrev_b32 v21, 16, v21")
        I("v_mul_u32_u24 v22, 20, v21")
        I("v_sub_u32 v22, v20, v22")
        I("v_bfe_u32 v23, v21, 3, 1")
        I("v_lshlrev_b32 v23, 1, v23")
        I("v_xor_b32 v22, v22, v23")
        I("v_mul_u32_u24 v21, 3456, v21")
        I("v_lshl_add_u32 v21, v22, 4, v21")
        I("v_add_u32 v21, s27, v21")
        I(f"v_subrev_u32 v{24+i}, {1024*(i%4)}, v21")
    I("s_mul_i32 s29, s26, 5120")
    I("s_waitcnt lgkmcnt(0)")
    HST = "zst" in FLAGS
    if HST: stamp()
    I("s_cmp_ge_u32 s26, 2")
    I("s_cselect_b32 s4, s18, s16")
    I("s_cselect_b32 s5, s19, s17")
    srd(8, 4, SZ_W)
    srd(12, 44, SZ_SD)
    vq = []
    def vwait(pred):
        idxs = [i for i, t in enumerate(vq) if pred(t)]
        if not idxs: return
        idx = max(idxs)
        n = len(vq) - 1 - idx
        assert n <= 63
        I(f"s_waitcnt vmcnt({n})")
        del vq[:idx+1]
    ROT = "krot" in FLAGS or "krotq" in FLAGS
    if ROT:
        if "krotq" in FLAGS:
            I("s_lshr_b32 s51, s24, 2")
            I("s_mul_i32 s51, s51, 5")
        else:
            I("s_mul_i32 s51, s24, 5")
            I("s_lshr_b32 s51, s51, 2")
        I(f"s_mul_i32 s50, s51, {32*3456}")
        I("s_lshl_b32 s51, s51, 6")
    def wdma(st):
        ops = []
        for i in range(5):
            pre = []
            if i == 0 and not ROT: pre.append(f"s_mov_b32 s28, {st*32*3456}")
            if i == 0 and ROT: pre += ["s_mov_b32 s28, s50", f"s_add_u32 s50, s50, {32*3456}", f"s_cmp_eq_u32 s50, {640*3456}", "s_cselect_b32 s50, 0, s50"]
            if i % 4 == 0: pre.append(f"s_add_u32 m0, s29, {(st % NS)*SL + (i//4)*4096}")
            ops.append(pre + [(f"buffer_load_dwordx4 v{24+i}, s[8:11], s28 offen offset:{1024*(i%4)}{WNT} lds", ("W", st))])
        return ops
    def xdma(st):
        ops = []
        for i in range(2):
            pre = []
            if i == 0 and not ROT: pre += [f"s_movk_i32 s31, {st*64}", f"s_add_u32 m0, s30, {(st % NX)*XS}"]
            if i == 0 and ROT: pre += ["s_mov_b32 s31, s51", "s_add_u32 s51, s51, 64", "s_cmpk_eq_u32 s51, 1280", "s_cselect_b32 s51, 0, s51", f"s_add_u32 m0, s30, {(st % NX)*XS}"]
            ops.append(pre + [(f"buffer_load_dwordx4 v{13+i}, s[12:15], s31 offen offset:{1024*i} lds", ("X", st))])
        return ops
    def emit(group):
        for x in group:
            if isinstance(x, tuple): I(x[0]); vq.append(x[1])
            else: I(x)
    P0 = NS
    for f_ in FLAGS:
        if f_.startswith("p0_"): P0 = int(f_[3:])
    nxt = {"W": 0, "X": 0}
    HS = 0
    for f_ in FLAGS:
        if f_.startswith("hs"): HS = int(f_[2:])
    P1 = NS
    for f_ in FLAGS:
        if f_.startswith("p1_"): P1 = int(f_[3:])
    for st in range(P1 if HS else P0):
        if HS and st == P0: I(f"s_sleep {HS}")
        if st < NX:
            for g_ in xdma(st): emit(g_)
            nxt["X"] = st + 1
        for g_ in wdma(st): emit(g_)
        nxt["W"] = st + 1
        if HST and st in (0, 1) and "zk2" not in FLAGS: stamp()
    if HST and "zk2" not in FLAGS: stamp()
    srd(20, 6, S*8, WS_ST)
    I("s_load_dwordx2 s[4:5], s[0:1], 72")
    I("s_min_u32 s48, s46, 269")
    I("s_mul_i32 s17, s48, 0xCCCD")
    I("s_lshr_b32 s17, s17, 19")
    I("s_mul_i32 s18, s17, 10")
    I("s_sub_u32 s18, s48, s18")
    I("v_and_b32 v23, 7, v0")
    I("v_bfe_u32 v17, v0, 3, 2")
    I("v_bfe_u32 v18, v0, 5, 1")
    I("s_lshl_b32 s18, s18, 6")
    I("v_lshl_add_u32 v23, v23, 3, s18")
    I("s_lshl_b32 s19, s17, 1")
    I("v_add_u32 v18, s19, v18")
    I("v_lshlrev_b32 v19, 5, v18")
    I("v_lshl_add_u32 v19, v17, 2, v19")
    I("v_mul_u32_u24 v20, 0x500, v19")
    I("v_lshl_add_u32 v20, v23, 1, v20")
    I("v_add_u32 v21, 0x5000, v20")
    I("s_mov_b32 s36, 0x05040100")
    I("s_mov_b32 s37, 0x07060302")
    I("v_lshrrev_b32 v22, 4, v23")
    I("v_mul_u32_u24 v22, 54, v22")
    I("v_add_u32 v22, v22, v18")
    I("v_lshlrev_b32 v22, 10, v22")
    I("v_lshl_add_u32 v22, v17, 8, v22")
    I("v_and_b32 v19, 15, v23")
    I("v_lshl_add_u32 v22, v19, 4, v22")
    I("s_cmp_lt_u32 s46, 270")
    I(f"s_cselect_b32 s49, {SZ_W}, 0")
    I("s_waitcnt lgkmcnt(0)")
    srd(40, 4, SZ_W)
    srd(32, 6, SZ_W, WS_WDT)
    I("s_mov_b32 s42, s49")
    I("s_mov_b32 s34, s49")
    if G2F:
        g2_setup(4)
        I(f"v_mov_b32 v140, {LMB}")
        I("v_mov_b32 v142, 0")
        I("v_mov_b32 v143, 0")
        I("ds_write_b64 v140, v[142:143]")
        I("v_lshlrev_b32 v100, 4, v1")
        I("s_cmp_ge_u32 s3, 6")
        I("s_cselect_b32 s39, 0x40000000, 0")
        I("s_bfe_u32 s38, s2, 0x20005")
        I("s_mul_i32 s38, s38, 280")
        I("s_mul_i32 s58, s26, 70")
        I("s_add_u32 s38, s38, s58")
        for i in range(2):
            I(f"v_add_u32 v101, s38, v1")
            if i: I("v_add_u32 v101, 6, v101")
            I("v_mul_u32_u24 v102, 4682, v101")
            I("v_lshrrev_b32 v102, 20, v102")
            I("v_mul_u32_u24 v103, 224, v102")
            I("v_sub_u32 v101, v101, v103")
            I("v_lshlrev_b32 v101, 7, v101")
            I("v_mul_u32_u24 v102, 55296, v102")
            I(f"v_add_u32 v{104+i}, v101, v102")
        I(f"s_mul_i32 s38, s54, {5*55296}")
    XA = 32; TT = 40; SM = 48; SQ = 50; STA = 52; RAW = 64
    for j in range(4): I(f"v_mov_b32 v{SM+j}, 0")
    WLK = 6; WPK = 10
    for f_ in FLAGS:
        if f_.startswith("wlk"): WLK = int(f_[3:])
        if f_.startswith("wpk"): WPK = int(f_[3:])
    if G2F: WLK = WPK = 99
    def statops():
        ops = []
        for rg in range(2):
            for c in range(4):
                r = XA + 4*rg + c; t = TT + 2*(c & 1)
                ops += [f"v_lshlrev_b32 v{t}, 16, v{r}", f"v_and_b32 v{t+1}, 0xffff0000, v{r}",
                        f"v_add_f32 v{SM+rg}, v{SM+rg}, v{t}", f"v_fmac_f32 v{SQ+rg}, v{t}, v{t}",
                        f"v_add_f32 v{SM+rg}, v{SM+rg}, v{t+1}", f"v_fmac_f32 v{SQ+rg}, v{t+1}, v{t+1}"]
        return ops
    for k in range(NST + 1):
        dm = []
        if k >= 1:
            for _ in range(2):
                if nxt["X"] <= min(NST-1, max(NX-1, k+2)): dm += xdma(nxt["X"]); nxt["X"] += 1
                if nxt["W"] <= min(NST-1, max(NS-1, k+3)): dm += wdma(nxt["W"]); nxt["W"] += 1
        if k == WLK:
            for i in range(8):
                b = 20 if i < 4 else 21
                dm.append([(f"buffer_load_dwordx4 v[{RAW+4*i}:{RAW+3+4*i}], v{b}, s[40:43], 0 offen offset:{(i%4)*1280}", ("T", 0))])
        if G2F and HPW >= 0 and HPW <= k:
            for t in range((k - HPW)*HPN, min(35, (k - HPW + 1)*HPN if k < NST else 35)):
                b, jd = divmod(t, 5)
                r = G2_ACC + 4*t if t < 19 else G2_WR + 4*(t - 19)
                pre = [f"s_add_u32 s58, s52, {jd*55296 + (b//4)*4096}"]
                if b == 6: pre.append("s_add_u32 s58, s58, s39")
                dm.append(pre + [(f"buffer_load_dwordx4 v[{r}:{r+3}], v100, s[48:51], s58 offen offset:{1024*(b % 4)}", ("G", 0))])
        if G2F and k == HTK:
            for i in range(2):
                dm.append([(f"buffer_load_dword v{101+i}, v{104+i}, s[48:51], s38 offen", ("G", 0))])
        va = []
        if k >= 1:
            for rg in range(2):
                I(f"ds_read_b128 v[{XA+4*rg}:{XA+4*rg+3}], v6 offset:{((k-1) % NX)*XS + 1024*rg}")
            va = statops() if "nostat" not in FLAGS else []
        if WPK <= k < WPK + 4:
            for dd in range(2*(k-WPK), 2*(k-WPK)+2):
                ob = RAW + 32 + 4*dd
                sel = 36 + (dd & 1)
                for q in range(4):
                    va.append(f"v_perm_b32 v{ob+q}, v{RAW+4*(2*q+1)+dd//2}, v{RAW+4*(2*q)+dd//2}, s{sel}")
                va.append((f"buffer_store_dwordx4 v[{ob}:{ob+3}], v22, s[32:35], 0 offen offset:{16*dd}{SCW}", ("S", 0)))
        nfirst = min(2, len(dm))
        for g_ in dm[:nfirst]: emit(g_)
        rest = dm[nfirst:]
        if k == WPK: vwait(lambda t: t[0] == "T")
        if va: I("s_waitcnt lgkmcnt(0)")
        step = max(1, len(va) // (len(rest) + 1)) if rest else 0
        ri = 0
        for i, o in enumerate(va):
            emit([o])
            if rest and ri < len(rest) and (i + 1) % step == 0:
                emit(rest[ri]); ri += 1
        for g_ in rest[ri:]: emit(g_)
        if k < NST:
            ZK = (0, 1, 2) if "zk2" not in FLAGS else (3, 4, 5)
            for f_ in FLAGS:
                if f_.startswith("zkk"): ZK = tuple(int(x) for x in f_[3:].split("_"))
            if HST and k in ZK: stamp()
            vwait(lambda t: t in (("W", k), ("X", k)))
            if HST and k in ZK: stamp()
            I("s_barrier")
            if HST and k in ZK and "zk2" in FLAGS: stamp()
    V4 = [SM, SM+1, SQ, SQ+1]
    I("s_nop 1")
    for dpp in ("quad_perm:[1,0,3,2]", "quad_perm:[2,3,0,1]"):
        for i, a in enumerate(V4): I(f"v_add_f32_dpp v{TT+i}, v{a}, v{a} {dpp} row_mask:0xf bank_mask:0xf")
        for i, a in enumerate(V4): I(f"v_mov_b32 v{a}, v{TT+i}")
    R2 = range(2)
    for a in V4: I(f"v_mul_f32 v{a}, {1.0/640.0!r}, v{a}")
    for rg in R2: I(f"v_fma_f32 v{SQ+rg}, -v{SM+rg}, v{SM+rg}, v{SQ+rg}")
    for rg in R2:
        I(f"v_cvt_pk_bf16_f32 v{STA+2*rg+1}, 0, -v{SM+rg}")
        I(f"v_cvt_pk_bf16_f32 v{SQ+rg}, 0, v{SQ+rg}")
    for rg in R2: I(f"v_add_f32 v{SQ+rg}, {1e-5!r}, v{SQ+rg}")
    for rg in R2: I(f"v_cvt_pk_bf16_f32 v{SQ+rg}, 0, v{SQ+rg}")
    for rg in R2: I(f"v_sqrt_f32 v{SQ+rg}, v{SQ+rg}")
    I("s_nop 0")
    for rg in R2: I(f"v_cvt_pk_bf16_f32 v{SQ+rg}, 0, v{SQ+rg}")
    for rg in R2: I(f"v_rcp_f32 v{STA+2*rg}, v{SQ+rg}")
    I("s_nop 0")
    for rg in R2: I(f"ds_write_b64 v5, v[{STA+2*rg}:{STA+2*rg+1}] offset:{128*rg}")
    I("s_waitcnt lgkmcnt(0)")
    I("s_barrier")
    if G2F:
        I("s_barrier")
        g2_head("help")
    else:
        for rg in R2: I(f"buffer_store_dwordx2 v[{STA+2*rg}:{STA+2*rg+1}], v7, s[20:23], 0 offen offset:{128*rg}")
        if "cw2" in FLAGS:
            I("s_lshr_b32 s50, s2, 3")
            I("s_cmp_lg_u32 s3, 7")
            I("s_cbranch_scc1 G1_nocw")
            I("s_cmp_ge_u32 s50, 2")
            I("s_cbranch_scc1 G1_nocw")
            I("s_getpc_b64 s[52:53]")
            e("M_pc2:")
            I("s_add_u32 s52, s52, fin_kernel-M_pc2")
            I("s_addc_u32 s53, s53, 0")
            I("s_lshl_b32 s50, s50, 6")
            I("v_add_u32 v2, s50, v1")
            I("v_lshlrev_b32 v2, 7, v2")
            I("v_min_u32 v2, CODE_END-fin_kernel-4, v2")
            I("global_load_dword v253, v2, s[52:53]")
            e("G1_nocw:")
        if HST:
            stamp_dump(5); nst[0] = 1
        I("s_endpgm")
    e("G1_cons:")
    I("s_and_b32 s31, s3, 1")
    I("s_lshr_b32 s33, s3, 1")
    I("s_lshl_b32 s27, s24, 3")
    I("s_lshl_b32 s26, s31, 2")
    I("s_add_u32 s26, s26, s27")
    I("s_mul_i32 s27, s26, 55296")
    I("v_lshl_add_u32 v9, v1, 4, s27")
    I("v_bfe_u32 v17, v0, 4, 2")
    I("v_and_b32 v18, 15, v0")
    I("v_bfe_u32 v19, v0, 1, 2")
    I("v_xor_b32 v19, v19, v17")
    I("v_lshlrev_b32 v6, 6, v18")
    I("v_lshl_add_u32 v6, v19, 4, v6")
    I("s_lshl_b32 s30, s31, 12")
    I(f"s_add_u32 s30, s30, {XB}")
    I("v_add_u32 v6, s30, v6")
    I("s_lshl_b32 s30, s31, 9")
    I(f"s_add_u32 s30, s30, {STB}")
    I("v_lshl_add_u32 v7, v18, 3, s30")
    I("s_mul_i32 s30, s3, 320")
    I(f"s_add_u32 s30, s30, {CSB}")
    I("v_lshl_add_u32 v8, v17, 4, s30")
    I("s_xor_b32 s30, s3, 1")
    I("s_mul_i32 s30, s30, 320")
    I(f"s_add_u32 s30, s30, {CSB}")
    I("v_lshl_add_u32 v10, v17, 4, s30")
    I("v_bfe_u32 v18, v0, 2, 2")
    I("v_lshl_add_u32 v19, v17, 3, v18")
    I(f"v_mul_u32_u24 v19, {RS}, v19")
    I("v_and_b32 v18, 3, v0")
    I("v_lshl_add_u32 v19, v18, 3, v19")
    I("s_mul_i32 s27, s33, 160")
    I("v_add_u32 v19, s27, v19")
    I("v_and_b32 v18, 1, v17")
    I("v_lshlrev_b32 v18, 5, v18")
    I("s_lshl_b32 s27, s33, 1")
    I("s_sub_u32 s27, 1, s27")
    I("v_mul_lo_u32 v18, v18, s27")
    I(f"s_mul_i32 s27, s31, {MS}")
    I(f"s_sub_u32 s28, {MS}, s27")
    I("v_add_u32 v2, v19, v18")
    I("v_sub_u32 v3, v19, v18")
    for mm in range(2):
        for rg in range(2):
            for par in range(2):
                d = 11 + 4*mm + 2*rg + par
                I(f"v_add_u32 v{d}, s{27+mm}, v{2+par}")
                if rg: I(f"v_add_u32 v{d}, {3*SL}, v{d}")
    BB = 20; AF = 52; ONE = 68; CS = 72; ACC = 92; LA = 2
    for f_ in FLAGS:
        if f_.startswith("la"): LA = int(f_[2:])
    for j in range(4): I(f"v_mov_b32 v{ONE+j}, 0x3f803f80")
    I("s_waitcnt lgkmcnt(0)")
    srd(20, 6, SZ_H, WS_H)
    PFD = 0
    for f_ in FLAGS:
        if f_.startswith("pfd"): PFD = int(f_[3:])
    PFW = [None]
    if PFD:
        I("s_cmp_eq_u32 s3, 1")
        I("s_cselect_b32 s8, s18, s16")
        I("s_cselect_b32 s9, s19, s17")
        I("s_cmp_eq_u32 s3, 2")
        I("s_cselect_b32 s8, s44, s8")
        I("s_cselect_b32 s9, s45, s9")
        I(f"s_mov_b32 s10, {SZ_W}")
        I(f"s_cselect_b32 s10, {SZ_SD}, s10")
        I("s_mov_b32 s11, 0x00020000")
        I("s_cselect_b32 s12, 24, 20")
        I(f"s_mov_b32 s13, {128*3456}")
        I(f"s_cselect_b32 s13, 256, s13")
        I("s_cmp_eq_u32 s3, 3")
        I("s_cselect_b32 s12, 0, s12")
        I("s_mul_i32 s14, s47, s12")
        I("v_add_u32 v4, s14, v1")
        I("v_lshlrev_b32 v5, 7, v4")
        I("v_lshrrev_b32 v19, 1, v4")
        I("v_mul_u32_u24 v19, 0x500, v19")
        I("v_and_b32 v4, 1, v4")
        I("v_lshl_add_u32 v4, v4, 7, v19")
        I("v_min_u32 v5, 442240, v5")
        I("s_cmp_eq_u32 s3, 2")
        I("s_cselect_b64 vcc, -1, 0")
        I("v_cndmask_b32 v4, v5, v4, vcc")
        I("v_cmp_gt_u32 s[14:15], s12, v1")
        I("s_mov_b32 s16, 0")
        if "pfs0" in FLAGS: I("s_mov_b32 s16, s13")
        def pf():
            I("s_mov_b64 exec, s[14:15]")
            I("buffer_load_dword v19, v4, s[8:11], s16 offen")
            I("s_mov_b64 exec, -1")
            I("s_add_u32 s16, s16, s13")
        PFW[0] = pf
        PQ = [0]*5
        for f_ in FLAGS:
            if f_.startswith("pq"): PQ = [int(x) for x in f_[2:].split("_")]
        for g_ in range(1 if "pfs0" in FLAGS else 0, min(5, PFD)):
            if PQ[g_]: I(f"s_sleep {PQ[g_]}")
            pf()
    LPF = 0; LG0 = 3
    for f_ in FLAGS:
        if f_.startswith("lpf"): LPF = int(f_[3:])
        if f_.startswith("lg0"): LG0 = int(f_[3:])
    if LPF:
        assert PFD
        I("s_cmp_eq_u32 s41, 0")
        I("s_movk_i32 s36, 5462")
        I("s_cselect_b32 s36, 4370, s36")
        I("s_cselect_b32 s37, 15, 12")
        I("s_cselect_b32 s38, 0, 1920")
        I("s_cselect_b32 s39, 22, 26")
        I("s_mul_i32 s28, s40, 40")
        I("v_add_u32 v5, s28, v1")
        I("s_lshl_b32 s28, s37, 6")
        I("s_sub_u32 s28, s28, 1")
        I("v_min_u32 v5, s28, v5")
        I("v_mul_u32_u24 v20, s36, v5")
        I("v_lshrrev_b32 v20, 16, v20")
        I("v_mul_u32_u24 v21, s37, v20")
        I("v_sub_u32 v5, v5, v21")
        I("v_mul_u32_u24 v20, 3456, v20")
        I("v_lshl_add_u32 v5, v5, 7, v20")
        I("v_add_u32 v5, s38, v5")
        I("s_mul_i32 s28, s40, s39")
        I("v_add_u32 v20, s28, v1")
        I("v_min_u32 v20, 511, v20")
        I("s_lshl_b32 s28, s42, 9")
        I("v_add_u32 v20, s28, v20")
        I("v_mul_u32_u24 v20, 0x500, v20")
        I("s_cmp_eq_u32 s3, 2")
        I("s_cselect_b64 vcc, -1, 0")
        I("v_cndmask_b32 v5, v5, v20, vcc")
        I("s_cselect_b32 s28, s39, 40")
        I(f"s_mov_b32 s39, {64*3456}")
        I("s_cselect_b32 s39, 128, s39")
        I("s_cmp_eq_u32 s3, 3")
        I("s_cselect_b32 s28, 0, s28")
        I("v_cmp_gt_u32 s[36:37], s28, v1")
        I(f"s_mul_i32 s38, s39, {LG0}")
        def lpf():
            I("s_mov_b64 exec, s[36:37]")
            I("buffer_load_dword v19, v5, s[8:11], s38 offen")
            I("s_mov_b64 exec, -1")
            I("s_add_u32 s38, s38, s39")
        for g_ in range(LG0, LPF//2): lpf()
    WPF = -1
    for f_ in FLAGS:
        if f_.startswith("wpf"): WPF = int(f_[3:])
    if WPF >= 0:
        I("s_load_dwordx2 s[36:37], s[0:1], 72")
        I("s_and_b32 s38, s3, 1")
        I("s_mul_i32 s38, s38, 176")
        I("s_add_u32 s38, s38, s47")
        I("s_min_u32 s38, s38, 269")
        I("s_mul_i32 s39, s38, 0xCCCD")
        I("s_lshr_b32 s39, s39, 19")
        I("s_mul_i32 s40, s39, 10")
        I("s_sub_u32 s40, s38, s40")
        I("s_mul_i32 s41, s39, 81920")
        I("s_lshl_b32 s40, s40, 7")
        I("s_add_u32 s41, s41, s40")
        I("v_mul_u32_u24 v5, 0x500, v1")
        I("s_cmp_ge_u32 s3, 2")
        I(f"s_cselect_b32 s38, {SZ_W}, 0")
        I("s_mov_b32 s39, 0x00020000")
        I("s_waitcnt lgkmcnt(0)")
    def acc(m, j, js): return ACC + ((m*5 + j)*4 + js)*4
    seq = [(m, j) for m in range(2) for j in range(5)]
    NQ = len(seq)
    dq = []
    def dwait(tags):
        idxs = [i for i, t in enumerate(dq) if t in tags]
        if not idxs: return
        idx = max(idxs); n = len(dq) - 1 - idx
        assert n <= 15
        I(f"s_waitcnt lgkmcnt({n})")
        del dq[:idx+1]
    def rdx(gpos):
        st, idx = divmod(gpos, NQ)
        m, j = seq[idx]
        slot = st % NS
        a = AF + (gpos % 4)*4
        va = 11 + 4*m + 2*(slot // 3) + (j & 1)
        off = (slot % 3)*SL + j*32
        return [f"ds_read_b64_tr_b16 v[{a}:{a+1}], v{va} offset:{off}",
                f"ds_read_b64_tr_b16 v[{a+2}:{a+3}], v{va} offset:{off+4*RS}"]
    def xrd(st, js):
        b = BB + (st & 1)*16 + js*4
        I(f"ds_read_b128 v[{b}:{b+3}], v6 offset:{(st % NX)*XS + js*1024}")
        dq.append(("X", st))
    stamp()
    I("s_barrier")
    stamp()
    for js in range(4): xrd(0, js)
    for i in range(LA):
        for x in rdx(i): I(x); dq.append(("A", i))
    for st in range(NST):
        if "cbs" in FLAGS and st in (3, 8, 13, 17): stamp()
        if st + 1 < NST: I("s_barrier")
        if "cbs" in FLAGS and st in (3, 8, 13, 17): stamp()
        if "stamp3" in FLAGS and st in (1, 5, 10) and "cbs" not in FLAGS: stamp()
        PFE = 4
        for f_ in FLAGS:
            if f_.startswith("pfe"): PFE = int(f_[3:])
        if PFD and st % PFE == 0 and st//PFE + PFD < (3 if ("cpf" in FLAGS or "cpf0" in FLAGS) else 5): PFW[0]()
        if st == WPF: I("buffer_load_dword v254, v5, s[36:39], s41 offen")
        if LPF and st % 2 == 0 and LG0 <= (st + LPF)//2 <= 9: lpf()
        for idx in range(NQ):
            gpos = st*NQ + idx
            rr = rdx(gpos + LA) if gpos + LA < NST*NQ else None
            dwait([("A", gpos), ("X", st)])
            m, j = seq[idx]
            a = AF + (gpos % 4)*4
            for js in range(4):
                c = acc(m, j, js); b = BB + (st & 1)*16 + js*4
                cc = "0" if st == 0 else f"v[{c}:{c+3}]"
                I(f"v_mfma_f32_16x16x32_bf16 v[{c}:{c+3}], v[{a}:{a+3}], v[{b}:{b+3}], {cc}")
                if rr and js < 2: I(rr[js]); dq.append(("A", gpos + LA))
                if js == 2 and st + 1 < NST and 1 <= idx <= 4: xrd(st + 1, idx - 1)
            if m == 0 and "nocs" not in FLAGS:
                c = CS + 4*j
                cc = "0" if st == 0 else f"v[{c}:{c+3}]"
                I(f"v_mfma_f32_16x16x32_bf16 v[{c}:{c+3}], v[{a}:{a+3}], v[{ONE}:{ONE+3}], {cc}")
    stamp()
    for j in range(5): I(f"ds_write_b128 v8, v[{CS+4*j}:{CS+4*j+3}] offset:{64*j}")
    I("s_lshr_b32 s34, s25, 5")
    I("s_lshl_b32 s34, s34, 10")
    if G2F:
        if XL: I("s_lshr_b32 s43, s40, 1")
        else:
            I("s_mul_i32 s43, s41, 6")
            I("s_lshr_b32 s42, s40, 2")
            I("s_add_u32 s43, s43, s42")
        I("s_lshl_b32 s43, s43, 1")
        I("s_add_u32 s43, s43, s33")
        I("s_lshl_b32 s43, s43, 2")
        I("s_lshl_b32 s42, s24, 1")
        I("s_add_u32 s42, s42, s31")
        I("s_lshl_b32 s42, s42, 10")
        I("s_add_u32 s43, s43, s42")
        g2_setup(4)
        srd(8, 6, S*8, WS_ST)
        I("v_lshlrev_b32 v5, 4, v1")
        I("s_lshl_b32 s42, s26, 7")
        I("v_lshl_add_u32 v4, v1, 3, s42")
        I("s_cmp_eq_u32 s33, 0")
        I("s_cselect_b32 s12, 0xffff, 0")
        I("s_mov_b32 s13, 0")
    I("s_waitcnt lgkmcnt(0)")
    I("s_barrier")
    CP2 = 20; STR = 40
    for js in range(4): I(f"ds_read_b64 v[{STR+2*js}:{STR+2*js+1}], v7 offset:{128*js}")
    for j in range(5): I(f"ds_read_b128 v[{CP2+4*j}:{CP2+4*j+3}], v10 offset:{64*j}")
    EP2 = "ep2" in FLAGS
    if EP2: I("s_waitcnt lgkmcnt(0)")
    if "est" in FLAGS: stamp()
    if G2F:
        assert EP2
        I("s_barrier")
        if not CLATE: g2_wdma(5)
        I("s_mov_b64 exec, s[12:13]")
        for js in range(4): I(f"buffer_store_dwordx2 v[{STR+2*js}:{STR+2*js+1}], v4, s[8:11], 0 offen offset:{128*js}{SCH}")
        I("s_mov_b64 exec, -1")
    for m in range(2 if not EP2 else 0):
        I(f"s_waitcnt lgkmcnt({5 if m == 0 else 0})")
        for j in range(5):
            cs = (CS if m == 0 else CP2) + 4*j
            for js in range(4):
                c = acc(m, j, js); sr = STR + 2*js
                for hh in range(2):
                    I(f"v_pk_fma_f32 v[{c+2*hh}:{c+2*hh+1}], v[{cs+2*hh}:{cs+2*hh+1}], v[{sr}:{sr+1}], v[{c+2*hh}:{c+2*hh+1}] op_sel:[0,1,0] op_sel_hi:[1,1,1]")
            for js in range(4):
                c = acc(m, j, js); sr = STR + 2*js
                for hh in range(2):
                    I(f"v_pk_mul_f32 v[{c+2*hh}:{c+2*hh+1}], v[{c+2*hh}:{c+2*hh+1}], v[{sr}:{sr+1}] op_sel:[0,0] op_sel_hi:[1,0]")
    cnt = [0]
    def hq(j, js, dst, t):
        g = acc(0, j, js); u = acc(1, j, js)
        if EP2:
            sr = STR + 2*js
            for (c, cs) in ((g, CS + 4*j), (u, CP2 + 4*j)):
                for hh in range(2):
                    I(f"v_pk_fma_f32 v[{c+2*hh}:{c+2*hh+1}], v[{cs+2*hh}:{cs+2*hh+1}], v[{sr}:{sr+1}], v[{c+2*hh}:{c+2*hh+1}] op_sel:[0,1,0] op_sel_hi:[1,1,1]")
            for c in (g, u):
                for hh in range(2):
                    I(f"v_pk_mul_f32 v[{c+2*hh}:{c+2*hh+1}], v[{c+2*hh}:{c+2*hh+1}], v[{sr}:{sr+1}] op_sel:[0,0] op_sel_hi:[1,0]")
            for c in (g, u):
                for r in range(4): I(f"v_cvt_pk_bf16_f32 v{c+r}, 0, v{c+r}")
            for hh in range(2):
                I(f"v_pk_mul_f32 v[{g+2*hh}:{g+2*hh+1}], v[{g+2*hh}:{g+2*hh+1}], v[{u+2*hh}:{u+2*hh+1}]")
            I(f"v_cvt_pk_bf16_f32 v{dst}, v{g}, v{g+1}")
            I(f"v_cvt_pk_bf16_f32 v{dst+1}, v{g+2}, v{g+3}")
            return
        I(f"v_cvt_pk_bf16_f32 v{t}, v{g}, v{g+1}")
        I(f"v_cvt_pk_bf16_f32 v{t+1}, v{g+2}, v{g+3}")
        I(f"v_cvt_pk_bf16_f32 v{t+2}, v{u}, v{u+1}")
        I(f"v_cvt_pk_bf16_f32 v{t+3}, v{u+2}, v{u+3}")
        lo16(g, t); hi16(g+1, t); lo16(g+2, t+1); hi16(g+3, t+1)
        lo16(u, t+2); hi16(u+1, t+2); lo16(u+2, t+3); hi16(u+3, t+3)
        for r in range(4):
            I(f"v_mul_f32 v{g+r}, v{g+r}, v{u+r}")
        I(f"v_cvt_pk_bf16_f32 v{dst}, v{g}, v{g+1}")
        I(f"v_cvt_pk_bf16_f32 v{dst+1}, v{g+2}, v{g+3}")
    def epi(fq):
        units = [((0, 1), 0, 0), ((2, 3), 1, 0), ((4,), 2, 0)] if fq == 0 else [((0,), 2, 8), ((1, 2), 3, 0), ((3, 4), 4, 0)]
        for js in range(4):
            I(f"s_add_u32 s35, s34, {js*55296}")
            I(f"s_add_u32 s36, s34, {js*55296 + 4096}")
            for (jl, blk, ho) in units:
                t = 24 + (cnt[0] % 4) * 12; cnt[0] += 1
                if EP2: t = 44 + (cnt[0] % 5) * 4
                for hh, j in enumerate(jl): hq(j, js, t+4+2*hh, t)
                so, off = ("s35", 1024*blk + ho) if blk < 4 else ("s36", ho)
                if len(jl) == 2:
                    I(f"buffer_store_dwordx4 v[{t+4}:{t+7}], v9, s[20:23], {so} offen offset:{off}{SCH}")
                else:
                    I(f"buffer_store_dwordx2 v[{t+4}:{t+5}], v9, s[20:23], {so} offen offset:{off}{SCH}")
    I("s_cmp_eq_u32 s33, 0")
    I("s_cbranch_scc0 G1_epi1")
    epi(0)
    I("s_branch G1_epid")
    e("G1_epi1:")
    epi(1)
    e("G1_epid:")
    if G2F:
        stamp()
        g2_head("cons")
        return
    if "est" in FLAGS:
        stamp()
        I("s_waitcnt vmcnt(9)")
        stamp()
        I("s_waitcnt vmcnt(3)")
        stamp()
    if STAMP: I("s_waitcnt vmcnt(0)")
    stamp()
    stamp_dump(5)
    wgt_end(1)
    I("s_endpgm")

def gen_g1f2():
    NF = 10; RS = 320; MS = 32*RS; SL = 2*MS; NS = 6; NST = 20; DWP = 5
    XB = NS*SL
    XP = 18432; XR = 144
    STL = XB + 2*XP
    CN = "nocn" not in FLAGS
    I(f"s_mul_i32 s25, s25, {16*NF}")
    I(f"s_min_u32 s25, s25, {F-16*NF}")
    I("v_and_b32 v1, 63, v0")
    I("s_and_b32 s26, s3, 3")
    I(f"s_mul_i32 s30, s26, {32*XR}")
    I(f"s_add_u32 s30, s30, {XB}")
    I("s_lshl_b32 s31, s26, 9")
    I(f"s_add_u32 s31, s31, {STL}")
    I("v_lshl_add_u32 v8, v1, 3, s31")
    I("s_lshl_b32 s27, s24, 3")
    I("s_lshl_b32 s26, s26, 1")
    I("s_add_u32 s26, s26, s27")
    I("s_mul_i32 s27, s26, 20480")
    I("v_lshrrev_b32 v12, 3, v1")
    I("v_and_b32 v11, 7, v1")
    I("v_mul_u32_u24 v13, 0x500, v12")
    I("v_lshl_add_u32 v13, v11, 4, v13")
    I("v_add_u32 v13, s27, v13")
    for rg in range(1, 4): I(f"v_add_u32 v{13+rg}, {rg*10240}, v13")
    I(f"v_mul_u32_u24 v5, {XR}, v12")
    I("v_lshl_add_u32 v5, v11, 4, v5")
    I("v_add_u32 v5, s30, v5")
    I("s_cmp_lt_u32 s3, 4")
    I("s_cbranch_scc1 G1_cons")
    RAW = 64
    def raw(rg, p): return RAW + (p*4 + rg)*4
    I("s_lshl_b32 s27, s26, 7")
    I("v_lshl_add_u32 v7, v12, 3, s27")
    I("s_waitcnt lgkmcnt(0)")
    srd(12, 44, SZ_SD)
    srd(20, 6, S*8, WS_ST)
    for p in range(10):
        for rg in range(4):
            r = raw(rg, p)
            I(f"buffer_load_dwordx4 v[{r}:{r+3}], v{13+rg}, s[12:15], 0 offen offset:{128*p}")
    SM = 24; SS = 32; TT = 40; STA = 48
    for j in range(16): I(f"v_mov_b32 v{SM+j}, 0")
    I("s_mov_b32 s49, 0x3f803f80")
    vq = [("Q", i) for i in range(40)]
    def vwait(pred):
        idxs = [i for i, t in enumerate(vq) if pred(t)]
        if not idxs: return
        idx = max(idxs)
        n = len(vq) - 1 - idx
        assert n <= 63
        I(f"s_waitcnt vmcnt({n})")
        del vq[:idx+1]
    def pdma(st):
        I(f"s_mov_b32 s28, {st*32*3456}")
        for i in range(5):
            if i % 4 == 0: I(f"s_add_u32 m0, s29, {(st % NS)*SL + (i//4)*4096}")
            I(f"buffer_load_dwordx4 v{224+i}, s[8:11], s28 offen offset:{1024*(i%4)} lds")
            vq.append(("D", st))
    I("s_lshl_b32 s27, s25, 1")
    I("s_and_b32 s28, s3, 1")
    I("s_lshl_b32 s28, s28, 4")
    for i in range(5):
        I(f"v_add_u32 v20, {64*i}, v1")
        I("v_mul_u32_u24 v21, 3277, v20")
        I("v_lshrrev_b32 v21, 16, v21")
        I("v_mul_u32_u24 v22, 20, v21")
        I("v_sub_u32 v22, v20, v22")
        I("v_add_u32 v21, s28, v21")
        I("v_bfe_u32 v23, v21, 3, 1")
        I("v_lshlrev_b32 v23, 1, v23")
        I("v_xor_b32 v22, v22, v23")
        I("v_mul_u32_u24 v21, 3456, v21")
        I("v_lshl_add_u32 v21, v22, 4, v21")
        I("v_add_u32 v21, s27, v21")
        I(f"v_subrev_u32 v{224+i}, {1024*(i%4)}, v21")
    I("s_sub_u32 s29, s3, 4")
    I("s_mul_i32 s29, s29, 5120")
    I("s_cmp_ge_u32 s3, 6")
    I("s_cselect_b32 s4, s18, s16")
    I("s_cselect_b32 s5, s19, s17")
    srd(8, 4, SZ_W)
    DSCH = {5: [0], 8: [1], 9: [2]}
    for f_ in FLAGS:
        if f_ == "dsch1": DSCH = {3: [0], 6: [1], 9: [2]}
        if f_ == "dsch2": DSCH = {7: [0], 9: [1, 2]}
        if f_ == "dsch3": DSCH = {-1: [0], 5: [1], 9: [2]}
    for st in DSCH.get(-1, []): pdma(st)
    for p in range(10):
        vwait(lambda t: t[0] == "Q" and t[1] <= 4*p + 3)
        for c in range(4):
            for rg in range(4):
                r = raw(rg, p) + c
                I(f"v_dot2_f32_bf16 v{SM+2*rg+(c&1)}, v{r}, s49, v{SM+2*rg+(c&1)}")
                I(f"v_dot2_f32_bf16 v{SS+2*rg+(c&1)}, v{r}, v{r}, v{SS+2*rg+(c&1)}")
        for st in DSCH.get(p, []): pdma(st)
    I("s_nop 3")
    V8 = [SM+2*rg for rg in range(4)] + [SS+2*rg for rg in range(4)]
    for a in V8: I(f"v_add_f32 v{a}, v{a}, v{a+1}")
    for i_, dpp in enumerate(("quad_perm:[1,0,3,2]", "quad_perm:[2,3,0,1]", "row_half_mirror")):
        sr, ds_ = (0, 1) if i_ % 2 == 0 else (1, 0)
        for a in V8: I(f"v_add_f32_dpp v{a+ds_}, v{a+sr}, v{a+sr} {dpp} row_mask:0xf bank_mask:0xf")
    R4 = range(4)
    for a in V8: I(f"v_mul_f32 v{a}, {1.0/640.0!r}, v{a+1}")
    for rg in R4: I(f"v_fma_f32 v{SS+2*rg}, -v{SM+2*rg}, v{SM+2*rg}, v{SS+2*rg}")
    for rg in R4:
        I(f"v_cvt_pk_bf16_f32 v{STA+2*rg+1}, 0, -v{SM+2*rg}")
        I(f"v_cvt_pk_bf16_f32 v{SS+2*rg}, 0, v{SS+2*rg}")
    for rg in R4: I(f"v_add_f32 v{SS+2*rg}, {1e-5!r}, v{SS+2*rg}")
    for rg in R4: I(f"v_cvt_pk_bf16_f32 v{SS+2*rg}, 0, v{SS+2*rg}")
    for rg in R4: I(f"v_sqrt_f32 v{SS+2*rg}, v{SS+2*rg}")
    I("s_nop 0")
    for rg in R4: I(f"v_cvt_pk_bf16_f32 v{SS+2*rg}, 0, v{SS+2*rg}")
    for rg in R4: I(f"v_rcp_f32 v{STA+2*rg}, v{SS+2*rg}")
    I("s_mov_b32 s50, 0x3f80")
    I("s_mov_b32 s51, 0x3f800000")
    if CN: I(f"ds_write_b64 v8, v[{STA+6}:{STA+7}]")
    def norm_ops(r, R_, M_, tt, wr, fast=False):
        o = []
        if fast:
            for c in range(4):
                o.append(f"v_dot2_f32_bf16 v{tt+2*c}, v{r+c}, s50, v{M_}")
                o.append(f"v_dot2_f32_bf16 v{tt+2*c+1}, v{r+c}, s51, v{M_}")
            for c in range(8): o.append(f"v_cvt_pk_bf16_f32 v{tt+c}, 0, v{tt+c}")
            for c in range(4): o.append(f"v_pk_mul_f32 v[{tt+2*c}:{tt+2*c+1}], v[{tt+2*c}:{tt+2*c+1}], v[{R_}:{R_+1}] op_sel_hi:[1,0]")
        else:
            for c in range(4):
                o.append(f"v_lshlrev_b32 v{tt+2*c}, 16, v{r+c}")
                o.append(f"v_and_b32 v{tt+2*c+1}, 0xffff0000, v{r+c}")
            for c in range(8): o.append(f"v_add_f32 v{tt+c}, v{tt+c}, v{M_}")
            for c in range(8): o.append(f"v_cvt_pk_bf16_f32 v{tt+c}, 0, v{tt+c}")
            for c in range(8): o.append(f"v_mul_f32 v{tt+c}, v{tt+c}, v{R_}")
        for c in range(4): o.append(f"v_cvt_pk_bf16_f32 v{r+c}, v{tt+2*c}, v{tt+2*c+1}")
        o.append(wr)
        return o
    def hnorm(p, rgs, fast=False):
        o = []
        for rg in rgs:
            r = raw(rg, p)
            o += norm_ops(r, STA + 2*rg, STA + 2*rg + 1, TT, f"ds_write_b128 v5, v[{r}:{r+3}] offset:{(p & 1)*XP + rg*8*XR}", fast)
        return o
    HST = "hst" in FLAGS
    hn = [0]
    def hstamp(k):
        if HST and k in (12, 13):
            I(f"s_memtime s[{60+2*hn[0]}:{61+2*hn[0]}]"); hn[0] += 1
    for k in range(NST):
        hstamp(k)
        if k == 0:
            for x in hnorm(0, (0, 1, 2, 3), fast=True): I(x)
            pdma(3); pdma(4)
        else:
            dl = []
            if k >= 2 and k - 2 + DWP < NST:
                st = k - 2 + DWP
                for i in range(5):
                    pre = [f"s_mov_b32 s28, {st*32*3456}"] if i == 0 else []
                    if i % 4 == 0: pre.append(f"s_add_u32 m0, s29, {(st % NS)*SL + (i//4)*4096}")
                    dl.append(pre + [f"buffer_load_dwordx4 v{224+i}, s[8:11], s28 offen offset:{1024*(i%4)} lds"])
                    vq.append(("D", st))
            hstamp(k)
            p = (k-1)//2 + 1
            o = []
            if p < 10:
                o = hnorm(p, (0, 1, 2) if (CN and p >= 2) else (0, 1, 2, 3))
                h = len(o)//2
                o = (o[:h] if (k-1) % 2 == 0 else o[h:])
            stepd = max(1, len(o)//5)
            for i_, x in enumerate(o):
                if i_ % stepd == 0 and dl:
                    for y in dl.pop(0): I(y)
                I(x)
            for d_ in dl:
                for y in d_: I(y)
        if k == 1:
            for rg in R4:
                I(f"buffer_store_dwordx2 v[{STA+2*rg}:{STA+2*rg+1}], v7, s[20:23], 0 offen offset:{64*rg}")
                vq.append(("S", rg))
        hstamp(k)
        vwait(lambda t: t == ("D", k))
        hstamp(k)
        I("s_waitcnt lgkmcnt(0)")
        hstamp(k)
        I("s_barrier")
    if HST:
        I("s_waitcnt lgkmcnt(0) vmcnt(0)")
        I("s_cmp_lg_u32 s2, 5")
        I("s_cbranch_scc1 HS_skip")
        I("s_cmp_lg_u32 s3, 4")
        I("s_cbranch_scc1 HS_skip")
        I("s_load_dwordx2 s[56:57], s[0:1], 88")
        I("s_waitcnt lgkmcnt(0)")
        I("s_mov_b32 s58, 256")
        I("s_mov_b32 s59, 0x00020000")
        I("v_mov_b32 v1, 0")
        for i in range(hn[0]):
            I(f"s_sub_u32 s{61+2*i}, s{60+2*i}, s60")
            I(f"v_mov_b32 v2, s{61+2*i}")
            I(f"buffer_store_dword v2, v1, s[56:59], 0 offen offset:{128+4*i}")
        I("s_waitcnt vmcnt(0)")
        e("HS_skip:")
    I("s_endpgm")
    e("G1_cons:")
    BB = 24; AF = 56; ACC = 80; LA = 2
    CR_ = 72; CT = 240; CS = 248
    I("v_mov_b32 v250, v16")
    I(f"v_add_u32 v251, {24*XR}, v5")
    I("v_mov_b32 v252, v8")
    I("s_load_dwordx2 s[4:5], s[0:1], 72")
    CSL = 48
    for f_ in FLAGS:
        if f_.startswith("csl"): CSL = int(f_[3:])
    if CSL: I(f"s_sleep {CSL}")
    I("s_waitcnt lgkmcnt(0)")
    srd(12, 44, SZ_SD)
    I("s_cmp_ge_u32 s3, 2")
    I("s_cbranch_scc1 G1_cpf")
    I("s_mul_i32 s46, s3, 176")
    I("s_add_u32 s46, s46, s47")
    I("s_cmp_ge_u32 s46, 270")
    I("s_cbranch_scc1 G1_cgo")
    I("s_mul_i32 s36, s46, 0xCCCD")
    I("s_lshr_b32 s36, s36, 19")
    I("s_mul_i32 s37, s36, 10")
    I("s_sub_u32 s37, s46, s37")
    I("v_and_b32 v23, 7, v0")
    I("v_bfe_u32 v17, v0, 3, 2")
    I("v_bfe_u32 v18, v0, 5, 1")
    I("s_lshl_b32 s37, s37, 6")
    I("v_lshl_add_u32 v23, v23, 3, s37")
    I("s_lshl_b32 s36, s36, 1")
    I("v_add_u32 v18, s36, v18")
    I("v_lshlrev_b32 v19, 5, v18")
    I("v_lshl_add_u32 v19, v17, 2, v19")
    I("v_mul_u32_u24 v20, 0x500, v19")
    I("v_lshl_add_u32 v20, v23, 1, v20")
    I("v_add_u32 v21, 0x5000, v20")
    srd(8, 4, SZ_W)
    srd(32, 6, SZ_W, WS_WDT)
    for i in range(8):
        b = 20 if i < 4 else 21
        I(f"buffer_load_dwordx4 v[{ACC+4*i}:{ACC+3+4*i}], v{b}, s[8:11], 0 offen offset:{(i%4)*1280}")
    I("s_mov_b32 s36, 0x05040100")
    I("s_mov_b32 s37, 0x07060302")
    I("v_lshrrev_b32 v22, 4, v23")
    I("v_mul_u32_u24 v22, 54, v22")
    I("v_add_u32 v22, v22, v18")
    I("v_lshlrev_b32 v22, 10, v22")
    I("v_lshl_add_u32 v22, v17, 8, v22")
    I("v_and_b32 v19, 15, v23")
    I("v_lshl_add_u32 v22, v19, 4, v22")
    I("s_waitcnt vmcnt(0)")
    for dd in range(8):
        ob = ACC + 32 + 4*dd
        sel = 36 + (dd & 1)
        for q in range(4):
            I(f"v_perm_b32 v{ob+q}, v{ACC+4*(2*q+1)+dd//2}, v{ACC+4*(2*q)+dd//2}, s{sel}")
    for dd in range(8):
        ob = ACC + 32 + 4*dd
        I(f"buffer_store_dwordx4 v[{ob}:{ob+3}], v22, s[32:35], 0 offen offset:{16*dd}")
    I("s_waitcnt vmcnt(0)")
    I("s_branch G1_cgo")
    e("G1_cpf:")
    if "nopfm" not in FLAGS:
        I("s_cmp_ge_u32 s3, 3")
        I("s_cselect_b32 s8, s18, s16")
        I("s_cselect_b32 s9, s19, s17")
        I("s_mul_i32 s27, s47, 12800")
        I(f"s_mov_b32 s10, {SZ_W}")
        I("s_mov_b32 s11, 0x00020000")
        I("v_lshlrev_b32 v17, 4, v1")
        for i in range(13):
            I(f"buffer_load_dwordx4 v[{ACC+4*i}:{ACC+3+4*i}], v17, s[8:11], s27 offen")
            I("s_add_u32 s27, s27, 1024")
        I("s_waitcnt vmcnt(0)")
    e("G1_cgo:")
    I("s_and_b32 s31, s3, 1")
    I("s_lshr_b32 s33, s3, 1")
    I("s_lshl_b32 s27, s24, 3")
    I("s_lshl_b32 s26, s31, 2")
    I("s_add_u32 s26, s26, s27")
    I("s_mul_i32 s27, s26, 55296")
    I("v_lshl_add_u32 v9, v1, 4, s27")
    I("v_bfe_u32 v17, v0, 4, 2")
    I("v_and_b32 v18, 15, v0")
    I(f"v_mul_u32_u24 v6, {XR}, v18")
    I("v_lshl_add_u32 v6, v17, 4, v6")
    I(f"s_mul_i32 s30, s31, {64*XR}")
    I(f"s_add_u32 s30, s30, {XB}")
    I("v_add_u32 v6, s30, v6")
    I("v_bfe_u32 v18, v0, 2, 2")
    I("v_lshl_add_u32 v19, v17, 3, v18")
    I(f"v_mul_u32_u24 v19, {RS}, v19")
    I("v_and_b32 v18, 3, v0")
    I("v_lshl_add_u32 v19, v18, 3, v19")
    I("s_mul_i32 s27, s33, 160")
    I("v_add_u32 v19, s27, v19")
    I("v_and_b32 v20, 1, v17")
    I("v_lshlrev_b32 v20, 5, v20")
    I("s_lshl_b32 s27, s33, 1")
    I("s_sub_u32 s27, 1, s27")
    I("v_mul_lo_u32 v20, v20, s27")
    I("v_add_u32 v11, v19, v20")
    I("v_sub_u32 v12, v19, v20")
    I(f"v_add_u32 v13, {3*SL}, v11")
    I(f"v_add_u32 v14, {3*SL}, v12")
    srd(20, 6, SZ_H, WS_H)
    for f_ in FLAGS:
        if f_.startswith("la"): LA = int(f_[2:])
    def acc(m, j, js): return ACC + ((m*5 + j)*4 + js)*4
    seq = [(m, j) for m in range(2) for j in range(5)]
    NQ = len(seq)
    dq = []
    def dwait(tags):
        idxs = [i for i, t in enumerate(dq) if t in tags]
        if not idxs: return
        idx = max(idxs); n = len(dq) - 1 - idx
        assert n <= 15
        I(f"s_waitcnt lgkmcnt({n})")
        del dq[:idx+1]
    def rdx(gpos):
        st, idx = divmod(gpos, NQ)
        m, j = seq[idx]
        slot = st % NS
        a = AF + (gpos % 4)*4
        va = 11 + 2*(slot // 3) + (j & 1)
        off = (slot % 3)*SL + m*MS + j*32
        return [f"ds_read_b64_tr_b16 v[{a}:{a+1}], v{va} offset:{off}",
                f"ds_read_b64_tr_b16 v[{a+2}:{a+3}], v{va} offset:{off+4*RS}"]
    def xrd(st, js):
        b = BB + (st & 1)*16 + js*4
        I(f"ds_read_b128 v[{b}:{b+3}], v6 offset:{((st >> 1) & 1)*XP + js*16*XR + (st & 1)*64}")
        dq.append(("X", st))
    def cld(P):
        r = CR_ + (P & 1)*4
        I(f"buffer_load_dwordx4 v[{r}:{r+3}], v250, s[12:15], 0 offen offset:{128*P}")
    if CN: cld(2); cld(3)
    stamp()
    I("s_barrier")
    stamp()
    for js in range(4): xrd(0, js)
    if CN:
        I(f"ds_read_b64 v[{CS}:{CS+1}], v252"); dq.append(("X", 0))
    for i in range(LA):
        for x in rdx(i): I(x); dq.append(("A", i))
    for st in range(NST):
        cw = []
        if CN and st >= 1:
            P = (st + 3)//2
            if 2 <= P <= 9:
                r = CR_ + (P & 1)*4
                o = norm_ops(r, CS, CS+1, CT, f"ds_write_b128 v251, v[{r}:{r+3}] offset:{(P & 1)*XP}")
                h = len(o)//2
                cw = o[:h] if st == 2*P - 3 else o[h:]
                if st == 2*P - 3: cw = [f"s_waitcnt vmcnt({1 if P < 9 else 0})"] + cw
                elif P + 2 <= 9: cw = cw + [("L", P + 2)]
        if st + 1 < NST:
            dwait([("XW", 0)])
            I("s_barrier")
        if "stamp3" in FLAGS and st in (1, 5, 10): stamp()
        nslot = 24
        for idx in range(NQ):
            gpos = st*NQ + idx
            rr = rdx(gpos + LA) if gpos + LA < NST*NQ else None
            dwait([("A", gpos), ("X", st)])
            m, j = seq[idx]
            a = AF + (gpos % 4)*4
            for js in range(4):
                c = acc(m, j, js); b = BB + (st & 1)*16 + js*4
                cc = "0" if st == 0 else f"v[{c}:{c+3}]"
                I(f"v_mfma_f32_16x16x32_bf16 v[{c}:{c+3}], v[{a}:{a+3}], v[{b}:{b+3}], {cc}")
                if rr and js < 2: I(rr[js]); dq.append(("A", gpos + LA))
                if js == 2 and st + 1 < NST and 1 <= idx <= 4: xrd(st + 1, idx - 1)
                if js >= 1 and cw:
                    x = cw.pop(0)
                    if isinstance(x, tuple): cld(x[1])
                    else:
                        I(x)
                        if x.startswith("ds_write"): dq.append(("XW", 0))
                        if x.startswith("s_waitcnt") and cw: I(cw.pop(0))
        assert not cw
    stamp()
    I("s_lshr_b32 s34, s25, 5")
    I("s_lshl_b32 s34, s34, 10")
    I("s_nop 7")
    I("s_nop 3")
    cnt = [0]
    def hq(j, js, dst, t):
        g = acc(0, j, js); u = acc(1, j, js)
        I(f"v_cvt_pk_bf16_f32 v{t}, v{g}, v{g+1}")
        I(f"v_cvt_pk_bf16_f32 v{t+1}, v{g+2}, v{g+3}")
        I(f"v_cvt_pk_bf16_f32 v{t+2}, v{u}, v{u+1}")
        I(f"v_cvt_pk_bf16_f32 v{t+3}, v{u+2}, v{u+3}")
        lo16(g, t); hi16(g+1, t); lo16(g+2, t+1); hi16(g+3, t+1)
        lo16(u, t+2); hi16(u+1, t+2); lo16(u+2, t+3); hi16(u+3, t+3)
        for r in range(4):
            I(f"v_mul_f32 v{g+r}, v{g+r}, v{u+r}")
        I(f"v_cvt_pk_bf16_f32 v{dst}, v{g}, v{g+1}")
        I(f"v_cvt_pk_bf16_f32 v{dst+1}, v{g+2}, v{g+3}")
    def epi(fq):
        units = [((0, 1), 0, 0), ((2, 3), 1, 0), ((4,), 2, 0)] if fq == 0 else [((0,), 2, 8), ((1, 2), 3, 0), ((3, 4), 4, 0)]
        for js in range(4):
            I(f"s_add_u32 s35, s34, {js*55296}")
            I(f"s_add_u32 s36, s34, {js*55296 + 4096}")
            for (jl, blk, ho) in units:
                t = 24 + (cnt[0] % 4) * 12; cnt[0] += 1
                for hh, j in enumerate(jl): hq(j, js, t+4+2*hh, t)
                so, off = ("s35", 1024*blk + ho) if blk < 4 else ("s36", ho)
                if len(jl) == 2:
                    I(f"buffer_store_dwordx4 v[{t+4}:{t+7}], v9, s[20:23], {so} offen offset:{off}")
                else:
                    I(f"buffer_store_dwordx2 v[{t+4}:{t+5}], v9, s[20:23], {so} offen offset:{off}")
    I("s_cmp_eq_u32 s33, 0")
    I("s_cbranch_scc0 G1_epi1")
    epi(0)
    I("s_branch G1_epid")
    e("G1_epi1:")
    epi(1)
    e("G1_epid:")
    if STAMP: I("s_waitcnt vmcnt(0)")
    stamp()
    stamp_dump(5)
    wgt_end(1)
    I("s_endpgm")

def g1_epi(NF, acc):
    I("s_lshr_b32 s34, s25, 5")
    I("s_lshl_b32 s34, s34, 10")
    I("s_add_u32 s35, s34, 4096")
    I("s_nop 7")
    I("s_nop 3")
    for js in range(2):
        for jp in range(NF//2):
            t = 24 + ((js*5 + jp) % 4) * 12
            for hh in range(2):
                jf = 2*jp + hh
                g = acc(0, jf, js); u = acc(1, jf, js)
                I(f"v_cvt_pk_bf16_f32 v{t}, v{g}, v{g+1}")
                I(f"v_cvt_pk_bf16_f32 v{t+1}, v{g+2}, v{g+3}")
                I(f"v_cvt_pk_bf16_f32 v{t+2}, v{u}, v{u+1}")
                I(f"v_cvt_pk_bf16_f32 v{t+3}, v{u+2}, v{u+3}")
                lo16(g, t); hi16(g+1, t); lo16(g+2, t+1); hi16(g+3, t+1)
                lo16(u, t+2); hi16(u+1, t+2); lo16(u+2, t+3); hi16(u+3, t+3)
                for r in range(4):
                    I(f"v_mul_f32 v{g+r}, v{g+r}, v{u+r}")
                I(f"v_cvt_pk_bf16_f32 v{t+4+2*hh}, v{g}, v{g+1}")
                I(f"v_cvt_pk_bf16_f32 v{t+5+2*hh}, v{g+2}, v{g+3}")
            if jp < 4:
                I(f"buffer_store_dwordx4 v[{t+4}:{t+7}], v{9+js}, s[20:23], s34 offen offset:{1024*jp}")
            else:
                I(f"buffer_store_dwordx4 v[{t+4}:{t+7}], v{9+js}, s[20:23], s35 offen")
    if STAMP: I("s_waitcnt vmcnt(0)")
    stamp()
    stamp_dump(5)
    wgt_end(1)
    I("s_endpgm")

def gen_k2():
    kernel_header("mid_kernel")
    if BIG:
        I("s_cmp_ge_u32 s2, 256")
        I("s_cbranch_scc1 M_exit")
        wgt_start()
        I("s_load_dwordx2 s[6:7], s[0:1], 96")
        I("v_lshrrev_b32 v1, 6, v0")
        I("s_nop 0")
        I("v_readfirstlane_b32 s3, v1")
        I("s_lshr_b32 s40, s2, 3")
        I("s_bfe_u32 s41, s2, 0x10002")
        if "swp" in FLAGS: I("s_xor_b32 s41, s41, 1")
        I("s_and_b32 s42, s2, 3")
        I("s_lshl_b32 s43, s41, 2")
        I("s_sub_u32 s43, 24, s43")
        if XL:
            I("s_and_b32 s42, s2, 7")
            I("s_mov_b32 s43, 22")
            I("s_mov_b32 s41, 1")
        if "cw1" in FLAGS:
            I("s_cmp_lg_u32 s3, 2")
            I("s_cbranch_scc1 M_nocw")
            I("s_cmp_ge_u32 s40, 8")
            I("s_cbranch_scc1 M_nocw")
            I("s_getpc_b64 s[8:9]")
            e("M_pc1:")
            I("s_sub_u32 s8, s8, M_pc1-mid_kernel")
            I("s_subb_u32 s9, s9, 0")
            I("v_and_b32 v1, 63, v0")
            I("s_lshl_b32 s12, s40, 6")
            I("v_add_u32 v1, s12, v1")
            I("v_lshlrev_b32 v1, 7, v1")
            I("v_min_u32 v1, CODE_END-mid_kernel-4, v1")
            I("global_load_dword v253, v1, s[8:9]")
            e("M_nocw:")
        if "kvall" in FLAGS:
            I("s_and_b32 s8, s3, 1")
            I("s_lshl_b32 s8, s8, 3")
            I("s_add_u32 s8, s8, 8")
            I("s_load_dwordx2 s[8:9], s[0:1], s8")
            I("s_lshr_b32 s12, s3, 1")
            I("s_cmp_gt_u32 s12, s41")
            I("s_cbranch_scc1 M_nokvpf")
            if XL:
                I("s_mul_i32 s13, s42, 160")
                I("s_and_b32 s13, s13, 0xffffff80")
            else:
                I("s_mul_i32 s13, s42, 192")
                I("s_add_u32 s13, s13, 512")
                I("s_and_b32 s13, s13, 0xffffff80")
                I("s_lshl_b32 s14, s42, 7")
                I("s_cmp_eq_u32 s41, 0")
                I("s_cselect_b32 s13, s14, s13")
            I("s_lshl_b32 s12, s12, 7")
            I("s_add_u32 s13, s13, s12")
            I("s_mul_i32 s12, s40, 81920")
            I("s_add_u32 s13, s13, s12")
            I("v_and_b32 v1, 63, v0")
            I("v_mul_u32_u24 v1, 0x500, v1")
            I(f"s_mov_b32 s10, {SZ_SD}")
            I("s_mov_b32 s11, 0x00020000")
            I("s_waitcnt lgkmcnt(0)")
            for f_ in FLAGS:
                if f_.startswith("kvd"): I(f"s_sleep {int(f_[3:])}")
                if f_.startswith("vdl"):
                    I("s_bitcmp1_b32 s3, 0")
                    I("s_cbranch_scc0 M_novd")
                    I(f"s_sleep {int(f_[3:])}")
                    e("M_novd:")
            I("buffer_load_dword v255, v1, s[8:11], s13 offen")
            e("M_nokvpf:")
            I("s_waitcnt lgkmcnt(0)")
        I("s_cmp_ge_u32 s40, s43")
        I("s_cbranch_scc1 M_conv")
        if "nog1" in FLAGS: I("s_endpgm")
        I("s_mul_i32 s24, s42, s43")
        I("s_add_u32 s24, s24, s40")
        if not XL:
            I("s_mul_i32 s25, s41, 96")
            I("s_add_u32 s24, s24, s25")
        W0 = 6 if "prod" in FLAGS else 4
        if FUSE:
            stamp()
            I("s_load_dwordx4 s[16:19], s[0:1], 56")
            I("s_load_dwordx2 s[44:45], s[0:1], 0")
            I("s_mov_b32 s47, s24")
        I(f"s_sub_u32 s25, s3, {W0}")
        I("s_mul_i32 s25, s25, 176")
        I("s_add_u32 s24, s24, s25")
        if FUSE:
            I("s_mov_b32 s46, s24")
        else:
            I(f"s_cmp_ge_u32 s3, {W0}")
            I("s_cbranch_scc1 M_wdt")
        I("s_lshl_b32 s24, s42, 2")
        I("s_and_b32 s25, s40, 3")
        I("s_add_u32 s24, s24, s25")
        I("s_mul_i32 s25, s41, 6")
        I("s_lshr_b32 s26, s40, 2")
        I("s_add_u32 s25, s25, s26")
        if XL:
            I("s_lshl_b32 s24, s42, 1")
            I("s_and_b32 s25, s40, 1")
            I("s_add_u32 s24, s24, s25")
            I("s_lshr_b32 s25, s40, 1")
        if FUSE and "g1b" in FLAGS: gen_g1b()
        elif FUSE and "f2" in FLAGS: gen_g1f2()
        elif FUSE: gen_g1fuse()
        else: gen_g1big()
    else:
        gen_g1old()
    gen_aux()

def gen_g1old():
    I(f"s_cmp_ge_u32 s2, {N_G1+N_CV}")
    I("s_cbranch_scc1 M_exit")
    I("s_load_dwordx2 s[6:7], s[0:1], 96")
    I(f"s_cmp_ge_u32 s2, {N_G1}")
    I("s_cbranch_scc1 M_conv")
    if "nog1" in FLAGS: I("s_endpgm")
    stamp()
    if "prio" in FLAGS: I("s_setprio 3")
    I("s_load_dwordx4 s[16:19], s[0:1], 56")
    I("v_lshrrev_b32 v1, 6, v0")
    I("s_nop 0")
    I("v_readfirstlane_b32 s3, v1")
    I("s_waitcnt lgkmcnt(0)")
    if "stamp2" in FLAGS: stamp()
    I("s_cmp_ge_u32 s3, 2")
    I("s_cselect_b32 s4, s18, s16")
    I("s_cselect_b32 s5, s19, s17")
    srd(8, 4, SZ_W)
    srd(12, 6, SZ_SD, WS_XN)
    srd(20, 6, SZ_H, WS_H)
    if "g12d" in FLAGS:
        I("s_and_b32 s24, s2, 3")
        I("s_lshl_b32 s24, s24, 2")
        I("s_bfe_u32 s25, s2, 0x20003")
        I("s_add_u32 s24, s24, s25")
        I("s_bfe_u32 s25, s2, 0x10002")
        I("s_lshl_b32 s25, s25, 3")
        I("s_lshr_b32 s26, s2, 5")
        I("s_add_u32 s25, s25, s26")
    else:
        I("s_and_b32 s24, s2, 15")
        I("s_lshr_b32 s25, s2, 4")
    I(f"s_mul_i32 s25, s25, {BF}")
    I(f"s_min_u32 s25, s25, {F-BF}")
    I("v_and_b32 v1, 63, v0")
    if "pf" in FLAGS:
        I("s_lshr_b32 s26, s2, 3")
        I("s_lshl_b32 s27, s26, 1")
        I("s_and_b32 s28, s3, 1")
        I("s_add_u32 s27, s27, s28")
        I("s_mul_i32 s27, s27, 34560")
        I("s_bfe_u32 s28, s2, 0x10002")
        I("s_mul_i32 s28, s28, 1792")
        I("s_add_u32 s27, s27, s28")
        I("v_lshrrev_b32 v192, 5, v1")
        I("v_mul_u32_u24 v192, 3456, v192")
        I("v_and_b32 v193, 31, v1")
        I("v_lshl_add_u32 v192, v193, 6, v192")
        I("v_add_u32 v192, s27, v192")
        for i in range(5):
            I(f"s_mov_b32 s27, {i*6912}")
            I(f"buffer_load_dword v{194+i}, v192, s[8:11], s27 offen")
        I("s_and_b32 s27, s2, 3")
        I("s_mul_i32 s27, s27, 655360")
        I("s_lshl_b32 s28, s26, 2")
        I("s_add_u32 s28, s28, s3")
        I("s_mul_i32 s28, s28, 5120")
        I("s_add_u32 s27, s27, s28")
        I("v_lshlrev_b32 v193, 6, v1")
        I("buffer_load_dword v199, v193, s[12:15], s27 offen")
        I("buffer_load_dword v200, v193, s[12:15], s27 offen offset:1024")
    I("v_lshrrev_b32 v10, 4, v1")
    I("v_bfe_u32 v11, v1, 1, 3")
    I("v_and_b32 v12, 1, v1")
    I("s_and_b32 s26, s3, 1")
    I("s_lshl_b32 s26, s26, 4")
    I("s_lshl_b32 s27, s25, 1")
    for i in range(4):
        bit = (i >> 1) & 1
        I(f"v_or_b32 v13, {bit<<2}, v10")
        I("v_xor_b32 v13, v13, v11")
        I(f"v_add_u32 v14, {4*i}, v10")
        I("v_add_u32 v14, s26, v14")
        I("v_mul_u32_u24 v14, 3456, v14")
        I("v_lshl_add_u32 v14, v13, 5, v14")
        I("v_lshl_add_u32 v14, v12, 4, v14")
        I("v_add_u32 v14, s27, v14")
        I(f"v_subrev_u32 v14, {1024*i}, v14")
        I("v_cmp_eq_u32 vcc, 7, v13")
        I("v_mov_b32 v15, 0x40000000")
        I("s_nop 0")
        I(f"v_cndmask_b32 v{2+i}, v14, v15, vcc")
    I("v_bfe_u32 v17, v0, 4, 2")
    I("s_lshl_b32 s26, s24, 3")
    I("s_lshl_b32 s27, s3, 1")
    I("s_add_u32 s26, s26, s27")
    I("s_mul_i32 s27, s26, 20480")
    I("v_lshl_add_u32 v6, v1, 4, s27")
    I("v_add_u32 v7, 20480, v6")
    I("s_mul_i32 s27, s26, 55296")
    I("v_lshl_add_u32 v8, v1, 4, s27")
    I("v_add_u32 v9, 55296, v8")
    I("v_bfe_u32 v18, v0, 2, 2")
    I("v_lshl_add_u32 v19, v17, 3, v18")
    I("v_lshlrev_b32 v19, 8, v19")
    I("v_and_b32 v20, 1, v17")
    I("v_lshl_or_b32 v20, v20, 2, v18")
    I("v_lshl_add_u32 v19, v20, 5, v19")
    I("v_and_b32 v18, 3, v0")
    I("v_lshl_add_u32 v19, v18, 3, v19")
    VA = 10
    I("v_mov_b32 v24, v19")
    for jf in range(7):
        I(f"v_xor_b32 v{VA+jf}, {jf<<5}, v24")
        I(f"v_add_u32 v{VA+7+jf}, 0x10000, v{VA+jf}")
    I("s_lshl_b32 s29, s3, 12")
    BB = 24
    AF = 64
    ACC = 80
    def acc(m, jf, js): return ACC + ((m*7 + jf)*2 + js)*4
    def bfr(st, js): return BB + (st % NSLOT)*8 + js*4
    NST = 20
    def issue(slot):
        I(f"s_add_u32 s30, s29, {slot*SLOT}")
        I("s_mov_b32 m0, s30")
        for i in range(4):
            I(f"buffer_load_dwordx4 v{2+i}, s[8:11], s28 offen offset:{1024*i} lds")
        for js in range(2):
            r = BB + slot*8 + js*4
            I(f"buffer_load_dwordx4 v[{r}:{r+3}], v{6+js}, s[12:15], s31 offen")
        I("s_add_u32 s36, s36, 1")
        I("s_cmp_ge_u32 s36, 20")
        I("s_cselect_b32 s36, 0, s36")
        I("s_add_u32 s37, s37, 1")
        I(f"s_mul_i32 s28, s36, {32*3456}")
        I("s_lshl_b32 s31, s36, 10")
        I("s_cmp_ge_u32 s37, 20")
        I("s_cselect_b32 s28, 0x40000000, s28")
        I("s_cselect_b32 s31, 0x40000000, s31")
    if "rot" in FLAGS:
        I("s_and_b32 s36, s24, 3")
        I("s_mul_i32 s36, s36, 5")
        I("s_lshr_b32 s37, s2, 5")
        I("s_mul_i32 s37, s37, 3")
        I("s_add_u32 s36, s36, s37")
        I("s_cmp_ge_u32 s36, 20")
        I("s_cselect_b32 s37, 20, 0")
        I("s_sub_u32 s36, s36, s37")
    else:
        I("s_mov_b32 s36, 0")
    I("s_mov_b32 s37, 0")
    I(f"s_mul_i32 s28, s36, {32*3456}")
    I("s_lshl_b32 s31, s36, 10")
    if "stamp2" in FLAGS: stamp()
    for st in range(NSLOT - 1):
        issue(st)
    if "stamp2" in FLAGS: stamp()
    for j in range(112):
        I(f"v_mov_b32 v{ACC+j}, 0")
    I("s_mov_b32 s33, 0")
    stamp()
    def body(last):
      for slot in range(NSLOT):
        if not last or slot <= 1:
            I(f"s_waitcnt vmcnt({6*(NSLOT-2)})")
        else:
            I(f"s_waitcnt vmcnt({6*(NSLOT-1-slot)})")
        I("s_barrier")
        if not last or slot == 0:
            issue((slot + NSLOT - 1) % NSLOT)
        seq = [(m, jf) for m in range(2) for jf in range(7)]
        def rd(idx):
            m, jf = seq[idx]
            a = AF + (idx % 4)*4
            if slot < 4:
                va = VA + jf; off = slot*SLOT + m*8192
            else:
                va = VA + 7 + jf; off = m*8192
            I(f"ds_read_b64_tr_b16 v[{a}:{a+1}], v{va} offset:{off}")
            I(f"ds_read_b64_tr_b16 v[{a+2}:{a+3}], v{va} offset:{off+1024}")
        for i in range(3):
            rd(i)
        for idx in range(14):
            if idx + 3 < 14:
                rd(idx + 3)
                I("s_waitcnt lgkmcnt(6)")
            else:
                I(f"s_waitcnt lgkmcnt({2*(13-idx)})")
            m, jf = seq[idx]
            a = AF + (idx % 4)*4
            for js in range(2):
                c = acc(m, jf, js); b = BB + slot*8 + js*4
                I(f"v_mfma_f32_16x16x32_bf16 v[{c}:{c+3}], v[{a}:{a+3}], v[{b}:{b+3}], v[{c}:{c+3}]")
    XS = "xs" in FLAGS
    LA = 3
    for f in FLAGS:
        if f.startswith("la"): LA = int(f[2:])
    RING = [64,68,72,76,192,196,200] if LA > 3 else [64,68,72,76,192]
    seq = [(m, jf) for m in range(2) for jf in range(7)]
    ring = [0]
    def rdx(slot, idx, pos):
        m, jf = seq[idx]
        a = RING[pos % len(RING)]
        if slot < 4:
            va = VA + jf; off = slot*SLOT + m*8192
        else:
            va = VA + 7 + jf; off = m*8192
        return [f"ds_read_b64_tr_b16 v[{a}:{a+1}], v{va} offset:{off}",
                f"ds_read_b64_tr_b16 v[{a+2}:{a+3}], v{va} offset:{off+1024}"]
    def body_xs(last):
      for slot in range(NSLOT):
        fin_stage = last and slot == NSLOT-1
        if not fin_stage:
            if not last or slot <= 1:
                I("s_waitcnt vmcnt(12)")
            else:
                I(f"s_waitcnt vmcnt({6*(NSLOT-2-slot)})")
            if "g1nobar" not in FLAGS: I("s_barrier")
        if (not last or slot == 0) and "g1noload" not in FLAGS:
            issue((slot + NSLOT - 1) % NSLOT)
        for idx in range(14 if "g1nocomp" not in FLAGS else 0):
            pos = idx + 14*slot
            if idx + LA < 14:
                rr = rdx(slot, idx + LA, pos + LA)
            elif not fin_stage:
                rr = rdx((slot + 1) % NSLOT, idx + LA - 14, pos + LA)
            else:
                rr = None
            I(f"s_waitcnt lgkmcnt({2*(LA-1) if not fin_stage else 2*min(LA-1, 13-idx)})")
            m, jf = seq[idx]
            a = RING[pos % len(RING)]
            for js in range(2):
                c = acc(m, jf, js); b = BB + slot*8 + js*4
                I(f"v_mfma_f32_16x16x32_bf16 v[{c}:{c+3}], v[{a}:{a+3}], v[{b}:{b+3}], v[{c}:{c+3}]")
                if rr: I(rr[js])
    if XS:
        I("s_waitcnt vmcnt(18)")
        I("s_barrier")
        for i in range(LA):
            for x in rdx(0, i, i): I(x)
    e("G1_loop:")
    (body_xs if XS else body)(False)
    I("s_add_u32 s33, s33, 1")
    I(f"s_cmp_lt_u32 s33, {NST//NSLOT - 1}")
    I("s_cbranch_scc1 G1_loop")
    (body_xs if XS else body)(True)
    stamp()
    I("s_waitcnt vmcnt(0)")
    I("s_nop 7")
    I("s_nop 3")
    T = 24
    for js in range(2):
        for jf in range(7):
            g = acc(0, jf, js); u = acc(1, jf, js)
            t = T + ((js*7 + jf) % 4) * 8
            I(f"v_cvt_pk_bf16_f32 v{t}, v{g}, v{g+1}")
            I(f"v_cvt_pk_bf16_f32 v{t+1}, v{g+2}, v{g+3}")
            I(f"v_cvt_pk_bf16_f32 v{t+2}, v{u}, v{u+1}")
            I(f"v_cvt_pk_bf16_f32 v{t+3}, v{u+2}, v{u+3}")
            lo16(g, t); hi16(g+1, t); lo16(g+2, t+1); hi16(g+3, t+1)
            lo16(u, t+2); hi16(u+1, t+2); lo16(u+2, t+3); hi16(u+3, t+3)
            for r in range(4):
                I(f"v_mul_f32 v{g+r}, v{g+r}, v{u+r}")
            I(f"v_cvt_pk_bf16_f32 v{t+4}, v{g}, v{g+1}")
            I(f"v_cvt_pk_bf16_f32 v{t+5}, v{g+2}, v{g+3}")
            I(f"s_add_u32 s34, s25, {16*jf}")
            I("s_lshr_b32 s35, s34, 5")
            I("s_lshl_b32 s35, s35, 10")
            I("s_and_b32 s34, s34, 16")
            I("s_lshr_b32 s34, s34, 1")
            I("s_add_u32 s35, s35, s34")
            I(f"buffer_store_dwordx2 v[{t+4}:{t+5}], v{8+js}, s[20:23], s35 offen")
    I("s_waitcnt vmcnt(0)")
    stamp()
    stamp_dump(5)
    I("s_endpgm")

def gen_aux():
    e("M_conv:")
    if "noconv" in FLAGS: I("s_endpgm")
    XREG = 7680; CST = 576 if "cst" in FLAGS else 800; HBUF = 8*CST; WREG = 20480
    CMG = "cmg" in FLAGS
    if CMG: CST = 320; HBUF = 16*CST; HHI = 8*CST
    CM4 = "cm4" in FLAGS
    if CM4: HBUF = 8*CST; HHI = 4*CST
    stamp()
    I("s_load_dwordx4 s[16:19], s[0:1], 32")
    if FUSE:
        I("s_load_dwordx4 s[44:47], s[0:1], 8")
        I("s_load_dwordx2 s[48:49], s[0:1], 24")
    if BIG:
        I("s_sub_u32 s24, 32, s43")
        I("s_mul_i32 s24, s24, s42")
        I("s_add_u32 s24, s24, s40")
        I("s_sub_u32 s24, s24, s43")
        if not XL:
            I("s_lshl_b32 s25, s41, 5")
            I("s_add_u32 s24, s24, s25")
        I("s_lshl_b32 s24, s24, 3")
        I("s_add_u32 s24, s24, s3")
    else:
        I("v_lshrrev_b32 v1, 6, v0")
        I("s_nop 0")
        I("v_readfirstlane_b32 s3, v1")
        I(f"s_sub_u32 s25, s2, {N_G1}")
        I("s_cmp_ge_u32 s25, 128")
        I("s_cbranch_scc1 M_aux_hi")
        I("s_mov_b32 s24, s25")
        I("s_cmp_eq_u32 s3, 3")
        I("s_cbranch_scc1 M_wdt")
        I("s_mul_i32 s24, s25, 3")
        I("s_add_u32 s24, s24, s3")
        I("s_branch M_conv2")
        e("M_aux_hi:")
        I("s_sub_u32 s25, s25, 128")
        I("s_lshl_b32 s25, s25, 1")
        I("s_add_u32 s24, s25, s3")
        I("s_add_u32 s24, s24, 126")
        I("s_cmp_ge_u32 s3, 2")
        I("s_cbranch_scc1 M_wdt")
        I("s_add_u32 s24, s25, s3")
        I("s_add_u32 s24, s24, 384")
    e("M_conv2:")
    I("s_waitcnt lgkmcnt(0)")
    if "cst2" in FLAGS: stamp()
    srd(8, 16, SZ_SD)
    if FUSE:
        I("s_sub_u32 s25, s24, s3")
        I("s_lshl_b32 s25, s25, 3")
        I("s_load_dwordx16 s[84:99], s[48:49], s25")
        srd(32, 44, SZ_SD)
        srd(36, 46, SZ_SD)
    else:
        srd(12, 6, SZ_SD, WS_KVR)
    srd(20, 6, SZ_SD, WS_YT)
    I("s_lshr_b32 s25, s24, 1")
    I("s_lshl_b32 s25, s25, 2")
    I("s_load_dword s26, s[18:19], s25")
    I("v_and_b32 v1, 63, v0")
    I("s_lshl_b32 s27, s24, 12")
    I("v_lshl_add_u32 v2, v1, 4, s27")
    if CMG:
        I("v_lshrrev_b32 v3, 5, v1")
        I("v_mul_u32_u24 v3, 1536, v3")
        I("v_add_u32 v2, v2, v3")
    XLD = 16
    for j in range(4 if not FUSE else 0):
        I(f"buffer_load_dwordx4 v[{XLD+4*j}:{XLD+4*j+3}], v2, s[12:15], 0 offen offset:{1024*j}")
    HW0, HW1 = 32, 40
    I("v_subrev_u32 v13, 64, v2")
    I("v_mov_b32 v5, 0x40000000")
    I("v_cmp_gt_u32 vcc, 4, v1")
    I("s_nop 1")
    I("v_cndmask_b32 v4, v13, v5, vcc")
    I("v_add_u32 v6, 16, v13")
    I("v_cmp_gt_u32 vcc, 3, v1")
    I("s_nop 1")
    I("v_cndmask_b32 v6, v6, v5, vcc")
    CV2 = "cv2" in FLAGS
    def hwloads():
        I(f"buffer_load_dwordx4 v[{HW0}:{HW0+3}], v4, s[8:11], 0 offen")
        I(f"buffer_load_dwordx4 v[{HW0+4}:{HW0+7}], v6, s[8:11], 0 offen")
        I(f"buffer_load_dwordx4 v[{HW1}:{HW1+3}], v2, s[8:11], 0 offen offset:{192 if CMG else 448}")
        I(f"buffer_load_dwordx4 v[{HW1+4}:{HW1+7}], v2, s[8:11], 0 offen offset:{208 if CMG else 464}")
    if not CV2: hwloads()
    def wreg(n): return HW1 if n == 1 else (64 + 6*(n-2) if n <= 6 else 16)
    WLE = 1
    for f_ in FLAGS:
        if f_.startswith("wle"): WLE = int(f_[3:])
    WLM = WLE; CVQ0 = []
    for f_ in FLAGS:
        if f_.startswith("wlm"): WLM = int(f_[3:])
    WLD = 0
    for f_ in FLAGS:
        if f_.startswith("wld"): WLD = int(f_[3:])
    def wload(n):
        return [f"buffer_load_dwordx4 v[{wreg(n)}:{wreg(n)+3}], v2, s[8:11], 0 offen offset:{192+256*(n-1)}",
                f"buffer_load_dwordx2 v[{wreg(n)+4}:{wreg(n)+5}], v2, s[8:11], 0 offen offset:{208+256*(n-1)}"]
    for n in range(2, WLE + 1):
        for x in wload(n): I(x)
    CPL = -1
    for f_ in FLAGS:
        if f_.startswith("cpl"): CPL = int(f_[3:])
    if CPL >= 0:
        I("s_movk_i32 s50, 56")
        I(f"s_mov_b32 s51, {384*3456}")
        I("s_cmp_ge_u32 s24, 108")
        I("s_cselect_b32 s50, 64, s50")
        I("s_cselect_b32 s53, 108, 0")
        I("s_cmp_ge_u32 s24, 216")
        I("s_cselect_b32 s50, 0, s50")
        I("s_cselect_b32 s53, 216, s53")
        I("s_cselect_b32 s51, 768, s51")
        I("s_cmp_ge_u32 s24, 344")
        I("s_cselect_b32 s50, 72, s50")
        I("s_cselect_b32 s53, 344, s53")
        I("s_cselect_b32 s51, 0, s51")
        I("s_load_dwordx2 s[12:13], s[0:1], s50")
        I("s_sub_u32 s52, s24, s53")
        I("s_lshl_b32 s52, s52, 6")
        I("v_add_u32 v55, s52, v1")
        I("v_lshlrev_b32 v56, 7, v55")
        I("v_lshrrev_b32 v57, 2, v55")
        I("v_mul_u32_u24 v57, 0x500, v57")
        I("v_and_b32 v55, 3, v55")
        I("v_lshl_add_u32 v57, v55, 7, v57")
        I("s_cmp_eq_u32 s50, 0")
        I("s_cselect_b64 vcc, -1, 0")
        I(f"s_mov_b32 s14, {SZ_W}")
        I(f"s_cselect_b32 s14, {SZ_SD}, s14")
        I("s_mov_b32 s15, 0x00020000")
        I("v_cndmask_b32 v56, v56, v57, vcc")
        I("v_add_u32 v56, s51, v56")
    KP, KO, VV, KF, PP, TC, OO = 132, 144, 160, 176, 190, 222, 230
    if FUSE:
        I("s_sub_u32 s25, s24, s3")
        I("s_lshl_b32 s25, s25, 1")
        I("v_mul_u32_u24 v50, 5120, v0")
        I("v_add_u32 v50, s25, v50")
        I("s_cmp_eq_u32 s3, 0")
        I("s_cselect_b32 s25, 0x40000000, -3840")
        I("v_add_u32 v51, s25, v50")
        def kvloads():
            for i in range(4):
                I(f"buffer_load_dwordx4 v[{KO+4*i}:{KO+4*i+3}], v50, s[32:35], 0 offen offset:{1280*i}")
            I("s_mov_b64 exec, 1")
            for i in range(3):
                I(f"buffer_load_dwordx4 v[{KP+4*i}:{KP+4*i+3}], v51, s[32:35], 0 offen offset:{1280*i}")
            I("s_mov_b64 exec, -1")
        def vloads():
            for i in range(4):
                I(f"buffer_load_dwordx4 v[{VV+4*i}:{VV+4*i+3}], v50, s[36:39], 0 offen offset:{1280*i}")
        KPF = True
        if CV2:
            I("s_sub_u32 s50, s40, s43")
            I("s_lshl_b32 s57, s3, 8")
            I("s_cmp_eq_u32 s41, 0")
            I("s_cbranch_scc0 CV_pf1")
            I("s_lshl_b32 s50, s50, 5")
            I("s_add_u32 s50, s50, s57")
            I("s_lshl_b32 s51, s42, 7")
            I("v_add_u32 v54, s50, v1")
            I("v_mul_u32_u24 v54, 0x500, v54")
            I("s_movk_i32 s56, 32")
            I("s_branch CV_pfd")
            e("CV_pf1:")
            I("s_mul_i32 s50, s50, 22")
            I("s_min_u32 s50, s50, 234")
            I("s_add_u32 s50, s50, s57")
            I("s_mul_i32 s51, s42, 192")
            I("s_add_u32 s51, s51, 512")
            I("s_and_b32 s51, s51, 0xffffff80")
            I("v_lshrrev_b32 v54, 1, v1")
            I("v_add_u32 v54, s50, v54")
            I("v_mul_u32_u24 v54, 0x500, v54")
            I("v_and_b32 v56, 1, v1")
            I("v_lshl_add_u32 v54, v56, 7, v54")
            I("s_movk_i32 s56, 44")
            e("CV_pfd:")
            I("v_cmp_gt_u32 s[52:53], s56, v1")
            I("s_mov_b64 exec, s[52:53]")
            I("buffer_load_dword v56, v54, s[32:35], s51 offen")
            I("buffer_load_dword v57, v54, s[36:39], s51 offen")
            I("s_mov_b64 exec, -1")
            hwloads()
            I("v_lshl_add_u32 v55, v1, 6, s27")
            if "nohpf" not in FLAGS: I("buffer_load_dword v58, v55, s[8:11], 0 offen")
            else: I("buffer_load_dword v58, v2, s[8:11], 0 offen")
        elif "kvall" in FLAGS:
            pass
        elif KPF:
            I("s_sub_u32 s50, s40, s43")
            I("v_xor_b32 v57, 256, v0")
            I("s_cmp_eq_u32 s41, 0")
            I("s_cbranch_scc0 CV_pf1")
            I("s_lshl_b32 s50, s50, 8")
            I("s_lshl_b32 s51, s42, 7")
            for (d, src) in ((54, 0), (55, 57)):
                I(f"v_add_u32 v{d}, s50, v{src}")
                I(f"v_mul_u32_u24 v{d}, 0x500, v{d}")
            I("s_movk_i32 s56, 256")
            I("s_branch CV_pfd")
            e("CV_pf1:")
            I("s_mul_i32 s50, s50, 176")
            I("s_mul_i32 s51, s42, 192")
            I("s_add_u32 s51, s51, 512")
            I("s_and_b32 s51, s51, 0xffffff80")
            for (d, src) in ((54, 0), (55, 57)):
                I(f"v_lshrrev_b32 v{d}, 1, v{src}")
                I(f"v_add_u32 v{d}, s50, v{d}")
                I(f"v_mul_u32_u24 v{d}, 0x500, v{d}")
                I(f"v_and_b32 v56, 1, v{src}")
                I(f"v_lshl_add_u32 v{d}, v56, 7, v{d}")
            I("s_movk_i32 s56, 352")
            e("CV_pfd:")
            I("v_cmp_gt_u32 s[52:53], s56, v0")
            I("v_cmp_gt_u32 s[54:55], s56, v57")
            I("s_mov_b64 exec, s[52:53]")
            I("buffer_load_dword v56, v54, s[32:35], s51 offen")
            if "vpf1" not in FLAGS:
                I("s_mov_b64 exec, s[54:55]")
                I("buffer_load_dword v57, v55, s[36:39], s51 offen")
            I("s_mov_b64 exec, -1")
        else:
            kvloads()
        I("v_lshlrev_b32 v52, 2, v0")
        I("v_sub_u32 v52, 2044, v52")
        I("v_lshrrev_b32 v53, 5, v52")
        I("v_mul_u32_u24 v53, 80, v53")
        I("v_and_b32 v52, 31, v52")
        I("v_lshl_add_u32 v52, v52, 1, v53")
        I(f"v_add_u32 v53, {4*WREG}, v52")
    I(f"s_mov_b32 s29, {448 if CMG else 960}")
    I(f"s_mul_i32 s28, s3, {WREG}")
    Z = 96
    for j in range(4):
        I(f"v_mov_b32 v{Z+j}, 0")
    I("v_lshl_add_u32 v3, v1, 4, s28")
    I(f"ds_write_b128 v3, v[{Z}:{Z+3}] offset:5120")
    I(f"ds_write_b128 v3, v[{Z}:{Z+3}] offset:6144")
    I(f"ds_write_b128 v3, v[{Z}:{Z+3}] offset:6656")
    if G2F:
        I(f"v_mov_b32 v4, {LMB}")
        I(f"ds_write_b64 v4, v[{Z}:{Z+1}]")
    I("v_lshrrev_b32 v4, 2, v1")
    I("v_mul_u32_u24 v4, 80, v4")
    I("v_and_b32 v5, 3, v1")
    I("v_lshl_add_u32 v4, v5, 4, v4")
    I("v_add_u32 v4, s28, v4")
    I("v_and_b32 v5, 31, v1")
    I("v_lshrrev_b32 v6, 5, v1")
    if CM4:
        I("v_and_b32 v7, 3, v5")
        I(f"v_mul_u32_u24 v7, {CST}, v7")
        I("v_lshrrev_b32 v8, 2, v5")
        I("v_lshl_add_u32 v8, v6, 1, v8")
        I("v_lshl_add_u32 v7, v8, 3, v7")
    else:
        I("v_and_b32 v7, 7, v5")
        I(f"v_mul_u32_u24 v7, {CST}, v7")
        I("v_lshrrev_b32 v8, 3, v5")
        I("v_add_u32 v8, v8, v6")
        I("v_lshl_add_u32 v7, v8, 4, v7")
    I(f"v_add_u32 v7, {XREG}, v7")
    I("v_add_u32 v7, s28, v7")
    I(f"v_add_u32 v14, {HBUF}, v7")
    I("v_sub_u32 v8, 63, v5")
    I("v_mul_u32_u24 v8, 80, v8")
    I("v_lshl_add_u32 v8, v6, 4, v8")
    I("v_add_u32 v8, s28, v8")
    I("v_mov_b32 v15, v8")
    I("v_subrev_u32 v9, 2560, v8")
    I(f"v_add_u32 v10, {XREG}, v3")
    if CMG:
        I(f"v_mul_u32_u24 v11, {HHI-512}, v6")
        I("v_add_u32 v10, v10, v11")
    I(f"v_add_u32 v11, {HBUF}, v10")
    AC0, AC1 = 100, 116
    for j in range(32):
        I(f"v_mov_b32 v{AC0+j}, 0")
    FR = 132
    UE, UO, WO = 180, 189, 197
    CLA, CR = 3, 4
    for f_ in FLAGS:
        if f_.startswith("cla"): CLA = int(f_[3:]); CR = 8; UE, UO, WO = 228, 237, 245
    if CMG:
        UE, UO, WO = 196, 205, 213
        AC2 = 220
        I("s_mov_b32 s30, 0xfffff")
        I("s_mov_b32 s31, 0xfffff")
    else:
        I("s_mov_b32 s30, -1")
        I("s_mov_b32 s31, 0xf")
    q = DSQ()
    def stage_seg(w, addr):
        if CM4:
            for t in range(4):
                I(f"v_alignbit_b32 v{UE+t}, v{w+t+1}, v{w+t}, 16")
                I(f"v_alignbit_b32 v{UO+t+1}, v{w+t+2}, v{w+t+1}, 16")
                I(f"v_mov_b32 v{WO+t+1}, v{w+t+1}")
            I("s_mov_b64 exec, s[30:31]")
            for c, r in enumerate((UE, WO+1, UO+1, w+2)):
                I(f"ds_write_b128 v{addr}, v[{r}:{r+3}] offset:{c*CST}")
                q.push(("w", 0))
            I("s_mov_b64 exec, -1")
            return
        for t in range(7):
            I(f"v_alignbit_b32 v{UE+t}, v{w+t+1}, v{w+t}, 16")
            I(f"v_alignbit_b32 v{UO+t}, v{w+t+1}, v{w+t}, 16")
        for t in range(1, 7):
            I(f"v_mov_b32 v{WO+t}, v{w+t}")
        I("s_mov_b64 exec, s[30:31]")
        for c in range(8):
            if c % 2 == 0:
                t0 = c // 2
                r = UE + t0 if t0 % 2 == 0 else UO + t0
            else:
                t0 = (1 + c)//2
                r = w + t0 if t0 % 2 == 0 else WO + t0
            assert r % 2 == 0, (c, r)
            I(f"ds_write_b128 v{addr}, v[{r}:{r+3}] offset:{c*CST}")
            q.push(("w", 0))
        I("s_mov_b64 exec, -1")
    if FUSE and CV2:
        if "cvnw" not in FLAGS: I(f"s_waitcnt vmcnt({5 if 'cvw2' in FLAGS else 6})")
        if "cst2" in FLAGS: stamp()
        if "cvbar" in FLAGS: I("s_barrier")
        if "cst2" in FLAGS: stamp()
        kvloads()
        if "cvlv" not in FLAGS: vloads()
        I(f"s_waitcnt vmcnt({(7 if 'cvlv' in FLAGS else 11) + 3})")
        stage_seg(HW0, 10)
        I("s_mov_b32 s49, 0x3f803f80")
        I(f"s_waitcnt vmcnt({0 if 'cvlv' in FLAGS else 4}) lgkmcnt(0)")
        if "cvlv" in FLAGS: vloads()
        stamp()
    if FUSE:
        if CV2: pass
        elif KPF:
            if "kvb" in FLAGS:
                I("s_bitcmp1_b32 s3, 0")
                I("s_cbranch_scc1 CV_nw0")
            I(f"s_waitcnt vmcnt({4 + 2*(WLE-1) if 'nw0' in FLAGS else 0})")
            if "kvb" in FLAGS: e("CV_nw0:")
            if "cst2" in FLAGS: stamp()
            I("s_barrier")
            if "cst2" in FLAGS: stamp()
            kvloads()
            if "kvb" in FLAGS:
                if "kvbw" in FLAGS: I(f"s_waitcnt vmcnt({7 + 4 + 2*(WLE-1)})")
                I("s_barrier")
            if "vearly" in FLAGS: vloads()
            if "vpf1" in FLAGS:
                I("s_mov_b64 exec, s[54:55]")
                I("buffer_load_dword v57, v55, s[36:39], s51 offen")
                I("s_mov_b64 exec, -1")
        else:
            I("s_waitcnt vmcnt(13)")
        if not CV2:
            if "nw0" not in FLAGS: stage_seg(HW0, 10)
            I("s_mov_b32 s49, 0x3f803f80")
            if "vearly" in FLAGS:
                I("s_waitcnt vmcnt(4) lgkmcnt(0)")
                for n in range(WLE + 1, WLM + 1):
                    for x in wload(n): I(x); CVQ0.append(n)
            else:
                I(f"s_waitcnt vmcnt({0 if 'vpf1' not in FLAGS else 1}) lgkmcnt(0)")
                vloads()
            if "hpf2" in FLAGS:
                I("v_lshl_add_u32 v55, v1, 6, s27")
                I("buffer_load_dword v58, v55, s[8:11], 0 offen")
            stamp()
        for r in range(3):
            for c in range(4):
                I(f"v_mov_b32_dpp v{KP+4*r+c}, v{KO+4*(r+1)+c} wave_shr:1 row_mask:0xf bank_mask:0xf")
        def krow(r): return (KP + 4*r) if r < 3 else (KO + 4*(r-3))
        chains = [(i, h) for i in range(4) for h in range(2)]
        def T(j, i, h): return TC + 8*j + 2*i + h
        if "kvf" in FLAGS:
            I("s_mov_b32 s50, 0x05040100")
            I("s_mov_b32 s51, 0x07060302")
            for j in range(4):
                for h in range(2):
                    for r in range(6):
                        I(f"v_perm_b32 v{PP+6*h+r}, v{krow(r)+j}, v{krow(r+1)+j}, s{50+h}")
                for (i, h) in chains: I(f"v_dot2_f32_bf16 v{T(j,i,h)}, v{PP+6*h+i}, s{85+4*j+2*h}, 0")
                for (i, h) in chains: I(f"v_dot2_f32_bf16 v{T(j,i,h)}, v{PP+6*h+i+2}, s{84+4*j+2*h}, v{T(j,i,h)}")
        for j in range(4 if "kvf" not in FLAGS else 0):
            for h in range(2):
                I(f"s_lshl_b32 s{50+h}, s{84+4*j+2*h}, 16")
                I(f"s_and_b32 s{52+h}, s{84+4*j+2*h}, 0xffff0000")
                I(f"s_lshl_b32 s{54+h}, s{85+4*j+2*h}, 16")
                I(f"s_and_b32 s{56+h}, s{85+4*j+2*h}, 0xffff0000")
            for r in range(7):
                lo16(KF+2*r, krow(r)+j); hi16(KF+2*r+1, krow(r)+j)
            def P(i, t): return PP + (i*4 + t)*2
            for i in range(4):
                for t in range(4):
                    r = i + 3 - t
                    I(f"v_pk_mul_f32 v[{P(i,t)}:{P(i,t)+1}], v[{KF+2*r}:{KF+2*r+1}], s[{50+2*t}:{51+2*t}]")
            for (i, h) in chains: I(f"v_cvt_pk_bf16_f32 v{T(j,i,h)}, v{P(i,3)+h}, v{P(i,2)+h}")
            for t in (1, 0):
                for (i, h) in chains: I(f"v_dot2_f32_bf16 v{T(j,i,h)}, v{T(j,i,h)}, s49, 0")
                for (i, h) in chains: I(f"v_cvt_pk_bf16_f32 v{T(j,i,h)}, v{T(j,i,h)}, v{P(i,t)+h}")
            for (i, h) in chains: I(f"v_dot2_f32_bf16 v{T(j,i,h)}, v{T(j,i,h)}, s49, 0")
            for (i, h) in chains:
                if h == 0: I(f"v_cvt_pk_bf16_f32 v{T(j,i,h)}, v{T(j,i,h)}, 0")
                else: I(f"v_cvt_pk_bf16_f32 v{T(j,i,h)}, 0, v{T(j,i,h)}")
        if "nw0" in FLAGS: stage_seg(HW0, 10)
        if "cst2" in FLAGS: stamp()
        I(f"s_waitcnt vmcnt({1 if 'hpf2' in FLAGS else len(CVQ0)})")
        if "cst2" in FLAGS: stamp()
        for j in range(4 if "kvf" not in FLAGS else 0):
            for (i, h) in chains: I(f"v_dot2_f32_bf16 v{T(j,i,h)}, v{T(j,i,h)}, v{VV+4*i+j}, 0")
        if "kvf" in FLAGS:
            for j in range(4):
                for i in range(4):
                    lo16(KF+2*i, VV+4*i+j); hi16(KF+2*i+1, VV+4*i+j)
                for i in range(4):
                    I(f"v_pk_mul_f32 v[{T(j,i,0)}:{T(j,i,1)}], v[{T(j,i,0)}:{T(j,i,1)}], v[{KF+2*i}:{KF+2*i+1}]")
        I("s_nop 1")
        for j in range(4):
            for h in range(2):
                o = PP + 2*h + 4*j
                I(f"v_cvt_pk_bf16_f32 v{o+1}, v{T(j,1,h)}, v{T(j,0,h)}")
                I(f"v_cvt_pk_bf16_f32 v{o}, v{T(j,3,h)}, v{T(j,2,h)}")
            for h in range(2):
                o = PP + 2*h + 4*j
                ch = 2*j + h
                I(f"ds_write_b64 v{52 + ch//4}, v[{o}:{o+1}] offset:{(ch % 4)*WREG}")
        I("s_waitcnt lgkmcnt(0)")
        I("s_barrier")
        if ("cpf" in FLAGS or "cpf0" in FLAGS) and CPL < 0:
            C0 = "cpf0" in FLAGS
            I("s_mov_b32 s54, s24")
            if C0:
                I("s_cmp_ge_u32 s24, 256")
                I("s_cbranch_scc1 CV_cpfd")
                e("CV_cpfl:")
            I("s_movk_i32 s50, 56")
            I(f"s_mov_b32 s51, {384*3456}")
            I("s_mov_b32 s52, s54")
            I("s_cmp_ge_u32 s54, 108")
            I("s_cselect_b32 s50, 64, s50")
            I("s_cselect_b32 s53, 108, 0")
            I("s_cmp_ge_u32 s54, 216")
            I("s_cselect_b32 s50, 0, s50")
            I("s_cselect_b32 s53, 216, s53")
            I("s_cselect_b32 s51, 768, s51")
            I("s_cmp_ge_u32 s54, 344")
            I("s_cselect_b32 s50, 72, s50")
            I("s_cselect_b32 s53, 344, s53")
            I("s_cselect_b32 s51, 0, s51")
            I("s_load_dwordx2 s[56:57], s[0:1], s50")
            I("s_sub_u32 s52, s52, s53")
            I("s_lshl_b32 s52, s52, 6")
            I("v_add_u32 v55, s52, v1")
            I("v_lshlrev_b32 v56, 7, v55")
            I("v_lshrrev_b32 v57, 2, v55")
            I("v_mul_u32_u24 v57, 0x500, v57")
            I("v_and_b32 v55, 3, v55")
            I("v_lshl_add_u32 v57, v55, 7, v57")
            I("s_cmp_eq_u32 s50, 0")
            I("s_cselect_b64 vcc, -1, 0")
            I(f"s_mov_b32 s58, {SZ_W}")
            I(f"s_cselect_b32 s58, {SZ_SD}, s58")
            I("s_mov_b32 s59, 0x00020000")
            I("v_cndmask_b32 v56, v56, v57, vcc")
            I("s_waitcnt lgkmcnt(0)")
            I("buffer_load_dword v254, v56, s[56:59], s51 offen")
            if C0:
                I("s_add_u32 s54, s54, 256")
                I("s_cmp_lt_u32 s54, 614")
                I("s_cbranch_scc1 CV_cpfl")
                e("CV_cpfd:")
        if "hpf3" in FLAGS:
            I("v_lshl_add_u32 v55, v1, 6, s27")
            I("buffer_load_dword v58, v55, s[8:11], 0 offen")
    else:
        I("s_waitcnt vmcnt(2)")
        stamp()
        for j in range(4):
            I(f"ds_write_b128 v4, v[{XLD+4*j}:{XLD+4*j+3}] offset:{16*80*j}")
        stage_seg(HW0, 10)
    q = DSQ()
    def crd(c, both, part=None):
        f = FR + (c % CR)*12
        boff = (c >> 1)*80 + (c & 1)*32
        if part in (None, 0):
            if c < 16:
                I(f"ds_read_b128 v[{f}:{f+3}], v7 offset:{32*c}")
            else:
                I(f"ds_read_b128 v[{f}:{f+3}], v14 offset:{32*(c-16)}")
            q.push(("r", c))
            I(f"ds_read_b128 v[{f+4}:{f+7}], v9 offset:{boff}")
            q.push(("r", c))
        if both and part in (None, 1):
            I(f"ds_read_b128 v[{f+8}:{f+11}], v8 offset:{boff}")
            q.push(("r", c))
    if CM4:
        CLA = 2
        for f_ in FLAGS:
            if f_.startswith("c4la"): CLA = int(f_[4:])
        B0 = 180; MSK = 218
        def b0(dh, pp): return B0 + (dh*2 + pp)*4
        def mrd(c, part):
            f = FR + (c % 4)*12
            boff = (c >> 1)*80 + (c & 1)*32
            va, ao = (7, 32*c) if c < 8 else (14, 32*(c-8))
            if part == 0:
                I(f"ds_read_b64 v[{f}:{f+1}], v{va} offset:{ao}"); q.push(("r", c))
                I(f"ds_read_b64 v[{f+2}:{f+3}], v{va} offset:{ao+8}")
            if part == 1:
                I(f"ds_read_b64 v[{f+4}:{f+5}], v{va} offset:{ao+HHI}"); q.push(("r", c))
                I(f"ds_read_b64 v[{f+6}:{f+7}], v{va} offset:{ao+HHI+8}")
            if part == 2: I(f"ds_read_b128 v[{f+8}:{f+11}], v9 offset:{boff}")
            q.push(("r", c))
        W2 = "w2" in FLAGS
        if G2F and CWP:
            g2_setup(0)
            I("s_sub_u32 s34, s40, 22")
            I("s_lshl_b32 s34, s34, 3")
            I("s_add_u32 s34, s34, s3")
            I(f"s_mul_i32 s34, s34, {216*128}")
            I("v_lshl_add_u32 v60, v1, 7, s34")
            I(f"s_mov_b32 s34, {-54*128*CWI}")
            I("s_mov_b32 s36, -1")
            I("s_mov_b32 s37, 0x3fffff")
            if CW4:
                I("s_sub_u32 s34, s40, 22")
                I("s_lshl_b32 s34, s34, 2")
                I("s_add_u32 s34, s34, s3")
                I("s_mul_i32 s35, s34, 434")
                I("s_min_u32 s35, s35, 16846")
                I("s_lshl_b32 s35, s35, 7")
                I("v_lshl_add_u32 v60, v1, 7, s35")
                I("s_cmp_lt_u32 s3, 4")
                I("s_cselect_b32 s36, -1, 0")
                I("s_cselect_b32 s37, 0x3fffffff, 0")
                srd(12, 6, SZ_H, WS_H)
                I("s_mul_i32 s35, s34, 177")
                I("s_min_u32 s35, s35, 6735")
                I("s_lshl_b32 s35, s35, 7")
                I("s_mul_i32 s38, s42, 884736")
                I("s_add_u32 s35, s35, s38")
                I("v_lshl_add_u32 v62, v1, 7, s35")
                I("s_cmp_lt_u32 s3, 4")
                I("s_cselect_b32 s38, -1, 0")
                I("s_cselect_b32 s39, 0x7ffffff, 0")
            elif CHT >= 0:
                srd(12, 6, SZ_H, WS_H)
                I("s_sub_u32 s35, s40, 22")
                I("s_lshl_b32 s35, s35, 3")
                I("s_add_u32 s35, s35, s3")
                I("s_mul_i32 s35, s35, 88")
                I("s_min_u32 s35, s35, 6824")
                I("s_lshl_b32 s35, s35, 7")
                I("s_mul_i32 s38, s42, 884736")
                I("s_add_u32 s35, s35, s38")
                I("v_lshl_add_u32 v62, v1, 7, s35")
                I(f"s_mov_b32 s35, {-44*128*CHT}")
                I("s_mov_b32 s38, -1")
                I("s_mov_b32 s39, 0xfff")
        UNR = "unr" in FLAGS
        if UNR:
            WB_ = 64 - 6*2
            cvq = list(CVQ0)
            for n in range(WLM + 1, 8):
                if WLD and n - WLD >= 0: continue
                for x in wload(n): I(x); cvq.append(n)
            for dh in range(2):
                I(f"ds_read_b128 v[{b0(dh,0)}:{b0(dh,0)+3}], v8 offset:{32*dh}")
            for j in range(16): I(f"v_mov_b32 v{AC2+j}, 0")
            I(f"v_cmp_ne_u32 vcc, 0, v5")
            I("s_nop 1")
            I(f"v_cndmask_b32 v{MSK}, 0, -1, vcc")
            for c in range(CLA):
                for part in range(3): mrd(c, part)
            stamp()
            for it in range(8):
                q.q = [("r", c) for c in range(CLA) for _ in range(5)]
                w = wreg(it + 1) if it < 7 else None
                def AL(dst, t): return f"v_alignbit_b32 v{dst+t}, v{w+t+1}, v{w+t}, 16"
                def MV(t): return f"v_mov_b32 v{WO+t}, v{w+t}"
                def WR(c): return ("W", f"ds_write_b128 v11, v[{(UE, WO+1, UO+1, w+2)[c]}:{(UE, WO+1, UO+1, w+2)[c]+3}] offset:{c*CST}")
                slots = []
                if it < 7:
                    slots = [["V", WR(3), AL(UE,0), AL(UE,1)], [AL(UE,2), AL(UE,3)], [],
                             [WR(0), MV(1), MV(2)], [MV(3), MV(4)], [],
                             [WR(1), AL(UO,1), AL(UO,2)], [AL(UO,3), AL(UO,4)], [],
                             [WR(2)], [], [], ["P"]]
                    slots[2].append("L")
                def slot(i):
                    if i < 0 or i >= len(slots): return
                    for x in slots[i]:
                        if x == "L":
                            for n in range(WLM + 1, 8):
                                if WLD and n - WLD == it:
                                    for y_ in wload(n): I(y_); cvq.append(n)
                            if CPL == it:
                                I("buffer_load_dword v254, v56, s[12:15], 0 offen"); cvq.append(-1)
                        elif x == "V":
                            idxs = [k_ for k_, t_ in enumerate(cvq) if t_ == it + 1]
                            if idxs:
                                I(f"s_waitcnt vmcnt({len(cvq) - 1 - max(idxs)})")
                                del cvq[:max(idxs)+1]
                        elif x == "P" and CW4:
                            for k_ in CW4W[it]:
                                I(f"s_mov_b32 s34, {62*128*k_}")
                                I("s_mov_b64 exec, s[36:37]")
                                I("buffer_load_dword v97, v60, s[48:51], s34 offen")
                                I("s_mov_b64 exec, -1")
                            for k_ in CW4H[it]:
                                I(f"s_mov_b32 s35, {59*128*k_}")
                                I("s_mov_b64 exec, s[38:39]")
                                I("buffer_load_dword v98, v62, s[12:15], s35 offen")
                                I("s_mov_b64 exec, -1")
                        elif x == "P":
                            if G2F and CWP and 0 <= it - CWI < 4:
                                I(f"s_mov_b32 s34, {54*128*(it - CWI)}")
                                I("s_mov_b64 exec, s[36:37]")
                                I("buffer_load_dword v97, v60, s[48:51], s34 offen"); cvq.append(-1)
                                I("s_mov_b64 exec, -1")
                            if G2F and CWP and CHT >= 0 and 0 <= it - CHT < 2:
                                I(f"s_mov_b32 s35, {44*128*(it - CHT)}")
                                I("s_mov_b64 exec, s[38:39]")
                                I("buffer_load_dword v98, v62, s[12:15], s35 offen"); cvq.append(-1)
                                I("s_mov_b64 exec, -1")
                        elif isinstance(x, tuple):
                            I("s_mov_b64 exec, s[30:31]")
                            I(x[1]); q.push(("w", 0))
                            I("s_mov_b64 exec, -1")
                        else: I(x)
                for c in range(8):
                    f = FR + (c % 4)*12
                    bz = b0(c & 1, (c >> 1) & 1); bn = b0(c & 1, ((c >> 1) & 1) ^ 1)
                    last = it == 7 and c + CLA >= 8
                    q.wait_for(("r", c))
                    I(f"v_mfma_f32_32x32x16_bf16 v[{AC0}:{AC0+15}], v[{f}:{f+3}], v[{bz}:{bz+3}], v[{AC0}:{AC0+15}]")
                    if not last: mrd(c + CLA, 0)
                    slot(3*(c-1))
                    I(f"v_mfma_f32_32x32x16_bf16 v[{AC1}:{AC1+15}], v[{f}:{f+3}], v[{f+8}:{f+11}], v[{AC1}:{AC1+15}]")
                    if not last: mrd(c + CLA, 1)
                    slot(3*(c-1)+1 if c >= 1 else -1)
                    I(f"v_mfma_f32_32x32x16_bf16 v[{AC2}:{AC2+15}], v[{f+4}:{f+7}], v[{bz}:{bz+3}], v[{AC2}:{AC2+15}]")
                    if not last: mrd(c + CLA, 2)
                    if not (it == 7 and c >= 6):
                        for r in range(4):
                            I(f"v_and_b32_dpp v{bn+r}, v{bz+r}, v{MSK} wave_shr:1 row_mask:0xf bank_mask:0xf bound_ctrl:0")
                    slot(3*(c-1)+2 if c >= 1 else -1)
                if it < 7:
                    I("v_swap_b32 v7, v14")
                    I("v_swap_b32 v10, v11")
                    I("v_add_u32 v9, 320, v9")
        if not UNR:
            if W2:
                I(f"buffer_load_dwordx4 v[{HW0}:{HW0+3}], v2, s[8:11], s29 offen")
                I(f"buffer_load_dwordx2 v[{HW0+4}:{HW0+5}], v2, s[8:11], s29 offen offset:16")
                I("s_add_u32 s29, s29, 256")
            for dh in range(2):
                I(f"ds_read_b128 v[{b0(dh,0)}:{b0(dh,0)+3}], v8 offset:{32*dh}")
            for j in range(16): I(f"v_mov_b32 v{AC2+j}, 0")
            I(f"v_cmp_ne_u32 vcc, 0, v5")
            I("s_nop 1")
            I(f"v_cndmask_b32 v{MSK}, 0, -1, vcc")
            for c in range(CLA):
                for part in range(3): mrd(c, part)
            I("s_mov_b32 s33, 0")
            stamp()
            e("CV_loopm:")
            q.q = [("r", c) for c in range(CLA) for _ in range(5)]
            w = HW1
            def AL(dst, t): return f"v_alignbit_b32 v{dst+t}, v{w+t+1}, v{w+t}, 16"
            def MV(t): return f"v_mov_b32 v{WO+t}, v{w+t}"
            def WR(c): return ("W", f"ds_write_b128 v11, v[{(UE, WO+1, UO+1, w+2)[c]}:{(UE, WO+1, UO+1, w+2)[c]+3}] offset:{c*CST}")
            slots = [[WR(3), AL(UE,0), AL(UE,1)], [AL(UE,2), AL(UE,3)], [],
                     [WR(0), MV(1), MV(2)], [MV(3), MV(4)], [],
                     [WR(1), AL(UO,1), AL(UO,2)], [AL(UO,3), AL(UO,4)], [],
                     [WR(2), "L"], [], []]
            if W2: slots = slots[:9] + [[WR(2)], [], [], [], [], [], [], [], [], ["L"], [], []]
            def slot(i):
                if i < 0 or i >= len(slots): return
                for x in slots[i]:
                    if x == "L" and W2:
                        I("s_waitcnt vmcnt(0)")
                        for t in range(6): I(f"v_mov_b32 v{HW1+t}, v{HW0+t}")
                        I(f"buffer_load_dwordx4 v[{HW0}:{HW0+3}], v2, s[8:11], s29 offen")
                        I(f"buffer_load_dwordx2 v[{HW0+4}:{HW0+5}], v2, s[8:11], s29 offen offset:16")
                        I("s_add_u32 s29, s29, 256")
                        if G2F and CWP:
                            I(f"s_cmp_lt_u32 s34, {4*54*128}")
                            I("s_cbranch_scc0 CV_nwp")
                            I("s_mov_b64 exec, s[36:37]")
                            I("buffer_load_dword v61, v60, s[48:51], s34 offen")
                            I("s_mov_b64 exec, -1")
                            e("CV_nwp:")
                            I(f"s_add_u32 s34, s34, {54*128}")
                            if CHT >= 0:
                                I(f"s_cmp_lt_u32 s35, {2*44*128}")
                                I("s_cbranch_scc0 CV_nht")
                                I("s_mov_b64 exec, s[38:39]")
                                I("buffer_load_dword v63, v62, s[12:15], s35 offen")
                                I("s_mov_b64 exec, -1")
                                e("CV_nht:")
                                I(f"s_add_u32 s35, s35, {44*128}")
                    elif x == "L":
                        I(f"buffer_load_dwordx4 v[{HW1}:{HW1+3}], v2, s[8:11], s29 offen")
                        I(f"buffer_load_dwordx2 v[{HW1+4}:{HW1+5}], v2, s[8:11], s29 offen offset:16")
                        I("s_add_u32 s29, s29, 256")
                    elif isinstance(x, tuple):
                        I("s_mov_b64 exec, s[30:31]")
                        I(x[1]); q.push(("w", 0))
                        I("s_mov_b64 exec, -1")
                    else: I(x)
            for c in range(8):
                if c == 1 and not W2: I("s_waitcnt vmcnt(0)")
                f = FR + (c % 4)*12
                bz = b0(c & 1, (c >> 1) & 1); bn = b0(c & 1, ((c >> 1) & 1) ^ 1)
                q.wait_for(("r", c))
                I(f"v_mfma_f32_32x32x16_bf16 v[{AC0}:{AC0+15}], v[{f}:{f+3}], v[{bz}:{bz+3}], v[{AC0}:{AC0+15}]")
                mrd(c + CLA, 0)
                slot(3*(c-1))
                I(f"v_mfma_f32_32x32x16_bf16 v[{AC1}:{AC1+15}], v[{f}:{f+3}], v[{f+8}:{f+11}], v[{AC1}:{AC1+15}]")
                mrd(c + CLA, 1)
                slot(3*(c-1)+1 if c >= 1 else -1)
                I(f"v_mfma_f32_32x32x16_bf16 v[{AC2}:{AC2+15}], v[{f+4}:{f+7}], v[{bz}:{bz+3}], v[{AC2}:{AC2+15}]")
                mrd(c + CLA, 2)
                for r in range(4):
                    I(f"v_and_b32_dpp v{bn+r}, v{bz+r}, v{MSK} wave_shr:1 row_mask:0xf bank_mask:0xf bound_ctrl:0")
                slot(3*(c-1)+2 if c >= 1 else -1)
            I("v_swap_b32 v7, v14")
            I("v_swap_b32 v10, v11")
            I("v_add_u32 v9, 320, v9")
            I("s_add_u32 s33, s33, 1")
            I("s_cmp_lt_u32 s33, 8")
            I("s_cbranch_scc1 CV_loopm")
        I("s_nop 7")
        I("s_nop 7")
        I("s_nop 3")
        for j in range(16): I(f"v_add_f32 v{AC1+j}, v{AC1+j}, v{AC2+j}")
    elif CMG:
        def mrd(c, part):
            f = FR + (c % 4)*16
            boff = (c >> 1)*80 + (c & 1)*32
            va, ao = (7, 32*c) if c < 8 else (14, 32*(c-8))
            if "cvnob" in FLAGS and part >= 2: return
            if part == 0: I(f"ds_read_b128 v[{f}:{f+3}], v{va} offset:{ao}")
            if part == 1: I(f"ds_read_b128 v[{f+4}:{f+7}], v{va} offset:{ao+HHI}")
            if part == 2: I(f"ds_read_b128 v[{f+8}:{f+11}], v8 offset:{boff}")
            if part == 3: I(f"ds_read_b128 v[{f+12}:{f+15}], v9 offset:{boff}")
            q.push(("r", c))
        for j in range(16): I(f"v_mov_b32 v{AC2+j}, 0")
        for c in range(CLA):
            for part in range(4): mrd(c, part)
        I("s_mov_b32 s33, 0")
        stamp()
        e("CV_loopm:")
        q.q = [("r", c) for c in range(CLA) for _ in range(2 if "cvnob" in FLAGS else 4)]
        w = HW1
        def AL(dst, t): return f"v_alignbit_b32 v{dst+t}, v{w+t+1}, v{w+t}, 16"
        def MV(t): return f"v_mov_b32 v{WO+t}, v{w+t}"
        def WR(c):
            if c % 2 == 0:
                t0 = c // 2
                r = UE + t0 if t0 % 2 == 0 else UO + t0
            else:
                t0 = (1 + c)//2
                r = w + t0 if t0 % 2 == 0 else WO + t0
            return ("W", f"ds_write_b128 v11, v[{r}:{r+3}] offset:{c*CST}")
        slots = [[WR(3), AL(UE,0), AL(UE,1)], [WR(7), AL(UE,2), AL(UE,3)], [WR(0), AL(UE,4), AL(UE,5)],
                 [WR(4), MV(1), MV(2)], [MV(3), MV(4)], [WR(1), MV(5), MV(6)],
                 [WR(5), AL(UO,1), AL(UO,2)], [AL(UO,3), AL(UO,4)], [WR(2), AL(UO,5), AL(UO,6)],
                 [WR(6)], ["L"], []]
        def slot(i):
            if i < 0 or i >= len(slots): return
            for x in slots[i]:
                if x == "L":
                    I(f"buffer_load_dwordx4 v[{HW1}:{HW1+3}], v2, s[8:11], s29 offen")
                    I(f"buffer_load_dwordx4 v[{HW1+4}:{HW1+7}], v2, s[8:11], s29 offen offset:16")
                    I("s_add_u32 s29, s29, 256")
                elif isinstance(x, tuple):
                    I("s_mov_b64 exec, s[30:31]")
                    I(x[1]); q.push(("w", 0))
                    I("s_mov_b64 exec, -1")
                else: I(x)
        for c in range(8):
            if c == 1: I("s_waitcnt vmcnt(0)")
            f = FR + (c % 4)*16
            q.wait_for(("r", c))
            I(f"v_mfma_f32_32x32x16_bf16 v[{AC0}:{AC0+15}], v[{f}:{f+3}], v[{f+8}:{f+11}], v[{AC0}:{AC0+15}]")
            mrd(c + CLA, 0)
            slot(3*(c-1))
            I(f"v_mfma_f32_32x32x16_bf16 v[{AC1}:{AC1+15}], v[{f}:{f+3}], v[{f+12}:{f+15}], v[{AC1}:{AC1+15}]")
            mrd(c + CLA, 1); mrd(c + CLA, 2)
            slot(3*(c-1)+1 if c >= 1 else -1)
            I(f"v_mfma_f32_32x32x16_bf16 v[{AC2}:{AC2+15}], v[{f+4}:{f+7}], v[{f+8}:{f+11}], v[{AC2}:{AC2+15}]")
            mrd(c + CLA, 3)
            slot(3*(c-1)+2 if c >= 1 else -1)
        I("v_swap_b32 v7, v14")
        I("v_swap_b32 v10, v11")
        I("v_add_u32 v8, 320, v8")
        I("v_add_u32 v9, 320, v9")
        I("s_add_u32 s33, s33, 1")
        I("s_cmp_lt_u32 s33, 8")
        I("s_cbranch_scc1 CV_loopm")
        I("s_nop 7")
        I("s_nop 7")
        I("s_nop 3")
        for j in range(16): I(f"v_add_f32 v{AC1+j}, v{AC1+j}, v{AC2+j}")
    else:
        for c in range(CLA):
            crd(c, True)
        I("s_mov_b32 s33, 0")
        stamp()
    for phase in range(2 if not CMG else 0):
        both = (phase == 0)
        e(f"CV_loop{phase}:")
        q.q = [("r", c) for c in range(CLA) for _ in range(3 if both else 2)]
        for c in range(16):
            if c == 1:
                I("s_waitcnt vmcnt(0)")
                stage_seg(HW1, 11)
                if "cvnoload" not in FLAGS:
                    I(f"buffer_load_dwordx4 v[{HW1}:{HW1+3}], v2, s[8:11], s29 offen")
                    I(f"buffer_load_dwordx4 v[{HW1+4}:{HW1+7}], v2, s[8:11], s29 offen offset:16")
                I("s_add_u32 s29, s29, 512")
            f = FR + (c % CR)*12
            if "cvi" in FLAGS:
                q.wait_for(("r", c))
                I(f"v_mfma_f32_32x32x16_bf16 v[{AC1}:{AC1+15}], v[{f}:{f+3}], v[{f+4}:{f+7}], v[{AC1}:{AC1+15}]")
                crd(c + CLA, both, 0)
                if both:
                    I(f"v_mfma_f32_32x32x16_bf16 v[{AC0}:{AC0+15}], v[{f}:{f+3}], v[{f+8}:{f+11}], v[{AC0}:{AC0+15}]")
                    crd(c + CLA, both, 1)
            else:
                crd(c + CLA, both)
                q.wait_for(("r", c))
                I(f"v_mfma_f32_32x32x16_bf16 v[{AC1}:{AC1+15}], v[{f}:{f+3}], v[{f+4}:{f+7}], v[{AC1}:{AC1+15}]")
                if both:
                    I(f"v_mfma_f32_32x32x16_bf16 v[{AC0}:{AC0+15}], v[{f}:{f+3}], v[{f+8}:{f+11}], v[{AC0}:{AC0+15}]")
        I("v_swap_b32 v7, v14")
        I("v_swap_b32 v10, v11")
        I("v_add_u32 v8, 640, v8")
        I("v_add_u32 v9, 640, v9")
        I("s_add_u32 s33, s33, 1")
        I(f"s_cmp_lt_u32 s33, {4*(phase+1)}")
        I(f"s_cbranch_scc1 CV_loop{phase}")
    I("v_mov_b32 v8, v15")
    I("s_waitcnt vmcnt(0) lgkmcnt(0)" if "unr" not in FLAGS else "s_waitcnt lgkmcnt(0)")
    stamp()
    if G2F:
        if not CWP: g2_setup(0)
        I("s_lshr_b32 s42, s24, 3")
        I("s_mul_i32 s43, s42, 0xCCCD")
        I("s_lshr_b32 s43, s43, 19")
        I("s_mul_i32 s41, s43, 10")
        I("s_sub_u32 s42, s42, s41")
        I("s_lshl_b32 s42, s42, 2")
        I("s_lshl_b32 s43, s43, 7")
        I("s_add_u32 s43, s43, s42")
        I("s_add_u32 s43, s43, 88")
    if YST:
        I("v_mul_u32_u24 v140, 80, v5")
        I("v_lshl_add_u32 v140, v6, 3, v140")
        I("s_add_u32 s42, s28, 12800")
        I("v_add_u32 v140, s42, v140")
        I("v_lshrrev_b32 v141, 2, v1")
        I("v_mul_u32_u24 v141, 80, v141")
        I("v_and_b32 v142, 3, v1")
        I("v_lshl_add_u32 v141, v142, 4, v141")
        I("v_add_u32 v141, s42, v141")
        I("v_lshl_add_u32 v142, v1, 4, s27")
        if "yt2" in FLAGS:
            I("v_lshrrev_b32 v142, 3, v1")
            I("v_mul_u32_u24 v142, 81920, v142")
            I("v_and_b32 v143, 7, v1")
            I("v_lshl_add_u32 v142, v143, 4, v142")
            I("s_lshl_b32 s42, s24, 7")
    I("v_mul_u32_u24 v10, 24, v6")
    I("v_sub_u32 v10, v8, v10")
    I("v_add_u32 v10, 8, v10")
    I("v_subrev_u32 v11, 2560, v10")
    KV = 16
    for cb in range(2):
        for qq in range(4):
            I(f"ds_read_b64 v[{KV+cb*8+2*qq}:{KV+cb*8+2*qq+1}], v{10+cb} offset:{48-16*qq}")
    I("s_and_b32 s25, s24, 1")
    I("s_lshl_b32 s25, s25, 4")
    I("s_lshr_b32 s26, s26, s25")
    I("s_lshl_b32 s26, s26, 16")
    I("v_lshlrev_b32 v12, 6, v5")
    I("v_lshl_add_u32 v12, v6, 3, v12")
    I("v_add_u32 v12, s27, v12")
    I("s_nop 7")
    I("s_waitcnt lgkmcnt(0)")
    for cb in range(2):
        ac = AC0 if cb == 0 else AC1
        for qq in range(4):
            k0 = KV + cb*8 + 2*qq
            t = 40 + (qq % 2)*12
            y = ac + 4*qq
            hi16(t+0, k0+1); lo16(t+1, k0+1); hi16(t+2, k0); lo16(t+3, k0)
            for r in range(4):
                I(f"v_mul_f32 v{t+r}, s26, v{t+r}")
            I(f"v_cvt_pk_bf16_f32 v{t+4}, v{t}, v{t+1}")
            I(f"v_cvt_pk_bf16_f32 v{t+5}, v{t+2}, v{t+3}")
            I(f"v_cvt_pk_bf16_f32 v{t+6}, v{y}, v{y+1}")
            I(f"v_cvt_pk_bf16_f32 v{t+7}, v{y+2}, v{y+3}")
            lo16(t, t+4); hi16(t+1, t+4); lo16(t+2, t+5); hi16(t+3, t+5)
            lo16(y, t+6); hi16(y+1, t+6); lo16(y+2, t+7); hi16(y+3, t+7)
            for r in range(4):
                I(f"v_add_f32 v{t+r}, v{t+r}, v{y+r}")
            I(f"v_cvt_pk_bf16_f32 v{t+8}, v{t}, v{t+1}")
            I(f"v_cvt_pk_bf16_f32 v{t+9}, v{t+2}, v{t+3}")
            if YST: I(f"ds_write_b64 v140, v[{t+8}:{t+9}] offset:{cb*2560+16*qq}")
            else: I(f"buffer_store_dwordx2 v[{t+8}:{t+9}], v12, s[20:23], 0 offen offset:{cb*2048+16*qq}")
    if YST:
        I("s_waitcnt lgkmcnt(0)")
        for i in range(4): I(f"ds_read_b128 v[{16+4*i}:{19+4*i}], v141 offset:{1280*i}")
        for i in range(4):
            I(f"s_waitcnt lgkmcnt({3-i})")
            if "yt2" in FLAGS:
                I(f"buffer_store_dwordx4 v[{16+4*i}:{19+4*i}], v142, s[20:23], s42 offen{SCY}")
                if i < 3: I(f"s_add_u32 s42, s42, {8*81920}")
            else: I(f"buffer_store_dwordx4 v[{16+4*i}:{19+4*i}], v142, s[20:23], 0 offen offset:{1024*i}{SCY}")
    if G2F:
        g2_head("conv")
        gen_g2()
    I("s_waitcnt vmcnt(0)")
    stamp()
    stamp_dump(255 if BIG else N_G1 + 7)
    if BIG: wgt_end(1)
    I("s_endpgm")
    e("M_wdt:")
    I("s_waitcnt lgkmcnt(0)")
    if "wlate" in FLAGS: I("s_barrier")
    if BIG and "pfm" in FLAGS:
        I("s_sub_u32 s26, s3, 6")
        I("s_mul_i32 s27, s26, 176")
        I("s_sub_u32 s27, s24, s27")
        I("s_lshl_b32 s26, s26, 3")
        I("s_add_u32 s26, s26, 56")
        I("s_load_dwordx2 s[28:29], s[0:1], s26")
        I("s_mul_i32 s27, s27, 12800")
        I(f"s_mov_b32 s30, {SZ_W}")
        I("s_mov_b32 s31, 0x00020000")
        I("v_and_b32 v1, 63, v0")
        I("v_lshlrev_b32 v1, 4, v1")
        I("s_waitcnt lgkmcnt(0)")
        for i in range(13):
            I(f"buffer_load_dwordx4 v[{100+4*i}:{103+4*i}], v1, s[28:31], s27 offen")
            I("s_add_u32 s27, s27, 1024")
    if "pfa128" in FLAGS or "pfa64" in FLAGS:
        G = 128 if "pfa128" in FLAGS else 64
        NL = 1792 // G
        I("s_cmp_lg_u32 s3, 3")
        I("s_cbranch_scc1 M_nopf")
        I("s_bfe_u32 s26, s2, 0x50003")
        I("s_lshr_b32 s27, s26, 4")
        I("s_lshl_b32 s27, s27, 3")
        I("s_add_u32 s27, s27, 56")
        I("s_load_dwordx2 s[28:29], s[0:1], s27")
        I("s_and_b32 s26, s26, 15")
        I("s_mul_i32 s26, s26, 138240")
        I("s_bfe_u32 s27, s2, 0x10002")
        I("s_mul_i32 s27, s27, 1792")
        I("s_add_u32 s26, s26, s27")
        I(f"s_mov_b32 s30, {SZ_W}")
        I("s_mov_b32 s31, 0x00020000")
        I("v_and_b32 v1, 63, v0")
        I("s_waitcnt lgkmcnt(0)")
        n = (40*NL + 63)//64
        mul = (65536 + NL - 1)//NL
        for i in range(n):
            I(f"v_add_u32 v2, {64*i}, v1")
            I(f"v_mul_u32_u24 v3, {mul}, v2")
            I("v_lshrrev_b32 v3, 16, v3")
            I(f"v_mul_u32_u24 v4, {NL}, v3")
            I("v_sub_u32 v4, v2, v4")
            I("v_mul_u32_u24 v3, 3456, v3")
            I(f"v_lshl_add_u32 v{100+i}, v4, {7 if G==128 else 6}, v3")
            I(f"buffer_load_dword v{140+i}, v{100+i}, s[28:31], s26 offen")
        e("M_nopf:")
    WBAR = 0
    for f_ in FLAGS:
        if f_.startswith("wbar"): WBAR = int(f_[4:])
    I("s_cmp_ge_u32 s24, 270")
    I(f"s_cbranch_scc1 {'M_exitb' if WBAR else 'M_exitw'}")
    I("s_load_dwordx2 s[4:5], s[0:1], 72")
    I("s_mul_i32 s17, s24, 0xCCCD")
    I("s_lshr_b32 s17, s17, 19")
    I("s_mul_i32 s18, s17, 10")
    I("s_sub_u32 s18, s24, s18")
    I("v_and_b32 v1, 7, v0")
    I("v_bfe_u32 v2, v0, 3, 2")
    I("v_bfe_u32 v6, v0, 5, 1")
    I("s_lshl_b32 s18, s18, 6")
    I("v_lshl_add_u32 v1, v1, 3, s18")
    I("s_lshl_b32 s19, s17, 1")
    I("v_add_u32 v6, s19, v6")
    I("v_lshlrev_b32 v7, 5, v6")
    I("v_lshl_add_u32 v7, v2, 2, v7")
    I("v_mul_u32_u24 v3, 0x500, v7")
    I("v_lshl_add_u32 v3, v1, 1, v3")
    I("v_add_u32 v4, 0x5000, v3")
    I("s_waitcnt lgkmcnt(0)")
    srd(8, 4, SZ_W)
    srd(12, 6, SZ_W, WS_WDT)
    for i in range(8):
        b = 3 if i < 4 else 4
        I(f"buffer_load_dwordx4 v[{8+4*i}:{11+4*i}], v{b}, s[8:11], 0 offen offset:{(i%4)*1280}")
    I("s_mov_b32 s20, 0x05040100")
    I("s_mov_b32 s21, 0x07060302")
    I("v_lshrrev_b32 v5, 4, v1")
    I("v_mul_u32_u24 v5, 54, v5")
    I("v_add_u32 v5, v5, v6")
    I("v_lshlrev_b32 v5, 10, v5")
    I("v_lshl_add_u32 v5, v2, 8, v5")
    I("v_and_b32 v7, 15, v1")
    I("v_lshl_add_u32 v5, v7, 4, v5")
    for _ in range(WBAR): I("s_barrier")
    I("s_waitcnt vmcnt(0)")
    for dd in range(8):
        ob = 40 + 4*dd
        sel = 20 + (dd & 1)
        for q in range(4):
            I(f"v_perm_b32 v{ob+q}, v{8+4*(2*q+1)+dd//2}, v{8+4*(2*q)+dd//2}, s{sel}")
    for dd in range(8):
        ob = 40 + 4*dd
        I(f"buffer_store_dwordx4 v[{ob}:{ob+3}], v5, s[12:15], 0 offen offset:{16*dd}")
    if WBAR:
        I("s_endpgm")
        e("M_exitb:")
        for _ in range(WBAR): I("s_barrier")
    e("M_exitw:")
    I("s_waitcnt vmcnt(0)")
    e("M_exit:")
    I("s_endpgm")
    if FUSE: kernel_desc("mid_kernel", 256, 102)
    else: kernel_desc("mid_kernel", 256 if any(f.startswith("cla") for f in FLAGS) else (240 if BIG else 208), 80)

def gen_k3():
    kernel_header("fin_kernel")
    I(f"s_cmp_ge_u32 s2, {64 if 'fin64' in FLAGS else 256}")
    I("s_cbranch_scc1 F_exit")
    I("s_load_dwordx2 s[6:7], s[0:1], 96")
    I("s_load_dwordx2 s[4:5], s[0:1], 0")
    I("s_load_dwordx2 s[30:31], s[0:1], 80")
    stamp()
    I("v_lshrrev_b32 v1, 6, v0")
    I("s_nop 0")
    I("v_readfirstlane_b32 s3, v1")
    I("s_waitcnt lgkmcnt(0)")
    if "fsb" in FLAGS: stamp()
    srd(8, 6, SZ_W, WS_WDT)
    srd(12, 6, SZ_H, WS_H)
    srd(16, 6, SZ_SD, WS_YT)
    if FUSE: srd(20, 6, S*8, WS_ST)
    else: srd(20, 6, SZ_SD, WS_XN)
    srd(24, 4, SZ_SD)
    srd(32, 30, SZ_SD)
    if "fin2e" in FLAGS:
        I("s_bfe_u32 s36, s2, 0x10002")
        I("s_lshl_b32 s36, s36, 2")
        I("s_bfe_u32 s37, s2, 0x20003")
        I("s_add_u32 s36, s36, s37")
        I("s_mul_i32 s36, s36, 80")
        I("s_and_b32 s37, s2, 3")
        I("s_lshl_b32 s37, s37, 3")
        I("s_lshr_b32 s38, s2, 5")
        I("s_add_u32 s37, s37, s38")
        I("s_lshl_b32 s37, s37, 6")
    elif "fin2d" in FLAGS:
        I("s_and_b32 s36, s2, 1")
        I("s_lshl_b32 s36, s36, 2")
        I("s_bfe_u32 s37, s2, 0x20003")
        I("s_add_u32 s36, s36, s37")
        I("s_mul_i32 s36, s36, 80")
        I("s_bfe_u32 s37, s2, 0x20001")
        I("s_lshl_b32 s37, s37, 3")
        I("s_lshr_b32 s38, s2, 5")
        I("s_add_u32 s37, s37, s38")
        I("s_lshl_b32 s37, s37, 6")
    elif "finswap" in FLAGS:
        I("s_lshr_b32 s36, s2, 5")
        I("s_mul_i32 s36, s36, 80")
        I("s_and_b32 s37, s2, 31")
        I("s_lshl_b32 s37, s37, 6")
    else:
        I("s_and_b32 s36, s2, 7")
        I("s_mul_i32 s36, s36, 80")
        I("s_lshr_b32 s37, s2, 3")
        I("s_lshl_b32 s37, s37, 6")
    I("s_mul_i32 s38, s3, 14")
    I("s_cmp_eq_u32 s3, 3")
    I("s_cselect_b32 s39, 1, 0")
    I("s_sub_u32 s38, s38, s39")
    I("s_cmp_ge_u32 s3, 2")
    I("s_cselect_b32 s39, 13, 14")
    I("s_add_u32 s47, s38, s39")
    I("s_lshl_b32 s45, s38, 10")
    I("s_lshl_b32 s47, s47, 10")
    if "rot" in FLAGS:
        I("s_bfe_u32 s46, s2, 0x20003")
        I("s_lshl_b32 s46, s46, 2")
        I("s_lshr_b32 s44, s2, 5")
        I("s_lshl_b32 s44, s44, 1")
        I("s_add_u32 s46, s46, s44")
        I("s_cmp_ge_u32 s46, 13")
        I("s_cselect_b32 s44, 13, 0")
        I("s_sub_u32 s46, s46, s44")
        I("s_cmp_ge_u32 s46, 13")
        I("s_cselect_b32 s44, 13, 0")
        I("s_sub_u32 s46, s46, s44")
        I("s_lshl_b32 s46, s46, 10")
        I("s_add_u32 s46, s46, s45")
    else:
        I("s_mov_b32 s46, s45")
    I("s_mov_b32 s44, 0")
    I("v_and_b32 v1, 15, v0")
    I("v_bfe_u32 v2, v0, 4, 2")
    I("v_and_b32 v12, 63, v0")
    if "pf" in FLAGS:
        I("s_lshr_b32 s52, s2, 3")
        I("s_lshl_b32 s52, s52, 2")
        I("s_add_u32 s52, s52, s3")
        I("s_and_b32 s53, s2, 1")
        I("s_mul_i32 s53, s53, 1105920")
        I("s_mul_i32 s54, s52, 8640")
        I("s_add_u32 s53, s53, s54")
        I("v_lshlrev_b32 v240, 6, v12")
        I("buffer_load_dword v241, v240, s[8:11], s53 offen")
        I("s_add_u32 s53, s53, 4096")
        I("buffer_load_dword v242, v240, s[8:11], s53 offen")
        I("s_add_u32 s53, s53, 544")
        I("buffer_load_dword v243, v240, s[8:11], s53 offen")
        I("s_bfe_u32 s53, s2, 0x20001")
        I("s_mul_i32 s53, s53, 1769472")
        I("s_mul_i32 s54, s52, 13824")
        I("s_add_u32 s53, s53, s54")
        for i, inc in enumerate((4096, 4096, 1536, 0)):
            I(f"buffer_load_dword v{244+i}, v240, s[12:15], s53 offen")
            if inc: I(f"s_add_u32 s53, s53, {inc}")
    I("s_lshr_b32 s52, s36, 4")
    I("s_mul_i32 s52, s52, 55296")
    I("v_lshl_add_u32 v3, v12, 4, s52")
    for jd in range(1, 5):
        I(f"v_add_u32 v{3+jd}, {jd*55296}, v3")
    I("s_lshr_b32 s52, s37, 4")
    I("s_mul_i32 s52, s52, 55296")
    I("v_lshl_add_u32 v8, v12, 4, s52")
    for js in range(1, 4):
        I(f"v_add_u32 v{8+js}, {js*55296}, v8")
    def acc(jd, js): return (js*5 + jd)*4
    FRB = 16
    NB = 5
    def ld(buf):
        f = FRB + buf*36
        I("s_cmp_lt_u32 s44, s39")
        I("s_cselect_b32 s48, s46, 0x40000000")
        for jd in range(5):
            r = f + 4*jd
            I(f"buffer_load_dwordx4 v[{r}:{r+3}], v{3+jd}, s[8:11], s48 offen{CP}")
        for js in range(4):
            r = f + 20 + 4*js
            I(f"buffer_load_dwordx4 v[{r}:{r+3}], v{8+js}, s[12:15], s48 offen{CP}")
        I("s_add_u32 s46, s46, 1024")
        I("s_cmp_ge_u32 s46, s47")
        I("s_cselect_b32 s46, s45, s46")
        I("s_add_u32 s44, s44, 1")
    def mm(buf):
        f = FRB + buf*36
        for js in range(4):
            for jd in range(5):
                c = acc(jd, js)
                a = f + 4*jd; b = f + 20 + 4*js
                I(f"v_mfma_f32_16x16x32_bf16 a[{c}:{c+3}], v[{a}:{a+3}], v[{b}:{b+3}], a[{c}:{c+3}]")
    YF = 196; XX = 216
    FINL = -1
    for f_ in FLAGS:
        if f_.startswith('finl'): FINL = int(f_[4:])
    def epi_loads():
        I0 = globals()["I"]
        def I(x):
            if "xne" in FLAGS and x.startswith("buffer_load"): return
            I0(x)
        I("s_lshr_b32 s41, s3, 1")
        I("s_lshl_b32 s41, s41, 5")
        I("s_add_u32 s41, s41, s37")
        I("s_lshl_b32 s41, s41, 1")
        I("v_add_u32 v14, s36, v1")
        I("v_lshlrev_b32 v14, 12, v14")
        I("v_lshl_add_u32 v14, v2, 4, v14")
        I("v_add_u32 v14, s41, v14")
        YF = 196
        for jd in range(5):
            I(f"v_add_u32 v15, {jd*16*4096}, v14")
            I(f"buffer_load_dwordx4 v[{YF+4*jd}:{YF+4*jd+3}], v15, s[16:19], 0 offen")
        I("s_lshl_b32 s42, s3, 4")
        I("s_add_u32 s42, s42, s37")
        I("v_add_u32 v15, s42, v1")
        I("v_mul_u32_u24 v15, 0x500, v15")
        I("v_lshl_add_u32 v15, v2, 3, v15")
        I("s_lshl_b32 s43, s36, 1")
        I("v_add_u32 v15, s43, v15")
        XX = 216
        I("s_lshr_b32 s50, s42, 4")
        I("s_mul_i32 s50, s50, 20480")
        I("v_lshrrev_b32 v14, 1, v2")
        I("v_lshlrev_b32 v14, 8, v14")
        I("v_lshl_add_u32 v14, v1, 4, v14")
        I("v_and_b32 v13, 1, v2")
        I("v_lshl_add_u32 v14, v13, 3, v14")
        I("v_add_u32 v14, s50, v14")
        if FUSE:
            I("v_add_u32 v14, s42, v1")
            I("v_lshlrev_b32 v14, 3, v14")
            I(f"buffer_load_dwordx2 v[{XX+10}:{XX+11}], v14, s[20:23], 0 offen")
        for jd in range(5):
            I(f"buffer_load_dwordx2 v[{XX+2*jd}:{XX+2*jd+1}], v15, s[24:27], 0 offen offset:{32*jd}")
            if FUSE: continue
            I(f"s_add_u32 s50, s36, {16*jd}")
            I("s_lshr_b32 s51, s50, 5")
            I("s_lshl_b32 s51, s51, 10")
            I("s_and_b32 s50, s50, 16")
            I("s_lshl_b32 s50, s50, 5")
            I("s_add_u32 s51, s51, s50")
            I(f"buffer_load_dwordx2 v[{XX+10+2*jd}:{XX+11+2*jd}], v14, s[20:23], s51 offen")
    if "fsb" in FLAGS: stamp()
    if FINL < 0 and not ("nf" in FLAGS and any(f_.startswith("el") for f_ in FLAGS)): epi_loads()
    if "fsb" in FLAGS: stamp()
    NB2 = NB
    for f_ in FLAGS:
        if f_.startswith("nb"): NB2 = int(f_[2:])
    def breg(buf, i):
        if buf < 5: return "v", FRB + buf*36 + 4*i
        return "a", 80 + (buf-5)*36 + 4*i
    def ld2(buf):
        for jd in range(5):
            t, r = breg(buf, jd)
            I(f"buffer_load_dwordx4 {t}[{r}:{r+3}], v{3+jd}, s[8:11], s46 offen{CP}")
        for js in range(4):
            t, r = breg(buf, 5+js)
            I(f"buffer_load_dwordx4 {t}[{r}:{r+3}], v{8+js}, s[12:15], s46 offen{CP}")
        I("s_add_u32 s46, s46, 1024")
    def mm2(buf, zero=False):
        for js in range(4):
            for jd in range(5):
                c = acc(jd, js)
                t, a = breg(buf, jd); t, b = breg(buf, 5+js)
                cin = "0" if zero else f"a[{c}:{c+3}]"
                I(f"v_mfma_f32_16x16x32_bf16 a[{c}:{c+3}], {t}[{a}:{a+3}], {t}[{b}:{b+3}], {cin}")
    NEWF = "nf" in FLAGS
    ELP = -1; SPK = 4
    for f_ in FLAGS:
        if f_.startswith("el"): ELP = int(f_[2:])
        if f_.startswith("spk"): SPK = int(f_[3:])
    for b in range(NB2-1):
        ld2(b)
        if NEWF and ELP == b and "xne" not in FLAGS: epi_loads()
        if "fsb" in FLAGS: stamp()
    if FINL >= 0: epi_loads()
    if not NEWF:
        for j in range(80):
            I(f"v_accvgpr_write_b32 a{j}, 0")
    HOIST = "hoist" in FLAGS
    def hoisted(part=None):
        IDB2, TQ, TYQ = 244, 248, 236
        if part is None or part == 0:
            I("s_and_b32 s44, s3, 1")
            I("s_lshl_b32 s44, s44, 4")
            I(f"v_add_u32 v{TQ}, s44, v1")
            I(f"v_lshrrev_b32 v{TQ+1}, 3, v{TQ}")
            I(f"v_cmp_eq_u32 vcc, v{TQ+1}, v2")
            I(f"v_and_b32 v{TQ+1}, 7, v{TQ}")
            I(f"v_and_b32 v{TQ+2}, 1, v{TQ+1}")
            I(f"v_lshlrev_b32 v{TQ+2}, 4, v{TQ+2}")
            I(f"v_mov_b32 v{TQ+3}, 0x3f80")
            I(f"v_lshlrev_b32 v{TQ+3}, v{TQ+2}, v{TQ+3}")
            I(f"v_lshrrev_b32 v{TQ+1}, 1, v{TQ+1}")
            I(f"v_cndmask_b32 v{TQ+3}, 0, v{TQ+3}, vcc")
            for j in range(4):
                I(f"v_cmp_eq_u32 vcc, {j}, v{TQ+1}")
                I("s_nop 1")
                I(f"v_cndmask_b32 v{IDB2+j}, 0, v{TQ+3}, vcc")
        if part is None:
            if "fsb" in FLAGS: stamp()
            if FINL < 0: I(f"s_waitcnt vmcnt({9*(NB2-1)})")
            if "fsb" in FLAGS: stamp()
        I("s_nop 1")
        for jd in range(5):
            if part is not None and jd != part: continue
            ty = TYQ + (jd % 2)*4; t = TQ + (jd % 2)*4
            x0 = XX + 2*jd; n0 = XX + 10 + 2*jd
            I(f"v_mfma_f32_16x16x32_bf16 v[{ty}:{ty+3}], v[{YF+4*jd}:{YF+4*jd+3}], v[{IDB2}:{IDB2+3}], 0")
            if FUSE:
                lo16(t, x0); hi16(t+1, x0); lo16(t+2, x0+1); hi16(t+3, x0+1)
                for r in range(4): I(f"v_add_f32 v{t+r}, v{t+r}, v{XX+11}")
                for r in range(4): I(f"v_cvt_pk_bf16_f32 v{t+r}, 0, v{t+r}")
                for r in range(4): I(f"v_mul_f32 v{t+r}, v{t+r}, v{XX+10}")
                for r in range(4): I(f"v_cvt_pk_bf16_f32 v{t+r}, 0, v{t+r}")
            else:
                lo16(t, n0); hi16(t+1, n0); lo16(t+2, n0+1); hi16(t+3, n0+1)
            I("s_nop 7")
            I("s_nop 3")
            for r in range(4):
                I(f"v_mul_f32 v{t+r}, v{t+r}, v{ty+r}")
            I(f"v_cvt_pk_bf16_f32 v{ty}, v{t}, v{t+1}")
            I(f"v_cvt_pk_bf16_f32 v{ty+1}, v{t+2}, v{t+3}")
            lo16(t, ty); hi16(t+1, ty); lo16(t+2, ty+1); hi16(t+3, ty+1)
            lo16(ty, x0); hi16(ty+1, x0); lo16(ty+2, x0+1); hi16(ty+3, x0+1)
            for r in range(4):
                I(f"v_add_f32 v{t+r}, v{t+r}, v{ty+r}")
            I(f"v_cvt_pk_bf16_f32 v{x0}, v{t}, v{t+1}")
            I(f"v_cvt_pk_bf16_f32 v{x0+1}, v{t+2}, v{t+3}")
    if HOIST and FINL < 0 and not NEWF: hoisted()
    stamp()
    NEL = 0 if "xne" in FLAGS else 11
    for k in range(14):
        nb = k + NB2 - 1
        if nb <= 12:
            ld2(nb % NB2)
            if NEWF and ELP == nb and "xne" not in FLAGS: epi_loads()
        elif nb == 13:
            I("s_cmp_ge_u32 s3, 2")
            I("s_cbranch_scc1 F_skip13")
            ld2(nb % NB2)
            e("F_skip13:")
        if k == 13:
            I("s_cmp_ge_u32 s3, 2")
            I("s_cbranch_scc1 F_done")
        rem = max(0, min(12, nb) - k)
        extra = NEL if (FINL >= 0 and k < NB2 - 1) else 0
        if NEWF: extra = NEL if (k <= ELP <= nb) else 0
        if k < 13: I(f"s_waitcnt vmcnt({min(63, 9*rem + extra)})")
        mm2(k % NB2, NEWF and k == 0)
        if HOIST and FINL >= 0 and k == max(FINL, NB2 - 1): hoisted()
        if NEWF and "xnh" not in FLAGS and SPK <= k < SPK + 5:
            assert k > ELP
            hoisted(k - SPK)
        if "fst" in FLAGS and k in (0, 3, 7): stamp()
        if "fsa" in FLAGS and k in (0, 1, 2, 3, 4, 5, 6, 8, 10, 12): stamp()
        if "fsb" in FLAGS and k in ((0, 3, 5, 7, 10) if NEWF else (0, 3, 7)): stamp()
    e("F_done:")
    stamp()
    I("s_mul_i32 s40, s3, 20480")
    I("v_lshlrev_b32 v13, 4, v12")
    I("v_add_u32 v13, s40, v13")
    I("s_nop 7")
    for js in range(4):
        for jd in range(5):
            c = acc(jd, js)
            I(f"ds_write_b128 v13, a[{c}:{c+3}] offset:{(js*5+jd)*1024}")
    I("s_waitcnt lgkmcnt(0)")
    I("s_barrier")
    I("s_mul_i32 s40, s3, 5120")
    I("v_lshlrev_b32 v12, 4, v12")
    I("v_add_u32 v13, s40, v12")
    I("v_add_u32 v12, 40960, v13")
    R = 96
    for src in range(4):
        for jd in range(5):
            r = R + (src*5 + jd)*4
            I(f"ds_read_b128 v[{r}:{r+3}], v{13 if src < 2 else 12} offset:{(src%2)*20480 + jd*1024}")
    if HOIST:
        I("s_waitcnt lgkmcnt(0)")
        for jd in range(5):
            r0 = R + jd*4
            I(f"v_add_f32 v{r0}, v{r0}, v{R+(5+jd)*4}")
            I(f"v_add_f32 v{r0+1}, v{r0+1}, v{R+(5+jd)*4+1}")
            I(f"v_add_f32 v{r0+2}, v{r0+2}, v{R+(5+jd)*4+2}")
            I(f"v_add_f32 v{r0+3}, v{r0+3}, v{R+(5+jd)*4+3}")
            for src in range(2, 4):
                r = R + (src*5 + jd)*4
                for j in range(4):
                    I(f"v_add_f32 v{r0+j}, v{r0+j}, v{r+j}")
            b = r0; t = 16 + (jd % 2)*16; x0 = XX + 2*jd
            I(f"v_cvt_pk_bf16_f32 v{t+4}, v{b}, v{b+1}")
            I(f"v_cvt_pk_bf16_f32 v{t+5}, v{b+2}, v{b+3}")
            lo16(t, x0); hi16(t+1, x0); lo16(t+2, x0+1); hi16(t+3, x0+1)
            lo16(t+6, t+4); hi16(t+7, t+4); lo16(t+8, t+5); hi16(t+9, t+5)
            for r in range(4):
                I(f"v_add_f32 v{t+r}, v{t+r}, v{t+6+r}")
            I(f"v_cvt_pk_bf16_f32 v{t+10}, v{t}, v{t+1}")
            I(f"v_cvt_pk_bf16_f32 v{t+11}, v{t+2}, v{t+3}")
            I(f"buffer_store_dwordx2 v[{t+10}:{t+11}], v15, s[32:35], 0 offen offset:{32*jd}")
    else:
        IDB = 60
        I("s_and_b32 s44, s3, 1")
        I("s_lshl_b32 s44, s44, 4")
        I("v_add_u32 v64, s44, v1")
        I("v_lshrrev_b32 v65, 3, v64")
        I("v_cmp_eq_u32 vcc, v65, v2")
        I("v_and_b32 v65, 7, v64")
        I("v_and_b32 v66, 1, v65")
        I("v_lshlrev_b32 v66, 4, v66")
        I("v_mov_b32 v67, 0x3f80")
        I("v_lshlrev_b32 v67, v66, v67")
        I("v_lshrrev_b32 v65, 1, v65")
        I("v_cndmask_b32 v67, 0, v67, vcc")
        for j in range(4):
            I(f"v_cmp_eq_u32 vcc, {j}, v65")
            I("s_nop 1")
            I(f"v_cndmask_b32 v{IDB+j}, 0, v67, vcc")
        TY = 64
        I("s_nop 1")
        for jd in range(5):
            I(f"v_mfma_f32_16x16x32_bf16 v[{TY+4*jd}:{TY+4*jd+3}], v[{YF+4*jd}:{YF+4*jd+3}], v[{IDB}:{IDB+3}], 0")
        I("s_waitcnt lgkmcnt(0)")
        for jd in range(5):
            r0 = R + jd*4
            for src in range(1, 4):
                r = R + (src*5 + jd)*4
                for j in range(4):
                    I(f"v_add_f32 v{r0+j}, v{r0+j}, v{r+j}")
        I("s_waitcnt vmcnt(0)")
        for jd in range(5):
            b = R + jd*4
            ty = TY + 4*jd
            t = 180 + (jd % 2)*16
            x0 = XX + 2*jd; n0 = XX + 10 + 2*jd
            lo16(t, n0); hi16(t+1, n0); lo16(t+2, n0+1); hi16(t+3, n0+1)
            for r in range(4):
                I(f"v_mul_f32 v{t+r}, v{t+r}, v{ty+r}")
            I(f"v_cvt_pk_bf16_f32 v{t+4}, v{t}, v{t+1}")
            I(f"v_cvt_pk_bf16_f32 v{t+5}, v{t+2}, v{t+3}")
            lo16(t, t+4); hi16(t+1, t+4); lo16(t+2, t+5); hi16(t+3, t+5)
            lo16(t+6, x0); hi16(t+7, x0); lo16(t+8, x0+1); hi16(t+9, x0+1)
            for r in range(4):
                I(f"v_add_f32 v{t+r}, v{t+r}, v{t+6+r}")
            I(f"v_cvt_pk_bf16_f32 v{t+4}, v{t}, v{t+1}")
            I(f"v_cvt_pk_bf16_f32 v{t+5}, v{t+2}, v{t+3}")
            lo16(t, t+4); hi16(t+1, t+4); lo16(t+2, t+5); hi16(t+3, t+5)
            I(f"v_cvt_pk_bf16_f32 v{t+4}, v{b}, v{b+1}")
            I(f"v_cvt_pk_bf16_f32 v{t+5}, v{b+2}, v{b+3}")
            lo16(t+6, t+4); hi16(t+7, t+4); lo16(t+8, t+5); hi16(t+9, t+5)
            for r in range(4):
                I(f"v_add_f32 v{t+r}, v{t+r}, v{t+6+r}")
            I(f"v_cvt_pk_bf16_f32 v{t+10}, v{t}, v{t+1}")
            I(f"v_cvt_pk_bf16_f32 v{t+11}, v{t+2}, v{t+3}")
            I(f"buffer_store_dwordx2 v[{t+10}:{t+11}], v15, s[32:35], 0 offen offset:{32*jd}")
    I("s_waitcnt vmcnt(0)")
    stamp()
    stamp_dump(9)
    e("F_exit:")
    I("s_endpgm")
    kernel_desc("fin_kernel", 256+80+36*max(0, NB2-5), 102 if STAMP else 80, accum=256)

def gen_k3b():
    NSL = 7; ELS = 2; NSTG = 27
    for f_ in FLAGS:
        if f_.startswith("f3n"): NSL = int(f_[3:])
        if f_.startswith("f3e"): ELS = int(f_[3:])
    XST = 0
    for f_ in FLAGS:
        if f_.startswith("f3s"): XST = int(f_[3:])
    XYS = [ELS + q*XST for q in range(5)]
    SLOT = 18432; YB = NSL*SLOT; XB = YB + 10240
    F3LDS[0] = XB + 10240
    kernel_header("fin_kernel")
    I("s_cmp_ge_u32 s2, 256")
    I("s_cbranch_scc1 F_exit")
    I("s_load_dwordx2 s[6:7], s[0:1], 96")
    I("s_load_dwordx2 s[4:5], s[0:1], 0")
    I("s_load_dwordx2 s[30:31], s[0:1], 80")
    stamp()
    I("v_lshrrev_b32 v1, 6, v0")
    I("v_and_b32 v12, 63, v0")
    I("v_readfirstlane_b32 s3, v1")
    I("s_and_b32 s36, s2, 1")
    I("s_lshl_b32 s36, s36, 2")
    I("s_bfe_u32 s37, s2, 0x20003")
    I("s_add_u32 s36, s36, s37")
    I("s_bfe_u32 s37, s2, 0x20001")
    I("s_lshl_b32 s37, s37, 3")
    I("s_lshr_b32 s38, s2, 5")
    I("s_add_u32 s37, s37, s38")
    I("s_cmp_lt_u32 s3, 4")
    I("s_cbranch_scc1 F_cons")
    I("s_mul_i32 s52, s36, %d" % (5*55296))
    I("s_mul_i32 s53, s37, %d" % (4*55296))
    I("s_bfe_u32 s41, s3, 0x10001")
    I("s_lshl_b32 s46, s41, 10")
    I("s_mul_i32 s40, s41, 9216")
    I("s_and_b32 s42, s3, 1")
    I("s_cselect_b32 s52, s53, s52")
    I(f"s_cselect_b32 s44, {WS_H:#x}, {WS_WDT:#x}") if False else None
    I("v_lshl_add_u32 v3, v12, 4, s52")
    for i in range(1, 5):
        I(f"v_add_u32 v{3+i}, {i*55296 - 1024*(i % 4)}, v3")
    I("s_cbranch_scc1 F_ph")
    for t in range(2):
        if t == 1: e("F_ph:")
        n = 5 - t
        if t: I("s_add_u32 s40, s40, 5120")
        I("s_waitcnt lgkmcnt(0)")
        srd(8, 6, SZ_H if t else SZ_W, WS_H if t else WS_WDT)
        vq = []
        def issue(st):
            for i in range(n):
                if i % 4 == 0: I(f"s_add_u32 m0, s40, {(st % NSL)*SLOT + (i//4)*4096}")
                I(f"buffer_load_dwordx4 v{3+i}, s[8:11], s46 offen offset:{1024*(i % 4)} lds"); vq.append(st)
            I("s_add_u32 s46, s46, 2048")
        def xy():
            srd(16, 6, SZ_SD, WS_YT)
            srd(24, 4, SZ_SD)
            I("s_and_b32 s47, s3, 3")
            I("v_lshrrev_b32 v13, 3, v12")
            I("v_and_b32 v14, 7, v12")
            I("v_xor_b32 v14, v14, v13")
            YT2 = "yt2" in FLAGS
            CS_ = 128 if YT2 else 4096
            I(f"v_lshlrev_b32 v13, {7 if YT2 else 12}, v13")
            I("v_lshl_add_u32 v13, v14, 4, v13")
            I("s_mul_i32 s48, s36, %d" % (80*CS_))
            I("s_mul_i32 s49, s37, %d" % (81920 if YT2 else 128))
            I("s_add_u32 s48, s48, s49")
            I(f"s_lshl_b32 s49, s47, {10 if YT2 else 15}")
            I("s_add_u32 s48, s48, s49")
            I("s_lshl_b32 s50, s47, 10")
            I("s_mul_i32 s51, s37, %d" % (64*1280))
            I("s_mul_i32 s49, s36, 160")
            I("s_add_u32 s51, s51, s49")
            I("s_lshl_b32 s49, s47, 6")
            def xoff(dst, add):
                I(f"v_add_u32 v{dst}, s49, v12")
                if add: I(f"v_add_u32 v{dst}, {add}, v{dst}")
                I(f"v_mul_u32_u24 v15, 6554, v{dst}")
                I("v_lshrrev_b32 v15, 16, v15")
                I("v_mul_u32_u24 v15, 1120, v15")
                I(f"v_lshl_add_u32 v{dst}, v{dst}, 4, v15")
            xoff(16, 0); xoff(17, 256); xoff(18, 384)
        def xyi(q):
            if q == 0: xy()
            if q < 4:
                i = q // 2
                if q % 2 == 0:
                    I(f"s_add_u32 m0, s50, {YB + 4096*i}")
                    I("buffer_load_dwordx4 v13, s[16:19], s48 offen lds"); vq.append(-1)
                    I(f"s_add_u32 s48, s48, {4*8*(128 if 'yt2' in FLAGS else 4096)}")
                else:
                    I(f"s_add_u32 m0, s50, {XB + 4096*i}")
                    I(f"buffer_load_dwordx4 v{16+i}, s[24:27], s51 offen lds"); vq.append(-1)
                return
            I("s_cmp_eq_u32 s41, 0")
            I(f"s_cbranch_scc0 F_x5_{t}")
            I(f"s_add_u32 m0, s50, {YB + 8192}")
            I("buffer_load_dwordx4 v13, s[16:19], s48 offen lds")
            I(f"s_branch F_x5d_{t}")
            e(f"F_x5_{t}:")
            I(f"s_add_u32 m0, s50, {XB + 6144}")
            I("buffer_load_dwordx4 v18, s[24:27], s51 offen lds")
            e(f"F_x5d_{t}:")
            vq.append(-1)
        def xya(st):
            for q in range(5):
                if XYS[q] == st: xyi(q)
        PST = "pst" in FLAGS
        nst[0] = 1
        PP_ = NSL; LL = NSL - 1
        for f_ in FLAGS:
            if f_.startswith("f3p"): PP_ = int(f_[3:])
            if f_.startswith("f3l"): LL = int(f_[3:])
        nxt = 0
        for st in range(PP_):
            issue(st); nxt += 1
            xya(st)
            if PST and st in (0, 1, 2): stamp()
        for k in range(NSTG):
            idx = max(i for i, tg in enumerate(vq) if tg == k)
            nrem = len(vq) - 1 - idx
            assert nrem <= 63
            I(f"s_waitcnt vmcnt({nrem})")
            del vq[:idx+1]
            if PST and k in (0, 2, 6, 14): stamp()
            I("s_barrier")
            if PST and k in (2, 6, 14): stamp()
            cnt = 0
            while nxt <= min(k + LL, k - 1 + NSL, NSTG - 1) and cnt < 2:
                issue(nxt)
                xya(nxt)
                if nxt == ELS and XST == 0: cnt += 1
                nxt += 1; cnt += 1
            if PST and k in (2, 6, 14, 20): stamp()
        if PST: stamp_dump(9)
        nst[0] = 1
        I("s_endpgm")
    e("F_cons:")
    I("v_and_b32 v1, 15, v0")
    I("v_bfe_u32 v2, v0, 4, 2")
    I("s_lshl_b32 s42, s37, 6")
    I("s_lshl_b32 s43, s3, 4")
    I("s_add_u32 s42, s42, s43")
    I("v_add_u32 v14, s42, v1")
    I("v_lshlrev_b32 v14, 3, v14")
    FR = 24; AC = 120; YF = 140; XX = 160; IDB2 = 172; TQ = 176; TYQ = 184; OT = 192
    I("s_waitcnt lgkmcnt(0)")
    srd(20, 6, S*8, WS_ST)
    I(f"buffer_load_dwordx2 v[{XX+10}:{XX+11}], v14, s[20:23], 0 offen")
    srd(32, 30, SZ_SD)
    I("v_lshlrev_b32 v3, 4, v12")
    I(f"v_add_u32 v4, {3*SLOT}, v3")
    I(f"v_add_u32 v5, {6*SLOT}, v3")
    I("s_lshl_b32 s43, s3, 10")
    for i in range(3): I(f"v_add_u32 v{6+i}, s43, v{3+i}")
    I("s_lshr_b32 s43, s3, 1")
    I("s_lshl_b32 s43, s43, 2")
    I("v_add_u32 v13, s43, v2")
    I("v_and_b32 v14, 7, v1")
    I("v_xor_b32 v13, v13, v14")
    I("v_lshlrev_b32 v9, 7, v1")
    I("v_lshl_add_u32 v9, v13, 4, v9")
    I(f"v_add_u32 v9, {YB}, v9")
    I("s_mul_i32 s43, s3, 2560")
    I(f"s_add_u32 s43, s43, {XB}")
    I("v_mul_u32_u24 v10, 160, v1")
    I("v_lshl_add_u32 v10, v2, 3, v10")
    I("v_add_u32 v10, s43, v10")
    I("v_lshl_add_u32 v11, v12, 4, s43")
    for u in range(3):
        I(f"v_add_u32 v{16+u}, {64*u}, v12")
        I(f"v_mul_u32_u24 v15, 6554, v{16+u}")
        I("v_lshrrev_b32 v15, 16, v15")
        I("v_mul_u32_u24 v15, 1120, v15")
        I(f"v_lshl_add_u32 v{16+u}, v{16+u}, 4, v15")
    I("s_mul_i32 s42, s42, 1280")
    I("s_mul_i32 s43, s36, 160")
    I("s_add_u32 s42, s42, s43")
    I("s_and_b32 s44, s3, 1")
    I("s_lshl_b32 s44, s44, 4")
    I(f"v_add_u32 v{TQ}, s44, v1")
    I(f"v_lshrrev_b32 v{TQ+1}, 3, v{TQ}")
    I(f"v_cmp_eq_u32 vcc, v{TQ+1}, v2")
    I(f"v_and_b32 v{TQ+1}, 7, v{TQ}")
    I(f"v_and_b32 v{TQ+2}, 1, v{TQ+1}")
    I(f"v_lshlrev_b32 v{TQ+2}, 4, v{TQ+2}")
    I(f"v_mov_b32 v{TQ+3}, 0x3f80")
    I(f"v_lshlrev_b32 v{TQ+3}, v{TQ+2}, v{TQ+3}")
    I(f"v_lshrrev_b32 v{TQ+1}, 1, v{TQ+1}")
    I(f"v_cndmask_b32 v{TQ+3}, 0, v{TQ+3}, vcc")
    for j in range(4):
        I(f"v_cmp_eq_u32 vcc, {j}, v{TQ+1}")
        I("s_nop 1")
        I(f"v_cndmask_b32 v{IDB2+j}, 0, v{TQ+3}, vcc")
    def piece(jd):
        global out
        save = out; out = []
        ty = TYQ + (jd % 2)*4; t = TQ + (jd % 2)*4
        x0 = XX + 2*jd
        I(f"v_mfma_f32_16x16x32_bf16 v[{ty}:{ty+3}], v[{YF+4*jd}:{YF+4*jd+3}], v[{IDB2}:{IDB2+3}], 0")
        lo16(t, x0); hi16(t+1, x0); lo16(t+2, x0+1); hi16(t+3, x0+1)
        for r in range(4): I(f"v_add_f32 v{t+r}, v{t+r}, v{XX+11}")
        for r in range(4): I(f"v_cvt_pk_bf16_f32 v{t+r}, 0, v{t+r}")
        for r in range(4): I(f"v_mul_f32 v{t+r}, v{t+r}, v{XX+10}")
        for r in range(4): I(f"v_cvt_pk_bf16_f32 v{t+r}, 0, v{t+r}")
        if "f3i" not in FLAGS:
            I("s_nop 7")
            I("s_nop 3")
        for r in range(4):
            I(f"v_mul_f32 v{t+r}, v{t+r}, v{ty+r}")
        for r in range(4): I(f"v_cvt_pk_bf16_f32 v{t+r}, 0, v{t+r}")
        lo16(ty, x0); hi16(ty+1, x0); lo16(ty+2, x0+1); hi16(ty+3, x0+1)
        for r in range(4):
            I(f"v_add_f32 v{YF+4*jd+r}, v{t+r}, v{ty+r}")
        for r in range(4): I(f"v_cvt_pk_bf16_f32 v{YF+4*jd+r}, 0, v{YF+4*jd+r}")
        r_ = out; out = save
        return r_
    def rds(k):
        sl = k % NSL; bi = sl // 3; o = (sl % 3)*SLOT; f = FR + (k & 1)*48
        r = []
        for b in range(2):
            r.append(f"ds_read_b128 v[{f+24*b}:{f+24*b+3}], v{6+bi} offset:{o + b*9216 + 5120}")
            for jd in range(5):
                r.append(f"ds_read_b128 v[{f+24*b+4+4*jd}:{f+24*b+7+4*jd}], v{3+bi} offset:{o + b*9216 + 1024*jd}")
        return r
    def mms(k):
        f = FR + (k & 1)*48
        r = []
        for b in range(2):
            for jd in range(5):
                c = AC + 4*jd
                cin = "0" if (k == 0 and b == 0) else f"v[{c}:{c+3}]"
                r.append(f"v_mfma_f32_16x16x32_bf16 v[{c}:{c+3}], v[{f+24*b+4+4*jd}:{f+24*b+7+4*jd}], v[{f+24*b}:{f+24*b+3}], {cin}")
        return r
    K0 = XYS[4] + 1
    assert K0 + 5 < NSTG - 1
    for k in range(NSTG):
        I("s_barrier")
        if k in (0, 1, 3, 6, 10, 14, 18, 22, 26): stamp()
        rr = rds(k); mm_ = mms(k-1) if k else []
        pc = []
        PSTEP = 2 if "f3h" in FLAGS else 1
        if K0 < k <= K0 + 5*PSTEP and (k - K0 - 1) % PSTEP == 0:
            if k == K0 + 1: I("s_waitcnt vmcnt(0)")
            pc = piece((k - K0 - 1)//PSTEP)
        I(rr[0]); I(rr[1]); rr = rr[2:]
        if "f3i" in FLAGS and pc: out.append(pc.pop(0))
        for i in range(10):
            if mm_: I(mm_[i])
            I(rr[i])
            if "f3i" in FLAGS:
                for _ in range(4):
                    if pc: out.append(pc.pop(0))
        if k == K0:
            for jd in range(5):
                I(f"ds_read_b128 v[{YF+4*jd}:{YF+4*jd+3}], v9 offset:{2048*jd}")
                I(f"ds_read_b64 v[{XX+2*jd}:{XX+2*jd+1}], v10 offset:{32*jd}")
        out.extend(pc)
        if k < NSTG - 1: I("s_waitcnt lgkmcnt(0)")
    mm_ = mms(NSTG - 1)
    I("s_waitcnt lgkmcnt(6)")
    for x in mm_[:5]: I(x)
    I("s_waitcnt lgkmcnt(0)")
    for x in mm_[5:]: I(x)
    stamp()
    I("s_nop 7")
    for jd in range(5):
        b = AC + 4*jd; xa = YF + 4*jd; t = OT + 2*jd
        if jd == 4: I("s_nop 3")
        for r in range(4): I(f"v_cvt_pk_bf16_f32 v{b+r}, 0, v{b+r}")
        for r in range(4): I(f"v_add_f32 v{b+r}, v{b+r}, v{xa+r}")
        I(f"v_cvt_pk_bf16_f32 v{t}, v{b}, v{b+1}")
        I(f"v_cvt_pk_bf16_f32 v{t+1}, v{b+2}, v{b+3}")
        I(f"ds_write_b64 v10, v[{t}:{t+1}] offset:{32*jd}")
    I("s_waitcnt lgkmcnt(0)")
    for u in range(3):
        I(f"ds_read_b128 v[{FR+4*u}:{FR+4*u+3}], v11 offset:{1024*u}")
    for u in range(3):
        I(f"s_waitcnt lgkmcnt({2-u})")
        if u == 2: I("s_mov_b64 exec, 0xffffffff")
        I(f"buffer_store_dwordx4 v[{FR+4*u}:{FR+4*u+3}], v{16+u}, s[32:35], s42 offen{OSC}")
    I("s_mov_b64 exec, -1")
    stamp()
    if STAMP: I("s_waitcnt vmcnt(0)")
    stamp()
    stamp_dump(9)
    e("F_exit:")
    I("s_endpgm")
    e("CODE_END:")
    kernel_desc("fin_kernel", 208, 102 if STAMP else 80)
F3LDS = [0]
OSC = " sc1" if "osc" in FLAGS else (" nt" if "ont" in FLAGS else "")

def gen_k0():
    kernel_header("init_kernel")
    I(f"s_cmp_ge_u32 s2, {NK0}")
    I("s_cbranch_scc1 I_exit")
    I("s_load_dwordx2 s[6:7], s[0:1], 96")
    I("s_load_dwordx2 s[4:5], s[0:1], 72")
    I("v_lshrrev_b32 v1, 6, v0")
    I("s_nop 0")
    I("v_readfirstlane_b32 s3, v1")
    I("s_lshl_b32 s24, s2, 2")
    I("s_add_u32 s24, s24, s3")
    I("s_min_u32 s24, s24, 269")
    I("s_mul_i32 s17, s24, 0xCCCD")
    I("s_lshr_b32 s17, s17, 19")
    I("s_mul_i32 s18, s17, 10")
    I("s_sub_u32 s18, s24, s18")
    I("v_and_b32 v1, 7, v0")
    I("v_bfe_u32 v2, v0, 3, 2")
    I("v_bfe_u32 v6, v0, 5, 1")
    I("s_lshl_b32 s18, s18, 6")
    I("v_lshl_add_u32 v1, v1, 3, s18")
    I("s_lshl_b32 s19, s17, 1")
    I("v_add_u32 v6, s19, v6")
    I("v_lshlrev_b32 v7, 5, v6")
    I("v_lshl_add_u32 v7, v2, 2, v7")
    I("v_mul_u32_u24 v3, 0x500, v7")
    I("v_lshl_add_u32 v3, v1, 1, v3")
    I("v_add_u32 v4, 0x5000, v3")
    I("s_waitcnt lgkmcnt(0)")
    srd(8, 4, SZ_W)
    srd(12, 6, SZ_W, WS_WDT)
    for i in range(8):
        b = 3 if i < 4 else 4
        I(f"buffer_load_dwordx4 v[{8+4*i}:{11+4*i}], v{b}, s[8:11], 0 offen offset:{(i%4)*1280}")
    srd(28, 6, FL_SZ, WS_FL)
    I("s_lshl_b32 s25, s2, 12")
    I("v_lshlrev_b32 v72, 4, v0")
    for j in range(4): I(f"v_mov_b32 v{76+j}, 0")
    I("s_cmp_ge_u32 s2, 8")
    I("s_cbranch_scc1 I_noz")
    I("buffer_store_dwordx4 v[76:79], v72, s[28:31], s25 offen")
    e("I_noz:")
    I("s_mov_b32 s20, 0x05040100")
    I("s_mov_b32 s21, 0x07060302")
    I("v_lshrrev_b32 v5, 4, v1")
    I("v_mul_u32_u24 v5, 54, v5")
    I("v_add_u32 v5, v5, v6")
    I("v_lshlrev_b32 v5, 10, v5")
    I("v_lshl_add_u32 v5, v2, 8, v5")
    I("v_and_b32 v7, 15, v1")
    I("v_lshl_add_u32 v5, v7, 4, v5")
    I("s_waitcnt vmcnt(0)")
    for dd in range(8):
        ob = 40 + 4*dd
        sel = 20 + (dd & 1)
        for q in range(4):
            I(f"v_perm_b32 v{ob+q}, v{8+4*(2*q+1)+dd//2}, v{8+4*(2*q)+dd//2}, s{sel}")
        I(f"buffer_store_dwordx4 v[{ob}:{ob+3}], v5, s[12:15], 0 offen offset:{16*dd}")
    e("I_exit:")
    I("s_endpgm")
    kernel_desc("init_kernel", 80, 40)
NK0 = 68

def main():
    hdr = open("parallel_sum__ssm_conv_h3__glu_gated_bilinear__prompt.s.ref").read().splitlines()
    for line in hdr:
        if line.startswith("; @launch"):
            break
        if line.startswith(";"):
            e(line)
    if "k0" in FLAGS: e(f"; @launch kernel=init_kernel grid=({NK0},1,1) block=(256,1,1) lds=0")
    if not FUSE: e(f"; @launch kernel=prep_kernel grid=({N_LN+N_KV+N_PF},1,1) block=(256,1,1) lds=0")
    if BIG:
        e("; @launch kernel=mid_kernel grid=(256,1,1) block=(512,1,1) lds=163840")
    else:
        e(f"; @launch kernel=mid_kernel grid=({N_G1+N_CV},1,1) block=(256,1,1) lds={LDS2}")
    if "f3" in FLAGS: e("; @launch kernel=fin_kernel grid=(256,1,1) block=(512,1,1) lds=F3LDS")
    elif not G2F: e(f"; @launch kernel=fin_kernel grid=(256,1,1) block=(256,1,1) lds=81920")
    e('.amdgcn_target "amdgcn-amd-amdhsa--gfx950"')
    if not FUSE: gen_prep()
    if "k0" in FLAGS: gen_k0()
    gen_k2()
    if "f3" in FLAGS: gen_k3b()
    elif not G2F: gen_k3()
    dst = sys.argv[1] if len(sys.argv) > 1 else "parallel_sum__ssm_conv_h3__glu_gated_bilinear__prompt.s"
    o2 = []
    for i, ln in enumerate(out):
        o2.append(ln)
        if " m0," in ln and i + 1 < len(out) and out[i+1].rstrip().endswith(" lds"): o2.append("    s_nop 0")
    out[:] = o2
    open(dst, "w").write(("\n".join(out) + "\n").replace("lds=F3LDS", f"lds={F3LDS[0]}"))

main()
```
